```python
import torch

def _softmax(x, axis=-1):
    return torch.softmax(x, dim=axis)

def _gelu(x):
    return torch.nn.functional.gelu(x, approximate='tanh')

def _silu(x):
    return torch.nn.functional.silu(x)

def _sigmoid(x):
    return torch.sigmoid(x)

def _layernorm(x, axis=-1, eps=1e-05):
    m = x.mean(dim=axis, keepdim=True)
    v = x.var(dim=axis, keepdim=True, unbiased=False)
    return (x - m) / torch.sqrt(v + eps)

def _scatter_add(tgt, idx, src, axis=0):
    return tgt.clone().index_add_(axis, idx, src)

def _segment_sum(src, seg, n):
    out = torch.zeros((n,) + src.shape[1:], dtype=src.dtype)
    return out.index_add_(0, seg, src)

def _pad(x, pw):
    flat = tuple((v for pair in reversed(pw) for v in pair))
    return torch.nn.functional.pad(x, flat)
kernel_name = 'adaLN_cond__ssm_conv_s4d__mixer_channel_mlp__prompt'

def setup_inputs():

    _w = lambda a: (lambda t: t.to(torch.bfloat16) if t.is_floating_point() else t)(torch.as_tensor(a))

    def _A_setup():
        Bsz, L, D, N = (1, 2048, 512, 128)
        return {'u': _w((lambda *s: torch.randn(*s, dtype=torch.bfloat16) * 0.05)(Bsz, L, D)), 'log_A_real': _w((lambda *s: torch.randn(*s, dtype=torch.bfloat16) * 3.2)(D, N) * 0.5), 'A_imag': _w((lambda *s: torch.randn(*s, dtype=torch.bfloat16) * 0.05)(D, N) * 3.14), 'C_real': _w((lambda *s: torch.randn(*s, dtype=torch.bfloat16) * 0.1)(D, N) / N ** 0.5), 'C_imag': _w((lambda *s: torch.randn(*s, dtype=torch.bfloat16) * 0.2)(D, N) / N ** 0.5), 'log_dt': _w((lambda *s: torch.randn(*s, dtype=torch.bfloat16) * 0.05)(D) * 0.5 - 4.0), 'D_skip': _w((lambda *s: torch.randn(*s, dtype=torch.bfloat16) * 0.1)(D))}
    _A_in = _A_setup()

    def _B_setup():
        B, S, D, F = (1, 2048, 512, 1376)
        return {'x': _w((lambda *s: torch.randn(*s, dtype=torch.bfloat16) * 0.05)(B, S, D)), 'w1': _w((lambda *s: torch.randn(*s, dtype=torch.bfloat16) * 3.2)(D, F) * D ** (-0.5)), 'b1': _w((lambda *s: torch.randn(*s, dtype=torch.bfloat16) * 0.8)(F)), 'w2': _w((lambda *s: torch.randn(*s, dtype=torch.bfloat16) * 3.2)(F, D) * F ** (-0.5)), 'b2': _w((lambda *s: torch.randn(*s, dtype=torch.bfloat16) * 3.2)(D))}
    _B_in = _B_setup()
    return {'A_u': _A_in['u'], 'A_log_A_real': _A_in['log_A_real'], 'A_A_imag': _A_in['A_imag'], 'A_C_real': _A_in['C_real'], 'A_C_imag': _A_in['C_imag'], 'A_log_dt': _A_in['log_dt'], 'A_D_skip': _A_in['D_skip'], 'B_x': _B_in['x'], 'B_w1': _B_in['w1'], 'B_b1': _B_in['b1'], 'B_w2': _B_in['w2'], 'B_b2': _B_in['b2'], 'c': _w((lambda *s: torch.randn(*s, dtype=torch.bfloat16) * 0.4)(1, 512) * 8.0), 'w_mod': _w((lambda *s: torch.randn(*s, dtype=torch.bfloat16) * 0.4)(512, 6 * 512) * 512 ** (-0.5) * 8.0)}

def reference(A_u, A_log_A_real, A_A_imag, A_C_real, A_C_imag, A_log_dt, A_D_skip, B_x, B_w1, B_b1, B_w2, B_b2, c, w_mod):

    def _A_ref(u, log_A_real, A_imag, C_real, C_imag, log_dt, D_skip):
        L = u.shape[1]
        dt = torch.exp(log_dt)
        A = -torch.exp(log_A_real) + 1j * A_imag
        C = (C_real + 1j * C_imag) * dt[:, None]
        pos = (lambda x, dt: x.to(dt))(torch.arange(L), log_dt.dtype)
        P = torch.exp((A * dt[:, None])[:, :, None] * pos[None, None, :])
        K = 2.0 * torch.einsum('dn,dnl->dl', C, P).real
        L2 = 2 * L
        u_t = (lambda x, *d: x.permute(*d))(u, 0, 2, 1)
        Kf = (lambda x, *a, **k: torch.fft.rfft(x.float(), *a, **k))(K, L2)
        Uf = (lambda x, *a, **k: torch.fft.rfft(x.float(), *a, **k))(u_t, L2)
        y = (lambda x, *a, **k: torch.fft.irfft(x, *a, **k).to(torch.bfloat16))(Uf * Kf[None, :, :], L2)[:, :, :L]
        y = (lambda x, *d: x.permute(*d))(y, 0, 2, 1)
        return y + u * D_skip[None, None, :]

    def _B_ref(x, w1, b1, w2, b2):
        y = _layernorm(x, axis=-1)
        h = _gelu(torch.einsum('bsd,df->bsf', y, w1) + b1)
        return torch.einsum('bsf,fd->bsd', h, w2) + b2
    x = A_u
    mod = (_silu(c) @ w_mod).reshape(c.shape[0], 6, 1, -1)
    sa, ca, ga, sb, cb, gb = (mod[:, 0].clone(), mod[:, 1].clone(), mod[:, 2].clone(), mod[:, 3].clone(), mod[:, 4].clone(), mod[:, 5].clone())
    h = _layernorm(x, axis=-1) * (1 + ca) + sa
    x = x + ga * _A_ref(h, A_log_A_real, A_A_imag, A_C_real, A_C_imag, A_log_dt, A_D_skip)
    h = _layernorm(x, axis=-1) * (1 + cb) + sb
    x = x + gb * _B_ref(h, B_w1, B_b1, B_w2, B_b2)
    return x
```

```python
HDR = """; Kernarg layout for this problem (136 bytes, ptrs only, base s[0:1]):
;
"""
ARG = dict(u=0, logA=8, Aim=16, Cre=24, Cim=32, logdt=40, D=48, Bx=56, w1=64, b1=72, w2=80, b2=88, c=96, wmod=104,
           out=112, dbg=120, ws=128)

class Asm:
    def __init__(self):
        self.lines = []
        self.launch = []
        self.uid = 0
    def __call__(self, s=""):
        for l in s.split("\n"):
            self.lines.append(l)
    def label(self, base="L"):
        self.uid += 1
        return f"{base}_{self.uid}"
    def begin_kernel(self, name, grid, block=256, lds=0):
        self.launch.append(f"; @launch kernel={name} grid=({grid},1,1) block=({block},1,1) lds={lds}")
        self.add_kernel_body(name)
    def relaunch(self, name, grid, block=256, lds=0):
        self.launch.append(f"; @launch kernel={name} grid=({grid},1,1) block=({block},1,1) lds={lds}")
    def add_kernel_body(self, name):
        self(".text")
        self(f".globl {name}")
        self(".p2align 8")
        self(f".type {name},@function")
        self(f"{name}:")
    def end_kernel(self, name, vgpr, sgpr=100, accum=None):
        if accum is None:
            accum = min(256, (vgpr + 3) // 4 * 4)
        self("s_endpgm")
        self('.section .rodata,"a"')
        self(".p2align 6")
        self(f".amdhsa_kernel {name}")
        self(f"  .amdhsa_next_free_vgpr {vgpr}")
        self(f"  .amdhsa_next_free_sgpr {sgpr}")
        self(f"  .amdhsa_accum_offset {accum}")
        self("  .amdhsa_group_segment_fixed_size 0")
        self("  .amdhsa_kernarg_size 136")
        self("  .amdhsa_user_sgpr_count 2")
        self("  .amdhsa_user_sgpr_kernarg_segment_ptr 1")
        self("  .amdhsa_system_sgpr_workgroup_id_x 1")
        self("  .amdhsa_float_denorm_mode_32 3")
        self(".end_amdhsa_kernel")
    def text(self, single=False):
        launch = self.launch
        if single:
            l = launch[0]
            import re
            launch = [re.sub(r"kernel=\S+ ", "", l)]
        return HDR + "\n".join(launch) + "\n" + '.amdgcn_target "amdgcn-amd-amdhsa--gfx950"\n' + "\n".join(self.lines) + "\n"
    def ldptr(self, sreg, name):
        self(f"s_load_dwordx2 s[{sreg}:{sreg+1}], s[0:1], {ARG[name]}")
    def srd(self, d, base, nbytes, off=0):
        if off:
            self(f"s_add_u32 s{d}, s{base}, {off}")
            self(f"s_addc_u32 s{d+1}, s{base+1}, 0")
        else:
            self(f"s_mov_b32 s{d}, s{base}")
            self(f"s_mov_b32 s{d+1}, s{base+1}")
        self(f"s_mov_b32 s{d+2}, {nbytes}")
        self(f"s_mov_b32 s{d+3}, 0x20000")
```

```python
import sys
sys.path.insert(0, "dev")
from asmgen import *

XT    = 0x0000000
X2T   = 0x0200000
KREV  = 0x0400000
KW    = 4160
STAT1 = 0x0620000
MODF  = 0x0630000
SCAL  = 0x0634000
SVP   = 0x0640000
W1F   = 0x0700000
W2F   = 0x0900000
HF    = 0x0B00000
WS_USED = 0x1100000

STAMP = 0x1100000
PROF = False
def stamp(a, i):
    if PROF:
        a(f"s_memrealtime s[{80+2*i}:{81+2*i}]")
        a("s_waitcnt lgkmcnt(0)")
def stamp_store(a, kid, wsreg, swave):
    if not PROF: return
    a("s_mov_b64 exec, -1")
    a("s_memrealtime s[90:91]")
    a("s_waitcnt lgkmcnt(0) vmcnt(0)")
    a("s_memrealtime s[92:93]")
    a("s_waitcnt lgkmcnt(0)")
    a(f"s_lshl_b32 s94, s2, 3")
    a(f"s_add_u32 s94, s94, s{swave}")
    a(f"s_lshl_b32 s94, s94, 5")
    a(f"s_add_u32 s94, s94, {STAMP + kid * 0x40000}")
    a("v_mov_b32 v0, s94")
    for i in range(7):
        a(f"v_mov_b32 v{2+i}, s{80+2*i}")
    a("s_mov_b64 exec, 1")
    a(f"global_store_dwordx4 v0, v[2:5], s[{wsreg}:{wsreg+1}]")
    a(f"global_store_dwordx3 v0, v[6:8], s[{wsreg}:{wsreg+1}] offset:16")

LOG2E = "0x3fb8aa3b"
INV2PI = "0.15915494"

def wave_id(a, s, vt):
    a(f"v_lshrrev_b32 v{vt}, 6, v0")
    a("s_nop 0")
    a(f"v_readfirstlane_b32 s{s}, v{vt}")

def rbf(a, vd, vs):
    a(f"v_cvt_pk_bf16_f32 v{vd}, v{vs}, v{vs}")
    a(f"v_and_b32 v{vd}, 0xffff0000, v{vd}")

def csq(a, dst, src, tmp):
    return [
        f"v_pk_mul_f32 v[{tmp}:{tmp+1}], v[{src}:{src+1}], v[{src}:{src+1}] op_sel:[0,0] op_sel_hi:[1,0]",
        f"v_pk_fma_f32 v[{dst}:{dst+1}], v[{src}:{src+1}], v[{src}:{src+1}], v[{tmp}:{tmp+1}] op_sel:[1,1,0] op_sel_hi:[0,1,1] neg_lo:[1,0,0]",
    ]

def cmulconj(a, dst, p, c, tmp):
    return [
        f"v_pk_mul_f32 v[{tmp}:{tmp+1}], v[{p}:{p+1}], v[{c}:{c+1}] op_sel:[0,0] op_sel_hi:[1,0] neg_hi:[0,1]",
        f"v_pk_fma_f32 v[{dst}:{dst+1}], v[{p}:{p+1}], v[{c}:{c+1}], v[{tmp}:{tmp+1}] op_sel:[1,1,0] op_sel_hi:[0,1,1] neg_lo:[1,0,0] neg_hi:[1,0,0]",
    ]

def k1(a):
    name = "k1_kernel"
    a.begin_kernel(name, 512, 256, 20480)
    a("s_cmp_ge_u32 s2, 512")
    a("s_cbranch_scc1 K1_EXIT")
    stamp(a, 0)
    a("s_load_dwordx8 s[4:11], s[0:1], 8")
    a("s_load_dwordx2 s[12:13], s[0:1], 40")
    a("s_load_dwordx2 s[14:15], s[0:1], 128")
    a("s_load_dwordx2 s[16:17], s[0:1], 0")
    a("s_load_dwordx4 s[20:23], s[0:1], 96")
    wave_id(a, 24, 1)
    a("v_and_b32 v1, 63, v0")
    a("s_cmp_ge_u32 s2, 256")
    a("s_cbranch_scc1 K1_TSM")
    a("s_lshr_b32 s25, s24, 1")
    a("s_and_b32 s26, s24, 1")
    a("s_lshl_b32 s27, s2, 1")
    a("s_add_u32 s27, s27, s25")
    a("s_lshl_b32 s28, s27, 8")
    a("s_lshl_b32 s29, s26, 7")
    a("s_add_u32 s28, s28, s29")
    a("v_lshl_add_u32 v2, v1, 1, s28")
    a("s_lshl_b32 s30, s2, 2")
    a("s_waitcnt lgkmcnt(0)")
    a("global_load_ushort v4, v2, s[4:5]")
    a("global_load_ushort v5, v2, s[6:7]")
    a("global_load_ushort v6, v2, s[8:9]")
    a("global_load_ushort v7, v2, s[10:11]")
    a("s_load_dword s29, s[12:13], s30")
    a("v_and_b32 v16, 15, v1")
    a("v_cmp_eq_u32 s[32:33], 0, v16")
    a("v_cmp_le_u32 s[34:35], 8, v16")
    a("v_lshrrev_b32 v18, 4, v1")
    a("v_cndmask_b32 v19, v16, 16, s[32:33]")
    a("v_cvt_f32_u32 v19, v19")
    a("s_lshl_b32 s31, s24, 10")
    a("v_lshl_add_u32 v17, v18, 6, s31")
    a("v_lshl_add_u32 v20, v1, 4, s31")
    a("v_mov_b32 v21, 0x3f80")
    for r in range(112, 128):
        a(f"v_mov_b32 v{r}, 0")
    a("s_waitcnt lgkmcnt(0)")
    a("s_lshl_b32 s36, s25, 4")
    a("s_lshr_b32 s29, s29, s36")
    a("s_lshl_b32 s29, s29, 16")
    a(f"v_mov_b32 v8, {LOG2E}")
    a("v_mul_f32 v9, s29, v8")
    a("v_exp_f32 v9, v9")
    a("s_nop 0")
    rbf(a, 9, 9)
    a("s_waitcnt vmcnt(0)")
    a("v_lshlrev_b32 v4, 16, v4")
    a("v_lshlrev_b32 v5, 16, v5")
    a("v_lshlrev_b32 v6, 16, v6")
    a("v_lshlrev_b32 v7, 16, v7")
    a("v_mul_f32 v4, v4, v8")
    a("v_exp_f32 v4, v4")
    a("v_mul_f32 v13, v5, v9")
    a("v_mul_f32 v14, v6, v9")
    rbf(a, 4, 4)
    a("v_mul_f32 v15, v7, v9")
    a("v_mul_f32 v12, v4, v9")
    a(f"v_mul_f32 v13, {INV2PI}, v13")
    a("v_add_f32 v14, v14, v14")
    a("v_add_f32 v15, v15, v15")
    a("v_mul_f32 v12, v12, v8")
    a("v_sub_f32 v12, 0, v12")
    a("ds_write_b128 v20, v[12:15]")
    a("s_waitcnt lgkmcnt(0)")
    stamp(a, 1)
    R = [[32 + 4 * u for u in range(4)], [48 + 4 * u for u in range(4)]]
    PA = [64 + 2 * u for u in range(4)]
    PB = [72 + 2 * u for u in range(4)]
    TT = [80 + 2 * u for u in range(4)]
    QF = [88 + 4 * e for e in range(4)]
    GF = [104, 108]
    DD = [112 + 4 * e for e in range(4)]
    CPK = [128 + u for u in range(4)]
    MAG = [132 + 2 * u for u in range(4)]
    for u in range(4):
        a(f"ds_read_b128 v[{R[0][u]}:{R[0][u]+3}], v17 offset:{u*16}")
    for ks in range(4):
        Rc = R[ks & 1]
        if ks + 1 < 4:
            for u in range(4):
                a(f"ds_read_b128 v[{R[(ks+1)&1][u]}:{R[(ks+1)&1][u]+3}], v17 offset:{(ks+1)*256+u*16}")
            a("s_waitcnt lgkmcnt(4)")
        else:
            a("s_waitcnt lgkmcnt(0)")
        for u in range(4): a(f"v_mul_f32 v{TT[u]}, v{Rc[u]}, v19")
        for u in range(4): a(f"v_mul_f32 v{TT[u]+1}, v{Rc[u]+1}, v19")
        for u in range(4): a(f"v_exp_f32 v{MAG[u]}, v{TT[u]}")
        for u in range(4): a(f"v_fract_f32 v{TT[u]+1}, v{TT[u]+1}")
        for u in range(4): a(f"v_cvt_pk_bf16_f32 v{CPK[u]}, v{Rc[u]+2}, -v{Rc[u]+3}")
        for u in range(4): a(f"v_cos_f32 v{PB[u]}, v{TT[u]+1}")
        for u in range(4): a(f"v_sin_f32 v{PB[u]+1}, v{TT[u]+1}")
        a("s_nop 0")
        for u in range(4):
            a(f"v_pk_mul_f32 v[{PA[u]}:{PA[u]+1}], v[{PB[u]}:{PB[u]+1}], v[{MAG[u]}:{MAG[u]+1}] op_sel:[0,0] op_sel_hi:[1,0]")
        cur, oth = PA, PB
        for e in range(4):
            for u in range(4): a(f"v_cvt_pk_bf16_f32 v{QF[e]+u}, v{cur[u]}, v{cur[u]+1}")
            sq = [csq(a, oth[u], cur[u], TT[u]) for u in range(4)]
            for u in range(4): a(sq[u][0])
            for u in range(4): a(f"v_cndmask_b32 v{QF[e]+u}, v{QF[e]+u}, v21, s[32:33]")
            for u in range(4): a(sq[u][1])
            cur, oth = oth, cur
        for e in range(4):
            g = GF[e & 1]
            cm = [cmulconj(a, oth[u], cur[u], Rc[u] + 2, TT[u]) for u in range(4)]
            for u in range(4): a(cm[u][0])
            for u in range(4): a(cm[u][1])
            for u in range(4): a(f"v_cvt_pk_bf16_f32 v{g+u}, v{oth[u]}, v{oth[u]+1}")
            if e == 0:
                for u in range(4): a(f"v_cndmask_b32 v{g+u}, v{g+u}, v{CPK[u]}, s[32:33]")
            if e < 3:
                sq = [csq(a, oth[u], cur[u], TT[u]) for u in range(4)]
                for u in range(4): a(sq[u][0])
                a(f"v_mfma_f32_16x16x32_bf16 v[{DD[e]}:{DD[e]+3}], v[{QF[e]}:{QF[e]+3}], v[{g}:{g+3}], v[{DD[e]}:{DD[e]+3}]")
                for u in range(4): a(sq[u][1])
                cur, oth = oth, cur
            else:
                a("s_nop 1")
                a(f"v_mfma_f32_16x16x32_bf16 v[{DD[e]}:{DD[e]+3}], v[{QF[e]}:{QF[e]+3}], v[{g}:{g+3}], v[{DD[e]}:{DD[e]+3}]")
    stamp(a, 2)
    a("s_lshl_b32 s36, s24, 12")
    a("s_add_u32 s36, s36, 4096")
    a("v_lshl_add_u32 v22, v1, 4, s36")
    a("s_lshl_b32 s37, s25, 13")
    a("s_lshl_b32 s38, s26, 11")
    a("s_add_u32 s37, s37, s38")
    a("s_add_u32 s37, s37, 4096")
    a("v_lshl_add_u32 v23, v1, 4, s37")
    a("s_nop 3")
    for e in range(4):
        a(f"ds_write_b128 v22, v[{DD[e]}:{DD[e]+3}] offset:{e*1024}")
    a("s_waitcnt lgkmcnt(0)")
    a("s_barrier")
    a("ds_read_b128 v[32:35], v23")
    a("ds_read_b128 v[36:39], v23 offset:4096")
    a("ds_read_b128 v[40:43], v23 offset:1024")
    a("ds_read_b128 v[44:47], v23 offset:5120")
    a("s_mul_i32 s39, s25, 1344")
    a("s_lshl_b32 s40, s26, 9")
    a("s_add_u32 s40, s40, s39")
    a("v_lshlrev_b32 v24, 5, v16")
    a("v_lshl_add_u32 v24, v18, 3, v24")
    a("v_add_u32 v24, s40, v24")
    a("s_cmp_eq_u32 s26, 0")
    a("s_cselect_b64 s[36:37], -1, s[34:35]")
    a("s_waitcnt lgkmcnt(0)")
    for r in range(4): a(f"v_add_f32 v{32+r}, v{32+r}, v{36+r}")
    for r in range(4): a(f"v_add_f32 v{40+r}, v{40+r}, v{44+r}")
    a("v_cvt_pk_bf16_f32 v32, v32, v33")
    a("v_cvt_pk_bf16_f32 v33, v34, v35")
    a("v_cvt_pk_bf16_f32 v40, v40, v41")
    a("v_cvt_pk_bf16_f32 v41, v42, v43")
    a("s_mov_b64 s[42:43], exec")
    a("s_mov_b64 exec, s[36:37]")
    a("ds_write_b64 v24, v[32:33]")
    a("s_mov_b64 exec, s[34:35]")
    a("ds_write_b64 v24, v[40:41] offset:256")
    a("s_mov_b64 exec, 1")
    a("s_cmp_eq_u32 s26, 1")
    a("s_cbranch_scc0 K1_no640")
    a("s_add_u32 s41, s39, 1280")
    a("v_mov_b32 v25, s41")
    a("ds_write_b16 v25, v40")
    a("K1_no640:")
    a("s_mov_b64 exec, s[42:43]")
    a("s_waitcnt lgkmcnt(0)")
    a("s_barrier")
    stamp(a, 3)
    a("s_lshl_b32 s40, s26, 6")
    a("v_add_u32 v26, s40, v1")
    a("v_lshlrev_b32 v27, 3, v26")
    a("v_sub_u32 v27, 2047, v27")
    a("v_cvt_f32_u32 v28, v27")
    a("s_sub_u32 s41, s39, 34048")
    for rnd in range(2):
        if rnd == 1:
            a("v_add_f32 v28, 0xc4800000, v28")
            a("v_subrev_u32 v27, 1024, v27")
        for t in range(8):
            if t == 0: a(f"v_mov_b32 v{48}, v28")
            else: a(f"v_add_f32 v{48+t}, {-float(t)}, v28")
        for p in range(4):
            a(f"v_cvt_pk_bf16_f32 v{56+p}, v{48+2*p}, v{49+2*p}")
        for p in range(4):
            a(f"v_and_b32 v{48+2*p}, 0xffff, v{56+p}")
            a(f"v_lshrrev_b32 v{49+2*p}, 16, v{56+p}")
        for t in range(8):
            a(f"v_lshl_add_u32 v{48+t}, v{48+t}, 1, s41")
        if rnd == 1:
            a("v_cmp_le_u32 vcc, 112, v26")
            for t in range(8):
                a(f"v_subrev_u32 v{56+(t&3)}, {t}, v27")
                a(f"v_lshl_add_u32 v{56+(t&3)}, v{56+(t&3)}, 1, s39")
                a(f"v_cndmask_b32 v{48+t}, v{48+t}, v{56+(t&3)}, vcc")
        o = 76 + 8 * rnd
        for t in range(8):
            a(f"ds_read_u16 v{o+t}, v{48+t}")
    a(f"s_mul_i32 s40, s27, {KW}")
    a(f"s_add_u32 s40, s40, {KREV}")
    a("v_lshl_add_u32 v29, v26, 4, s40")
    a("v_add_u32 v30, 2048, v29")
    a("v_mov_b32 v72, 0\nv_mov_b32 v73, 0\nv_mov_b32 v74, 0\nv_mov_b32 v75, 0")
    a("v_add_u32 v31, 4096, v29")
    a("s_waitcnt lgkmcnt(8)")
    for p in range(4):
        a(f"v_lshl_or_b32 v{64+p}, v{77+2*p}, 16, v{76+2*p}")
    a("global_store_dwordx4 v29, v[64:67], s[14:15]")
    a("s_waitcnt lgkmcnt(0)")
    for p in range(4):
        a(f"v_lshl_or_b32 v{68+p}, v{85+2*p}, 16, v{84+2*p}")
    a("global_store_dwordx4 v30, v[68:71], s[14:15]")
    a("v_cmp_gt_u32 vcc, 4, v26")
    a("s_and_saveexec_b64 s[42:43], vcc")
    a("s_cbranch_execz K1_END")
    a("global_store_dwordx4 v31, v[72:75], s[14:15]")
    a("s_branch K1_END")
    a("K1_TSM:   ; LINT-RESET")
    a("s_sub_u32 s25, s2, 256")
    a("s_and_b32 s28, s25, 7")
    a("s_lshr_b32 s29, s25, 3")
    a("s_lshr_b32 s26, s29, 3")
    a("s_lshl_b32 s27, s28, 2")
    a("s_add_u32 s26, s26, s27")
    a("s_and_b32 s27, s29, 7")
    a("s_lshl_b32 s30, s28, 8")
    a("s_lshl_b32 s31, s29, 3")
    a("s_add_u32 s30, s30, s31")
    a("s_lshl_b32 s28, s26, 16")
    a("s_lshl_b32 s29, s27, 7")
    a("s_add_u32 s28, s28, s29")
    a("v_lshrrev_b32 v2, 3, v0")
    a("v_and_b32 v3, 7, v0")
    a("v_lshlrev_b32 v4, 10, v2")
    a("v_lshl_add_u32 v4, v3, 4, v4")
    a("v_add_u32 v4, s28, v4")
    a("v_add_u32 v5, 0x8000, v4")
    a("s_lshl_b32 s31, s24, 1")
    a("s_add_u32 s30, s30, s31")
    a("s_lshl_b32 s31, s30, 10")
    a("v_lshl_add_u32 v6, v1, 4, s31")
    a("s_and_b32 s33, s25, 7")
    a("s_mul_i32 s33, s33, 24")
    a("s_lshr_b32 s34, s25, 3")
    a("s_add_u32 s33, s33, s34")
    a("v_lshrrev_b32 v7, 1, v0")
    a("v_and_b32 v24, 1, v0")
    a("v_mul_u32_u24 v25, 6144, v7")
    a("v_lshl_add_u32 v25, v24, 4, v25")
    a("s_lshl_b32 s35, s33, 5")
    a("v_add_u32 v25, s35, v25")
    a("v_add_u32 v26, 786432, v25")
    a("v_add_u32 v27, 786432, v26")
    a("v_add_u32 v28, 786432, v27")
    a("v_lshlrev_b32 v29, 1, v7")
    a("s_waitcnt lgkmcnt(0)")
    a("global_load_dwordx4 v[8:11], v4, s[16:17]")
    a("global_load_dwordx4 v[12:15], v5, s[16:17]")
    a("global_load_dwordx4 v[16:19], v6, s[16:17]")
    a("global_load_dwordx4 v[20:23], v6, s[16:17] offset:1024")
    a("s_cmp_ge_u32 s25, 192")
    a("s_cbranch_scc1 K1_nomodld")
    for k in range(4):
        a(f"global_load_ushort v{48+k}, v29, s[20:21] offset:{256*k}")
    for k, vo in enumerate((25, 26, 27, 28)):
        a(f"global_load_dwordx4 v[{32+4*k}:{35+4*k}], v{vo}, s[22:23]")
    a("K1_nomodld:")
    a("v_mul_u32_u24 v30, 144, v2")
    a("v_lshl_add_u32 v30, v3, 4, v30")
    a("s_cmp_ge_u32 s25, 192")
    a("s_cbranch_scc1 K1_w0")
    a("s_waitcnt vmcnt(10)")
    a("s_branch K1_w1")
    a("K1_w0:")
    a("s_waitcnt vmcnt(2)")
    a("K1_w1:   ; LINT-RESET (T loads have landed; S/mod loads may be outstanding)")
    stamp(a, 1)
    a("ds_write_b128 v30, v[8:11]")
    a("ds_write_b128 v30, v[12:15] offset:4608")
    a("s_cmp_ge_u32 s25, 192")
    a("s_cbranch_scc1 K1_w2")
    a("s_waitcnt vmcnt(8)")
    a("s_branch K1_w3")
    a("K1_w2:")
    a("s_waitcnt vmcnt(0)")
    a("K1_w3:   ; LINT-RESET")
    a("v_mov_b32 v31, 0x3f803f80")
    a("v_mov_b32 v52, 0\nv_mov_b32 v53, 0\nv_mov_b32 v54, 0\nv_mov_b32 v55, 0")
    for k in range(4):
        a(f"v_dot2_f32_bf16 v52, v{16+k}, v31, v52")
        a(f"v_dot2_f32_bf16 v53, v{16+k}, v{16+k}, v53")
        a(f"v_dot2_f32_bf16 v54, v{20+k}, v31, v54")
        a(f"v_dot2_f32_bf16 v55, v{20+k}, v{20+k}, v55")
    a("s_nop 1")
    for ctl in ("row_shr:1", "row_shr:2", "row_shr:4", "row_shr:8", "row_bcast:15 row_mask:0xa", "row_bcast:31 row_mask:0xc"):
        for r in range(52, 56):
            a(f"v_add_f32_dpp v{r}, v{r}, v{r} {ctl}")
        a("s_nop 0") if False else None
    a("s_nop 1")
    for k, r in enumerate(range(52, 56)):
        a(f"v_readlane_b32 s{36+k}, v{r}, 63")
    a("s_nop 1")
    a("v_cmp_eq_u32 vcc, 0, v1")
    a("v_mov_b32 v56, s38")
    a("v_mov_b32 v57, s39")
    a("v_mov_b32 v58, s36")
    a("v_mov_b32 v59, s37")
    a("v_cndmask_b32 v56, v56, v58, vcc")
    a("v_cndmask_b32 v57, v57, v59, vcc")
    a("v_mul_f32 v56, 0x3b000000, v56")
    a("v_mul_f32 v57, 0x3b000000, v57")
    a("v_fma_f32 v57, -v56, v56, v57")
    a("v_max_f32 v57, 0, v57")
    rbf(a, 56, 56)
    rbf(a, 57, 57)
    a("v_add_f32 v57, 0x3727c5ac, v57")
    rbf(a, 57, 57)
    a("v_sqrt_f32 v57, v57")
    a("s_nop 0")
    rbf(a, 57, 57)
    a("v_rcp_f32 v58, v57")
    a("s_nop 0")
    a("v_mul_f32 v59, v56, v58")
    a("v_sub_f32 v59, 0, v59")
    a("s_lshl_b32 s31, s30, 2")
    a(f"s_add_u32 s31, s31, {STAT1}")
    a("v_lshl_add_u32 v60, v1, 2, s31")
    a("v_add_u32 v61, 8192, v60")
    a("v_cmp_gt_u32 vcc, 2, v1")
    a("s_and_saveexec_b64 s[42:43], vcc")
    a("global_store_dword v60, v58, s[14:15]")
    a("global_store_dword v61, v59, s[14:15]")
    a("s_mov_b64 exec, s[42:43]")
    a("s_cmp_ge_u32 s25, 192")
    a("s_cbranch_scc1 K1_nomodc")
    a("s_waitcnt vmcnt(2)")
    for k in range(4):
        a(f"v_lshlrev_b32 v{48+k}, 16, v{48+k}")
    for k in range(4):
        a(f"v_mul_f32 v{52+k}, 0xbfb8aa3b, v{48+k}")
    for k in range(4):
        a(f"v_exp_f32 v{52+k}, v{52+k}")
    a("s_nop 0")
    for k in range(4):
        a(f"v_add_f32 v{52+k}, 1.0, v{52+k}")
    for k in range(4):
        a(f"v_rcp_f32 v{56+k}, v{52+k}")
    a("s_nop 0")
    for k in range(4):
        a(f"v_mul_f32 v{60+k}, v{48+k}, v{56+k}")
    for k in range(4):
        a(f"v_fma_f32 v{48+k}, -v{60+k}, v{52+k}, v{48+k}")
    for k in range(4):
        a(f"v_fma_f32 v{48+k}, v{48+k}, v{56+k}, v{60+k}")
    for k in range(4):
        rbf(a, 48 + k, 48 + k)
    for k in range(4):
        for p in range(4):
            w = 32 + 4 * k + p
            a(f"v_lshlrev_b32 v62, 16, v{w}")
            a(f"v_and_b32 v63, 0xffff0000, v{w}")
            if k == 0:
                a(f"v_mul_f32 v{64+2*p}, v62, v48")
                a(f"v_mul_f32 v{65+2*p}, v63, v48")
            else:
                a(f"v_fmac_f32 v{64+2*p}, v62, v{48+k}")
                a(f"v_fmac_f32 v{65+2*p}, v63, v{48+k}")
    a("v_lshlrev_b32 v61, 5, v0")
    a("ds_write_b128 v61, v[64:67] offset:9216")
    a("ds_write_b128 v61, v[68:71] offset:9232")
    a("K1_nomodc:")
    stamp(a, 2)
    a("s_waitcnt lgkmcnt(0)")
    a("s_barrier")
    stamp(a, 3)
    a("v_lshrrev_b32 v2, 4, v1")
    a("v_bfe_u32 v3, v1, 2, 2")
    a("v_and_b32 v4, 3, v1")
    a("v_lshl_add_u32 v5, v2, 3, v3")
    a("v_mul_u32_u24 v5, 144, v5")
    a("v_lshl_add_u32 v5, v4, 3, v5")
    a("s_lshl_b32 s31, s24, 5")
    a("v_add_u32 v5, s31, v5")
    a("ds_read_b64_tr_b16 v[8:9], v5")
    a("ds_read_b64_tr_b16 v[10:11], v5 offset:576")
    a(f"ds_read_b64_tr_b16 v[12:13], v5 offset:{32*144}")
    a(f"ds_read_b64_tr_b16 v[14:15], v5 offset:{36*144}")
    a("v_and_b32 v6, 15, v1")
    a("v_lshlrev_b32 v6, 12, v6")
    a("v_lshl_add_u32 v6, v2, 4, v6")
    a("s_lshl_b32 s31, s27, 18")
    a("s_lshl_b32 s32, s24, 16")
    a("s_add_u32 s31, s31, s32")
    a("s_lshl_b32 s32, s26, 7")
    a("s_add_u32 s31, s31, s32")
    a(f"s_add_u32 s31, s31, {XT}") if XT else None
    a("v_add_u32 v6, s31, v6")
    a("s_waitcnt lgkmcnt(2)")
    a("global_store_dwordx4 v6, v[8:11], s[14:15]")
    a("s_waitcnt lgkmcnt(0)")
    a("global_store_dwordx4 v6, v[12:15], s[14:15] offset:64")
    a("s_cmp_ge_u32 s25, 192")
    a("s_cbranch_scc1 K1_END")
    a("s_cmp_lg_u32 s24, 0")
    a("s_cbranch_scc1 K1_END")
    a("v_and_b32 v2, 15, v1")
    a("v_lshrrev_b32 v3, 4, v1")
    a("v_lshlrev_b32 v4, 11, v3")
    a("v_lshl_add_u32 v4, v2, 2, v4")
    for i in range(32):
        a(f"ds_read_b32 v{16+i}, v4 offset:{9216+64*i}")
        if i == 14: a("s_waitcnt lgkmcnt(7)")
    a("s_waitcnt lgkmcnt(0)")
    for st in (16, 8, 4, 2, 1):
        for i in range(st):
            a(f"v_add_f32 v{16+i}, v{16+i}, v{16+st+i}")
    a("s_nop 0")
    a("v_mov_b32 v17, v16")
    a("s_nop 1")
    a("v_permlane16_swap_b32 v16, v17")
    a("s_nop 0")
    a("v_add_f32 v16, v16, v17")
    a("s_nop 0")
    a("v_mov_b32 v17, v16")
    a("s_nop 1")
    a("v_permlane32_swap_b32 v16, v17")
    a("s_nop 0")
    a("v_add_f32 v16, v16, v17")
    rbf(a, 16, 16)
    a("s_lshl_b32 s31, s33, 6")
    a(f"s_add_u32 s31, s31, {MODF}")
    a("v_lshl_add_u32 v5, v2, 2, s31")
    a("v_cmp_gt_u32 vcc, 16, v1")
    a("s_and_saveexec_b64 s[42:43], vcc")
    a("global_store_dword v5, v16, s[14:15]")
    a("K1_END:   ; LINT-RESET")
    stamp_store(a, 0, 14, 24)
    a("K1_EXIT:")
    a.end_kernel(name, 144, 100)


KC_CH = 33280
CS    = 4160
UB    = 66560
U_CH  = 7600
SCR   = 81792
FLG   = SCR + 16384
SIDE  = FLG + 64
SIDE_SZ = 11520
K2_LDS = SIDE + 4 * SIDE_SZ

def conv_path(a, hb, tag):
    if hb == 0: steps = [(d, True) for d in range(24)]
    else: steps = [(d, True) for d in range(24, 32)] + [(d, False) for d in range(32, 64)]
    ACC = [32, 48]
    SET = [64, 88, 112]
    def reads(k):
        d, both = steps[k]; b = SET[k % 3]
        out = []
        for hf in (0, 1):
            out.append(f"ds_read_b128 v[{b+4*hf}:{b+4*hf+3}], v2 offset:{64*d + 32*(1-hf)}")
        tiles = (0, 1) if both else (1,)
        for t in tiles:
            for hf in (0, 1):
                r = b + 8 + 8 * t + 4 * hf
                out.append(f"ds_read_b128 v[{r}:{r+3}], v3 offset:{(31 + 32*t - d)*80 + 32*hf}")
        return out
    n = len(steps)
    for k in range(2):
        for x in reads(k): a(x)
    for k in range(n):
        d, both = steps[k]; b = SET[k % 3]
        nxt = reads(k + 2) if k + 2 < n else []
        after = len(nxt) + (len(reads(k + 1)) if k + 1 < n else 0)
        mf = []
        tiles = (0, 1) if both else (1,)
        for hf in (0, 1):
            for t in tiles:
                r = b + 8 + 8 * t + 4 * hf
                mf.append(f"v_mfma_f32_32x32x16_bf16 v[{ACC[t]}:{ACC[t]+15}], v[{b+4*hf}:{b+4*hf+3}], v[{r}:{r+3}], v[{ACC[t]}:{ACC[t]+15}]")
        for x in nxt: a(x)
        a(f"s_waitcnt lgkmcnt({after})")
        for m in mf: a(m)
    stamp(a, 3)
    give, keep = (ACC[1], ACC[0]) if hb == 0 else (ACC[0], ACC[1])
    a("s_nop 7")
    a("s_nop 3")
    for i in range(4):
        a(f"ds_write_b128 v4, v[{give+4*i}:{give+4*i+3}] offset:{1024*i}")
    for i in range(4):
        a(f"ds_read_b64 v[{64+2*i}:{65+2*i}], v6 offset:{16*i}")
    a("s_waitcnt lgkmcnt(0)")
    a("v_mov_b32 v72, 1")
    a("ds_write_b32 v7, v72")
    a(f"K2_poll{tag}:")
    a("ds_read_b32 v73, v8")
    a("s_waitcnt lgkmcnt(0)")
    a("v_readfirstlane_b32 s40, v73")
    a("s_cmp_eq_u32 s40, 1")
    a(f"s_cbranch_scc0 K2_poll{tag}")
    for i in range(4):
        a(f"ds_read_b128 v[{80+4*i}:{83+4*i}], v5 offset:{1024*i}")
    for i in range(4):
        for q in range(2):
            a(f"v_lshlrev_b32 v{96+4*i+2*q}, 16, v{64+2*i+q}")
            a(f"v_and_b32 v{97+4*i+2*q}, 0xffff0000, v{64+2*i+q}")
    a("s_waitcnt vmcnt(0)")
    for i in range(4):
        for q in range(2):
            a(f"v_lshlrev_b32 v{112+4*i+2*q}, 16, v{144+2*i+q}")
            a(f"v_and_b32 v{113+4*i+2*q}, 0xffff0000, v{144+2*i+q}")
    a("s_waitcnt lgkmcnt(0)")
    for j in range(8):
        a(f"v_pk_add_f32 v[{keep+2*j}:{keep+2*j+1}], v[{keep+2*j}:{keep+2*j+1}], v[{80+2*j}:{81+2*j}]")
    for j in range(8):
        a(f"v_pk_fma_f32 v[{keep+2*j}:{keep+2*j+1}], v[{96+2*j}:{97+2*j}], s[36:37], v[{keep+2*j}:{keep+2*j+1}] op_sel_hi:[1,0,1]")
    for j in range(8):
        a(f"v_pk_fma_f32 v[{keep+2*j}:{keep+2*j+1}], v[{keep+2*j}:{keep+2*j+1}], s[36:37], v[{112+2*j}:{113+2*j}] op_sel:[0,1,0] op_sel_hi:[1,1,1]")
    for j in range(8):
        a(f"v_cvt_pk_bf16_f32 v{64+j}, v{keep+2*j}, v{keep+2*j+1}")
    a("s_nop 1")
    a("v_permlane32_swap_b32 v64, v66")
    a("v_permlane32_swap_b32 v65, v67")
    a("v_permlane32_swap_b32 v68, v70")
    a("v_permlane32_swap_b32 v69, v71")
    a("s_nop 0")
    a("global_store_dwordx4 v9, v[64:67], s[14:15] sc1")
    a("global_store_dwordx4 v9, v[68:71], s[14:15] offset:32 sc1")
    a("s_branch K2_END")

def side_load_and_stage(a):
    for i in range(8):
        a(f"buffer_load_dwordx4 v[{32+4*i}:{35+4*i}], v10, s[44:47], s49 offen nt")
        if i < 7: a("s_add_u32 s49, s49, s48")

def k2(a):
    name = "k2_kernel"
    a.begin_kernel(name, 256, 512, K2_LDS)
    a("s_cmp_ge_u32 s2, 256")
    a("s_cbranch_scc1 K2_EXIT")
    stamp(a, 0)
    a("s_load_dwordx2 s[14:15], s[0:1], 128")
    a("s_load_dwordx2 s[12:13], s[0:1], 48")
    a("s_load_dwordx2 s[16:17], s[0:1], 64")
    a("s_load_dwordx2 s[18:19], s[0:1], 80")
    wave_id(a, 24, 1)
    a("v_and_b32 v1, 63, v0")
    a("s_cmp_ge_u32 s24, 4")
    a("s_cbranch_scc1 K2_SIDE")
    a("s_lshl_b32 s27, s2, 1")
    a("s_lshr_b32 s25, s24, 1")
    a("s_and_b32 s26, s24, 1")
    a("s_lshl_b32 s28, s27, 12")
    a(f"s_add_u32 s28, s28, {XT}") if XT else None
    a("v_lshl_add_u32 v44, v0, 4, s28")
    a("v_add_u32 v45, 4096, v44")
    a("v_lshlrev_b32 v46, 5, v0")
    a(f"v_add_u32 v46, {STAT1}, v46")
    a(f"v_add_u32 v47, 8192, v46")
    a(f"s_mul_i32 s29, s27, {KW}")
    a(f"s_add_u32 s29, s29, {KREV + 4080}")
    a("v_lshlrev_b32 v48, 4, v0")
    a("v_sub_u32 v48, s29, v48")
    a(f"v_add_u32 v49, {KW}, v48")
    a("v_and_b32 v50, 31, v1")
    a("v_lshrrev_b32 v51, 5, v1")
    a("s_lshl_b32 s30, s25, 12")
    a("s_add_u32 s30, s30, s28")
    a("s_lshl_b32 s31, s26, 11")
    a("s_add_u32 s30, s30, s31")
    a("v_lshlrev_b32 v52, 6, v50")
    a("v_lshl_add_u32 v52, v51, 3, v52")
    a("v_add_u32 v52, s30, v52")
    a("s_lshl_b32 s32, s27, 2")
    a(f"s_add_u32 s33, s32, {MODF}")
    a(f"s_add_u32 s34, s32, {MODF + 2048}")
    a(f"s_add_u32 s35, s32, {MODF + 4096}")
    a("s_lshl_b32 s31, s2, 2")
    a("s_waitcnt lgkmcnt(0)")
    a("global_load_dwordx4 v[28:31], v48, s[14:15]")
    a("global_load_dwordx4 v[32:35], v48, s[14:15] offset:16")
    a("global_load_dwordx4 v[36:39], v49, s[14:15]")
    a("global_load_dwordx4 v[40:43], v49, s[14:15] offset:16")
    a("global_load_dwordx4 v[4:7], v44, s[14:15]")
    a("global_load_dwordx4 v[8:11], v45, s[14:15]")
    a("global_load_dwordx4 v[12:15], v46, s[14:15]")
    a("global_load_dwordx4 v[16:19], v46, s[14:15] offset:16")
    a("global_load_dwordx4 v[20:23], v47, s[14:15]")
    a("global_load_dwordx4 v[24:27], v47, s[14:15] offset:16")
    for i in range(4):
        a(f"global_load_dwordx2 v[{144+2*i}:{145+2*i}], v52, s[14:15] offset:{16*i}")
    a("s_load_dwordx2 s[50:51], s[14:15], s33")
    a("s_load_dwordx2 s[52:53], s[14:15], s34")
    a("s_load_dwordx2 s[54:55], s[14:15], s35")
    a("s_load_dword s56, s[12:13], s31")
    a("v_mov_b32 v56, 0\nv_mov_b32 v57, 0\nv_mov_b32 v58, 0\nv_mov_b32 v59, 0")
    a("v_mul_u32_u24 v53, 171, v0")
    a("v_lshrrev_b32 v53, 9, v53")
    a("v_mul_u32_u24 v54, 3, v53")
    a("v_sub_u32 v54, v0, v54")
    a(f"v_mul_u32_u24 v53, {CS}, v53")
    a("v_lshl_add_u32 v53, v54, 4, v53")
    a("v_cmp_gt_u32 vcc, 48, v0")
    a("s_and_saveexec_b64 s[42:43], vcc")
    a("ds_write_b128 v53, v[56:59]")
    a("s_mov_b64 exec, s[42:43]")
    a("v_lshlrev_b32 v53, 4, v0")
    a(f"v_add_u32 v53, {UB}, v53")
    a("v_cmp_gt_u32 vcc, 155, v0")
    a("s_and_saveexec_b64 s[42:43], vcc")
    a(f"ds_write_b128 v53, v[56:59]")
    a(f"ds_write_b128 v53, v[56:59] offset:{U_CH}")
    a("s_mov_b64 exec, s[42:43]")
    a("v_lshlrev_b32 v53, 2, v0")
    a("v_cmp_gt_u32 vcc, 4, v0")
    a("s_and_saveexec_b64 s[42:43], vcc")
    a(f"v_add_u32 v53, {FLG}, v53")
    a("ds_write_b32 v53, v56")
    a("s_mov_b64 exec, s[42:43]")
    a("v_and_b32 v53, 7, v50")
    a("v_lshrrev_b32 v54, 3, v50")
    a(f"v_mul_u32_u24 v2, {CS}, v53")
    a("v_sub_u32 v54, v54, v51")
    a("v_add_u32 v54, 1, v54")
    a("v_lshl_add_u32 v2, v54, 4, v2")
    a(f"s_mul_i32 s38, s25, {KC_CH}")
    a("v_add_u32 v2, s38, v2")
    a("v_mul_u32_u24 v3, 80, v50")
    a("v_lshl_add_u32 v3, v51, 4, v3")
    a(f"s_mul_i32 s38, s25, {U_CH}")
    a(f"s_add_u32 s38, s38, {UB}")
    a("v_add_u32 v3, s38, v3")
    a("v_lshlrev_b32 v55, 4, v0")
    a("v_add_u32 v55, 48, v55")
    for c in range(2):
        W = 28 + 8 * c
        a(f"s_waitcnt vmcnt({12 - 2*c})")
        V = 60
        for j in range(7): a(f"v_alignbit_b32 v{V+j}, v{W+j+1}, v{W+j}, 16")
        for j in range(1, 7): a(f"v_alignbit_b32 v{68+j-1}, v{W+j+1}, v{W+j}, 16")
        for j in range(1, 7): a(f"v_mov_b32 v{76+j-1}, v{W+j}")
        off = c * KC_CH
        a(f"ds_write_b128 v55, v[{W}:{W+3}] offset:{off + 7*CS}")
        a(f"ds_write_b128 v55, v[{W+2}:{W+5}] offset:{off + 3*CS}")
        a(f"ds_write_b128 v55, v[{V}:{V+3}] offset:{off + 6*CS}")
        a(f"ds_write_b128 v55, v[{V+2}:{V+5}] offset:{off + 2*CS}")
        a(f"ds_write_b128 v55, v[68:71] offset:{off + 4*CS}")
        a(f"ds_write_b128 v55, v[70:73] offset:{off + 0*CS}")
        a(f"ds_write_b128 v55, v[76:79] offset:{off + 5*CS}")
        a(f"ds_write_b128 v55, v[78:81] offset:{off + 1*CS}")
    a("s_waitcnt vmcnt(4) lgkmcnt(0)")
    a("v_add_f32 v60, 1.0, s52")
    a("v_add_f32 v61, 1.0, s53")
    rbf(a, 60, 60); rbf(a, 61, 61)
    a("s_nop 0")
    a("v_readfirstlane_b32 s58, v60")
    a("v_readfirstlane_b32 s60, v61")
    a("s_mov_b32 s59, s50")
    a("s_mov_b32 s61, s51")
    a("s_lshl_b32 s38, s25, 4")
    a("s_lshr_b32 s36, s56, s38")
    a("s_lshl_b32 s36, s36, 16")
    a("s_cmp_eq_u32 s25, 0")
    a("s_cselect_b32 s37, s54, s55")
    a("v_lshrrev_b32 v62, 2, v0")
    a("v_mul_u32_u24 v62, 80, v62")
    a("v_and_b32 v63, 3, v0")
    a("v_lshl_add_u32 v62, v63, 4, v62")
    a(f"v_add_u32 v62, {UB + 31*80}, v62")
    for c in range(2):
        X = 4 + 4 * c
        for q in range(4):
            a(f"v_lshlrev_b32 v{64+2*q}, 16, v{X+q}")
            a(f"v_and_b32 v{65+2*q}, 0xffff0000, v{X+q}")
        for q in range(4):
            a(f"v_pk_fma_f32 v[{64+2*q}:{65+2*q}], v[{64+2*q}:{65+2*q}], v[{12+2*q}:{13+2*q}], v[{20+2*q}:{21+2*q}]")
        for q in range(4):
            a(f"v_pk_fma_f32 v[{64+2*q}:{65+2*q}], v[{64+2*q}:{65+2*q}], s[{58+2*c}:{59+2*c}], s[{58+2*c}:{59+2*c}] op_sel:[0,0,1] op_sel_hi:[1,0,1]")
        for q in range(4):
            a(f"v_cvt_pk_bf16_f32 v{72+4*c+q}, v{64+2*q}, v{65+2*q}")
        a(f"ds_write_b128 v62, v[{72+4*c}:{75+4*c}] offset:{c*U_CH}")
    a("s_lshl_b32 s38, s24, 12")
    a(f"s_add_u32 s38, s38, {SCR}")
    a("v_lshl_add_u32 v4, v1, 4, s38")
    a("s_xor_b32 s39, s24, 1")
    a("s_lshl_b32 s38, s39, 12")
    a(f"s_add_u32 s38, s38, {SCR}")
    a("v_lshl_add_u32 v5, v1, 4, s38")
    a("s_lshl_b32 s38, s24, 2")
    a(f"s_add_u32 s38, s38, {FLG}")
    a("v_mov_b32 v7, s38")
    a("s_lshl_b32 s38, s39, 2")
    a(f"s_add_u32 s38, s38, {FLG}")
    a("v_mov_b32 v8, s38")
    a("v_mul_u32_u24 v6, 80, v50")
    a("v_lshl_add_u32 v6, v51, 3, v6")
    a(f"s_mul_i32 s38, s25, {U_CH}")
    a(f"s_mul_i32 s39, s26, {32*80}")
    a("s_add_u32 s38, s38, s39")
    a(f"s_add_u32 s38, s38, {UB + 31*80}")
    a("v_add_u32 v6, s38, v6")
    a("v_lshlrev_b32 v9, 6, v50")
    a("v_lshl_add_u32 v9, v51, 4, v9")
    a(f"s_add_u32 s30, s30, {X2T - XT}")
    a("v_add_u32 v9, s30, v9")
    for r in range(32, 64): a(f"v_mov_b32 v{r}, 0")
    stamp(a, 1)
    a("s_waitcnt lgkmcnt(0)")
    a("s_barrier")
    stamp(a, 2)
    a("s_cmp_eq_u32 s26, 0")
    a("s_cbranch_scc0 K2_B")
    conv_path(a, 0, "A")
    a("K2_B:   ; LINT-RESET")
    conv_path(a, 1, "B")
    a("K2_SIDE:   ; LINT-RESET")
    a("s_sub_u32 s25, s24, 4")
    a("s_lshl_b32 s26, s25, 8")
    a("s_add_u32 s26, s26, s2")
    a(f"s_mul_i32 s27, s25, {SIDE_SZ}")
    a(f"s_add_u32 s27, s27, {SIDE}")
    a("s_cmp_gt_u32 s26, 348")
    a("s_cbranch_scc1 K2_SIDE_IDLE")
    a("s_cmp_eq_u32 s26, 348")
    a("s_cbranch_scc1 K2_TAB")
    a("v_lshrrev_b32 v2, 2, v1")
    a("v_and_b32 v3, 3, v1")
    a("v_lshrrev_b32 v4, 4, v1")
    a("v_bfe_u32 v5, v1, 2, 2")
    a("v_mul_u32_u24 v11, 80, v2")
    a("v_lshl_add_u32 v11, v3, 4, v11")
    a("v_add_u32 v11, s27, v11")
    a("v_lshl_add_u32 v12, v4, 2, v5")
    a("v_mul_u32_u24 v12, 80, v12")
    a("v_lshl_add_u32 v12, v3, 3, v12")
    a("v_add_u32 v12, s27, v12")
    a("s_cmp_ge_u32 s26, 172")
    a("s_cbranch_scc1 K2_W2")
    a("s_mul_i32 s28, s26, 1525")
    a("s_lshr_b32 s28, s28, 16")
    a("s_mul_i32 s29, s28, 43")
    a("s_sub_u32 s29, s26, s29")
    a("v_mul_u32_u24 v10, 2752, v2")
    a("v_lshl_add_u32 v10, v3, 4, v10")
    a(f"s_mul_i32 s49, s28, {128*2752}")
    a("s_lshl_b32 s30, s29, 6")
    a("s_add_u32 s49, s49, s30")
    a(f"s_mov_b32 s48, {16*2752}")
    a("s_lshl_b32 s31, s28, 9")
    a("v_lshl_add_u32 v13, v1, 2, s31")
    a(f"v_add_u32 v13, {MODF + 3*2048}, v13")
    a("v_add_u32 v14, 2048, v13")
    a("s_waitcnt lgkmcnt(0)")
    a.srd(44, 16, 512 * 1376 * 2)
    a("global_load_dword v20, v13, s[14:15]")
    a("global_load_dword v21, v13, s[14:15] offset:256")
    a("global_load_dword v22, v14, s[14:15]")
    a("global_load_dword v23, v14, s[14:15] offset:256")
    side_load_and_stage(a)
    a("s_barrier")
    a("s_waitcnt vmcnt(8)")
    a("v_add_f32 v22, 1.0, v22")
    a("v_add_f32 v23, 1.0, v23")
    rbf(a, 22, 22); rbf(a, 23, 23)
    a("v_lshl_add_u32 v15, v1, 2, s27")
    a("v_lshl_add_u32 v16, v1, 1, s27")
    a("ds_write_b32 v15, v22 offset:10240")
    a("ds_write_b32 v15, v23 offset:10496")
    a("ds_write_b16_d16_hi v16, v20 offset:10752")
    a("ds_write_b16_d16_hi v16, v21 offset:10880")
    for i in range(8):
        a(f"s_waitcnt vmcnt({7-i})")
        a(f"ds_write_b128 v11, v[{32+4*i}:{35+4*i}] offset:{16*80*i}")
    a("v_and_b32 v17, 15, v1")
    a("v_cmp_eq_u32 s[50:51], 0, v17")
    a("v_cmp_eq_u32 s[52:53], 1, v17")
    a("v_mov_b32 v18, 0")
    a("v_mov_b32 v19, 0x3f803f80")
    a("v_cndmask_b32 v18, v18, v19, s[50:51]")
    a("v_mov_b32 v19, 0")
    a("v_cndmask_b32 v19, v19, -1, s[52:53]")
    a("v_lshl_add_u32 v24, v4, 4, s27")
    a("v_lshl_add_u32 v25, v4, 3, s27")
    for r in range(96, 112): a(f"v_mov_b32 v{r}, 0")
    a("s_lshl_b32 s30, s29, 15")
    a("s_lshl_b32 s31, s28, 12")
    a("s_add_u32 s30, s30, s31")
    a(f"s_add_u32 s30, s30, {W1F}")
    a("v_lshl_add_u32 v26, v1, 4, s30")
    a("v_add_u32 v27, 16384, v26")
    a("s_waitcnt lgkmcnt(0)")
    for ks in range(4):
        a(f"ds_read_b128 v[32:35], v24 offset:{10240 + 128*ks}")
        a(f"ds_read_b128 v[36:39], v24 offset:{10240 + 128*ks + 64}")
        a(f"ds_read_b64 v[40:41], v25 offset:{10752 + 64*ks}")
        a(f"ds_read_b64 v[42:43], v25 offset:{10752 + 64*ks + 32}")
        for nt in range(2):
            for hf in range(2):
                a(f"ds_read_b64_tr_b16 v[{44+4*nt+2*hf}:{45+4*nt+2*hf}], v12 offset:{(32*ks+16*hf)*80 + 32*nt}")
        a("s_waitcnt lgkmcnt(4)")
        for q in range(4): a(f"v_and_or_b32 v{40+q}, v{40+q}, v19, v18")
        a("s_waitcnt lgkmcnt(0)")
        for nt in range(2):
            R = 44 + 4 * nt
            for q in range(4):
                a(f"v_lshlrev_b32 v{52+2*q}, 16, v{R+q}")
                a(f"v_and_b32 v{53+2*q}, 0xffff0000, v{R+q}")
            a(f"v_mfma_f32_16x16x32_bf16 v[{96+4*nt}:{99+4*nt}], v[{R}:{R+3}], v[40:43], v[{96+4*nt}:{99+4*nt}]")
            for q in range(4):
                a(f"v_pk_mul_f32 v[{52+2*q}:{53+2*q}], v[{52+2*q}:{53+2*q}], v[{32+2*q}:{33+2*q}]")
            S = 60 + 4 * nt
            for q in range(4):
                a(f"v_cvt_pk_bf16_f32 v{S+q}, v{52+2*q}, v{53+2*q}")
            a(f"global_store_dwordx4 v{26+nt}, v[{S}:{S+3}], s[14:15] offset:{1024*ks} sc1")
            a("s_nop 0")
            a(f"v_mfma_f32_16x16x32_bf16 v[{104+4*nt}:{107+4*nt}], v[{S}:{S+3}], v[40:43], v[{104+4*nt}:{107+4*nt}]")
    a(f"s_mul_i32 s30, s28, {3*5504}")
    a("s_lshl_b32 s31, s29, 7")
    a("s_add_u32 s30, s30, s31")
    a(f"s_add_u32 s30, s30, {SVP}")
    a("v_lshl_add_u32 v28, v4, 4, s30")
    a("v_add_u32 v29, 5504, v28")
    a("v_add_u32 v30, 5504, v29")
    a("s_nop 7")
    a("s_mov_b64 s[42:43], exec")
    a("s_mov_b64 exec, s[50:51]")
    for nt in range(2):
        a(f"global_store_dwordx4 v28, v[{104+4*nt}:{107+4*nt}], s[14:15] offset:{64*nt} sc1")
        a(f"global_store_dwordx4 v30, v[{96+4*nt}:{99+4*nt}], s[14:15] offset:{64*nt} sc1")
    a("s_mov_b64 exec, s[52:53]")
    for nt in range(2):
        a(f"global_store_dwordx4 v29, v[{96+4*nt}:{99+4*nt}], s[14:15] offset:{64*nt} sc1")
    a("s_mov_b64 exec, s[42:43]")
    a("s_branch K2_END")
    a("K2_W2:   ; LINT-RESET")
    a("s_sub_u32 s26, s26, 172")
    a("s_and_b32 s29, s26, 15")
    a("s_lshr_b32 s28, s26, 4")
    a("v_lshlrev_b32 v10, 10, v2")
    a("v_lshl_add_u32 v10, v3, 4, v10")
    a("s_lshl_b32 s49, s28, 17")
    a("s_lshl_b32 s30, s29, 6")
    a("s_add_u32 s49, s49, s30")
    a("s_mov_b32 s48, 16384")
    a("s_waitcnt lgkmcnt(0)")
    a.srd(44, 18, 1376 * 512 * 2)
    side_load_and_stage(a)
    a("s_barrier")
    for i in range(8):
        a(f"s_waitcnt vmcnt({7-i})")
        a(f"ds_write_b128 v11, v[{32+4*i}:{35+4*i}] offset:{16*80*i}")
    a("s_lshr_b32 s30, s29, 1")
    a("s_mul_i32 s30, s30, 43")
    a("s_lshl_b32 s31, s28, 2")
    a("s_add_u32 s30, s30, s31")
    a("s_lshl_b32 s30, s30, 12")
    a("s_and_b32 s31, s29, 1")
    a("s_lshl_b32 s31, s31, 11")
    a("s_add_u32 s30, s30, s31")
    a(f"s_add_u32 s30, s30, {W2F}")
    a("v_lshl_add_u32 v26, v1, 4, s30")
    a("s_waitcnt lgkmcnt(0)")
    for ks in range(4):
        if ks == 3:
            a("s_cmp_eq_u32 s28, 10")
            a("s_cbranch_scc1 K2_END")
        for nt in range(2):
            for hf in range(2):
                a(f"ds_read_b64_tr_b16 v[{44+4*nt+2*hf}:{45+4*nt+2*hf}], v12 offset:{(32*ks+16*hf)*80 + 32*nt}")
        a("s_waitcnt lgkmcnt(2)")
        a(f"global_store_dwordx4 v26, v[44:47], s[14:15] sc1")
        a("s_waitcnt lgkmcnt(0)")
        a(f"global_store_dwordx4 v26, v[48:51], s[14:15] offset:1024 sc1")
        a("v_add_u32 v26, 4096, v26")
    a("s_branch K2_END")
    a("K2_TAB:   ; LINT-RESET")
    a("v_lshlrev_b32 v2, 5, v1")
    a(f"v_add_u32 v2, {MODF + 3*2048}, v2")
    a("v_add_u32 v3, 2048, v2")
    a("s_waitcnt lgkmcnt(0)")
    a("global_load_dwordx4 v[32:35], v2, s[14:15]")
    a("global_load_dwordx4 v[36:39], v2, s[14:15] offset:16")
    a("global_load_dwordx4 v[40:43], v3, s[14:15]")
    a("global_load_dwordx4 v[44:47], v3, s[14:15] offset:16")
    a("s_barrier")
    a("s_waitcnt vmcnt(0)")
    for j in range(8): a(f"v_add_f32 v{40+j}, 1.0, v{40+j}")
    for j in range(8): rbf(a, 40 + j, 40 + j)
    for j in range(8): a(f"v_mul_f32 v{48+j}, v{40+j}, v{40+j}")
    for j in range(8): a(f"v_mul_f32 v{56+j}, v{40+j}, v{32+j}")
    for k, base in enumerate((40, 48, 56, 32)):
        a(f"v_add_f32 v{100+k}, v{base}, v{base+1}")
        for j in range(2, 8): a(f"v_add_f32 v{100+k}, v{100+k}, v{base+j}")
    a("v_mul_f32 v104, v32, v32")
    for j in range(1, 8): a(f"v_fmac_f32 v104, v{32+j}, v{32+j}")
    a("v_lshl_add_u32 v4, v1, 4, s27")
    a("v_mov_b32 v64, 0x3f803f80\nv_mov_b32 v65, 0x3f803f80\nv_mov_b32 v66, 0x3f803f80\nv_mov_b32 v67, 0x3f803f80")
    a("ds_write_b128 v4, v[64:67]")
    for q in range(4): a(f"v_cvt_pk_bf16_f32 v{68+q}, v{40+2*q}, v{41+2*q}")
    a("ds_write_b128 v4, v[68:71] offset:1024")
    for (src, row) in ((48, 2), (56, 4)):
        for q in range(4): a(f"v_cvt_pk_bf16_f32 v{72+q}, v{src+2*q}, v{src+2*q+1}")
        a(f"ds_write_b128 v4, v[72:75] offset:{1024*row}")
        for q in range(4):
            a(f"v_lshlrev_b32 v{80+2*q}, 16, v{72+q}")
            a(f"v_and_b32 v{81+2*q}, 0xffff0000, v{72+q}")
        for j in range(8): a(f"v_sub_f32 v{80+j}, v{src+j}, v{80+j}")
        for q in range(4): a(f"v_cvt_pk_bf16_f32 v{76+q}, v{80+2*q}, v{81+2*q}")
        a(f"ds_write_b128 v4, v[76:79] offset:{1024*(row+1)}")
    a("s_nop 1")
    for ctl in ("row_shr:1", "row_shr:2", "row_shr:4", "row_shr:8", "row_bcast:15 row_mask:0xa", "row_bcast:31 row_mask:0xc"):
        for r in range(100, 105):
            a(f"v_add_f32_dpp v{r}, v{r}, v{r} {ctl}")
    a(f"v_mov_b32 v5, {SCAL}")
    a("s_mov_b64 s[42:43], exec")
    a("s_mov_b64 exec, 0x8000000000000000") if False else None
    a("v_cmp_eq_u32 vcc, 63, v1")
    a("s_and_saveexec_b64 s[42:43], vcc")
    a("global_store_dwordx4 v5, v[100:103], s[14:15] sc1")
    a("global_store_dword v5, v104, s[14:15] offset:16 sc1")
    a("s_mov_b64 exec, s[42:43]")
    a("v_and_b32 v6, 15, v1")
    a("v_lshrrev_b32 v7, 4, v1")
    a("v_min_u32 v8, 5, v6")
    a("v_lshlrev_b32 v8, 10, v8")
    a("v_lshl_add_u32 v8, v7, 3, v8")
    a("v_add_u32 v8, s27, v8")
    a("v_cmp_gt_u32 vcc, 6, v6")
    a("v_mov_b32 v9, 0")
    a("s_nop 0")
    a("v_cndmask_b32 v9, v9, -1, vcc")
    a(f"s_mov_b32 s30, {W1F + 86*16384}")
    a("v_lshl_add_u32 v10, v1, 4, s30")
    a("s_waitcnt lgkmcnt(0)")
    for ks in range(16):
        R = 16 + 4 * (ks & 1)
        a(f"ds_read_b64 v[{R}:{R+1}], v8 offset:{64*ks}")
        a(f"ds_read_b64 v[{R+2}:{R+3}], v8 offset:{64*ks+32}")
        a("s_waitcnt lgkmcnt(0)")
        for q in range(4): a(f"v_and_b32 v{R+q}, v{R+q}, v9")
        a(f"global_store_dwordx4 v10, v[{R}:{R+3}], s[14:15] offset:{1024*(ks&3)} sc1")
        if ks & 3 == 3: a("v_add_u32 v10, 4096, v10")
    a("s_branch K2_END")
    a("K2_SIDE_IDLE:   ; LINT-RESET")
    a("s_barrier")
    a("K2_END:   ; LINT-RESET")
    stamp_store(a, 1, 14, 24)
    a("K2_EXIT:")
    a.end_kernel(name, 160, 100)


G2T = 65536
SVT = G2T + 2048
STT = SVT + 3072
COF = STT + 2048
K3_LDS = COF + 4096

def kgsum(a, r, t):
    a(f"v_mov_b32 v{t}, v{r}")
    a("s_nop 1")
    a(f"v_permlane16_swap_b32 v{r}, v{t}")
    a("s_nop 0")
    a(f"v_add_f32 v{r}, v{r}, v{t}")
    a("s_nop 0")
    a(f"v_mov_b32 v{t}, v{r}")
    a("s_nop 1")
    a(f"v_permlane32_swap_b32 v{r}, v{t}")
    a("s_nop 0")
    a(f"v_add_f32 v{r}, v{r}, v{t}")

def k3(a):
    name = "k3_kernel"
    a.begin_kernel(name, 256, 256, K3_LDS)
    a("s_cmp_ge_u32 s2, 256")
    a("s_cbranch_scc1 K3_EXIT")
    stamp(a, 0)
    a("s_load_dwordx2 s[14:15], s[0:1], 128")
    a("s_load_dwordx2 s[12:13], s[0:1], 72")
    wave_id(a, 24, 1)
    a("v_and_b32 v1, 63, v0")
    a("s_and_b32 s25, s2, 7")
    a("s_lshr_b32 s26, s2, 3")
    a("s_lshr_b32 s27, s26, 3")
    a("s_lshl_b32 s25, s25, 2")
    a("s_add_u32 s25, s25, s27")
    a("s_and_b32 s26, s26, 7")
    a("s_mul_i32 s27, s26, 11")
    a("s_cmp_eq_u32 s26, 7")
    a("s_cselect_b32 s27, 76, s27")
    a("s_cmp_lt_u32 s26, 6")
    a("s_cselect_b32 s28, 11, 10")
    a("s_mul_i32 s29, s24, 3")
    for i in range(3):
        a(f"s_add_u32 s30, s29, {i}")
        a("s_add_u32 s31, s30, s27")
        a("s_cmp_lt_u32 s30, s28")
        a(f"s_cselect_b32 s{32+i}, s31, 86")
    a("s_waitcnt lgkmcnt(0)")
    a.srd(8, 14, WS_USED)
    a("v_lshlrev_b32 v2, 3, v0")
    a(f"v_add_u32 v2, {MODF + 4*2048}, v2")
    a("global_load_dwordx2 v[4:5], v2, s[14:15]")
    a("v_lshrrev_b32 v3, 4, v1")
    a("v_and_b32 v6, 15, v1")
    a("v_mov_b32 v7, s32")
    a("v_mov_b32 v8, s33")
    a("v_mov_b32 v9, s34")
    a("v_cmp_eq_u32 vcc, 1, v3")
    a("s_nop 1")
    a("v_cndmask_b32 v7, v7, v8, vcc")
    a("v_cmp_le_u32 vcc, 2, v3")
    a("s_nop 1")
    a("v_cndmask_b32 v7, v7, v9, vcc")
    a("v_min_u32 v7, 85, v7")
    a("v_lshl_add_u32 v7, v7, 4, v6")
    a("v_lshlrev_b32 v8, 2, v7")
    a(f"v_add_u32 v8, {SVP}, v8")
    a("v_lshlrev_b32 v9, 1, v7")
    for kq in range(4):
        for v in range(3):
            a(f"global_load_dword v{16+kq*3+v}, v8, s[14:15]")
            if not (kq == 3 and v == 2): a("v_add_u32 v8, 5504, v8")
    a("global_load_ushort v28, v9, s[12:13]")
    a(f"s_mov_b32 s30, {SCAL}")
    a("s_load_dwordx4 s[36:39], s[14:15], s30")
    a(f"s_mov_b32 s31, {SCAL+16}")
    a("s_load_dword s40, s[14:15], s31")
    a("v_lshrrev_b32 v10, 3, v1")
    a("v_and_b32 v11, 6, v10")
    a("v_and_b32 v12, 7, v1")
    a("v_xor_b32 v11, v11, v12")
    a("v_lshlrev_b32 v11, 4, v11")
    a("v_lshl_add_u32 v11, v10, 12, v11")
    a("s_lshl_b32 s41, s24, 19")
    a("s_lshl_b32 s42, s25, 7")
    a("s_add_u32 s41, s41, s42")
    a(f"s_add_u32 s41, s41, {X2T}")
    a("s_lshl_b32 s42, s24, 14")
    for j in range(16):
        a("s_mov_b32 m0, s42")
        a("s_add_u32 s42, s42, 1024")
        a(f"buffer_load_dwordx4 v11, s[8:11], s41 offen lds")
        a("s_add_u32 s41, s41, 32768")
    a("v_lshlrev_b32 v13, 4, v1")
    for i in range(3):
        a(f"s_lshl_b32 s{44+i}, s{32+i}, 14")
        a(f"s_add_u32 s{44+i}, s{44+i}, {W1F}")
    def wload(ks):
        for i in range(3):
            r = (ks * 3 + i) * 4
            a(f"buffer_load_dwordx4 a[{r}:{r+3}], v13, s[8:11], s{44+i} offen offset:{1024*(ks&3)}")
        if ks & 3 == 3:
            for i in range(3): a(f"s_add_u32 s{44+i}, s{44+i}, 4096")
    for ks in range(10): wload(ks)
    a("s_waitcnt vmcnt(46)")
    a("v_add_f32 v4, 1.0, v4")
    a("v_add_f32 v5, 1.0, v5")
    rbf(a, 4, 4); rbf(a, 5, 5)
    a("v_mul_f32 v4, v4, v4")
    a("v_mul_f32 v5, v5, v5")
    a("v_lshlrev_b32 v2, 3, v0")
    a(f"v_add_u32 v2, {G2T}, v2")
    a("ds_write_b64 v2, v[4:5]")
    for v in range(3):
        a(f"v_add_f32 v{16+v}, v{16+v}, v{19+v}")
        a(f"v_add_f32 v{22+v}, v{22+v}, v{25+v}")
        a(f"v_add_f32 v{16+v}, v{16+v}, v{22+v}")
    a("v_lshlrev_b32 v28, 16, v28")
    a("s_mul_i32 s30, s24, 768")
    a(f"s_add_u32 s30, s30, {SVT}")
    a("v_lshlrev_b32 v2, 8, v3")
    a("v_lshl_add_u32 v2, v6, 2, v2")
    a("v_add_u32 v2, s30, v2")
    a("v_cmp_gt_u32 vcc, 48, v1")
    a("s_and_saveexec_b64 s[42:43], vcc")
    a("ds_write_b32 v2, v16")
    a("ds_write_b32 v2, v18 offset:64")
    a("ds_write_b32 v2, v17 offset:128")
    a("ds_write_b32 v2, v28 offset:192")
    a("s_mov_b64 exec, s[42:43]")
    a("v_bfe_u32 v14, v1, 2, 2")
    a("v_lshl_add_u32 v14, v3, 2, v14")
    a("v_and_b32 v15, 6, v14")
    a("v_lshrrev_b32 v15, 1, v15")
    a("v_and_b32 v29, 3, v1")
    a("v_lshlrev_b32 v30, 7, v14")
    a("v_lshl_add_u32 v30, v29, 3, v30")
    for k in range(4):
        a(f"s_add_u32 s30, s24, {k}")
        a("s_and_b32 s30, s30, 3")
        a(f"s_mov_b32 s{48+k}, s30")
        a(f"v_xor_b32 v31, s30, v15")
        a(f"v_lshl_add_u32 v{20+k}, v31, 5, v30")
    a(f"v_lshlrev_b32 v24, 4, v3")
    a(f"v_add_u32 v24, {G2T}, v24")
    for r in range(192, 240): a(f"v_accvgpr_write_b32 a{r}, 0")
    for r in range(96, 108): a(f"v_mov_b32 v{r}, 0")
    a("s_waitcnt vmcnt(30)")
    for ks in range(10, 16): wload(ks)
    stamp(a, 1)
    a("s_waitcnt lgkmcnt(0)")
    a("s_barrier")
    stamp(a, 2)
    XF = [32, 48]
    GQ = [64, 72]
    def xreads(ks):
        b = XF[ks & 1]; g = GQ[ks & 1]
        out = []
        for k in range(4):
            for hf in range(2):
                out.append(f"ds_read_b64_tr_b16 v[{b+4*k+2*hf}:{b+4*k+2*hf+1}], v{20+k} offset:{4096*ks + 2048*hf}")
        out.append(f"ds_read_b128 v[{g}:{g+3}], v24 offset:{128*ks}")
        out.append(f"ds_read_b128 v[{g+4}:{g+7}], v24 offset:{128*ks+64}")
        return out
    for x in xreads(0): a(x)
    for ks in range(16):
        b = XF[ks & 1]; g = GQ[ks & 1]
        if ks + 1 < 16:
            for x in xreads(ks + 1): a(x)
            a(f"s_waitcnt vmcnt({3*(15-ks)}) lgkmcnt(10)")
        else:
            a("s_waitcnt vmcnt(0) lgkmcnt(0)")
        mf = []
        for i in range(3):
            r = (ks * 3 + i) * 4
            for k in range(4):
                d = 192 + (i * 4 + k) * 4
                mf.append(f"v_mfma_f32_16x16x32_bf16 a[{d}:{d+3}], a[{r}:{r+3}], v[{b+4*k}:{b+4*k+3}], a[{d}:{d+3}]")
        va = []
        for q in range(4):
            va.append(f"v_lshlrev_b32 v{80+2*q}, 16, v{b+q}")
            va.append(f"v_and_b32 v{81+2*q}, 0xffff0000, v{b+q}")
        for q in range(4):
            va.append(f"v_dot2_f32_bf16 v{96+(q&1)}, v{b+q}, v{b+q}, v{96+(q&1)}")
        for q in range(4):
            va.append(f"v_pk_mul_f32 v[{80+2*q}:{81+2*q}], v[{80+2*q}:{81+2*q}], v[{80+2*q}:{81+2*q}]")
        for q in range(4):
            va.append(f"v_pk_fma_f32 v[{100+2*q}:{101+2*q}], v[{80+2*q}:{81+2*q}], v[{g+2*q}:{g+2*q+1}], v[{100+2*q}:{101+2*q}]")
        vi = 0
        for m in mf:
            a(m)
            for _ in range(2):
                if vi < len(va): a(va[vi]); vi += 1
        while vi < len(va): a(va[vi]); vi += 1
    stamp(a, 3)
    a("v_add_f32 v96, v96, v97")
    for q in range(1, 4):
        a(f"v_pk_add_f32 v[100:101], v[100:101], v[{100+2*q}:{101+2*q}]")
    a("v_add_f32 v97, v100, v101")
    kgsum(a, 96, 98)
    kgsum(a, 97, 98)
    a("s_lshl_b32 s30, s24, 9")
    a(f"s_add_u32 s30, s30, {STT}")
    a("v_lshl_add_u32 v2, v6, 5, s30")
    a("ds_write_b64 v2, v[96:97] offset:24")
    a("s_cmp_eq_u32 s24, 3")
    a("s_cbranch_scc0 K3_nolin")
    a("v_cmp_eq_u32 s[52:53], 0, v3")
    a("v_cmp_eq_u32 s[54:55], 1, v3")
    for k in range(4):
        d = 192 + (8 + k) * 4
        for r in range(4): a(f"v_accvgpr_read_b32 v{32+4*k+r}, a{d+r}")
    for k in range(4):
        a(f"s_lshl_b32 s30, s{48+k}, 9")
        a(f"s_add_u32 s30, s30, {STT}")
        a(f"v_lshl_add_u32 v{60+k}, v6, 5, s30")
    a("s_mov_b64 s[42:43], exec")
    a("s_mov_b64 exec, s[52:53]")
    for k in range(4): a(f"ds_write_b128 v{60+k}, v[{32+4*k}:{35+4*k}]")
    a("s_mov_b64 exec, s[54:55]")
    for k in range(4): a(f"ds_write_b64 v{60+k}, v[{32+4*k}:{33+4*k}] offset:16")
    a("s_mov_b64 exec, s[42:43]")
    a("K3_nolin:")
    a("s_waitcnt lgkmcnt(0)")
    a("s_barrier")
    a("v_lshlrev_b32 v2, 5, v1")
    a(f"v_add_u32 v2, {STT}, v2")
    a("ds_read_b128 v[32:35], v2")
    a("ds_read_b128 v[36:39], v2 offset:16")
    a("s_waitcnt lgkmcnt(0)")
    a("v_add_f32 v34, v34, v35")
    a("v_add_f32 v36, v36, v37")
    a("v_mul_f32 v32, 0x3b000000, v32")
    a("v_mul_f32 v38, 0x3b000000, v38")
    a("v_fma_f32 v38, -v32, v32, v38")
    a("v_max_f32 v38, 0, v38")
    rbf(a, 32, 32); rbf(a, 38, 38)
    a("v_add_f32 v38, 0x3727c5ac, v38")
    rbf(a, 38, 38)
    a("v_sqrt_f32 v38, v38")
    a("s_nop 0")
    rbf(a, 38, 38)
    a("v_rcp_f32 v38, v38")
    a("v_fma_f32 v33, -v32, s36, v33")
    a("v_mul_f32 v33, v33, v38")
    a("v_add_f32 v33, s39, v33")
    a("v_mul_f32 v33, 0x3b000000, v33")
    a("v_mul_f32 v40, v32, v32")
    a("v_add_f32 v41, v32, v32")
    a("v_fma_f32 v39, -v41, v34, v39")
    a("v_fma_f32 v39, v40, s37, v39")
    a("v_fma_f32 v36, -v32, s38, v36")
    a("v_mul_f32 v39, v39, v38")
    a("v_add_f32 v36, v36, v36")
    a("v_add_f32 v39, v39, v36")
    a("v_mul_f32 v39, v39, v38")
    a("v_add_f32 v39, s40, v39")
    a("v_mul_f32 v39, 0x3b000000, v39")
    a("v_fma_f32 v39, -v33, v33, v39")
    a("v_max_f32 v39, 0, v39")
    rbf(a, 33, 33); rbf(a, 39, 39)
    a("v_add_f32 v39, 0x3727c5ac, v39")
    rbf(a, 39, 39)
    a("v_sqrt_f32 v39, v39")
    a("s_nop 0")
    rbf(a, 39, 39)
    a("v_rcp_f32 v47, v39")
    a("s_nop 0")
    a("v_mul_f32 v44, v47, v38")
    a("v_mul_f32 v45, v44, v32")
    a("v_sub_f32 v45, 0, v45")
    a("v_mul_f32 v46, v47, v33")
    a("v_sub_f32 v46, 0, v46")
    a("s_lshl_b32 s30, s24, 10")
    a(f"s_add_u32 s30, s30, {COF}")
    a("v_lshl_add_u32 v2, v1, 4, s30")
    a("ds_write_b128 v2, v[44:47]")
    a("s_waitcnt lgkmcnt(0)")
    for k in range(4):
        a(f"s_lshl_b32 s31, s{48+k}, 8")
        a("s_add_u32 s31, s31, s30")
        a(f"v_lshl_add_u32 v2, v6, 4, s31")
        a(f"ds_read_b128 v[{48+4*k}:{51+4*k}], v2")
    a("s_mov_b32 s56, 0xbdd2d3e2")
    a("s_mov_b32 s57, 0xc0135761")
    a("s_mul_i32 s30, s24, 768")
    a(f"s_add_u32 s30, s30, {SVT}")
    a("v_lshl_add_u32 v25, v3, 4, s30")
    stamp(a, 4)
    for i in range(3):
        a(f"s_cmp_eq_u32 s{32+i}, 86")
        a(f"s_cbranch_scc1 K3_skip{i}")
        for st in range(4):
            a(f"ds_read_b128 v[{64+4*st}:{67+4*st}], v25 offset:{256*i + 64*st}")
        a("s_mul_i32 s30, s25, 43")
        a(f"s_lshr_b32 s31, s{32+i}, 1")
        a("s_add_u32 s30, s30, s31")
        a("s_lshl_b32 s30, s30, 12")
        a(f"s_and_b32 s31, s{32+i}, 1")
        a("s_lshl_b32 s31, s31, 3")
        a("s_add_u32 s30, s30, s31")
        a(f"s_add_u32 s30, s30, {HF}")
        for k in range(4):
            d = 192 + (i * 4 + k) * 4
            for r in range(4): a(f"v_accvgpr_read_b32 v{80+4*k+r}, a{d+r}")
        a("s_waitcnt lgkmcnt(0)")
        for k in range(4):
            c = 48 + 4 * k
            for p in range(2):
                x = 80 + 4 * k + 2 * p; t = 96 + 4 * k + 2 * p
                a(f"v_pk_fma_f32 v[{t}:{t+1}], v[{64+2*p}:{65+2*p}], v[{c}:{c+1}], v[{76+2*p}:{77+2*p}] op_sel:[0,1,0] op_sel_hi:[1,1,1]")
        for k in range(4):
            c = 48 + 4 * k
            for p in range(2):
                t = 96 + 4 * k + 2 * p
                a(f"v_pk_fma_f32 v[{t}:{t+1}], v[{68+2*p}:{69+2*p}], v[{c+2}:{c+3}], v[{t}:{t+1}] op_sel_hi:[1,0,1]")
        for k in range(4):
            c = 48 + 4 * k
            for p in range(2):
                t = 96 + 4 * k + 2 * p
                a(f"v_pk_fma_f32 v[{t}:{t+1}], v[{72+2*p}:{73+2*p}], v[{c+2}:{c+3}], v[{t}:{t+1}] op_sel:[0,1,0] op_sel_hi:[1,1,1]")
        for k in range(4):
            c = 48 + 4 * k
            for p in range(2):
                x = 80 + 4 * k + 2 * p; t = 96 + 4 * k + 2 * p
                a(f"v_pk_fma_f32 v[{x}:{x+1}], v[{x}:{x+1}], v[{c}:{c+1}], v[{t}:{t+1}] op_sel_hi:[1,0,1]")
        for j in range(8):
            x = 80 + 2 * j; t = 96 + 2 * j
            a(f"v_pk_mul_f32 v[{t}:{t+1}], v[{x}:{x+1}], v[{x}:{x+1}]")
        for j in range(8):
            t = 96 + 2 * j
            a(f"v_pk_fma_f32 v[{t}:{t+1}], v[{t}:{t+1}], s[56:57], s[56:57] op_sel:[0,0,1] op_sel_hi:[1,0,1]")
        for j in range(8):
            x = 80 + 2 * j; t = 96 + 2 * j
            a(f"v_pk_mul_f32 v[{t}:{t+1}], v[{t}:{t+1}], v[{x}:{x+1}]")
        for j in range(16): a(f"v_exp_f32 v{96+j}, v{96+j}")
        for j in range(8):
            t = 96 + 2 * j
            a(f"v_pk_add_f32 v[{t}:{t+1}], v[{t}:{t+1}], 1.0 op_sel_hi:[1,0]")
        for j in range(16): a(f"v_rcp_f32 v{96+j}, v{96+j}")
        for j in range(8):
            x = 80 + 2 * j; t = 96 + 2 * j
            a(f"v_pk_mul_f32 v[{x}:{x+1}], v[{x}:{x+1}], v[{t}:{t+1}]")
        for k in range(4):
            a(f"v_cvt_pk_bf16_f32 v{112+2*k}, v{80+4*k}, v{81+4*k}")
            a(f"v_cvt_pk_bf16_f32 v{113+2*k}, v{82+4*k}, v{83+4*k}")
        for k in range(4):
            a(f"s_lshl_b32 s31, s{48+k}, 10")
            a("s_add_u32 s31, s31, s30")
            a(f"buffer_store_dwordx2 v[{112+2*k}:{113+2*k}], v13, s[8:11], s31 offen sc1")
        a(f"K3_skip{i}:   ; LINT-RESET")
    a("K3_END:   ; LINT-RESET")
    stamp_store(a, 2, 14, 24)
    a("K3_EXIT:")
    a.end_kernel(name, 256 + 240, 100, accum=256)

P_W = 64 * 272
X2L = 4 * P_W
K4_LDS = X2L + 8192

def k4(a):
    name = "k4_kernel"
    a.begin_kernel(name, 256, 256, K4_LDS)
    a("s_cmp_ge_u32 s2, 256")
    a("s_cbranch_scc1 K4_EXIT")
    stamp(a, 0)
    a("s_load_dwordx2 s[14:15], s[0:1], 128")
    a("s_load_dwordx2 s[12:13], s[0:1], 88")
    a("s_load_dwordx2 s[16:17], s[0:1], 112")
    wave_id(a, 24, 1)
    a("v_and_b32 v1, 63, v0")
    a("s_and_b32 s25, s2, 7")
    a("s_lshr_b32 s26, s2, 3")
    a("s_lshr_b32 s27, s26, 3")
    a("s_lshl_b32 s25, s25, 2")
    a("s_add_u32 s25, s25, s27")
    a("s_and_b32 s26, s26, 7")
    a("s_mul_i32 s28, s24, 11")
    a("s_cmp_eq_u32 s24, 3")
    a("s_cselect_b32 s28, 32, s28")
    a("s_mul_i32 s29, s25, 43")
    a("s_add_u32 s29, s29, s28")
    a("s_lshl_b32 s29, s29, 12")
    a(f"s_add_u32 s29, s29, {HF}")
    a("s_mul_i32 s30, s26, 43")
    a("s_add_u32 s30, s30, s28")
    a("s_lshl_b32 s30, s30, 12")
    a(f"s_add_u32 s30, s30, {W2F}")
    a("v_lshlrev_b32 v2, 4, v1")
    a("v_lshrrev_b32 v3, 4, v1")
    a("v_and_b32 v4, 15, v1")
    a("s_waitcnt lgkmcnt(0)")
    a.srd(8, 14, WS_USED)
    a.srd(20, 14, WS_USED)
    a("s_cmp_eq_u32 s24, 3")
    a(f"s_cselect_b32 s22, 0, s10")
    a.srd(40, 16, 2048 * 512 * 2)
    a("v_lshrrev_b32 v5, 3, v1")
    a("v_and_b32 v6, 6, v5")
    a("v_and_b32 v7, 7, v1")
    a("v_xor_b32 v6, v6, v7")
    a("v_lshlrev_b32 v6, 4, v6")
    a("v_lshl_add_u32 v6, v5, 12, v6")
    a("s_lshl_b32 s31, s26, 18")
    a("s_lshl_b32 s32, s24, 16")
    a("s_add_u32 s31, s31, s32")
    a("s_lshl_b32 s32, s25, 7")
    a("s_add_u32 s31, s31, s32")
    a(f"s_add_u32 s31, s31, {X2T}")
    a("s_lshl_b32 s32, s24, 11")
    a(f"s_add_u32 s32, s32, {X2L}")
    def loads(j):
        b = 32 + 32 * (j % 7)
        srd = "s[20:23]" if j == 0 else "s[8:11]"
        for t in range(4):
            a(f"buffer_load_dwordx4 v[{b+4*t}:{b+4*t+3}], v2, s[8:11], s29 offen offset:{1024*t}")
        for t in range(4):
            a(f"buffer_load_dwordx4 v[{b+16+4*t}:{b+16+4*t+3}], v2, {srd}, s30 offen offset:{1024*t}")
        a("s_add_u32 s29, s29, 4096")
        a("s_add_u32 s30, s30, 4096")
    loads(0)
    for j in range(2):
        a("s_mov_b32 m0, s32")
        a("s_add_u32 s32, s32, 1024")
        a(f"buffer_load_dwordx4 v6, s[8:11], s31 offen lds")
        a("s_add_u32 s31, s31, 32768")
    a("s_lshl_b32 s33, s26, 8")
    a(f"s_add_u32 s33, s33, {MODF + 5*2048}")
    a("v_lshl_add_u32 v8, v3, 4, s33")
    a("s_lshl_b32 s33, s26, 7")
    a("v_lshl_add_u32 v9, v3, 3, s33")
    for j in range(1, 6): loads(j)
    for dt in range(4):
        a(f"global_load_dwordx4 a[{64+4*dt}:{67+4*dt}], v8, s[14:15] offset:{64*dt}")
    for dt in range(4):
        a(f"global_load_dwordx2 a[{80+2*dt}:{81+2*dt}], v9, s[12:13] offset:{32*dt}")
    for r in range(64): a(f"v_accvgpr_write_b32 a{r}, 0")
    stamp(a, 1)
    issued = 6
    for j in range(11):
        later = 0
        if j == 0: later += 2
        later += 8 * (issued - 1 - j)
        if j <= 5: later += 8
        a(f"s_waitcnt vmcnt({later})")
        b = 32 + 32 * (j % 7)
        for dt in range(4):
            for lt in range(4):
                d = (dt * 4 + lt) * 4
                a(f"v_mfma_f32_16x16x32_bf16 a[{d}:{d+3}], v[{b+16+4*dt}:{b+16+4*dt+3}], v[{b+4*lt}:{b+4*lt+3}], a[{d}:{d+3}]")
        if j == 0:
            loads(6); issued = 7
        elif issued < 11:
            loads(issued); issued += 1
    stamp(a, 2)
    a("v_mul_u32_u24 v5, 272, v4")
    a("v_lshl_add_u32 v5, v3, 4, v5")
    a(f"s_mul_i32 s33, s24, {P_W}")
    a("v_add_u32 v6, s33, v5")
    a("s_nop 4")
    for dt in range(4):
        for lt in range(4):
            d = (dt * 4 + lt) * 4
            a(f"ds_write_b128 v6, a[{d}:{d+3}] offset:{lt*16*272 + dt*64}")
    a("s_waitcnt vmcnt(0) lgkmcnt(0)")
    a("s_barrier")
    stamp(a, 3)
    a(f"s_mul_i32 s33, s24, {16*272}")
    a("v_add_u32 v6, s33, v5")
    a("v_bfe_u32 v10, v1, 2, 2")
    a("v_lshl_add_u32 v10, v3, 2, v10")
    a("v_and_b32 v11, 6, v10")
    a("v_lshrrev_b32 v11, 1, v11")
    a("v_xor_b32 v11, s24, v11")
    a("v_and_b32 v12, 3, v1")
    a("v_lshlrev_b32 v10, 7, v10")
    a("v_lshl_add_u32 v10, v12, 3, v10")
    a("v_lshl_add_u32 v10, v11, 5, v10")
    a(f"v_add_u32 v10, {X2L}, v10")
    for dt in range(4):
        a(f"ds_read_b64_tr_b16 v[{16+2*dt}:{17+2*dt}], v10 offset:{2048*dt}")
    for dt in range(4):
        for w in range(4):
            r = 32 + (dt * 4 + w) * 4
            a(f"ds_read_b128 v[{r}:{r+3}], v6 offset:{w*P_W + dt*64}")
    a("s_lshl_b32 s33, s25, 16")
    a("s_lshl_b32 s34, s24, 14")
    a("s_add_u32 s33, s33, s34")
    a("s_lshl_b32 s34, s26, 7")
    a("s_add_u32 s33, s33, s34")
    a("v_lshlrev_b32 v13, 10, v4")
    a("v_lshl_add_u32 v13, v3, 3, v13")
    a("v_add_u32 v13, s33, v13")
    for dt in range(4):
        for r in range(4): a(f"v_accvgpr_read_b32 v{96+4*dt+r}, a{64+4*dt+r}")
        for q in range(2): a(f"v_accvgpr_read_b32 v{112+2*dt+q}, a{80+2*dt+q}")
    for dt in range(4):
        a(f"s_waitcnt lgkmcnt({4*(3-dt)})")
        r = 32 + dt * 16
        for p in range(2):
            a(f"v_pk_add_f32 v[{r+2*p}:{r+2*p+1}], v[{r+2*p}:{r+2*p+1}], v[{r+4+2*p}:{r+5+2*p}]")
            a(f"v_pk_add_f32 v[{r+8+2*p}:{r+9+2*p}], v[{r+8+2*p}:{r+9+2*p}], v[{r+12+2*p}:{r+13+2*p}]")
        for p in range(2):
            a(f"v_pk_add_f32 v[{r+2*p}:{r+2*p+1}], v[{r+2*p}:{r+2*p+1}], v[{r+8+2*p}:{r+9+2*p}]")
        for q in range(2):
            a(f"v_lshlrev_b32 v{120+2*q}, 16, v{112+2*dt+q}")
            a(f"v_and_b32 v{121+2*q}, 0xffff0000, v{112+2*dt+q}")
            a(f"v_lshlrev_b32 v{124+2*q}, 16, v{16+2*dt+q}")
            a(f"v_and_b32 v{125+2*q}, 0xffff0000, v{16+2*dt+q}")
        for p in range(2):
            a(f"v_pk_add_f32 v[{r+2*p}:{r+2*p+1}], v[{r+2*p}:{r+2*p+1}], v[{120+2*p}:{121+2*p}]")
        for p in range(2):
            a(f"v_pk_fma_f32 v[{r+2*p}:{r+2*p+1}], v[{r+2*p}:{r+2*p+1}], v[{96+4*dt+2*p}:{97+4*dt+2*p}], v[{124+2*p}:{125+2*p}]")
        a(f"v_cvt_pk_bf16_f32 v{24+2*dt}, v{r}, v{r+1}")
        a(f"v_cvt_pk_bf16_f32 v{25+2*dt}, v{r+2}, v{r+3}")
        a(f"buffer_store_dwordx2 v[{24+2*dt}:{25+2*dt}], v13, s[40:43], 0 offen offset:{32*dt}")
    a("K4_END:   ; LINT-RESET")
    stamp_store(a, 3, 14, 24)
    a("K4_EXIT:")
    a.end_kernel(name, 256 + 88, 100, accum=256)

def build(kernels):
    a = Asm()
    for k in kernels: k(a)
    return a.text().replace("None\n", "")

ALL = {}
if __name__ == "__main__":
    out = sys.argv[1] if len(sys.argv) > 1 else "cur.s"
    names = sys.argv[2].split(",") if len(sys.argv) > 2 else ["k1"]
    if len(sys.argv) > 3 and sys.argv[3] == "prof": PROF = True
    open(out, "w").write(build([globals()[n] for n in names]))
```

```python
import sys
sys.path.insert(0, "dev")
from asmgen import *

import os
OPT = dict(kv.split("=") for kv in os.environ.get("GENOPT", "").split(",") if kv)
WSOFF = int(OPT.get("wsoff", "0"), 0)
SC1 = " sc1" if OPT.get("sc1", "1") == "1" else ""
HLD = " sc1" if OPT.get("hsc1", "0") == "1" else ""
NT1 = " nt" if OPT.get("nt1", "1") == "1" else ""
def wsfix(a, r):
    if WSOFF:
        a(f"s_add_u32 s{r}, s{r}, {WSOFF}")
        a(f"s_addc_u32 s{r+1}, s{r+1}, 0")
XT    = 0x0000000
X2T   = 0x0200000
KREV  = 0x0400000
KW    = 4160
STAT1 = 0x0620000
MODF  = 0x0630000
SCAL  = 0x0634000
SVP   = 0x0640000
W1F   = 0x0700000
W2F   = 0x0900000
HF    = 0x0B00000
WS_USED = 0x1100000

STAMP = 0x1100000
PROF = False
def stamp(a, i):
    if PROF:
        if OPT.get("cyc", "0") == "1": a(f"s_memtime s[{70+2*i}:{71+2*i}]")
        else: a(f"s_memrealtime s[{70+2*i}:{71+2*i}]")
        a("s_waitcnt lgkmcnt(0)")
def stamp_store(a, kid, wsreg, swave):
    if not PROF: return
    a("s_mov_b64 exec, -1")
    tm = "s_memtime" if OPT.get("cyc", "0") == "1" else "s_memrealtime"
    a(f"{tm} s[90:91]")
    a("s_waitcnt lgkmcnt(0) vmcnt(0)")
    a(f"{tm} s[92:93]")
    a("s_waitcnt lgkmcnt(0)")
    a(f"s_lshl_b32 s94, s2, 3")
    a(f"s_add_u32 s94, s94, s{swave}")
    a(f"s_lshl_b32 s94, s94, 6")
    a(f"s_add_u32 s94, s94, {STAMP + kid * 0x80000}")
    a("v_mov_b32 v0, s94")
    for i in range(12):
        a(f"v_mov_b32 v{2+i}, s{70+2*i}")
    a("s_mov_b64 exec, 1")
    a(f"global_store_dwordx4 v0, v[2:5], s[{wsreg}:{wsreg+1}]")
    a(f"global_store_dwordx4 v0, v[6:9], s[{wsreg}:{wsreg+1}] offset:16")
    a(f"global_store_dwordx4 v0, v[10:13], s[{wsreg}:{wsreg+1}] offset:32")

LOG2E = "0x3fb8aa3b"
INV2PI = "0.15915494"

def wave_id(a, s, vt):
    a(f"v_lshrrev_b32 v{vt}, 6, v0")
    a("s_nop 0")
    a(f"v_readfirstlane_b32 s{s}, v{vt}")

def rbf(a, vd, vs):
    a(f"v_cvt_pk_bf16_f32 v{vd}, v{vs}, v{vs}")
    a(f"v_and_b32 v{vd}, 0xffff0000, v{vd}")

def csq(a, dst, src, tmp):
    return [
        f"v_pk_mul_f32 v[{tmp}:{tmp+1}], v[{src}:{src+1}], v[{src}:{src+1}] op_sel:[0,0] op_sel_hi:[1,0]",
        f"v_pk_fma_f32 v[{dst}:{dst+1}], v[{src}:{src+1}], v[{src}:{src+1}], v[{tmp}:{tmp+1}] op_sel:[1,1,0] op_sel_hi:[0,1,1] neg_lo:[1,0,0]",
    ]

def cmulconj(a, dst, p, c, tmp):
    return [
        f"v_pk_mul_f32 v[{tmp}:{tmp+1}], v[{p}:{p+1}], v[{c}:{c+1}] op_sel:[0,0] op_sel_hi:[1,0] neg_hi:[0,1]",
        f"v_pk_fma_f32 v[{dst}:{dst+1}], v[{p}:{p+1}], v[{c}:{c+1}], v[{tmp}:{tmp+1}] op_sel:[1,1,0] op_sel_hi:[0,1,1] neg_lo:[1,0,0] neg_hi:[1,0,0]",
    ]

def k1(a):
    name = "k1_kernel"
    a.begin_kernel(name, 512, 256, 23552)
    a("s_cmp_ge_u32 s2, 512")
    a("s_cbranch_scc1 K1_EXIT")
    stamp(a, 0)
    a("s_load_dwordx8 s[4:11], s[0:1], 8")
    a("s_load_dwordx2 s[12:13], s[0:1], 40")
    a("s_load_dwordx2 s[14:15], s[0:1], 128")
    a("s_load_dwordx2 s[16:17], s[0:1], 0")
    a("s_load_dwordx4 s[20:23], s[0:1], 96")
    wave_id(a, 24, 1)
    a("v_and_b32 v1, 63, v0")
    a("s_cmp_ge_u32 s2, 256")
    a("s_cbranch_scc1 K1_TSM")
    a("s_setprio 3")
    a("s_lshr_b32 s25, s24, 1")
    a("s_and_b32 s26, s24, 1")
    a("s_lshl_b32 s27, s2, 1")
    a("s_add_u32 s27, s27, s25")
    a("s_lshl_b32 s28, s27, 8")
    a("s_lshl_b32 s29, s26, 7")
    a("s_add_u32 s28, s28, s29")
    a("v_lshl_add_u32 v2, v1, 1, s28")
    a("s_lshl_b32 s30, s2, 2")
    a("s_waitcnt lgkmcnt(0)")
    wsfix(a, 14)
    a("global_load_ushort v4, v2, s[4:5] nt")
    a("global_load_ushort v5, v2, s[6:7] nt")
    a("global_load_ushort v6, v2, s[8:9] nt")
    a("global_load_ushort v7, v2, s[10:11] nt")
    a("s_load_dword s29, s[12:13], s30")
    a("v_and_b32 v16, 15, v1")
    a("v_cmp_eq_u32 s[32:33], 15, v16")
    a("v_lshrrev_b32 v18, 4, v1")
    a("v_add_u32 v19, 1, v16")
    a("v_cvt_f32_u32 v19, v19")
    a("s_lshl_b32 s31, s24, 10")
    a("v_lshl_add_u32 v17, v18, 6, s31")
    a("v_lshl_add_u32 v20, v1, 4, s31")
    for r in range(112, 128):
        a(f"v_mov_b32 v{r}, 0")
    T16 = 4096 + 16384
    a("s_mul_i32 s39, s25, 1344")
    a(f"s_add_u32 s39, s39, {T16 + 8}")
    a("v_subrev_u32 v21, 7, v16")
    a("v_cmp_gt_u32 s[34:35], 8, v21")
    a("v_add_u32 v21, 1, v16")
    a("v_and_b32 v21, 15, v21")
    a("v_lshlrev_b32 v24, 5, v21")
    a("v_lshl_add_u32 v24, v18, 3, v24")
    a("s_lshl_b32 s40, s26, 9")
    a("s_add_u32 s40, s40, s39")
    a("v_add_u32 v24, s40, v24")
    a("s_cmp_eq_u32 s26, 0")
    a("s_cselect_b64 s[36:37], -1, s[34:35]")
    a("s_lshl_b32 s40, s24, 12")
    a("s_add_u32 s40, s40, 4096")
    a("v_lshl_add_u32 v22, v1, 4, s40")
    a("s_lshl_b32 s40, s25, 13")
    a("s_lshl_b32 s41, s26, 11")
    a("s_add_u32 s40, s40, s41")
    a("s_add_u32 s40, s40, 4096")
    a("v_lshl_add_u32 v23, v1, 4, s40")
    a("s_lshl_b32 s40, s26, 6")
    a("v_add_u32 v26, s40, v1")
    a("v_lshlrev_b32 v27, 3, v26")
    a("v_sub_u32 v27, 2047, v27")
    a("v_cvt_f32_u32 v28, v27")
    a("s_sub_u32 s41, s39, 34050")
    a("s_sub_u32 s42, s39, 2")
    GA = 140
    for rnd in range(2):
        if rnd == 1:
            a("v_add_f32 v28, 0xc4800000, v28")
            a("v_subrev_u32 v27, 1024, v27")
        for t in range(8):
            if t == 0: a(f"v_mov_b32 v48, v28")
            else: a(f"v_add_f32 v{48+t}, {-float(t)}, v28")
        for p in range(4):
            a(f"v_cvt_pk_bf16_f32 v{56+p}, v{48+2*p}, v{49+2*p}")
        for p in range(4):
            a(f"v_and_b32 v{48+2*p}, 0xffff, v{56+p}")
            a(f"v_lshrrev_b32 v{49+2*p}, 16, v{56+p}")
        o = GA + 8 * rnd
        for t in range(8):
            a(f"v_lshl_add_u32 v{o+t}, v{48+t}, 1, s41")
        if rnd == 1:
            a("v_cmp_le_u32 vcc, 112, v26")
            for t in range(8):
                a(f"v_subrev_u32 v{56+(t&3)}, {t}, v27")
                a(f"v_lshl_add_u32 v{56+(t&3)}, v{56+(t&3)}, 1, s42")
                a(f"v_cndmask_b32 v{o+t}, v{o+t}, v{56+(t&3)}, vcc")
    a(f"s_mul_i32 s40, s27, {KW}")
    a(f"s_add_u32 s40, s40, {KREV}")
    a("v_lshl_add_u32 v29, v26, 4, s40")
    a("v_add_u32 v30, 2048, v29")
    a("v_add_u32 v31, 4096, v29")
    a("s_waitcnt lgkmcnt(0)")
    a("s_lshl_b32 s43, s25, 4")
    a("s_lshr_b32 s29, s29, s43")
    a("s_lshl_b32 s29, s29, 16")
    a(f"v_mov_b32 v8, {LOG2E}")
    a("v_mul_f32 v9, s29, v8")
    a("v_exp_f32 v9, v9")
    a("s_nop 0")
    rbf(a, 9, 9)
    a("s_waitcnt vmcnt(0)")
    a("v_lshlrev_b32 v4, 16, v4")
    a("v_lshlrev_b32 v5, 16, v5")
    a("v_lshlrev_b32 v6, 16, v6")
    a("v_lshlrev_b32 v7, 16, v7")
    a("v_mul_f32 v4, v4, v8")
    a("v_exp_f32 v4, v4")
    a("v_mul_f32 v13, v5, v9")
    a("v_mul_f32 v14, v6, v9")
    rbf(a, 4, 4)
    a("v_mul_f32 v15, v7, v9")
    a("v_mul_f32 v12, v4, v9")
    a(f"v_mul_f32 v13, {INV2PI}, v13")
    a("v_add_f32 v14, v14, v14")
    a("v_add_f32 v15, v15, v15")
    a("v_mul_f32 v12, v12, v8")
    a("v_mov_b32 v10, v14")
    a("v_sub_f32 v12, 0, v12")
    a("ds_write_b128 v20, v[12:15]")
    for ctl in ("row_shr:1", "row_shr:2", "row_shr:4", "row_shr:8", "row_bcast:15 row_mask:0xa", "row_bcast:31 row_mask:0xc"):
        a("s_nop 1")
        a(f"v_add_f32_dpp v10, v10, v10 {ctl}")
    a("s_waitcnt lgkmcnt(0)")
    stamp(a, 1)
    R = [[32 + 4 * u for u in range(4)], [48 + 4 * u for u in range(4)]]
    PA = [64 + 2 * u for u in range(4)]
    PB = [72 + 2 * u for u in range(4)]
    TT = [80 + 2 * u for u in range(4)]
    QF = [88 + 4 * e for e in range(4)]
    GF = [104, 108]
    DD = [112 + 4 * e for e in range(4)]
    CPK = [128 + u for u in range(4)]
    MAG = [132 + 2 * u for u in range(4)]
    for u in range(4):
        a(f"ds_read_b128 v[{R[0][u]}:{R[0][u]+3}], v17 offset:{u*16}")
    for ks in range(4):
        Rc = R[ks & 1]
        if ks + 1 < 4:
            for u in range(4):
                a(f"ds_read_b128 v[{R[(ks+1)&1][u]}:{R[(ks+1)&1][u]+3}], v17 offset:{(ks+1)*256+u*16}")
            a("s_waitcnt lgkmcnt(4)")
        else:
            a("s_waitcnt lgkmcnt(0)")
        for u in range(4): a(f"v_mul_f32 v{TT[u]}, v{Rc[u]}, v19")
        for u in range(4): a(f"v_mul_f32 v{TT[u]+1}, v{Rc[u]+1}, v19")
        for u in range(4): a(f"v_exp_f32 v{MAG[u]}, v{TT[u]}")
        for u in range(4): a(f"v_fract_f32 v{TT[u]+1}, v{TT[u]+1}")
        for u in range(4): a(f"v_cvt_pk_bf16_f32 v{CPK[u]}, v{Rc[u]+2}, -v{Rc[u]+3}")
        for u in range(4): a(f"v_cos_f32 v{PB[u]}, v{TT[u]+1}")
        for u in range(4): a(f"v_sin_f32 v{PB[u]+1}, v{TT[u]+1}")
        a("s_nop 0")
        for u in range(4):
            a(f"v_pk_mul_f32 v[{PA[u]}:{PA[u]+1}], v[{PB[u]}:{PB[u]+1}], v[{MAG[u]}:{MAG[u]+1}] op_sel:[0,0] op_sel_hi:[1,0]")
        cur, oth = PA, PB
        for e in range(4):
            for u in range(4): a(f"v_cvt_pk_bf16_f32 v{QF[e]+u}, v{cur[u]}, v{cur[u]+1}")
            sq = [csq(a, oth[u], cur[u], TT[u]) for u in range(4)]
            for u in range(4): a(sq[u][0])
            for u in range(4): a(sq[u][1])
            cur, oth = oth, cur
        for e in range(4):
            g = GF[e & 1]
            cm = [cmulconj(a, oth[u], cur[u], Rc[u] + 2, TT[u]) for u in range(4)]
            for u in range(4): a(cm[u][0])
            for u in range(4): a(cm[u][1])
            for u in range(4): a(f"v_cvt_pk_bf16_f32 v{g+u}, v{oth[u]}, v{oth[u]+1}")
            if e == 0:
                for u in range(4): a(f"v_cndmask_b32 v{g+u}, v{g+u}, v{CPK[u]}, s[32:33]")
            if e < 3:
                sq = [csq(a, oth[u], cur[u], TT[u]) for u in range(4)]
                for u in range(4): a(sq[u][0])
                a(f"v_mfma_f32_16x16x32_bf16 v[{DD[e]}:{DD[e]+3}], v[{QF[e]}:{QF[e]+3}], v[{g}:{g+3}], v[{DD[e]}:{DD[e]+3}]")
                for u in range(4): a(sq[u][1])
                cur, oth = oth, cur
            else:
                a("s_nop 1")
                a(f"v_mfma_f32_16x16x32_bf16 v[{DD[e]}:{DD[e]+3}], v[{QF[e]}:{QF[e]+3}], v[{g}:{g+3}], v[{DD[e]}:{DD[e]+3}]")
    stamp(a, 2)
    a("v_readlane_b32 s44, v10, 63")
    a(f"s_lshl_b32 s45, s24, 2")
    a(f"s_add_u32 s45, s45, {T16 + 2*1344 + 16}")
    a("v_mov_b32 v11, s45")
    a("v_mov_b32 v10, s44")
    a("s_nop 1")
    for e in range(4):
        a(f"ds_write_b128 v22, v[{DD[e]}:{DD[e]+3}] offset:{e*1024}")
    a("ds_write_b32 v11, v10")
    a("s_waitcnt lgkmcnt(0)")
    a("s_barrier")
    a("ds_read_b128 v[32:35], v23")
    a("ds_read_b128 v[36:39], v23 offset:4096")
    a("ds_read_b128 v[40:43], v23 offset:1024")
    a("ds_read_b128 v[44:47], v23 offset:5120")
    a(f"s_lshl_b32 s45, s25, 3")
    a(f"s_add_u32 s45, s45, {T16 + 2*1344 + 16}")
    a("v_mov_b32 v11, s45")
    a("ds_read_b64 v[8:9], v11")
    a("s_waitcnt lgkmcnt(0)")
    for r in range(4): a(f"v_add_f32 v{32+r}, v{32+r}, v{36+r}")
    for r in range(4): a(f"v_add_f32 v{40+r}, v{40+r}, v{44+r}")
    a("v_add_f32 v8, v8, v9")
    a("v_cvt_pk_bf16_f32 v32, v32, v33")
    a("v_cvt_pk_bf16_f32 v33, v34, v35")
    a("v_cvt_pk_bf16_f32 v40, v40, v41")
    a("v_cvt_pk_bf16_f32 v41, v42, v43")
    a("v_cvt_pk_bf16_f32 v8, v8, v8")
    a("s_sub_u32 s45, s39, 2")
    a("v_mov_b32 v11, s45")
    a("s_mov_b64 s[42:43], exec")
    a("s_mov_b64 exec, s[36:37]")
    a("ds_write_b64 v24, v[32:33]")
    a("s_mov_b64 exec, s[34:35]")
    a("ds_write_b64 v24, v[40:41] offset:256")
    a("s_mov_b64 exec, s[42:43]")
    a("ds_write_b16 v11, v8")
    a("s_waitcnt lgkmcnt(0)")
    a("s_barrier")
    stamp(a, 3)
    for t in range(16):
        a(f"ds_read_u16 v{76+t}, v{GA+t}")
        if t == 7: a("v_mov_b32 v72, 0\nv_mov_b32 v73, 0\nv_mov_b32 v74, 0\nv_mov_b32 v75, 0")
    a("s_waitcnt lgkmcnt(8)")
    for p in range(4):
        a(f"v_lshl_or_b32 v{64+p}, v{77+2*p}, 16, v{76+2*p}")
    a("global_store_dwordx4 v29, v[64:67], s[14:15] sc1")
    a("s_waitcnt lgkmcnt(0)")
    for p in range(4):
        a(f"v_lshl_or_b32 v{68+p}, v{85+2*p}, 16, v{84+2*p}")
    a("global_store_dwordx4 v30, v[68:71], s[14:15] sc1")
    a("v_cmp_gt_u32 vcc, 4, v26")
    a("s_and_saveexec_b64 s[42:43], vcc")
    a("s_cbranch_execz K1_END")
    a("global_store_dwordx4 v31, v[72:75], s[14:15] sc1")
    a("s_branch K1_END")
    a("K1_TSM:   ; LINT-RESET")
    a("s_sub_u32 s25, s2, 256")
    a("s_and_b32 s28, s25, 7")
    a("s_lshr_b32 s29, s25, 3")
    a("s_lshr_b32 s26, s29, 3")
    a("s_lshl_b32 s27, s28, 2")
    a("s_add_u32 s26, s26, s27")
    a("s_and_b32 s27, s29, 7")
    a("s_lshl_b32 s30, s28, 8")
    a("s_lshl_b32 s31, s29, 3")
    a("s_add_u32 s30, s30, s31")
    a("s_lshl_b32 s28, s26, 16")
    a("s_lshl_b32 s29, s27, 7")
    a("s_add_u32 s28, s28, s29")
    a("v_lshrrev_b32 v2, 3, v0")
    a("v_and_b32 v3, 7, v0")
    a("v_lshlrev_b32 v4, 10, v2")
    a("v_lshl_add_u32 v4, v3, 4, v4")
    a("v_add_u32 v4, s28, v4")
    a("v_add_u32 v5, 0x8000, v4")
    a("s_lshl_b32 s31, s24, 1")
    a("s_add_u32 s30, s30, s31")
    a("s_lshl_b32 s31, s30, 10")
    a("v_lshl_add_u32 v6, v1, 4, s31")
    a("s_and_b32 s33, s25, 7")
    a("s_mul_i32 s33, s33, 24")
    a("s_lshr_b32 s34, s25, 3")
    a("s_add_u32 s33, s33, s34")
    a("v_lshrrev_b32 v7, 1, v0")
    a("v_and_b32 v24, 1, v0")
    a("v_mul_u32_u24 v25, 6144, v7")
    a("v_lshl_add_u32 v25, v24, 4, v25")
    a("s_lshl_b32 s35, s33, 5")
    a("v_add_u32 v25, s35, v25")
    a("v_add_u32 v26, 786432, v25")
    a("v_add_u32 v27, 786432, v26")
    a("v_add_u32 v28, 786432, v27")
    a("v_lshlrev_b32 v29, 1, v7")
    a("s_waitcnt lgkmcnt(0)")
    wsfix(a, 14)
    a("global_load_dwordx4 v[8:11], v4, s[16:17]" + NT1)
    a("global_load_dwordx4 v[12:15], v5, s[16:17]" + NT1)
    a("global_load_dwordx4 v[16:19], v6, s[16:17]" + NT1)
    a("global_load_dwordx4 v[20:23], v6, s[16:17] offset:1024" + NT1)
    a("s_cmp_ge_u32 s25, 192")
    a("s_cbranch_scc1 K1_nomodld")
    for k in range(4):
        a(f"global_load_ushort v{48+k}, v29, s[20:21] offset:{256*k}")
    for k, vo in enumerate((25, 26, 27, 28)):
        a(f"global_load_dwordx4 v[{32+4*k}:{35+4*k}], v{vo}, s[22:23]" + NT1)
    a("K1_nomodld:")
    a("v_mul_u32_u24 v30, 160, v2")
    a("v_lshl_add_u32 v30, v3, 4, v30")
    a("s_cmp_ge_u32 s25, 192")
    a("s_cbranch_scc1 K1_w0")
    a("s_waitcnt vmcnt(10)")
    a("s_branch K1_w1")
    a("K1_w0:")
    a("s_waitcnt vmcnt(2)")
    a("K1_w1:   ; LINT-RESET (T loads have landed; S/mod loads may be outstanding)")
    stamp(a, 1)
    a("ds_write_b128 v30, v[8:11]")
    a("ds_write_b128 v30, v[12:15] offset:5120")
    a("s_cmp_ge_u32 s25, 192")
    a("s_cbranch_scc1 K1_w2")
    a("s_waitcnt vmcnt(8)")
    a("s_branch K1_w3")
    a("K1_w2:")
    a("s_waitcnt vmcnt(0)")
    a("K1_w3:   ; LINT-RESET")
    a("v_mov_b32 v31, 0x3f803f80")
    a("v_mov_b32 v52, 0\nv_mov_b32 v53, 0\nv_mov_b32 v54, 0\nv_mov_b32 v55, 0")
    for k in range(4):
        a(f"v_dot2_f32_bf16 v52, v{16+k}, v31, v52")
        a(f"v_dot2_f32_bf16 v53, v{16+k}, v{16+k}, v53")
        a(f"v_dot2_f32_bf16 v54, v{20+k}, v31, v54")
        a(f"v_dot2_f32_bf16 v55, v{20+k}, v{20+k}, v55")
    a("s_nop 1")
    for ctl in ("row_shr:1", "row_shr:2", "row_shr:4", "row_shr:8", "row_bcast:15 row_mask:0xa", "row_bcast:31 row_mask:0xc"):
        for r in range(52, 56):
            a(f"v_add_f32_dpp v{r}, v{r}, v{r} {ctl}")
        a("s_nop 0") if False else None
    a("s_nop 1")
    for k, r in enumerate(range(52, 56)):
        a(f"v_readlane_b32 s{36+k}, v{r}, 63")
    a("s_nop 1")
    a("v_cmp_eq_u32 vcc, 0, v1")
    a("v_mov_b32 v56, s38")
    a("v_mov_b32 v57, s39")
    a("v_mov_b32 v58, s36")
    a("v_mov_b32 v59, s37")
    a("v_cndmask_b32 v56, v56, v58, vcc")
    a("v_cndmask_b32 v57, v57, v59, vcc")
    a("v_mul_f32 v56, 0x3b000000, v56")
    a("v_mul_f32 v57, 0x3b000000, v57")
    a("v_fma_f32 v57, -v56, v56, v57")
    a("v_max_f32 v57, 0, v57")
    rbf(a, 56, 56)
    rbf(a, 57, 57)
    a("v_add_f32 v57, 0x3727c5ac, v57")
    rbf(a, 57, 57)
    a("v_sqrt_f32 v57, v57")
    a("s_nop 0")
    rbf(a, 57, 57)
    a("v_rcp_f32 v58, v57")
    a("s_nop 0")
    a("v_mul_f32 v59, v56, v58")
    a("v_sub_f32 v59, 0, v59")
    a("s_lshl_b32 s31, s30, 2")
    a(f"s_add_u32 s31, s31, {STAT1}")
    a("v_lshl_add_u32 v60, v1, 2, s31")
    a("v_add_u32 v61, 8192, v60")
    a("v_cmp_gt_u32 vcc, 2, v1")
    a("s_and_saveexec_b64 s[42:43], vcc")
    a("global_store_dword v60, v58, s[14:15]" + SC1)
    a("global_store_dword v61, v59, s[14:15]" + SC1)
    a("s_mov_b64 exec, s[42:43]")
    a("s_cmp_ge_u32 s25, 192")
    a("s_cbranch_scc1 K1_nomodc")
    a("s_waitcnt vmcnt(2)")
    for k in range(4):
        a(f"v_lshlrev_b32 v{48+k}, 16, v{48+k}")
    for k in range(4):
        a(f"v_mul_f32 v{52+k}, 0xbfb8aa3b, v{48+k}")
    for k in range(4):
        a(f"v_exp_f32 v{52+k}, v{52+k}")
    a("s_nop 0")
    for k in range(4):
        a(f"v_add_f32 v{52+k}, 1.0, v{52+k}")
    for k in range(4):
        a(f"v_rcp_f32 v{56+k}, v{52+k}")
    a("s_nop 0")
    for k in range(4):
        a(f"v_mul_f32 v{60+k}, v{48+k}, v{56+k}")
    for k in range(4):
        a(f"v_fma_f32 v{48+k}, -v{60+k}, v{52+k}, v{48+k}")
    for k in range(4):
        a(f"v_fma_f32 v{48+k}, v{48+k}, v{56+k}, v{60+k}")
    for k in range(4):
        rbf(a, 48 + k, 48 + k)
    for k in range(4):
        for p in range(4):
            w = 32 + 4 * k + p
            a(f"v_lshlrev_b32 v62, 16, v{w}")
            a(f"v_and_b32 v63, 0xffff0000, v{w}")
            if k == 0:
                a(f"v_mul_f32 v{64+2*p}, v62, v48")
                a(f"v_mul_f32 v{65+2*p}, v63, v48")
            else:
                a(f"v_fmac_f32 v{64+2*p}, v62, v{48+k}")
                a(f"v_fmac_f32 v{65+2*p}, v63, v{48+k}")
    a("v_lshlrev_b32 v61, 5, v0")
    a("ds_write_b128 v61, v[64:67] offset:10240")
    a("ds_write_b128 v61, v[68:71] offset:10256")
    a("K1_nomodc:")
    stamp(a, 2)
    a("s_waitcnt lgkmcnt(0)")
    a("s_barrier")
    stamp(a, 3)
    a("v_lshrrev_b32 v2, 4, v1")
    a("v_bfe_u32 v3, v1, 2, 2")
    a("v_and_b32 v4, 3, v1")
    a("v_lshl_add_u32 v5, v2, 3, v3")
    a("v_mul_u32_u24 v5, 160, v5")
    a("v_lshl_add_u32 v5, v4, 3, v5")
    a("s_lshl_b32 s31, s24, 5")
    a("v_add_u32 v5, s31, v5")
    a("ds_read_b64_tr_b16 v[8:9], v5")
    a("ds_read_b64_tr_b16 v[10:11], v5 offset:640")
    a(f"ds_read_b64_tr_b16 v[12:13], v5 offset:{32*160}")
    a(f"ds_read_b64_tr_b16 v[14:15], v5 offset:{36*160}")
    a("v_and_b32 v6, 15, v1")
    a("v_lshlrev_b32 v6, 12, v6")
    a("v_lshl_add_u32 v6, v2, 4, v6")
    a("s_lshl_b32 s31, s27, 18")
    a("s_lshl_b32 s32, s24, 16")
    a("s_add_u32 s31, s31, s32")
    a("s_lshl_b32 s32, s26, 7")
    a("s_add_u32 s31, s31, s32")
    a(f"s_add_u32 s31, s31, {XT}") if XT else None
    a("v_add_u32 v6, s31, v6")
    a("s_waitcnt lgkmcnt(2)")
    a("global_store_dwordx4 v6, v[8:11], s[14:15]" + SC1)
    a("s_waitcnt lgkmcnt(0)")
    a("global_store_dwordx4 v6, v[12:15], s[14:15] offset:64" + SC1)
    a("s_cmp_ge_u32 s25, 192")
    a("s_cbranch_scc1 K1_END")
    a("s_cmp_lg_u32 s24, 0")
    a("s_cbranch_scc1 K1_END")
    a("v_and_b32 v2, 15, v1")
    a("v_lshrrev_b32 v3, 4, v1")
    a("v_lshlrev_b32 v4, 11, v3")
    a("v_lshl_add_u32 v4, v2, 2, v4")
    for i in range(32):
        a(f"ds_read_b32 v{16+i}, v4 offset:{10240+64*i}")
        if i == 14: a("s_waitcnt lgkmcnt(7)")
    a("s_waitcnt lgkmcnt(0)")
    for st in (16, 8, 4, 2, 1):
        for i in range(st):
            a(f"v_add_f32 v{16+i}, v{16+i}, v{16+st+i}")
    a("s_nop 0")
    a("v_mov_b32 v17, v16")
    a("s_nop 1")
    a("v_permlane16_swap_b32 v16, v17")
    a("s_nop 0")
    a("v_add_f32 v16, v16, v17")
    a("s_nop 0")
    a("v_mov_b32 v17, v16")
    a("s_nop 1")
    a("v_permlane32_swap_b32 v16, v17")
    a("s_nop 0")
    a("v_add_f32 v16, v16, v17")
    rbf(a, 16, 16)
    a("s_lshl_b32 s31, s33, 6")
    a(f"s_add_u32 s31, s31, {MODF}")
    a("v_lshl_add_u32 v5, v2, 2, s31")
    a("v_cmp_gt_u32 vcc, 16, v1")
    a("s_and_saveexec_b64 s[42:43], vcc")
    a("global_store_dword v5, v16, s[14:15]" + SC1)
    a("K1_END:   ; LINT-RESET")
    stamp_store(a, 0, 14, 24)
    a("K1_EXIT:")
    a.end_kernel(name, 160, 100)


KC_CH = 33280
CS    = 4160
UB    = 66560
U_CH  = 7600
SCR   = 81792
FLG   = SCR + 16384
SIDE  = FLG + 64
SIDE_SZ = 11520
K2_LDS = SIDE + 4 * SIDE_SZ
FLAGS_OFF = 0x0638000

def conv_path(a, hb, tag):
    if hb == 0: steps = [(d, True) for d in range(24)]
    else: steps = [(d, True) for d in range(24, 32)] + [(d, False) for d in range(32, 64)]
    ACC = [32, 48]
    SET = [64, 88, 112]
    def reads(k):
        d, both = steps[k]; b = SET[k % 3]
        out = []
        for hf in (0, 1):
            out.append(f"ds_read_b128 v[{b+4*hf}:{b+4*hf+3}], v2 offset:{64*d + 32*(1-hf)}")
        tiles = (0, 1) if both else (1,)
        for t in tiles:
            for hf in (0, 1):
                r = b + 8 + 8 * t + 4 * hf
                out.append(f"ds_read_b128 v[{r}:{r+3}], v3 offset:{(31 + 32*t - d)*80 + 32*hf}")
        return out
    n = len(steps)
    for k in range(2):
        for x in reads(k): a(x)
    for k in range(n):
        d, both = steps[k]; b = SET[k % 3]
        nxt = reads(k + 2) if k + 2 < n else []
        after = len(nxt) + (len(reads(k + 1)) if k + 1 < n else 0)
        mf = []
        tiles = (0, 1) if both else (1,)
        for hf in (0, 1):
            for t in tiles:
                r = b + 8 + 8 * t + 4 * hf
                mf.append(f"v_mfma_f32_32x32x16_bf16 v[{ACC[t]}:{ACC[t]+15}], v[{b+4*hf}:{b+4*hf+3}], v[{r}:{r+3}], v[{ACC[t]}:{ACC[t]+15}]")
        after = len(reads(k + 1)) if k + 1 < n else 0
        a(f"s_waitcnt lgkmcnt({after})")
        per = -(-len(nxt) // len(mf)) if nxt else 0
        ri = 0
        for m in mf:
            a(m)
            for _ in range(per):
                if ri < len(nxt): a(nxt[ri]); ri += 1
    stamp(a, 3)
    give, keep = (ACC[1], ACC[0]) if hb == 0 else (ACC[0], ACC[1])
    a("s_nop 7")
    a("s_nop 3")
    for i in range(4):
        a(f"ds_write_b128 v4, v[{give+4*i}:{give+4*i+3}] offset:{1024*i}")
    for i in range(4):
        a(f"ds_read_b64 v[{64+2*i}:{65+2*i}], v6 offset:{16*i}")
    a("s_waitcnt lgkmcnt(0)")
    a("v_mov_b32 v72, 1")
    a("ds_write_b32 v7, v72")
    a(f"K2_poll{tag}:")
    a("ds_read_b32 v73, v8")
    a("s_waitcnt lgkmcnt(0)")
    a("v_readfirstlane_b32 s40, v73")
    a("s_cmp_eq_u32 s40, 1")
    a(f"s_cbranch_scc0 K2_poll{tag}")
    for i in range(4):
        a(f"ds_read_b128 v[{80+4*i}:{83+4*i}], v5 offset:{1024*i}")
    for i in range(4):
        for q in range(2):
            a(f"v_lshlrev_b32 v{96+4*i+2*q}, 16, v{64+2*i+q}")
            a(f"v_and_b32 v{97+4*i+2*q}, 0xffff0000, v{64+2*i+q}")
    a("s_waitcnt vmcnt(0)")
    for i in range(4):
        for q in range(2):
            a(f"v_lshlrev_b32 v{112+4*i+2*q}, 16, v{144+2*i+q}")
            a(f"v_and_b32 v{113+4*i+2*q}, 0xffff0000, v{144+2*i+q}")
    a("s_waitcnt lgkmcnt(0)")
    for j in range(8):
        a(f"v_pk_add_f32 v[{keep+2*j}:{keep+2*j+1}], v[{keep+2*j}:{keep+2*j+1}], v[{80+2*j}:{81+2*j}]")
    for j in range(8):
        a(f"v_pk_fma_f32 v[{keep+2*j}:{keep+2*j+1}], v[{96+2*j}:{97+2*j}], s[36:37], v[{keep+2*j}:{keep+2*j+1}] op_sel_hi:[1,0,1]")
    for j in range(8):
        a(f"v_pk_fma_f32 v[{keep+2*j}:{keep+2*j+1}], v[{keep+2*j}:{keep+2*j+1}], s[36:37], v[{112+2*j}:{113+2*j}] op_sel:[0,1,0] op_sel_hi:[1,1,1]")
    for j in range(8):
        a(f"v_cvt_pk_bf16_f32 v{64+j}, v{keep+2*j}, v{keep+2*j+1}")
    for i in range(4):
        a(f"ds_write_b64 v10, v[{64+2*i}:{65+2*i}] offset:{16*i}")
    a("s_waitcnt lgkmcnt(0)")
    a("ds_read_b128 v[72:75], v11")
    a("ds_read_b128 v[76:79], v11 offset:1280")
    a("s_waitcnt lgkmcnt(1)")
    a("global_store_dwordx4 v9, v[72:75], s[14:15]" + SC1)
    a("s_waitcnt lgkmcnt(0)")
    a("global_store_dwordx4 v12, v[76:79], s[14:15]" + SC1)
    a("s_branch K2_END")

def side_load_and_stage(a):
    for i in range(8):
        a(f"buffer_load_dwordx4 v[{32+4*i}:{35+4*i}], v10, s[44:47], s49 offen nt")
        if i < 7: a("s_add_u32 s49, s49, s48")

def k2(a):
    name = "k2_kernel"
    a.begin_kernel(name, 256, 512, K2_LDS)
    a("s_cmp_ge_u32 s2, 256")
    a("s_cbranch_scc1 K2_EXIT")
    stamp(a, 0)
    a("s_load_dwordx2 s[14:15], s[0:1], 128")
    a("s_load_dwordx2 s[12:13], s[0:1], 48")
    a("s_load_dwordx2 s[16:17], s[0:1], 64")
    a("s_load_dwordx2 s[18:19], s[0:1], 80")
    wave_id(a, 24, 1)
    a("v_and_b32 v1, 63, v0")
    a("s_cmp_ge_u32 s24, 4")
    a("s_cbranch_scc1 K2_SIDE")
    a("s_lshl_b32 s27, s2, 1")
    a("s_lshr_b32 s25, s24, 1")
    a("s_and_b32 s26, s24, 1")
    a("s_lshl_b32 s28, s27, 12")
    a(f"s_add_u32 s28, s28, {XT}") if XT else None
    a("v_lshl_add_u32 v44, v0, 4, s28")
    a("v_add_u32 v45, 4096, v44")
    a("v_lshlrev_b32 v46, 5, v0")
    a(f"v_add_u32 v46, {STAT1}, v46")
    a(f"v_add_u32 v47, 8192, v46")
    a(f"s_mul_i32 s29, s27, {KW}")
    a(f"s_add_u32 s29, s29, {KREV + 4080}")
    a("v_lshlrev_b32 v48, 4, v0")
    a("v_sub_u32 v48, s29, v48")
    a(f"v_add_u32 v49, {KW}, v48")
    a("v_and_b32 v50, 31, v1")
    a("v_lshrrev_b32 v51, 5, v1")
    a("s_lshl_b32 s30, s25, 12")
    a("s_add_u32 s30, s30, s28")
    a("s_lshl_b32 s31, s26, 11")
    a("s_add_u32 s30, s30, s31")
    a("v_lshlrev_b32 v52, 6, v50")
    a("v_lshl_add_u32 v52, v51, 3, v52")
    a("v_add_u32 v52, s30, v52")
    a("s_lshl_b32 s32, s27, 2")
    a(f"s_add_u32 s33, s32, {MODF}")
    a(f"s_add_u32 s34, s32, {MODF + 2048}")
    a(f"s_add_u32 s35, s32, {MODF + 4096}")
    a("s_lshl_b32 s31, s2, 2")
    a("s_waitcnt lgkmcnt(0)")
    wsfix(a, 14)
    a("global_load_dwordx4 v[28:31], v48, s[14:15]")
    a("global_load_dwordx4 v[32:35], v48, s[14:15] offset:16")
    a("global_load_dwordx4 v[36:39], v49, s[14:15]")
    a("global_load_dwordx4 v[40:43], v49, s[14:15] offset:16")
    a("global_load_dwordx4 v[4:7], v44, s[14:15]")
    a("global_load_dwordx4 v[8:11], v45, s[14:15]")
    a("global_load_dwordx4 v[12:15], v46, s[14:15]")
    a("global_load_dwordx4 v[16:19], v46, s[14:15] offset:16")
    a("global_load_dwordx4 v[20:23], v47, s[14:15]")
    a("global_load_dwordx4 v[24:27], v47, s[14:15] offset:16")
    for i in range(4):
        a(f"global_load_dwordx2 v[{144+2*i}:{145+2*i}], v52, s[14:15] offset:{16*i}")
    a("s_load_dwordx2 s[50:51], s[14:15], s33")
    a("s_load_dwordx2 s[52:53], s[14:15], s34")
    a("s_load_dwordx2 s[54:55], s[14:15], s35")
    a("s_load_dword s56, s[12:13], s31")
    a("v_mov_b32 v56, 0\nv_mov_b32 v57, 0\nv_mov_b32 v58, 0\nv_mov_b32 v59, 0")
    a("v_mul_u32_u24 v53, 171, v0")
    a("v_lshrrev_b32 v53, 9, v53")
    a("v_mul_u32_u24 v54, 3, v53")
    a("v_sub_u32 v54, v0, v54")
    a(f"v_mul_u32_u24 v53, {CS}, v53")
    a("v_lshl_add_u32 v53, v54, 4, v53")
    a("v_cmp_gt_u32 vcc, 48, v0")
    a("s_and_saveexec_b64 s[42:43], vcc")
    a("ds_write_b128 v53, v[56:59]")
    a("s_mov_b64 exec, s[42:43]")
    a("v_lshlrev_b32 v53, 4, v0")
    a(f"v_add_u32 v53, {UB}, v53")
    a("v_cmp_gt_u32 vcc, 155, v0")
    a("s_and_saveexec_b64 s[42:43], vcc")
    a(f"ds_write_b128 v53, v[56:59]")
    a(f"ds_write_b128 v53, v[56:59] offset:{U_CH}")
    a("s_mov_b64 exec, s[42:43]")
    a("v_lshlrev_b32 v53, 2, v0")
    a("v_cmp_gt_u32 vcc, 4, v0")
    a("s_and_saveexec_b64 s[42:43], vcc")
    a(f"v_add_u32 v53, {FLG}, v53")
    a("ds_write_b32 v53, v56")
    a("s_mov_b64 exec, s[42:43]")
    a("v_and_b32 v53, 7, v50")
    a("v_lshrrev_b32 v54, 3, v50")
    a(f"v_mul_u32_u24 v2, {CS}, v53")
    a("v_sub_u32 v54, v54, v51")
    a("v_add_u32 v54, 1, v54")
    a("v_lshl_add_u32 v2, v54, 4, v2")
    a(f"s_mul_i32 s38, s25, {KC_CH}")
    a("v_add_u32 v2, s38, v2")
    a("v_mul_u32_u24 v3, 80, v50")
    a("v_lshl_add_u32 v3, v51, 4, v3")
    a(f"s_mul_i32 s38, s25, {U_CH}")
    a(f"s_add_u32 s38, s38, {UB}")
    a("v_add_u32 v3, s38, v3")
    a("v_lshlrev_b32 v55, 4, v0")
    a("v_add_u32 v55, 48, v55")
    for c in range(2):
        W = 28 + 8 * c
        a(f"s_waitcnt vmcnt({12 - 2*c})")
        V = 60
        for j in range(7): a(f"v_alignbit_b32 v{V+j}, v{W+j+1}, v{W+j}, 16")
        for j in range(1, 7): a(f"v_alignbit_b32 v{68+j-1}, v{W+j+1}, v{W+j}, 16")
        for j in range(1, 7): a(f"v_mov_b32 v{76+j-1}, v{W+j}")
        off = c * KC_CH
        a(f"ds_write_b128 v55, v[{W}:{W+3}] offset:{off + 7*CS}")
        a(f"ds_write_b128 v55, v[{W+2}:{W+5}] offset:{off + 3*CS}")
        a(f"ds_write_b128 v55, v[{V}:{V+3}] offset:{off + 6*CS}")
        a(f"ds_write_b128 v55, v[{V+2}:{V+5}] offset:{off + 2*CS}")
        a(f"ds_write_b128 v55, v[68:71] offset:{off + 4*CS}")
        a(f"ds_write_b128 v55, v[70:73] offset:{off + 0*CS}")
        a(f"ds_write_b128 v55, v[76:79] offset:{off + 5*CS}")
        a(f"ds_write_b128 v55, v[78:81] offset:{off + 1*CS}")
    a("s_waitcnt vmcnt(4) lgkmcnt(0)")
    a("v_add_f32 v60, 1.0, s52")
    a("v_add_f32 v61, 1.0, s53")
    rbf(a, 60, 60); rbf(a, 61, 61)
    a("s_nop 0")
    a("v_readfirstlane_b32 s58, v60")
    a("v_readfirstlane_b32 s60, v61")
    a("s_mov_b32 s59, s50")
    a("s_mov_b32 s61, s51")
    a("s_lshl_b32 s38, s25, 4")
    a("s_lshr_b32 s36, s56, s38")
    a("s_lshl_b32 s36, s36, 16")
    a("s_cmp_eq_u32 s25, 0")
    a("s_cselect_b32 s37, s54, s55")
    a("v_lshrrev_b32 v62, 2, v0")
    a("v_mul_u32_u24 v62, 80, v62")
    a("v_and_b32 v63, 3, v0")
    a("v_lshl_add_u32 v62, v63, 4, v62")
    a(f"v_add_u32 v62, {UB + 31*80}, v62")
    for c in range(2):
        X = 4 + 4 * c
        for q in range(4):
            a(f"v_lshlrev_b32 v{64+2*q}, 16, v{X+q}")
            a(f"v_and_b32 v{65+2*q}, 0xffff0000, v{X+q}")
        for q in range(4):
            a(f"v_pk_fma_f32 v[{64+2*q}:{65+2*q}], v[{64+2*q}:{65+2*q}], v[{12+2*q}:{13+2*q}], v[{20+2*q}:{21+2*q}]")
        for q in range(4):
            a(f"v_pk_fma_f32 v[{64+2*q}:{65+2*q}], v[{64+2*q}:{65+2*q}], s[{58+2*c}:{59+2*c}], s[{58+2*c}:{59+2*c}] op_sel:[0,0,1] op_sel_hi:[1,0,1]")
        for q in range(4):
            a(f"v_cvt_pk_bf16_f32 v{72+4*c+q}, v{64+2*q}, v{65+2*q}")
        a(f"ds_write_b128 v62, v[{72+4*c}:{75+4*c}] offset:{c*U_CH}")
    a("s_lshl_b32 s38, s24, 12")
    a(f"s_add_u32 s38, s38, {SCR}")
    a("v_lshl_add_u32 v4, v1, 4, s38")
    a("s_xor_b32 s39, s24, 1")
    a("s_lshl_b32 s38, s39, 12")
    a(f"s_add_u32 s38, s38, {SCR}")
    a("v_lshl_add_u32 v5, v1, 4, s38")
    a("s_lshl_b32 s38, s24, 2")
    a(f"s_add_u32 s38, s38, {FLG}")
    a("v_mov_b32 v7, s38")
    a("s_lshl_b32 s38, s39, 2")
    a(f"s_add_u32 s38, s38, {FLG}")
    a("v_mov_b32 v8, s38")
    a("v_mul_u32_u24 v6, 80, v50")
    a("v_lshl_add_u32 v6, v51, 3, v6")
    a(f"s_mul_i32 s38, s25, {U_CH}")
    a(f"s_mul_i32 s39, s26, {32*80}")
    a("s_add_u32 s38, s38, s39")
    a(f"s_add_u32 s38, s38, {UB + 31*80}")
    a("v_add_u32 v6, s38, v6")
    a("s_add_u32 s38, s27, s25")
    a("s_lshl_b32 s38, s38, 7")
    a("s_lshl_b32 s39, s26, 20")
    a("s_add_u32 s38, s38, s39")
    a(f"s_add_u32 s38, s38, {X2T}")
    a("v_lshrrev_b32 v9, 3, v1")
    a("v_lshlrev_b32 v9, 16, v9")
    a("v_and_b32 v63, 7, v1")
    a("v_lshl_add_u32 v9, v63, 4, v9")
    a("v_add_u32 v9, s38, v9")
    a("v_add_u32 v12, 0x80000, v9")
    a(f"s_mul_i32 s38, s25, {KC_CH}")
    a("s_mul_i32 s39, s26, 2560")
    a("s_add_u32 s38, s38, s39")
    a("v_mul_u32_u24 v10, 80, v50")
    a("v_lshl_add_u32 v10, v51, 3, v10")
    a("v_add_u32 v10, s38, v10")
    a("v_lshrrev_b32 v11, 2, v1")
    a("v_mul_u32_u24 v11, 80, v11")
    a("v_and_b32 v63, 3, v1")
    a("v_lshl_add_u32 v11, v63, 4, v11")
    a("v_add_u32 v11, s38, v11")
    for r in range(32, 64): a(f"v_mov_b32 v{r}, 0")
    stamp(a, 1)
    a("s_waitcnt lgkmcnt(0)")
    a("s_barrier")
    stamp(a, 2)
    a("s_cmp_eq_u32 s26, 0")
    a("s_cbranch_scc0 K2_B")
    conv_path(a, 0, "A")
    a("K2_B:   ; LINT-RESET")
    conv_path(a, 1, "B")
    a("K2_SIDE:   ; LINT-RESET")
    a("s_sub_u32 s25, s24, 4")
    a("s_lshl_b32 s26, s25, 8")
    a("s_add_u32 s26, s26, s2")
    a(f"s_mul_i32 s27, s25, {SIDE_SZ}")
    a(f"s_add_u32 s27, s27, {SIDE}")
    a("s_cmp_gt_u32 s26, 348")
    a("s_cbranch_scc1 K2_SIDE_IDLE")
    a("s_cmp_eq_u32 s26, 348")
    a("s_cbranch_scc1 K2_TAB")
    a("v_lshrrev_b32 v2, 2, v1")
    a("v_and_b32 v3, 3, v1")
    a("v_lshrrev_b32 v4, 4, v1")
    a("v_bfe_u32 v5, v1, 2, 2")
    a("v_mul_u32_u24 v11, 80, v2")
    a("v_lshl_add_u32 v11, v3, 4, v11")
    a("v_add_u32 v11, s27, v11")
    a("v_lshl_add_u32 v12, v4, 2, v5")
    a("v_mul_u32_u24 v12, 80, v12")
    a("v_lshl_add_u32 v12, v3, 3, v12")
    a("v_add_u32 v12, s27, v12")
    a("s_cmp_ge_u32 s26, 172")
    a("s_cbranch_scc1 K2_W2")
    a("s_mul_i32 s28, s26, 1525")
    a("s_lshr_b32 s28, s28, 16")
    a("s_mul_i32 s29, s28, 43")
    a("s_sub_u32 s29, s26, s29")
    a("v_mul_u32_u24 v10, 2752, v2")
    a("v_lshl_add_u32 v10, v3, 4, v10")
    a(f"s_mul_i32 s49, s28, {128*2752}")
    a("s_lshl_b32 s30, s29, 6")
    a("s_add_u32 s49, s49, s30")
    a(f"s_mov_b32 s48, {16*2752}")
    a("s_lshl_b32 s31, s28, 9")
    a("v_lshl_add_u32 v13, v1, 2, s31")
    a(f"v_add_u32 v13, {MODF + 3*2048}, v13")
    a("v_add_u32 v14, 2048, v13")
    a("s_waitcnt lgkmcnt(0)")
    wsfix(a, 14)
    a.srd(44, 16, 512 * 1376 * 2)
    a("global_load_dword v20, v13, s[14:15]")
    a("global_load_dword v21, v13, s[14:15] offset:256")
    a("global_load_dword v22, v14, s[14:15]")
    a("global_load_dword v23, v14, s[14:15] offset:256")
    side_load_and_stage(a)
    a("s_barrier")
    a("s_waitcnt vmcnt(8)")
    a("v_add_f32 v22, 1.0, v22")
    a("v_add_f32 v23, 1.0, v23")
    rbf(a, 22, 22); rbf(a, 23, 23)
    a("v_lshl_add_u32 v15, v1, 2, s27")
    a("v_lshl_add_u32 v16, v1, 1, s27")
    a("ds_write_b32 v15, v22 offset:10240")
    a("ds_write_b32 v15, v23 offset:10496")
    a("ds_write_b16_d16_hi v16, v20 offset:10752")
    a("ds_write_b16_d16_hi v16, v21 offset:10880")
    for i in range(8):
        a(f"s_waitcnt vmcnt({7-i})")
        a(f"ds_write_b128 v11, v[{32+4*i}:{35+4*i}] offset:{16*80*i}")
    a("v_and_b32 v17, 15, v1")
    a("v_cmp_eq_u32 s[50:51], 0, v17")
    a("v_cmp_eq_u32 s[52:53], 1, v17")
    a("v_mov_b32 v18, 0")
    a("v_mov_b32 v19, 0x3f803f80")
    a("v_cndmask_b32 v18, v18, v19, s[50:51]")
    a("v_mov_b32 v19, 0")
    a("v_cndmask_b32 v19, v19, -1, s[52:53]")
    a("v_lshl_add_u32 v24, v4, 4, s27")
    a("v_lshl_add_u32 v25, v4, 3, s27")
    for r in range(96, 112): a(f"v_mov_b32 v{r}, 0")
    a("s_lshl_b32 s30, s29, 11")
    a(f"s_mul_i32 s31, s28, {4*87*1024}")
    a("s_add_u32 s30, s30, s31")
    a(f"s_add_u32 s30, s30, {W1F}")
    a("v_lshl_add_u32 v26, v1, 4, s30")
    a("s_waitcnt lgkmcnt(0)")
    for ks in range(4):
        a(f"ds_read_b128 v[32:35], v24 offset:{10240 + 128*ks}")
        a(f"ds_read_b128 v[36:39], v24 offset:{10240 + 128*ks + 64}")
        a(f"ds_read_b64 v[40:41], v25 offset:{10752 + 64*ks}")
        a(f"ds_read_b64 v[42:43], v25 offset:{10752 + 64*ks + 32}")
        for nt in range(2):
            for hf in range(2):
                a(f"ds_read_b64_tr_b16 v[{44+4*nt+2*hf}:{45+4*nt+2*hf}], v12 offset:{(32*ks+16*hf)*80 + 32*nt}")
        a("s_waitcnt lgkmcnt(4)")
        for q in range(4): a(f"v_and_or_b32 v{40+q}, v{40+q}, v19, v18")
        a("s_waitcnt lgkmcnt(0)")
        for nt in range(2):
            R = 44 + 4 * nt
            for q in range(4):
                a(f"v_lshlrev_b32 v{52+2*q}, 16, v{R+q}")
                a(f"v_and_b32 v{53+2*q}, 0xffff0000, v{R+q}")
            a(f"v_mfma_f32_16x16x32_bf16 v[{96+4*nt}:{99+4*nt}], v[{R}:{R+3}], v[40:43], v[{96+4*nt}:{99+4*nt}]")
            for q in range(4):
                a(f"v_pk_mul_f32 v[{52+2*q}:{53+2*q}], v[{52+2*q}:{53+2*q}], v[{32+2*q}:{33+2*q}]")
            S = 60 + 4 * nt
            for q in range(4):
                a(f"v_cvt_pk_bf16_f32 v{S+q}, v{52+2*q}, v{53+2*q}")
            a(f"global_store_dwordx4 v26, v[{S}:{S+3}], s[14:15] offset:{1024*nt}" + SC1)
            if nt == 1: a(f"v_add_u32 v26, {87*1024}, v26")
            a("s_nop 0")
            a(f"v_mfma_f32_16x16x32_bf16 v[{104+4*nt}:{107+4*nt}], v[{S}:{S+3}], v[40:43], v[{104+4*nt}:{107+4*nt}]")
    a(f"s_mul_i32 s30, s28, {3*5504}")
    a("s_lshl_b32 s31, s29, 7")
    a("s_add_u32 s30, s30, s31")
    a(f"s_add_u32 s30, s30, {SVP}")
    a("v_lshl_add_u32 v28, v4, 4, s30")
    a("v_add_u32 v29, 5504, v28")
    a("v_add_u32 v30, 5504, v29")
    a("s_nop 7")
    a("s_mov_b64 s[42:43], exec")
    a("s_mov_b64 exec, s[50:51]")
    for nt in range(2):
        a(f"global_store_dwordx4 v28, v[{104+4*nt}:{107+4*nt}], s[14:15] offset:{64*nt}" + SC1)
        a(f"global_store_dwordx4 v30, v[{96+4*nt}:{99+4*nt}], s[14:15] offset:{64*nt}" + SC1)
    a("s_mov_b64 exec, s[52:53]")
    for nt in range(2):
        a(f"global_store_dwordx4 v29, v[{96+4*nt}:{99+4*nt}], s[14:15] offset:{64*nt}" + SC1)
    a("s_mov_b64 exec, s[42:43]")
    a("s_branch K2_END")
    a("K2_W2:   ; LINT-RESET")
    a("s_sub_u32 s26, s26, 172")
    a("s_and_b32 s29, s26, 15")
    a("s_lshr_b32 s28, s26, 4")
    a("v_lshlrev_b32 v10, 10, v2")
    a("v_lshl_add_u32 v10, v3, 4, v10")
    a("s_lshl_b32 s30, s29, 6")
    a("s_waitcnt lgkmcnt(0)")
    wsfix(a, 14)
    a.srd(44, 18, 1376 * 512 * 2)
    for ks in range(4):
        a("s_lshl_b32 s31, s28, 2")
        a(f"s_add_u32 s31, s31, {ks}")
        a("s_mul_i32 s32, s31, 13")
        a("s_lshr_b32 s32, s32, 6")
        a("s_mul_i32 s33, s32, 5")
        a("s_sub_u32 s33, s31, s33")
        a("s_mul_i32 s32, s32, 11")
        a("s_min_u32 s32, s32, 76")
        a("s_lshl_b32 s33, s33, 1")
        a("s_add_u32 s32, s32, s33")
        a("s_add_u32 s33, s32, 1")
        a("s_sub_u32 s34, s31, 40")
        a("s_mul_i32 s34, s34, 22")
        a("s_add_u32 s35, s34, 21")
        a("s_add_u32 s34, s34, 10")
        a("s_cmp_lt_u32 s31, 40")
        a("s_cselect_b32 s32, s32, s34")
        a("s_cselect_b32 s33, s33, s35")
        for hf, sr in ((0, 32), (1, 33)):
            a(f"s_lshl_b32 s49, s{sr}, 14")
            a("s_add_u32 s49, s49, s30")
            i = 2 * ks + hf
            a(f"buffer_load_dwordx4 v[{32+4*i}:{35+4*i}], v10, s[44:47], s49 offen nt")
    a("s_barrier")
    for i in range(8):
        a(f"s_waitcnt vmcnt({7-i})")
        a(f"ds_write_b128 v11, v[{32+4*i}:{35+4*i}] offset:{16*80*i}")
    a("s_lshr_b32 s30, s29, 1")
    a("s_mul_i32 s30, s30, 43")
    a("s_lshl_b32 s31, s28, 2")
    a("s_add_u32 s30, s30, s31")
    a("s_lshl_b32 s30, s30, 12")
    a("s_and_b32 s31, s29, 1")
    a("s_lshl_b32 s31, s31, 11")
    a("s_add_u32 s30, s30, s31")
    a(f"s_add_u32 s30, s30, {W2F}")
    a("v_lshl_add_u32 v26, v1, 4, s30")
    a("s_waitcnt lgkmcnt(0)")
    for ks in range(4):
        if ks == 3:
            a("s_cmp_eq_u32 s28, 10")
            a("s_cbranch_scc1 K2_END")
        for nt in range(2):
            for hf in range(2):
                a(f"ds_read_b64_tr_b16 v[{44+4*nt+2*hf}:{45+4*nt+2*hf}], v12 offset:{(32*ks+16*hf)*80 + 32*nt}")
        a("s_waitcnt lgkmcnt(2)")
        a(f"global_store_dwordx4 v26, v[44:47], s[14:15]" + SC1)
        a("s_waitcnt lgkmcnt(0)")
        a(f"global_store_dwordx4 v26, v[48:51], s[14:15] offset:1024" + SC1)
        a("v_add_u32 v26, 4096, v26")
    a("s_branch K2_END")
    a("K2_TAB:   ; LINT-RESET")
    a("v_lshlrev_b32 v2, 5, v1")
    a(f"v_add_u32 v2, {MODF + 3*2048}, v2")
    a("v_add_u32 v3, 2048, v2")
    a("s_waitcnt lgkmcnt(0)")
    wsfix(a, 14)
    a("global_load_dwordx4 v[32:35], v2, s[14:15]")
    a("global_load_dwordx4 v[36:39], v2, s[14:15] offset:16")
    a("global_load_dwordx4 v[40:43], v3, s[14:15]")
    a("global_load_dwordx4 v[44:47], v3, s[14:15] offset:16")
    a("s_barrier")
    a("s_waitcnt vmcnt(0)")
    for j in range(8): a(f"v_add_f32 v{40+j}, 1.0, v{40+j}")
    for j in range(8): rbf(a, 40 + j, 40 + j)
    for j in range(8): a(f"v_mul_f32 v{48+j}, v{40+j}, v{40+j}")
    for j in range(8): a(f"v_mul_f32 v{56+j}, v{40+j}, v{32+j}")
    for k, base in enumerate((40, 48, 56, 32)):
        a(f"v_add_f32 v{100+k}, v{base}, v{base+1}")
        for j in range(2, 8): a(f"v_add_f32 v{100+k}, v{100+k}, v{base+j}")
    a("v_mul_f32 v104, v32, v32")
    for j in range(1, 8): a(f"v_fmac_f32 v104, v{32+j}, v{32+j}")
    a("v_lshl_add_u32 v4, v1, 4, s27")
    a("v_mov_b32 v64, 0x3f803f80\nv_mov_b32 v65, 0x3f803f80\nv_mov_b32 v66, 0x3f803f80\nv_mov_b32 v67, 0x3f803f80")
    a("ds_write_b128 v4, v[64:67]")
    for q in range(4): a(f"v_cvt_pk_bf16_f32 v{68+q}, v{40+2*q}, v{41+2*q}")
    a("ds_write_b128 v4, v[68:71] offset:1024")
    for (src, row) in ((48, 2), (56, 4)):
        for q in range(4): a(f"v_cvt_pk_bf16_f32 v{72+q}, v{src+2*q}, v{src+2*q+1}")
        a(f"ds_write_b128 v4, v[72:75] offset:{1024*row}")
        for q in range(4):
            a(f"v_lshlrev_b32 v{80+2*q}, 16, v{72+q}")
            a(f"v_and_b32 v{81+2*q}, 0xffff0000, v{72+q}")
        for j in range(8): a(f"v_sub_f32 v{80+j}, v{src+j}, v{80+j}")
        for q in range(4): a(f"v_cvt_pk_bf16_f32 v{76+q}, v{80+2*q}, v{81+2*q}")
        a(f"ds_write_b128 v4, v[76:79] offset:{1024*(row+1)}")
    a("s_nop 1")
    for ctl in ("row_shr:1", "row_shr:2", "row_shr:4", "row_shr:8", "row_bcast:15 row_mask:0xa", "row_bcast:31 row_mask:0xc"):
        for r in range(100, 105):
            a(f"v_add_f32_dpp v{r}, v{r}, v{r} {ctl}")
    a(f"v_mov_b32 v5, {SCAL}")
    a("s_mov_b64 s[42:43], exec")
    a("s_mov_b64 exec, 0x8000000000000000") if False else None
    a("v_cmp_eq_u32 vcc, 63, v1")
    a("s_and_saveexec_b64 s[42:43], vcc")
    a("global_store_dwordx4 v5, v[100:103], s[14:15]" + SC1)
    a("global_store_dword v5, v104, s[14:15] offset:16" + SC1)
    a("s_mov_b64 exec, s[42:43]")
    a("v_and_b32 v6, 15, v1")
    a("v_lshrrev_b32 v7, 4, v1")
    a("v_min_u32 v8, 5, v6")
    a("v_lshlrev_b32 v8, 10, v8")
    a("v_lshl_add_u32 v8, v7, 3, v8")
    a("v_add_u32 v8, s27, v8")
    a("v_cmp_gt_u32 vcc, 6, v6")
    a("v_mov_b32 v9, 0")
    a("s_nop 0")
    a("v_cndmask_b32 v9, v9, -1, vcc")
    a(f"s_mov_b32 s30, {W1F + 86*1024}")
    a("v_lshl_add_u32 v10, v1, 4, s30")
    a("s_waitcnt lgkmcnt(0)")
    for ks in range(16):
        R = 16 + 4 * (ks & 1)
        a(f"ds_read_b64 v[{R}:{R+1}], v8 offset:{64*ks}")
        a(f"ds_read_b64 v[{R+2}:{R+3}], v8 offset:{64*ks+32}")
        a("s_waitcnt lgkmcnt(0)")
        for q in range(4): a(f"v_and_b32 v{R+q}, v{R+q}, v9")
        a(f"global_store_dwordx4 v10, v[{R}:{R+3}], s[14:15]" + SC1)
        a(f"v_add_u32 v10, {87*1024}, v10")
    a("s_branch K2_END")
    a("K2_SIDE_IDLE:   ; LINT-RESET")
    a("s_cmp_eq_u32 s26, 349")
    a("s_cbranch_scc0 K2_idle2")
    a("s_waitcnt lgkmcnt(0)")
    wsfix(a, 14)
    a("v_mov_b32 v4, 0\nv_mov_b32 v5, 0\nv_mov_b32 v6, 0\nv_mov_b32 v7, 0")
    a("v_lshlrev_b32 v2, 4, v1")
    a(f"v_add_u32 v2, {FLAGS_OFF}, v2")
    for q in range(4):
        a(f"global_store_dwordx4 v2, v[4:7], s[14:15] offset:{1024*q} sc1")
    a("K2_idle2:")
    a("s_barrier")
    a("K2_END:   ; LINT-RESET")
    stamp_store(a, 1, 14, 24)
    a("K2_EXIT:")
    a.end_kernel(name, 160, 100)


G2T = 65536
SVT = G2T + 2048
STT = SVT + 3072
COF = STT + 2048
RED = COF + 4096
P_W = 64 * 272
K3_LDS = RED + 4 * P_W
FLAGS = 0x0638000

def k3(a):
    name = "k3_kernel"
    a.begin_kernel(name, 256, 256, K3_LDS)
    a("s_cmp_ge_u32 s2, 256")
    a("s_cbranch_scc1 K3_EXIT")
    stamp(a, 0)
    a("s_load_dwordx2 s[14:15], s[0:1], 128")
    a("s_load_dwordx2 s[12:13], s[0:1], 72")
    a("s_load_dwordx2 s[16:17], s[0:1], 88")
    a("s_load_dwordx2 s[18:19], s[0:1], 112")
    wave_id(a, 24, 1)
    a("v_and_b32 v1, 63, v0")
    a("s_and_b32 s25, s2, 7")
    a("s_lshr_b32 s26, s2, 3")
    a("s_lshr_b32 s27, s26, 3")
    a("s_lshl_b32 s25, s25, 2")
    a("s_add_u32 s25, s25, s27")
    a("s_and_b32 s26, s26, 7")
    a("s_mul_i32 s27, s26, 11")
    a("s_min_u32 s27, s27, 76")
    a("s_cmp_lt_u32 s26, 6")
    a("s_cselect_b32 s28, 11, 10")
    a("s_mul_i32 s29, s24, 3")
    for i in range(3):
        a(f"s_add_u32 s30, s29, {i}")
        a("s_add_u32 s31, s30, s27")
        a("s_cmp_lt_u32 s30, s28")
        a(f"s_cselect_b32 s{32+i}, s31, 86")
    a("v_lshrrev_b32 v10, 3, v1")
    a("v_and_b32 v11, 6, v10")
    a("v_and_b32 v12, 7, v1")
    a("v_xor_b32 v11, v11, v12")
    a("v_lshlrev_b32 v11, 4, v11")
    a("v_lshl_add_u32 v11, v10, 7, v11")
    a("s_lshl_b32 s41, s24, 10")
    a("s_lshl_b32 s42, s25, 16")
    a("s_add_u32 s41, s41, s42")
    a(f"s_add_u32 s41, s41, {X2T}")
    a("s_lshl_b32 s42, s24, 10")
    a("v_lshlrev_b32 v2, 3, v0")
    a(f"v_add_u32 v2, {MODF + 4*2048}, v2")
    a("v_lshlrev_b32 v13, 4, v1")
    for i in range(3):
        a(f"s_lshl_b32 s30, s{32+i}, 10")
        a(f"v_add_u32 v{126+i}, s30, v13")
    a(f"s_mov_b32 s44, {W1F}")
    a("v_lshrrev_b32 v3, 4, v1")
    a("v_and_b32 v6, 15, v1")
    a("v_mov_b32 v7, s32")
    a("v_mov_b32 v8, s33")
    a("v_mov_b32 v9, s34")
    a("v_cmp_eq_u32 vcc, 1, v3")
    a("v_cmp_le_u32 s[52:53], 2, v3")
    a("s_nop 0")
    a("v_cndmask_b32 v7, v7, v8, vcc")
    a("v_cndmask_b32 v7, v7, v9, s[52:53]")
    a("v_min_u32 v7, 85, v7")
    a("v_lshl_add_u32 v7, v7, 4, v6")
    a("v_lshlrev_b32 v8, 2, v7")
    a(f"v_add_u32 v8, {SVP}, v8")
    a("v_lshlrev_b32 v9, 1, v7")
    a("s_waitcnt lgkmcnt(0)")
    wsfix(a, 14)
    a.srd(8, 14, WS_USED)
    a("global_load_dwordx2 v[4:5], v2, s[14:15]")
    for j in range(16):
        a("s_mov_b32 m0, s42")
        a("s_add_u32 s42, s42, 4096")
        a(f"buffer_load_dwordx4 v11, s[8:11], s41 offen lds")
        a(f"s_add_u32 s41, s41, 4096")
    def wload(ks):
        out = []
        for i in range(3):
            r = (ks * 3 + i) * 4
            out.append(f"buffer_load_dwordx4 a[{r}:{r+3}], v{126+i}, s[8:11], s44 offen")
        out.append(f"s_add_u32 s44, s44, {87*1024}")
        return out
    PRE = min(int(OPT.get('pre', '4')), int(OPT.get('deep', '5')))
    for ks in range(PRE):
        for x in wload(ks): a(x)
    a(f"s_mov_b32 s30, {SCAL}")
    a("s_load_dwordx4 s[36:39], s[14:15], s30")
    a(f"s_mov_b32 s31, {SCAL+16}")
    a("s_load_dword s40, s[14:15], s31")
    a("v_bfe_u32 v14, v1, 2, 2")
    a("v_lshl_add_u32 v14, v3, 2, v14")
    a("v_and_b32 v15, 6, v14")
    a("v_lshrrev_b32 v15, 1, v15")
    a("v_and_b32 v29, 3, v1")
    a("v_lshlrev_b32 v30, 7, v14")
    a("v_lshl_add_u32 v30, v29, 3, v30")
    for k in range(4):
        a(f"s_add_u32 s30, s24, {k}")
        a(f"s_and_b32 s{48+k}, s30, 3")
        a(f"v_xor_b32 v31, s{48+k}, v15")
        a(f"v_lshl_add_u32 v{20+k}, v31, 5, v30")
    a("v_xor_b32 v31, s24, v15")
    a("v_lshl_add_u32 v26, v31, 5, v30")
    a("s_lshl_b32 s30, s26, 13")
    a("v_add_u32 v26, s30, v26")
    a(f"v_lshlrev_b32 v24, 4, v3")
    a(f"v_add_u32 v24, {G2T}, v24")
    ACC = 160
    for r in range(ACC, ACC + 48): a(f"v_mov_b32 v{r}, 0")
    for r in range(96, 108): a(f"v_mov_b32 v{r}, 0")
    a(f"s_waitcnt vmcnt({16 + 3*PRE})")
    a("v_add_f32 v4, 1.0, v4")
    a("v_add_f32 v5, 1.0, v5")
    rbf(a, 4, 4); rbf(a, 5, 5)
    a("v_mul_f32 v4, v4, v4")
    a("v_mul_f32 v5, v5, v5")
    a("v_lshlrev_b32 v2, 3, v0")
    a(f"v_add_u32 v2, {G2T}, v2")
    a("ds_write_b64 v2, v[4:5]")
    a(f"s_waitcnt vmcnt({3*PRE}) lgkmcnt(0)")
    stamp(a, 1)
    a("s_barrier")
    XF = [32, 48]
    def xreads(ks):
        b = XF[ks & 1]
        out = []
        for k in range(4):
            for hf in range(2):
                out.append(f"ds_read_b64_tr_b16 v[{b+4*k+2*hf}:{b+4*k+2*hf+1}], v{20+k} offset:{4096*ks + 2048*hf}")
        return out
    STATS = OPT.get('stats', 'in')
    GQ = [64, 72]
    if STATS == 'in':
        for ks in range(PRE, int(OPT.get('deep', '5'))):
            for x in wload(ks): a(x)
    def greads(ks):
        g = GQ[ks & 1]
        return [f"ds_read_b128 v[{g}:{g+3}], v24 offset:{128*ks}", f"ds_read_b128 v[{g+4}:{g+7}], v24 offset:{128*ks+64}"]
    for x in xreads(0) + greads(0): a(x)
    DEEP = int(OPT.get('deep', '5'))
    a("s_mul_i32 s58, s24, 11")
    a("s_cmp_eq_u32 s24, 3")
    a("s_cselect_b32 s58, 32, s58")
    a("s_mul_i32 s59, s26, 43")
    a("s_add_u32 s59, s59, s58")
    a("s_lshl_b32 s59, s59, 12")
    a(f"s_add_u32 s59, s59, {W2F}")
    a.srd(60, 14, WS_USED)
    a("s_cmp_eq_u32 s24, 3")
    a("s_cselect_b32 s62, 0, s10")
    drip = []
    for j in range(11):
        srd = "s[60:63]" if j == 0 else "s[8:11]"
        for t in range(4):
            r = (j * 4 + t) * 4
            drip.append(f"buffer_load_dwordx4 a[{r}:{r+3}], v13, {srd}, s59 offen offset:{1024*t}" + ("\ns_add_u32 s59, s59, 4096" if t == 3 else ""))
    a("s_lshl_b32 s30, s26, 8")
    a(f"s_add_u32 s30, s30, {MODF + 5*2048}")
    a("v_lshl_add_u32 v27, v3, 4, s30")
    a("s_lshl_b32 s30, s26, 7")
    a("v_lshl_add_u32 v28, v3, 3, s30")
    gbl = []
    for dt in range(4):
        gbl.append(f"global_load_dwordx4 v[{208+4*dt}:{211+4*dt}], v27, s[14:15] offset:{64*dt}")
    for dt in range(4):
        gbl.append(f"global_load_dwordx2 v[{224+2*dt}:{225+2*dt}], v28, s[16:17] offset:{32*dt}")
    issued = DEEP
    vm_after = []
    seq = [("W", ks) for ks in range(DEEP) for _ in range(3)]
    def vmwait(tag):
        last = max(i for i, t in enumerate(seq) if t == tag)
        return len(seq) - 1 - last
    sm_done = False
    smalls = []
    for kq in range(4):
        for v in range(3):
            smalls.append(f"global_load_dword v{112+kq*3+v}, v8, s[14:15]")
            if not (kq == 3 and v == 2): smalls.append("v_add_u32 v8, 5504, v8")
    smalls.append("global_load_ushort v124, v9, s[12:13]")
    for ks in range(16):
        b = XF[ks & 1]
        a(f"s_waitcnt vmcnt({vmwait(('W', ks))}) lgkmcnt(0)")
        mf = []
        for i in range(3):
            r = (ks * 3 + i) * 4
            for k in range(4):
                d = ACC + (i * 4 + k) * 4
                mf.append(f"v_mfma_f32_16x16x32_bf16 v[{d}:{d+3}], a[{r}:{r+3}], v[{b+4*k}:{b+4*k+3}], v[{d}:{d+3}]")
        va = []
        if ks + 1 < 16: va += xreads(ks + 1) + greads(ks + 1)
        if issued < 16:
            va += wload(issued); seq += [("W", issued)] * 3; issued += 1
        elif not sm_done:
            sm_done = True
            va += smalls + gbl; seq += [("S", 0)] * 13 + [("G", 0)] * 8
        else:
            for _ in range(3):
                va.append(drip.pop(0)); seq.append(("W2", 0))
        g = GQ[ks & 1]
        for q in range(4):
            va.append(f"v_lshlrev_b32 v{80+2*q}, 16, v{b+q}")
            va.append(f"v_and_b32 v{81+2*q}, 0xffff0000, v{b+q}")
        for q in range(8):
            va.append(f"v_mul_f32 v{80+q}, v{80+q}, v{80+q}")
        for q in range(8):
            va.append(f"v_add_f32 v{96+(q&3)}, v{96+(q&3)}, v{80+q}")
            va.append(f"v_fmac_f32 v{100+q}, v{80+q}, v{g+q}")
        per = -(-len(va) // 12)
        vi = 0
        for m in mf:
            a(m)
            for _ in range(per):
                if vi < len(va): a(va[vi]); vi += 1
    stamp(a, 2)
    KEEP = int(OPT.get('keep', '0'))
    def dr(n=1, final=False):
        for _ in range(n):
            if drip and (final or len(drip) > KEEP): a(drip.pop(0))
    a(f"s_waitcnt vmcnt({vmwait(('S', 0))})")
    dr(1)
    for v in range(3):
        a(f"v_add_f32 v{112+v}, v{112+v}, v{115+v}")
        a(f"v_add_f32 v{118+v}, v{118+v}, v{121+v}")
        a(f"v_add_f32 v{112+v}, v{112+v}, v{118+v}")
    a("v_lshlrev_b32 v124, 16, v124")
    dr(2)
    a("s_mul_i32 s30, s24, 768")
    a(f"s_add_u32 s30, s30, {SVT}")
    a("v_lshlrev_b32 v2, 8, v3")
    a("v_lshl_add_u32 v2, v6, 2, v2")
    a("v_add_u32 v2, s30, v2")
    a("v_cmp_gt_u32 vcc, 48, v1")
    a("s_and_saveexec_b64 s[42:43], vcc")
    a("ds_write_b32 v2, v112")
    a("ds_write_b32 v2, v114 offset:64")
    a("ds_write_b32 v2, v113 offset:128")
    a("ds_write_b32 v2, v124 offset:192")
    a("s_mov_b64 exec, s[42:43]")
    a("v_pk_add_f32 v[96:97], v[96:97], v[98:99]")
    a("v_add_f32 v96, v96, v97")
    a("v_pk_add_f32 v[100:101], v[100:101], v[102:103]")
    a("v_pk_add_f32 v[104:105], v[104:105], v[106:107]")
    a("v_pk_add_f32 v[100:101], v[100:101], v[104:105]")
    a("v_add_f32 v97, v100, v101")
    a("v_mov_b32 v98, v96")
    a("v_mov_b32 v99, v97")
    a("s_nop 0")
    a("v_permlane16_swap_b32 v96, v98")
    a("v_permlane16_swap_b32 v97, v99")
    dr(2)
    a("v_add_f32 v96, v96, v98")
    a("v_add_f32 v97, v97, v99")
    a("v_mov_b32 v98, v96")
    a("v_mov_b32 v99, v97")
    a("s_nop 0")
    a("v_permlane32_swap_b32 v96, v98")
    a("v_permlane32_swap_b32 v97, v99")
    a("s_lshl_b32 s30, s24, 9")
    a(f"s_add_u32 s30, s30, {STT}")
    a("v_add_f32 v96, v96, v98")
    a("v_add_f32 v97, v97, v99")
    a("v_lshl_add_u32 v2, v6, 5, s30")
    a("ds_write_b64 v2, v[96:97] offset:24")
    a("s_cmp_eq_u32 s24, 3")
    a("s_cbranch_scc0 K3_nolin")
    a("v_cmp_eq_u32 s[52:53], 0, v3")
    a("v_cmp_eq_u32 s[54:55], 1, v3")
    for k in range(4):
        a(f"s_lshl_b32 s30, s{48+k}, 9")
        a(f"s_add_u32 s30, s30, {STT}")
        a(f"v_lshl_add_u32 v{60+k}, v6, 5, s30")
    a("s_mov_b64 s[42:43], exec")
    a("s_mov_b64 exec, s[52:53]")
    for k in range(4):
        d = ACC + (8 + k) * 4
        a(f"ds_write_b128 v{60+k}, v[{d}:{d+3}]")
    a("s_mov_b64 exec, s[54:55]")
    for k in range(4):
        d = ACC + (8 + k) * 4
        a(f"ds_write_b64 v{60+k}, v[{d}:{d+1}] offset:16")
    a("s_mov_b64 exec, s[42:43]")
    a("K3_nolin:")
    dr(2)
    a("s_waitcnt lgkmcnt(0)")
    a("s_barrier")
    dr(2)
    a("v_lshlrev_b32 v2, 5, v1")
    a(f"v_add_u32 v2, {STT}, v2")
    a("ds_read_b128 v[32:35], v2")
    a("ds_read_b128 v[36:39], v2 offset:16")
    a("s_mul_i32 s30, s24, 768")
    a(f"s_add_u32 s30, s30, {SVT}")
    a("v_lshl_add_u32 v25, v3, 4, s30")
    a("s_mov_b32 s56, 0xbdd2d3e2")
    a("s_mov_b32 s57, 0xc0135761")
    a("s_waitcnt lgkmcnt(0)")
    a("v_add_f32 v34, v34, v35")
    a("v_add_f32 v36, v36, v37")
    a("v_mul_f32 v32, 0x3b000000, v32")
    a("v_mul_f32 v38, 0x3b000000, v38")
    a("v_fma_f32 v38, -v32, v32, v38")
    a("v_max_f32 v38, 0, v38")
    a("v_cvt_pk_bf16_f32 v40, v32, v38")
    a("v_lshlrev_b32 v32, 16, v40")
    a("v_and_b32 v38, 0xffff0000, v40")
    a("v_add_f32 v38, 0x3727c5ac, v38")
    rbf(a, 38, 38)
    a("v_sqrt_f32 v38, v38")
    a("v_fma_f32 v33, -v32, s36, v33")
    dr(2)
    rbf(a, 38, 38)
    a("v_rcp_f32 v38, v38")
    a("v_mul_f32 v40, v32, v32")
    a("v_add_f32 v41, v32, v32")
    a("v_fma_f32 v39, -v41, v34, v39")
    a("v_fma_f32 v39, v40, s37, v39")
    a("v_fma_f32 v36, -v32, s38, v36")
    a("v_fma_f32 v33, v33, v38, s39")
    a("v_add_f32 v36, v36, v36")
    a("v_fma_f32 v39, v39, v38, v36")
    a("v_mul_f32 v33, 0x3b000000, v33")
    dr(2)
    a("v_fma_f32 v39, v39, v38, s40")
    a("v_mul_f32 v39, 0x3b000000, v39")
    a("v_fma_f32 v39, -v33, v33, v39")
    a("v_max_f32 v39, 0, v39")
    a("v_cvt_pk_bf16_f32 v40, v33, v39")
    a("v_lshlrev_b32 v33, 16, v40")
    a("v_and_b32 v39, 0xffff0000, v40")
    a("v_add_f32 v39, 0x3727c5ac, v39")
    rbf(a, 39, 39)
    a("v_sqrt_f32 v39, v39")
    a("s_nop 0")
    rbf(a, 39, 39)
    a("v_rcp_f32 v47, v39")
    a("s_lshl_b32 s30, s24, 10")
    a(f"s_add_u32 s30, s30, {COF}")
    a("v_mul_f32 v44, v47, v38")
    a("v_mul_f32 v46, -v47, v33")
    a("v_mul_f32 v45, -v44, v32")
    a("v_lshl_add_u32 v2, v1, 4, s30")
    a("ds_write_b128 v2, v[44:47]")
    a("s_waitcnt lgkmcnt(0)")
    for k in range(4):
        a(f"s_lshl_b32 s31, s{48+k}, 8")
        a("s_add_u32 s31, s31, s30")
        a(f"v_lshl_add_u32 v2, v6, 4, s31")
        a(f"ds_read_b128 v[{48+4*k}:{51+4*k}], v2")
    dr(2)
    stamp(a, 3)
    for i in range(3):
        if i > 0: dr(4)
        a(f"s_cmp_eq_u32 s{32+i}, 86")
        a(f"s_cbranch_scc1 K3_skip{i}")
        for st in range(4):
            a(f"ds_read_b128 v[{64+4*st}:{67+4*st}], v25 offset:{256*i + 64*st}")
        a(f"s_add_u32 s30, s29, {i}")
        a("s_lshr_b32 s31, s30, 1")
        a("s_lshl_b32 s31, s31, 12")
        a("s_and_b32 s30, s30, 1")
        a("s_lshl_b32 s30, s30, 3")
        a("s_add_u32 s30, s30, s31")
        a(f"s_add_u32 s30, s30, {RED}")
        a("s_waitcnt lgkmcnt(0)")
        A_ = ACC + i * 16
        for k in range(4):
            c = 48 + 4 * k
            for p in range(2):
                t = 96 + 4 * k + 2 * p
                a(f"v_pk_fma_f32 v[{t}:{t+1}], v[{64+2*p}:{65+2*p}], v[{c}:{c+1}], v[{76+2*p}:{77+2*p}] op_sel:[0,1,0] op_sel_hi:[1,1,1]")
        if i == 0: dr(2)
        for k in range(4):
            c = 48 + 4 * k
            for p in range(2):
                t = 96 + 4 * k + 2 * p
                a(f"v_pk_fma_f32 v[{t}:{t+1}], v[{68+2*p}:{69+2*p}], v[{c+2}:{c+3}], v[{t}:{t+1}] op_sel_hi:[1,0,1]")
        if i == 0: dr(2)
        for k in range(4):
            c = 48 + 4 * k
            for p in range(2):
                t = 96 + 4 * k + 2 * p
                a(f"v_pk_fma_f32 v[{t}:{t+1}], v[{72+2*p}:{73+2*p}], v[{c+2}:{c+3}], v[{t}:{t+1}] op_sel:[0,1,0] op_sel_hi:[1,1,1]")
        if i == 0: dr(2)
        for k in range(4):
            c = 48 + 4 * k
            for p in range(2):
                x = A_ + 4 * k + 2 * p; t = 96 + 4 * k + 2 * p
                a(f"v_pk_fma_f32 v[{x}:{x+1}], v[{x}:{x+1}], v[{c}:{c+1}], v[{t}:{t+1}] op_sel_hi:[1,0,1]")
        if i == 0: dr(2)
        for j in range(8):
            x = A_ + 2 * j; t = 96 + 2 * j
            a(f"v_pk_mul_f32 v[{t}:{t+1}], v[{x}:{x+1}], v[{x}:{x+1}]")
        for j in range(8):
            t = 96 + 2 * j
            a(f"v_pk_fma_f32 v[{t}:{t+1}], v[{t}:{t+1}], s[56:57], s[56:57] op_sel:[0,0,1] op_sel_hi:[1,0,1]")
        if i == 0: dr(2)
        for j in range(8):
            x = A_ + 2 * j; t = 96 + 2 * j
            a(f"v_pk_mul_f32 v[{t}:{t+1}], v[{t}:{t+1}], v[{x}:{x+1}]")
        for j in range(16): a(f"v_exp_f32 v{96+j}, v{96+j}")
        if i == 0: dr(3)
        for j in range(8):
            t = 96 + 2 * j
            a(f"v_pk_add_f32 v[{t}:{t+1}], v[{t}:{t+1}], 1.0 op_sel_hi:[1,0]")
        for j in range(16): a(f"v_rcp_f32 v{96+j}, v{96+j}")
        if i == 0: dr(3)
        for j in range(8):
            x = A_ + 2 * j; t = 96 + 2 * j
            a(f"v_pk_mul_f32 v[{x}:{x+1}], v[{x}:{x+1}], v[{t}:{t+1}]")
        for k in range(4):
            a(f"v_cvt_pk_bf16_f32 v{112+2*k}, v{A_+4*k}, v{A_+4*k+1}")
            a(f"v_cvt_pk_bf16_f32 v{113+2*k}, v{A_+4*k+2}, v{A_+4*k+3}")
        if i == 1:
            a("s_cmp_eq_u32 s29, 9")
            a("s_cbranch_scc0 K3_paired1")
            a("s_lshr_b32 s31, s26, 1")
            a("s_add_u32 s31, s31, 40")
            a("s_mul_i32 s43, s25, 43")
            a("s_add_u32 s31, s31, s43")
            a("s_lshl_b32 s31, s31, 12")
            a("s_and_b32 s43, s26, 1")
            a("s_lshl_b32 s43, s43, 3")
            a("s_add_u32 s31, s31, s43")
            a(f"s_add_u32 s31, s31, {HF}")
            for k in range(4):
                a(f"s_lshl_b32 s43, s{48+k}, 10")
                a("s_add_u32 s43, s43, s31")
                a(f"buffer_store_dwordx2 v[{112+2*k}:{113+2*k}], v13, s[8:11], s43 offen sc1")
            a("s_branch K3_skip1")
            a("K3_paired1:")
        for k in range(4):
            a(f"s_lshl_b32 s31, s{48+k}, 10")
            a("s_add_u32 s31, s31, s30")
            a(f"v_add_u32 v2, s31, v13")
            a(f"ds_write_b64 v2, v[{112+2*k}:{113+2*k}]")
        a(f"K3_skip{i}:   ; LINT-RESET")
    dr(99)
    a("s_waitcnt lgkmcnt(0)")
    a("s_barrier")
    stamp(a, 4)
    a("s_mul_i32 s30, s24, 5120")
    a("v_add_u32 v2, s30, v13")
    a(f"v_add_u32 v2, {RED}, v2")
    for q in range(5): a(f"ds_read_b128 v[{32+4*q}:{35+4*q}], v2 offset:{1024*q}")
    a("s_mul_i32 s31, s25, 43")
    a("s_mul_i32 s43, s26, 5")
    a("s_add_u32 s31, s31, s43")
    a("s_lshl_b32 s31, s31, 12")
    a("s_add_u32 s31, s31, s30")
    a(f"s_add_u32 s31, s31, {HF}")
    for q in range(5):
        a(f"s_waitcnt lgkmcnt({4-q})")
        if q == 4: a("s_add_u32 s31, s31, 4096")
        a(f"buffer_store_dwordx4 v[{32+4*q}:{35+4*q}], v13, s[8:11], s31 offen offset:{1024*(q&3)} sc1")
    for r in range(176, 240): a(f"v_accvgpr_write_b32 a{r}, 0")
    a(f"s_waitcnt vmcnt(0)")
    stamp(a, 5)
    a("s_barrier")
    a("s_cmp_lg_u32 s24, 0")
    a("s_cbranch_scc1 K3_wait")
    a("s_lshl_b32 s30, s25, 7")
    a(f"s_add_u32 s30, s30, {FLAGS}")
    a("v_mov_b32 v2, s30")
    a("v_mov_b32 v4, 1")
    a("s_mov_b64 s[42:43], exec")
    a("s_mov_b64 exec, 1")
    a("buffer_atomic_add v4, v2, s[8:11], 0 offen sc1")
    a("s_mov_b32 s31, 0x100000")
    a("K3_poll:")
    a("buffer_load_dword v5, v2, s[8:11], 0 offen sc1")
    a("s_waitcnt vmcnt(0)")
    a("v_readfirstlane_b32 s30, v5")
    a("s_sub_u32 s31, s31, 1")
    a("s_cmp_eq_u32 s31, 0")
    a("s_cbranch_scc1 K3_pollx")
    a("s_cmp_ge_u32 s30, 8")
    a("s_cbranch_scc0 K3_poll")
    a("K3_pollx:")
    a("s_mov_b64 exec, s[42:43]")
    a("K3_wait:   ; LINT-RESET")
    a("s_barrier")
    stamp(a, 6)
    a("s_mul_i32 s57, s25, 43")
    a("s_add_u32 s57, s57, s58")
    a("s_lshl_b32 s57, s57, 12")
    a(f"s_add_u32 s57, s57, {HF}")
    late = list(drip); drip.clear()
    hl = []
    for j in range(11):
        for t in range(4):
            r = 32 + (j * 4 + t) * 4
            hl.append((("H", j), f"buffer_load_dwordx4 v[{r}:{r+3}], v13, s[8:11], s57 offen offset:{1024*t}" + HLD + ("\ns_add_u32 s57, s57, 4096" if t == 3 else "")))
    pos = 20
    lt_ = [(("L", 0), x) for x in late]
    hl = hl[:pos] + lt_ + hl[pos:]
    HD = int(OPT.get('hd', '16'))
    qseq = []
    def hissue():
        tag, x = hl.pop(0); a(x); qseq.append(tag)
    for _ in range(HD): hissue()
    for dt in range(4):
        a(f"ds_read_b64_tr_b16 v[{16+2*dt}:{17+2*dt}], v26 offset:{2048*dt}")
    for j in range(11):
        need = [i for i, t in enumerate(qseq) if t == ("H", j)]
        assert len(need) == 4
        last = max(need)
        if late and j >= 9: last = max(last, max(i for i, t in enumerate(qseq) if t == ("L", 0)))
        a(f"s_waitcnt vmcnt({len(qseq) - 1 - last})")
        q = 0
        for dt in range(4):
            for lt in range(4):
                d = 176 + (dt * 4 + lt) * 4
                ar = (j * 4 + dt) * 4
                br = 32 + (j * 4 + lt) * 4
                a(f"v_mfma_f32_16x16x32_bf16 a[{d}:{d+3}], a[{ar}:{ar+3}], v[{br}:{br+3}], a[{d}:{d+3}]")
                if q % 4 == 0 and hl: hissue()
                q += 1
    stamp(a, 7)
    a("v_mul_u32_u24 v5, 272, v6")
    a("v_lshl_add_u32 v5, v3, 4, v5")
    a(f"s_mul_i32 s30, s24, {P_W}")
    a(f"s_add_u32 s30, s30, {RED}")
    a("v_add_u32 v7, s30, v5")
    a("s_nop 4")
    for dt in range(4):
        for lt in range(4):
            d = 176 + (dt * 4 + lt) * 4
            a(f"ds_write_b128 v7, a[{d}:{d+3}] offset:{lt*16*272 + dt*64}")
    a(f"s_mul_i32 s30, s24, {16*272}")
    a(f"s_add_u32 s30, s30, {RED}")
    a("v_add_u32 v7, s30, v5")
    a("s_waitcnt lgkmcnt(0)")
    a("s_barrier")
    stamp(a, 8)
    for dt in range(4):
        for w in range(4):
            r = 32 + (dt * 4 + w) * 4
            a(f"ds_read_b128 v[{r}:{r+3}], v7 offset:{w*P_W + dt*64}")
    a.srd(40, 18, 2048 * 512 * 2)
    a("s_lshl_b32 s30, s25, 16")
    a("s_lshl_b32 s31, s24, 14")
    a("s_add_u32 s30, s30, s31")
    a("s_lshl_b32 s31, s26, 7")
    a("s_add_u32 s30, s30, s31")
    a("v_lshlrev_b32 v9, 10, v6")
    a("v_lshl_add_u32 v9, v3, 3, v9")
    a("v_add_u32 v9, s30, v9")
    for dt in range(4):
        a(f"s_waitcnt lgkmcnt({4*(3-dt)})")
        r = 32 + dt * 16
        for p in range(2):
            a(f"v_pk_add_f32 v[{r+2*p}:{r+2*p+1}], v[{r+2*p}:{r+2*p+1}], v[{r+4+2*p}:{r+5+2*p}]")
            a(f"v_pk_add_f32 v[{r+8+2*p}:{r+9+2*p}], v[{r+8+2*p}:{r+9+2*p}], v[{r+12+2*p}:{r+13+2*p}]")
        for p in range(2):
            a(f"v_pk_add_f32 v[{r+2*p}:{r+2*p+1}], v[{r+2*p}:{r+2*p+1}], v[{r+8+2*p}:{r+9+2*p}]")
        for q in range(2):
            a(f"v_lshlrev_b32 v{120+2*q}, 16, v{224+2*dt+q}")
            a(f"v_and_b32 v{121+2*q}, 0xffff0000, v{224+2*dt+q}")
            a(f"v_lshlrev_b32 v{124+2*q}, 16, v{16+2*dt+q}")
            a(f"v_and_b32 v{125+2*q}, 0xffff0000, v{16+2*dt+q}")
        for p in range(2):
            a(f"v_pk_add_f32 v[{r+2*p}:{r+2*p+1}], v[{r+2*p}:{r+2*p+1}], v[{120+2*p}:{121+2*p}]")
        for p in range(2):
            a(f"v_pk_fma_f32 v[{r+2*p}:{r+2*p+1}], v[{r+2*p}:{r+2*p+1}], v[{208+4*dt+2*p}:{209+4*dt+2*p}], v[{124+2*p}:{125+2*p}]")
        a(f"v_cvt_pk_bf16_f32 v{24+2*dt}, v{r}, v{r+1}")
        a(f"v_cvt_pk_bf16_f32 v{25+2*dt}, v{r+2}, v{r+3}")
        a(f"buffer_store_dwordx2 v[{24+2*dt}:{25+2*dt}], v9, s[40:43], 0 offen offset:{32*dt}")
    a("K3_END:   ; LINT-RESET")
    stamp_store(a, 2, 14, 24)
    a("K3_EXIT:")
    a.end_kernel(name, 256 + 240, 100, accum=256)

def triv(a, i):
    name = f"t{i}_kernel"
    a.begin_kernel(name, 256, 256, 0)
    a.end_kernel(name, 8, 16)
def build(kernels):
    a = Asm()
    for k in kernels: k(a)
    for i in range(int(OPT.get("extra", "0"))): triv(a, i)
    return a.text().replace("None\n", "")

ALL = {}
if __name__ == "__main__":
    out = sys.argv[1] if len(sys.argv) > 1 else "cur.s"
    names = sys.argv[2].split(",") if len(sys.argv) > 2 else ["k1"]
    if len(sys.argv) > 3 and sys.argv[3] == "prof": PROF = True
    open(out, "w").write(build([globals()[n] for n in names]))
```

```python
import sys
sys.path.insert(0, "dev")
from asmgen import *

import os
OPT = dict(kv.split("=") for kv in os.environ.get("GENOPT", "").split(",") if kv)
WSOFF = int(OPT.get("wsoff", "0"), 0)
SC1 = " sc1" if OPT.get("sc1", "1") == "1" else ""
HLD = " sc1" if OPT.get("hsc1", "0") == "1" else ""
NT1 = " nt" if OPT.get("nt1", "1") == "1" else ""
def wsfix(a, r):
    if WSOFF:
        a(f"s_add_u32 s{r}, s{r}, {WSOFF}")
        a(f"s_addc_u32 s{r+1}, s{r+1}, 0")
XT    = 0x0000000
X2T   = 0x0200000
KREV  = 0x0400000
KW    = 4160
STAT1 = 0x0620000
MODF  = 0x0630000
SCAL  = 0x0634000
SVP   = 0x0640000
W1F   = 0x0700000
W2F   = 0x0900000
HF    = 0x0B00000
WS_USED = 0x1100000

STAMP = 0x1100000
PROF = False
def stamp(a, i):
    if PROF:
        if OPT.get("cyc", "0") == "1": a(f"s_memtime s[{70+2*i}:{71+2*i}]")
        else: a(f"s_memrealtime s[{70+2*i}:{71+2*i}]")
        a("s_waitcnt lgkmcnt(0)")
def stamp_store(a, kid, wsreg, swave):
    if not PROF: return
    a("s_mov_b64 exec, -1")
    tm = "s_memtime" if OPT.get("cyc", "0") == "1" else "s_memrealtime"
    a(f"{tm} s[90:91]")
    a("s_waitcnt lgkmcnt(0) vmcnt(0)")
    a(f"{tm} s[92:93]")
    a("s_waitcnt lgkmcnt(0)")
    a(f"s_lshl_b32 s94, s2, 3")
    a(f"s_add_u32 s94, s94, s{swave}")
    a(f"s_lshl_b32 s94, s94, 6")
    a(f"s_add_u32 s94, s94, {STAMP + kid * 0x80000}")
    a("v_mov_b32 v0, s94")
    for i in range(12):
        a(f"v_mov_b32 v{2+i}, s{70+2*i}")
    a("s_mov_b64 exec, 1")
    a(f"global_store_dwordx4 v0, v[2:5], s[{wsreg}:{wsreg+1}]")
    a(f"global_store_dwordx4 v0, v[6:9], s[{wsreg}:{wsreg+1}] offset:16")
    a(f"global_store_dwordx4 v0, v[10:13], s[{wsreg}:{wsreg+1}] offset:32")

LOG2E = "0x3fb8aa3b"
INV2PI = "0.15915494"

def wave_id(a, s, vt):
    a(f"v_lshrrev_b32 v{vt}, 6, v0")
    a("s_nop 0")
    a(f"v_readfirstlane_b32 s{s}, v{vt}")

def rbf(a, vd, vs):
    a(f"v_cvt_pk_bf16_f32 v{vd}, v{vs}, v{vs}")
    a(f"v_and_b32 v{vd}, 0xffff0000, v{vd}")

def csq(a, dst, src, tmp):
    return [
        f"v_pk_mul_f32 v[{tmp}:{tmp+1}], v[{src}:{src+1}], v[{src}:{src+1}] op_sel:[0,0] op_sel_hi:[1,0]",
        f"v_pk_fma_f32 v[{dst}:{dst+1}], v[{src}:{src+1}], v[{src}:{src+1}], v[{tmp}:{tmp+1}] op_sel:[1,1,0] op_sel_hi:[0,1,1] neg_lo:[1,0,0]",
    ]

def cmulconj(a, dst, p, c, tmp):
    return [
        f"v_pk_mul_f32 v[{tmp}:{tmp+1}], v[{p}:{p+1}], v[{c}:{c+1}] op_sel:[0,0] op_sel_hi:[1,0] neg_hi:[0,1]",
        f"v_pk_fma_f32 v[{dst}:{dst+1}], v[{p}:{p+1}], v[{c}:{c+1}], v[{tmp}:{tmp+1}] op_sel:[1,1,0] op_sel_hi:[0,1,1] neg_lo:[1,0,0] neg_hi:[1,0,0]",
    ]

def code_prefetch(a, start, end, n, tag, vtmp, dst0):
    a(f"s_getpc_b64 s[66:67]")
    a(f"CPF_{tag}:")
    a(f"s_sub_u32 s66, s66, CPF_{tag}-{start}")
    a(f"s_subb_u32 s67, s67, 0")
    a(f"v_lshlrev_b32 v{vtmp}, 7, v1")
    a("s_mov_b64 s[68:69], exec")
    for i in range(n):
        a(f"v_cmp_gt_u32 vcc, {end}-{start}, v{vtmp}")
        a("s_and_b64 exec, s[68:69], vcc")
        a(f"s_cbranch_execz CPF_{tag}_done")
        a(f"global_load_dword v{dst0+i}, v{vtmp}, s[66:67]")
        a(f"v_add_u32 v{vtmp}, 8192, v{vtmp}")
    a(f"CPF_{tag}_done:")
    a("s_mov_b64 exec, s[68:69]")

def k1(a):
    name = "k1_kernel"
    a.begin_kernel(name, 512, 256, 23552)
    a("s_cmp_ge_u32 s2, 512")
    a("s_cbranch_scc1 K1_EXIT")
    stamp(a, 0)
    a("s_load_dwordx8 s[4:11], s[0:1], 8")
    a("s_load_dwordx2 s[12:13], s[0:1], 40")
    a("s_load_dwordx2 s[14:15], s[0:1], 128")
    a("s_load_dwordx2 s[16:17], s[0:1], 0")
    a("s_load_dwordx4 s[20:23], s[0:1], 96")
    wave_id(a, 24, 1)
    a("v_and_b32 v1, 63, v0")
    a("s_cmp_ge_u32 s2, 256")
    a("s_cbranch_scc1 K1_TSM")
    a("s_setprio 3")
    a("s_lshr_b32 s25, s24, 1")
    a("s_and_b32 s26, s24, 1")
    a("s_lshl_b32 s27, s2, 1")
    a("s_add_u32 s27, s27, s25")
    a("s_lshl_b32 s28, s27, 8")
    a("s_lshl_b32 s29, s26, 7")
    a("s_add_u32 s28, s28, s29")
    a("v_lshl_add_u32 v2, v1, 1, s28")
    a("s_lshl_b32 s30, s2, 2")
    a("s_waitcnt lgkmcnt(0)")
    wsfix(a, 14)
    a("global_load_ushort v4, v2, s[4:5] nt")
    a("global_load_ushort v5, v2, s[6:7] nt")
    a("global_load_ushort v6, v2, s[8:9] nt")
    a("global_load_ushort v7, v2, s[10:11] nt")
    a("s_load_dword s29, s[12:13], s30")
    a("v_and_b32 v16, 15, v1")
    a("v_cmp_eq_u32 s[32:33], 15, v16")
    a("v_lshrrev_b32 v18, 4, v1")
    a("v_add_u32 v19, 1, v16")
    a("v_cvt_f32_u32 v19, v19")
    a("s_lshl_b32 s31, s24, 10")
    a("v_lshl_add_u32 v17, v18, 6, s31")
    a("v_lshl_add_u32 v20, v1, 4, s31")
    for r in range(112, 128):
        a(f"v_mov_b32 v{r}, 0")
    T16 = 4096 + 16384
    a("s_mul_i32 s39, s25, 1344")
    a(f"s_add_u32 s39, s39, {T16 + 8}")
    a("v_subrev_u32 v21, 7, v16")
    a("v_cmp_gt_u32 s[34:35], 8, v21")
    a("v_add_u32 v21, 1, v16")
    a("v_and_b32 v21, 15, v21")
    a("v_lshlrev_b32 v24, 5, v21")
    a("v_lshl_add_u32 v24, v18, 3, v24")
    a("s_lshl_b32 s40, s26, 9")
    a("s_add_u32 s40, s40, s39")
    a("v_add_u32 v24, s40, v24")
    a("s_cmp_eq_u32 s26, 0")
    a("s_cselect_b64 s[36:37], -1, s[34:35]")
    a("s_lshl_b32 s40, s24, 12")
    a("s_add_u32 s40, s40, 4096")
    a("v_lshl_add_u32 v22, v1, 4, s40")
    a("s_lshl_b32 s40, s25, 13")
    a("s_lshl_b32 s41, s26, 11")
    a("s_add_u32 s40, s40, s41")
    a("s_add_u32 s40, s40, 4096")
    a("v_lshl_add_u32 v23, v1, 4, s40")
    a("s_lshl_b32 s40, s26, 6")
    a("v_add_u32 v26, s40, v1")
    a("v_lshlrev_b32 v27, 3, v26")
    a("v_sub_u32 v27, 2047, v27")
    a("v_cvt_f32_u32 v28, v27")
    a("s_sub_u32 s41, s39, 34050")
    a("s_sub_u32 s42, s39, 2")
    GA = 140
    for rnd in range(2):
        if rnd == 1:
            a("v_add_f32 v28, 0xc4800000, v28")
            a("v_subrev_u32 v27, 1024, v27")
        for t in range(8):
            if t == 0: a(f"v_mov_b32 v48, v28")
            else: a(f"v_add_f32 v{48+t}, {-float(t)}, v28")
        for p in range(4):
            a(f"v_cvt_pk_bf16_f32 v{56+p}, v{48+2*p}, v{49+2*p}")
        for p in range(4):
            a(f"v_and_b32 v{48+2*p}, 0xffff, v{56+p}")
            a(f"v_lshrrev_b32 v{49+2*p}, 16, v{56+p}")
        o = GA + 8 * rnd
        for t in range(8):
            a(f"v_lshl_add_u32 v{o+t}, v{48+t}, 1, s41")
        if rnd == 1:
            a("v_cmp_le_u32 vcc, 112, v26")
            for t in range(8):
                a(f"v_subrev_u32 v{56+(t&3)}, {t}, v27")
                a(f"v_lshl_add_u32 v{56+(t&3)}, v{56+(t&3)}, 1, s42")
                a(f"v_cndmask_b32 v{o+t}, v{o+t}, v{56+(t&3)}, vcc")
    a(f"s_mul_i32 s40, s27, {KW}")
    a(f"s_add_u32 s40, s40, {KREV}")
    a("v_lshl_add_u32 v29, v26, 4, s40")
    a("v_add_u32 v30, 2048, v29")
    a("v_add_u32 v31, 4096, v29")
    a("s_waitcnt lgkmcnt(0)")
    a("s_lshl_b32 s43, s25, 4")
    a("s_lshr_b32 s29, s29, s43")
    a("s_lshl_b32 s29, s29, 16")
    a(f"v_mov_b32 v8, {LOG2E}")
    a("v_mul_f32 v9, s29, v8")
    a("v_exp_f32 v9, v9")
    a("s_nop 0")
    rbf(a, 9, 9)
    a("s_waitcnt vmcnt(0)")
    a("v_lshlrev_b32 v4, 16, v4")
    a("v_lshlrev_b32 v5, 16, v5")
    a("v_lshlrev_b32 v6, 16, v6")
    a("v_lshlrev_b32 v7, 16, v7")
    a("v_mul_f32 v4, v4, v8")
    a("v_exp_f32 v4, v4")
    a("v_mul_f32 v13, v5, v9")
    a("v_mul_f32 v14, v6, v9")
    rbf(a, 4, 4)
    a("v_mul_f32 v15, v7, v9")
    a("v_mul_f32 v12, v4, v9")
    a(f"v_mul_f32 v13, {INV2PI}, v13")
    a("v_add_f32 v14, v14, v14")
    a("v_add_f32 v15, v15, v15")
    a("v_mul_f32 v12, v12, v8")
    a("v_mov_b32 v10, v14")
    a("v_sub_f32 v12, 0, v12")
    a("ds_write_b128 v20, v[12:15]")
    for ctl in ("row_shr:1", "row_shr:2", "row_shr:4", "row_shr:8", "row_bcast:15 row_mask:0xa", "row_bcast:31 row_mask:0xc"):
        a("s_nop 1")
        a(f"v_add_f32_dpp v10, v10, v10 {ctl}")
    a("s_waitcnt lgkmcnt(0)")
    stamp(a, 1)
    R = [[32 + 4 * u for u in range(4)], [48 + 4 * u for u in range(4)]]
    PA = [64 + 2 * u for u in range(4)]
    PB = [72 + 2 * u for u in range(4)]
    TT = [80 + 2 * u for u in range(4)]
    QF = [88 + 4 * e for e in range(4)]
    GF = [104, 108]
    DD = [112 + 4 * e for e in range(4)]
    CPK = [128 + u for u in range(4)]
    MAG = [132 + 2 * u for u in range(4)]
    for u in range(4):
        a(f"ds_read_b128 v[{R[0][u]}:{R[0][u]+3}], v17 offset:{u*16}")
    for ks in range(4):
        Rc = R[ks & 1]
        if ks + 1 < 4:
            for u in range(4):
                a(f"ds_read_b128 v[{R[(ks+1)&1][u]}:{R[(ks+1)&1][u]+3}], v17 offset:{(ks+1)*256+u*16}")
            a("s_waitcnt lgkmcnt(4)")
        else:
            a("s_waitcnt lgkmcnt(0)")
        for u in range(4): a(f"v_mul_f32 v{TT[u]}, v{Rc[u]}, v19")
        for u in range(4): a(f"v_mul_f32 v{TT[u]+1}, v{Rc[u]+1}, v19")
        for u in range(4): a(f"v_exp_f32 v{MAG[u]}, v{TT[u]}")
        for u in range(4): a(f"v_fract_f32 v{TT[u]+1}, v{TT[u]+1}")
        for u in range(4): a(f"v_cvt_pk_bf16_f32 v{CPK[u]}, v{Rc[u]+2}, -v{Rc[u]+3}")
        for u in range(4): a(f"v_cos_f32 v{PB[u]}, v{TT[u]+1}")
        for u in range(4): a(f"v_sin_f32 v{PB[u]+1}, v{TT[u]+1}")
        a("s_nop 0")
        for u in range(4):
            a(f"v_pk_mul_f32 v[{PA[u]}:{PA[u]+1}], v[{PB[u]}:{PB[u]+1}], v[{MAG[u]}:{MAG[u]+1}] op_sel:[0,0] op_sel_hi:[1,0]")
        cur, oth = PA, PB
        for e in range(4):
            for u in range(4): a(f"v_cvt_pk_bf16_f32 v{QF[e]+u}, v{cur[u]}, v{cur[u]+1}")
            sq = [csq(a, oth[u], cur[u], TT[u]) for u in range(4)]
            for u in range(4): a(sq[u][0])
            for u in range(4): a(sq[u][1])
            cur, oth = oth, cur
        for e in range(4):
            g = GF[e & 1]
            cm = [cmulconj(a, oth[u], cur[u], Rc[u] + 2, TT[u]) for u in range(4)]
            for u in range(4): a(cm[u][0])
            for u in range(4): a(cm[u][1])
            for u in range(4): a(f"v_cvt_pk_bf16_f32 v{g+u}, v{oth[u]}, v{oth[u]+1}")
            if e == 0:
                for u in range(4): a(f"v_cndmask_b32 v{g+u}, v{g+u}, v{CPK[u]}, s[32:33]")
            if e < 3:
                sq = [csq(a, oth[u], cur[u], TT[u]) for u in range(4)]
                for u in range(4): a(sq[u][0])
                a(f"v_mfma_f32_16x16x32_bf16 v[{DD[e]}:{DD[e]+3}], v[{QF[e]}:{QF[e]+3}], v[{g}:{g+3}], v[{DD[e]}:{DD[e]+3}]")
                for u in range(4): a(sq[u][1])
                cur, oth = oth, cur
            else:
                a("s_nop 1")
                a(f"v_mfma_f32_16x16x32_bf16 v[{DD[e]}:{DD[e]+3}], v[{QF[e]}:{QF[e]+3}], v[{g}:{g+3}], v[{DD[e]}:{DD[e]+3}]")
    stamp(a, 2)
    a("v_readlane_b32 s44, v10, 63")
    a(f"s_lshl_b32 s45, s24, 2")
    a(f"s_add_u32 s45, s45, {T16 + 2*1344 + 16}")
    a("v_mov_b32 v11, s45")
    a("v_mov_b32 v10, s44")
    a("s_nop 1")
    for e in range(4):
        a(f"ds_write_b128 v22, v[{DD[e]}:{DD[e]+3}] offset:{e*1024}")
    a("ds_write_b32 v11, v10")
    a("s_waitcnt lgkmcnt(0)")
    a("s_barrier")
    a("ds_read_b128 v[32:35], v23")
    a("ds_read_b128 v[36:39], v23 offset:4096")
    a("ds_read_b128 v[40:43], v23 offset:1024")
    a("ds_read_b128 v[44:47], v23 offset:5120")
    a(f"s_lshl_b32 s45, s25, 3")
    a(f"s_add_u32 s45, s45, {T16 + 2*1344 + 16}")
    a("v_mov_b32 v11, s45")
    a("ds_read_b64 v[8:9], v11")
    a("s_waitcnt lgkmcnt(0)")
    for r in range(4): a(f"v_add_f32 v{32+r}, v{32+r}, v{36+r}")
    for r in range(4): a(f"v_add_f32 v{40+r}, v{40+r}, v{44+r}")
    a("v_add_f32 v8, v8, v9")
    a("v_cvt_pk_bf16_f32 v32, v32, v33")
    a("v_cvt_pk_bf16_f32 v33, v34, v35")
    a("v_cvt_pk_bf16_f32 v40, v40, v41")
    a("v_cvt_pk_bf16_f32 v41, v42, v43")
    a("v_cvt_pk_bf16_f32 v8, v8, v8")
    a("s_sub_u32 s45, s39, 2")
    a("v_mov_b32 v11, s45")
    a("s_mov_b64 s[42:43], exec")
    a("s_mov_b64 exec, s[36:37]")
    a("ds_write_b64 v24, v[32:33]")
    a("s_mov_b64 exec, s[34:35]")
    a("ds_write_b64 v24, v[40:41] offset:256")
    a("s_mov_b64 exec, s[42:43]")
    a("ds_write_b16 v11, v8")
    a("s_waitcnt lgkmcnt(0)")
    a("s_barrier")
    stamp(a, 3)
    for t in range(16):
        a(f"ds_read_u16 v{76+t}, v{GA+t}")
        if t == 7: a("v_mov_b32 v72, 0\nv_mov_b32 v73, 0\nv_mov_b32 v74, 0\nv_mov_b32 v75, 0")
    a("s_waitcnt lgkmcnt(8)")
    for p in range(4):
        a(f"v_lshl_or_b32 v{64+p}, v{77+2*p}, 16, v{76+2*p}")
    a("global_store_dwordx4 v29, v[64:67], s[14:15] sc1")
    a("s_waitcnt lgkmcnt(0)")
    for p in range(4):
        a(f"v_lshl_or_b32 v{68+p}, v{85+2*p}, 16, v{84+2*p}")
    a("global_store_dwordx4 v30, v[68:71], s[14:15] sc1")
    a("v_cmp_gt_u32 vcc, 4, v26")
    a("s_and_saveexec_b64 s[42:43], vcc")
    a("s_cbranch_execz K1_END")
    a("global_store_dwordx4 v31, v[72:75], s[14:15] sc1")
    a("s_branch K1_END")
    a("K1_TSM:   ; LINT-RESET")
    a("s_sub_u32 s25, s2, 256")
    a("s_and_b32 s28, s25, 7")
    a("s_lshr_b32 s29, s25, 3")
    a("s_lshr_b32 s26, s29, 3")
    a("s_lshl_b32 s27, s28, 2")
    a("s_add_u32 s26, s26, s27")
    a("s_and_b32 s27, s29, 7")
    a("s_lshl_b32 s30, s28, 8")
    a("s_lshl_b32 s31, s29, 3")
    a("s_add_u32 s30, s30, s31")
    a("s_lshl_b32 s28, s26, 16")
    a("s_lshl_b32 s29, s27, 7")
    a("s_add_u32 s28, s28, s29")
    a("v_lshrrev_b32 v2, 3, v0")
    a("v_and_b32 v3, 7, v0")
    a("v_lshlrev_b32 v4, 10, v2")
    a("v_lshl_add_u32 v4, v3, 4, v4")
    a("v_add_u32 v4, s28, v4")
    a("v_add_u32 v5, 0x8000, v4")
    a("s_lshl_b32 s31, s24, 1")
    a("s_add_u32 s30, s30, s31")
    a("s_lshl_b32 s31, s30, 10")
    a("v_lshl_add_u32 v6, v1, 4, s31")
    a("s_and_b32 s33, s25, 7")
    a("s_mul_i32 s33, s33, 24")
    a("s_lshr_b32 s34, s25, 3")
    a("s_add_u32 s33, s33, s34")
    a("v_lshrrev_b32 v7, 1, v0")
    a("v_and_b32 v24, 1, v0")
    a("v_mul_u32_u24 v25, 6144, v7")
    a("v_lshl_add_u32 v25, v24, 4, v25")
    a("s_lshl_b32 s35, s33, 5")
    a("v_add_u32 v25, s35, v25")
    a("v_add_u32 v26, 786432, v25")
    a("v_add_u32 v27, 786432, v26")
    a("v_add_u32 v28, 786432, v27")
    a("v_lshlrev_b32 v29, 1, v7")
    a("s_waitcnt lgkmcnt(0)")
    wsfix(a, 14)
    a("global_load_dwordx4 v[8:11], v4, s[16:17]" + NT1)
    a("global_load_dwordx4 v[12:15], v5, s[16:17]" + NT1)
    a("global_load_dwordx4 v[16:19], v6, s[16:17]" + NT1)
    a("global_load_dwordx4 v[20:23], v6, s[16:17] offset:1024" + NT1)
    a("s_cmp_ge_u32 s25, 192")
    a("s_cbranch_scc1 K1_nomodld")
    for k in range(4):
        a(f"global_load_ushort v{48+k}, v29, s[20:21] offset:{256*k}")
    for k, vo in enumerate((25, 26, 27, 28)):
        a(f"global_load_dwordx4 v[{32+4*k}:{35+4*k}], v{vo}, s[22:23]" + NT1)
    a("K1_nomodld:")
    if OPT.get("cpf", "1") == "1":
        a("s_sub_u32 s65, s25, 192")
        a("s_cmp_ge_u32 s65, 16")
        a("s_cbranch_scc1 K1_nocpf")
        a("s_cmp_lg_u32 s24, 3")
        a("s_cbranch_scc1 K1_nocpf")
        code_prefetch(a, "k1_kernel", LASTLABEL, 6, "k1", 70, 72)
        a("s_waitcnt vmcnt(0)")
        a("K1_nocpf:   ; LINT-RESET")
    a("v_mul_u32_u24 v30, 160, v2")
    a("v_lshl_add_u32 v30, v3, 4, v30")
    a("s_cmp_ge_u32 s25, 192")
    a("s_cbranch_scc1 K1_w0")
    a("s_waitcnt vmcnt(10)")
    a("s_branch K1_w1")
    a("K1_w0:")
    a("s_waitcnt vmcnt(2)")
    a("K1_w1:   ; LINT-RESET (T loads have landed; S/mod loads may be outstanding)")
    stamp(a, 1)
    a("ds_write_b128 v30, v[8:11]")
    a("ds_write_b128 v30, v[12:15] offset:5120")
    a("s_cmp_ge_u32 s25, 192")
    a("s_cbranch_scc1 K1_w2")
    a("s_waitcnt vmcnt(8)")
    a("s_branch K1_w3")
    a("K1_w2:")
    a("s_waitcnt vmcnt(0)")
    a("K1_w3:   ; LINT-RESET")
    a("v_mov_b32 v31, 0x3f803f80")
    a("v_mov_b32 v52, 0\nv_mov_b32 v53, 0\nv_mov_b32 v54, 0\nv_mov_b32 v55, 0")
    for k in range(4):
        a(f"v_dot2_f32_bf16 v52, v{16+k}, v31, v52")
        a(f"v_dot2_f32_bf16 v53, v{16+k}, v{16+k}, v53")
        a(f"v_dot2_f32_bf16 v54, v{20+k}, v31, v54")
        a(f"v_dot2_f32_bf16 v55, v{20+k}, v{20+k}, v55")
    a("s_nop 1")
    for ctl in ("row_shr:1", "row_shr:2", "row_shr:4", "row_shr:8", "row_bcast:15 row_mask:0xa", "row_bcast:31 row_mask:0xc"):
        for r in range(52, 56):
            a(f"v_add_f32_dpp v{r}, v{r}, v{r} {ctl}")
        a("s_nop 0") if False else None
    a("s_nop 1")
    for k, r in enumerate(range(52, 56)):
        a(f"v_readlane_b32 s{36+k}, v{r}, 63")
    a("s_nop 1")
    a("v_cmp_eq_u32 vcc, 0, v1")
    a("v_mov_b32 v56, s38")
    a("v_mov_b32 v57, s39")
    a("v_mov_b32 v58, s36")
    a("v_mov_b32 v59, s37")
    a("v_cndmask_b32 v56, v56, v58, vcc")
    a("v_cndmask_b32 v57, v57, v59, vcc")
    a("v_mul_f32 v56, 0x3b000000, v56")
    a("v_mul_f32 v57, 0x3b000000, v57")
    a("v_fma_f32 v57, -v56, v56, v57")
    a("v_max_f32 v57, 0, v57")
    rbf(a, 56, 56)
    rbf(a, 57, 57)
    a("v_add_f32 v57, 0x3727c5ac, v57")
    rbf(a, 57, 57)
    a("v_sqrt_f32 v57, v57")
    a("s_nop 0")
    rbf(a, 57, 57)
    a("v_rcp_f32 v58, v57")
    a("s_nop 0")
    a("v_mul_f32 v59, v56, v58")
    a("v_sub_f32 v59, 0, v59")
    a("s_lshl_b32 s31, s30, 2")
    a(f"s_add_u32 s31, s31, {STAT1}")
    a("v_lshl_add_u32 v60, v1, 2, s31")
    a("v_add_u32 v61, 8192, v60")
    a("v_cmp_gt_u32 vcc, 2, v1")
    a("s_and_saveexec_b64 s[42:43], vcc")
    a("global_store_dword v60, v58, s[14:15]" + SC1)
    a("global_store_dword v61, v59, s[14:15]" + SC1)
    a("s_mov_b64 exec, s[42:43]")
    a("s_cmp_ge_u32 s25, 192")
    a("s_cbranch_scc1 K1_nomodc")
    a("s_waitcnt vmcnt(2)")
    for k in range(4):
        a(f"v_lshlrev_b32 v{48+k}, 16, v{48+k}")
    for k in range(4):
        a(f"v_mul_f32 v{52+k}, 0xbfb8aa3b, v{48+k}")
    for k in range(4):
        a(f"v_exp_f32 v{52+k}, v{52+k}")
    a("s_nop 0")
    for k in range(4):
        a(f"v_add_f32 v{52+k}, 1.0, v{52+k}")
    for k in range(4):
        a(f"v_rcp_f32 v{56+k}, v{52+k}")
    a("s_nop 0")
    for k in range(4):
        a(f"v_mul_f32 v{60+k}, v{48+k}, v{56+k}")
    for k in range(4):
        a(f"v_fma_f32 v{48+k}, -v{60+k}, v{52+k}, v{48+k}")
    for k in range(4):
        a(f"v_fma_f32 v{48+k}, v{48+k}, v{56+k}, v{60+k}")
    for k in range(4):
        rbf(a, 48 + k, 48 + k)
    for k in range(4):
        for p in range(4):
            w = 32 + 4 * k + p
            a(f"v_lshlrev_b32 v62, 16, v{w}")
            a(f"v_and_b32 v63, 0xffff0000, v{w}")
            if k == 0:
                a(f"v_mul_f32 v{64+2*p}, v62, v48")
                a(f"v_mul_f32 v{65+2*p}, v63, v48")
            else:
                a(f"v_fmac_f32 v{64+2*p}, v62, v{48+k}")
                a(f"v_fmac_f32 v{65+2*p}, v63, v{48+k}")
    a("v_lshlrev_b32 v61, 5, v0")
    a("ds_write_b128 v61, v[64:67] offset:10240")
    a("ds_write_b128 v61, v[68:71] offset:10256")
    a("K1_nomodc:")
    stamp(a, 2)
    a("s_waitcnt lgkmcnt(0)")
    a("s_barrier")
    stamp(a, 3)
    a("v_lshrrev_b32 v2, 4, v1")
    a("v_bfe_u32 v3, v1, 2, 2")
    a("v_and_b32 v4, 3, v1")
    a("v_lshl_add_u32 v5, v2, 3, v3")
    a("v_mul_u32_u24 v5, 160, v5")
    a("v_lshl_add_u32 v5, v4, 3, v5")
    a("s_lshl_b32 s31, s24, 5")
    a("v_add_u32 v5, s31, v5")
    a("ds_read_b64_tr_b16 v[8:9], v5")
    a("ds_read_b64_tr_b16 v[10:11], v5 offset:640")
    a(f"ds_read_b64_tr_b16 v[12:13], v5 offset:{32*160}")
    a(f"ds_read_b64_tr_b16 v[14:15], v5 offset:{36*160}")
    a("v_and_b32 v6, 15, v1")
    a("v_lshlrev_b32 v6, 12, v6")
    a("v_lshl_add_u32 v6, v2, 4, v6")
    a("s_lshl_b32 s31, s27, 18")
    a("s_lshl_b32 s32, s24, 16")
    a("s_add_u32 s31, s31, s32")
    a("s_lshl_b32 s32, s26, 7")
    a("s_add_u32 s31, s31, s32")
    a(f"s_add_u32 s31, s31, {XT}") if XT else None
    a("v_add_u32 v6, s31, v6")
    a("s_waitcnt lgkmcnt(2)")
    a("global_store_dwordx4 v6, v[8:11], s[14:15]" + SC1)
    a("s_waitcnt lgkmcnt(0)")
    a("global_store_dwordx4 v6, v[12:15], s[14:15] offset:64" + SC1)
    a("s_cmp_ge_u32 s25, 192")
    a("s_cbranch_scc1 K1_END")
    a("s_cmp_lg_u32 s24, 0")
    a("s_cbranch_scc1 K1_END")
    a("v_and_b32 v2, 15, v1")
    a("v_lshrrev_b32 v3, 4, v1")
    a("v_lshlrev_b32 v4, 11, v3")
    a("v_lshl_add_u32 v4, v2, 2, v4")
    for i in range(32):
        a(f"ds_read_b32 v{16+i}, v4 offset:{10240+64*i}")
        if i == 14: a("s_waitcnt lgkmcnt(7)")
    a("s_waitcnt lgkmcnt(0)")
    for st in (16, 8, 4, 2, 1):
        for i in range(st):
            a(f"v_add_f32 v{16+i}, v{16+i}, v{16+st+i}")
    a("s_nop 0")
    a("v_mov_b32 v17, v16")
    a("s_nop 1")
    a("v_permlane16_swap_b32 v16, v17")
    a("s_nop 0")
    a("v_add_f32 v16, v16, v17")
    a("s_nop 0")
    a("v_mov_b32 v17, v16")
    a("s_nop 1")
    a("v_permlane32_swap_b32 v16, v17")
    a("s_nop 0")
    a("v_add_f32 v16, v16, v17")
    rbf(a, 16, 16)
    a("s_lshl_b32 s31, s33, 6")
    a(f"s_add_u32 s31, s31, {MODF}")
    a("v_lshl_add_u32 v5, v2, 2, s31")
    a("v_cmp_gt_u32 vcc, 16, v1")
    a("s_and_saveexec_b64 s[42:43], vcc")
    a("global_store_dword v5, v16, s[14:15]" + SC1)
    a("K1_END:   ; LINT-RESET")
    stamp_store(a, 0, 14, 24)
    a("K1_EXIT:")
    a.end_kernel(name, 160, 100)


KC_CH = 33280
CS    = 4160
UB    = 66560
U_CH  = 7600
SCR   = 81792
FLG   = SCR + 16384
SIDE  = FLG + 64
SIDE_SZ = 11520
K2_LDS = SIDE + 4 * SIDE_SZ
FLAGS_OFF = 0x0638000

def conv_path(a, hb, tag):
    if hb == 0: steps = [(d, True) for d in range(24)]
    else: steps = [(d, True) for d in range(24, 32)] + [(d, False) for d in range(32, 64)]
    ACC = [32, 48]
    SET = [64, 88, 112]
    def reads(k):
        d, both = steps[k]; b = SET[k % 3]
        out = []
        for hf in (0, 1):
            out.append(f"ds_read_b128 v[{b+4*hf}:{b+4*hf+3}], v2 offset:{64*d + 32*(1-hf)}")
        tiles = (0, 1) if both else (1,)
        for t in tiles:
            for hf in (0, 1):
                r = b + 8 + 8 * t + 4 * hf
                out.append(f"ds_read_b128 v[{r}:{r+3}], v3 offset:{(31 + 32*t - d)*80 + 32*hf}")
        return out
    n = len(steps)
    for k in range(2):
        for x in reads(k): a(x)
    for k in range(n):
        d, both = steps[k]; b = SET[k % 3]
        nxt = reads(k + 2) if k + 2 < n else []
        after = len(nxt) + (len(reads(k + 1)) if k + 1 < n else 0)
        mf = []
        tiles = (0, 1) if both else (1,)
        for hf in (0, 1):
            for t in tiles:
                r = b + 8 + 8 * t + 4 * hf
                mf.append(f"v_mfma_f32_32x32x16_bf16 v[{ACC[t]}:{ACC[t]+15}], v[{b+4*hf}:{b+4*hf+3}], v[{r}:{r+3}], v[{ACC[t]}:{ACC[t]+15}]")
        after = len(reads(k + 1)) if k + 1 < n else 0
        a(f"s_waitcnt lgkmcnt({after})")
        per = -(-len(nxt) // len(mf)) if nxt else 0
        ri = 0
        for m in mf:
            a(m)
            for _ in range(per):
                if ri < len(nxt): a(nxt[ri]); ri += 1
    stamp(a, 3)
    give, keep = (ACC[1], ACC[0]) if hb == 0 else (ACC[0], ACC[1])
    a("s_nop 7")
    a("s_nop 3")
    for i in range(4):
        a(f"ds_write_b128 v4, v[{give+4*i}:{give+4*i+3}] offset:{1024*i}")
    for i in range(4):
        a(f"ds_read_b64 v[{64+2*i}:{65+2*i}], v6 offset:{16*i}")
    a("s_waitcnt lgkmcnt(0)")
    a("v_mov_b32 v72, 1")
    a("ds_write_b32 v7, v72")
    a(f"K2_poll{tag}:")
    a("ds_read_b32 v73, v8")
    a("s_waitcnt lgkmcnt(0)")
    a("v_readfirstlane_b32 s40, v73")
    a("s_cmp_eq_u32 s40, 1")
    a(f"s_cbranch_scc0 K2_poll{tag}")
    for i in range(4):
        a(f"ds_read_b128 v[{80+4*i}:{83+4*i}], v5 offset:{1024*i}")
    for i in range(4):
        for q in range(2):
            a(f"v_lshlrev_b32 v{96+4*i+2*q}, 16, v{64+2*i+q}")
            a(f"v_and_b32 v{97+4*i+2*q}, 0xffff0000, v{64+2*i+q}")
    a("s_waitcnt vmcnt(0)")
    for i in range(4):
        for q in range(2):
            a(f"v_lshlrev_b32 v{112+4*i+2*q}, 16, v{144+2*i+q}")
            a(f"v_and_b32 v{113+4*i+2*q}, 0xffff0000, v{144+2*i+q}")
    a("s_waitcnt lgkmcnt(0)")
    for j in range(8):
        a(f"v_pk_add_f32 v[{keep+2*j}:{keep+2*j+1}], v[{keep+2*j}:{keep+2*j+1}], v[{80+2*j}:{81+2*j}]")
    for j in range(8):
        a(f"v_pk_fma_f32 v[{keep+2*j}:{keep+2*j+1}], v[{96+2*j}:{97+2*j}], s[36:37], v[{keep+2*j}:{keep+2*j+1}] op_sel_hi:[1,0,1]")
    for j in range(8):
        a(f"v_pk_fma_f32 v[{keep+2*j}:{keep+2*j+1}], v[{keep+2*j}:{keep+2*j+1}], s[36:37], v[{112+2*j}:{113+2*j}] op_sel:[0,1,0] op_sel_hi:[1,1,1]")
    for j in range(8):
        a(f"v_cvt_pk_bf16_f32 v{64+j}, v{keep+2*j}, v{keep+2*j+1}")
    for i in range(4):
        a(f"ds_write_b64 v10, v[{64+2*i}:{65+2*i}] offset:{16*i}")
    a("s_waitcnt lgkmcnt(0)")
    a("ds_read_b128 v[72:75], v11")
    a("ds_read_b128 v[76:79], v11 offset:1280")
    a("s_waitcnt lgkmcnt(1)")
    a("global_store_dwordx4 v9, v[72:75], s[14:15]" + SC1)
    a("s_waitcnt lgkmcnt(0)")
    a("global_store_dwordx4 v12, v[76:79], s[14:15]" + SC1)
    a("s_branch K2_END")

def side_load_and_stage(a):
    for i in range(8):
        a(f"buffer_load_dwordx4 v[{32+4*i}:{35+4*i}], v10, s[44:47], s49 offen nt")
        if i < 7: a("s_add_u32 s49, s49, s48")

def k2(a):
    name = "k2_kernel"
    a.begin_kernel(name, 256, 512, K2_LDS)
    a("s_cmp_ge_u32 s2, 256")
    a("s_cbranch_scc1 K2_EXIT")
    stamp(a, 0)
    a("s_load_dwordx2 s[14:15], s[0:1], 128")
    a("s_load_dwordx2 s[12:13], s[0:1], 48")
    a("s_load_dwordx2 s[16:17], s[0:1], 64")
    a("s_load_dwordx2 s[18:19], s[0:1], 80")
    wave_id(a, 24, 1)
    a("v_and_b32 v1, 63, v0")
    a("s_cmp_ge_u32 s24, 4")
    a("s_cbranch_scc1 K2_SIDE")
    a("s_lshl_b32 s27, s2, 1")
    a("s_lshr_b32 s25, s24, 1")
    a("s_and_b32 s26, s24, 1")
    a("s_lshl_b32 s28, s27, 12")
    a(f"s_add_u32 s28, s28, {XT}") if XT else None
    a("v_lshl_add_u32 v44, v0, 4, s28")
    a("v_add_u32 v45, 4096, v44")
    a("v_lshlrev_b32 v46, 5, v0")
    a(f"v_add_u32 v46, {STAT1}, v46")
    a(f"v_add_u32 v47, 8192, v46")
    a(f"s_mul_i32 s29, s27, {KW}")
    a(f"s_add_u32 s29, s29, {KREV + 4080}")
    a("v_lshlrev_b32 v48, 4, v0")
    a("v_sub_u32 v48, s29, v48")
    a(f"v_add_u32 v49, {KW}, v48")
    a("v_and_b32 v50, 31, v1")
    a("v_lshrrev_b32 v51, 5, v1")
    a("s_lshl_b32 s30, s25, 12")
    a("s_add_u32 s30, s30, s28")
    a("s_lshl_b32 s31, s26, 11")
    a("s_add_u32 s30, s30, s31")
    a("v_lshlrev_b32 v52, 6, v50")
    a("v_lshl_add_u32 v52, v51, 3, v52")
    a("v_add_u32 v52, s30, v52")
    a("s_lshl_b32 s32, s27, 2")
    a(f"s_add_u32 s33, s32, {MODF}")
    a(f"s_add_u32 s34, s32, {MODF + 2048}")
    a(f"s_add_u32 s35, s32, {MODF + 4096}")
    a("s_lshl_b32 s31, s2, 2")
    a("s_waitcnt lgkmcnt(0)")
    wsfix(a, 14)
    a("global_load_dwordx4 v[28:31], v48, s[14:15]")
    a("global_load_dwordx4 v[32:35], v48, s[14:15] offset:16")
    a("global_load_dwordx4 v[36:39], v49, s[14:15]")
    a("global_load_dwordx4 v[40:43], v49, s[14:15] offset:16")
    a("global_load_dwordx4 v[4:7], v44, s[14:15]")
    a("global_load_dwordx4 v[8:11], v45, s[14:15]")
    a("global_load_dwordx4 v[12:15], v46, s[14:15]")
    a("global_load_dwordx4 v[16:19], v46, s[14:15] offset:16")
    a("global_load_dwordx4 v[20:23], v47, s[14:15]")
    a("global_load_dwordx4 v[24:27], v47, s[14:15] offset:16")
    for i in range(4):
        a(f"global_load_dwordx2 v[{144+2*i}:{145+2*i}], v52, s[14:15] offset:{16*i}")
    a("s_load_dwordx2 s[50:51], s[14:15], s33")
    a("s_load_dwordx2 s[52:53], s[14:15], s34")
    a("s_load_dwordx2 s[54:55], s[14:15], s35")
    a("s_load_dword s56, s[12:13], s31")
    a("v_mov_b32 v56, 0\nv_mov_b32 v57, 0\nv_mov_b32 v58, 0\nv_mov_b32 v59, 0")
    a("v_mul_u32_u24 v53, 171, v0")
    a("v_lshrrev_b32 v53, 9, v53")
    a("v_mul_u32_u24 v54, 3, v53")
    a("v_sub_u32 v54, v0, v54")
    a(f"v_mul_u32_u24 v53, {CS}, v53")
    a("v_lshl_add_u32 v53, v54, 4, v53")
    a("v_cmp_gt_u32 vcc, 48, v0")
    a("s_and_saveexec_b64 s[42:43], vcc")
    a("ds_write_b128 v53, v[56:59]")
    a("s_mov_b64 exec, s[42:43]")
    a("v_lshlrev_b32 v53, 4, v0")
    a(f"v_add_u32 v53, {UB}, v53")
    a("v_cmp_gt_u32 vcc, 155, v0")
    a("s_and_saveexec_b64 s[42:43], vcc")
    a(f"ds_write_b128 v53, v[56:59]")
    a(f"ds_write_b128 v53, v[56:59] offset:{U_CH}")
    a("s_mov_b64 exec, s[42:43]")
    a("v_lshlrev_b32 v53, 2, v0")
    a("v_cmp_gt_u32 vcc, 4, v0")
    a("s_and_saveexec_b64 s[42:43], vcc")
    a(f"v_add_u32 v53, {FLG}, v53")
    a("ds_write_b32 v53, v56")
    a("s_mov_b64 exec, s[42:43]")
    a("v_and_b32 v53, 7, v50")
    a("v_lshrrev_b32 v54, 3, v50")
    a(f"v_mul_u32_u24 v2, {CS}, v53")
    a("v_sub_u32 v54, v54, v51")
    a("v_add_u32 v54, 1, v54")
    a("v_lshl_add_u32 v2, v54, 4, v2")
    a(f"s_mul_i32 s38, s25, {KC_CH}")
    a("v_add_u32 v2, s38, v2")
    a("v_mul_u32_u24 v3, 80, v50")
    a("v_lshl_add_u32 v3, v51, 4, v3")
    a(f"s_mul_i32 s38, s25, {U_CH}")
    a(f"s_add_u32 s38, s38, {UB}")
    a("v_add_u32 v3, s38, v3")
    a("v_lshlrev_b32 v55, 4, v0")
    a("v_add_u32 v55, 48, v55")
    for c in range(2):
        W = 28 + 8 * c
        a(f"s_waitcnt vmcnt({12 - 2*c})")
        V = 60
        for j in range(7): a(f"v_alignbit_b32 v{V+j}, v{W+j+1}, v{W+j}, 16")
        for j in range(1, 7): a(f"v_alignbit_b32 v{68+j-1}, v{W+j+1}, v{W+j}, 16")
        for j in range(1, 7): a(f"v_mov_b32 v{76+j-1}, v{W+j}")
        off = c * KC_CH
        a(f"ds_write_b128 v55, v[{W}:{W+3}] offset:{off + 7*CS}")
        a(f"ds_write_b128 v55, v[{W+2}:{W+5}] offset:{off + 3*CS}")
        a(f"ds_write_b128 v55, v[{V}:{V+3}] offset:{off + 6*CS}")
        a(f"ds_write_b128 v55, v[{V+2}:{V+5}] offset:{off + 2*CS}")
        a(f"ds_write_b128 v55, v[68:71] offset:{off + 4*CS}")
        a(f"ds_write_b128 v55, v[70:73] offset:{off + 0*CS}")
        a(f"ds_write_b128 v55, v[76:79] offset:{off + 5*CS}")
        a(f"ds_write_b128 v55, v[78:81] offset:{off + 1*CS}")
    a("s_waitcnt vmcnt(4) lgkmcnt(0)")
    a("v_add_f32 v60, 1.0, s52")
    a("v_add_f32 v61, 1.0, s53")
    rbf(a, 60, 60); rbf(a, 61, 61)
    a("s_nop 0")
    a("v_readfirstlane_b32 s58, v60")
    a("v_readfirstlane_b32 s60, v61")
    a("s_mov_b32 s59, s50")
    a("s_mov_b32 s61, s51")
    a("s_lshl_b32 s38, s25, 4")
    a("s_lshr_b32 s36, s56, s38")
    a("s_lshl_b32 s36, s36, 16")
    a("s_cmp_eq_u32 s25, 0")
    a("s_cselect_b32 s37, s54, s55")
    a("v_lshrrev_b32 v62, 2, v0")
    a("v_mul_u32_u24 v62, 80, v62")
    a("v_and_b32 v63, 3, v0")
    a("v_lshl_add_u32 v62, v63, 4, v62")
    a(f"v_add_u32 v62, {UB + 31*80}, v62")
    for c in range(2):
        X = 4 + 4 * c
        for q in range(4):
            a(f"v_lshlrev_b32 v{64+2*q}, 16, v{X+q}")
            a(f"v_and_b32 v{65+2*q}, 0xffff0000, v{X+q}")
        for q in range(4):
            a(f"v_pk_fma_f32 v[{64+2*q}:{65+2*q}], v[{64+2*q}:{65+2*q}], v[{12+2*q}:{13+2*q}], v[{20+2*q}:{21+2*q}]")
        for q in range(4):
            a(f"v_pk_fma_f32 v[{64+2*q}:{65+2*q}], v[{64+2*q}:{65+2*q}], s[{58+2*c}:{59+2*c}], s[{58+2*c}:{59+2*c}] op_sel:[0,0,1] op_sel_hi:[1,0,1]")
        for q in range(4):
            a(f"v_cvt_pk_bf16_f32 v{72+4*c+q}, v{64+2*q}, v{65+2*q}")
        a(f"ds_write_b128 v62, v[{72+4*c}:{75+4*c}] offset:{c*U_CH}")
    a("s_lshl_b32 s38, s24, 12")
    a(f"s_add_u32 s38, s38, {SCR}")
    a("v_lshl_add_u32 v4, v1, 4, s38")
    a("s_xor_b32 s39, s24, 1")
    a("s_lshl_b32 s38, s39, 12")
    a(f"s_add_u32 s38, s38, {SCR}")
    a("v_lshl_add_u32 v5, v1, 4, s38")
    a("s_lshl_b32 s38, s24, 2")
    a(f"s_add_u32 s38, s38, {FLG}")
    a("v_mov_b32 v7, s38")
    a("s_lshl_b32 s38, s39, 2")
    a(f"s_add_u32 s38, s38, {FLG}")
    a("v_mov_b32 v8, s38")
    a("v_mul_u32_u24 v6, 80, v50")
    a("v_lshl_add_u32 v6, v51, 3, v6")
    a(f"s_mul_i32 s38, s25, {U_CH}")
    a(f"s_mul_i32 s39, s26, {32*80}")
    a("s_add_u32 s38, s38, s39")
    a(f"s_add_u32 s38, s38, {UB + 31*80}")
    a("v_add_u32 v6, s38, v6")
    a("s_add_u32 s38, s27, s25")
    a("s_lshl_b32 s38, s38, 7")
    a("s_lshl_b32 s39, s26, 20")
    a("s_add_u32 s38, s38, s39")
    a(f"s_add_u32 s38, s38, {X2T}")
    a("v_lshrrev_b32 v9, 3, v1")
    a("v_lshlrev_b32 v9, 16, v9")
    a("v_and_b32 v63, 7, v1")
    a("v_lshl_add_u32 v9, v63, 4, v9")
    a("v_add_u32 v9, s38, v9")
    a("v_add_u32 v12, 0x80000, v9")
    a(f"s_mul_i32 s38, s25, {KC_CH}")
    a("s_mul_i32 s39, s26, 2560")
    a("s_add_u32 s38, s38, s39")
    a("v_mul_u32_u24 v10, 80, v50")
    a("v_lshl_add_u32 v10, v51, 3, v10")
    a("v_add_u32 v10, s38, v10")
    a("v_lshrrev_b32 v11, 2, v1")
    a("v_mul_u32_u24 v11, 80, v11")
    a("v_and_b32 v63, 3, v1")
    a("v_lshl_add_u32 v11, v63, 4, v11")
    a("v_add_u32 v11, s38, v11")
    for r in range(32, 64): a(f"v_mov_b32 v{r}, 0")
    stamp(a, 1)
    a("s_waitcnt lgkmcnt(0)")
    a("s_barrier")
    stamp(a, 2)
    a("s_cmp_eq_u32 s26, 0")
    a("s_cbranch_scc0 K2_B")
    conv_path(a, 0, "A")
    a("K2_B:   ; LINT-RESET")
    conv_path(a, 1, "B")
    a("K2_SIDE:   ; LINT-RESET")
    a("s_sub_u32 s25, s24, 4")
    a("s_lshl_b32 s26, s25, 8")
    a("s_add_u32 s26, s26, s2")
    a(f"s_mul_i32 s27, s25, {SIDE_SZ}")
    a(f"s_add_u32 s27, s27, {SIDE}")
    a("s_cmp_gt_u32 s26, 348")
    a("s_cbranch_scc1 K2_SIDE_IDLE")
    a("s_cmp_eq_u32 s26, 348")
    a("s_cbranch_scc1 K2_TAB")
    a("v_lshrrev_b32 v2, 2, v1")
    a("v_and_b32 v3, 3, v1")
    a("v_lshrrev_b32 v4, 4, v1")
    a("v_bfe_u32 v5, v1, 2, 2")
    a("v_mul_u32_u24 v11, 80, v2")
    a("v_lshl_add_u32 v11, v3, 4, v11")
    a("v_add_u32 v11, s27, v11")
    a("v_lshl_add_u32 v12, v4, 2, v5")
    a("v_mul_u32_u24 v12, 80, v12")
    a("v_lshl_add_u32 v12, v3, 3, v12")
    a("v_add_u32 v12, s27, v12")
    a("s_cmp_ge_u32 s26, 172")
    a("s_cbranch_scc1 K2_W2")
    a("s_mul_i32 s28, s26, 1525")
    a("s_lshr_b32 s28, s28, 16")
    a("s_mul_i32 s29, s28, 43")
    a("s_sub_u32 s29, s26, s29")
    a("v_mul_u32_u24 v10, 2752, v2")
    a("v_lshl_add_u32 v10, v3, 4, v10")
    a(f"s_mul_i32 s49, s28, {128*2752}")
    a("s_lshl_b32 s30, s29, 6")
    a("s_add_u32 s49, s49, s30")
    a(f"s_mov_b32 s48, {16*2752}")
    a("s_lshl_b32 s31, s28, 9")
    a("v_lshl_add_u32 v13, v1, 2, s31")
    a(f"v_add_u32 v13, {MODF + 3*2048}, v13")
    a("v_add_u32 v14, 2048, v13")
    a("s_waitcnt lgkmcnt(0)")
    wsfix(a, 14)
    a.srd(44, 16, 512 * 1376 * 2)
    a("global_load_dword v20, v13, s[14:15]")
    a("global_load_dword v21, v13, s[14:15] offset:256")
    a("global_load_dword v22, v14, s[14:15]")
    a("global_load_dword v23, v14, s[14:15] offset:256")
    side_load_and_stage(a)
    a("s_barrier")
    a("s_waitcnt vmcnt(8)")
    a("v_add_f32 v22, 1.0, v22")
    a("v_add_f32 v23, 1.0, v23")
    rbf(a, 22, 22); rbf(a, 23, 23)
    a("v_lshl_add_u32 v15, v1, 2, s27")
    a("v_lshl_add_u32 v16, v1, 1, s27")
    a("ds_write_b32 v15, v22 offset:10240")
    a("ds_write_b32 v15, v23 offset:10496")
    a("ds_write_b16_d16_hi v16, v20 offset:10752")
    a("ds_write_b16_d16_hi v16, v21 offset:10880")
    for i in range(8):
        a(f"s_waitcnt vmcnt({7-i})")
        a(f"ds_write_b128 v11, v[{32+4*i}:{35+4*i}] offset:{16*80*i}")
    a("v_and_b32 v17, 15, v1")
    a("v_cmp_eq_u32 s[50:51], 0, v17")
    a("v_cmp_eq_u32 s[52:53], 1, v17")
    a("v_mov_b32 v18, 0")
    a("v_mov_b32 v19, 0x3f803f80")
    a("v_cndmask_b32 v18, v18, v19, s[50:51]")
    a("v_mov_b32 v19, 0")
    a("v_cndmask_b32 v19, v19, -1, s[52:53]")
    a("v_lshl_add_u32 v24, v4, 4, s27")
    a("v_lshl_add_u32 v25, v4, 3, s27")
    for r in range(96, 112): a(f"v_mov_b32 v{r}, 0")
    a("s_lshl_b32 s30, s29, 11")
    a(f"s_mul_i32 s31, s28, {4*87*1024}")
    a("s_add_u32 s30, s30, s31")
    a(f"s_add_u32 s30, s30, {W1F}")
    a("v_lshl_add_u32 v26, v1, 4, s30")
    a("s_waitcnt lgkmcnt(0)")
    for ks in range(4):
        a(f"ds_read_b128 v[32:35], v24 offset:{10240 + 128*ks}")
        a(f"ds_read_b128 v[36:39], v24 offset:{10240 + 128*ks + 64}")
        a(f"ds_read_b64 v[40:41], v25 offset:{10752 + 64*ks}")
        a(f"ds_read_b64 v[42:43], v25 offset:{10752 + 64*ks + 32}")
        for nt in range(2):
            for hf in range(2):
                a(f"ds_read_b64_tr_b16 v[{44+4*nt+2*hf}:{45+4*nt+2*hf}], v12 offset:{(32*ks+16*hf)*80 + 32*nt}")
        a("s_waitcnt lgkmcnt(4)")
        for q in range(4): a(f"v_and_or_b32 v{40+q}, v{40+q}, v19, v18")
        a("s_waitcnt lgkmcnt(0)")
        for nt in range(2):
            R = 44 + 4 * nt
            for q in range(4):
                a(f"v_lshlrev_b32 v{52+2*q}, 16, v{R+q}")
                a(f"v_and_b32 v{53+2*q}, 0xffff0000, v{R+q}")
            a(f"v_mfma_f32_16x16x32_bf16 v[{96+4*nt}:{99+4*nt}], v[{R}:{R+3}], v[40:43], v[{96+4*nt}:{99+4*nt}]")
            for q in range(4):
                a(f"v_pk_mul_f32 v[{52+2*q}:{53+2*q}], v[{52+2*q}:{53+2*q}], v[{32+2*q}:{33+2*q}]")
            S = 60 + 4 * nt
            for q in range(4):
                a(f"v_cvt_pk_bf16_f32 v{S+q}, v{52+2*q}, v{53+2*q}")
            a(f"global_store_dwordx4 v26, v[{S}:{S+3}], s[14:15] offset:{1024*nt}" + SC1)
            if nt == 1: a(f"v_add_u32 v26, {87*1024}, v26")
            a("s_nop 0")
            a(f"v_mfma_f32_16x16x32_bf16 v[{104+4*nt}:{107+4*nt}], v[{S}:{S+3}], v[40:43], v[{104+4*nt}:{107+4*nt}]")
    a(f"s_mul_i32 s30, s28, {3*5504}")
    a("s_lshl_b32 s31, s29, 7")
    a("s_add_u32 s30, s30, s31")
    a(f"s_add_u32 s30, s30, {SVP}")
    a("v_lshl_add_u32 v28, v4, 4, s30")
    a("v_add_u32 v29, 5504, v28")
    a("v_add_u32 v30, 5504, v29")
    a("s_nop 7")
    a("s_mov_b64 s[42:43], exec")
    a("s_mov_b64 exec, s[50:51]")
    for nt in range(2):
        a(f"global_store_dwordx4 v28, v[{104+4*nt}:{107+4*nt}], s[14:15] offset:{64*nt}" + SC1)
        a(f"global_store_dwordx4 v30, v[{96+4*nt}:{99+4*nt}], s[14:15] offset:{64*nt}" + SC1)
    a("s_mov_b64 exec, s[52:53]")
    for nt in range(2):
        a(f"global_store_dwordx4 v29, v[{96+4*nt}:{99+4*nt}], s[14:15] offset:{64*nt}" + SC1)
    a("s_mov_b64 exec, s[42:43]")
    a("s_branch K2_END")
    a("K2_W2:   ; LINT-RESET")
    a("s_sub_u32 s26, s26, 172")
    a("s_and_b32 s29, s26, 15")
    a("s_lshr_b32 s28, s26, 4")
    a("v_lshlrev_b32 v10, 10, v2")
    a("v_lshl_add_u32 v10, v3, 4, v10")
    a("s_lshl_b32 s30, s29, 6")
    a("s_waitcnt lgkmcnt(0)")
    wsfix(a, 14)
    a.srd(44, 18, 1376 * 512 * 2)
    for ks in range(4):
        a("s_lshl_b32 s31, s28, 2")
        a(f"s_add_u32 s31, s31, {ks}")
        a("s_mul_i32 s32, s31, 13")
        a("s_lshr_b32 s32, s32, 6")
        a("s_mul_i32 s33, s32, 5")
        a("s_sub_u32 s33, s31, s33")
        a("s_mul_i32 s32, s32, 11")
        a("s_min_u32 s32, s32, 76")
        a("s_lshl_b32 s33, s33, 1")
        a("s_add_u32 s32, s32, s33")
        a("s_add_u32 s33, s32, 1")
        a("s_sub_u32 s34, s31, 40")
        a("s_mul_i32 s34, s34, 22")
        a("s_add_u32 s35, s34, 21")
        a("s_add_u32 s34, s34, 10")
        a("s_cmp_lt_u32 s31, 40")
        a("s_cselect_b32 s32, s32, s34")
        a("s_cselect_b32 s33, s33, s35")
        for hf, sr in ((0, 32), (1, 33)):
            a(f"s_lshl_b32 s49, s{sr}, 14")
            a("s_add_u32 s49, s49, s30")
            i = 2 * ks + hf
            a(f"buffer_load_dwordx4 v[{32+4*i}:{35+4*i}], v10, s[44:47], s49 offen nt")
    a("s_barrier")
    for i in range(8):
        a(f"s_waitcnt vmcnt({7-i})")
        a(f"ds_write_b128 v11, v[{32+4*i}:{35+4*i}] offset:{16*80*i}")
    a("s_lshr_b32 s30, s29, 1")
    a("s_mul_i32 s30, s30, 43")
    a("s_lshl_b32 s31, s28, 2")
    a("s_add_u32 s30, s30, s31")
    a("s_lshl_b32 s30, s30, 12")
    a("s_and_b32 s31, s29, 1")
    a("s_lshl_b32 s31, s31, 11")
    a("s_add_u32 s30, s30, s31")
    a(f"s_add_u32 s30, s30, {W2F}")
    a("v_lshl_add_u32 v26, v1, 4, s30")
    a("s_waitcnt lgkmcnt(0)")
    for ks in range(4):
        if ks == 3:
            a("s_cmp_eq_u32 s28, 10")
            a("s_cbranch_scc1 K2_END")
        for nt in range(2):
            for hf in range(2):
                a(f"ds_read_b64_tr_b16 v[{44+4*nt+2*hf}:{45+4*nt+2*hf}], v12 offset:{(32*ks+16*hf)*80 + 32*nt}")
        a("s_waitcnt lgkmcnt(2)")
        a(f"global_store_dwordx4 v26, v[44:47], s[14:15]" + SC1)
        a("s_waitcnt lgkmcnt(0)")
        a(f"global_store_dwordx4 v26, v[48:51], s[14:15] offset:1024" + SC1)
        a("v_add_u32 v26, 4096, v26")
    a("s_branch K2_END")
    a("K2_TAB:   ; LINT-RESET")
    a("v_lshlrev_b32 v2, 5, v1")
    a(f"v_add_u32 v2, {MODF + 3*2048}, v2")
    a("v_add_u32 v3, 2048, v2")
    a("s_waitcnt lgkmcnt(0)")
    wsfix(a, 14)
    a("global_load_dwordx4 v[32:35], v2, s[14:15]")
    a("global_load_dwordx4 v[36:39], v2, s[14:15] offset:16")
    a("global_load_dwordx4 v[40:43], v3, s[14:15]")
    a("global_load_dwordx4 v[44:47], v3, s[14:15] offset:16")
    a("s_barrier")
    a("s_waitcnt vmcnt(0)")
    for j in range(8): a(f"v_add_f32 v{40+j}, 1.0, v{40+j}")
    for j in range(8): rbf(a, 40 + j, 40 + j)
    for j in range(8): a(f"v_mul_f32 v{48+j}, v{40+j}, v{40+j}")
    for j in range(8): a(f"v_mul_f32 v{56+j}, v{40+j}, v{32+j}")
    for k, base in enumerate((40, 48, 56, 32)):
        a(f"v_add_f32 v{100+k}, v{base}, v{base+1}")
        for j in range(2, 8): a(f"v_add_f32 v{100+k}, v{100+k}, v{base+j}")
    a("v_mul_f32 v104, v32, v32")
    for j in range(1, 8): a(f"v_fmac_f32 v104, v{32+j}, v{32+j}")
    a("v_lshl_add_u32 v4, v1, 4, s27")
    a("v_mov_b32 v64, 0x3f803f80\nv_mov_b32 v65, 0x3f803f80\nv_mov_b32 v66, 0x3f803f80\nv_mov_b32 v67, 0x3f803f80")
    a("ds_write_b128 v4, v[64:67]")
    for q in range(4): a(f"v_cvt_pk_bf16_f32 v{68+q}, v{40+2*q}, v{41+2*q}")
    a("ds_write_b128 v4, v[68:71] offset:1024")
    for (src, row) in ((48, 2), (56, 4)):
        for q in range(4): a(f"v_cvt_pk_bf16_f32 v{72+q}, v{src+2*q}, v{src+2*q+1}")
        a(f"ds_write_b128 v4, v[72:75] offset:{1024*row}")
        for q in range(4):
            a(f"v_lshlrev_b32 v{80+2*q}, 16, v{72+q}")
            a(f"v_and_b32 v{81+2*q}, 0xffff0000, v{72+q}")
        for j in range(8): a(f"v_sub_f32 v{80+j}, v{src+j}, v{80+j}")
        for q in range(4): a(f"v_cvt_pk_bf16_f32 v{76+q}, v{80+2*q}, v{81+2*q}")
        a(f"ds_write_b128 v4, v[76:79] offset:{1024*(row+1)}")
    a("s_nop 1")
    for ctl in ("row_shr:1", "row_shr:2", "row_shr:4", "row_shr:8", "row_bcast:15 row_mask:0xa", "row_bcast:31 row_mask:0xc"):
        for r in range(100, 105):
            a(f"v_add_f32_dpp v{r}, v{r}, v{r} {ctl}")
    a(f"v_mov_b32 v5, {SCAL}")
    a("s_mov_b64 s[42:43], exec")
    a("s_mov_b64 exec, 0x8000000000000000") if False else None
    a("v_cmp_eq_u32 vcc, 63, v1")
    a("s_and_saveexec_b64 s[42:43], vcc")
    a("global_store_dwordx4 v5, v[100:103], s[14:15]" + SC1)
    a("global_store_dword v5, v104, s[14:15] offset:16" + SC1)
    a("s_mov_b64 exec, s[42:43]")
    a("v_and_b32 v6, 15, v1")
    a("v_lshrrev_b32 v7, 4, v1")
    a("v_min_u32 v8, 5, v6")
    a("v_lshlrev_b32 v8, 10, v8")
    a("v_lshl_add_u32 v8, v7, 3, v8")
    a("v_add_u32 v8, s27, v8")
    a("v_cmp_gt_u32 vcc, 6, v6")
    a("v_mov_b32 v9, 0")
    a("s_nop 0")
    a("v_cndmask_b32 v9, v9, -1, vcc")
    a(f"s_mov_b32 s30, {W1F + 86*1024}")
    a("v_lshl_add_u32 v10, v1, 4, s30")
    a("s_waitcnt lgkmcnt(0)")
    for ks in range(16):
        R = 16 + 4 * (ks & 1)
        a(f"ds_read_b64 v[{R}:{R+1}], v8 offset:{64*ks}")
        a(f"ds_read_b64 v[{R+2}:{R+3}], v8 offset:{64*ks+32}")
        a("s_waitcnt lgkmcnt(0)")
        for q in range(4): a(f"v_and_b32 v{R+q}, v{R+q}, v9")
        a(f"global_store_dwordx4 v10, v[{R}:{R+3}], s[14:15]" + SC1)
        a(f"v_add_u32 v10, {87*1024}, v10")
    a("s_branch K2_END")
    a("K2_SIDE_IDLE:   ; LINT-RESET")
    a("s_cmp_eq_u32 s26, 349")
    a("s_cbranch_scc0 K2_idle2")
    a("s_waitcnt lgkmcnt(0)")
    wsfix(a, 14)
    a("v_mov_b32 v4, 0\nv_mov_b32 v5, 0\nv_mov_b32 v6, 0\nv_mov_b32 v7, 0")
    a("v_lshlrev_b32 v2, 4, v1")
    a(f"v_add_u32 v2, {FLAGS_OFF}, v2")
    for q in range(4):
        a(f"global_store_dwordx4 v2, v[4:7], s[14:15] offset:{1024*q} sc1")
    a("K2_idle2:")
    a("s_barrier")
    a("K2_END:   ; LINT-RESET")
    stamp_store(a, 1, 14, 24)
    a("K2_EXIT:")
    a.end_kernel(name, 160, 100)


G2T = 65536
SVT = G2T + 2048
STT = SVT + 3072
COF = STT + 2048
RED = COF + 4096
P_W = 64 * 272
K3_LDS = RED + 4 * P_W
FLAGS = 0x0638000

def k3(a):
    name = "k3_kernel"
    a.begin_kernel(name, 256, 256, K3_LDS)
    a("s_cmp_ge_u32 s2, 256")
    a("s_cbranch_scc1 K3_EXIT")
    stamp(a, 0)
    a("s_load_dwordx2 s[14:15], s[0:1], 128")
    a("s_load_dwordx2 s[12:13], s[0:1], 72")
    a("s_load_dwordx2 s[16:17], s[0:1], 88")
    a("s_load_dwordx2 s[18:19], s[0:1], 112")
    wave_id(a, 24, 1)
    a("v_and_b32 v1, 63, v0")
    a("s_and_b32 s25, s2, 7")
    a("s_lshr_b32 s26, s2, 3")
    a("s_lshr_b32 s27, s26, 3")
    a("s_lshl_b32 s25, s25, 2")
    a("s_add_u32 s25, s25, s27")
    a("s_and_b32 s26, s26, 7")
    a("s_mul_i32 s27, s26, 11")
    a("s_min_u32 s27, s27, 76")
    a("s_cmp_lt_u32 s26, 6")
    a("s_cselect_b32 s28, 11, 10")
    a("s_mul_i32 s29, s24, 3")
    for i in range(3):
        a(f"s_add_u32 s30, s29, {i}")
        a("s_add_u32 s31, s30, s27")
        a("s_cmp_lt_u32 s30, s28")
        a(f"s_cselect_b32 s{32+i}, s31, 86")
    a("v_lshrrev_b32 v10, 3, v1")
    a("v_and_b32 v11, 6, v10")
    a("v_and_b32 v12, 7, v1")
    a("v_xor_b32 v11, v11, v12")
    a("v_lshlrev_b32 v11, 4, v11")
    a("v_lshl_add_u32 v11, v10, 7, v11")
    a("s_lshl_b32 s41, s24, 10")
    a("s_lshl_b32 s42, s25, 16")
    a("s_add_u32 s41, s41, s42")
    a(f"s_add_u32 s41, s41, {X2T}")
    a("s_lshl_b32 s42, s24, 10")
    a("v_lshlrev_b32 v2, 3, v0")
    a(f"v_add_u32 v2, {MODF + 4*2048}, v2")
    a("v_lshlrev_b32 v13, 4, v1")
    for i in range(3):
        a(f"s_lshl_b32 s30, s{32+i}, 10")
        a(f"v_add_u32 v{126+i}, s30, v13")
    a(f"s_mov_b32 s44, {W1F}")
    a("v_lshrrev_b32 v3, 4, v1")
    a("v_and_b32 v6, 15, v1")
    a("v_mov_b32 v7, s32")
    a("v_mov_b32 v8, s33")
    a("v_mov_b32 v9, s34")
    a("v_cmp_eq_u32 vcc, 1, v3")
    a("v_cmp_le_u32 s[52:53], 2, v3")
    a("s_nop 0")
    a("v_cndmask_b32 v7, v7, v8, vcc")
    a("v_cndmask_b32 v7, v7, v9, s[52:53]")
    a("v_min_u32 v7, 85, v7")
    a("v_lshl_add_u32 v7, v7, 4, v6")
    a("v_lshlrev_b32 v8, 2, v7")
    a(f"v_add_u32 v8, {SVP}, v8")
    a("v_lshlrev_b32 v9, 1, v7")
    a("s_waitcnt lgkmcnt(0)")
    wsfix(a, 14)
    a.srd(8, 14, WS_USED)
    a("global_load_dwordx2 v[4:5], v2, s[14:15]")
    for j in range(16):
        a("s_mov_b32 m0, s42")
        a("s_add_u32 s42, s42, 4096")
        a(f"buffer_load_dwordx4 v11, s[8:11], s41 offen lds")
        a(f"s_add_u32 s41, s41, 4096")
    def wload(ks):
        out = []
        for i in range(3):
            r = (ks * 3 + i) * 4
            out.append(f"buffer_load_dwordx4 a[{r}:{r+3}], v{126+i}, s[8:11], s44 offen")
        out.append(f"s_add_u32 s44, s44, {87*1024}")
        return out
    PRE = min(int(OPT.get('pre', '4')), int(OPT.get('deep', '5')))
    for ks in range(PRE):
        for x in wload(ks): a(x)
    a(f"s_mov_b32 s30, {SCAL}")
    a("s_load_dwordx4 s[36:39], s[14:15], s30")
    a(f"s_mov_b32 s31, {SCAL+16}")
    a("s_load_dword s40, s[14:15], s31")
    a("v_bfe_u32 v14, v1, 2, 2")
    a("v_lshl_add_u32 v14, v3, 2, v14")
    a("v_and_b32 v15, 6, v14")
    a("v_lshrrev_b32 v15, 1, v15")
    a("v_and_b32 v29, 3, v1")
    a("v_lshlrev_b32 v30, 7, v14")
    a("v_lshl_add_u32 v30, v29, 3, v30")
    for k in range(4):
        a(f"s_add_u32 s30, s24, {k}")
        a(f"s_and_b32 s{48+k}, s30, 3")
        a(f"v_xor_b32 v31, s{48+k}, v15")
        a(f"v_lshl_add_u32 v{20+k}, v31, 5, v30")
    a("v_xor_b32 v31, s24, v15")
    a("v_lshl_add_u32 v26, v31, 5, v30")
    a("s_lshl_b32 s30, s26, 13")
    a("v_add_u32 v26, s30, v26")
    a(f"v_lshlrev_b32 v24, 4, v3")
    a(f"v_add_u32 v24, {G2T}, v24")
    ACC = 160
    for r in range(ACC, ACC + 48): a(f"v_mov_b32 v{r}, 0")
    for r in range(96, 108): a(f"v_mov_b32 v{r}, 0")
    a(f"s_waitcnt vmcnt({16 + 3*PRE})")
    a("v_add_f32 v4, 1.0, v4")
    a("v_add_f32 v5, 1.0, v5")
    rbf(a, 4, 4); rbf(a, 5, 5)
    a("v_mul_f32 v4, v4, v4")
    a("v_mul_f32 v5, v5, v5")
    a("v_lshlrev_b32 v2, 3, v0")
    a(f"v_add_u32 v2, {G2T}, v2")
    a("ds_write_b64 v2, v[4:5]")
    a(f"s_waitcnt vmcnt({3*PRE}) lgkmcnt(0)")
    stamp(a, 1)
    a("s_barrier")
    XF = [32, 48]
    def xreads(ks):
        b = XF[ks & 1]
        out = []
        for k in range(4):
            for hf in range(2):
                out.append(f"ds_read_b64_tr_b16 v[{b+4*k+2*hf}:{b+4*k+2*hf+1}], v{20+k} offset:{4096*ks + 2048*hf}")
        return out
    STATS = OPT.get('stats', 'in')
    GQ = [64, 72]
    if STATS == 'in':
        for ks in range(PRE, int(OPT.get('deep', '5'))):
            for x in wload(ks): a(x)
    def greads(ks):
        g = GQ[ks & 1]
        return [f"ds_read_b128 v[{g}:{g+3}], v24 offset:{128*ks}", f"ds_read_b128 v[{g+4}:{g+7}], v24 offset:{128*ks+64}"]
    for x in xreads(0) + greads(0): a(x)
    DEEP = int(OPT.get('deep', '5'))
    a("s_mul_i32 s58, s24, 11")
    a("s_cmp_eq_u32 s24, 3")
    a("s_cselect_b32 s58, 32, s58")
    a("s_mul_i32 s59, s26, 43")
    a("s_add_u32 s59, s59, s58")
    a("s_lshl_b32 s59, s59, 12")
    a(f"s_add_u32 s59, s59, {W2F}")
    a.srd(60, 14, WS_USED)
    a("s_cmp_eq_u32 s24, 3")
    a("s_cselect_b32 s62, 0, s10")
    drip = []
    for j in range(11):
        srd = "s[60:63]" if j == 0 else "s[8:11]"
        for t in range(4):
            r = (j * 4 + t) * 4
            drip.append(f"buffer_load_dwordx4 a[{r}:{r+3}], v13, {srd}, s59 offen offset:{1024*t}" + ("\ns_add_u32 s59, s59, 4096" if t == 3 else ""))
    a("s_lshl_b32 s30, s26, 8")
    a(f"s_add_u32 s30, s30, {MODF + 5*2048}")
    a("v_lshl_add_u32 v27, v3, 4, s30")
    a("s_lshl_b32 s30, s26, 7")
    a("v_lshl_add_u32 v28, v3, 3, s30")
    gbl = []
    for dt in range(4):
        gbl.append(f"global_load_dwordx4 v[{208+4*dt}:{211+4*dt}], v27, s[14:15] offset:{64*dt}")
    for dt in range(4):
        gbl.append(f"global_load_dwordx2 v[{224+2*dt}:{225+2*dt}], v28, s[16:17] offset:{32*dt}")
    issued = DEEP
    vm_after = []
    seq = [("W", ks) for ks in range(DEEP) for _ in range(3)]
    def vmwait(tag):
        last = max(i for i, t in enumerate(seq) if t == tag)
        return len(seq) - 1 - last
    sm_done = False
    smalls = []
    for kq in range(4):
        for v in range(3):
            smalls.append(f"global_load_dword v{112+kq*3+v}, v8, s[14:15]")
            if not (kq == 3 and v == 2): smalls.append("v_add_u32 v8, 5504, v8")
    smalls.append("global_load_ushort v124, v9, s[12:13]")
    for ks in range(16):
        b = XF[ks & 1]
        a(f"s_waitcnt vmcnt({vmwait(('W', ks))}) lgkmcnt(0)")
        mf = []
        for i in range(3):
            r = (ks * 3 + i) * 4
            for k in range(4):
                d = ACC + (i * 4 + k) * 4
                mf.append(f"v_mfma_f32_16x16x32_bf16 v[{d}:{d+3}], a[{r}:{r+3}], v[{b+4*k}:{b+4*k+3}], v[{d}:{d+3}]")
        va = []
        if ks + 1 < 16: va += xreads(ks + 1) + greads(ks + 1)
        if issued < 16:
            va += wload(issued); seq += [("W", issued)] * 3; issued += 1
        elif not sm_done:
            sm_done = True
            va += smalls + gbl; seq += [("S", 0)] * 13 + [("G", 0)] * 8
        else:
            for _ in range(3):
                va.append(drip.pop(0)); seq.append(("W2", 0))
        g = GQ[ks & 1]
        for q in range(4):
            va.append(f"v_lshlrev_b32 v{80+2*q}, 16, v{b+q}")
            va.append(f"v_and_b32 v{81+2*q}, 0xffff0000, v{b+q}")
        for q in range(8):
            va.append(f"v_mul_f32 v{80+q}, v{80+q}, v{80+q}")
        for q in range(8):
            va.append(f"v_add_f32 v{96+(q&3)}, v{96+(q&3)}, v{80+q}")
            va.append(f"v_fmac_f32 v{100+q}, v{80+q}, v{g+q}")
        per = -(-len(va) // 12)
        vi = 0
        for m in mf:
            a(m)
            for _ in range(per):
                if vi < len(va): a(va[vi]); vi += 1
    stamp(a, 2)
    KEEP = int(OPT.get('keep', '0'))
    def dr(n=1, final=False):
        for _ in range(n):
            if drip and (final or len(drip) > KEEP): a(drip.pop(0))
    a(f"s_waitcnt vmcnt({vmwait(('S', 0))})")
    dr(1)
    for v in range(3):
        a(f"v_add_f32 v{112+v}, v{112+v}, v{115+v}")
        a(f"v_add_f32 v{118+v}, v{118+v}, v{121+v}")
        a(f"v_add_f32 v{112+v}, v{112+v}, v{118+v}")
    a("v_lshlrev_b32 v124, 16, v124")
    dr(2)
    a("s_mul_i32 s30, s24, 768")
    a(f"s_add_u32 s30, s30, {SVT}")
    a("v_lshlrev_b32 v2, 8, v3")
    a("v_lshl_add_u32 v2, v6, 2, v2")
    a("v_add_u32 v2, s30, v2")
    a("v_cmp_gt_u32 vcc, 48, v1")
    a("s_and_saveexec_b64 s[42:43], vcc")
    a("ds_write_b32 v2, v112")
    a("ds_write_b32 v2, v114 offset:64")
    a("ds_write_b32 v2, v113 offset:128")
    a("ds_write_b32 v2, v124 offset:192")
    a("s_mov_b64 exec, s[42:43]")
    a("v_pk_add_f32 v[96:97], v[96:97], v[98:99]")
    a("v_add_f32 v96, v96, v97")
    a("v_pk_add_f32 v[100:101], v[100:101], v[102:103]")
    a("v_pk_add_f32 v[104:105], v[104:105], v[106:107]")
    a("v_pk_add_f32 v[100:101], v[100:101], v[104:105]")
    a("v_add_f32 v97, v100, v101")
    a("v_mov_b32 v98, v96")
    a("v_mov_b32 v99, v97")
    a("s_nop 0")
    a("v_permlane16_swap_b32 v96, v98")
    a("v_permlane16_swap_b32 v97, v99")
    dr(2)
    a("v_add_f32 v96, v96, v98")
    a("v_add_f32 v97, v97, v99")
    a("v_mov_b32 v98, v96")
    a("v_mov_b32 v99, v97")
    a("s_nop 0")
    a("v_permlane32_swap_b32 v96, v98")
    a("v_permlane32_swap_b32 v97, v99")
    a("s_lshl_b32 s30, s24, 9")
    a(f"s_add_u32 s30, s30, {STT}")
    a("v_add_f32 v96, v96, v98")
    a("v_add_f32 v97, v97, v99")
    a("v_lshl_add_u32 v2, v6, 5, s30")
    a("ds_write_b64 v2, v[96:97] offset:24")
    a("s_cmp_eq_u32 s24, 3")
    a("s_cbranch_scc0 K3_nolin")
    a("v_cmp_eq_u32 s[52:53], 0, v3")
    a("v_cmp_eq_u32 s[54:55], 1, v3")
    for k in range(4):
        a(f"s_lshl_b32 s30, s{48+k}, 9")
        a(f"s_add_u32 s30, s30, {STT}")
        a(f"v_lshl_add_u32 v{60+k}, v6, 5, s30")
    a("s_mov_b64 s[42:43], exec")
    a("s_mov_b64 exec, s[52:53]")
    for k in range(4):
        d = ACC + (8 + k) * 4
        a(f"ds_write_b128 v{60+k}, v[{d}:{d+3}]")
    a("s_mov_b64 exec, s[54:55]")
    for k in range(4):
        d = ACC + (8 + k) * 4
        a(f"ds_write_b64 v{60+k}, v[{d}:{d+1}] offset:16")
    a("s_mov_b64 exec, s[42:43]")
    a("K3_nolin:")
    dr(2)
    a("s_waitcnt lgkmcnt(0)")
    a("s_barrier")
    dr(2)
    a("v_lshlrev_b32 v2, 5, v1")
    a(f"v_add_u32 v2, {STT}, v2")
    a("ds_read_b128 v[32:35], v2")
    a("ds_read_b128 v[36:39], v2 offset:16")
    a("s_mul_i32 s30, s24, 768")
    a(f"s_add_u32 s30, s30, {SVT}")
    a("v_lshl_add_u32 v25, v3, 4, s30")
    a("s_mov_b32 s56, 0xbdd2d3e2")
    a("s_mov_b32 s57, 0xc0135761")
    a("s_waitcnt lgkmcnt(0)")
    a("v_add_f32 v34, v34, v35")
    a("v_add_f32 v36, v36, v37")
    a("v_mul_f32 v32, 0x3b000000, v32")
    a("v_mul_f32 v38, 0x3b000000, v38")
    a("v_fma_f32 v38, -v32, v32, v38")
    a("v_max_f32 v38, 0, v38")
    a("v_cvt_pk_bf16_f32 v40, v32, v38")
    a("v_lshlrev_b32 v32, 16, v40")
    a("v_and_b32 v38, 0xffff0000, v40")
    a("v_add_f32 v38, 0x3727c5ac, v38")
    rbf(a, 38, 38)
    a("v_sqrt_f32 v38, v38")
    a("v_fma_f32 v33, -v32, s36, v33")
    dr(2)
    rbf(a, 38, 38)
    a("v_rcp_f32 v38, v38")
    a("v_mul_f32 v40, v32, v32")
    a("v_add_f32 v41, v32, v32")
    a("v_fma_f32 v39, -v41, v34, v39")
    a("v_fma_f32 v39, v40, s37, v39")
    a("v_fma_f32 v36, -v32, s38, v36")
    a("v_fma_f32 v33, v33, v38, s39")
    a("v_add_f32 v36, v36, v36")
    a("v_fma_f32 v39, v39, v38, v36")
    a("v_mul_f32 v33, 0x3b000000, v33")
    dr(2)
    a("v_fma_f32 v39, v39, v38, s40")
    a("v_mul_f32 v39, 0x3b000000, v39")
    a("v_fma_f32 v39, -v33, v33, v39")
    a("v_max_f32 v39, 0, v39")
    a("v_cvt_pk_bf16_f32 v40, v33, v39")
    a("v_lshlrev_b32 v33, 16, v40")
    a("v_and_b32 v39, 0xffff0000, v40")
    a("v_add_f32 v39, 0x3727c5ac, v39")
    rbf(a, 39, 39)
    a("v_sqrt_f32 v39, v39")
    a("s_nop 0")
    rbf(a, 39, 39)
    a("v_rcp_f32 v47, v39")
    a("s_lshl_b32 s30, s24, 10")
    a(f"s_add_u32 s30, s30, {COF}")
    a("v_mul_f32 v44, v47, v38")
    a("v_mul_f32 v46, -v47, v33")
    a("v_mul_f32 v45, -v44, v32")
    a("v_lshl_add_u32 v2, v1, 4, s30")
    a("ds_write_b128 v2, v[44:47]")
    a("s_waitcnt lgkmcnt(0)")
    for k in range(4):
        a(f"s_lshl_b32 s31, s{48+k}, 8")
        a("s_add_u32 s31, s31, s30")
        a(f"v_lshl_add_u32 v2, v6, 4, s31")
        a(f"ds_read_b128 v[{48+4*k}:{51+4*k}], v2")
    dr(2)
    stamp(a, 3)
    for i in range(3):
        if i > 0: dr(4)
        a(f"s_cmp_eq_u32 s{32+i}, 86")
        a(f"s_cbranch_scc1 K3_skip{i}")
        for st in range(4):
            a(f"ds_read_b128 v[{64+4*st}:{67+4*st}], v25 offset:{256*i + 64*st}")
        a(f"s_add_u32 s30, s29, {i}")
        a("s_lshr_b32 s31, s30, 1")
        a("s_lshl_b32 s31, s31, 12")
        a("s_and_b32 s30, s30, 1")
        a("s_lshl_b32 s30, s30, 3")
        a("s_add_u32 s30, s30, s31")
        a(f"s_add_u32 s30, s30, {RED}")
        a("s_waitcnt lgkmcnt(0)")
        A_ = ACC + i * 16
        for k in range(4):
            c = 48 + 4 * k
            for p in range(2):
                t = 96 + 4 * k + 2 * p
                a(f"v_pk_fma_f32 v[{t}:{t+1}], v[{64+2*p}:{65+2*p}], v[{c}:{c+1}], v[{76+2*p}:{77+2*p}] op_sel:[0,1,0] op_sel_hi:[1,1,1]")
        if i == 0: dr(2)
        for k in range(4):
            c = 48 + 4 * k
            for p in range(2):
                t = 96 + 4 * k + 2 * p
                a(f"v_pk_fma_f32 v[{t}:{t+1}], v[{68+2*p}:{69+2*p}], v[{c+2}:{c+3}], v[{t}:{t+1}] op_sel_hi:[1,0,1]")
        if i == 0: dr(2)
        for k in range(4):
            c = 48 + 4 * k
            for p in range(2):
                t = 96 + 4 * k + 2 * p
                a(f"v_pk_fma_f32 v[{t}:{t+1}], v[{72+2*p}:{73+2*p}], v[{c+2}:{c+3}], v[{t}:{t+1}] op_sel:[0,1,0] op_sel_hi:[1,1,1]")
        if i == 0: dr(2)
        for k in range(4):
            c = 48 + 4 * k
            for p in range(2):
                x = A_ + 4 * k + 2 * p; t = 96 + 4 * k + 2 * p
                a(f"v_pk_fma_f32 v[{x}:{x+1}], v[{x}:{x+1}], v[{c}:{c+1}], v[{t}:{t+1}] op_sel_hi:[1,0,1]")
        if i == 0: dr(2)
        for j in range(8):
            x = A_ + 2 * j; t = 96 + 2 * j
            a(f"v_pk_mul_f32 v[{t}:{t+1}], v[{x}:{x+1}], v[{x}:{x+1}]")
        for j in range(8):
            t = 96 + 2 * j
            a(f"v_pk_fma_f32 v[{t}:{t+1}], v[{t}:{t+1}], s[56:57], s[56:57] op_sel:[0,0,1] op_sel_hi:[1,0,1]")
        if i == 0: dr(2)
        for j in range(8):
            x = A_ + 2 * j; t = 96 + 2 * j
            a(f"v_pk_mul_f32 v[{t}:{t+1}], v[{t}:{t+1}], v[{x}:{x+1}]")
        for j in range(16): a(f"v_exp_f32 v{96+j}, v{96+j}")
        if i == 0: dr(3)
        for j in range(8):
            t = 96 + 2 * j
            a(f"v_pk_add_f32 v[{t}:{t+1}], v[{t}:{t+1}], 1.0 op_sel_hi:[1,0]")
        for j in range(16): a(f"v_rcp_f32 v{96+j}, v{96+j}")
        if i == 0: dr(3)
        for j in range(8):
            x = A_ + 2 * j; t = 96 + 2 * j
            a(f"v_pk_mul_f32 v[{x}:{x+1}], v[{x}:{x+1}], v[{t}:{t+1}]")
        for k in range(4):
            a(f"v_cvt_pk_bf16_f32 v{112+2*k}, v{A_+4*k}, v{A_+4*k+1}")
            a(f"v_cvt_pk_bf16_f32 v{113+2*k}, v{A_+4*k+2}, v{A_+4*k+3}")
        if i == 1:
            a("s_cmp_eq_u32 s29, 9")
            a("s_cbranch_scc0 K3_paired1")
            a("s_lshr_b32 s31, s26, 1")
            a("s_add_u32 s31, s31, 40")
            a("s_mul_i32 s43, s25, 43")
            a("s_add_u32 s31, s31, s43")
            a("s_lshl_b32 s31, s31, 12")
            a("s_and_b32 s43, s26, 1")
            a("s_lshl_b32 s43, s43, 3")
            a("s_add_u32 s31, s31, s43")
            a(f"s_add_u32 s31, s31, {HF}")
            for k in range(4):
                a(f"s_lshl_b32 s43, s{48+k}, 10")
                a("s_add_u32 s43, s43, s31")
                a(f"buffer_store_dwordx2 v[{112+2*k}:{113+2*k}], v13, s[8:11], s43 offen sc1")
            a("s_branch K3_skip1")
            a("K3_paired1:")
        for k in range(4):
            a(f"s_lshl_b32 s31, s{48+k}, 10")
            a("s_add_u32 s31, s31, s30")
            a(f"v_add_u32 v2, s31, v13")
            a(f"ds_write_b64 v2, v[{112+2*k}:{113+2*k}]")
        a(f"K3_skip{i}:   ; LINT-RESET")
    dr(99)
    a("s_waitcnt lgkmcnt(0)")
    a("s_barrier")
    stamp(a, 4)
    a("s_mul_i32 s30, s24, 5120")
    a("v_add_u32 v2, s30, v13")
    a(f"v_add_u32 v2, {RED}, v2")
    for q in range(5): a(f"ds_read_b128 v[{32+4*q}:{35+4*q}], v2 offset:{1024*q}")
    a("s_mul_i32 s31, s25, 43")
    a("s_mul_i32 s43, s26, 5")
    a("s_add_u32 s31, s31, s43")
    a("s_lshl_b32 s31, s31, 12")
    a("s_add_u32 s31, s31, s30")
    a(f"s_add_u32 s31, s31, {HF}")
    for q in range(5):
        a(f"s_waitcnt lgkmcnt({4-q})")
        if q == 4: a("s_add_u32 s31, s31, 4096")
        a(f"buffer_store_dwordx4 v[{32+4*q}:{35+4*q}], v13, s[8:11], s31 offen offset:{1024*(q&3)} sc1")
    for r in range(176, 240): a(f"v_accvgpr_write_b32 a{r}, 0")
    a(f"s_waitcnt vmcnt(0)")
    stamp(a, 5)
    a("s_barrier")
    a("s_cmp_lg_u32 s24, 0")
    a("s_cbranch_scc1 K3_wait")
    a("s_lshl_b32 s30, s25, 7")
    a(f"s_add_u32 s30, s30, {FLAGS}")
    a("v_mov_b32 v2, s30")
    a("v_mov_b32 v4, 1")
    a("s_mov_b64 s[42:43], exec")
    a("s_mov_b64 exec, 1")
    a("buffer_atomic_add v4, v2, s[8:11], 0 offen sc1")
    a("s_mov_b32 s31, 0x100000")
    a("K3_poll:")
    a("buffer_load_dword v5, v2, s[8:11], 0 offen sc1")
    a("s_waitcnt vmcnt(0)")
    a("v_readfirstlane_b32 s30, v5")
    a("s_sub_u32 s31, s31, 1")
    a("s_cmp_eq_u32 s31, 0")
    a("s_cbranch_scc1 K3_pollx")
    a("s_cmp_ge_u32 s30, 8")
    a("s_cbranch_scc0 K3_poll")
    a("K3_pollx:")
    a("s_mov_b64 exec, s[42:43]")
    a("K3_wait:   ; LINT-RESET")
    a("s_barrier")
    stamp(a, 6)
    a("s_mul_i32 s57, s25, 43")
    a("s_add_u32 s57, s57, s58")
    a("s_lshl_b32 s57, s57, 12")
    a(f"s_add_u32 s57, s57, {HF}")
    late = list(drip); drip.clear()
    hl = []
    for j in range(11):
        for t in range(4):
            r = 32 + (j * 4 + t) * 4
            hl.append((("H", j), f"buffer_load_dwordx4 v[{r}:{r+3}], v13, s[8:11], s57 offen offset:{1024*t}" + HLD + ("\ns_add_u32 s57, s57, 4096" if t == 3 else "")))
    pos = 20
    lt_ = [(("L", 0), x) for x in late]
    hl = hl[:pos] + lt_ + hl[pos:]
    HD = int(OPT.get('hd', '16'))
    qseq = []
    def hissue():
        tag, x = hl.pop(0); a(x); qseq.append(tag)
    for _ in range(HD): hissue()
    for dt in range(4):
        a(f"ds_read_b64_tr_b16 v[{16+2*dt}:{17+2*dt}], v26 offset:{2048*dt}")
    for j in range(11):
        need = [i for i, t in enumerate(qseq) if t == ("H", j)]
        assert len(need) == 4
        last = max(need)
        if late and j >= 9: last = max(last, max(i for i, t in enumerate(qseq) if t == ("L", 0)))
        a(f"s_waitcnt vmcnt({len(qseq) - 1 - last})")
        q = 0
        for dt in range(4):
            for lt in range(4):
                d = 176 + (dt * 4 + lt) * 4
                ar = (j * 4 + dt) * 4
                br = 32 + (j * 4 + lt) * 4
                a(f"v_mfma_f32_16x16x32_bf16 a[{d}:{d+3}], a[{ar}:{ar+3}], v[{br}:{br+3}], a[{d}:{d+3}]")
                if q % 4 == 0 and hl: hissue()
                q += 1
    stamp(a, 7)
    a("v_mul_u32_u24 v5, 272, v6")
    a("v_lshl_add_u32 v5, v3, 4, v5")
    a(f"s_mul_i32 s30, s24, {P_W}")
    a(f"s_add_u32 s30, s30, {RED}")
    a("v_add_u32 v7, s30, v5")
    a("s_nop 4")
    for dt in range(4):
        for lt in range(4):
            d = 176 + (dt * 4 + lt) * 4
            a(f"ds_write_b128 v7, a[{d}:{d+3}] offset:{lt*16*272 + dt*64}")
    a(f"s_mul_i32 s30, s24, {16*272}")
    a(f"s_add_u32 s30, s30, {RED}")
    a("v_add_u32 v7, s30, v5")
    a("s_waitcnt lgkmcnt(0)")
    a("s_barrier")
    stamp(a, 8)
    for dt in range(4):
        for w in range(4):
            r = 32 + (dt * 4 + w) * 4
            a(f"ds_read_b128 v[{r}:{r+3}], v7 offset:{w*P_W + dt*64}")
    a.srd(40, 18, 2048 * 512 * 2)
    a("s_lshl_b32 s30, s25, 16")
    a("s_lshl_b32 s31, s24, 14")
    a("s_add_u32 s30, s30, s31")
    a("s_lshl_b32 s31, s26, 7")
    a("s_add_u32 s30, s30, s31")
    a("v_lshlrev_b32 v9, 10, v6")
    a("v_lshl_add_u32 v9, v3, 3, v9")
    a("v_add_u32 v9, s30, v9")
    for dt in range(4):
        a(f"s_waitcnt lgkmcnt({4*(3-dt)})")
        r = 32 + dt * 16
        for p in range(2):
            a(f"v_pk_add_f32 v[{r+2*p}:{r+2*p+1}], v[{r+2*p}:{r+2*p+1}], v[{r+4+2*p}:{r+5+2*p}]")
            a(f"v_pk_add_f32 v[{r+8+2*p}:{r+9+2*p}], v[{r+8+2*p}:{r+9+2*p}], v[{r+12+2*p}:{r+13+2*p}]")
        for p in range(2):
            a(f"v_pk_add_f32 v[{r+2*p}:{r+2*p+1}], v[{r+2*p}:{r+2*p+1}], v[{r+8+2*p}:{r+9+2*p}]")
        for q in range(2):
            a(f"v_lshlrev_b32 v{120+2*q}, 16, v{224+2*dt+q}")
            a(f"v_and_b32 v{121+2*q}, 0xffff0000, v{224+2*dt+q}")
            a(f"v_lshlrev_b32 v{124+2*q}, 16, v{16+2*dt+q}")
            a(f"v_and_b32 v{125+2*q}, 0xffff0000, v{16+2*dt+q}")
        for p in range(2):
            a(f"v_pk_add_f32 v[{r+2*p}:{r+2*p+1}], v[{r+2*p}:{r+2*p+1}], v[{120+2*p}:{121+2*p}]")
        for p in range(2):
            a(f"v_pk_fma_f32 v[{r+2*p}:{r+2*p+1}], v[{r+2*p}:{r+2*p+1}], v[{208+4*dt+2*p}:{209+4*dt+2*p}], v[{124+2*p}:{125+2*p}]")
        a(f"v_cvt_pk_bf16_f32 v{24+2*dt}, v{r}, v{r+1}")
        a(f"v_cvt_pk_bf16_f32 v{25+2*dt}, v{r+2}, v{r+3}")
        a(f"buffer_store_dwordx2 v[{24+2*dt}:{25+2*dt}], v9, s[40:43], 0 offen offset:{32*dt}")
    a("K3_END:   ; LINT-RESET")
    stamp_store(a, 2, 14, 24)
    a("K3_EXIT:")
    a.end_kernel(name, 256 + 240, 100, accum=256)

def triv(a, i):
    name = f"t{i}_kernel"
    a.begin_kernel(name, 256, 256, 0)
    a.end_kernel(name, 8, 16)
def build(kernels):
    global LASTLABEL
    LASTLABEL = {"k1": "K1_EXIT", "k2": "K2_EXIT", "k3": "K3_EXIT"}[kernels[-1].__name__]
    a = Asm()
    for k in kernels: k(a)
    for i in range(int(OPT.get("extra", "0"))): triv(a, i)
    return a.text().replace("None\n", "")

ALL = {}
if __name__ == "__main__":
    out = sys.argv[1] if len(sys.argv) > 1 else "cur.s"
    names = sys.argv[2].split(",") if len(sys.argv) > 2 else ["k1"]
    if len(sys.argv) > 3 and sys.argv[3] == "prof": PROF = True
    open(out, "w").write(build([globals()[n] for n in names]))
```

```python
import sys
sys.path.insert(0, "dev")
from asmgen import *

import os
OPT = dict(kv.split("=") for kv in os.environ.get("GENOPT", "").split(",") if kv)
WSOFF = int(OPT.get("wsoff", "0"), 0)
SC1 = " sc1" if OPT.get("sc1", "1") == "1" else ""
HLD = " sc1" if OPT.get("hsc1", "0") == "1" else ""
NT1 = " nt" if OPT.get("nt1", "1") == "1" else ""
def wsfix(a, r):
    if WSOFF:
        a(f"s_add_u32 s{r}, s{r}, {WSOFF}")
        a(f"s_addc_u32 s{r+1}, s{r+1}, 0")
XT    = 0x0000000
X2T   = 0x0200000
KREV  = 0x0400000
KW    = 4160
STAT1 = 0x0620000
MODF  = 0x0630000
SCAL  = 0x0634000
SVP   = 0x0640000
MODP  = 0x0660000
G2F   = 0x0634400
GBF   = 0x0634C00
W1F   = 0x0700000
W2F   = 0x0900000
HF    = 0x0B00000
WS_USED = 0x1100000

STAMP = 0x1100000
PROF = False
def stamp(a, i):
    if PROF:
        if OPT.get("cyc", "0") == "1": a(f"s_memtime s[{70+2*i}:{71+2*i}]")
        else: a(f"s_memrealtime s[{70+2*i}:{71+2*i}]")
        a("s_waitcnt lgkmcnt(0)")
def stamp_store(a, kid, wsreg, swave):
    if not PROF: return
    a("s_mov_b64 exec, -1")
    tm = "s_memtime" if OPT.get("cyc", "0") == "1" else "s_memrealtime"
    a(f"{tm} s[90:91]")
    a("s_waitcnt lgkmcnt(0) vmcnt(0)")
    a(f"{tm} s[92:93]")
    a("s_waitcnt lgkmcnt(0)")
    a(f"s_lshl_b32 s94, s2, 3")
    a(f"s_add_u32 s94, s94, s{swave}")
    a(f"s_lshl_b32 s94, s94, 6")
    a(f"s_add_u32 s94, s94, {STAMP + kid * 0x80000}")
    a("v_mov_b32 v0, s94")
    for i in range(12):
        a(f"v_mov_b32 v{2+i}, s{70+2*i}")
    a("s_mov_b64 exec, 1")
    a(f"global_store_dwordx4 v0, v[2:5], s[{wsreg}:{wsreg+1}]")
    a(f"global_store_dwordx4 v0, v[6:9], s[{wsreg}:{wsreg+1}] offset:16")
    a(f"global_store_dwordx4 v0, v[10:13], s[{wsreg}:{wsreg+1}] offset:32")

LOG2E = "0x3fb8aa3b"
INV2PI = "0.15915494"

def wave_id(a, s, vt):
    a(f"v_lshrrev_b32 v{vt}, 6, v0")
    a("s_nop 0")
    a(f"v_readfirstlane_b32 s{s}, v{vt}")

def rbf(a, vd, vs):
    a(f"v_cvt_pk_bf16_f32 v{vd}, v{vs}, v{vs}")
    a(f"v_and_b32 v{vd}, 0xffff0000, v{vd}")

def csq(a, dst, src, tmp):
    return [
        f"v_pk_mul_f32 v[{tmp}:{tmp+1}], v[{src}:{src+1}], v[{src}:{src+1}] op_sel:[0,0] op_sel_hi:[1,0]",
        f"v_pk_fma_f32 v[{dst}:{dst+1}], v[{src}:{src+1}], v[{src}:{src+1}], v[{tmp}:{tmp+1}] op_sel:[1,1,0] op_sel_hi:[0,1,1] neg_lo:[1,0,0]",
    ]

def cmulconj(a, dst, p, c, tmp):
    return [
        f"v_pk_mul_f32 v[{tmp}:{tmp+1}], v[{p}:{p+1}], v[{c}:{c+1}] op_sel:[0,0] op_sel_hi:[1,0] neg_hi:[0,1]",
        f"v_pk_fma_f32 v[{dst}:{dst+1}], v[{p}:{p+1}], v[{c}:{c+1}], v[{tmp}:{tmp+1}] op_sel:[1,1,0] op_sel_hi:[0,1,1] neg_lo:[1,0,0] neg_hi:[1,0,0]",
    ]

def code_prefetch(a, start, end, n, tag, vtmp, dst0):
    a(f"s_getpc_b64 s[66:67]")
    a(f"CPF_{tag}:")
    a(f"s_sub_u32 s66, s66, CPF_{tag}-{start}")
    a(f"s_subb_u32 s67, s67, 0")
    a(f"v_lshlrev_b32 v{vtmp}, 7, v1")
    a("s_mov_b64 s[68:69], exec")
    for i in range(n):
        a(f"v_cmp_gt_u32 vcc, {end}-{start}, v{vtmp}")
        a("s_and_b64 exec, s[68:69], vcc")
        a(f"s_cbranch_execz CPF_{tag}_done")
        a(f"global_load_dword v{dst0+i}, v{vtmp}, s[66:67]")
        a(f"v_add_u32 v{vtmp}, 8192, v{vtmp}")
    a(f"CPF_{tag}_done:")
    a("s_mov_b64 exec, s[68:69]")

def k1(a):
    name = "k1_kernel"
    a.begin_kernel(name, 512, 256, 23552)
    a("s_cmp_ge_u32 s2, 512")
    a("s_cbranch_scc1 K1_EXIT")
    stamp(a, 0)
    a("s_load_dwordx8 s[4:11], s[0:1], 8")
    a("s_load_dwordx2 s[12:13], s[0:1], 40")
    a("s_load_dwordx2 s[14:15], s[0:1], 128")
    a("s_load_dwordx2 s[16:17], s[0:1], 0")
    a("s_load_dwordx4 s[20:23], s[0:1], 96")
    wave_id(a, 24, 1)
    a("v_and_b32 v1, 63, v0")
    a("s_cmp_ge_u32 s2, 256")
    a("s_cbranch_scc1 K1_TSM")
    a("s_setprio 3")
    a("s_lshr_b32 s25, s24, 1")
    a("s_and_b32 s26, s24, 1")
    a("s_lshl_b32 s27, s2, 1")
    a("s_add_u32 s27, s27, s25")
    a("s_lshl_b32 s28, s27, 8")
    a("s_lshl_b32 s29, s26, 7")
    a("s_add_u32 s28, s28, s29")
    a("v_lshl_add_u32 v2, v1, 1, s28")
    a("s_lshl_b32 s30, s2, 2")
    a("s_waitcnt lgkmcnt(0)")
    wsfix(a, 14)
    a("global_load_ushort v4, v2, s[4:5] nt")
    a("global_load_ushort v5, v2, s[6:7] nt")
    a("global_load_ushort v6, v2, s[8:9] nt")
    a("global_load_ushort v7, v2, s[10:11] nt")
    a("s_load_dword s29, s[12:13], s30")
    a("v_and_b32 v16, 15, v1")
    a("v_cmp_eq_u32 s[32:33], 15, v16")
    a("v_lshrrev_b32 v18, 4, v1")
    a("v_add_u32 v19, 1, v16")
    a("v_cvt_f32_u32 v19, v19")
    a("s_lshl_b32 s31, s24, 10")
    a("v_lshl_add_u32 v17, v18, 6, s31")
    a("v_lshl_add_u32 v20, v1, 4, s31")
    for r in range(112, 128):
        a(f"v_mov_b32 v{r}, 0")
    T16 = 4096 + 16384
    a("s_mul_i32 s39, s25, 1344")
    a(f"s_add_u32 s39, s39, {T16 + 8}")
    a("v_subrev_u32 v21, 7, v16")
    a("v_cmp_gt_u32 s[34:35], 8, v21")
    a("v_add_u32 v21, 1, v16")
    a("v_and_b32 v21, 15, v21")
    a("v_lshlrev_b32 v24, 5, v21")
    a("v_lshl_add_u32 v24, v18, 3, v24")
    a("s_lshl_b32 s40, s26, 9")
    a("s_add_u32 s40, s40, s39")
    a("v_add_u32 v24, s40, v24")
    a("s_cmp_eq_u32 s26, 0")
    a("s_cselect_b64 s[36:37], -1, s[34:35]")
    a("s_lshl_b32 s40, s24, 12")
    a("s_add_u32 s40, s40, 4096")
    a("v_lshl_add_u32 v22, v1, 4, s40")
    a("s_lshl_b32 s40, s25, 13")
    a("s_lshl_b32 s41, s26, 11")
    a("s_add_u32 s40, s40, s41")
    a("s_add_u32 s40, s40, 4096")
    a("v_lshl_add_u32 v23, v1, 4, s40")
    a("s_lshl_b32 s40, s26, 6")
    a("v_add_u32 v26, s40, v1")
    a("v_lshlrev_b32 v27, 3, v26")
    a("v_sub_u32 v27, 2047, v27")
    a("v_cvt_f32_u32 v28, v27")
    a("s_sub_u32 s41, s39, 34050")
    a("s_sub_u32 s42, s39, 2")
    GA = 140
    for rnd in range(2):
        if rnd == 1:
            a("v_add_f32 v28, 0xc4800000, v28")
            a("v_subrev_u32 v27, 1024, v27")
        for t in range(8):
            if t == 0: a(f"v_mov_b32 v48, v28")
            else: a(f"v_add_f32 v{48+t}, {-float(t)}, v28")
        for p in range(4):
            a(f"v_cvt_pk_bf16_f32 v{56+p}, v{48+2*p}, v{49+2*p}")
        for p in range(4):
            a(f"v_and_b32 v{48+2*p}, 0xffff, v{56+p}")
            a(f"v_lshrrev_b32 v{49+2*p}, 16, v{56+p}")
        o = GA + 8 * rnd
        for t in range(8):
            a(f"v_lshl_add_u32 v{o+t}, v{48+t}, 1, s41")
        if rnd == 1:
            a("v_cmp_le_u32 vcc, 112, v26")
            for t in range(8):
                a(f"v_subrev_u32 v{56+(t&3)}, {t}, v27")
                a(f"v_lshl_add_u32 v{56+(t&3)}, v{56+(t&3)}, 1, s42")
                a(f"v_cndmask_b32 v{o+t}, v{o+t}, v{56+(t&3)}, vcc")
    a(f"s_mul_i32 s40, s27, {KW}")
    a(f"s_add_u32 s40, s40, {KREV}")
    a("v_lshl_add_u32 v29, v26, 4, s40")
    a("v_add_u32 v30, 2048, v29")
    a("v_add_u32 v31, 4096, v29")
    a("s_waitcnt lgkmcnt(0)")
    a("s_lshl_b32 s43, s25, 4")
    a("s_lshr_b32 s29, s29, s43")
    a("s_lshl_b32 s29, s29, 16")
    a(f"v_mov_b32 v8, {LOG2E}")
    a("v_mul_f32 v9, s29, v8")
    a("v_exp_f32 v9, v9")
    a("s_nop 0")
    rbf(a, 9, 9)
    a("s_waitcnt vmcnt(0)")
    a("v_lshlrev_b32 v4, 16, v4")
    a("v_lshlrev_b32 v5, 16, v5")
    a("v_lshlrev_b32 v6, 16, v6")
    a("v_lshlrev_b32 v7, 16, v7")
    a("v_mul_f32 v4, v4, v8")
    a("v_exp_f32 v4, v4")
    a("v_mul_f32 v13, v5, v9")
    a("v_mul_f32 v14, v6, v9")
    rbf(a, 4, 4)
    a("v_mul_f32 v15, v7, v9")
    a("v_mul_f32 v12, v4, v9")
    a(f"v_mul_f32 v13, {INV2PI}, v13")
    a("v_add_f32 v14, v14, v14")
    a("v_add_f32 v15, v15, v15")
    a("v_mul_f32 v12, v12, v8")
    a("v_mov_b32 v10, v14")
    a("v_sub_f32 v12, 0, v12")
    a("ds_write_b128 v20, v[12:15]")
    for ctl in ("row_shr:1", "row_shr:2", "row_shr:4", "row_shr:8", "row_bcast:15 row_mask:0xa", "row_bcast:31 row_mask:0xc"):
        a("s_nop 1")
        a(f"v_add_f32_dpp v10, v10, v10 {ctl}")
    a("s_waitcnt lgkmcnt(0)")
    stamp(a, 1)
    R = [[32 + 4 * u for u in range(4)], [48 + 4 * u for u in range(4)]]
    PA = [64 + 2 * u for u in range(4)]
    PB = [72 + 2 * u for u in range(4)]
    TT = [80 + 2 * u for u in range(4)]
    QF = [88 + 4 * e for e in range(4)]
    GF = [104, 108]
    DD = [112 + 4 * e for e in range(4)]
    CPK = [128 + u for u in range(4)]
    MAG = [132 + 2 * u for u in range(4)]
    for u in range(4):
        a(f"ds_read_b128 v[{R[0][u]}:{R[0][u]+3}], v17 offset:{u*16}")
    for ks in range(4):
        Rc = R[ks & 1]
        if ks + 1 < 4:
            for u in range(4):
                a(f"ds_read_b128 v[{R[(ks+1)&1][u]}:{R[(ks+1)&1][u]+3}], v17 offset:{(ks+1)*256+u*16}")
            a("s_waitcnt lgkmcnt(4)")
        else:
            a("s_waitcnt lgkmcnt(0)")
        for u in range(4): a(f"v_mul_f32 v{TT[u]}, v{Rc[u]}, v19")
        for u in range(4): a(f"v_mul_f32 v{TT[u]+1}, v{Rc[u]+1}, v19")
        for u in range(4): a(f"v_exp_f32 v{MAG[u]}, v{TT[u]}")
        for u in range(4): a(f"v_fract_f32 v{TT[u]+1}, v{TT[u]+1}")
        for u in range(4): a(f"v_cvt_pk_bf16_f32 v{CPK[u]}, v{Rc[u]+2}, -v{Rc[u]+3}")
        for u in range(4): a(f"v_cos_f32 v{PB[u]}, v{TT[u]+1}")
        for u in range(4): a(f"v_sin_f32 v{PB[u]+1}, v{TT[u]+1}")
        a("s_nop 0")
        for u in range(4):
            a(f"v_pk_mul_f32 v[{PA[u]}:{PA[u]+1}], v[{PB[u]}:{PB[u]+1}], v[{MAG[u]}:{MAG[u]+1}] op_sel:[0,0] op_sel_hi:[1,0]")
        cur, oth = PA, PB
        for e in range(4):
            for u in range(4): a(f"v_cvt_pk_bf16_f32 v{QF[e]+u}, v{cur[u]}, v{cur[u]+1}")
            sq = [csq(a, oth[u], cur[u], TT[u]) for u in range(4)]
            for u in range(4): a(sq[u][0])
            for u in range(4): a(sq[u][1])
            cur, oth = oth, cur
        for e in range(4):
            g = GF[e & 1]
            cm = [cmulconj(a, oth[u], cur[u], Rc[u] + 2, TT[u]) for u in range(4)]
            for u in range(4): a(cm[u][0])
            for u in range(4): a(cm[u][1])
            for u in range(4): a(f"v_cvt_pk_bf16_f32 v{g+u}, v{oth[u]}, v{oth[u]+1}")
            if e == 0:
                for u in range(4): a(f"v_cndmask_b32 v{g+u}, v{g+u}, v{CPK[u]}, s[32:33]")
            if e < 3:
                sq = [csq(a, oth[u], cur[u], TT[u]) for u in range(4)]
                for u in range(4): a(sq[u][0])
                a(f"v_mfma_f32_16x16x32_bf16 v[{DD[e]}:{DD[e]+3}], v[{QF[e]}:{QF[e]+3}], v[{g}:{g+3}], v[{DD[e]}:{DD[e]+3}]")
                for u in range(4): a(sq[u][1])
                cur, oth = oth, cur
            else:
                a("s_nop 1")
                a(f"v_mfma_f32_16x16x32_bf16 v[{DD[e]}:{DD[e]+3}], v[{QF[e]}:{QF[e]+3}], v[{g}:{g+3}], v[{DD[e]}:{DD[e]+3}]")
    stamp(a, 2)
    a("v_readlane_b32 s44, v10, 63")
    a(f"s_lshl_b32 s45, s24, 2")
    a(f"s_add_u32 s45, s45, {T16 + 2*1344 + 16}")
    a("v_mov_b32 v11, s45")
    a("v_mov_b32 v10, s44")
    a("s_nop 1")
    for e in range(4):
        a(f"ds_write_b128 v22, v[{DD[e]}:{DD[e]+3}] offset:{e*1024}")
    a("ds_write_b32 v11, v10")
    a("s_waitcnt lgkmcnt(0)")
    a("s_barrier")
    a("ds_read_b128 v[32:35], v23")
    a("ds_read_b128 v[36:39], v23 offset:4096")
    a("ds_read_b128 v[40:43], v23 offset:1024")
    a("ds_read_b128 v[44:47], v23 offset:5120")
    a(f"s_lshl_b32 s45, s25, 3")
    a(f"s_add_u32 s45, s45, {T16 + 2*1344 + 16}")
    a("v_mov_b32 v11, s45")
    a("ds_read_b64 v[8:9], v11")
    a("s_waitcnt lgkmcnt(0)")
    for r in range(4): a(f"v_add_f32 v{32+r}, v{32+r}, v{36+r}")
    for r in range(4): a(f"v_add_f32 v{40+r}, v{40+r}, v{44+r}")
    a("v_add_f32 v8, v8, v9")
    a("v_cvt_pk_bf16_f32 v32, v32, v33")
    a("v_cvt_pk_bf16_f32 v33, v34, v35")
    a("v_cvt_pk_bf16_f32 v40, v40, v41")
    a("v_cvt_pk_bf16_f32 v41, v42, v43")
    a("v_cvt_pk_bf16_f32 v8, v8, v8")
    a("s_sub_u32 s45, s39, 2")
    a("v_mov_b32 v11, s45")
    a("s_mov_b64 s[42:43], exec")
    a("s_mov_b64 exec, s[36:37]")
    a("ds_write_b64 v24, v[32:33]")
    a("s_mov_b64 exec, s[34:35]")
    a("ds_write_b64 v24, v[40:41] offset:256")
    a("s_mov_b64 exec, s[42:43]")
    a("ds_write_b16 v11, v8")
    a("s_waitcnt lgkmcnt(0)")
    a("s_barrier")
    stamp(a, 3)
    for t in range(16):
        a(f"ds_read_u16 v{76+t}, v{GA+t}")
        if t == 7: a("v_mov_b32 v72, 0\nv_mov_b32 v73, 0\nv_mov_b32 v74, 0\nv_mov_b32 v75, 0")
    a("s_waitcnt lgkmcnt(8)")
    for p in range(4):
        a(f"v_lshl_or_b32 v{64+p}, v{77+2*p}, 16, v{76+2*p}")
    a("global_store_dwordx4 v29, v[64:67], s[14:15] sc1")
    a("s_waitcnt lgkmcnt(0)")
    for p in range(4):
        a(f"v_lshl_or_b32 v{68+p}, v{85+2*p}, 16, v{84+2*p}")
    a("global_store_dwordx4 v30, v[68:71], s[14:15] sc1")
    a("v_cmp_gt_u32 vcc, 4, v26")
    a("s_and_saveexec_b64 s[42:43], vcc")
    a("s_cbranch_execz K1_END")
    a("global_store_dwordx4 v31, v[72:75], s[14:15] sc1")
    a("s_branch K1_END")
    a("K1_TSM:   ; LINT-RESET")
    a("s_sub_u32 s25, s2, 256")
    a("s_and_b32 s28, s25, 7")
    a("s_lshr_b32 s29, s25, 3")
    a("s_lshr_b32 s26, s29, 3")
    a("s_lshl_b32 s27, s28, 2")
    a("s_add_u32 s26, s26, s27")
    a("s_and_b32 s27, s29, 7")
    a("s_lshl_b32 s30, s28, 8")
    a("s_lshl_b32 s31, s29, 3")
    a("s_add_u32 s30, s30, s31")
    a("s_lshl_b32 s28, s26, 16")
    a("s_lshl_b32 s29, s27, 7")
    a("s_add_u32 s28, s28, s29")
    a("v_lshrrev_b32 v2, 3, v0")
    a("v_and_b32 v3, 7, v0")
    a("v_lshlrev_b32 v4, 10, v2")
    a("v_lshl_add_u32 v4, v3, 4, v4")
    a("v_add_u32 v4, s28, v4")
    a("v_add_u32 v5, 0x8000, v4")
    a("s_lshl_b32 s31, s24, 1")
    a("s_add_u32 s30, s30, s31")
    a("s_lshl_b32 s31, s30, 10")
    a("v_lshl_add_u32 v6, v1, 4, s31")
    a("s_and_b32 s33, s25, 7")
    a("s_mul_i32 s33, s33, 24")
    a("s_lshr_b32 s34, s25, 3")
    a("s_add_u32 s33, s33, s34")
    a("v_lshrrev_b32 v7, 1, v0")
    a("v_and_b32 v24, 1, v0")
    a("v_mul_u32_u24 v25, 6144, v7")
    a("v_lshl_add_u32 v25, v24, 4, v25")
    a("s_lshl_b32 s35, s33, 5")
    a("v_add_u32 v25, s35, v25")
    a("v_add_u32 v26, 786432, v25")
    a("v_add_u32 v27, 786432, v26")
    a("v_add_u32 v28, 786432, v27")
    a("v_lshlrev_b32 v29, 1, v7")
    a("s_waitcnt lgkmcnt(0)")
    wsfix(a, 14)
    a("global_load_dwordx4 v[8:11], v4, s[16:17]" + NT1)
    a("global_load_dwordx4 v[12:15], v5, s[16:17]" + NT1)
    a("global_load_dwordx4 v[16:19], v6, s[16:17]" + NT1)
    a("global_load_dwordx4 v[20:23], v6, s[16:17] offset:1024" + NT1)
    a("s_cmp_ge_u32 s25, 192")
    a("s_cbranch_scc1 K1_nomodld")
    for k in range(4):
        a(f"global_load_ushort v{48+k}, v29, s[20:21] offset:{256*k}")
    for k, vo in enumerate((25, 26, 27, 28)):
        a(f"global_load_dwordx4 v[{32+4*k}:{35+4*k}], v{vo}, s[22:23]" + NT1)
    a("K1_nomodld:")
    if OPT.get("cpf", "1") == "1":
        a("s_sub_u32 s65, s25, 192")
        a("s_cmp_ge_u32 s65, 16")
        a("s_cbranch_scc1 K1_nocpf")
        a("s_cmp_lg_u32 s24, 3")
        a("s_cbranch_scc1 K1_nocpf")
        code_prefetch(a, "k1_kernel", LASTLABEL, 6, "k1", 70, 72)
        TS = int(OPT.get("tlb", "0"))
        if TS:
            a("s_load_dwordx2 s[50:51], s[0:1], 64")
            a("s_load_dwordx2 s[52:53], s[0:1], 80")
            a("s_load_dwordx2 s[54:55], s[0:1], 112")
            a("s_load_dwordx2 s[56:57], s[0:1], 72")
            a("s_load_dwordx2 s[58:59], s[0:1], 88")
            a("s_load_dwordx2 s[60:61], s[0:1], 48")
            a(f"v_mul_u32_u24 v71, {TS}, v1")
            a("s_waitcnt lgkmcnt(0)")
            k = 80
            for (sr, size) in ((14, WS_USED), (50, 512*1376*2), (52, 512*1376*2), (54, 2048*512*2)):
                n = -(-size // (64 * TS))
                for i in range(n):
                    a(f"v_add_u32 v70, {i * 64 * TS}, v71")
                    a(f"v_cmp_gt_u32 vcc, {size}, v70")
                    a("s_and_saveexec_b64 s[62:63], vcc")
                    a(f"global_load_dword v{k}, v70, s[{sr}:{sr+1}]")
                    a("s_mov_b64 exec, s[62:63]")
                    k = 80 + (k - 80 + 1) % 40
            a("v_mov_b32 v70, 0")
            for sr in (56, 58, 60):
                a(f"global_load_dword v{k}, v70, s[{sr}:{sr+1}]"); k += 1
        a("s_waitcnt vmcnt(0)")
        a("K1_nocpf:   ; LINT-RESET")
    a("v_mul_u32_u24 v30, 160, v2")
    a("v_lshl_add_u32 v30, v3, 4, v30")
    a("s_cmp_ge_u32 s25, 192")
    a("s_cbranch_scc1 K1_w0")
    a("s_waitcnt vmcnt(10)")
    a("s_branch K1_w1")
    a("K1_w0:")
    a("s_waitcnt vmcnt(2)")
    a("K1_w1:   ; LINT-RESET (T loads have landed; S/mod loads may be outstanding)")
    stamp(a, 1)
    a("ds_write_b128 v30, v[8:11]")
    a("ds_write_b128 v30, v[12:15] offset:5120")
    a("s_cmp_ge_u32 s25, 192")
    a("s_cbranch_scc1 K1_w2")
    a("s_waitcnt vmcnt(8)")
    a("s_branch K1_w3")
    a("K1_w2:")
    a("s_waitcnt vmcnt(0)")
    a("K1_w3:   ; LINT-RESET")
    a("v_mov_b32 v31, 0x3f803f80")
    a("v_mov_b32 v52, 0\nv_mov_b32 v53, 0\nv_mov_b32 v54, 0\nv_mov_b32 v55, 0")
    for k in range(4):
        a(f"v_dot2_f32_bf16 v52, v{16+k}, v31, v52")
        a(f"v_dot2_f32_bf16 v53, v{16+k}, v{16+k}, v53")
        a(f"v_dot2_f32_bf16 v54, v{20+k}, v31, v54")
        a(f"v_dot2_f32_bf16 v55, v{20+k}, v{20+k}, v55")
    a("s_nop 1")
    for ctl in ("row_shr:1", "row_shr:2", "row_shr:4", "row_shr:8", "row_bcast:15 row_mask:0xa", "row_bcast:31 row_mask:0xc"):
        for r in range(52, 56):
            a(f"v_add_f32_dpp v{r}, v{r}, v{r} {ctl}")
        a("s_nop 0") if False else None
    a("s_nop 1")
    for k, r in enumerate(range(52, 56)):
        a(f"v_readlane_b32 s{36+k}, v{r}, 63")
    a("s_nop 1")
    a("v_cmp_eq_u32 vcc, 0, v1")
    a("v_mov_b32 v56, s38")
    a("v_mov_b32 v57, s39")
    a("v_mov_b32 v58, s36")
    a("v_mov_b32 v59, s37")
    a("v_cndmask_b32 v56, v56, v58, vcc")
    a("v_cndmask_b32 v57, v57, v59, vcc")
    a("v_mul_f32 v56, 0x3b000000, v56")
    a("v_mul_f32 v57, 0x3b000000, v57")
    a("v_fma_f32 v57, -v56, v56, v57")
    a("v_max_f32 v57, 0, v57")
    rbf(a, 56, 56)
    rbf(a, 57, 57)
    a("v_add_f32 v57, 0x3727c5ac, v57")
    rbf(a, 57, 57)
    a("v_sqrt_f32 v57, v57")
    a("s_nop 0")
    rbf(a, 57, 57)
    a("v_rcp_f32 v58, v57")
    a("s_nop 0")
    a("v_mul_f32 v59, v56, v58")
    a("v_sub_f32 v59, 0, v59")
    a("s_lshl_b32 s31, s30, 2")
    a(f"s_add_u32 s31, s31, {STAT1}")
    a("v_lshl_add_u32 v60, v1, 2, s31")
    a("v_add_u32 v61, 8192, v60")
    a("v_cmp_gt_u32 vcc, 2, v1")
    a("s_and_saveexec_b64 s[42:43], vcc")
    a("global_store_dword v60, v58, s[14:15]" + SC1)
    a("global_store_dword v61, v59, s[14:15]" + SC1)
    a("s_mov_b64 exec, s[42:43]")
    a("s_cmp_ge_u32 s25, 192")
    a("s_cbranch_scc1 K1_nomodc")
    a("s_waitcnt vmcnt(2)")
    for k in range(4):
        a(f"v_lshlrev_b32 v{48+k}, 16, v{48+k}")
    for k in range(4):
        a(f"v_mul_f32 v{52+k}, 0xbfb8aa3b, v{48+k}")
    for k in range(4):
        a(f"v_exp_f32 v{52+k}, v{52+k}")
    a("s_nop 0")
    for k in range(4):
        a(f"v_add_f32 v{52+k}, 1.0, v{52+k}")
    for k in range(4):
        a(f"v_rcp_f32 v{56+k}, v{52+k}")
    a("s_nop 0")
    for k in range(4):
        a(f"v_mul_f32 v{60+k}, v{48+k}, v{56+k}")
    for k in range(4):
        a(f"v_fma_f32 v{48+k}, -v{60+k}, v{52+k}, v{48+k}")
    for k in range(4):
        a(f"v_fma_f32 v{48+k}, v{48+k}, v{56+k}, v{60+k}")
    for k in range(4):
        rbf(a, 48 + k, 48 + k)
    for k in range(4):
        for p in range(4):
            w = 32 + 4 * k + p
            a(f"v_lshlrev_b32 v62, 16, v{w}")
            a(f"v_and_b32 v63, 0xffff0000, v{w}")
            if k == 0:
                a(f"v_mul_f32 v{64+2*p}, v62, v48")
                a(f"v_mul_f32 v{65+2*p}, v63, v48")
            else:
                a(f"v_fmac_f32 v{64+2*p}, v62, v{48+k}")
                a(f"v_fmac_f32 v{65+2*p}, v63, v{48+k}")
    a("v_lshlrev_b32 v61, 5, v0")
    a("ds_write_b128 v61, v[64:67] offset:10240")
    a("ds_write_b128 v61, v[68:71] offset:10256")
    a("K1_nomodc:")
    stamp(a, 2)
    a("s_waitcnt lgkmcnt(0)")
    a("s_barrier")
    stamp(a, 3)
    a("v_lshrrev_b32 v2, 4, v1")
    a("v_bfe_u32 v3, v1, 2, 2")
    a("v_and_b32 v4, 3, v1")
    a("v_lshl_add_u32 v5, v2, 3, v3")
    a("v_mul_u32_u24 v5, 160, v5")
    a("v_lshl_add_u32 v5, v4, 3, v5")
    a("s_lshl_b32 s31, s24, 5")
    a("v_add_u32 v5, s31, v5")
    a("ds_read_b64_tr_b16 v[8:9], v5")
    a("ds_read_b64_tr_b16 v[10:11], v5 offset:640")
    a(f"ds_read_b64_tr_b16 v[12:13], v5 offset:{32*160}")
    a(f"ds_read_b64_tr_b16 v[14:15], v5 offset:{36*160}")
    a("v_and_b32 v6, 15, v1")
    a("v_lshlrev_b32 v6, 12, v6")
    a("v_lshl_add_u32 v6, v2, 4, v6")
    a("s_lshl_b32 s31, s27, 18")
    a("s_lshl_b32 s32, s24, 16")
    a("s_add_u32 s31, s31, s32")
    a("s_lshl_b32 s32, s26, 7")
    a("s_add_u32 s31, s31, s32")
    a(f"s_add_u32 s31, s31, {XT}") if XT else None
    a("v_add_u32 v6, s31, v6")
    a("s_waitcnt lgkmcnt(2)")
    a("global_store_dwordx4 v6, v[8:11], s[14:15]" + SC1)
    a("s_waitcnt lgkmcnt(0)")
    a("global_store_dwordx4 v6, v[12:15], s[14:15] offset:64" + SC1)
    a("s_cmp_ge_u32 s25, 192")
    a("s_cbranch_scc1 K1_END")
    a("s_cmp_lg_u32 s24, 0")
    a("s_cbranch_scc1 K1_END")
    a("v_and_b32 v2, 15, v1")
    a("v_lshrrev_b32 v3, 4, v1")
    a("v_lshlrev_b32 v4, 11, v3")
    a("v_lshl_add_u32 v4, v2, 2, v4")
    for i in range(32):
        a(f"ds_read_b32 v{16+i}, v4 offset:{10240+64*i}")
        if i == 14: a("s_waitcnt lgkmcnt(7)")
    a("s_waitcnt lgkmcnt(0)")
    for st in (16, 8, 4, 2, 1):
        for i in range(st):
            a(f"v_add_f32 v{16+i}, v{16+i}, v{16+st+i}")
    a("s_nop 0")
    a("v_mov_b32 v17, v16")
    a("s_nop 1")
    a("v_permlane16_swap_b32 v16, v17")
    a("s_nop 0")
    a("v_add_f32 v16, v16, v17")
    a("s_nop 0")
    a("v_mov_b32 v17, v16")
    a("s_nop 1")
    a("v_permlane32_swap_b32 v16, v17")
    a("s_nop 0")
    a("v_add_f32 v16, v16, v17")
    rbf(a, 16, 16)
    a("s_lshl_b32 s31, s33, 6")
    a(f"s_add_u32 s31, s31, {MODF}")
    a("v_lshl_add_u32 v5, v2, 2, s31")
    a("v_cmp_gt_u32 vcc, 16, v1")
    a("s_and_saveexec_b64 s[42:43], vcc")
    a("global_store_dword v5, v16, s[14:15]" + SC1)
    a("K1_END:   ; LINT-RESET")
    stamp_store(a, 0, 14, 24)
    a("K1_EXIT:")
    a.end_kernel(name, 160, 100)


KC_CH = 33280
CS    = 4160
UB    = 66560
U_CH  = 7600
SCR   = 81792
FLG   = SCR + 16384
SIDE  = FLG + 64
SIDE_SZ = 11520
K2_LDS = SIDE + 4 * SIDE_SZ
FLAGS_OFF = 0x0638000

def conv_path(a, hb, tag):
    if hb == 0: steps = [(d, True) for d in range(24)]
    else: steps = [(d, True) for d in range(24, 32)] + [(d, False) for d in range(32, 64)]
    ACC = [32, 48]
    SET = [64, 88, 112]
    def reads(k):
        d, both = steps[k]; b = SET[k % 3]
        out = []
        for hf in (0, 1):
            out.append(f"ds_read_b128 v[{b+4*hf}:{b+4*hf+3}], v2 offset:{64*d + 32*(1-hf)}")
        tiles = (0, 1) if both else (1,)
        for t in tiles:
            for hf in (0, 1):
                r = b + 8 + 8 * t + 4 * hf
                out.append(f"ds_read_b128 v[{r}:{r+3}], v3 offset:{(31 + 32*t - d)*80 + 32*hf}")
        return out
    n = len(steps)
    for k in range(2):
        for x in reads(k): a(x)
    for k in range(n):
        d, both = steps[k]; b = SET[k % 3]
        nxt = reads(k + 2) if k + 2 < n else []
        after = len(nxt) + (len(reads(k + 1)) if k + 1 < n else 0)
        mf = []
        tiles = (0, 1) if both else (1,)
        for hf in (0, 1):
            for t in tiles:
                r = b + 8 + 8 * t + 4 * hf
                mf.append(f"v_mfma_f32_32x32x16_bf16 v[{ACC[t]}:{ACC[t]+15}], v[{b+4*hf}:{b+4*hf+3}], v[{r}:{r+3}], v[{ACC[t]}:{ACC[t]+15}]")
        after = len(reads(k + 1)) if k + 1 < n else 0
        a(f"s_waitcnt lgkmcnt({after})")
        per = -(-len(nxt) // len(mf)) if nxt else 0
        ri = 0
        for m in mf:
            a(m)
            for _ in range(per):
                if ri < len(nxt): a(nxt[ri]); ri += 1
    stamp(a, 6)
    give, keep = (ACC[1], ACC[0]) if hb == 0 else (ACC[0], ACC[1])
    a("s_nop 7")
    a("s_nop 3")
    for i in range(4):
        a(f"ds_write_b128 v4, v[{give+4*i}:{give+4*i+3}] offset:{1024*i}")
    for i in range(4):
        a(f"ds_read_b64 v[{64+2*i}:{65+2*i}], v6 offset:{16*i}")
    a("s_waitcnt lgkmcnt(0)")
    a("v_mov_b32 v72, 1")
    a("ds_write_b32 v7, v72")
    a("s_mov_b32 s63, 0x400000")
    a(f"K2_poll{tag}:")
    a("ds_read_b32 v73, v8")
    a("s_waitcnt lgkmcnt(0)")
    a("v_readfirstlane_b32 s40, v73")
    a("s_sub_u32 s63, s63, 1")
    a("s_cmp_eq_u32 s63, 0")
    a(f"s_cbranch_scc1 K2_pollx{tag}")
    a("s_cmp_eq_u32 s40, 1")
    a(f"s_cbranch_scc0 K2_poll{tag}")
    a(f"K2_pollx{tag}:")
    for i in range(4):
        a(f"ds_read_b128 v[{80+4*i}:{83+4*i}], v5 offset:{1024*i}")
    for i in range(4):
        for q in range(2):
            a(f"v_lshlrev_b32 v{96+4*i+2*q}, 16, v{64+2*i+q}")
            a(f"v_and_b32 v{97+4*i+2*q}, 0xffff0000, v{64+2*i+q}")
    a("s_waitcnt vmcnt(0)")
    for i in range(4):
        for q in range(2):
            a(f"v_lshlrev_b32 v{112+4*i+2*q}, 16, v{144+2*i+q}")
            a(f"v_and_b32 v{113+4*i+2*q}, 0xffff0000, v{144+2*i+q}")
    a("s_waitcnt lgkmcnt(0)")
    for j in range(8):
        a(f"v_pk_add_f32 v[{keep+2*j}:{keep+2*j+1}], v[{keep+2*j}:{keep+2*j+1}], v[{80+2*j}:{81+2*j}]")
    for j in range(8):
        a(f"v_pk_fma_f32 v[{keep+2*j}:{keep+2*j+1}], v[{96+2*j}:{97+2*j}], s[36:37], v[{keep+2*j}:{keep+2*j+1}] op_sel_hi:[1,0,1]")
    for j in range(8):
        a(f"v_pk_fma_f32 v[{keep+2*j}:{keep+2*j+1}], v[{keep+2*j}:{keep+2*j+1}], s[36:37], v[{112+2*j}:{113+2*j}] op_sel:[0,1,0] op_sel_hi:[1,1,1]")
    for j in range(8):
        a(f"v_cvt_pk_bf16_f32 v{64+j}, v{keep+2*j}, v{keep+2*j+1}")
    for i in range(4):
        a(f"ds_write_b64 v10, v[{64+2*i}:{65+2*i}] offset:{16*i}")
    a("s_waitcnt lgkmcnt(0)")
    a("ds_read_b128 v[72:75], v11")
    a("ds_read_b128 v[76:79], v11 offset:1280")
    a("s_waitcnt lgkmcnt(1)")
    a("global_store_dwordx4 v9, v[72:75], s[14:15]" + SC1)
    a("s_waitcnt lgkmcnt(0)")
    a("global_store_dwordx4 v12, v[76:79], s[14:15]" + SC1)
    a("s_branch K2_END")

def side_load_and_stage(a):
    for i in range(8):
        a(f"buffer_load_dwordx4 v[{32+4*i}:{35+4*i}], v10, s[44:47], s49 offen nt")
        if i < 7: a("s_add_u32 s49, s49, s48")

def k2(a):
    name = "k2_kernel"
    a.begin_kernel(name, 256, 512, K2_LDS)
    a("s_cmp_ge_u32 s2, 256")
    a("s_cbranch_scc1 K2_EXIT")
    stamp(a, 0)
    a("s_load_dwordx2 s[14:15], s[0:1], 128")
    a("s_load_dwordx2 s[12:13], s[0:1], 48")
    a("s_load_dwordx2 s[16:17], s[0:1], 64")
    a("s_load_dwordx2 s[18:19], s[0:1], 80")
    wave_id(a, 24, 1)
    a("v_and_b32 v1, 63, v0")
    a("s_cmp_ge_u32 s24, 4")
    a("s_cbranch_scc1 K2_SIDE")
    a("s_lshl_b32 s27, s2, 1")
    a("s_lshr_b32 s25, s24, 1")
    a("s_and_b32 s26, s24, 1")
    a("s_lshl_b32 s28, s27, 12")
    a(f"s_add_u32 s28, s28, {XT}") if XT else None
    a("v_lshl_add_u32 v44, v0, 4, s28")
    a("v_add_u32 v45, 4096, v44")
    a("v_lshlrev_b32 v46, 5, v0")
    a(f"v_add_u32 v46, {STAT1}, v46")
    a(f"v_add_u32 v47, 8192, v46")
    a(f"s_mul_i32 s29, s27, {KW}")
    a(f"s_add_u32 s29, s29, {KREV + 4080}")
    a("v_lshlrev_b32 v48, 4, v0")
    a("v_sub_u32 v48, s29, v48")
    a(f"v_add_u32 v49, {KW}, v48")
    a("v_and_b32 v50, 31, v1")
    a("v_lshrrev_b32 v51, 5, v1")
    a("s_lshl_b32 s30, s25, 12")
    a("s_add_u32 s30, s30, s28")
    a("s_lshl_b32 s31, s26, 11")
    a("s_add_u32 s30, s30, s31")
    a("v_lshlrev_b32 v52, 6, v50")
    a("v_lshl_add_u32 v52, v51, 3, v52")
    a("v_add_u32 v52, s30, v52")
    a("s_lshl_b32 s32, s27, 2")
    a(f"s_add_u32 s33, s32, {MODF}")
    a(f"s_add_u32 s34, s32, {MODF + 2048}")
    a(f"s_add_u32 s35, s32, {MODF + 4096}")
    a("s_lshl_b32 s31, s2, 2")
    a("s_waitcnt lgkmcnt(0)")
    wsfix(a, 14)
    a("global_load_dwordx4 v[28:31], v48, s[14:15]")
    a("global_load_dwordx4 v[32:35], v48, s[14:15] offset:16")
    a("global_load_dwordx4 v[36:39], v49, s[14:15]")
    a("global_load_dwordx4 v[40:43], v49, s[14:15] offset:16")
    a("global_load_dwordx4 v[4:7], v44, s[14:15]")
    a("global_load_dwordx4 v[8:11], v45, s[14:15]")
    a("global_load_dwordx4 v[12:15], v46, s[14:15]")
    a("global_load_dwordx4 v[16:19], v46, s[14:15] offset:16")
    a("global_load_dwordx4 v[20:23], v47, s[14:15]")
    a("global_load_dwordx4 v[24:27], v47, s[14:15] offset:16")
    for i in range(4):
        a(f"global_load_dwordx2 v[{144+2*i}:{145+2*i}], v52, s[14:15] offset:{16*i}")
    a("s_load_dwordx2 s[50:51], s[14:15], s33")
    a("s_load_dwordx2 s[52:53], s[14:15], s34")
    a("s_load_dwordx2 s[54:55], s[14:15], s35")
    a("s_load_dword s56, s[12:13], s31")
    a("v_mov_b32 v56, 0\nv_mov_b32 v57, 0\nv_mov_b32 v58, 0\nv_mov_b32 v59, 0")
    a("v_mul_u32_u24 v53, 171, v0")
    a("v_lshrrev_b32 v53, 9, v53")
    a("v_mul_u32_u24 v54, 3, v53")
    a("v_sub_u32 v54, v0, v54")
    a(f"v_mul_u32_u24 v53, {CS}, v53")
    a("v_lshl_add_u32 v53, v54, 4, v53")
    a("v_cmp_gt_u32 vcc, 48, v0")
    a("s_and_saveexec_b64 s[42:43], vcc")
    a("ds_write_b128 v53, v[56:59]")
    a("s_mov_b64 exec, s[42:43]")
    a("v_lshlrev_b32 v53, 4, v0")
    a(f"v_add_u32 v53, {UB}, v53")
    a("v_cmp_gt_u32 vcc, 155, v0")
    a("s_and_saveexec_b64 s[42:43], vcc")
    a(f"ds_write_b128 v53, v[56:59]")
    a(f"ds_write_b128 v53, v[56:59] offset:{U_CH}")
    a("s_mov_b64 exec, s[42:43]")
    a("v_lshlrev_b32 v53, 2, v0")
    a("v_cmp_gt_u32 vcc, 4, v0")
    a("s_and_saveexec_b64 s[42:43], vcc")
    a(f"v_add_u32 v53, {FLG}, v53")
    a("ds_write_b32 v53, v56")
    a("s_mov_b64 exec, s[42:43]")
    a("v_and_b32 v53, 7, v50")
    a("v_lshrrev_b32 v54, 3, v50")
    a(f"v_mul_u32_u24 v2, {CS}, v53")
    a("v_sub_u32 v54, v54, v51")
    a("v_add_u32 v54, 1, v54")
    a("v_lshl_add_u32 v2, v54, 4, v2")
    a(f"s_mul_i32 s38, s25, {KC_CH}")
    a("v_add_u32 v2, s38, v2")
    a("v_mul_u32_u24 v3, 80, v50")
    a("v_lshl_add_u32 v3, v51, 4, v3")
    a(f"s_mul_i32 s38, s25, {U_CH}")
    a(f"s_add_u32 s38, s38, {UB}")
    a("v_add_u32 v3, s38, v3")
    a("v_lshlrev_b32 v55, 4, v0")
    a("v_add_u32 v55, 48, v55")
    for c in range(2):
        W = 28 + 8 * c
        a(f"s_waitcnt vmcnt({12 - 2*c})")
        V = 60
        for j in range(7): a(f"v_alignbit_b32 v{V+j}, v{W+j+1}, v{W+j}, 16")
        for j in range(1, 7): a(f"v_alignbit_b32 v{68+j-1}, v{W+j+1}, v{W+j}, 16")
        for j in range(1, 7): a(f"v_mov_b32 v{76+j-1}, v{W+j}")
        off = c * KC_CH
        a(f"ds_write_b128 v55, v[{W}:{W+3}] offset:{off + 7*CS}")
        a(f"ds_write_b128 v55, v[{W+2}:{W+5}] offset:{off + 3*CS}")
        a(f"ds_write_b128 v55, v[{V}:{V+3}] offset:{off + 6*CS}")
        a(f"ds_write_b128 v55, v[{V+2}:{V+5}] offset:{off + 2*CS}")
        a(f"ds_write_b128 v55, v[68:71] offset:{off + 4*CS}")
        a(f"ds_write_b128 v55, v[70:73] offset:{off + 0*CS}")
        a(f"ds_write_b128 v55, v[76:79] offset:{off + 5*CS}")
        a(f"ds_write_b128 v55, v[78:81] offset:{off + 1*CS}")
    a("s_waitcnt vmcnt(4) lgkmcnt(0)")
    a("v_add_f32 v60, 1.0, s52")
    a("v_add_f32 v61, 1.0, s53")
    rbf(a, 60, 60); rbf(a, 61, 61)
    a("s_nop 0")
    a("v_readfirstlane_b32 s58, v60")
    a("v_readfirstlane_b32 s60, v61")
    a("s_mov_b32 s59, s50")
    a("s_mov_b32 s61, s51")
    a("s_lshl_b32 s38, s25, 4")
    a("s_lshr_b32 s36, s56, s38")
    a("s_lshl_b32 s36, s36, 16")
    a("s_cmp_eq_u32 s25, 0")
    a("s_cselect_b32 s37, s54, s55")
    a("v_lshrrev_b32 v62, 2, v0")
    a("v_mul_u32_u24 v62, 80, v62")
    a("v_and_b32 v63, 3, v0")
    a("v_lshl_add_u32 v62, v63, 4, v62")
    a(f"v_add_u32 v62, {UB + 31*80}, v62")
    for c in range(2):
        X = 4 + 4 * c
        for q in range(4):
            a(f"v_lshlrev_b32 v{64+2*q}, 16, v{X+q}")
            a(f"v_and_b32 v{65+2*q}, 0xffff0000, v{X+q}")
        for q in range(4):
            a(f"v_pk_fma_f32 v[{64+2*q}:{65+2*q}], v[{64+2*q}:{65+2*q}], v[{12+2*q}:{13+2*q}], v[{20+2*q}:{21+2*q}]")
        for q in range(4):
            a(f"v_pk_fma_f32 v[{64+2*q}:{65+2*q}], v[{64+2*q}:{65+2*q}], s[{58+2*c}:{59+2*c}], s[{58+2*c}:{59+2*c}] op_sel:[0,0,1] op_sel_hi:[1,0,1]")
        for q in range(4):
            a(f"v_cvt_pk_bf16_f32 v{72+4*c+q}, v{64+2*q}, v{65+2*q}")
        a(f"ds_write_b128 v62, v[{72+4*c}:{75+4*c}] offset:{c*U_CH}")
    a("s_lshl_b32 s38, s24, 12")
    a(f"s_add_u32 s38, s38, {SCR}")
    a("v_lshl_add_u32 v4, v1, 4, s38")
    a("s_xor_b32 s39, s24, 1")
    a("s_lshl_b32 s38, s39, 12")
    a(f"s_add_u32 s38, s38, {SCR}")
    a("v_lshl_add_u32 v5, v1, 4, s38")
    a("s_lshl_b32 s38, s24, 2")
    a(f"s_add_u32 s38, s38, {FLG}")
    a("v_mov_b32 v7, s38")
    a("s_lshl_b32 s38, s39, 2")
    a(f"s_add_u32 s38, s38, {FLG}")
    a("v_mov_b32 v8, s38")
    a("v_mul_u32_u24 v6, 80, v50")
    a("v_lshl_add_u32 v6, v51, 3, v6")
    a(f"s_mul_i32 s38, s25, {U_CH}")
    a(f"s_mul_i32 s39, s26, {32*80}")
    a("s_add_u32 s38, s38, s39")
    a(f"s_add_u32 s38, s38, {UB + 31*80}")
    a("v_add_u32 v6, s38, v6")
    a("s_add_u32 s38, s27, s25")
    a("s_lshl_b32 s38, s38, 7")
    a("s_lshl_b32 s39, s26, 20")
    a("s_add_u32 s38, s38, s39")
    a(f"s_add_u32 s38, s38, {X2T}")
    a("v_lshrrev_b32 v9, 3, v1")
    a("v_lshlrev_b32 v9, 16, v9")
    a("v_and_b32 v63, 7, v1")
    a("v_lshl_add_u32 v9, v63, 4, v9")
    a("v_add_u32 v9, s38, v9")
    a("v_add_u32 v12, 0x80000, v9")
    a(f"s_mul_i32 s38, s25, {KC_CH}")
    a("s_mul_i32 s39, s26, 2560")
    a("s_add_u32 s38, s38, s39")
    a("v_mul_u32_u24 v10, 80, v50")
    a("v_lshl_add_u32 v10, v51, 3, v10")
    a("v_add_u32 v10, s38, v10")
    a("v_lshrrev_b32 v11, 2, v1")
    a("v_mul_u32_u24 v11, 80, v11")
    a("v_and_b32 v63, 3, v1")
    a("v_lshl_add_u32 v11, v63, 4, v11")
    a("v_add_u32 v11, s38, v11")
    for r in range(32, 64): a(f"v_mov_b32 v{r}, 0")
    stamp(a, 1)
    a("s_waitcnt lgkmcnt(0)")
    a("s_barrier")
    stamp(a, 2)
    a("s_cmp_eq_u32 s26, 0")
    a("s_cbranch_scc0 K2_B")
    conv_path(a, 0, "A")
    a("K2_B:   ; LINT-RESET")
    conv_path(a, 1, "B")
    a("K2_SIDE:   ; LINT-RESET")
    a("s_sub_u32 s25, s24, 4")
    a("s_lshl_b32 s26, s25, 8")
    a("s_add_u32 s26, s26, s2")
    a(f"s_mul_i32 s27, s25, {SIDE_SZ}")
    a(f"s_add_u32 s27, s27, {SIDE}")
    a("s_cmp_gt_u32 s26, 348")
    a("s_cbranch_scc1 K2_SIDE_IDLE")
    a("s_cmp_eq_u32 s26, 348")
    a("s_cbranch_scc1 K2_TAB")
    a("v_lshrrev_b32 v2, 2, v1")
    a("v_and_b32 v3, 3, v1")
    a("v_lshrrev_b32 v4, 4, v1")
    a("v_bfe_u32 v5, v1, 2, 2")
    a("v_mul_u32_u24 v11, 80, v2")
    a("v_lshl_add_u32 v11, v3, 4, v11")
    a("v_add_u32 v11, s27, v11")
    a("v_lshl_add_u32 v12, v4, 2, v5")
    a("v_mul_u32_u24 v12, 80, v12")
    a("v_lshl_add_u32 v12, v3, 3, v12")
    a("v_add_u32 v12, s27, v12")
    a("s_cmp_ge_u32 s26, 172")
    a("s_cbranch_scc1 K2_W2")
    a("s_mul_i32 s28, s26, 1525")
    a("s_lshr_b32 s28, s28, 16")
    a("s_mul_i32 s29, s28, 43")
    a("s_sub_u32 s29, s26, s29")
    a("v_mul_u32_u24 v10, 2752, v2")
    a("v_lshl_add_u32 v10, v3, 4, v10")
    a(f"s_mul_i32 s49, s28, {128*2752}")
    a("s_lshl_b32 s30, s29, 6")
    a("s_add_u32 s49, s49, s30")
    a(f"s_mov_b32 s48, {16*2752}")
    a("s_lshl_b32 s31, s28, 9")
    a("v_lshl_add_u32 v13, v1, 2, s31")
    a(f"v_add_u32 v13, {MODF + 3*2048}, v13")
    a("v_add_u32 v14, 2048, v13")
    a("s_waitcnt lgkmcnt(0)")
    wsfix(a, 14)
    a.srd(44, 16, 512 * 1376 * 2)
    a("global_load_dword v20, v13, s[14:15]")
    a("global_load_dword v21, v13, s[14:15] offset:256")
    a("global_load_dword v22, v14, s[14:15]")
    a("global_load_dword v23, v14, s[14:15] offset:256")
    side_load_and_stage(a)
    a("s_barrier")
    a("s_waitcnt vmcnt(8)")
    a("v_add_f32 v22, 1.0, v22")
    a("v_add_f32 v23, 1.0, v23")
    rbf(a, 22, 22); rbf(a, 23, 23)
    a("v_lshl_add_u32 v15, v1, 2, s27")
    a("v_lshl_add_u32 v16, v1, 1, s27")
    a("ds_write_b32 v15, v22 offset:10240")
    a("ds_write_b32 v15, v23 offset:10496")
    a("ds_write_b16_d16_hi v16, v20 offset:10752")
    a("ds_write_b16_d16_hi v16, v21 offset:10880")
    for i in range(8):
        a(f"s_waitcnt vmcnt({7-i})")
        a(f"ds_write_b128 v11, v[{32+4*i}:{35+4*i}] offset:{16*80*i}")
    a("v_and_b32 v17, 15, v1")
    a("v_cmp_eq_u32 s[50:51], 0, v17")
    a("v_cmp_eq_u32 s[52:53], 1, v17")
    a("v_mov_b32 v18, 0")
    a("v_mov_b32 v19, 0x3f803f80")
    a("v_cndmask_b32 v18, v18, v19, s[50:51]")
    a("v_mov_b32 v19, 0")
    a("v_cndmask_b32 v19, v19, -1, s[52:53]")
    a("v_lshl_add_u32 v24, v4, 4, s27")
    a("v_lshl_add_u32 v25, v4, 3, s27")
    for r in range(96, 112): a(f"v_mov_b32 v{r}, 0")
    a("s_lshl_b32 s30, s29, 11")
    a(f"s_mul_i32 s31, s28, {4*87*1024}")
    a("s_add_u32 s30, s30, s31")
    a(f"s_add_u32 s30, s30, {W1F}")
    a("v_lshl_add_u32 v26, v1, 4, s30")
    a("s_waitcnt lgkmcnt(0)")
    for ks in range(4):
        a(f"ds_read_b128 v[32:35], v24 offset:{10240 + 128*ks}")
        a(f"ds_read_b128 v[36:39], v24 offset:{10240 + 128*ks + 64}")
        a(f"ds_read_b64 v[40:41], v25 offset:{10752 + 64*ks}")
        a(f"ds_read_b64 v[42:43], v25 offset:{10752 + 64*ks + 32}")
        for nt in range(2):
            for hf in range(2):
                a(f"ds_read_b64_tr_b16 v[{44+4*nt+2*hf}:{45+4*nt+2*hf}], v12 offset:{(32*ks+16*hf)*80 + 32*nt}")
        a("s_waitcnt lgkmcnt(4)")
        for q in range(4): a(f"v_and_or_b32 v{40+q}, v{40+q}, v19, v18")
        a("s_waitcnt lgkmcnt(0)")
        for nt in range(2):
            R = 44 + 4 * nt
            for q in range(4):
                a(f"v_lshlrev_b32 v{52+2*q}, 16, v{R+q}")
                a(f"v_and_b32 v{53+2*q}, 0xffff0000, v{R+q}")
            a(f"v_mfma_f32_16x16x32_bf16 v[{96+4*nt}:{99+4*nt}], v[{R}:{R+3}], v[40:43], v[{96+4*nt}:{99+4*nt}]")
            for q in range(4):
                a(f"v_pk_mul_f32 v[{52+2*q}:{53+2*q}], v[{52+2*q}:{53+2*q}], v[{32+2*q}:{33+2*q}]")
            S = 60 + 4 * nt
            for q in range(4):
                a(f"v_cvt_pk_bf16_f32 v{S+q}, v{52+2*q}, v{53+2*q}")
            a(f"global_store_dwordx4 v26, v[{S}:{S+3}], s[14:15] offset:{1024*nt}" + SC1)
            if nt == 1: a(f"v_add_u32 v26, {87*1024}, v26")
            a("s_nop 0")
            a(f"v_mfma_f32_16x16x32_bf16 v[{104+4*nt}:{107+4*nt}], v[{S}:{S+3}], v[40:43], v[{104+4*nt}:{107+4*nt}]")
    a(f"s_mul_i32 s30, s28, {3*5504}")
    a("s_lshl_b32 s31, s29, 7")
    a("s_add_u32 s30, s30, s31")
    a(f"s_add_u32 s30, s30, {SVP}")
    a("v_lshl_add_u32 v28, v4, 4, s30")
    a("v_add_u32 v29, 5504, v28")
    a("v_add_u32 v30, 5504, v29")
    a("s_nop 7")
    a("s_mov_b64 s[42:43], exec")
    a("s_mov_b64 exec, s[50:51]")
    for nt in range(2):
        a(f"global_store_dwordx4 v28, v[{104+4*nt}:{107+4*nt}], s[14:15] offset:{64*nt}" + SC1)
        a(f"global_store_dwordx4 v30, v[{96+4*nt}:{99+4*nt}], s[14:15] offset:{64*nt}" + SC1)
    a("s_mov_b64 exec, s[52:53]")
    for nt in range(2):
        a(f"global_store_dwordx4 v29, v[{96+4*nt}:{99+4*nt}], s[14:15] offset:{64*nt}" + SC1)
    a("s_mov_b64 exec, s[42:43]")
    a("s_branch K2_END")
    a("K2_W2:   ; LINT-RESET")
    a("s_sub_u32 s26, s26, 172")
    a("s_and_b32 s29, s26, 15")
    a("s_lshr_b32 s28, s26, 4")
    a("v_lshlrev_b32 v10, 10, v2")
    a("v_lshl_add_u32 v10, v3, 4, v10")
    a("s_lshl_b32 s30, s29, 6")
    a("s_waitcnt lgkmcnt(0)")
    wsfix(a, 14)
    a.srd(44, 18, 1376 * 512 * 2)
    for ks in range(4):
        a("s_lshl_b32 s31, s28, 2")
        a(f"s_add_u32 s31, s31, {ks}")
        a("s_mul_i32 s32, s31, 13")
        a("s_lshr_b32 s32, s32, 6")
        a("s_mul_i32 s33, s32, 5")
        a("s_sub_u32 s33, s31, s33")
        a("s_mul_i32 s32, s32, 11")
        a("s_min_u32 s32, s32, 76")
        a("s_lshl_b32 s33, s33, 1")
        a("s_add_u32 s32, s32, s33")
        a("s_add_u32 s33, s32, 1")
        a("s_sub_u32 s34, s31, 40")
        a("s_mul_i32 s34, s34, 22")
        a("s_add_u32 s35, s34, 21")
        a("s_add_u32 s34, s34, 10")
        a("s_cmp_lt_u32 s31, 40")
        a("s_cselect_b32 s32, s32, s34")
        a("s_cselect_b32 s33, s33, s35")
        for hf, sr in ((0, 32), (1, 33)):
            a(f"s_lshl_b32 s49, s{sr}, 14")
            a("s_add_u32 s49, s49, s30")
            i = 2 * ks + hf
            a(f"buffer_load_dwordx4 v[{32+4*i}:{35+4*i}], v10, s[44:47], s49 offen nt")
    a("s_barrier")
    for i in range(8):
        a(f"s_waitcnt vmcnt({7-i})")
        a(f"ds_write_b128 v11, v[{32+4*i}:{35+4*i}] offset:{16*80*i}")
    a("s_lshr_b32 s30, s29, 1")
    a("s_mul_i32 s30, s30, 43")
    a("s_lshl_b32 s31, s28, 2")
    a("s_add_u32 s30, s30, s31")
    a("s_lshl_b32 s30, s30, 12")
    a("s_and_b32 s31, s29, 1")
    a("s_lshl_b32 s31, s31, 11")
    a("s_add_u32 s30, s30, s31")
    a(f"s_add_u32 s30, s30, {W2F}")
    a("v_lshl_add_u32 v26, v1, 4, s30")
    a("s_waitcnt lgkmcnt(0)")
    for ks in range(4):
        if ks == 3:
            a("s_cmp_eq_u32 s28, 10")
            a("s_cbranch_scc1 K2_END")
        for nt in range(2):
            for hf in range(2):
                a(f"ds_read_b64_tr_b16 v[{44+4*nt+2*hf}:{45+4*nt+2*hf}], v12 offset:{(32*ks+16*hf)*80 + 32*nt}")
        a("s_waitcnt lgkmcnt(2)")
        a(f"global_store_dwordx4 v26, v[44:47], s[14:15]" + SC1)
        a("s_waitcnt lgkmcnt(0)")
        a(f"global_store_dwordx4 v26, v[48:51], s[14:15] offset:1024" + SC1)
        a("v_add_u32 v26, 4096, v26")
    a("s_branch K2_END")
    a("K2_TAB:   ; LINT-RESET")
    a("v_lshlrev_b32 v2, 5, v1")
    a(f"v_add_u32 v2, {MODF + 3*2048}, v2")
    a("v_add_u32 v3, 2048, v2")
    a("s_waitcnt lgkmcnt(0)")
    wsfix(a, 14)
    a("global_load_dwordx4 v[32:35], v2, s[14:15]")
    a("global_load_dwordx4 v[36:39], v2, s[14:15] offset:16")
    a("global_load_dwordx4 v[40:43], v3, s[14:15]")
    a("global_load_dwordx4 v[44:47], v3, s[14:15] offset:16")
    a("s_barrier")
    a("s_waitcnt vmcnt(0)")
    for j in range(8): a(f"v_add_f32 v{40+j}, 1.0, v{40+j}")
    for j in range(8): rbf(a, 40 + j, 40 + j)
    for j in range(8): a(f"v_mul_f32 v{48+j}, v{40+j}, v{40+j}")
    for j in range(8): a(f"v_mul_f32 v{56+j}, v{40+j}, v{32+j}")
    for k, base in enumerate((40, 48, 56, 32)):
        a(f"v_add_f32 v{100+k}, v{base}, v{base+1}")
        for j in range(2, 8): a(f"v_add_f32 v{100+k}, v{100+k}, v{base+j}")
    a("v_mul_f32 v104, v32, v32")
    for j in range(1, 8): a(f"v_fmac_f32 v104, v{32+j}, v{32+j}")
    a("v_lshl_add_u32 v4, v1, 4, s27")
    a("v_mov_b32 v64, 0x3f803f80\nv_mov_b32 v65, 0x3f803f80\nv_mov_b32 v66, 0x3f803f80\nv_mov_b32 v67, 0x3f803f80")
    a("ds_write_b128 v4, v[64:67]")
    for q in range(4): a(f"v_cvt_pk_bf16_f32 v{68+q}, v{40+2*q}, v{41+2*q}")
    a("ds_write_b128 v4, v[68:71] offset:1024")
    for (src, row) in ((48, 2), (56, 4)):
        for q in range(4): a(f"v_cvt_pk_bf16_f32 v{72+q}, v{src+2*q}, v{src+2*q+1}")
        a(f"ds_write_b128 v4, v[72:75] offset:{1024*row}")
        for q in range(4):
            a(f"v_lshlrev_b32 v{80+2*q}, 16, v{72+q}")
            a(f"v_and_b32 v{81+2*q}, 0xffff0000, v{72+q}")
        for j in range(8): a(f"v_sub_f32 v{80+j}, v{src+j}, v{80+j}")
        for q in range(4): a(f"v_cvt_pk_bf16_f32 v{76+q}, v{80+2*q}, v{81+2*q}")
        a(f"ds_write_b128 v4, v[76:79] offset:{1024*(row+1)}")
    a("s_nop 1")
    for ctl in ("row_shr:1", "row_shr:2", "row_shr:4", "row_shr:8", "row_bcast:15 row_mask:0xa", "row_bcast:31 row_mask:0xc"):
        for r in range(100, 105):
            a(f"v_add_f32_dpp v{r}, v{r}, v{r} {ctl}")
    a(f"v_mov_b32 v5, {SCAL}")
    a("s_mov_b64 s[42:43], exec")
    a("s_mov_b64 exec, 0x8000000000000000") if False else None
    a("v_cmp_eq_u32 vcc, 63, v1")
    a("s_and_saveexec_b64 s[42:43], vcc")
    a("global_store_dwordx4 v5, v[100:103], s[14:15]" + SC1)
    a("global_store_dword v5, v104, s[14:15] offset:16" + SC1)
    a("s_mov_b64 exec, s[42:43]")
    a("v_and_b32 v6, 15, v1")
    a("v_lshrrev_b32 v7, 4, v1")
    a("v_min_u32 v8, 5, v6")
    a("v_lshlrev_b32 v8, 10, v8")
    a("v_lshl_add_u32 v8, v7, 3, v8")
    a("v_add_u32 v8, s27, v8")
    a("v_cmp_gt_u32 vcc, 6, v6")
    a("v_mov_b32 v9, 0")
    a("s_nop 0")
    a("v_cndmask_b32 v9, v9, -1, vcc")
    a(f"s_mov_b32 s30, {W1F + 86*1024}")
    a("v_lshl_add_u32 v10, v1, 4, s30")
    a("s_waitcnt lgkmcnt(0)")
    for ks in range(16):
        R = 16 + 4 * (ks & 1)
        a(f"ds_read_b64 v[{R}:{R+1}], v8 offset:{64*ks}")
        a(f"ds_read_b64 v[{R+2}:{R+3}], v8 offset:{64*ks+32}")
        a("s_waitcnt lgkmcnt(0)")
        for q in range(4): a(f"v_and_b32 v{R+q}, v{R+q}, v9")
        a(f"global_store_dwordx4 v10, v[{R}:{R+3}], s[14:15]" + SC1)
        a(f"v_add_u32 v10, {87*1024}, v10")
    a("s_branch K2_END")
    a("K2_SIDE_IDLE:   ; LINT-RESET")
    a("s_cmp_eq_u32 s26, 349")
    a("s_cbranch_scc0 K2_idle2")
    a("s_waitcnt lgkmcnt(0)")
    wsfix(a, 14)
    a("v_mov_b32 v4, 0\nv_mov_b32 v5, 0\nv_mov_b32 v6, 0\nv_mov_b32 v7, 0")
    a("v_lshlrev_b32 v2, 4, v1")
    a(f"v_add_u32 v2, {FLAGS_OFF}, v2")
    for q in range(4):
        a(f"global_store_dwordx4 v2, v[4:7], s[14:15] offset:{1024*q} sc1")
    a("K2_idle2:")
    a("s_barrier")
    a("K2_END:   ; LINT-RESET")
    stamp_store(a, 1, 14, 24)
    a("K2_EXIT:")
    a.end_kernel(name, 160, 100)


KG   = SIDE + 4 * SIDE_SZ
KG_PAR = KG
KG_T16 = KG + 4096
KG_REV = KG + 4096 + 2816
LF   = KG_REV + 2 * 4160
K12_LDS = LF + 64
KG_PART = SCR
GBAR = 0x0639000

_sync_id = [0]
def wsync(a, addr, n, vt, st, add=True):
    _sync_id[0] += 1
    L = f"WS_{_sync_id[0]}"
    a("s_waitcnt lgkmcnt(0)")
    if isinstance(addr, str): a(f"v_mov_b32 v{vt}, {addr}")
    else: a(f"v_mov_b32 v{vt}, {addr}")
    if add:
        a(f"v_mov_b32 v{vt+1}, 1")
        a("s_mov_b64 exec, 1")
        a(f"ds_add_u32 v{vt}, v{vt+1}")
        a("s_mov_b64 exec, -1")
    a("s_mov_b32 s63, 0x400000")
    a(f"{L}:")
    a(f"ds_read_b32 v{vt+1}, v{vt}")
    a("s_waitcnt lgkmcnt(0)")
    a(f"v_readfirstlane_b32 s{st}, v{vt+1}")
    a("s_sub_u32 s63, s63, 1")
    a("s_cmp_eq_u32 s63, 0")
    a(f"s_cbranch_scc1 {L}_x")
    a(f"s_cmp_ge_u32 s{st}, {n}")
    a(f"s_cbranch_scc0 {L}")
    a(f"{L}_x:")

def k12(a):
    name = "k12_kernel"
    a.begin_kernel(name, 256, 512, K12_LDS)
    a("s_cmp_ge_u32 s2, 256")
    a("s_cbranch_scc1 K2_EXIT")
    stamp(a, 0)
    a("s_load_dwordx8 s[4:11], s[0:1], 8")
    a("s_load_dwordx4 s[44:47], s[0:1], 40")
    a("s_load_dwordx2 s[14:15], s[0:1], 128")
    a("s_load_dwordx2 s[16:17], s[0:1], 0")
    a("s_load_dwordx2 s[18:19], s[0:1], 120")
    a("s_load_dwordx4 s[20:23], s[0:1], 96")
    a("s_load_dwordx2 s[48:49], s[0:1], 64")
    a("s_load_dwordx2 s[12:13], s[0:1], 80")
    wave_id(a, 24, 1)
    a("v_and_b32 v1, 63, v0")
    if OPT.get("cpf", "1") == "1":
        a("s_cmp_ge_u32 s2, 16")
        a("s_cbranch_scc1 K12_nocpf")
        a("s_cmp_lg_u32 s24, 7")
        a("s_cbranch_scc1 K12_nocpf")
        code_prefetch(a, "k12_kernel", LASTLABEL, 6, "k1", 199, 200)
        a("K12_nocpf:")
    a("v_lshlrev_b32 v2, 2, v0")
    a(f"v_add_u32 v2, {LF}, v2")
    a("v_mov_b32 v3, 0")
    a("v_cmp_gt_u32 vcc, 16, v0")
    a("s_and_saveexec_b64 s[42:43], vcc")
    a("ds_write_b32 v2, v3")
    a("s_mov_b64 exec, s[42:43]")
    a("s_cmp_ge_u32 s24, 4")
    a("s_cbranch_scc1 K12_SIDE0")
    a("s_lshr_b32 s25, s24, 1")
    a("s_and_b32 s26, s24, 1")
    a("s_lshl_b32 s62, s2, 1")
    a("s_add_u32 s27, s62, s25")
    a("s_lshl_b32 s28, s27, 8")
    a("s_lshl_b32 s29, s26, 7")
    a("s_add_u32 s28, s28, s29")
    a("v_lshl_add_u32 v2, v1, 1, s28")
    a("s_lshl_b32 s30, s2, 2")
    a("s_waitcnt lgkmcnt(0)")
    wsfix(a, 14)
    a("global_load_ushort v4, v2, s[4:5] nt")
    a("global_load_ushort v5, v2, s[6:7] nt")
    a("global_load_ushort v6, v2, s[8:9] nt")
    a("global_load_ushort v7, v2, s[10:11] nt")
    a("s_load_dword s29, s[44:45], s30")
    a("s_load_dword s56, s[46:47], s30")
    a("s_branch K12_CONV0")
    a("K12_SIDE0:   ; LINT-RESET")
    a("s_setprio 3")
    a("s_sub_u32 s25, s24, 4")
    a("s_and_b32 s28, s2, 7")
    a("s_lshr_b32 s29, s2, 3")
    a("s_lshr_b32 s26, s29, 3")
    a("s_lshl_b32 s27, s28, 2")
    a("s_add_u32 s26, s26, s27")
    a("s_and_b32 s27, s29, 7")
    a("s_lshl_b32 s30, s28, 8")
    a("s_lshl_b32 s31, s29, 3")
    a("s_add_u32 s30, s30, s31")
    a("s_lshl_b32 s31, s25, 1")
    a("s_add_u32 s30, s30, s31")
    a(f"s_mul_i32 s57, s25, {SIDE_SZ}")
    a(f"s_add_u32 s57, s57, {SIDE}")
    a("v_subrev_u32 v30, 256, v0")
    a("s_lshl_b32 s28, s26, 16")
    a("s_lshl_b32 s29, s27, 7")
    a("s_add_u32 s28, s28, s29")
    a("v_lshrrev_b32 v2, 3, v30")
    a("v_and_b32 v3, 7, v30")
    a("v_lshlrev_b32 v4, 10, v2")
    a("v_lshl_add_u32 v4, v3, 4, v4")
    a("v_add_u32 v4, s28, v4")
    a("v_add_u32 v5, 0x8000, v4")
    a("s_lshl_b32 s31, s30, 10")
    a("v_lshl_add_u32 v6, v1, 4, s31")
    a("s_and_b32 s33, s2, 7")
    a("s_mul_i32 s33, s33, 6")
    a("s_lshr_b32 s34, s2, 5")
    a("s_add_u32 s33, s33, s34")
    a("s_bfe_u32 s34, s2, 0x20003")
    a("s_lshl_b32 s35, s34, 7")
    a("v_add_u32 v7, s35, v2")
    a("v_mul_u32_u24 v25, 6144, v7")
    a("v_lshl_add_u32 v25, v3, 4, v25")
    a("s_lshl_b32 s35, s33, 7")
    a("v_add_u32 v25, s35, v25")
    a(f"v_add_u32 v26, {32*6144}, v25")
    a(f"v_add_u32 v27, {32*6144}, v26")
    a(f"v_add_u32 v28, {32*6144}, v27")
    a("v_lshlrev_b32 v29, 1, v7")
    a("s_waitcnt lgkmcnt(0)")
    wsfix(a, 14)
    NTX = " nt" if OPT.get("ntx", "0") == "1" else ""
    NTS = " nt" if OPT.get("nts", "0") == "1" else ""
    NTW = " nt" if OPT.get("ntw", "1") == "1" else ""
    a("global_load_dwordx4 v[8:11], v4, s[16:17]" + NTX)
    a("global_load_dwordx4 v[12:15], v5, s[16:17]" + NTX)
    a("global_load_dwordx4 v[16:19], v6, s[16:17]" + NTS)
    a("global_load_dwordx4 v[20:23], v6, s[16:17] offset:1024" + NTS)
    a("s_cmp_ge_u32 s2, 192")
    a("s_cbranch_scc1 K1_nomodld")
    for k in range(4): a(f"global_load_ushort v{48+k}, v29, s[20:21] offset:{64*k}")
    for k, vo in enumerate((25, 26, 27, 28)):
        a(f"global_load_dwordx4 v[{32+4*k}:{35+4*k}], v{vo}, s[22:23]" + NTW)
    a("K1_nomodld:")
    a("s_branch K2_SIDE")
    a("K12_CONV0:   ; LINT-RESET")
    a("s_barrier")
    a("v_mov_b32 v56, 0\nv_mov_b32 v57, 0\nv_mov_b32 v58, 0\nv_mov_b32 v59, 0")
    a("v_mul_u32_u24 v53, 171, v0")
    a("v_lshrrev_b32 v53, 9, v53")
    a("v_mul_u32_u24 v54, 3, v53")
    a("v_sub_u32 v54, v0, v54")
    a(f"v_mul_u32_u24 v53, {CS}, v53")
    a("v_lshl_add_u32 v53, v54, 4, v53")
    a("v_cmp_gt_u32 vcc, 48, v0")
    a("s_and_saveexec_b64 s[42:43], vcc")
    a("ds_write_b128 v53, v[56:59]")
    a("s_mov_b64 exec, s[42:43]")
    a("v_lshlrev_b32 v53, 4, v0")
    a(f"v_add_u32 v53, {UB}, v53")
    a("v_cmp_gt_u32 vcc, 155, v0")
    a("s_and_saveexec_b64 s[42:43], vcc")
    a(f"ds_write_b128 v53, v[56:59]")
    a(f"ds_write_b128 v53, v[56:59] offset:{U_CH}")
    a("s_mov_b64 exec, s[42:43]")
    a("v_and_b32 v16, 15, v1")
    a("v_cmp_eq_u32 s[32:33], 15, v16")
    a("v_lshrrev_b32 v18, 4, v1")
    a("v_add_u32 v19, 1, v16")
    a("v_cvt_f32_u32 v19, v19")
    a("s_lshl_b32 s31, s24, 10")
    a(f"s_add_u32 s31, s31, {KG_PAR}")
    a("v_lshl_add_u32 v17, v18, 6, s31")
    a("v_lshl_add_u32 v20, v1, 4, s31")
    for r in range(112, 128): a(f"v_mov_b32 v{r}, 0")
    a("s_mul_i32 s39, s25, 1344")
    a(f"s_add_u32 s39, s39, {KG_T16 + 8}")
    a("v_subrev_u32 v21, 7, v16")
    a("v_cmp_gt_u32 s[34:35], 8, v21")
    a("v_add_u32 v21, 1, v16")
    a("v_and_b32 v21, 15, v21")
    a("v_lshlrev_b32 v24, 5, v21")
    a("v_lshl_add_u32 v24, v18, 3, v24")
    a("s_lshl_b32 s40, s26, 9")
    a("s_add_u32 s40, s40, s39")
    a("v_add_u32 v24, s40, v24")
    a("s_cmp_eq_u32 s26, 0")
    a("s_cselect_b64 s[36:37], -1, s[34:35]")
    a("s_lshl_b32 s40, s24, 12")
    a(f"s_add_u32 s40, s40, {KG_PART}")
    a("v_lshl_add_u32 v22, v1, 4, s40")
    a("s_lshl_b32 s40, s25, 13")
    a("s_lshl_b32 s41, s26, 11")
    a("s_add_u32 s40, s40, s41")
    a(f"s_add_u32 s40, s40, {KG_PART}")
    a("v_lshl_add_u32 v23, v1, 4, s40")
    a("s_lshl_b32 s40, s26, 6")
    a("v_add_u32 v26, s40, v1")
    a("v_lshlrev_b32 v27, 3, v26")
    a("v_sub_u32 v27, 2047, v27")
    a("v_cvt_f32_u32 v28, v27")
    a("s_sub_u32 s41, s39, 34050")
    a("s_sub_u32 s42, s39, 2")
    GA = 140
    for rnd in range(2):
        if rnd == 1:
            a("v_add_f32 v28, 0xc4800000, v28")
            a("v_subrev_u32 v27, 1024, v27")
        for t in range(8):
            if t == 0: a(f"v_mov_b32 v48, v28")
            else: a(f"v_add_f32 v{48+t}, {-float(t)}, v28")
        for p in range(4): a(f"v_cvt_pk_bf16_f32 v{56+p}, v{48+2*p}, v{49+2*p}")
        for p in range(4):
            a(f"v_and_b32 v{48+2*p}, 0xffff, v{56+p}")
            a(f"v_lshrrev_b32 v{49+2*p}, 16, v{56+p}")
        o = GA + 8 * rnd
        for t in range(8): a(f"v_lshl_add_u32 v{o+t}, v{48+t}, 1, s41")
        if rnd == 1:
            a("v_cmp_le_u32 vcc, 112, v26")
            for t in range(8):
                a(f"v_subrev_u32 v{56+(t&3)}, {t}, v27")
                a(f"v_lshl_add_u32 v{56+(t&3)}, v{56+(t&3)}, 1, s42")
                a(f"v_cndmask_b32 v{o+t}, v{o+t}, v{56+(t&3)}, vcc")
    a(f"s_mul_i32 s40, s25, 4160")
    a(f"s_add_u32 s40, s40, {KG_REV}")
    a("v_lshl_add_u32 v29, v26, 4, s40")
    a("s_add_u32 s41, s40, 4080")
    a("v_lshlrev_b32 v30, 4, v26")
    a("v_sub_u32 v30, s41, v30")
    a(f"s_mul_i32 s41, s25, {KC_CH}")
    a("s_add_u32 s41, s41, 48")
    a("v_lshl_add_u32 v31, v26, 4, s41")
    a("s_waitcnt lgkmcnt(0)")
    a("s_lshl_b32 s40, s25, 4")
    a("s_lshr_b32 s29, s29, s40")
    a("s_lshl_b32 s29, s29, 16")
    a(f"v_mov_b32 v8, {LOG2E}")
    a("v_mul_f32 v9, s29, v8")
    a("v_exp_f32 v9, v9")
    a("s_nop 0")
    rbf(a, 9, 9)
    a("s_waitcnt vmcnt(0)")
    a("v_lshlrev_b32 v4, 16, v4")
    a("v_lshlrev_b32 v5, 16, v5")
    a("v_lshlrev_b32 v6, 16, v6")
    a("v_lshlrev_b32 v7, 16, v7")
    a("v_mul_f32 v4, v4, v8")
    a("v_exp_f32 v4, v4")
    a("v_mul_f32 v13, v5, v9")
    a("v_mul_f32 v14, v6, v9")
    rbf(a, 4, 4)
    a("v_mul_f32 v15, v7, v9")
    a("v_mul_f32 v12, v4, v9")
    a(f"v_mul_f32 v13, {INV2PI}, v13")
    a("v_add_f32 v14, v14, v14")
    a("v_add_f32 v15, v15, v15")
    a("v_mul_f32 v12, v12, v8")
    a("v_mov_b32 v10, v14")
    a("v_sub_f32 v12, 0, v12")
    a("ds_write_b128 v20, v[12:15]")
    for ctl in ("row_shr:1", "row_shr:2", "row_shr:4", "row_shr:8", "row_bcast:15 row_mask:0xa", "row_bcast:31 row_mask:0xc"):
        a("s_nop 1")
        a(f"v_add_f32_dpp v10, v10, v10 {ctl}")
    a("s_waitcnt lgkmcnt(0)")
    stamp(a, 1)
    R = [[32 + 4 * u for u in range(4)], [48 + 4 * u for u in range(4)]]
    PA = [64 + 2 * u for u in range(4)]
    PB = [72 + 2 * u for u in range(4)]
    TT = [80 + 2 * u for u in range(4)]
    QF = [88 + 4 * e for e in range(4)]
    GF = [104, 108]
    DD = [112 + 4 * e for e in range(4)]
    CPK = [128 + u for u in range(4)]
    MAG = [132 + 2 * u for u in range(4)]
    for u in range(4): a(f"ds_read_b128 v[{R[0][u]}:{R[0][u]+3}], v17 offset:{u*16}")
    for ks in range(4):
        Rc = R[ks & 1]
        if ks + 1 < 4:
            for u in range(4):
                a(f"ds_read_b128 v[{R[(ks+1)&1][u]}:{R[(ks+1)&1][u]+3}], v17 offset:{(ks+1)*256+u*16}")
            a("s_waitcnt lgkmcnt(4)")
        else:
            a("s_waitcnt lgkmcnt(0)")
        for u in range(4): a(f"v_mul_f32 v{TT[u]}, v{Rc[u]}, v19")
        for u in range(4): a(f"v_mul_f32 v{TT[u]+1}, v{Rc[u]+1}, v19")
        for u in range(4): a(f"v_exp_f32 v{MAG[u]}, v{TT[u]}")
        for u in range(4): a(f"v_fract_f32 v{TT[u]+1}, v{TT[u]+1}")
        for u in range(4): a(f"v_cvt_pk_bf16_f32 v{CPK[u]}, v{Rc[u]+2}, -v{Rc[u]+3}")
        for u in range(4): a(f"v_cos_f32 v{PB[u]}, v{TT[u]+1}")
        for u in range(4): a(f"v_sin_f32 v{PB[u]+1}, v{TT[u]+1}")
        a("s_nop 0")
        for u in range(4):
            a(f"v_pk_mul_f32 v[{PA[u]}:{PA[u]+1}], v[{PB[u]}:{PB[u]+1}], v[{MAG[u]}:{MAG[u]+1}] op_sel:[0,0] op_sel_hi:[1,0]")
        cur, oth = PA, PB
        for e in range(4):
            for u in range(4): a(f"v_cvt_pk_bf16_f32 v{QF[e]+u}, v{cur[u]}, v{cur[u]+1}")
            sq = [csq(a, oth[u], cur[u], TT[u]) for u in range(4)]
            for u in range(4): a(sq[u][0])
            for u in range(4): a(sq[u][1])
            cur, oth = oth, cur
        for e in range(4):
            g = GF[e & 1]
            cm = [cmulconj(a, oth[u], cur[u], Rc[u] + 2, TT[u]) for u in range(4)]
            for u in range(4): a(cm[u][0])
            for u in range(4): a(cm[u][1])
            for u in range(4): a(f"v_cvt_pk_bf16_f32 v{g+u}, v{oth[u]}, v{oth[u]+1}")
            if e == 0:
                for u in range(4): a(f"v_cndmask_b32 v{g+u}, v{g+u}, v{CPK[u]}, s[32:33]")
            if e < 3:
                sq = [csq(a, oth[u], cur[u], TT[u]) for u in range(4)]
                for u in range(4): a(sq[u][0])
                a(f"v_mfma_f32_16x16x32_bf16 v[{DD[e]}:{DD[e]+3}], v[{QF[e]}:{QF[e]+3}], v[{g}:{g+3}], v[{DD[e]}:{DD[e]+3}]")
                for u in range(4): a(sq[u][1])
                cur, oth = oth, cur
            else:
                a("s_nop 1")
                a(f"v_mfma_f32_16x16x32_bf16 v[{DD[e]}:{DD[e]+3}], v[{QF[e]}:{QF[e]+3}], v[{g}:{g+3}], v[{DD[e]}:{DD[e]+3}]")
    stamp(a, 2)
    K0P = KG_T16 + 2 * 1344 + 16
    a("v_readlane_b32 s40, v10, 63")
    a(f"s_lshl_b32 s41, s24, 2")
    a(f"s_add_u32 s41, s41, {K0P}")
    a("v_mov_b32 v11, s41")
    a("v_mov_b32 v10, s40")
    a("s_nop 1")
    for e in range(4): a(f"ds_write_b128 v22, v[{DD[e]}:{DD[e]+3}] offset:{e*1024}")
    a("ds_write_b32 v11, v10")
    a("s_lshl_b32 s57, s25, 2")
    a(f"s_add_u32 s41, s57, {LF}")
    wsync(a, "s41", 2, 2, 40)
    a("ds_read_b128 v[32:35], v23")
    a("ds_read_b128 v[36:39], v23 offset:4096")
    a("ds_read_b128 v[40:43], v23 offset:1024")
    a("ds_read_b128 v[44:47], v23 offset:5120")
    a(f"s_lshl_b32 s41, s25, 3")
    a(f"s_add_u32 s41, s41, {K0P}")
    a("v_mov_b32 v11, s41")
    a("ds_read_b64 v[8:9], v11")
    a("s_waitcnt lgkmcnt(0)")
    for r in range(4): a(f"v_add_f32 v{32+r}, v{32+r}, v{36+r}")
    for r in range(4): a(f"v_add_f32 v{40+r}, v{40+r}, v{44+r}")
    a("v_add_f32 v8, v8, v9")
    a("v_cvt_pk_bf16_f32 v32, v32, v33")
    a("v_cvt_pk_bf16_f32 v33, v34, v35")
    a("v_cvt_pk_bf16_f32 v40, v40, v41")
    a("v_cvt_pk_bf16_f32 v41, v42, v43")
    a("v_cvt_pk_bf16_f32 v8, v8, v8")
    a("s_sub_u32 s41, s39, 2")
    a("v_mov_b32 v11, s41")
    a("s_mov_b64 exec, s[36:37]")
    a("ds_write_b64 v24, v[32:33]")
    a("s_mov_b64 exec, s[34:35]")
    a("ds_write_b64 v24, v[40:41] offset:256")
    a("s_mov_b64 exec, -1")
    a("ds_write_b16 v11, v8")
    a(f"s_add_u32 s41, s57, {LF + 8}")
    wsync(a, "s41", 2, 2, 40)
    for t in range(16):
        a(f"ds_read_u16 v{76+t}, v{GA+t}")
        if t == 7: a("v_mov_b32 v72, 0\nv_mov_b32 v73, 0\nv_mov_b32 v74, 0\nv_mov_b32 v75, 0")
    a("s_waitcnt lgkmcnt(8)")
    for p in range(4): a(f"v_lshl_or_b32 v{64+p}, v{77+2*p}, 16, v{76+2*p}")
    a("ds_write_b128 v29, v[64:67]")
    a("s_waitcnt lgkmcnt(1)")
    for p in range(4): a(f"v_lshl_or_b32 v{68+p}, v{85+2*p}, 16, v{84+2*p}")
    a("ds_write_b128 v29, v[68:71] offset:2048")
    a("v_cmp_gt_u32 vcc, 4, v26")
    a("s_and_saveexec_b64 s[42:43], vcc")
    a("ds_write_b128 v29, v[72:75] offset:4096")
    a("s_mov_b64 exec, s[42:43]")
    a(f"s_add_u32 s41, s57, {LF + 16}")
    wsync(a, "s41", 2, 2, 40)
    a("v_subrev_u32 v33, 2048, v30")
    a("ds_read_b128 v[36:39], v30")
    a("ds_read_b128 v[40:43], v30 offset:16")
    a("ds_read_b128 v[44:47], v33")
    a("ds_read_b128 v[48:51], v33 offset:16")
    for c in range(2):
        W = 36 + 8 * c
        a(f"s_waitcnt lgkmcnt({2 if c == 0 else 8})")
        V = 60
        for j in range(7): a(f"v_alignbit_b32 v{V+j}, v{W+j+1}, v{W+j}, 16")
        for j in range(1, 7): a(f"v_alignbit_b32 v{68+j-1}, v{W+j+1}, v{W+j}, 16")
        for j in range(1, 7): a(f"v_mov_b32 v{76+j-1}, v{W+j}")
        off = c * 2048
        a(f"ds_write_b128 v31, v[{W}:{W+3}] offset:{off + 7*CS}")
        a(f"ds_write_b128 v31, v[{W+2}:{W+5}] offset:{off + 3*CS}")
        a(f"ds_write_b128 v31, v[{V}:{V+3}] offset:{off + 6*CS}")
        a(f"ds_write_b128 v31, v[{V+2}:{V+5}] offset:{off + 2*CS}")
        a(f"ds_write_b128 v31, v[68:71] offset:{off + 4*CS}")
        a(f"ds_write_b128 v31, v[70:73] offset:{off + 0*CS}")
        a(f"ds_write_b128 v31, v[76:79] offset:{off + 5*CS}")
        a(f"ds_write_b128 v31, v[78:81] offset:{off + 1*CS}")
    stamp(a, 3)
    a("s_lshl_b32 s28, s62, 12")
    a(f"s_add_u32 s28, s28, {XT}") if XT else None
    a("v_lshl_add_u32 v160, v0, 4, s28")
    a("v_add_u32 v161, 4096, v160")
    a("v_lshlrev_b32 v162, 5, v0")
    a(f"v_add_u32 v162, {STAT1}, v162")
    a(f"v_add_u32 v163, 8192, v162")
    a("v_and_b32 v50, 31, v1")
    a("v_lshrrev_b32 v51, 5, v1")
    a("s_lshl_b32 s30, s25, 12")
    a("s_add_u32 s30, s30, s28")
    a("s_lshl_b32 s31, s26, 11")
    a("s_add_u32 s30, s30, s31")
    a("v_lshlrev_b32 v164, 6, v50")
    a("v_lshl_add_u32 v164, v51, 3, v164")
    a("v_add_u32 v164, s30, v164")
    a("v_and_b32 v165, 3, v1")
    a("v_mul_u32_u24 v165, 12288, v165")
    a("v_bfe_u32 v54, v1, 2, 1")
    a("v_lshl_add_u32 v165, v54, 2, v165")
    a("v_lshrrev_b32 v54, 3, v1")
    a("v_min_u32 v54, 2, v54")
    a("v_lshl_add_u32 v165, v54, 11, v165")
    a("s_lshl_b32 s32, s62, 2")
    a(f"s_add_u32 s32, s32, {MODP}")
    a("v_add_u32 v165, s32, v165")
    a("v_and_b32 v54, 7, v50")
    a("v_lshrrev_b32 v55, 3, v50")
    a(f"v_mul_u32_u24 v2, {CS}, v54")
    a("v_sub_u32 v55, v55, v51")
    a("v_add_u32 v55, 1, v55")
    a("v_lshl_add_u32 v2, v55, 4, v2")
    a(f"s_mul_i32 s38, s25, {KC_CH}")
    a("v_add_u32 v2, s38, v2")
    a("v_mul_u32_u24 v3, 80, v50")
    a("v_lshl_add_u32 v3, v51, 4, v3")
    a(f"s_mul_i32 s38, s25, {U_CH}")
    a(f"s_add_u32 s38, s38, {UB}")
    a("v_add_u32 v3, s38, v3")
    a("v_lshrrev_b32 v166, 2, v0")
    a("v_mul_u32_u24 v166, 80, v166")
    a("v_and_b32 v63, 3, v0")
    a("v_lshl_add_u32 v166, v63, 4, v166")
    a(f"v_add_u32 v166, {UB + 31*80}, v166")
    a("s_lshl_b32 s38, s24, 12")
    a(f"s_add_u32 s38, s38, {SCR}")
    a("v_lshl_add_u32 v4, v1, 4, s38")
    a("s_xor_b32 s39, s24, 1")
    a("s_lshl_b32 s38, s39, 12")
    a(f"s_add_u32 s38, s38, {SCR}")
    a("v_lshl_add_u32 v5, v1, 4, s38")
    a("s_lshl_b32 s38, s24, 2")
    a(f"s_add_u32 s38, s38, {LF + 32}")
    a("v_mov_b32 v7, s38")
    a("s_lshl_b32 s38, s39, 2")
    a(f"s_add_u32 s38, s38, {LF + 32}")
    a("v_mov_b32 v8, s38")
    a("v_mul_u32_u24 v6, 80, v50")
    a("v_lshl_add_u32 v6, v51, 3, v6")
    a(f"s_mul_i32 s38, s25, {U_CH}")
    a(f"s_mul_i32 s39, s26, {32*80}")
    a("s_add_u32 s38, s38, s39")
    a(f"s_add_u32 s38, s38, {UB + 31*80}")
    a("v_add_u32 v6, s38, v6")
    a("s_lshl_b32 s38, s27, 7")
    a("s_lshl_b32 s39, s26, 20")
    a("s_add_u32 s38, s38, s39")
    a(f"s_add_u32 s38, s38, {X2T}")
    a("v_lshrrev_b32 v9, 3, v1")
    a("v_lshlrev_b32 v9, 16, v9")
    a("v_and_b32 v63, 7, v1")
    a("v_lshl_add_u32 v9, v63, 4, v9")
    a("v_add_u32 v9, s38, v9")
    a("v_add_u32 v12, 0x80000, v9")
    a(f"s_mul_i32 s38, s25, {KC_CH}")
    a("s_mul_i32 s39, s26, 2560")
    a("s_add_u32 s38, s38, s39")
    a("v_mul_u32_u24 v10, 80, v50")
    a("v_lshl_add_u32 v10, v51, 3, v10")
    a("v_add_u32 v10, s38, v10")
    a("v_lshrrev_b32 v11, 2, v1")
    a("v_mul_u32_u24 v11, 80, v11")
    a("v_and_b32 v63, 3, v1")
    a("v_lshl_add_u32 v11, v63, 4, v11")
    a("v_add_u32 v11, s38, v11")
    for r in range(32, 64): a(f"v_mov_b32 v{r}, 0")
    a("s_lshl_b32 s38, s25, 4")
    a("s_lshr_b32 s36, s56, s38")
    a("s_lshl_b32 s36, s36, 16")
    a("s_waitcnt lgkmcnt(0)")
    a("s_barrier")
    stamp(a, 4)
    XR, SR = 168, 176
    a("global_load_dword v13, v165, s[14:15] sc1")
    a(f"global_load_dwordx4 v[{XR}:{XR+3}], v160, s[14:15] sc1")
    a(f"global_load_dwordx4 v[{XR+4}:{XR+7}], v161, s[14:15] sc1")
    a(f"global_load_dwordx4 v[{SR}:{SR+3}], v162, s[14:15] sc1")
    a(f"global_load_dwordx4 v[{SR+4}:{SR+7}], v162, s[14:15] offset:16 sc1")
    a(f"global_load_dwordx4 v[{SR+8}:{SR+11}], v163, s[14:15] sc1")
    a(f"global_load_dwordx4 v[{SR+12}:{SR+15}], v163, s[14:15] offset:16 sc1")
    for i in range(4):
        a(f"global_load_dwordx2 v[{144+2*i}:{145+2*i}], v164, s[14:15] offset:{16*i} sc1")
    a("s_waitcnt vmcnt(10)")
    a("v_add_f32_dpp v13, v13, v13 quad_perm:[1,0,3,2] row_mask:0xf bank_mask:0xf")
    a("s_nop 1")
    a("v_add_f32_dpp v13, v13, v13 quad_perm:[2,3,0,1] row_mask:0xf bank_mask:0xf")
    rbf(a, 13, 13)
    a("v_add_f32 v14, 1.0, v13")
    rbf(a, 14, 14)
    a("v_readlane_b32 s59, v13, 0")
    a("v_readlane_b32 s61, v13, 4")
    a("v_readlane_b32 s54, v13, 16")
    a("v_readlane_b32 s55, v13, 20")
    a("v_readlane_b32 s58, v14, 8")
    a("v_readlane_b32 s60, v14, 12")
    a("s_cmp_eq_u32 s25, 0")
    a("s_cselect_b32 s37, s54, s55")
    a("s_waitcnt vmcnt(4)")
    for c in range(2):
        X = XR + 4 * c
        for q in range(4):
            a(f"v_lshlrev_b32 v{64+2*q}, 16, v{X+q}")
            a(f"v_and_b32 v{65+2*q}, 0xffff0000, v{X+q}")
        for q in range(4):
            a(f"v_pk_fma_f32 v[{64+2*q}:{65+2*q}], v[{64+2*q}:{65+2*q}], v[{SR+2*q}:{SR+1+2*q}], v[{SR+8+2*q}:{SR+9+2*q}]")
        for q in range(4):
            a(f"v_pk_fma_f32 v[{64+2*q}:{65+2*q}], v[{64+2*q}:{65+2*q}], s[{58+2*c}:{59+2*c}], s[{58+2*c}:{59+2*c}] op_sel:[0,0,1] op_sel_hi:[1,0,1]")
        for q in range(4):
            a(f"v_cvt_pk_bf16_f32 v{72+4*c+q}, v{64+2*q}, v{65+2*q}")
        a(f"ds_write_b128 v166, v[{72+4*c}:{75+4*c}] offset:{c*U_CH}")
    a("s_waitcnt lgkmcnt(0)")
    a("s_barrier")
    stamp(a, 5)
    a("s_cmp_eq_u32 s26, 0")
    a("s_cbranch_scc0 K2_B")
    conv_path(a, 0, "A")
    a("K2_B:   ; LINT-RESET")
    conv_path(a, 1, "B")
    a("K2_SIDE:   ; LINT-RESET")
    a("s_barrier")
    a("s_cmp_eq_u32 s2, 255")
    a("s_cbranch_scc0 K12_noinit")
    a("s_cmp_eq_u32 s25, 1")
    a("s_cbranch_scc0 K12_noinit")
    a("v_mov_b32 v64, 0\nv_mov_b32 v65, 0\nv_mov_b32 v66, 0\nv_mov_b32 v67, 0")
    a("v_lshlrev_b32 v68, 4, v1")
    a(f"v_add_u32 v68, {FLAGS_OFF}, v68")
    for q in range(16):
        a(f"global_store_dwordx4 v68, v[64:67], s[14:15] sc1")
        if q < 15: a("v_add_u32 v68, 1024, v68")
    a("s_waitcnt vmcnt(0)")
    a("v_mov_b32 v68, 0")
    a("v_mov_b32 v69, 1")
    a("s_mov_b64 exec, 1")
    a("global_store_dword v68, v69, s[18:19] sc1")
    a("s_mov_b64 exec, -1")
    a("s_waitcnt vmcnt(0)")
    a("K12_noinit:   ; LINT-RESET")
    TL = SIDE + SIDE_SZ
    a("v_mul_u32_u24 v30, 160, v2")
    a("v_lshl_add_u32 v30, v3, 4, v30")
    a(f"v_add_u32 v30, {TL}, v30")
    a("s_cmp_ge_u32 s2, 192")
    a("s_cbranch_scc1 K1_w0")
    a("s_waitcnt vmcnt(10)")
    a("s_branch K1_w1")
    a("K1_w0:")
    a("s_waitcnt vmcnt(2)")
    a("K1_w1:   ; LINT-RESET")
    stamp(a, 1)
    a("ds_write_b128 v30, v[8:11]")
    a("ds_write_b128 v30, v[12:15] offset:5120")
    wsync(a, LF + 48, 4, 2, 40)
    a("v_lshrrev_b32 v2, 4, v1")
    a("v_bfe_u32 v3, v1, 2, 2")
    a("v_and_b32 v4, 3, v1")
    a("v_lshl_add_u32 v5, v2, 3, v3")
    a("v_mul_u32_u24 v5, 160, v5")
    a("v_lshl_add_u32 v5, v4, 3, v5")
    a("s_lshl_b32 s31, s25, 5")
    a(f"s_add_u32 s31, s31, {TL}")
    a("v_add_u32 v5, s31, v5")
    a("ds_read_b64_tr_b16 v[8:9], v5")
    a("ds_read_b64_tr_b16 v[10:11], v5 offset:640")
    a(f"ds_read_b64_tr_b16 v[12:13], v5 offset:{32*160}")
    a(f"ds_read_b64_tr_b16 v[14:15], v5 offset:{36*160}")
    a("v_and_b32 v6, 15, v1")
    a("v_lshlrev_b32 v6, 12, v6")
    a("v_lshl_add_u32 v6, v2, 4, v6")
    a("s_lshl_b32 s31, s27, 18")
    a("s_lshl_b32 s32, s25, 16")
    a("s_add_u32 s31, s31, s32")
    a("s_lshl_b32 s32, s26, 7")
    a("s_add_u32 s31, s31, s32")
    a(f"s_add_u32 s31, s31, {XT}") if XT else None
    a("v_add_u32 v6, s31, v6")
    a("s_waitcnt lgkmcnt(2)")
    a("global_store_dwordx4 v6, v[8:11], s[14:15] sc1")
    a("s_waitcnt lgkmcnt(0)")
    a("global_store_dwordx4 v6, v[12:15], s[14:15] offset:64 sc1")
    a("s_cmp_ge_u32 s2, 192")
    a("s_cbranch_scc1 K1_w2")
    a("s_waitcnt vmcnt(10)")
    a("s_branch K1_w3")
    a("K1_w2:")
    a("s_waitcnt vmcnt(2)")
    a("K1_w3:   ; LINT-RESET")
    a("v_mov_b32 v31, 0x3f803f80")
    a("v_mov_b32 v52, 0\nv_mov_b32 v53, 0\nv_mov_b32 v54, 0\nv_mov_b32 v55, 0")
    for k in range(4):
        a(f"v_dot2_f32_bf16 v52, v{16+k}, v31, v52")
        a(f"v_dot2_f32_bf16 v53, v{16+k}, v{16+k}, v53")
        a(f"v_dot2_f32_bf16 v54, v{20+k}, v31, v54")
        a(f"v_dot2_f32_bf16 v55, v{20+k}, v{20+k}, v55")
    a("s_nop 1")
    for ctl in ("row_shr:1", "row_shr:2", "row_shr:4", "row_shr:8", "row_bcast:15 row_mask:0xa", "row_bcast:31 row_mask:0xc"):
        for r in range(52, 56): a(f"v_add_f32_dpp v{r}, v{r}, v{r} {ctl}")
    a("s_nop 1")
    for k, r in enumerate(range(52, 56)): a(f"v_readlane_b32 s{36+k}, v{r}, 63")
    a("s_nop 1")
    a("v_cmp_eq_u32 vcc, 0, v1")
    a("v_mov_b32 v56, s38")
    a("v_mov_b32 v57, s39")
    a("v_mov_b32 v58, s36")
    a("v_mov_b32 v59, s37")
    a("v_cndmask_b32 v56, v56, v58, vcc")
    a("v_cndmask_b32 v57, v57, v59, vcc")
    a("v_mul_f32 v56, 0x3b000000, v56")
    a("v_mul_f32 v57, 0x3b000000, v57")
    a("v_fma_f32 v57, -v56, v56, v57")
    a("v_max_f32 v57, 0, v57")
    rbf(a, 56, 56); rbf(a, 57, 57)
    a("v_add_f32 v57, 0x3727c5ac, v57")
    rbf(a, 57, 57)
    a("v_sqrt_f32 v57, v57")
    a("s_nop 0")
    rbf(a, 57, 57)
    a("v_rcp_f32 v58, v57")
    a("s_nop 0")
    a("v_mul_f32 v59, v56, v58")
    a("v_sub_f32 v59, 0, v59")
    a("s_lshl_b32 s31, s30, 2")
    a(f"s_add_u32 s31, s31, {STAT1}")
    a("v_lshl_add_u32 v60, v1, 2, s31")
    a("v_add_u32 v61, 8192, v60")
    a("v_cmp_gt_u32 vcc, 2, v1")
    a("s_and_saveexec_b64 s[42:43], vcc")
    a("global_store_dword v60, v58, s[14:15] sc1")
    a("global_store_dword v61, v59, s[14:15] sc1")
    a("s_mov_b64 exec, s[42:43]")
    a("s_cmp_ge_u32 s2, 192")
    a("s_cbranch_scc1 K1_nomodc")
    a("s_waitcnt vmcnt(4)")
    for k in range(4): a(f"v_lshlrev_b32 v{48+k}, 16, v{48+k}")
    for k in range(4): a(f"v_mul_f32 v{52+k}, 0xbfb8aa3b, v{48+k}")
    for k in range(4): a(f"v_exp_f32 v{52+k}, v{52+k}")
    a("s_nop 0")
    for k in range(4): a(f"v_add_f32 v{52+k}, 1.0, v{52+k}")
    for k in range(4): a(f"v_rcp_f32 v{56+k}, v{52+k}")
    a("s_nop 0")
    for k in range(4): a(f"v_mul_f32 v{60+k}, v{48+k}, v{56+k}")
    for k in range(4): a(f"v_fma_f32 v{48+k}, -v{60+k}, v{52+k}, v{48+k}")
    for k in range(4): a(f"v_fma_f32 v{48+k}, v{48+k}, v{56+k}, v{60+k}")
    for k in range(4): rbf(a, 48 + k, 48 + k)
    for k in range(4):
        for p in range(4):
            w = 32 + 4 * k + p
            a(f"v_lshlrev_b32 v62, 16, v{w}")
            a(f"v_and_b32 v63, 0xffff0000, v{w}")
            if k == 0:
                a(f"v_mul_f32 v{64+2*p}, v62, v48")
                a(f"v_mul_f32 v{65+2*p}, v63, v48")
            else:
                a(f"v_fmac_f32 v{64+2*p}, v62, v{48+k}")
                a(f"v_fmac_f32 v{65+2*p}, v63, v{48+k}")
    MODL = SIDE
    a("v_subrev_u32 v61, 256, v0")
    a("v_lshlrev_b32 v61, 5, v61")
    a(f"v_add_u32 v61, {MODL}, v61")
    a("ds_write_b128 v61, v[64:67]")
    a("ds_write_b128 v61, v[68:71] offset:16")
    wsync(a, LF + 24, 4, 2, 40)
    a("s_cmp_lg_u32 s25, 0")
    a("s_cbranch_scc1 K1_nomodc")
    a("v_lshlrev_b32 v4, 2, v1")
    a(f"v_add_u32 v4, {MODL}, v4")
    for i in range(32):
        a(f"ds_read_b32 v{16+i}, v4 offset:{256*i}")
        if i == 14: a("s_waitcnt lgkmcnt(7)")
    a("s_waitcnt lgkmcnt(0)")
    for st in (16, 8, 4, 2, 1):
        for i in range(st): a(f"v_add_f32 v{16+i}, v{16+i}, v{16+st+i}")
    a("s_mul_i32 s31, s34, 12288")
    a("s_lshl_b32 s32, s33, 8")
    a("s_add_u32 s31, s31, s32")
    a(f"s_add_u32 s31, s31, {MODP}")
    a("v_lshl_add_u32 v5, v1, 2, s31")
    a("global_store_dword v5, v16, s[14:15] sc1")
    a("K1_nomodc:   ; LINT-RESET")
    stamp(a, 2)
    a("v_mov_b32 v74, 0")
    a("global_load_dword v75, v74, s[18:19] sc1")
    a("s_waitcnt vmcnt(0)")
    a("v_readfirstlane_b32 s51, v75")
    a(f"v_mov_b32 v2, {LF + 28}")
    a("v_mov_b32 v3, 1")
    a("s_mov_b64 exec, 1")
    a("ds_add_u32 v2, v3")
    a("s_mov_b64 exec, -1")
    stamp(a, 3)
    a("s_lshl_b32 s26, s25, 8")
    a("s_add_u32 s26, s26, s2")
    a("s_mov_b32 s27, s57")
    a("v_lshrrev_b32 v2, 2, v1")
    a("v_and_b32 v3, 3, v1")
    a("v_lshrrev_b32 v4, 4, v1")
    a("v_bfe_u32 v5, v1, 2, 2")
    a("v_mul_u32_u24 v11, 80, v2")
    a("v_lshl_add_u32 v11, v3, 4, v11")
    a("v_add_u32 v11, s27, v11")
    a("v_lshl_add_u32 v12, v4, 2, v5")
    a("v_mul_u32_u24 v12, 80, v12")
    a("v_lshl_add_u32 v12, v3, 3, v12")
    a("v_add_u32 v12, s27, v12")
    a("s_cmp_ge_u32 s26, 348")
    a("s_cbranch_scc1 K12_noraw")
    a("s_cmp_ge_u32 s26, 172")
    a("s_cbranch_scc1 K12_rawW2")
    a("s_mul_i32 s28, s26, 1525")
    a("s_lshr_b32 s28, s28, 16")
    a("s_mul_i32 s29, s28, 43")
    a("s_sub_u32 s29, s26, s29")
    a("v_mul_u32_u24 v10, 2752, v2")
    a("v_lshl_add_u32 v10, v3, 4, v10")
    a(f"s_mul_i32 s53, s28, {128*2752}")
    a("s_lshl_b32 s30, s29, 6")
    a("s_add_u32 s53, s53, s30")
    a.srd(64, 48, 512 * 1376 * 2)
    for i in range(8):
        a(f"buffer_load_dwordx4 v[{32+4*i}:{35+4*i}], v10, s[64:67], s53 offen nt")
        if i < 7: a(f"s_add_u32 s53, s53, {16*2752}")
    a("s_branch K12_noraw")
    a("K12_rawW2:   ; LINT-RESET")
    a("s_sub_u32 s31, s26, 172")
    a("s_and_b32 s29, s31, 15")
    a("s_lshr_b32 s28, s31, 4")
    a("v_lshlrev_b32 v10, 10, v2")
    a("v_lshl_add_u32 v10, v3, 4, v10")
    a("s_lshl_b32 s30, s29, 6")
    a.srd(64, 12, 1376 * 512 * 2)
    for ks in range(4):
        a("s_lshl_b32 s31, s28, 2")
        a(f"s_add_u32 s31, s31, {ks}")
        a("s_mul_i32 s32, s31, 13")
        a("s_lshr_b32 s32, s32, 6")
        a("s_mul_i32 s33, s32, 5")
        a("s_sub_u32 s33, s31, s33")
        a("s_mul_i32 s32, s32, 11")
        a("s_min_u32 s32, s32, 76")
        a("s_lshl_b32 s33, s33, 1")
        a("s_add_u32 s32, s32, s33")
        a("s_add_u32 s33, s32, 1")
        a("s_sub_u32 s34, s31, 40")
        a("s_mul_i32 s34, s34, 22")
        a("s_add_u32 s35, s34, 21")
        a("s_add_u32 s34, s34, 10")
        a("s_cmp_lt_u32 s31, 40")
        a("s_cselect_b32 s32, s32, s34")
        a("s_cselect_b32 s33, s33, s35")
        for hf, sr in ((0, 32), (1, 33)):
            a(f"s_lshl_b32 s53, s{sr}, 14")
            a("s_add_u32 s53, s53, s30")
            i = 2 * ks + hf
            a(f"buffer_load_dwordx4 v[{32+4*i}:{35+4*i}], v10, s[64:67], s53 offen nt")
    a("K12_noraw:   ; LINT-RESET")
    a("s_cmp_lg_u32 s25, 0")
    a("s_cbranch_scc1 K12_gbx")
    wsync(a, LF + 28, 4, 70, 40, add=False)
    a("s_mov_b64 exec, 1")
    a("v_mov_b32 v70, 0")
    a("s_mov_b32 s52, 0x200000")
    a("s_cmp_eq_u32 s51, 1")
    a("s_cbranch_scc1 K12_rdyx")
    a("K12_rdy:")
    a("global_load_dword v71, v70, s[18:19] sc1")
    a("s_waitcnt vmcnt(0)")
    a("v_readfirstlane_b32 s40, v71")
    a("s_sub_u32 s52, s52, 1")
    a("s_cmp_eq_u32 s52, 0")
    a("s_cbranch_scc1 K12_gbdone")
    a("s_cmp_eq_u32 s40, 1")
    a("s_cbranch_scc0 K12_rdy")
    a("K12_rdyx:")
    a("s_and_b32 s40, s2, 15")
    a("s_lshl_b32 s40, s40, 8")
    a(f"s_add_u32 s40, s40, {GBAR}")
    a("v_mov_b32 v70, s40")
    a("v_mov_b32 v71, 1")
    a("global_atomic_add v71, v70, v71, s[14:15] sc0 sc1")
    a("s_waitcnt vmcnt(0)")
    a("v_readfirstlane_b32 s40, v71")
    a("s_cmp_eq_u32 s40, 15")
    a("s_cbranch_scc0 K12_poll")
    a(f"v_mov_b32 v70, {GBAR + 4096}")
    a("v_mov_b32 v71, 1")
    a("global_atomic_add v71, v70, v71, s[14:15] sc0 sc1")
    a("s_waitcnt vmcnt(0)")
    a("v_readfirstlane_b32 s40, v71")
    a("s_cmp_eq_u32 s40, 15")
    a("s_cbranch_scc0 K12_poll")
    a("s_mov_b64 exec, 0xff")
    a("v_lshlrev_b32 v70, 8, v1")
    a(f"v_add_u32 v70, {GBAR + 8192}, v70")
    a("v_mov_b32 v71, 1")
    a("global_store_dword v70, v71, s[14:15] sc1")
    a("s_mov_b64 exec, 1")
    a("K12_poll:")
    a("s_and_b32 s40, s2, 7")
    a("s_lshl_b32 s40, s40, 8")
    a(f"s_add_u32 s40, s40, {GBAR + 8192}")
    a("v_mov_b32 v70, s40")
    a("K12_poll2:")
    a("global_load_dword v71, v70, s[14:15] sc1")
    a("s_waitcnt vmcnt(0)")
    a("v_readfirstlane_b32 s40, v71")
    a("s_sub_u32 s52, s52, 1")
    a("s_cmp_eq_u32 s52, 0")
    a("s_cbranch_scc1 K12_gbdone")
    a("s_cmp_eq_u32 s40, 1")
    a("s_cbranch_scc0 K12_poll2")
    a("K12_gbdone:")
    a("s_mov_b64 exec, -1")
    a("K12_gbx:   ; LINT-RESET")
    a("s_setprio 0")
    a("s_barrier")
    stamp(a, 4)
    a("s_cmp_gt_u32 s26, 348")
    a("s_cbranch_scc1 K2_SIDE_IDLE")
    a("s_cmp_eq_u32 s26, 348")
    a("s_cbranch_scc1 K2_TAB")
    a("s_cmp_ge_u32 s26, 172")
    a("s_cbranch_scc1 K2_W2")
    a("s_lshl_b32 s31, s28, 9")
    a("v_lshl_add_u32 v13, v1, 3, s31")
    a(f"v_add_u32 v13, {MODP + 3*2048}, v13")
    for q in range(4):
        a(f"global_load_dwordx2 v[{64+4*q}:{65+4*q}], v13, s[14:15] sc1")
        a(f"global_load_dwordx2 v[{66+4*q}:{67+4*q}], v13, s[14:15] offset:2048 sc1")
        if q < 3: a("v_add_u32 v13, 12288, v13")
    a("s_waitcnt vmcnt(8)")
    for i in range(8): a(f"ds_write_b128 v11, v[{32+4*i}:{35+4*i}] offset:{16*80*i}")
    a("s_barrier")
    a("s_waitcnt vmcnt(0)")
    for r in range(4):
        a(f"v_add_f32 v{64+r}, v{64+r}, v{68+r}")
        a(f"v_add_f32 v{72+r}, v{72+r}, v{76+r}")
        a(f"v_add_f32 v{64+r}, v{64+r}, v{72+r}")
    for r in range(4): rbf(a, 64 + r, 64 + r)
    a("v_add_f32 v66, 1.0, v66")
    a("v_add_f32 v67, 1.0, v67")
    rbf(a, 66, 66); rbf(a, 67, 67)
    a("v_cvt_pk_bf16_f32 v64, v64, v65")
    a("v_lshl_add_u32 v15, v1, 3, s27")
    a("v_lshl_add_u32 v16, v1, 2, s27")
    a("ds_write_b64 v15, v[66:67] offset:10240")
    a("ds_write_b32 v16, v64 offset:10752")
    a("v_and_b32 v17, 15, v1")
    a("v_cmp_eq_u32 s[50:51], 0, v17")
    a("v_cmp_eq_u32 s[52:53], 1, v17")
    a("v_mov_b32 v18, 0")
    a("v_mov_b32 v19, 0x3f803f80")
    a("v_cndmask_b32 v18, v18, v19, s[50:51]")
    a("v_mov_b32 v19, 0")
    a("v_cndmask_b32 v19, v19, -1, s[52:53]")
    a("v_lshl_add_u32 v24, v4, 4, s27")
    a("v_lshl_add_u32 v25, v4, 3, s27")
    for r in range(96, 112): a(f"v_mov_b32 v{r}, 0")
    a("s_lshl_b32 s30, s29, 11")
    a(f"s_mul_i32 s31, s28, {4*87*1024}")
    a("s_add_u32 s30, s30, s31")
    a(f"s_add_u32 s30, s30, {W1F}")
    a("v_lshl_add_u32 v26, v1, 4, s30")
    a("s_waitcnt lgkmcnt(0)")
    for ks in range(4):
        a(f"ds_read_b128 v[32:35], v24 offset:{10240 + 128*ks}")
        a(f"ds_read_b128 v[36:39], v24 offset:{10240 + 128*ks + 64}")
        a(f"ds_read_b64 v[40:41], v25 offset:{10752 + 64*ks}")
        a(f"ds_read_b64 v[42:43], v25 offset:{10752 + 64*ks + 32}")
        for nt in range(2):
            for hf in range(2):
                a(f"ds_read_b64_tr_b16 v[{44+4*nt+2*hf}:{45+4*nt+2*hf}], v12 offset:{(32*ks+16*hf)*80 + 32*nt}")
        a("s_waitcnt lgkmcnt(4)")
        for q in range(4): a(f"v_and_or_b32 v{40+q}, v{40+q}, v19, v18")
        a("s_waitcnt lgkmcnt(0)")
        for nt in range(2):
            R = 44 + 4 * nt
            for q in range(4):
                a(f"v_lshlrev_b32 v{52+2*q}, 16, v{R+q}")
                a(f"v_and_b32 v{53+2*q}, 0xffff0000, v{R+q}")
            a(f"v_mfma_f32_16x16x32_bf16 v[{96+4*nt}:{99+4*nt}], v[{R}:{R+3}], v[40:43], v[{96+4*nt}:{99+4*nt}]")
            for q in range(4):
                a(f"v_pk_mul_f32 v[{52+2*q}:{53+2*q}], v[{52+2*q}:{53+2*q}], v[{32+2*q}:{33+2*q}]")
            S = 60 + 4 * nt
            for q in range(4):
                a(f"v_cvt_pk_bf16_f32 v{S+q}, v{52+2*q}, v{53+2*q}")
            a(f"global_store_dwordx4 v26, v[{S}:{S+3}], s[14:15] offset:{1024*nt}" + SC1)
            if nt == 1: a(f"v_add_u32 v26, {87*1024}, v26")
            a("s_nop 0")
            a(f"v_mfma_f32_16x16x32_bf16 v[{104+4*nt}:{107+4*nt}], v[{S}:{S+3}], v[40:43], v[{104+4*nt}:{107+4*nt}]")
    a(f"s_mul_i32 s30, s28, {3*5504}")
    a("s_lshl_b32 s31, s29, 7")
    a("s_add_u32 s30, s30, s31")
    a(f"s_add_u32 s30, s30, {SVP}")
    a("v_lshl_add_u32 v28, v4, 4, s30")
    a("v_add_u32 v29, 5504, v28")
    a("v_add_u32 v30, 5504, v29")
    a("s_nop 7")
    a("s_mov_b64 s[42:43], exec")
    a("s_mov_b64 exec, s[50:51]")
    for nt in range(2):
        a(f"global_store_dwordx4 v28, v[{104+4*nt}:{107+4*nt}], s[14:15] offset:{64*nt}" + SC1)
        a(f"global_store_dwordx4 v30, v[{96+4*nt}:{99+4*nt}], s[14:15] offset:{64*nt}" + SC1)
    a("s_mov_b64 exec, s[52:53]")
    for nt in range(2):
        a(f"global_store_dwordx4 v29, v[{96+4*nt}:{99+4*nt}], s[14:15] offset:{64*nt}" + SC1)
    a("s_mov_b64 exec, s[42:43]")
    a("s_branch K2_END")
    a("K2_W2:   ; LINT-RESET")
    a("s_waitcnt vmcnt(0)")
    for i in range(8): a(f"ds_write_b128 v11, v[{32+4*i}:{35+4*i}] offset:{16*80*i}")
    a("s_barrier")
    a("s_lshr_b32 s30, s29, 1")
    a("s_mul_i32 s30, s30, 43")
    a("s_lshl_b32 s31, s28, 2")
    a("s_add_u32 s30, s30, s31")
    a("s_lshl_b32 s30, s30, 12")
    a("s_and_b32 s31, s29, 1")
    a("s_lshl_b32 s31, s31, 11")
    a("s_add_u32 s30, s30, s31")
    a(f"s_add_u32 s30, s30, {W2F}")
    a("v_lshl_add_u32 v26, v1, 4, s30")
    a("s_waitcnt lgkmcnt(0)")
    for ks in range(4):
        if ks == 3:
            a("s_cmp_eq_u32 s28, 10")
            a("s_cbranch_scc1 K2_END")
        for nt in range(2):
            for hf in range(2):
                a(f"ds_read_b64_tr_b16 v[{44+4*nt+2*hf}:{45+4*nt+2*hf}], v12 offset:{(32*ks+16*hf)*80 + 32*nt}")
        a("s_waitcnt lgkmcnt(2)")
        a(f"global_store_dwordx4 v26, v[44:47], s[14:15]" + SC1)
        a("s_waitcnt lgkmcnt(0)")
        a(f"global_store_dwordx4 v26, v[48:51], s[14:15] offset:1024" + SC1)
        a("v_add_u32 v26, 4096, v26")
    a("s_branch K2_END")
    a("K2_TAB:   ; LINT-RESET")
    a("v_lshlrev_b32 v2, 5, v1")
    a(f"v_add_u32 v2, {MODP + 3*2048}, v2")
    a("v_add_u32 v3, 4096, v2")
    for q in range(4):
        for k in range(3):
            r = 112 + 24 * q + 8 * k
            a(f"global_load_dwordx4 v[{r}:{r+3}], v2, s[14:15] offset:{2048*k if k < 2 else 0} sc1" if k < 2 else f"global_load_dwordx4 v[{r}:{r+3}], v3, s[14:15] sc1")
            a(f"global_load_dwordx4 v[{r+4}:{r+7}], v2, s[14:15] offset:{2048*k+16} sc1" if k < 2 else f"global_load_dwordx4 v[{r+4}:{r+7}], v3, s[14:15] offset:16 sc1")
        if q < 3:
            a("v_add_u32 v2, 12288, v2")
            a("v_add_u32 v3, 12288, v3")
    a("s_barrier")
    a("s_waitcnt vmcnt(0)")
    for j in range(24):
        a(f"v_add_f32 v{112+j}, v{112+j}, v{136+j}")
        a(f"v_add_f32 v{160+j}, v{160+j}, v{184+j}")
        a(f"v_add_f32 v{112+j}, v{112+j}, v{160+j}")
    for j in range(24): rbf(a, 112 + j, 112 + j)
    for j in range(8):
        a(f"v_mov_b32 v{32+j}, v{112+j}")
        a(f"v_mov_b32 v{40+j}, v{120+j}")
    a("v_lshlrev_b32 v3, 5, v1")
    a(f"v_add_u32 v3, {GBF}, v3")
    a("global_store_dwordx4 v3, v[128:131], s[14:15] sc1")
    a("global_store_dwordx4 v3, v[132:135], s[14:15] offset:16 sc1")
    for j in range(8): a(f"v_add_f32 v{40+j}, 1.0, v{40+j}")
    for j in range(8): rbf(a, 40 + j, 40 + j)
    for j in range(8): a(f"v_mul_f32 v{48+j}, v{40+j}, v{40+j}")
    for j in range(8): a(f"v_mul_f32 v{56+j}, v{40+j}, v{32+j}")
    a("v_lshlrev_b32 v3, 5, v1")
    a(f"v_add_u32 v3, {G2F}, v3")
    a("global_store_dwordx4 v3, v[48:51], s[14:15] sc1")
    a("global_store_dwordx4 v3, v[52:55], s[14:15] offset:16 sc1")
    for k, base in enumerate((40, 48, 56, 32)):
        a(f"v_add_f32 v{100+k}, v{base}, v{base+1}")
        for j in range(2, 8): a(f"v_add_f32 v{100+k}, v{100+k}, v{base+j}")
    a("v_mul_f32 v104, v32, v32")
    for j in range(1, 8): a(f"v_fmac_f32 v104, v{32+j}, v{32+j}")
    a("v_lshl_add_u32 v4, v1, 4, s27")
    a("v_mov_b32 v64, 0x3f803f80\nv_mov_b32 v65, 0x3f803f80\nv_mov_b32 v66, 0x3f803f80\nv_mov_b32 v67, 0x3f803f80")
    a("ds_write_b128 v4, v[64:67]")
    for q in range(4): a(f"v_cvt_pk_bf16_f32 v{68+q}, v{40+2*q}, v{41+2*q}")
    a("ds_write_b128 v4, v[68:71] offset:1024")
    for (src, row) in ((48, 2), (56, 4)):
        for q in range(4): a(f"v_cvt_pk_bf16_f32 v{72+q}, v{src+2*q}, v{src+2*q+1}")
        a(f"ds_write_b128 v4, v[72:75] offset:{1024*row}")
        for q in range(4):
            a(f"v_lshlrev_b32 v{80+2*q}, 16, v{72+q}")
            a(f"v_and_b32 v{81+2*q}, 0xffff0000, v{72+q}")
        for j in range(8): a(f"v_sub_f32 v{80+j}, v{src+j}, v{80+j}")
        for q in range(4): a(f"v_cvt_pk_bf16_f32 v{76+q}, v{80+2*q}, v{81+2*q}")
        a(f"ds_write_b128 v4, v[76:79] offset:{1024*(row+1)}")
    a("s_nop 1")
    for ctl in ("row_shr:1", "row_shr:2", "row_shr:4", "row_shr:8", "row_bcast:15 row_mask:0xa", "row_bcast:31 row_mask:0xc"):
        for r in range(100, 105):
            a(f"v_add_f32_dpp v{r}, v{r}, v{r} {ctl}")
    a(f"v_mov_b32 v5, {SCAL}")
    a("s_mov_b64 s[42:43], exec")
    a("s_mov_b64 exec, 0x8000000000000000") if False else None
    a("v_cmp_eq_u32 vcc, 63, v1")
    a("s_and_saveexec_b64 s[42:43], vcc")
    a("global_store_dwordx4 v5, v[100:103], s[14:15]" + SC1)
    a("global_store_dword v5, v104, s[14:15] offset:16" + SC1)
    a("s_mov_b64 exec, s[42:43]")
    a("v_and_b32 v6, 15, v1")
    a("v_lshrrev_b32 v7, 4, v1")
    a("v_min_u32 v8, 5, v6")
    a("v_lshlrev_b32 v8, 10, v8")
    a("v_lshl_add_u32 v8, v7, 3, v8")
    a("v_add_u32 v8, s27, v8")
    a("v_cmp_gt_u32 vcc, 6, v6")
    a("v_mov_b32 v9, 0")
    a("s_nop 0")
    a("v_cndmask_b32 v9, v9, -1, vcc")
    a(f"s_mov_b32 s30, {W1F + 86*1024}")
    a("v_lshl_add_u32 v10, v1, 4, s30")
    a("s_waitcnt lgkmcnt(0)")
    for ks in range(16):
        R = 16 + 4 * (ks & 1)
        a(f"ds_read_b64 v[{R}:{R+1}], v8 offset:{64*ks}")
        a(f"ds_read_b64 v[{R+2}:{R+3}], v8 offset:{64*ks+32}")
        a("s_waitcnt lgkmcnt(0)")
        for q in range(4): a(f"v_and_b32 v{R+q}, v{R+q}, v9")
        a(f"global_store_dwordx4 v10, v[{R}:{R+3}], s[14:15]" + SC1)
        a(f"v_add_u32 v10, {87*1024}, v10")
    a("s_branch K2_END")
    a("K2_SIDE_IDLE:   ; LINT-RESET")
    a("s_barrier")
    a("K2_END:   ; LINT-RESET")
    stamp_store(a, 0, 14, 24)
    a("K2_EXIT:")
    a.end_kernel(name, 208, 100)

G2T = 65536
SVT = G2T + 2048
STT = SVT + 3072
COF = STT + 2048
RED = COF + 4096
P_W = 64 * 272
K3_LDS = RED + 4 * P_W
FLAGS = 0x0638000

def k3(a):
    name = "k3_kernel"
    a.begin_kernel(name, 256, 256, K3_LDS)
    a("s_cmp_ge_u32 s2, 256")
    a("s_cbranch_scc1 K3_EXIT")
    stamp(a, 0)
    a("s_load_dwordx2 s[14:15], s[0:1], 128")
    a("s_load_dwordx2 s[12:13], s[0:1], 72")
    a("s_load_dwordx2 s[16:17], s[0:1], 88")
    a("s_load_dwordx2 s[18:19], s[0:1], 112")
    wave_id(a, 24, 1)
    a("v_and_b32 v1, 63, v0")
    a("s_and_b32 s25, s2, 7")
    a("s_lshr_b32 s26, s2, 3")
    a("s_lshr_b32 s27, s26, 3")
    a("s_lshl_b32 s25, s25, 2")
    a("s_add_u32 s25, s25, s27")
    a("s_and_b32 s26, s26, 7")
    a("s_mul_i32 s27, s26, 11")
    a("s_min_u32 s27, s27, 76")
    a("s_cmp_lt_u32 s26, 6")
    a("s_cselect_b32 s28, 11, 10")
    a("s_mul_i32 s29, s24, 3")
    for i in range(3):
        a(f"s_add_u32 s30, s29, {i}")
        a("s_add_u32 s31, s30, s27")
        a("s_cmp_lt_u32 s30, s28")
        a(f"s_cselect_b32 s{32+i}, s31, 86")
    a("v_lshrrev_b32 v10, 3, v1")
    a("v_and_b32 v11, 6, v10")
    a("v_and_b32 v12, 7, v1")
    a("v_xor_b32 v11, v11, v12")
    a("v_lshlrev_b32 v11, 4, v11")
    a("v_lshl_add_u32 v11, v10, 7, v11")
    a("s_lshl_b32 s41, s24, 10")
    a("s_lshl_b32 s42, s25, 16")
    a("s_add_u32 s41, s41, s42")
    a(f"s_add_u32 s41, s41, {X2T}")
    a("s_lshl_b32 s42, s24, 10")
    a("v_lshlrev_b32 v2, 3, v0")
    a(f"v_add_u32 v2, {G2F if FUSED else MODF + 4*2048}, v2")
    a("v_lshlrev_b32 v13, 4, v1")
    for i in range(3):
        a(f"s_lshl_b32 s30, s{32+i}, 10")
        a(f"v_add_u32 v{126+i}, s30, v13")
    a(f"s_mov_b32 s44, {W1F}")
    a("v_lshrrev_b32 v3, 4, v1")
    a("v_and_b32 v6, 15, v1")
    a("v_mov_b32 v7, s32")
    a("v_mov_b32 v8, s33")
    a("v_mov_b32 v9, s34")
    a("v_cmp_eq_u32 vcc, 1, v3")
    a("v_cmp_le_u32 s[52:53], 2, v3")
    a("s_nop 0")
    a("v_cndmask_b32 v7, v7, v8, vcc")
    a("v_cndmask_b32 v7, v7, v9, s[52:53]")
    a("v_min_u32 v7, 85, v7")
    a("v_lshl_add_u32 v7, v7, 4, v6")
    a("v_lshlrev_b32 v8, 2, v7")
    a(f"v_add_u32 v8, {SVP}, v8")
    a("v_lshlrev_b32 v9, 1, v7")
    a("s_waitcnt lgkmcnt(0)")
    wsfix(a, 14)
    a.srd(8, 14, WS_USED)
    a("global_load_dwordx2 v[4:5], v2, s[14:15]")
    for j in range(16):
        a("s_mov_b32 m0, s42")
        a("s_add_u32 s42, s42, 4096")
        a(f"buffer_load_dwordx4 v11, s[8:11], s41 offen lds")
        a(f"s_add_u32 s41, s41, 4096")
    def wload(ks):
        out = []
        for i in range(3):
            r = (ks * 3 + i) * 4
            out.append(f"buffer_load_dwordx4 a[{r}:{r+3}], v{126+i}, s[8:11], s44 offen")
        out.append(f"s_add_u32 s44, s44, {87*1024}")
        return out
    PRE = min(int(OPT.get('pre', '4')), int(OPT.get('deep', '5')))
    for ks in range(PRE):
        for x in wload(ks): a(x)
    a(f"s_mov_b32 s30, {SCAL}")
    a("s_load_dwordx4 s[36:39], s[14:15], s30")
    a(f"s_mov_b32 s31, {SCAL+16}")
    a("s_load_dword s40, s[14:15], s31")
    a("v_bfe_u32 v14, v1, 2, 2")
    a("v_lshl_add_u32 v14, v3, 2, v14")
    a("v_and_b32 v15, 6, v14")
    a("v_lshrrev_b32 v15, 1, v15")
    a("v_and_b32 v29, 3, v1")
    a("v_lshlrev_b32 v30, 7, v14")
    a("v_lshl_add_u32 v30, v29, 3, v30")
    for k in range(4):
        a(f"s_add_u32 s30, s24, {k}")
        a(f"s_and_b32 s{48+k}, s30, 3")
        a(f"v_xor_b32 v31, s{48+k}, v15")
        a(f"v_lshl_add_u32 v{20+k}, v31, 5, v30")
    a("v_xor_b32 v31, s24, v15")
    a("v_lshl_add_u32 v26, v31, 5, v30")
    a("s_lshl_b32 s30, s26, 13")
    a("v_add_u32 v26, s30, v26")
    a(f"v_lshlrev_b32 v24, 4, v3")
    a(f"v_add_u32 v24, {G2T}, v24")
    ACC = 160
    for r in range(ACC, ACC + 48): a(f"v_mov_b32 v{r}, 0")
    for r in range(96, 108): a(f"v_mov_b32 v{r}, 0")
    a(f"s_waitcnt vmcnt({16 + 3*PRE})")
    if not FUSED:
        a("v_add_f32 v4, 1.0, v4")
        a("v_add_f32 v5, 1.0, v5")
        rbf(a, 4, 4); rbf(a, 5, 5)
        a("v_mul_f32 v4, v4, v4")
        a("v_mul_f32 v5, v5, v5")
    a("v_lshlrev_b32 v2, 3, v0")
    a(f"v_add_u32 v2, {G2T}, v2")
    a("ds_write_b64 v2, v[4:5]")
    a(f"s_waitcnt vmcnt({3*PRE}) lgkmcnt(0)")
    stamp(a, 1)
    a("s_barrier")
    XF = [32, 48]
    def xreads(ks):
        b = XF[ks & 1]
        out = []
        for k in range(4):
            for hf in range(2):
                out.append(f"ds_read_b64_tr_b16 v[{b+4*k+2*hf}:{b+4*k+2*hf+1}], v{20+k} offset:{4096*ks + 2048*hf}")
        return out
    STATS = OPT.get('stats', 'in')
    GQ = [64, 72]
    if STATS == 'in':
        for ks in range(PRE, int(OPT.get('deep', '5'))):
            for x in wload(ks): a(x)
    def greads(ks):
        g = GQ[ks & 1]
        return [f"ds_read_b128 v[{g}:{g+3}], v24 offset:{128*ks}", f"ds_read_b128 v[{g+4}:{g+7}], v24 offset:{128*ks+64}"]
    for x in xreads(0) + greads(0): a(x)
    DEEP = int(OPT.get('deep', '5'))
    a("s_mul_i32 s58, s24, 11")
    a("s_cmp_eq_u32 s24, 3")
    a("s_cselect_b32 s58, 32, s58")
    a("s_mul_i32 s59, s26, 43")
    a("s_add_u32 s59, s59, s58")
    a("s_lshl_b32 s59, s59, 12")
    a(f"s_add_u32 s59, s59, {W2F}")
    a.srd(60, 14, WS_USED)
    a("s_cmp_eq_u32 s24, 3")
    a("s_cselect_b32 s62, 0, s10")
    drip = []
    for j in range(11):
        srd = "s[60:63]" if j == 0 else "s[8:11]"
        for t in range(4):
            r = (j * 4 + t) * 4
            drip.append(f"buffer_load_dwordx4 a[{r}:{r+3}], v13, {srd}, s59 offen offset:{1024*t}" + ("\ns_add_u32 s59, s59, 4096" if t == 3 else ""))
    a("s_lshl_b32 s30, s26, 8")
    a(f"s_add_u32 s30, s30, {GBF if FUSED else MODF + 5*2048}")
    a("v_lshl_add_u32 v27, v3, 4, s30")
    a("s_lshl_b32 s30, s26, 7")
    a("v_lshl_add_u32 v28, v3, 3, s30")
    gbl = []
    for dt in range(4):
        gbl.append(f"global_load_dwordx4 v[{208+4*dt}:{211+4*dt}], v27, s[14:15] offset:{64*dt}")
    for dt in range(4):
        gbl.append(f"global_load_dwordx2 v[{224+2*dt}:{225+2*dt}], v28, s[16:17] offset:{32*dt}")
    issued = DEEP
    vm_after = []
    seq = [("W", ks) for ks in range(DEEP) for _ in range(3)]
    def vmwait(tag):
        last = max(i for i, t in enumerate(seq) if t == tag)
        return len(seq) - 1 - last
    sm_done = False
    smalls = []
    for kq in range(4):
        for v in range(3):
            smalls.append(f"global_load_dword v{112+kq*3+v}, v8, s[14:15]")
            if not (kq == 3 and v == 2): smalls.append("v_add_u32 v8, 5504, v8")
    smalls.append("global_load_ushort v124, v9, s[12:13]")
    for ks in range(16):
        b = XF[ks & 1]
        a(f"s_waitcnt vmcnt({vmwait(('W', ks))}) lgkmcnt(0)")
        mf = []
        for i in range(3):
            r = (ks * 3 + i) * 4
            for k in range(4):
                d = ACC + (i * 4 + k) * 4
                mf.append(f"v_mfma_f32_16x16x32_bf16 v[{d}:{d+3}], a[{r}:{r+3}], v[{b+4*k}:{b+4*k+3}], v[{d}:{d+3}]")
        va = []
        if ks + 1 < 16: va += xreads(ks + 1) + greads(ks + 1)
        if issued < 16:
            va += wload(issued); seq += [("W", issued)] * 3; issued += 1
        elif not sm_done:
            sm_done = True
            va += smalls + gbl; seq += [("S", 0)] * 13 + [("G", 0)] * 8
        else:
            for _ in range(3):
                va.append(drip.pop(0)); seq.append(("W2", 0))
        g = GQ[ks & 1]
        for q in range(4):
            va.append(f"v_lshlrev_b32 v{80+2*q}, 16, v{b+q}")
            va.append(f"v_and_b32 v{81+2*q}, 0xffff0000, v{b+q}")
        for q in range(8):
            va.append(f"v_mul_f32 v{80+q}, v{80+q}, v{80+q}")
        for q in range(8):
            va.append(f"v_add_f32 v{96+(q&3)}, v{96+(q&3)}, v{80+q}")
            va.append(f"v_fmac_f32 v{100+q}, v{80+q}, v{g+q}")
        per = -(-len(va) // 12)
        vi = 0
        for m in mf:
            a(m)
            for _ in range(per):
                if vi < len(va): a(va[vi]); vi += 1
    stamp(a, 2)
    KEEP = int(OPT.get('keep', '0'))
    def dr(n=1, final=False):
        for _ in range(n):
            if drip and (final or len(drip) > KEEP): a(drip.pop(0))
    a(f"s_waitcnt vmcnt({vmwait(('S', 0))})")
    dr(1)
    for v in range(3):
        a(f"v_add_f32 v{112+v}, v{112+v}, v{115+v}")
        a(f"v_add_f32 v{118+v}, v{118+v}, v{121+v}")
        a(f"v_add_f32 v{112+v}, v{112+v}, v{118+v}")
    a("v_lshlrev_b32 v124, 16, v124")
    dr(2)
    a("s_mul_i32 s30, s24, 768")
    a(f"s_add_u32 s30, s30, {SVT}")
    a("v_lshlrev_b32 v2, 8, v3")
    a("v_lshl_add_u32 v2, v6, 2, v2")
    a("v_add_u32 v2, s30, v2")
    a("v_cmp_gt_u32 vcc, 48, v1")
    a("s_and_saveexec_b64 s[42:43], vcc")
    a("ds_write_b32 v2, v112")
    a("ds_write_b32 v2, v114 offset:64")
    a("ds_write_b32 v2, v113 offset:128")
    a("ds_write_b32 v2, v124 offset:192")
    a("s_mov_b64 exec, s[42:43]")
    a("v_pk_add_f32 v[96:97], v[96:97], v[98:99]")
    a("v_add_f32 v96, v96, v97")
    a("v_pk_add_f32 v[100:101], v[100:101], v[102:103]")
    a("v_pk_add_f32 v[104:105], v[104:105], v[106:107]")
    a("v_pk_add_f32 v[100:101], v[100:101], v[104:105]")
    a("v_add_f32 v97, v100, v101")
    a("v_mov_b32 v98, v96")
    a("v_mov_b32 v99, v97")
    a("s_nop 0")
    a("v_permlane16_swap_b32 v96, v98")
    a("v_permlane16_swap_b32 v97, v99")
    dr(2)
    a("v_add_f32 v96, v96, v98")
    a("v_add_f32 v97, v97, v99")
    a("v_mov_b32 v98, v96")
    a("v_mov_b32 v99, v97")
    a("s_nop 0")
    a("v_permlane32_swap_b32 v96, v98")
    a("v_permlane32_swap_b32 v97, v99")
    a("s_lshl_b32 s30, s24, 9")
    a(f"s_add_u32 s30, s30, {STT}")
    a("v_add_f32 v96, v96, v98")
    a("v_add_f32 v97, v97, v99")
    a("v_lshl_add_u32 v2, v6, 5, s30")
    a("ds_write_b64 v2, v[96:97] offset:24")
    a("s_cmp_eq_u32 s24, 3")
    a("s_cbranch_scc0 K3_nolin")
    a("v_cmp_eq_u32 s[52:53], 0, v3")
    a("v_cmp_eq_u32 s[54:55], 1, v3")
    for k in range(4):
        a(f"s_lshl_b32 s30, s{48+k}, 9")
        a(f"s_add_u32 s30, s30, {STT}")
        a(f"v_lshl_add_u32 v{60+k}, v6, 5, s30")
    a("s_mov_b64 s[42:43], exec")
    a("s_mov_b64 exec, s[52:53]")
    for k in range(4):
        d = ACC + (8 + k) * 4
        a(f"ds_write_b128 v{60+k}, v[{d}:{d+3}]")
    a("s_mov_b64 exec, s[54:55]")
    for k in range(4):
        d = ACC + (8 + k) * 4
        a(f"ds_write_b64 v{60+k}, v[{d}:{d+1}] offset:16")
    a("s_mov_b64 exec, s[42:43]")
    a("K3_nolin:")
    dr(2)
    a("s_waitcnt lgkmcnt(0)")
    a("s_barrier")
    dr(2)
    a("v_lshlrev_b32 v2, 5, v1")
    a(f"v_add_u32 v2, {STT}, v2")
    a("ds_read_b128 v[32:35], v2")
    a("ds_read_b128 v[36:39], v2 offset:16")
    a("s_mul_i32 s30, s24, 768")
    a(f"s_add_u32 s30, s30, {SVT}")
    a("v_lshl_add_u32 v25, v3, 4, s30")
    a("s_mov_b32 s56, 0xbdd2d3e2")
    a("s_mov_b32 s57, 0xc0135761")
    a("s_waitcnt lgkmcnt(0)")
    a("v_add_f32 v34, v34, v35")
    a("v_add_f32 v36, v36, v37")
    a("v_mul_f32 v32, 0x3b000000, v32")
    a("v_mul_f32 v38, 0x3b000000, v38")
    a("v_fma_f32 v38, -v32, v32, v38")
    a("v_max_f32 v38, 0, v38")
    a("v_cvt_pk_bf16_f32 v40, v32, v38")
    a("v_lshlrev_b32 v32, 16, v40")
    a("v_and_b32 v38, 0xffff0000, v40")
    a("v_add_f32 v38, 0x3727c5ac, v38")
    rbf(a, 38, 38)
    a("v_sqrt_f32 v38, v38")
    a("v_fma_f32 v33, -v32, s36, v33")
    dr(2)
    rbf(a, 38, 38)
    a("v_rcp_f32 v38, v38")
    a("v_mul_f32 v40, v32, v32")
    a("v_add_f32 v41, v32, v32")
    a("v_fma_f32 v39, -v41, v34, v39")
    a("v_fma_f32 v39, v40, s37, v39")
    a("v_fma_f32 v36, -v32, s38, v36")
    a("v_fma_f32 v33, v33, v38, s39")
    a("v_add_f32 v36, v36, v36")
    a("v_fma_f32 v39, v39, v38, v36")
    a("v_mul_f32 v33, 0x3b000000, v33")
    dr(2)
    a("v_fma_f32 v39, v39, v38, s40")
    a("v_mul_f32 v39, 0x3b000000, v39")
    a("v_fma_f32 v39, -v33, v33, v39")
    a("v_max_f32 v39, 0, v39")
    a("v_cvt_pk_bf16_f32 v40, v33, v39")
    a("v_lshlrev_b32 v33, 16, v40")
    a("v_and_b32 v39, 0xffff0000, v40")
    a("v_add_f32 v39, 0x3727c5ac, v39")
    rbf(a, 39, 39)
    a("v_sqrt_f32 v39, v39")
    a("s_nop 0")
    rbf(a, 39, 39)
    a("v_rcp_f32 v47, v39")
    a("s_lshl_b32 s30, s24, 10")
    a(f"s_add_u32 s30, s30, {COF}")
    a("v_mul_f32 v44, v47, v38")
    a("v_mul_f32 v46, -v47, v33")
    a("v_mul_f32 v45, -v44, v32")
    a("v_lshl_add_u32 v2, v1, 4, s30")
    a("ds_write_b128 v2, v[44:47]")
    a("s_waitcnt lgkmcnt(0)")
    for k in range(4):
        a(f"s_lshl_b32 s31, s{48+k}, 8")
        a("s_add_u32 s31, s31, s30")
        a(f"v_lshl_add_u32 v2, v6, 4, s31")
        a(f"ds_read_b128 v[{48+4*k}:{51+4*k}], v2")
    dr(2)
    stamp(a, 3)
    for i in range(3):
        if i > 0: dr(4)
        a(f"s_cmp_eq_u32 s{32+i}, 86")
        a(f"s_cbranch_scc1 K3_skip{i}")
        for st in range(4):
            a(f"ds_read_b128 v[{64+4*st}:{67+4*st}], v25 offset:{256*i + 64*st}")
        a(f"s_add_u32 s30, s29, {i}")
        a("s_lshr_b32 s31, s30, 1")
        a("s_lshl_b32 s31, s31, 12")
        a("s_and_b32 s30, s30, 1")
        a("s_lshl_b32 s30, s30, 3")
        a("s_add_u32 s30, s30, s31")
        a(f"s_add_u32 s30, s30, {RED}")
        a("s_waitcnt lgkmcnt(0)")
        A_ = ACC + i * 16
        for k in range(4):
            c = 48 + 4 * k
            for p in range(2):
                t = 96 + 4 * k + 2 * p
                a(f"v_pk_fma_f32 v[{t}:{t+1}], v[{64+2*p}:{65+2*p}], v[{c}:{c+1}], v[{76+2*p}:{77+2*p}] op_sel:[0,1,0] op_sel_hi:[1,1,1]")
        if i == 0: dr(2)
        for k in range(4):
            c = 48 + 4 * k
            for p in range(2):
                t = 96 + 4 * k + 2 * p
                a(f"v_pk_fma_f32 v[{t}:{t+1}], v[{68+2*p}:{69+2*p}], v[{c+2}:{c+3}], v[{t}:{t+1}] op_sel_hi:[1,0,1]")
        if i == 0: dr(2)
        for k in range(4):
            c = 48 + 4 * k
            for p in range(2):
                t = 96 + 4 * k + 2 * p
                a(f"v_pk_fma_f32 v[{t}:{t+1}], v[{72+2*p}:{73+2*p}], v[{c+2}:{c+3}], v[{t}:{t+1}] op_sel:[0,1,0] op_sel_hi:[1,1,1]")
        if i == 0: dr(2)
        for k in range(4):
            c = 48 + 4 * k
            for p in range(2):
                x = A_ + 4 * k + 2 * p; t = 96 + 4 * k + 2 * p
                a(f"v_pk_fma_f32 v[{x}:{x+1}], v[{x}:{x+1}], v[{c}:{c+1}], v[{t}:{t+1}] op_sel_hi:[1,0,1]")
        if i == 0: dr(2)
        for j in range(8):
            x = A_ + 2 * j; t = 96 + 2 * j
            a(f"v_pk_mul_f32 v[{t}:{t+1}], v[{x}:{x+1}], v[{x}:{x+1}]")
        for j in range(8):
            t = 96 + 2 * j
            a(f"v_pk_fma_f32 v[{t}:{t+1}], v[{t}:{t+1}], s[56:57], s[56:57] op_sel:[0,0,1] op_sel_hi:[1,0,1]")
        if i == 0: dr(2)
        for j in range(8):
            x = A_ + 2 * j; t = 96 + 2 * j
            a(f"v_pk_mul_f32 v[{t}:{t+1}], v[{t}:{t+1}], v[{x}:{x+1}]")
        for j in range(16): a(f"v_exp_f32 v{96+j}, v{96+j}")
        if i == 0: dr(3)
        for j in range(8):
            t = 96 + 2 * j
            a(f"v_pk_add_f32 v[{t}:{t+1}], v[{t}:{t+1}], 1.0 op_sel_hi:[1,0]")
        for j in range(16): a(f"v_rcp_f32 v{96+j}, v{96+j}")
        if i == 0: dr(3)
        for j in range(8):
            x = A_ + 2 * j; t = 96 + 2 * j
            a(f"v_pk_mul_f32 v[{x}:{x+1}], v[{x}:{x+1}], v[{t}:{t+1}]")
        for k in range(4):
            a(f"v_cvt_pk_bf16_f32 v{112+2*k}, v{A_+4*k}, v{A_+4*k+1}")
            a(f"v_cvt_pk_bf16_f32 v{113+2*k}, v{A_+4*k+2}, v{A_+4*k+3}")
        if i == 1:
            a("s_cmp_eq_u32 s29, 9")
            a("s_cbranch_scc0 K3_paired1")
            a("s_lshr_b32 s31, s26, 1")
            a("s_add_u32 s31, s31, 40")
            a("s_mul_i32 s43, s25, 43")
            a("s_add_u32 s31, s31, s43")
            a("s_lshl_b32 s31, s31, 12")
            a("s_and_b32 s43, s26, 1")
            a("s_lshl_b32 s43, s43, 3")
            a("s_add_u32 s31, s31, s43")
            a(f"s_add_u32 s31, s31, {HF}")
            for k in range(4):
                a(f"s_lshl_b32 s43, s{48+k}, 10")
                a("s_add_u32 s43, s43, s31")
                a(f"buffer_store_dwordx2 v[{112+2*k}:{113+2*k}], v13, s[8:11], s43 offen sc1")
            a("s_branch K3_skip1")
            a("K3_paired1:")
        for k in range(4):
            a(f"s_lshl_b32 s31, s{48+k}, 10")
            a("s_add_u32 s31, s31, s30")
            a(f"v_add_u32 v2, s31, v13")
            a(f"ds_write_b64 v2, v[{112+2*k}:{113+2*k}]")
        a(f"K3_skip{i}:   ; LINT-RESET")
    dr(99)
    a("s_waitcnt lgkmcnt(0)")
    a("s_barrier")
    stamp(a, 4)
    a("s_mul_i32 s30, s24, 5120")
    a("v_add_u32 v2, s30, v13")
    a(f"v_add_u32 v2, {RED}, v2")
    for q in range(5): a(f"ds_read_b128 v[{32+4*q}:{35+4*q}], v2 offset:{1024*q}")
    a("s_mul_i32 s31, s25, 43")
    a("s_mul_i32 s43, s26, 5")
    a("s_add_u32 s31, s31, s43")
    a("s_lshl_b32 s31, s31, 12")
    a("s_add_u32 s31, s31, s30")
    a(f"s_add_u32 s31, s31, {HF}")
    for q in range(5):
        a(f"s_waitcnt lgkmcnt({4-q})")
        if q == 4: a("s_add_u32 s31, s31, 4096")
        a(f"buffer_store_dwordx4 v[{32+4*q}:{35+4*q}], v13, s[8:11], s31 offen offset:{1024*(q&3)} sc1")
    for r in range(176, 240): a(f"v_accvgpr_write_b32 a{r}, 0")
    a(f"s_waitcnt vmcnt(0)")
    stamp(a, 5)
    a("s_barrier")
    a("s_cmp_lg_u32 s24, 0")
    a("s_cbranch_scc1 K3_wait")
    a("s_lshl_b32 s30, s25, 7")
    a(f"s_add_u32 s30, s30, {FLAGS}")
    a("v_mov_b32 v2, s30")
    a("v_mov_b32 v4, 1")
    a("s_mov_b64 s[42:43], exec")
    a("s_mov_b64 exec, 1")
    a("buffer_atomic_add v4, v2, s[8:11], 0 offen sc1")
    a("s_mov_b32 s31, 0x100000")
    a("K3_poll:")
    a("buffer_load_dword v5, v2, s[8:11], 0 offen sc1")
    a("s_waitcnt vmcnt(0)")
    a("v_readfirstlane_b32 s30, v5")
    a("s_sub_u32 s31, s31, 1")
    a("s_cmp_eq_u32 s31, 0")
    a("s_cbranch_scc1 K3_pollx")
    a("s_cmp_ge_u32 s30, 8")
    a("s_cbranch_scc0 K3_poll")
    a("K3_pollx:")
    a("s_mov_b64 exec, s[42:43]")
    a("K3_wait:   ; LINT-RESET")
    a("s_barrier")
    stamp(a, 6)
    a("s_mul_i32 s57, s25, 43")
    a("s_add_u32 s57, s57, s58")
    a("s_lshl_b32 s57, s57, 12")
    a(f"s_add_u32 s57, s57, {HF}")
    late = list(drip); drip.clear()
    hl = []
    for j in range(11):
        for t in range(4):
            r = 32 + (j * 4 + t) * 4
            hl.append((("H", j), f"buffer_load_dwordx4 v[{r}:{r+3}], v13, s[8:11], s57 offen offset:{1024*t}" + HLD + ("\ns_add_u32 s57, s57, 4096" if t == 3 else "")))
    pos = 20
    lt_ = [(("L", 0), x) for x in late]
    hl = hl[:pos] + lt_ + hl[pos:]
    HD = int(OPT.get('hd', '16'))
    qseq = []
    def hissue():
        tag, x = hl.pop(0); a(x); qseq.append(tag)
    for _ in range(HD): hissue()
    for dt in range(4):
        a(f"ds_read_b64_tr_b16 v[{16+2*dt}:{17+2*dt}], v26 offset:{2048*dt}")
    for j in range(11):
        need = [i for i, t in enumerate(qseq) if t == ("H", j)]
        assert len(need) == 4
        last = max(need)
        if late and j >= 9: last = max(last, max(i for i, t in enumerate(qseq) if t == ("L", 0)))
        a(f"s_waitcnt vmcnt({len(qseq) - 1 - last})")
        q = 0
        for dt in range(4):
            for lt in range(4):
                d = 176 + (dt * 4 + lt) * 4
                ar = (j * 4 + dt) * 4
                br = 32 + (j * 4 + lt) * 4
                a(f"v_mfma_f32_16x16x32_bf16 a[{d}:{d+3}], a[{ar}:{ar+3}], v[{br}:{br+3}], a[{d}:{d+3}]")
                if q % 4 == 0 and hl: hissue()
                q += 1
    stamp(a, 7)
    a("v_mul_u32_u24 v5, 272, v6")
    a("v_lshl_add_u32 v5, v3, 4, v5")
    a(f"s_mul_i32 s30, s24, {P_W}")
    a(f"s_add_u32 s30, s30, {RED}")
    a("v_add_u32 v7, s30, v5")
    a("s_nop 4")
    for dt in range(4):
        for lt in range(4):
            d = 176 + (dt * 4 + lt) * 4
            a(f"ds_write_b128 v7, a[{d}:{d+3}] offset:{lt*16*272 + dt*64}")
    a(f"s_mul_i32 s30, s24, {16*272}")
    a(f"s_add_u32 s30, s30, {RED}")
    a("v_add_u32 v7, s30, v5")
    a("s_waitcnt lgkmcnt(0)")
    a("s_barrier")
    stamp(a, 8)
    for dt in range(4):
        for w in range(4):
            r = 32 + (dt * 4 + w) * 4
            a(f"ds_read_b128 v[{r}:{r+3}], v7 offset:{w*P_W + dt*64}")
    a.srd(40, 18, 2048 * 512 * 2)
    a("s_lshl_b32 s30, s25, 16")
    a("s_lshl_b32 s31, s24, 14")
    a("s_add_u32 s30, s30, s31")
    a("s_lshl_b32 s31, s26, 7")
    a("s_add_u32 s30, s30, s31")
    a("v_lshlrev_b32 v9, 10, v6")
    a("v_lshl_add_u32 v9, v3, 3, v9")
    a("v_add_u32 v9, s30, v9")
    for dt in range(4):
        a(f"s_waitcnt lgkmcnt({4*(3-dt)})")
        r = 32 + dt * 16
        for p in range(2):
            a(f"v_pk_add_f32 v[{r+2*p}:{r+2*p+1}], v[{r+2*p}:{r+2*p+1}], v[{r+4+2*p}:{r+5+2*p}]")
            a(f"v_pk_add_f32 v[{r+8+2*p}:{r+9+2*p}], v[{r+8+2*p}:{r+9+2*p}], v[{r+12+2*p}:{r+13+2*p}]")
        for p in range(2):
            a(f"v_pk_add_f32 v[{r+2*p}:{r+2*p+1}], v[{r+2*p}:{r+2*p+1}], v[{r+8+2*p}:{r+9+2*p}]")
        for q in range(2):
            a(f"v_lshlrev_b32 v{120+2*q}, 16, v{224+2*dt+q}")
            a(f"v_and_b32 v{121+2*q}, 0xffff0000, v{224+2*dt+q}")
            a(f"v_lshlrev_b32 v{124+2*q}, 16, v{16+2*dt+q}")
            a(f"v_and_b32 v{125+2*q}, 0xffff0000, v{16+2*dt+q}")
        for p in range(2):
            a(f"v_pk_add_f32 v[{r+2*p}:{r+2*p+1}], v[{r+2*p}:{r+2*p+1}], v[{120+2*p}:{121+2*p}]")
        for p in range(2):
            a(f"v_pk_fma_f32 v[{r+2*p}:{r+2*p+1}], v[{r+2*p}:{r+2*p+1}], v[{208+4*dt+2*p}:{209+4*dt+2*p}], v[{124+2*p}:{125+2*p}]")
        a(f"v_cvt_pk_bf16_f32 v{24+2*dt}, v{r}, v{r+1}")
        a(f"v_cvt_pk_bf16_f32 v{25+2*dt}, v{r+2}, v{r+3}")
        a(f"buffer_store_dwordx2 v[{24+2*dt}:{25+2*dt}], v9, s[40:43], 0 offen offset:{32*dt}")
    a("K3_END:   ; LINT-RESET")
    stamp_store(a, KID3, 14, 24)
    a("K3_EXIT:")
    a.end_kernel(name, 256 + 240, 100, accum=256)

def triv(a, i):
    name = f"t{i}_kernel"
    a.begin_kernel(name, 256, 256, 0)
    a.end_kernel(name, 8, 16)
def build(kernels):
    global LASTLABEL, KID3, FUSED
    FUSED = kernels[0].__name__ == "k12"
    KID3 = len(kernels) - 1
    LASTLABEL = {"k1": "K1_EXIT", "k2": "K2_EXIT", "k12": "K2_EXIT", "k3": "K3_EXIT"}[kernels[-1].__name__]
    a = Asm()
    for i in range(int(OPT.get("pre_triv", "0"))): triv(a, 10 + i)
    for k in kernels: k(a)
    for i in range(int(OPT.get("extra", "0"))): triv(a, i)
    return a.text().replace("None\n", "")

ALL = {}
if __name__ == "__main__":
    out = sys.argv[1] if len(sys.argv) > 1 else "cur.s"
    names = sys.argv[2].split(",") if len(sys.argv) > 2 else ["k1"]
    if len(sys.argv) > 3 and sys.argv[3] == "prof": PROF = True
    open(out, "w").write(build([globals()[n] for n in names]))
```

```python
import sys
sys.path.insert(0, "dev")
from asmgen import *

import os
OPT = dict(kv.split("=") for kv in os.environ.get("GENOPT", "").split(",") if kv)
WSOFF = int(OPT.get("wsoff", "0"), 0)
SC1 = " sc1" if OPT.get("sc1", "1") == "1" else ""
HLD = " sc1" if OPT.get("hsc1", "0") == "1" else ""
NT1 = " nt" if OPT.get("nt1", "1") == "1" else ""
def wsfix(a, r):
    if WSOFF:
        a(f"s_add_u32 s{r}, s{r}, {WSOFF}")
        a(f"s_addc_u32 s{r+1}, s{r+1}, 0")
XT    = 0x0000000
X2T   = 0x0200000
KREV  = 0x0400000
KW    = 4160
STAT1 = 0x0620000
MODF  = 0x0630000
SCAL  = 0x0634000
SVP   = 0x0640000
MODP  = 0x0660000
G2F   = 0x0634400
GBF   = 0x0634C00
W1F   = 0x0700000
W2F   = 0x0900000
HF    = 0x0B00000
WS_USED = 0x1100000

STAMP = 0x1100000
PROF = False
def stamp(a, i):
    if PROF:
        if OPT.get("cyc", "0") == "1": a(f"s_memtime s[{70+2*i}:{71+2*i}]")
        else: a(f"s_memrealtime s[{70+2*i}:{71+2*i}]")
        a("s_waitcnt lgkmcnt(0)")
def stamp_store(a, kid, wsreg, swave):
    if not PROF: return
    a("s_mov_b64 exec, -1")
    tm = "s_memtime" if OPT.get("cyc", "0") == "1" else "s_memrealtime"
    a(f"{tm} s[90:91]")
    a("s_waitcnt lgkmcnt(0) vmcnt(0)")
    a(f"{tm} s[92:93]")
    a("s_waitcnt lgkmcnt(0)")
    a(f"s_lshl_b32 s94, s2, 3")
    a(f"s_add_u32 s94, s94, s{swave}")
    a(f"s_lshl_b32 s94, s94, 6")
    a(f"s_add_u32 s94, s94, {STAMP + kid * 0x80000}")
    a("v_mov_b32 v0, s94")
    for i in range(12):
        a(f"v_mov_b32 v{2+i}, s{70+2*i}")
    a("s_mov_b64 exec, 1")
    a(f"global_store_dwordx4 v0, v[2:5], s[{wsreg}:{wsreg+1}]")
    a(f"global_store_dwordx4 v0, v[6:9], s[{wsreg}:{wsreg+1}] offset:16")
    a(f"global_store_dwordx4 v0, v[10:13], s[{wsreg}:{wsreg+1}] offset:32")

LOG2E = "0x3fb8aa3b"
INV2PI = "0.15915494"

def wave_id(a, s, vt):
    a(f"v_lshrrev_b32 v{vt}, 6, v0")
    a("s_nop 0")
    a(f"v_readfirstlane_b32 s{s}, v{vt}")

def rbf(a, vd, vs):
    a(f"v_cvt_pk_bf16_f32 v{vd}, v{vs}, v{vs}")
    a(f"v_and_b32 v{vd}, 0xffff0000, v{vd}")

def csq(a, dst, src, tmp):
    return [
        f"v_pk_mul_f32 v[{tmp}:{tmp+1}], v[{src}:{src+1}], v[{src}:{src+1}] op_sel:[0,0] op_sel_hi:[1,0]",
        f"v_pk_fma_f32 v[{dst}:{dst+1}], v[{src}:{src+1}], v[{src}:{src+1}], v[{tmp}:{tmp+1}] op_sel:[1,1,0] op_sel_hi:[0,1,1] neg_lo:[1,0,0]",
    ]

def cmulconj(a, dst, p, c, tmp):
    return [
        f"v_pk_mul_f32 v[{tmp}:{tmp+1}], v[{p}:{p+1}], v[{c}:{c+1}] op_sel:[0,0] op_sel_hi:[1,0] neg_hi:[0,1]",
        f"v_pk_fma_f32 v[{dst}:{dst+1}], v[{p}:{p+1}], v[{c}:{c+1}], v[{tmp}:{tmp+1}] op_sel:[1,1,0] op_sel_hi:[0,1,1] neg_lo:[1,0,0] neg_hi:[1,0,0]",
    ]

def code_prefetch(a, start, end, n, tag, vtmp, dst0):
    a(f"s_getpc_b64 s[66:67]")
    a(f"CPF_{tag}:")
    a(f"s_sub_u32 s66, s66, CPF_{tag}-{start}")
    a(f"s_subb_u32 s67, s67, 0")
    a(f"v_lshlrev_b32 v{vtmp}, 7, v1")
    a("s_mov_b64 s[68:69], exec")
    for i in range(n):
        a(f"v_cmp_gt_u32 vcc, {end}-{start}, v{vtmp}")
        a("s_and_b64 exec, s[68:69], vcc")
        a(f"s_cbranch_execz CPF_{tag}_done")
        a(f"global_load_dword v{dst0+i}, v{vtmp}, s[66:67]")
        a(f"v_add_u32 v{vtmp}, 8192, v{vtmp}")
    a(f"CPF_{tag}_done:")
    a("s_mov_b64 exec, s[68:69]")

def k1(a):
    name = "k1_kernel"
    a.begin_kernel(name, 512, 256, 23552)
    a("s_cmp_ge_u32 s2, 512")
    a("s_cbranch_scc1 K1_EXIT")
    stamp(a, 0)
    a("s_load_dwordx8 s[4:11], s[0:1], 8")
    a("s_load_dwordx2 s[12:13], s[0:1], 40")
    a("s_load_dwordx2 s[14:15], s[0:1], 128")
    a("s_load_dwordx2 s[16:17], s[0:1], 0")
    a("s_load_dwordx4 s[20:23], s[0:1], 96")
    wave_id(a, 24, 1)
    a("v_and_b32 v1, 63, v0")
    a("s_cmp_ge_u32 s2, 256")
    a("s_cbranch_scc1 K1_TSM")
    a("s_setprio 3")
    a("s_lshr_b32 s25, s24, 1")
    a("s_and_b32 s26, s24, 1")
    a("s_lshl_b32 s27, s2, 1")
    a("s_add_u32 s27, s27, s25")
    a("s_lshl_b32 s28, s27, 8")
    a("s_lshl_b32 s29, s26, 7")
    a("s_add_u32 s28, s28, s29")
    a("v_lshl_add_u32 v2, v1, 1, s28")
    a("s_lshl_b32 s30, s2, 2")
    a("s_waitcnt lgkmcnt(0)")
    wsfix(a, 14)
    a("global_load_ushort v4, v2, s[4:5] nt")
    a("global_load_ushort v5, v2, s[6:7] nt")
    a("global_load_ushort v6, v2, s[8:9] nt")
    a("global_load_ushort v7, v2, s[10:11] nt")
    a("s_load_dword s29, s[12:13], s30")
    a("v_and_b32 v16, 15, v1")
    a("v_cmp_eq_u32 s[32:33], 15, v16")
    a("v_lshrrev_b32 v18, 4, v1")
    a("v_add_u32 v19, 1, v16")
    a("v_cvt_f32_u32 v19, v19")
    a("s_lshl_b32 s31, s24, 10")
    a("v_lshl_add_u32 v17, v18, 6, s31")
    a("v_lshl_add_u32 v20, v1, 4, s31")
    for r in range(112, 128):
        a(f"v_mov_b32 v{r}, 0")
    T16 = 4096 + 16384
    a("s_mul_i32 s39, s25, 1344")
    a(f"s_add_u32 s39, s39, {T16 + 8}")
    a("v_subrev_u32 v21, 7, v16")
    a("v_cmp_gt_u32 s[34:35], 8, v21")
    a("v_add_u32 v21, 1, v16")
    a("v_and_b32 v21, 15, v21")
    a("v_lshlrev_b32 v24, 5, v21")
    a("v_lshl_add_u32 v24, v18, 3, v24")
    a("s_lshl_b32 s40, s26, 9")
    a("s_add_u32 s40, s40, s39")
    a("v_add_u32 v24, s40, v24")
    a("s_cmp_eq_u32 s26, 0")
    a("s_cselect_b64 s[36:37], -1, s[34:35]")
    a("s_lshl_b32 s40, s24, 12")
    a("s_add_u32 s40, s40, 4096")
    a("v_lshl_add_u32 v22, v1, 4, s40")
    a("s_lshl_b32 s40, s25, 13")
    a("s_lshl_b32 s41, s26, 11")
    a("s_add_u32 s40, s40, s41")
    a("s_add_u32 s40, s40, 4096")
    a("v_lshl_add_u32 v23, v1, 4, s40")
    a("s_lshl_b32 s40, s26, 6")
    a("v_add_u32 v26, s40, v1")
    a("v_lshlrev_b32 v27, 3, v26")
    a("v_sub_u32 v27, 2047, v27")
    a("v_cvt_f32_u32 v28, v27")
    a("s_sub_u32 s41, s39, 34050")
    a("s_sub_u32 s42, s39, 2")
    GA = 140
    for rnd in range(2):
        if rnd == 1:
            a("v_add_f32 v28, 0xc4800000, v28")
            a("v_subrev_u32 v27, 1024, v27")
        for t in range(8):
            if t == 0: a(f"v_mov_b32 v48, v28")
            else: a(f"v_add_f32 v{48+t}, {-float(t)}, v28")
        for p in range(4):
            a(f"v_cvt_pk_bf16_f32 v{56+p}, v{48+2*p}, v{49+2*p}")
        for p in range(4):
            a(f"v_and_b32 v{48+2*p}, 0xffff, v{56+p}")
            a(f"v_lshrrev_b32 v{49+2*p}, 16, v{56+p}")
        o = GA + 8 * rnd
        for t in range(8):
            a(f"v_lshl_add_u32 v{o+t}, v{48+t}, 1, s41")
        if rnd == 1:
            a("v_cmp_le_u32 vcc, 112, v26")
            for t in range(8):
                a(f"v_subrev_u32 v{56+(t&3)}, {t}, v27")
                a(f"v_lshl_add_u32 v{56+(t&3)}, v{56+(t&3)}, 1, s42")
                a(f"v_cndmask_b32 v{o+t}, v{o+t}, v{56+(t&3)}, vcc")
    a(f"s_mul_i32 s40, s27, {KW}")
    a(f"s_add_u32 s40, s40, {KREV}")
    a("v_lshl_add_u32 v29, v26, 4, s40")
    a("v_add_u32 v30, 2048, v29")
    a("v_add_u32 v31, 4096, v29")
    a("s_waitcnt lgkmcnt(0)")
    a("s_lshl_b32 s43, s25, 4")
    a("s_lshr_b32 s29, s29, s43")
    a("s_lshl_b32 s29, s29, 16")
    a(f"v_mov_b32 v8, {LOG2E}")
    a("v_mul_f32 v9, s29, v8")
    a("v_exp_f32 v9, v9")
    a("s_nop 0")
    rbf(a, 9, 9)
    a("s_waitcnt vmcnt(0)")
    a("v_lshlrev_b32 v4, 16, v4")
    a("v_lshlrev_b32 v5, 16, v5")
    a("v_lshlrev_b32 v6, 16, v6")
    a("v_lshlrev_b32 v7, 16, v7")
    a("v_mul_f32 v4, v4, v8")
    a("v_exp_f32 v4, v4")
    a("v_mul_f32 v13, v5, v9")
    a("v_mul_f32 v14, v6, v9")
    rbf(a, 4, 4)
    a("v_mul_f32 v15, v7, v9")
    a("v_mul_f32 v12, v4, v9")
    a(f"v_mul_f32 v13, {INV2PI}, v13")
    a("v_add_f32 v14, v14, v14")
    a("v_add_f32 v15, v15, v15")
    a("v_mul_f32 v12, v12, v8")
    a("v_mov_b32 v10, v14")
    a("v_sub_f32 v12, 0, v12")
    a("ds_write_b128 v20, v[12:15]")
    for ctl in ("row_shr:1", "row_shr:2", "row_shr:4", "row_shr:8", "row_bcast:15 row_mask:0xa", "row_bcast:31 row_mask:0xc"):
        a("s_nop 1")
        a(f"v_add_f32_dpp v10, v10, v10 {ctl}")
    a("s_waitcnt lgkmcnt(0)")
    stamp(a, 1)
    R = [[32 + 4 * u for u in range(4)], [48 + 4 * u for u in range(4)]]
    PA = [64 + 2 * u for u in range(4)]
    PB = [72 + 2 * u for u in range(4)]
    TT = [80 + 2 * u for u in range(4)]
    QF = [88 + 4 * e for e in range(4)]
    GF = [104, 108]
    DD = [112 + 4 * e for e in range(4)]
    CPK = [128 + u for u in range(4)]
    MAG = [132 + 2 * u for u in range(4)]
    for u in range(4):
        a(f"ds_read_b128 v[{R[0][u]}:{R[0][u]+3}], v17 offset:{u*16}")
    for ks in range(4):
        Rc = R[ks & 1]
        if ks + 1 < 4:
            for u in range(4):
                a(f"ds_read_b128 v[{R[(ks+1)&1][u]}:{R[(ks+1)&1][u]+3}], v17 offset:{(ks+1)*256+u*16}")
            a("s_waitcnt lgkmcnt(4)")
        else:
            a("s_waitcnt lgkmcnt(0)")
        for u in range(4): a(f"v_mul_f32 v{TT[u]}, v{Rc[u]}, v19")
        for u in range(4): a(f"v_mul_f32 v{TT[u]+1}, v{Rc[u]+1}, v19")
        for u in range(4): a(f"v_exp_f32 v{MAG[u]}, v{TT[u]}")
        for u in range(4): a(f"v_fract_f32 v{TT[u]+1}, v{TT[u]+1}")
        for u in range(4): a(f"v_cvt_pk_bf16_f32 v{CPK[u]}, v{Rc[u]+2}, -v{Rc[u]+3}")
        for u in range(4): a(f"v_cos_f32 v{PB[u]}, v{TT[u]+1}")
        for u in range(4): a(f"v_sin_f32 v{PB[u]+1}, v{TT[u]+1}")
        a("s_nop 0")
        for u in range(4):
            a(f"v_pk_mul_f32 v[{PA[u]}:{PA[u]+1}], v[{PB[u]}:{PB[u]+1}], v[{MAG[u]}:{MAG[u]+1}] op_sel:[0,0] op_sel_hi:[1,0]")
        cur, oth = PA, PB
        for e in range(4):
            for u in range(4): a(f"v_cvt_pk_bf16_f32 v{QF[e]+u}, v{cur[u]}, v{cur[u]+1}")
            sq = [csq(a, oth[u], cur[u], TT[u]) for u in range(4)]
            for u in range(4): a(sq[u][0])
            for u in range(4): a(sq[u][1])
            cur, oth = oth, cur
        for e in range(4):
            g = GF[e & 1]
            cm = [cmulconj(a, oth[u], cur[u], Rc[u] + 2, TT[u]) for u in range(4)]
            for u in range(4): a(cm[u][0])
            for u in range(4): a(cm[u][1])
            for u in range(4): a(f"v_cvt_pk_bf16_f32 v{g+u}, v{oth[u]}, v{oth[u]+1}")
            if e == 0:
                for u in range(4): a(f"v_cndmask_b32 v{g+u}, v{g+u}, v{CPK[u]}, s[32:33]")
            if e < 3:
                sq = [csq(a, oth[u], cur[u], TT[u]) for u in range(4)]
                for u in range(4): a(sq[u][0])
                a(f"v_mfma_f32_16x16x32_bf16 v[{DD[e]}:{DD[e]+3}], v[{QF[e]}:{QF[e]+3}], v[{g}:{g+3}], v[{DD[e]}:{DD[e]+3}]")
                for u in range(4): a(sq[u][1])
                cur, oth = oth, cur
            else:
                a("s_nop 1")
                a(f"v_mfma_f32_16x16x32_bf16 v[{DD[e]}:{DD[e]+3}], v[{QF[e]}:{QF[e]+3}], v[{g}:{g+3}], v[{DD[e]}:{DD[e]+3}]")
    stamp(a, 2)
    a("v_readlane_b32 s44, v10, 63")
    a(f"s_lshl_b32 s45, s24, 2")
    a(f"s_add_u32 s45, s45, {T16 + 2*1344 + 16}")
    a("v_mov_b32 v11, s45")
    a("v_mov_b32 v10, s44")
    a("s_nop 1")
    for e in range(4):
        a(f"ds_write_b128 v22, v[{DD[e]}:{DD[e]+3}] offset:{e*1024}")
    a("ds_write_b32 v11, v10")
    a("s_waitcnt lgkmcnt(0)")
    a("s_barrier")
    a("ds_read_b128 v[32:35], v23")
    a("ds_read_b128 v[36:39], v23 offset:4096")
    a("ds_read_b128 v[40:43], v23 offset:1024")
    a("ds_read_b128 v[44:47], v23 offset:5120")
    a(f"s_lshl_b32 s45, s25, 3")
    a(f"s_add_u32 s45, s45, {T16 + 2*1344 + 16}")
    a("v_mov_b32 v11, s45")
    a("ds_read_b64 v[8:9], v11")
    a("s_waitcnt lgkmcnt(0)")
    for r in range(4): a(f"v_add_f32 v{32+r}, v{32+r}, v{36+r}")
    for r in range(4): a(f"v_add_f32 v{40+r}, v{40+r}, v{44+r}")
    a("v_add_f32 v8, v8, v9")
    a("v_cvt_pk_bf16_f32 v32, v32, v33")
    a("v_cvt_pk_bf16_f32 v33, v34, v35")
    a("v_cvt_pk_bf16_f32 v40, v40, v41")
    a("v_cvt_pk_bf16_f32 v41, v42, v43")
    a("v_cvt_pk_bf16_f32 v8, v8, v8")
    a("s_sub_u32 s45, s39, 2")
    a("v_mov_b32 v11, s45")
    a("s_mov_b64 s[42:43], exec")
    a("s_mov_b64 exec, s[36:37]")
    a("ds_write_b64 v24, v[32:33]")
    a("s_mov_b64 exec, s[34:35]")
    a("ds_write_b64 v24, v[40:41] offset:256")
    a("s_mov_b64 exec, s[42:43]")
    a("ds_write_b16 v11, v8")
    a("s_waitcnt lgkmcnt(0)")
    a("s_barrier")
    stamp(a, 3)
    for t in range(16):
        a(f"ds_read_u16 v{76+t}, v{GA+t}")
        if t == 7: a("v_mov_b32 v72, 0\nv_mov_b32 v73, 0\nv_mov_b32 v74, 0\nv_mov_b32 v75, 0")
    a("s_waitcnt lgkmcnt(8)")
    for p in range(4):
        a(f"v_lshl_or_b32 v{64+p}, v{77+2*p}, 16, v{76+2*p}")
    a("global_store_dwordx4 v29, v[64:67], s[14:15] sc1")
    a("s_waitcnt lgkmcnt(0)")
    for p in range(4):
        a(f"v_lshl_or_b32 v{68+p}, v{85+2*p}, 16, v{84+2*p}")
    a("global_store_dwordx4 v30, v[68:71], s[14:15] sc1")
    a("v_cmp_gt_u32 vcc, 4, v26")
    a("s_and_saveexec_b64 s[42:43], vcc")
    a("s_cbranch_execz K1_END")
    a("global_store_dwordx4 v31, v[72:75], s[14:15] sc1")
    a("s_branch K1_END")
    a("K1_TSM:   ; LINT-RESET")
    a("s_sub_u32 s25, s2, 256")
    a("s_and_b32 s28, s25, 7")
    a("s_lshr_b32 s29, s25, 3")
    a("s_lshr_b32 s26, s29, 3")
    a("s_lshl_b32 s27, s28, 2")
    a("s_add_u32 s26, s26, s27")
    a("s_and_b32 s27, s29, 7")
    a("s_lshl_b32 s30, s28, 8")
    a("s_lshl_b32 s31, s29, 3")
    a("s_add_u32 s30, s30, s31")
    a("s_lshl_b32 s28, s26, 16")
    a("s_lshl_b32 s29, s27, 7")
    a("s_add_u32 s28, s28, s29")
    a("v_lshrrev_b32 v2, 3, v0")
    a("v_and_b32 v3, 7, v0")
    a("v_lshlrev_b32 v4, 10, v2")
    a("v_lshl_add_u32 v4, v3, 4, v4")
    a("v_add_u32 v4, s28, v4")
    a("v_add_u32 v5, 0x8000, v4")
    a("s_lshl_b32 s31, s24, 1")
    a("s_add_u32 s30, s30, s31")
    a("s_lshl_b32 s31, s30, 10")
    a("v_lshl_add_u32 v6, v1, 4, s31")
    a("s_and_b32 s33, s25, 7")
    a("s_mul_i32 s33, s33, 24")
    a("s_lshr_b32 s34, s25, 3")
    a("s_add_u32 s33, s33, s34")
    a("v_lshrrev_b32 v7, 1, v0")
    a("v_and_b32 v24, 1, v0")
    a("v_mul_u32_u24 v25, 6144, v7")
    a("v_lshl_add_u32 v25, v24, 4, v25")
    a("s_lshl_b32 s35, s33, 5")
    a("v_add_u32 v25, s35, v25")
    a("v_add_u32 v26, 786432, v25")
    a("v_add_u32 v27, 786432, v26")
    a("v_add_u32 v28, 786432, v27")
    a("v_lshlrev_b32 v29, 1, v7")
    a("s_waitcnt lgkmcnt(0)")
    wsfix(a, 14)
    a("global_load_dwordx4 v[8:11], v4, s[16:17]" + NT1)
    a("global_load_dwordx4 v[12:15], v5, s[16:17]" + NT1)
    a("global_load_dwordx4 v[16:19], v6, s[16:17]" + NT1)
    a("global_load_dwordx4 v[20:23], v6, s[16:17] offset:1024" + NT1)
    a("s_cmp_ge_u32 s25, 192")
    a("s_cbranch_scc1 K1_nomodld")
    for k in range(4):
        a(f"global_load_ushort v{48+k}, v29, s[20:21] offset:{256*k}")
    for k, vo in enumerate((25, 26, 27, 28)):
        a(f"global_load_dwordx4 v[{32+4*k}:{35+4*k}], v{vo}, s[22:23]" + NT1)
    a("K1_nomodld:")
    if OPT.get("cpf", "1") == "1":
        a("s_sub_u32 s65, s25, 192")
        a("s_cmp_ge_u32 s65, 16")
        a("s_cbranch_scc1 K1_nocpf")
        a("s_cmp_lg_u32 s24, 3")
        a("s_cbranch_scc1 K1_nocpf")
        code_prefetch(a, "k1_kernel", LASTLABEL, 6, "k1", 70, 72)
        TS = int(OPT.get("tlb", "0"))
        if TS:
            a("s_load_dwordx2 s[50:51], s[0:1], 64")
            a("s_load_dwordx2 s[52:53], s[0:1], 80")
            a("s_load_dwordx2 s[54:55], s[0:1], 112")
            a("s_load_dwordx2 s[56:57], s[0:1], 72")
            a("s_load_dwordx2 s[58:59], s[0:1], 88")
            a("s_load_dwordx2 s[60:61], s[0:1], 48")
            a(f"v_mul_u32_u24 v71, {TS}, v1")
            a("s_waitcnt lgkmcnt(0)")
            k = 80
            for (sr, size) in ((14, WS_USED), (50, 512*1376*2), (52, 512*1376*2), (54, 2048*512*2)):
                n = -(-size // (64 * TS))
                for i in range(n):
                    a(f"v_add_u32 v70, {i * 64 * TS}, v71")
                    a(f"v_cmp_gt_u32 vcc, {size}, v70")
                    a("s_and_saveexec_b64 s[62:63], vcc")
                    a(f"global_load_dword v{k}, v70, s[{sr}:{sr+1}]")
                    a("s_mov_b64 exec, s[62:63]")
                    k = 80 + (k - 80 + 1) % 40
            a("v_mov_b32 v70, 0")
            for sr in (56, 58, 60):
                a(f"global_load_dword v{k}, v70, s[{sr}:{sr+1}]"); k += 1
        a("s_waitcnt vmcnt(0)")
        a("K1_nocpf:   ; LINT-RESET")
    a("v_mul_u32_u24 v30, 160, v2")
    a("v_lshl_add_u32 v30, v3, 4, v30")
    a("s_cmp_ge_u32 s25, 192")
    a("s_cbranch_scc1 K1_w0")
    a("s_waitcnt vmcnt(10)")
    a("s_branch K1_w1")
    a("K1_w0:")
    a("s_waitcnt vmcnt(2)")
    a("K1_w1:   ; LINT-RESET (T loads have landed; S/mod loads may be outstanding)")
    stamp(a, 1)
    a("ds_write_b128 v30, v[8:11]")
    a("ds_write_b128 v30, v[12:15] offset:5120")
    a("s_cmp_ge_u32 s25, 192")
    a("s_cbranch_scc1 K1_w2")
    a("s_waitcnt vmcnt(8)")
    a("s_branch K1_w3")
    a("K1_w2:")
    a("s_waitcnt vmcnt(0)")
    a("K1_w3:   ; LINT-RESET")
    a("v_mov_b32 v31, 0x3f803f80")
    a("v_mov_b32 v52, 0\nv_mov_b32 v53, 0\nv_mov_b32 v54, 0\nv_mov_b32 v55, 0")
    for k in range(4):
        a(f"v_dot2_f32_bf16 v52, v{16+k}, v31, v52")
        a(f"v_dot2_f32_bf16 v53, v{16+k}, v{16+k}, v53")
        a(f"v_dot2_f32_bf16 v54, v{20+k}, v31, v54")
        a(f"v_dot2_f32_bf16 v55, v{20+k}, v{20+k}, v55")
    a("s_nop 1")
    for ctl in ("row_shr:1", "row_shr:2", "row_shr:4", "row_shr:8", "row_bcast:15 row_mask:0xa", "row_bcast:31 row_mask:0xc"):
        for r in range(52, 56):
            a(f"v_add_f32_dpp v{r}, v{r}, v{r} {ctl}")
        a("s_nop 0") if False else None
    a("s_nop 1")
    for k, r in enumerate(range(52, 56)):
        a(f"v_readlane_b32 s{36+k}, v{r}, 63")
    a("s_nop 1")
    a("v_cmp_eq_u32 vcc, 0, v1")
    a("v_mov_b32 v56, s38")
    a("v_mov_b32 v57, s39")
    a("v_mov_b32 v58, s36")
    a("v_mov_b32 v59, s37")
    a("v_cndmask_b32 v56, v56, v58, vcc")
    a("v_cndmask_b32 v57, v57, v59, vcc")
    a("v_mul_f32 v56, 0x3b000000, v56")
    a("v_mul_f32 v57, 0x3b000000, v57")
    a("v_fma_f32 v57, -v56, v56, v57")
    a("v_max_f32 v57, 0, v57")
    rbf(a, 56, 56)
    rbf(a, 57, 57)
    a("v_add_f32 v57, 0x3727c5ac, v57")
    rbf(a, 57, 57)
    a("v_sqrt_f32 v57, v57")
    a("s_nop 0")
    rbf(a, 57, 57)
    a("v_rcp_f32 v58, v57")
    a("s_nop 0")
    a("v_mul_f32 v59, v56, v58")
    a("v_sub_f32 v59, 0, v59")
    a("s_lshl_b32 s31, s30, 2")
    a(f"s_add_u32 s31, s31, {STAT1}")
    a("v_lshl_add_u32 v60, v1, 2, s31")
    a("v_add_u32 v61, 8192, v60")
    a("v_cmp_gt_u32 vcc, 2, v1")
    a("s_and_saveexec_b64 s[42:43], vcc")
    a("global_store_dword v60, v58, s[14:15]" + SC1)
    a("global_store_dword v61, v59, s[14:15]" + SC1)
    a("s_mov_b64 exec, s[42:43]")
    a("s_cmp_ge_u32 s25, 192")
    a("s_cbranch_scc1 K1_nomodc")
    a("s_waitcnt vmcnt(2)")
    for k in range(4):
        a(f"v_lshlrev_b32 v{48+k}, 16, v{48+k}")
    for k in range(4):
        a(f"v_mul_f32 v{52+k}, 0xbfb8aa3b, v{48+k}")
    for k in range(4):
        a(f"v_exp_f32 v{52+k}, v{52+k}")
    a("s_nop 0")
    for k in range(4):
        a(f"v_add_f32 v{52+k}, 1.0, v{52+k}")
    for k in range(4):
        a(f"v_rcp_f32 v{56+k}, v{52+k}")
    a("s_nop 0")
    for k in range(4):
        a(f"v_mul_f32 v{60+k}, v{48+k}, v{56+k}")
    for k in range(4):
        a(f"v_fma_f32 v{48+k}, -v{60+k}, v{52+k}, v{48+k}")
    for k in range(4):
        a(f"v_fma_f32 v{48+k}, v{48+k}, v{56+k}, v{60+k}")
    for k in range(4):
        rbf(a, 48 + k, 48 + k)
    for k in range(4):
        for p in range(4):
            w = 32 + 4 * k + p
            a(f"v_lshlrev_b32 v62, 16, v{w}")
            a(f"v_and_b32 v63, 0xffff0000, v{w}")
            if k == 0:
                a(f"v_mul_f32 v{64+2*p}, v62, v48")
                a(f"v_mul_f32 v{65+2*p}, v63, v48")
            else:
                a(f"v_fmac_f32 v{64+2*p}, v62, v{48+k}")
                a(f"v_fmac_f32 v{65+2*p}, v63, v{48+k}")
    a("v_lshlrev_b32 v61, 5, v0")
    a("ds_write_b128 v61, v[64:67] offset:10240")
    a("ds_write_b128 v61, v[68:71] offset:10256")
    a("K1_nomodc:")
    stamp(a, 2)
    a("s_waitcnt lgkmcnt(0)")
    a("s_barrier")
    stamp(a, 3)
    a("v_lshrrev_b32 v2, 4, v1")
    a("v_bfe_u32 v3, v1, 2, 2")
    a("v_and_b32 v4, 3, v1")
    a("v_lshl_add_u32 v5, v2, 3, v3")
    a("v_mul_u32_u24 v5, 160, v5")
    a("v_lshl_add_u32 v5, v4, 3, v5")
    a("s_lshl_b32 s31, s24, 5")
    a("v_add_u32 v5, s31, v5")
    a("ds_read_b64_tr_b16 v[8:9], v5")
    a("ds_read_b64_tr_b16 v[10:11], v5 offset:640")
    a(f"ds_read_b64_tr_b16 v[12:13], v5 offset:{32*160}")
    a(f"ds_read_b64_tr_b16 v[14:15], v5 offset:{36*160}")
    a("v_and_b32 v6, 15, v1")
    a("v_lshlrev_b32 v6, 12, v6")
    a("v_lshl_add_u32 v6, v2, 4, v6")
    a("s_lshl_b32 s31, s27, 18")
    a("s_lshl_b32 s32, s24, 16")
    a("s_add_u32 s31, s31, s32")
    a("s_lshl_b32 s32, s26, 7")
    a("s_add_u32 s31, s31, s32")
    a(f"s_add_u32 s31, s31, {XT}") if XT else None
    a("v_add_u32 v6, s31, v6")
    a("s_waitcnt lgkmcnt(2)")
    a("global_store_dwordx4 v6, v[8:11], s[14:15]" + SC1)
    a("s_waitcnt lgkmcnt(0)")
    a("global_store_dwordx4 v6, v[12:15], s[14:15] offset:64" + SC1)
    a("s_cmp_ge_u32 s25, 192")
    a("s_cbranch_scc1 K1_END")
    a("s_cmp_lg_u32 s24, 0")
    a("s_cbranch_scc1 K1_END")
    a("v_and_b32 v2, 15, v1")
    a("v_lshrrev_b32 v3, 4, v1")
    a("v_lshlrev_b32 v4, 11, v3")
    a("v_lshl_add_u32 v4, v2, 2, v4")
    for i in range(32):
        a(f"ds_read_b32 v{16+i}, v4 offset:{10240+64*i}")
        if i == 14: a("s_waitcnt lgkmcnt(7)")
    a("s_waitcnt lgkmcnt(0)")
    for st in (16, 8, 4, 2, 1):
        for i in range(st):
            a(f"v_add_f32 v{16+i}, v{16+i}, v{16+st+i}")
    a("s_nop 0")
    a("v_mov_b32 v17, v16")
    a("s_nop 1")
    a("v_permlane16_swap_b32 v16, v17")
    a("s_nop 0")
    a("v_add_f32 v16, v16, v17")
    a("s_nop 0")
    a("v_mov_b32 v17, v16")
    a("s_nop 1")
    a("v_permlane32_swap_b32 v16, v17")
    a("s_nop 0")
    a("v_add_f32 v16, v16, v17")
    rbf(a, 16, 16)
    a("s_lshl_b32 s31, s33, 6")
    a(f"s_add_u32 s31, s31, {MODF}")
    a("v_lshl_add_u32 v5, v2, 2, s31")
    a("v_cmp_gt_u32 vcc, 16, v1")
    a("s_and_saveexec_b64 s[42:43], vcc")
    a("global_store_dword v5, v16, s[14:15]" + SC1)
    a("K1_END:   ; LINT-RESET")
    stamp_store(a, 0, 14, 24)
    a("K1_EXIT:")
    a.end_kernel(name, 160, 100)


KC_CH = 33280
CS    = 4160
UB    = 66560
U_CH  = 7600
SCR   = 81792
FLG   = SCR + 16384
SIDE  = FLG + 64
SIDE_SZ = 11520
K2_LDS = SIDE + 4 * SIDE_SZ
FLAGS_OFF = 0x0638000

def conv_path(a, hb, tag):
    if hb == 0: steps = [(d, True) for d in range(24)]
    else: steps = [(d, True) for d in range(24, 32)] + [(d, False) for d in range(32, 64)]
    ACC = [32, 48]
    SET = [64, 88, 112]
    def reads(k):
        d, both = steps[k]; b = SET[k % 3]
        out = []
        for hf in (0, 1):
            out.append(f"ds_read_b128 v[{b+4*hf}:{b+4*hf+3}], v2 offset:{64*d + 32*(1-hf)}")
        tiles = (0, 1) if both else (1,)
        for t in tiles:
            for hf in (0, 1):
                r = b + 8 + 8 * t + 4 * hf
                out.append(f"ds_read_b128 v[{r}:{r+3}], v3 offset:{(31 + 32*t - d)*80 + 32*hf}")
        return out
    n = len(steps)
    for k in range(2):
        for x in reads(k): a(x)
    for k in range(n):
        d, both = steps[k]; b = SET[k % 3]
        nxt = reads(k + 2) if k + 2 < n else []
        after = len(nxt) + (len(reads(k + 1)) if k + 1 < n else 0)
        mf = []
        tiles = (0, 1) if both else (1,)
        for hf in (0, 1):
            for t in tiles:
                r = b + 8 + 8 * t + 4 * hf
                mf.append(f"v_mfma_f32_32x32x16_bf16 v[{ACC[t]}:{ACC[t]+15}], v[{b+4*hf}:{b+4*hf+3}], v[{r}:{r+3}], v[{ACC[t]}:{ACC[t]+15}]")
        after = len(reads(k + 1)) if k + 1 < n else 0
        a(f"s_waitcnt lgkmcnt({after})")
        per = -(-len(nxt) // len(mf)) if nxt else 0
        ri = 0
        for m in mf:
            a(m)
            for _ in range(per):
                if ri < len(nxt): a(nxt[ri]); ri += 1
    stamp(a, 6)
    give, keep = (ACC[1], ACC[0]) if hb == 0 else (ACC[0], ACC[1])
    a("s_nop 7")
    a("s_nop 3")
    for i in range(4):
        a(f"ds_write_b128 v4, v[{give+4*i}:{give+4*i+3}] offset:{1024*i}")
    for i in range(4):
        a(f"ds_read_b64 v[{64+2*i}:{65+2*i}], v6 offset:{16*i}")
    a("s_waitcnt lgkmcnt(0)")
    a("v_mov_b32 v72, 1")
    a("ds_write_b32 v7, v72")
    a("s_mov_b32 s63, 0x400000")
    a(f"K2_poll{tag}:")
    a("ds_read_b32 v73, v8")
    a("s_waitcnt lgkmcnt(0)")
    a("v_readfirstlane_b32 s40, v73")
    a("s_sub_u32 s63, s63, 1")
    a("s_cmp_eq_u32 s63, 0")
    a(f"s_cbranch_scc1 K2_pollx{tag}")
    a("s_cmp_eq_u32 s40, 1")
    a(f"s_cbranch_scc0 K2_poll{tag}")
    a(f"K2_pollx{tag}:")
    for i in range(4):
        a(f"ds_read_b128 v[{80+4*i}:{83+4*i}], v5 offset:{1024*i}")
    for i in range(4):
        for q in range(2):
            a(f"v_lshlrev_b32 v{96+4*i+2*q}, 16, v{64+2*i+q}")
            a(f"v_and_b32 v{97+4*i+2*q}, 0xffff0000, v{64+2*i+q}")
    a("s_waitcnt vmcnt(0)")
    for i in range(4):
        for q in range(2):
            a(f"v_lshlrev_b32 v{112+4*i+2*q}, 16, v{144+2*i+q}")
            a(f"v_and_b32 v{113+4*i+2*q}, 0xffff0000, v{144+2*i+q}")
    a("s_waitcnt lgkmcnt(0)")
    for j in range(8):
        a(f"v_pk_add_f32 v[{keep+2*j}:{keep+2*j+1}], v[{keep+2*j}:{keep+2*j+1}], v[{80+2*j}:{81+2*j}]")
    for j in range(8):
        a(f"v_pk_fma_f32 v[{keep+2*j}:{keep+2*j+1}], v[{96+2*j}:{97+2*j}], s[36:37], v[{keep+2*j}:{keep+2*j+1}] op_sel_hi:[1,0,1]")
    for j in range(8):
        a(f"v_pk_fma_f32 v[{keep+2*j}:{keep+2*j+1}], v[{keep+2*j}:{keep+2*j+1}], s[36:37], v[{112+2*j}:{113+2*j}] op_sel:[0,1,0] op_sel_hi:[1,1,1]")
    for j in range(8):
        a(f"v_cvt_pk_bf16_f32 v{64+j}, v{keep+2*j}, v{keep+2*j+1}")
    for i in range(4):
        a(f"ds_write_b64 v10, v[{64+2*i}:{65+2*i}] offset:{16*i}")
    a("s_waitcnt lgkmcnt(0)")
    a("ds_read_b128 v[72:75], v11")
    a("ds_read_b128 v[76:79], v11 offset:1280")
    a("s_waitcnt lgkmcnt(1)")
    a("global_store_dwordx4 v9, v[72:75], s[14:15]" + SC1)
    a("s_waitcnt lgkmcnt(0)")
    a("global_store_dwordx4 v12, v[76:79], s[14:15]" + SC1)
    a("s_branch K2_END")

def side_load_and_stage(a):
    for i in range(8):
        a(f"buffer_load_dwordx4 v[{32+4*i}:{35+4*i}], v10, s[44:47], s49 offen nt")
        if i < 7: a("s_add_u32 s49, s49, s48")

def k2(a):
    name = "k2_kernel"
    a.begin_kernel(name, 256, 512, K2_LDS)
    a("s_cmp_ge_u32 s2, 256")
    a("s_cbranch_scc1 K2_EXIT")
    stamp(a, 0)
    a("s_load_dwordx2 s[14:15], s[0:1], 128")
    a("s_load_dwordx2 s[12:13], s[0:1], 48")
    a("s_load_dwordx2 s[16:17], s[0:1], 64")
    a("s_load_dwordx2 s[18:19], s[0:1], 80")
    wave_id(a, 24, 1)
    a("v_and_b32 v1, 63, v0")
    a("s_cmp_ge_u32 s24, 4")
    a("s_cbranch_scc1 K2_SIDE")
    a("s_lshl_b32 s27, s2, 1")
    a("s_lshr_b32 s25, s24, 1")
    a("s_and_b32 s26, s24, 1")
    a("s_lshl_b32 s28, s27, 12")
    a(f"s_add_u32 s28, s28, {XT}") if XT else None
    a("v_lshl_add_u32 v44, v0, 4, s28")
    a("v_add_u32 v45, 4096, v44")
    a("v_lshlrev_b32 v46, 5, v0")
    a(f"v_add_u32 v46, {STAT1}, v46")
    a(f"v_add_u32 v47, 8192, v46")
    a(f"s_mul_i32 s29, s27, {KW}")
    a(f"s_add_u32 s29, s29, {KREV + 4080}")
    a("v_lshlrev_b32 v48, 4, v0")
    a("v_sub_u32 v48, s29, v48")
    a(f"v_add_u32 v49, {KW}, v48")
    a("v_and_b32 v50, 31, v1")
    a("v_lshrrev_b32 v51, 5, v1")
    a("s_lshl_b32 s30, s25, 12")
    a("s_add_u32 s30, s30, s28")
    a("s_lshl_b32 s31, s26, 11")
    a("s_add_u32 s30, s30, s31")
    a("v_lshlrev_b32 v52, 6, v50")
    a("v_lshl_add_u32 v52, v51, 3, v52")
    a("v_add_u32 v52, s30, v52")
    a("s_lshl_b32 s32, s27, 2")
    a(f"s_add_u32 s33, s32, {MODF}")
    a(f"s_add_u32 s34, s32, {MODF + 2048}")
    a(f"s_add_u32 s35, s32, {MODF + 4096}")
    a("s_lshl_b32 s31, s2, 2")
    a("s_waitcnt lgkmcnt(0)")
    wsfix(a, 14)
    a("global_load_dwordx4 v[28:31], v48, s[14:15]")
    a("global_load_dwordx4 v[32:35], v48, s[14:15] offset:16")
    a("global_load_dwordx4 v[36:39], v49, s[14:15]")
    a("global_load_dwordx4 v[40:43], v49, s[14:15] offset:16")
    a("global_load_dwordx4 v[4:7], v44, s[14:15]")
    a("global_load_dwordx4 v[8:11], v45, s[14:15]")
    a("global_load_dwordx4 v[12:15], v46, s[14:15]")
    a("global_load_dwordx4 v[16:19], v46, s[14:15] offset:16")
    a("global_load_dwordx4 v[20:23], v47, s[14:15]")
    a("global_load_dwordx4 v[24:27], v47, s[14:15] offset:16")
    for i in range(4):
        a(f"global_load_dwordx2 v[{144+2*i}:{145+2*i}], v52, s[14:15] offset:{16*i}")
    a("s_load_dwordx2 s[50:51], s[14:15], s33")
    a("s_load_dwordx2 s[52:53], s[14:15], s34")
    a("s_load_dwordx2 s[54:55], s[14:15], s35")
    a("s_load_dword s56, s[12:13], s31")
    a("v_mov_b32 v56, 0\nv_mov_b32 v57, 0\nv_mov_b32 v58, 0\nv_mov_b32 v59, 0")
    a("v_mul_u32_u24 v53, 171, v0")
    a("v_lshrrev_b32 v53, 9, v53")
    a("v_mul_u32_u24 v54, 3, v53")
    a("v_sub_u32 v54, v0, v54")
    a(f"v_mul_u32_u24 v53, {CS}, v53")
    a("v_lshl_add_u32 v53, v54, 4, v53")
    a("v_cmp_gt_u32 vcc, 48, v0")
    a("s_and_saveexec_b64 s[42:43], vcc")
    a("ds_write_b128 v53, v[56:59]")
    a("s_mov_b64 exec, s[42:43]")
    a("v_lshlrev_b32 v53, 4, v0")
    a(f"v_add_u32 v53, {UB}, v53")
    a("v_cmp_gt_u32 vcc, 155, v0")
    a("s_and_saveexec_b64 s[42:43], vcc")
    a(f"ds_write_b128 v53, v[56:59]")
    a(f"ds_write_b128 v53, v[56:59] offset:{U_CH}")
    a("s_mov_b64 exec, s[42:43]")
    a("v_lshlrev_b32 v53, 2, v0")
    a("v_cmp_gt_u32 vcc, 4, v0")
    a("s_and_saveexec_b64 s[42:43], vcc")
    a(f"v_add_u32 v53, {FLG}, v53")
    a("ds_write_b32 v53, v56")
    a("s_mov_b64 exec, s[42:43]")
    a("v_and_b32 v53, 7, v50")
    a("v_lshrrev_b32 v54, 3, v50")
    a(f"v_mul_u32_u24 v2, {CS}, v53")
    a("v_sub_u32 v54, v54, v51")
    a("v_add_u32 v54, 1, v54")
    a("v_lshl_add_u32 v2, v54, 4, v2")
    a(f"s_mul_i32 s38, s25, {KC_CH}")
    a("v_add_u32 v2, s38, v2")
    a("v_mul_u32_u24 v3, 80, v50")
    a("v_lshl_add_u32 v3, v51, 4, v3")
    a(f"s_mul_i32 s38, s25, {U_CH}")
    a(f"s_add_u32 s38, s38, {UB}")
    a("v_add_u32 v3, s38, v3")
    a("v_lshlrev_b32 v55, 4, v0")
    a("v_add_u32 v55, 48, v55")
    for c in range(2):
        W = 28 + 8 * c
        a(f"s_waitcnt vmcnt({12 - 2*c})")
        V = 60
        for j in range(7): a(f"v_alignbit_b32 v{V+j}, v{W+j+1}, v{W+j}, 16")
        for j in range(1, 7): a(f"v_alignbit_b32 v{68+j-1}, v{W+j+1}, v{W+j}, 16")
        for j in range(1, 7): a(f"v_mov_b32 v{76+j-1}, v{W+j}")
        off = c * KC_CH
        a(f"ds_write_b128 v55, v[{W}:{W+3}] offset:{off + 7*CS}")
        a(f"ds_write_b128 v55, v[{W+2}:{W+5}] offset:{off + 3*CS}")
        a(f"ds_write_b128 v55, v[{V}:{V+3}] offset:{off + 6*CS}")
        a(f"ds_write_b128 v55, v[{V+2}:{V+5}] offset:{off + 2*CS}")
        a(f"ds_write_b128 v55, v[68:71] offset:{off + 4*CS}")
        a(f"ds_write_b128 v55, v[70:73] offset:{off + 0*CS}")
        a(f"ds_write_b128 v55, v[76:79] offset:{off + 5*CS}")
        a(f"ds_write_b128 v55, v[78:81] offset:{off + 1*CS}")
    a("s_waitcnt vmcnt(4) lgkmcnt(0)")
    a("v_add_f32 v60, 1.0, s52")
    a("v_add_f32 v61, 1.0, s53")
    rbf(a, 60, 60); rbf(a, 61, 61)
    a("s_nop 0")
    a("v_readfirstlane_b32 s58, v60")
    a("v_readfirstlane_b32 s60, v61")
    a("s_mov_b32 s59, s50")
    a("s_mov_b32 s61, s51")
    a("s_lshl_b32 s38, s25, 4")
    a("s_lshr_b32 s36, s56, s38")
    a("s_lshl_b32 s36, s36, 16")
    a("s_cmp_eq_u32 s25, 0")
    a("s_cselect_b32 s37, s54, s55")
    a("v_lshrrev_b32 v62, 2, v0")
    a("v_mul_u32_u24 v62, 80, v62")
    a("v_and_b32 v63, 3, v0")
    a("v_lshl_add_u32 v62, v63, 4, v62")
    a(f"v_add_u32 v62, {UB + 31*80}, v62")
    for c in range(2):
        X = 4 + 4 * c
        for q in range(4):
            a(f"v_lshlrev_b32 v{64+2*q}, 16, v{X+q}")
            a(f"v_and_b32 v{65+2*q}, 0xffff0000, v{X+q}")
        for q in range(4):
            a(f"v_pk_fma_f32 v[{64+2*q}:{65+2*q}], v[{64+2*q}:{65+2*q}], v[{12+2*q}:{13+2*q}], v[{20+2*q}:{21+2*q}]")
        for q in range(4):
            a(f"v_pk_fma_f32 v[{64+2*q}:{65+2*q}], v[{64+2*q}:{65+2*q}], s[{58+2*c}:{59+2*c}], s[{58+2*c}:{59+2*c}] op_sel:[0,0,1] op_sel_hi:[1,0,1]")
        for q in range(4):
            a(f"v_cvt_pk_bf16_f32 v{72+4*c+q}, v{64+2*q}, v{65+2*q}")
        a(f"ds_write_b128 v62, v[{72+4*c}:{75+4*c}] offset:{c*U_CH}")
    a("s_lshl_b32 s38, s24, 12")
    a(f"s_add_u32 s38, s38, {SCR}")
    a("v_lshl_add_u32 v4, v1, 4, s38")
    a("s_xor_b32 s39, s24, 1")
    a("s_lshl_b32 s38, s39, 12")
    a(f"s_add_u32 s38, s38, {SCR}")
    a("v_lshl_add_u32 v5, v1, 4, s38")
    a("s_lshl_b32 s38, s24, 2")
    a(f"s_add_u32 s38, s38, {FLG}")
    a("v_mov_b32 v7, s38")
    a("s_lshl_b32 s38, s39, 2")
    a(f"s_add_u32 s38, s38, {FLG}")
    a("v_mov_b32 v8, s38")
    a("v_mul_u32_u24 v6, 80, v50")
    a("v_lshl_add_u32 v6, v51, 3, v6")
    a(f"s_mul_i32 s38, s25, {U_CH}")
    a(f"s_mul_i32 s39, s26, {32*80}")
    a("s_add_u32 s38, s38, s39")
    a(f"s_add_u32 s38, s38, {UB + 31*80}")
    a("v_add_u32 v6, s38, v6")
    a("s_add_u32 s38, s27, s25")
    a("s_lshl_b32 s38, s38, 7")
    a("s_lshl_b32 s39, s26, 20")
    a("s_add_u32 s38, s38, s39")
    a(f"s_add_u32 s38, s38, {X2T}")
    a("v_lshrrev_b32 v9, 3, v1")
    a("v_lshlrev_b32 v9, 16, v9")
    a("v_and_b32 v63, 7, v1")
    a("v_lshl_add_u32 v9, v63, 4, v9")
    a("v_add_u32 v9, s38, v9")
    a("v_add_u32 v12, 0x80000, v9")
    a(f"s_mul_i32 s38, s25, {KC_CH}")
    a("s_mul_i32 s39, s26, 2560")
    a("s_add_u32 s38, s38, s39")
    a("v_mul_u32_u24 v10, 80, v50")
    a("v_lshl_add_u32 v10, v51, 3, v10")
    a("v_add_u32 v10, s38, v10")
    a("v_lshrrev_b32 v11, 2, v1")
    a("v_mul_u32_u24 v11, 80, v11")
    a("v_and_b32 v63, 3, v1")
    a("v_lshl_add_u32 v11, v63, 4, v11")
    a("v_add_u32 v11, s38, v11")
    for r in range(32, 64): a(f"v_mov_b32 v{r}, 0")
    stamp(a, 1)
    a("s_waitcnt lgkmcnt(0)")
    a("s_barrier")
    stamp(a, 2)
    a("s_cmp_eq_u32 s26, 0")
    a("s_cbranch_scc0 K2_B")
    conv_path(a, 0, "A")
    a("K2_B:   ; LINT-RESET")
    conv_path(a, 1, "B")
    a("K2_SIDE:   ; LINT-RESET")
    a("s_sub_u32 s25, s24, 4")
    a("s_lshl_b32 s26, s25, 8")
    a("s_add_u32 s26, s26, s2")
    a(f"s_mul_i32 s27, s25, {SIDE_SZ}")
    a(f"s_add_u32 s27, s27, {SIDE}")
    a("s_cmp_gt_u32 s26, 348")
    a("s_cbranch_scc1 K2_SIDE_IDLE")
    a("s_cmp_eq_u32 s26, 348")
    a("s_cbranch_scc1 K2_TAB")
    a("v_lshrrev_b32 v2, 2, v1")
    a("v_and_b32 v3, 3, v1")
    a("v_lshrrev_b32 v4, 4, v1")
    a("v_bfe_u32 v5, v1, 2, 2")
    a("v_mul_u32_u24 v11, 80, v2")
    a("v_lshl_add_u32 v11, v3, 4, v11")
    a("v_add_u32 v11, s27, v11")
    a("v_lshl_add_u32 v12, v4, 2, v5")
    a("v_mul_u32_u24 v12, 80, v12")
    a("v_lshl_add_u32 v12, v3, 3, v12")
    a("v_add_u32 v12, s27, v12")
    a("s_cmp_ge_u32 s26, 172")
    a("s_cbranch_scc1 K2_W2")
    a("s_mul_i32 s28, s26, 1525")
    a("s_lshr_b32 s28, s28, 16")
    a("s_mul_i32 s29, s28, 43")
    a("s_sub_u32 s29, s26, s29")
    a("v_mul_u32_u24 v10, 2752, v2")
    a("v_lshl_add_u32 v10, v3, 4, v10")
    a(f"s_mul_i32 s49, s28, {128*2752}")
    a("s_lshl_b32 s30, s29, 6")
    a("s_add_u32 s49, s49, s30")
    a(f"s_mov_b32 s48, {16*2752}")
    a("s_lshl_b32 s31, s28, 9")
    a("v_lshl_add_u32 v13, v1, 2, s31")
    a(f"v_add_u32 v13, {MODF + 3*2048}, v13")
    a("v_add_u32 v14, 2048, v13")
    a("s_waitcnt lgkmcnt(0)")
    wsfix(a, 14)
    a.srd(44, 16, 512 * 1376 * 2)
    a("global_load_dword v20, v13, s[14:15]")
    a("global_load_dword v21, v13, s[14:15] offset:256")
    a("global_load_dword v22, v14, s[14:15]")
    a("global_load_dword v23, v14, s[14:15] offset:256")
    side_load_and_stage(a)
    a("s_barrier")
    a("s_waitcnt vmcnt(8)")
    a("v_add_f32 v22, 1.0, v22")
    a("v_add_f32 v23, 1.0, v23")
    rbf(a, 22, 22); rbf(a, 23, 23)
    a("v_lshl_add_u32 v15, v1, 2, s27")
    a("v_lshl_add_u32 v16, v1, 1, s27")
    a("ds_write_b32 v15, v22 offset:10240")
    a("ds_write_b32 v15, v23 offset:10496")
    a("ds_write_b16_d16_hi v16, v20 offset:10752")
    a("ds_write_b16_d16_hi v16, v21 offset:10880")
    for i in range(8):
        a(f"s_waitcnt vmcnt({7-i})")
        a(f"ds_write_b128 v11, v[{32+4*i}:{35+4*i}] offset:{16*80*i}")
    a("v_and_b32 v17, 15, v1")
    a("v_cmp_eq_u32 s[50:51], 0, v17")
    a("v_cmp_eq_u32 s[52:53], 1, v17")
    a("v_mov_b32 v18, 0")
    a("v_mov_b32 v19, 0x3f803f80")
    a("v_cndmask_b32 v18, v18, v19, s[50:51]")
    a("v_mov_b32 v19, 0")
    a("v_cndmask_b32 v19, v19, -1, s[52:53]")
    a("v_lshl_add_u32 v24, v4, 4, s27")
    a("v_lshl_add_u32 v25, v4, 3, s27")
    for r in range(96, 112): a(f"v_mov_b32 v{r}, 0")
    a("s_lshl_b32 s30, s29, 11")
    a(f"s_mul_i32 s31, s28, {4*87*1024}")
    a("s_add_u32 s30, s30, s31")
    a(f"s_add_u32 s30, s30, {W1F}")
    a("v_lshl_add_u32 v26, v1, 4, s30")
    a("s_waitcnt lgkmcnt(0)")
    for ks in range(4):
        a(f"ds_read_b128 v[32:35], v24 offset:{10240 + 128*ks}")
        a(f"ds_read_b128 v[36:39], v24 offset:{10240 + 128*ks + 64}")
        a(f"ds_read_b64 v[40:41], v25 offset:{10752 + 64*ks}")
        a(f"ds_read_b64 v[42:43], v25 offset:{10752 + 64*ks + 32}")
        for nt in range(2):
            for hf in range(2):
                a(f"ds_read_b64_tr_b16 v[{44+4*nt+2*hf}:{45+4*nt+2*hf}], v12 offset:{(32*ks+16*hf)*80 + 32*nt}")
        a("s_waitcnt lgkmcnt(4)")
        for q in range(4): a(f"v_and_or_b32 v{40+q}, v{40+q}, v19, v18")
        a("s_waitcnt lgkmcnt(0)")
        for nt in range(2):
            R = 44 + 4 * nt
            for q in range(4):
                a(f"v_lshlrev_b32 v{52+2*q}, 16, v{R+q}")
                a(f"v_and_b32 v{53+2*q}, 0xffff0000, v{R+q}")
            a(f"v_mfma_f32_16x16x32_bf16 v[{96+4*nt}:{99+4*nt}], v[{R}:{R+3}], v[40:43], v[{96+4*nt}:{99+4*nt}]")
            for q in range(4):
                a(f"v_pk_mul_f32 v[{52+2*q}:{53+2*q}], v[{52+2*q}:{53+2*q}], v[{32+2*q}:{33+2*q}]")
            S = 60 + 4 * nt
            for q in range(4):
                a(f"v_cvt_pk_bf16_f32 v{S+q}, v{52+2*q}, v{53+2*q}")
            a(f"global_store_dwordx4 v26, v[{S}:{S+3}], s[14:15] offset:{1024*nt}" + SC1)
            if nt == 1: a(f"v_add_u32 v26, {87*1024}, v26")
            a("s_nop 0")
            a(f"v_mfma_f32_16x16x32_bf16 v[{104+4*nt}:{107+4*nt}], v[{S}:{S+3}], v[40:43], v[{104+4*nt}:{107+4*nt}]")
    a(f"s_mul_i32 s30, s28, {3*5504}")
    a("s_lshl_b32 s31, s29, 7")
    a("s_add_u32 s30, s30, s31")
    a(f"s_add_u32 s30, s30, {SVP}")
    a("v_lshl_add_u32 v28, v4, 4, s30")
    a("v_add_u32 v29, 5504, v28")
    a("v_add_u32 v30, 5504, v29")
    a("s_nop 7")
    a("s_mov_b64 s[42:43], exec")
    a("s_mov_b64 exec, s[50:51]")
    for nt in range(2):
        a(f"global_store_dwordx4 v28, v[{104+4*nt}:{107+4*nt}], s[14:15] offset:{64*nt}" + SC1)
        a(f"global_store_dwordx4 v30, v[{96+4*nt}:{99+4*nt}], s[14:15] offset:{64*nt}" + SC1)
    a("s_mov_b64 exec, s[52:53]")
    for nt in range(2):
        a(f"global_store_dwordx4 v29, v[{96+4*nt}:{99+4*nt}], s[14:15] offset:{64*nt}" + SC1)
    a("s_mov_b64 exec, s[42:43]")
    a("s_branch K2_END")
    a("K2_W2:   ; LINT-RESET")
    a("s_sub_u32 s26, s26, 172")
    a("s_and_b32 s29, s26, 15")
    a("s_lshr_b32 s28, s26, 4")
    a("v_lshlrev_b32 v10, 10, v2")
    a("v_lshl_add_u32 v10, v3, 4, v10")
    a("s_lshl_b32 s30, s29, 6")
    a("s_waitcnt lgkmcnt(0)")
    wsfix(a, 14)
    a.srd(44, 18, 1376 * 512 * 2)
    for ks in range(4):
        a("s_lshl_b32 s31, s28, 2")
        a(f"s_add_u32 s31, s31, {ks}")
        a("s_mul_i32 s32, s31, 13")
        a("s_lshr_b32 s32, s32, 6")
        a("s_mul_i32 s33, s32, 5")
        a("s_sub_u32 s33, s31, s33")
        a("s_mul_i32 s32, s32, 11")
        a("s_min_u32 s32, s32, 76")
        a("s_lshl_b32 s33, s33, 1")
        a("s_add_u32 s32, s32, s33")
        a("s_add_u32 s33, s32, 1")
        a("s_sub_u32 s34, s31, 40")
        a("s_mul_i32 s34, s34, 22")
        a("s_add_u32 s35, s34, 21")
        a("s_add_u32 s34, s34, 10")
        a("s_cmp_lt_u32 s31, 40")
        a("s_cselect_b32 s32, s32, s34")
        a("s_cselect_b32 s33, s33, s35")
        for hf, sr in ((0, 32), (1, 33)):
            a(f"s_lshl_b32 s49, s{sr}, 14")
            a("s_add_u32 s49, s49, s30")
            i = 2 * ks + hf
            a(f"buffer_load_dwordx4 v[{32+4*i}:{35+4*i}], v10, s[44:47], s49 offen nt")
    a("s_barrier")
    for i in range(8):
        a(f"s_waitcnt vmcnt({7-i})")
        a(f"ds_write_b128 v11, v[{32+4*i}:{35+4*i}] offset:{16*80*i}")
    a("s_lshr_b32 s30, s29, 1")
    a("s_mul_i32 s30, s30, 43")
    a("s_lshl_b32 s31, s28, 2")
    a("s_add_u32 s30, s30, s31")
    a("s_lshl_b32 s30, s30, 12")
    a("s_and_b32 s31, s29, 1")
    a("s_lshl_b32 s31, s31, 11")
    a("s_add_u32 s30, s30, s31")
    a(f"s_add_u32 s30, s30, {W2F}")
    a("v_lshl_add_u32 v26, v1, 4, s30")
    a("s_waitcnt lgkmcnt(0)")
    for ks in range(4):
        if ks == 3:
            a("s_cmp_eq_u32 s28, 10")
            a("s_cbranch_scc1 K2_END")
        for nt in range(2):
            for hf in range(2):
                a(f"ds_read_b64_tr_b16 v[{44+4*nt+2*hf}:{45+4*nt+2*hf}], v12 offset:{(32*ks+16*hf)*80 + 32*nt}")
        a("s_waitcnt lgkmcnt(2)")
        a(f"global_store_dwordx4 v26, v[44:47], s[14:15]" + SC1)
        a("s_waitcnt lgkmcnt(0)")
        a(f"global_store_dwordx4 v26, v[48:51], s[14:15] offset:1024" + SC1)
        a("v_add_u32 v26, 4096, v26")
    a("s_branch K2_END")
    a("K2_TAB:   ; LINT-RESET")
    a("v_lshlrev_b32 v2, 5, v1")
    a(f"v_add_u32 v2, {MODF + 3*2048}, v2")
    a("v_add_u32 v3, 2048, v2")
    a("s_waitcnt lgkmcnt(0)")
    wsfix(a, 14)
    a("global_load_dwordx4 v[32:35], v2, s[14:15]")
    a("global_load_dwordx4 v[36:39], v2, s[14:15] offset:16")
    a("global_load_dwordx4 v[40:43], v3, s[14:15]")
    a("global_load_dwordx4 v[44:47], v3, s[14:15] offset:16")
    a("s_barrier")
    a("s_waitcnt vmcnt(0)")
    for j in range(8): a(f"v_add_f32 v{40+j}, 1.0, v{40+j}")
    for j in range(8): rbf(a, 40 + j, 40 + j)
    for j in range(8): a(f"v_mul_f32 v{48+j}, v{40+j}, v{40+j}")
    for j in range(8): a(f"v_mul_f32 v{56+j}, v{40+j}, v{32+j}")
    for k, base in enumerate((40, 48, 56, 32)):
        a(f"v_add_f32 v{100+k}, v{base}, v{base+1}")
        for j in range(2, 8): a(f"v_add_f32 v{100+k}, v{100+k}, v{base+j}")
    a("v_mul_f32 v104, v32, v32")
    for j in range(1, 8): a(f"v_fmac_f32 v104, v{32+j}, v{32+j}")
    a("v_lshl_add_u32 v4, v1, 4, s27")
    a("v_mov_b32 v64, 0x3f803f80\nv_mov_b32 v65, 0x3f803f80\nv_mov_b32 v66, 0x3f803f80\nv_mov_b32 v67, 0x3f803f80")
    a("ds_write_b128 v4, v[64:67]")
    for q in range(4): a(f"v_cvt_pk_bf16_f32 v{68+q}, v{40+2*q}, v{41+2*q}")
    a("ds_write_b128 v4, v[68:71] offset:1024")
    for (src, row) in ((48, 2), (56, 4)):
        for q in range(4): a(f"v_cvt_pk_bf16_f32 v{72+q}, v{src+2*q}, v{src+2*q+1}")
        a(f"ds_write_b128 v4, v[72:75] offset:{1024*row}")
        for q in range(4):
            a(f"v_lshlrev_b32 v{80+2*q}, 16, v{72+q}")
            a(f"v_and_b32 v{81+2*q}, 0xffff0000, v{72+q}")
        for j in range(8): a(f"v_sub_f32 v{80+j}, v{src+j}, v{80+j}")
        for q in range(4): a(f"v_cvt_pk_bf16_f32 v{76+q}, v{80+2*q}, v{81+2*q}")
        a(f"ds_write_b128 v4, v[76:79] offset:{1024*(row+1)}")
    a("s_nop 1")
    for ctl in ("row_shr:1", "row_shr:2", "row_shr:4", "row_shr:8", "row_bcast:15 row_mask:0xa", "row_bcast:31 row_mask:0xc"):
        for r in range(100, 105):
            a(f"v_add_f32_dpp v{r}, v{r}, v{r} {ctl}")
    a(f"v_mov_b32 v5, {SCAL}")
    a("s_mov_b64 s[42:43], exec")
    a("s_mov_b64 exec, 0x8000000000000000") if False else None
    a("v_cmp_eq_u32 vcc, 63, v1")
    a("s_and_saveexec_b64 s[42:43], vcc")
    a("global_store_dwordx4 v5, v[100:103], s[14:15]" + SC1)
    a("global_store_dword v5, v104, s[14:15] offset:16" + SC1)
    a("s_mov_b64 exec, s[42:43]")
    a("v_and_b32 v6, 15, v1")
    a("v_lshrrev_b32 v7, 4, v1")
    a("v_min_u32 v8, 5, v6")
    a("v_lshlrev_b32 v8, 10, v8")
    a("v_lshl_add_u32 v8, v7, 3, v8")
    a("v_add_u32 v8, s27, v8")
    a("v_cmp_gt_u32 vcc, 6, v6")
    a("v_mov_b32 v9, 0")
    a("s_nop 0")
    a("v_cndmask_b32 v9, v9, -1, vcc")
    a(f"s_mov_b32 s30, {W1F + 86*1024}")
    a("v_lshl_add_u32 v10, v1, 4, s30")
    a("s_waitcnt lgkmcnt(0)")
    for ks in range(16):
        R = 16 + 4 * (ks & 1)
        a(f"ds_read_b64 v[{R}:{R+1}], v8 offset:{64*ks}")
        a(f"ds_read_b64 v[{R+2}:{R+3}], v8 offset:{64*ks+32}")
        a("s_waitcnt lgkmcnt(0)")
        for q in range(4): a(f"v_and_b32 v{R+q}, v{R+q}, v9")
        a(f"global_store_dwordx4 v10, v[{R}:{R+3}], s[14:15]" + SC1)
        a(f"v_add_u32 v10, {87*1024}, v10")
    a("s_branch K2_END")
    a("K2_SIDE_IDLE:   ; LINT-RESET")
    a("s_cmp_eq_u32 s26, 349")
    a("s_cbranch_scc0 K2_idle2")
    a("s_waitcnt lgkmcnt(0)")
    wsfix(a, 14)
    a("v_mov_b32 v4, 0\nv_mov_b32 v5, 0\nv_mov_b32 v6, 0\nv_mov_b32 v7, 0")
    a("v_lshlrev_b32 v2, 4, v1")
    a(f"v_add_u32 v2, {FLAGS_OFF}, v2")
    for q in range(4):
        a(f"global_store_dwordx4 v2, v[4:7], s[14:15] offset:{1024*q} sc1")
    a("K2_idle2:")
    a("s_barrier")
    a("K2_END:   ; LINT-RESET")
    stamp_store(a, 1, 14, 24)
    a("K2_EXIT:")
    a.end_kernel(name, 160, 100)


KG   = SIDE + 4 * SIDE_SZ
KG_PAR = KG
KG_T16 = KG + 4096
KG_REV = KG + 4096 + 2816
LF   = KG_REV + 2 * 4160
K12_LDS = LF + 64
KG_PART = SCR
GBAR = 0x0639000
WCNT = GBAR + 10752

_sync_id = [0]
def wsync(a, addr, n, vt, st, add=True):
    _sync_id[0] += 1
    L = f"WS_{_sync_id[0]}"
    a("s_waitcnt lgkmcnt(0)")
    if isinstance(addr, str): a(f"v_mov_b32 v{vt}, {addr}")
    else: a(f"v_mov_b32 v{vt}, {addr}")
    if add:
        a(f"v_mov_b32 v{vt+1}, 1")
        a("s_mov_b64 exec, 1")
        a(f"ds_add_u32 v{vt}, v{vt+1}")
        a("s_mov_b64 exec, -1")
    a("s_mov_b32 s63, 0x400000")
    a(f"{L}:")
    a(f"ds_read_b32 v{vt+1}, v{vt}")
    a("s_waitcnt lgkmcnt(0)")
    a(f"v_readfirstlane_b32 s{st}, v{vt+1}")
    a("s_sub_u32 s63, s63, 1")
    a("s_cmp_eq_u32 s63, 0")
    a(f"s_cbranch_scc1 {L}_x")
    a(f"s_cmp_ge_u32 s{st}, {n}")
    a(f"s_cbranch_scc0 {L}")
    a(f"{L}_x:")

def k12(a):
    name = "k12_kernel"
    a.begin_kernel(name, 256, 512, K12_LDS)
    a("s_cmp_ge_u32 s2, 256")
    a("s_cbranch_scc1 K2_EXIT")
    stamp(a, 0)
    a("s_load_dwordx8 s[4:11], s[0:1], 8")
    a("s_load_dwordx4 s[44:47], s[0:1], 40")
    a("s_load_dwordx2 s[14:15], s[0:1], 128")
    a("s_load_dwordx2 s[16:17], s[0:1], 0")
    a("s_load_dwordx2 s[18:19], s[0:1], 120")
    a("s_load_dwordx4 s[20:23], s[0:1], 96")
    a("s_load_dwordx2 s[48:49], s[0:1], 64")
    a("s_load_dwordx2 s[12:13], s[0:1], 80")
    wave_id(a, 24, 1)
    a("v_and_b32 v1, 63, v0")
    if OPT.get("cpf", "1") == "1":
        a("s_cmp_ge_u32 s2, 16")
        a("s_cbranch_scc1 K12_nocpf")
        a("s_cmp_lg_u32 s24, 7")
        a("s_cbranch_scc1 K12_nocpf")
        code_prefetch(a, "k12_kernel", LASTLABEL, 6, "k1", 199, 200)
        a("K12_nocpf:")
    a("v_lshlrev_b32 v2, 2, v0")
    a(f"v_add_u32 v2, {LF}, v2")
    a("v_mov_b32 v3, 0")
    a("v_cmp_gt_u32 vcc, 16, v0")
    a("s_and_saveexec_b64 s[42:43], vcc")
    a("ds_write_b32 v2, v3")
    a("s_mov_b64 exec, s[42:43]")
    a("s_cmp_ge_u32 s24, 4")
    a("s_cbranch_scc1 K12_SIDE0")
    a("s_lshr_b32 s25, s24, 1")
    a("s_and_b32 s26, s24, 1")
    a("s_lshl_b32 s62, s2, 1")
    a("s_add_u32 s27, s62, s25")
    a("s_lshl_b32 s28, s27, 8")
    a("s_lshl_b32 s29, s26, 7")
    a("s_add_u32 s28, s28, s29")
    a("v_lshl_add_u32 v2, v1, 1, s28")
    a("s_lshl_b32 s30, s2, 2")
    a("s_waitcnt lgkmcnt(0)")
    wsfix(a, 14)
    a("global_load_ushort v4, v2, s[4:5] nt")
    a("global_load_ushort v5, v2, s[6:7] nt")
    a("global_load_ushort v6, v2, s[8:9] nt")
    a("global_load_ushort v7, v2, s[10:11] nt")
    a("s_load_dword s29, s[44:45], s30")
    a("s_load_dword s56, s[46:47], s30")
    a("s_branch K12_CONV0")
    a("K12_SIDE0:   ; LINT-RESET")
    a("s_setprio 3")
    a("s_sub_u32 s25, s24, 4")
    a("s_and_b32 s28, s2, 7")
    a("s_lshr_b32 s29, s2, 3")
    a("s_lshr_b32 s26, s29, 3")
    a("s_lshl_b32 s27, s28, 2")
    a("s_add_u32 s26, s26, s27")
    a("s_and_b32 s27, s29, 7")
    a("s_lshl_b32 s30, s28, 8")
    a("s_lshl_b32 s31, s29, 3")
    a("s_add_u32 s30, s30, s31")
    a("s_lshl_b32 s31, s25, 1")
    a("s_add_u32 s30, s30, s31")
    a(f"s_mul_i32 s57, s25, {SIDE_SZ}")
    a(f"s_add_u32 s57, s57, {SIDE}")
    a("v_subrev_u32 v30, 256, v0")
    a("s_lshl_b32 s28, s26, 16")
    a("s_lshl_b32 s29, s27, 7")
    a("s_add_u32 s28, s28, s29")
    a("v_lshrrev_b32 v2, 3, v30")
    a("v_and_b32 v3, 7, v30")
    a("v_lshlrev_b32 v4, 10, v2")
    a("v_lshl_add_u32 v4, v3, 4, v4")
    a("v_add_u32 v4, s28, v4")
    a("v_add_u32 v5, 0x8000, v4")
    a("s_lshl_b32 s31, s30, 10")
    a("v_lshl_add_u32 v6, v1, 4, s31")
    a("s_and_b32 s33, s2, 7")
    a("s_mul_i32 s33, s33, 6")
    a("s_lshr_b32 s34, s2, 5")
    a("s_add_u32 s33, s33, s34")
    a("s_bfe_u32 s34, s2, 0x20003")
    a("s_lshl_b32 s35, s34, 7")
    a("v_add_u32 v7, s35, v2")
    a("v_mul_u32_u24 v25, 6144, v7")
    a("v_lshl_add_u32 v25, v3, 4, v25")
    a("s_lshl_b32 s35, s33, 7")
    a("v_add_u32 v25, s35, v25")
    a(f"v_add_u32 v26, {32*6144}, v25")
    a(f"v_add_u32 v27, {32*6144}, v26")
    a(f"v_add_u32 v28, {32*6144}, v27")
    a("v_lshlrev_b32 v29, 1, v7")
    a("s_waitcnt lgkmcnt(0)")
    wsfix(a, 14)
    NTX = " nt" if OPT.get("ntx", "0") == "1" else ""
    NTS = " nt" if OPT.get("nts", "0") == "1" else ""
    NTW = " nt" if OPT.get("ntw", "1") == "1" else ""
    a("global_load_dwordx4 v[8:11], v4, s[16:17]" + NTX)
    a("global_load_dwordx4 v[12:15], v5, s[16:17]" + NTX)
    a("global_load_dwordx4 v[16:19], v6, s[16:17]" + NTS)
    a("global_load_dwordx4 v[20:23], v6, s[16:17] offset:1024" + NTS)
    a("s_cmp_ge_u32 s2, 192")
    a("s_cbranch_scc1 K1_nomodld")
    for k in range(4): a(f"global_load_ushort v{48+k}, v29, s[20:21] offset:{64*k}")
    for k, vo in enumerate((25, 26, 27, 28)):
        a(f"global_load_dwordx4 v[{32+4*k}:{35+4*k}], v{vo}, s[22:23]" + NTW)
    a("K1_nomodld:")
    a("s_branch K2_SIDE")
    a("K12_CONV0:   ; LINT-RESET")
    a("s_barrier")
    a("v_mov_b32 v56, 0\nv_mov_b32 v57, 0\nv_mov_b32 v58, 0\nv_mov_b32 v59, 0")
    a("v_mul_u32_u24 v53, 171, v0")
    a("v_lshrrev_b32 v53, 9, v53")
    a("v_mul_u32_u24 v54, 3, v53")
    a("v_sub_u32 v54, v0, v54")
    a(f"v_mul_u32_u24 v53, {CS}, v53")
    a("v_lshl_add_u32 v53, v54, 4, v53")
    a("v_cmp_gt_u32 vcc, 48, v0")
    a("s_and_saveexec_b64 s[42:43], vcc")
    a("ds_write_b128 v53, v[56:59]")
    a("s_mov_b64 exec, s[42:43]")
    a("v_lshlrev_b32 v53, 4, v0")
    a(f"v_add_u32 v53, {UB}, v53")
    a("v_cmp_gt_u32 vcc, 155, v0")
    a("s_and_saveexec_b64 s[42:43], vcc")
    a(f"ds_write_b128 v53, v[56:59]")
    a(f"ds_write_b128 v53, v[56:59] offset:{U_CH}")
    a("s_mov_b64 exec, s[42:43]")
    a("v_and_b32 v16, 15, v1")
    a("v_cmp_eq_u32 s[32:33], 15, v16")
    a("v_lshrrev_b32 v18, 4, v1")
    a("v_add_u32 v19, 1, v16")
    a("v_cvt_f32_u32 v19, v19")
    a("s_lshl_b32 s31, s24, 10")
    a(f"s_add_u32 s31, s31, {KG_PAR}")
    a("v_lshl_add_u32 v17, v18, 6, s31")
    a("v_lshl_add_u32 v20, v1, 4, s31")
    for r in range(112, 128): a(f"v_mov_b32 v{r}, 0")
    a("s_mul_i32 s39, s25, 1344")
    a(f"s_add_u32 s39, s39, {KG_T16 + 8}")
    a("v_subrev_u32 v21, 7, v16")
    a("v_cmp_gt_u32 s[34:35], 8, v21")
    a("v_add_u32 v21, 1, v16")
    a("v_and_b32 v21, 15, v21")
    a("v_lshlrev_b32 v24, 5, v21")
    a("v_lshl_add_u32 v24, v18, 3, v24")
    a("s_lshl_b32 s40, s26, 9")
    a("s_add_u32 s40, s40, s39")
    a("v_add_u32 v24, s40, v24")
    a("s_cmp_eq_u32 s26, 0")
    a("s_cselect_b64 s[36:37], -1, s[34:35]")
    a("s_lshl_b32 s40, s24, 12")
    a(f"s_add_u32 s40, s40, {KG_PART}")
    a("v_lshl_add_u32 v22, v1, 4, s40")
    a("s_lshl_b32 s40, s25, 13")
    a("s_lshl_b32 s41, s26, 11")
    a("s_add_u32 s40, s40, s41")
    a(f"s_add_u32 s40, s40, {KG_PART}")
    a("v_lshl_add_u32 v23, v1, 4, s40")
    a("s_lshl_b32 s40, s26, 6")
    a("v_add_u32 v26, s40, v1")
    a("v_lshlrev_b32 v27, 3, v26")
    a("v_sub_u32 v27, 2047, v27")
    a("v_cvt_f32_u32 v28, v27")
    a("s_sub_u32 s41, s39, 34050")
    a("s_sub_u32 s42, s39, 2")
    GA = 140
    for rnd in range(2):
        if rnd == 1:
            a("v_add_f32 v28, 0xc4800000, v28")
            a("v_subrev_u32 v27, 1024, v27")
        for t in range(8):
            if t == 0: a(f"v_mov_b32 v48, v28")
            else: a(f"v_add_f32 v{48+t}, {-float(t)}, v28")
        for p in range(4): a(f"v_cvt_pk_bf16_f32 v{56+p}, v{48+2*p}, v{49+2*p}")
        for p in range(4):
            a(f"v_and_b32 v{48+2*p}, 0xffff, v{56+p}")
            a(f"v_lshrrev_b32 v{49+2*p}, 16, v{56+p}")
        o = GA + 8 * rnd
        for t in range(8): a(f"v_lshl_add_u32 v{o+t}, v{48+t}, 1, s41")
        if rnd == 1:
            a("v_cmp_le_u32 vcc, 112, v26")
            for t in range(8):
                a(f"v_subrev_u32 v{56+(t&3)}, {t}, v27")
                a(f"v_lshl_add_u32 v{56+(t&3)}, v{56+(t&3)}, 1, s42")
                a(f"v_cndmask_b32 v{o+t}, v{o+t}, v{56+(t&3)}, vcc")
    a(f"s_mul_i32 s40, s25, 4160")
    a(f"s_add_u32 s40, s40, {KG_REV}")
    a("v_lshl_add_u32 v29, v26, 4, s40")
    a("s_add_u32 s41, s40, 4080")
    a("v_lshlrev_b32 v30, 4, v26")
    a("v_sub_u32 v30, s41, v30")
    a(f"s_mul_i32 s41, s25, {KC_CH}")
    a("s_add_u32 s41, s41, 48")
    a("v_lshl_add_u32 v31, v26, 4, s41")
    a("s_waitcnt lgkmcnt(0)")
    a("s_lshl_b32 s40, s25, 4")
    a("s_lshr_b32 s29, s29, s40")
    a("s_lshl_b32 s29, s29, 16")
    a(f"v_mov_b32 v8, {LOG2E}")
    a("v_mul_f32 v9, s29, v8")
    a("v_exp_f32 v9, v9")
    a("s_nop 0")
    rbf(a, 9, 9)
    a("s_waitcnt vmcnt(0)")
    a("v_lshlrev_b32 v4, 16, v4")
    a("v_lshlrev_b32 v5, 16, v5")
    a("v_lshlrev_b32 v6, 16, v6")
    a("v_lshlrev_b32 v7, 16, v7")
    a("v_mul_f32 v4, v4, v8")
    a("v_exp_f32 v4, v4")
    a("v_mul_f32 v13, v5, v9")
    a("v_mul_f32 v14, v6, v9")
    rbf(a, 4, 4)
    a("v_mul_f32 v15, v7, v9")
    a("v_mul_f32 v12, v4, v9")
    a(f"v_mul_f32 v13, {INV2PI}, v13")
    a("v_add_f32 v14, v14, v14")
    a("v_add_f32 v15, v15, v15")
    a("v_mul_f32 v12, v12, v8")
    a("v_mov_b32 v10, v14")
    a("v_sub_f32 v12, 0, v12")
    a("ds_write_b128 v20, v[12:15]")
    for ctl in ("row_shr:1", "row_shr:2", "row_shr:4", "row_shr:8", "row_bcast:15 row_mask:0xa", "row_bcast:31 row_mask:0xc"):
        a("s_nop 1")
        a(f"v_add_f32_dpp v10, v10, v10 {ctl}")
    a("s_waitcnt lgkmcnt(0)")
    stamp(a, 1)
    R = [[32 + 4 * u for u in range(4)], [48 + 4 * u for u in range(4)]]
    PA = [64 + 2 * u for u in range(4)]
    PB = [72 + 2 * u for u in range(4)]
    TT = [80 + 2 * u for u in range(4)]
    QF = [88 + 4 * e for e in range(4)]
    GF = [104, 108]
    DD = [112 + 4 * e for e in range(4)]
    CPK = [128 + u for u in range(4)]
    MAG = [132 + 2 * u for u in range(4)]
    for u in range(4): a(f"ds_read_b128 v[{R[0][u]}:{R[0][u]+3}], v17 offset:{u*16}")
    for ks in range(4):
        Rc = R[ks & 1]
        if ks + 1 < 4:
            for u in range(4):
                a(f"ds_read_b128 v[{R[(ks+1)&1][u]}:{R[(ks+1)&1][u]+3}], v17 offset:{(ks+1)*256+u*16}")
            a("s_waitcnt lgkmcnt(4)")
        else:
            a("s_waitcnt lgkmcnt(0)")
        for u in range(4): a(f"v_mul_f32 v{TT[u]}, v{Rc[u]}, v19")
        for u in range(4): a(f"v_mul_f32 v{TT[u]+1}, v{Rc[u]+1}, v19")
        for u in range(4): a(f"v_exp_f32 v{MAG[u]}, v{TT[u]}")
        for u in range(4): a(f"v_fract_f32 v{TT[u]+1}, v{TT[u]+1}")
        for u in range(4): a(f"v_cvt_pk_bf16_f32 v{CPK[u]}, v{Rc[u]+2}, -v{Rc[u]+3}")
        for u in range(4): a(f"v_cos_f32 v{PB[u]}, v{TT[u]+1}")
        for u in range(4): a(f"v_sin_f32 v{PB[u]+1}, v{TT[u]+1}")
        a("s_nop 0")
        for u in range(4):
            a(f"v_pk_mul_f32 v[{PA[u]}:{PA[u]+1}], v[{PB[u]}:{PB[u]+1}], v[{MAG[u]}:{MAG[u]+1}] op_sel:[0,0] op_sel_hi:[1,0]")
        cur, oth = PA, PB
        for e in range(4):
            for u in range(4): a(f"v_cvt_pk_bf16_f32 v{QF[e]+u}, v{cur[u]}, v{cur[u]+1}")
            sq = [csq(a, oth[u], cur[u], TT[u]) for u in range(4)]
            for u in range(4): a(sq[u][0])
            for u in range(4): a(sq[u][1])
            cur, oth = oth, cur
        for e in range(4):
            g = GF[e & 1]
            cm = [cmulconj(a, oth[u], cur[u], Rc[u] + 2, TT[u]) for u in range(4)]
            for u in range(4): a(cm[u][0])
            for u in range(4): a(cm[u][1])
            for u in range(4): a(f"v_cvt_pk_bf16_f32 v{g+u}, v{oth[u]}, v{oth[u]+1}")
            if e == 0:
                for u in range(4): a(f"v_cndmask_b32 v{g+u}, v{g+u}, v{CPK[u]}, s[32:33]")
            if e < 3:
                sq = [csq(a, oth[u], cur[u], TT[u]) for u in range(4)]
                for u in range(4): a(sq[u][0])
                a(f"v_mfma_f32_16x16x32_bf16 v[{DD[e]}:{DD[e]+3}], v[{QF[e]}:{QF[e]+3}], v[{g}:{g+3}], v[{DD[e]}:{DD[e]+3}]")
                for u in range(4): a(sq[u][1])
                cur, oth = oth, cur
            else:
                a("s_nop 1")
                a(f"v_mfma_f32_16x16x32_bf16 v[{DD[e]}:{DD[e]+3}], v[{QF[e]}:{QF[e]+3}], v[{g}:{g+3}], v[{DD[e]}:{DD[e]+3}]")
    stamp(a, 2)
    K0P = KG_T16 + 2 * 1344 + 16
    a("v_readlane_b32 s40, v10, 63")
    a(f"s_lshl_b32 s41, s24, 2")
    a(f"s_add_u32 s41, s41, {K0P}")
    a("v_mov_b32 v11, s41")
    a("v_mov_b32 v10, s40")
    a("s_nop 1")
    for e in range(4): a(f"ds_write_b128 v22, v[{DD[e]}:{DD[e]+3}] offset:{e*1024}")
    a("ds_write_b32 v11, v10")
    a("s_lshl_b32 s57, s25, 2")
    a(f"s_add_u32 s41, s57, {LF}")
    wsync(a, "s41", 2, 2, 40)
    a("ds_read_b128 v[32:35], v23")
    a("ds_read_b128 v[36:39], v23 offset:4096")
    a("ds_read_b128 v[40:43], v23 offset:1024")
    a("ds_read_b128 v[44:47], v23 offset:5120")
    a(f"s_lshl_b32 s41, s25, 3")
    a(f"s_add_u32 s41, s41, {K0P}")
    a("v_mov_b32 v11, s41")
    a("ds_read_b64 v[8:9], v11")
    a("s_waitcnt lgkmcnt(0)")
    for r in range(4): a(f"v_add_f32 v{32+r}, v{32+r}, v{36+r}")
    for r in range(4): a(f"v_add_f32 v{40+r}, v{40+r}, v{44+r}")
    a("v_add_f32 v8, v8, v9")
    a("v_cvt_pk_bf16_f32 v32, v32, v33")
    a("v_cvt_pk_bf16_f32 v33, v34, v35")
    a("v_cvt_pk_bf16_f32 v40, v40, v41")
    a("v_cvt_pk_bf16_f32 v41, v42, v43")
    a("v_cvt_pk_bf16_f32 v8, v8, v8")
    a("s_sub_u32 s41, s39, 2")
    a("v_mov_b32 v11, s41")
    a("s_mov_b64 exec, s[36:37]")
    a("ds_write_b64 v24, v[32:33]")
    a("s_mov_b64 exec, s[34:35]")
    a("ds_write_b64 v24, v[40:41] offset:256")
    a("s_mov_b64 exec, -1")
    a("ds_write_b16 v11, v8")
    a(f"s_add_u32 s41, s57, {LF + 8}")
    wsync(a, "s41", 2, 2, 40)
    for t in range(16):
        a(f"ds_read_u16 v{76+t}, v{GA+t}")
        if t == 7: a("v_mov_b32 v72, 0\nv_mov_b32 v73, 0\nv_mov_b32 v74, 0\nv_mov_b32 v75, 0")
    a("s_waitcnt lgkmcnt(8)")
    for p in range(4): a(f"v_lshl_or_b32 v{64+p}, v{77+2*p}, 16, v{76+2*p}")
    a("ds_write_b128 v29, v[64:67]")
    a("s_waitcnt lgkmcnt(1)")
    for p in range(4): a(f"v_lshl_or_b32 v{68+p}, v{85+2*p}, 16, v{84+2*p}")
    a("ds_write_b128 v29, v[68:71] offset:2048")
    a("v_cmp_gt_u32 vcc, 4, v26")
    a("s_and_saveexec_b64 s[42:43], vcc")
    a("ds_write_b128 v29, v[72:75] offset:4096")
    a("s_mov_b64 exec, s[42:43]")
    a(f"s_add_u32 s41, s57, {LF + 16}")
    wsync(a, "s41", 2, 2, 40)
    a("v_subrev_u32 v33, 2048, v30")
    a("ds_read_b128 v[36:39], v30")
    a("ds_read_b128 v[40:43], v30 offset:16")
    a("ds_read_b128 v[44:47], v33")
    a("ds_read_b128 v[48:51], v33 offset:16")
    for c in range(2):
        W = 36 + 8 * c
        a(f"s_waitcnt lgkmcnt({2 if c == 0 else 8})")
        V = 60
        for j in range(7): a(f"v_alignbit_b32 v{V+j}, v{W+j+1}, v{W+j}, 16")
        for j in range(1, 7): a(f"v_alignbit_b32 v{68+j-1}, v{W+j+1}, v{W+j}, 16")
        for j in range(1, 7): a(f"v_mov_b32 v{76+j-1}, v{W+j}")
        off = c * 2048
        a(f"ds_write_b128 v31, v[{W}:{W+3}] offset:{off + 7*CS}")
        a(f"ds_write_b128 v31, v[{W+2}:{W+5}] offset:{off + 3*CS}")
        a(f"ds_write_b128 v31, v[{V}:{V+3}] offset:{off + 6*CS}")
        a(f"ds_write_b128 v31, v[{V+2}:{V+5}] offset:{off + 2*CS}")
        a(f"ds_write_b128 v31, v[68:71] offset:{off + 4*CS}")
        a(f"ds_write_b128 v31, v[70:73] offset:{off + 0*CS}")
        a(f"ds_write_b128 v31, v[76:79] offset:{off + 5*CS}")
        a(f"ds_write_b128 v31, v[78:81] offset:{off + 1*CS}")
    stamp(a, 3)
    a("s_lshl_b32 s28, s62, 12")
    a(f"s_add_u32 s28, s28, {XT}") if XT else None
    a("v_lshl_add_u32 v160, v0, 4, s28")
    a("v_add_u32 v161, 4096, v160")
    a("v_lshlrev_b32 v162, 5, v0")
    a(f"v_add_u32 v162, {STAT1}, v162")
    a(f"v_add_u32 v163, 8192, v162")
    a("v_and_b32 v50, 31, v1")
    a("v_lshrrev_b32 v51, 5, v1")
    a("s_lshl_b32 s30, s25, 12")
    a("s_add_u32 s30, s30, s28")
    a("s_lshl_b32 s31, s26, 11")
    a("s_add_u32 s30, s30, s31")
    a("v_lshlrev_b32 v164, 6, v50")
    a("v_lshl_add_u32 v164, v51, 3, v164")
    a("v_add_u32 v164, s30, v164")
    a("v_and_b32 v165, 3, v1")
    a("v_mul_u32_u24 v165, 12288, v165")
    a("v_bfe_u32 v54, v1, 2, 1")
    a("v_lshl_add_u32 v165, v54, 2, v165")
    a("v_lshrrev_b32 v54, 3, v1")
    a("v_min_u32 v54, 2, v54")
    a("v_lshl_add_u32 v165, v54, 11, v165")
    a("s_lshl_b32 s32, s62, 2")
    a(f"s_add_u32 s32, s32, {MODP}")
    a("v_add_u32 v165, s32, v165")
    a("v_and_b32 v54, 7, v50")
    a("v_lshrrev_b32 v55, 3, v50")
    a(f"v_mul_u32_u24 v2, {CS}, v54")
    a("v_sub_u32 v55, v55, v51")
    a("v_add_u32 v55, 1, v55")
    a("v_lshl_add_u32 v2, v55, 4, v2")
    a(f"s_mul_i32 s38, s25, {KC_CH}")
    a("v_add_u32 v2, s38, v2")
    a("v_mul_u32_u24 v3, 80, v50")
    a("v_lshl_add_u32 v3, v51, 4, v3")
    a(f"s_mul_i32 s38, s25, {U_CH}")
    a(f"s_add_u32 s38, s38, {UB}")
    a("v_add_u32 v3, s38, v3")
    a("v_lshrrev_b32 v166, 2, v0")
    a("v_mul_u32_u24 v166, 80, v166")
    a("v_and_b32 v63, 3, v0")
    a("v_lshl_add_u32 v166, v63, 4, v166")
    a(f"v_add_u32 v166, {UB + 31*80}, v166")
    a("s_lshl_b32 s38, s24, 12")
    a(f"s_add_u32 s38, s38, {SCR}")
    a("v_lshl_add_u32 v4, v1, 4, s38")
    a("s_xor_b32 s39, s24, 1")
    a("s_lshl_b32 s38, s39, 12")
    a(f"s_add_u32 s38, s38, {SCR}")
    a("v_lshl_add_u32 v5, v1, 4, s38")
    a("s_lshl_b32 s38, s24, 2")
    a(f"s_add_u32 s38, s38, {LF + 32}")
    a("v_mov_b32 v7, s38")
    a("s_lshl_b32 s38, s39, 2")
    a(f"s_add_u32 s38, s38, {LF + 32}")
    a("v_mov_b32 v8, s38")
    a("v_mul_u32_u24 v6, 80, v50")
    a("v_lshl_add_u32 v6, v51, 3, v6")
    a(f"s_mul_i32 s38, s25, {U_CH}")
    a(f"s_mul_i32 s39, s26, {32*80}")
    a("s_add_u32 s38, s38, s39")
    a(f"s_add_u32 s38, s38, {UB + 31*80}")
    a("v_add_u32 v6, s38, v6")
    a("s_lshl_b32 s38, s27, 7")
    a("s_lshl_b32 s39, s26, 20")
    a("s_add_u32 s38, s38, s39")
    a(f"s_add_u32 s38, s38, {X2T}")
    a("v_lshrrev_b32 v9, 3, v1")
    a("v_lshlrev_b32 v9, 16, v9")
    a("v_and_b32 v63, 7, v1")
    a("v_lshl_add_u32 v9, v63, 4, v9")
    a("v_add_u32 v9, s38, v9")
    a("v_add_u32 v12, 0x80000, v9")
    a(f"s_mul_i32 s38, s25, {KC_CH}")
    a("s_mul_i32 s39, s26, 2560")
    a("s_add_u32 s38, s38, s39")
    a("v_mul_u32_u24 v10, 80, v50")
    a("v_lshl_add_u32 v10, v51, 3, v10")
    a("v_add_u32 v10, s38, v10")
    a("v_lshrrev_b32 v11, 2, v1")
    a("v_mul_u32_u24 v11, 80, v11")
    a("v_and_b32 v63, 3, v1")
    a("v_lshl_add_u32 v11, v63, 4, v11")
    a("v_add_u32 v11, s38, v11")
    for r in range(32, 64): a(f"v_mov_b32 v{r}, 0")
    a("s_lshl_b32 s38, s25, 4")
    a("s_lshr_b32 s36, s56, s38")
    a("s_lshl_b32 s36, s36, 16")
    a("s_waitcnt lgkmcnt(0)")
    a("s_barrier")
    stamp(a, 4)
    XR, SR = 168, 176
    a("global_load_dword v13, v165, s[14:15] sc1")
    a(f"global_load_dwordx4 v[{XR}:{XR+3}], v160, s[14:15] sc1")
    a(f"global_load_dwordx4 v[{XR+4}:{XR+7}], v161, s[14:15] sc1")
    a(f"global_load_dwordx4 v[{SR}:{SR+3}], v162, s[14:15] sc1")
    a(f"global_load_dwordx4 v[{SR+4}:{SR+7}], v162, s[14:15] offset:16 sc1")
    a(f"global_load_dwordx4 v[{SR+8}:{SR+11}], v163, s[14:15] sc1")
    a(f"global_load_dwordx4 v[{SR+12}:{SR+15}], v163, s[14:15] offset:16 sc1")
    for i in range(4):
        a(f"global_load_dwordx2 v[{144+2*i}:{145+2*i}], v164, s[14:15] offset:{16*i} sc1")
    a("s_waitcnt vmcnt(10)")
    a("v_add_f32_dpp v13, v13, v13 quad_perm:[1,0,3,2] row_mask:0xf bank_mask:0xf")
    a("s_nop 1")
    a("v_add_f32_dpp v13, v13, v13 quad_perm:[2,3,0,1] row_mask:0xf bank_mask:0xf")
    rbf(a, 13, 13)
    a("v_add_f32 v14, 1.0, v13")
    rbf(a, 14, 14)
    a("v_readlane_b32 s59, v13, 0")
    a("v_readlane_b32 s61, v13, 4")
    a("v_readlane_b32 s54, v13, 16")
    a("v_readlane_b32 s55, v13, 20")
    a("v_readlane_b32 s58, v14, 8")
    a("v_readlane_b32 s60, v14, 12")
    a("s_cmp_eq_u32 s25, 0")
    a("s_cselect_b32 s37, s54, s55")
    a("s_waitcnt vmcnt(4)")
    for c in range(2):
        X = XR + 4 * c
        for q in range(4):
            a(f"v_lshlrev_b32 v{64+2*q}, 16, v{X+q}")
            a(f"v_and_b32 v{65+2*q}, 0xffff0000, v{X+q}")
        for q in range(4):
            a(f"v_pk_fma_f32 v[{64+2*q}:{65+2*q}], v[{64+2*q}:{65+2*q}], v[{SR+2*q}:{SR+1+2*q}], v[{SR+8+2*q}:{SR+9+2*q}]")
        for q in range(4):
            a(f"v_pk_fma_f32 v[{64+2*q}:{65+2*q}], v[{64+2*q}:{65+2*q}], s[{58+2*c}:{59+2*c}], s[{58+2*c}:{59+2*c}] op_sel:[0,0,1] op_sel_hi:[1,0,1]")
        for q in range(4):
            a(f"v_cvt_pk_bf16_f32 v{72+4*c+q}, v{64+2*q}, v{65+2*q}")
        a(f"ds_write_b128 v166, v[{72+4*c}:{75+4*c}] offset:{c*U_CH}")
    wsync(a, LF + 52, 4, 14, 40)
    stamp(a, 5)
    a("s_cmp_eq_u32 s26, 0")
    a("s_cbranch_scc0 K2_B")
    conv_path(a, 0, "A")
    a("K2_B:   ; LINT-RESET")
    conv_path(a, 1, "B")
    a("K2_SIDE:   ; LINT-RESET")
    a("s_barrier")
    a("s_cmp_eq_u32 s2, 255")
    a("s_cbranch_scc0 K12_noinit")
    a("s_cmp_eq_u32 s25, 1")
    a("s_cbranch_scc0 K12_noinit")
    a("v_mov_b32 v64, 0\nv_mov_b32 v65, 0\nv_mov_b32 v66, 0\nv_mov_b32 v67, 0")
    a("v_lshlrev_b32 v68, 4, v1")
    a(f"v_add_u32 v68, {FLAGS_OFF}, v68")
    for q in range(16):
        a(f"global_store_dwordx4 v68, v[64:67], s[14:15] sc1")
        if q < 15: a("v_add_u32 v68, 1024, v68")
    a("s_waitcnt vmcnt(0)")
    a("v_mov_b32 v68, 0")
    a("v_mov_b32 v69, 1")
    a("s_mov_b64 exec, 1")
    a("global_store_dword v68, v69, s[18:19] sc1")
    a("s_mov_b64 exec, -1")
    a("s_waitcnt vmcnt(0)")
    a("K12_noinit:   ; LINT-RESET")
    TL = SIDE + SIDE_SZ
    a("v_mul_u32_u24 v30, 160, v2")
    a("v_lshl_add_u32 v30, v3, 4, v30")
    a(f"v_add_u32 v30, {TL}, v30")
    a("s_cmp_ge_u32 s2, 192")
    a("s_cbranch_scc1 K1_w0")
    a("s_waitcnt vmcnt(10)")
    a("s_branch K1_w1")
    a("K1_w0:")
    a("s_waitcnt vmcnt(2)")
    a("K1_w1:   ; LINT-RESET")
    stamp(a, 1)
    a("ds_write_b128 v30, v[8:11]")
    a("ds_write_b128 v30, v[12:15] offset:5120")
    wsync(a, LF + 48, 4, 2, 40)
    a("v_lshrrev_b32 v2, 4, v1")
    a("v_bfe_u32 v3, v1, 2, 2")
    a("v_and_b32 v4, 3, v1")
    a("v_lshl_add_u32 v5, v2, 3, v3")
    a("v_mul_u32_u24 v5, 160, v5")
    a("v_lshl_add_u32 v5, v4, 3, v5")
    a("s_lshl_b32 s31, s25, 5")
    a(f"s_add_u32 s31, s31, {TL}")
    a("v_add_u32 v5, s31, v5")
    a("ds_read_b64_tr_b16 v[8:9], v5")
    a("ds_read_b64_tr_b16 v[10:11], v5 offset:640")
    a(f"ds_read_b64_tr_b16 v[12:13], v5 offset:{32*160}")
    a(f"ds_read_b64_tr_b16 v[14:15], v5 offset:{36*160}")
    a("v_and_b32 v6, 15, v1")
    a("v_lshlrev_b32 v6, 12, v6")
    a("v_lshl_add_u32 v6, v2, 4, v6")
    a("s_lshl_b32 s31, s27, 18")
    a("s_lshl_b32 s32, s25, 16")
    a("s_add_u32 s31, s31, s32")
    a("s_lshl_b32 s32, s26, 7")
    a("s_add_u32 s31, s31, s32")
    a(f"s_add_u32 s31, s31, {XT}") if XT else None
    a("v_add_u32 v6, s31, v6")
    a("s_waitcnt lgkmcnt(2)")
    a("global_store_dwordx4 v6, v[8:11], s[14:15] sc1")
    a("s_waitcnt lgkmcnt(0)")
    a("global_store_dwordx4 v6, v[12:15], s[14:15] offset:64 sc1")
    a("s_cmp_ge_u32 s2, 192")
    a("s_cbranch_scc1 K1_w2")
    a("s_waitcnt vmcnt(10)")
    a("s_branch K1_w3")
    a("K1_w2:")
    a("s_waitcnt vmcnt(2)")
    a("K1_w3:   ; LINT-RESET")
    a("v_mov_b32 v31, 0x3f803f80")
    a("v_mov_b32 v52, 0\nv_mov_b32 v53, 0\nv_mov_b32 v54, 0\nv_mov_b32 v55, 0")
    for k in range(4):
        a(f"v_dot2_f32_bf16 v52, v{16+k}, v31, v52")
        a(f"v_dot2_f32_bf16 v53, v{16+k}, v{16+k}, v53")
        a(f"v_dot2_f32_bf16 v54, v{20+k}, v31, v54")
        a(f"v_dot2_f32_bf16 v55, v{20+k}, v{20+k}, v55")
    a("s_nop 1")
    for ctl in ("row_shr:1", "row_shr:2", "row_shr:4", "row_shr:8", "row_bcast:15 row_mask:0xa", "row_bcast:31 row_mask:0xc"):
        for r in range(52, 56): a(f"v_add_f32_dpp v{r}, v{r}, v{r} {ctl}")
    a("s_nop 1")
    for k, r in enumerate(range(52, 56)): a(f"v_readlane_b32 s{36+k}, v{r}, 63")
    a("s_nop 1")
    a("v_cmp_eq_u32 vcc, 0, v1")
    a("v_mov_b32 v56, s38")
    a("v_mov_b32 v57, s39")
    a("v_mov_b32 v58, s36")
    a("v_mov_b32 v59, s37")
    a("v_cndmask_b32 v56, v56, v58, vcc")
    a("v_cndmask_b32 v57, v57, v59, vcc")
    a("v_mul_f32 v56, 0x3b000000, v56")
    a("v_mul_f32 v57, 0x3b000000, v57")
    a("v_fma_f32 v57, -v56, v56, v57")
    a("v_max_f32 v57, 0, v57")
    rbf(a, 56, 56); rbf(a, 57, 57)
    a("v_add_f32 v57, 0x3727c5ac, v57")
    rbf(a, 57, 57)
    a("v_sqrt_f32 v57, v57")
    a("s_nop 0")
    rbf(a, 57, 57)
    a("v_rcp_f32 v58, v57")
    a("s_nop 0")
    a("v_mul_f32 v59, v56, v58")
    a("v_sub_f32 v59, 0, v59")
    a("s_lshl_b32 s31, s30, 2")
    a(f"s_add_u32 s31, s31, {STAT1}")
    a("v_lshl_add_u32 v60, v1, 2, s31")
    a("v_add_u32 v61, 8192, v60")
    a("v_cmp_gt_u32 vcc, 2, v1")
    a("s_and_saveexec_b64 s[42:43], vcc")
    a("global_store_dword v60, v58, s[14:15] sc1")
    a("global_store_dword v61, v59, s[14:15] sc1")
    a("s_mov_b64 exec, s[42:43]")
    a("s_cmp_ge_u32 s2, 192")
    a("s_cbranch_scc1 K1_nomodc")
    a("s_waitcnt vmcnt(4)")
    for k in range(4): a(f"v_lshlrev_b32 v{48+k}, 16, v{48+k}")
    for k in range(4): a(f"v_mul_f32 v{52+k}, 0xbfb8aa3b, v{48+k}")
    for k in range(4): a(f"v_exp_f32 v{52+k}, v{52+k}")
    a("s_nop 0")
    for k in range(4): a(f"v_add_f32 v{52+k}, 1.0, v{52+k}")
    for k in range(4): a(f"v_rcp_f32 v{56+k}, v{52+k}")
    a("s_nop 0")
    for k in range(4): a(f"v_mul_f32 v{60+k}, v{48+k}, v{56+k}")
    for k in range(4): a(f"v_fma_f32 v{48+k}, -v{60+k}, v{52+k}, v{48+k}")
    for k in range(4): a(f"v_fma_f32 v{48+k}, v{48+k}, v{56+k}, v{60+k}")
    for k in range(4): rbf(a, 48 + k, 48 + k)
    for k in range(4):
        for p in range(4):
            w = 32 + 4 * k + p
            a(f"v_lshlrev_b32 v62, 16, v{w}")
            a(f"v_and_b32 v63, 0xffff0000, v{w}")
            if k == 0:
                a(f"v_mul_f32 v{64+2*p}, v62, v48")
                a(f"v_mul_f32 v{65+2*p}, v63, v48")
            else:
                a(f"v_fmac_f32 v{64+2*p}, v62, v{48+k}")
                a(f"v_fmac_f32 v{65+2*p}, v63, v{48+k}")
    MODL = SIDE
    a("v_subrev_u32 v61, 256, v0")
    a("v_lshlrev_b32 v61, 5, v61")
    a(f"v_add_u32 v61, {MODL}, v61")
    a("ds_write_b128 v61, v[64:67]")
    a("ds_write_b128 v61, v[68:71] offset:16")
    wsync(a, LF + 24, 4, 2, 40)
    a("s_cmp_lg_u32 s25, 0")
    a("s_cbranch_scc1 K1_nomodc")
    a("v_lshlrev_b32 v4, 2, v1")
    a(f"v_add_u32 v4, {MODL}, v4")
    for i in range(32):
        a(f"ds_read_b32 v{16+i}, v4 offset:{256*i}")
        if i == 14: a("s_waitcnt lgkmcnt(7)")
    a("s_waitcnt lgkmcnt(0)")
    for st in (16, 8, 4, 2, 1):
        for i in range(st): a(f"v_add_f32 v{16+i}, v{16+i}, v{16+st+i}")
    a("s_mul_i32 s31, s34, 12288")
    a("s_lshl_b32 s32, s33, 8")
    a("s_add_u32 s31, s31, s32")
    a(f"s_add_u32 s31, s31, {MODP}")
    a("v_lshl_add_u32 v5, v1, 2, s31")
    a("global_store_dword v5, v16, s[14:15] sc1")
    a("K1_nomodc:   ; LINT-RESET")
    stamp(a, 2)
    a("v_mov_b32 v74, 0")
    a("global_load_dword v75, v74, s[18:19] sc1")
    a("s_waitcnt vmcnt(0)")
    a("v_readfirstlane_b32 s51, v75")
    a(f"v_mov_b32 v2, {LF + 28}")
    a("v_mov_b32 v3, 1")
    a("s_mov_b64 exec, 1")
    a("ds_add_u32 v2, v3")
    a("s_mov_b64 exec, -1")
    stamp(a, 3)
    a("s_lshl_b32 s26, s25, 8")
    a("s_add_u32 s26, s26, s2")
    a("s_mov_b32 s27, s57")
    a("v_lshrrev_b32 v2, 2, v1")
    a("v_and_b32 v3, 3, v1")
    a("v_lshrrev_b32 v4, 4, v1")
    a("v_bfe_u32 v5, v1, 2, 2")
    a("v_mul_u32_u24 v11, 80, v2")
    a("v_lshl_add_u32 v11, v3, 4, v11")
    a("v_add_u32 v11, s27, v11")
    a("v_lshl_add_u32 v12, v4, 2, v5")
    a("v_mul_u32_u24 v12, 80, v12")
    a("v_lshl_add_u32 v12, v3, 3, v12")
    a("v_add_u32 v12, s27, v12")
    a("s_cmp_ge_u32 s26, 348")
    a("s_cbranch_scc1 K12_noraw")
    a("s_cmp_ge_u32 s26, 172")
    a("s_cbranch_scc1 K12_rawW2")
    a("s_mul_i32 s28, s26, 1525")
    a("s_lshr_b32 s28, s28, 16")
    a("s_mul_i32 s29, s28, 43")
    a("s_sub_u32 s29, s26, s29")
    a("v_mul_u32_u24 v10, 2752, v2")
    a("v_lshl_add_u32 v10, v3, 4, v10")
    a(f"s_mul_i32 s53, s28, {128*2752}")
    a("s_lshl_b32 s30, s29, 6")
    a("s_add_u32 s53, s53, s30")
    a.srd(64, 48, 512 * 1376 * 2)
    for i in range(8):
        a(f"buffer_load_dwordx4 v[{32+4*i}:{35+4*i}], v10, s[64:67], s53 offen nt")
        if i < 7: a(f"s_add_u32 s53, s53, {16*2752}")
    a("s_branch K12_noraw")
    a("K12_rawW2:   ; LINT-RESET")
    a("s_sub_u32 s31, s26, 172")
    a("s_and_b32 s29, s31, 15")
    a("s_lshr_b32 s28, s31, 4")
    a("v_lshlrev_b32 v10, 10, v2")
    a("v_lshl_add_u32 v10, v3, 4, v10")
    a("s_lshl_b32 s30, s29, 6")
    a.srd(64, 12, 1376 * 512 * 2)
    for ks in range(4):
        a("s_lshl_b32 s31, s28, 2")
        a(f"s_add_u32 s31, s31, {ks}")
        a("s_mul_i32 s32, s31, 13")
        a("s_lshr_b32 s32, s32, 6")
        a("s_mul_i32 s33, s32, 5")
        a("s_sub_u32 s33, s31, s33")
        a("s_mul_i32 s32, s32, 11")
        a("s_min_u32 s32, s32, 76")
        a("s_lshl_b32 s33, s33, 1")
        a("s_add_u32 s32, s32, s33")
        a("s_add_u32 s33, s32, 1")
        a("s_sub_u32 s34, s31, 40")
        a("s_mul_i32 s34, s34, 22")
        a("s_add_u32 s35, s34, 21")
        a("s_add_u32 s34, s34, 10")
        a("s_cmp_lt_u32 s31, 40")
        a("s_cselect_b32 s32, s32, s34")
        a("s_cselect_b32 s33, s33, s35")
        for hf, sr in ((0, 32), (1, 33)):
            a(f"s_lshl_b32 s53, s{sr}, 14")
            a("s_add_u32 s53, s53, s30")
            i = 2 * ks + hf
            a(f"buffer_load_dwordx4 v[{32+4*i}:{35+4*i}], v10, s[64:67], s53 offen nt")
    a("K12_noraw:   ; LINT-RESET")
    a("s_cmp_lg_u32 s25, 0")
    a("s_cbranch_scc1 K12_gbx")
    wsync(a, LF + 28, 4, 70, 40, add=False)
    a("s_mov_b64 exec, 1")
    a("v_mov_b32 v70, 0")
    a("s_mov_b32 s52, 0x200000")
    a("s_cmp_eq_u32 s51, 1")
    a("s_cbranch_scc1 K12_rdyx")
    a("K12_rdy:")
    a("global_load_dword v71, v70, s[18:19] sc1")
    a("s_waitcnt vmcnt(0)")
    a("v_readfirstlane_b32 s40, v71")
    a("s_sub_u32 s52, s52, 1")
    a("s_cmp_eq_u32 s52, 0")
    a("s_cbranch_scc1 K12_gbdone")
    a("s_cmp_eq_u32 s40, 1")
    a("s_cbranch_scc0 K12_rdy")
    a("K12_rdyx:")
    a("s_and_b32 s40, s2, 15")
    a("s_lshl_b32 s40, s40, 8")
    a(f"s_add_u32 s40, s40, {GBAR}")
    a("v_mov_b32 v70, s40")
    a("v_mov_b32 v71, 1")
    a("global_atomic_add v71, v70, v71, s[14:15] sc0 sc1")
    a("s_waitcnt vmcnt(0)")
    a("v_readfirstlane_b32 s40, v71")
    a("s_cmp_eq_u32 s40, 15")
    a("s_cbranch_scc0 K12_poll")
    a(f"v_mov_b32 v70, {GBAR + 4096}")
    a("v_mov_b32 v71, 1")
    a("global_atomic_add v71, v70, v71, s[14:15] sc0 sc1")
    a("s_waitcnt vmcnt(0)")
    a("v_readfirstlane_b32 s40, v71")
    a("s_cmp_eq_u32 s40, 15")
    a("s_cbranch_scc0 K12_poll")
    a("s_mov_b64 exec, 0xff")
    a("v_lshlrev_b32 v70, 8, v1")
    a(f"v_add_u32 v70, {GBAR + 8192}, v70")
    a("v_mov_b32 v71, 1")
    a("global_store_dword v70, v71, s[14:15] sc1")
    a("s_mov_b64 exec, 1")
    a("K12_poll:")
    a("s_and_b32 s40, s2, 7")
    a("s_lshl_b32 s40, s40, 8")
    a(f"s_add_u32 s40, s40, {GBAR + 8192}")
    a("v_mov_b32 v70, s40")
    a("K12_poll2:")
    a("global_load_dword v71, v70, s[14:15] sc1")
    a("s_waitcnt vmcnt(0)")
    a("v_readfirstlane_b32 s40, v71")
    a("s_sub_u32 s52, s52, 1")
    a("s_cmp_eq_u32 s52, 0")
    a("s_cbranch_scc1 K12_gbdone")
    a("s_cmp_eq_u32 s40, 1")
    a("s_cbranch_scc0 K12_poll2")
    a("K12_gbdone:")
    a("s_mov_b64 exec, -1")
    a("K12_gbx:   ; LINT-RESET")
    a(f"s_setprio {OPT.get('sprio', '0')}")
    a("s_barrier")
    stamp(a, 4)
    a("s_cmp_gt_u32 s26, 348")
    a("s_cbranch_scc1 K2_SIDE_IDLE")
    a("s_cmp_eq_u32 s26, 348")
    a("s_cbranch_scc1 K2_TAB")
    a("s_cmp_ge_u32 s26, 172")
    a("s_cbranch_scc1 K2_W2")
    a("s_lshl_b32 s31, s28, 9")
    a("v_lshl_add_u32 v13, v1, 3, s31")
    a(f"v_add_u32 v13, {MODP + 3*2048}, v13")
    for q in range(4):
        a(f"global_load_dwordx2 v[{64+4*q}:{65+4*q}], v13, s[14:15] sc1")
        a(f"global_load_dwordx2 v[{66+4*q}:{67+4*q}], v13, s[14:15] offset:2048 sc1")
        if q < 3: a("v_add_u32 v13, 12288, v13")
    a("s_waitcnt vmcnt(8)")
    for i in range(8): a(f"ds_write_b128 v11, v[{32+4*i}:{35+4*i}] offset:{16*80*i}")
    a("s_waitcnt vmcnt(0)")
    for r in range(4):
        a(f"v_add_f32 v{64+r}, v{64+r}, v{68+r}")
        a(f"v_add_f32 v{72+r}, v{72+r}, v{76+r}")
        a(f"v_add_f32 v{64+r}, v{64+r}, v{72+r}")
    for r in range(4): rbf(a, 64 + r, 64 + r)
    a("v_add_f32 v66, 1.0, v66")
    a("v_add_f32 v67, 1.0, v67")
    rbf(a, 66, 66); rbf(a, 67, 67)
    a("v_cvt_pk_bf16_f32 v64, v64, v65")
    a("v_lshl_add_u32 v15, v1, 3, s27")
    a("v_lshl_add_u32 v16, v1, 2, s27")
    a("ds_write_b64 v15, v[66:67] offset:10240")
    a("ds_write_b32 v16, v64 offset:10752")
    a("v_and_b32 v17, 15, v1")
    a("v_cmp_eq_u32 s[50:51], 0, v17")
    a("v_cmp_eq_u32 s[52:53], 1, v17")
    a("v_mov_b32 v18, 0")
    a("v_mov_b32 v19, 0x3f803f80")
    a("v_cndmask_b32 v18, v18, v19, s[50:51]")
    a("v_mov_b32 v19, 0")
    a("v_cndmask_b32 v19, v19, -1, s[52:53]")
    a("v_lshl_add_u32 v24, v4, 4, s27")
    a("v_lshl_add_u32 v25, v4, 3, s27")
    for r in range(96, 112): a(f"v_mov_b32 v{r}, 0")
    a("s_lshl_b32 s30, s29, 11")
    a(f"s_mul_i32 s31, s28, {4*87*1024}")
    a("s_add_u32 s30, s30, s31")
    a(f"s_add_u32 s30, s30, {W1F}")
    a("v_lshl_add_u32 v26, v1, 4, s30")
    a("s_waitcnt lgkmcnt(0)")
    for ks in range(4):
        a(f"ds_read_b128 v[32:35], v24 offset:{10240 + 128*ks}")
        a(f"ds_read_b128 v[36:39], v24 offset:{10240 + 128*ks + 64}")
        a(f"ds_read_b64 v[40:41], v25 offset:{10752 + 64*ks}")
        a(f"ds_read_b64 v[42:43], v25 offset:{10752 + 64*ks + 32}")
        for nt in range(2):
            for hf in range(2):
                a(f"ds_read_b64_tr_b16 v[{44+4*nt+2*hf}:{45+4*nt+2*hf}], v12 offset:{(32*ks+16*hf)*80 + 32*nt}")
        a("s_waitcnt lgkmcnt(4)")
        for q in range(4): a(f"v_and_or_b32 v{40+q}, v{40+q}, v19, v18")
        a("s_waitcnt lgkmcnt(0)")
        for nt in range(2):
            R = 44 + 4 * nt
            for q in range(4):
                a(f"v_lshlrev_b32 v{52+2*q}, 16, v{R+q}")
                a(f"v_and_b32 v{53+2*q}, 0xffff0000, v{R+q}")
            a(f"v_mfma_f32_16x16x32_bf16 v[{96+4*nt}:{99+4*nt}], v[{R}:{R+3}], v[40:43], v[{96+4*nt}:{99+4*nt}]")
            for q in range(4):
                a(f"v_pk_mul_f32 v[{52+2*q}:{53+2*q}], v[{52+2*q}:{53+2*q}], v[{32+2*q}:{33+2*q}]")
            S = 60 + 4 * nt
            for q in range(4):
                a(f"v_cvt_pk_bf16_f32 v{S+q}, v{52+2*q}, v{53+2*q}")
            a(f"global_store_dwordx4 v26, v[{S}:{S+3}], s[14:15] offset:{1024*nt}" + SC1)
            if nt == 1: a(f"v_add_u32 v26, {87*1024}, v26")
            a("s_nop 0")
            a(f"v_mfma_f32_16x16x32_bf16 v[{104+4*nt}:{107+4*nt}], v[{S}:{S+3}], v[40:43], v[{104+4*nt}:{107+4*nt}]")
    a(f"s_mul_i32 s30, s28, {3*5504}")
    a("s_lshl_b32 s31, s29, 7")
    a("s_add_u32 s30, s30, s31")
    a(f"s_add_u32 s30, s30, {SVP}")
    a("v_lshl_add_u32 v28, v4, 4, s30")
    a("v_add_u32 v29, 5504, v28")
    a("v_add_u32 v30, 5504, v29")
    a("s_nop 7")
    a("s_mov_b64 s[42:43], exec")
    a("s_mov_b64 exec, s[50:51]")
    for nt in range(2):
        a(f"global_store_dwordx4 v28, v[{104+4*nt}:{107+4*nt}], s[14:15] offset:{64*nt}" + SC1)
        a(f"global_store_dwordx4 v30, v[{96+4*nt}:{99+4*nt}], s[14:15] offset:{64*nt}" + SC1)
    a("s_mov_b64 exec, s[52:53]")
    for nt in range(2):
        a(f"global_store_dwordx4 v29, v[{96+4*nt}:{99+4*nt}], s[14:15] offset:{64*nt}" + SC1)
    a("s_mov_b64 exec, s[42:43]")
    a("s_branch K12_UDONE")
    a("K2_W2:   ; LINT-RESET")
    a("s_waitcnt vmcnt(0)")
    for i in range(8): a(f"ds_write_b128 v11, v[{32+4*i}:{35+4*i}] offset:{16*80*i}")
    a("s_lshr_b32 s30, s29, 1")
    a("s_mul_i32 s30, s30, 43")
    a("s_lshl_b32 s31, s28, 2")
    a("s_add_u32 s30, s30, s31")
    a("s_lshl_b32 s30, s30, 12")
    a("s_and_b32 s31, s29, 1")
    a("s_lshl_b32 s31, s31, 11")
    a("s_add_u32 s30, s30, s31")
    a(f"s_add_u32 s30, s30, {W2F}")
    a("v_lshl_add_u32 v26, v1, 4, s30")
    a("s_waitcnt lgkmcnt(0)")
    for ks in range(4):
        if ks == 3:
            a("s_cmp_eq_u32 s28, 10")
            a("s_cbranch_scc1 K12_UDONE")
        for nt in range(2):
            for hf in range(2):
                a(f"ds_read_b64_tr_b16 v[{44+4*nt+2*hf}:{45+4*nt+2*hf}], v12 offset:{(32*ks+16*hf)*80 + 32*nt}")
        a("s_waitcnt lgkmcnt(2)")
        a(f"global_store_dwordx4 v26, v[44:47], s[14:15]" + SC1)
        a("s_waitcnt lgkmcnt(0)")
        a(f"global_store_dwordx4 v26, v[48:51], s[14:15] offset:1024" + SC1)
        a("v_add_u32 v26, 4096, v26")
    a("s_branch K12_UDONE")
    a("K2_TAB:   ; LINT-RESET")
    a("v_lshlrev_b32 v2, 5, v1")
    a(f"v_add_u32 v2, {MODP + 3*2048}, v2")
    a("v_add_u32 v3, 4096, v2")
    for q in range(4):
        for k in range(3):
            r = 112 + 24 * q + 8 * k
            a(f"global_load_dwordx4 v[{r}:{r+3}], v2, s[14:15] offset:{2048*k if k < 2 else 0} sc1" if k < 2 else f"global_load_dwordx4 v[{r}:{r+3}], v3, s[14:15] sc1")
            a(f"global_load_dwordx4 v[{r+4}:{r+7}], v2, s[14:15] offset:{2048*k+16} sc1" if k < 2 else f"global_load_dwordx4 v[{r+4}:{r+7}], v3, s[14:15] offset:16 sc1")
        if q < 3:
            a("v_add_u32 v2, 12288, v2")
            a("v_add_u32 v3, 12288, v3")
    a("s_waitcnt vmcnt(0)")
    for j in range(24):
        a(f"v_add_f32 v{112+j}, v{112+j}, v{136+j}")
        a(f"v_add_f32 v{160+j}, v{160+j}, v{184+j}")
        a(f"v_add_f32 v{112+j}, v{112+j}, v{160+j}")
    for j in range(24): rbf(a, 112 + j, 112 + j)
    for j in range(8):
        a(f"v_mov_b32 v{32+j}, v{112+j}")
        a(f"v_mov_b32 v{40+j}, v{120+j}")
    a("v_lshlrev_b32 v3, 5, v1")
    a(f"v_add_u32 v3, {GBF}, v3")
    a("global_store_dwordx4 v3, v[128:131], s[14:15] sc1")
    a("global_store_dwordx4 v3, v[132:135], s[14:15] offset:16 sc1")
    for j in range(8): a(f"v_add_f32 v{40+j}, 1.0, v{40+j}")
    for j in range(8): rbf(a, 40 + j, 40 + j)
    for j in range(8): a(f"v_mul_f32 v{48+j}, v{40+j}, v{40+j}")
    for j in range(8): a(f"v_mul_f32 v{56+j}, v{40+j}, v{32+j}")
    a("v_lshlrev_b32 v3, 5, v1")
    a(f"v_add_u32 v3, {G2F}, v3")
    a("global_store_dwordx4 v3, v[48:51], s[14:15] sc1")
    a("global_store_dwordx4 v3, v[52:55], s[14:15] offset:16 sc1")
    for k, base in enumerate((40, 48, 56, 32)):
        a(f"v_add_f32 v{100+k}, v{base}, v{base+1}")
        for j in range(2, 8): a(f"v_add_f32 v{100+k}, v{100+k}, v{base+j}")
    a("v_mul_f32 v104, v32, v32")
    for j in range(1, 8): a(f"v_fmac_f32 v104, v{32+j}, v{32+j}")
    a("v_lshl_add_u32 v4, v1, 4, s27")
    a("v_mov_b32 v64, 0x3f803f80\nv_mov_b32 v65, 0x3f803f80\nv_mov_b32 v66, 0x3f803f80\nv_mov_b32 v67, 0x3f803f80")
    a("ds_write_b128 v4, v[64:67]")
    for q in range(4): a(f"v_cvt_pk_bf16_f32 v{68+q}, v{40+2*q}, v{41+2*q}")
    a("ds_write_b128 v4, v[68:71] offset:1024")
    for (src, row) in ((48, 2), (56, 4)):
        for q in range(4): a(f"v_cvt_pk_bf16_f32 v{72+q}, v{src+2*q}, v{src+2*q+1}")
        a(f"ds_write_b128 v4, v[72:75] offset:{1024*row}")
        for q in range(4):
            a(f"v_lshlrev_b32 v{80+2*q}, 16, v{72+q}")
            a(f"v_and_b32 v{81+2*q}, 0xffff0000, v{72+q}")
        for j in range(8): a(f"v_sub_f32 v{80+j}, v{src+j}, v{80+j}")
        for q in range(4): a(f"v_cvt_pk_bf16_f32 v{76+q}, v{80+2*q}, v{81+2*q}")
        a(f"ds_write_b128 v4, v[76:79] offset:{1024*(row+1)}")
    a("s_nop 1")
    for ctl in ("row_shr:1", "row_shr:2", "row_shr:4", "row_shr:8", "row_bcast:15 row_mask:0xa", "row_bcast:31 row_mask:0xc"):
        for r in range(100, 105):
            a(f"v_add_f32_dpp v{r}, v{r}, v{r} {ctl}")
    a(f"v_mov_b32 v5, {SCAL}")
    a("s_mov_b64 s[42:43], exec")
    a("s_mov_b64 exec, 0x8000000000000000") if False else None
    a("v_cmp_eq_u32 vcc, 63, v1")
    a("s_and_saveexec_b64 s[42:43], vcc")
    a("global_store_dwordx4 v5, v[100:103], s[14:15]" + SC1)
    a("global_store_dword v5, v104, s[14:15] offset:16" + SC1)
    a("s_mov_b64 exec, s[42:43]")
    a("v_and_b32 v6, 15, v1")
    a("v_lshrrev_b32 v7, 4, v1")
    a("v_min_u32 v8, 5, v6")
    a("v_lshlrev_b32 v8, 10, v8")
    a("v_lshl_add_u32 v8, v7, 3, v8")
    a("v_add_u32 v8, s27, v8")
    a("v_cmp_gt_u32 vcc, 6, v6")
    a("v_mov_b32 v9, 0")
    a("s_nop 0")
    a("v_cndmask_b32 v9, v9, -1, vcc")
    a(f"s_mov_b32 s30, {W1F + 86*1024}")
    a("v_lshl_add_u32 v10, v1, 4, s30")
    a("s_waitcnt lgkmcnt(0)")
    for ks in range(16):
        R = 16 + 4 * (ks & 1)
        a(f"ds_read_b64 v[{R}:{R+1}], v8 offset:{64*ks}")
        a(f"ds_read_b64 v[{R+2}:{R+3}], v8 offset:{64*ks+32}")
        a("s_waitcnt lgkmcnt(0)")
        for q in range(4): a(f"v_and_b32 v{R+q}, v{R+q}, v9")
        a(f"global_store_dwordx4 v10, v[{R}:{R+3}], s[14:15]" + SC1)
        a(f"v_add_u32 v10, {87*1024}, v10")
    a("s_branch K12_UDONE")
    a("K12_UDONE:   ; LINT-RESET")
    if OPT.get("wpf", "0") == "1":
        a("s_waitcnt vmcnt(0)")
        a(f"v_mov_b32 v2, {WCNT}")
        a("v_mov_b32 v3, 1")
        a("s_mov_b64 exec, 1")
        a("global_atomic_add v2, v3, s[14:15] sc1")
    a("s_branch K2_END")
    a("K2_SIDE_IDLE:   ; LINT-RESET")
    if OPT.get("wpf", "0") == "1":
        a("s_cmp_eq_u32 s25, 2")
        a("s_cbranch_scc0 K2_END")
        a(f"v_mov_b32 v2, {WCNT}")
        a("s_mov_b32 s52, 0x40000")
        a("s_mov_b64 exec, 1")
        a("K12_wpoll:")
        a("s_sleep 8")
        a("global_load_dword v3, v2, s[14:15] sc1")
        a("s_waitcnt vmcnt(0)")
        a("v_readfirstlane_b32 s40, v3")
        a("s_sub_u32 s52, s52, 1")
        a("s_cmp_eq_u32 s52, 0")
        a("s_cbranch_scc1 K12_wpx")
        a("s_cmp_ge_u32 s40, 349")
        a("s_cbranch_scc0 K12_wpoll")
        a("K12_wpx:")
        a("s_mov_b64 exec, -1")
        a("s_lshr_b32 s30, s2, 3")
        a("v_lshlrev_b32 v4, 7, v1")
        for (base, size, reg) in ((W1F, 87 * 16384, 44), (W2F, 8 * 43 * 4096, 48)):
            a(f"s_add_u32 s{reg}, s14, {base}")
            a(f"s_addc_u32 s{reg+1}, s15, 0")
            a(f"s_mov_b32 s{reg+2}, {size}")
            a(f"s_mov_b32 s{reg+3}, 0x20000")
            per = -(-size // 32 // 128) * 128
            a(f"s_mul_i32 s31, s30, {per}")
            n = -(-per // 8192)
            for k in range(n):
                a(f"buffer_load_dword v{8 + k + (8 if reg == 48 else 0)}, v4, s[{reg}:{reg+3}], s31 offen")
                if k + 1 < n: a("s_add_u32 s31, s31, 8192")
    a("K2_END:   ; LINT-RESET")
    stamp_store(a, 0, 14, 24)
    a("K2_EXIT:")
    a.end_kernel(name, 208, 100)

G2T = 65536
SVT = G2T + 2048
STT = SVT + 3072
COF = STT + 2048
RED = COF + 4096
P_W = 64 * 272
K3_LDS = RED + 4 * P_W
FLAGS = 0x0638000

def k3(a):
    name = "k3_kernel"
    a.begin_kernel(name, 256, 256, K3_LDS)
    a("s_cmp_ge_u32 s2, 256")
    a("s_cbranch_scc1 K3_EXIT")
    stamp(a, 0)
    a("s_load_dwordx2 s[14:15], s[0:1], 128")
    a("s_load_dwordx2 s[12:13], s[0:1], 72")
    a("s_load_dwordx2 s[16:17], s[0:1], 88")
    a("s_load_dwordx2 s[18:19], s[0:1], 112")
    wave_id(a, 24, 1)
    a("v_and_b32 v1, 63, v0")
    a("s_and_b32 s25, s2, 7")
    a("s_lshr_b32 s26, s2, 3")
    a("s_lshr_b32 s27, s26, 3")
    a("s_lshl_b32 s25, s25, 2")
    a("s_add_u32 s25, s25, s27")
    a("s_and_b32 s26, s26, 7")
    a("s_and_b32 s22, s25, 3")
    a("s_lshl_b32 s23, s22, 1")
    a("s_add_u32 s23, s23, s26")
    a("s_lshl_b32 s23, s23, 1")
    a("s_and_b32 s23, s23, 15")
    a("s_mul_i32 s22, s22, 3")
    a("s_add_u32 s22, s22, s26")
    a("s_sub_u32 s21, s22, 11")
    a("s_cmp_ge_u32 s22, 11")
    a("s_cselect_b32 s22, s21, s22")
    if OPT.get('rot', '0') != '1':
        a("s_mov_b32 s23, 0")
        a("s_mov_b32 s22, 0")
    a("s_mul_i32 s27, s26, 11")
    a("s_min_u32 s27, s27, 76")
    a("s_cmp_lt_u32 s26, 6")
    a("s_cselect_b32 s28, 11, 10")
    a("s_mul_i32 s29, s24, 3")
    for i in range(3):
        a(f"s_add_u32 s30, s29, {i}")
        a("s_add_u32 s31, s30, s27")
        a("s_cmp_lt_u32 s30, s28")
        a(f"s_cselect_b32 s{32+i}, s31, 86")
    a("v_lshrrev_b32 v10, 3, v1")
    a("v_and_b32 v11, 6, v10")
    a("v_and_b32 v12, 7, v1")
    a("v_xor_b32 v11, v11, v12")
    a("v_lshlrev_b32 v11, 4, v11")
    a("v_lshl_add_u32 v11, v10, 7, v11")
    a("s_lshl_b32 s41, s24, 10")
    a("s_lshl_b32 s42, s25, 16")
    a("s_add_u32 s41, s41, s42")
    a(f"s_add_u32 s41, s41, {X2T}")
    a("s_lshl_b32 s42, s24, 10")
    a("v_lshlrev_b32 v2, 3, v0")
    a(f"v_add_u32 v2, {G2F if FUSED else MODF + 4*2048}, v2")
    a("v_lshlrev_b32 v13, 4, v1")
    for i in range(3):
        a(f"s_lshl_b32 s30, s{32+i}, 10")
        a(f"v_add_u32 v{126+i}, s30, v13")
    a("s_mov_b32 s47, s23")
    a("s_lshl_b32 s46, s23, 12")
    a("v_lshrrev_b32 v3, 4, v1")
    a("v_and_b32 v6, 15, v1")
    a("v_mov_b32 v7, s32")
    a("v_mov_b32 v8, s33")
    a("v_mov_b32 v9, s34")
    a("v_cmp_eq_u32 vcc, 1, v3")
    a("v_cmp_le_u32 s[52:53], 2, v3")
    a("s_nop 0")
    a("v_cndmask_b32 v7, v7, v8, vcc")
    a("v_cndmask_b32 v7, v7, v9, s[52:53]")
    a("v_min_u32 v7, 85, v7")
    a("v_lshl_add_u32 v7, v7, 4, v6")
    a("v_lshlrev_b32 v8, 2, v7")
    a(f"v_add_u32 v8, {SVP}, v8")
    a("v_lshlrev_b32 v9, 1, v7")
    a("s_waitcnt lgkmcnt(0)")
    wsfix(a, 14)
    a.srd(8, 14, WS_USED)
    a("global_load_dwordx2 v[4:5], v2, s[14:15]")
    for j in range(16):
        a("s_mov_b32 m0, s42")
        a("s_add_u32 s45, s41, s46")
        a("s_add_u32 s42, s42, 4096")
        a(f"buffer_load_dwordx4 v11, s[8:11], s45 offen lds")
        a("s_add_u32 s46, s46, 4096")
        a("s_and_b32 s46, s46, 0xffff")
    def wload(ks):
        out = []
        for i in range(3):
            r = (ks * 3 + i) * 4
            pre = f"s_mul_i32 s44, s47, {87*1024}\ns_add_u32 s44, s44, {W1F}\n" if i == 0 else ""
            post = "\ns_add_u32 s47, s47, 1\ns_and_b32 s47, s47, 15" if i == 2 else ""
            out.append(pre + f"buffer_load_dwordx4 a[{r}:{r+3}], v{126+i}, s[8:11], s44 offen" + post)
        return out
    PRE = min(int(OPT.get('pre', '4')), int(OPT.get('deep', '5')))
    for ks in range(PRE):
        for x in wload(ks): a(x)
    a(f"s_mov_b32 s30, {SCAL}")
    a("s_load_dwordx4 s[36:39], s[14:15], s30")
    a(f"s_mov_b32 s31, {SCAL+16}")
    a("s_load_dword s40, s[14:15], s31")
    a("v_bfe_u32 v14, v1, 2, 2")
    a("v_lshl_add_u32 v14, v3, 2, v14")
    a("v_and_b32 v15, 6, v14")
    a("v_lshrrev_b32 v15, 1, v15")
    a("v_and_b32 v29, 3, v1")
    a("v_lshlrev_b32 v30, 7, v14")
    a("v_lshl_add_u32 v30, v29, 3, v30")
    for k in range(4):
        a(f"s_add_u32 s30, s24, {k}")
        a(f"s_and_b32 s{48+k}, s30, 3")
        a(f"v_xor_b32 v31, s{48+k}, v15")
        a(f"v_lshl_add_u32 v{20+k}, v31, 5, v30")
    a("v_xor_b32 v31, s24, v15")
    a("v_lshl_add_u32 v26, v31, 5, v30")
    a("s_lshl_b32 s30, s26, 1")
    a("s_sub_u32 s30, s30, s23")
    a("s_add_u32 s31, s30, 1")
    a("s_and_b32 s30, s30, 15")
    a("s_and_b32 s31, s31, 15")
    a("s_lshl_b32 s30, s30, 12")
    a("s_lshl_b32 s31, s31, 12")
    a("v_add_u32 v125, s31, v26")
    a("v_add_u32 v26, s30, v26")
    a(f"v_lshlrev_b32 v24, 4, v3")
    a(f"v_add_u32 v24, {G2T}, v24")
    ACC = 160
    for r in range(ACC, ACC + 48): a(f"v_mov_b32 v{r}, 0")
    for r in range(96, 108): a(f"v_mov_b32 v{r}, 0")
    a(f"s_waitcnt vmcnt({16 + 3*PRE})")
    if not FUSED:
        a("v_add_f32 v4, 1.0, v4")
        a("v_add_f32 v5, 1.0, v5")
        rbf(a, 4, 4); rbf(a, 5, 5)
        a("v_mul_f32 v4, v4, v4")
        a("v_mul_f32 v5, v5, v5")
    a("v_lshlrev_b32 v2, 3, v0")
    a("s_lshl_b32 s30, s23, 7")
    a("v_subrev_u32 v2, s30, v2")
    a("v_and_b32 v2, 2047, v2")
    a(f"v_add_u32 v2, {G2T}, v2")
    a("ds_write_b64 v2, v[4:5]")
    a(f"s_waitcnt vmcnt({3*PRE}) lgkmcnt(0)")
    stamp(a, 1)
    a("s_barrier")
    XF = [32, 48]
    def xreads(ks):
        b = XF[ks & 1]
        out = []
        for k in range(4):
            for hf in range(2):
                out.append(f"ds_read_b64_tr_b16 v[{b+4*k+2*hf}:{b+4*k+2*hf+1}], v{20+k} offset:{4096*ks + 2048*hf}")
        return out
    STATS = OPT.get('stats', 'in')
    GQ = [64, 72]
    if STATS == 'in':
        for ks in range(PRE, int(OPT.get('deep', '5'))):
            for x in wload(ks): a(x)
    def greads(ks):
        g = GQ[ks & 1]
        return [f"ds_read_b128 v[{g}:{g+3}], v24 offset:{128*ks}", f"ds_read_b128 v[{g+4}:{g+7}], v24 offset:{128*ks+64}"]
    for x in xreads(0) + greads(0): a(x)
    DEEP = int(OPT.get('deep', '5'))
    a("s_mul_i32 s58, s24, 11")
    a("s_cmp_eq_u32 s24, 3")
    a("s_cselect_b32 s58, 32, s58")
    a("s_mul_i32 s59, s26, 43")
    a("s_add_u32 s59, s59, s58")
    a("s_lshl_b32 s59, s59, 12")
    a(f"s_add_u32 s59, s59, {W2F}")
    a.srd(60, 14, WS_USED)
    a("s_cmp_eq_u32 s24, 3")
    a("s_cselect_b32 s65, 0, s10")
    a("s_mov_b32 s64, s22")
    drip = []
    for j in range(11):
        for t in range(4):
            r = (j * 4 + t) * 4
            pre = "s_lshl_b32 s66, s64, 12\ns_add_u32 s66, s66, s59\ns_cmp_eq_u32 s64, 0\ns_cselect_b32 s62, s65, s10\n" if t == 0 else ""
            post = "\ns_add_u32 s64, s64, 1\ns_cmp_eq_u32 s64, 11\ns_cselect_b32 s64, 0, s64" if t == 3 else ""
            drip.append(pre + f"buffer_load_dwordx4 a[{r}:{r+3}], v13, s[60:63], s66 offen offset:{1024*t}" + post)
    a("s_lshl_b32 s30, s26, 8")
    a(f"s_add_u32 s30, s30, {GBF if FUSED else MODF + 5*2048}")
    a("v_lshl_add_u32 v27, v3, 4, s30")
    a("s_lshl_b32 s30, s26, 7")
    a("v_lshl_add_u32 v28, v3, 3, s30")
    gbl = []
    for dt in range(4):
        gbl.append(f"global_load_dwordx4 v[{208+4*dt}:{211+4*dt}], v27, s[14:15] offset:{64*dt}")
    for dt in range(4):
        gbl.append(f"global_load_dwordx2 v[{224+2*dt}:{225+2*dt}], v28, s[16:17] offset:{32*dt}")
    issued = DEEP
    vm_after = []
    seq = [("W", ks) for ks in range(DEEP) for _ in range(3)]
    def vmwait(tag):
        last = max(i for i, t in enumerate(seq) if t == tag)
        return len(seq) - 1 - last
    sm_done = False
    smalls = []
    for kq in range(4):
        for v in range(3):
            smalls.append(f"global_load_dword v{112+kq*3+v}, v8, s[14:15]")
            if not (kq == 3 and v == 2): smalls.append("v_add_u32 v8, 5504, v8")
    smalls.append("global_load_ushort v124, v9, s[12:13]")
    for ks in range(16):
        b = XF[ks & 1]
        a(f"s_waitcnt vmcnt({vmwait(('W', ks))}) lgkmcnt(0)")
        mf = []
        for i in range(3):
            r = (ks * 3 + i) * 4
            for k in range(4):
                d = ACC + (i * 4 + k) * 4
                mf.append(f"v_mfma_f32_16x16x32_bf16 v[{d}:{d+3}], a[{r}:{r+3}], v[{b+4*k}:{b+4*k+3}], v[{d}:{d+3}]")
        va = []
        if ks + 1 < 16: va += xreads(ks + 1) + greads(ks + 1)
        if issued < 16:
            va += wload(issued); seq += [("W", issued)] * 3; issued += 1
        elif not sm_done:
            sm_done = True
            va += smalls + gbl; seq += [("S", 0)] * 13 + [("G", 0)] * 8
        else:
            for _ in range(3):
                va.append(drip.pop(0)); seq.append(("W2", 0))
        g = GQ[ks & 1]
        for q in range(4):
            va.append(f"v_lshlrev_b32 v{80+2*q}, 16, v{b+q}")
            va.append(f"v_and_b32 v{81+2*q}, 0xffff0000, v{b+q}")
        for q in range(8):
            va.append(f"v_mul_f32 v{80+q}, v{80+q}, v{80+q}")
        for q in range(8):
            va.append(f"v_add_f32 v{96+(q&3)}, v{96+(q&3)}, v{80+q}")
            va.append(f"v_fmac_f32 v{100+q}, v{80+q}, v{g+q}")
        per = -(-len(va) // 12)
        vi = 0
        for m in mf:
            a(m)
            for _ in range(per):
                if vi < len(va): a(va[vi]); vi += 1
    stamp(a, 2)
    KEEP = int(OPT.get('keep', '0'))
    def dr(n=1, final=False):
        for _ in range(n):
            if drip and (final or len(drip) > KEEP): a(drip.pop(0))
    a(f"s_waitcnt vmcnt({vmwait(('S', 0))})")
    dr(1)
    for v in range(3):
        a(f"v_add_f32 v{112+v}, v{112+v}, v{115+v}")
        a(f"v_add_f32 v{118+v}, v{118+v}, v{121+v}")
        a(f"v_add_f32 v{112+v}, v{112+v}, v{118+v}")
    a("v_lshlrev_b32 v124, 16, v124")
    dr(2)
    a("s_mul_i32 s30, s24, 768")
    a(f"s_add_u32 s30, s30, {SVT}")
    a("v_lshlrev_b32 v2, 8, v3")
    a("v_lshl_add_u32 v2, v6, 2, v2")
    a("v_add_u32 v2, s30, v2")
    a("v_cmp_gt_u32 vcc, 48, v1")
    a("s_and_saveexec_b64 s[42:43], vcc")
    a("ds_write_b32 v2, v112")
    a("ds_write_b32 v2, v114 offset:64")
    a("ds_write_b32 v2, v113 offset:128")
    a("ds_write_b32 v2, v124 offset:192")
    a("s_mov_b64 exec, s[42:43]")
    a("v_pk_add_f32 v[96:97], v[96:97], v[98:99]")
    a("v_add_f32 v96, v96, v97")
    a("v_pk_add_f32 v[100:101], v[100:101], v[102:103]")
    a("v_pk_add_f32 v[104:105], v[104:105], v[106:107]")
    a("v_pk_add_f32 v[100:101], v[100:101], v[104:105]")
    a("v_add_f32 v97, v100, v101")
    a("v_mov_b32 v98, v96")
    a("v_mov_b32 v99, v97")
    a("s_nop 0")
    a("v_permlane16_swap_b32 v96, v98")
    a("v_permlane16_swap_b32 v97, v99")
    dr(2)
    a("v_add_f32 v96, v96, v98")
    a("v_add_f32 v97, v97, v99")
    a("v_mov_b32 v98, v96")
    a("v_mov_b32 v99, v97")
    a("s_nop 0")
    a("v_permlane32_swap_b32 v96, v98")
    a("v_permlane32_swap_b32 v97, v99")
    a("s_lshl_b32 s30, s24, 9")
    a(f"s_add_u32 s30, s30, {STT}")
    a("v_add_f32 v96, v96, v98")
    a("v_add_f32 v97, v97, v99")
    a("v_lshl_add_u32 v2, v6, 5, s30")
    a("ds_write_b64 v2, v[96:97] offset:24")
    a("s_cmp_eq_u32 s24, 3")
    a("s_cbranch_scc0 K3_nolin")
    a("v_cmp_eq_u32 s[52:53], 0, v3")
    a("v_cmp_eq_u32 s[54:55], 1, v3")
    for k in range(4):
        a(f"s_lshl_b32 s30, s{48+k}, 9")
        a(f"s_add_u32 s30, s30, {STT}")
        a(f"v_lshl_add_u32 v{60+k}, v6, 5, s30")
    a("s_mov_b64 s[42:43], exec")
    a("s_mov_b64 exec, s[52:53]")
    for k in range(4):
        d = ACC + (8 + k) * 4
        a(f"ds_write_b128 v{60+k}, v[{d}:{d+3}]")
    a("s_mov_b64 exec, s[54:55]")
    for k in range(4):
        d = ACC + (8 + k) * 4
        a(f"ds_write_b64 v{60+k}, v[{d}:{d+1}] offset:16")
    a("s_mov_b64 exec, s[42:43]")
    a("K3_nolin:")
    dr(2)
    a("s_waitcnt lgkmcnt(0)")
    a("s_barrier")
    dr(2)
    a("v_lshlrev_b32 v2, 5, v1")
    a(f"v_add_u32 v2, {STT}, v2")
    a("ds_read_b128 v[32:35], v2")
    a("ds_read_b128 v[36:39], v2 offset:16")
    a("s_mul_i32 s30, s24, 768")
    a(f"s_add_u32 s30, s30, {SVT}")
    a("v_lshl_add_u32 v25, v3, 4, s30")
    a("s_mov_b32 s56, 0xbdd2d3e2")
    a("s_mov_b32 s57, 0xc0135761")
    a("s_waitcnt lgkmcnt(0)")
    a("v_add_f32 v34, v34, v35")
    a("v_add_f32 v36, v36, v37")
    a("v_mul_f32 v32, 0x3b000000, v32")
    a("v_mul_f32 v38, 0x3b000000, v38")
    a("v_fma_f32 v38, -v32, v32, v38")
    a("v_max_f32 v38, 0, v38")
    a("v_cvt_pk_bf16_f32 v40, v32, v38")
    a("v_lshlrev_b32 v32, 16, v40")
    a("v_and_b32 v38, 0xffff0000, v40")
    a("v_add_f32 v38, 0x3727c5ac, v38")
    rbf(a, 38, 38)
    a("v_sqrt_f32 v38, v38")
    a("v_fma_f32 v33, -v32, s36, v33")
    dr(2)
    rbf(a, 38, 38)
    a("v_rcp_f32 v38, v38")
    a("v_mul_f32 v40, v32, v32")
    a("v_add_f32 v41, v32, v32")
    a("v_fma_f32 v39, -v41, v34, v39")
    a("v_fma_f32 v39, v40, s37, v39")
    a("v_fma_f32 v36, -v32, s38, v36")
    a("v_fma_f32 v33, v33, v38, s39")
    a("v_add_f32 v36, v36, v36")
    a("v_fma_f32 v39, v39, v38, v36")
    a("v_mul_f32 v33, 0x3b000000, v33")
    dr(2)
    a("v_fma_f32 v39, v39, v38, s40")
    a("v_mul_f32 v39, 0x3b000000, v39")
    a("v_fma_f32 v39, -v33, v33, v39")
    a("v_max_f32 v39, 0, v39")
    a("v_cvt_pk_bf16_f32 v40, v33, v39")
    a("v_lshlrev_b32 v33, 16, v40")
    a("v_and_b32 v39, 0xffff0000, v40")
    a("v_add_f32 v39, 0x3727c5ac, v39")
    rbf(a, 39, 39)
    a("v_sqrt_f32 v39, v39")
    a("s_nop 0")
    rbf(a, 39, 39)
    a("v_rcp_f32 v47, v39")
    a("s_lshl_b32 s30, s24, 10")
    a(f"s_add_u32 s30, s30, {COF}")
    a("v_mul_f32 v44, v47, v38")
    a("v_mul_f32 v46, -v47, v33")
    a("v_mul_f32 v45, -v44, v32")
    a("v_lshl_add_u32 v2, v1, 4, s30")
    a("ds_write_b128 v2, v[44:47]")
    a("s_waitcnt lgkmcnt(0)")
    for k in range(4):
        a(f"s_lshl_b32 s31, s{48+k}, 8")
        a("s_add_u32 s31, s31, s30")
        a(f"v_lshl_add_u32 v2, v6, 4, s31")
        a(f"ds_read_b128 v[{48+4*k}:{51+4*k}], v2")
    dr(2)
    stamp(a, 3)
    for i in range(3):
        if i > 0: dr(4)
        a(f"s_cmp_eq_u32 s{32+i}, 86")
        a(f"s_cbranch_scc1 K3_skip{i}")
        for st in range(4):
            a(f"ds_read_b128 v[{64+4*st}:{67+4*st}], v25 offset:{256*i + 64*st}")
        a(f"s_add_u32 s30, s29, {i}")
        a("s_lshr_b32 s31, s30, 1")
        a("s_lshl_b32 s31, s31, 12")
        a("s_and_b32 s30, s30, 1")
        a("s_lshl_b32 s30, s30, 3")
        a("s_add_u32 s30, s30, s31")
        a(f"s_add_u32 s30, s30, {RED}")
        a("s_waitcnt lgkmcnt(0)")
        A_ = ACC + i * 16
        for k in range(4):
            c = 48 + 4 * k
            for p in range(2):
                t = 96 + 4 * k + 2 * p
                a(f"v_pk_fma_f32 v[{t}:{t+1}], v[{64+2*p}:{65+2*p}], v[{c}:{c+1}], v[{76+2*p}:{77+2*p}] op_sel:[0,1,0] op_sel_hi:[1,1,1]")
        if i == 0: dr(2)
        for k in range(4):
            c = 48 + 4 * k
            for p in range(2):
                t = 96 + 4 * k + 2 * p
                a(f"v_pk_fma_f32 v[{t}:{t+1}], v[{68+2*p}:{69+2*p}], v[{c+2}:{c+3}], v[{t}:{t+1}] op_sel_hi:[1,0,1]")
        if i == 0: dr(2)
        for k in range(4):
            c = 48 + 4 * k
            for p in range(2):
                t = 96 + 4 * k + 2 * p
                a(f"v_pk_fma_f32 v[{t}:{t+1}], v[{72+2*p}:{73+2*p}], v[{c+2}:{c+3}], v[{t}:{t+1}] op_sel:[0,1,0] op_sel_hi:[1,1,1]")
        if i == 0: dr(2)
        for k in range(4):
            c = 48 + 4 * k
            for p in range(2):
                x = A_ + 4 * k + 2 * p; t = 96 + 4 * k + 2 * p
                a(f"v_pk_fma_f32 v[{x}:{x+1}], v[{x}:{x+1}], v[{c}:{c+1}], v[{t}:{t+1}] op_sel_hi:[1,0,1]")
        if i == 0: dr(2)
        for j in range(8):
            x = A_ + 2 * j; t = 96 + 2 * j
            a(f"v_pk_mul_f32 v[{t}:{t+1}], v[{x}:{x+1}], v[{x}:{x+1}]")
        for j in range(8):
            t = 96 + 2 * j
            a(f"v_pk_fma_f32 v[{t}:{t+1}], v[{t}:{t+1}], s[56:57], s[56:57] op_sel:[0,0,1] op_sel_hi:[1,0,1]")
        if i == 0: dr(2)
        for j in range(8):
            x = A_ + 2 * j; t = 96 + 2 * j
            a(f"v_pk_mul_f32 v[{t}:{t+1}], v[{t}:{t+1}], v[{x}:{x+1}]")
        for j in range(16): a(f"v_exp_f32 v{96+j}, v{96+j}")
        if i == 0: dr(3)
        for j in range(8):
            t = 96 + 2 * j
            a(f"v_pk_add_f32 v[{t}:{t+1}], v[{t}:{t+1}], 1.0 op_sel_hi:[1,0]")
        for j in range(16): a(f"v_rcp_f32 v{96+j}, v{96+j}")
        if i == 0: dr(3)
        for j in range(8):
            x = A_ + 2 * j; t = 96 + 2 * j
            a(f"v_pk_mul_f32 v[{x}:{x+1}], v[{x}:{x+1}], v[{t}:{t+1}]")
        for k in range(4):
            a(f"v_cvt_pk_bf16_f32 v{112+2*k}, v{A_+4*k}, v{A_+4*k+1}")
            a(f"v_cvt_pk_bf16_f32 v{113+2*k}, v{A_+4*k+2}, v{A_+4*k+3}")
        if i == 1:
            a("s_cmp_eq_u32 s29, 9")
            a("s_cbranch_scc0 K3_paired1")
            a("s_lshr_b32 s31, s26, 1")
            a("s_add_u32 s31, s31, 40")
            a("s_mul_i32 s43, s25, 43")
            a("s_add_u32 s31, s31, s43")
            a("s_lshl_b32 s31, s31, 12")
            a("s_and_b32 s43, s26, 1")
            a("s_lshl_b32 s43, s43, 3")
            a("s_add_u32 s31, s31, s43")
            a(f"s_add_u32 s31, s31, {HF}")
            for k in range(4):
                a(f"s_lshl_b32 s43, s{48+k}, 10")
                a("s_add_u32 s43, s43, s31")
                a(f"buffer_store_dwordx2 v[{112+2*k}:{113+2*k}], v13, s[8:11], s43 offen sc1")
            a("s_branch K3_skip1")
            a("K3_paired1:")
        for k in range(4):
            a(f"s_lshl_b32 s31, s{48+k}, 10")
            a("s_add_u32 s31, s31, s30")
            a(f"v_add_u32 v2, s31, v13")
            a(f"ds_write_b64 v2, v[{112+2*k}:{113+2*k}]")
        a(f"K3_skip{i}:   ; LINT-RESET")
    dr(99)
    a("s_waitcnt lgkmcnt(0)")
    a("s_barrier")
    stamp(a, 4)
    a("s_mul_i32 s30, s24, 5120")
    a("v_add_u32 v2, s30, v13")
    a(f"v_add_u32 v2, {RED}, v2")
    for q in range(5): a(f"ds_read_b128 v[{32+4*q}:{35+4*q}], v2 offset:{1024*q}")
    a("s_mul_i32 s31, s25, 43")
    a("s_mul_i32 s43, s26, 5")
    a("s_add_u32 s31, s31, s43")
    a("s_lshl_b32 s31, s31, 12")
    a("s_add_u32 s31, s31, s30")
    a(f"s_add_u32 s31, s31, {HF}")
    for q in range(5):
        a(f"s_waitcnt lgkmcnt({4-q})")
        if q == 4: a("s_add_u32 s31, s31, 4096")
        a(f"buffer_store_dwordx4 v[{32+4*q}:{35+4*q}], v13, s[8:11], s31 offen offset:{1024*(q&3)} sc1")
    for r in range(176, 240): a(f"v_accvgpr_write_b32 a{r}, 0")
    a(f"s_waitcnt vmcnt(0)")
    stamp(a, 5)
    a("s_barrier")
    a("s_cmp_lg_u32 s24, 0")
    a("s_cbranch_scc1 K3_wait")
    a("s_lshl_b32 s30, s25, 7")
    a(f"s_add_u32 s30, s30, {FLAGS}")
    a("v_mov_b32 v2, s30")
    a("v_mov_b32 v4, 1")
    a("s_mov_b64 s[42:43], exec")
    a("s_mov_b64 exec, 1")
    a("global_atomic_add v4, v2, v4, s[14:15] sc0 sc1")
    a("s_waitcnt vmcnt(0)")
    a("v_readfirstlane_b32 s30, v4")
    a("s_cmp_eq_u32 s30, 7")
    a("s_cbranch_scc1 K3_pollx")
    a("s_mov_b32 s31, 0x100000")
    a("K3_poll:")
    a("buffer_load_dword v5, v2, s[8:11], 0 offen sc1")
    a("s_waitcnt vmcnt(0)")
    a("v_readfirstlane_b32 s30, v5")
    a("s_sub_u32 s31, s31, 1")
    a("s_cmp_eq_u32 s31, 0")
    a("s_cbranch_scc1 K3_pollx")
    a("s_cmp_ge_u32 s30, 8")
    a("s_cbranch_scc0 K3_poll")
    a("K3_pollx:")
    a("s_mov_b64 exec, s[42:43]")
    a("K3_wait:   ; LINT-RESET")
    a("s_barrier")
    stamp(a, 6)
    a("s_mul_i32 s57, s25, 43")
    a("s_add_u32 s57, s57, s58")
    a("s_lshl_b32 s57, s57, 12")
    a(f"s_add_u32 s57, s57, {HF}")
    a("s_mov_b32 s64, s22")
    late = list(drip); drip.clear()
    hl = []
    for j in range(11):
        for t in range(4):
            r = 32 + (j * 4 + t) * 4
            pre = "s_lshl_b32 s56, s64, 12\ns_add_u32 s56, s56, s57\n" if t == 0 else ""
            post = "\ns_add_u32 s64, s64, 1\ns_cmp_eq_u32 s64, 11\ns_cselect_b32 s64, 0, s64" if t == 3 else ""
            hl.append((("H", j), pre + f"buffer_load_dwordx4 v[{r}:{r+3}], v13, s[8:11], s56 offen offset:{1024*t}" + HLD + post))
    pos = 20
    lt_ = [(("L", 0), x) for x in late]
    hl = hl[:pos] + lt_ + hl[pos:]
    HD = int(OPT.get('hd', '16'))
    qseq = []
    def hissue():
        tag, x = hl.pop(0); a(x); qseq.append(tag)
    for _ in range(HD): hissue()
    for dt in range(4):
        a(f"ds_read_b64_tr_b16 v[{16+2*dt}:{17+2*dt}], v{26 if dt < 2 else 125} offset:{2048*(dt&1)}")
    for j in range(11):
        need = [i for i, t in enumerate(qseq) if t == ("H", j)]
        assert len(need) == 4
        last = max(need)
        if late and j >= 9: last = max(last, max(i for i, t in enumerate(qseq) if t == ("L", 0)))
        a(f"s_waitcnt vmcnt({len(qseq) - 1 - last})")
        q = 0
        for dt in range(4):
            for lt in range(4):
                d = 176 + (dt * 4 + lt) * 4
                ar = (j * 4 + dt) * 4
                br = 32 + (j * 4 + lt) * 4
                a(f"v_mfma_f32_16x16x32_bf16 a[{d}:{d+3}], a[{ar}:{ar+3}], v[{br}:{br+3}], a[{d}:{d+3}]")
                if q % 4 == 0 and hl: hissue()
                q += 1
    stamp(a, 7)
    a("v_mul_u32_u24 v5, 272, v6")
    a("v_lshl_add_u32 v5, v3, 4, v5")
    a(f"s_mul_i32 s30, s24, {P_W}")
    a(f"s_add_u32 s30, s30, {RED}")
    a("v_add_u32 v7, s30, v5")
    a("s_nop 4")
    for dt in range(4):
        for lt in range(4):
            d = 176 + (dt * 4 + lt) * 4
            a(f"ds_write_b128 v7, a[{d}:{d+3}] offset:{lt*16*272 + dt*64}")
    a(f"s_mul_i32 s30, s24, {16*272}")
    a(f"s_add_u32 s30, s30, {RED}")
    a("v_add_u32 v7, s30, v5")
    a("s_waitcnt lgkmcnt(0)")
    a("s_barrier")
    stamp(a, 8)
    for dt in range(4):
        for w in range(4):
            r = 32 + (dt * 4 + w) * 4
            a(f"ds_read_b128 v[{r}:{r+3}], v7 offset:{w*P_W + dt*64}")
    a.srd(40, 18, 2048 * 512 * 2)
    a("s_lshl_b32 s30, s25, 16")
    a("s_lshl_b32 s31, s24, 14")
    a("s_add_u32 s30, s30, s31")
    a("s_lshl_b32 s31, s26, 7")
    a("s_add_u32 s30, s30, s31")
    a("v_lshlrev_b32 v9, 10, v6")
    a("v_lshl_add_u32 v9, v3, 3, v9")
    a("v_add_u32 v9, s30, v9")
    for dt in range(4):
        a(f"s_waitcnt lgkmcnt({4*(3-dt)})")
        r = 32 + dt * 16
        for p in range(2):
            a(f"v_pk_add_f32 v[{r+2*p}:{r+2*p+1}], v[{r+2*p}:{r+2*p+1}], v[{r+4+2*p}:{r+5+2*p}]")
            a(f"v_pk_add_f32 v[{r+8+2*p}:{r+9+2*p}], v[{r+8+2*p}:{r+9+2*p}], v[{r+12+2*p}:{r+13+2*p}]")
        for p in range(2):
            a(f"v_pk_add_f32 v[{r+2*p}:{r+2*p+1}], v[{r+2*p}:{r+2*p+1}], v[{r+8+2*p}:{r+9+2*p}]")
        for q in range(2):
            a(f"v_lshlrev_b32 v{120+2*q}, 16, v{224+2*dt+q}")
            a(f"v_and_b32 v{121+2*q}, 0xffff0000, v{224+2*dt+q}")
            a(f"v_lshlrev_b32 v{124+2*q}, 16, v{16+2*dt+q}")
            a(f"v_and_b32 v{125+2*q}, 0xffff0000, v{16+2*dt+q}")
        for p in range(2):
            a(f"v_pk_add_f32 v[{r+2*p}:{r+2*p+1}], v[{r+2*p}:{r+2*p+1}], v[{120+2*p}:{121+2*p}]")
        for p in range(2):
            a(f"v_pk_fma_f32 v[{r+2*p}:{r+2*p+1}], v[{r+2*p}:{r+2*p+1}], v[{208+4*dt+2*p}:{209+4*dt+2*p}], v[{124+2*p}:{125+2*p}]")
        a(f"v_cvt_pk_bf16_f32 v{24+2*dt}, v{r}, v{r+1}")
        a(f"v_cvt_pk_bf16_f32 v{25+2*dt}, v{r+2}, v{r+3}")
        a(f"buffer_store_dwordx2 v[{24+2*dt}:{25+2*dt}], v9, s[40:43], 0 offen offset:{32*dt}")
    a("K3_END:   ; LINT-RESET")
    stamp_store(a, KID3, 14, 24)
    a("K3_EXIT:")
    a.end_kernel(name, 256 + 240, 100, accum=256)


W8_G2T = 65536
W8_SVT = W8_G2T + 2048
W8_STT = W8_SVT + 3072
W8_COF = W8_STT + 4096
W8_RED = W8_COF + 8192
W8_STG = W8_RED + 49152
W8_LDS = W8_RED + 4 * P_W
assert W8_STG + 20480 <= W8_LDS
RING = 32768

def k3w(a):
    name = "k3_kernel"
    a.begin_kernel(name, 256, 512, W8_LDS)
    a("s_cmp_ge_u32 s2, 256")
    a("s_cbranch_scc1 K3_EXIT")
    stamp(a, 0)
    a("s_load_dwordx2 s[14:15], s[0:1], 128")
    a("s_load_dwordx2 s[12:13], s[0:1], 72")
    a("s_load_dwordx2 s[16:17], s[0:1], 88")
    a("s_load_dwordx2 s[18:19], s[0:1], 112")
    wave_id(a, 24, 1)
    a("v_and_b32 v1, 63, v0")
    a("s_and_b32 s20, s24, 3")
    a("s_lshr_b32 s21, s24, 2")
    a("s_and_b32 s25, s2, 7")
    a("s_lshr_b32 s26, s2, 3")
    a("s_lshr_b32 s27, s26, 3")
    a("s_lshl_b32 s25, s25, 2")
    a("s_add_u32 s25, s25, s27")
    a("s_and_b32 s26, s26, 7")
    a("s_mul_i32 s27, s26, 11")
    a("s_min_u32 s27, s27, 76")
    a("s_cmp_lt_u32 s26, 6")
    a("s_cselect_b32 s28, 11, 10")
    a("s_mul_i32 s29, s20, 3")
    for i in range(3):
        a(f"s_add_u32 s30, s29, {i}")
        a("s_add_u32 s31, s30, s27")
        a("s_cmp_lt_u32 s30, s28")
        a(f"s_cselect_b32 s{32+i}, s31, 86")
    a("v_lshrrev_b32 v10, 3, v1")
    a("v_and_b32 v11, 6, v10")
    a("v_and_b32 v12, 7, v1")
    a("v_xor_b32 v11, v11, v12")
    a("v_lshlrev_b32 v11, 4, v11")
    a("v_lshl_add_u32 v11, v10, 7, v11")
    a("s_lshl_b32 s42, s24, 10")
    a("s_lshl_b32 s41, s25, 16")
    a("s_add_u32 s41, s41, s42")
    a(f"s_add_u32 s41, s41, {X2T}")
    a("v_lshlrev_b32 v2, 2, v0")
    a(f"v_add_u32 v4, {G2F}, v2")
    a("v_lshlrev_b32 v13, 4, v1")
    for i in range(3):
        a(f"s_lshl_b32 s30, s{32+i}, 10")
        a(f"v_add_u32 v{14+i}, s30, v13")
    a(f"s_mul_i32 s44, s21, {8*87*1024}")
    a(f"s_add_u32 s44, s44, {W1F}")
    a("s_waitcnt lgkmcnt(0)")
    wsfix(a, 14)
    a.srd(8, 14, WS_USED)
    a("global_load_dword v5, v4, s[14:15]")
    for j in range(8):
        a("s_mov_b32 m0, s42")
        a("s_add_u32 s42, s42, 8192")
        a(f"buffer_load_dwordx4 v11, s[8:11], s41 offen lds")
        a(f"s_add_u32 s41, s41, 8192")
    WR = 208
    DEEP = 3
    def wload(j):
        out = []
        for i in range(3):
            r = WR + (j % DEEP) * 12 + 4 * i
            out.append(f"buffer_load_dwordx4 v[{r}:{r+3}], v{14+i}, s[8:11], s44 offen")
        out.append(f"s_add_u32 s44, s44, {87*1024}")
        return out
    for j in range(2):
        for x in wload(j): a(x)
    a(f"s_mov_b32 s30, {SCAL}")
    a("s_load_dwordx4 s[36:39], s[14:15], s30")
    a(f"s_mov_b32 s31, {SCAL+16}")
    a("s_load_dword s40, s[14:15], s31")
    a("v_lshrrev_b32 v3, 4, v1")
    a("v_and_b32 v6, 15, v1")
    a("v_bfe_u32 v18, v1, 2, 2")
    a("v_lshl_add_u32 v18, v3, 2, v18")
    a("v_and_b32 v19, 6, v18")
    a("v_lshrrev_b32 v19, 1, v19")
    a("v_and_b32 v29, 3, v1")
    a("v_lshlrev_b32 v30, 7, v18")
    a("v_lshl_add_u32 v30, v29, 3, v30")
    a("s_lshl_b32 s45, s21, 15")
    a("s_lshl_b32 s46, s21, 1")
    a("s_add_u32 s46, s46, s20")
    for k in range(4):
        a(f"s_add_u32 s30, s46, {k}")
        a(f"s_and_b32 s{48+k}, s30, 3")
        a(f"v_xor_b32 v31, s{48+k}, v19")
        a(f"v_lshl_add_u32 v{20+k}, v31, 5, v30")
        a(f"v_add_u32 v{20+k}, s45, v{20+k}")
    a("v_xor_b32 v31, s20, v19")
    a("v_lshl_add_u32 v26, v31, 5, v30")
    a("s_lshl_b32 s30, s26, 13")
    a("s_lshl_b32 s31, s21, 12")
    a("s_add_u32 s30, s30, s31")
    a("v_add_u32 v26, s30, v26")
    a("s_lshl_b32 s30, s21, 10")
    a(f"s_add_u32 s30, s30, {W8_G2T}")
    a("v_lshl_add_u32 v24, v3, 4, s30")
    ACC = 160
    for r in range(ACC, ACC + 48): a(f"v_mov_b32 v{r}, 0")
    for r in range(96, 108): a(f"v_mov_b32 v{r}, 0")
    a("s_waitcnt vmcnt(14)")
    a(f"v_add_u32 v2, {W8_G2T}, v2")
    a("ds_write_b32 v2, v5")
    a("v_mov_b32 v7, s32")
    a("v_mov_b32 v8, s33")
    a("v_mov_b32 v9, s34")
    a("v_cmp_eq_u32 vcc, 1, v3")
    a("v_cmp_le_u32 s[52:53], 2, v3")
    a("s_nop 0")
    a("v_cndmask_b32 v7, v7, v8, vcc")
    a("v_cndmask_b32 v7, v7, v9, s[52:53]")
    a("v_min_u32 v7, 85, v7")
    a("v_lshl_add_u32 v7, v7, 4, v6")
    a("v_lshlrev_b32 v8, 2, v7")
    a(f"v_add_u32 v8, {SVP}, v8")
    a("v_lshlrev_b32 v9, 1, v7")
    a("s_mul_i32 s58, s20, 11")
    a("s_cmp_eq_u32 s20, 3")
    a("s_cselect_b32 s58, 32, s58")
    a("s_mul_i32 s59, s26, 43")
    a("s_add_u32 s59, s59, s58")
    a("s_lshl_b32 s59, s59, 12")
    a("s_lshl_b32 s30, s21, 11")
    a("s_add_u32 s59, s59, s30")
    a(f"s_add_u32 s59, s59, {W2F}")
    a.srd(60, 14, WS_USED)
    a("s_cmp_eq_u32 s20, 3")
    a("s_cselect_b32 s62, 0, s10")
    W2R = 108
    def w2reg(j, t):
        idx = 2 * j + t
        return 208 + 4 * idx if idx < 9 else 108 + 4 * (idx - 9)
    drip = []
    items = [(j, t) for j in range(11) for t in range(2)]
    s59off = {}
    late = [it for it in items if 2 * it[0] + it[1] < 9]
    early = [it for it in items if 2 * it[0] + it[1] >= 9]
    for (j, t) in early + late:
        srd = "s[60:63]" if j == 0 else "s[8:11]"
        r = w2reg(j, t)
        drip.append(f"s_add_u32 s57, s59, {4096*j}\nbuffer_load_dwordx4 v[{r}:{r+3}], v13, {srd}, s57 offen offset:{1024*t}")
    a("s_lshl_b32 s30, s26, 8")
    a("s_lshl_b32 s31, s21, 7")
    a("s_add_u32 s30, s30, s31")
    a(f"s_add_u32 s30, s30, {GBF}")
    a("v_lshl_add_u32 v27, v3, 4, s30")
    a("s_lshl_b32 s30, s26, 7")
    a("s_lshl_b32 s31, s21, 6")
    a("s_add_u32 s30, s30, s31")
    a("v_lshl_add_u32 v28, v3, 3, s30")
    gbl = [f"global_load_dwordx4 v[{244+4*t}:{247+4*t}], v27, s[14:15] offset:{64*t}" for t in range(2)]
    gbl += [f"global_load_dwordx2 v[{252+2*t}:{253+2*t}], v28, s[16:17] offset:{32*t}" for t in range(2)]
    a(f"s_waitcnt vmcnt(6) lgkmcnt(0)")
    stamp(a, 1)
    a("s_barrier")
    XF = [32, 48]
    GQ = [64, 72]
    def xreads(j):
        b = XF[j & 1]; g = GQ[j & 1]
        out = []
        for k in range(4):
            for hf in range(2):
                out.append(f"ds_read_b64_tr_b16 v[{b+4*k+2*hf}:{b+4*k+2*hf+1}], v{20+k} offset:{4096*j + 2048*hf}")
        out.append(f"ds_read_b128 v[{g}:{g+3}], v24 offset:{128*j}")
        out.append(f"ds_read_b128 v[{g+4}:{g+7}], v24 offset:{128*j+64}")
        return out
    for x in xreads(0): a(x)
    for x in wload(2): a(x)
    seq = [("W", j) for j in range(3) for _ in range(3)]
    def vmwait(tag):
        last = max(i for i, t in enumerate(seq) if t == tag)
        return len(seq) - 1 - last
    smalls = []
    for kq in range(4):
        for v in range(3):
            smalls.append(f"global_load_dword v{112+kq*3+v}, v8, s[14:15]")
            if not (kq == 3 and v == 2): smalls.append("v_add_u32 v8, 5504, v8")
    smalls.append("global_load_ushort v124, v9, s[12:13]")
    issued = 3
    for j in range(8):
        b = XF[j & 1]; g = GQ[j & 1]
        a(f"s_waitcnt vmcnt({vmwait(('W', j))}) lgkmcnt(0)")
        mf = []
        for i in range(3):
            r = WR + (j % DEEP) * 12 + 4 * i
            for k in range(4):
                d = ACC + (i * 4 + k) * 4
                mf.append(f"v_mfma_f32_16x16x32_bf16 v[{d}:{d+3}], v[{r}:{r+3}], v[{b+4*k}:{b+4*k+3}], v[{d}:{d+3}]")
        va = []
        if j + 1 < 8: va += xreads(j + 1)
        post = []
        if issued < 8:
            post = wload(issued); seq += [("W", issued)] * 3; issued += 1
        elif j == 6:
            post = smalls + gbl; seq += [("S", 0)] * 13 + [("G", 0)] * 4
        for q_ in range(4):
            va.append(f"v_lshlrev_b32 v{80+2*q_}, 16, v{b+q_}")
            va.append(f"v_and_b32 v{81+2*q_}, 0xffff0000, v{b+q_}")
        for q_ in range(8): va.append(f"v_mul_f32 v{80+q_}, v{80+q_}, v{80+q_}")
        for q_ in range(8):
            va.append(f"v_add_f32 v{96+(q_&3)}, v{96+(q_&3)}, v{80+q_}")
            va.append(f"v_fmac_f32 v{100+q_}, v{80+q_}, v{g+q_}")
        per = -(-len(va) // 12)
        vi = 0
        for m in mf:
            a(m)
            for _ in range(per):
                if vi < len(va): a(va[vi]); vi += 1
        for x in post: a(x)
    stamp(a, 2)
    def dr(n=1):
        for _ in range(n):
            if drip: a(drip.pop(0))
    a(f"s_mul_i32 s30, s24, 6144")
    a(f"s_add_u32 s30, s30, {W8_RED}")
    a("v_add_u32 v2, s30, v13")
    a("s_xor_b32 s31, s24, 4")
    a(f"s_mul_i32 s31, s31, 6144")
    a(f"s_add_u32 s31, s31, {W8_RED}")
    a("v_add_u32 v25, s31, v13")
    a("v_pk_add_f32 v[96:97], v[96:97], v[98:99]")
    a("v_add_f32 v96, v96, v97")
    a("v_pk_add_f32 v[100:101], v[100:101], v[102:103]")
    a("v_pk_add_f32 v[104:105], v[104:105], v[106:107]")
    a("v_pk_add_f32 v[100:101], v[100:101], v[104:105]")
    a("v_add_f32 v97, v100, v101")
    for i in range(3):
        for k in (2, 3):
            d = ACC + (i * 4 + k) * 4
            a(f"ds_write_b128 v2, v[{d}:{d+3}] offset:{(i*2 + k - 2)*1024}")
    a("v_mov_b32 v98, v96")
    a("v_mov_b32 v99, v97")
    a("s_nop 0")
    a("v_permlane16_swap_b32 v96, v98")
    a("v_permlane16_swap_b32 v97, v99")
    dr(1)
    a("v_add_f32 v96, v96, v98")
    a("v_add_f32 v97, v97, v99")
    a("v_mov_b32 v98, v96")
    a("v_mov_b32 v99, v97")
    a("s_nop 0")
    a("v_permlane32_swap_b32 v96, v98")
    a("v_permlane32_swap_b32 v97, v99")
    a("s_lshl_b32 s30, s48, 10")
    a("s_lshl_b32 s31, s21, 5")
    a("s_add_u32 s30, s30, s31")
    a(f"s_add_u32 s30, s30, {W8_STT}")
    a("v_add_f32 v96, v96, v98")
    a("v_add_f32 v97, v97, v99")
    a("v_lshl_add_u32 v2, v6, 6, s30")
    a("ds_write_b64 v2, v[96:97] offset:24")
    a("s_cmp_eq_u32 s20, 3")
    a("s_cbranch_scc0 K3_nolin")
    a("v_cmp_eq_u32 s[52:53], 0, v3")
    a("v_cmp_eq_u32 s[54:55], 1, v3")
    for k in range(4):
        a(f"s_lshl_b32 s30, s{48+k}, 10")
        a("s_lshl_b32 s31, s21, 5")
        a("s_add_u32 s30, s30, s31")
        a(f"s_add_u32 s30, s30, {W8_STT}")
        a(f"v_lshl_add_u32 v{64+k}, v6, 6, s30")
    a("s_mov_b64 exec, s[52:53]")
    for k in range(4):
        d = ACC + (8 + k) * 4
        a(f"ds_write_b128 v{64+k}, v[{d}:{d+3}]")
    a("s_mov_b64 exec, s[54:55]")
    for k in range(4):
        d = ACC + (8 + k) * 4
        a(f"ds_write_b64 v{64+k}, v[{d}:{d+1}] offset:16")
    a("s_mov_b64 exec, -1")
    a("K3_nolin:")
    a("s_cmp_eq_u32 s21, 0")
    a("s_cbranch_scc0 K3_nosv")
    a(f"s_waitcnt vmcnt({vmwait(('S', 0)) + 1})")
    for v in range(3):
        a(f"v_add_f32 v{112+v}, v{112+v}, v{115+v}")
        a(f"v_add_f32 v{118+v}, v{118+v}, v{121+v}")
        a(f"v_add_f32 v{112+v}, v{112+v}, v{118+v}")
    a("v_lshlrev_b32 v124, 16, v124")
    a("s_mul_i32 s30, s20, 768")
    a(f"s_add_u32 s30, s30, {W8_SVT}")
    a("v_lshlrev_b32 v2, 8, v3")
    a("v_lshl_add_u32 v2, v6, 2, v2")
    a("v_add_u32 v2, s30, v2")
    a("v_cmp_gt_u32 vcc, 48, v1")
    a("s_and_saveexec_b64 s[42:43], vcc")
    a("ds_write_b32 v2, v112")
    a("ds_write_b32 v2, v114 offset:64")
    a("ds_write_b32 v2, v113 offset:128")
    a("ds_write_b32 v2, v124 offset:192")
    a("s_mov_b64 exec, s[42:43]")
    a("K3_nosv:   ; LINT-RESET")
    a("s_waitcnt vmcnt(1) lgkmcnt(0)")
    a("s_barrier")
    for i in range(3):
        for k in range(2):
            r = 64 + (i * 2 + k) * 4
            a(f"ds_read_b128 v[{r}:{r+3}], v25 offset:{(i*2 + k)*1024}")
    a("v_lshlrev_b32 v2, 6, v1")
    a(f"v_add_u32 v2, {W8_STT}, v2")
    a("ds_read_b128 v[32:35], v2")
    a("ds_read_b128 v[36:39], v2 offset:16")
    a("ds_read_b128 v[40:43], v2 offset:32")
    a("ds_read_b128 v[44:47], v2 offset:48")
    dr(2)
    a("s_waitcnt lgkmcnt(4)")
    for i in range(3):
        for k in range(2):
            d = ACC + (i * 4 + k) * 4; r = 64 + (i * 2 + k) * 4
            a(f"v_pk_add_f32 v[{d}:{d+1}], v[{d}:{d+1}], v[{r}:{r+1}]")
            a(f"v_pk_add_f32 v[{d+2}:{d+3}], v[{d+2}:{d+3}], v[{r+2}:{r+3}]")
    a("s_waitcnt lgkmcnt(0)")
    for r in range(0, 8, 2): a(f"v_pk_add_f32 v[{32+r}:{33+r}], v[{32+r}:{33+r}], v[{40+r}:{41+r}]")
    dr(1)
    a("v_add_f32 v34, v34, v35")
    a("v_add_f32 v36, v36, v37")
    a("v_mul_f32 v32, 0x3b000000, v32")
    a("v_mul_f32 v38, 0x3b000000, v38")
    a("v_fma_f32 v38, -v32, v32, v38")
    a("v_max_f32 v38, 0, v38")
    a("v_cvt_pk_bf16_f32 v40, v32, v38")
    a("v_lshlrev_b32 v32, 16, v40")
    a("v_and_b32 v38, 0xffff0000, v40")
    a("v_add_f32 v38, 0x3727c5ac, v38")
    rbf(a, 38, 38)
    a("v_sqrt_f32 v38, v38")
    a("v_fma_f32 v33, -v32, s36, v33")
    rbf(a, 38, 38)
    a("v_rcp_f32 v38, v38")
    a("v_mul_f32 v40, v32, v32")
    a("v_add_f32 v41, v32, v32")
    a("v_fma_f32 v39, -v41, v34, v39")
    a("v_fma_f32 v39, v40, s37, v39")
    a("v_fma_f32 v36, -v32, s38, v36")
    a("v_fma_f32 v33, v33, v38, s39")
    a("v_add_f32 v36, v36, v36")
    a("v_fma_f32 v39, v39, v38, v36")
    a("v_mul_f32 v33, 0x3b000000, v33")
    dr(1)
    a("v_fma_f32 v39, v39, v38, s40")
    a("v_mul_f32 v39, 0x3b000000, v39")
    a("v_fma_f32 v39, -v33, v33, v39")
    a("v_max_f32 v39, 0, v39")
    a("v_cvt_pk_bf16_f32 v40, v33, v39")
    a("v_lshlrev_b32 v33, 16, v40")
    a("v_and_b32 v39, 0xffff0000, v40")
    a("v_add_f32 v39, 0x3727c5ac, v39")
    rbf(a, 39, 39)
    a("v_sqrt_f32 v39, v39")
    a("s_nop 0")
    rbf(a, 39, 39)
    a("v_rcp_f32 v47, v39")
    a("s_lshl_b32 s30, s24, 10")
    a(f"s_add_u32 s30, s30, {W8_COF}")
    a("v_mul_f32 v44, v47, v38")
    a("v_mul_f32 v46, -v47, v33")
    a("v_mul_f32 v45, -v44, v32")
    a("v_lshl_add_u32 v2, v1, 4, s30")
    a("ds_write_b128 v2, v[44:47]")
    a("s_waitcnt lgkmcnt(0)")
    for k in range(2):
        a(f"s_lshl_b32 s31, s{48+k}, 8")
        a("s_add_u32 s31, s31, s30")
        a(f"v_lshl_add_u32 v2, v6, 4, s31")
        a(f"ds_read_b128 v[{48+4*k}:{51+4*k}], v2")
    a("s_mul_i32 s30, s20, 768")
    a(f"s_add_u32 s30, s30, {W8_SVT}")
    a("v_lshl_add_u32 v25, v3, 4, s30")
    a("s_mov_b32 s54, 0xbdd2d3e2")
    a("s_mov_b32 s55, 0xc0135761")
    dr(2)
    stamp(a, 3)
    for i in range(3):
        a(f"s_cmp_eq_u32 s{32+i}, 86")
        a(f"s_cbranch_scc1 K3_skip{i}")
        for st in range(4):
            a(f"ds_read_b128 v[{64+4*st}:{67+4*st}], v25 offset:{256*i + 64*st}")
        a(f"s_add_u32 s30, s29, {i}")
        a("s_lshr_b32 s31, s30, 1")
        a("s_lshl_b32 s31, s31, 12")
        a("s_and_b32 s30, s30, 1")
        a("s_lshl_b32 s30, s30, 3")
        a("s_add_u32 s30, s30, s31")
        a(f"s_add_u32 s30, s30, {W8_STG}")
        a("s_waitcnt lgkmcnt(0)")
        A_ = ACC + i * 16
        for (src, co, sel) in ((64, 0, "op_sel:[0,1,0] op_sel_hi:[1,1,1]"), (68, 2, "op_sel_hi:[1,0,1]"), (72, 2, "op_sel:[0,1,0] op_sel_hi:[1,1,1]")):
            for k in range(2):
                c = 48 + 4 * k
                for p in range(2):
                    t = 80 + 4 * k + 2 * p
                    s2 = f"v[{76+2*p}:{77+2*p}]" if src == 64 else f"v[{t}:{t+1}]"
                    a(f"v_pk_fma_f32 v[{t}:{t+1}], v[{src+2*p}:{src+2*p+1}], v[{c+co}:{c+co+1}], {s2} {sel}")
            if i == 0: dr(1)
        for k in range(2):
            c = 48 + 4 * k
            for p in range(2):
                x = A_ + 4 * k + 2 * p; t = 80 + 4 * k + 2 * p
                a(f"v_pk_fma_f32 v[{x}:{x+1}], v[{x}:{x+1}], v[{c}:{c+1}], v[{t}:{t+1}] op_sel_hi:[1,0,1]")
        for j in range(4):
            x = A_ + 2 * j; t = 80 + 2 * j
            a(f"v_pk_mul_f32 v[{t}:{t+1}], v[{x}:{x+1}], v[{x}:{x+1}]")
        for j in range(4):
            t = 80 + 2 * j
            a(f"v_pk_fma_f32 v[{t}:{t+1}], v[{t}:{t+1}], s[54:55], s[54:55] op_sel:[0,0,1] op_sel_hi:[1,0,1]")
        for j in range(4):
            x = A_ + 2 * j; t = 80 + 2 * j
            a(f"v_pk_mul_f32 v[{t}:{t+1}], v[{t}:{t+1}], v[{x}:{x+1}]")
        if i == 0: dr(1)
        for j in range(8): a(f"v_exp_f32 v{80+j}, v{80+j}")
        for j in range(4):
            t = 80 + 2 * j
            a(f"v_pk_add_f32 v[{t}:{t+1}], v[{t}:{t+1}], 1.0 op_sel_hi:[1,0]")
        for j in range(8): a(f"v_rcp_f32 v{80+j}, v{80+j}")
        if i == 0: dr(1)
        for j in range(4):
            x = A_ + 2 * j; t = 80 + 2 * j
            a(f"v_pk_mul_f32 v[{x}:{x+1}], v[{x}:{x+1}], v[{t}:{t+1}]")
        for k in range(2):
            a(f"v_cvt_pk_bf16_f32 v{88+2*k}, v{A_+4*k}, v{A_+4*k+1}")
            a(f"v_cvt_pk_bf16_f32 v{89+2*k}, v{A_+4*k+2}, v{A_+4*k+3}")
        if i == 1:
            a("s_cmp_eq_u32 s29, 9")
            a("s_cbranch_scc0 K3_paired1")
            a("s_lshr_b32 s31, s26, 1")
            a("s_add_u32 s31, s31, 40")
            a("s_mul_i32 s43, s25, 43")
            a("s_add_u32 s31, s31, s43")
            a("s_lshl_b32 s31, s31, 12")
            a("s_and_b32 s43, s26, 1")
            a("s_lshl_b32 s43, s43, 3")
            a("s_add_u32 s31, s31, s43")
            a(f"s_add_u32 s31, s31, {HF}")
            for k in range(2):
                a(f"s_lshl_b32 s43, s{48+k}, 10")
                a("s_add_u32 s43, s43, s31")
                a(f"buffer_store_dwordx2 v[{88+2*k}:{89+2*k}], v13, s[8:11], s43 offen sc1")
            a("s_branch K3_skip1")
            a("K3_paired1:")
        for k in range(2):
            a(f"s_lshl_b32 s31, s{48+k}, 10")
            a("s_add_u32 s31, s31, s30")
            a(f"v_add_u32 v2, s31, v13")
            a(f"ds_write_b64 v2, v[{88+2*k}:{89+2*k}]")
        a(f"K3_skip{i}:   ; LINT-RESET")
        dr(2)
    dr(99)
    for t in range(2):
        a(f"ds_read_b64_tr_b16 v[{16+2*t}:{17+2*t}], v26 offset:{2048*t}")
    a("s_waitcnt lgkmcnt(0)")
    a("s_barrier")
    stamp(a, 4)
    a("s_lshl_b32 s30, s24, 10")
    a("v_add_u32 v2, s30, v13")
    a(f"v_add_u32 v2, {W8_STG}, v2")
    a("ds_read_b128 v[32:35], v2")
    a("ds_read_b128 v[36:39], v2 offset:8192")
    a("s_mul_i32 s31, s25, 43")
    a("s_mul_i32 s43, s26, 5")
    a("s_add_u32 s31, s31, s43")
    a("s_lshl_b32 s31, s31, 12")
    a("s_add_u32 s31, s31, s30")
    a(f"s_add_u32 s31, s31, {HF}")
    a("s_waitcnt lgkmcnt(1)")
    a("buffer_store_dwordx4 v[32:35], v13, s[8:11], s31 offen sc1")
    a("s_add_u32 s31, s31, 8192")
    a("s_waitcnt lgkmcnt(0)")
    a("buffer_store_dwordx4 v[36:39], v13, s[8:11], s31 offen sc1")
    a("s_cmp_lt_u32 s24, 4")
    a("s_cbranch_scc0 K3_no3rd")
    a("ds_read_b128 v[40:43], v2 offset:16384")
    a("s_add_u32 s31, s31, 8192")
    a("s_waitcnt lgkmcnt(0)")
    a("buffer_store_dwordx4 v[40:43], v13, s[8:11], s31 offen sc1")
    a("K3_no3rd:   ; LINT-RESET")
    ACB = 176
    for r in range(ACB, ACB + 32): a(f"v_mov_b32 v{r}, 0")
    a("s_waitcnt vmcnt(0)")
    stamp(a, 5)
    a("s_barrier")
    a("s_cmp_lg_u32 s24, 0")
    a("s_cbranch_scc1 K3_wait")
    a("s_lshl_b32 s30, s25, 7")
    a(f"s_add_u32 s30, s30, {FLAGS}")
    a("v_mov_b32 v2, s30")
    a("v_mov_b32 v4, 1")
    a("s_mov_b64 exec, 1")
    a("global_atomic_add v4, v2, v4, s[14:15] sc0 sc1")
    a("s_waitcnt vmcnt(0)")
    a("v_readfirstlane_b32 s30, v4")
    a("s_cmp_eq_u32 s30, 7")
    a("s_cbranch_scc1 K3_pollx")
    a("s_mov_b32 s31, 0x100000")
    a("K3_poll:")
    a("global_load_dword v5, v2, s[14:15] sc1")
    a("s_waitcnt vmcnt(0)")
    a("v_readfirstlane_b32 s30, v5")
    a("s_sub_u32 s31, s31, 1")
    a("s_cmp_eq_u32 s31, 0")
    a("s_cbranch_scc1 K3_pollx")
    a("s_cmp_ge_u32 s30, 8")
    a("s_cbranch_scc0 K3_poll")
    a("K3_pollx:")
    a("s_mov_b64 exec, -1")
    a("K3_wait:   ; LINT-RESET")
    a("s_barrier")
    stamp(a, 6)
    SLOT = 16384; NS = 6
    a("s_mul_i32 s57, s25, 43")
    a("s_add_u32 s57, s57, s58")
    a("s_lshl_b32 s57, s57, 12")
    a("s_lshl_b32 s30, s21, 11")
    a("s_add_u32 s57, s57, s30")
    a(f"s_add_u32 s57, s57, {HF}")
    a("s_lshl_b32 s56, s20, 12")
    a("s_add_u32 s56, s56, s30")
    a("s_lshl_b32 s30, s20, 12")
    a("v_add_u32 v4, s30, v13")
    a(f"v_add_u32 v8, {4*SLOT}, v4")
    def hdma(j):
        return [f"s_add_u32 m0, s56, {(j % NS) * SLOT}\ns_add_u32 s43, s57, {4096 * j}\nbuffer_load_dwordx4 v13, s[8:11], s43 offen offset:{1024*t} lds" for t in range(2)]
    def hread(j):
        sl = j % NS
        base, off = ("v4", sl * SLOT) if sl < 4 else ("v8", (sl - 4) * SLOT)
        return [f"ds_read_b128 v[{HB[j & 1] + 4*lt}:{HB[j & 1] + 4*lt + 3}], {base} offset:{off + lt * 1024}" for lt in range(4)]
    HB = [32, 48]
    AHEAD = 5
    hq = []
    for j in range(AHEAD):
        for x in hdma(j): a(x); hq.append(j)
    a(f"s_waitcnt vmcnt({sum(1 for t in hq if t > 0)})")
    a("s_barrier")
    for x in hread(0): a(x)
    for j in range(11):
        if j + 1 <= 10:
            a(f"s_waitcnt vmcnt({sum(1 for t in hq if t > j + 1)}) lgkmcnt(0)")
            a("s_barrier")
            rd = hread(j + 1)
        else:
            a("s_waitcnt lgkmcnt(0)")
            rd = []
        nxt = hdma(j + AHEAD) if j + AHEAD <= 10 else []
        hq += [j + AHEAD] * len(nxt)
        extra = rd + nxt
        ei = 0
        for t in range(2):
            for lt in range(4):
                d = ACB + (t * 4 + lt) * 4
                ar = w2reg(j, t); br = HB[j & 1] + 4 * lt
                a(f"v_mfma_f32_16x16x32_bf16 v[{d}:{d+3}], v[{ar}:{ar+3}], v[{br}:{br+3}], v[{d}:{d+3}]")
                if ei < len(extra): a(extra[ei]); ei += 1
    stamp(a, 7)
    a("v_mul_u32_u24 v5, 272, v6")
    a("v_lshl_add_u32 v5, v3, 4, v5")
    a(f"s_mul_i32 s30, s20, {P_W}")
    a("s_lshl_b32 s31, s21, 7")
    a("s_add_u32 s30, s30, s31")
    a(f"s_add_u32 s30, s30, {W8_RED}")
    a("v_add_u32 v7, s30, v5")
    a("s_barrier")
    a("s_nop 4")
    for t in range(2):
        for lt in range(4):
            d = ACB + (t * 4 + lt) * 4
            a(f"ds_write_b128 v7, v[{d}:{d+3}] offset:{lt*16*272 + t*64}")
    a(f"s_mul_i32 s30, s20, {16*272}")
    a("s_lshl_b32 s31, s21, 7")
    a("s_add_u32 s30, s30, s31")
    a(f"s_add_u32 s30, s30, {W8_RED}")
    a("v_add_u32 v7, s30, v5")
    a("s_waitcnt lgkmcnt(0)")
    a("s_barrier")
    stamp(a, 8)
    for t in range(2):
        for w in range(4):
            r = 32 + (t * 4 + w) * 4
            a(f"ds_read_b128 v[{r}:{r+3}], v7 offset:{w*P_W + t*64}")
    a.srd(40, 18, 2048 * 512 * 2)
    a("s_lshl_b32 s30, s25, 16")
    a("s_lshl_b32 s31, s20, 14")
    a("s_add_u32 s30, s30, s31")
    a("s_lshl_b32 s31, s26, 7")
    a("s_add_u32 s30, s30, s31")
    a("s_lshl_b32 s31, s21, 6")
    a("s_add_u32 s30, s30, s31")
    a("v_lshlrev_b32 v9, 10, v6")
    a("v_lshl_add_u32 v9, v3, 3, v9")
    a("v_add_u32 v9, s30, v9")
    for t in range(2):
        a(f"s_waitcnt lgkmcnt({4*(1-t)})")
        r = 32 + t * 16
        for p in range(2):
            a(f"v_pk_add_f32 v[{r+2*p}:{r+2*p+1}], v[{r+2*p}:{r+2*p+1}], v[{r+4+2*p}:{r+5+2*p}]")
            a(f"v_pk_add_f32 v[{r+8+2*p}:{r+9+2*p}], v[{r+8+2*p}:{r+9+2*p}], v[{r+12+2*p}:{r+13+2*p}]")
        for p in range(2):
            a(f"v_pk_add_f32 v[{r+2*p}:{r+2*p+1}], v[{r+2*p}:{r+2*p+1}], v[{r+8+2*p}:{r+9+2*p}]")
        for q_ in range(2):
            a(f"v_lshlrev_b32 v{96+2*q_}, 16, v{252+2*t+q_}")
            a(f"v_and_b32 v{97+2*q_}, 0xffff0000, v{252+2*t+q_}")
            a(f"v_lshlrev_b32 v{100+2*q_}, 16, v{16+2*t+q_}")
            a(f"v_and_b32 v{101+2*q_}, 0xffff0000, v{16+2*t+q_}")
        for p in range(2):
            a(f"v_pk_add_f32 v[{r+2*p}:{r+2*p+1}], v[{r+2*p}:{r+2*p+1}], v[{96+2*p}:{97+2*p}]")
        for p in range(2):
            a(f"v_pk_fma_f32 v[{r+2*p}:{r+2*p+1}], v[{r+2*p}:{r+2*p+1}], v[{244+4*t+2*p}:{245+4*t+2*p}], v[{100+2*p}:{101+2*p}]")
        a(f"v_cvt_pk_bf16_f32 v{24+2*t}, v{r}, v{r+1}")
        a(f"v_cvt_pk_bf16_f32 v{25+2*t}, v{r+2}, v{r+3}")
        a(f"buffer_store_dwordx2 v[{24+2*t}:{25+2*t}], v9, s[40:43], 0 offen offset:{32*t}")
    a("K3_END:   ; LINT-RESET")
    stamp_store(a, KID3, 14, 24)
    a("K3_EXIT:")
    a.end_kernel(name, 256, 100, accum=256)

def triv(a, i):
    name = f"t{i}_kernel"
    a.begin_kernel(name, 256, 256, 0)
    a.end_kernel(name, 8, 16)
def build(kernels):
    global LASTLABEL, KID3, FUSED
    FUSED = kernels[0].__name__ == "k12"
    KID3 = len(kernels) - 1
    LASTLABEL = {"k1": "K1_EXIT", "k2": "K2_EXIT", "k12": "K2_EXIT", "k3": "K3_EXIT", "k3w": "K3_EXIT"}[kernels[-1].__name__]
    a = Asm()
    for i in range(int(OPT.get("pre_triv", "0"))): triv(a, 10 + i)
    for k in kernels: k(a)
    for i in range(int(OPT.get("extra", "0"))): triv(a, i)
    return a.text().replace("None\n", "")

ALL = {}
if __name__ == "__main__":
    out = sys.argv[1] if len(sys.argv) > 1 else "cur.s"
    names = sys.argv[2].split(",") if len(sys.argv) > 2 else ["k1"]
    if len(sys.argv) > 3 and sys.argv[3] == "prof": PROF = True
    open(out, "w").write(build([globals()[n] for n in names]))
```

```python
import sys
sys.path.insert(0, "dev")
from asmgen import *

import os
OPT = dict(kv.split("=") for kv in os.environ.get("GENOPT", "").split(",") if kv)
WSOFF = int(OPT.get("wsoff", "0"), 0)
SC1 = " sc1" if OPT.get("sc1", "1") == "1" else ""
HLD = " sc1" if OPT.get("hsc1", "0") == "1" else ""
NT1 = " nt" if OPT.get("nt1", "1") == "1" else ""
def wsfix(a, r):
    if WSOFF:
        a(f"s_add_u32 s{r}, s{r}, {WSOFF}")
        a(f"s_addc_u32 s{r+1}, s{r+1}, 0")
XT    = 0x0000000
X2T   = 0x0200000
KREV  = 0x0400000
KW    = 4160
STAT1 = 0x0620000
MODF  = 0x0630000
SCAL  = 0x0634000
SVP   = 0x0640000
MODP  = 0x0660000
G2F   = 0x0634400
GBF   = 0x0634C00
W1F   = 0x0700000
W2F   = 0x0900000
HF    = 0x0B00000
WS_USED = 0x1100000

STAMP = 0x1100000
PROF = False
def stamp(a, i):
    if PROF:
        if OPT.get("cyc", "0") == "1": a(f"s_memtime s[{70+2*i}:{71+2*i}]")
        else: a(f"s_memrealtime s[{70+2*i}:{71+2*i}]")
        a("s_waitcnt lgkmcnt(0)")
def stamp_store(a, kid, wsreg, swave):
    if not PROF: return
    a("s_mov_b64 exec, -1")
    tm = "s_memtime" if OPT.get("cyc", "0") == "1" else "s_memrealtime"
    a(f"{tm} s[90:91]")
    a("s_waitcnt lgkmcnt(0) vmcnt(0)")
    a(f"{tm} s[92:93]")
    a("s_waitcnt lgkmcnt(0)")
    a(f"s_lshl_b32 s94, s2, 3")
    a(f"s_add_u32 s94, s94, s{swave}")
    a(f"s_lshl_b32 s94, s94, 6")
    a(f"s_add_u32 s94, s94, {STAMP + kid * 0x80000}")
    a("v_mov_b32 v0, s94")
    for i in range(12):
        a(f"v_mov_b32 v{2+i}, s{70+2*i}")
    a("s_mov_b64 exec, 1")
    a(f"global_store_dwordx4 v0, v[2:5], s[{wsreg}:{wsreg+1}]")
    a(f"global_store_dwordx4 v0, v[6:9], s[{wsreg}:{wsreg+1}] offset:16")
    a(f"global_store_dwordx4 v0, v[10:13], s[{wsreg}:{wsreg+1}] offset:32")

LOG2E = "0x3fb8aa3b"
INV2PI = "0.15915494"

def wave_id(a, s, vt):
    a(f"v_lshrrev_b32 v{vt}, 6, v0")
    a("s_nop 0")
    a(f"v_readfirstlane_b32 s{s}, v{vt}")

def rbf(a, vd, vs):
    a(f"v_cvt_pk_bf16_f32 v{vd}, v{vs}, v{vs}")
    a(f"v_and_b32 v{vd}, 0xffff0000, v{vd}")

def csq(a, dst, src, tmp):
    return [
        f"v_pk_mul_f32 v[{tmp}:{tmp+1}], v[{src}:{src+1}], v[{src}:{src+1}] op_sel:[0,0] op_sel_hi:[1,0]",
        f"v_pk_fma_f32 v[{dst}:{dst+1}], v[{src}:{src+1}], v[{src}:{src+1}], v[{tmp}:{tmp+1}] op_sel:[1,1,0] op_sel_hi:[0,1,1] neg_lo:[1,0,0]",
    ]

def cmulconj(a, dst, p, c, tmp):
    return [
        f"v_pk_mul_f32 v[{tmp}:{tmp+1}], v[{p}:{p+1}], v[{c}:{c+1}] op_sel:[0,0] op_sel_hi:[1,0] neg_hi:[0,1]",
        f"v_pk_fma_f32 v[{dst}:{dst+1}], v[{p}:{p+1}], v[{c}:{c+1}], v[{tmp}:{tmp+1}] op_sel:[1,1,0] op_sel_hi:[0,1,1] neg_lo:[1,0,0] neg_hi:[1,0,0]",
    ]

def code_prefetch(a, start, end, n, tag, vtmp, dst0):
    a(f"s_getpc_b64 s[66:67]")
    a(f"CPF_{tag}:")
    a(f"s_sub_u32 s66, s66, CPF_{tag}-{start}")
    a(f"s_subb_u32 s67, s67, 0")
    a(f"v_lshlrev_b32 v{vtmp}, 7, v1")
    a("s_mov_b64 s[68:69], exec")
    for i in range(n):
        a(f"v_cmp_gt_u32 vcc, {end}-{start}, v{vtmp}")
        a("s_and_b64 exec, s[68:69], vcc")
        a(f"s_cbranch_execz CPF_{tag}_done")
        a(f"global_load_dword v{dst0+i}, v{vtmp}, s[66:67]")
        a(f"v_add_u32 v{vtmp}, 8192, v{vtmp}")
    a(f"CPF_{tag}_done:")
    a("s_mov_b64 exec, s[68:69]")

def k1(a):
    name = "k1_kernel"
    a.begin_kernel(name, 512, 256, 23552)
    a("s_cmp_ge_u32 s2, 512")
    a("s_cbranch_scc1 K1_EXIT")
    stamp(a, 0)
    a("s_load_dwordx8 s[4:11], s[0:1], 8")
    a("s_load_dwordx2 s[12:13], s[0:1], 40")
    a("s_load_dwordx2 s[14:15], s[0:1], 128")
    a("s_load_dwordx2 s[16:17], s[0:1], 0")
    a("s_load_dwordx4 s[20:23], s[0:1], 96")
    wave_id(a, 24, 1)
    a("v_and_b32 v1, 63, v0")
    a("s_cmp_ge_u32 s2, 256")
    a("s_cbranch_scc1 K1_TSM")
    a("s_setprio 3")
    a("s_lshr_b32 s25, s24, 1")
    a("s_and_b32 s26, s24, 1")
    a("s_lshl_b32 s27, s2, 1")
    a("s_add_u32 s27, s27, s25")
    a("s_lshl_b32 s28, s27, 8")
    a("s_lshl_b32 s29, s26, 7")
    a("s_add_u32 s28, s28, s29")
    a("v_lshl_add_u32 v2, v1, 1, s28")
    a("s_lshl_b32 s30, s2, 2")
    a("s_waitcnt lgkmcnt(0)")
    wsfix(a, 14)
    a("global_load_ushort v4, v2, s[4:5] nt")
    a("global_load_ushort v5, v2, s[6:7] nt")
    a("global_load_ushort v6, v2, s[8:9] nt")
    a("global_load_ushort v7, v2, s[10:11] nt")
    a("s_load_dword s29, s[12:13], s30")
    a("v_and_b32 v16, 15, v1")
    a("v_cmp_eq_u32 s[32:33], 15, v16")
    a("v_lshrrev_b32 v18, 4, v1")
    a("v_add_u32 v19, 1, v16")
    a("v_cvt_f32_u32 v19, v19")
    a("s_lshl_b32 s31, s24, 10")
    a("v_lshl_add_u32 v17, v18, 6, s31")
    a("v_lshl_add_u32 v20, v1, 4, s31")
    for r in range(112, 128):
        a(f"v_mov_b32 v{r}, 0")
    T16 = 4096 + 16384
    a("s_mul_i32 s39, s25, 1344")
    a(f"s_add_u32 s39, s39, {T16 + 8}")
    a("v_subrev_u32 v21, 7, v16")
    a("v_cmp_gt_u32 s[34:35], 8, v21")
    a("v_add_u32 v21, 1, v16")
    a("v_and_b32 v21, 15, v21")
    a("v_lshlrev_b32 v24, 5, v21")
    a("v_lshl_add_u32 v24, v18, 3, v24")
    a("s_lshl_b32 s40, s26, 9")
    a("s_add_u32 s40, s40, s39")
    a("v_add_u32 v24, s40, v24")
    a("s_cmp_eq_u32 s26, 0")
    a("s_cselect_b64 s[36:37], -1, s[34:35]")
    a("s_lshl_b32 s40, s24, 12")
    a("s_add_u32 s40, s40, 4096")
    a("v_lshl_add_u32 v22, v1, 4, s40")
    a("s_lshl_b32 s40, s25, 13")
    a("s_lshl_b32 s41, s26, 11")
    a("s_add_u32 s40, s40, s41")
    a("s_add_u32 s40, s40, 4096")
    a("v_lshl_add_u32 v23, v1, 4, s40")
    a("s_lshl_b32 s40, s26, 6")
    a("v_add_u32 v26, s40, v1")
    a("v_lshlrev_b32 v27, 3, v26")
    a("v_sub_u32 v27, 2047, v27")
    a("v_cvt_f32_u32 v28, v27")
    a("s_sub_u32 s41, s39, 34050")
    a("s_sub_u32 s42, s39, 2")
    GA = 140
    for rnd in range(2):
        if rnd == 1:
            a("v_add_f32 v28, 0xc4800000, v28")
            a("v_subrev_u32 v27, 1024, v27")
        for t in range(8):
            if t == 0: a(f"v_mov_b32 v48, v28")
            else: a(f"v_add_f32 v{48+t}, {-float(t)}, v28")
        for p in range(4):
            a(f"v_cvt_pk_bf16_f32 v{56+p}, v{48+2*p}, v{49+2*p}")
        for p in range(4):
            a(f"v_and_b32 v{48+2*p}, 0xffff, v{56+p}")
            a(f"v_lshrrev_b32 v{49+2*p}, 16, v{56+p}")
        o = GA + 8 * rnd
        for t in range(8):
            a(f"v_lshl_add_u32 v{o+t}, v{48+t}, 1, s41")
        if rnd == 1:
            a("v_cmp_le_u32 vcc, 112, v26")
            for t in range(8):
                a(f"v_subrev_u32 v{56+(t&3)}, {t}, v27")
                a(f"v_lshl_add_u32 v{56+(t&3)}, v{56+(t&3)}, 1, s42")
                a(f"v_cndmask_b32 v{o+t}, v{o+t}, v{56+(t&3)}, vcc")
    a(f"s_mul_i32 s40, s27, {KW}")
    a(f"s_add_u32 s40, s40, {KREV}")
    a("v_lshl_add_u32 v29, v26, 4, s40")
    a("v_add_u32 v30, 2048, v29")
    a("v_add_u32 v31, 4096, v29")
    a("s_waitcnt lgkmcnt(0)")
    a("s_lshl_b32 s43, s25, 4")
    a("s_lshr_b32 s29, s29, s43")
    a("s_lshl_b32 s29, s29, 16")
    a(f"v_mov_b32 v8, {LOG2E}")
    a("v_mul_f32 v9, s29, v8")
    a("v_exp_f32 v9, v9")
    a("s_nop 0")
    rbf(a, 9, 9)
    a("s_waitcnt vmcnt(0)")
    a("v_lshlrev_b32 v4, 16, v4")
    a("v_lshlrev_b32 v5, 16, v5")
    a("v_lshlrev_b32 v6, 16, v6")
    a("v_lshlrev_b32 v7, 16, v7")
    a("v_mul_f32 v4, v4, v8")
    a("v_exp_f32 v4, v4")
    a("v_mul_f32 v13, v5, v9")
    a("v_mul_f32 v14, v6, v9")
    rbf(a, 4, 4)
    a("v_mul_f32 v15, v7, v9")
    a("v_mul_f32 v12, v4, v9")
    a(f"v_mul_f32 v13, {INV2PI}, v13")
    a("v_add_f32 v14, v14, v14")
    a("v_add_f32 v15, v15, v15")
    a("v_mul_f32 v12, v12, v8")
    a("v_mov_b32 v10, v14")
    a("v_sub_f32 v12, 0, v12")
    a("ds_write_b128 v20, v[12:15]")
    for ctl in ("row_shr:1", "row_shr:2", "row_shr:4", "row_shr:8", "row_bcast:15 row_mask:0xa", "row_bcast:31 row_mask:0xc"):
        a("s_nop 1")
        a(f"v_add_f32_dpp v10, v10, v10 {ctl}")
    a("s_waitcnt lgkmcnt(0)")
    stamp(a, 1)
    R = [[32 + 4 * u for u in range(4)], [48 + 4 * u for u in range(4)]]
    PA = [64 + 2 * u for u in range(4)]
    PB = [72 + 2 * u for u in range(4)]
    TT = [80 + 2 * u for u in range(4)]
    QF = [88 + 4 * e for e in range(4)]
    GF = [104, 108]
    DD = [112 + 4 * e for e in range(4)]
    CPK = [128 + u for u in range(4)]
    MAG = [132 + 2 * u for u in range(4)]
    for u in range(4):
        a(f"ds_read_b128 v[{R[0][u]}:{R[0][u]+3}], v17 offset:{u*16}")
    for ks in range(4):
        Rc = R[ks & 1]
        if ks + 1 < 4:
            for u in range(4):
                a(f"ds_read_b128 v[{R[(ks+1)&1][u]}:{R[(ks+1)&1][u]+3}], v17 offset:{(ks+1)*256+u*16}")
            a("s_waitcnt lgkmcnt(4)")
        else:
            a("s_waitcnt lgkmcnt(0)")
        for u in range(4): a(f"v_mul_f32 v{TT[u]}, v{Rc[u]}, v19")
        for u in range(4): a(f"v_mul_f32 v{TT[u]+1}, v{Rc[u]+1}, v19")
        for u in range(4): a(f"v_exp_f32 v{MAG[u]}, v{TT[u]}")
        for u in range(4): a(f"v_fract_f32 v{TT[u]+1}, v{TT[u]+1}")
        for u in range(4): a(f"v_cvt_pk_bf16_f32 v{CPK[u]}, v{Rc[u]+2}, -v{Rc[u]+3}")
        for u in range(4): a(f"v_cos_f32 v{PB[u]}, v{TT[u]+1}")
        for u in range(4): a(f"v_sin_f32 v{PB[u]+1}, v{TT[u]+1}")
        a("s_nop 0")
        for u in range(4):
            a(f"v_pk_mul_f32 v[{PA[u]}:{PA[u]+1}], v[{PB[u]}:{PB[u]+1}], v[{MAG[u]}:{MAG[u]+1}] op_sel:[0,0] op_sel_hi:[1,0]")
        cur, oth = PA, PB
        for e in range(4):
            for u in range(4): a(f"v_cvt_pk_bf16_f32 v{QF[e]+u}, v{cur[u]}, v{cur[u]+1}")
            sq = [csq(a, oth[u], cur[u], TT[u]) for u in range(4)]
            for u in range(4): a(sq[u][0])
            for u in range(4): a(sq[u][1])
            cur, oth = oth, cur
        for e in range(4):
            g = GF[e & 1]
            cm = [cmulconj(a, oth[u], cur[u], Rc[u] + 2, TT[u]) for u in range(4)]
            for u in range(4): a(cm[u][0])
            for u in range(4): a(cm[u][1])
            for u in range(4): a(f"v_cvt_pk_bf16_f32 v{g+u}, v{oth[u]}, v{oth[u]+1}")
            if e == 0:
                for u in range(4): a(f"v_cndmask_b32 v{g+u}, v{g+u}, v{CPK[u]}, s[32:33]")
            if e < 3:
                sq = [csq(a, oth[u], cur[u], TT[u]) for u in range(4)]
                for u in range(4): a(sq[u][0])
                a(f"v_mfma_f32_16x16x32_bf16 v[{DD[e]}:{DD[e]+3}], v[{QF[e]}:{QF[e]+3}], v[{g}:{g+3}], v[{DD[e]}:{DD[e]+3}]")
                for u in range(4): a(sq[u][1])
                cur, oth = oth, cur
            else:
                a("s_nop 1")
                a(f"v_mfma_f32_16x16x32_bf16 v[{DD[e]}:{DD[e]+3}], v[{QF[e]}:{QF[e]+3}], v[{g}:{g+3}], v[{DD[e]}:{DD[e]+3}]")
    stamp(a, 2)
    a("v_readlane_b32 s44, v10, 63")
    a(f"s_lshl_b32 s45, s24, 2")
    a(f"s_add_u32 s45, s45, {T16 + 2*1344 + 16}")
    a("v_mov_b32 v11, s45")
    a("v_mov_b32 v10, s44")
    a("s_nop 1")
    for e in range(4):
        a(f"ds_write_b128 v22, v[{DD[e]}:{DD[e]+3}] offset:{e*1024}")
    a("ds_write_b32 v11, v10")
    a("s_waitcnt lgkmcnt(0)")
    a("s_barrier")
    a("ds_read_b128 v[32:35], v23")
    a("ds_read_b128 v[36:39], v23 offset:4096")
    a("ds_read_b128 v[40:43], v23 offset:1024")
    a("ds_read_b128 v[44:47], v23 offset:5120")
    a(f"s_lshl_b32 s45, s25, 3")
    a(f"s_add_u32 s45, s45, {T16 + 2*1344 + 16}")
    a("v_mov_b32 v11, s45")
    a("ds_read_b64 v[8:9], v11")
    a("s_waitcnt lgkmcnt(0)")
    for r in range(4): a(f"v_add_f32 v{32+r}, v{32+r}, v{36+r}")
    for r in range(4): a(f"v_add_f32 v{40+r}, v{40+r}, v{44+r}")
    a("v_add_f32 v8, v8, v9")
    a("v_cvt_pk_bf16_f32 v32, v32, v33")
    a("v_cvt_pk_bf16_f32 v33, v34, v35")
    a("v_cvt_pk_bf16_f32 v40, v40, v41")
    a("v_cvt_pk_bf16_f32 v41, v42, v43")
    a("v_cvt_pk_bf16_f32 v8, v8, v8")
    a("s_sub_u32 s45, s39, 2")
    a("v_mov_b32 v11, s45")
    a("s_mov_b64 s[42:43], exec")
    a("s_mov_b64 exec, s[36:37]")
    a("ds_write_b64 v24, v[32:33]")
    a("s_mov_b64 exec, s[34:35]")
    a("ds_write_b64 v24, v[40:41] offset:256")
    a("s_mov_b64 exec, s[42:43]")
    a("ds_write_b16 v11, v8")
    a("s_waitcnt lgkmcnt(0)")
    a("s_barrier")
    stamp(a, 3)
    for t in range(16):
        a(f"ds_read_u16 v{76+t}, v{GA+t}")
        if t == 7: a("v_mov_b32 v72, 0\nv_mov_b32 v73, 0\nv_mov_b32 v74, 0\nv_mov_b32 v75, 0")
    a("s_waitcnt lgkmcnt(8)")
    for p in range(4):
        a(f"v_lshl_or_b32 v{64+p}, v{77+2*p}, 16, v{76+2*p}")
    a("global_store_dwordx4 v29, v[64:67], s[14:15] sc1")
    a("s_waitcnt lgkmcnt(0)")
    for p in range(4):
        a(f"v_lshl_or_b32 v{68+p}, v{85+2*p}, 16, v{84+2*p}")
    a("global_store_dwordx4 v30, v[68:71], s[14:15] sc1")
    a("v_cmp_gt_u32 vcc, 4, v26")
    a("s_and_saveexec_b64 s[42:43], vcc")
    a("s_cbranch_execz K1_END")
    a("global_store_dwordx4 v31, v[72:75], s[14:15] sc1")
    a("s_branch K1_END")
    a("K1_TSM:   ; LINT-RESET")
    a("s_sub_u32 s25, s2, 256")
    a("s_and_b32 s28, s25, 7")
    a("s_lshr_b32 s29, s25, 3")
    a("s_lshr_b32 s26, s29, 3")
    a("s_lshl_b32 s27, s28, 2")
    a("s_add_u32 s26, s26, s27")
    a("s_and_b32 s27, s29, 7")
    a("s_lshl_b32 s30, s28, 8")
    a("s_lshl_b32 s31, s29, 3")
    a("s_add_u32 s30, s30, s31")
    a("s_lshl_b32 s28, s26, 16")
    a("s_lshl_b32 s29, s27, 7")
    a("s_add_u32 s28, s28, s29")
    a("v_lshrrev_b32 v2, 3, v0")
    a("v_and_b32 v3, 7, v0")
    a("v_lshlrev_b32 v4, 10, v2")
    a("v_lshl_add_u32 v4, v3, 4, v4")
    a("v_add_u32 v4, s28, v4")
    a("v_add_u32 v5, 0x8000, v4")
    a("s_lshl_b32 s31, s24, 1")
    a("s_add_u32 s30, s30, s31")
    a("s_lshl_b32 s31, s30, 10")
    a("v_lshl_add_u32 v6, v1, 4, s31")
    a("s_and_b32 s33, s25, 7")
    a("s_mul_i32 s33, s33, 24")
    a("s_lshr_b32 s34, s25, 3")
    a("s_add_u32 s33, s33, s34")
    a("v_lshrrev_b32 v7, 1, v0")
    a("v_and_b32 v24, 1, v0")
    a("v_mul_u32_u24 v25, 6144, v7")
    a("v_lshl_add_u32 v25, v24, 4, v25")
    a("s_lshl_b32 s35, s33, 5")
    a("v_add_u32 v25, s35, v25")
    a("v_add_u32 v26, 786432, v25")
    a("v_add_u32 v27, 786432, v26")
    a("v_add_u32 v28, 786432, v27")
    a("v_lshlrev_b32 v29, 1, v7")
    a("s_waitcnt lgkmcnt(0)")
    wsfix(a, 14)
    a("global_load_dwordx4 v[8:11], v4, s[16:17]" + NT1)
    a("global_load_dwordx4 v[12:15], v5, s[16:17]" + NT1)
    a("global_load_dwordx4 v[16:19], v6, s[16:17]" + NT1)
    a("global_load_dwordx4 v[20:23], v6, s[16:17] offset:1024" + NT1)
    a("s_cmp_ge_u32 s25, 192")
    a("s_cbranch_scc1 K1_nomodld")
    for k in range(4):
        a(f"global_load_ushort v{48+k}, v29, s[20:21] offset:{256*k}")
    for k, vo in enumerate((25, 26, 27, 28)):
        a(f"global_load_dwordx4 v[{32+4*k}:{35+4*k}], v{vo}, s[22:23]" + NT1)
    a("K1_nomodld:")
    if OPT.get("cpf", "1") == "1":
        a("s_sub_u32 s65, s25, 192")
        a("s_cmp_ge_u32 s65, 16")
        a("s_cbranch_scc1 K1_nocpf")
        a("s_cmp_lg_u32 s24, 3")
        a("s_cbranch_scc1 K1_nocpf")
        code_prefetch(a, "k1_kernel", LASTLABEL, 6, "k1", 70, 72)
        TS = int(OPT.get("tlb", "0"))
        if TS:
            a("s_load_dwordx2 s[50:51], s[0:1], 64")
            a("s_load_dwordx2 s[52:53], s[0:1], 80")
            a("s_load_dwordx2 s[54:55], s[0:1], 112")
            a("s_load_dwordx2 s[56:57], s[0:1], 72")
            a("s_load_dwordx2 s[58:59], s[0:1], 88")
            a("s_load_dwordx2 s[60:61], s[0:1], 48")
            a(f"v_mul_u32_u24 v71, {TS}, v1")
            a("s_waitcnt lgkmcnt(0)")
            k = 80
            for (sr, size) in ((14, WS_USED), (50, 512*1376*2), (52, 512*1376*2), (54, 2048*512*2)):
                n = -(-size // (64 * TS))
                for i in range(n):
                    a(f"v_add_u32 v70, {i * 64 * TS}, v71")
                    a(f"v_cmp_gt_u32 vcc, {size}, v70")
                    a("s_and_saveexec_b64 s[62:63], vcc")
                    a(f"global_load_dword v{k}, v70, s[{sr}:{sr+1}]")
                    a("s_mov_b64 exec, s[62:63]")
                    k = 80 + (k - 80 + 1) % 40
            a("v_mov_b32 v70, 0")
            for sr in (56, 58, 60):
                a(f"global_load_dword v{k}, v70, s[{sr}:{sr+1}]"); k += 1
        a("s_waitcnt vmcnt(0)")
        a("K1_nocpf:   ; LINT-RESET")
    a("v_mul_u32_u24 v30, 160, v2")
    a("v_lshl_add_u32 v30, v3, 4, v30")
    a("s_cmp_ge_u32 s25, 192")
    a("s_cbranch_scc1 K1_w0")
    a("s_waitcnt vmcnt(10)")
    a("s_branch K1_w1")
    a("K1_w0:")
    a("s_waitcnt vmcnt(2)")
    a("K1_w1:   ; LINT-RESET (T loads have landed; S/mod loads may be outstanding)")
    stamp(a, 1)
    a("ds_write_b128 v30, v[8:11]")
    a("ds_write_b128 v30, v[12:15] offset:5120")
    a("s_cmp_ge_u32 s25, 192")
    a("s_cbranch_scc1 K1_w2")
    a("s_waitcnt vmcnt(8)")
    a("s_branch K1_w3")
    a("K1_w2:")
    a("s_waitcnt vmcnt(0)")
    a("K1_w3:   ; LINT-RESET")
    a("v_mov_b32 v31, 0x3f803f80")
    a("v_mov_b32 v52, 0\nv_mov_b32 v53, 0\nv_mov_b32 v54, 0\nv_mov_b32 v55, 0")
    for k in range(4):
        a(f"v_dot2_f32_bf16 v52, v{16+k}, v31, v52")
        a(f"v_dot2_f32_bf16 v53, v{16+k}, v{16+k}, v53")
        a(f"v_dot2_f32_bf16 v54, v{20+k}, v31, v54")
        a(f"v_dot2_f32_bf16 v55, v{20+k}, v{20+k}, v55")
    a("s_nop 1")
    for ctl in ("row_shr:1", "row_shr:2", "row_shr:4", "row_shr:8", "row_bcast:15 row_mask:0xa", "row_bcast:31 row_mask:0xc"):
        for r in range(52, 56):
            a(f"v_add_f32_dpp v{r}, v{r}, v{r} {ctl}")
        a("s_nop 0") if False else None
    a("s_nop 1")
    for k, r in enumerate(range(52, 56)):
        a(f"v_readlane_b32 s{36+k}, v{r}, 63")
    a("s_nop 1")
    a("v_cmp_eq_u32 vcc, 0, v1")
    a("v_mov_b32 v56, s38")
    a("v_mov_b32 v57, s39")
    a("v_mov_b32 v58, s36")
    a("v_mov_b32 v59, s37")
    a("v_cndmask_b32 v56, v56, v58, vcc")
    a("v_cndmask_b32 v57, v57, v59, vcc")
    a("v_mul_f32 v56, 0x3b000000, v56")
    a("v_mul_f32 v57, 0x3b000000, v57")
    a("v_fma_f32 v57, -v56, v56, v57")
    a("v_max_f32 v57, 0, v57")
    rbf(a, 56, 56)
    rbf(a, 57, 57)
    a("v_add_f32 v57, 0x3727c5ac, v57")
    rbf(a, 57, 57)
    a("v_sqrt_f32 v57, v57")
    a("s_nop 0")
    rbf(a, 57, 57)
    a("v_rcp_f32 v58, v57")
    a("s_nop 0")
    a("v_mul_f32 v59, v56, v58")
    a("v_sub_f32 v59, 0, v59")
    a("s_lshl_b32 s31, s30, 2")
    a(f"s_add_u32 s31, s31, {STAT1}")
    a("v_lshl_add_u32 v60, v1, 2, s31")
    a("v_add_u32 v61, 8192, v60")
    a("v_cmp_gt_u32 vcc, 2, v1")
    a("s_and_saveexec_b64 s[42:43], vcc")
    a("global_store_dword v60, v58, s[14:15]" + SC1)
    a("global_store_dword v61, v59, s[14:15]" + SC1)
    a("s_mov_b64 exec, s[42:43]")
    a("s_cmp_ge_u32 s25, 192")
    a("s_cbranch_scc1 K1_nomodc")
    a("s_waitcnt vmcnt(2)")
    for k in range(4):
        a(f"v_lshlrev_b32 v{48+k}, 16, v{48+k}")
    for k in range(4):
        a(f"v_mul_f32 v{52+k}, 0xbfb8aa3b, v{48+k}")
    for k in range(4):
        a(f"v_exp_f32 v{52+k}, v{52+k}")
    a("s_nop 0")
    for k in range(4):
        a(f"v_add_f32 v{52+k}, 1.0, v{52+k}")
    for k in range(4):
        a(f"v_rcp_f32 v{56+k}, v{52+k}")
    a("s_nop 0")
    for k in range(4):
        a(f"v_mul_f32 v{60+k}, v{48+k}, v{56+k}")
    for k in range(4):
        a(f"v_fma_f32 v{48+k}, -v{60+k}, v{52+k}, v{48+k}")
    for k in range(4):
        a(f"v_fma_f32 v{48+k}, v{48+k}, v{56+k}, v{60+k}")
    for k in range(4):
        rbf(a, 48 + k, 48 + k)
    for k in range(4):
        for p in range(4):
            w = 32 + 4 * k + p
            a(f"v_lshlrev_b32 v62, 16, v{w}")
            a(f"v_and_b32 v63, 0xffff0000, v{w}")
            if k == 0:
                a(f"v_mul_f32 v{64+2*p}, v62, v48")
                a(f"v_mul_f32 v{65+2*p}, v63, v48")
            else:
                a(f"v_fmac_f32 v{64+2*p}, v62, v{48+k}")
                a(f"v_fmac_f32 v{65+2*p}, v63, v{48+k}")
    a("v_lshlrev_b32 v61, 5, v0")
    a("ds_write_b128 v61, v[64:67] offset:10240")
    a("ds_write_b128 v61, v[68:71] offset:10256")
    a("K1_nomodc:")
    stamp(a, 2)
    a("s_waitcnt lgkmcnt(0)")
    a("s_barrier")
    stamp(a, 3)
    a("v_lshrrev_b32 v2, 4, v1")
    a("v_bfe_u32 v3, v1, 2, 2")
    a("v_and_b32 v4, 3, v1")
    a("v_lshl_add_u32 v5, v2, 3, v3")
    a("v_mul_u32_u24 v5, 160, v5")
    a("v_lshl_add_u32 v5, v4, 3, v5")
    a("s_lshl_b32 s31, s24, 5")
    a("v_add_u32 v5, s31, v5")
    a("ds_read_b64_tr_b16 v[8:9], v5")
    a("ds_read_b64_tr_b16 v[10:11], v5 offset:640")
    a(f"ds_read_b64_tr_b16 v[12:13], v5 offset:{32*160}")
    a(f"ds_read_b64_tr_b16 v[14:15], v5 offset:{36*160}")
    a("v_and_b32 v6, 15, v1")
    a("v_lshlrev_b32 v6, 12, v6")
    a("v_lshl_add_u32 v6, v2, 4, v6")
    a("s_lshl_b32 s31, s27, 18")
    a("s_lshl_b32 s32, s24, 16")
    a("s_add_u32 s31, s31, s32")
    a("s_lshl_b32 s32, s26, 7")
    a("s_add_u32 s31, s31, s32")
    a(f"s_add_u32 s31, s31, {XT}") if XT else None
    a("v_add_u32 v6, s31, v6")
    a("s_waitcnt lgkmcnt(2)")
    a("global_store_dwordx4 v6, v[8:11], s[14:15]" + SC1)
    a("s_waitcnt lgkmcnt(0)")
    a("global_store_dwordx4 v6, v[12:15], s[14:15] offset:64" + SC1)
    a("s_cmp_ge_u32 s25, 192")
    a("s_cbranch_scc1 K1_END")
    a("s_cmp_lg_u32 s24, 0")
    a("s_cbranch_scc1 K1_END")
    a("v_and_b32 v2, 15, v1")
    a("v_lshrrev_b32 v3, 4, v1")
    a("v_lshlrev_b32 v4, 11, v3")
    a("v_lshl_add_u32 v4, v2, 2, v4")
    for i in range(32):
        a(f"ds_read_b32 v{16+i}, v4 offset:{10240+64*i}")
        if i == 14: a("s_waitcnt lgkmcnt(7)")
    a("s_waitcnt lgkmcnt(0)")
    for st in (16, 8, 4, 2, 1):
        for i in range(st):
            a(f"v_add_f32 v{16+i}, v{16+i}, v{16+st+i}")
    a("s_nop 0")
    a("v_mov_b32 v17, v16")
    a("s_nop 1")
    a("v_permlane16_swap_b32 v16, v17")
    a("s_nop 0")
    a("v_add_f32 v16, v16, v17")
    a("s_nop 0")
    a("v_mov_b32 v17, v16")
    a("s_nop 1")
    a("v_permlane32_swap_b32 v16, v17")
    a("s_nop 0")
    a("v_add_f32 v16, v16, v17")
    rbf(a, 16, 16)
    a("s_lshl_b32 s31, s33, 6")
    a(f"s_add_u32 s31, s31, {MODF}")
    a("v_lshl_add_u32 v5, v2, 2, s31")
    a("v_cmp_gt_u32 vcc, 16, v1")
    a("s_and_saveexec_b64 s[42:43], vcc")
    a("global_store_dword v5, v16, s[14:15]" + SC1)
    a("K1_END:   ; LINT-RESET")
    stamp_store(a, 0, 14, 24)
    a("K1_EXIT:")
    a.end_kernel(name, 160, 100)


KC_CH = 33280
CS    = 4160
UB    = 66560
U_CH  = 7600
SCR   = 81792
FLG   = SCR + 16384
SIDE  = FLG + 64
SIDE_SZ = 11520
K2_LDS = SIDE + 4 * SIDE_SZ
FLAGS_OFF = 0x0638000

def conv_path(a, hb, tag):
    if hb == 0: steps = [(d, True) for d in range(24)]
    else: steps = [(d, True) for d in range(24, 32)] + [(d, False) for d in range(32, 64)]
    ACC = [32, 48]
    SET = [64, 88, 112]
    def reads(k):
        d, both = steps[k]; b = SET[k % 3]
        out = []
        for hf in (0, 1):
            out.append(f"ds_read_b128 v[{b+4*hf}:{b+4*hf+3}], v2 offset:{64*d + 32*(1-hf)}")
        tiles = (0, 1) if both else (1,)
        for t in tiles:
            for hf in (0, 1):
                r = b + 8 + 8 * t + 4 * hf
                out.append(f"ds_read_b128 v[{r}:{r+3}], v3 offset:{(31 + 32*t - d)*80 + 32*hf}")
        return out
    n = len(steps)
    for k in range(2):
        for x in reads(k): a(x)
    for k in range(n):
        d, both = steps[k]; b = SET[k % 3]
        nxt = reads(k + 2) if k + 2 < n else []
        after = len(nxt) + (len(reads(k + 1)) if k + 1 < n else 0)
        mf = []
        tiles = (0, 1) if both else (1,)
        for hf in (0, 1):
            for t in tiles:
                r = b + 8 + 8 * t + 4 * hf
                mf.append(f"v_mfma_f32_32x32x16_bf16 v[{ACC[t]}:{ACC[t]+15}], v[{b+4*hf}:{b+4*hf+3}], v[{r}:{r+3}], v[{ACC[t]}:{ACC[t]+15}]")
        after = len(reads(k + 1)) if k + 1 < n else 0
        a(f"s_waitcnt lgkmcnt({after})")
        per = -(-len(nxt) // len(mf)) if nxt else 0
        ri = 0
        for m in mf:
            a(m)
            for _ in range(per):
                if ri < len(nxt): a(nxt[ri]); ri += 1
    stamp(a, 6)
    give, keep = (ACC[1], ACC[0]) if hb == 0 else (ACC[0], ACC[1])
    a("s_nop 7")
    a("s_nop 3")
    for i in range(4):
        a(f"ds_write_b128 v4, v[{give+4*i}:{give+4*i+3}] offset:{1024*i}")
    for i in range(4):
        a(f"ds_read_b64 v[{64+2*i}:{65+2*i}], v6 offset:{16*i}")
    a("s_waitcnt lgkmcnt(0)")
    a("v_mov_b32 v72, 1")
    a("ds_write_b32 v7, v72")
    a("s_mov_b32 s63, 0x400000")
    a(f"K2_poll{tag}:")
    a("ds_read_b32 v73, v8")
    a("s_waitcnt lgkmcnt(0)")
    a("v_readfirstlane_b32 s40, v73")
    a("s_sub_u32 s63, s63, 1")
    a("s_cmp_eq_u32 s63, 0")
    a(f"s_cbranch_scc1 K2_pollx{tag}")
    a("s_cmp_eq_u32 s40, 1")
    a(f"s_cbranch_scc0 K2_poll{tag}")
    a(f"K2_pollx{tag}:")
    for i in range(4):
        a(f"ds_read_b128 v[{80+4*i}:{83+4*i}], v5 offset:{1024*i}")
    for i in range(4):
        for q in range(2):
            a(f"v_lshlrev_b32 v{96+4*i+2*q}, 16, v{64+2*i+q}")
            a(f"v_and_b32 v{97+4*i+2*q}, 0xffff0000, v{64+2*i+q}")
    a("s_waitcnt vmcnt(0)")
    for i in range(4):
        for q in range(2):
            a(f"v_lshlrev_b32 v{112+4*i+2*q}, 16, v{144+2*i+q}")
            a(f"v_and_b32 v{113+4*i+2*q}, 0xffff0000, v{144+2*i+q}")
    a("s_waitcnt lgkmcnt(0)")
    for j in range(8):
        a(f"v_pk_add_f32 v[{keep+2*j}:{keep+2*j+1}], v[{keep+2*j}:{keep+2*j+1}], v[{80+2*j}:{81+2*j}]")
    for j in range(8):
        a(f"v_pk_fma_f32 v[{keep+2*j}:{keep+2*j+1}], v[{96+2*j}:{97+2*j}], s[36:37], v[{keep+2*j}:{keep+2*j+1}] op_sel_hi:[1,0,1]")
    for j in range(8):
        a(f"v_pk_fma_f32 v[{keep+2*j}:{keep+2*j+1}], v[{keep+2*j}:{keep+2*j+1}], s[36:37], v[{112+2*j}:{113+2*j}] op_sel:[0,1,0] op_sel_hi:[1,1,1]")
    for j in range(8):
        a(f"v_cvt_pk_bf16_f32 v{64+j}, v{keep+2*j}, v{keep+2*j+1}")
    for i in range(4):
        a(f"ds_write_b64 v10, v[{64+2*i}:{65+2*i}] offset:{16*i}")
    a("s_waitcnt lgkmcnt(0)")
    a("ds_read_b128 v[72:75], v11")
    a("ds_read_b128 v[76:79], v11 offset:1280")
    a("s_waitcnt lgkmcnt(1)")
    a("global_store_dwordx4 v9, v[72:75], s[14:15]" + SC1)
    a("s_waitcnt lgkmcnt(0)")
    a("global_store_dwordx4 v12, v[76:79], s[14:15]" + SC1)
    a("s_branch K2_END")

def side_load_and_stage(a):
    for i in range(8):
        a(f"buffer_load_dwordx4 v[{32+4*i}:{35+4*i}], v10, s[44:47], s49 offen nt")
        if i < 7: a("s_add_u32 s49, s49, s48")

def k2(a):
    name = "k2_kernel"
    a.begin_kernel(name, 256, 512, K2_LDS)
    a("s_cmp_ge_u32 s2, 256")
    a("s_cbranch_scc1 K2_EXIT")
    stamp(a, 0)
    a("s_load_dwordx2 s[14:15], s[0:1], 128")
    a("s_load_dwordx2 s[12:13], s[0:1], 48")
    a("s_load_dwordx2 s[16:17], s[0:1], 64")
    a("s_load_dwordx2 s[18:19], s[0:1], 80")
    wave_id(a, 24, 1)
    a("v_and_b32 v1, 63, v0")
    a("s_cmp_ge_u32 s24, 4")
    a("s_cbranch_scc1 K2_SIDE")
    a("s_lshl_b32 s27, s2, 1")
    a("s_lshr_b32 s25, s24, 1")
    a("s_and_b32 s26, s24, 1")
    a("s_lshl_b32 s28, s27, 12")
    a(f"s_add_u32 s28, s28, {XT}") if XT else None
    a("v_lshl_add_u32 v44, v0, 4, s28")
    a("v_add_u32 v45, 4096, v44")
    a("v_lshlrev_b32 v46, 5, v0")
    a(f"v_add_u32 v46, {STAT1}, v46")
    a(f"v_add_u32 v47, 8192, v46")
    a(f"s_mul_i32 s29, s27, {KW}")
    a(f"s_add_u32 s29, s29, {KREV + 4080}")
    a("v_lshlrev_b32 v48, 4, v0")
    a("v_sub_u32 v48, s29, v48")
    a(f"v_add_u32 v49, {KW}, v48")
    a("v_and_b32 v50, 31, v1")
    a("v_lshrrev_b32 v51, 5, v1")
    a("s_lshl_b32 s30, s25, 12")
    a("s_add_u32 s30, s30, s28")
    a("s_lshl_b32 s31, s26, 11")
    a("s_add_u32 s30, s30, s31")
    a("v_lshlrev_b32 v52, 6, v50")
    a("v_lshl_add_u32 v52, v51, 3, v52")
    a("v_add_u32 v52, s30, v52")
    a("s_lshl_b32 s32, s27, 2")
    a(f"s_add_u32 s33, s32, {MODF}")
    a(f"s_add_u32 s34, s32, {MODF + 2048}")
    a(f"s_add_u32 s35, s32, {MODF + 4096}")
    a("s_lshl_b32 s31, s2, 2")
    a("s_waitcnt lgkmcnt(0)")
    wsfix(a, 14)
    a("global_load_dwordx4 v[28:31], v48, s[14:15]")
    a("global_load_dwordx4 v[32:35], v48, s[14:15] offset:16")
    a("global_load_dwordx4 v[36:39], v49, s[14:15]")
    a("global_load_dwordx4 v[40:43], v49, s[14:15] offset:16")
    a("global_load_dwordx4 v[4:7], v44, s[14:15]")
    a("global_load_dwordx4 v[8:11], v45, s[14:15]")
    a("global_load_dwordx4 v[12:15], v46, s[14:15]")
    a("global_load_dwordx4 v[16:19], v46, s[14:15] offset:16")
    a("global_load_dwordx4 v[20:23], v47, s[14:15]")
    a("global_load_dwordx4 v[24:27], v47, s[14:15] offset:16")
    for i in range(4):
        a(f"global_load_dwordx2 v[{144+2*i}:{145+2*i}], v52, s[14:15] offset:{16*i}")
    a("s_load_dwordx2 s[50:51], s[14:15], s33")
    a("s_load_dwordx2 s[52:53], s[14:15], s34")
    a("s_load_dwordx2 s[54:55], s[14:15], s35")
    a("s_load_dword s56, s[12:13], s31")
    a("v_mov_b32 v56, 0\nv_mov_b32 v57, 0\nv_mov_b32 v58, 0\nv_mov_b32 v59, 0")
    a("v_mul_u32_u24 v53, 171, v0")
    a("v_lshrrev_b32 v53, 9, v53")
    a("v_mul_u32_u24 v54, 3, v53")
    a("v_sub_u32 v54, v0, v54")
    a(f"v_mul_u32_u24 v53, {CS}, v53")
    a("v_lshl_add_u32 v53, v54, 4, v53")
    a("v_cmp_gt_u32 vcc, 48, v0")
    a("s_and_saveexec_b64 s[42:43], vcc")
    a("ds_write_b128 v53, v[56:59]")
    a("s_mov_b64 exec, s[42:43]")
    a("v_lshlrev_b32 v53, 4, v0")
    a(f"v_add_u32 v53, {UB}, v53")
    a("v_cmp_gt_u32 vcc, 155, v0")
    a("s_and_saveexec_b64 s[42:43], vcc")
    a(f"ds_write_b128 v53, v[56:59]")
    a(f"ds_write_b128 v53, v[56:59] offset:{U_CH}")
    a("s_mov_b64 exec, s[42:43]")
    a("v_lshlrev_b32 v53, 2, v0")
    a("v_cmp_gt_u32 vcc, 4, v0")
    a("s_and_saveexec_b64 s[42:43], vcc")
    a(f"v_add_u32 v53, {FLG}, v53")
    a("ds_write_b32 v53, v56")
    a("s_mov_b64 exec, s[42:43]")
    a("v_and_b32 v53, 7, v50")
    a("v_lshrrev_b32 v54, 3, v50")
    a(f"v_mul_u32_u24 v2, {CS}, v53")
    a("v_sub_u32 v54, v54, v51")
    a("v_add_u32 v54, 1, v54")
    a("v_lshl_add_u32 v2, v54, 4, v2")
    a(f"s_mul_i32 s38, s25, {KC_CH}")
    a("v_add_u32 v2, s38, v2")
    a("v_mul_u32_u24 v3, 80, v50")
    a("v_lshl_add_u32 v3, v51, 4, v3")
    a(f"s_mul_i32 s38, s25, {U_CH}")
    a(f"s_add_u32 s38, s38, {UB}")
    a("v_add_u32 v3, s38, v3")
    a("v_lshlrev_b32 v55, 4, v0")
    a("v_add_u32 v55, 48, v55")
    for c in range(2):
        W = 28 + 8 * c
        a(f"s_waitcnt vmcnt({12 - 2*c})")
        V = 60
        for j in range(7): a(f"v_alignbit_b32 v{V+j}, v{W+j+1}, v{W+j}, 16")
        for j in range(1, 7): a(f"v_alignbit_b32 v{68+j-1}, v{W+j+1}, v{W+j}, 16")
        for j in range(1, 7): a(f"v_mov_b32 v{76+j-1}, v{W+j}")
        off = c * KC_CH
        a(f"ds_write_b128 v55, v[{W}:{W+3}] offset:{off + 7*CS}")
        a(f"ds_write_b128 v55, v[{W+2}:{W+5}] offset:{off + 3*CS}")
        a(f"ds_write_b128 v55, v[{V}:{V+3}] offset:{off + 6*CS}")
        a(f"ds_write_b128 v55, v[{V+2}:{V+5}] offset:{off + 2*CS}")
        a(f"ds_write_b128 v55, v[68:71] offset:{off + 4*CS}")
        a(f"ds_write_b128 v55, v[70:73] offset:{off + 0*CS}")
        a(f"ds_write_b128 v55, v[76:79] offset:{off + 5*CS}")
        a(f"ds_write_b128 v55, v[78:81] offset:{off + 1*CS}")
    a("s_waitcnt vmcnt(4) lgkmcnt(0)")
    a("v_add_f32 v60, 1.0, s52")
    a("v_add_f32 v61, 1.0, s53")
    rbf(a, 60, 60); rbf(a, 61, 61)
    a("s_nop 0")
    a("v_readfirstlane_b32 s58, v60")
    a("v_readfirstlane_b32 s60, v61")
    a("s_mov_b32 s59, s50")
    a("s_mov_b32 s61, s51")
    a("s_lshl_b32 s38, s25, 4")
    a("s_lshr_b32 s36, s56, s38")
    a("s_lshl_b32 s36, s36, 16")
    a("s_cmp_eq_u32 s25, 0")
    a("s_cselect_b32 s37, s54, s55")
    a("v_lshrrev_b32 v62, 2, v0")
    a("v_mul_u32_u24 v62, 80, v62")
    a("v_and_b32 v63, 3, v0")
    a("v_lshl_add_u32 v62, v63, 4, v62")
    a(f"v_add_u32 v62, {UB + 31*80}, v62")
    for c in range(2):
        X = 4 + 4 * c
        for q in range(4):
            a(f"v_lshlrev_b32 v{64+2*q}, 16, v{X+q}")
            a(f"v_and_b32 v{65+2*q}, 0xffff0000, v{X+q}")
        for q in range(4):
            a(f"v_pk_fma_f32 v[{64+2*q}:{65+2*q}], v[{64+2*q}:{65+2*q}], v[{12+2*q}:{13+2*q}], v[{20+2*q}:{21+2*q}]")
        for q in range(4):
            a(f"v_pk_fma_f32 v[{64+2*q}:{65+2*q}], v[{64+2*q}:{65+2*q}], s[{58+2*c}:{59+2*c}], s[{58+2*c}:{59+2*c}] op_sel:[0,0,1] op_sel_hi:[1,0,1]")
        for q in range(4):
            a(f"v_cvt_pk_bf16_f32 v{72+4*c+q}, v{64+2*q}, v{65+2*q}")
        a(f"ds_write_b128 v62, v[{72+4*c}:{75+4*c}] offset:{c*U_CH}")
    a("s_lshl_b32 s38, s24, 12")
    a(f"s_add_u32 s38, s38, {SCR}")
    a("v_lshl_add_u32 v4, v1, 4, s38")
    a("s_xor_b32 s39, s24, 1")
    a("s_lshl_b32 s38, s39, 12")
    a(f"s_add_u32 s38, s38, {SCR}")
    a("v_lshl_add_u32 v5, v1, 4, s38")
    a("s_lshl_b32 s38, s24, 2")
    a(f"s_add_u32 s38, s38, {FLG}")
    a("v_mov_b32 v7, s38")
    a("s_lshl_b32 s38, s39, 2")
    a(f"s_add_u32 s38, s38, {FLG}")
    a("v_mov_b32 v8, s38")
    a("v_mul_u32_u24 v6, 80, v50")
    a("v_lshl_add_u32 v6, v51, 3, v6")
    a(f"s_mul_i32 s38, s25, {U_CH}")
    a(f"s_mul_i32 s39, s26, {32*80}")
    a("s_add_u32 s38, s38, s39")
    a(f"s_add_u32 s38, s38, {UB + 31*80}")
    a("v_add_u32 v6, s38, v6")
    a("s_add_u32 s38, s27, s25")
    a("s_lshl_b32 s38, s38, 7")
    a("s_lshl_b32 s39, s26, 20")
    a("s_add_u32 s38, s38, s39")
    a(f"s_add_u32 s38, s38, {X2T}")
    a("v_lshrrev_b32 v9, 3, v1")
    a("v_lshlrev_b32 v9, 16, v9")
    a("v_and_b32 v63, 7, v1")
    a("v_lshl_add_u32 v9, v63, 4, v9")
    a("v_add_u32 v9, s38, v9")
    a("v_add_u32 v12, 0x80000, v9")
    a(f"s_mul_i32 s38, s25, {KC_CH}")
    a("s_mul_i32 s39, s26, 2560")
    a("s_add_u32 s38, s38, s39")
    a("v_mul_u32_u24 v10, 80, v50")
    a("v_lshl_add_u32 v10, v51, 3, v10")
    a("v_add_u32 v10, s38, v10")
    a("v_lshrrev_b32 v11, 2, v1")
    a("v_mul_u32_u24 v11, 80, v11")
    a("v_and_b32 v63, 3, v1")
    a("v_lshl_add_u32 v11, v63, 4, v11")
    a("v_add_u32 v11, s38, v11")
    for r in range(32, 64): a(f"v_mov_b32 v{r}, 0")
    stamp(a, 1)
    a("s_waitcnt lgkmcnt(0)")
    a("s_barrier")
    stamp(a, 2)
    a("s_cmp_eq_u32 s26, 0")
    a("s_cbranch_scc0 K2_B")
    conv_path(a, 0, "A")
    a("K2_B:   ; LINT-RESET")
    conv_path(a, 1, "B")
    a("K2_SIDE:   ; LINT-RESET")
    a("s_sub_u32 s25, s24, 4")
    a("s_lshl_b32 s26, s25, 8")
    a("s_add_u32 s26, s26, s2")
    a(f"s_mul_i32 s27, s25, {SIDE_SZ}")
    a(f"s_add_u32 s27, s27, {SIDE}")
    a("s_cmp_gt_u32 s26, 348")
    a("s_cbranch_scc1 K2_SIDE_IDLE")
    a("s_cmp_eq_u32 s26, 348")
    a("s_cbranch_scc1 K2_TAB")
    a("v_lshrrev_b32 v2, 2, v1")
    a("v_and_b32 v3, 3, v1")
    a("v_lshrrev_b32 v4, 4, v1")
    a("v_bfe_u32 v5, v1, 2, 2")
    a("v_mul_u32_u24 v11, 80, v2")
    a("v_lshl_add_u32 v11, v3, 4, v11")
    a("v_add_u32 v11, s27, v11")
    a("v_lshl_add_u32 v12, v4, 2, v5")
    a("v_mul_u32_u24 v12, 80, v12")
    a("v_lshl_add_u32 v12, v3, 3, v12")
    a("v_add_u32 v12, s27, v12")
    a("s_cmp_ge_u32 s26, 172")
    a("s_cbranch_scc1 K2_W2")
    a("s_mul_i32 s28, s26, 1525")
    a("s_lshr_b32 s28, s28, 16")
    a("s_mul_i32 s29, s28, 43")
    a("s_sub_u32 s29, s26, s29")
    a("v_mul_u32_u24 v10, 2752, v2")
    a("v_lshl_add_u32 v10, v3, 4, v10")
    a(f"s_mul_i32 s49, s28, {128*2752}")
    a("s_lshl_b32 s30, s29, 6")
    a("s_add_u32 s49, s49, s30")
    a(f"s_mov_b32 s48, {16*2752}")
    a("s_lshl_b32 s31, s28, 9")
    a("v_lshl_add_u32 v13, v1, 2, s31")
    a(f"v_add_u32 v13, {MODF + 3*2048}, v13")
    a("v_add_u32 v14, 2048, v13")
    a("s_waitcnt lgkmcnt(0)")
    wsfix(a, 14)
    a.srd(44, 16, 512 * 1376 * 2)
    a("global_load_dword v20, v13, s[14:15]")
    a("global_load_dword v21, v13, s[14:15] offset:256")
    a("global_load_dword v22, v14, s[14:15]")
    a("global_load_dword v23, v14, s[14:15] offset:256")
    side_load_and_stage(a)
    a("s_barrier")
    a("s_waitcnt vmcnt(8)")
    a("v_add_f32 v22, 1.0, v22")
    a("v_add_f32 v23, 1.0, v23")
    rbf(a, 22, 22); rbf(a, 23, 23)
    a("v_lshl_add_u32 v15, v1, 2, s27")
    a("v_lshl_add_u32 v16, v1, 1, s27")
    a("ds_write_b32 v15, v22 offset:10240")
    a("ds_write_b32 v15, v23 offset:10496")
    a("ds_write_b16_d16_hi v16, v20 offset:10752")
    a("ds_write_b16_d16_hi v16, v21 offset:10880")
    for i in range(8):
        a(f"s_waitcnt vmcnt({7-i})")
        a(f"ds_write_b128 v11, v[{32+4*i}:{35+4*i}] offset:{16*80*i}")
    a("v_and_b32 v17, 15, v1")
    a("v_cmp_eq_u32 s[50:51], 0, v17")
    a("v_cmp_eq_u32 s[52:53], 1, v17")
    a("v_mov_b32 v18, 0")
    a("v_mov_b32 v19, 0x3f803f80")
    a("v_cndmask_b32 v18, v18, v19, s[50:51]")
    a("v_mov_b32 v19, 0")
    a("v_cndmask_b32 v19, v19, -1, s[52:53]")
    a("v_lshl_add_u32 v24, v4, 4, s27")
    a("v_lshl_add_u32 v25, v4, 3, s27")
    for r in range(96, 112): a(f"v_mov_b32 v{r}, 0")
    a("s_lshl_b32 s30, s29, 11")
    a(f"s_mul_i32 s31, s28, {4*87*1024}")
    a("s_add_u32 s30, s30, s31")
    a(f"s_add_u32 s30, s30, {W1F}")
    a("v_lshl_add_u32 v26, v1, 4, s30")
    a("s_waitcnt lgkmcnt(0)")
    for ks in range(4):
        a(f"ds_read_b128 v[32:35], v24 offset:{10240 + 128*ks}")
        a(f"ds_read_b128 v[36:39], v24 offset:{10240 + 128*ks + 64}")
        a(f"ds_read_b64 v[40:41], v25 offset:{10752 + 64*ks}")
        a(f"ds_read_b64 v[42:43], v25 offset:{10752 + 64*ks + 32}")
        for nt in range(2):
            for hf in range(2):
                a(f"ds_read_b64_tr_b16 v[{44+4*nt+2*hf}:{45+4*nt+2*hf}], v12 offset:{(32*ks+16*hf)*80 + 32*nt}")
        a("s_waitcnt lgkmcnt(4)")
        for q in range(4): a(f"v_and_or_b32 v{40+q}, v{40+q}, v19, v18")
        a("s_waitcnt lgkmcnt(0)")
        for nt in range(2):
            R = 44 + 4 * nt
            for q in range(4):
                a(f"v_lshlrev_b32 v{52+2*q}, 16, v{R+q}")
                a(f"v_and_b32 v{53+2*q}, 0xffff0000, v{R+q}")
            a(f"v_mfma_f32_16x16x32_bf16 v[{96+4*nt}:{99+4*nt}], v[{R}:{R+3}], v[40:43], v[{96+4*nt}:{99+4*nt}]")
            for q in range(4):
                a(f"v_pk_mul_f32 v[{52+2*q}:{53+2*q}], v[{52+2*q}:{53+2*q}], v[{32+2*q}:{33+2*q}]")
            S = 60 + 4 * nt
            for q in range(4):
                a(f"v_cvt_pk_bf16_f32 v{S+q}, v{52+2*q}, v{53+2*q}")
            a(f"global_store_dwordx4 v26, v[{S}:{S+3}], s[14:15] offset:{1024*nt}" + SC1)
            if nt == 1: a(f"v_add_u32 v26, {87*1024}, v26")
            a("s_nop 0")
            a(f"v_mfma_f32_16x16x32_bf16 v[{104+4*nt}:{107+4*nt}], v[{S}:{S+3}], v[40:43], v[{104+4*nt}:{107+4*nt}]")
    a(f"s_mul_i32 s30, s28, {3*5504}")
    a("s_lshl_b32 s31, s29, 7")
    a("s_add_u32 s30, s30, s31")
    a(f"s_add_u32 s30, s30, {SVP}")
    a("v_lshl_add_u32 v28, v4, 4, s30")
    a("v_add_u32 v29, 5504, v28")
    a("v_add_u32 v30, 5504, v29")
    a("s_nop 7")
    a("s_mov_b64 s[42:43], exec")
    a("s_mov_b64 exec, s[50:51]")
    for nt in range(2):
        a(f"global_store_dwordx4 v28, v[{104+4*nt}:{107+4*nt}], s[14:15] offset:{64*nt}" + SC1)
        a(f"global_store_dwordx4 v30, v[{96+4*nt}:{99+4*nt}], s[14:15] offset:{64*nt}" + SC1)
    a("s_mov_b64 exec, s[52:53]")
    for nt in range(2):
        a(f"global_store_dwordx4 v29, v[{96+4*nt}:{99+4*nt}], s[14:15] offset:{64*nt}" + SC1)
    a("s_mov_b64 exec, s[42:43]")
    a("s_branch K2_END")
    a("K2_W2:   ; LINT-RESET")
    a("s_sub_u32 s26, s26, 172")
    a("s_and_b32 s29, s26, 15")
    a("s_lshr_b32 s28, s26, 4")
    a("v_lshlrev_b32 v10, 10, v2")
    a("v_lshl_add_u32 v10, v3, 4, v10")
    a("s_lshl_b32 s30, s29, 6")
    a("s_waitcnt lgkmcnt(0)")
    wsfix(a, 14)
    a.srd(44, 18, 1376 * 512 * 2)
    for ks in range(4):
        a("s_lshl_b32 s31, s28, 2")
        a(f"s_add_u32 s31, s31, {ks}")
        a("s_mul_i32 s32, s31, 13")
        a("s_lshr_b32 s32, s32, 6")
        a("s_mul_i32 s33, s32, 5")
        a("s_sub_u32 s33, s31, s33")
        a("s_mul_i32 s32, s32, 11")
        a("s_min_u32 s32, s32, 76")
        a("s_lshl_b32 s33, s33, 1")
        a("s_add_u32 s32, s32, s33")
        a("s_add_u32 s33, s32, 1")
        a("s_sub_u32 s34, s31, 40")
        a("s_mul_i32 s34, s34, 22")
        a("s_add_u32 s35, s34, 21")
        a("s_add_u32 s34, s34, 10")
        a("s_cmp_lt_u32 s31, 40")
        a("s_cselect_b32 s32, s32, s34")
        a("s_cselect_b32 s33, s33, s35")
        for hf, sr in ((0, 32), (1, 33)):
            a(f"s_lshl_b32 s49, s{sr}, 14")
            a("s_add_u32 s49, s49, s30")
            i = 2 * ks + hf
            a(f"buffer_load_dwordx4 v[{32+4*i}:{35+4*i}], v10, s[44:47], s49 offen nt")
    a("s_barrier")
    for i in range(8):
        a(f"s_waitcnt vmcnt({7-i})")
        a(f"ds_write_b128 v11, v[{32+4*i}:{35+4*i}] offset:{16*80*i}")
    a("s_lshr_b32 s30, s29, 1")
    a("s_mul_i32 s30, s30, 43")
    a("s_lshl_b32 s31, s28, 2")
    a("s_add_u32 s30, s30, s31")
    a("s_lshl_b32 s30, s30, 12")
    a("s_and_b32 s31, s29, 1")
    a("s_lshl_b32 s31, s31, 11")
    a("s_add_u32 s30, s30, s31")
    a(f"s_add_u32 s30, s30, {W2F}")
    a("v_lshl_add_u32 v26, v1, 4, s30")
    a("s_waitcnt lgkmcnt(0)")
    for ks in range(4):
        if ks == 3:
            a("s_cmp_eq_u32 s28, 10")
            a("s_cbranch_scc1 K2_END")
        for nt in range(2):
            for hf in range(2):
                a(f"ds_read_b64_tr_b16 v[{44+4*nt+2*hf}:{45+4*nt+2*hf}], v12 offset:{(32*ks+16*hf)*80 + 32*nt}")
        a("s_waitcnt lgkmcnt(2)")
        a(f"global_store_dwordx4 v26, v[44:47], s[14:15]" + SC1)
        a("s_waitcnt lgkmcnt(0)")
        a(f"global_store_dwordx4 v26, v[48:51], s[14:15] offset:1024" + SC1)
        a("v_add_u32 v26, 4096, v26")
    a("s_branch K2_END")
    a("K2_TAB:   ; LINT-RESET")
    a("v_lshlrev_b32 v2, 5, v1")
    a(f"v_add_u32 v2, {MODF + 3*2048}, v2")
    a("v_add_u32 v3, 2048, v2")
    a("s_waitcnt lgkmcnt(0)")
    wsfix(a, 14)
    a("global_load_dwordx4 v[32:35], v2, s[14:15]")
    a("global_load_dwordx4 v[36:39], v2, s[14:15] offset:16")
    a("global_load_dwordx4 v[40:43], v3, s[14:15]")
    a("global_load_dwordx4 v[44:47], v3, s[14:15] offset:16")
    a("s_barrier")
    a("s_waitcnt vmcnt(0)")
    for j in range(8): a(f"v_add_f32 v{40+j}, 1.0, v{40+j}")
    for j in range(8): rbf(a, 40 + j, 40 + j)
    for j in range(8): a(f"v_mul_f32 v{48+j}, v{40+j}, v{40+j}")
    for j in range(8): a(f"v_mul_f32 v{56+j}, v{40+j}, v{32+j}")
    for k, base in enumerate((40, 48, 56, 32)):
        a(f"v_add_f32 v{100+k}, v{base}, v{base+1}")
        for j in range(2, 8): a(f"v_add_f32 v{100+k}, v{100+k}, v{base+j}")
    a("v_mul_f32 v104, v32, v32")
    for j in range(1, 8): a(f"v_fmac_f32 v104, v{32+j}, v{32+j}")
    a("v_lshl_add_u32 v4, v1, 4, s27")
    a("v_mov_b32 v64, 0x3f803f80\nv_mov_b32 v65, 0x3f803f80\nv_mov_b32 v66, 0x3f803f80\nv_mov_b32 v67, 0x3f803f80")
    a("ds_write_b128 v4, v[64:67]")
    for q in range(4): a(f"v_cvt_pk_bf16_f32 v{68+q}, v{40+2*q}, v{41+2*q}")
    a("ds_write_b128 v4, v[68:71] offset:1024")
    for (src, row) in ((48, 2), (56, 4)):
        for q in range(4): a(f"v_cvt_pk_bf16_f32 v{72+q}, v{src+2*q}, v{src+2*q+1}")
        a(f"ds_write_b128 v4, v[72:75] offset:{1024*row}")
        for q in range(4):
            a(f"v_lshlrev_b32 v{80+2*q}, 16, v{72+q}")
            a(f"v_and_b32 v{81+2*q}, 0xffff0000, v{72+q}")
        for j in range(8): a(f"v_sub_f32 v{80+j}, v{src+j}, v{80+j}")
        for q in range(4): a(f"v_cvt_pk_bf16_f32 v{76+q}, v{80+2*q}, v{81+2*q}")
        a(f"ds_write_b128 v4, v[76:79] offset:{1024*(row+1)}")
    a("s_nop 1")
    for ctl in ("row_shr:1", "row_shr:2", "row_shr:4", "row_shr:8", "row_bcast:15 row_mask:0xa", "row_bcast:31 row_mask:0xc"):
        for r in range(100, 105):
            a(f"v_add_f32_dpp v{r}, v{r}, v{r} {ctl}")
    a(f"v_mov_b32 v5, {SCAL}")
    a("s_mov_b64 s[42:43], exec")
    a("s_mov_b64 exec, 0x8000000000000000") if False else None
    a("v_cmp_eq_u32 vcc, 63, v1")
    a("s_and_saveexec_b64 s[42:43], vcc")
    a("global_store_dwordx4 v5, v[100:103], s[14:15]" + SC1)
    a("global_store_dword v5, v104, s[14:15] offset:16" + SC1)
    a("s_mov_b64 exec, s[42:43]")
    a("v_and_b32 v6, 15, v1")
    a("v_lshrrev_b32 v7, 4, v1")
    a("v_min_u32 v8, 5, v6")
    a("v_lshlrev_b32 v8, 10, v8")
    a("v_lshl_add_u32 v8, v7, 3, v8")
    a("v_add_u32 v8, s27, v8")
    a("v_cmp_gt_u32 vcc, 6, v6")
    a("v_mov_b32 v9, 0")
    a("s_nop 0")
    a("v_cndmask_b32 v9, v9, -1, vcc")
    a(f"s_mov_b32 s30, {W1F + 86*1024}")
    a("v_lshl_add_u32 v10, v1, 4, s30")
    a("s_waitcnt lgkmcnt(0)")
    for ks in range(16):
        R = 16 + 4 * (ks & 1)
        a(f"ds_read_b64 v[{R}:{R+1}], v8 offset:{64*ks}")
        a(f"ds_read_b64 v[{R+2}:{R+3}], v8 offset:{64*ks+32}")
        a("s_waitcnt lgkmcnt(0)")
        for q in range(4): a(f"v_and_b32 v{R+q}, v{R+q}, v9")
        a(f"global_store_dwordx4 v10, v[{R}:{R+3}], s[14:15]" + SC1)
        a(f"v_add_u32 v10, {87*1024}, v10")
    a("s_branch K2_END")
    a("K2_SIDE_IDLE:   ; LINT-RESET")
    a("s_cmp_eq_u32 s26, 349")
    a("s_cbranch_scc0 K2_idle2")
    a("s_waitcnt lgkmcnt(0)")
    wsfix(a, 14)
    a("v_mov_b32 v4, 0\nv_mov_b32 v5, 0\nv_mov_b32 v6, 0\nv_mov_b32 v7, 0")
    a("v_lshlrev_b32 v2, 4, v1")
    a(f"v_add_u32 v2, {FLAGS_OFF}, v2")
    for q in range(4):
        a(f"global_store_dwordx4 v2, v[4:7], s[14:15] offset:{1024*q} sc1")
    a("K2_idle2:")
    a("s_barrier")
    a("K2_END:   ; LINT-RESET")
    stamp_store(a, 1, 14, 24)
    a("K2_EXIT:")
    a.end_kernel(name, 160, 100)


KG   = SIDE + 4 * SIDE_SZ
KG_PAR = KG
KG_T16 = KG + 4096
KG_REV = KG + 4096 + 2816
LF   = KG_REV + 2 * 4160
K12_LDS = LF + 64
KG_PART = SCR
GBAR = 0x0639000
WCNT = GBAR + 10752

_sync_id = [0]
def wsync(a, addr, n, vt, st, add=True):
    _sync_id[0] += 1
    L = f"WS_{_sync_id[0]}"
    a("s_waitcnt lgkmcnt(0)")
    if isinstance(addr, str): a(f"v_mov_b32 v{vt}, {addr}")
    else: a(f"v_mov_b32 v{vt}, {addr}")
    if add:
        a(f"v_mov_b32 v{vt+1}, 1")
        a("s_mov_b64 exec, 1")
        a(f"ds_add_u32 v{vt}, v{vt+1}")
        a("s_mov_b64 exec, -1")
    a("s_mov_b32 s63, 0x400000")
    a(f"{L}:")
    a(f"ds_read_b32 v{vt+1}, v{vt}")
    a("s_waitcnt lgkmcnt(0)")
    a(f"v_readfirstlane_b32 s{st}, v{vt+1}")
    a("s_sub_u32 s63, s63, 1")
    a("s_cmp_eq_u32 s63, 0")
    a(f"s_cbranch_scc1 {L}_x")
    a(f"s_cmp_ge_u32 s{st}, {n}")
    a(f"s_cbranch_scc0 {L}")
    a(f"{L}_x:")

def k12(a):
    name = "k12_kernel"
    a.begin_kernel(name, 256, 512, K12_LDS)
    a("s_cmp_ge_u32 s2, 256")
    a("s_cbranch_scc1 K2_EXIT")
    stamp(a, 0)
    a("s_load_dwordx8 s[4:11], s[0:1], 8")
    a("s_load_dwordx4 s[44:47], s[0:1], 40")
    a("s_load_dwordx2 s[14:15], s[0:1], 128")
    a("s_load_dwordx2 s[16:17], s[0:1], 0")
    a("s_load_dwordx2 s[18:19], s[0:1], 120")
    a("s_load_dwordx4 s[20:23], s[0:1], 96")
    a("s_load_dwordx2 s[48:49], s[0:1], 64")
    a("s_load_dwordx2 s[12:13], s[0:1], 80")
    wave_id(a, 24, 1)
    a("v_and_b32 v1, 63, v0")
    a("v_lshlrev_b32 v2, 2, v0")
    a(f"v_add_u32 v2, {LF}, v2")
    a("v_mov_b32 v3, 0")
    a("v_cmp_gt_u32 vcc, 16, v0")
    a("s_and_saveexec_b64 s[42:43], vcc")
    a("ds_write_b32 v2, v3")
    a("s_mov_b64 exec, s[42:43]")
    a("s_cmp_ge_u32 s24, 4")
    a("s_cbranch_scc1 K12_SIDE0")
    a("s_lshr_b32 s25, s24, 1")
    a("s_and_b32 s26, s24, 1")
    a("s_lshl_b32 s62, s2, 1")
    a("s_add_u32 s27, s62, s25")
    a("s_lshl_b32 s28, s27, 8")
    a("s_lshl_b32 s29, s26, 7")
    a("s_add_u32 s28, s28, s29")
    a("v_lshl_add_u32 v2, v1, 1, s28")
    a("s_lshl_b32 s30, s2, 2")
    a("s_waitcnt lgkmcnt(0)")
    wsfix(a, 14)
    a("global_load_ushort v4, v2, s[4:5] nt")
    a("global_load_ushort v5, v2, s[6:7] nt")
    a("global_load_ushort v6, v2, s[8:9] nt")
    a("global_load_ushort v7, v2, s[10:11] nt")
    a("s_load_dword s29, s[44:45], s30")
    a("s_load_dword s56, s[46:47], s30")
    a("s_branch K12_CONV0")
    a("K12_SIDE0:   ; LINT-RESET")
    a("s_setprio 3")
    a("s_sub_u32 s25, s24, 4")
    a("s_and_b32 s28, s2, 7")
    a("s_lshr_b32 s29, s2, 3")
    a("s_lshr_b32 s26, s29, 3")
    a("s_lshl_b32 s27, s28, 2")
    a("s_add_u32 s26, s26, s27")
    a("s_and_b32 s27, s29, 7")
    a("s_lshl_b32 s30, s28, 8")
    a("s_lshl_b32 s31, s29, 3")
    a("s_add_u32 s30, s30, s31")
    a("s_lshl_b32 s31, s25, 1")
    a("s_add_u32 s30, s30, s31")
    a(f"s_mul_i32 s57, s25, {SIDE_SZ}")
    a(f"s_add_u32 s57, s57, {SIDE}")
    a("v_subrev_u32 v30, 256, v0")
    a("s_lshl_b32 s28, s26, 16")
    a("s_lshl_b32 s29, s27, 7")
    a("s_add_u32 s28, s28, s29")
    a("v_lshrrev_b32 v2, 3, v30")
    a("v_and_b32 v3, 7, v30")
    a("v_lshlrev_b32 v4, 10, v2")
    a("v_lshl_add_u32 v4, v3, 4, v4")
    a("v_add_u32 v4, s28, v4")
    a("v_add_u32 v5, 0x8000, v4")
    a("s_lshl_b32 s31, s30, 10")
    a("v_lshl_add_u32 v6, v1, 4, s31")
    a("s_and_b32 s33, s2, 7")
    a("s_mul_i32 s33, s33, 6")
    a("s_lshr_b32 s34, s2, 5")
    a("s_add_u32 s33, s33, s34")
    a("s_bfe_u32 s34, s2, 0x20003")
    a("s_lshl_b32 s35, s34, 7")
    a("v_add_u32 v7, s35, v2")
    a("v_mul_u32_u24 v25, 6144, v7")
    a("v_lshl_add_u32 v25, v3, 4, v25")
    a("s_lshl_b32 s35, s33, 7")
    a("v_add_u32 v25, s35, v25")
    a(f"v_add_u32 v26, {32*6144}, v25")
    a(f"v_add_u32 v27, {32*6144}, v26")
    a(f"v_add_u32 v28, {32*6144}, v27")
    a("v_lshlrev_b32 v29, 1, v7")
    a("s_waitcnt lgkmcnt(0)")
    wsfix(a, 14)
    NTX = " nt" if OPT.get("ntx", "0") == "1" else ""
    NTS = " nt" if OPT.get("nts", "0") == "1" else ""
    NTW = " nt" if OPT.get("ntw", "1") == "1" else ""
    a("global_load_dwordx4 v[8:11], v4, s[16:17]" + NTX)
    a("global_load_dwordx4 v[12:15], v5, s[16:17]" + NTX)
    a("global_load_dwordx4 v[16:19], v6, s[16:17]" + NTS)
    a("global_load_dwordx4 v[20:23], v6, s[16:17] offset:1024" + NTS)
    a("s_cmp_ge_u32 s2, 192")
    a("s_cbranch_scc1 K1_nomodld")
    for k in range(4): a(f"global_load_ushort v{48+k}, v29, s[20:21] offset:{64*k}")
    for k, vo in enumerate((25, 26, 27, 28)):
        a(f"global_load_dwordx4 v[{32+4*k}:{35+4*k}], v{vo}, s[22:23]" + NTW)
    a("K1_nomodld:")
    if OPT.get("cpf", "1") == "1":
        a("s_sub_u32 s65, s2, 192")
        a("s_cmp_ge_u32 s65, 16")
        a("s_cbranch_scc1 K12_nocpf")
        a("s_cmp_lg_u32 s24, 7")
        a("s_cbranch_scc1 K12_nocpf")
        code_prefetch(a, "k12_kernel", LASTLABEL, 6, "k1", 199, 200)
        a("K12_nocpf:")
    a("s_branch K2_SIDE")
    a("K12_CONV0:   ; LINT-RESET")
    a("s_barrier")
    a("s_cmp_eq_u32 s2, 255")
    a("s_cselect_b32 s64, 1, 0")
    a("s_cmp_eq_u32 s24, 0")
    a("s_cselect_b32 s64, s64, 0")
    a("s_cmp_eq_u32 s64, 1")
    a("s_cbranch_scc0 K12_noinit")
    a("v_mov_b32 v64, 0\nv_mov_b32 v65, 0\nv_mov_b32 v66, 0\nv_mov_b32 v67, 0")
    a("v_lshlrev_b32 v68, 4, v1")
    a(f"v_add_u32 v68, {FLAGS_OFF}, v68")
    for q in range(16):
        a(f"global_store_dwordx4 v68, v[64:67], s[14:15] sc1")
        if q < 15: a("v_add_u32 v68, 1024, v68")
    a("K12_noinit:   ; LINT-RESET")
    a("v_mov_b32 v56, 0\nv_mov_b32 v57, 0\nv_mov_b32 v58, 0\nv_mov_b32 v59, 0")
    a("v_mul_u32_u24 v53, 171, v0")
    a("v_lshrrev_b32 v53, 9, v53")
    a("v_mul_u32_u24 v54, 3, v53")
    a("v_sub_u32 v54, v0, v54")
    a(f"v_mul_u32_u24 v53, {CS}, v53")
    a("v_lshl_add_u32 v53, v54, 4, v53")
    a("v_cmp_gt_u32 vcc, 48, v0")
    a("s_and_saveexec_b64 s[42:43], vcc")
    a("ds_write_b128 v53, v[56:59]")
    a("s_mov_b64 exec, s[42:43]")
    a("v_lshlrev_b32 v53, 4, v0")
    a(f"v_add_u32 v53, {UB}, v53")
    a("v_cmp_gt_u32 vcc, 155, v0")
    a("s_and_saveexec_b64 s[42:43], vcc")
    a(f"ds_write_b128 v53, v[56:59]")
    a(f"ds_write_b128 v53, v[56:59] offset:{U_CH}")
    a("s_mov_b64 exec, s[42:43]")
    a("v_and_b32 v16, 15, v1")
    a("v_cmp_eq_u32 s[32:33], 15, v16")
    a("v_lshrrev_b32 v18, 4, v1")
    a("v_add_u32 v19, 1, v16")
    a("v_cvt_f32_u32 v19, v19")
    a("s_lshl_b32 s31, s24, 10")
    a(f"s_add_u32 s31, s31, {KG_PAR}")
    a("v_lshl_add_u32 v17, v18, 6, s31")
    a("v_lshl_add_u32 v20, v1, 4, s31")
    for r in range(112, 128): a(f"v_mov_b32 v{r}, 0")
    a("s_mul_i32 s39, s25, 1344")
    a(f"s_add_u32 s39, s39, {KG_T16 + 8}")
    a("v_subrev_u32 v21, 7, v16")
    a("v_cmp_gt_u32 s[34:35], 8, v21")
    a("v_add_u32 v21, 1, v16")
    a("v_and_b32 v21, 15, v21")
    a("v_lshlrev_b32 v24, 5, v21")
    a("v_lshl_add_u32 v24, v18, 3, v24")
    a("s_lshl_b32 s40, s26, 9")
    a("s_add_u32 s40, s40, s39")
    a("v_add_u32 v24, s40, v24")
    a("s_cmp_eq_u32 s26, 0")
    a("s_cselect_b64 s[36:37], -1, s[34:35]")
    a("s_lshl_b32 s40, s24, 12")
    a(f"s_add_u32 s40, s40, {KG_PART}")
    a("v_lshl_add_u32 v22, v1, 4, s40")
    a("s_lshl_b32 s40, s25, 13")
    a("s_lshl_b32 s41, s26, 11")
    a("s_add_u32 s40, s40, s41")
    a(f"s_add_u32 s40, s40, {KG_PART}")
    a("v_lshl_add_u32 v23, v1, 4, s40")
    a("s_lshl_b32 s40, s26, 6")
    a("v_add_u32 v26, s40, v1")
    a("v_lshlrev_b32 v27, 3, v26")
    a("v_sub_u32 v27, 2047, v27")
    a("v_cvt_f32_u32 v28, v27")
    a("s_sub_u32 s41, s39, 34050")
    a("s_sub_u32 s42, s39, 2")
    GA = 140
    for rnd in range(2):
        if rnd == 1:
            a("v_add_f32 v28, 0xc4800000, v28")
            a("v_subrev_u32 v27, 1024, v27")
        for t in range(8):
            if t == 0: a(f"v_mov_b32 v48, v28")
            else: a(f"v_add_f32 v{48+t}, {-float(t)}, v28")
        for p in range(4): a(f"v_cvt_pk_bf16_f32 v{56+p}, v{48+2*p}, v{49+2*p}")
        for p in range(4):
            a(f"v_and_b32 v{48+2*p}, 0xffff, v{56+p}")
            a(f"v_lshrrev_b32 v{49+2*p}, 16, v{56+p}")
        o = GA + 8 * rnd
        for t in range(8): a(f"v_lshl_add_u32 v{o+t}, v{48+t}, 1, s41")
        if rnd == 1:
            a("v_cmp_le_u32 vcc, 112, v26")
            for t in range(8):
                a(f"v_subrev_u32 v{56+(t&3)}, {t}, v27")
                a(f"v_lshl_add_u32 v{56+(t&3)}, v{56+(t&3)}, 1, s42")
                a(f"v_cndmask_b32 v{o+t}, v{o+t}, v{56+(t&3)}, vcc")
    a(f"s_mul_i32 s40, s25, 4160")
    a(f"s_add_u32 s40, s40, {KG_REV}")
    a("v_lshl_add_u32 v29, v26, 4, s40")
    a("s_add_u32 s41, s40, 4080")
    a("v_lshlrev_b32 v30, 4, v26")
    a("v_sub_u32 v30, s41, v30")
    a(f"s_mul_i32 s41, s25, {KC_CH}")
    a("s_add_u32 s41, s41, 48")
    a("v_lshl_add_u32 v31, v26, 4, s41")
    a("s_waitcnt lgkmcnt(0)")
    a("s_lshl_b32 s40, s25, 4")
    a("s_lshr_b32 s29, s29, s40")
    a("s_lshl_b32 s29, s29, 16")
    a(f"v_mov_b32 v8, {LOG2E}")
    a("v_mul_f32 v9, s29, v8")
    a("v_exp_f32 v9, v9")
    a("s_nop 0")
    rbf(a, 9, 9)
    a("s_waitcnt vmcnt(0)")
    a("s_cmp_eq_u32 s64, 1")
    a("s_cbranch_scc0 K12_nopub")
    a("v_mov_b32 v68, 0")
    a("v_mov_b32 v69, 1")
    a("s_mov_b64 exec, 1")
    a("global_store_dword v68, v69, s[18:19] sc1")
    a("s_mov_b64 exec, -1")
    a("K12_nopub:")
    a("v_lshlrev_b32 v4, 16, v4")
    a("v_lshlrev_b32 v5, 16, v5")
    a("v_lshlrev_b32 v6, 16, v6")
    a("v_lshlrev_b32 v7, 16, v7")
    a("v_mul_f32 v4, v4, v8")
    a("v_exp_f32 v4, v4")
    a("v_mul_f32 v13, v5, v9")
    a("v_mul_f32 v14, v6, v9")
    rbf(a, 4, 4)
    a("v_mul_f32 v15, v7, v9")
    a("v_mul_f32 v12, v4, v9")
    a(f"v_mul_f32 v13, {INV2PI}, v13")
    a("v_add_f32 v14, v14, v14")
    a("v_add_f32 v15, v15, v15")
    a("v_mul_f32 v12, v12, v8")
    a("v_mov_b32 v10, v14")
    a("v_sub_f32 v12, 0, v12")
    a("ds_write_b128 v20, v[12:15]")
    for ctl in ("row_shr:1", "row_shr:2", "row_shr:4", "row_shr:8", "row_bcast:15 row_mask:0xa", "row_bcast:31 row_mask:0xc"):
        a("s_nop 1")
        a(f"v_add_f32_dpp v10, v10, v10 {ctl}")
    a("s_waitcnt lgkmcnt(0)")
    stamp(a, 1)
    R = [[32 + 4 * u for u in range(4)], [48 + 4 * u for u in range(4)]]
    PA = [64 + 2 * u for u in range(4)]
    PB = [72 + 2 * u for u in range(4)]
    TT = [80 + 2 * u for u in range(4)]
    QF = [88 + 4 * e for e in range(4)]
    GF = [104, 108]
    DD = [112 + 4 * e for e in range(4)]
    CPK = [128 + u for u in range(4)]
    MAG = [132 + 2 * u for u in range(4)]
    for u in range(4): a(f"ds_read_b128 v[{R[0][u]}:{R[0][u]+3}], v17 offset:{u*16}")
    for ks in range(4):
        Rc = R[ks & 1]
        if ks + 1 < 4:
            for u in range(4):
                a(f"ds_read_b128 v[{R[(ks+1)&1][u]}:{R[(ks+1)&1][u]+3}], v17 offset:{(ks+1)*256+u*16}")
            a("s_waitcnt lgkmcnt(4)")
        else:
            a("s_waitcnt lgkmcnt(0)")
        for u in range(4): a(f"v_mul_f32 v{TT[u]}, v{Rc[u]}, v19")
        for u in range(4): a(f"v_mul_f32 v{TT[u]+1}, v{Rc[u]+1}, v19")
        for u in range(4): a(f"v_exp_f32 v{MAG[u]}, v{TT[u]}")
        for u in range(4): a(f"v_fract_f32 v{TT[u]+1}, v{TT[u]+1}")
        for u in range(4): a(f"v_cvt_pk_bf16_f32 v{CPK[u]}, v{Rc[u]+2}, -v{Rc[u]+3}")
        for u in range(4): a(f"v_cos_f32 v{PB[u]}, v{TT[u]+1}")
        for u in range(4): a(f"v_sin_f32 v{PB[u]+1}, v{TT[u]+1}")
        a("s_nop 0")
        for u in range(4):
            a(f"v_pk_mul_f32 v[{PA[u]}:{PA[u]+1}], v[{PB[u]}:{PB[u]+1}], v[{MAG[u]}:{MAG[u]+1}] op_sel:[0,0] op_sel_hi:[1,0]")
        cur, oth = PA, PB
        for e in range(4):
            for u in range(4): a(f"v_cvt_pk_bf16_f32 v{QF[e]+u}, v{cur[u]}, v{cur[u]+1}")
            sq = [csq(a, oth[u], cur[u], TT[u]) for u in range(4)]
            for u in range(4): a(sq[u][0])
            for u in range(4): a(sq[u][1])
            cur, oth = oth, cur
        for e in range(4):
            g = GF[e & 1]
            cm = [cmulconj(a, oth[u], cur[u], Rc[u] + 2, TT[u]) for u in range(4)]
            for u in range(4): a(cm[u][0])
            for u in range(4): a(cm[u][1])
            for u in range(4): a(f"v_cvt_pk_bf16_f32 v{g+u}, v{oth[u]}, v{oth[u]+1}")
            if e == 0:
                for u in range(4): a(f"v_cndmask_b32 v{g+u}, v{g+u}, v{CPK[u]}, s[32:33]")
            if e < 3:
                sq = [csq(a, oth[u], cur[u], TT[u]) for u in range(4)]
                for u in range(4): a(sq[u][0])
                a(f"v_mfma_f32_16x16x32_bf16 v[{DD[e]}:{DD[e]+3}], v[{QF[e]}:{QF[e]+3}], v[{g}:{g+3}], v[{DD[e]}:{DD[e]+3}]")
                for u in range(4): a(sq[u][1])
                cur, oth = oth, cur
            else:
                a("s_nop 1")
                a(f"v_mfma_f32_16x16x32_bf16 v[{DD[e]}:{DD[e]+3}], v[{QF[e]}:{QF[e]+3}], v[{g}:{g+3}], v[{DD[e]}:{DD[e]+3}]")
    stamp(a, 2)
    K0P = KG_T16 + 2 * 1344 + 16
    a("v_readlane_b32 s40, v10, 63")
    a(f"s_lshl_b32 s41, s24, 2")
    a(f"s_add_u32 s41, s41, {K0P}")
    a("v_mov_b32 v11, s41")
    a("v_mov_b32 v10, s40")
    a("s_nop 1")
    for e in range(4): a(f"ds_write_b128 v22, v[{DD[e]}:{DD[e]+3}] offset:{e*1024}")
    a("ds_write_b32 v11, v10")
    a("s_lshl_b32 s57, s25, 2")
    a(f"s_add_u32 s41, s57, {LF}")
    wsync(a, "s41", 2, 2, 40)
    a("ds_read_b128 v[32:35], v23")
    a("ds_read_b128 v[36:39], v23 offset:4096")
    a("ds_read_b128 v[40:43], v23 offset:1024")
    a("ds_read_b128 v[44:47], v23 offset:5120")
    a(f"s_lshl_b32 s41, s25, 3")
    a(f"s_add_u32 s41, s41, {K0P}")
    a("v_mov_b32 v11, s41")
    a("ds_read_b64 v[8:9], v11")
    a("s_waitcnt lgkmcnt(0)")
    for r in range(4): a(f"v_add_f32 v{32+r}, v{32+r}, v{36+r}")
    for r in range(4): a(f"v_add_f32 v{40+r}, v{40+r}, v{44+r}")
    a("v_add_f32 v8, v8, v9")
    a("v_cvt_pk_bf16_f32 v32, v32, v33")
    a("v_cvt_pk_bf16_f32 v33, v34, v35")
    a("v_cvt_pk_bf16_f32 v40, v40, v41")
    a("v_cvt_pk_bf16_f32 v41, v42, v43")
    a("v_cvt_pk_bf16_f32 v8, v8, v8")
    a("s_sub_u32 s41, s39, 2")
    a("v_mov_b32 v11, s41")
    a("s_mov_b64 exec, s[36:37]")
    a("ds_write_b64 v24, v[32:33]")
    a("s_mov_b64 exec, s[34:35]")
    a("ds_write_b64 v24, v[40:41] offset:256")
    a("s_mov_b64 exec, -1")
    a("ds_write_b16 v11, v8")
    a(f"s_add_u32 s41, s57, {LF + 8}")
    wsync(a, "s41", 2, 2, 40)
    for t in range(16):
        a(f"ds_read_u16 v{76+t}, v{GA+t}")
        if t == 7: a("v_mov_b32 v72, 0\nv_mov_b32 v73, 0\nv_mov_b32 v74, 0\nv_mov_b32 v75, 0")
    a("s_waitcnt lgkmcnt(8)")
    for p in range(4): a(f"v_lshl_or_b32 v{64+p}, v{77+2*p}, 16, v{76+2*p}")
    a("ds_write_b128 v29, v[64:67]")
    a("s_waitcnt lgkmcnt(1)")
    for p in range(4): a(f"v_lshl_or_b32 v{68+p}, v{85+2*p}, 16, v{84+2*p}")
    a("ds_write_b128 v29, v[68:71] offset:2048")
    a("v_cmp_gt_u32 vcc, 4, v26")
    a("s_and_saveexec_b64 s[42:43], vcc")
    a("ds_write_b128 v29, v[72:75] offset:4096")
    a("s_mov_b64 exec, s[42:43]")
    a(f"s_add_u32 s41, s57, {LF + 16}")
    wsync(a, "s41", 2, 2, 40)
    a("v_subrev_u32 v33, 2048, v30")
    a("ds_read_b128 v[36:39], v30")
    a("ds_read_b128 v[40:43], v30 offset:16")
    a("ds_read_b128 v[44:47], v33")
    a("ds_read_b128 v[48:51], v33 offset:16")
    for c in range(2):
        W = 36 + 8 * c
        a(f"s_waitcnt lgkmcnt({2 if c == 0 else 8})")
        V = 60
        for j in range(7): a(f"v_alignbit_b32 v{V+j}, v{W+j+1}, v{W+j}, 16")
        for j in range(1, 7): a(f"v_alignbit_b32 v{68+j-1}, v{W+j+1}, v{W+j}, 16")
        for j in range(1, 7): a(f"v_mov_b32 v{76+j-1}, v{W+j}")
        off = c * 2048
        a(f"ds_write_b128 v31, v[{W}:{W+3}] offset:{off + 7*CS}")
        a(f"ds_write_b128 v31, v[{W+2}:{W+5}] offset:{off + 3*CS}")
        a(f"ds_write_b128 v31, v[{V}:{V+3}] offset:{off + 6*CS}")
        a(f"ds_write_b128 v31, v[{V+2}:{V+5}] offset:{off + 2*CS}")
        a(f"ds_write_b128 v31, v[68:71] offset:{off + 4*CS}")
        a(f"ds_write_b128 v31, v[70:73] offset:{off + 0*CS}")
        a(f"ds_write_b128 v31, v[76:79] offset:{off + 5*CS}")
        a(f"ds_write_b128 v31, v[78:81] offset:{off + 1*CS}")
    stamp(a, 3)
    a("s_lshl_b32 s28, s62, 12")
    a(f"s_add_u32 s28, s28, {XT}") if XT else None
    a("v_lshl_add_u32 v160, v0, 4, s28")
    a("v_add_u32 v161, 4096, v160")
    a("v_lshlrev_b32 v162, 5, v0")
    a(f"v_add_u32 v162, {STAT1}, v162")
    a(f"v_add_u32 v163, 8192, v162")
    a("v_and_b32 v50, 31, v1")
    a("v_lshrrev_b32 v51, 5, v1")
    a("s_lshl_b32 s30, s25, 12")
    a("s_add_u32 s30, s30, s28")
    a("s_lshl_b32 s31, s26, 11")
    a("s_add_u32 s30, s30, s31")
    a("v_lshlrev_b32 v164, 6, v50")
    a("v_lshl_add_u32 v164, v51, 3, v164")
    a("v_add_u32 v164, s30, v164")
    a("v_and_b32 v165, 3, v1")
    a("v_mul_u32_u24 v165, 12288, v165")
    a("v_bfe_u32 v54, v1, 2, 1")
    a("v_lshl_add_u32 v165, v54, 2, v165")
    a("v_lshrrev_b32 v54, 3, v1")
    a("v_min_u32 v54, 2, v54")
    a("v_lshl_add_u32 v165, v54, 11, v165")
    a("s_lshl_b32 s32, s62, 2")
    a(f"s_add_u32 s32, s32, {MODP}")
    a("v_add_u32 v165, s32, v165")
    a("v_and_b32 v54, 7, v50")
    a("v_lshrrev_b32 v55, 3, v50")
    a(f"v_mul_u32_u24 v2, {CS}, v54")
    a("v_sub_u32 v55, v55, v51")
    a("v_add_u32 v55, 1, v55")
    a("v_lshl_add_u32 v2, v55, 4, v2")
    a(f"s_mul_i32 s38, s25, {KC_CH}")
    a("v_add_u32 v2, s38, v2")
    a("v_mul_u32_u24 v3, 80, v50")
    a("v_lshl_add_u32 v3, v51, 4, v3")
    a(f"s_mul_i32 s38, s25, {U_CH}")
    a(f"s_add_u32 s38, s38, {UB}")
    a("v_add_u32 v3, s38, v3")
    a("v_lshrrev_b32 v166, 2, v0")
    a("v_mul_u32_u24 v166, 80, v166")
    a("v_and_b32 v63, 3, v0")
    a("v_lshl_add_u32 v166, v63, 4, v166")
    a(f"v_add_u32 v166, {UB + 31*80}, v166")
    a("s_lshl_b32 s38, s24, 12")
    a(f"s_add_u32 s38, s38, {SCR}")
    a("v_lshl_add_u32 v4, v1, 4, s38")
    a("s_xor_b32 s39, s24, 1")
    a("s_lshl_b32 s38, s39, 12")
    a(f"s_add_u32 s38, s38, {SCR}")
    a("v_lshl_add_u32 v5, v1, 4, s38")
    a("s_lshl_b32 s38, s24, 2")
    a(f"s_add_u32 s38, s38, {LF + 32}")
    a("v_mov_b32 v7, s38")
    a("s_lshl_b32 s38, s39, 2")
    a(f"s_add_u32 s38, s38, {LF + 32}")
    a("v_mov_b32 v8, s38")
    a("v_mul_u32_u24 v6, 80, v50")
    a("v_lshl_add_u32 v6, v51, 3, v6")
    a(f"s_mul_i32 s38, s25, {U_CH}")
    a(f"s_mul_i32 s39, s26, {32*80}")
    a("s_add_u32 s38, s38, s39")
    a(f"s_add_u32 s38, s38, {UB + 31*80}")
    a("v_add_u32 v6, s38, v6")
    a("s_lshl_b32 s38, s27, 7")
    a("s_lshl_b32 s39, s26, 20")
    a("s_add_u32 s38, s38, s39")
    a(f"s_add_u32 s38, s38, {X2T}")
    a("v_lshrrev_b32 v9, 3, v1")
    a("v_lshlrev_b32 v9, 16, v9")
    a("v_and_b32 v63, 7, v1")
    a("v_lshl_add_u32 v9, v63, 4, v9")
    a("v_add_u32 v9, s38, v9")
    a("v_add_u32 v12, 0x80000, v9")
    a(f"s_mul_i32 s38, s25, {KC_CH}")
    a("s_mul_i32 s39, s26, 2560")
    a("s_add_u32 s38, s38, s39")
    a("v_mul_u32_u24 v10, 80, v50")
    a("v_lshl_add_u32 v10, v51, 3, v10")
    a("v_add_u32 v10, s38, v10")
    a("v_lshrrev_b32 v11, 2, v1")
    a("v_mul_u32_u24 v11, 80, v11")
    a("v_and_b32 v63, 3, v1")
    a("v_lshl_add_u32 v11, v63, 4, v11")
    a("v_add_u32 v11, s38, v11")
    for r in range(32, 64): a(f"v_mov_b32 v{r}, 0")
    a("s_lshl_b32 s38, s25, 4")
    a("s_lshr_b32 s36, s56, s38")
    a("s_lshl_b32 s36, s36, 16")
    a("s_waitcnt lgkmcnt(0)")
    a("s_barrier")
    stamp(a, 4)
    XR, SR = 168, 176
    a("global_load_dword v13, v165, s[14:15] sc1")
    a(f"global_load_dwordx4 v[{XR}:{XR+3}], v160, s[14:15] sc1")
    a(f"global_load_dwordx4 v[{XR+4}:{XR+7}], v161, s[14:15] sc1")
    a(f"global_load_dwordx4 v[{SR}:{SR+3}], v162, s[14:15] sc1")
    a(f"global_load_dwordx4 v[{SR+4}:{SR+7}], v162, s[14:15] offset:16 sc1")
    a(f"global_load_dwordx4 v[{SR+8}:{SR+11}], v163, s[14:15] sc1")
    a(f"global_load_dwordx4 v[{SR+12}:{SR+15}], v163, s[14:15] offset:16 sc1")
    for i in range(4):
        a(f"global_load_dwordx2 v[{144+2*i}:{145+2*i}], v164, s[14:15] offset:{16*i} sc1")
    a("s_waitcnt vmcnt(10)")
    a("v_add_f32_dpp v13, v13, v13 quad_perm:[1,0,3,2] row_mask:0xf bank_mask:0xf")
    a("s_nop 1")
    a("v_add_f32_dpp v13, v13, v13 quad_perm:[2,3,0,1] row_mask:0xf bank_mask:0xf")
    rbf(a, 13, 13)
    a("v_add_f32 v14, 1.0, v13")
    rbf(a, 14, 14)
    a("v_readlane_b32 s59, v13, 0")
    a("v_readlane_b32 s61, v13, 4")
    a("v_readlane_b32 s54, v13, 16")
    a("v_readlane_b32 s55, v13, 20")
    a("v_readlane_b32 s58, v14, 8")
    a("v_readlane_b32 s60, v14, 12")
    a("s_cmp_eq_u32 s25, 0")
    a("s_cselect_b32 s37, s54, s55")
    a("s_waitcnt vmcnt(4)")
    for c in range(2):
        X = XR + 4 * c
        for q in range(4):
            a(f"v_lshlrev_b32 v{64+2*q}, 16, v{X+q}")
            a(f"v_and_b32 v{65+2*q}, 0xffff0000, v{X+q}")
        for q in range(4):
            a(f"v_pk_fma_f32 v[{64+2*q}:{65+2*q}], v[{64+2*q}:{65+2*q}], v[{SR+2*q}:{SR+1+2*q}], v[{SR+8+2*q}:{SR+9+2*q}]")
        for q in range(4):
            a(f"v_pk_fma_f32 v[{64+2*q}:{65+2*q}], v[{64+2*q}:{65+2*q}], s[{58+2*c}:{59+2*c}], s[{58+2*c}:{59+2*c}] op_sel:[0,0,1] op_sel_hi:[1,0,1]")
        for q in range(4):
            a(f"v_cvt_pk_bf16_f32 v{72+4*c+q}, v{64+2*q}, v{65+2*q}")
        a(f"ds_write_b128 v166, v[{72+4*c}:{75+4*c}] offset:{c*U_CH}")
    wsync(a, LF + 52, 4, 14, 40)
    stamp(a, 5)
    a("s_cmp_eq_u32 s26, 0")
    a("s_cbranch_scc0 K2_B")
    conv_path(a, 0, "A")
    a("K2_B:   ; LINT-RESET")
    conv_path(a, 1, "B")
    a("K2_SIDE:   ; LINT-RESET")
    a("s_barrier")
    TL = SIDE + SIDE_SZ
    a("v_mul_u32_u24 v30, 160, v2")
    a("v_lshl_add_u32 v30, v3, 4, v30")
    a(f"v_add_u32 v30, {TL}, v30")
    a("s_cmp_ge_u32 s2, 192")
    a("s_cbranch_scc1 K1_w0")
    a("s_waitcnt vmcnt(10)")
    a("s_branch K1_w1")
    a("K1_w0:")
    a("s_waitcnt vmcnt(2)")
    a("K1_w1:   ; LINT-RESET")
    stamp(a, 1)
    a("ds_write_b128 v30, v[8:11]")
    a("ds_write_b128 v30, v[12:15] offset:5120")
    wsync(a, LF + 48, 4, 2, 40)
    a("v_lshrrev_b32 v2, 4, v1")
    a("v_bfe_u32 v3, v1, 2, 2")
    a("v_and_b32 v4, 3, v1")
    a("v_lshl_add_u32 v5, v2, 3, v3")
    a("v_mul_u32_u24 v5, 160, v5")
    a("v_lshl_add_u32 v5, v4, 3, v5")
    a("s_lshl_b32 s31, s25, 5")
    a(f"s_add_u32 s31, s31, {TL}")
    a("v_add_u32 v5, s31, v5")
    a("ds_read_b64_tr_b16 v[8:9], v5")
    a("ds_read_b64_tr_b16 v[10:11], v5 offset:640")
    a(f"ds_read_b64_tr_b16 v[12:13], v5 offset:{32*160}")
    a(f"ds_read_b64_tr_b16 v[14:15], v5 offset:{36*160}")
    a("v_and_b32 v6, 15, v1")
    a("v_lshlrev_b32 v6, 12, v6")
    a("v_lshl_add_u32 v6, v2, 4, v6")
    a("s_lshl_b32 s31, s27, 18")
    a("s_lshl_b32 s32, s25, 16")
    a("s_add_u32 s31, s31, s32")
    a("s_lshl_b32 s32, s26, 7")
    a("s_add_u32 s31, s31, s32")
    a(f"s_add_u32 s31, s31, {XT}") if XT else None
    a("v_add_u32 v6, s31, v6")
    a("s_waitcnt lgkmcnt(2)")
    a("global_store_dwordx4 v6, v[8:11], s[14:15] sc1")
    a("s_waitcnt lgkmcnt(0)")
    a("global_store_dwordx4 v6, v[12:15], s[14:15] offset:64 sc1")
    a("s_cmp_ge_u32 s2, 192")
    a("s_cbranch_scc1 K1_w2")
    a("s_waitcnt vmcnt(10)")
    a("s_branch K1_w3")
    a("K1_w2:")
    a("s_waitcnt vmcnt(2)")
    a("K1_w3:   ; LINT-RESET")
    a("v_mov_b32 v31, 0x3f803f80")
    a("v_mov_b32 v52, 0\nv_mov_b32 v53, 0\nv_mov_b32 v54, 0\nv_mov_b32 v55, 0")
    for k in range(4):
        a(f"v_dot2_f32_bf16 v52, v{16+k}, v31, v52")
        a(f"v_dot2_f32_bf16 v53, v{16+k}, v{16+k}, v53")
        a(f"v_dot2_f32_bf16 v54, v{20+k}, v31, v54")
        a(f"v_dot2_f32_bf16 v55, v{20+k}, v{20+k}, v55")
    a("s_nop 1")
    for ctl in ("row_shr:1", "row_shr:2", "row_shr:4", "row_shr:8", "row_bcast:15 row_mask:0xa", "row_bcast:31 row_mask:0xc"):
        for r in range(52, 56): a(f"v_add_f32_dpp v{r}, v{r}, v{r} {ctl}")
    a("s_nop 1")
    for k, r in enumerate(range(52, 56)): a(f"v_readlane_b32 s{36+k}, v{r}, 63")
    a("s_nop 1")
    a("v_cmp_eq_u32 vcc, 0, v1")
    a("v_mov_b32 v56, s38")
    a("v_mov_b32 v57, s39")
    a("v_mov_b32 v58, s36")
    a("v_mov_b32 v59, s37")
    a("v_cndmask_b32 v56, v56, v58, vcc")
    a("v_cndmask_b32 v57, v57, v59, vcc")
    a("v_mul_f32 v56, 0x3b000000, v56")
    a("v_mul_f32 v57, 0x3b000000, v57")
    a("v_fma_f32 v57, -v56, v56, v57")
    a("v_max_f32 v57, 0, v57")
    rbf(a, 56, 56); rbf(a, 57, 57)
    a("v_add_f32 v57, 0x3727c5ac, v57")
    rbf(a, 57, 57)
    a("v_sqrt_f32 v57, v57")
    a("s_nop 0")
    rbf(a, 57, 57)
    a("v_rcp_f32 v58, v57")
    a("s_nop 0")
    a("v_mul_f32 v59, v56, v58")
    a("v_sub_f32 v59, 0, v59")
    a("s_lshl_b32 s31, s30, 2")
    a(f"s_add_u32 s31, s31, {STAT1}")
    a("v_lshl_add_u32 v60, v1, 2, s31")
    a("v_add_u32 v61, 8192, v60")
    a("v_cmp_gt_u32 vcc, 2, v1")
    a("s_and_saveexec_b64 s[42:43], vcc")
    a("global_store_dword v60, v58, s[14:15] sc1")
    a("global_store_dword v61, v59, s[14:15] sc1")
    a("s_mov_b64 exec, s[42:43]")
    a("s_cmp_ge_u32 s2, 192")
    a("s_cbranch_scc1 K1_nomodc")
    a("s_waitcnt vmcnt(4)")
    for k in range(4): a(f"v_lshlrev_b32 v{48+k}, 16, v{48+k}")
    for k in range(4): a(f"v_mul_f32 v{52+k}, 0xbfb8aa3b, v{48+k}")
    for k in range(4): a(f"v_exp_f32 v{52+k}, v{52+k}")
    a("s_nop 0")
    for k in range(4): a(f"v_add_f32 v{52+k}, 1.0, v{52+k}")
    for k in range(4): a(f"v_rcp_f32 v{56+k}, v{52+k}")
    a("s_nop 0")
    for k in range(4): a(f"v_mul_f32 v{60+k}, v{48+k}, v{56+k}")
    for k in range(4): a(f"v_fma_f32 v{48+k}, -v{60+k}, v{52+k}, v{48+k}")
    for k in range(4): a(f"v_fma_f32 v{48+k}, v{48+k}, v{56+k}, v{60+k}")
    for k in range(4): rbf(a, 48 + k, 48 + k)
    for k in range(4):
        for p in range(4):
            w = 32 + 4 * k + p
            a(f"v_lshlrev_b32 v62, 16, v{w}")
            a(f"v_and_b32 v63, 0xffff0000, v{w}")
            if k == 0:
                a(f"v_mul_f32 v{64+2*p}, v62, v48")
                a(f"v_mul_f32 v{65+2*p}, v63, v48")
            else:
                a(f"v_fmac_f32 v{64+2*p}, v62, v{48+k}")
                a(f"v_fmac_f32 v{65+2*p}, v63, v{48+k}")
    MODL = SIDE
    a("v_subrev_u32 v61, 256, v0")
    a("v_lshlrev_b32 v61, 5, v61")
    a(f"v_add_u32 v61, {MODL}, v61")
    a("ds_write_b128 v61, v[64:67]")
    a("ds_write_b128 v61, v[68:71] offset:16")
    wsync(a, LF + 24, 4, 2, 40)
    a("s_cmp_lg_u32 s25, 0")
    a("s_cbranch_scc1 K1_nomodc")
    a("v_lshlrev_b32 v4, 2, v1")
    a(f"v_add_u32 v4, {MODL}, v4")
    for i in range(32):
        a(f"ds_read_b32 v{16+i}, v4 offset:{256*i}")
        if i == 14: a("s_waitcnt lgkmcnt(7)")
    a("s_waitcnt lgkmcnt(0)")
    for st in (16, 8, 4, 2, 1):
        for i in range(st): a(f"v_add_f32 v{16+i}, v{16+i}, v{16+st+i}")
    a("s_mul_i32 s31, s34, 12288")
    a("s_lshl_b32 s32, s33, 8")
    a("s_add_u32 s31, s31, s32")
    a(f"s_add_u32 s31, s31, {MODP}")
    a("v_lshl_add_u32 v5, v1, 2, s31")
    a("global_store_dword v5, v16, s[14:15] sc1")
    a("K1_nomodc:   ; LINT-RESET")
    stamp(a, 2)
    a("v_mov_b32 v74, 0")
    a("global_load_dword v75, v74, s[18:19] sc1")
    a("s_waitcnt vmcnt(0)")
    a("v_readfirstlane_b32 s51, v75")
    a(f"v_mov_b32 v2, {LF + 28}")
    a("v_mov_b32 v3, 1")
    a("s_mov_b64 exec, 1")
    a("ds_add_u32 v2, v3")
    a("s_mov_b64 exec, -1")
    stamp(a, 3)
    a("s_lshl_b32 s26, s25, 8")
    a("s_add_u32 s26, s26, s2")
    a("s_mov_b32 s27, s57")
    a("v_lshrrev_b32 v2, 2, v1")
    a("v_and_b32 v3, 3, v1")
    a("v_lshrrev_b32 v4, 4, v1")
    a("v_bfe_u32 v5, v1, 2, 2")
    a("v_mul_u32_u24 v11, 80, v2")
    a("v_lshl_add_u32 v11, v3, 4, v11")
    a("v_add_u32 v11, s27, v11")
    a("v_lshl_add_u32 v12, v4, 2, v5")
    a("v_mul_u32_u24 v12, 80, v12")
    a("v_lshl_add_u32 v12, v3, 3, v12")
    a("v_add_u32 v12, s27, v12")
    a("s_cmp_ge_u32 s26, 348")
    a("s_cbranch_scc1 K12_noraw")
    a("s_cmp_ge_u32 s26, 172")
    a("s_cbranch_scc1 K12_rawW2")
    a("s_mul_i32 s28, s26, 1525")
    a("s_lshr_b32 s28, s28, 16")
    a("s_mul_i32 s29, s28, 43")
    a("s_sub_u32 s29, s26, s29")
    a("v_mul_u32_u24 v10, 2752, v2")
    a("v_lshl_add_u32 v10, v3, 4, v10")
    a(f"s_mul_i32 s53, s28, {128*2752}")
    a("s_lshl_b32 s30, s29, 6")
    a("s_add_u32 s53, s53, s30")
    a.srd(64, 48, 512 * 1376 * 2)
    for i in range(8):
        a(f"buffer_load_dwordx4 v[{32+4*i}:{35+4*i}], v10, s[64:67], s53 offen nt")
        if i < 7: a(f"s_add_u32 s53, s53, {16*2752}")
    a("s_branch K12_noraw")
    a("K12_rawW2:   ; LINT-RESET")
    a("s_sub_u32 s31, s26, 172")
    a("s_and_b32 s29, s31, 15")
    a("s_lshr_b32 s28, s31, 4")
    a("v_lshlrev_b32 v10, 10, v2")
    a("v_lshl_add_u32 v10, v3, 4, v10")
    a("s_lshl_b32 s30, s29, 6")
    a.srd(64, 12, 1376 * 512 * 2)
    for ks in range(4):
        a("s_lshl_b32 s31, s28, 2")
        a(f"s_add_u32 s31, s31, {ks}")
        a("s_mul_i32 s32, s31, 13")
        a("s_lshr_b32 s32, s32, 6")
        a("s_mul_i32 s33, s32, 5")
        a("s_sub_u32 s33, s31, s33")
        a("s_mul_i32 s32, s32, 11")
        a("s_min_u32 s32, s32, 76")
        a("s_lshl_b32 s33, s33, 1")
        a("s_add_u32 s32, s32, s33")
        a("s_add_u32 s33, s32, 1")
        a("s_sub_u32 s34, s31, 40")
        a("s_mul_i32 s34, s34, 22")
        a("s_add_u32 s35, s34, 21")
        a("s_add_u32 s34, s34, 10")
        a("s_cmp_lt_u32 s31, 40")
        a("s_cselect_b32 s32, s32, s34")
        a("s_cselect_b32 s33, s33, s35")
        for hf, sr in ((0, 32), (1, 33)):
            a(f"s_lshl_b32 s53, s{sr}, 14")
            a("s_add_u32 s53, s53, s30")
            i = 2 * ks + hf
            a(f"buffer_load_dwordx4 v[{32+4*i}:{35+4*i}], v10, s[64:67], s53 offen nt")
    a("K12_noraw:   ; LINT-RESET")
    a("s_cmp_lg_u32 s25, 0")
    a("s_cbranch_scc1 K12_gbx")
    wsync(a, LF + 28, 4, 70, 40, add=False)
    a("s_mov_b64 exec, 1")
    a("v_mov_b32 v70, 0")
    a("s_mov_b32 s52, 0x200000")
    a("s_cmp_eq_u32 s51, 1")
    a("s_cbranch_scc1 K12_rdyx")
    a("K12_rdy:")
    a("global_load_dword v71, v70, s[18:19] sc1")
    a("s_waitcnt vmcnt(0)")
    a("v_readfirstlane_b32 s40, v71")
    a("s_sub_u32 s52, s52, 1")
    a("s_cmp_eq_u32 s52, 0")
    a("s_cbranch_scc1 K12_gbdone")
    a("s_cmp_eq_u32 s40, 1")
    a("s_cbranch_scc0 K12_rdy")
    a("K12_rdyx:")
    a("s_and_b32 s40, s2, 15")
    a("s_lshl_b32 s40, s40, 8")
    a(f"s_add_u32 s40, s40, {GBAR}")
    a("v_mov_b32 v70, s40")
    a("v_mov_b32 v71, 1")
    a("global_atomic_add v71, v70, v71, s[14:15] sc0 sc1")
    a("s_waitcnt vmcnt(0)")
    a("v_readfirstlane_b32 s40, v71")
    a("s_cmp_eq_u32 s40, 15")
    a("s_cbranch_scc0 K12_poll")
    a(f"v_mov_b32 v70, {GBAR + 4096}")
    a("v_mov_b32 v71, 1")
    a("global_atomic_add v71, v70, v71, s[14:15] sc0 sc1")
    a("s_waitcnt vmcnt(0)")
    a("v_readfirstlane_b32 s40, v71")
    a("s_cmp_eq_u32 s40, 15")
    a("s_cbranch_scc0 K12_poll")
    a("s_mov_b64 exec, 0xff")
    a("v_lshlrev_b32 v70, 8, v1")
    a(f"v_add_u32 v70, {GBAR + 8192}, v70")
    a("v_mov_b32 v71, 1")
    a("global_store_dword v70, v71, s[14:15] sc1")
    a("s_mov_b64 exec, 1")
    a("K12_poll:")
    a("s_and_b32 s40, s2, 7")
    a("s_lshl_b32 s40, s40, 8")
    a(f"s_add_u32 s40, s40, {GBAR + 8192}")
    a("v_mov_b32 v70, s40")
    a("K12_poll2:")
    a("global_load_dword v71, v70, s[14:15] sc1")
    a("s_waitcnt vmcnt(0)")
    a("v_readfirstlane_b32 s40, v71")
    a("s_sub_u32 s52, s52, 1")
    a("s_cmp_eq_u32 s52, 0")
    a("s_cbranch_scc1 K12_gbdone")
    a("s_cmp_eq_u32 s40, 1")
    a("s_cbranch_scc0 K12_poll2")
    a("K12_gbdone:")
    a("s_mov_b64 exec, -1")
    a("K12_gbx:   ; LINT-RESET")
    a(f"s_setprio {OPT.get('sprio', '0')}")
    a("s_barrier")
    stamp(a, 4)
    a("s_cmp_gt_u32 s26, 348")
    a("s_cbranch_scc1 K2_SIDE_IDLE")
    a("s_cmp_eq_u32 s26, 348")
    a("s_cbranch_scc1 K2_TAB")
    a("s_cmp_ge_u32 s26, 172")
    a("s_cbranch_scc1 K2_W2")
    a("s_lshl_b32 s31, s28, 9")
    a("v_lshl_add_u32 v13, v1, 3, s31")
    a(f"v_add_u32 v13, {MODP + 3*2048}, v13")
    for q in range(4):
        a(f"global_load_dwordx2 v[{64+4*q}:{65+4*q}], v13, s[14:15] sc1")
        a(f"global_load_dwordx2 v[{66+4*q}:{67+4*q}], v13, s[14:15] offset:2048 sc1")
        if q < 3: a("v_add_u32 v13, 12288, v13")
    a("s_waitcnt vmcnt(8)")
    for i in range(8): a(f"ds_write_b128 v11, v[{32+4*i}:{35+4*i}] offset:{16*80*i}")
    a("s_waitcnt vmcnt(0)")
    for r in range(4):
        a(f"v_add_f32 v{64+r}, v{64+r}, v{68+r}")
        a(f"v_add_f32 v{72+r}, v{72+r}, v{76+r}")
        a(f"v_add_f32 v{64+r}, v{64+r}, v{72+r}")
    for r in range(4): rbf(a, 64 + r, 64 + r)
    a("v_add_f32 v66, 1.0, v66")
    a("v_add_f32 v67, 1.0, v67")
    rbf(a, 66, 66); rbf(a, 67, 67)
    a("v_cvt_pk_bf16_f32 v64, v64, v65")
    a("v_lshl_add_u32 v15, v1, 3, s27")
    a("v_lshl_add_u32 v16, v1, 2, s27")
    a("ds_write_b64 v15, v[66:67] offset:10240")
    a("ds_write_b32 v16, v64 offset:10752")
    a("v_and_b32 v17, 15, v1")
    a("v_cmp_eq_u32 s[50:51], 0, v17")
    a("v_cmp_eq_u32 s[52:53], 1, v17")
    a("v_mov_b32 v18, 0")
    a("v_mov_b32 v19, 0x3f803f80")
    a("v_cndmask_b32 v18, v18, v19, s[50:51]")
    a("v_mov_b32 v19, 0")
    a("v_cndmask_b32 v19, v19, -1, s[52:53]")
    a("v_lshl_add_u32 v24, v4, 4, s27")
    a("v_lshl_add_u32 v25, v4, 3, s27")
    for r in range(96, 112): a(f"v_mov_b32 v{r}, 0")
    a("s_lshl_b32 s30, s29, 11")
    a(f"s_mul_i32 s31, s28, {4*87*1024}")
    a("s_add_u32 s30, s30, s31")
    a(f"s_add_u32 s30, s30, {W1F}")
    a("v_lshl_add_u32 v26, v1, 4, s30")
    a("s_waitcnt lgkmcnt(0)")
    for ks in range(4):
        a(f"ds_read_b128 v[32:35], v24 offset:{10240 + 128*ks}")
        a(f"ds_read_b128 v[36:39], v24 offset:{10240 + 128*ks + 64}")
        a(f"ds_read_b64 v[40:41], v25 offset:{10752 + 64*ks}")
        a(f"ds_read_b64 v[42:43], v25 offset:{10752 + 64*ks + 32}")
        for nt in range(2):
            for hf in range(2):
                a(f"ds_read_b64_tr_b16 v[{44+4*nt+2*hf}:{45+4*nt+2*hf}], v12 offset:{(32*ks+16*hf)*80 + 32*nt}")
        a("s_waitcnt lgkmcnt(4)")
        for q in range(4): a(f"v_and_or_b32 v{40+q}, v{40+q}, v19, v18")
        a("s_waitcnt lgkmcnt(0)")
        for nt in range(2):
            R = 44 + 4 * nt
            for q in range(4):
                a(f"v_lshlrev_b32 v{52+2*q}, 16, v{R+q}")
                a(f"v_and_b32 v{53+2*q}, 0xffff0000, v{R+q}")
            a(f"v_mfma_f32_16x16x32_bf16 v[{96+4*nt}:{99+4*nt}], v[{R}:{R+3}], v[40:43], v[{96+4*nt}:{99+4*nt}]")
            for q in range(4):
                a(f"v_pk_mul_f32 v[{52+2*q}:{53+2*q}], v[{52+2*q}:{53+2*q}], v[{32+2*q}:{33+2*q}]")
            S = 60 + 4 * nt
            for q in range(4):
                a(f"v_cvt_pk_bf16_f32 v{S+q}, v{52+2*q}, v{53+2*q}")
            a(f"global_store_dwordx4 v26, v[{S}:{S+3}], s[14:15] offset:{1024*nt}" + SC1)
            if nt == 1: a(f"v_add_u32 v26, {87*1024}, v26")
            a("s_nop 0")
            a(f"v_mfma_f32_16x16x32_bf16 v[{104+4*nt}:{107+4*nt}], v[{S}:{S+3}], v[40:43], v[{104+4*nt}:{107+4*nt}]")
    a(f"s_mul_i32 s30, s28, {3*5504}")
    a("s_lshl_b32 s31, s29, 7")
    a("s_add_u32 s30, s30, s31")
    a(f"s_add_u32 s30, s30, {SVP}")
    a("v_lshl_add_u32 v28, v4, 4, s30")
    a("v_add_u32 v29, 5504, v28")
    a("v_add_u32 v30, 5504, v29")
    a("s_nop 7")
    a("s_mov_b64 s[42:43], exec")
    a("s_mov_b64 exec, s[50:51]")
    for nt in range(2):
        a(f"global_store_dwordx4 v28, v[{104+4*nt}:{107+4*nt}], s[14:15] offset:{64*nt}" + SC1)
        a(f"global_store_dwordx4 v30, v[{96+4*nt}:{99+4*nt}], s[14:15] offset:{64*nt}" + SC1)
    a("s_mov_b64 exec, s[52:53]")
    for nt in range(2):
        a(f"global_store_dwordx4 v29, v[{96+4*nt}:{99+4*nt}], s[14:15] offset:{64*nt}" + SC1)
    a("s_mov_b64 exec, s[42:43]")
    a("s_branch K12_UDONE")
    a("K2_W2:   ; LINT-RESET")
    a("s_waitcnt vmcnt(0)")
    for i in range(8): a(f"ds_write_b128 v11, v[{32+4*i}:{35+4*i}] offset:{16*80*i}")
    a("s_lshr_b32 s30, s29, 1")
    a("s_mul_i32 s30, s30, 43")
    a("s_lshl_b32 s31, s28, 2")
    a("s_add_u32 s30, s30, s31")
    a("s_lshl_b32 s30, s30, 12")
    a("s_and_b32 s31, s29, 1")
    a("s_lshl_b32 s31, s31, 11")
    a("s_add_u32 s30, s30, s31")
    a(f"s_add_u32 s30, s30, {W2F}")
    a("v_lshl_add_u32 v26, v1, 4, s30")
    a("s_waitcnt lgkmcnt(0)")
    for ks in range(4):
        if ks == 3:
            a("s_cmp_eq_u32 s28, 10")
            a("s_cbranch_scc1 K12_UDONE")
        for nt in range(2):
            for hf in range(2):
                a(f"ds_read_b64_tr_b16 v[{44+4*nt+2*hf}:{45+4*nt+2*hf}], v12 offset:{(32*ks+16*hf)*80 + 32*nt}")
        a("s_waitcnt lgkmcnt(2)")
        a(f"global_store_dwordx4 v26, v[44:47], s[14:15]" + SC1)
        a("s_waitcnt lgkmcnt(0)")
        a(f"global_store_dwordx4 v26, v[48:51], s[14:15] offset:1024" + SC1)
        a("v_add_u32 v26, 4096, v26")
    a("s_branch K12_UDONE")
    a("K2_TAB:   ; LINT-RESET")
    a("v_lshlrev_b32 v2, 5, v1")
    a(f"v_add_u32 v2, {MODP + 3*2048}, v2")
    a("v_add_u32 v3, 4096, v2")
    for q in range(4):
        for k in range(3):
            r = 112 + 24 * q + 8 * k
            a(f"global_load_dwordx4 v[{r}:{r+3}], v2, s[14:15] offset:{2048*k if k < 2 else 0} sc1" if k < 2 else f"global_load_dwordx4 v[{r}:{r+3}], v3, s[14:15] sc1")
            a(f"global_load_dwordx4 v[{r+4}:{r+7}], v2, s[14:15] offset:{2048*k+16} sc1" if k < 2 else f"global_load_dwordx4 v[{r+4}:{r+7}], v3, s[14:15] offset:16 sc1")
        if q < 3:
            a("v_add_u32 v2, 12288, v2")
            a("v_add_u32 v3, 12288, v3")
    a("s_waitcnt vmcnt(0)")
    for j in range(24):
        a(f"v_add_f32 v{112+j}, v{112+j}, v{136+j}")
        a(f"v_add_f32 v{160+j}, v{160+j}, v{184+j}")
        a(f"v_add_f32 v{112+j}, v{112+j}, v{160+j}")
    for j in range(24): rbf(a, 112 + j, 112 + j)
    for j in range(8):
        a(f"v_mov_b32 v{32+j}, v{112+j}")
        a(f"v_mov_b32 v{40+j}, v{120+j}")
    a("v_lshlrev_b32 v3, 5, v1")
    a(f"v_add_u32 v3, {GBF}, v3")
    a("global_store_dwordx4 v3, v[128:131], s[14:15] sc1")
    a("global_store_dwordx4 v3, v[132:135], s[14:15] offset:16 sc1")
    for j in range(8): a(f"v_add_f32 v{40+j}, 1.0, v{40+j}")
    for j in range(8): rbf(a, 40 + j, 40 + j)
    for j in range(8): a(f"v_mul_f32 v{48+j}, v{40+j}, v{40+j}")
    for j in range(8): a(f"v_mul_f32 v{56+j}, v{40+j}, v{32+j}")
    a("v_lshlrev_b32 v3, 5, v1")
    a(f"v_add_u32 v3, {G2F}, v3")
    a("global_store_dwordx4 v3, v[48:51], s[14:15] sc1")
    a("global_store_dwordx4 v3, v[52:55], s[14:15] offset:16 sc1")
    for k, base in enumerate((40, 48, 56, 32)):
        a(f"v_add_f32 v{100+k}, v{base}, v{base+1}")
        for j in range(2, 8): a(f"v_add_f32 v{100+k}, v{100+k}, v{base+j}")
    a("v_mul_f32 v104, v32, v32")
    for j in range(1, 8): a(f"v_fmac_f32 v104, v{32+j}, v{32+j}")
    a("v_lshl_add_u32 v4, v1, 4, s27")
    a("v_mov_b32 v64, 0x3f803f80\nv_mov_b32 v65, 0x3f803f80\nv_mov_b32 v66, 0x3f803f80\nv_mov_b32 v67, 0x3f803f80")
    a("ds_write_b128 v4, v[64:67]")
    for q in range(4): a(f"v_cvt_pk_bf16_f32 v{68+q}, v{40+2*q}, v{41+2*q}")
    a("ds_write_b128 v4, v[68:71] offset:1024")
    for (src, row) in ((48, 2), (56, 4)):
        for q in range(4): a(f"v_cvt_pk_bf16_f32 v{72+q}, v{src+2*q}, v{src+2*q+1}")
        a(f"ds_write_b128 v4, v[72:75] offset:{1024*row}")
        for q in range(4):
            a(f"v_lshlrev_b32 v{80+2*q}, 16, v{72+q}")
            a(f"v_and_b32 v{81+2*q}, 0xffff0000, v{72+q}")
        for j in range(8): a(f"v_sub_f32 v{80+j}, v{src+j}, v{80+j}")
        for q in range(4): a(f"v_cvt_pk_bf16_f32 v{76+q}, v{80+2*q}, v{81+2*q}")
        a(f"ds_write_b128 v4, v[76:79] offset:{1024*(row+1)}")
    a("s_nop 1")
    for ctl in ("row_shr:1", "row_shr:2", "row_shr:4", "row_shr:8", "row_bcast:15 row_mask:0xa", "row_bcast:31 row_mask:0xc"):
        for r in range(100, 105):
            a(f"v_add_f32_dpp v{r}, v{r}, v{r} {ctl}")
    a(f"v_mov_b32 v5, {SCAL}")
    a("s_mov_b64 s[42:43], exec")
    a("s_mov_b64 exec, 0x8000000000000000") if False else None
    a("v_cmp_eq_u32 vcc, 63, v1")
    a("s_and_saveexec_b64 s[42:43], vcc")
    a("global_store_dwordx4 v5, v[100:103], s[14:15]" + SC1)
    a("global_store_dword v5, v104, s[14:15] offset:16" + SC1)
    a("s_mov_b64 exec, s[42:43]")
    a("v_and_b32 v6, 15, v1")
    a("v_lshrrev_b32 v7, 4, v1")
    a("v_min_u32 v8, 5, v6")
    a("v_lshlrev_b32 v8, 10, v8")
    a("v_lshl_add_u32 v8, v7, 3, v8")
    a("v_add_u32 v8, s27, v8")
    a("v_cmp_gt_u32 vcc, 6, v6")
    a("v_mov_b32 v9, 0")
    a("s_nop 0")
    a("v_cndmask_b32 v9, v9, -1, vcc")
    a(f"s_mov_b32 s30, {W1F + 86*1024}")
    a("v_lshl_add_u32 v10, v1, 4, s30")
    a("s_waitcnt lgkmcnt(0)")
    for ks in range(16):
        R = 16 + 4 * (ks & 1)
        a(f"ds_read_b64 v[{R}:{R+1}], v8 offset:{64*ks}")
        a(f"ds_read_b64 v[{R+2}:{R+3}], v8 offset:{64*ks+32}")
        a("s_waitcnt lgkmcnt(0)")
        for q in range(4): a(f"v_and_b32 v{R+q}, v{R+q}, v9")
        a(f"global_store_dwordx4 v10, v[{R}:{R+3}], s[14:15]" + SC1)
        a(f"v_add_u32 v10, {87*1024}, v10")
    a("s_branch K12_UDONE")
    a("K12_UDONE:   ; LINT-RESET")
    if OPT.get("wpf", "0") == "1":
        a("s_waitcnt vmcnt(0)")
        a(f"v_mov_b32 v2, {WCNT}")
        a("v_mov_b32 v3, 1")
        a("s_mov_b64 exec, 1")
        a("global_atomic_add v2, v3, s[14:15] sc1")
    a("s_branch K2_END")
    a("K2_SIDE_IDLE:   ; LINT-RESET")
    if OPT.get("wpf", "0") == "1":
        a("s_cmp_eq_u32 s25, 2")
        a("s_cbranch_scc0 K2_END")
        a(f"v_mov_b32 v2, {WCNT}")
        a("s_mov_b32 s52, 0x40000")
        a("s_mov_b64 exec, 1")
        a("K12_wpoll:")
        a("s_sleep 8")
        a("global_load_dword v3, v2, s[14:15] sc1")
        a("s_waitcnt vmcnt(0)")
        a("v_readfirstlane_b32 s40, v3")
        a("s_sub_u32 s52, s52, 1")
        a("s_cmp_eq_u32 s52, 0")
        a("s_cbranch_scc1 K12_wpx")
        a("s_cmp_ge_u32 s40, 349")
        a("s_cbranch_scc0 K12_wpoll")
        a("K12_wpx:")
        a("s_mov_b64 exec, -1")
        a("s_lshr_b32 s30, s2, 3")
        a("v_lshlrev_b32 v4, 7, v1")
        for (base, size, reg) in ((W1F, 87 * 16384, 44), (W2F, 8 * 43 * 4096, 48)):
            a(f"s_add_u32 s{reg}, s14, {base}")
            a(f"s_addc_u32 s{reg+1}, s15, 0")
            a(f"s_mov_b32 s{reg+2}, {size}")
            a(f"s_mov_b32 s{reg+3}, 0x20000")
            per = -(-size // 32 // 128) * 128
            a(f"s_mul_i32 s31, s30, {per}")
            n = -(-per // 8192)
            for k in range(n):
                a(f"buffer_load_dword v{8 + k + (8 if reg == 48 else 0)}, v4, s[{reg}:{reg+3}], s31 offen")
                if k + 1 < n: a("s_add_u32 s31, s31, 8192")
    a("K2_END:   ; LINT-RESET")
    stamp_store(a, 0, 14, 24)
    a("K2_EXIT:")
    a.end_kernel(name, 208, 100)

G2T = 65536
SVT = G2T + 2048
STT = SVT + 3072
COF = STT + 2048
RED = COF + 4096
P_W = 64 * 272
K3_LDS = RED + 4 * P_W
FLAGS = 0x0638000

def k3(a):
    name = "k3_kernel"
    a.begin_kernel(name, 256, 256, K3_LDS)
    a("s_cmp_ge_u32 s2, 256")
    a("s_cbranch_scc1 K3_EXIT")
    stamp(a, 0)
    a("s_load_dwordx2 s[14:15], s[0:1], 128")
    a("s_load_dwordx2 s[12:13], s[0:1], 72")
    a("s_load_dwordx2 s[16:17], s[0:1], 88")
    a("s_load_dwordx2 s[18:19], s[0:1], 112")
    wave_id(a, 24, 1)
    a("v_and_b32 v1, 63, v0")
    a("s_and_b32 s25, s2, 7")
    a("s_lshr_b32 s26, s2, 3")
    a("s_lshr_b32 s27, s26, 3")
    a("s_lshl_b32 s25, s25, 2")
    a("s_add_u32 s25, s25, s27")
    a("s_and_b32 s26, s26, 7")
    a("s_and_b32 s22, s25, 3")
    a("s_lshl_b32 s23, s22, 1")
    a("s_add_u32 s23, s23, s26")
    a("s_lshl_b32 s23, s23, 1")
    a("s_and_b32 s23, s23, 15")
    a("s_mul_i32 s22, s22, 3")
    a("s_add_u32 s22, s22, s26")
    a("s_sub_u32 s21, s22, 11")
    a("s_cmp_ge_u32 s22, 11")
    a("s_cselect_b32 s22, s21, s22")
    if OPT.get('rot', '0') != '1':
        a("s_mov_b32 s23, 0")
        a("s_mov_b32 s22, 0")
    a("s_mul_i32 s27, s26, 11")
    a("s_min_u32 s27, s27, 76")
    a("s_cmp_lt_u32 s26, 6")
    a("s_cselect_b32 s28, 11, 10")
    a("s_mul_i32 s29, s24, 3")
    for i in range(3):
        a(f"s_add_u32 s30, s29, {i}")
        a("s_add_u32 s31, s30, s27")
        a("s_cmp_lt_u32 s30, s28")
        a(f"s_cselect_b32 s{32+i}, s31, 86")
    a("v_lshrrev_b32 v10, 3, v1")
    a("v_and_b32 v11, 6, v10")
    a("v_and_b32 v12, 7, v1")
    a("v_xor_b32 v11, v11, v12")
    a("v_lshlrev_b32 v11, 4, v11")
    a("v_lshl_add_u32 v11, v10, 7, v11")
    a("s_lshl_b32 s41, s24, 10")
    a("s_lshl_b32 s42, s25, 16")
    a("s_add_u32 s41, s41, s42")
    a(f"s_add_u32 s41, s41, {X2T}")
    a("s_lshl_b32 s42, s24, 10")
    a("v_lshlrev_b32 v2, 3, v0")
    a(f"v_add_u32 v2, {G2F if FUSED else MODF + 4*2048}, v2")
    a("v_lshlrev_b32 v13, 4, v1")
    for i in range(3):
        a(f"s_lshl_b32 s30, s{32+i}, 10")
        a(f"v_add_u32 v{126+i}, s30, v13")
    a("s_mov_b32 s47, s23")
    a("s_lshl_b32 s46, s23, 12")
    a("v_lshrrev_b32 v3, 4, v1")
    a("v_and_b32 v6, 15, v1")
    a("v_mov_b32 v7, s32")
    a("v_mov_b32 v8, s33")
    a("v_mov_b32 v9, s34")
    a("v_cmp_eq_u32 vcc, 1, v3")
    a("v_cmp_le_u32 s[52:53], 2, v3")
    a("s_nop 0")
    a("v_cndmask_b32 v7, v7, v8, vcc")
    a("v_cndmask_b32 v7, v7, v9, s[52:53]")
    a("v_min_u32 v7, 85, v7")
    a("v_lshl_add_u32 v7, v7, 4, v6")
    a("v_lshlrev_b32 v8, 2, v7")
    a(f"v_add_u32 v8, {SVP}, v8")
    a("v_lshlrev_b32 v9, 1, v7")
    a("s_waitcnt lgkmcnt(0)")
    wsfix(a, 14)
    a.srd(8, 14, WS_USED)
    a("global_load_dwordx2 v[4:5], v2, s[14:15]")
    for j in range(16):
        a("s_mov_b32 m0, s42")
        a("s_add_u32 s45, s41, s46")
        a("s_add_u32 s42, s42, 4096")
        a(f"buffer_load_dwordx4 v11, s[8:11], s45 offen lds")
        a("s_add_u32 s46, s46, 4096")
        a("s_and_b32 s46, s46, 0xffff")
    def wload(ks):
        out = []
        for i in range(3):
            r = (ks * 3 + i) * 4
            pre = f"s_mul_i32 s44, s47, {87*1024}\ns_add_u32 s44, s44, {W1F}\n" if i == 0 else ""
            post = "\ns_add_u32 s47, s47, 1\ns_and_b32 s47, s47, 15" if i == 2 else ""
            out.append(pre + f"buffer_load_dwordx4 a[{r}:{r+3}], v{126+i}, s[8:11], s44 offen" + post)
        return out
    PRE = min(int(OPT.get('pre', '4')), int(OPT.get('deep', '5')))
    for ks in range(PRE):
        for x in wload(ks): a(x)
    a(f"s_mov_b32 s30, {SCAL}")
    a("s_load_dwordx4 s[36:39], s[14:15], s30")
    a(f"s_mov_b32 s31, {SCAL+16}")
    a("s_load_dword s40, s[14:15], s31")
    a("v_bfe_u32 v14, v1, 2, 2")
    a("v_lshl_add_u32 v14, v3, 2, v14")
    a("v_and_b32 v15, 6, v14")
    a("v_lshrrev_b32 v15, 1, v15")
    a("v_and_b32 v29, 3, v1")
    a("v_lshlrev_b32 v30, 7, v14")
    a("v_lshl_add_u32 v30, v29, 3, v30")
    for k in range(4):
        a(f"s_add_u32 s30, s24, {k}")
        a(f"s_and_b32 s{48+k}, s30, 3")
        a(f"v_xor_b32 v31, s{48+k}, v15")
        a(f"v_lshl_add_u32 v{20+k}, v31, 5, v30")
    a("v_xor_b32 v31, s24, v15")
    a("v_lshl_add_u32 v26, v31, 5, v30")
    a("s_lshl_b32 s30, s26, 1")
    a("s_sub_u32 s30, s30, s23")
    a("s_add_u32 s31, s30, 1")
    a("s_and_b32 s30, s30, 15")
    a("s_and_b32 s31, s31, 15")
    a("s_lshl_b32 s30, s30, 12")
    a("s_lshl_b32 s31, s31, 12")
    a("v_add_u32 v125, s31, v26")
    a("v_add_u32 v26, s30, v26")
    a(f"v_lshlrev_b32 v24, 4, v3")
    a(f"v_add_u32 v24, {G2T}, v24")
    ACC = 160
    for r in range(ACC, ACC + 48): a(f"v_mov_b32 v{r}, 0")
    for r in range(96, 108): a(f"v_mov_b32 v{r}, 0")
    a(f"s_waitcnt vmcnt({16 + 3*PRE})")
    if not FUSED:
        a("v_add_f32 v4, 1.0, v4")
        a("v_add_f32 v5, 1.0, v5")
        rbf(a, 4, 4); rbf(a, 5, 5)
        a("v_mul_f32 v4, v4, v4")
        a("v_mul_f32 v5, v5, v5")
    a("v_lshlrev_b32 v2, 3, v0")
    a("s_lshl_b32 s30, s23, 7")
    a("v_subrev_u32 v2, s30, v2")
    a("v_and_b32 v2, 2047, v2")
    a(f"v_add_u32 v2, {G2T}, v2")
    a("ds_write_b64 v2, v[4:5]")
    a(f"s_waitcnt vmcnt({3*PRE}) lgkmcnt(0)")
    stamp(a, 1)
    a("s_barrier")
    XF = [32, 48]
    def xreads(ks):
        b = XF[ks & 1]
        out = []
        for k in range(4):
            for hf in range(2):
                out.append(f"ds_read_b64_tr_b16 v[{b+4*k+2*hf}:{b+4*k+2*hf+1}], v{20+k} offset:{4096*ks + 2048*hf}")
        return out
    STATS = OPT.get('stats', 'in')
    GQ = [64, 72]
    if STATS == 'in':
        for ks in range(PRE, int(OPT.get('deep', '5'))):
            for x in wload(ks): a(x)
    def greads(ks):
        g = GQ[ks & 1]
        return [f"ds_read_b128 v[{g}:{g+3}], v24 offset:{128*ks}", f"ds_read_b128 v[{g+4}:{g+7}], v24 offset:{128*ks+64}"]
    for x in xreads(0) + greads(0): a(x)
    DEEP = int(OPT.get('deep', '5'))
    a("s_mul_i32 s58, s24, 11")
    a("s_cmp_eq_u32 s24, 3")
    a("s_cselect_b32 s58, 32, s58")
    a("s_mul_i32 s59, s26, 43")
    a("s_add_u32 s59, s59, s58")
    a("s_lshl_b32 s59, s59, 12")
    a(f"s_add_u32 s59, s59, {W2F}")
    a.srd(60, 14, WS_USED)
    a("s_cmp_eq_u32 s24, 3")
    a("s_cselect_b32 s65, 0, s10")
    a("s_mov_b32 s64, s22")
    drip = []
    for j in range(11):
        for t in range(4):
            r = (j * 4 + t) * 4
            pre = "s_lshl_b32 s66, s64, 12\ns_add_u32 s66, s66, s59\ns_cmp_eq_u32 s64, 0\ns_cselect_b32 s62, s65, s10\n" if t == 0 else ""
            post = "\ns_add_u32 s64, s64, 1\ns_cmp_eq_u32 s64, 11\ns_cselect_b32 s64, 0, s64" if t == 3 else ""
            drip.append(pre + f"buffer_load_dwordx4 a[{r}:{r+3}], v13, s[60:63], s66 offen offset:{1024*t}" + post)
    a("s_lshl_b32 s30, s26, 8")
    a(f"s_add_u32 s30, s30, {GBF if FUSED else MODF + 5*2048}")
    a("v_lshl_add_u32 v27, v3, 4, s30")
    a("s_lshl_b32 s30, s26, 7")
    a("v_lshl_add_u32 v28, v3, 3, s30")
    gbl = []
    for dt in range(4):
        gbl.append(f"global_load_dwordx4 v[{208+4*dt}:{211+4*dt}], v27, s[14:15] offset:{64*dt}")
    for dt in range(4):
        gbl.append(f"global_load_dwordx2 v[{224+2*dt}:{225+2*dt}], v28, s[16:17] offset:{32*dt}")
    issued = DEEP
    vm_after = []
    seq = [("W", ks) for ks in range(DEEP) for _ in range(3)]
    def vmwait(tag):
        last = max(i for i, t in enumerate(seq) if t == tag)
        return len(seq) - 1 - last
    sm_done = False
    smalls = []
    for kq in range(4):
        for v in range(3):
            smalls.append(f"global_load_dword v{112+kq*3+v}, v8, s[14:15]")
            if not (kq == 3 and v == 2): smalls.append("v_add_u32 v8, 5504, v8")
    smalls.append("global_load_ushort v124, v9, s[12:13]")
    for ks in range(16):
        b = XF[ks & 1]
        a(f"s_waitcnt vmcnt({vmwait(('W', ks))}) lgkmcnt(0)")
        mf = []
        for i in range(3):
            r = (ks * 3 + i) * 4
            for k in range(4):
                d = ACC + (i * 4 + k) * 4
                mf.append(f"v_mfma_f32_16x16x32_bf16 v[{d}:{d+3}], a[{r}:{r+3}], v[{b+4*k}:{b+4*k+3}], v[{d}:{d+3}]")
        va = []
        if ks + 1 < 16: va += xreads(ks + 1) + greads(ks + 1)
        if issued < 16:
            va += wload(issued); seq += [("W", issued)] * 3; issued += 1
        elif not sm_done:
            sm_done = True
            va += smalls + gbl; seq += [("S", 0)] * 13 + [("G", 0)] * 8
        else:
            for _ in range(3):
                va.append(drip.pop(0)); seq.append(("W2", 0))
        g = GQ[ks & 1]
        for q in range(4):
            va.append(f"v_lshlrev_b32 v{80+2*q}, 16, v{b+q}")
            va.append(f"v_and_b32 v{81+2*q}, 0xffff0000, v{b+q}")
        for q in range(8):
            va.append(f"v_mul_f32 v{80+q}, v{80+q}, v{80+q}")
        for q in range(8):
            va.append(f"v_add_f32 v{96+(q&3)}, v{96+(q&3)}, v{80+q}")
            va.append(f"v_fmac_f32 v{100+q}, v{80+q}, v{g+q}")
        per = -(-len(va) // 12)
        vi = 0
        for m in mf:
            a(m)
            for _ in range(per):
                if vi < len(va): a(va[vi]); vi += 1
    stamp(a, 2)
    KEEP = int(OPT.get('keep', '0'))
    def dr(n=1, final=False):
        for _ in range(n):
            if drip and (final or len(drip) > KEEP): a(drip.pop(0))
    a(f"s_waitcnt vmcnt({vmwait(('S', 0))})")
    dr(1)
    for v in range(3):
        a(f"v_add_f32 v{112+v}, v{112+v}, v{115+v}")
        a(f"v_add_f32 v{118+v}, v{118+v}, v{121+v}")
        a(f"v_add_f32 v{112+v}, v{112+v}, v{118+v}")
    a("v_lshlrev_b32 v124, 16, v124")
    dr(2)
    a("s_mul_i32 s30, s24, 768")
    a(f"s_add_u32 s30, s30, {SVT}")
    a("v_lshlrev_b32 v2, 8, v3")
    a("v_lshl_add_u32 v2, v6, 2, v2")
    a("v_add_u32 v2, s30, v2")
    a("v_cmp_gt_u32 vcc, 48, v1")
    a("s_and_saveexec_b64 s[42:43], vcc")
    a("ds_write_b32 v2, v112")
    a("ds_write_b32 v2, v114 offset:64")
    a("ds_write_b32 v2, v113 offset:128")
    a("ds_write_b32 v2, v124 offset:192")
    a("s_mov_b64 exec, s[42:43]")
    a("v_pk_add_f32 v[96:97], v[96:97], v[98:99]")
    a("v_add_f32 v96, v96, v97")
    a("v_pk_add_f32 v[100:101], v[100:101], v[102:103]")
    a("v_pk_add_f32 v[104:105], v[104:105], v[106:107]")
    a("v_pk_add_f32 v[100:101], v[100:101], v[104:105]")
    a("v_add_f32 v97, v100, v101")
    a("v_mov_b32 v98, v96")
    a("v_mov_b32 v99, v97")
    a("s_nop 0")
    a("v_permlane16_swap_b32 v96, v98")
    a("v_permlane16_swap_b32 v97, v99")
    dr(2)
    a("v_add_f32 v96, v96, v98")
    a("v_add_f32 v97, v97, v99")
    a("v_mov_b32 v98, v96")
    a("v_mov_b32 v99, v97")
    a("s_nop 0")
    a("v_permlane32_swap_b32 v96, v98")
    a("v_permlane32_swap_b32 v97, v99")
    a("s_lshl_b32 s30, s24, 9")
    a(f"s_add_u32 s30, s30, {STT}")
    a("v_add_f32 v96, v96, v98")
    a("v_add_f32 v97, v97, v99")
    a("v_lshl_add_u32 v2, v6, 5, s30")
    a("ds_write_b64 v2, v[96:97] offset:24")
    a("s_cmp_eq_u32 s24, 3")
    a("s_cbranch_scc0 K3_nolin")
    a("v_cmp_eq_u32 s[52:53], 0, v3")
    a("v_cmp_eq_u32 s[54:55], 1, v3")
    for k in range(4):
        a(f"s_lshl_b32 s30, s{48+k}, 9")
        a(f"s_add_u32 s30, s30, {STT}")
        a(f"v_lshl_add_u32 v{60+k}, v6, 5, s30")
    a("s_mov_b64 s[42:43], exec")
    a("s_mov_b64 exec, s[52:53]")
    for k in range(4):
        d = ACC + (8 + k) * 4
        a(f"ds_write_b128 v{60+k}, v[{d}:{d+3}]")
    a("s_mov_b64 exec, s[54:55]")
    for k in range(4):
        d = ACC + (8 + k) * 4
        a(f"ds_write_b64 v{60+k}, v[{d}:{d+1}] offset:16")
    a("s_mov_b64 exec, s[42:43]")
    a("K3_nolin:")
    dr(2)
    a("s_waitcnt lgkmcnt(0)")
    a("s_barrier")
    dr(2)
    a("v_lshlrev_b32 v2, 5, v1")
    a(f"v_add_u32 v2, {STT}, v2")
    a("ds_read_b128 v[32:35], v2")
    a("ds_read_b128 v[36:39], v2 offset:16")
    a("s_mul_i32 s30, s24, 768")
    a(f"s_add_u32 s30, s30, {SVT}")
    a("v_lshl_add_u32 v25, v3, 4, s30")
    a("s_mov_b32 s56, 0xbdd2d3e2")
    a("s_mov_b32 s57, 0xc0135761")
    a("s_waitcnt lgkmcnt(0)")
    a("v_add_f32 v34, v34, v35")
    a("v_add_f32 v36, v36, v37")
    a("v_mul_f32 v32, 0x3b000000, v32")
    a("v_mul_f32 v38, 0x3b000000, v38")
    a("v_fma_f32 v38, -v32, v32, v38")
    a("v_max_f32 v38, 0, v38")
    a("v_cvt_pk_bf16_f32 v40, v32, v38")
    a("v_lshlrev_b32 v32, 16, v40")
    a("v_and_b32 v38, 0xffff0000, v40")
    a("v_add_f32 v38, 0x3727c5ac, v38")
    rbf(a, 38, 38)
    a("v_sqrt_f32 v38, v38")
    a("v_fma_f32 v33, -v32, s36, v33")
    dr(2)
    rbf(a, 38, 38)
    a("v_rcp_f32 v38, v38")
    a("v_mul_f32 v40, v32, v32")
    a("v_add_f32 v41, v32, v32")
    a("v_fma_f32 v39, -v41, v34, v39")
    a("v_fma_f32 v39, v40, s37, v39")
    a("v_fma_f32 v36, -v32, s38, v36")
    a("v_fma_f32 v33, v33, v38, s39")
    a("v_add_f32 v36, v36, v36")
    a("v_fma_f32 v39, v39, v38, v36")
    a("v_mul_f32 v33, 0x3b000000, v33")
    dr(2)
    a("v_fma_f32 v39, v39, v38, s40")
    a("v_mul_f32 v39, 0x3b000000, v39")
    a("v_fma_f32 v39, -v33, v33, v39")
    a("v_max_f32 v39, 0, v39")
    a("v_cvt_pk_bf16_f32 v40, v33, v39")
    a("v_lshlrev_b32 v33, 16, v40")
    a("v_and_b32 v39, 0xffff0000, v40")
    a("v_add_f32 v39, 0x3727c5ac, v39")
    rbf(a, 39, 39)
    a("v_sqrt_f32 v39, v39")
    a("s_nop 0")
    rbf(a, 39, 39)
    a("v_rcp_f32 v47, v39")
    a("s_lshl_b32 s30, s24, 10")
    a(f"s_add_u32 s30, s30, {COF}")
    a("v_mul_f32 v44, v47, v38")
    a("v_mul_f32 v46, -v47, v33")
    a("v_mul_f32 v45, -v44, v32")
    a("v_lshl_add_u32 v2, v1, 4, s30")
    a("ds_write_b128 v2, v[44:47]")
    a("s_waitcnt lgkmcnt(0)")
    for k in range(4):
        a(f"s_lshl_b32 s31, s{48+k}, 8")
        a("s_add_u32 s31, s31, s30")
        a(f"v_lshl_add_u32 v2, v6, 4, s31")
        a(f"ds_read_b128 v[{48+4*k}:{51+4*k}], v2")
    dr(2)
    stamp(a, 3)
    for i in range(3):
        if i > 0: dr(4)
        a(f"s_cmp_eq_u32 s{32+i}, 86")
        a(f"s_cbranch_scc1 K3_skip{i}")
        for st in range(4):
            a(f"ds_read_b128 v[{64+4*st}:{67+4*st}], v25 offset:{256*i + 64*st}")
        a(f"s_add_u32 s30, s29, {i}")
        a("s_lshr_b32 s31, s30, 1")
        a("s_lshl_b32 s31, s31, 12")
        a("s_and_b32 s30, s30, 1")
        a("s_lshl_b32 s30, s30, 3")
        a("s_add_u32 s30, s30, s31")
        a(f"s_add_u32 s30, s30, {RED}")
        a("s_waitcnt lgkmcnt(0)")
        A_ = ACC + i * 16
        for k in range(4):
            c = 48 + 4 * k
            for p in range(2):
                t = 96 + 4 * k + 2 * p
                a(f"v_pk_fma_f32 v[{t}:{t+1}], v[{64+2*p}:{65+2*p}], v[{c}:{c+1}], v[{76+2*p}:{77+2*p}] op_sel:[0,1,0] op_sel_hi:[1,1,1]")
        if i == 0: dr(2)
        for k in range(4):
            c = 48 + 4 * k
            for p in range(2):
                t = 96 + 4 * k + 2 * p
                a(f"v_pk_fma_f32 v[{t}:{t+1}], v[{68+2*p}:{69+2*p}], v[{c+2}:{c+3}], v[{t}:{t+1}] op_sel_hi:[1,0,1]")
        if i == 0: dr(2)
        for k in range(4):
            c = 48 + 4 * k
            for p in range(2):
                t = 96 + 4 * k + 2 * p
                a(f"v_pk_fma_f32 v[{t}:{t+1}], v[{72+2*p}:{73+2*p}], v[{c+2}:{c+3}], v[{t}:{t+1}] op_sel:[0,1,0] op_sel_hi:[1,1,1]")
        if i == 0: dr(2)
        for k in range(4):
            c = 48 + 4 * k
            for p in range(2):
                x = A_ + 4 * k + 2 * p; t = 96 + 4 * k + 2 * p
                a(f"v_pk_fma_f32 v[{x}:{x+1}], v[{x}:{x+1}], v[{c}:{c+1}], v[{t}:{t+1}] op_sel_hi:[1,0,1]")
        if i == 0: dr(2)
        for j in range(8):
            x = A_ + 2 * j; t = 96 + 2 * j
            a(f"v_pk_mul_f32 v[{t}:{t+1}], v[{x}:{x+1}], v[{x}:{x+1}]")
        for j in range(8):
            t = 96 + 2 * j
            a(f"v_pk_fma_f32 v[{t}:{t+1}], v[{t}:{t+1}], s[56:57], s[56:57] op_sel:[0,0,1] op_sel_hi:[1,0,1]")
        if i == 0: dr(2)
        for j in range(8):
            x = A_ + 2 * j; t = 96 + 2 * j
            a(f"v_pk_mul_f32 v[{t}:{t+1}], v[{t}:{t+1}], v[{x}:{x+1}]")
        for j in range(16): a(f"v_exp_f32 v{96+j}, v{96+j}")
        if i == 0: dr(3)
        for j in range(8):
            t = 96 + 2 * j
            a(f"v_pk_add_f32 v[{t}:{t+1}], v[{t}:{t+1}], 1.0 op_sel_hi:[1,0]")
        for j in range(16): a(f"v_rcp_f32 v{96+j}, v{96+j}")
        if i == 0: dr(3)
        for j in range(8):
            x = A_ + 2 * j; t = 96 + 2 * j
            a(f"v_pk_mul_f32 v[{x}:{x+1}], v[{x}:{x+1}], v[{t}:{t+1}]")
        for k in range(4):
            a(f"v_cvt_pk_bf16_f32 v{112+2*k}, v{A_+4*k}, v{A_+4*k+1}")
            a(f"v_cvt_pk_bf16_f32 v{113+2*k}, v{A_+4*k+2}, v{A_+4*k+3}")
        if i == 1:
            a("s_cmp_eq_u32 s29, 9")
            a("s_cbranch_scc0 K3_paired1")
            a("s_lshr_b32 s31, s26, 1")
            a("s_add_u32 s31, s31, 40")
            a("s_mul_i32 s43, s25, 43")
            a("s_add_u32 s31, s31, s43")
            a("s_lshl_b32 s31, s31, 12")
            a("s_and_b32 s43, s26, 1")
            a("s_lshl_b32 s43, s43, 3")
            a("s_add_u32 s31, s31, s43")
            a(f"s_add_u32 s31, s31, {HF}")
            for k in range(4):
                a(f"s_lshl_b32 s43, s{48+k}, 10")
                a("s_add_u32 s43, s43, s31")
                a(f"buffer_store_dwordx2 v[{112+2*k}:{113+2*k}], v13, s[8:11], s43 offen sc1")
            a("s_branch K3_skip1")
            a("K3_paired1:")
        for k in range(4):
            a(f"s_lshl_b32 s31, s{48+k}, 10")
            a("s_add_u32 s31, s31, s30")
            a(f"v_add_u32 v2, s31, v13")
            a(f"ds_write_b64 v2, v[{112+2*k}:{113+2*k}]")
        a(f"K3_skip{i}:   ; LINT-RESET")
    dr(99)
    a("s_waitcnt lgkmcnt(0)")
    a("s_barrier")
    stamp(a, 4)
    a("s_mul_i32 s30, s24, 5120")
    a("v_add_u32 v2, s30, v13")
    a(f"v_add_u32 v2, {RED}, v2")
    for q in range(5): a(f"ds_read_b128 v[{32+4*q}:{35+4*q}], v2 offset:{1024*q}")
    a("s_mul_i32 s31, s25, 43")
    a("s_mul_i32 s43, s26, 5")
    a("s_add_u32 s31, s31, s43")
    a("s_lshl_b32 s31, s31, 12")
    a("s_add_u32 s31, s31, s30")
    a(f"s_add_u32 s31, s31, {HF}")
    for q in range(5):
        a(f"s_waitcnt lgkmcnt({4-q})")
        if q == 4: a("s_add_u32 s31, s31, 4096")
        a(f"buffer_store_dwordx4 v[{32+4*q}:{35+4*q}], v13, s[8:11], s31 offen offset:{1024*(q&3)} sc1")
    for r in range(176, 240): a(f"v_accvgpr_write_b32 a{r}, 0")
    a(f"s_waitcnt vmcnt(0)")
    stamp(a, 5)
    a("s_barrier")
    a("s_cmp_lg_u32 s24, 0")
    a("s_cbranch_scc1 K3_wait")
    a("s_lshl_b32 s30, s25, 7")
    a(f"s_add_u32 s30, s30, {FLAGS}")
    a("v_mov_b32 v2, s30")
    a("v_mov_b32 v4, 1")
    a("s_mov_b64 s[42:43], exec")
    a("s_mov_b64 exec, 1")
    a("global_atomic_add v4, v2, v4, s[14:15] sc0 sc1")
    a("s_waitcnt vmcnt(0)")
    a("v_readfirstlane_b32 s30, v4")
    a("s_cmp_eq_u32 s30, 7")
    a("s_cbranch_scc1 K3_pollx")
    a("s_mov_b32 s31, 0x100000")
    a("K3_poll:")
    a("buffer_load_dword v5, v2, s[8:11], 0 offen sc1")
    a("s_waitcnt vmcnt(0)")
    a("v_readfirstlane_b32 s30, v5")
    a("s_sub_u32 s31, s31, 1")
    a("s_cmp_eq_u32 s31, 0")
    a("s_cbranch_scc1 K3_pollx")
    a("s_cmp_ge_u32 s30, 8")
    a("s_cbranch_scc0 K3_poll")
    a("K3_pollx:")
    a("s_mov_b64 exec, s[42:43]")
    a("K3_wait:   ; LINT-RESET")
    a("s_barrier")
    stamp(a, 6)
    a("s_mul_i32 s57, s25, 43")
    a("s_add_u32 s57, s57, s58")
    a("s_lshl_b32 s57, s57, 12")
    a(f"s_add_u32 s57, s57, {HF}")
    a("s_mov_b32 s64, s22")
    late = list(drip); drip.clear()
    hl = []
    for j in range(11):
        for t in range(4):
            r = 32 + (j * 4 + t) * 4
            pre = "s_lshl_b32 s56, s64, 12\ns_add_u32 s56, s56, s57\n" if t == 0 else ""
            post = "\ns_add_u32 s64, s64, 1\ns_cmp_eq_u32 s64, 11\ns_cselect_b32 s64, 0, s64" if t == 3 else ""
            hl.append((("H", j), pre + f"buffer_load_dwordx4 v[{r}:{r+3}], v13, s[8:11], s56 offen offset:{1024*t}" + HLD + post))
    pos = 20
    lt_ = [(("L", 0), x) for x in late]
    hl = hl[:pos] + lt_ + hl[pos:]
    HD = int(OPT.get('hd', '16'))
    qseq = []
    def hissue():
        tag, x = hl.pop(0); a(x); qseq.append(tag)
    for _ in range(HD): hissue()
    for dt in range(4):
        a(f"ds_read_b64_tr_b16 v[{16+2*dt}:{17+2*dt}], v{26 if dt < 2 else 125} offset:{2048*(dt&1)}")
    for j in range(11):
        need = [i for i, t in enumerate(qseq) if t == ("H", j)]
        assert len(need) == 4
        last = max(need)
        if late and j >= 9: last = max(last, max(i for i, t in enumerate(qseq) if t == ("L", 0)))
        a(f"s_waitcnt vmcnt({len(qseq) - 1 - last})")
        q = 0
        for dt in range(4):
            for lt in range(4):
                d = 176 + (dt * 4 + lt) * 4
                ar = (j * 4 + dt) * 4
                br = 32 + (j * 4 + lt) * 4
                a(f"v_mfma_f32_16x16x32_bf16 a[{d}:{d+3}], a[{ar}:{ar+3}], v[{br}:{br+3}], a[{d}:{d+3}]")
                if q % 4 == 0 and hl: hissue()
                q += 1
    stamp(a, 7)
    a("v_mul_u32_u24 v5, 272, v6")
    a("v_lshl_add_u32 v5, v3, 4, v5")
    a(f"s_mul_i32 s30, s24, {P_W}")
    a(f"s_add_u32 s30, s30, {RED}")
    a("v_add_u32 v7, s30, v5")
    a("s_nop 4")
    for dt in range(4):
        for lt in range(4):
            d = 176 + (dt * 4 + lt) * 4
            a(f"ds_write_b128 v7, a[{d}:{d+3}] offset:{lt*16*272 + dt*64}")
    a(f"s_mul_i32 s30, s24, {16*272}")
    a(f"s_add_u32 s30, s30, {RED}")
    a("v_add_u32 v7, s30, v5")
    a("s_waitcnt lgkmcnt(0)")
    a("s_barrier")
    stamp(a, 8)
    for dt in range(4):
        for w in range(4):
            r = 32 + (dt * 4 + w) * 4
            a(f"ds_read_b128 v[{r}:{r+3}], v7 offset:{w*P_W + dt*64}")
    a.srd(40, 18, 2048 * 512 * 2)
    a("s_lshl_b32 s30, s25, 16")
    a("s_lshl_b32 s31, s24, 14")
    a("s_add_u32 s30, s30, s31")
    a("s_lshl_b32 s31, s26, 7")
    a("s_add_u32 s30, s30, s31")
    a("v_lshlrev_b32 v9, 10, v6")
    a("v_lshl_add_u32 v9, v3, 3, v9")
    a("v_add_u32 v9, s30, v9")
    for dt in range(4):
        a(f"s_waitcnt lgkmcnt({4*(3-dt)})")
        r = 32 + dt * 16
        for p in range(2):
            a(f"v_pk_add_f32 v[{r+2*p}:{r+2*p+1}], v[{r+2*p}:{r+2*p+1}], v[{r+4+2*p}:{r+5+2*p}]")
            a(f"v_pk_add_f32 v[{r+8+2*p}:{r+9+2*p}], v[{r+8+2*p}:{r+9+2*p}], v[{r+12+2*p}:{r+13+2*p}]")
        for p in range(2):
            a(f"v_pk_add_f32 v[{r+2*p}:{r+2*p+1}], v[{r+2*p}:{r+2*p+1}], v[{r+8+2*p}:{r+9+2*p}]")
        for q in range(2):
            a(f"v_lshlrev_b32 v{120+2*q}, 16, v{224+2*dt+q}")
            a(f"v_and_b32 v{121+2*q}, 0xffff0000, v{224+2*dt+q}")
            a(f"v_lshlrev_b32 v{124+2*q}, 16, v{16+2*dt+q}")
            a(f"v_and_b32 v{125+2*q}, 0xffff0000, v{16+2*dt+q}")
        for p in range(2):
            a(f"v_pk_add_f32 v[{r+2*p}:{r+2*p+1}], v[{r+2*p}:{r+2*p+1}], v[{120+2*p}:{121+2*p}]")
        for p in range(2):
            a(f"v_pk_fma_f32 v[{r+2*p}:{r+2*p+1}], v[{r+2*p}:{r+2*p+1}], v[{208+4*dt+2*p}:{209+4*dt+2*p}], v[{124+2*p}:{125+2*p}]")
        a(f"v_cvt_pk_bf16_f32 v{24+2*dt}, v{r}, v{r+1}")
        a(f"v_cvt_pk_bf16_f32 v{25+2*dt}, v{r+2}, v{r+3}")
        a(f"buffer_store_dwordx2 v[{24+2*dt}:{25+2*dt}], v9, s[40:43], 0 offen offset:{32*dt}")
    a("K3_END:   ; LINT-RESET")
    stamp_store(a, KID3, 14, 24)
    a("K3_EXIT:")
    a.end_kernel(name, 256 + 240, 100, accum=256)


W8_G2T = 65536
W8_SVT = W8_G2T + 2048
W8_STT = W8_SVT + 3072
W8_COF = W8_STT + 4096
W8_RED = W8_COF + 8192
W8_STG = W8_RED + 49152
W8_LDS = W8_RED + 4 * P_W
assert W8_STG + 20480 <= W8_LDS
RING = 32768

def k3w(a):
    name = "k3_kernel"
    a.begin_kernel(name, 256, 512, W8_LDS)
    a("s_cmp_ge_u32 s2, 256")
    a("s_cbranch_scc1 K3_EXIT")
    stamp(a, 0)
    a("s_load_dwordx2 s[14:15], s[0:1], 128")
    a("s_load_dwordx2 s[12:13], s[0:1], 72")
    a("s_load_dwordx2 s[16:17], s[0:1], 88")
    a("s_load_dwordx2 s[18:19], s[0:1], 112")
    wave_id(a, 24, 1)
    a("v_and_b32 v1, 63, v0")
    a("s_and_b32 s20, s24, 3")
    a("s_lshr_b32 s21, s24, 2")
    a("s_and_b32 s25, s2, 7")
    a("s_lshr_b32 s26, s2, 3")
    a("s_lshr_b32 s27, s26, 3")
    a("s_lshl_b32 s25, s25, 2")
    a("s_add_u32 s25, s25, s27")
    a("s_and_b32 s26, s26, 7")
    a("s_mul_i32 s27, s26, 11")
    a("s_min_u32 s27, s27, 76")
    a("s_cmp_lt_u32 s26, 6")
    a("s_cselect_b32 s28, 11, 10")
    a("s_mul_i32 s29, s20, 3")
    for i in range(3):
        a(f"s_add_u32 s30, s29, {i}")
        a("s_add_u32 s31, s30, s27")
        a("s_cmp_lt_u32 s30, s28")
        a(f"s_cselect_b32 s{32+i}, s31, 86")
    a("v_lshrrev_b32 v10, 3, v1")
    a("v_and_b32 v11, 6, v10")
    a("v_and_b32 v12, 7, v1")
    a("v_xor_b32 v11, v11, v12")
    a("v_lshlrev_b32 v11, 4, v11")
    a("v_lshl_add_u32 v11, v10, 7, v11")
    a("s_lshl_b32 s42, s24, 10")
    a("s_lshl_b32 s41, s25, 16")
    a("s_add_u32 s41, s41, s42")
    a(f"s_add_u32 s41, s41, {X2T}")
    a("v_lshlrev_b32 v2, 2, v0")
    a(f"v_add_u32 v4, {G2F}, v2")
    a("v_lshlrev_b32 v13, 4, v1")
    for i in range(3):
        a(f"s_lshl_b32 s30, s{32+i}, 10")
        a(f"v_add_u32 v{14+i}, s30, v13")
    a(f"s_mul_i32 s44, s21, {8*87*1024}")
    a(f"s_add_u32 s44, s44, {W1F}")
    a("s_waitcnt lgkmcnt(0)")
    wsfix(a, 14)
    a.srd(8, 14, WS_USED)
    a("global_load_dword v5, v4, s[14:15]")
    for j in range(8):
        a("s_mov_b32 m0, s42")
        a("s_add_u32 s42, s42, 8192")
        a(f"buffer_load_dwordx4 v11, s[8:11], s41 offen lds")
        a(f"s_add_u32 s41, s41, 8192")
    WR = 208
    DEEP = 3
    def wload(j):
        out = []
        for i in range(3):
            r = WR + (j % DEEP) * 12 + 4 * i
            out.append(f"buffer_load_dwordx4 v[{r}:{r+3}], v{14+i}, s[8:11], s44 offen")
        out.append(f"s_add_u32 s44, s44, {87*1024}")
        return out
    for j in range(2):
        for x in wload(j): a(x)
    a(f"s_mov_b32 s30, {SCAL}")
    a("s_load_dwordx4 s[36:39], s[14:15], s30")
    a(f"s_mov_b32 s31, {SCAL+16}")
    a("s_load_dword s40, s[14:15], s31")
    a("v_lshrrev_b32 v3, 4, v1")
    a("v_and_b32 v6, 15, v1")
    a("v_bfe_u32 v18, v1, 2, 2")
    a("v_lshl_add_u32 v18, v3, 2, v18")
    a("v_and_b32 v19, 6, v18")
    a("v_lshrrev_b32 v19, 1, v19")
    a("v_and_b32 v29, 3, v1")
    a("v_lshlrev_b32 v30, 7, v18")
    a("v_lshl_add_u32 v30, v29, 3, v30")
    a("s_lshl_b32 s45, s21, 15")
    a("s_lshl_b32 s46, s21, 1")
    a("s_add_u32 s46, s46, s20")
    for k in range(4):
        a(f"s_add_u32 s30, s46, {k}")
        a(f"s_and_b32 s{48+k}, s30, 3")
        a(f"v_xor_b32 v31, s{48+k}, v19")
        a(f"v_lshl_add_u32 v{20+k}, v31, 5, v30")
        a(f"v_add_u32 v{20+k}, s45, v{20+k}")
    a("v_xor_b32 v31, s20, v19")
    a("v_lshl_add_u32 v26, v31, 5, v30")
    a("s_lshl_b32 s30, s26, 13")
    a("s_lshl_b32 s31, s21, 12")
    a("s_add_u32 s30, s30, s31")
    a("v_add_u32 v26, s30, v26")
    a("s_lshl_b32 s30, s21, 10")
    a(f"s_add_u32 s30, s30, {W8_G2T}")
    a("v_lshl_add_u32 v24, v3, 4, s30")
    ACC = 160
    for r in range(ACC, ACC + 48): a(f"v_mov_b32 v{r}, 0")
    for r in range(96, 108): a(f"v_mov_b32 v{r}, 0")
    a("s_waitcnt vmcnt(14)")
    a(f"v_add_u32 v2, {W8_G2T}, v2")
    a("ds_write_b32 v2, v5")
    a("v_mov_b32 v7, s32")
    a("v_mov_b32 v8, s33")
    a("v_mov_b32 v9, s34")
    a("v_cmp_eq_u32 vcc, 1, v3")
    a("v_cmp_le_u32 s[52:53], 2, v3")
    a("s_nop 0")
    a("v_cndmask_b32 v7, v7, v8, vcc")
    a("v_cndmask_b32 v7, v7, v9, s[52:53]")
    a("v_min_u32 v7, 85, v7")
    a("v_lshl_add_u32 v7, v7, 4, v6")
    a("v_lshlrev_b32 v8, 2, v7")
    a(f"v_add_u32 v8, {SVP}, v8")
    a("v_lshlrev_b32 v9, 1, v7")
    a("s_mul_i32 s58, s20, 11")
    a("s_cmp_eq_u32 s20, 3")
    a("s_cselect_b32 s58, 32, s58")
    a("s_mul_i32 s59, s26, 43")
    a("s_add_u32 s59, s59, s58")
    a("s_lshl_b32 s59, s59, 12")
    a("s_lshl_b32 s30, s21, 11")
    a("s_add_u32 s59, s59, s30")
    a(f"s_add_u32 s59, s59, {W2F}")
    a.srd(60, 14, WS_USED)
    a("s_cmp_eq_u32 s20, 3")
    a("s_cselect_b32 s62, 0, s10")
    W2R = 108
    def w2reg(j, t):
        idx = 2 * j + t
        return 208 + 4 * idx if idx < 9 else 108 + 4 * (idx - 9)
    drip = []
    items = [(j, t) for j in range(11) for t in range(2)]
    s59off = {}
    late = [it for it in items if 2 * it[0] + it[1] < 9]
    early = [it for it in items if 2 * it[0] + it[1] >= 9]
    for (j, t) in early + late:
        srd = "s[60:63]" if j == 0 else "s[8:11]"
        r = w2reg(j, t)
        drip.append(f"s_add_u32 s57, s59, {4096*j}\nbuffer_load_dwordx4 v[{r}:{r+3}], v13, {srd}, s57 offen offset:{1024*t}")
    a("s_lshl_b32 s30, s26, 8")
    a("s_lshl_b32 s31, s21, 7")
    a("s_add_u32 s30, s30, s31")
    a(f"s_add_u32 s30, s30, {GBF}")
    a("v_lshl_add_u32 v27, v3, 4, s30")
    a("s_lshl_b32 s30, s26, 7")
    a("s_lshl_b32 s31, s21, 6")
    a("s_add_u32 s30, s30, s31")
    a("v_lshl_add_u32 v28, v3, 3, s30")
    gbl = [f"global_load_dwordx4 v[{244+4*t}:{247+4*t}], v27, s[14:15] offset:{64*t}" for t in range(2)]
    gbl += [f"global_load_dwordx2 v[{252+2*t}:{253+2*t}], v28, s[16:17] offset:{32*t}" for t in range(2)]
    a(f"s_waitcnt vmcnt(6) lgkmcnt(0)")
    stamp(a, 1)
    a("s_barrier")
    XF = [32, 48]
    GQ = [64, 72]
    def xreads(j):
        b = XF[j & 1]; g = GQ[j & 1]
        out = []
        for k in range(4):
            for hf in range(2):
                out.append(f"ds_read_b64_tr_b16 v[{b+4*k+2*hf}:{b+4*k+2*hf+1}], v{20+k} offset:{4096*j + 2048*hf}")
        out.append(f"ds_read_b128 v[{g}:{g+3}], v24 offset:{128*j}")
        out.append(f"ds_read_b128 v[{g+4}:{g+7}], v24 offset:{128*j+64}")
        return out
    for x in xreads(0): a(x)
    for x in wload(2): a(x)
    seq = [("W", j) for j in range(3) for _ in range(3)]
    def vmwait(tag):
        last = max(i for i, t in enumerate(seq) if t == tag)
        return len(seq) - 1 - last
    smalls = []
    for kq in range(4):
        for v in range(3):
            smalls.append(f"global_load_dword v{112+kq*3+v}, v8, s[14:15]")
            if not (kq == 3 and v == 2): smalls.append("v_add_u32 v8, 5504, v8")
    smalls.append("global_load_ushort v124, v9, s[12:13]")
    issued = 3
    for j in range(8):
        b = XF[j & 1]; g = GQ[j & 1]
        a(f"s_waitcnt vmcnt({vmwait(('W', j))}) lgkmcnt(0)")
        mf = []
        for i in range(3):
            r = WR + (j % DEEP) * 12 + 4 * i
            for k in range(4):
                d = ACC + (i * 4 + k) * 4
                mf.append(f"v_mfma_f32_16x16x32_bf16 v[{d}:{d+3}], v[{r}:{r+3}], v[{b+4*k}:{b+4*k+3}], v[{d}:{d+3}]")
        va = []
        if j + 1 < 8: va += xreads(j + 1)
        post = []
        if issued < 8:
            post = wload(issued); seq += [("W", issued)] * 3; issued += 1
        elif j == 6:
            post = smalls + gbl; seq += [("S", 0)] * 13 + [("G", 0)] * 4
        for q_ in range(4):
            va.append(f"v_lshlrev_b32 v{80+2*q_}, 16, v{b+q_}")
            va.append(f"v_and_b32 v{81+2*q_}, 0xffff0000, v{b+q_}")
        for q_ in range(8): va.append(f"v_mul_f32 v{80+q_}, v{80+q_}, v{80+q_}")
        for q_ in range(8):
            va.append(f"v_add_f32 v{96+(q_&3)}, v{96+(q_&3)}, v{80+q_}")
            va.append(f"v_fmac_f32 v{100+q_}, v{80+q_}, v{g+q_}")
        per = -(-len(va) // 12)
        vi = 0
        for m in mf:
            a(m)
            for _ in range(per):
                if vi < len(va): a(va[vi]); vi += 1
        for x in post: a(x)
    stamp(a, 2)
    def dr(n=1):
        for _ in range(n):
            if drip: a(drip.pop(0))
    a(f"s_mul_i32 s30, s24, 6144")
    a(f"s_add_u32 s30, s30, {W8_RED}")
    a("v_add_u32 v2, s30, v13")
    a("s_xor_b32 s31, s24, 4")
    a(f"s_mul_i32 s31, s31, 6144")
    a(f"s_add_u32 s31, s31, {W8_RED}")
    a("v_add_u32 v25, s31, v13")
    a("v_pk_add_f32 v[96:97], v[96:97], v[98:99]")
    a("v_add_f32 v96, v96, v97")
    a("v_pk_add_f32 v[100:101], v[100:101], v[102:103]")
    a("v_pk_add_f32 v[104:105], v[104:105], v[106:107]")
    a("v_pk_add_f32 v[100:101], v[100:101], v[104:105]")
    a("v_add_f32 v97, v100, v101")
    for i in range(3):
        for k in (2, 3):
            d = ACC + (i * 4 + k) * 4
            a(f"ds_write_b128 v2, v[{d}:{d+3}] offset:{(i*2 + k - 2)*1024}")
    a("v_mov_b32 v98, v96")
    a("v_mov_b32 v99, v97")
    a("s_nop 0")
    a("v_permlane16_swap_b32 v96, v98")
    a("v_permlane16_swap_b32 v97, v99")
    dr(1)
    a("v_add_f32 v96, v96, v98")
    a("v_add_f32 v97, v97, v99")
    a("v_mov_b32 v98, v96")
    a("v_mov_b32 v99, v97")
    a("s_nop 0")
    a("v_permlane32_swap_b32 v96, v98")
    a("v_permlane32_swap_b32 v97, v99")
    a("s_lshl_b32 s30, s48, 10")
    a("s_lshl_b32 s31, s21, 5")
    a("s_add_u32 s30, s30, s31")
    a(f"s_add_u32 s30, s30, {W8_STT}")
    a("v_add_f32 v96, v96, v98")
    a("v_add_f32 v97, v97, v99")
    a("v_lshl_add_u32 v2, v6, 6, s30")
    a("ds_write_b64 v2, v[96:97] offset:24")
    a("s_cmp_eq_u32 s20, 3")
    a("s_cbranch_scc0 K3_nolin")
    a("v_cmp_eq_u32 s[52:53], 0, v3")
    a("v_cmp_eq_u32 s[54:55], 1, v3")
    for k in range(4):
        a(f"s_lshl_b32 s30, s{48+k}, 10")
        a("s_lshl_b32 s31, s21, 5")
        a("s_add_u32 s30, s30, s31")
        a(f"s_add_u32 s30, s30, {W8_STT}")
        a(f"v_lshl_add_u32 v{64+k}, v6, 6, s30")
    a("s_mov_b64 exec, s[52:53]")
    for k in range(4):
        d = ACC + (8 + k) * 4
        a(f"ds_write_b128 v{64+k}, v[{d}:{d+3}]")
    a("s_mov_b64 exec, s[54:55]")
    for k in range(4):
        d = ACC + (8 + k) * 4
        a(f"ds_write_b64 v{64+k}, v[{d}:{d+1}] offset:16")
    a("s_mov_b64 exec, -1")
    a("K3_nolin:")
    a("s_cmp_eq_u32 s21, 0")
    a("s_cbranch_scc0 K3_nosv")
    a(f"s_waitcnt vmcnt({vmwait(('S', 0)) + 1})")
    for v in range(3):
        a(f"v_add_f32 v{112+v}, v{112+v}, v{115+v}")
        a(f"v_add_f32 v{118+v}, v{118+v}, v{121+v}")
        a(f"v_add_f32 v{112+v}, v{112+v}, v{118+v}")
    a("v_lshlrev_b32 v124, 16, v124")
    a("s_mul_i32 s30, s20, 768")
    a(f"s_add_u32 s30, s30, {W8_SVT}")
    a("v_lshlrev_b32 v2, 8, v3")
    a("v_lshl_add_u32 v2, v6, 2, v2")
    a("v_add_u32 v2, s30, v2")
    a("v_cmp_gt_u32 vcc, 48, v1")
    a("s_and_saveexec_b64 s[42:43], vcc")
    a("ds_write_b32 v2, v112")
    a("ds_write_b32 v2, v114 offset:64")
    a("ds_write_b32 v2, v113 offset:128")
    a("ds_write_b32 v2, v124 offset:192")
    a("s_mov_b64 exec, s[42:43]")
    a("K3_nosv:   ; LINT-RESET")
    a("s_waitcnt vmcnt(1) lgkmcnt(0)")
    a("s_barrier")
    for i in range(3):
        for k in range(2):
            r = 64 + (i * 2 + k) * 4
            a(f"ds_read_b128 v[{r}:{r+3}], v25 offset:{(i*2 + k)*1024}")
    a("v_lshlrev_b32 v2, 6, v1")
    a(f"v_add_u32 v2, {W8_STT}, v2")
    a("ds_read_b128 v[32:35], v2")
    a("ds_read_b128 v[36:39], v2 offset:16")
    a("ds_read_b128 v[40:43], v2 offset:32")
    a("ds_read_b128 v[44:47], v2 offset:48")
    dr(2)
    a("s_waitcnt lgkmcnt(4)")
    for i in range(3):
        for k in range(2):
            d = ACC + (i * 4 + k) * 4; r = 64 + (i * 2 + k) * 4
            a(f"v_pk_add_f32 v[{d}:{d+1}], v[{d}:{d+1}], v[{r}:{r+1}]")
            a(f"v_pk_add_f32 v[{d+2}:{d+3}], v[{d+2}:{d+3}], v[{r+2}:{r+3}]")
    a("s_waitcnt lgkmcnt(0)")
    for r in range(0, 8, 2): a(f"v_pk_add_f32 v[{32+r}:{33+r}], v[{32+r}:{33+r}], v[{40+r}:{41+r}]")
    dr(1)
    a("v_add_f32 v34, v34, v35")
    a("v_add_f32 v36, v36, v37")
    a("v_mul_f32 v32, 0x3b000000, v32")
    a("v_mul_f32 v38, 0x3b000000, v38")
    a("v_fma_f32 v38, -v32, v32, v38")
    a("v_max_f32 v38, 0, v38")
    a("v_cvt_pk_bf16_f32 v40, v32, v38")
    a("v_lshlrev_b32 v32, 16, v40")
    a("v_and_b32 v38, 0xffff0000, v40")
    a("v_add_f32 v38, 0x3727c5ac, v38")
    rbf(a, 38, 38)
    a("v_sqrt_f32 v38, v38")
    a("v_fma_f32 v33, -v32, s36, v33")
    rbf(a, 38, 38)
    a("v_rcp_f32 v38, v38")
    a("v_mul_f32 v40, v32, v32")
    a("v_add_f32 v41, v32, v32")
    a("v_fma_f32 v39, -v41, v34, v39")
    a("v_fma_f32 v39, v40, s37, v39")
    a("v_fma_f32 v36, -v32, s38, v36")
    a("v_fma_f32 v33, v33, v38, s39")
    a("v_add_f32 v36, v36, v36")
    a("v_fma_f32 v39, v39, v38, v36")
    a("v_mul_f32 v33, 0x3b000000, v33")
    dr(1)
    a("v_fma_f32 v39, v39, v38, s40")
    a("v_mul_f32 v39, 0x3b000000, v39")
    a("v_fma_f32 v39, -v33, v33, v39")
    a("v_max_f32 v39, 0, v39")
    a("v_cvt_pk_bf16_f32 v40, v33, v39")
    a("v_lshlrev_b32 v33, 16, v40")
    a("v_and_b32 v39, 0xffff0000, v40")
    a("v_add_f32 v39, 0x3727c5ac, v39")
    rbf(a, 39, 39)
    a("v_sqrt_f32 v39, v39")
    a("s_nop 0")
    rbf(a, 39, 39)
    a("v_rcp_f32 v47, v39")
    a("s_lshl_b32 s30, s24, 10")
    a(f"s_add_u32 s30, s30, {W8_COF}")
    a("v_mul_f32 v44, v47, v38")
    a("v_mul_f32 v46, -v47, v33")
    a("v_mul_f32 v45, -v44, v32")
    a("v_lshl_add_u32 v2, v1, 4, s30")
    a("ds_write_b128 v2, v[44:47]")
    a("s_waitcnt lgkmcnt(0)")
    for k in range(2):
        a(f"s_lshl_b32 s31, s{48+k}, 8")
        a("s_add_u32 s31, s31, s30")
        a(f"v_lshl_add_u32 v2, v6, 4, s31")
        a(f"ds_read_b128 v[{48+4*k}:{51+4*k}], v2")
    a("s_mul_i32 s30, s20, 768")
    a(f"s_add_u32 s30, s30, {W8_SVT}")
    a("v_lshl_add_u32 v25, v3, 4, s30")
    a("s_mov_b32 s54, 0xbdd2d3e2")
    a("s_mov_b32 s55, 0xc0135761")
    dr(2)
    stamp(a, 3)
    for i in range(3):
        a(f"s_cmp_eq_u32 s{32+i}, 86")
        a(f"s_cbranch_scc1 K3_skip{i}")
        for st in range(4):
            a(f"ds_read_b128 v[{64+4*st}:{67+4*st}], v25 offset:{256*i + 64*st}")
        a(f"s_add_u32 s30, s29, {i}")
        a("s_lshr_b32 s31, s30, 1")
        a("s_lshl_b32 s31, s31, 12")
        a("s_and_b32 s30, s30, 1")
        a("s_lshl_b32 s30, s30, 3")
        a("s_add_u32 s30, s30, s31")
        a(f"s_add_u32 s30, s30, {W8_STG}")
        a("s_waitcnt lgkmcnt(0)")
        A_ = ACC + i * 16
        for (src, co, sel) in ((64, 0, "op_sel:[0,1,0] op_sel_hi:[1,1,1]"), (68, 2, "op_sel_hi:[1,0,1]"), (72, 2, "op_sel:[0,1,0] op_sel_hi:[1,1,1]")):
            for k in range(2):
                c = 48 + 4 * k
                for p in range(2):
                    t = 80 + 4 * k + 2 * p
                    s2 = f"v[{76+2*p}:{77+2*p}]" if src == 64 else f"v[{t}:{t+1}]"
                    a(f"v_pk_fma_f32 v[{t}:{t+1}], v[{src+2*p}:{src+2*p+1}], v[{c+co}:{c+co+1}], {s2} {sel}")
            if i == 0: dr(1)
        for k in range(2):
            c = 48 + 4 * k
            for p in range(2):
                x = A_ + 4 * k + 2 * p; t = 80 + 4 * k + 2 * p
                a(f"v_pk_fma_f32 v[{x}:{x+1}], v[{x}:{x+1}], v[{c}:{c+1}], v[{t}:{t+1}] op_sel_hi:[1,0,1]")
        for j in range(4):
            x = A_ + 2 * j; t = 80 + 2 * j
            a(f"v_pk_mul_f32 v[{t}:{t+1}], v[{x}:{x+1}], v[{x}:{x+1}]")
        for j in range(4):
            t = 80 + 2 * j
            a(f"v_pk_fma_f32 v[{t}:{t+1}], v[{t}:{t+1}], s[54:55], s[54:55] op_sel:[0,0,1] op_sel_hi:[1,0,1]")
        for j in range(4):
            x = A_ + 2 * j; t = 80 + 2 * j
            a(f"v_pk_mul_f32 v[{t}:{t+1}], v[{t}:{t+1}], v[{x}:{x+1}]")
        if i == 0: dr(1)
        for j in range(8): a(f"v_exp_f32 v{80+j}, v{80+j}")
        for j in range(4):
            t = 80 + 2 * j
            a(f"v_pk_add_f32 v[{t}:{t+1}], v[{t}:{t+1}], 1.0 op_sel_hi:[1,0]")
        for j in range(8): a(f"v_rcp_f32 v{80+j}, v{80+j}")
        if i == 0: dr(1)
        for j in range(4):
            x = A_ + 2 * j; t = 80 + 2 * j
            a(f"v_pk_mul_f32 v[{x}:{x+1}], v[{x}:{x+1}], v[{t}:{t+1}]")
        for k in range(2):
            a(f"v_cvt_pk_bf16_f32 v{88+2*k}, v{A_+4*k}, v{A_+4*k+1}")
            a(f"v_cvt_pk_bf16_f32 v{89+2*k}, v{A_+4*k+2}, v{A_+4*k+3}")
        if i == 1:
            a("s_cmp_eq_u32 s29, 9")
            a("s_cbranch_scc0 K3_paired1")
            a("s_lshr_b32 s31, s26, 1")
            a("s_add_u32 s31, s31, 40")
            a("s_mul_i32 s43, s25, 43")
            a("s_add_u32 s31, s31, s43")
            a("s_lshl_b32 s31, s31, 12")
            a("s_and_b32 s43, s26, 1")
            a("s_lshl_b32 s43, s43, 3")
            a("s_add_u32 s31, s31, s43")
            a(f"s_add_u32 s31, s31, {HF}")
            for k in range(2):
                a(f"s_lshl_b32 s43, s{48+k}, 10")
                a("s_add_u32 s43, s43, s31")
                a(f"buffer_store_dwordx2 v[{88+2*k}:{89+2*k}], v13, s[8:11], s43 offen sc1")
            a("s_branch K3_skip1")
            a("K3_paired1:")
        for k in range(2):
            a(f"s_lshl_b32 s31, s{48+k}, 10")
            a("s_add_u32 s31, s31, s30")
            a(f"v_add_u32 v2, s31, v13")
            a(f"ds_write_b64 v2, v[{88+2*k}:{89+2*k}]")
        a(f"K3_skip{i}:   ; LINT-RESET")
        dr(2)
    dr(99)
    for t in range(2):
        a(f"ds_read_b64_tr_b16 v[{16+2*t}:{17+2*t}], v26 offset:{2048*t}")
    a("s_waitcnt lgkmcnt(0)")
    a("s_barrier")
    stamp(a, 4)
    a("s_lshl_b32 s30, s24, 10")
    a("v_add_u32 v2, s30, v13")
    a(f"v_add_u32 v2, {W8_STG}, v2")
    a("ds_read_b128 v[32:35], v2")
    a("ds_read_b128 v[36:39], v2 offset:8192")
    a("s_mul_i32 s31, s25, 43")
    a("s_mul_i32 s43, s26, 5")
    a("s_add_u32 s31, s31, s43")
    a("s_lshl_b32 s31, s31, 12")
    a("s_add_u32 s31, s31, s30")
    a(f"s_add_u32 s31, s31, {HF}")
    a("s_waitcnt lgkmcnt(1)")
    a("buffer_store_dwordx4 v[32:35], v13, s[8:11], s31 offen sc1")
    a("s_add_u32 s31, s31, 8192")
    a("s_waitcnt lgkmcnt(0)")
    a("buffer_store_dwordx4 v[36:39], v13, s[8:11], s31 offen sc1")
    a("s_cmp_lt_u32 s24, 4")
    a("s_cbranch_scc0 K3_no3rd")
    a("ds_read_b128 v[40:43], v2 offset:16384")
    a("s_add_u32 s31, s31, 8192")
    a("s_waitcnt lgkmcnt(0)")
    a("buffer_store_dwordx4 v[40:43], v13, s[8:11], s31 offen sc1")
    a("K3_no3rd:   ; LINT-RESET")
    ACB = 176
    for r in range(ACB, ACB + 32): a(f"v_mov_b32 v{r}, 0")
    a("s_waitcnt vmcnt(0)")
    stamp(a, 5)
    a("s_barrier")
    a("s_cmp_lg_u32 s24, 0")
    a("s_cbranch_scc1 K3_wait")
    a("s_lshl_b32 s30, s25, 7")
    a(f"s_add_u32 s30, s30, {FLAGS}")
    a("v_mov_b32 v2, s30")
    a("v_mov_b32 v4, 1")
    a("s_mov_b64 exec, 1")
    a("global_atomic_add v4, v2, v4, s[14:15] sc0 sc1")
    a("s_waitcnt vmcnt(0)")
    a("v_readfirstlane_b32 s30, v4")
    a("s_cmp_eq_u32 s30, 7")
    a("s_cbranch_scc1 K3_pollx")
    a("s_mov_b32 s31, 0x100000")
    a("K3_poll:")
    a("global_load_dword v5, v2, s[14:15] sc1")
    a("s_waitcnt vmcnt(0)")
    a("v_readfirstlane_b32 s30, v5")
    a("s_sub_u32 s31, s31, 1")
    a("s_cmp_eq_u32 s31, 0")
    a("s_cbranch_scc1 K3_pollx")
    a("s_cmp_ge_u32 s30, 8")
    a("s_cbranch_scc0 K3_poll")
    a("K3_pollx:")
    a("s_mov_b64 exec, -1")
    a("K3_wait:   ; LINT-RESET")
    a("s_barrier")
    stamp(a, 6)
    SLOT = 16384; NS = 6
    a("s_mul_i32 s57, s25, 43")
    a("s_add_u32 s57, s57, s58")
    a("s_lshl_b32 s57, s57, 12")
    a("s_lshl_b32 s30, s21, 11")
    a("s_add_u32 s57, s57, s30")
    a(f"s_add_u32 s57, s57, {HF}")
    a("s_lshl_b32 s56, s20, 12")
    a("s_add_u32 s56, s56, s30")
    a("s_lshl_b32 s30, s20, 12")
    a("v_add_u32 v4, s30, v13")
    a(f"v_add_u32 v8, {4*SLOT}, v4")
    def hdma(j):
        return [f"s_add_u32 m0, s56, {(j % NS) * SLOT}\ns_add_u32 s43, s57, {4096 * j}\nbuffer_load_dwordx4 v13, s[8:11], s43 offen offset:{1024*t} lds" for t in range(2)]
    def hread(j):
        sl = j % NS
        base, off = ("v4", sl * SLOT) if sl < 4 else ("v8", (sl - 4) * SLOT)
        return [f"ds_read_b128 v[{HB[j & 1] + 4*lt}:{HB[j & 1] + 4*lt + 3}], {base} offset:{off + lt * 1024}" for lt in range(4)]
    HB = [32, 48]
    AHEAD = 5
    hq = []
    for j in range(AHEAD):
        for x in hdma(j): a(x); hq.append(j)
    a(f"s_waitcnt vmcnt({sum(1 for t in hq if t > 0)})")
    a("s_barrier")
    for x in hread(0): a(x)
    for j in range(11):
        if j + 1 <= 10:
            a(f"s_waitcnt vmcnt({sum(1 for t in hq if t > j + 1)}) lgkmcnt(0)")
            a("s_barrier")
            rd = hread(j + 1)
        else:
            a("s_waitcnt lgkmcnt(0)")
            rd = []
        nxt = hdma(j + AHEAD) if j + AHEAD <= 10 else []
        hq += [j + AHEAD] * len(nxt)
        extra = rd + nxt
        ei = 0
        for t in range(2):
            for lt in range(4):
                d = ACB + (t * 4 + lt) * 4
                ar = w2reg(j, t); br = HB[j & 1] + 4 * lt
                a(f"v_mfma_f32_16x16x32_bf16 v[{d}:{d+3}], v[{ar}:{ar+3}], v[{br}:{br+3}], v[{d}:{d+3}]")
                if ei < len(extra): a(extra[ei]); ei += 1
    stamp(a, 7)
    a("v_mul_u32_u24 v5, 272, v6")
    a("v_lshl_add_u32 v5, v3, 4, v5")
    a(f"s_mul_i32 s30, s20, {P_W}")
    a("s_lshl_b32 s31, s21, 7")
    a("s_add_u32 s30, s30, s31")
    a(f"s_add_u32 s30, s30, {W8_RED}")
    a("v_add_u32 v7, s30, v5")
    a("s_barrier")
    a("s_nop 4")
    for t in range(2):
        for lt in range(4):
            d = ACB + (t * 4 + lt) * 4
            a(f"ds_write_b128 v7, v[{d}:{d+3}] offset:{lt*16*272 + t*64}")
    a(f"s_mul_i32 s30, s20, {16*272}")
    a("s_lshl_b32 s31, s21, 7")
    a("s_add_u32 s30, s30, s31")
    a(f"s_add_u32 s30, s30, {W8_RED}")
    a("v_add_u32 v7, s30, v5")
    a("s_waitcnt lgkmcnt(0)")
    a("s_barrier")
    stamp(a, 8)
    for t in range(2):
        for w in range(4):
            r = 32 + (t * 4 + w) * 4
            a(f"ds_read_b128 v[{r}:{r+3}], v7 offset:{w*P_W + t*64}")
    a.srd(40, 18, 2048 * 512 * 2)
    a("s_lshl_b32 s30, s25, 16")
    a("s_lshl_b32 s31, s20, 14")
    a("s_add_u32 s30, s30, s31")
    a("s_lshl_b32 s31, s26, 7")
    a("s_add_u32 s30, s30, s31")
    a("s_lshl_b32 s31, s21, 6")
    a("s_add_u32 s30, s30, s31")
    a("v_lshlrev_b32 v9, 10, v6")
    a("v_lshl_add_u32 v9, v3, 3, v9")
    a("v_add_u32 v9, s30, v9")
    for t in range(2):
        a(f"s_waitcnt lgkmcnt({4*(1-t)})")
        r = 32 + t * 16
        for p in range(2):
            a(f"v_pk_add_f32 v[{r+2*p}:{r+2*p+1}], v[{r+2*p}:{r+2*p+1}], v[{r+4+2*p}:{r+5+2*p}]")
            a(f"v_pk_add_f32 v[{r+8+2*p}:{r+9+2*p}], v[{r+8+2*p}:{r+9+2*p}], v[{r+12+2*p}:{r+13+2*p}]")
        for p in range(2):
            a(f"v_pk_add_f32 v[{r+2*p}:{r+2*p+1}], v[{r+2*p}:{r+2*p+1}], v[{r+8+2*p}:{r+9+2*p}]")
        for q_ in range(2):
            a(f"v_lshlrev_b32 v{96+2*q_}, 16, v{252+2*t+q_}")
            a(f"v_and_b32 v{97+2*q_}, 0xffff0000, v{252+2*t+q_}")
            a(f"v_lshlrev_b32 v{100+2*q_}, 16, v{16+2*t+q_}")
            a(f"v_and_b32 v{101+2*q_}, 0xffff0000, v{16+2*t+q_}")
        for p in range(2):
            a(f"v_pk_add_f32 v[{r+2*p}:{r+2*p+1}], v[{r+2*p}:{r+2*p+1}], v[{96+2*p}:{97+2*p}]")
        for p in range(2):
            a(f"v_pk_fma_f32 v[{r+2*p}:{r+2*p+1}], v[{r+2*p}:{r+2*p+1}], v[{244+4*t+2*p}:{245+4*t+2*p}], v[{100+2*p}:{101+2*p}]")
        a(f"v_cvt_pk_bf16_f32 v{24+2*t}, v{r}, v{r+1}")
        a(f"v_cvt_pk_bf16_f32 v{25+2*t}, v{r+2}, v{r+3}")
        a(f"buffer_store_dwordx2 v[{24+2*t}:{25+2*t}], v9, s[40:43], 0 offen offset:{32*t}")
    a("K3_END:   ; LINT-RESET")
    stamp_store(a, KID3, 14, 24)
    a("K3_EXIT:")
    a.end_kernel(name, 256, 100, accum=256)

def triv(a, i):
    name = f"t{i}_kernel"
    a.begin_kernel(name, 256, 256, 0)
    a.end_kernel(name, 8, 16)
def build(kernels):
    global LASTLABEL, KID3, FUSED
    FUSED = kernels[0].__name__ == "k12"
    KID3 = len(kernels) - 1
    LASTLABEL = {"k1": "K1_EXIT", "k2": "K2_EXIT", "k12": "K2_EXIT", "k3": "K3_EXIT", "k3w": "K3_EXIT"}[kernels[-1].__name__]
    a = Asm()
    for i in range(int(OPT.get("pre_triv", "0"))): triv(a, 10 + i)
    for k in kernels: k(a)
    for i in range(int(OPT.get("extra", "0"))): triv(a, i)
    return a.text().replace("None\n", "")

ALL = {}
if __name__ == "__main__":
    out = sys.argv[1] if len(sys.argv) > 1 else "cur.s"
    names = sys.argv[2].split(",") if len(sys.argv) > 2 else ["k1"]
    if len(sys.argv) > 3 and sys.argv[3] == "prof": PROF = True
    open(out, "w").write(build([globals()[n] for n in names]))
```

```python
import sys
sys.path.insert(0, "dev")
from asmgen import *

import os
OPT = dict(kv.split("=") for kv in os.environ.get("GENOPT", "").split(",") if kv)
WSOFF = int(OPT.get("wsoff", "0"), 0)
SC1 = " sc1" if OPT.get("sc1", "1") == "1" else ""
HLD = " sc1" if OPT.get("hsc1", "0") == "1" else ""
NT1 = " nt" if OPT.get("nt1", "1") == "1" else ""
def wsfix(a, r):
    if WSOFF:
        a(f"s_add_u32 s{r}, s{r}, {WSOFF}")
        a(f"s_addc_u32 s{r+1}, s{r+1}, 0")
XT    = 0x0000000
X2T   = 0x0200000
KREV  = 0x0400000
KW    = 4160
STAT1 = 0x0620000
MODF  = 0x0630000
SCAL  = 0x0634000
SVP   = 0x0640000
MODP  = 0x0660000
G2F   = 0x0634400
GBF   = 0x0634C00
W1F   = 0x0700000
W2F   = 0x0900000
HF    = 0x0B00000
WS_USED = 0x1100000

STAMP = 0x1100000
PROF = False
def stamp(a, i):
    if PROF:
        if OPT.get("cyc", "0") == "1": a(f"s_memtime s[{70+2*i}:{71+2*i}]")
        else: a(f"s_memrealtime s[{70+2*i}:{71+2*i}]")
        a("s_waitcnt lgkmcnt(0)")
def stamp_store(a, kid, wsreg, swave):
    if not PROF: return
    a("s_mov_b64 exec, -1")
    tm = "s_memtime" if OPT.get("cyc", "0") == "1" else "s_memrealtime"
    a(f"{tm} s[90:91]")
    a("s_waitcnt lgkmcnt(0) vmcnt(0)")
    a(f"{tm} s[92:93]")
    a("s_waitcnt lgkmcnt(0)")
    a(f"s_lshl_b32 s94, s2, 3")
    a(f"s_add_u32 s94, s94, s{swave}")
    a(f"s_lshl_b32 s94, s94, 6")
    a(f"s_add_u32 s94, s94, {STAMP + kid * 0x80000}")
    a("v_mov_b32 v0, s94")
    for i in range(12):
        a(f"v_mov_b32 v{2+i}, s{70+2*i}")
    a("s_mov_b64 exec, 1")
    a(f"global_store_dwordx4 v0, v[2:5], s[{wsreg}:{wsreg+1}]")
    a(f"global_store_dwordx4 v0, v[6:9], s[{wsreg}:{wsreg+1}] offset:16")
    a(f"global_store_dwordx4 v0, v[10:13], s[{wsreg}:{wsreg+1}] offset:32")

LOG2E = "0x3fb8aa3b"
INV2PI = "0.15915494"

def wave_id(a, s, vt):
    a(f"v_lshrrev_b32 v{vt}, 6, v0")
    a("s_nop 0")
    a(f"v_readfirstlane_b32 s{s}, v{vt}")

def rbf(a, vd, vs):
    a(f"v_cvt_pk_bf16_f32 v{vd}, v{vs}, v{vs}")
    a(f"v_and_b32 v{vd}, 0xffff0000, v{vd}")

def csq(a, dst, src, tmp):
    return [
        f"v_pk_mul_f32 v[{tmp}:{tmp+1}], v[{src}:{src+1}], v[{src}:{src+1}] op_sel:[0,0] op_sel_hi:[1,0]",
        f"v_pk_fma_f32 v[{dst}:{dst+1}], v[{src}:{src+1}], v[{src}:{src+1}], v[{tmp}:{tmp+1}] op_sel:[1,1,0] op_sel_hi:[0,1,1] neg_lo:[1,0,0]",
    ]

def cmulconj(a, dst, p, c, tmp):
    return [
        f"v_pk_mul_f32 v[{tmp}:{tmp+1}], v[{p}:{p+1}], v[{c}:{c+1}] op_sel:[0,0] op_sel_hi:[1,0] neg_hi:[0,1]",
        f"v_pk_fma_f32 v[{dst}:{dst+1}], v[{p}:{p+1}], v[{c}:{c+1}], v[{tmp}:{tmp+1}] op_sel:[1,1,0] op_sel_hi:[0,1,1] neg_lo:[1,0,0] neg_hi:[1,0,0]",
    ]

def code_prefetch(a, start, end, n, tag, vtmp, dst0):
    a(f"s_getpc_b64 s[66:67]")
    a(f"CPF_{tag}:")
    a(f"s_sub_u32 s66, s66, CPF_{tag}-{start}")
    a(f"s_subb_u32 s67, s67, 0")
    a(f"v_lshlrev_b32 v{vtmp}, 7, v1")
    a("s_mov_b64 s[68:69], exec")
    for i in range(n):
        a(f"v_cmp_gt_u32 vcc, {end}-{start}, v{vtmp}")
        a("s_and_b64 exec, s[68:69], vcc")
        a(f"s_cbranch_execz CPF_{tag}_done")
        a(f"global_load_dword v{dst0+i}, v{vtmp}, s[66:67]")
        a(f"v_add_u32 v{vtmp}, 8192, v{vtmp}")
    a(f"CPF_{tag}_done:")
    a("s_mov_b64 exec, s[68:69]")

def k1(a):
    name = "k1_kernel"
    a.begin_kernel(name, 512, 256, 23552)
    a("s_cmp_ge_u32 s2, 512")
    a("s_cbranch_scc1 K1_EXIT")
    stamp(a, 0)
    a("s_load_dwordx8 s[4:11], s[0:1], 8")
    a("s_load_dwordx2 s[12:13], s[0:1], 40")
    a("s_load_dwordx2 s[14:15], s[0:1], 128")
    a("s_load_dwordx2 s[16:17], s[0:1], 0")
    a("s_load_dwordx4 s[20:23], s[0:1], 96")
    wave_id(a, 24, 1)
    a("v_and_b32 v1, 63, v0")
    a("s_cmp_ge_u32 s2, 256")
    a("s_cbranch_scc1 K1_TSM")
    a("s_setprio 3")
    a("s_lshr_b32 s25, s24, 1")
    a("s_and_b32 s26, s24, 1")
    a("s_lshl_b32 s27, s2, 1")
    a("s_add_u32 s27, s27, s25")
    a("s_lshl_b32 s28, s27, 8")
    a("s_lshl_b32 s29, s26, 7")
    a("s_add_u32 s28, s28, s29")
    a("v_lshl_add_u32 v2, v1, 1, s28")
    a("s_lshl_b32 s30, s2, 2")
    a("s_waitcnt lgkmcnt(0)")
    wsfix(a, 14)
    a("global_load_ushort v4, v2, s[4:5] nt")
    a("global_load_ushort v5, v2, s[6:7] nt")
    a("global_load_ushort v6, v2, s[8:9] nt")
    a("global_load_ushort v7, v2, s[10:11] nt")
    a("s_load_dword s29, s[12:13], s30")
    a("v_and_b32 v16, 15, v1")
    a("v_cmp_eq_u32 s[32:33], 15, v16")
    a("v_lshrrev_b32 v18, 4, v1")
    a("v_add_u32 v19, 1, v16")
    a("v_cvt_f32_u32 v19, v19")
    a("s_lshl_b32 s31, s24, 10")
    a("v_lshl_add_u32 v17, v18, 6, s31")
    a("v_lshl_add_u32 v20, v1, 4, s31")
    for r in range(112, 128):
        a(f"v_mov_b32 v{r}, 0")
    T16 = 4096 + 16384
    a("s_mul_i32 s39, s25, 1344")
    a(f"s_add_u32 s39, s39, {T16 + 8}")
    a("v_subrev_u32 v21, 7, v16")
    a("v_cmp_gt_u32 s[34:35], 8, v21")
    a("v_add_u32 v21, 1, v16")
    a("v_and_b32 v21, 15, v21")
    a("v_lshlrev_b32 v24, 5, v21")
    a("v_lshl_add_u32 v24, v18, 3, v24")
    a("s_lshl_b32 s40, s26, 9")
    a("s_add_u32 s40, s40, s39")
    a("v_add_u32 v24, s40, v24")
    a("s_cmp_eq_u32 s26, 0")
    a("s_cselect_b64 s[36:37], -1, s[34:35]")
    a("s_lshl_b32 s40, s24, 12")
    a("s_add_u32 s40, s40, 4096")
    a("v_lshl_add_u32 v22, v1, 4, s40")
    a("s_lshl_b32 s40, s25, 13")
    a("s_lshl_b32 s41, s26, 11")
    a("s_add_u32 s40, s40, s41")
    a("s_add_u32 s40, s40, 4096")
    a("v_lshl_add_u32 v23, v1, 4, s40")
    a("s_lshl_b32 s40, s26, 6")
    a("v_add_u32 v26, s40, v1")
    a("v_lshlrev_b32 v27, 3, v26")
    a("v_sub_u32 v27, 2047, v27")
    a("v_cvt_f32_u32 v28, v27")
    a("s_sub_u32 s41, s39, 34050")
    a("s_sub_u32 s42, s39, 2")
    GA = 140
    for rnd in range(2):
        if rnd == 1:
            a("v_add_f32 v28, 0xc4800000, v28")
            a("v_subrev_u32 v27, 1024, v27")
        for t in range(8):
            if t == 0: a(f"v_mov_b32 v48, v28")
            else: a(f"v_add_f32 v{48+t}, {-float(t)}, v28")
        for p in range(4):
            a(f"v_cvt_pk_bf16_f32 v{56+p}, v{48+2*p}, v{49+2*p}")
        for p in range(4):
            a(f"v_and_b32 v{48+2*p}, 0xffff, v{56+p}")
            a(f"v_lshrrev_b32 v{49+2*p}, 16, v{56+p}")
        o = GA + 8 * rnd
        for t in range(8):
            a(f"v_lshl_add_u32 v{o+t}, v{48+t}, 1, s41")
        if rnd == 1:
            a("v_cmp_le_u32 vcc, 112, v26")
            for t in range(8):
                a(f"v_subrev_u32 v{56+(t&3)}, {t}, v27")
                a(f"v_lshl_add_u32 v{56+(t&3)}, v{56+(t&3)}, 1, s42")
                a(f"v_cndmask_b32 v{o+t}, v{o+t}, v{56+(t&3)}, vcc")
    a(f"s_mul_i32 s40, s27, {KW}")
    a(f"s_add_u32 s40, s40, {KREV}")
    a("v_lshl_add_u32 v29, v26, 4, s40")
    a("v_add_u32 v30, 2048, v29")
    a("v_add_u32 v31, 4096, v29")
    a("s_waitcnt lgkmcnt(0)")
    a("s_lshl_b32 s43, s25, 4")
    a("s_lshr_b32 s29, s29, s43")
    a("s_lshl_b32 s29, s29, 16")
    a(f"v_mov_b32 v8, {LOG2E}")
    a("v_mul_f32 v9, s29, v8")
    a("v_exp_f32 v9, v9")
    a("s_nop 0")
    rbf(a, 9, 9)
    a("s_waitcnt vmcnt(0)")
    a("v_lshlrev_b32 v4, 16, v4")
    a("v_lshlrev_b32 v5, 16, v5")
    a("v_lshlrev_b32 v6, 16, v6")
    a("v_lshlrev_b32 v7, 16, v7")
    a("v_mul_f32 v4, v4, v8")
    a("v_exp_f32 v4, v4")
    a("v_mul_f32 v13, v5, v9")
    a("v_mul_f32 v14, v6, v9")
    rbf(a, 4, 4)
    a("v_mul_f32 v15, v7, v9")
    a("v_mul_f32 v12, v4, v9")
    a(f"v_mul_f32 v13, {INV2PI}, v13")
    a("v_add_f32 v14, v14, v14")
    a("v_add_f32 v15, v15, v15")
    a("v_mul_f32 v12, v12, v8")
    a("v_mov_b32 v10, v14")
    a("v_sub_f32 v12, 0, v12")
    a("ds_write_b128 v20, v[12:15]")
    for ctl in ("row_shr:1", "row_shr:2", "row_shr:4", "row_shr:8", "row_bcast:15 row_mask:0xa", "row_bcast:31 row_mask:0xc"):
        a("s_nop 1")
        a(f"v_add_f32_dpp v10, v10, v10 {ctl}")
    a("s_waitcnt lgkmcnt(0)")
    stamp(a, 1)
    R = [[32 + 4 * u for u in range(4)], [48 + 4 * u for u in range(4)]]
    PA = [64 + 2 * u for u in range(4)]
    PB = [72 + 2 * u for u in range(4)]
    TT = [80 + 2 * u for u in range(4)]
    QF = [88 + 4 * e for e in range(4)]
    GF = [104, 108]
    DD = [112 + 4 * e for e in range(4)]
    CPK = [128 + u for u in range(4)]
    MAG = [132 + 2 * u for u in range(4)]
    for u in range(4):
        a(f"ds_read_b128 v[{R[0][u]}:{R[0][u]+3}], v17 offset:{u*16}")
    for ks in range(4):
        Rc = R[ks & 1]
        if ks + 1 < 4:
            for u in range(4):
                a(f"ds_read_b128 v[{R[(ks+1)&1][u]}:{R[(ks+1)&1][u]+3}], v17 offset:{(ks+1)*256+u*16}")
            a("s_waitcnt lgkmcnt(4)")
        else:
            a("s_waitcnt lgkmcnt(0)")
        for u in range(4): a(f"v_mul_f32 v{TT[u]}, v{Rc[u]}, v19")
        for u in range(4): a(f"v_mul_f32 v{TT[u]+1}, v{Rc[u]+1}, v19")
        for u in range(4): a(f"v_exp_f32 v{MAG[u]}, v{TT[u]}")
        for u in range(4): a(f"v_fract_f32 v{TT[u]+1}, v{TT[u]+1}")
        for u in range(4): a(f"v_cvt_pk_bf16_f32 v{CPK[u]}, v{Rc[u]+2}, -v{Rc[u]+3}")
        for u in range(4): a(f"v_cos_f32 v{PB[u]}, v{TT[u]+1}")
        for u in range(4): a(f"v_sin_f32 v{PB[u]+1}, v{TT[u]+1}")
        a("s_nop 0")
        for u in range(4):
            a(f"v_pk_mul_f32 v[{PA[u]}:{PA[u]+1}], v[{PB[u]}:{PB[u]+1}], v[{MAG[u]}:{MAG[u]+1}] op_sel:[0,0] op_sel_hi:[1,0]")
        cur, oth = PA, PB
        for e in range(4):
            for u in range(4): a(f"v_cvt_pk_bf16_f32 v{QF[e]+u}, v{cur[u]}, v{cur[u]+1}")
            sq = [csq(a, oth[u], cur[u], TT[u]) for u in range(4)]
            for u in range(4): a(sq[u][0])
            for u in range(4): a(sq[u][1])
            cur, oth = oth, cur
        for e in range(4):
            g = GF[e & 1]
            cm = [cmulconj(a, oth[u], cur[u], Rc[u] + 2, TT[u]) for u in range(4)]
            for u in range(4): a(cm[u][0])
            for u in range(4): a(cm[u][1])
            for u in range(4): a(f"v_cvt_pk_bf16_f32 v{g+u}, v{oth[u]}, v{oth[u]+1}")
            if e == 0:
                for u in range(4): a(f"v_cndmask_b32 v{g+u}, v{g+u}, v{CPK[u]}, s[32:33]")
            if e < 3:
                sq = [csq(a, oth[u], cur[u], TT[u]) for u in range(4)]
                for u in range(4): a(sq[u][0])
                a(f"v_mfma_f32_16x16x32_bf16 v[{DD[e]}:{DD[e]+3}], v[{QF[e]}:{QF[e]+3}], v[{g}:{g+3}], v[{DD[e]}:{DD[e]+3}]")
                for u in range(4): a(sq[u][1])
                cur, oth = oth, cur
            else:
                a("s_nop 1")
                a(f"v_mfma_f32_16x16x32_bf16 v[{DD[e]}:{DD[e]+3}], v[{QF[e]}:{QF[e]+3}], v[{g}:{g+3}], v[{DD[e]}:{DD[e]+3}]")
    stamp(a, 2)
    a("v_readlane_b32 s44, v10, 63")
    a(f"s_lshl_b32 s45, s24, 2")
    a(f"s_add_u32 s45, s45, {T16 + 2*1344 + 16}")
    a("v_mov_b32 v11, s45")
    a("v_mov_b32 v10, s44")
    a("s_nop 1")
    for e in range(4):
        a(f"ds_write_b128 v22, v[{DD[e]}:{DD[e]+3}] offset:{e*1024}")
    a("ds_write_b32 v11, v10")
    a("s_waitcnt lgkmcnt(0)")
    a("s_barrier")
    a("ds_read_b128 v[32:35], v23")
    a("ds_read_b128 v[36:39], v23 offset:4096")
    a("ds_read_b128 v[40:43], v23 offset:1024")
    a("ds_read_b128 v[44:47], v23 offset:5120")
    a(f"s_lshl_b32 s45, s25, 3")
    a(f"s_add_u32 s45, s45, {T16 + 2*1344 + 16}")
    a("v_mov_b32 v11, s45")
    a("ds_read_b64 v[8:9], v11")
    a("s_waitcnt lgkmcnt(0)")
    for r in range(4): a(f"v_add_f32 v{32+r}, v{32+r}, v{36+r}")
    for r in range(4): a(f"v_add_f32 v{40+r}, v{40+r}, v{44+r}")
    a("v_add_f32 v8, v8, v9")
    a("v_cvt_pk_bf16_f32 v32, v32, v33")
    a("v_cvt_pk_bf16_f32 v33, v34, v35")
    a("v_cvt_pk_bf16_f32 v40, v40, v41")
    a("v_cvt_pk_bf16_f32 v41, v42, v43")
    a("v_cvt_pk_bf16_f32 v8, v8, v8")
    a("s_sub_u32 s45, s39, 2")
    a("v_mov_b32 v11, s45")
    a("s_mov_b64 s[42:43], exec")
    a("s_mov_b64 exec, s[36:37]")
    a("ds_write_b64 v24, v[32:33]")
    a("s_mov_b64 exec, s[34:35]")
    a("ds_write_b64 v24, v[40:41] offset:256")
    a("s_mov_b64 exec, s[42:43]")
    a("ds_write_b16 v11, v8")
    a("s_waitcnt lgkmcnt(0)")
    a("s_barrier")
    stamp(a, 3)
    for t in range(16):
        a(f"ds_read_u16 v{76+t}, v{GA+t}")
        if t == 7: a("v_mov_b32 v72, 0\nv_mov_b32 v73, 0\nv_mov_b32 v74, 0\nv_mov_b32 v75, 0")
    a("s_waitcnt lgkmcnt(8)")
    for p in range(4):
        a(f"v_lshl_or_b32 v{64+p}, v{77+2*p}, 16, v{76+2*p}")
    a("global_store_dwordx4 v29, v[64:67], s[14:15] sc1")
    a("s_waitcnt lgkmcnt(0)")
    for p in range(4):
        a(f"v_lshl_or_b32 v{68+p}, v{85+2*p}, 16, v{84+2*p}")
    a("global_store_dwordx4 v30, v[68:71], s[14:15] sc1")
    a("v_cmp_gt_u32 vcc, 4, v26")
    a("s_and_saveexec_b64 s[42:43], vcc")
    a("s_cbranch_execz K1_END")
    a("global_store_dwordx4 v31, v[72:75], s[14:15] sc1")
    a("s_branch K1_END")
    a("K1_TSM:   ; LINT-RESET")
    a("s_sub_u32 s25, s2, 256")
    a("s_and_b32 s28, s25, 7")
    a("s_lshr_b32 s29, s25, 3")
    a("s_lshr_b32 s26, s29, 3")
    a("s_lshl_b32 s27, s28, 2")
    a("s_add_u32 s26, s26, s27")
    a("s_and_b32 s27, s29, 7")
    a("s_lshl_b32 s30, s28, 8")
    a("s_lshl_b32 s31, s29, 3")
    a("s_add_u32 s30, s30, s31")
    a("s_lshl_b32 s28, s26, 16")
    a("s_lshl_b32 s29, s27, 7")
    a("s_add_u32 s28, s28, s29")
    a("v_lshrrev_b32 v2, 3, v0")
    a("v_and_b32 v3, 7, v0")
    a("v_lshlrev_b32 v4, 10, v2")
    a("v_lshl_add_u32 v4, v3, 4, v4")
    a("v_add_u32 v4, s28, v4")
    a("v_add_u32 v5, 0x8000, v4")
    a("s_lshl_b32 s31, s24, 1")
    a("s_add_u32 s30, s30, s31")
    a("s_lshl_b32 s31, s30, 10")
    a("v_lshl_add_u32 v6, v1, 4, s31")
    a("s_and_b32 s33, s25, 7")
    a("s_mul_i32 s33, s33, 24")
    a("s_lshr_b32 s34, s25, 3")
    a("s_add_u32 s33, s33, s34")
    a("v_lshrrev_b32 v7, 1, v0")
    a("v_and_b32 v24, 1, v0")
    a("v_mul_u32_u24 v25, 6144, v7")
    a("v_lshl_add_u32 v25, v24, 4, v25")
    a("s_lshl_b32 s35, s33, 5")
    a("v_add_u32 v25, s35, v25")
    a("v_add_u32 v26, 786432, v25")
    a("v_add_u32 v27, 786432, v26")
    a("v_add_u32 v28, 786432, v27")
    a("v_lshlrev_b32 v29, 1, v7")
    a("s_waitcnt lgkmcnt(0)")
    wsfix(a, 14)
    a("global_load_dwordx4 v[8:11], v4, s[16:17]" + NT1)
    a("global_load_dwordx4 v[12:15], v5, s[16:17]" + NT1)
    a("global_load_dwordx4 v[16:19], v6, s[16:17]" + NT1)
    a("global_load_dwordx4 v[20:23], v6, s[16:17] offset:1024" + NT1)
    a("s_cmp_ge_u32 s25, 192")
    a("s_cbranch_scc1 K1_nomodld")
    for k in range(4):
        a(f"global_load_ushort v{48+k}, v29, s[20:21] offset:{256*k}")
    for k, vo in enumerate((25, 26, 27, 28)):
        a(f"global_load_dwordx4 v[{32+4*k}:{35+4*k}], v{vo}, s[22:23]" + NT1)
    a("K1_nomodld:")
    if OPT.get("cpf", "1") == "1":
        a("s_sub_u32 s65, s25, 192")
        a("s_cmp_ge_u32 s65, 16")
        a("s_cbranch_scc1 K1_nocpf")
        a("s_cmp_lg_u32 s24, 3")
        a("s_cbranch_scc1 K1_nocpf")
        code_prefetch(a, "k1_kernel", LASTLABEL, 6, "k1", 70, 72)
        TS = int(OPT.get("tlb", "0"))
        if TS:
            a("s_load_dwordx2 s[50:51], s[0:1], 64")
            a("s_load_dwordx2 s[52:53], s[0:1], 80")
            a("s_load_dwordx2 s[54:55], s[0:1], 112")
            a("s_load_dwordx2 s[56:57], s[0:1], 72")
            a("s_load_dwordx2 s[58:59], s[0:1], 88")
            a("s_load_dwordx2 s[60:61], s[0:1], 48")
            a(f"v_mul_u32_u24 v71, {TS}, v1")
            a("s_waitcnt lgkmcnt(0)")
            k = 80
            for (sr, size) in ((14, WS_USED), (50, 512*1376*2), (52, 512*1376*2), (54, 2048*512*2)):
                n = -(-size // (64 * TS))
                for i in range(n):
                    a(f"v_add_u32 v70, {i * 64 * TS}, v71")
                    a(f"v_cmp_gt_u32 vcc, {size}, v70")
                    a("s_and_saveexec_b64 s[62:63], vcc")
                    a(f"global_load_dword v{k}, v70, s[{sr}:{sr+1}]")
                    a("s_mov_b64 exec, s[62:63]")
                    k = 80 + (k - 80 + 1) % 40
            a("v_mov_b32 v70, 0")
            for sr in (56, 58, 60):
                a(f"global_load_dword v{k}, v70, s[{sr}:{sr+1}]"); k += 1
        a("s_waitcnt vmcnt(0)")
        a("K1_nocpf:   ; LINT-RESET")
    a("v_mul_u32_u24 v30, 160, v2")
    a("v_lshl_add_u32 v30, v3, 4, v30")
    a("s_cmp_ge_u32 s25, 192")
    a("s_cbranch_scc1 K1_w0")
    a("s_waitcnt vmcnt(10)")
    a("s_branch K1_w1")
    a("K1_w0:")
    a("s_waitcnt vmcnt(2)")
    a("K1_w1:   ; LINT-RESET (T loads have landed; S/mod loads may be outstanding)")
    stamp(a, 1)
    a("ds_write_b128 v30, v[8:11]")
    a("ds_write_b128 v30, v[12:15] offset:5120")
    a("s_cmp_ge_u32 s25, 192")
    a("s_cbranch_scc1 K1_w2")
    a("s_waitcnt vmcnt(8)")
    a("s_branch K1_w3")
    a("K1_w2:")
    a("s_waitcnt vmcnt(0)")
    a("K1_w3:   ; LINT-RESET")
    a("v_mov_b32 v31, 0x3f803f80")
    a("v_mov_b32 v52, 0\nv_mov_b32 v53, 0\nv_mov_b32 v54, 0\nv_mov_b32 v55, 0")
    for k in range(4):
        a(f"v_dot2_f32_bf16 v52, v{16+k}, v31, v52")
        a(f"v_dot2_f32_bf16 v53, v{16+k}, v{16+k}, v53")
        a(f"v_dot2_f32_bf16 v54, v{20+k}, v31, v54")
        a(f"v_dot2_f32_bf16 v55, v{20+k}, v{20+k}, v55")
    a("s_nop 1")
    for ctl in ("row_shr:1", "row_shr:2", "row_shr:4", "row_shr:8", "row_bcast:15 row_mask:0xa", "row_bcast:31 row_mask:0xc"):
        for r in range(52, 56):
            a(f"v_add_f32_dpp v{r}, v{r}, v{r} {ctl}")
        a("s_nop 0") if False else None
    a("s_nop 1")
    for k, r in enumerate(range(52, 56)):
        a(f"v_readlane_b32 s{36+k}, v{r}, 63")
    a("s_nop 1")
    a("v_cmp_eq_u32 vcc, 0, v1")
    a("v_mov_b32 v56, s38")
    a("v_mov_b32 v57, s39")
    a("v_mov_b32 v58, s36")
    a("v_mov_b32 v59, s37")
    a("v_cndmask_b32 v56, v56, v58, vcc")
    a("v_cndmask_b32 v57, v57, v59, vcc")
    a("v_mul_f32 v56, 0x3b000000, v56")
    a("v_mul_f32 v57, 0x3b000000, v57")
    a("v_fma_f32 v57, -v56, v56, v57")
    a("v_max_f32 v57, 0, v57")
    rbf(a, 56, 56)
    rbf(a, 57, 57)
    a("v_add_f32 v57, 0x3727c5ac, v57")
    rbf(a, 57, 57)
    a("v_sqrt_f32 v57, v57")
    a("s_nop 0")
    rbf(a, 57, 57)
    a("v_rcp_f32 v58, v57")
    a("s_nop 0")
    a("v_mul_f32 v59, v56, v58")
    a("v_sub_f32 v59, 0, v59")
    a("s_lshl_b32 s31, s30, 2")
    a(f"s_add_u32 s31, s31, {STAT1}")
    a("v_lshl_add_u32 v60, v1, 2, s31")
    a("v_add_u32 v61, 8192, v60")
    a("v_cmp_gt_u32 vcc, 2, v1")
    a("s_and_saveexec_b64 s[42:43], vcc")
    a("global_store_dword v60, v58, s[14:15]" + SC1)
    a("global_store_dword v61, v59, s[14:15]" + SC1)
    a("s_mov_b64 exec, s[42:43]")
    a("s_cmp_ge_u32 s25, 192")
    a("s_cbranch_scc1 K1_nomodc")
    a("s_waitcnt vmcnt(2)")
    for k in range(4):
        a(f"v_lshlrev_b32 v{48+k}, 16, v{48+k}")
    for k in range(4):
        a(f"v_mul_f32 v{52+k}, 0xbfb8aa3b, v{48+k}")
    for k in range(4):
        a(f"v_exp_f32 v{52+k}, v{52+k}")
    a("s_nop 0")
    for k in range(4):
        a(f"v_add_f32 v{52+k}, 1.0, v{52+k}")
    for k in range(4):
        a(f"v_rcp_f32 v{56+k}, v{52+k}")
    a("s_nop 0")
    for k in range(4):
        a(f"v_mul_f32 v{60+k}, v{48+k}, v{56+k}")
    for k in range(4):
        a(f"v_fma_f32 v{48+k}, -v{60+k}, v{52+k}, v{48+k}")
    for k in range(4):
        a(f"v_fma_f32 v{48+k}, v{48+k}, v{56+k}, v{60+k}")
    for k in range(4):
        rbf(a, 48 + k, 48 + k)
    for k in range(4):
        for p in range(4):
            w = 32 + 4 * k + p
            a(f"v_lshlrev_b32 v62, 16, v{w}")
            a(f"v_and_b32 v63, 0xffff0000, v{w}")
            if k == 0:
                a(f"v_mul_f32 v{64+2*p}, v62, v48")
                a(f"v_mul_f32 v{65+2*p}, v63, v48")
            else:
                a(f"v_fmac_f32 v{64+2*p}, v62, v{48+k}")
                a(f"v_fmac_f32 v{65+2*p}, v63, v{48+k}")
    a("v_lshlrev_b32 v61, 5, v0")
    a("ds_write_b128 v61, v[64:67] offset:10240")
    a("ds_write_b128 v61, v[68:71] offset:10256")
    a("K1_nomodc:")
    stamp(a, 2)
    a("s_waitcnt lgkmcnt(0)")
    a("s_barrier")
    stamp(a, 3)
    a("v_lshrrev_b32 v2, 4, v1")
    a("v_bfe_u32 v3, v1, 2, 2")
    a("v_and_b32 v4, 3, v1")
    a("v_lshl_add_u32 v5, v2, 3, v3")
    a("v_mul_u32_u24 v5, 160, v5")
    a("v_lshl_add_u32 v5, v4, 3, v5")
    a("s_lshl_b32 s31, s24, 5")
    a("v_add_u32 v5, s31, v5")
    a("ds_read_b64_tr_b16 v[8:9], v5")
    a("ds_read_b64_tr_b16 v[10:11], v5 offset:640")
    a(f"ds_read_b64_tr_b16 v[12:13], v5 offset:{32*160}")
    a(f"ds_read_b64_tr_b16 v[14:15], v5 offset:{36*160}")
    a("v_and_b32 v6, 15, v1")
    a("v_lshlrev_b32 v6, 12, v6")
    a("v_lshl_add_u32 v6, v2, 4, v6")
    a("s_lshl_b32 s31, s27, 18")
    a("s_lshl_b32 s32, s24, 16")
    a("s_add_u32 s31, s31, s32")
    a("s_lshl_b32 s32, s26, 7")
    a("s_add_u32 s31, s31, s32")
    a(f"s_add_u32 s31, s31, {XT}") if XT else None
    a("v_add_u32 v6, s31, v6")
    a("s_waitcnt lgkmcnt(2)")
    a("global_store_dwordx4 v6, v[8:11], s[14:15]" + SC1)
    a("s_waitcnt lgkmcnt(0)")
    a("global_store_dwordx4 v6, v[12:15], s[14:15] offset:64" + SC1)
    a("s_cmp_ge_u32 s25, 192")
    a("s_cbranch_scc1 K1_END")
    a("s_cmp_lg_u32 s24, 0")
    a("s_cbranch_scc1 K1_END")
    a("v_and_b32 v2, 15, v1")
    a("v_lshrrev_b32 v3, 4, v1")
    a("v_lshlrev_b32 v4, 11, v3")
    a("v_lshl_add_u32 v4, v2, 2, v4")
    for i in range(32):
        a(f"ds_read_b32 v{16+i}, v4 offset:{10240+64*i}")
        if i == 14: a("s_waitcnt lgkmcnt(7)")
    a("s_waitcnt lgkmcnt(0)")
    for st in (16, 8, 4, 2, 1):
        for i in range(st):
            a(f"v_add_f32 v{16+i}, v{16+i}, v{16+st+i}")
    a("s_nop 0")
    a("v_mov_b32 v17, v16")
    a("s_nop 1")
    a("v_permlane16_swap_b32 v16, v17")
    a("s_nop 0")
    a("v_add_f32 v16, v16, v17")
    a("s_nop 0")
    a("v_mov_b32 v17, v16")
    a("s_nop 1")
    a("v_permlane32_swap_b32 v16, v17")
    a("s_nop 0")
    a("v_add_f32 v16, v16, v17")
    rbf(a, 16, 16)
    a("s_lshl_b32 s31, s33, 6")
    a(f"s_add_u32 s31, s31, {MODF}")
    a("v_lshl_add_u32 v5, v2, 2, s31")
    a("v_cmp_gt_u32 vcc, 16, v1")
    a("s_and_saveexec_b64 s[42:43], vcc")
    a("global_store_dword v5, v16, s[14:15]" + SC1)
    a("K1_END:   ; LINT-RESET")
    stamp_store(a, 0, 14, 24)
    a("K1_EXIT:")
    a.end_kernel(name, 160, 100)


KC_CH = 33280
CS    = 4160
UB    = 66560
U_CH  = 7600
SCR   = 81792
FLG   = SCR + 16384
SIDE  = FLG + 64
SIDE_SZ = 11520
K2_LDS = SIDE + 4 * SIDE_SZ
FLAGS_OFF = 0x0638000

def conv_path(a, hb, tag):
    if hb == 0: steps = [(d, True) for d in range(24)]
    else: steps = [(d, True) for d in range(24, 32)] + [(d, False) for d in range(32, 64)]
    ACC = [32, 48]
    SET = [64, 88, 112]
    def reads(k):
        d, both = steps[k]; b = SET[k % 3]
        out = []
        for hf in (0, 1):
            out.append(f"ds_read_b128 v[{b+4*hf}:{b+4*hf+3}], v2 offset:{64*d + 32*(1-hf)}")
        tiles = (0, 1) if both else (1,)
        for t in tiles:
            for hf in (0, 1):
                r = b + 8 + 8 * t + 4 * hf
                out.append(f"ds_read_b128 v[{r}:{r+3}], v3 offset:{(31 + 32*t - d)*80 + 32*hf}")
        return out
    n = len(steps)
    for k in range(2):
        for x in reads(k): a(x)
    for k in range(n):
        d, both = steps[k]; b = SET[k % 3]
        nxt = reads(k + 2) if k + 2 < n else []
        after = len(nxt) + (len(reads(k + 1)) if k + 1 < n else 0)
        mf = []
        tiles = (0, 1) if both else (1,)
        for hf in (0, 1):
            for t in tiles:
                r = b + 8 + 8 * t + 4 * hf
                mf.append(f"v_mfma_f32_32x32x16_bf16 v[{ACC[t]}:{ACC[t]+15}], v[{b+4*hf}:{b+4*hf+3}], v[{r}:{r+3}], v[{ACC[t]}:{ACC[t]+15}]")
        after = len(reads(k + 1)) if k + 1 < n else 0
        a(f"s_waitcnt lgkmcnt({after})")
        per = -(-len(nxt) // len(mf)) if nxt else 0
        ri = 0
        for m in mf:
            a(m)
            for _ in range(per):
                if ri < len(nxt): a(nxt[ri]); ri += 1
    stamp(a, 6)
    give, keep = (ACC[1], ACC[0]) if hb == 0 else (ACC[0], ACC[1])
    a("s_nop 7")
    a("s_nop 3")
    for i in range(4):
        a(f"ds_write_b128 v4, v[{give+4*i}:{give+4*i+3}] offset:{1024*i}")
    for i in range(4):
        a(f"ds_read_b64 v[{64+2*i}:{65+2*i}], v6 offset:{16*i}")
    a("s_waitcnt lgkmcnt(0)")
    a("v_mov_b32 v72, 1")
    a("ds_write_b32 v7, v72")
    a("s_mov_b32 s63, 0x400000")
    a(f"K2_poll{tag}:")
    a("ds_read_b32 v73, v8")
    a("s_waitcnt lgkmcnt(0)")
    a("v_readfirstlane_b32 s40, v73")
    a("s_sub_u32 s63, s63, 1")
    a("s_cmp_eq_u32 s63, 0")
    a(f"s_cbranch_scc1 K2_pollx{tag}")
    a("s_cmp_eq_u32 s40, 1")
    a(f"s_cbranch_scc0 K2_poll{tag}")
    a(f"K2_pollx{tag}:")
    for i in range(4):
        a(f"ds_read_b128 v[{80+4*i}:{83+4*i}], v5 offset:{1024*i}")
    for i in range(4):
        for q in range(2):
            a(f"v_lshlrev_b32 v{96+4*i+2*q}, 16, v{64+2*i+q}")
            a(f"v_and_b32 v{97+4*i+2*q}, 0xffff0000, v{64+2*i+q}")
    a("s_waitcnt vmcnt(0)")
    for i in range(4):
        for q in range(2):
            a(f"v_lshlrev_b32 v{112+4*i+2*q}, 16, v{144+2*i+q}")
            a(f"v_and_b32 v{113+4*i+2*q}, 0xffff0000, v{144+2*i+q}")
    a("s_waitcnt lgkmcnt(0)")
    for j in range(8):
        a(f"v_pk_add_f32 v[{keep+2*j}:{keep+2*j+1}], v[{keep+2*j}:{keep+2*j+1}], v[{80+2*j}:{81+2*j}]")
    for j in range(8):
        a(f"v_pk_fma_f32 v[{keep+2*j}:{keep+2*j+1}], v[{96+2*j}:{97+2*j}], s[36:37], v[{keep+2*j}:{keep+2*j+1}] op_sel_hi:[1,0,1]")
    for j in range(8):
        a(f"v_pk_fma_f32 v[{keep+2*j}:{keep+2*j+1}], v[{keep+2*j}:{keep+2*j+1}], s[36:37], v[{112+2*j}:{113+2*j}] op_sel:[0,1,0] op_sel_hi:[1,1,1]")
    for j in range(8):
        a(f"v_cvt_pk_bf16_f32 v{64+j}, v{keep+2*j}, v{keep+2*j+1}")
    for i in range(4):
        a(f"ds_write_b64 v10, v[{64+2*i}:{65+2*i}] offset:{16*i}")
    a("s_waitcnt lgkmcnt(0)")
    a("ds_read_b128 v[72:75], v11")
    a("ds_read_b128 v[76:79], v11 offset:1280")
    a("s_waitcnt lgkmcnt(1)")
    a("global_store_dwordx4 v9, v[72:75], s[14:15]" + SC1)
    a("s_waitcnt lgkmcnt(0)")
    a("global_store_dwordx4 v12, v[76:79], s[14:15]" + SC1)
    a("s_branch K2_END")

def side_load_and_stage(a):
    for i in range(8):
        a(f"buffer_load_dwordx4 v[{32+4*i}:{35+4*i}], v10, s[44:47], s49 offen nt")
        if i < 7: a("s_add_u32 s49, s49, s48")

def k2(a):
    name = "k2_kernel"
    a.begin_kernel(name, 256, 512, K2_LDS)
    a("s_cmp_ge_u32 s2, 256")
    a("s_cbranch_scc1 K2_EXIT")
    stamp(a, 0)
    a("s_load_dwordx2 s[14:15], s[0:1], 128")
    a("s_load_dwordx2 s[12:13], s[0:1], 48")
    a("s_load_dwordx2 s[16:17], s[0:1], 64")
    a("s_load_dwordx2 s[18:19], s[0:1], 80")
    wave_id(a, 24, 1)
    a("v_and_b32 v1, 63, v0")
    a("s_cmp_ge_u32 s24, 4")
    a("s_cbranch_scc1 K2_SIDE")
    a("s_lshl_b32 s27, s2, 1")
    a("s_lshr_b32 s25, s24, 1")
    a("s_and_b32 s26, s24, 1")
    a("s_lshl_b32 s28, s27, 12")
    a(f"s_add_u32 s28, s28, {XT}") if XT else None
    a("v_lshl_add_u32 v44, v0, 4, s28")
    a("v_add_u32 v45, 4096, v44")
    a("v_lshlrev_b32 v46, 5, v0")
    a(f"v_add_u32 v46, {STAT1}, v46")
    a(f"v_add_u32 v47, 8192, v46")
    a(f"s_mul_i32 s29, s27, {KW}")
    a(f"s_add_u32 s29, s29, {KREV + 4080}")
    a("v_lshlrev_b32 v48, 4, v0")
    a("v_sub_u32 v48, s29, v48")
    a(f"v_add_u32 v49, {KW}, v48")
    a("v_and_b32 v50, 31, v1")
    a("v_lshrrev_b32 v51, 5, v1")
    a("s_lshl_b32 s30, s25, 12")
    a("s_add_u32 s30, s30, s28")
    a("s_lshl_b32 s31, s26, 11")
    a("s_add_u32 s30, s30, s31")
    a("v_lshlrev_b32 v52, 6, v50")
    a("v_lshl_add_u32 v52, v51, 3, v52")
    a("v_add_u32 v52, s30, v52")
    a("s_lshl_b32 s32, s27, 2")
    a(f"s_add_u32 s33, s32, {MODF}")
    a(f"s_add_u32 s34, s32, {MODF + 2048}")
    a(f"s_add_u32 s35, s32, {MODF + 4096}")
    a("s_lshl_b32 s31, s2, 2")
    a("s_waitcnt lgkmcnt(0)")
    wsfix(a, 14)
    a("global_load_dwordx4 v[28:31], v48, s[14:15]")
    a("global_load_dwordx4 v[32:35], v48, s[14:15] offset:16")
    a("global_load_dwordx4 v[36:39], v49, s[14:15]")
    a("global_load_dwordx4 v[40:43], v49, s[14:15] offset:16")
    a("global_load_dwordx4 v[4:7], v44, s[14:15]")
    a("global_load_dwordx4 v[8:11], v45, s[14:15]")
    a("global_load_dwordx4 v[12:15], v46, s[14:15]")
    a("global_load_dwordx4 v[16:19], v46, s[14:15] offset:16")
    a("global_load_dwordx4 v[20:23], v47, s[14:15]")
    a("global_load_dwordx4 v[24:27], v47, s[14:15] offset:16")
    for i in range(4):
        a(f"global_load_dwordx2 v[{144+2*i}:{145+2*i}], v52, s[14:15] offset:{16*i}")
    a("s_load_dwordx2 s[50:51], s[14:15], s33")
    a("s_load_dwordx2 s[52:53], s[14:15], s34")
    a("s_load_dwordx2 s[54:55], s[14:15], s35")
    a("s_load_dword s56, s[12:13], s31")
    a("v_mov_b32 v56, 0\nv_mov_b32 v57, 0\nv_mov_b32 v58, 0\nv_mov_b32 v59, 0")
    a("v_mul_u32_u24 v53, 171, v0")
    a("v_lshrrev_b32 v53, 9, v53")
    a("v_mul_u32_u24 v54, 3, v53")
    a("v_sub_u32 v54, v0, v54")
    a(f"v_mul_u32_u24 v53, {CS}, v53")
    a("v_lshl_add_u32 v53, v54, 4, v53")
    a("v_cmp_gt_u32 vcc, 48, v0")
    a("s_and_saveexec_b64 s[42:43], vcc")
    a("ds_write_b128 v53, v[56:59]")
    a("s_mov_b64 exec, s[42:43]")
    a("v_lshlrev_b32 v53, 4, v0")
    a(f"v_add_u32 v53, {UB}, v53")
    a("v_cmp_gt_u32 vcc, 155, v0")
    a("s_and_saveexec_b64 s[42:43], vcc")
    a(f"ds_write_b128 v53, v[56:59]")
    a(f"ds_write_b128 v53, v[56:59] offset:{U_CH}")
    a("s_mov_b64 exec, s[42:43]")
    a("v_lshlrev_b32 v53, 2, v0")
    a("v_cmp_gt_u32 vcc, 4, v0")
    a("s_and_saveexec_b64 s[42:43], vcc")
    a(f"v_add_u32 v53, {FLG}, v53")
    a("ds_write_b32 v53, v56")
    a("s_mov_b64 exec, s[42:43]")
    a("v_and_b32 v53, 7, v50")
    a("v_lshrrev_b32 v54, 3, v50")
    a(f"v_mul_u32_u24 v2, {CS}, v53")
    a("v_sub_u32 v54, v54, v51")
    a("v_add_u32 v54, 1, v54")
    a("v_lshl_add_u32 v2, v54, 4, v2")
    a(f"s_mul_i32 s38, s25, {KC_CH}")
    a("v_add_u32 v2, s38, v2")
    a("v_mul_u32_u24 v3, 80, v50")
    a("v_lshl_add_u32 v3, v51, 4, v3")
    a(f"s_mul_i32 s38, s25, {U_CH}")
    a(f"s_add_u32 s38, s38, {UB}")
    a("v_add_u32 v3, s38, v3")
    a("v_lshlrev_b32 v55, 4, v0")
    a("v_add_u32 v55, 48, v55")
    for c in range(2):
        W = 28 + 8 * c
        a(f"s_waitcnt vmcnt({12 - 2*c})")
        V = 60
        for j in range(7): a(f"v_alignbit_b32 v{V+j}, v{W+j+1}, v{W+j}, 16")
        for j in range(1, 7): a(f"v_alignbit_b32 v{68+j-1}, v{W+j+1}, v{W+j}, 16")
        for j in range(1, 7): a(f"v_mov_b32 v{76+j-1}, v{W+j}")
        off = c * KC_CH
        a(f"ds_write_b128 v55, v[{W}:{W+3}] offset:{off + 7*CS}")
        a(f"ds_write_b128 v55, v[{W+2}:{W+5}] offset:{off + 3*CS}")
        a(f"ds_write_b128 v55, v[{V}:{V+3}] offset:{off + 6*CS}")
        a(f"ds_write_b128 v55, v[{V+2}:{V+5}] offset:{off + 2*CS}")
        a(f"ds_write_b128 v55, v[68:71] offset:{off + 4*CS}")
        a(f"ds_write_b128 v55, v[70:73] offset:{off + 0*CS}")
        a(f"ds_write_b128 v55, v[76:79] offset:{off + 5*CS}")
        a(f"ds_write_b128 v55, v[78:81] offset:{off + 1*CS}")
    a("s_waitcnt vmcnt(4) lgkmcnt(0)")
    a("v_add_f32 v60, 1.0, s52")
    a("v_add_f32 v61, 1.0, s53")
    rbf(a, 60, 60); rbf(a, 61, 61)
    a("s_nop 0")
    a("v_readfirstlane_b32 s58, v60")
    a("v_readfirstlane_b32 s60, v61")
    a("s_mov_b32 s59, s50")
    a("s_mov_b32 s61, s51")
    a("s_lshl_b32 s38, s25, 4")
    a("s_lshr_b32 s36, s56, s38")
    a("s_lshl_b32 s36, s36, 16")
    a("s_cmp_eq_u32 s25, 0")
    a("s_cselect_b32 s37, s54, s55")
    a("v_lshrrev_b32 v62, 2, v0")
    a("v_mul_u32_u24 v62, 80, v62")
    a("v_and_b32 v63, 3, v0")
    a("v_lshl_add_u32 v62, v63, 4, v62")
    a(f"v_add_u32 v62, {UB + 31*80}, v62")
    for c in range(2):
        X = 4 + 4 * c
        for q in range(4):
            a(f"v_lshlrev_b32 v{64+2*q}, 16, v{X+q}")
            a(f"v_and_b32 v{65+2*q}, 0xffff0000, v{X+q}")
        for q in range(4):
            a(f"v_pk_fma_f32 v[{64+2*q}:{65+2*q}], v[{64+2*q}:{65+2*q}], v[{12+2*q}:{13+2*q}], v[{20+2*q}:{21+2*q}]")
        for q in range(4):
            a(f"v_pk_fma_f32 v[{64+2*q}:{65+2*q}], v[{64+2*q}:{65+2*q}], s[{58+2*c}:{59+2*c}], s[{58+2*c}:{59+2*c}] op_sel:[0,0,1] op_sel_hi:[1,0,1]")
        for q in range(4):
            a(f"v_cvt_pk_bf16_f32 v{72+4*c+q}, v{64+2*q}, v{65+2*q}")
        a(f"ds_write_b128 v62, v[{72+4*c}:{75+4*c}] offset:{c*U_CH}")
    a("s_lshl_b32 s38, s24, 12")
    a(f"s_add_u32 s38, s38, {SCR}")
    a("v_lshl_add_u32 v4, v1, 4, s38")
    a("s_xor_b32 s39, s24, 1")
    a("s_lshl_b32 s38, s39, 12")
    a(f"s_add_u32 s38, s38, {SCR}")
    a("v_lshl_add_u32 v5, v1, 4, s38")
    a("s_lshl_b32 s38, s24, 2")
    a(f"s_add_u32 s38, s38, {FLG}")
    a("v_mov_b32 v7, s38")
    a("s_lshl_b32 s38, s39, 2")
    a(f"s_add_u32 s38, s38, {FLG}")
    a("v_mov_b32 v8, s38")
    a("v_mul_u32_u24 v6, 80, v50")
    a("v_lshl_add_u32 v6, v51, 3, v6")
    a(f"s_mul_i32 s38, s25, {U_CH}")
    a(f"s_mul_i32 s39, s26, {32*80}")
    a("s_add_u32 s38, s38, s39")
    a(f"s_add_u32 s38, s38, {UB + 31*80}")
    a("v_add_u32 v6, s38, v6")
    a("s_add_u32 s38, s27, s25")
    a("s_lshl_b32 s38, s38, 7")
    a("s_lshl_b32 s39, s26, 20")
    a("s_add_u32 s38, s38, s39")
    a(f"s_add_u32 s38, s38, {X2T}")
    a("v_lshrrev_b32 v9, 3, v1")
    a("v_lshlrev_b32 v9, 16, v9")
    a("v_and_b32 v63, 7, v1")
    a("v_lshl_add_u32 v9, v63, 4, v9")
    a("v_add_u32 v9, s38, v9")
    a("v_add_u32 v12, 0x80000, v9")
    a(f"s_mul_i32 s38, s25, {KC_CH}")
    a("s_mul_i32 s39, s26, 2560")
    a("s_add_u32 s38, s38, s39")
    a("v_mul_u32_u24 v10, 80, v50")
    a("v_lshl_add_u32 v10, v51, 3, v10")
    a("v_add_u32 v10, s38, v10")
    a("v_lshrrev_b32 v11, 2, v1")
    a("v_mul_u32_u24 v11, 80, v11")
    a("v_and_b32 v63, 3, v1")
    a("v_lshl_add_u32 v11, v63, 4, v11")
    a("v_add_u32 v11, s38, v11")
    for r in range(32, 64): a(f"v_mov_b32 v{r}, 0")
    stamp(a, 1)
    a("s_waitcnt lgkmcnt(0)")
    a("s_barrier")
    stamp(a, 2)
    a("s_cmp_eq_u32 s26, 0")
    a("s_cbranch_scc0 K2_B")
    conv_path(a, 0, "A")
    a("K2_B:   ; LINT-RESET")
    conv_path(a, 1, "B")
    a("K2_SIDE:   ; LINT-RESET")
    a("s_sub_u32 s25, s24, 4")
    a("s_lshl_b32 s26, s25, 8")
    a("s_add_u32 s26, s26, s2")
    a(f"s_mul_i32 s27, s25, {SIDE_SZ}")
    a(f"s_add_u32 s27, s27, {SIDE}")
    a("s_cmp_gt_u32 s26, 348")
    a("s_cbranch_scc1 K2_SIDE_IDLE")
    a("s_cmp_eq_u32 s26, 348")
    a("s_cbranch_scc1 K2_TAB")
    a("v_lshrrev_b32 v2, 2, v1")
    a("v_and_b32 v3, 3, v1")
    a("v_lshrrev_b32 v4, 4, v1")
    a("v_bfe_u32 v5, v1, 2, 2")
    a("v_mul_u32_u24 v11, 80, v2")
    a("v_lshl_add_u32 v11, v3, 4, v11")
    a("v_add_u32 v11, s27, v11")
    a("v_lshl_add_u32 v12, v4, 2, v5")
    a("v_mul_u32_u24 v12, 80, v12")
    a("v_lshl_add_u32 v12, v3, 3, v12")
    a("v_add_u32 v12, s27, v12")
    a("s_cmp_ge_u32 s26, 172")
    a("s_cbranch_scc1 K2_W2")
    a("s_mul_i32 s28, s26, 1525")
    a("s_lshr_b32 s28, s28, 16")
    a("s_mul_i32 s29, s28, 43")
    a("s_sub_u32 s29, s26, s29")
    a("v_mul_u32_u24 v10, 2752, v2")
    a("v_lshl_add_u32 v10, v3, 4, v10")
    a(f"s_mul_i32 s49, s28, {128*2752}")
    a("s_lshl_b32 s30, s29, 6")
    a("s_add_u32 s49, s49, s30")
    a(f"s_mov_b32 s48, {16*2752}")
    a("s_lshl_b32 s31, s28, 9")
    a("v_lshl_add_u32 v13, v1, 2, s31")
    a(f"v_add_u32 v13, {MODF + 3*2048}, v13")
    a("v_add_u32 v14, 2048, v13")
    a("s_waitcnt lgkmcnt(0)")
    wsfix(a, 14)
    a.srd(44, 16, 512 * 1376 * 2)
    a("global_load_dword v20, v13, s[14:15]")
    a("global_load_dword v21, v13, s[14:15] offset:256")
    a("global_load_dword v22, v14, s[14:15]")
    a("global_load_dword v23, v14, s[14:15] offset:256")
    side_load_and_stage(a)
    a("s_barrier")
    a("s_waitcnt vmcnt(8)")
    a("v_add_f32 v22, 1.0, v22")
    a("v_add_f32 v23, 1.0, v23")
    rbf(a, 22, 22); rbf(a, 23, 23)
    a("v_lshl_add_u32 v15, v1, 2, s27")
    a("v_lshl_add_u32 v16, v1, 1, s27")
    a("ds_write_b32 v15, v22 offset:10240")
    a("ds_write_b32 v15, v23 offset:10496")
    a("ds_write_b16_d16_hi v16, v20 offset:10752")
    a("ds_write_b16_d16_hi v16, v21 offset:10880")
    for i in range(8):
        a(f"s_waitcnt vmcnt({7-i})")
        a(f"ds_write_b128 v11, v[{32+4*i}:{35+4*i}] offset:{16*80*i}")
    a("v_and_b32 v17, 15, v1")
    a("v_cmp_eq_u32 s[50:51], 0, v17")
    a("v_cmp_eq_u32 s[52:53], 1, v17")
    a("v_mov_b32 v18, 0")
    a("v_mov_b32 v19, 0x3f803f80")
    a("v_cndmask_b32 v18, v18, v19, s[50:51]")
    a("v_mov_b32 v19, 0")
    a("v_cndmask_b32 v19, v19, -1, s[52:53]")
    a("v_lshl_add_u32 v24, v4, 4, s27")
    a("v_lshl_add_u32 v25, v4, 3, s27")
    for r in range(96, 112): a(f"v_mov_b32 v{r}, 0")
    a("s_lshl_b32 s30, s29, 11")
    a(f"s_mul_i32 s31, s28, {4*87*1024}")
    a("s_add_u32 s30, s30, s31")
    a(f"s_add_u32 s30, s30, {W1F}")
    a("v_lshl_add_u32 v26, v1, 4, s30")
    a("s_waitcnt lgkmcnt(0)")
    for ks in range(4):
        a(f"ds_read_b128 v[32:35], v24 offset:{10240 + 128*ks}")
        a(f"ds_read_b128 v[36:39], v24 offset:{10240 + 128*ks + 64}")
        a(f"ds_read_b64 v[40:41], v25 offset:{10752 + 64*ks}")
        a(f"ds_read_b64 v[42:43], v25 offset:{10752 + 64*ks + 32}")
        for nt in range(2):
            for hf in range(2):
                a(f"ds_read_b64_tr_b16 v[{44+4*nt+2*hf}:{45+4*nt+2*hf}], v12 offset:{(32*ks+16*hf)*80 + 32*nt}")
        a("s_waitcnt lgkmcnt(4)")
        for q in range(4): a(f"v_and_or_b32 v{40+q}, v{40+q}, v19, v18")
        a("s_waitcnt lgkmcnt(0)")
        for nt in range(2):
            R = 44 + 4 * nt
            for q in range(4):
                a(f"v_lshlrev_b32 v{52+2*q}, 16, v{R+q}")
                a(f"v_and_b32 v{53+2*q}, 0xffff0000, v{R+q}")
            a(f"v_mfma_f32_16x16x32_bf16 v[{96+4*nt}:{99+4*nt}], v[{R}:{R+3}], v[40:43], v[{96+4*nt}:{99+4*nt}]")
            for q in range(4):
                a(f"v_pk_mul_f32 v[{52+2*q}:{53+2*q}], v[{52+2*q}:{53+2*q}], v[{32+2*q}:{33+2*q}]")
            S = 60 + 4 * nt
            for q in range(4):
                a(f"v_cvt_pk_bf16_f32 v{S+q}, v{52+2*q}, v{53+2*q}")
            a(f"global_store_dwordx4 v26, v[{S}:{S+3}], s[14:15] offset:{1024*nt}" + SC1)
            if nt == 1: a(f"v_add_u32 v26, {87*1024}, v26")
            a("s_nop 0")
            a(f"v_mfma_f32_16x16x32_bf16 v[{104+4*nt}:{107+4*nt}], v[{S}:{S+3}], v[40:43], v[{104+4*nt}:{107+4*nt}]")
    a(f"s_mul_i32 s30, s28, {3*5504}")
    a("s_lshl_b32 s31, s29, 7")
    a("s_add_u32 s30, s30, s31")
    a(f"s_add_u32 s30, s30, {SVP}")
    a("v_lshl_add_u32 v28, v4, 4, s30")
    a("v_add_u32 v29, 5504, v28")
    a("v_add_u32 v30, 5504, v29")
    a("s_nop 7")
    a("s_mov_b64 s[42:43], exec")
    a("s_mov_b64 exec, s[50:51]")
    for nt in range(2):
        a(f"global_store_dwordx4 v28, v[{104+4*nt}:{107+4*nt}], s[14:15] offset:{64*nt}" + SC1)
        a(f"global_store_dwordx4 v30, v[{96+4*nt}:{99+4*nt}], s[14:15] offset:{64*nt}" + SC1)
    a("s_mov_b64 exec, s[52:53]")
    for nt in range(2):
        a(f"global_store_dwordx4 v29, v[{96+4*nt}:{99+4*nt}], s[14:15] offset:{64*nt}" + SC1)
    a("s_mov_b64 exec, s[42:43]")
    a("s_branch K2_END")
    a("K2_W2:   ; LINT-RESET")
    a("s_sub_u32 s26, s26, 172")
    a("s_and_b32 s29, s26, 15")
    a("s_lshr_b32 s28, s26, 4")
    a("v_lshlrev_b32 v10, 10, v2")
    a("v_lshl_add_u32 v10, v3, 4, v10")
    a("s_lshl_b32 s30, s29, 6")
    a("s_waitcnt lgkmcnt(0)")
    wsfix(a, 14)
    a.srd(44, 18, 1376 * 512 * 2)
    for ks in range(4):
        a("s_lshl_b32 s31, s28, 2")
        a(f"s_add_u32 s31, s31, {ks}")
        a("s_mul_i32 s32, s31, 13")
        a("s_lshr_b32 s32, s32, 6")
        a("s_mul_i32 s33, s32, 5")
        a("s_sub_u32 s33, s31, s33")
        a("s_mul_i32 s32, s32, 11")
        a("s_min_u32 s32, s32, 76")
        a("s_lshl_b32 s33, s33, 1")
        a("s_add_u32 s32, s32, s33")
        a("s_add_u32 s33, s32, 1")
        a("s_sub_u32 s34, s31, 40")
        a("s_mul_i32 s34, s34, 22")
        a("s_add_u32 s35, s34, 21")
        a("s_add_u32 s34, s34, 10")
        a("s_cmp_lt_u32 s31, 40")
        a("s_cselect_b32 s32, s32, s34")
        a("s_cselect_b32 s33, s33, s35")
        for hf, sr in ((0, 32), (1, 33)):
            a(f"s_lshl_b32 s49, s{sr}, 14")
            a("s_add_u32 s49, s49, s30")
            i = 2 * ks + hf
            a(f"buffer_load_dwordx4 v[{32+4*i}:{35+4*i}], v10, s[44:47], s49 offen nt")
    a("s_barrier")
    for i in range(8):
        a(f"s_waitcnt vmcnt({7-i})")
        a(f"ds_write_b128 v11, v[{32+4*i}:{35+4*i}] offset:{16*80*i}")
    a("s_lshr_b32 s30, s29, 1")
    a("s_mul_i32 s30, s30, 43")
    a("s_lshl_b32 s31, s28, 2")
    a("s_add_u32 s30, s30, s31")
    a("s_lshl_b32 s30, s30, 12")
    a("s_and_b32 s31, s29, 1")
    a("s_lshl_b32 s31, s31, 11")
    a("s_add_u32 s30, s30, s31")
    a(f"s_add_u32 s30, s30, {W2F}")
    a("v_lshl_add_u32 v26, v1, 4, s30")
    a("s_waitcnt lgkmcnt(0)")
    for ks in range(4):
        if ks == 3:
            a("s_cmp_eq_u32 s28, 10")
            a("s_cbranch_scc1 K2_END")
        for nt in range(2):
            for hf in range(2):
                a(f"ds_read_b64_tr_b16 v[{44+4*nt+2*hf}:{45+4*nt+2*hf}], v12 offset:{(32*ks+16*hf)*80 + 32*nt}")
        a("s_waitcnt lgkmcnt(2)")
        a(f"global_store_dwordx4 v26, v[44:47], s[14:15]" + SC1)
        a("s_waitcnt lgkmcnt(0)")
        a(f"global_store_dwordx4 v26, v[48:51], s[14:15] offset:1024" + SC1)
        a("v_add_u32 v26, 4096, v26")
    a("s_branch K2_END")
    a("K2_TAB:   ; LINT-RESET")
    a("v_lshlrev_b32 v2, 5, v1")
    a(f"v_add_u32 v2, {MODF + 3*2048}, v2")
    a("v_add_u32 v3, 2048, v2")
    a("s_waitcnt lgkmcnt(0)")
    wsfix(a, 14)
    a("global_load_dwordx4 v[32:35], v2, s[14:15]")
    a("global_load_dwordx4 v[36:39], v2, s[14:15] offset:16")
    a("global_load_dwordx4 v[40:43], v3, s[14:15]")
    a("global_load_dwordx4 v[44:47], v3, s[14:15] offset:16")
    a("s_barrier")
    a("s_waitcnt vmcnt(0)")
    for j in range(8): a(f"v_add_f32 v{40+j}, 1.0, v{40+j}")
    for j in range(8): rbf(a, 40 + j, 40 + j)
    for j in range(8): a(f"v_mul_f32 v{48+j}, v{40+j}, v{40+j}")
    for j in range(8): a(f"v_mul_f32 v{56+j}, v{40+j}, v{32+j}")
    for k, base in enumerate((40, 48, 56, 32)):
        a(f"v_add_f32 v{100+k}, v{base}, v{base+1}")
        for j in range(2, 8): a(f"v_add_f32 v{100+k}, v{100+k}, v{base+j}")
    a("v_mul_f32 v104, v32, v32")
    for j in range(1, 8): a(f"v_fmac_f32 v104, v{32+j}, v{32+j}")
    a("v_lshl_add_u32 v4, v1, 4, s27")
    a("v_mov_b32 v64, 0x3f803f80\nv_mov_b32 v65, 0x3f803f80\nv_mov_b32 v66, 0x3f803f80\nv_mov_b32 v67, 0x3f803f80")
    a("ds_write_b128 v4, v[64:67]")
    for q in range(4): a(f"v_cvt_pk_bf16_f32 v{68+q}, v{40+2*q}, v{41+2*q}")
    a("ds_write_b128 v4, v[68:71] offset:1024")
    for (src, row) in ((48, 2), (56, 4)):
        for q in range(4): a(f"v_cvt_pk_bf16_f32 v{72+q}, v{src+2*q}, v{src+2*q+1}")
        a(f"ds_write_b128 v4, v[72:75] offset:{1024*row}")
        for q in range(4):
            a(f"v_lshlrev_b32 v{80+2*q}, 16, v{72+q}")
            a(f"v_and_b32 v{81+2*q}, 0xffff0000, v{72+q}")
        for j in range(8): a(f"v_sub_f32 v{80+j}, v{src+j}, v{80+j}")
        for q in range(4): a(f"v_cvt_pk_bf16_f32 v{76+q}, v{80+2*q}, v{81+2*q}")
        a(f"ds_write_b128 v4, v[76:79] offset:{1024*(row+1)}")
    a("s_nop 1")
    for ctl in ("row_shr:1", "row_shr:2", "row_shr:4", "row_shr:8", "row_bcast:15 row_mask:0xa", "row_bcast:31 row_mask:0xc"):
        for r in range(100, 105):
            a(f"v_add_f32_dpp v{r}, v{r}, v{r} {ctl}")
    a(f"v_mov_b32 v5, {SCAL}")
    a("s_mov_b64 s[42:43], exec")
    a("s_mov_b64 exec, 0x8000000000000000") if False else None
    a("v_cmp_eq_u32 vcc, 63, v1")
    a("s_and_saveexec_b64 s[42:43], vcc")
    a("global_store_dwordx4 v5, v[100:103], s[14:15]" + SC1)
    a("global_store_dword v5, v104, s[14:15] offset:16" + SC1)
    a("s_mov_b64 exec, s[42:43]")
    a("v_and_b32 v6, 15, v1")
    a("v_lshrrev_b32 v7, 4, v1")
    a("v_min_u32 v8, 5, v6")
    a("v_lshlrev_b32 v8, 10, v8")
    a("v_lshl_add_u32 v8, v7, 3, v8")
    a("v_add_u32 v8, s27, v8")
    a("v_cmp_gt_u32 vcc, 6, v6")
    a("v_mov_b32 v9, 0")
    a("s_nop 0")
    a("v_cndmask_b32 v9, v9, -1, vcc")
    a(f"s_mov_b32 s30, {W1F + 86*1024}")
    a("v_lshl_add_u32 v10, v1, 4, s30")
    a("s_waitcnt lgkmcnt(0)")
    for ks in range(16):
        R = 16 + 4 * (ks & 1)
        a(f"ds_read_b64 v[{R}:{R+1}], v8 offset:{64*ks}")
        a(f"ds_read_b64 v[{R+2}:{R+3}], v8 offset:{64*ks+32}")
        a("s_waitcnt lgkmcnt(0)")
        for q in range(4): a(f"v_and_b32 v{R+q}, v{R+q}, v9")
        a(f"global_store_dwordx4 v10, v[{R}:{R+3}], s[14:15]" + SC1)
        a(f"v_add_u32 v10, {87*1024}, v10")
    a("s_branch K2_END")
    a("K2_SIDE_IDLE:   ; LINT-RESET")
    a("s_cmp_eq_u32 s26, 349")
    a("s_cbranch_scc0 K2_idle2")
    a("s_waitcnt lgkmcnt(0)")
    wsfix(a, 14)
    a("v_mov_b32 v4, 0\nv_mov_b32 v5, 0\nv_mov_b32 v6, 0\nv_mov_b32 v7, 0")
    a("v_lshlrev_b32 v2, 4, v1")
    a(f"v_add_u32 v2, {FLAGS_OFF}, v2")
    for q in range(4):
        a(f"global_store_dwordx4 v2, v[4:7], s[14:15] offset:{1024*q} sc1")
    a("K2_idle2:")
    a("s_barrier")
    a("K2_END:   ; LINT-RESET")
    stamp_store(a, 1, 14, 24)
    a("K2_EXIT:")
    a.end_kernel(name, 160, 100)


KG   = SIDE + 4 * SIDE_SZ
KG_PAR = KG
KG_T16 = KG + 4096
KG_REV = KG + 4096 + 2816
LF   = KG_REV + 2 * 4160
K12_LDS = LF + 64
KG_PART = SCR
GBAR = 0x0639000
WCNT = GBAR + 10752

_sync_id = [0]
def wsync(a, addr, n, vt, st, add=True):
    _sync_id[0] += 1
    L = f"WS_{_sync_id[0]}"
    a("s_waitcnt lgkmcnt(0)")
    if isinstance(addr, str): a(f"v_mov_b32 v{vt}, {addr}")
    else: a(f"v_mov_b32 v{vt}, {addr}")
    if add:
        a(f"v_mov_b32 v{vt+1}, 1")
        a("s_mov_b64 exec, 1")
        a(f"ds_add_u32 v{vt}, v{vt+1}")
        a("s_mov_b64 exec, -1")
    a("s_mov_b32 s63, 0x400000")
    a(f"{L}:")
    a(f"ds_read_b32 v{vt+1}, v{vt}")
    a("s_waitcnt lgkmcnt(0)")
    a(f"v_readfirstlane_b32 s{st}, v{vt+1}")
    a("s_sub_u32 s63, s63, 1")
    a("s_cmp_eq_u32 s63, 0")
    a(f"s_cbranch_scc1 {L}_x")
    a(f"s_cmp_ge_u32 s{st}, {n}")
    a(f"s_cbranch_scc0 {L}")
    a(f"{L}_x:")

def k12(a):
    name = "k12_kernel"
    a.begin_kernel(name, 256, 512, K12_LDS)
    a("s_cmp_ge_u32 s2, 256")
    a("s_cbranch_scc1 K2_EXIT")
    stamp(a, 0)
    a("s_load_dwordx8 s[4:11], s[0:1], 8")
    a("s_load_dwordx4 s[44:47], s[0:1], 40")
    a("s_load_dwordx2 s[14:15], s[0:1], 128")
    a("s_load_dwordx2 s[16:17], s[0:1], 0")
    a("s_load_dwordx2 s[18:19], s[0:1], 120")
    a("s_load_dwordx4 s[20:23], s[0:1], 96")
    a("s_load_dwordx2 s[48:49], s[0:1], 64")
    a("s_load_dwordx2 s[12:13], s[0:1], 80")
    wave_id(a, 24, 1)
    a("v_and_b32 v1, 63, v0")
    a("v_lshlrev_b32 v2, 2, v0")
    a(f"v_add_u32 v2, {LF}, v2")
    a("v_mov_b32 v3, 0")
    a("v_cmp_gt_u32 vcc, 16, v0")
    a("s_and_saveexec_b64 s[42:43], vcc")
    a("ds_write_b32 v2, v3")
    a("s_mov_b64 exec, s[42:43]")
    a("s_cmp_ge_u32 s24, 4")
    a("s_cbranch_scc1 K12_SIDE0")
    a("s_lshr_b32 s25, s24, 1")
    a("s_and_b32 s26, s24, 1")
    a("s_lshl_b32 s62, s2, 1")
    a("s_add_u32 s27, s62, s25")
    a("s_lshl_b32 s28, s27, 8")
    a("s_lshl_b32 s29, s26, 7")
    a("s_add_u32 s28, s28, s29")
    a("v_lshl_add_u32 v2, v1, 1, s28")
    a("s_lshl_b32 s30, s2, 2")
    a("s_waitcnt lgkmcnt(0)")
    wsfix(a, 14)
    a("global_load_ushort v4, v2, s[4:5] nt")
    a("global_load_ushort v5, v2, s[6:7] nt")
    a("global_load_ushort v6, v2, s[8:9] nt")
    a("global_load_ushort v7, v2, s[10:11] nt")
    a("s_load_dword s29, s[44:45], s30")
    a("s_load_dword s56, s[46:47], s30")
    a("s_branch K12_CONV0")
    a("K12_SIDE0:   ; LINT-RESET")
    a("s_setprio 3")
    a("s_sub_u32 s25, s24, 4")
    a("s_and_b32 s28, s2, 7")
    a("s_lshr_b32 s29, s2, 3")
    a("s_lshr_b32 s26, s29, 3")
    a("s_lshl_b32 s27, s28, 2")
    a("s_add_u32 s26, s26, s27")
    a("s_and_b32 s27, s29, 7")
    a("s_lshl_b32 s30, s28, 8")
    a("s_lshl_b32 s31, s29, 3")
    a("s_add_u32 s30, s30, s31")
    a("s_lshl_b32 s31, s25, 1")
    a("s_add_u32 s30, s30, s31")
    a(f"s_mul_i32 s57, s25, {SIDE_SZ}")
    a(f"s_add_u32 s57, s57, {SIDE}")
    a("v_subrev_u32 v30, 256, v0")
    a("s_lshl_b32 s28, s26, 16")
    a("s_lshl_b32 s29, s27, 7")
    a("s_add_u32 s28, s28, s29")
    a("v_lshrrev_b32 v2, 3, v30")
    a("v_and_b32 v3, 7, v30")
    a("v_lshlrev_b32 v4, 10, v2")
    a("v_lshl_add_u32 v4, v3, 4, v4")
    a("v_add_u32 v4, s28, v4")
    a("v_add_u32 v5, 0x8000, v4")
    a("s_lshl_b32 s31, s30, 10")
    a("v_lshl_add_u32 v6, v1, 4, s31")
    a("s_and_b32 s33, s2, 7")
    a("s_mul_i32 s33, s33, 6")
    a("s_lshr_b32 s34, s2, 5")
    a("s_add_u32 s33, s33, s34")
    a("s_bfe_u32 s34, s2, 0x20003")
    a("s_lshl_b32 s35, s34, 7")
    a("v_add_u32 v7, s35, v2")
    a("v_mul_u32_u24 v25, 6144, v7")
    a("v_lshl_add_u32 v25, v3, 4, v25")
    a("s_lshl_b32 s35, s33, 7")
    a("v_add_u32 v25, s35, v25")
    a(f"v_add_u32 v26, {32*6144}, v25")
    a(f"v_add_u32 v27, {32*6144}, v26")
    a(f"v_add_u32 v28, {32*6144}, v27")
    a("v_lshlrev_b32 v29, 1, v7")
    a("s_waitcnt lgkmcnt(0)")
    wsfix(a, 14)
    NTX = " nt" if OPT.get("ntx", "0") == "1" else ""
    NTS = " nt" if OPT.get("nts", "0") == "1" else ""
    NTW = " nt" if OPT.get("ntw", "1") == "1" else ""
    a("global_load_dwordx4 v[8:11], v4, s[16:17]" + NTX)
    a("global_load_dwordx4 v[12:15], v5, s[16:17]" + NTX)
    a("global_load_dwordx4 v[16:19], v6, s[16:17]" + NTS)
    a("global_load_dwordx4 v[20:23], v6, s[16:17] offset:1024" + NTS)
    a("s_cmp_ge_u32 s2, 192")
    a("s_cbranch_scc1 K1_nomodld")
    for k in range(4): a(f"global_load_ushort v{48+k}, v29, s[20:21] offset:{64*k}")
    for k, vo in enumerate((25, 26, 27, 28)):
        a(f"global_load_dwordx4 v[{32+4*k}:{35+4*k}], v{vo}, s[22:23]" + NTW)
    a("K1_nomodld:")
    if OPT.get("cpf", "1") == "1":
        a("s_sub_u32 s65, s2, 192")
        a("s_cmp_ge_u32 s65, 16")
        a("s_cbranch_scc1 K12_nocpf")
        a("s_cmp_lg_u32 s24, 7")
        a("s_cbranch_scc1 K12_nocpf")
        code_prefetch(a, "k12_kernel", LASTLABEL, 6, "k1", 199, 200)
        a("K12_nocpf:")
    a("s_branch K2_SIDE")
    a("K12_CONV0:   ; LINT-RESET")
    a("s_barrier")
    a("s_cmp_eq_u32 s2, 255")
    a("s_cselect_b32 s64, 1, 0")
    a("s_cmp_eq_u32 s24, 0")
    a("s_cselect_b32 s64, s64, 0")
    a("s_cmp_eq_u32 s64, 1")
    a("s_cbranch_scc0 K12_noinit")
    a("v_mov_b32 v64, 0\nv_mov_b32 v65, 0\nv_mov_b32 v66, 0\nv_mov_b32 v67, 0")
    a("v_lshlrev_b32 v68, 4, v1")
    a(f"v_add_u32 v68, {FLAGS_OFF}, v68")
    for q in range(16):
        a(f"global_store_dwordx4 v68, v[64:67], s[14:15] sc1")
        if q < 15: a("v_add_u32 v68, 1024, v68")
    a("K12_noinit:   ; LINT-RESET")
    a("v_mov_b32 v56, 0\nv_mov_b32 v57, 0\nv_mov_b32 v58, 0\nv_mov_b32 v59, 0")
    a("v_mul_u32_u24 v53, 171, v0")
    a("v_lshrrev_b32 v53, 9, v53")
    a("v_mul_u32_u24 v54, 3, v53")
    a("v_sub_u32 v54, v0, v54")
    a(f"v_mul_u32_u24 v53, {CS}, v53")
    a("v_lshl_add_u32 v53, v54, 4, v53")
    a("v_cmp_gt_u32 vcc, 48, v0")
    a("s_and_saveexec_b64 s[42:43], vcc")
    a("ds_write_b128 v53, v[56:59]")
    a("s_mov_b64 exec, s[42:43]")
    a("v_lshlrev_b32 v53, 4, v0")
    a(f"v_add_u32 v53, {UB}, v53")
    a("v_cmp_gt_u32 vcc, 155, v0")
    a("s_and_saveexec_b64 s[42:43], vcc")
    a(f"ds_write_b128 v53, v[56:59]")
    a(f"ds_write_b128 v53, v[56:59] offset:{U_CH}")
    a("s_mov_b64 exec, s[42:43]")
    a("v_and_b32 v16, 15, v1")
    a("v_cmp_eq_u32 s[32:33], 15, v16")
    a("v_lshrrev_b32 v18, 4, v1")
    a("v_add_u32 v19, 1, v16")
    a("v_cvt_f32_u32 v19, v19")
    a("s_lshl_b32 s31, s24, 10")
    a(f"s_add_u32 s31, s31, {KG_PAR}")
    a("v_lshl_add_u32 v17, v18, 6, s31")
    a("v_lshl_add_u32 v20, v1, 4, s31")
    for r in range(112, 128): a(f"v_mov_b32 v{r}, 0")
    a("s_mul_i32 s39, s25, 1344")
    a(f"s_add_u32 s39, s39, {KG_T16 + 8}")
    a("v_subrev_u32 v21, 7, v16")
    a("v_cmp_gt_u32 s[34:35], 8, v21")
    a("v_add_u32 v21, 1, v16")
    a("v_and_b32 v21, 15, v21")
    a("v_lshlrev_b32 v24, 5, v21")
    a("v_lshl_add_u32 v24, v18, 3, v24")
    a("s_lshl_b32 s40, s26, 9")
    a("s_add_u32 s40, s40, s39")
    a("v_add_u32 v24, s40, v24")
    a("s_cmp_eq_u32 s26, 0")
    a("s_cselect_b64 s[36:37], -1, s[34:35]")
    a("s_lshl_b32 s40, s24, 12")
    a(f"s_add_u32 s40, s40, {KG_PART}")
    a("v_lshl_add_u32 v22, v1, 4, s40")
    a("s_lshl_b32 s40, s25, 13")
    a("s_lshl_b32 s41, s26, 11")
    a("s_add_u32 s40, s40, s41")
    a(f"s_add_u32 s40, s40, {KG_PART}")
    a("v_lshl_add_u32 v23, v1, 4, s40")
    a("s_lshl_b32 s40, s26, 6")
    a("v_add_u32 v26, s40, v1")
    a("v_lshlrev_b32 v27, 3, v26")
    a("v_sub_u32 v27, 2047, v27")
    a("v_cvt_f32_u32 v28, v27")
    a("s_sub_u32 s41, s39, 34050")
    a("s_sub_u32 s42, s39, 2")
    GA = 140
    for rnd in range(2):
        if rnd == 1:
            a("v_add_f32 v28, 0xc4800000, v28")
            a("v_subrev_u32 v27, 1024, v27")
        for t in range(8):
            if t == 0: a(f"v_mov_b32 v48, v28")
            else: a(f"v_add_f32 v{48+t}, {-float(t)}, v28")
        for p in range(4): a(f"v_cvt_pk_bf16_f32 v{56+p}, v{48+2*p}, v{49+2*p}")
        for p in range(4):
            a(f"v_and_b32 v{48+2*p}, 0xffff, v{56+p}")
            a(f"v_lshrrev_b32 v{49+2*p}, 16, v{56+p}")
        o = GA + 8 * rnd
        for t in range(8): a(f"v_lshl_add_u32 v{o+t}, v{48+t}, 1, s41")
        if rnd == 1:
            a("v_cmp_le_u32 vcc, 112, v26")
            for t in range(8):
                a(f"v_subrev_u32 v{56+(t&3)}, {t}, v27")
                a(f"v_lshl_add_u32 v{56+(t&3)}, v{56+(t&3)}, 1, s42")
                a(f"v_cndmask_b32 v{o+t}, v{o+t}, v{56+(t&3)}, vcc")
    a(f"s_mul_i32 s40, s25, 4160")
    a(f"s_add_u32 s40, s40, {KG_REV}")
    a("v_lshl_add_u32 v29, v26, 4, s40")
    a("s_add_u32 s41, s40, 4080")
    a("v_lshlrev_b32 v30, 4, v26")
    a("v_sub_u32 v30, s41, v30")
    a(f"s_mul_i32 s41, s25, {KC_CH}")
    a("s_add_u32 s41, s41, 48")
    a("v_lshl_add_u32 v31, v26, 4, s41")
    a("s_waitcnt lgkmcnt(0)")
    a("s_lshl_b32 s40, s25, 4")
    a("s_lshr_b32 s29, s29, s40")
    a("s_lshl_b32 s29, s29, 16")
    a(f"v_mov_b32 v8, {LOG2E}")
    a("v_mul_f32 v9, s29, v8")
    a("v_exp_f32 v9, v9")
    a("s_nop 0")
    rbf(a, 9, 9)
    a("s_waitcnt vmcnt(0)")
    a("s_cmp_eq_u32 s64, 1")
    a("s_cbranch_scc0 K12_nopub")
    a("v_mov_b32 v68, 0")
    a("v_mov_b32 v69, 1")
    a("s_mov_b64 exec, 1")
    a("global_store_dword v68, v69, s[18:19] sc1")
    a("s_mov_b64 exec, -1")
    a("K12_nopub:")
    a("v_lshlrev_b32 v4, 16, v4")
    a("v_lshlrev_b32 v5, 16, v5")
    a("v_lshlrev_b32 v6, 16, v6")
    a("v_lshlrev_b32 v7, 16, v7")
    a("v_mul_f32 v4, v4, v8")
    a("v_exp_f32 v4, v4")
    a("v_mul_f32 v13, v5, v9")
    a("v_mul_f32 v14, v6, v9")
    rbf(a, 4, 4)
    a("v_mul_f32 v15, v7, v9")
    a("v_mul_f32 v12, v4, v9")
    a(f"v_mul_f32 v13, {INV2PI}, v13")
    a("v_add_f32 v14, v14, v14")
    a("v_add_f32 v15, v15, v15")
    a("v_mul_f32 v12, v12, v8")
    a("v_mov_b32 v10, v14")
    a("v_sub_f32 v12, 0, v12")
    a("ds_write_b128 v20, v[12:15]")
    for ctl in ("row_shr:1", "row_shr:2", "row_shr:4", "row_shr:8", "row_bcast:15 row_mask:0xa", "row_bcast:31 row_mask:0xc"):
        a("s_nop 1")
        a(f"v_add_f32_dpp v10, v10, v10 {ctl}")
    a("s_waitcnt lgkmcnt(0)")
    stamp(a, 1)
    R = [[32 + 4 * u for u in range(4)], [48 + 4 * u for u in range(4)]]
    PA = [64 + 2 * u for u in range(4)]
    PB = [72 + 2 * u for u in range(4)]
    TT = [80 + 2 * u for u in range(4)]
    QF = [88 + 4 * e for e in range(4)]
    GF = [104, 108]
    DD = [112 + 4 * e for e in range(4)]
    CPK = [128 + u for u in range(4)]
    MAG = [132 + 2 * u for u in range(4)]
    for u in range(4): a(f"ds_read_b128 v[{R[0][u]}:{R[0][u]+3}], v17 offset:{u*16}")
    for ks in range(4):
        Rc = R[ks & 1]
        if ks + 1 < 4:
            for u in range(4):
                a(f"ds_read_b128 v[{R[(ks+1)&1][u]}:{R[(ks+1)&1][u]+3}], v17 offset:{(ks+1)*256+u*16}")
            a("s_waitcnt lgkmcnt(4)")
        else:
            a("s_waitcnt lgkmcnt(0)")
        for u in range(4): a(f"v_mul_f32 v{TT[u]}, v{Rc[u]}, v19")
        for u in range(4): a(f"v_mul_f32 v{TT[u]+1}, v{Rc[u]+1}, v19")
        for u in range(4): a(f"v_exp_f32 v{MAG[u]}, v{TT[u]}")
        for u in range(4): a(f"v_fract_f32 v{TT[u]+1}, v{TT[u]+1}")
        for u in range(4): a(f"v_cvt_pk_bf16_f32 v{CPK[u]}, v{Rc[u]+2}, -v{Rc[u]+3}")
        for u in range(4): a(f"v_cos_f32 v{PB[u]}, v{TT[u]+1}")
        for u in range(4): a(f"v_sin_f32 v{PB[u]+1}, v{TT[u]+1}")
        a("s_nop 0")
        for u in range(4):
            a(f"v_pk_mul_f32 v[{PA[u]}:{PA[u]+1}], v[{PB[u]}:{PB[u]+1}], v[{MAG[u]}:{MAG[u]+1}] op_sel:[0,0] op_sel_hi:[1,0]")
        cur, oth = PA, PB
        for e in range(4):
            for u in range(4): a(f"v_cvt_pk_bf16_f32 v{QF[e]+u}, v{cur[u]}, v{cur[u]+1}")
            sq = [csq(a, oth[u], cur[u], TT[u]) for u in range(4)]
            for u in range(4): a(sq[u][0])
            for u in range(4): a(sq[u][1])
            cur, oth = oth, cur
        for e in range(4):
            g = GF[e & 1]
            cm = [cmulconj(a, oth[u], cur[u], Rc[u] + 2, TT[u]) for u in range(4)]
            for u in range(4): a(cm[u][0])
            for u in range(4): a(cm[u][1])
            for u in range(4): a(f"v_cvt_pk_bf16_f32 v{g+u}, v{oth[u]}, v{oth[u]+1}")
            if e == 0:
                for u in range(4): a(f"v_cndmask_b32 v{g+u}, v{g+u}, v{CPK[u]}, s[32:33]")
            if e < 3:
                sq = [csq(a, oth[u], cur[u], TT[u]) for u in range(4)]
                for u in range(4): a(sq[u][0])
                a(f"v_mfma_f32_16x16x32_bf16 v[{DD[e]}:{DD[e]+3}], v[{QF[e]}:{QF[e]+3}], v[{g}:{g+3}], v[{DD[e]}:{DD[e]+3}]")
                for u in range(4): a(sq[u][1])
                cur, oth = oth, cur
            else:
                a("s_nop 1")
                a(f"v_mfma_f32_16x16x32_bf16 v[{DD[e]}:{DD[e]+3}], v[{QF[e]}:{QF[e]+3}], v[{g}:{g+3}], v[{DD[e]}:{DD[e]+3}]")
    stamp(a, 2)
    K0P = KG_T16 + 2 * 1344 + 16
    a("v_readlane_b32 s40, v10, 63")
    a(f"s_lshl_b32 s41, s24, 2")
    a(f"s_add_u32 s41, s41, {K0P}")
    a("v_mov_b32 v11, s41")
    a("v_mov_b32 v10, s40")
    a("s_nop 1")
    for e in range(4): a(f"ds_write_b128 v22, v[{DD[e]}:{DD[e]+3}] offset:{e*1024}")
    a("ds_write_b32 v11, v10")
    a("s_lshl_b32 s57, s25, 2")
    a(f"s_add_u32 s41, s57, {LF}")
    wsync(a, "s41", 2, 2, 40)
    a("ds_read_b128 v[32:35], v23")
    a("ds_read_b128 v[36:39], v23 offset:4096")
    a("ds_read_b128 v[40:43], v23 offset:1024")
    a("ds_read_b128 v[44:47], v23 offset:5120")
    a(f"s_lshl_b32 s41, s25, 3")
    a(f"s_add_u32 s41, s41, {K0P}")
    a("v_mov_b32 v11, s41")
    a("ds_read_b64 v[8:9], v11")
    a("s_waitcnt lgkmcnt(0)")
    for r in range(4): a(f"v_add_f32 v{32+r}, v{32+r}, v{36+r}")
    for r in range(4): a(f"v_add_f32 v{40+r}, v{40+r}, v{44+r}")
    a("v_add_f32 v8, v8, v9")
    a("v_cvt_pk_bf16_f32 v32, v32, v33")
    a("v_cvt_pk_bf16_f32 v33, v34, v35")
    a("v_cvt_pk_bf16_f32 v40, v40, v41")
    a("v_cvt_pk_bf16_f32 v41, v42, v43")
    a("v_cvt_pk_bf16_f32 v8, v8, v8")
    a("s_sub_u32 s41, s39, 2")
    a("v_mov_b32 v11, s41")
    a("s_mov_b64 exec, s[36:37]")
    a("ds_write_b64 v24, v[32:33]")
    a("s_mov_b64 exec, s[34:35]")
    a("ds_write_b64 v24, v[40:41] offset:256")
    a("s_mov_b64 exec, -1")
    a("ds_write_b16 v11, v8")
    a(f"s_add_u32 s41, s57, {LF + 8}")
    wsync(a, "s41", 2, 2, 40)
    for t in range(16):
        a(f"ds_read_u16 v{76+t}, v{GA+t}")
        if t == 7: a("v_mov_b32 v72, 0\nv_mov_b32 v73, 0\nv_mov_b32 v74, 0\nv_mov_b32 v75, 0")
    a("s_waitcnt lgkmcnt(8)")
    for p in range(4): a(f"v_lshl_or_b32 v{64+p}, v{77+2*p}, 16, v{76+2*p}")
    a("ds_write_b128 v29, v[64:67]")
    a("s_waitcnt lgkmcnt(1)")
    for p in range(4): a(f"v_lshl_or_b32 v{68+p}, v{85+2*p}, 16, v{84+2*p}")
    a("ds_write_b128 v29, v[68:71] offset:2048")
    a("v_cmp_gt_u32 vcc, 4, v26")
    a("s_and_saveexec_b64 s[42:43], vcc")
    a("ds_write_b128 v29, v[72:75] offset:4096")
    a("s_mov_b64 exec, s[42:43]")
    a(f"s_add_u32 s41, s57, {LF + 16}")
    wsync(a, "s41", 2, 2, 40)
    a("v_subrev_u32 v33, 2048, v30")
    a("ds_read_b128 v[36:39], v30")
    a("ds_read_b128 v[40:43], v30 offset:16")
    a("ds_read_b128 v[44:47], v33")
    a("ds_read_b128 v[48:51], v33 offset:16")
    for c in range(2):
        W = 36 + 8 * c
        a(f"s_waitcnt lgkmcnt({2 if c == 0 else 8})")
        V = 60
        for j in range(7): a(f"v_alignbit_b32 v{V+j}, v{W+j+1}, v{W+j}, 16")
        for j in range(1, 7): a(f"v_alignbit_b32 v{68+j-1}, v{W+j+1}, v{W+j}, 16")
        for j in range(1, 7): a(f"v_mov_b32 v{76+j-1}, v{W+j}")
        off = c * 2048
        a(f"ds_write_b128 v31, v[{W}:{W+3}] offset:{off + 7*CS}")
        a(f"ds_write_b128 v31, v[{W+2}:{W+5}] offset:{off + 3*CS}")
        a(f"ds_write_b128 v31, v[{V}:{V+3}] offset:{off + 6*CS}")
        a(f"ds_write_b128 v31, v[{V+2}:{V+5}] offset:{off + 2*CS}")
        a(f"ds_write_b128 v31, v[68:71] offset:{off + 4*CS}")
        a(f"ds_write_b128 v31, v[70:73] offset:{off + 0*CS}")
        a(f"ds_write_b128 v31, v[76:79] offset:{off + 5*CS}")
        a(f"ds_write_b128 v31, v[78:81] offset:{off + 1*CS}")
    stamp(a, 3)
    a("s_lshl_b32 s28, s62, 12")
    a(f"s_add_u32 s28, s28, {XT}") if XT else None
    a("v_lshl_add_u32 v160, v0, 4, s28")
    a("v_add_u32 v161, 4096, v160")
    a("v_lshlrev_b32 v162, 5, v0")
    a(f"v_add_u32 v162, {STAT1}, v162")
    a(f"v_add_u32 v163, 8192, v162")
    a("v_and_b32 v50, 31, v1")
    a("v_lshrrev_b32 v51, 5, v1")
    a("s_lshl_b32 s30, s25, 12")
    a("s_add_u32 s30, s30, s28")
    a("s_lshl_b32 s31, s26, 11")
    a("s_add_u32 s30, s30, s31")
    a("v_lshlrev_b32 v164, 6, v50")
    a("v_lshl_add_u32 v164, v51, 3, v164")
    a("v_add_u32 v164, s30, v164")
    a("v_and_b32 v165, 3, v1")
    a("v_mul_u32_u24 v165, 12288, v165")
    a("v_bfe_u32 v54, v1, 2, 1")
    a("v_lshl_add_u32 v165, v54, 2, v165")
    a("v_lshrrev_b32 v54, 3, v1")
    a("v_min_u32 v54, 2, v54")
    a("v_lshl_add_u32 v165, v54, 11, v165")
    a("s_lshl_b32 s32, s62, 2")
    a(f"s_add_u32 s32, s32, {MODP}")
    a("v_add_u32 v165, s32, v165")
    a("v_and_b32 v54, 7, v50")
    a("v_lshrrev_b32 v55, 3, v50")
    a(f"v_mul_u32_u24 v2, {CS}, v54")
    a("v_sub_u32 v55, v55, v51")
    a("v_add_u32 v55, 1, v55")
    a("v_lshl_add_u32 v2, v55, 4, v2")
    a(f"s_mul_i32 s38, s25, {KC_CH}")
    a("v_add_u32 v2, s38, v2")
    a("v_mul_u32_u24 v3, 80, v50")
    a("v_lshl_add_u32 v3, v51, 4, v3")
    a(f"s_mul_i32 s38, s25, {U_CH}")
    a(f"s_add_u32 s38, s38, {UB}")
    a("v_add_u32 v3, s38, v3")
    a("v_lshrrev_b32 v166, 2, v0")
    a("v_mul_u32_u24 v166, 80, v166")
    a("v_and_b32 v63, 3, v0")
    a("v_lshl_add_u32 v166, v63, 4, v166")
    a(f"v_add_u32 v166, {UB + 31*80}, v166")
    a("s_lshl_b32 s38, s24, 12")
    a(f"s_add_u32 s38, s38, {SCR}")
    a("v_lshl_add_u32 v4, v1, 4, s38")
    a("s_xor_b32 s39, s24, 1")
    a("s_lshl_b32 s38, s39, 12")
    a(f"s_add_u32 s38, s38, {SCR}")
    a("v_lshl_add_u32 v5, v1, 4, s38")
    a("s_lshl_b32 s38, s24, 2")
    a(f"s_add_u32 s38, s38, {LF + 32}")
    a("v_mov_b32 v7, s38")
    a("s_lshl_b32 s38, s39, 2")
    a(f"s_add_u32 s38, s38, {LF + 32}")
    a("v_mov_b32 v8, s38")
    a("v_mul_u32_u24 v6, 80, v50")
    a("v_lshl_add_u32 v6, v51, 3, v6")
    a(f"s_mul_i32 s38, s25, {U_CH}")
    a(f"s_mul_i32 s39, s26, {32*80}")
    a("s_add_u32 s38, s38, s39")
    a(f"s_add_u32 s38, s38, {UB + 31*80}")
    a("v_add_u32 v6, s38, v6")
    a("s_lshl_b32 s38, s27, 7")
    a("s_lshl_b32 s39, s26, 20")
    a("s_add_u32 s38, s38, s39")
    a(f"s_add_u32 s38, s38, {X2T}")
    a("v_lshrrev_b32 v9, 3, v1")
    a("v_lshlrev_b32 v9, 16, v9")
    a("v_and_b32 v63, 7, v1")
    a("v_lshl_add_u32 v9, v63, 4, v9")
    a("v_add_u32 v9, s38, v9")
    a("v_add_u32 v12, 0x80000, v9")
    a(f"s_mul_i32 s38, s25, {KC_CH}")
    a("s_mul_i32 s39, s26, 2560")
    a("s_add_u32 s38, s38, s39")
    a("v_mul_u32_u24 v10, 80, v50")
    a("v_lshl_add_u32 v10, v51, 3, v10")
    a("v_add_u32 v10, s38, v10")
    a("v_lshrrev_b32 v11, 2, v1")
    a("v_mul_u32_u24 v11, 80, v11")
    a("v_and_b32 v63, 3, v1")
    a("v_lshl_add_u32 v11, v63, 4, v11")
    a("v_add_u32 v11, s38, v11")
    for r in range(32, 64): a(f"v_mov_b32 v{r}, 0")
    a("s_lshl_b32 s38, s25, 4")
    a("s_lshr_b32 s36, s56, s38")
    a("s_lshl_b32 s36, s36, 16")
    a("s_waitcnt lgkmcnt(0)")
    a("s_barrier")
    stamp(a, 4)
    XR, SR = 168, 176
    a("global_load_dword v13, v165, s[14:15] sc1")
    a(f"global_load_dwordx4 v[{XR}:{XR+3}], v160, s[14:15] sc1")
    a(f"global_load_dwordx4 v[{XR+4}:{XR+7}], v161, s[14:15] sc1")
    a(f"global_load_dwordx4 v[{SR}:{SR+3}], v162, s[14:15] sc1")
    a(f"global_load_dwordx4 v[{SR+4}:{SR+7}], v162, s[14:15] offset:16 sc1")
    a(f"global_load_dwordx4 v[{SR+8}:{SR+11}], v163, s[14:15] sc1")
    a(f"global_load_dwordx4 v[{SR+12}:{SR+15}], v163, s[14:15] offset:16 sc1")
    for i in range(4):
        a(f"global_load_dwordx2 v[{144+2*i}:{145+2*i}], v164, s[14:15] offset:{16*i} sc1")
    a("s_waitcnt vmcnt(10)")
    a("v_add_f32_dpp v13, v13, v13 quad_perm:[1,0,3,2] row_mask:0xf bank_mask:0xf")
    a("s_nop 1")
    a("v_add_f32_dpp v13, v13, v13 quad_perm:[2,3,0,1] row_mask:0xf bank_mask:0xf")
    rbf(a, 13, 13)
    a("v_add_f32 v14, 1.0, v13")
    rbf(a, 14, 14)
    a("v_readlane_b32 s59, v13, 0")
    a("v_readlane_b32 s61, v13, 4")
    a("v_readlane_b32 s54, v13, 16")
    a("v_readlane_b32 s55, v13, 20")
    a("v_readlane_b32 s58, v14, 8")
    a("v_readlane_b32 s60, v14, 12")
    a("s_cmp_eq_u32 s25, 0")
    a("s_cselect_b32 s37, s54, s55")
    a("s_waitcnt vmcnt(4)")
    for c in range(2):
        X = XR + 4 * c
        for q in range(4):
            a(f"v_lshlrev_b32 v{64+2*q}, 16, v{X+q}")
            a(f"v_and_b32 v{65+2*q}, 0xffff0000, v{X+q}")
        for q in range(4):
            a(f"v_pk_fma_f32 v[{64+2*q}:{65+2*q}], v[{64+2*q}:{65+2*q}], v[{SR+2*q}:{SR+1+2*q}], v[{SR+8+2*q}:{SR+9+2*q}]")
        for q in range(4):
            a(f"v_pk_fma_f32 v[{64+2*q}:{65+2*q}], v[{64+2*q}:{65+2*q}], s[{58+2*c}:{59+2*c}], s[{58+2*c}:{59+2*c}] op_sel:[0,0,1] op_sel_hi:[1,0,1]")
        for q in range(4):
            a(f"v_cvt_pk_bf16_f32 v{72+4*c+q}, v{64+2*q}, v{65+2*q}")
        a(f"ds_write_b128 v166, v[{72+4*c}:{75+4*c}] offset:{c*U_CH}")
    wsync(a, LF + 52, 4, 14, 40)
    stamp(a, 5)
    a("s_cmp_eq_u32 s26, 0")
    a("s_cbranch_scc0 K2_B")
    conv_path(a, 0, "A")
    a("K2_B:   ; LINT-RESET")
    conv_path(a, 1, "B")
    a("K2_SIDE:   ; LINT-RESET")
    a("s_barrier")
    TL = SIDE + SIDE_SZ
    a("v_mul_u32_u24 v30, 160, v2")
    a("v_lshl_add_u32 v30, v3, 4, v30")
    a(f"v_add_u32 v30, {TL}, v30")
    a("s_cmp_ge_u32 s2, 192")
    a("s_cbranch_scc1 K1_w0")
    a("s_waitcnt vmcnt(10)")
    a("s_branch K1_w1")
    a("K1_w0:")
    a("s_waitcnt vmcnt(2)")
    a("K1_w1:   ; LINT-RESET")
    stamp(a, 1)
    a("ds_write_b128 v30, v[8:11]")
    a("ds_write_b128 v30, v[12:15] offset:5120")
    wsync(a, LF + 48, 4, 2, 40)
    a("v_lshrrev_b32 v2, 4, v1")
    a("v_bfe_u32 v3, v1, 2, 2")
    a("v_and_b32 v4, 3, v1")
    a("v_lshl_add_u32 v5, v2, 3, v3")
    a("v_mul_u32_u24 v5, 160, v5")
    a("v_lshl_add_u32 v5, v4, 3, v5")
    a("s_lshl_b32 s31, s25, 5")
    a(f"s_add_u32 s31, s31, {TL}")
    a("v_add_u32 v5, s31, v5")
    a("ds_read_b64_tr_b16 v[8:9], v5")
    a("ds_read_b64_tr_b16 v[10:11], v5 offset:640")
    a(f"ds_read_b64_tr_b16 v[12:13], v5 offset:{32*160}")
    a(f"ds_read_b64_tr_b16 v[14:15], v5 offset:{36*160}")
    a("v_and_b32 v6, 15, v1")
    a("v_lshlrev_b32 v6, 12, v6")
    a("v_lshl_add_u32 v6, v2, 4, v6")
    a("s_lshl_b32 s31, s27, 18")
    a("s_lshl_b32 s32, s25, 16")
    a("s_add_u32 s31, s31, s32")
    a("s_lshl_b32 s32, s26, 7")
    a("s_add_u32 s31, s31, s32")
    a(f"s_add_u32 s31, s31, {XT}") if XT else None
    a("v_add_u32 v6, s31, v6")
    a("s_waitcnt lgkmcnt(2)")
    a("global_store_dwordx4 v6, v[8:11], s[14:15] sc1")
    a("s_waitcnt lgkmcnt(0)")
    a("global_store_dwordx4 v6, v[12:15], s[14:15] offset:64 sc1")
    a("s_cmp_ge_u32 s2, 192")
    a("s_cbranch_scc1 K1_w2")
    a("s_waitcnt vmcnt(10)")
    a("s_branch K1_w3")
    a("K1_w2:")
    a("s_waitcnt vmcnt(2)")
    a("K1_w3:   ; LINT-RESET")
    a("v_mov_b32 v31, 0x3f803f80")
    a("v_mov_b32 v52, 0\nv_mov_b32 v53, 0\nv_mov_b32 v54, 0\nv_mov_b32 v55, 0")
    for k in range(4):
        a(f"v_dot2_f32_bf16 v52, v{16+k}, v31, v52")
        a(f"v_dot2_f32_bf16 v53, v{16+k}, v{16+k}, v53")
        a(f"v_dot2_f32_bf16 v54, v{20+k}, v31, v54")
        a(f"v_dot2_f32_bf16 v55, v{20+k}, v{20+k}, v55")
    a("s_nop 1")
    for ctl in ("row_shr:1", "row_shr:2", "row_shr:4", "row_shr:8", "row_bcast:15 row_mask:0xa", "row_bcast:31 row_mask:0xc"):
        for r in range(52, 56): a(f"v_add_f32_dpp v{r}, v{r}, v{r} {ctl}")
    a("s_nop 1")
    for k, r in enumerate(range(52, 56)): a(f"v_readlane_b32 s{36+k}, v{r}, 63")
    a("s_nop 1")
    a("v_cmp_eq_u32 vcc, 0, v1")
    a("v_mov_b32 v56, s38")
    a("v_mov_b32 v57, s39")
    a("v_mov_b32 v58, s36")
    a("v_mov_b32 v59, s37")
    a("v_cndmask_b32 v56, v56, v58, vcc")
    a("v_cndmask_b32 v57, v57, v59, vcc")
    a("v_mul_f32 v56, 0x3b000000, v56")
    a("v_mul_f32 v57, 0x3b000000, v57")
    a("v_fma_f32 v57, -v56, v56, v57")
    a("v_max_f32 v57, 0, v57")
    rbf(a, 56, 56); rbf(a, 57, 57)
    a("v_add_f32 v57, 0x3727c5ac, v57")
    rbf(a, 57, 57)
    a("v_sqrt_f32 v57, v57")
    a("s_nop 0")
    rbf(a, 57, 57)
    a("v_rcp_f32 v58, v57")
    a("s_nop 0")
    a("v_mul_f32 v59, v56, v58")
    a("v_sub_f32 v59, 0, v59")
    a("s_lshl_b32 s31, s30, 2")
    a(f"s_add_u32 s31, s31, {STAT1}")
    a("v_lshl_add_u32 v60, v1, 2, s31")
    a("v_add_u32 v61, 8192, v60")
    a("v_cmp_gt_u32 vcc, 2, v1")
    a("s_and_saveexec_b64 s[42:43], vcc")
    a("global_store_dword v60, v58, s[14:15] sc1")
    a("global_store_dword v61, v59, s[14:15] sc1")
    a("s_mov_b64 exec, s[42:43]")
    a("s_cmp_ge_u32 s2, 192")
    a("s_cbranch_scc1 K1_nomodc")
    a("s_waitcnt vmcnt(4)")
    for k in range(4): a(f"v_lshlrev_b32 v{48+k}, 16, v{48+k}")
    for k in range(4): a(f"v_mul_f32 v{52+k}, 0xbfb8aa3b, v{48+k}")
    for k in range(4): a(f"v_exp_f32 v{52+k}, v{52+k}")
    a("s_nop 0")
    for k in range(4): a(f"v_add_f32 v{52+k}, 1.0, v{52+k}")
    for k in range(4): a(f"v_rcp_f32 v{56+k}, v{52+k}")
    a("s_nop 0")
    for k in range(4): a(f"v_mul_f32 v{60+k}, v{48+k}, v{56+k}")
    for k in range(4): a(f"v_fma_f32 v{48+k}, -v{60+k}, v{52+k}, v{48+k}")
    for k in range(4): a(f"v_fma_f32 v{48+k}, v{48+k}, v{56+k}, v{60+k}")
    for k in range(4): rbf(a, 48 + k, 48 + k)
    for k in range(4):
        for p in range(4):
            w = 32 + 4 * k + p
            a(f"v_lshlrev_b32 v62, 16, v{w}")
            a(f"v_and_b32 v63, 0xffff0000, v{w}")
            if k == 0:
                a(f"v_mul_f32 v{64+2*p}, v62, v48")
                a(f"v_mul_f32 v{65+2*p}, v63, v48")
            else:
                a(f"v_fmac_f32 v{64+2*p}, v62, v{48+k}")
                a(f"v_fmac_f32 v{65+2*p}, v63, v{48+k}")
    MODL = SIDE
    a("v_subrev_u32 v61, 256, v0")
    a("v_lshlrev_b32 v61, 5, v61")
    a(f"v_add_u32 v61, {MODL}, v61")
    a("ds_write_b128 v61, v[64:67]")
    a("ds_write_b128 v61, v[68:71] offset:16")
    wsync(a, LF + 24, 4, 2, 40)
    a("s_cmp_lg_u32 s25, 0")
    a("s_cbranch_scc1 K1_nomodc")
    a("v_lshlrev_b32 v4, 2, v1")
    a(f"v_add_u32 v4, {MODL}, v4")
    for i in range(32):
        a(f"ds_read_b32 v{16+i}, v4 offset:{256*i}")
        if i == 14: a("s_waitcnt lgkmcnt(7)")
    a("s_waitcnt lgkmcnt(0)")
    for st in (16, 8, 4, 2, 1):
        for i in range(st): a(f"v_add_f32 v{16+i}, v{16+i}, v{16+st+i}")
    a("s_mul_i32 s31, s34, 12288")
    a("s_lshl_b32 s32, s33, 8")
    a("s_add_u32 s31, s31, s32")
    a(f"s_add_u32 s31, s31, {MODP}")
    a("v_lshl_add_u32 v5, v1, 2, s31")
    a("global_store_dword v5, v16, s[14:15] sc1")
    a("K1_nomodc:   ; LINT-RESET")
    stamp(a, 2)
    a("v_mov_b32 v74, 0")
    a("global_load_dword v75, v74, s[18:19] sc1")
    a("s_waitcnt vmcnt(0)")
    a("v_readfirstlane_b32 s51, v75")
    a(f"v_mov_b32 v2, {LF + 28}")
    a("v_mov_b32 v3, 1")
    a("s_mov_b64 exec, 1")
    a("ds_add_u32 v2, v3")
    a("s_mov_b64 exec, -1")
    stamp(a, 3)
    a("s_lshl_b32 s26, s25, 8")
    a("s_add_u32 s26, s26, s2")
    a("s_mov_b32 s27, s57")
    a("v_lshrrev_b32 v2, 2, v1")
    a("v_and_b32 v3, 3, v1")
    a("v_lshrrev_b32 v4, 4, v1")
    a("v_bfe_u32 v5, v1, 2, 2")
    a("v_mul_u32_u24 v11, 80, v2")
    a("v_lshl_add_u32 v11, v3, 4, v11")
    a("v_add_u32 v11, s27, v11")
    a("v_lshl_add_u32 v12, v4, 2, v5")
    a("v_mul_u32_u24 v12, 80, v12")
    a("v_lshl_add_u32 v12, v3, 3, v12")
    a("v_add_u32 v12, s27, v12")
    a("s_cmp_ge_u32 s26, 348")
    a("s_cbranch_scc1 K12_noraw")
    a("s_cmp_ge_u32 s26, 172")
    a("s_cbranch_scc1 K12_rawW2")
    a("s_mul_i32 s28, s26, 1525")
    a("s_lshr_b32 s28, s28, 16")
    a("s_mul_i32 s29, s28, 43")
    a("s_sub_u32 s29, s26, s29")
    a("v_mul_u32_u24 v10, 2752, v2")
    a("v_lshl_add_u32 v10, v3, 4, v10")
    a(f"s_mul_i32 s53, s28, {128*2752}")
    a("s_lshl_b32 s30, s29, 6")
    a("s_add_u32 s53, s53, s30")
    a.srd(64, 48, 512 * 1376 * 2)
    for i in range(8):
        a(f"buffer_load_dwordx4 v[{32+4*i}:{35+4*i}], v10, s[64:67], s53 offen nt")
        if i < 7: a(f"s_add_u32 s53, s53, {16*2752}")
    a("s_branch K12_noraw")
    a("K12_rawW2:   ; LINT-RESET")
    a("s_sub_u32 s31, s26, 172")
    a("s_and_b32 s29, s31, 15")
    a("s_lshr_b32 s28, s31, 4")
    a("v_lshlrev_b32 v10, 10, v2")
    a("v_lshl_add_u32 v10, v3, 4, v10")
    a("s_lshl_b32 s30, s29, 6")
    a.srd(64, 12, 1376 * 512 * 2)
    for ks in range(4):
        a("s_lshl_b32 s31, s28, 2")
        a(f"s_add_u32 s31, s31, {ks}")
        a("s_mul_i32 s32, s31, 13")
        a("s_lshr_b32 s32, s32, 6")
        a("s_mul_i32 s33, s32, 5")
        a("s_sub_u32 s33, s31, s33")
        a("s_mul_i32 s32, s32, 11")
        a("s_min_u32 s32, s32, 76")
        a("s_lshl_b32 s33, s33, 1")
        a("s_add_u32 s32, s32, s33")
        a("s_add_u32 s33, s32, 1")
        a("s_sub_u32 s34, s31, 40")
        a("s_mul_i32 s34, s34, 22")
        a("s_add_u32 s35, s34, 21")
        a("s_add_u32 s34, s34, 10")
        a("s_cmp_lt_u32 s31, 40")
        a("s_cselect_b32 s32, s32, s34")
        a("s_cselect_b32 s33, s33, s35")
        for hf, sr in ((0, 32), (1, 33)):
            a(f"s_lshl_b32 s53, s{sr}, 14")
            a("s_add_u32 s53, s53, s30")
            i = 2 * ks + hf
            a(f"buffer_load_dwordx4 v[{32+4*i}:{35+4*i}], v10, s[64:67], s53 offen nt")
    a("K12_noraw:   ; LINT-RESET")
    a("s_cmp_lg_u32 s25, 0")
    a("s_cbranch_scc1 K12_gbx")
    wsync(a, LF + 28, 4, 70, 40, add=False)
    a("s_mov_b64 exec, 1")
    a("v_mov_b32 v70, 0")
    a("s_mov_b32 s52, 0x200000")
    a("s_cmp_eq_u32 s51, 1")
    a("s_cbranch_scc1 K12_rdyx")
    a("K12_rdy:")
    a("global_load_dword v71, v70, s[18:19] sc1")
    a("s_waitcnt vmcnt(0)")
    a("v_readfirstlane_b32 s40, v71")
    a("s_sub_u32 s52, s52, 1")
    a("s_cmp_eq_u32 s52, 0")
    a("s_cbranch_scc1 K12_gbdone")
    a("s_cmp_eq_u32 s40, 1")
    a("s_cbranch_scc0 K12_rdy")
    a("K12_rdyx:")
    a("s_and_b32 s40, s2, 15")
    a("s_lshl_b32 s40, s40, 8")
    a(f"s_add_u32 s40, s40, {GBAR}")
    a("v_mov_b32 v70, s40")
    a("v_mov_b32 v71, 1")
    a("global_atomic_add v71, v70, v71, s[14:15] sc0 sc1")
    a("s_waitcnt vmcnt(0)")
    a("v_readfirstlane_b32 s40, v71")
    a("s_cmp_eq_u32 s40, 15")
    a("s_cbranch_scc0 K12_poll")
    if OPT.get("bar2", "1") == "1":
        a("s_mov_b64 exec, 0xff")
        a("v_lshlrev_b32 v70, 8, v1")
        a(f"v_add_u32 v70, {GBAR + 8192}, v70")
        a("v_mov_b32 v71, 1")
        a("global_atomic_add v70, v71, s[14:15] sc1")
        a("s_mov_b64 exec, 1")
    else:
        a(f"v_mov_b32 v70, {GBAR + 4096}")
        a("v_mov_b32 v71, 1")
        a("global_atomic_add v71, v70, v71, s[14:15] sc0 sc1")
        a("s_waitcnt vmcnt(0)")
        a("v_readfirstlane_b32 s40, v71")
        a("s_cmp_eq_u32 s40, 15")
        a("s_cbranch_scc0 K12_poll")
        a("s_mov_b64 exec, 0xff")
        a("v_lshlrev_b32 v70, 8, v1")
        a(f"v_add_u32 v70, {GBAR + 8192}, v70")
        a("v_mov_b32 v71, 1")
        a("global_store_dword v70, v71, s[14:15] sc1")
        a("s_mov_b64 exec, 1")
    a("K12_poll:")
    a("s_and_b32 s40, s2, 7")
    a("s_lshl_b32 s40, s40, 8")
    a(f"s_add_u32 s40, s40, {GBAR + 8192}")
    a("v_mov_b32 v70, s40")
    a("K12_poll2:")
    a("global_load_dword v71, v70, s[14:15] sc1")
    a("s_waitcnt vmcnt(0)")
    a("v_readfirstlane_b32 s40, v71")
    a("s_sub_u32 s52, s52, 1")
    a("s_cmp_eq_u32 s52, 0")
    a("s_cbranch_scc1 K12_gbdone")
    a(f"s_cmp_ge_u32 s40, {16 if OPT.get('bar2', '1') == '1' else 1}")
    a("s_cbranch_scc0 K12_poll2")
    a("K12_gbdone:")
    a("s_mov_b64 exec, -1")
    a("K12_gbx:   ; LINT-RESET")
    a(f"s_setprio {OPT.get('sprio', '0')}")
    a("s_barrier")
    stamp(a, 4)
    a("s_cmp_gt_u32 s26, 348")
    a("s_cbranch_scc1 K2_SIDE_IDLE")
    a("s_cmp_eq_u32 s26, 348")
    a("s_cbranch_scc1 K2_TAB")
    a("s_cmp_ge_u32 s26, 172")
    a("s_cbranch_scc1 K2_W2")
    a("s_lshl_b32 s31, s28, 9")
    a("v_lshl_add_u32 v13, v1, 3, s31")
    a(f"v_add_u32 v13, {MODP + 3*2048}, v13")
    for q in range(4):
        a(f"global_load_dwordx2 v[{64+4*q}:{65+4*q}], v13, s[14:15] sc1")
        a(f"global_load_dwordx2 v[{66+4*q}:{67+4*q}], v13, s[14:15] offset:2048 sc1")
        if q < 3: a("v_add_u32 v13, 12288, v13")
    a("s_waitcnt vmcnt(8)")
    for i in range(8): a(f"ds_write_b128 v11, v[{32+4*i}:{35+4*i}] offset:{16*80*i}")
    a("s_waitcnt vmcnt(0)")
    for r in range(4):
        a(f"v_add_f32 v{64+r}, v{64+r}, v{68+r}")
        a(f"v_add_f32 v{72+r}, v{72+r}, v{76+r}")
        a(f"v_add_f32 v{64+r}, v{64+r}, v{72+r}")
    for r in range(4): rbf(a, 64 + r, 64 + r)
    a("v_add_f32 v66, 1.0, v66")
    a("v_add_f32 v67, 1.0, v67")
    rbf(a, 66, 66); rbf(a, 67, 67)
    a("v_cvt_pk_bf16_f32 v64, v64, v65")
    a("v_lshl_add_u32 v15, v1, 3, s27")
    a("v_lshl_add_u32 v16, v1, 2, s27")
    a("ds_write_b64 v15, v[66:67] offset:10240")
    a("ds_write_b32 v16, v64 offset:10752")
    a("v_and_b32 v17, 15, v1")
    a("v_cmp_eq_u32 s[50:51], 0, v17")
    a("v_cmp_eq_u32 s[52:53], 1, v17")
    a("v_mov_b32 v18, 0")
    a("v_mov_b32 v19, 0x3f803f80")
    a("v_cndmask_b32 v18, v18, v19, s[50:51]")
    a("v_mov_b32 v19, 0")
    a("v_cndmask_b32 v19, v19, -1, s[52:53]")
    a("v_lshl_add_u32 v24, v4, 4, s27")
    a("v_lshl_add_u32 v25, v4, 3, s27")
    for r in range(96, 112): a(f"v_mov_b32 v{r}, 0")
    a("s_lshl_b32 s30, s29, 11")
    a(f"s_mul_i32 s31, s28, {4*87*1024}")
    a("s_add_u32 s30, s30, s31")
    a(f"s_add_u32 s30, s30, {W1F}")
    a("v_lshl_add_u32 v26, v1, 4, s30")
    a("s_waitcnt lgkmcnt(0)")
    for ks in range(4):
        a(f"ds_read_b128 v[32:35], v24 offset:{10240 + 128*ks}")
        a(f"ds_read_b128 v[36:39], v24 offset:{10240 + 128*ks + 64}")
        a(f"ds_read_b64 v[40:41], v25 offset:{10752 + 64*ks}")
        a(f"ds_read_b64 v[42:43], v25 offset:{10752 + 64*ks + 32}")
        for nt in range(2):
            for hf in range(2):
                a(f"ds_read_b64_tr_b16 v[{44+4*nt+2*hf}:{45+4*nt+2*hf}], v12 offset:{(32*ks+16*hf)*80 + 32*nt}")
        a("s_waitcnt lgkmcnt(4)")
        for q in range(4): a(f"v_and_or_b32 v{40+q}, v{40+q}, v19, v18")
        a("s_waitcnt lgkmcnt(0)")
        for nt in range(2):
            R = 44 + 4 * nt
            for q in range(4):
                a(f"v_lshlrev_b32 v{52+2*q}, 16, v{R+q}")
                a(f"v_and_b32 v{53+2*q}, 0xffff0000, v{R+q}")
            a(f"v_mfma_f32_16x16x32_bf16 v[{96+4*nt}:{99+4*nt}], v[{R}:{R+3}], v[40:43], v[{96+4*nt}:{99+4*nt}]")
            for q in range(4):
                a(f"v_pk_mul_f32 v[{52+2*q}:{53+2*q}], v[{52+2*q}:{53+2*q}], v[{32+2*q}:{33+2*q}]")
            S = 60 + 4 * nt
            for q in range(4):
                a(f"v_cvt_pk_bf16_f32 v{S+q}, v{52+2*q}, v{53+2*q}")
            a(f"global_store_dwordx4 v26, v[{S}:{S+3}], s[14:15] offset:{1024*nt}" + SC1)
            if nt == 1: a(f"v_add_u32 v26, {87*1024}, v26")
            a("s_nop 0")
            a(f"v_mfma_f32_16x16x32_bf16 v[{104+4*nt}:{107+4*nt}], v[{S}:{S+3}], v[40:43], v[{104+4*nt}:{107+4*nt}]")
    a(f"s_mul_i32 s30, s28, {3*5504}")
    a("s_lshl_b32 s31, s29, 7")
    a("s_add_u32 s30, s30, s31")
    a(f"s_add_u32 s30, s30, {SVP}")
    a("v_lshl_add_u32 v28, v4, 4, s30")
    a("v_add_u32 v29, 5504, v28")
    a("v_add_u32 v30, 5504, v29")
    a("s_nop 7")
    a("s_mov_b64 s[42:43], exec")
    a("s_mov_b64 exec, s[50:51]")
    for nt in range(2):
        a(f"global_store_dwordx4 v28, v[{104+4*nt}:{107+4*nt}], s[14:15] offset:{64*nt}" + SC1)
        a(f"global_store_dwordx4 v30, v[{96+4*nt}:{99+4*nt}], s[14:15] offset:{64*nt}" + SC1)
    a("s_mov_b64 exec, s[52:53]")
    for nt in range(2):
        a(f"global_store_dwordx4 v29, v[{96+4*nt}:{99+4*nt}], s[14:15] offset:{64*nt}" + SC1)
    a("s_mov_b64 exec, s[42:43]")
    a("s_branch K12_UDONE")
    a("K2_W2:   ; LINT-RESET")
    a("s_waitcnt vmcnt(0)")
    for i in range(8): a(f"ds_write_b128 v11, v[{32+4*i}:{35+4*i}] offset:{16*80*i}")
    a("s_lshr_b32 s30, s29, 1")
    a("s_mul_i32 s30, s30, 43")
    a("s_lshl_b32 s31, s28, 2")
    a("s_add_u32 s30, s30, s31")
    a("s_lshl_b32 s30, s30, 12")
    a("s_and_b32 s31, s29, 1")
    a("s_lshl_b32 s31, s31, 11")
    a("s_add_u32 s30, s30, s31")
    a(f"s_add_u32 s30, s30, {W2F}")
    a("v_lshl_add_u32 v26, v1, 4, s30")
    a("s_waitcnt lgkmcnt(0)")
    for ks in range(4):
        if ks == 3:
            a("s_cmp_eq_u32 s28, 10")
            a("s_cbranch_scc1 K12_UDONE")
        for nt in range(2):
            for hf in range(2):
                a(f"ds_read_b64_tr_b16 v[{44+4*nt+2*hf}:{45+4*nt+2*hf}], v12 offset:{(32*ks+16*hf)*80 + 32*nt}")
        a("s_waitcnt lgkmcnt(2)")
        a(f"global_store_dwordx4 v26, v[44:47], s[14:15]" + SC1)
        a("s_waitcnt lgkmcnt(0)")
        a(f"global_store_dwordx4 v26, v[48:51], s[14:15] offset:1024" + SC1)
        a("v_add_u32 v26, 4096, v26")
    a("s_branch K12_UDONE")
    a("K2_TAB:   ; LINT-RESET")
    a("v_lshlrev_b32 v2, 5, v1")
    a(f"v_add_u32 v2, {MODP + 3*2048}, v2")
    a("v_add_u32 v3, 4096, v2")
    for q in range(4):
        for k in range(3):
            r = 112 + 24 * q + 8 * k
            a(f"global_load_dwordx4 v[{r}:{r+3}], v2, s[14:15] offset:{2048*k if k < 2 else 0} sc1" if k < 2 else f"global_load_dwordx4 v[{r}:{r+3}], v3, s[14:15] sc1")
            a(f"global_load_dwordx4 v[{r+4}:{r+7}], v2, s[14:15] offset:{2048*k+16} sc1" if k < 2 else f"global_load_dwordx4 v[{r+4}:{r+7}], v3, s[14:15] offset:16 sc1")
        if q < 3:
            a("v_add_u32 v2, 12288, v2")
            a("v_add_u32 v3, 12288, v3")
    a("s_waitcnt vmcnt(0)")
    for j in range(24):
        a(f"v_add_f32 v{112+j}, v{112+j}, v{136+j}")
        a(f"v_add_f32 v{160+j}, v{160+j}, v{184+j}")
        a(f"v_add_f32 v{112+j}, v{112+j}, v{160+j}")
    for j in range(24): rbf(a, 112 + j, 112 + j)
    for j in range(8):
        a(f"v_mov_b32 v{32+j}, v{112+j}")
        a(f"v_mov_b32 v{40+j}, v{120+j}")
    a("v_lshlrev_b32 v3, 5, v1")
    a(f"v_add_u32 v3, {GBF}, v3")
    a("global_store_dwordx4 v3, v[128:131], s[14:15] sc1")
    a("global_store_dwordx4 v3, v[132:135], s[14:15] offset:16 sc1")
    for j in range(8): a(f"v_add_f32 v{40+j}, 1.0, v{40+j}")
    for j in range(8): rbf(a, 40 + j, 40 + j)
    for j in range(8): a(f"v_mul_f32 v{48+j}, v{40+j}, v{40+j}")
    for j in range(8): a(f"v_mul_f32 v{56+j}, v{40+j}, v{32+j}")
    a("v_lshlrev_b32 v3, 5, v1")
    a(f"v_add_u32 v3, {G2F}, v3")
    a("global_store_dwordx4 v3, v[48:51], s[14:15] sc1")
    a("global_store_dwordx4 v3, v[52:55], s[14:15] offset:16 sc1")
    for k, base in enumerate((40, 48, 56, 32)):
        a(f"v_add_f32 v{100+k}, v{base}, v{base+1}")
        for j in range(2, 8): a(f"v_add_f32 v{100+k}, v{100+k}, v{base+j}")
    a("v_mul_f32 v104, v32, v32")
    for j in range(1, 8): a(f"v_fmac_f32 v104, v{32+j}, v{32+j}")
    a("v_lshl_add_u32 v4, v1, 4, s27")
    a("v_mov_b32 v64, 0x3f803f80\nv_mov_b32 v65, 0x3f803f80\nv_mov_b32 v66, 0x3f803f80\nv_mov_b32 v67, 0x3f803f80")
    a("ds_write_b128 v4, v[64:67]")
    for q in range(4): a(f"v_cvt_pk_bf16_f32 v{68+q}, v{40+2*q}, v{41+2*q}")
    a("ds_write_b128 v4, v[68:71] offset:1024")
    for (src, row) in ((48, 2), (56, 4)):
        for q in range(4): a(f"v_cvt_pk_bf16_f32 v{72+q}, v{src+2*q}, v{src+2*q+1}")
        a(f"ds_write_b128 v4, v[72:75] offset:{1024*row}")
        for q in range(4):
            a(f"v_lshlrev_b32 v{80+2*q}, 16, v{72+q}")
            a(f"v_and_b32 v{81+2*q}, 0xffff0000, v{72+q}")
        for j in range(8): a(f"v_sub_f32 v{80+j}, v{src+j}, v{80+j}")
        for q in range(4): a(f"v_cvt_pk_bf16_f32 v{76+q}, v{80+2*q}, v{81+2*q}")
        a(f"ds_write_b128 v4, v[76:79] offset:{1024*(row+1)}")
    a("s_nop 1")
    for ctl in ("row_shr:1", "row_shr:2", "row_shr:4", "row_shr:8", "row_bcast:15 row_mask:0xa", "row_bcast:31 row_mask:0xc"):
        for r in range(100, 105):
            a(f"v_add_f32_dpp v{r}, v{r}, v{r} {ctl}")
    a(f"v_mov_b32 v5, {SCAL}")
    a("s_mov_b64 s[42:43], exec")
    a("s_mov_b64 exec, 0x8000000000000000") if False else None
    a("v_cmp_eq_u32 vcc, 63, v1")
    a("s_and_saveexec_b64 s[42:43], vcc")
    a("global_store_dwordx4 v5, v[100:103], s[14:15]" + SC1)
    a("global_store_dword v5, v104, s[14:15] offset:16" + SC1)
    a("s_mov_b64 exec, s[42:43]")
    a("v_and_b32 v6, 15, v1")
    a("v_lshrrev_b32 v7, 4, v1")
    a("v_min_u32 v8, 5, v6")
    a("v_lshlrev_b32 v8, 10, v8")
    a("v_lshl_add_u32 v8, v7, 3, v8")
    a("v_add_u32 v8, s27, v8")
    a("v_cmp_gt_u32 vcc, 6, v6")
    a("v_mov_b32 v9, 0")
    a("s_nop 0")
    a("v_cndmask_b32 v9, v9, -1, vcc")
    a(f"s_mov_b32 s30, {W1F + 86*1024}")
    a("v_lshl_add_u32 v10, v1, 4, s30")
    a("s_waitcnt lgkmcnt(0)")
    for ks in range(16):
        R = 16 + 4 * (ks & 1)
        a(f"ds_read_b64 v[{R}:{R+1}], v8 offset:{64*ks}")
        a(f"ds_read_b64 v[{R+2}:{R+3}], v8 offset:{64*ks+32}")
        a("s_waitcnt lgkmcnt(0)")
        for q in range(4): a(f"v_and_b32 v{R+q}, v{R+q}, v9")
        a(f"global_store_dwordx4 v10, v[{R}:{R+3}], s[14:15]" + SC1)
        a(f"v_add_u32 v10, {87*1024}, v10")
    a("s_branch K12_UDONE")
    a("K12_UDONE:   ; LINT-RESET")
    if OPT.get("wpf", "0") == "1":
        a("s_waitcnt vmcnt(0)")
        a(f"v_mov_b32 v2, {WCNT}")
        a("v_mov_b32 v3, 1")
        a("s_mov_b64 exec, 1")
        a("global_atomic_add v2, v3, s[14:15] sc1")
    a("s_branch K2_END")
    a("K2_SIDE_IDLE:   ; LINT-RESET")
    if OPT.get("wpf", "0") == "1":
        a("s_cmp_eq_u32 s25, 2")
        a("s_cbranch_scc0 K2_END")
        a(f"v_mov_b32 v2, {WCNT}")
        a("s_mov_b32 s52, 0x40000")
        a("s_mov_b64 exec, 1")
        a("K12_wpoll:")
        a("s_sleep 8")
        a("global_load_dword v3, v2, s[14:15] sc1")
        a("s_waitcnt vmcnt(0)")
        a("v_readfirstlane_b32 s40, v3")
        a("s_sub_u32 s52, s52, 1")
        a("s_cmp_eq_u32 s52, 0")
        a("s_cbranch_scc1 K12_wpx")
        a("s_cmp_ge_u32 s40, 349")
        a("s_cbranch_scc0 K12_wpoll")
        a("K12_wpx:")
        a("s_mov_b64 exec, -1")
        a("s_lshr_b32 s30, s2, 3")
        a("v_lshlrev_b32 v4, 7, v1")
        for (base, size, reg) in ((W1F, 87 * 16384, 44), (W2F, 8 * 43 * 4096, 48)):
            a(f"s_add_u32 s{reg}, s14, {base}")
            a(f"s_addc_u32 s{reg+1}, s15, 0")
            a(f"s_mov_b32 s{reg+2}, {size}")
            a(f"s_mov_b32 s{reg+3}, 0x20000")
            per = -(-size // 32 // 128) * 128
            a(f"s_mul_i32 s31, s30, {per}")
            n = -(-per // 8192)
            for k in range(n):
                a(f"buffer_load_dword v{8 + k + (8 if reg == 48 else 0)}, v4, s[{reg}:{reg+3}], s31 offen")
                if k + 1 < n: a("s_add_u32 s31, s31, 8192")
    a("K2_END:   ; LINT-RESET")
    stamp_store(a, 0, 14, 24)
    a("K2_EXIT:")
    a.end_kernel(name, 208, 100)

G2T = 65536
SVT = G2T + 2048
STT = SVT + 3072
COF = STT + 2048
RED = COF + 4096
P_W = 64 * 272
K3_LDS = RED + 4 * P_W
FLAGS = 0x0638000

def k3(a):
    name = "k3_kernel"
    a.begin_kernel(name, 256, 256, K3_LDS)
    a("s_cmp_ge_u32 s2, 256")
    a("s_cbranch_scc1 K3_EXIT")
    stamp(a, 0)
    a("s_load_dwordx2 s[14:15], s[0:1], 128")
    a("s_load_dwordx2 s[12:13], s[0:1], 72")
    a("s_load_dwordx2 s[16:17], s[0:1], 88")
    a("s_load_dwordx2 s[18:19], s[0:1], 112")
    wave_id(a, 24, 1)
    a("v_and_b32 v1, 63, v0")
    a("s_and_b32 s25, s2, 7")
    a("s_lshr_b32 s26, s2, 3")
    a("s_lshr_b32 s27, s26, 3")
    a("s_lshl_b32 s25, s25, 2")
    a("s_add_u32 s25, s25, s27")
    a("s_and_b32 s26, s26, 7")
    a("s_and_b32 s22, s25, 3")
    a("s_lshl_b32 s23, s22, 1")
    a("s_add_u32 s23, s23, s26")
    a("s_lshl_b32 s23, s23, 1")
    a("s_and_b32 s23, s23, 15")
    a("s_mul_i32 s22, s22, 3")
    a("s_add_u32 s22, s22, s26")
    a("s_sub_u32 s21, s22, 11")
    a("s_cmp_ge_u32 s22, 11")
    a("s_cselect_b32 s22, s21, s22")
    if OPT.get('rot', '0') != '1':
        a("s_mov_b32 s23, 0")
        a("s_mov_b32 s22, 0")
    a("s_mul_i32 s27, s26, 11")
    a("s_min_u32 s27, s27, 76")
    a("s_cmp_lt_u32 s26, 6")
    a("s_cselect_b32 s28, 11, 10")
    a("s_mul_i32 s29, s24, 3")
    for i in range(3):
        a(f"s_add_u32 s30, s29, {i}")
        a("s_add_u32 s31, s30, s27")
        a("s_cmp_lt_u32 s30, s28")
        a(f"s_cselect_b32 s{32+i}, s31, 86")
    a("v_lshrrev_b32 v10, 3, v1")
    a("v_and_b32 v11, 6, v10")
    a("v_and_b32 v12, 7, v1")
    a("v_xor_b32 v11, v11, v12")
    a("v_lshlrev_b32 v11, 4, v11")
    a("v_lshl_add_u32 v11, v10, 7, v11")
    a("s_lshl_b32 s41, s24, 10")
    a("s_lshl_b32 s42, s25, 16")
    a("s_add_u32 s41, s41, s42")
    a(f"s_add_u32 s41, s41, {X2T}")
    a("s_lshl_b32 s42, s24, 10")
    a("v_lshlrev_b32 v13, 4, v1")
    for i in range(3):
        a(f"s_lshl_b32 s30, s{32+i}, 10")
        a(f"v_add_u32 v{126+i}, s30, v13")
    a("s_mov_b32 s47, s23")
    a("s_lshl_b32 s46, s23, 12")
    a("v_lshrrev_b32 v3, 4, v1")
    a("v_and_b32 v6, 15, v1")
    a("v_mov_b32 v7, s32")
    a("v_mov_b32 v8, s33")
    a("v_mov_b32 v9, s34")
    a("v_cmp_eq_u32 vcc, 1, v3")
    a("v_cmp_le_u32 s[52:53], 2, v3")
    a("s_nop 0")
    a("v_cndmask_b32 v7, v7, v8, vcc")
    a("v_cndmask_b32 v7, v7, v9, s[52:53]")
    a("v_min_u32 v7, 85, v7")
    a("v_lshl_add_u32 v7, v7, 4, v6")
    a("v_lshlrev_b32 v8, 2, v7")
    a(f"v_add_u32 v8, {SVP}, v8")
    a("v_lshlrev_b32 v9, 1, v7")
    a("s_waitcnt lgkmcnt(0)")
    wsfix(a, 14)
    a.srd(8, 14, WS_USED)
    for j in range(16):
        a("s_mov_b32 m0, s42")
        a("s_add_u32 s45, s41, s46")
        a("s_add_u32 s42, s42, 4096")
        a(f"buffer_load_dwordx4 v11, s[8:11], s45 offen lds")
        a("s_add_u32 s46, s46, 4096")
        a("s_and_b32 s46, s46, 0xffff")
    a("s_lshl_b32 s30, s24, 2")
    a("s_lshl_b32 s42, s24, 12")
    a(f"s_add_u32 s42, s42, {RED}")
    for j in range(4):
        a(f"s_add_u32 s31, s30, {j}")
        a("s_add_u32 s31, s31, s23")
        a("s_and_b32 s31, s31, 15")
        a(f"s_mul_i32 s31, s31, {87*1024}")
        a(f"s_add_u32 s31, s31, {W1F + 86*1024}")
        a("s_mov_b32 m0, s42")
        a("s_add_u32 s42, s42, 1024")
        a(f"buffer_load_dwordx4 v13, s[8:11], s31 offen lds")
    def wload(ks):
        out = []
        for i in range(3):
            r = (ks * 3 + i) * 4
            pre = f"s_mul_i32 s44, s47, {87*1024}\ns_add_u32 s44, s44, {W1F}\n" if i == 0 else ""
            post = "\ns_add_u32 s47, s47, 1\ns_and_b32 s47, s47, 15" if i == 2 else ""
            out.append(pre + f"buffer_load_dwordx4 a[{r}:{r+3}], v{126+i}, s[8:11], s44 offen" + post)
        return out
    PRE = min(int(OPT.get('pre', '4')), int(OPT.get('deep', '5')))
    for ks in range(PRE):
        for x in wload(ks): a(x)
    a(f"s_mov_b32 s30, {SCAL}")
    a("s_load_dwordx4 s[36:39], s[14:15], s30")
    a(f"s_mov_b32 s31, {SCAL+16}")
    a("s_load_dword s40, s[14:15], s31")
    a("v_bfe_u32 v14, v1, 2, 2")
    a("v_lshl_add_u32 v14, v3, 2, v14")
    a("v_and_b32 v15, 6, v14")
    a("v_lshrrev_b32 v15, 1, v15")
    a("v_and_b32 v29, 3, v1")
    a("v_lshlrev_b32 v30, 7, v14")
    a("v_lshl_add_u32 v30, v29, 3, v30")
    for k in range(4):
        a(f"s_add_u32 s30, s24, {k}")
        a(f"s_and_b32 s{48+k}, s30, 3")
        a(f"v_xor_b32 v31, s{48+k}, v15")
        a(f"v_lshl_add_u32 v{20+k}, v31, 5, v30")
    a("v_xor_b32 v31, s24, v15")
    a("v_lshl_add_u32 v26, v31, 5, v30")
    a("s_lshl_b32 s30, s26, 1")
    a("s_sub_u32 s30, s30, s23")
    a("s_add_u32 s31, s30, 1")
    a("s_and_b32 s30, s30, 15")
    a("s_and_b32 s31, s31, 15")
    a("s_lshl_b32 s30, s30, 12")
    a("s_lshl_b32 s31, s31, 12")
    a("v_add_u32 v125, s31, v26")
    a("v_add_u32 v26, s30, v26")
    a(f"v_add_u32 v24, {RED}, v13")
    ACC = 160
    for r in range(ACC, ACC + 48): a(f"v_mov_b32 v{r}, 0")
    for r in range(96, 108): a(f"v_mov_b32 v{r}, 0")
    a(f"s_waitcnt vmcnt({3*PRE}) lgkmcnt(0)")
    stamp(a, 1)
    a("s_barrier")
    XF = [32, 48]
    def xreads(ks):
        b = XF[ks & 1]
        out = []
        for k in range(4):
            for hf in range(2):
                out.append(f"ds_read_b64_tr_b16 v[{b+4*k+2*hf}:{b+4*k+2*hf+1}], v{20+k} offset:{4096*ks + 2048*hf}")
        return out
    STATS = OPT.get('stats', 'in')
    GQ = [64, 72]
    if STATS == 'in':
        for ks in range(PRE, int(OPT.get('deep', '5'))):
            for x in wload(ks): a(x)
    def greads(ks):
        g = GQ[ks & 1]
        return [f"ds_read_b128 v[{g}:{g+3}], v24 offset:{1024*ks}"]
    for x in xreads(0) + greads(0): a(x)
    DEEP = int(OPT.get('deep', '5'))
    a("s_mul_i32 s58, s24, 11")
    a("s_cmp_eq_u32 s24, 3")
    a("s_cselect_b32 s58, 32, s58")
    a("s_mul_i32 s59, s26, 43")
    a("s_add_u32 s59, s59, s58")
    a("s_lshl_b32 s59, s59, 12")
    a(f"s_add_u32 s59, s59, {W2F}")
    a.srd(60, 14, WS_USED)
    a("s_cmp_eq_u32 s24, 3")
    a("s_cselect_b32 s65, 0, s10")
    a("s_mov_b32 s64, s22")
    drip = []
    for j in range(11):
        for t in range(4):
            r = (j * 4 + t) * 4
            pre = "s_lshl_b32 s66, s64, 12\ns_add_u32 s66, s66, s59\ns_cmp_eq_u32 s64, 0\ns_cselect_b32 s62, s65, s10\n" if t == 0 else ""
            post = "\ns_add_u32 s64, s64, 1\ns_cmp_eq_u32 s64, 11\ns_cselect_b32 s64, 0, s64" if t == 3 else ""
            drip.append(pre + f"buffer_load_dwordx4 a[{r}:{r+3}], v13, s[60:63], s66 offen offset:{1024*t}" + post)
    a("s_lshl_b32 s30, s26, 8")
    a(f"s_add_u32 s30, s30, {GBF if FUSED else MODF + 5*2048}")
    a("v_lshl_add_u32 v27, v3, 4, s30")
    a("s_lshl_b32 s30, s26, 7")
    a("v_lshl_add_u32 v28, v3, 3, s30")
    gbl = []
    for dt in range(4):
        gbl.append(f"global_load_dwordx4 v[{208+4*dt}:{211+4*dt}], v27, s[14:15] offset:{64*dt}")
    for dt in range(4):
        gbl.append(f"global_load_dwordx2 v[{224+2*dt}:{225+2*dt}], v28, s[16:17] offset:{32*dt}")
    issued = DEEP
    vm_after = []
    seq = [("W", ks) for ks in range(DEEP) for _ in range(3)]
    def vmwait(tag):
        last = max(i for i, t in enumerate(seq) if t == tag)
        return len(seq) - 1 - last
    sm_done = False
    smalls = []
    for kq in range(4):
        for v in range(3):
            smalls.append(f"global_load_dword v{112+kq*3+v}, v8, s[14:15]")
            if not (kq == 3 and v == 2): smalls.append("v_add_u32 v8, 5504, v8")
    smalls.append("global_load_ushort v124, v9, s[12:13]")
    for ks in range(16):
        b = XF[ks & 1]
        a(f"s_waitcnt vmcnt({vmwait(('W', ks))}) lgkmcnt(0)")
        mf = []
        for i in range(3):
            r = (ks * 3 + i) * 4
            for k in range(4):
                d = ACC + (i * 4 + k) * 4
                mf.append(f"v_mfma_f32_16x16x32_bf16 v[{d}:{d+3}], a[{r}:{r+3}], v[{b+4*k}:{b+4*k+3}], v[{d}:{d+3}]")
        va = []
        if ks + 1 < 16: va += xreads(ks + 1) + greads(ks + 1)
        if issued < 16:
            va += wload(issued); seq += [("W", issued)] * 3; issued += 1
        elif not sm_done:
            sm_done = True
            va += smalls + gbl; seq += [("S", 0)] * 13 + [("G", 0)] * 8
        else:
            for _ in range(3):
                va.append(drip.pop(0)); seq.append(("W2", 0))
        for q in range(4):
            va.append(f"v_lshlrev_b32 v{80+2*q}, 16, v{b+q}")
            va.append(f"v_and_b32 v{81+2*q}, 0xffff0000, v{b+q}")
        for q in range(8):
            va.append(f"v_mul_f32 v{80+q}, v{80+q}, v{80+q}")
        for q in range(4):
            va.append(f"v_cvt_pk_bf16_f32 v{88+q}, v{80+2*q}, v{81+2*q}")
        if ks > 0:
            gp = GQ[(ks - 1) & 1]
            a(f"v_mfma_f32_16x16x32_bf16 v[96:99], v[{gp}:{gp+3}], v[88:91], v[96:99]")
        per = -(-len(va) // 12)
        vi = 0
        for m in mf:
            a(m)
            for _ in range(per):
                if vi < len(va): a(va[vi]); vi += 1
    a("s_nop 1")
    a(f"v_mfma_f32_16x16x32_bf16 v[96:99], v[{GQ[1]}:{GQ[1]+3}], v[88:91], v[96:99]")
    stamp(a, 2)
    KEEP = int(OPT.get('keep', '0'))
    def dr(n=1, final=False):
        for _ in range(n):
            if drip and (final or len(drip) > KEEP): a(drip.pop(0))
    a(f"s_waitcnt vmcnt({vmwait(('S', 0))})")
    dr(1)
    for v in range(3):
        a(f"v_add_f32 v{112+v}, v{112+v}, v{115+v}")
        a(f"v_add_f32 v{118+v}, v{118+v}, v{121+v}")
        a(f"v_add_f32 v{112+v}, v{112+v}, v{118+v}")
    a("v_lshlrev_b32 v124, 16, v124")
    dr(2)
    a("s_mul_i32 s30, s24, 768")
    a(f"s_add_u32 s30, s30, {SVT}")
    a("v_lshlrev_b32 v2, 8, v3")
    a("v_lshl_add_u32 v2, v6, 2, v2")
    a("v_add_u32 v2, s30, v2")
    a("v_cmp_gt_u32 vcc, 48, v1")
    a("s_and_saveexec_b64 s[42:43], vcc")
    a("ds_write_b32 v2, v112")
    a("ds_write_b32 v2, v114 offset:64")
    a("ds_write_b32 v2, v113 offset:128")
    a("ds_write_b32 v2, v124 offset:192")
    a("s_mov_b64 exec, s[42:43]")
    dr(2)
    a("s_lshl_b32 s30, s24, 9")
    a(f"s_add_u32 s30, s30, {STT}")
    a("v_lshl_add_u32 v2, v6, 5, s30")
    a("v_add_f32 v97, v98, v99")
    a("v_cmp_eq_u32 vcc, 0, v3")
    a("s_and_saveexec_b64 s[42:43], vcc")
    a("ds_write_b64 v2, v[96:97] offset:24")
    a("s_mov_b64 exec, s[42:43]")
    a("s_cmp_eq_u32 s24, 3")
    a("s_cbranch_scc0 K3_nolin")
    a("v_cmp_eq_u32 s[52:53], 0, v3")
    a("v_cmp_eq_u32 s[54:55], 1, v3")
    for k in range(4):
        a(f"s_lshl_b32 s30, s{48+k}, 9")
        a(f"s_add_u32 s30, s30, {STT}")
        a(f"v_lshl_add_u32 v{60+k}, v6, 5, s30")
    a("s_mov_b64 s[42:43], exec")
    a("s_mov_b64 exec, s[52:53]")
    for k in range(4):
        d = ACC + (8 + k) * 4
        a(f"ds_write_b128 v{60+k}, v[{d}:{d+3}]")
    a("s_mov_b64 exec, s[54:55]")
    for k in range(4):
        d = ACC + (8 + k) * 4
        a(f"ds_write_b64 v{60+k}, v[{d}:{d+1}] offset:16")
    a("s_mov_b64 exec, s[42:43]")
    a("K3_nolin:")
    dr(2)
    a("s_waitcnt lgkmcnt(0)")
    a("s_barrier")
    dr(2)
    a("v_lshlrev_b32 v2, 5, v1")
    a(f"v_add_u32 v2, {STT}, v2")
    a("ds_read_b128 v[32:35], v2")
    a("ds_read_b128 v[36:39], v2 offset:16")
    a("s_mul_i32 s30, s24, 768")
    a(f"s_add_u32 s30, s30, {SVT}")
    a("v_lshl_add_u32 v25, v3, 4, s30")
    a("s_mov_b32 s56, 0xbdd2d3e2")
    a("s_mov_b32 s57, 0xc0135761")
    a("s_waitcnt lgkmcnt(0)")
    a("v_add_f32 v34, v34, v35")
    a("v_add_f32 v36, v36, v37")
    a("v_mul_f32 v32, 0x3b000000, v32")
    a("v_mul_f32 v38, 0x3b000000, v38")
    a("v_fma_f32 v38, -v32, v32, v38")
    a("v_max_f32 v38, 0, v38")
    a("v_cvt_pk_bf16_f32 v40, v32, v38")
    a("v_lshlrev_b32 v32, 16, v40")
    a("v_and_b32 v38, 0xffff0000, v40")
    a("v_add_f32 v38, 0x3727c5ac, v38")
    rbf(a, 38, 38)
    a("v_sqrt_f32 v38, v38")
    a("v_fma_f32 v33, -v32, s36, v33")
    dr(2)
    rbf(a, 38, 38)
    a("v_rcp_f32 v38, v38")
    a("v_mul_f32 v40, v32, v32")
    a("v_add_f32 v41, v32, v32")
    a("v_fma_f32 v39, -v41, v34, v39")
    a("v_fma_f32 v39, v40, s37, v39")
    a("v_fma_f32 v36, -v32, s38, v36")
    a("v_fma_f32 v33, v33, v38, s39")
    a("v_add_f32 v36, v36, v36")
    a("v_fma_f32 v39, v39, v38, v36")
    a("v_mul_f32 v33, 0x3b000000, v33")
    dr(2)
    a("v_fma_f32 v39, v39, v38, s40")
    a("v_mul_f32 v39, 0x3b000000, v39")
    a("v_fma_f32 v39, -v33, v33, v39")
    a("v_max_f32 v39, 0, v39")
    a("v_cvt_pk_bf16_f32 v40, v33, v39")
    a("v_lshlrev_b32 v33, 16, v40")
    a("v_and_b32 v39, 0xffff0000, v40")
    a("v_add_f32 v39, 0x3727c5ac, v39")
    rbf(a, 39, 39)
    a("v_sqrt_f32 v39, v39")
    a("s_nop 0")
    rbf(a, 39, 39)
    a("v_rcp_f32 v47, v39")
    a("s_lshl_b32 s30, s24, 10")
    a(f"s_add_u32 s30, s30, {COF}")
    a("v_mul_f32 v44, v47, v38")
    a("v_mul_f32 v46, -v47, v33")
    a("v_mul_f32 v45, -v44, v32")
    a("v_lshl_add_u32 v2, v1, 4, s30")
    a("ds_write_b128 v2, v[44:47]")
    a("s_waitcnt lgkmcnt(0)")
    for k in range(4):
        a(f"s_lshl_b32 s31, s{48+k}, 8")
        a("s_add_u32 s31, s31, s30")
        a(f"v_lshl_add_u32 v2, v6, 4, s31")
        a(f"ds_read_b128 v[{48+4*k}:{51+4*k}], v2")
    SVR = [64, 128, 144]
    for i in range(3):
        for st in range(4):
            a(f"ds_read_b128 v[{SVR[i]+4*st}:{SVR[i]+4*st+3}], v25 offset:{256*i + 64*st}")
    dr(2)
    stamp(a, 3)
    a("s_waitcnt lgkmcnt(0)")
    for i in range(3):
        if i > 0 and OPT.get('x_nodrip') != '1': dr(4)
        a(f"s_cmp_eq_u32 s{32+i}, 86")
        a(f"s_cbranch_scc1 K3_skip{i}")
        SV = SVR[i]
        a(f"s_add_u32 s30, s29, {i}")
        a("s_lshr_b32 s31, s30, 1")
        a("s_lshl_b32 s31, s31, 12")
        a("s_and_b32 s30, s30, 1")
        a("s_lshl_b32 s30, s30, 3")
        a("s_add_u32 s30, s30, s31")
        a(f"s_add_u32 s30, s30, {RED}")
        A_ = ACC + i * 16
        for k in range(4):
            c = 48 + 4 * k
            for p in range(2):
                t = 96 + 4 * k + 2 * p
                a(f"v_pk_fma_f32 v[{t}:{t+1}], v[{SV+2*p}:{SV+1+2*p}], v[{c}:{c+1}], v[{SV+12+2*p}:{SV+13+2*p}] op_sel:[0,1,0] op_sel_hi:[1,1,1]")
        if i == 0 and OPT.get('x_nodrip') != '1': dr(2)
        for k in range(4):
            c = 48 + 4 * k
            for p in range(2):
                t = 96 + 4 * k + 2 * p
                a(f"v_pk_fma_f32 v[{t}:{t+1}], v[{SV+4+2*p}:{SV+5+2*p}], v[{c+2}:{c+3}], v[{t}:{t+1}] op_sel_hi:[1,0,1]")
        if i == 0 and OPT.get('x_nodrip') != '1': dr(2)
        for k in range(4):
            c = 48 + 4 * k
            for p in range(2):
                t = 96 + 4 * k + 2 * p
                a(f"v_pk_fma_f32 v[{t}:{t+1}], v[{SV+8+2*p}:{SV+9+2*p}], v[{c+2}:{c+3}], v[{t}:{t+1}] op_sel:[0,1,0] op_sel_hi:[1,1,1]")
        if i == 0 and OPT.get('x_nodrip') != '1': dr(2)
        for k in range(4):
            c = 48 + 4 * k
            for p in range(2):
                x = A_ + 4 * k + 2 * p; t = 96 + 4 * k + 2 * p
                a(f"v_pk_fma_f32 v[{x}:{x+1}], v[{x}:{x+1}], v[{c}:{c+1}], v[{t}:{t+1}] op_sel_hi:[1,0,1]")
        if i == 0 and OPT.get('x_nodrip') != '1': dr(2)
        for j in range(8):
            x = A_ + 2 * j; t = 96 + 2 * j
            a(f"v_pk_mul_f32 v[{t}:{t+1}], v[{x}:{x+1}], v[{x}:{x+1}]")
        for j in range(8):
            t = 96 + 2 * j
            a(f"v_pk_fma_f32 v[{t}:{t+1}], v[{t}:{t+1}], s[56:57], s[56:57] op_sel:[0,0,1] op_sel_hi:[1,0,1]")
        if i == 0 and OPT.get('x_nodrip') != '1': dr(2)
        for j in range(8):
            x = A_ + 2 * j; t = 96 + 2 * j
            a(f"v_pk_mul_f32 v[{t}:{t+1}], v[{t}:{t+1}], v[{x}:{x+1}]")
        for j in range(16): a(f"v_exp_f32 v{96+j}, v{96+j}")
        if i == 0 and OPT.get('x_nodrip') != '1': dr(3)
        for j in range(8):
            t = 96 + 2 * j
            a(f"v_pk_add_f32 v[{t}:{t+1}], v[{t}:{t+1}], 1.0 op_sel_hi:[1,0]")
        for j in range(16): a(f"v_rcp_f32 v{96+j}, v{96+j}")
        if i == 0 and OPT.get('x_nodrip') != '1': dr(3)
        for j in range(8):
            x = A_ + 2 * j; t = 96 + 2 * j
            a(f"v_pk_mul_f32 v[{x}:{x+1}], v[{x}:{x+1}], v[{t}:{t+1}]")
        for k in range(4):
            a(f"v_cvt_pk_bf16_f32 v{112+2*k}, v{A_+4*k}, v{A_+4*k+1}")
            a(f"v_cvt_pk_bf16_f32 v{113+2*k}, v{A_+4*k+2}, v{A_+4*k+3}")
        if i == 1:
            a("s_cmp_eq_u32 s29, 9")
            a("s_cbranch_scc0 K3_paired1")
            a("s_lshr_b32 s31, s26, 1")
            a("s_add_u32 s31, s31, 40")
            a("s_mul_i32 s43, s25, 43")
            a("s_add_u32 s31, s31, s43")
            a("s_lshl_b32 s31, s31, 12")
            a("s_and_b32 s43, s26, 1")
            a("s_lshl_b32 s43, s43, 3")
            a("s_add_u32 s31, s31, s43")
            a(f"s_add_u32 s31, s31, {HF}")
            for k in range(4):
                a(f"s_lshl_b32 s43, s{48+k}, 10")
                a("s_add_u32 s43, s43, s31")
                a(f"buffer_store_dwordx2 v[{112+2*k}:{113+2*k}], v13, s[8:11], s43 offen sc1")
            a("s_branch K3_skip1")
            a("K3_paired1:")
        for k in range(4):
            a(f"s_lshl_b32 s31, s{48+k}, 10")
            a("s_add_u32 s31, s31, s30")
            a(f"v_add_u32 v2, s31, v13")
            a(f"ds_write_b64 v2, v[{112+2*k}:{113+2*k}]")
        a(f"K3_skip{i}:   ; LINT-RESET")
    stamp(a, 9)
    dr(99)
    a("s_waitcnt lgkmcnt(0)")
    a("s_barrier")
    stamp(a, 4)
    a("s_mul_i32 s30, s24, 5120")
    a("v_add_u32 v2, s30, v13")
    a(f"v_add_u32 v2, {RED}, v2")
    for q in range(5): a(f"ds_read_b128 v[{32+4*q}:{35+4*q}], v2 offset:{1024*q}")
    a("s_mul_i32 s31, s25, 43")
    a("s_mul_i32 s43, s26, 5")
    a("s_add_u32 s31, s31, s43")
    a("s_lshl_b32 s31, s31, 12")
    a("s_add_u32 s31, s31, s30")
    a(f"s_add_u32 s31, s31, {HF}")
    for q in range(5):
        a(f"s_waitcnt lgkmcnt({4-q})")
        if q == 4: a("s_add_u32 s31, s31, 4096")
        a(f"buffer_store_dwordx4 v[{32+4*q}:{35+4*q}], v13, s[8:11], s31 offen offset:{1024*(q&3)} sc1")
    for r in range(176, 240): a(f"v_accvgpr_write_b32 a{r}, 0")
    a(f"s_waitcnt vmcnt(0)")
    stamp(a, 5)
    a("s_barrier")
    a("s_cmp_lg_u32 s24, 0")
    a("s_cbranch_scc1 K3_wait")
    a("s_lshl_b32 s30, s25, 7")
    a(f"s_add_u32 s30, s30, {FLAGS}")
    a("v_mov_b32 v2, s30")
    a("v_mov_b32 v4, 1")
    a("s_mov_b64 s[42:43], exec")
    a("s_mov_b64 exec, 1")
    a("global_atomic_add v4, v2, v4, s[14:15] sc0 sc1")
    a("s_waitcnt vmcnt(0)")
    a("v_readfirstlane_b32 s30, v4")
    a("s_cmp_eq_u32 s30, 7")
    a("s_cbranch_scc1 K3_pollx")
    a("s_mov_b32 s31, 0x100000")
    a("K3_poll:")
    a("buffer_load_dword v5, v2, s[8:11], 0 offen sc1")
    a("s_waitcnt vmcnt(0)")
    a("v_readfirstlane_b32 s30, v5")
    a("s_sub_u32 s31, s31, 1")
    a("s_cmp_eq_u32 s31, 0")
    a("s_cbranch_scc1 K3_pollx")
    a("s_cmp_ge_u32 s30, 8")
    a("s_cbranch_scc0 K3_poll")
    a("K3_pollx:")
    a("s_mov_b64 exec, s[42:43]")
    a("K3_wait:   ; LINT-RESET")
    a("s_barrier")
    stamp(a, 6)
    a("s_mul_i32 s57, s25, 43")
    a("s_add_u32 s57, s57, s58")
    a("s_lshl_b32 s57, s57, 12")
    a(f"s_add_u32 s57, s57, {HF}")
    a("s_mov_b32 s64, s22")
    late = list(drip); drip.clear()
    hl = []
    for j in range(11):
        for t in range(4):
            r = 32 + (j * 4 + t) * 4
            pre = "s_lshl_b32 s56, s64, 12\ns_add_u32 s56, s56, s57\n" if t == 0 else ""
            post = "\ns_add_u32 s64, s64, 1\ns_cmp_eq_u32 s64, 11\ns_cselect_b32 s64, 0, s64" if t == 3 else ""
            hl.append((("H", j), pre + f"buffer_load_dwordx4 v[{r}:{r+3}], v13, s[8:11], s56 offen offset:{1024*t}" + HLD + post))
    pos = 20
    lt_ = [(("L", 0), x) for x in late]
    hl = hl[:pos] + lt_ + hl[pos:]
    HD = int(OPT.get('hd', '16'))
    qseq = []
    def hissue():
        tag, x = hl.pop(0); a(x); qseq.append(tag)
    for _ in range(HD): hissue()
    for dt in range(4):
        a(f"ds_read_b64_tr_b16 v[{16+2*dt}:{17+2*dt}], v{26 if dt < 2 else 125} offset:{2048*(dt&1)}")
    for j in range(11):
        need = [i for i, t in enumerate(qseq) if t == ("H", j)]
        assert len(need) == 4
        last = max(need)
        if late and j >= 9: last = max(last, max(i for i, t in enumerate(qseq) if t == ("L", 0)))
        a(f"s_waitcnt vmcnt({len(qseq) - 1 - last})")
        q = 0
        for dt in range(4):
            for lt in range(4):
                d = 176 + (dt * 4 + lt) * 4
                ar = (j * 4 + dt) * 4
                br = 32 + (j * 4 + lt) * 4
                a(f"v_mfma_f32_16x16x32_bf16 a[{d}:{d+3}], a[{ar}:{ar+3}], v[{br}:{br+3}], a[{d}:{d+3}]")
                if q % 4 == 0 and hl: hissue()
                q += 1
    stamp(a, 7)
    a("v_mul_u32_u24 v5, 272, v6")
    a("v_lshl_add_u32 v5, v3, 4, v5")
    a(f"s_mul_i32 s30, s24, {P_W}")
    a(f"s_add_u32 s30, s30, {RED}")
    a("v_add_u32 v7, s30, v5")
    a("s_nop 4")
    for dt in range(4):
        for lt in range(4):
            d = 176 + (dt * 4 + lt) * 4
            a(f"ds_write_b128 v7, a[{d}:{d+3}] offset:{lt*16*272 + dt*64}")
    a(f"s_mul_i32 s30, s24, {16*272}")
    a(f"s_add_u32 s30, s30, {RED}")
    a("v_add_u32 v7, s30, v5")
    a("s_waitcnt lgkmcnt(0)")
    a("s_barrier")
    stamp(a, 8)
    for dt in range(4):
        for w in range(4):
            r = 32 + (dt * 4 + w) * 4
            a(f"ds_read_b128 v[{r}:{r+3}], v7 offset:{w*P_W + dt*64}")
    a.srd(40, 18, 2048 * 512 * 2)
    a("s_lshl_b32 s30, s25, 16")
    a("s_lshl_b32 s31, s24, 14")
    a("s_add_u32 s30, s30, s31")
    a("s_lshl_b32 s31, s26, 7")
    a("s_add_u32 s30, s30, s31")
    a("v_lshlrev_b32 v9, 10, v6")
    a("v_lshl_add_u32 v9, v3, 3, v9")
    a("v_add_u32 v9, s30, v9")
    for dt in range(4):
        a(f"s_waitcnt lgkmcnt({4*(3-dt)})")
        r = 32 + dt * 16
        for p in range(2):
            a(f"v_pk_add_f32 v[{r+2*p}:{r+2*p+1}], v[{r+2*p}:{r+2*p+1}], v[{r+4+2*p}:{r+5+2*p}]")
            a(f"v_pk_add_f32 v[{r+8+2*p}:{r+9+2*p}], v[{r+8+2*p}:{r+9+2*p}], v[{r+12+2*p}:{r+13+2*p}]")
        for p in range(2):
            a(f"v_pk_add_f32 v[{r+2*p}:{r+2*p+1}], v[{r+2*p}:{r+2*p+1}], v[{r+8+2*p}:{r+9+2*p}]")
        for q in range(2):
            a(f"v_lshlrev_b32 v{120+2*q}, 16, v{224+2*dt+q}")
            a(f"v_and_b32 v{121+2*q}, 0xffff0000, v{224+2*dt+q}")
            a(f"v_lshlrev_b32 v{124+2*q}, 16, v{16+2*dt+q}")
            a(f"v_and_b32 v{125+2*q}, 0xffff0000, v{16+2*dt+q}")
        for p in range(2):
            a(f"v_pk_add_f32 v[{r+2*p}:{r+2*p+1}], v[{r+2*p}:{r+2*p+1}], v[{120+2*p}:{121+2*p}]")
        for p in range(2):
            a(f"v_pk_fma_f32 v[{r+2*p}:{r+2*p+1}], v[{r+2*p}:{r+2*p+1}], v[{208+4*dt+2*p}:{209+4*dt+2*p}], v[{124+2*p}:{125+2*p}]")
        a(f"v_cvt_pk_bf16_f32 v{24+2*dt}, v{r}, v{r+1}")
        a(f"v_cvt_pk_bf16_f32 v{25+2*dt}, v{r+2}, v{r+3}")
        a(f"buffer_store_dwordx2 v[{24+2*dt}:{25+2*dt}], v9, s[40:43], 0 offen offset:{32*dt}")
    a("K3_END:   ; LINT-RESET")
    stamp_store(a, KID3, 14, 24)
    a("K3_EXIT:")
    a.end_kernel(name, 256 + 240, 100, accum=256)


W8_G2T = 65536
W8_SVT = W8_G2T + 2048
W8_STT = W8_SVT + 3072
W8_COF = W8_STT + 4096
W8_RED = W8_COF + 8192
W8_STG = W8_RED + 49152
W8_LDS = W8_RED + 4 * P_W
assert W8_STG + 20480 <= W8_LDS
RING = 32768

def k3w(a):
    name = "k3_kernel"
    a.begin_kernel(name, 256, 512, W8_LDS)
    a("s_cmp_ge_u32 s2, 256")
    a("s_cbranch_scc1 K3_EXIT")
    stamp(a, 0)
    a("s_load_dwordx2 s[14:15], s[0:1], 128")
    a("s_load_dwordx2 s[12:13], s[0:1], 72")
    a("s_load_dwordx2 s[16:17], s[0:1], 88")
    a("s_load_dwordx2 s[18:19], s[0:1], 112")
    wave_id(a, 24, 1)
    a("v_and_b32 v1, 63, v0")
    a("s_and_b32 s20, s24, 3")
    a("s_lshr_b32 s21, s24, 2")
    a("s_and_b32 s25, s2, 7")
    a("s_lshr_b32 s26, s2, 3")
    a("s_lshr_b32 s27, s26, 3")
    a("s_lshl_b32 s25, s25, 2")
    a("s_add_u32 s25, s25, s27")
    a("s_and_b32 s26, s26, 7")
    a("s_mul_i32 s27, s26, 11")
    a("s_min_u32 s27, s27, 76")
    a("s_cmp_lt_u32 s26, 6")
    a("s_cselect_b32 s28, 11, 10")
    a("s_mul_i32 s29, s20, 3")
    for i in range(3):
        a(f"s_add_u32 s30, s29, {i}")
        a("s_add_u32 s31, s30, s27")
        a("s_cmp_lt_u32 s30, s28")
        a(f"s_cselect_b32 s{32+i}, s31, 86")
    a("v_lshrrev_b32 v10, 3, v1")
    a("v_and_b32 v11, 6, v10")
    a("v_and_b32 v12, 7, v1")
    a("v_xor_b32 v11, v11, v12")
    a("v_lshlrev_b32 v11, 4, v11")
    a("v_lshl_add_u32 v11, v10, 7, v11")
    a("s_lshl_b32 s42, s24, 10")
    a("s_lshl_b32 s41, s25, 16")
    a("s_add_u32 s41, s41, s42")
    a(f"s_add_u32 s41, s41, {X2T}")
    a("v_lshlrev_b32 v2, 2, v0")
    a(f"v_add_u32 v4, {G2F}, v2")
    a("v_lshlrev_b32 v13, 4, v1")
    for i in range(3):
        a(f"s_lshl_b32 s30, s{32+i}, 10")
        a(f"v_add_u32 v{14+i}, s30, v13")
    a(f"s_mul_i32 s44, s21, {8*87*1024}")
    a(f"s_add_u32 s44, s44, {W1F}")
    a("s_waitcnt lgkmcnt(0)")
    wsfix(a, 14)
    a.srd(8, 14, WS_USED)
    a("global_load_dword v5, v4, s[14:15]")
    for j in range(8):
        a("s_mov_b32 m0, s42")
        a("s_add_u32 s42, s42, 8192")
        a(f"buffer_load_dwordx4 v11, s[8:11], s41 offen lds")
        a(f"s_add_u32 s41, s41, 8192")
    WR = 208
    DEEP = 3
    def wload(j):
        out = []
        for i in range(3):
            r = WR + (j % DEEP) * 12 + 4 * i
            out.append(f"buffer_load_dwordx4 v[{r}:{r+3}], v{14+i}, s[8:11], s44 offen")
        out.append(f"s_add_u32 s44, s44, {87*1024}")
        return out
    for j in range(2):
        for x in wload(j): a(x)
    a(f"s_mov_b32 s30, {SCAL}")
    a("s_load_dwordx4 s[36:39], s[14:15], s30")
    a(f"s_mov_b32 s31, {SCAL+16}")
    a("s_load_dword s40, s[14:15], s31")
    a("v_lshrrev_b32 v3, 4, v1")
    a("v_and_b32 v6, 15, v1")
    a("v_bfe_u32 v18, v1, 2, 2")
    a("v_lshl_add_u32 v18, v3, 2, v18")
    a("v_and_b32 v19, 6, v18")
    a("v_lshrrev_b32 v19, 1, v19")
    a("v_and_b32 v29, 3, v1")
    a("v_lshlrev_b32 v30, 7, v18")
    a("v_lshl_add_u32 v30, v29, 3, v30")
    a("s_lshl_b32 s45, s21, 15")
    a("s_lshl_b32 s46, s21, 1")
    a("s_add_u32 s46, s46, s20")
    for k in range(4):
        a(f"s_add_u32 s30, s46, {k}")
        a(f"s_and_b32 s{48+k}, s30, 3")
        a(f"v_xor_b32 v31, s{48+k}, v19")
        a(f"v_lshl_add_u32 v{20+k}, v31, 5, v30")
        a(f"v_add_u32 v{20+k}, s45, v{20+k}")
    a("v_xor_b32 v31, s20, v19")
    a("v_lshl_add_u32 v26, v31, 5, v30")
    a("s_lshl_b32 s30, s26, 13")
    a("s_lshl_b32 s31, s21, 12")
    a("s_add_u32 s30, s30, s31")
    a("v_add_u32 v26, s30, v26")
    a("s_lshl_b32 s30, s21, 10")
    a(f"s_add_u32 s30, s30, {W8_G2T}")
    a("v_lshl_add_u32 v24, v3, 4, s30")
    ACC = 160
    for r in range(ACC, ACC + 48): a(f"v_mov_b32 v{r}, 0")
    for r in range(96, 108): a(f"v_mov_b32 v{r}, 0")
    a("s_waitcnt vmcnt(14)")
    a(f"v_add_u32 v2, {W8_G2T}, v2")
    a("ds_write_b32 v2, v5")
    a("v_mov_b32 v7, s32")
    a("v_mov_b32 v8, s33")
    a("v_mov_b32 v9, s34")
    a("v_cmp_eq_u32 vcc, 1, v3")
    a("v_cmp_le_u32 s[52:53], 2, v3")
    a("s_nop 0")
    a("v_cndmask_b32 v7, v7, v8, vcc")
    a("v_cndmask_b32 v7, v7, v9, s[52:53]")
    a("v_min_u32 v7, 85, v7")
    a("v_lshl_add_u32 v7, v7, 4, v6")
    a("v_lshlrev_b32 v8, 2, v7")
    a(f"v_add_u32 v8, {SVP}, v8")
    a("v_lshlrev_b32 v9, 1, v7")
    a("s_mul_i32 s58, s20, 11")
    a("s_cmp_eq_u32 s20, 3")
    a("s_cselect_b32 s58, 32, s58")
    a("s_mul_i32 s59, s26, 43")
    a("s_add_u32 s59, s59, s58")
    a("s_lshl_b32 s59, s59, 12")
    a("s_lshl_b32 s30, s21, 11")
    a("s_add_u32 s59, s59, s30")
    a(f"s_add_u32 s59, s59, {W2F}")
    a.srd(60, 14, WS_USED)
    a("s_cmp_eq_u32 s20, 3")
    a("s_cselect_b32 s62, 0, s10")
    W2R = 108
    def w2reg(j, t):
        idx = 2 * j + t
        return 208 + 4 * idx if idx < 9 else 108 + 4 * (idx - 9)
    drip = []
    items = [(j, t) for j in range(11) for t in range(2)]
    s59off = {}
    late = [it for it in items if 2 * it[0] + it[1] < 9]
    early = [it for it in items if 2 * it[0] + it[1] >= 9]
    for (j, t) in early + late:
        srd = "s[60:63]" if j == 0 else "s[8:11]"
        r = w2reg(j, t)
        drip.append(f"s_add_u32 s57, s59, {4096*j}\nbuffer_load_dwordx4 v[{r}:{r+3}], v13, {srd}, s57 offen offset:{1024*t}")
    a("s_lshl_b32 s30, s26, 8")
    a("s_lshl_b32 s31, s21, 7")
    a("s_add_u32 s30, s30, s31")
    a(f"s_add_u32 s30, s30, {GBF}")
    a("v_lshl_add_u32 v27, v3, 4, s30")
    a("s_lshl_b32 s30, s26, 7")
    a("s_lshl_b32 s31, s21, 6")
    a("s_add_u32 s30, s30, s31")
    a("v_lshl_add_u32 v28, v3, 3, s30")
    gbl = [f"global_load_dwordx4 v[{244+4*t}:{247+4*t}], v27, s[14:15] offset:{64*t}" for t in range(2)]
    gbl += [f"global_load_dwordx2 v[{252+2*t}:{253+2*t}], v28, s[16:17] offset:{32*t}" for t in range(2)]
    a(f"s_waitcnt vmcnt(6) lgkmcnt(0)")
    stamp(a, 1)
    a("s_barrier")
    XF = [32, 48]
    GQ = [64, 72]
    def xreads(j):
        b = XF[j & 1]; g = GQ[j & 1]
        out = []
        for k in range(4):
            for hf in range(2):
                out.append(f"ds_read_b64_tr_b16 v[{b+4*k+2*hf}:{b+4*k+2*hf+1}], v{20+k} offset:{4096*j + 2048*hf}")
        out.append(f"ds_read_b128 v[{g}:{g+3}], v24 offset:{128*j}")
        out.append(f"ds_read_b128 v[{g+4}:{g+7}], v24 offset:{128*j+64}")
        return out
    for x in xreads(0): a(x)
    for x in wload(2): a(x)
    seq = [("W", j) for j in range(3) for _ in range(3)]
    def vmwait(tag):
        last = max(i for i, t in enumerate(seq) if t == tag)
        return len(seq) - 1 - last
    smalls = []
    for kq in range(4):
        for v in range(3):
            smalls.append(f"global_load_dword v{112+kq*3+v}, v8, s[14:15]")
            if not (kq == 3 and v == 2): smalls.append("v_add_u32 v8, 5504, v8")
    smalls.append("global_load_ushort v124, v9, s[12:13]")
    issued = 3
    for j in range(8):
        b = XF[j & 1]; g = GQ[j & 1]
        a(f"s_waitcnt vmcnt({vmwait(('W', j))}) lgkmcnt(0)")
        mf = []
        for i in range(3):
            r = WR + (j % DEEP) * 12 + 4 * i
            for k in range(4):
                d = ACC + (i * 4 + k) * 4
                mf.append(f"v_mfma_f32_16x16x32_bf16 v[{d}:{d+3}], v[{r}:{r+3}], v[{b+4*k}:{b+4*k+3}], v[{d}:{d+3}]")
        va = []
        if j + 1 < 8: va += xreads(j + 1)
        post = []
        if issued < 8:
            post = wload(issued); seq += [("W", issued)] * 3; issued += 1
        elif j == 6:
            post = smalls + gbl; seq += [("S", 0)] * 13 + [("G", 0)] * 4
        for q_ in range(4):
            va.append(f"v_lshlrev_b32 v{80+2*q_}, 16, v{b+q_}")
            va.append(f"v_and_b32 v{81+2*q_}, 0xffff0000, v{b+q_}")
        for q_ in range(8): va.append(f"v_mul_f32 v{80+q_}, v{80+q_}, v{80+q_}")
        for q_ in range(8):
            va.append(f"v_add_f32 v{96+(q_&3)}, v{96+(q_&3)}, v{80+q_}")
            va.append(f"v_fmac_f32 v{100+q_}, v{80+q_}, v{g+q_}")
        per = -(-len(va) // 12)
        vi = 0
        for m in mf:
            a(m)
            for _ in range(per):
                if vi < len(va): a(va[vi]); vi += 1
        for x in post: a(x)
    stamp(a, 2)
    def dr(n=1):
        for _ in range(n):
            if drip: a(drip.pop(0))
    a(f"s_mul_i32 s30, s24, 6144")
    a(f"s_add_u32 s30, s30, {W8_RED}")
    a("v_add_u32 v2, s30, v13")
    a("s_xor_b32 s31, s24, 4")
    a(f"s_mul_i32 s31, s31, 6144")
    a(f"s_add_u32 s31, s31, {W8_RED}")
    a("v_add_u32 v25, s31, v13")
    a("v_pk_add_f32 v[96:97], v[96:97], v[98:99]")
    a("v_add_f32 v96, v96, v97")
    a("v_pk_add_f32 v[100:101], v[100:101], v[102:103]")
    a("v_pk_add_f32 v[104:105], v[104:105], v[106:107]")
    a("v_pk_add_f32 v[100:101], v[100:101], v[104:105]")
    a("v_add_f32 v97, v100, v101")
    for i in range(3):
        for k in (2, 3):
            d = ACC + (i * 4 + k) * 4
            a(f"ds_write_b128 v2, v[{d}:{d+3}] offset:{(i*2 + k - 2)*1024}")
    a("v_mov_b32 v98, v96")
    a("v_mov_b32 v99, v97")
    a("s_nop 0")
    a("v_permlane16_swap_b32 v96, v98")
    a("v_permlane16_swap_b32 v97, v99")
    dr(1)
    a("v_add_f32 v96, v96, v98")
    a("v_add_f32 v97, v97, v99")
    a("v_mov_b32 v98, v96")
    a("v_mov_b32 v99, v97")
    a("s_nop 0")
    a("v_permlane32_swap_b32 v96, v98")
    a("v_permlane32_swap_b32 v97, v99")
    a("s_lshl_b32 s30, s48, 10")
    a("s_lshl_b32 s31, s21, 5")
    a("s_add_u32 s30, s30, s31")
    a(f"s_add_u32 s30, s30, {W8_STT}")
    a("v_add_f32 v96, v96, v98")
    a("v_add_f32 v97, v97, v99")
    a("v_lshl_add_u32 v2, v6, 6, s30")
    a("ds_write_b64 v2, v[96:97] offset:24")
    a("s_cmp_eq_u32 s20, 3")
    a("s_cbranch_scc0 K3_nolin")
    a("v_cmp_eq_u32 s[52:53], 0, v3")
    a("v_cmp_eq_u32 s[54:55], 1, v3")
    for k in range(4):
        a(f"s_lshl_b32 s30, s{48+k}, 10")
        a("s_lshl_b32 s31, s21, 5")
        a("s_add_u32 s30, s30, s31")
        a(f"s_add_u32 s30, s30, {W8_STT}")
        a(f"v_lshl_add_u32 v{64+k}, v6, 6, s30")
    a("s_mov_b64 exec, s[52:53]")
    for k in range(4):
        d = ACC + (8 + k) * 4
        a(f"ds_write_b128 v{64+k}, v[{d}:{d+3}]")
    a("s_mov_b64 exec, s[54:55]")
    for k in range(4):
        d = ACC + (8 + k) * 4
        a(f"ds_write_b64 v{64+k}, v[{d}:{d+1}] offset:16")
    a("s_mov_b64 exec, -1")
    a("K3_nolin:")
    a("s_cmp_eq_u32 s21, 0")
    a("s_cbranch_scc0 K3_nosv")
    a(f"s_waitcnt vmcnt({vmwait(('S', 0)) + 1})")
    for v in range(3):
        a(f"v_add_f32 v{112+v}, v{112+v}, v{115+v}")
        a(f"v_add_f32 v{118+v}, v{118+v}, v{121+v}")
        a(f"v_add_f32 v{112+v}, v{112+v}, v{118+v}")
    a("v_lshlrev_b32 v124, 16, v124")
    a("s_mul_i32 s30, s20, 768")
    a(f"s_add_u32 s30, s30, {W8_SVT}")
    a("v_lshlrev_b32 v2, 8, v3")
    a("v_lshl_add_u32 v2, v6, 2, v2")
    a("v_add_u32 v2, s30, v2")
    a("v_cmp_gt_u32 vcc, 48, v1")
    a("s_and_saveexec_b64 s[42:43], vcc")
    a("ds_write_b32 v2, v112")
    a("ds_write_b32 v2, v114 offset:64")
    a("ds_write_b32 v2, v113 offset:128")
    a("ds_write_b32 v2, v124 offset:192")
    a("s_mov_b64 exec, s[42:43]")
    a("K3_nosv:   ; LINT-RESET")
    a("s_waitcnt vmcnt(1) lgkmcnt(0)")
    a("s_barrier")
    for i in range(3):
        for k in range(2):
            r = 64 + (i * 2 + k) * 4
            a(f"ds_read_b128 v[{r}:{r+3}], v25 offset:{(i*2 + k)*1024}")
    a("v_lshlrev_b32 v2, 6, v1")
    a(f"v_add_u32 v2, {W8_STT}, v2")
    a("ds_read_b128 v[32:35], v2")
    a("ds_read_b128 v[36:39], v2 offset:16")
    a("ds_read_b128 v[40:43], v2 offset:32")
    a("ds_read_b128 v[44:47], v2 offset:48")
    dr(2)
    a("s_waitcnt lgkmcnt(4)")
    for i in range(3):
        for k in range(2):
            d = ACC + (i * 4 + k) * 4; r = 64 + (i * 2 + k) * 4
            a(f"v_pk_add_f32 v[{d}:{d+1}], v[{d}:{d+1}], v[{r}:{r+1}]")
            a(f"v_pk_add_f32 v[{d+2}:{d+3}], v[{d+2}:{d+3}], v[{r+2}:{r+3}]")
    a("s_waitcnt lgkmcnt(0)")
    for r in range(0, 8, 2): a(f"v_pk_add_f32 v[{32+r}:{33+r}], v[{32+r}:{33+r}], v[{40+r}:{41+r}]")
    dr(1)
    a("v_add_f32 v34, v34, v35")
    a("v_add_f32 v36, v36, v37")
    a("v_mul_f32 v32, 0x3b000000, v32")
    a("v_mul_f32 v38, 0x3b000000, v38")
    a("v_fma_f32 v38, -v32, v32, v38")
    a("v_max_f32 v38, 0, v38")
    a("v_cvt_pk_bf16_f32 v40, v32, v38")
    a("v_lshlrev_b32 v32, 16, v40")
    a("v_and_b32 v38, 0xffff0000, v40")
    a("v_add_f32 v38, 0x3727c5ac, v38")
    rbf(a, 38, 38)
    a("v_sqrt_f32 v38, v38")
    a("v_fma_f32 v33, -v32, s36, v33")
    rbf(a, 38, 38)
    a("v_rcp_f32 v38, v38")
    a("v_mul_f32 v40, v32, v32")
    a("v_add_f32 v41, v32, v32")
    a("v_fma_f32 v39, -v41, v34, v39")
    a("v_fma_f32 v39, v40, s37, v39")
    a("v_fma_f32 v36, -v32, s38, v36")
    a("v_fma_f32 v33, v33, v38, s39")
    a("v_add_f32 v36, v36, v36")
    a("v_fma_f32 v39, v39, v38, v36")
    a("v_mul_f32 v33, 0x3b000000, v33")
    dr(1)
    a("v_fma_f32 v39, v39, v38, s40")
    a("v_mul_f32 v39, 0x3b000000, v39")
    a("v_fma_f32 v39, -v33, v33, v39")
    a("v_max_f32 v39, 0, v39")
    a("v_cvt_pk_bf16_f32 v40, v33, v39")
    a("v_lshlrev_b32 v33, 16, v40")
    a("v_and_b32 v39, 0xffff0000, v40")
    a("v_add_f32 v39, 0x3727c5ac, v39")
    rbf(a, 39, 39)
    a("v_sqrt_f32 v39, v39")
    a("s_nop 0")
    rbf(a, 39, 39)
    a("v_rcp_f32 v47, v39")
    a("s_lshl_b32 s30, s24, 10")
    a(f"s_add_u32 s30, s30, {W8_COF}")
    a("v_mul_f32 v44, v47, v38")
    a("v_mul_f32 v46, -v47, v33")
    a("v_mul_f32 v45, -v44, v32")
    a("v_lshl_add_u32 v2, v1, 4, s30")
    a("ds_write_b128 v2, v[44:47]")
    a("s_waitcnt lgkmcnt(0)")
    for k in range(2):
        a(f"s_lshl_b32 s31, s{48+k}, 8")
        a("s_add_u32 s31, s31, s30")
        a(f"v_lshl_add_u32 v2, v6, 4, s31")
        a(f"ds_read_b128 v[{48+4*k}:{51+4*k}], v2")
    a("s_mul_i32 s30, s20, 768")
    a(f"s_add_u32 s30, s30, {W8_SVT}")
    a("v_lshl_add_u32 v25, v3, 4, s30")
    a("s_mov_b32 s54, 0xbdd2d3e2")
    a("s_mov_b32 s55, 0xc0135761")
    dr(2)
    stamp(a, 3)
    for i in range(3):
        a(f"s_cmp_eq_u32 s{32+i}, 86")
        a(f"s_cbranch_scc1 K3_skip{i}")
        for st in range(4):
            a(f"ds_read_b128 v[{64+4*st}:{67+4*st}], v25 offset:{256*i + 64*st}")
        a(f"s_add_u32 s30, s29, {i}")
        a("s_lshr_b32 s31, s30, 1")
        a("s_lshl_b32 s31, s31, 12")
        a("s_and_b32 s30, s30, 1")
        a("s_lshl_b32 s30, s30, 3")
        a("s_add_u32 s30, s30, s31")
        a(f"s_add_u32 s30, s30, {W8_STG}")
        a("s_waitcnt lgkmcnt(0)")
        A_ = ACC + i * 16
        for (src, co, sel) in ((64, 0, "op_sel:[0,1,0] op_sel_hi:[1,1,1]"), (68, 2, "op_sel_hi:[1,0,1]"), (72, 2, "op_sel:[0,1,0] op_sel_hi:[1,1,1]")):
            for k in range(2):
                c = 48 + 4 * k
                for p in range(2):
                    t = 80 + 4 * k + 2 * p
                    s2 = f"v[{76+2*p}:{77+2*p}]" if src == 64 else f"v[{t}:{t+1}]"
                    a(f"v_pk_fma_f32 v[{t}:{t+1}], v[{src+2*p}:{src+2*p+1}], v[{c+co}:{c+co+1}], {s2} {sel}")
            if i == 0: dr(1)
        for k in range(2):
            c = 48 + 4 * k
            for p in range(2):
                x = A_ + 4 * k + 2 * p; t = 80 + 4 * k + 2 * p
                a(f"v_pk_fma_f32 v[{x}:{x+1}], v[{x}:{x+1}], v[{c}:{c+1}], v[{t}:{t+1}] op_sel_hi:[1,0,1]")
        for j in range(4):
            x = A_ + 2 * j; t = 80 + 2 * j
            a(f"v_pk_mul_f32 v[{t}:{t+1}], v[{x}:{x+1}], v[{x}:{x+1}]")
        for j in range(4):
            t = 80 + 2 * j
            a(f"v_pk_fma_f32 v[{t}:{t+1}], v[{t}:{t+1}], s[54:55], s[54:55] op_sel:[0,0,1] op_sel_hi:[1,0,1]")
        for j in range(4):
            x = A_ + 2 * j; t = 80 + 2 * j
            a(f"v_pk_mul_f32 v[{t}:{t+1}], v[{t}:{t+1}], v[{x}:{x+1}]")
        if i == 0: dr(1)
        for j in range(8): a(f"v_exp_f32 v{80+j}, v{80+j}")
        for j in range(4):
            t = 80 + 2 * j
            a(f"v_pk_add_f32 v[{t}:{t+1}], v[{t}:{t+1}], 1.0 op_sel_hi:[1,0]")
        for j in range(8): a(f"v_rcp_f32 v{80+j}, v{80+j}")
        if i == 0: dr(1)
        for j in range(4):
            x = A_ + 2 * j; t = 80 + 2 * j
            a(f"v_pk_mul_f32 v[{x}:{x+1}], v[{x}:{x+1}], v[{t}:{t+1}]")
        for k in range(2):
            a(f"v_cvt_pk_bf16_f32 v{88+2*k}, v{A_+4*k}, v{A_+4*k+1}")
            a(f"v_cvt_pk_bf16_f32 v{89+2*k}, v{A_+4*k+2}, v{A_+4*k+3}")
        if i == 1:
            a("s_cmp_eq_u32 s29, 9")
            a("s_cbranch_scc0 K3_paired1")
            a("s_lshr_b32 s31, s26, 1")
            a("s_add_u32 s31, s31, 40")
            a("s_mul_i32 s43, s25, 43")
            a("s_add_u32 s31, s31, s43")
            a("s_lshl_b32 s31, s31, 12")
            a("s_and_b32 s43, s26, 1")
            a("s_lshl_b32 s43, s43, 3")
            a("s_add_u32 s31, s31, s43")
            a(f"s_add_u32 s31, s31, {HF}")
            for k in range(2):
                a(f"s_lshl_b32 s43, s{48+k}, 10")
                a("s_add_u32 s43, s43, s31")
                a(f"buffer_store_dwordx2 v[{88+2*k}:{89+2*k}], v13, s[8:11], s43 offen sc1")
            a("s_branch K3_skip1")
            a("K3_paired1:")
        for k in range(2):
            a(f"s_lshl_b32 s31, s{48+k}, 10")
            a("s_add_u32 s31, s31, s30")
            a(f"v_add_u32 v2, s31, v13")
            a(f"ds_write_b64 v2, v[{88+2*k}:{89+2*k}]")
        a(f"K3_skip{i}:   ; LINT-RESET")
        dr(2)
    dr(99)
    for t in range(2):
        a(f"ds_read_b64_tr_b16 v[{16+2*t}:{17+2*t}], v26 offset:{2048*t}")
    a("s_waitcnt lgkmcnt(0)")
    a("s_barrier")
    stamp(a, 4)
    a("s_lshl_b32 s30, s24, 10")
    a("v_add_u32 v2, s30, v13")
    a(f"v_add_u32 v2, {W8_STG}, v2")
    a("ds_read_b128 v[32:35], v2")
    a("ds_read_b128 v[36:39], v2 offset:8192")
    a("s_mul_i32 s31, s25, 43")
    a("s_mul_i32 s43, s26, 5")
    a("s_add_u32 s31, s31, s43")
    a("s_lshl_b32 s31, s31, 12")
    a("s_add_u32 s31, s31, s30")
    a(f"s_add_u32 s31, s31, {HF}")
    a("s_waitcnt lgkmcnt(1)")
    a("buffer_store_dwordx4 v[32:35], v13, s[8:11], s31 offen sc1")
    a("s_add_u32 s31, s31, 8192")
    a("s_waitcnt lgkmcnt(0)")
    a("buffer_store_dwordx4 v[36:39], v13, s[8:11], s31 offen sc1")
    a("s_cmp_lt_u32 s24, 4")
    a("s_cbranch_scc0 K3_no3rd")
    a("ds_read_b128 v[40:43], v2 offset:16384")
    a("s_add_u32 s31, s31, 8192")
    a("s_waitcnt lgkmcnt(0)")
    a("buffer_store_dwordx4 v[40:43], v13, s[8:11], s31 offen sc1")
    a("K3_no3rd:   ; LINT-RESET")
    ACB = 176
    for r in range(ACB, ACB + 32): a(f"v_mov_b32 v{r}, 0")
    a("s_waitcnt vmcnt(0)")
    stamp(a, 5)
    a("s_barrier")
    a("s_cmp_lg_u32 s24, 0")
    a("s_cbranch_scc1 K3_wait")
    a("s_lshl_b32 s30, s25, 7")
    a(f"s_add_u32 s30, s30, {FLAGS}")
    a("v_mov_b32 v2, s30")
    a("v_mov_b32 v4, 1")
    a("s_mov_b64 exec, 1")
    a("global_atomic_add v4, v2, v4, s[14:15] sc0 sc1")
    a("s_waitcnt vmcnt(0)")
    a("v_readfirstlane_b32 s30, v4")
    a("s_cmp_eq_u32 s30, 7")
    a("s_cbranch_scc1 K3_pollx")
    a("s_mov_b32 s31, 0x100000")
    a("K3_poll:")
    a("global_load_dword v5, v2, s[14:15] sc1")
    a("s_waitcnt vmcnt(0)")
    a("v_readfirstlane_b32 s30, v5")
    a("s_sub_u32 s31, s31, 1")
    a("s_cmp_eq_u32 s31, 0")
    a("s_cbranch_scc1 K3_pollx")
    a("s_cmp_ge_u32 s30, 8")
    a("s_cbranch_scc0 K3_poll")
    a("K3_pollx:")
    a("s_mov_b64 exec, -1")
    a("K3_wait:   ; LINT-RESET")
    a("s_barrier")
    stamp(a, 6)
    SLOT = 16384; NS = 6
    a("s_mul_i32 s57, s25, 43")
    a("s_add_u32 s57, s57, s58")
    a("s_lshl_b32 s57, s57, 12")
    a("s_lshl_b32 s30, s21, 11")
    a("s_add_u32 s57, s57, s30")
    a(f"s_add_u32 s57, s57, {HF}")
    a("s_lshl_b32 s56, s20, 12")
    a("s_add_u32 s56, s56, s30")
    a("s_lshl_b32 s30, s20, 12")
    a("v_add_u32 v4, s30, v13")
    a(f"v_add_u32 v8, {4*SLOT}, v4")
    def hdma(j):
        return [f"s_add_u32 m0, s56, {(j % NS) * SLOT}\ns_add_u32 s43, s57, {4096 * j}\nbuffer_load_dwordx4 v13, s[8:11], s43 offen offset:{1024*t} lds" for t in range(2)]
    def hread(j):
        sl = j % NS
        base, off = ("v4", sl * SLOT) if sl < 4 else ("v8", (sl - 4) * SLOT)
        return [f"ds_read_b128 v[{HB[j & 1] + 4*lt}:{HB[j & 1] + 4*lt + 3}], {base} offset:{off + lt * 1024}" for lt in range(4)]
    HB = [32, 48]
    AHEAD = 5
    hq = []
    for j in range(AHEAD):
        for x in hdma(j): a(x); hq.append(j)
    a(f"s_waitcnt vmcnt({sum(1 for t in hq if t > 0)})")
    a("s_barrier")
    for x in hread(0): a(x)
    for j in range(11):
        if j + 1 <= 10:
            a(f"s_waitcnt vmcnt({sum(1 for t in hq if t > j + 1)}) lgkmcnt(0)")
            a("s_barrier")
            rd = hread(j + 1)
        else:
            a("s_waitcnt lgkmcnt(0)")
            rd = []
        nxt = hdma(j + AHEAD) if j + AHEAD <= 10 else []
        hq += [j + AHEAD] * len(nxt)
        extra = rd + nxt
        ei = 0
        for t in range(2):
            for lt in range(4):
                d = ACB + (t * 4 + lt) * 4
                ar = w2reg(j, t); br = HB[j & 1] + 4 * lt
                a(f"v_mfma_f32_16x16x32_bf16 v[{d}:{d+3}], v[{ar}:{ar+3}], v[{br}:{br+3}], v[{d}:{d+3}]")
                if ei < len(extra): a(extra[ei]); ei += 1
    stamp(a, 7)
    a("v_mul_u32_u24 v5, 272, v6")
    a("v_lshl_add_u32 v5, v3, 4, v5")
    a(f"s_mul_i32 s30, s20, {P_W}")
    a("s_lshl_b32 s31, s21, 7")
    a("s_add_u32 s30, s30, s31")
    a(f"s_add_u32 s30, s30, {W8_RED}")
    a("v_add_u32 v7, s30, v5")
    a("s_barrier")
    a("s_nop 4")
    for t in range(2):
        for lt in range(4):
            d = ACB + (t * 4 + lt) * 4
            a(f"ds_write_b128 v7, v[{d}:{d+3}] offset:{lt*16*272 + t*64}")
    a(f"s_mul_i32 s30, s20, {16*272}")
    a("s_lshl_b32 s31, s21, 7")
    a("s_add_u32 s30, s30, s31")
    a(f"s_add_u32 s30, s30, {W8_RED}")
    a("v_add_u32 v7, s30, v5")
    a("s_waitcnt lgkmcnt(0)")
    a("s_barrier")
    stamp(a, 8)
    for t in range(2):
        for w in range(4):
            r = 32 + (t * 4 + w) * 4
            a(f"ds_read_b128 v[{r}:{r+3}], v7 offset:{w*P_W + t*64}")
    a.srd(40, 18, 2048 * 512 * 2)
    a("s_lshl_b32 s30, s25, 16")
    a("s_lshl_b32 s31, s20, 14")
    a("s_add_u32 s30, s30, s31")
    a("s_lshl_b32 s31, s26, 7")
    a("s_add_u32 s30, s30, s31")
    a("s_lshl_b32 s31, s21, 6")
    a("s_add_u32 s30, s30, s31")
    a("v_lshlrev_b32 v9, 10, v6")
    a("v_lshl_add_u32 v9, v3, 3, v9")
    a("v_add_u32 v9, s30, v9")
    for t in range(2):
        a(f"s_waitcnt lgkmcnt({4*(1-t)})")
        r = 32 + t * 16
        for p in range(2):
            a(f"v_pk_add_f32 v[{r+2*p}:{r+2*p+1}], v[{r+2*p}:{r+2*p+1}], v[{r+4+2*p}:{r+5+2*p}]")
            a(f"v_pk_add_f32 v[{r+8+2*p}:{r+9+2*p}], v[{r+8+2*p}:{r+9+2*p}], v[{r+12+2*p}:{r+13+2*p}]")
        for p in range(2):
            a(f"v_pk_add_f32 v[{r+2*p}:{r+2*p+1}], v[{r+2*p}:{r+2*p+1}], v[{r+8+2*p}:{r+9+2*p}]")
        for q_ in range(2):
            a(f"v_lshlrev_b32 v{96+2*q_}, 16, v{252+2*t+q_}")
            a(f"v_and_b32 v{97+2*q_}, 0xffff0000, v{252+2*t+q_}")
            a(f"v_lshlrev_b32 v{100+2*q_}, 16, v{16+2*t+q_}")
            a(f"v_and_b32 v{101+2*q_}, 0xffff0000, v{16+2*t+q_}")
        for p in range(2):
            a(f"v_pk_add_f32 v[{r+2*p}:{r+2*p+1}], v[{r+2*p}:{r+2*p+1}], v[{96+2*p}:{97+2*p}]")
        for p in range(2):
            a(f"v_pk_fma_f32 v[{r+2*p}:{r+2*p+1}], v[{r+2*p}:{r+2*p+1}], v[{244+4*t+2*p}:{245+4*t+2*p}], v[{100+2*p}:{101+2*p}]")
        a(f"v_cvt_pk_bf16_f32 v{24+2*t}, v{r}, v{r+1}")
        a(f"v_cvt_pk_bf16_f32 v{25+2*t}, v{r+2}, v{r+3}")
        a(f"buffer_store_dwordx2 v[{24+2*t}:{25+2*t}], v9, s[40:43], 0 offen offset:{32*t}")
    a("K3_END:   ; LINT-RESET")
    stamp_store(a, KID3, 14, 24)
    a("K3_EXIT:")
    a.end_kernel(name, 256, 100, accum=256)

def triv(a, i):
    name = f"t{i}_kernel"
    a.begin_kernel(name, 256, 256, 0)
    a.end_kernel(name, 8, 16)
def build(kernels):
    global LASTLABEL, KID3, FUSED
    FUSED = kernels[0].__name__ == "k12"
    KID3 = len(kernels) - 1
    LASTLABEL = {"k1": "K1_EXIT", "k2": "K2_EXIT", "k12": "K2_EXIT", "k3": "K3_EXIT", "k3w": "K3_EXIT"}[kernels[-1].__name__]
    a = Asm()
    for i in range(int(OPT.get("pre_triv", "0"))): triv(a, 10 + i)
    for k in kernels: k(a)
    for i in range(int(OPT.get("extra", "0"))): triv(a, i)
    return a.text().replace("None\n", "")

ALL = {}
if __name__ == "__main__":
    out = sys.argv[1] if len(sys.argv) > 1 else "cur.s"
    names = sys.argv[2].split(",") if len(sys.argv) > 2 else ["k1"]
    if len(sys.argv) > 3 and sys.argv[3] == "prof": PROF = True
    open(out, "w").write(build([globals()[n] for n in names]))
```

```python
import sys
sys.path.insert(0, "dev")
from asmgen import *

import os
OPT = dict(kv.split("=") for kv in os.environ.get("GENOPT", "").split(",") if kv)
WSOFF = int(OPT.get("wsoff", "0"), 0)
SC1 = " sc1" if OPT.get("sc1", "1") == "1" else ""
HLD = " sc1" if OPT.get("hsc1", "1") == "1" else ""
WLD = " sc1" if OPT.get("wsc1", "0") == "1" else ""
XLD = " sc1" if OPT.get("xsc1", "0") == "1" else ""
NT1 = " nt" if OPT.get("nt1", "1") == "1" else ""
def wsfix(a, r):
    if WSOFF:
        a(f"s_add_u32 s{r}, s{r}, {WSOFF}")
        a(f"s_addc_u32 s{r+1}, s{r+1}, 0")
XT    = 0x0000000
X2T   = 0x0200000
KREV  = 0x0400000
KW    = 4160
STAT1 = 0x0620000
MODF  = 0x0630000
SCAL  = 0x0634000
SVP   = 0x0640000
MODP  = 0x0660000
G2F   = 0x0634400
GBF   = 0x0634C00
W1F   = 0x0700000
W2F   = 0x0900000
HF    = 0x0B00000
WS_USED = 0x1100000

STAMP = 0x1100000
PROF = False
def stamp(a, i):
    if PROF:
        if OPT.get("cyc", "0") == "1": a(f"s_memtime s[{70+2*i}:{71+2*i}]")
        else: a(f"s_memrealtime s[{70+2*i}:{71+2*i}]")
        a("s_waitcnt lgkmcnt(0)")
def stamp_store(a, kid, wsreg, swave):
    if not PROF: return
    a("s_mov_b64 exec, -1")
    tm = "s_memtime" if OPT.get("cyc", "0") == "1" else "s_memrealtime"
    a(f"{tm} s[90:91]")
    a("s_waitcnt lgkmcnt(0) vmcnt(0)")
    a(f"{tm} s[92:93]")
    a("s_waitcnt lgkmcnt(0)")
    a(f"s_lshl_b32 s94, s2, 3")
    a(f"s_add_u32 s94, s94, s{swave}")
    a(f"s_lshl_b32 s94, s94, 6")
    a(f"s_add_u32 s94, s94, {STAMP + kid * 0x80000}")
    a("v_mov_b32 v0, s94")
    for i in range(12):
        a(f"v_mov_b32 v{2+i}, s{70+2*i}")
    a("s_mov_b64 exec, 1")
    a(f"global_store_dwordx4 v0, v[2:5], s[{wsreg}:{wsreg+1}]")
    a(f"global_store_dwordx4 v0, v[6:9], s[{wsreg}:{wsreg+1}] offset:16")
    a(f"global_store_dwordx4 v0, v[10:13], s[{wsreg}:{wsreg+1}] offset:32")

LOG2E = "0x3fb8aa3b"
INV2PI = "0.15915494"

def wave_id(a, s, vt):
    a(f"v_lshrrev_b32 v{vt}, 6, v0")
    a("s_nop 0")
    a(f"v_readfirstlane_b32 s{s}, v{vt}")

def rbf(a, vd, vs):
    a(f"v_cvt_pk_bf16_f32 v{vd}, v{vs}, v{vs}")
    a(f"v_and_b32 v{vd}, 0xffff0000, v{vd}")

def csq(a, dst, src, tmp):
    return [
        f"v_pk_mul_f32 v[{tmp}:{tmp+1}], v[{src}:{src+1}], v[{src}:{src+1}] op_sel:[0,0] op_sel_hi:[1,0]",
        f"v_pk_fma_f32 v[{dst}:{dst+1}], v[{src}:{src+1}], v[{src}:{src+1}], v[{tmp}:{tmp+1}] op_sel:[1,1,0] op_sel_hi:[0,1,1] neg_lo:[1,0,0]",
    ]

def cmulconj(a, dst, p, c, tmp):
    return [
        f"v_pk_mul_f32 v[{tmp}:{tmp+1}], v[{p}:{p+1}], v[{c}:{c+1}] op_sel:[0,0] op_sel_hi:[1,0] neg_hi:[0,1]",
        f"v_pk_fma_f32 v[{dst}:{dst+1}], v[{p}:{p+1}], v[{c}:{c+1}], v[{tmp}:{tmp+1}] op_sel:[1,1,0] op_sel_hi:[0,1,1] neg_lo:[1,0,0] neg_hi:[1,0,0]",
    ]

def code_prefetch(a, start, end, n, tag, vtmp, dst0):
    a(f"s_getpc_b64 s[66:67]")
    a(f"CPF_{tag}:")
    a(f"s_sub_u32 s66, s66, CPF_{tag}-{start}")
    a(f"s_subb_u32 s67, s67, 0")
    a(f"v_lshlrev_b32 v{vtmp}, 7, v1")
    a("s_mov_b64 s[68:69], exec")
    for i in range(n):
        a(f"v_cmp_gt_u32 vcc, {end}-{start}, v{vtmp}")
        a("s_and_b64 exec, s[68:69], vcc")
        a(f"s_cbranch_execz CPF_{tag}_done")
        a(f"global_load_dword v{dst0+i}, v{vtmp}, s[66:67]")
        a(f"v_add_u32 v{vtmp}, 8192, v{vtmp}")
    a(f"CPF_{tag}_done:")
    a("s_mov_b64 exec, s[68:69]")

def k1(a):
    name = "k1_kernel"
    a.begin_kernel(name, 512, 256, 23552)
    a("s_cmp_ge_u32 s2, 512")
    a("s_cbranch_scc1 K1_EXIT")
    stamp(a, 0)
    a("s_load_dwordx8 s[4:11], s[0:1], 8")
    a("s_load_dwordx2 s[12:13], s[0:1], 40")
    a("s_load_dwordx2 s[14:15], s[0:1], 128")
    a("s_load_dwordx2 s[16:17], s[0:1], 0")
    a("s_load_dwordx4 s[20:23], s[0:1], 96")
    wave_id(a, 24, 1)
    a("v_and_b32 v1, 63, v0")
    a("s_cmp_ge_u32 s2, 256")
    a("s_cbranch_scc1 K1_TSM")
    a("s_setprio 3")
    a("s_lshr_b32 s25, s24, 1")
    a("s_and_b32 s26, s24, 1")
    a("s_lshl_b32 s27, s2, 1")
    a("s_add_u32 s27, s27, s25")
    a("s_lshl_b32 s28, s27, 8")
    a("s_lshl_b32 s29, s26, 7")
    a("s_add_u32 s28, s28, s29")
    a("v_lshl_add_u32 v2, v1, 1, s28")
    a("s_lshl_b32 s30, s2, 2")
    a("s_waitcnt lgkmcnt(0)")
    wsfix(a, 14)
    a("global_load_ushort v4, v2, s[4:5] nt")
    a("global_load_ushort v5, v2, s[6:7] nt")
    a("global_load_ushort v6, v2, s[8:9] nt")
    a("global_load_ushort v7, v2, s[10:11] nt")
    a("s_load_dword s29, s[12:13], s30")
    a("v_and_b32 v16, 15, v1")
    a("v_cmp_eq_u32 s[32:33], 15, v16")
    a("v_lshrrev_b32 v18, 4, v1")
    a("v_add_u32 v19, 1, v16")
    a("v_cvt_f32_u32 v19, v19")
    a("s_lshl_b32 s31, s24, 10")
    a("v_lshl_add_u32 v17, v18, 6, s31")
    a("v_lshl_add_u32 v20, v1, 4, s31")
    for r in range(112, 128):
        a(f"v_mov_b32 v{r}, 0")
    T16 = 4096 + 16384
    a("s_mul_i32 s39, s25, 1344")
    a(f"s_add_u32 s39, s39, {T16 + 8}")
    a("v_subrev_u32 v21, 7, v16")
    a("v_cmp_gt_u32 s[34:35], 8, v21")
    a("v_add_u32 v21, 1, v16")
    a("v_and_b32 v21, 15, v21")
    a("v_lshlrev_b32 v24, 5, v21")
    a("v_lshl_add_u32 v24, v18, 3, v24")
    a("s_lshl_b32 s40, s26, 9")
    a("s_add_u32 s40, s40, s39")
    a("v_add_u32 v24, s40, v24")
    a("s_cmp_eq_u32 s26, 0")
    a("s_cselect_b64 s[36:37], -1, s[34:35]")
    a("s_lshl_b32 s40, s24, 12")
    a("s_add_u32 s40, s40, 4096")
    a("v_lshl_add_u32 v22, v1, 4, s40")
    a("s_lshl_b32 s40, s25, 13")
    a("s_lshl_b32 s41, s26, 11")
    a("s_add_u32 s40, s40, s41")
    a("s_add_u32 s40, s40, 4096")
    a("v_lshl_add_u32 v23, v1, 4, s40")
    a("s_lshl_b32 s40, s26, 6")
    a("v_add_u32 v26, s40, v1")
    a("v_lshlrev_b32 v27, 3, v26")
    a("v_sub_u32 v27, 2047, v27")
    a("v_cvt_f32_u32 v28, v27")
    a("s_sub_u32 s41, s39, 34050")
    a("s_sub_u32 s42, s39, 2")
    GA = 140
    for rnd in range(2):
        if rnd == 1:
            a("v_add_f32 v28, 0xc4800000, v28")
            a("v_subrev_u32 v27, 1024, v27")
        for t in range(8):
            if t == 0: a(f"v_mov_b32 v48, v28")
            else: a(f"v_add_f32 v{48+t}, {-float(t)}, v28")
        for p in range(4):
            a(f"v_cvt_pk_bf16_f32 v{56+p}, v{48+2*p}, v{49+2*p}")
        for p in range(4):
            a(f"v_and_b32 v{48+2*p}, 0xffff, v{56+p}")
            a(f"v_lshrrev_b32 v{49+2*p}, 16, v{56+p}")
        o = GA + 8 * rnd
        for t in range(8):
            a(f"v_lshl_add_u32 v{o+t}, v{48+t}, 1, s41")
        if rnd == 1:
            a("v_cmp_le_u32 vcc, 112, v26")
            for t in range(8):
                a(f"v_subrev_u32 v{56+(t&3)}, {t}, v27")
                a(f"v_lshl_add_u32 v{56+(t&3)}, v{56+(t&3)}, 1, s42")
                a(f"v_cndmask_b32 v{o+t}, v{o+t}, v{56+(t&3)}, vcc")
    a(f"s_mul_i32 s40, s27, {KW}")
    a(f"s_add_u32 s40, s40, {KREV}")
    a("v_lshl_add_u32 v29, v26, 4, s40")
    a("v_add_u32 v30, 2048, v29")
    a("v_add_u32 v31, 4096, v29")
    a("s_waitcnt lgkmcnt(0)")
    a("s_lshl_b32 s43, s25, 4")
    a("s_lshr_b32 s29, s29, s43")
    a("s_lshl_b32 s29, s29, 16")
    a(f"v_mov_b32 v8, {LOG2E}")
    a("v_mul_f32 v9, s29, v8")
    a("v_exp_f32 v9, v9")
    a("s_nop 0")
    rbf(a, 9, 9)
    a("s_waitcnt vmcnt(0)")
    a("v_lshlrev_b32 v4, 16, v4")
    a("v_lshlrev_b32 v5, 16, v5")
    a("v_lshlrev_b32 v6, 16, v6")
    a("v_lshlrev_b32 v7, 16, v7")
    a("v_mul_f32 v4, v4, v8")
    a("v_exp_f32 v4, v4")
    a("v_mul_f32 v13, v5, v9")
    a("v_mul_f32 v14, v6, v9")
    rbf(a, 4, 4)
    a("v_mul_f32 v15, v7, v9")
    a("v_mul_f32 v12, v4, v9")
    a(f"v_mul_f32 v13, {INV2PI}, v13")
    a("v_add_f32 v14, v14, v14")
    a("v_add_f32 v15, v15, v15")
    a("v_mul_f32 v12, v12, v8")
    a("v_mov_b32 v10, v14")
    a("v_sub_f32 v12, 0, v12")
    a("ds_write_b128 v20, v[12:15]")
    for ctl in ("row_shr:1", "row_shr:2", "row_shr:4", "row_shr:8", "row_bcast:15 row_mask:0xa", "row_bcast:31 row_mask:0xc"):
        a("s_nop 1")
        a(f"v_add_f32_dpp v10, v10, v10 {ctl}")
    a("s_waitcnt lgkmcnt(0)")
    stamp(a, 1)
    R = [[32 + 4 * u for u in range(4)], [48 + 4 * u for u in range(4)]]
    PA = [64 + 2 * u for u in range(4)]
    PB = [72 + 2 * u for u in range(4)]
    TT = [80 + 2 * u for u in range(4)]
    QF = [88 + 4 * e for e in range(4)]
    GF = [104, 108]
    DD = [112 + 4 * e for e in range(4)]
    CPK = [128 + u for u in range(4)]
    MAG = [132 + 2 * u for u in range(4)]
    for u in range(4):
        a(f"ds_read_b128 v[{R[0][u]}:{R[0][u]+3}], v17 offset:{u*16}")
    for ks in range(4):
        Rc = R[ks & 1]
        if ks + 1 < 4:
            for u in range(4):
                a(f"ds_read_b128 v[{R[(ks+1)&1][u]}:{R[(ks+1)&1][u]+3}], v17 offset:{(ks+1)*256+u*16}")
            a("s_waitcnt lgkmcnt(4)")
        else:
            a("s_waitcnt lgkmcnt(0)")
        for u in range(4): a(f"v_mul_f32 v{TT[u]}, v{Rc[u]}, v19")
        for u in range(4): a(f"v_mul_f32 v{TT[u]+1}, v{Rc[u]+1}, v19")
        for u in range(4): a(f"v_exp_f32 v{MAG[u]}, v{TT[u]}")
        for u in range(4): a(f"v_fract_f32 v{TT[u]+1}, v{TT[u]+1}")
        for u in range(4): a(f"v_cvt_pk_bf16_f32 v{CPK[u]}, v{Rc[u]+2}, -v{Rc[u]+3}")
        for u in range(4): a(f"v_cos_f32 v{PB[u]}, v{TT[u]+1}")
        for u in range(4): a(f"v_sin_f32 v{PB[u]+1}, v{TT[u]+1}")
        a("s_nop 0")
        for u in range(4):
            a(f"v_pk_mul_f32 v[{PA[u]}:{PA[u]+1}], v[{PB[u]}:{PB[u]+1}], v[{MAG[u]}:{MAG[u]+1}] op_sel:[0,0] op_sel_hi:[1,0]")
        cur, oth = PA, PB
        for e in range(4):
            for u in range(4): a(f"v_cvt_pk_bf16_f32 v{QF[e]+u}, v{cur[u]}, v{cur[u]+1}")
            sq = [csq(a, oth[u], cur[u], TT[u]) for u in range(4)]
            for u in range(4): a(sq[u][0])
            for u in range(4): a(sq[u][1])
            cur, oth = oth, cur
        for e in range(4):
            g = GF[e & 1]
            cm = [cmulconj(a, oth[u], cur[u], Rc[u] + 2, TT[u]) for u in range(4)]
            for u in range(4): a(cm[u][0])
            for u in range(4): a(cm[u][1])
            for u in range(4): a(f"v_cvt_pk_bf16_f32 v{g+u}, v{oth[u]}, v{oth[u]+1}")
            if e == 0:
                for u in range(4): a(f"v_cndmask_b32 v{g+u}, v{g+u}, v{CPK[u]}, s[32:33]")
            if e < 3:
                sq = [csq(a, oth[u], cur[u], TT[u]) for u in range(4)]
                for u in range(4): a(sq[u][0])
                a(f"v_mfma_f32_16x16x32_bf16 v[{DD[e]}:{DD[e]+3}], v[{QF[e]}:{QF[e]+3}], v[{g}:{g+3}], v[{DD[e]}:{DD[e]+3}]")
                for u in range(4): a(sq[u][1])
                cur, oth = oth, cur
            else:
                a("s_nop 1")
                a(f"v_mfma_f32_16x16x32_bf16 v[{DD[e]}:{DD[e]+3}], v[{QF[e]}:{QF[e]+3}], v[{g}:{g+3}], v[{DD[e]}:{DD[e]+3}]")
    stamp(a, 2)
    a("v_readlane_b32 s44, v10, 63")
    a(f"s_lshl_b32 s45, s24, 2")
    a(f"s_add_u32 s45, s45, {T16 + 2*1344 + 16}")
    a("v_mov_b32 v11, s45")
    a("v_mov_b32 v10, s44")
    a("s_nop 1")
    for e in range(4):
        a(f"ds_write_b128 v22, v[{DD[e]}:{DD[e]+3}] offset:{e*1024}")
    a("ds_write_b32 v11, v10")
    a("s_waitcnt lgkmcnt(0)")
    a("s_barrier")
    a("ds_read_b128 v[32:35], v23")
    a("ds_read_b128 v[36:39], v23 offset:4096")
    a("ds_read_b128 v[40:43], v23 offset:1024")
    a("ds_read_b128 v[44:47], v23 offset:5120")
    a(f"s_lshl_b32 s45, s25, 3")
    a(f"s_add_u32 s45, s45, {T16 + 2*1344 + 16}")
    a("v_mov_b32 v11, s45")
    a("ds_read_b64 v[8:9], v11")
    a("s_waitcnt lgkmcnt(0)")
    for r in range(4): a(f"v_add_f32 v{32+r}, v{32+r}, v{36+r}")
    for r in range(4): a(f"v_add_f32 v{40+r}, v{40+r}, v{44+r}")
    a("v_add_f32 v8, v8, v9")
    a("v_cvt_pk_bf16_f32 v32, v32, v33")
    a("v_cvt_pk_bf16_f32 v33, v34, v35")
    a("v_cvt_pk_bf16_f32 v40, v40, v41")
    a("v_cvt_pk_bf16_f32 v41, v42, v43")
    a("v_cvt_pk_bf16_f32 v8, v8, v8")
    a("s_sub_u32 s45, s39, 2")
    a("v_mov_b32 v11, s45")
    a("s_mov_b64 s[42:43], exec")
    a("s_mov_b64 exec, s[36:37]")
    a("ds_write_b64 v24, v[32:33]")
    a("s_mov_b64 exec, s[34:35]")
    a("ds_write_b64 v24, v[40:41] offset:256")
    a("s_mov_b64 exec, s[42:43]")
    a("ds_write_b16 v11, v8")
    a("s_waitcnt lgkmcnt(0)")
    a("s_barrier")
    stamp(a, 3)
    for t in range(16):
        a(f"ds_read_u16 v{76+t}, v{GA+t}")
        if t == 7: a("v_mov_b32 v72, 0\nv_mov_b32 v73, 0\nv_mov_b32 v74, 0\nv_mov_b32 v75, 0")
    a("s_waitcnt lgkmcnt(8)")
    for p in range(4):
        a(f"v_lshl_or_b32 v{64+p}, v{77+2*p}, 16, v{76+2*p}")
    a("global_store_dwordx4 v29, v[64:67], s[14:15] sc1")
    a("s_waitcnt lgkmcnt(0)")
    for p in range(4):
        a(f"v_lshl_or_b32 v{68+p}, v{85+2*p}, 16, v{84+2*p}")
    a("global_store_dwordx4 v30, v[68:71], s[14:15] sc1")
    a("v_cmp_gt_u32 vcc, 4, v26")
    a("s_and_saveexec_b64 s[42:43], vcc")
    a("s_cbranch_execz K1_END")
    a("global_store_dwordx4 v31, v[72:75], s[14:15] sc1")
    a("s_branch K1_END")
    a("K1_TSM:   ; LINT-RESET")
    a("s_sub_u32 s25, s2, 256")
    a("s_and_b32 s28, s25, 7")
    a("s_lshr_b32 s29, s25, 3")
    a("s_lshr_b32 s26, s29, 3")
    a("s_lshl_b32 s27, s28, 2")
    a("s_add_u32 s26, s26, s27")
    a("s_and_b32 s27, s29, 7")
    a("s_lshl_b32 s30, s28, 8")
    a("s_lshl_b32 s31, s29, 3")
    a("s_add_u32 s30, s30, s31")
    a("s_lshl_b32 s28, s26, 16")
    a("s_lshl_b32 s29, s27, 7")
    a("s_add_u32 s28, s28, s29")
    a("v_lshrrev_b32 v2, 3, v0")
    a("v_and_b32 v3, 7, v0")
    a("v_lshlrev_b32 v4, 10, v2")
    a("v_lshl_add_u32 v4, v3, 4, v4")
    a("v_add_u32 v4, s28, v4")
    a("v_add_u32 v5, 0x8000, v4")
    a("s_lshl_b32 s31, s24, 1")
    a("s_add_u32 s30, s30, s31")
    a("s_lshl_b32 s31, s30, 10")
    a("v_lshl_add_u32 v6, v1, 4, s31")
    a("s_and_b32 s33, s25, 7")
    a("s_mul_i32 s33, s33, 24")
    a("s_lshr_b32 s34, s25, 3")
    a("s_add_u32 s33, s33, s34")
    a("v_lshrrev_b32 v7, 1, v0")
    a("v_and_b32 v24, 1, v0")
    a("v_mul_u32_u24 v25, 6144, v7")
    a("v_lshl_add_u32 v25, v24, 4, v25")
    a("s_lshl_b32 s35, s33, 5")
    a("v_add_u32 v25, s35, v25")
    a("v_add_u32 v26, 786432, v25")
    a("v_add_u32 v27, 786432, v26")
    a("v_add_u32 v28, 786432, v27")
    a("v_lshlrev_b32 v29, 1, v7")
    a("s_waitcnt lgkmcnt(0)")
    wsfix(a, 14)
    a("global_load_dwordx4 v[8:11], v4, s[16:17]" + NT1)
    a("global_load_dwordx4 v[12:15], v5, s[16:17]" + NT1)
    a("global_load_dwordx4 v[16:19], v6, s[16:17]" + NT1)
    a("global_load_dwordx4 v[20:23], v6, s[16:17] offset:1024" + NT1)
    a("s_cmp_ge_u32 s25, 192")
    a("s_cbranch_scc1 K1_nomodld")
    for k in range(4):
        a(f"global_load_ushort v{48+k}, v29, s[20:21] offset:{256*k}")
    for k, vo in enumerate((25, 26, 27, 28)):
        a(f"global_load_dwordx4 v[{32+4*k}:{35+4*k}], v{vo}, s[22:23]" + NT1)
    a("K1_nomodld:")
    if OPT.get("cpf", "1") == "1":
        a("s_sub_u32 s65, s25, 192")
        a("s_cmp_ge_u32 s65, 16")
        a("s_cbranch_scc1 K1_nocpf")
        a("s_cmp_lg_u32 s24, 3")
        a("s_cbranch_scc1 K1_nocpf")
        code_prefetch(a, "k1_kernel", LASTLABEL, 6, "k1", 70, 72)
        TS = int(OPT.get("tlb", "0"))
        if TS:
            a("s_load_dwordx2 s[50:51], s[0:1], 64")
            a("s_load_dwordx2 s[52:53], s[0:1], 80")
            a("s_load_dwordx2 s[54:55], s[0:1], 112")
            a("s_load_dwordx2 s[56:57], s[0:1], 72")
            a("s_load_dwordx2 s[58:59], s[0:1], 88")
            a("s_load_dwordx2 s[60:61], s[0:1], 48")
            a(f"v_mul_u32_u24 v71, {TS}, v1")
            a("s_waitcnt lgkmcnt(0)")
            k = 80
            for (sr, size) in ((14, WS_USED), (50, 512*1376*2), (52, 512*1376*2), (54, 2048*512*2)):
                n = -(-size // (64 * TS))
                for i in range(n):
                    a(f"v_add_u32 v70, {i * 64 * TS}, v71")
                    a(f"v_cmp_gt_u32 vcc, {size}, v70")
                    a("s_and_saveexec_b64 s[62:63], vcc")
                    a(f"global_load_dword v{k}, v70, s[{sr}:{sr+1}]")
                    a("s_mov_b64 exec, s[62:63]")
                    k = 80 + (k - 80 + 1) % 40
            a("v_mov_b32 v70, 0")
            for sr in (56, 58, 60):
                a(f"global_load_dword v{k}, v70, s[{sr}:{sr+1}]"); k += 1
        a("s_waitcnt vmcnt(0)")
        a("K1_nocpf:   ; LINT-RESET")
    a("v_mul_u32_u24 v30, 160, v2")
    a("v_lshl_add_u32 v30, v3, 4, v30")
    a("s_cmp_ge_u32 s25, 192")
    a("s_cbranch_scc1 K1_w0")
    a("s_waitcnt vmcnt(10)")
    a("s_branch K1_w1")
    a("K1_w0:")
    a("s_waitcnt vmcnt(2)")
    a("K1_w1:   ; LINT-RESET (T loads have landed; S/mod loads may be outstanding)")
    stamp(a, 1)
    a("ds_write_b128 v30, v[8:11]")
    a("ds_write_b128 v30, v[12:15] offset:5120")
    a("s_cmp_ge_u32 s25, 192")
    a("s_cbranch_scc1 K1_w2")
    a("s_waitcnt vmcnt(8)")
    a("s_branch K1_w3")
    a("K1_w2:")
    a("s_waitcnt vmcnt(0)")
    a("K1_w3:   ; LINT-RESET")
    a("v_mov_b32 v31, 0x3f803f80")
    a("v_mov_b32 v52, 0\nv_mov_b32 v53, 0\nv_mov_b32 v54, 0\nv_mov_b32 v55, 0")
    for k in range(4):
        a(f"v_dot2_f32_bf16 v52, v{16+k}, v31, v52")
        a(f"v_dot2_f32_bf16 v53, v{16+k}, v{16+k}, v53")
        a(f"v_dot2_f32_bf16 v54, v{20+k}, v31, v54")
        a(f"v_dot2_f32_bf16 v55, v{20+k}, v{20+k}, v55")
    a("s_nop 1")
    for ctl in ("row_shr:1", "row_shr:2", "row_shr:4", "row_shr:8", "row_bcast:15 row_mask:0xa", "row_bcast:31 row_mask:0xc"):
        for r in range(52, 56):
            a(f"v_add_f32_dpp v{r}, v{r}, v{r} {ctl}")
        a("s_nop 0") if False else None
    a("s_nop 1")
    for k, r in enumerate(range(52, 56)):
        a(f"v_readlane_b32 s{36+k}, v{r}, 63")
    a("s_nop 1")
    a("v_cmp_eq_u32 vcc, 0, v1")
    a("v_mov_b32 v56, s38")
    a("v_mov_b32 v57, s39")
    a("v_mov_b32 v58, s36")
    a("v_mov_b32 v59, s37")
    a("v_cndmask_b32 v56, v56, v58, vcc")
    a("v_cndmask_b32 v57, v57, v59, vcc")
    a("v_mul_f32 v56, 0x3b000000, v56")
    a("v_mul_f32 v57, 0x3b000000, v57")
    a("v_fma_f32 v57, -v56, v56, v57")
    a("v_max_f32 v57, 0, v57")
    rbf(a, 56, 56)
    rbf(a, 57, 57)
    a("v_add_f32 v57, 0x3727c5ac, v57")
    rbf(a, 57, 57)
    a("v_sqrt_f32 v57, v57")
    a("s_nop 0")
    rbf(a, 57, 57)
    a("v_rcp_f32 v58, v57")
    a("s_nop 0")
    a("v_mul_f32 v59, v56, v58")
    a("v_sub_f32 v59, 0, v59")
    a("s_lshl_b32 s31, s30, 2")
    a(f"s_add_u32 s31, s31, {STAT1}")
    a("v_lshl_add_u32 v60, v1, 2, s31")
    a("v_add_u32 v61, 8192, v60")
    a("v_cmp_gt_u32 vcc, 2, v1")
    a("s_and_saveexec_b64 s[42:43], vcc")
    a("global_store_dword v60, v58, s[14:15]" + SC1)
    a("global_store_dword v61, v59, s[14:15]" + SC1)
    a("s_mov_b64 exec, s[42:43]")
    a("s_cmp_ge_u32 s25, 192")
    a("s_cbranch_scc1 K1_nomodc")
    a("s_waitcnt vmcnt(2)")
    for k in range(4):
        a(f"v_lshlrev_b32 v{48+k}, 16, v{48+k}")
    for k in range(4):
        a(f"v_mul_f32 v{52+k}, 0xbfb8aa3b, v{48+k}")
    for k in range(4):
        a(f"v_exp_f32 v{52+k}, v{52+k}")
    a("s_nop 0")
    for k in range(4):
        a(f"v_add_f32 v{52+k}, 1.0, v{52+k}")
    for k in range(4):
        a(f"v_rcp_f32 v{56+k}, v{52+k}")
    a("s_nop 0")
    for k in range(4):
        a(f"v_mul_f32 v{60+k}, v{48+k}, v{56+k}")
    for k in range(4):
        a(f"v_fma_f32 v{48+k}, -v{60+k}, v{52+k}, v{48+k}")
    for k in range(4):
        a(f"v_fma_f32 v{48+k}, v{48+k}, v{56+k}, v{60+k}")
    for k in range(4):
        rbf(a, 48 + k, 48 + k)
    for k in range(4):
        for p in range(4):
            w = 32 + 4 * k + p
            a(f"v_lshlrev_b32 v62, 16, v{w}")
            a(f"v_and_b32 v63, 0xffff0000, v{w}")
            if k == 0:
                a(f"v_mul_f32 v{64+2*p}, v62, v48")
                a(f"v_mul_f32 v{65+2*p}, v63, v48")
            else:
                a(f"v_fmac_f32 v{64+2*p}, v62, v{48+k}")
                a(f"v_fmac_f32 v{65+2*p}, v63, v{48+k}")
    a("v_lshlrev_b32 v61, 5, v0")
    a("ds_write_b128 v61, v[64:67] offset:10240")
    a("ds_write_b128 v61, v[68:71] offset:10256")
    a("K1_nomodc:")
    stamp(a, 2)
    a("s_waitcnt lgkmcnt(0)")
    a("s_barrier")
    stamp(a, 3)
    a("v_lshrrev_b32 v2, 4, v1")
    a("v_bfe_u32 v3, v1, 2, 2")
    a("v_and_b32 v4, 3, v1")
    a("v_lshl_add_u32 v5, v2, 3, v3")
    a("v_mul_u32_u24 v5, 160, v5")
    a("v_lshl_add_u32 v5, v4, 3, v5")
    a("s_lshl_b32 s31, s24, 5")
    a("v_add_u32 v5, s31, v5")
    a("ds_read_b64_tr_b16 v[8:9], v5")
    a("ds_read_b64_tr_b16 v[10:11], v5 offset:640")
    a(f"ds_read_b64_tr_b16 v[12:13], v5 offset:{32*160}")
    a(f"ds_read_b64_tr_b16 v[14:15], v5 offset:{36*160}")
    a("v_and_b32 v6, 15, v1")
    a("v_lshlrev_b32 v6, 12, v6")
    a("v_lshl_add_u32 v6, v2, 4, v6")
    a("s_lshl_b32 s31, s27, 18")
    a("s_lshl_b32 s32, s24, 16")
    a("s_add_u32 s31, s31, s32")
    a("s_lshl_b32 s32, s26, 7")
    a("s_add_u32 s31, s31, s32")
    a(f"s_add_u32 s31, s31, {XT}") if XT else None
    a("v_add_u32 v6, s31, v6")
    a("s_waitcnt lgkmcnt(2)")
    a("global_store_dwordx4 v6, v[8:11], s[14:15]" + SC1)
    a("s_waitcnt lgkmcnt(0)")
    a("global_store_dwordx4 v6, v[12:15], s[14:15] offset:64" + SC1)
    a("s_cmp_ge_u32 s25, 192")
    a("s_cbranch_scc1 K1_END")
    a("s_cmp_lg_u32 s24, 0")
    a("s_cbranch_scc1 K1_END")
    a("v_and_b32 v2, 15, v1")
    a("v_lshrrev_b32 v3, 4, v1")
    a("v_lshlrev_b32 v4, 11, v3")
    a("v_lshl_add_u32 v4, v2, 2, v4")
    for i in range(32):
        a(f"ds_read_b32 v{16+i}, v4 offset:{10240+64*i}")
        if i == 14: a("s_waitcnt lgkmcnt(7)")
    a("s_waitcnt lgkmcnt(0)")
    for st in (16, 8, 4, 2, 1):
        for i in range(st):
            a(f"v_add_f32 v{16+i}, v{16+i}, v{16+st+i}")
    a("s_nop 0")
    a("v_mov_b32 v17, v16")
    a("s_nop 1")
    a("v_permlane16_swap_b32 v16, v17")
    a("s_nop 0")
    a("v_add_f32 v16, v16, v17")
    a("s_nop 0")
    a("v_mov_b32 v17, v16")
    a("s_nop 1")
    a("v_permlane32_swap_b32 v16, v17")
    a("s_nop 0")
    a("v_add_f32 v16, v16, v17")
    rbf(a, 16, 16)
    a("s_lshl_b32 s31, s33, 6")
    a(f"s_add_u32 s31, s31, {MODF}")
    a("v_lshl_add_u32 v5, v2, 2, s31")
    a("v_cmp_gt_u32 vcc, 16, v1")
    a("s_and_saveexec_b64 s[42:43], vcc")
    a("global_store_dword v5, v16, s[14:15]" + SC1)
    a("K1_END:   ; LINT-RESET")
    stamp_store(a, 0, 14, 24)
    a("K1_EXIT:")
    a.end_kernel(name, 160, 100)


KC_CH = 33280
CS    = 4160
UB    = 66560
U_CH  = 7600
SCR   = 81792
FLG   = SCR + 16384
SIDE  = FLG + 64
SIDE_SZ = 11520
K2_LDS = SIDE + 4 * SIDE_SZ
FLAGS_OFF = 0x0638000

def conv_path(a, hb, tag):
    if hb == 0: steps = [(d, True) for d in range(24)]
    else: steps = [(d, True) for d in range(24, 32)] + [(d, False) for d in range(32, 64)]
    ACC = [32, 48]
    SET = [64, 88, 112]
    def reads(k):
        d, both = steps[k]; b = SET[k % 3]
        out = []
        for hf in (0, 1):
            out.append(f"ds_read_b128 v[{b+4*hf}:{b+4*hf+3}], v2 offset:{64*d + 32*(1-hf)}")
        tiles = (0, 1) if both else (1,)
        for t in tiles:
            for hf in (0, 1):
                r = b + 8 + 8 * t + 4 * hf
                out.append(f"ds_read_b128 v[{r}:{r+3}], v3 offset:{(31 + 32*t - d)*80 + 32*hf}")
        return out
    n = len(steps)
    for k in range(2):
        for x in reads(k): a(x)
    for k in range(n):
        d, both = steps[k]; b = SET[k % 3]
        nxt = reads(k + 2) if k + 2 < n else []
        after = len(nxt) + (len(reads(k + 1)) if k + 1 < n else 0)
        mf = []
        tiles = (0, 1) if both else (1,)
        for hf in (0, 1):
            for t in tiles:
                r = b + 8 + 8 * t + 4 * hf
                mf.append(f"v_mfma_f32_32x32x16_bf16 v[{ACC[t]}:{ACC[t]+15}], v[{b+4*hf}:{b+4*hf+3}], v[{r}:{r+3}], v[{ACC[t]}:{ACC[t]+15}]")
        after = len(reads(k + 1)) if k + 1 < n else 0
        a(f"s_waitcnt lgkmcnt({after})")
        per = -(-len(nxt) // len(mf)) if nxt else 0
        ri = 0
        for m in mf:
            a(m)
            for _ in range(per):
                if ri < len(nxt): a(nxt[ri]); ri += 1
    stamp(a, 6)
    give, keep = (ACC[1], ACC[0]) if hb == 0 else (ACC[0], ACC[1])
    a("s_nop 7")
    a("s_nop 3")
    for i in range(4):
        a(f"ds_write_b128 v4, v[{give+4*i}:{give+4*i+3}] offset:{1024*i}")
    for i in range(4):
        a(f"ds_read_b64 v[{64+2*i}:{65+2*i}], v6 offset:{16*i}")
    a("s_waitcnt lgkmcnt(0)")
    a("v_mov_b32 v72, 1")
    a("ds_write_b32 v7, v72")
    a("s_mov_b32 s63, 0x400000")
    a(f"K2_poll{tag}:")
    a("ds_read_b32 v73, v8")
    a("s_waitcnt lgkmcnt(0)")
    a("v_readfirstlane_b32 s40, v73")
    a("s_sub_u32 s63, s63, 1")
    a("s_cmp_eq_u32 s63, 0")
    a(f"s_cbranch_scc1 K2_pollx{tag}")
    a("s_cmp_eq_u32 s40, 1")
    a(f"s_cbranch_scc0 K2_poll{tag}")
    a(f"K2_pollx{tag}:")
    for i in range(4):
        a(f"ds_read_b128 v[{80+4*i}:{83+4*i}], v5 offset:{1024*i}")
    for i in range(4):
        for q in range(2):
            a(f"v_lshlrev_b32 v{96+4*i+2*q}, 16, v{64+2*i+q}")
            a(f"v_and_b32 v{97+4*i+2*q}, 0xffff0000, v{64+2*i+q}")
    a("s_waitcnt vmcnt(0)")
    for i in range(4):
        for q in range(2):
            a(f"v_lshlrev_b32 v{112+4*i+2*q}, 16, v{144+2*i+q}")
            a(f"v_and_b32 v{113+4*i+2*q}, 0xffff0000, v{144+2*i+q}")
    a("s_waitcnt lgkmcnt(0)")
    for j in range(8):
        a(f"v_pk_add_f32 v[{keep+2*j}:{keep+2*j+1}], v[{keep+2*j}:{keep+2*j+1}], v[{80+2*j}:{81+2*j}]")
    for j in range(8):
        a(f"v_pk_fma_f32 v[{keep+2*j}:{keep+2*j+1}], v[{96+2*j}:{97+2*j}], s[36:37], v[{keep+2*j}:{keep+2*j+1}] op_sel_hi:[1,0,1]")
    for j in range(8):
        a(f"v_pk_fma_f32 v[{keep+2*j}:{keep+2*j+1}], v[{keep+2*j}:{keep+2*j+1}], s[36:37], v[{112+2*j}:{113+2*j}] op_sel:[0,1,0] op_sel_hi:[1,1,1]")
    for j in range(8):
        a(f"v_cvt_pk_bf16_f32 v{64+j}, v{keep+2*j}, v{keep+2*j+1}")
    for i in range(4):
        a(f"ds_write_b64 v10, v[{64+2*i}:{65+2*i}] offset:{16*i}")
    a("s_waitcnt lgkmcnt(0)")
    a("ds_read_b128 v[72:75], v11")
    a("ds_read_b128 v[76:79], v11 offset:1280")
    a("s_waitcnt lgkmcnt(1)")
    a("global_store_dwordx4 v9, v[72:75], s[14:15]" + SC1)
    a("s_waitcnt lgkmcnt(0)")
    a("global_store_dwordx4 v12, v[76:79], s[14:15]" + SC1)
    a("s_branch K2_END")

def side_load_and_stage(a):
    for i in range(8):
        a(f"buffer_load_dwordx4 v[{32+4*i}:{35+4*i}], v10, s[44:47], s49 offen nt")
        if i < 7: a("s_add_u32 s49, s49, s48")

def k2(a):
    name = "k2_kernel"
    a.begin_kernel(name, 256, 512, K2_LDS)
    a("s_cmp_ge_u32 s2, 256")
    a("s_cbranch_scc1 K2_EXIT")
    stamp(a, 0)
    a("s_load_dwordx2 s[14:15], s[0:1], 128")
    a("s_load_dwordx2 s[12:13], s[0:1], 48")
    a("s_load_dwordx2 s[16:17], s[0:1], 64")
    a("s_load_dwordx2 s[18:19], s[0:1], 80")
    wave_id(a, 24, 1)
    a("v_and_b32 v1, 63, v0")
    a("s_cmp_ge_u32 s24, 4")
    a("s_cbranch_scc1 K2_SIDE")
    a("s_lshl_b32 s27, s2, 1")
    a("s_lshr_b32 s25, s24, 1")
    a("s_and_b32 s26, s24, 1")
    a("s_lshl_b32 s28, s27, 12")
    a(f"s_add_u32 s28, s28, {XT}") if XT else None
    a("v_lshl_add_u32 v44, v0, 4, s28")
    a("v_add_u32 v45, 4096, v44")
    a("v_lshlrev_b32 v46, 5, v0")
    a(f"v_add_u32 v46, {STAT1}, v46")
    a(f"v_add_u32 v47, 8192, v46")
    a(f"s_mul_i32 s29, s27, {KW}")
    a(f"s_add_u32 s29, s29, {KREV + 4080}")
    a("v_lshlrev_b32 v48, 4, v0")
    a("v_sub_u32 v48, s29, v48")
    a(f"v_add_u32 v49, {KW}, v48")
    a("v_and_b32 v50, 31, v1")
    a("v_lshrrev_b32 v51, 5, v1")
    a("s_lshl_b32 s30, s25, 12")
    a("s_add_u32 s30, s30, s28")
    a("s_lshl_b32 s31, s26, 11")
    a("s_add_u32 s30, s30, s31")
    a("v_lshlrev_b32 v52, 6, v50")
    a("v_lshl_add_u32 v52, v51, 3, v52")
    a("v_add_u32 v52, s30, v52")
    a("s_lshl_b32 s32, s27, 2")
    a(f"s_add_u32 s33, s32, {MODF}")
    a(f"s_add_u32 s34, s32, {MODF + 2048}")
    a(f"s_add_u32 s35, s32, {MODF + 4096}")
    a("s_lshl_b32 s31, s2, 2")
    a("s_waitcnt lgkmcnt(0)")
    wsfix(a, 14)
    a("global_load_dwordx4 v[28:31], v48, s[14:15]")
    a("global_load_dwordx4 v[32:35], v48, s[14:15] offset:16")
    a("global_load_dwordx4 v[36:39], v49, s[14:15]")
    a("global_load_dwordx4 v[40:43], v49, s[14:15] offset:16")
    a("global_load_dwordx4 v[4:7], v44, s[14:15]")
    a("global_load_dwordx4 v[8:11], v45, s[14:15]")
    a("global_load_dwordx4 v[12:15], v46, s[14:15]")
    a("global_load_dwordx4 v[16:19], v46, s[14:15] offset:16")
    a("global_load_dwordx4 v[20:23], v47, s[14:15]")
    a("global_load_dwordx4 v[24:27], v47, s[14:15] offset:16")
    for i in range(4):
        a(f"global_load_dwordx2 v[{144+2*i}:{145+2*i}], v52, s[14:15] offset:{16*i}")
    a("s_load_dwordx2 s[50:51], s[14:15], s33")
    a("s_load_dwordx2 s[52:53], s[14:15], s34")
    a("s_load_dwordx2 s[54:55], s[14:15], s35")
    a("s_load_dword s56, s[12:13], s31")
    a("v_mov_b32 v56, 0\nv_mov_b32 v57, 0\nv_mov_b32 v58, 0\nv_mov_b32 v59, 0")
    a("v_mul_u32_u24 v53, 171, v0")
    a("v_lshrrev_b32 v53, 9, v53")
    a("v_mul_u32_u24 v54, 3, v53")
    a("v_sub_u32 v54, v0, v54")
    a(f"v_mul_u32_u24 v53, {CS}, v53")
    a("v_lshl_add_u32 v53, v54, 4, v53")
    a("v_cmp_gt_u32 vcc, 48, v0")
    a("s_and_saveexec_b64 s[42:43], vcc")
    a("ds_write_b128 v53, v[56:59]")
    a("s_mov_b64 exec, s[42:43]")
    a("v_lshlrev_b32 v53, 4, v0")
    a(f"v_add_u32 v53, {UB}, v53")
    a("v_cmp_gt_u32 vcc, 155, v0")
    a("s_and_saveexec_b64 s[42:43], vcc")
    a(f"ds_write_b128 v53, v[56:59]")
    a(f"ds_write_b128 v53, v[56:59] offset:{U_CH}")
    a("s_mov_b64 exec, s[42:43]")
    a("v_lshlrev_b32 v53, 2, v0")
    a("v_cmp_gt_u32 vcc, 4, v0")
    a("s_and_saveexec_b64 s[42:43], vcc")
    a(f"v_add_u32 v53, {FLG}, v53")
    a("ds_write_b32 v53, v56")
    a("s_mov_b64 exec, s[42:43]")
    a("v_and_b32 v53, 7, v50")
    a("v_lshrrev_b32 v54, 3, v50")
    a(f"v_mul_u32_u24 v2, {CS}, v53")
    a("v_sub_u32 v54, v54, v51")
    a("v_add_u32 v54, 1, v54")
    a("v_lshl_add_u32 v2, v54, 4, v2")
    a(f"s_mul_i32 s38, s25, {KC_CH}")
    a("v_add_u32 v2, s38, v2")
    a("v_mul_u32_u24 v3, 80, v50")
    a("v_lshl_add_u32 v3, v51, 4, v3")
    a(f"s_mul_i32 s38, s25, {U_CH}")
    a(f"s_add_u32 s38, s38, {UB}")
    a("v_add_u32 v3, s38, v3")
    a("v_lshlrev_b32 v55, 4, v0")
    a("v_add_u32 v55, 48, v55")
    for c in range(2):
        W = 28 + 8 * c
        a(f"s_waitcnt vmcnt({12 - 2*c})")
        V = 60
        for j in range(7): a(f"v_alignbit_b32 v{V+j}, v{W+j+1}, v{W+j}, 16")
        for j in range(1, 7): a(f"v_alignbit_b32 v{68+j-1}, v{W+j+1}, v{W+j}, 16")
        for j in range(1, 7): a(f"v_mov_b32 v{76+j-1}, v{W+j}")
        off = c * KC_CH
        a(f"ds_write_b128 v55, v[{W}:{W+3}] offset:{off + 7*CS}")
        a(f"ds_write_b128 v55, v[{W+2}:{W+5}] offset:{off + 3*CS}")
        a(f"ds_write_b128 v55, v[{V}:{V+3}] offset:{off + 6*CS}")
        a(f"ds_write_b128 v55, v[{V+2}:{V+5}] offset:{off + 2*CS}")
        a(f"ds_write_b128 v55, v[68:71] offset:{off + 4*CS}")
        a(f"ds_write_b128 v55, v[70:73] offset:{off + 0*CS}")
        a(f"ds_write_b128 v55, v[76:79] offset:{off + 5*CS}")
        a(f"ds_write_b128 v55, v[78:81] offset:{off + 1*CS}")
    a("s_waitcnt vmcnt(4) lgkmcnt(0)")
    a("v_add_f32 v60, 1.0, s52")
    a("v_add_f32 v61, 1.0, s53")
    rbf(a, 60, 60); rbf(a, 61, 61)
    a("s_nop 0")
    a("v_readfirstlane_b32 s58, v60")
    a("v_readfirstlane_b32 s60, v61")
    a("s_mov_b32 s59, s50")
    a("s_mov_b32 s61, s51")
    a("s_lshl_b32 s38, s25, 4")
    a("s_lshr_b32 s36, s56, s38")
    a("s_lshl_b32 s36, s36, 16")
    a("s_cmp_eq_u32 s25, 0")
    a("s_cselect_b32 s37, s54, s55")
    a("v_lshrrev_b32 v62, 2, v0")
    a("v_mul_u32_u24 v62, 80, v62")
    a("v_and_b32 v63, 3, v0")
    a("v_lshl_add_u32 v62, v63, 4, v62")
    a(f"v_add_u32 v62, {UB + 31*80}, v62")
    for c in range(2):
        X = 4 + 4 * c
        for q in range(4):
            a(f"v_lshlrev_b32 v{64+2*q}, 16, v{X+q}")
            a(f"v_and_b32 v{65+2*q}, 0xffff0000, v{X+q}")
        for q in range(4):
            a(f"v_pk_fma_f32 v[{64+2*q}:{65+2*q}], v[{64+2*q}:{65+2*q}], v[{12+2*q}:{13+2*q}], v[{20+2*q}:{21+2*q}]")
        for q in range(4):
            a(f"v_pk_fma_f32 v[{64+2*q}:{65+2*q}], v[{64+2*q}:{65+2*q}], s[{58+2*c}:{59+2*c}], s[{58+2*c}:{59+2*c}] op_sel:[0,0,1] op_sel_hi:[1,0,1]")
        for q in range(4):
            a(f"v_cvt_pk_bf16_f32 v{72+4*c+q}, v{64+2*q}, v{65+2*q}")
        a(f"ds_write_b128 v62, v[{72+4*c}:{75+4*c}] offset:{c*U_CH}")
    a("s_lshl_b32 s38, s24, 12")
    a(f"s_add_u32 s38, s38, {SCR}")
    a("v_lshl_add_u32 v4, v1, 4, s38")
    a("s_xor_b32 s39, s24, 1")
    a("s_lshl_b32 s38, s39, 12")
    a(f"s_add_u32 s38, s38, {SCR}")
    a("v_lshl_add_u32 v5, v1, 4, s38")
    a("s_lshl_b32 s38, s24, 2")
    a(f"s_add_u32 s38, s38, {FLG}")
    a("v_mov_b32 v7, s38")
    a("s_lshl_b32 s38, s39, 2")
    a(f"s_add_u32 s38, s38, {FLG}")
    a("v_mov_b32 v8, s38")
    a("v_mul_u32_u24 v6, 80, v50")
    a("v_lshl_add_u32 v6, v51, 3, v6")
    a(f"s_mul_i32 s38, s25, {U_CH}")
    a(f"s_mul_i32 s39, s26, {32*80}")
    a("s_add_u32 s38, s38, s39")
    a(f"s_add_u32 s38, s38, {UB + 31*80}")
    a("v_add_u32 v6, s38, v6")
    a("s_add_u32 s38, s27, s25")
    a("s_lshl_b32 s38, s38, 7")
    a("s_lshl_b32 s39, s26, 20")
    a("s_add_u32 s38, s38, s39")
    a(f"s_add_u32 s38, s38, {X2T}")
    a("v_lshrrev_b32 v9, 3, v1")
    a("v_lshlrev_b32 v9, 16, v9")
    a("v_and_b32 v63, 7, v1")
    a("v_lshl_add_u32 v9, v63, 4, v9")
    a("v_add_u32 v9, s38, v9")
    a("v_add_u32 v12, 0x80000, v9")
    a(f"s_mul_i32 s38, s25, {KC_CH}")
    a("s_mul_i32 s39, s26, 2560")
    a("s_add_u32 s38, s38, s39")
    a("v_mul_u32_u24 v10, 80, v50")
    a("v_lshl_add_u32 v10, v51, 3, v10")
    a("v_add_u32 v10, s38, v10")
    a("v_lshrrev_b32 v11, 2, v1")
    a("v_mul_u32_u24 v11, 80, v11")
    a("v_and_b32 v63, 3, v1")
    a("v_lshl_add_u32 v11, v63, 4, v11")
    a("v_add_u32 v11, s38, v11")
    for r in range(32, 64): a(f"v_mov_b32 v{r}, 0")
    stamp(a, 1)
    a("s_waitcnt lgkmcnt(0)")
    a("s_barrier")
    stamp(a, 2)
    a("s_cmp_eq_u32 s26, 0")
    a("s_cbranch_scc0 K2_B")
    conv_path(a, 0, "A")
    a("K2_B:   ; LINT-RESET")
    conv_path(a, 1, "B")
    a("K2_SIDE:   ; LINT-RESET")
    a("s_sub_u32 s25, s24, 4")
    a("s_lshl_b32 s26, s25, 8")
    a("s_add_u32 s26, s26, s2")
    a(f"s_mul_i32 s27, s25, {SIDE_SZ}")
    a(f"s_add_u32 s27, s27, {SIDE}")
    a("s_cmp_gt_u32 s26, 348")
    a("s_cbranch_scc1 K2_SIDE_IDLE")
    a("s_cmp_eq_u32 s26, 348")
    a("s_cbranch_scc1 K2_TAB")
    a("v_lshrrev_b32 v2, 2, v1")
    a("v_and_b32 v3, 3, v1")
    a("v_lshrrev_b32 v4, 4, v1")
    a("v_bfe_u32 v5, v1, 2, 2")
    a("v_mul_u32_u24 v11, 80, v2")
    a("v_lshl_add_u32 v11, v3, 4, v11")
    a("v_add_u32 v11, s27, v11")
    a("v_lshl_add_u32 v12, v4, 2, v5")
    a("v_mul_u32_u24 v12, 80, v12")
    a("v_lshl_add_u32 v12, v3, 3, v12")
    a("v_add_u32 v12, s27, v12")
    a("s_cmp_ge_u32 s26, 172")
    a("s_cbranch_scc1 K2_W2")
    a("s_mul_i32 s28, s26, 1525")
    a("s_lshr_b32 s28, s28, 16")
    a("s_mul_i32 s29, s28, 43")
    a("s_sub_u32 s29, s26, s29")
    a("v_mul_u32_u24 v10, 2752, v2")
    a("v_lshl_add_u32 v10, v3, 4, v10")
    a(f"s_mul_i32 s49, s28, {128*2752}")
    a("s_lshl_b32 s30, s29, 6")
    a("s_add_u32 s49, s49, s30")
    a(f"s_mov_b32 s48, {16*2752}")
    a("s_lshl_b32 s31, s28, 9")
    a("v_lshl_add_u32 v13, v1, 2, s31")
    a(f"v_add_u32 v13, {MODF + 3*2048}, v13")
    a("v_add_u32 v14, 2048, v13")
    a("s_waitcnt lgkmcnt(0)")
    wsfix(a, 14)
    a.srd(44, 16, 512 * 1376 * 2)
    a("global_load_dword v20, v13, s[14:15]")
    a("global_load_dword v21, v13, s[14:15] offset:256")
    a("global_load_dword v22, v14, s[14:15]")
    a("global_load_dword v23, v14, s[14:15] offset:256")
    side_load_and_stage(a)
    a("s_barrier")
    a("s_waitcnt vmcnt(8)")
    a("v_add_f32 v22, 1.0, v22")
    a("v_add_f32 v23, 1.0, v23")
    rbf(a, 22, 22); rbf(a, 23, 23)
    a("v_lshl_add_u32 v15, v1, 2, s27")
    a("v_lshl_add_u32 v16, v1, 1, s27")
    a("ds_write_b32 v15, v22 offset:10240")
    a("ds_write_b32 v15, v23 offset:10496")
    a("ds_write_b16_d16_hi v16, v20 offset:10752")
    a("ds_write_b16_d16_hi v16, v21 offset:10880")
    for i in range(8):
        a(f"s_waitcnt vmcnt({7-i})")
        a(f"ds_write_b128 v11, v[{32+4*i}:{35+4*i}] offset:{16*80*i}")
    a("v_and_b32 v17, 15, v1")
    a("v_cmp_eq_u32 s[50:51], 0, v17")
    a("v_cmp_eq_u32 s[52:53], 1, v17")
    a("v_mov_b32 v18, 0")
    a("v_mov_b32 v19, 0x3f803f80")
    a("v_cndmask_b32 v18, v18, v19, s[50:51]")
    a("v_mov_b32 v19, 0")
    a("v_cndmask_b32 v19, v19, -1, s[52:53]")
    a("v_lshl_add_u32 v24, v4, 4, s27")
    a("v_lshl_add_u32 v25, v4, 3, s27")
    for r in range(96, 112): a(f"v_mov_b32 v{r}, 0")
    a("s_lshl_b32 s30, s29, 11")
    a(f"s_mul_i32 s31, s28, {4*87*1024}")
    a("s_add_u32 s30, s30, s31")
    a(f"s_add_u32 s30, s30, {W1F}")
    a("v_lshl_add_u32 v26, v1, 4, s30")
    a("s_waitcnt lgkmcnt(0)")
    for ks in range(4):
        a(f"ds_read_b128 v[32:35], v24 offset:{10240 + 128*ks}")
        a(f"ds_read_b128 v[36:39], v24 offset:{10240 + 128*ks + 64}")
        a(f"ds_read_b64 v[40:41], v25 offset:{10752 + 64*ks}")
        a(f"ds_read_b64 v[42:43], v25 offset:{10752 + 64*ks + 32}")
        for nt in range(2):
            for hf in range(2):
                a(f"ds_read_b64_tr_b16 v[{44+4*nt+2*hf}:{45+4*nt+2*hf}], v12 offset:{(32*ks+16*hf)*80 + 32*nt}")
        a("s_waitcnt lgkmcnt(4)")
        for q in range(4): a(f"v_and_or_b32 v{40+q}, v{40+q}, v19, v18")
        a("s_waitcnt lgkmcnt(0)")
        for nt in range(2):
            R = 44 + 4 * nt
            for q in range(4):
                a(f"v_lshlrev_b32 v{52+2*q}, 16, v{R+q}")
                a(f"v_and_b32 v{53+2*q}, 0xffff0000, v{R+q}")
            a(f"v_mfma_f32_16x16x32_bf16 v[{96+4*nt}:{99+4*nt}], v[{R}:{R+3}], v[40:43], v[{96+4*nt}:{99+4*nt}]")
            for q in range(4):
                a(f"v_pk_mul_f32 v[{52+2*q}:{53+2*q}], v[{52+2*q}:{53+2*q}], v[{32+2*q}:{33+2*q}]")
            S = 60 + 4 * nt
            for q in range(4):
                a(f"v_cvt_pk_bf16_f32 v{S+q}, v{52+2*q}, v{53+2*q}")
            a(f"global_store_dwordx4 v26, v[{S}:{S+3}], s[14:15] offset:{1024*nt}" + SC1)
            if nt == 1: a(f"v_add_u32 v26, {87*1024}, v26")
            a("s_nop 0")
            a(f"v_mfma_f32_16x16x32_bf16 v[{104+4*nt}:{107+4*nt}], v[{S}:{S+3}], v[40:43], v[{104+4*nt}:{107+4*nt}]")
    a(f"s_mul_i32 s30, s28, {3*5504}")
    a("s_lshl_b32 s31, s29, 7")
    a("s_add_u32 s30, s30, s31")
    a(f"s_add_u32 s30, s30, {SVP}")
    a("v_lshl_add_u32 v28, v4, 4, s30")
    a("v_add_u32 v29, 5504, v28")
    a("v_add_u32 v30, 5504, v29")
    a("s_nop 7")
    a("s_mov_b64 s[42:43], exec")
    a("s_mov_b64 exec, s[50:51]")
    for nt in range(2):
        a(f"global_store_dwordx4 v28, v[{104+4*nt}:{107+4*nt}], s[14:15] offset:{64*nt}" + SC1)
        a(f"global_store_dwordx4 v30, v[{96+4*nt}:{99+4*nt}], s[14:15] offset:{64*nt}" + SC1)
    a("s_mov_b64 exec, s[52:53]")
    for nt in range(2):
        a(f"global_store_dwordx4 v29, v[{96+4*nt}:{99+4*nt}], s[14:15] offset:{64*nt}" + SC1)
    a("s_mov_b64 exec, s[42:43]")
    a("s_branch K2_END")
    a("K2_W2:   ; LINT-RESET")
    a("s_sub_u32 s26, s26, 172")
    a("s_and_b32 s29, s26, 15")
    a("s_lshr_b32 s28, s26, 4")
    a("v_lshlrev_b32 v10, 10, v2")
    a("v_lshl_add_u32 v10, v3, 4, v10")
    a("s_lshl_b32 s30, s29, 6")
    a("s_waitcnt lgkmcnt(0)")
    wsfix(a, 14)
    a.srd(44, 18, 1376 * 512 * 2)
    for ks in range(4):
        a("s_lshl_b32 s31, s28, 2")
        a(f"s_add_u32 s31, s31, {ks}")
        a("s_mul_i32 s32, s31, 13")
        a("s_lshr_b32 s32, s32, 6")
        a("s_mul_i32 s33, s32, 5")
        a("s_sub_u32 s33, s31, s33")
        a("s_mul_i32 s32, s32, 11")
        a("s_min_u32 s32, s32, 76")
        a("s_lshl_b32 s33, s33, 1")
        a("s_add_u32 s32, s32, s33")
        a("s_add_u32 s33, s32, 1")
        a("s_sub_u32 s34, s31, 40")
        a("s_mul_i32 s34, s34, 22")
        a("s_add_u32 s35, s34, 21")
        a("s_add_u32 s34, s34, 10")
        a("s_cmp_lt_u32 s31, 40")
        a("s_cselect_b32 s32, s32, s34")
        a("s_cselect_b32 s33, s33, s35")
        for hf, sr in ((0, 32), (1, 33)):
            a(f"s_lshl_b32 s49, s{sr}, 14")
            a("s_add_u32 s49, s49, s30")
            i = 2 * ks + hf
            a(f"buffer_load_dwordx4 v[{32+4*i}:{35+4*i}], v10, s[44:47], s49 offen nt")
    a("s_barrier")
    for i in range(8):
        a(f"s_waitcnt vmcnt({7-i})")
        a(f"ds_write_b128 v11, v[{32+4*i}:{35+4*i}] offset:{16*80*i}")
    a("s_lshr_b32 s30, s29, 1")
    a("s_mul_i32 s30, s30, 43")
    a("s_lshl_b32 s31, s28, 2")
    a("s_add_u32 s30, s30, s31")
    a("s_lshl_b32 s30, s30, 12")
    a("s_and_b32 s31, s29, 1")
    a("s_lshl_b32 s31, s31, 11")
    a("s_add_u32 s30, s30, s31")
    a(f"s_add_u32 s30, s30, {W2F}")
    a("v_lshl_add_u32 v26, v1, 4, s30")
    a("s_waitcnt lgkmcnt(0)")
    for ks in range(4):
        if ks == 3:
            a("s_cmp_eq_u32 s28, 10")
            a("s_cbranch_scc1 K2_END")
        for nt in range(2):
            for hf in range(2):
                a(f"ds_read_b64_tr_b16 v[{44+4*nt+2*hf}:{45+4*nt+2*hf}], v12 offset:{(32*ks+16*hf)*80 + 32*nt}")
        a("s_waitcnt lgkmcnt(2)")
        a(f"global_store_dwordx4 v26, v[44:47], s[14:15]" + SC1)
        a("s_waitcnt lgkmcnt(0)")
        a(f"global_store_dwordx4 v26, v[48:51], s[14:15] offset:1024" + SC1)
        a("v_add_u32 v26, 4096, v26")
    a("s_branch K2_END")
    a("K2_TAB:   ; LINT-RESET")
    a("v_lshlrev_b32 v2, 5, v1")
    a(f"v_add_u32 v2, {MODF + 3*2048}, v2")
    a("v_add_u32 v3, 2048, v2")
    a("s_waitcnt lgkmcnt(0)")
    wsfix(a, 14)
    a("global_load_dwordx4 v[32:35], v2, s[14:15]")
    a("global_load_dwordx4 v[36:39], v2, s[14:15] offset:16")
    a("global_load_dwordx4 v[40:43], v3, s[14:15]")
    a("global_load_dwordx4 v[44:47], v3, s[14:15] offset:16")
    a("s_barrier")
    a("s_waitcnt vmcnt(0)")
    for j in range(8): a(f"v_add_f32 v{40+j}, 1.0, v{40+j}")
    for j in range(8): rbf(a, 40 + j, 40 + j)
    for j in range(8): a(f"v_mul_f32 v{48+j}, v{40+j}, v{40+j}")
    for j in range(8): a(f"v_mul_f32 v{56+j}, v{40+j}, v{32+j}")
    for k, base in enumerate((40, 48, 56, 32)):
        a(f"v_add_f32 v{100+k}, v{base}, v{base+1}")
        for j in range(2, 8): a(f"v_add_f32 v{100+k}, v{100+k}, v{base+j}")
    a("v_mul_f32 v104, v32, v32")
    for j in range(1, 8): a(f"v_fmac_f32 v104, v{32+j}, v{32+j}")
    a("v_lshl_add_u32 v4, v1, 4, s27")
    a("v_mov_b32 v64, 0x3f803f80\nv_mov_b32 v65, 0x3f803f80\nv_mov_b32 v66, 0x3f803f80\nv_mov_b32 v67, 0x3f803f80")
    a("ds_write_b128 v4, v[64:67]")
    for q in range(4): a(f"v_cvt_pk_bf16_f32 v{68+q}, v{40+2*q}, v{41+2*q}")
    a("ds_write_b128 v4, v[68:71] offset:1024")
    for (src, row) in ((48, 2), (56, 4)):
        for q in range(4): a(f"v_cvt_pk_bf16_f32 v{72+q}, v{src+2*q}, v{src+2*q+1}")
        a(f"ds_write_b128 v4, v[72:75] offset:{1024*row}")
        for q in range(4):
            a(f"v_lshlrev_b32 v{80+2*q}, 16, v{72+q}")
            a(f"v_and_b32 v{81+2*q}, 0xffff0000, v{72+q}")
        for j in range(8): a(f"v_sub_f32 v{80+j}, v{src+j}, v{80+j}")
        for q in range(4): a(f"v_cvt_pk_bf16_f32 v{76+q}, v{80+2*q}, v{81+2*q}")
        a(f"ds_write_b128 v4, v[76:79] offset:{1024*(row+1)}")
    a("s_nop 1")
    for ctl in ("row_shr:1", "row_shr:2", "row_shr:4", "row_shr:8", "row_bcast:15 row_mask:0xa", "row_bcast:31 row_mask:0xc"):
        for r in range(100, 105):
            a(f"v_add_f32_dpp v{r}, v{r}, v{r} {ctl}")
    a(f"v_mov_b32 v5, {SCAL}")
    a("s_mov_b64 s[42:43], exec")
    a("s_mov_b64 exec, 0x8000000000000000") if False else None
    a("v_cmp_eq_u32 vcc, 63, v1")
    a("s_and_saveexec_b64 s[42:43], vcc")
    a("global_store_dwordx4 v5, v[100:103], s[14:15]" + SC1)
    a("global_store_dword v5, v104, s[14:15] offset:16" + SC1)
    a("s_mov_b64 exec, s[42:43]")
    a("v_and_b32 v6, 15, v1")
    a("v_lshrrev_b32 v7, 4, v1")
    a("v_min_u32 v8, 5, v6")
    a("v_lshlrev_b32 v8, 10, v8")
    a("v_lshl_add_u32 v8, v7, 3, v8")
    a("v_add_u32 v8, s27, v8")
    a("v_cmp_gt_u32 vcc, 6, v6")
    a("v_mov_b32 v9, 0")
    a("s_nop 0")
    a("v_cndmask_b32 v9, v9, -1, vcc")
    a(f"s_mov_b32 s30, {W1F + 86*1024}")
    a("v_lshl_add_u32 v10, v1, 4, s30")
    a("s_waitcnt lgkmcnt(0)")
    for ks in range(16):
        R = 16 + 4 * (ks & 1)
        a(f"ds_read_b64 v[{R}:{R+1}], v8 offset:{64*ks}")
        a(f"ds_read_b64 v[{R+2}:{R+3}], v8 offset:{64*ks+32}")
        a("s_waitcnt lgkmcnt(0)")
        for q in range(4): a(f"v_and_b32 v{R+q}, v{R+q}, v9")
        a(f"global_store_dwordx4 v10, v[{R}:{R+3}], s[14:15]" + SC1)
        a(f"v_add_u32 v10, {87*1024}, v10")
    a("s_branch K2_END")
    a("K2_SIDE_IDLE:   ; LINT-RESET")
    a("s_cmp_eq_u32 s26, 349")
    a("s_cbranch_scc0 K2_idle2")
    a("s_waitcnt lgkmcnt(0)")
    wsfix(a, 14)
    a("v_mov_b32 v4, 0\nv_mov_b32 v5, 0\nv_mov_b32 v6, 0\nv_mov_b32 v7, 0")
    a("v_lshlrev_b32 v2, 4, v1")
    a(f"v_add_u32 v2, {FLAGS_OFF}, v2")
    for q in range(4):
        a(f"global_store_dwordx4 v2, v[4:7], s[14:15] offset:{1024*q} sc1")
    a("K2_idle2:")
    a("s_barrier")
    a("K2_END:   ; LINT-RESET")
    stamp_store(a, 1, 14, 24)
    a("K2_EXIT:")
    a.end_kernel(name, 160, 100)


KG   = SIDE + 4 * SIDE_SZ
KG_PAR = KG
KG_T16 = KG + 4096
KG_REV = KG + 4096 + 2816
LF   = KG_REV + 2 * 4160
K12_LDS = LF + 64
KG_PART = SCR
GBAR = 0x0639000
WCNT = GBAR + 10752

_sync_id = [0]
def wsync(a, addr, n, vt, st, add=True):
    _sync_id[0] += 1
    L = f"WS_{_sync_id[0]}"
    a("s_waitcnt lgkmcnt(0)")
    if isinstance(addr, str): a(f"v_mov_b32 v{vt}, {addr}")
    else: a(f"v_mov_b32 v{vt}, {addr}")
    if add:
        a(f"v_mov_b32 v{vt+1}, 1")
        a("s_mov_b64 exec, 1")
        a(f"ds_add_u32 v{vt}, v{vt+1}")
        a("s_mov_b64 exec, -1")
    a("s_mov_b32 s63, 0x400000")
    a(f"{L}:")
    a(f"ds_read_b32 v{vt+1}, v{vt}")
    a("s_waitcnt lgkmcnt(0)")
    a(f"v_readfirstlane_b32 s{st}, v{vt+1}")
    a("s_sub_u32 s63, s63, 1")
    a("s_cmp_eq_u32 s63, 0")
    a(f"s_cbranch_scc1 {L}_x")
    a(f"s_cmp_ge_u32 s{st}, {n}")
    a(f"s_cbranch_scc0 {L}")
    a(f"{L}_x:")

def k12(a):
    name = "k12_kernel"
    a.begin_kernel(name, 256, 512, K12_LDS)
    a("s_cmp_ge_u32 s2, 256")
    a("s_cbranch_scc1 K2_EXIT")
    stamp(a, 0)
    a("s_load_dwordx8 s[4:11], s[0:1], 8")
    a("s_load_dwordx4 s[44:47], s[0:1], 40")
    a("s_load_dwordx2 s[14:15], s[0:1], 128")
    a("s_load_dwordx2 s[16:17], s[0:1], 0")
    a("s_load_dwordx2 s[18:19], s[0:1], 120")
    a("s_load_dwordx4 s[20:23], s[0:1], 96")
    a("s_load_dwordx2 s[48:49], s[0:1], 64")
    a("s_load_dwordx2 s[12:13], s[0:1], 80")
    wave_id(a, 24, 1)
    a("v_and_b32 v1, 63, v0")
    a("v_lshlrev_b32 v2, 2, v0")
    a(f"v_add_u32 v2, {LF}, v2")
    a("v_mov_b32 v3, 0")
    a("v_cmp_gt_u32 vcc, 16, v0")
    a("s_and_saveexec_b64 s[42:43], vcc")
    a("ds_write_b32 v2, v3")
    a("s_mov_b64 exec, s[42:43]")
    a("s_cmp_ge_u32 s24, 4")
    a("s_cbranch_scc1 K12_SIDE0")
    a("s_lshr_b32 s25, s24, 1")
    a("s_and_b32 s26, s24, 1")
    a("s_lshl_b32 s62, s2, 1")
    a("s_add_u32 s27, s62, s25")
    a("s_lshl_b32 s28, s27, 8")
    a("s_lshl_b32 s29, s26, 7")
    a("s_add_u32 s28, s28, s29")
    a("v_lshl_add_u32 v2, v1, 1, s28")
    a("s_lshl_b32 s30, s2, 2")
    a("s_waitcnt lgkmcnt(0)")
    wsfix(a, 14)
    a("global_load_ushort v4, v2, s[4:5] nt")
    a("global_load_ushort v5, v2, s[6:7] nt")
    a("global_load_ushort v6, v2, s[8:9] nt")
    a("global_load_ushort v7, v2, s[10:11] nt")
    a("s_load_dword s29, s[44:45], s30")
    a("s_load_dword s56, s[46:47], s30")
    a("s_branch K12_CONV0")
    a("K12_SIDE0:   ; LINT-RESET")
    a("s_setprio 3")
    a("s_sub_u32 s25, s24, 4")
    a("s_and_b32 s28, s2, 7")
    a("s_lshr_b32 s29, s2, 3")
    a("s_lshr_b32 s26, s29, 3")
    a("s_lshl_b32 s27, s28, 2")
    a("s_add_u32 s26, s26, s27")
    a("s_and_b32 s27, s29, 7")
    a("s_lshl_b32 s30, s28, 8")
    a("s_lshl_b32 s31, s29, 3")
    a("s_add_u32 s30, s30, s31")
    a("s_lshl_b32 s31, s25, 1")
    a("s_add_u32 s30, s30, s31")
    a(f"s_mul_i32 s57, s25, {SIDE_SZ}")
    a(f"s_add_u32 s57, s57, {SIDE}")
    a("v_subrev_u32 v30, 256, v0")
    a("s_lshl_b32 s28, s26, 16")
    a("s_lshl_b32 s29, s27, 7")
    a("s_add_u32 s28, s28, s29")
    a("v_lshrrev_b32 v2, 3, v30")
    a("v_and_b32 v3, 7, v30")
    a("v_lshlrev_b32 v4, 10, v2")
    a("v_lshl_add_u32 v4, v3, 4, v4")
    a("v_add_u32 v4, s28, v4")
    a("v_add_u32 v5, 0x8000, v4")
    a("s_lshl_b32 s31, s30, 10")
    a("v_lshl_add_u32 v6, v1, 4, s31")
    a("s_and_b32 s33, s2, 7")
    a("s_mul_i32 s33, s33, 6")
    a("s_lshr_b32 s34, s2, 5")
    a("s_add_u32 s33, s33, s34")
    a("s_bfe_u32 s34, s2, 0x20003")
    a("s_lshl_b32 s35, s34, 7")
    a("v_add_u32 v7, s35, v2")
    a("v_mul_u32_u24 v25, 6144, v7")
    a("v_lshl_add_u32 v25, v3, 4, v25")
    a("s_lshl_b32 s35, s33, 7")
    a("v_add_u32 v25, s35, v25")
    a(f"v_add_u32 v26, {32*6144}, v25")
    a(f"v_add_u32 v27, {32*6144}, v26")
    a(f"v_add_u32 v28, {32*6144}, v27")
    a("v_lshlrev_b32 v29, 1, v7")
    a("s_waitcnt lgkmcnt(0)")
    wsfix(a, 14)
    NTX = " nt" if OPT.get("ntx", "0") == "1" else ""
    NTS = " nt" if OPT.get("nts", "0") == "1" else ""
    NTW = " nt" if OPT.get("ntw", "1") == "1" else ""
    a("global_load_dwordx4 v[8:11], v4, s[16:17]" + NTX)
    a("global_load_dwordx4 v[12:15], v5, s[16:17]" + NTX)
    a("global_load_dwordx4 v[16:19], v6, s[16:17]" + NTS)
    a("global_load_dwordx4 v[20:23], v6, s[16:17] offset:1024" + NTS)
    a("s_cmp_ge_u32 s2, 192")
    a("s_cbranch_scc1 K1_nomodld")
    for k in range(4): a(f"global_load_ushort v{48+k}, v29, s[20:21] offset:{64*k}")
    for k, vo in enumerate((25, 26, 27, 28)):
        a(f"global_load_dwordx4 v[{32+4*k}:{35+4*k}], v{vo}, s[22:23]" + NTW)
    a("K1_nomodld:")
    if OPT.get("cpf", "1") == "1":
        a("s_sub_u32 s65, s2, 192")
        a("s_cmp_ge_u32 s65, 16")
        a("s_cbranch_scc1 K12_nocpf")
        a("s_cmp_lg_u32 s24, 7")
        a("s_cbranch_scc1 K12_nocpf")
        code_prefetch(a, "k12_kernel", LASTLABEL, 6, "k1", 199, 200)
        a("K12_nocpf:")
    a("s_branch K2_SIDE")
    a("K12_CONV0:   ; LINT-RESET")
    a("s_barrier")
    a("s_cmp_eq_u32 s2, 255")
    a("s_cselect_b32 s64, 1, 0")
    a("s_cmp_eq_u32 s24, 0")
    a("s_cselect_b32 s64, s64, 0")
    a("s_cmp_eq_u32 s64, 1")
    a("s_cbranch_scc0 K12_noinit")
    a("v_mov_b32 v64, 0\nv_mov_b32 v65, 0\nv_mov_b32 v66, 0\nv_mov_b32 v67, 0")
    a("v_lshlrev_b32 v68, 4, v1")
    a(f"v_add_u32 v68, {FLAGS_OFF}, v68")
    for q in range(16):
        a(f"global_store_dwordx4 v68, v[64:67], s[14:15] sc1")
        if q < 15: a("v_add_u32 v68, 1024, v68")
    a("K12_noinit:   ; LINT-RESET")
    a("v_mov_b32 v56, 0\nv_mov_b32 v57, 0\nv_mov_b32 v58, 0\nv_mov_b32 v59, 0")
    a("v_mul_u32_u24 v53, 171, v0")
    a("v_lshrrev_b32 v53, 9, v53")
    a("v_mul_u32_u24 v54, 3, v53")
    a("v_sub_u32 v54, v0, v54")
    a(f"v_mul_u32_u24 v53, {CS}, v53")
    a("v_lshl_add_u32 v53, v54, 4, v53")
    a("v_cmp_gt_u32 vcc, 48, v0")
    a("s_and_saveexec_b64 s[42:43], vcc")
    a("ds_write_b128 v53, v[56:59]")
    a("s_mov_b64 exec, s[42:43]")
    a("v_lshlrev_b32 v53, 4, v0")
    a(f"v_add_u32 v53, {UB}, v53")
    a("v_cmp_gt_u32 vcc, 155, v0")
    a("s_and_saveexec_b64 s[42:43], vcc")
    a(f"ds_write_b128 v53, v[56:59]")
    a(f"ds_write_b128 v53, v[56:59] offset:{U_CH}")
    a("s_mov_b64 exec, s[42:43]")
    a("v_and_b32 v16, 15, v1")
    a("v_cmp_eq_u32 s[32:33], 15, v16")
    a("v_lshrrev_b32 v18, 4, v1")
    a("v_add_u32 v19, 1, v16")
    a("v_cvt_f32_u32 v19, v19")
    a("s_lshl_b32 s31, s24, 10")
    a(f"s_add_u32 s31, s31, {KG_PAR}")
    a("v_lshl_add_u32 v17, v18, 6, s31")
    a("v_lshl_add_u32 v20, v1, 4, s31")
    for r in range(112, 128): a(f"v_mov_b32 v{r}, 0")
    a("s_mul_i32 s39, s25, 1344")
    a(f"s_add_u32 s39, s39, {KG_T16 + 8}")
    a("v_subrev_u32 v21, 7, v16")
    a("v_cmp_gt_u32 s[34:35], 8, v21")
    a("v_add_u32 v21, 1, v16")
    a("v_and_b32 v21, 15, v21")
    a("v_lshlrev_b32 v24, 5, v21")
    a("v_lshl_add_u32 v24, v18, 3, v24")
    a("s_lshl_b32 s40, s26, 9")
    a("s_add_u32 s40, s40, s39")
    a("v_add_u32 v24, s40, v24")
    a("s_cmp_eq_u32 s26, 0")
    a("s_cselect_b64 s[36:37], -1, s[34:35]")
    a("s_lshl_b32 s40, s24, 12")
    a(f"s_add_u32 s40, s40, {KG_PART}")
    a("v_lshl_add_u32 v22, v1, 4, s40")
    a("s_lshl_b32 s40, s25, 13")
    a("s_lshl_b32 s41, s26, 11")
    a("s_add_u32 s40, s40, s41")
    a(f"s_add_u32 s40, s40, {KG_PART}")
    a("v_lshl_add_u32 v23, v1, 4, s40")
    a("s_lshl_b32 s40, s26, 6")
    a("v_add_u32 v26, s40, v1")
    a("v_lshlrev_b32 v27, 3, v26")
    a("v_sub_u32 v27, 2047, v27")
    a("v_cvt_f32_u32 v28, v27")
    a("s_sub_u32 s41, s39, 34050")
    a("s_sub_u32 s42, s39, 2")
    GA = 140
    for rnd in range(2):
        if rnd == 1:
            a("v_add_f32 v28, 0xc4800000, v28")
            a("v_subrev_u32 v27, 1024, v27")
        for t in range(8):
            if t == 0: a(f"v_mov_b32 v48, v28")
            else: a(f"v_add_f32 v{48+t}, {-float(t)}, v28")
        for p in range(4): a(f"v_cvt_pk_bf16_f32 v{56+p}, v{48+2*p}, v{49+2*p}")
        for p in range(4):
            a(f"v_and_b32 v{48+2*p}, 0xffff, v{56+p}")
            a(f"v_lshrrev_b32 v{49+2*p}, 16, v{56+p}")
        o = GA + 8 * rnd
        for t in range(8): a(f"v_lshl_add_u32 v{o+t}, v{48+t}, 1, s41")
        if rnd == 1:
            a("v_cmp_le_u32 vcc, 112, v26")
            for t in range(8):
                a(f"v_subrev_u32 v{56+(t&3)}, {t}, v27")
                a(f"v_lshl_add_u32 v{56+(t&3)}, v{56+(t&3)}, 1, s42")
                a(f"v_cndmask_b32 v{o+t}, v{o+t}, v{56+(t&3)}, vcc")
    a(f"s_mul_i32 s40, s25, 4160")
    a(f"s_add_u32 s40, s40, {KG_REV}")
    a("v_lshl_add_u32 v29, v26, 4, s40")
    a("s_add_u32 s41, s40, 4080")
    a("v_lshlrev_b32 v30, 4, v26")
    a("v_sub_u32 v30, s41, v30")
    a(f"s_mul_i32 s41, s25, {KC_CH}")
    a("s_add_u32 s41, s41, 48")
    a("v_lshl_add_u32 v31, v26, 4, s41")
    a("s_waitcnt lgkmcnt(0)")
    a("s_lshl_b32 s40, s25, 4")
    a("s_lshr_b32 s29, s29, s40")
    a("s_lshl_b32 s29, s29, 16")
    a(f"v_mov_b32 v8, {LOG2E}")
    a("v_mul_f32 v9, s29, v8")
    a("v_exp_f32 v9, v9")
    a("s_nop 0")
    rbf(a, 9, 9)
    a("s_waitcnt vmcnt(0)")
    a("s_cmp_eq_u32 s64, 1")
    a("s_cbranch_scc0 K12_nopub")
    a("v_mov_b32 v68, 0")
    a("v_mov_b32 v69, 1")
    a("s_mov_b64 exec, 1")
    a("global_store_dword v68, v69, s[18:19] sc1")
    a("s_mov_b64 exec, -1")
    a("K12_nopub:")
    a("v_lshlrev_b32 v4, 16, v4")
    a("v_lshlrev_b32 v5, 16, v5")
    a("v_lshlrev_b32 v6, 16, v6")
    a("v_lshlrev_b32 v7, 16, v7")
    a("v_mul_f32 v4, v4, v8")
    a("v_exp_f32 v4, v4")
    a("v_mul_f32 v13, v5, v9")
    a("v_mul_f32 v14, v6, v9")
    rbf(a, 4, 4)
    a("v_mul_f32 v15, v7, v9")
    a("v_mul_f32 v12, v4, v9")
    a(f"v_mul_f32 v13, {INV2PI}, v13")
    a("v_add_f32 v14, v14, v14")
    a("v_add_f32 v15, v15, v15")
    a("v_mul_f32 v12, v12, v8")
    a("v_mov_b32 v10, v14")
    a("v_sub_f32 v12, 0, v12")
    a("ds_write_b128 v20, v[12:15]")
    for ctl in ("row_shr:1", "row_shr:2", "row_shr:4", "row_shr:8", "row_bcast:15 row_mask:0xa", "row_bcast:31 row_mask:0xc"):
        a("s_nop 1")
        a(f"v_add_f32_dpp v10, v10, v10 {ctl}")
    a("s_waitcnt lgkmcnt(0)")
    stamp(a, 1)
    R = [[32 + 4 * u for u in range(4)], [48 + 4 * u for u in range(4)]]
    PA = [64 + 2 * u for u in range(4)]
    PB = [72 + 2 * u for u in range(4)]
    TT = [80 + 2 * u for u in range(4)]
    QF = [88 + 4 * e for e in range(4)]
    GF = [104, 108]
    DD = [112 + 4 * e for e in range(4)]
    CPK = [128 + u for u in range(4)]
    MAG = [132 + 2 * u for u in range(4)]
    for u in range(4): a(f"ds_read_b128 v[{R[0][u]}:{R[0][u]+3}], v17 offset:{u*16}")
    for ks in range(4):
        Rc = R[ks & 1]
        if ks + 1 < 4:
            for u in range(4):
                a(f"ds_read_b128 v[{R[(ks+1)&1][u]}:{R[(ks+1)&1][u]+3}], v17 offset:{(ks+1)*256+u*16}")
            a("s_waitcnt lgkmcnt(4)")
        else:
            a("s_waitcnt lgkmcnt(0)")
        for u in range(4): a(f"v_mul_f32 v{TT[u]}, v{Rc[u]}, v19")
        for u in range(4): a(f"v_mul_f32 v{TT[u]+1}, v{Rc[u]+1}, v19")
        for u in range(4): a(f"v_exp_f32 v{MAG[u]}, v{TT[u]}")
        for u in range(4): a(f"v_fract_f32 v{TT[u]+1}, v{TT[u]+1}")
        for u in range(4): a(f"v_cvt_pk_bf16_f32 v{CPK[u]}, v{Rc[u]+2}, -v{Rc[u]+3}")
        for u in range(4): a(f"v_cos_f32 v{PB[u]}, v{TT[u]+1}")
        for u in range(4): a(f"v_sin_f32 v{PB[u]+1}, v{TT[u]+1}")
        a("s_nop 0")
        for u in range(4):
            a(f"v_pk_mul_f32 v[{PA[u]}:{PA[u]+1}], v[{PB[u]}:{PB[u]+1}], v[{MAG[u]}:{MAG[u]+1}] op_sel:[0,0] op_sel_hi:[1,0]")
        cur, oth = PA, PB
        for e in range(4):
            for u in range(4): a(f"v_cvt_pk_bf16_f32 v{QF[e]+u}, v{cur[u]}, v{cur[u]+1}")
            sq = [csq(a, oth[u], cur[u], TT[u]) for u in range(4)]
            for u in range(4): a(sq[u][0])
            for u in range(4): a(sq[u][1])
            cur, oth = oth, cur
        for e in range(4):
            g = GF[e & 1]
            cm = [cmulconj(a, oth[u], cur[u], Rc[u] + 2, TT[u]) for u in range(4)]
            for u in range(4): a(cm[u][0])
            for u in range(4): a(cm[u][1])
            for u in range(4): a(f"v_cvt_pk_bf16_f32 v{g+u}, v{oth[u]}, v{oth[u]+1}")
            if e == 0:
                for u in range(4): a(f"v_cndmask_b32 v{g+u}, v{g+u}, v{CPK[u]}, s[32:33]")
            if e < 3:
                sq = [csq(a, oth[u], cur[u], TT[u]) for u in range(4)]
                for u in range(4): a(sq[u][0])
                a(f"v_mfma_f32_16x16x32_bf16 v[{DD[e]}:{DD[e]+3}], v[{QF[e]}:{QF[e]+3}], v[{g}:{g+3}], v[{DD[e]}:{DD[e]+3}]")
                for u in range(4): a(sq[u][1])
                cur, oth = oth, cur
            else:
                a("s_nop 1")
                a(f"v_mfma_f32_16x16x32_bf16 v[{DD[e]}:{DD[e]+3}], v[{QF[e]}:{QF[e]+3}], v[{g}:{g+3}], v[{DD[e]}:{DD[e]+3}]")
    stamp(a, 2)
    K0P = KG_T16 + 2 * 1344 + 16
    a("v_readlane_b32 s40, v10, 63")
    a(f"s_lshl_b32 s41, s24, 2")
    a(f"s_add_u32 s41, s41, {K0P}")
    a("v_mov_b32 v11, s41")
    a("v_mov_b32 v10, s40")
    a("s_nop 1")
    for e in range(4): a(f"ds_write_b128 v22, v[{DD[e]}:{DD[e]+3}] offset:{e*1024}")
    a("ds_write_b32 v11, v10")
    a("s_lshl_b32 s57, s25, 2")
    a(f"s_add_u32 s41, s57, {LF}")
    wsync(a, "s41", 2, 2, 40)
    a("ds_read_b128 v[32:35], v23")
    a("ds_read_b128 v[36:39], v23 offset:4096")
    a("ds_read_b128 v[40:43], v23 offset:1024")
    a("ds_read_b128 v[44:47], v23 offset:5120")
    a(f"s_lshl_b32 s41, s25, 3")
    a(f"s_add_u32 s41, s41, {K0P}")
    a("v_mov_b32 v11, s41")
    a("ds_read_b64 v[8:9], v11")
    a("s_waitcnt lgkmcnt(0)")
    for r in range(4): a(f"v_add_f32 v{32+r}, v{32+r}, v{36+r}")
    for r in range(4): a(f"v_add_f32 v{40+r}, v{40+r}, v{44+r}")
    a("v_add_f32 v8, v8, v9")
    a("v_cvt_pk_bf16_f32 v32, v32, v33")
    a("v_cvt_pk_bf16_f32 v33, v34, v35")
    a("v_cvt_pk_bf16_f32 v40, v40, v41")
    a("v_cvt_pk_bf16_f32 v41, v42, v43")
    a("v_cvt_pk_bf16_f32 v8, v8, v8")
    a("s_sub_u32 s41, s39, 2")
    a("v_mov_b32 v11, s41")
    a("s_mov_b64 exec, s[36:37]")
    a("ds_write_b64 v24, v[32:33]")
    a("s_mov_b64 exec, s[34:35]")
    a("ds_write_b64 v24, v[40:41] offset:256")
    a("s_mov_b64 exec, -1")
    a("ds_write_b16 v11, v8")
    a(f"s_add_u32 s41, s57, {LF + 8}")
    wsync(a, "s41", 2, 2, 40)
    for t in range(16):
        a(f"ds_read_u16 v{76+t}, v{GA+t}")
        if t == 7: a("v_mov_b32 v72, 0\nv_mov_b32 v73, 0\nv_mov_b32 v74, 0\nv_mov_b32 v75, 0")
    a("s_waitcnt lgkmcnt(8)")
    for p in range(4): a(f"v_lshl_or_b32 v{64+p}, v{77+2*p}, 16, v{76+2*p}")
    a("ds_write_b128 v29, v[64:67]")
    a("s_waitcnt lgkmcnt(1)")
    for p in range(4): a(f"v_lshl_or_b32 v{68+p}, v{85+2*p}, 16, v{84+2*p}")
    a("ds_write_b128 v29, v[68:71] offset:2048")
    a("v_cmp_gt_u32 vcc, 4, v26")
    a("s_and_saveexec_b64 s[42:43], vcc")
    a("ds_write_b128 v29, v[72:75] offset:4096")
    a("s_mov_b64 exec, s[42:43]")
    a(f"s_add_u32 s41, s57, {LF + 16}")
    wsync(a, "s41", 2, 2, 40)
    a("v_subrev_u32 v33, 2048, v30")
    a("ds_read_b128 v[36:39], v30")
    a("ds_read_b128 v[40:43], v30 offset:16")
    a("ds_read_b128 v[44:47], v33")
    a("ds_read_b128 v[48:51], v33 offset:16")
    for c in range(2):
        W = 36 + 8 * c
        a(f"s_waitcnt lgkmcnt({2 if c == 0 else 8})")
        V = 60
        for j in range(7): a(f"v_alignbit_b32 v{V+j}, v{W+j+1}, v{W+j}, 16")
        for j in range(1, 7): a(f"v_alignbit_b32 v{68+j-1}, v{W+j+1}, v{W+j}, 16")
        for j in range(1, 7): a(f"v_mov_b32 v{76+j-1}, v{W+j}")
        off = c * 2048
        a(f"ds_write_b128 v31, v[{W}:{W+3}] offset:{off + 7*CS}")
        a(f"ds_write_b128 v31, v[{W+2}:{W+5}] offset:{off + 3*CS}")
        a(f"ds_write_b128 v31, v[{V}:{V+3}] offset:{off + 6*CS}")
        a(f"ds_write_b128 v31, v[{V+2}:{V+5}] offset:{off + 2*CS}")
        a(f"ds_write_b128 v31, v[68:71] offset:{off + 4*CS}")
        a(f"ds_write_b128 v31, v[70:73] offset:{off + 0*CS}")
        a(f"ds_write_b128 v31, v[76:79] offset:{off + 5*CS}")
        a(f"ds_write_b128 v31, v[78:81] offset:{off + 1*CS}")
    stamp(a, 3)
    a("s_lshl_b32 s28, s62, 12")
    a(f"s_add_u32 s28, s28, {XT}") if XT else None
    a("v_lshl_add_u32 v160, v0, 4, s28")
    a("v_add_u32 v161, 4096, v160")
    a("v_lshlrev_b32 v162, 5, v0")
    a(f"v_add_u32 v162, {STAT1}, v162")
    a(f"v_add_u32 v163, 8192, v162")
    a("v_and_b32 v50, 31, v1")
    a("v_lshrrev_b32 v51, 5, v1")
    a("s_lshl_b32 s30, s25, 12")
    a("s_add_u32 s30, s30, s28")
    a("s_lshl_b32 s31, s26, 11")
    a("s_add_u32 s30, s30, s31")
    a("v_lshlrev_b32 v164, 6, v50")
    a("v_lshl_add_u32 v164, v51, 3, v164")
    a("v_add_u32 v164, s30, v164")
    a("v_and_b32 v165, 3, v1")
    a("v_mul_u32_u24 v165, 12288, v165")
    a("v_bfe_u32 v54, v1, 2, 1")
    a("v_lshl_add_u32 v165, v54, 2, v165")
    a("v_lshrrev_b32 v54, 3, v1")
    a("v_min_u32 v54, 2, v54")
    a("v_lshl_add_u32 v165, v54, 11, v165")
    a("s_lshl_b32 s32, s62, 2")
    a(f"s_add_u32 s32, s32, {MODP}")
    a("v_add_u32 v165, s32, v165")
    a("v_and_b32 v54, 7, v50")
    a("v_lshrrev_b32 v55, 3, v50")
    a(f"v_mul_u32_u24 v2, {CS}, v54")
    a("v_sub_u32 v55, v55, v51")
    a("v_add_u32 v55, 1, v55")
    a("v_lshl_add_u32 v2, v55, 4, v2")
    a(f"s_mul_i32 s38, s25, {KC_CH}")
    a("v_add_u32 v2, s38, v2")
    a("v_mul_u32_u24 v3, 80, v50")
    a("v_lshl_add_u32 v3, v51, 4, v3")
    a(f"s_mul_i32 s38, s25, {U_CH}")
    a(f"s_add_u32 s38, s38, {UB}")
    a("v_add_u32 v3, s38, v3")
    a("v_lshrrev_b32 v166, 2, v0")
    a("v_mul_u32_u24 v166, 80, v166")
    a("v_and_b32 v63, 3, v0")
    a("v_lshl_add_u32 v166, v63, 4, v166")
    a(f"v_add_u32 v166, {UB + 31*80}, v166")
    a("s_lshl_b32 s38, s24, 12")
    a(f"s_add_u32 s38, s38, {SCR}")
    a("v_lshl_add_u32 v4, v1, 4, s38")
    a("s_xor_b32 s39, s24, 1")
    a("s_lshl_b32 s38, s39, 12")
    a(f"s_add_u32 s38, s38, {SCR}")
    a("v_lshl_add_u32 v5, v1, 4, s38")
    a("s_lshl_b32 s38, s24, 2")
    a(f"s_add_u32 s38, s38, {LF + 32}")
    a("v_mov_b32 v7, s38")
    a("s_lshl_b32 s38, s39, 2")
    a(f"s_add_u32 s38, s38, {LF + 32}")
    a("v_mov_b32 v8, s38")
    a("v_mul_u32_u24 v6, 80, v50")
    a("v_lshl_add_u32 v6, v51, 3, v6")
    a(f"s_mul_i32 s38, s25, {U_CH}")
    a(f"s_mul_i32 s39, s26, {32*80}")
    a("s_add_u32 s38, s38, s39")
    a(f"s_add_u32 s38, s38, {UB + 31*80}")
    a("v_add_u32 v6, s38, v6")
    a("s_lshl_b32 s38, s27, 7")
    a("s_lshl_b32 s39, s26, 20")
    a("s_add_u32 s38, s38, s39")
    a(f"s_add_u32 s38, s38, {X2T}")
    a("v_lshrrev_b32 v9, 3, v1")
    a("v_lshlrev_b32 v9, 16, v9")
    a("v_and_b32 v63, 7, v1")
    a("v_lshl_add_u32 v9, v63, 4, v9")
    a("v_add_u32 v9, s38, v9")
    a("v_add_u32 v12, 0x80000, v9")
    a(f"s_mul_i32 s38, s25, {KC_CH}")
    a("s_mul_i32 s39, s26, 2560")
    a("s_add_u32 s38, s38, s39")
    a("v_mul_u32_u24 v10, 80, v50")
    a("v_lshl_add_u32 v10, v51, 3, v10")
    a("v_add_u32 v10, s38, v10")
    a("v_lshrrev_b32 v11, 2, v1")
    a("v_mul_u32_u24 v11, 80, v11")
    a("v_and_b32 v63, 3, v1")
    a("v_lshl_add_u32 v11, v63, 4, v11")
    a("v_add_u32 v11, s38, v11")
    for r in range(32, 64): a(f"v_mov_b32 v{r}, 0")
    a("s_lshl_b32 s38, s25, 4")
    a("s_lshr_b32 s36, s56, s38")
    a("s_lshl_b32 s36, s36, 16")
    a("s_waitcnt lgkmcnt(0)")
    a("s_barrier")
    stamp(a, 4)
    XR, SR = 168, 176
    a("global_load_dword v13, v165, s[14:15] sc1")
    a(f"global_load_dwordx4 v[{XR}:{XR+3}], v160, s[14:15] sc1")
    a(f"global_load_dwordx4 v[{XR+4}:{XR+7}], v161, s[14:15] sc1")
    a(f"global_load_dwordx4 v[{SR}:{SR+3}], v162, s[14:15] sc1")
    a(f"global_load_dwordx4 v[{SR+4}:{SR+7}], v162, s[14:15] offset:16 sc1")
    a(f"global_load_dwordx4 v[{SR+8}:{SR+11}], v163, s[14:15] sc1")
    a(f"global_load_dwordx4 v[{SR+12}:{SR+15}], v163, s[14:15] offset:16 sc1")
    for i in range(4):
        a(f"global_load_dwordx2 v[{144+2*i}:{145+2*i}], v164, s[14:15] offset:{16*i} sc1")
    a("s_waitcnt vmcnt(10)")
    a("v_add_f32_dpp v13, v13, v13 quad_perm:[1,0,3,2] row_mask:0xf bank_mask:0xf")
    a("s_nop 1")
    a("v_add_f32_dpp v13, v13, v13 quad_perm:[2,3,0,1] row_mask:0xf bank_mask:0xf")
    rbf(a, 13, 13)
    a("v_add_f32 v14, 1.0, v13")
    rbf(a, 14, 14)
    a("v_readlane_b32 s59, v13, 0")
    a("v_readlane_b32 s61, v13, 4")
    a("v_readlane_b32 s54, v13, 16")
    a("v_readlane_b32 s55, v13, 20")
    a("v_readlane_b32 s58, v14, 8")
    a("v_readlane_b32 s60, v14, 12")
    a("s_cmp_eq_u32 s25, 0")
    a("s_cselect_b32 s37, s54, s55")
    a("s_waitcnt vmcnt(4)")
    for c in range(2):
        X = XR + 4 * c
        for q in range(4):
            a(f"v_lshlrev_b32 v{64+2*q}, 16, v{X+q}")
            a(f"v_and_b32 v{65+2*q}, 0xffff0000, v{X+q}")
        for q in range(4):
            a(f"v_pk_fma_f32 v[{64+2*q}:{65+2*q}], v[{64+2*q}:{65+2*q}], v[{SR+2*q}:{SR+1+2*q}], v[{SR+8+2*q}:{SR+9+2*q}]")
        for q in range(4):
            a(f"v_pk_fma_f32 v[{64+2*q}:{65+2*q}], v[{64+2*q}:{65+2*q}], s[{58+2*c}:{59+2*c}], s[{58+2*c}:{59+2*c}] op_sel:[0,0,1] op_sel_hi:[1,0,1]")
        for q in range(4):
            a(f"v_cvt_pk_bf16_f32 v{72+4*c+q}, v{64+2*q}, v{65+2*q}")
        a(f"ds_write_b128 v166, v[{72+4*c}:{75+4*c}] offset:{c*U_CH}")
    wsync(a, LF + 52, 4, 14, 40)
    stamp(a, 5)
    a("s_cmp_eq_u32 s26, 0")
    a("s_cbranch_scc0 K2_B")
    conv_path(a, 0, "A")
    a("K2_B:   ; LINT-RESET")
    conv_path(a, 1, "B")
    a("K2_SIDE:   ; LINT-RESET")
    a("s_barrier")
    TL = SIDE + SIDE_SZ
    a("v_mul_u32_u24 v30, 160, v2")
    a("v_lshl_add_u32 v30, v3, 4, v30")
    a(f"v_add_u32 v30, {TL}, v30")
    a("s_cmp_ge_u32 s2, 192")
    a("s_cbranch_scc1 K1_w0")
    a("s_waitcnt vmcnt(10)")
    a("s_branch K1_w1")
    a("K1_w0:")
    a("s_waitcnt vmcnt(2)")
    a("K1_w1:   ; LINT-RESET")
    stamp(a, 1)
    a("ds_write_b128 v30, v[8:11]")
    a("ds_write_b128 v30, v[12:15] offset:5120")
    wsync(a, LF + 48, 4, 2, 40)
    a("v_lshrrev_b32 v2, 4, v1")
    a("v_bfe_u32 v3, v1, 2, 2")
    a("v_and_b32 v4, 3, v1")
    a("v_lshl_add_u32 v5, v2, 3, v3")
    a("v_mul_u32_u24 v5, 160, v5")
    a("v_lshl_add_u32 v5, v4, 3, v5")
    a("s_lshl_b32 s31, s25, 5")
    a(f"s_add_u32 s31, s31, {TL}")
    a("v_add_u32 v5, s31, v5")
    a("ds_read_b64_tr_b16 v[8:9], v5")
    a("ds_read_b64_tr_b16 v[10:11], v5 offset:640")
    a(f"ds_read_b64_tr_b16 v[12:13], v5 offset:{32*160}")
    a(f"ds_read_b64_tr_b16 v[14:15], v5 offset:{36*160}")
    a("v_and_b32 v6, 15, v1")
    a("v_lshlrev_b32 v6, 12, v6")
    a("v_lshl_add_u32 v6, v2, 4, v6")
    a("s_lshl_b32 s31, s27, 18")
    a("s_lshl_b32 s32, s25, 16")
    a("s_add_u32 s31, s31, s32")
    a("s_lshl_b32 s32, s26, 7")
    a("s_add_u32 s31, s31, s32")
    a(f"s_add_u32 s31, s31, {XT}") if XT else None
    a("v_add_u32 v6, s31, v6")
    a("s_waitcnt lgkmcnt(2)")
    a("global_store_dwordx4 v6, v[8:11], s[14:15] sc1")
    a("s_waitcnt lgkmcnt(0)")
    a("global_store_dwordx4 v6, v[12:15], s[14:15] offset:64 sc1")
    a("s_cmp_ge_u32 s2, 192")
    a("s_cbranch_scc1 K1_w2")
    a("s_waitcnt vmcnt(10)")
    a("s_branch K1_w3")
    a("K1_w2:")
    a("s_waitcnt vmcnt(2)")
    a("K1_w3:   ; LINT-RESET")
    a("v_mov_b32 v31, 0x3f803f80")
    a("v_mov_b32 v52, 0\nv_mov_b32 v53, 0\nv_mov_b32 v54, 0\nv_mov_b32 v55, 0")
    for k in range(4):
        a(f"v_dot2_f32_bf16 v52, v{16+k}, v31, v52")
        a(f"v_dot2_f32_bf16 v53, v{16+k}, v{16+k}, v53")
        a(f"v_dot2_f32_bf16 v54, v{20+k}, v31, v54")
        a(f"v_dot2_f32_bf16 v55, v{20+k}, v{20+k}, v55")
    a("s_nop 1")
    for ctl in ("row_shr:1", "row_shr:2", "row_shr:4", "row_shr:8", "row_bcast:15 row_mask:0xa", "row_bcast:31 row_mask:0xc"):
        for r in range(52, 56): a(f"v_add_f32_dpp v{r}, v{r}, v{r} {ctl}")
    a("s_nop 1")
    for k, r in enumerate(range(52, 56)): a(f"v_readlane_b32 s{36+k}, v{r}, 63")
    a("s_nop 1")
    a("v_cmp_eq_u32 vcc, 0, v1")
    a("v_mov_b32 v56, s38")
    a("v_mov_b32 v57, s39")
    a("v_mov_b32 v58, s36")
    a("v_mov_b32 v59, s37")
    a("v_cndmask_b32 v56, v56, v58, vcc")
    a("v_cndmask_b32 v57, v57, v59, vcc")
    a("v_mul_f32 v56, 0x3b000000, v56")
    a("v_mul_f32 v57, 0x3b000000, v57")
    a("v_fma_f32 v57, -v56, v56, v57")
    a("v_max_f32 v57, 0, v57")
    rbf(a, 56, 56); rbf(a, 57, 57)
    a("v_add_f32 v57, 0x3727c5ac, v57")
    rbf(a, 57, 57)
    a("v_sqrt_f32 v57, v57")
    a("s_nop 0")
    rbf(a, 57, 57)
    a("v_rcp_f32 v58, v57")
    a("s_nop 0")
    a("v_mul_f32 v59, v56, v58")
    a("v_sub_f32 v59, 0, v59")
    a("s_lshl_b32 s31, s30, 2")
    a(f"s_add_u32 s31, s31, {STAT1}")
    a("v_lshl_add_u32 v60, v1, 2, s31")
    a("v_add_u32 v61, 8192, v60")
    a("v_cmp_gt_u32 vcc, 2, v1")
    a("s_and_saveexec_b64 s[42:43], vcc")
    a("global_store_dword v60, v58, s[14:15] sc1")
    a("global_store_dword v61, v59, s[14:15] sc1")
    a("s_mov_b64 exec, s[42:43]")
    a("s_cmp_ge_u32 s2, 192")
    a("s_cbranch_scc1 K1_nomodc")
    a("s_waitcnt vmcnt(4)")
    for k in range(4): a(f"v_lshlrev_b32 v{48+k}, 16, v{48+k}")
    for k in range(4): a(f"v_mul_f32 v{52+k}, 0xbfb8aa3b, v{48+k}")
    for k in range(4): a(f"v_exp_f32 v{52+k}, v{52+k}")
    a("s_nop 0")
    for k in range(4): a(f"v_add_f32 v{52+k}, 1.0, v{52+k}")
    for k in range(4): a(f"v_rcp_f32 v{56+k}, v{52+k}")
    a("s_nop 0")
    for k in range(4): a(f"v_mul_f32 v{60+k}, v{48+k}, v{56+k}")
    for k in range(4): a(f"v_fma_f32 v{48+k}, -v{60+k}, v{52+k}, v{48+k}")
    for k in range(4): a(f"v_fma_f32 v{48+k}, v{48+k}, v{56+k}, v{60+k}")
    for k in range(4): rbf(a, 48 + k, 48 + k)
    for k in range(4):
        for p in range(4):
            w = 32 + 4 * k + p
            a(f"v_lshlrev_b32 v62, 16, v{w}")
            a(f"v_and_b32 v63, 0xffff0000, v{w}")
            if k == 0:
                a(f"v_mul_f32 v{64+2*p}, v62, v48")
                a(f"v_mul_f32 v{65+2*p}, v63, v48")
            else:
                a(f"v_fmac_f32 v{64+2*p}, v62, v{48+k}")
                a(f"v_fmac_f32 v{65+2*p}, v63, v{48+k}")
    MODL = SIDE
    a("v_subrev_u32 v61, 256, v0")
    a("v_lshlrev_b32 v61, 5, v61")
    a(f"v_add_u32 v61, {MODL}, v61")
    a("ds_write_b128 v61, v[64:67]")
    a("ds_write_b128 v61, v[68:71] offset:16")
    wsync(a, LF + 24, 4, 2, 40)
    a("s_cmp_lg_u32 s25, 0")
    a("s_cbranch_scc1 K1_nomodc")
    a("v_lshlrev_b32 v4, 2, v1")
    a(f"v_add_u32 v4, {MODL}, v4")
    for i in range(32):
        a(f"ds_read_b32 v{16+i}, v4 offset:{256*i}")
        if i == 14: a("s_waitcnt lgkmcnt(7)")
    a("s_waitcnt lgkmcnt(0)")
    for st in (16, 8, 4, 2, 1):
        for i in range(st): a(f"v_add_f32 v{16+i}, v{16+i}, v{16+st+i}")
    a("s_mul_i32 s31, s34, 12288")
    a("s_lshl_b32 s32, s33, 8")
    a("s_add_u32 s31, s31, s32")
    a(f"s_add_u32 s31, s31, {MODP}")
    a("v_lshl_add_u32 v5, v1, 2, s31")
    a("global_store_dword v5, v16, s[14:15] sc1")
    a("K1_nomodc:   ; LINT-RESET")
    stamp(a, 2)
    a("v_mov_b32 v74, 0")
    a("global_load_dword v75, v74, s[18:19] sc1")
    a("s_waitcnt vmcnt(0)")
    a("v_readfirstlane_b32 s51, v75")
    a(f"v_mov_b32 v2, {LF + 28}")
    a("v_mov_b32 v3, 1")
    a("s_mov_b64 exec, 1")
    a("ds_add_u32 v2, v3")
    a("s_mov_b64 exec, -1")
    stamp(a, 3)
    a("s_lshl_b32 s26, s25, 8")
    a("s_add_u32 s26, s26, s2")
    a("s_mov_b32 s27, s57")
    a("v_lshrrev_b32 v2, 2, v1")
    a("v_and_b32 v3, 3, v1")
    a("v_lshrrev_b32 v4, 4, v1")
    a("v_bfe_u32 v5, v1, 2, 2")
    a("v_mul_u32_u24 v11, 80, v2")
    a("v_lshl_add_u32 v11, v3, 4, v11")
    a("v_add_u32 v11, s27, v11")
    a("v_lshl_add_u32 v12, v4, 2, v5")
    a("v_mul_u32_u24 v12, 80, v12")
    a("v_lshl_add_u32 v12, v3, 3, v12")
    a("v_add_u32 v12, s27, v12")
    a("s_cmp_ge_u32 s26, 348")
    a("s_cbranch_scc1 K12_noraw")
    a("s_cmp_ge_u32 s26, 172")
    a("s_cbranch_scc1 K12_rawW2")
    a("s_mul_i32 s28, s26, 1525")
    a("s_lshr_b32 s28, s28, 16")
    a("s_mul_i32 s29, s28, 43")
    a("s_sub_u32 s29, s26, s29")
    a("v_mul_u32_u24 v10, 2752, v2")
    a("v_lshl_add_u32 v10, v3, 4, v10")
    a(f"s_mul_i32 s53, s28, {128*2752}")
    a("s_lshl_b32 s30, s29, 6")
    a("s_add_u32 s53, s53, s30")
    a.srd(64, 48, 512 * 1376 * 2)
    for i in range(8):
        a(f"buffer_load_dwordx4 v[{32+4*i}:{35+4*i}], v10, s[64:67], s53 offen nt")
        if i < 7: a(f"s_add_u32 s53, s53, {16*2752}")
    a("s_branch K12_noraw")
    a("K12_rawW2:   ; LINT-RESET")
    a("s_sub_u32 s31, s26, 172")
    a("s_and_b32 s29, s31, 15")
    a("s_lshr_b32 s28, s31, 4")
    a("v_lshlrev_b32 v10, 10, v2")
    a("v_lshl_add_u32 v10, v3, 4, v10")
    a("s_lshl_b32 s30, s29, 6")
    a.srd(64, 12, 1376 * 512 * 2)
    for ks in range(4):
        a("s_lshl_b32 s31, s28, 2")
        a(f"s_add_u32 s31, s31, {ks}")
        a("s_mul_i32 s32, s31, 13")
        a("s_lshr_b32 s32, s32, 6")
        a("s_mul_i32 s33, s32, 5")
        a("s_sub_u32 s33, s31, s33")
        a("s_mul_i32 s32, s32, 11")
        a("s_min_u32 s32, s32, 76")
        a("s_lshl_b32 s33, s33, 1")
        a("s_add_u32 s32, s32, s33")
        a("s_add_u32 s33, s32, 1")
        a("s_sub_u32 s34, s31, 40")
        a("s_mul_i32 s34, s34, 22")
        a("s_add_u32 s35, s34, 21")
        a("s_add_u32 s34, s34, 10")
        a("s_cmp_lt_u32 s31, 40")
        a("s_cselect_b32 s32, s32, s34")
        a("s_cselect_b32 s33, s33, s35")
        for hf, sr in ((0, 32), (1, 33)):
            a(f"s_lshl_b32 s53, s{sr}, 14")
            a("s_add_u32 s53, s53, s30")
            i = 2 * ks + hf
            a(f"buffer_load_dwordx4 v[{32+4*i}:{35+4*i}], v10, s[64:67], s53 offen nt")
    a("K12_noraw:   ; LINT-RESET")
    a("s_cmp_lg_u32 s25, 0")
    a("s_cbranch_scc1 K12_gbx")
    wsync(a, LF + 28, 4, 70, 40, add=False)
    a("s_mov_b64 exec, 1")
    a("v_mov_b32 v70, 0")
    a("s_mov_b32 s52, 0x200000")
    a("s_cmp_eq_u32 s51, 1")
    a("s_cbranch_scc1 K12_rdyx")
    a("K12_rdy:")
    a("global_load_dword v71, v70, s[18:19] sc1")
    a("s_waitcnt vmcnt(0)")
    a("v_readfirstlane_b32 s40, v71")
    a("s_sub_u32 s52, s52, 1")
    a("s_cmp_eq_u32 s52, 0")
    a("s_cbranch_scc1 K12_gbdone")
    a("s_cmp_eq_u32 s40, 1")
    a("s_cbranch_scc0 K12_rdy")
    a("K12_rdyx:")
    a("s_and_b32 s40, s2, 15")
    a("s_lshl_b32 s40, s40, 8")
    a(f"s_add_u32 s40, s40, {GBAR}")
    a("v_mov_b32 v70, s40")
    a("v_mov_b32 v71, 1")
    a("global_atomic_add v71, v70, v71, s[14:15] sc0 sc1")
    a("s_waitcnt vmcnt(0)")
    a("v_readfirstlane_b32 s40, v71")
    a("s_cmp_eq_u32 s40, 15")
    a("s_cbranch_scc0 K12_poll")
    if OPT.get("bar2", "1") == "1":
        a("s_mov_b64 exec, 0xff")
        a("v_lshlrev_b32 v70, 8, v1")
        a(f"v_add_u32 v70, {GBAR + 8192}, v70")
        a("v_mov_b32 v71, 1")
        a("global_atomic_add v70, v71, s[14:15] sc1")
        a("s_mov_b64 exec, 1")
    else:
        a(f"v_mov_b32 v70, {GBAR + 4096}")
        a("v_mov_b32 v71, 1")
        a("global_atomic_add v71, v70, v71, s[14:15] sc0 sc1")
        a("s_waitcnt vmcnt(0)")
        a("v_readfirstlane_b32 s40, v71")
        a("s_cmp_eq_u32 s40, 15")
        a("s_cbranch_scc0 K12_poll")
        a("s_mov_b64 exec, 0xff")
        a("v_lshlrev_b32 v70, 8, v1")
        a(f"v_add_u32 v70, {GBAR + 8192}, v70")
        a("v_mov_b32 v71, 1")
        a("global_store_dword v70, v71, s[14:15] sc1")
        a("s_mov_b64 exec, 1")
    a("K12_poll:")
    a("s_and_b32 s40, s2, 7")
    a("s_lshl_b32 s40, s40, 8")
    a(f"s_add_u32 s40, s40, {GBAR + 8192}")
    a("v_mov_b32 v70, s40")
    a("K12_poll2:")
    a("global_load_dword v71, v70, s[14:15] sc1")
    a("s_waitcnt vmcnt(0)")
    a("v_readfirstlane_b32 s40, v71")
    a("s_sub_u32 s52, s52, 1")
    a("s_cmp_eq_u32 s52, 0")
    a("s_cbranch_scc1 K12_gbdone")
    a(f"s_cmp_ge_u32 s40, {16 if OPT.get('bar2', '1') == '1' else 1}")
    a("s_cbranch_scc0 K12_poll2")
    a("K12_gbdone:")
    a("s_mov_b64 exec, -1")
    a("K12_gbx:   ; LINT-RESET")
    a(f"s_setprio {OPT.get('sprio', '0')}")
    a("s_barrier")
    stamp(a, 4)
    a("s_cmp_gt_u32 s26, 348")
    a("s_cbranch_scc1 K2_SIDE_IDLE")
    a("s_cmp_eq_u32 s26, 348")
    a("s_cbranch_scc1 K2_TAB")
    a("s_cmp_ge_u32 s26, 172")
    a("s_cbranch_scc1 K2_W2")
    a("s_lshl_b32 s31, s28, 9")
    a("v_lshl_add_u32 v13, v1, 3, s31")
    a(f"v_add_u32 v13, {MODP + 3*2048}, v13")
    for q in range(4):
        a(f"global_load_dwordx2 v[{64+4*q}:{65+4*q}], v13, s[14:15] sc1")
        a(f"global_load_dwordx2 v[{66+4*q}:{67+4*q}], v13, s[14:15] offset:2048 sc1")
        if q < 3: a("v_add_u32 v13, 12288, v13")
    a("s_waitcnt vmcnt(8)")
    for i in range(8): a(f"ds_write_b128 v11, v[{32+4*i}:{35+4*i}] offset:{16*80*i}")
    a("s_waitcnt vmcnt(0)")
    for r in range(4):
        a(f"v_add_f32 v{64+r}, v{64+r}, v{68+r}")
        a(f"v_add_f32 v{72+r}, v{72+r}, v{76+r}")
        a(f"v_add_f32 v{64+r}, v{64+r}, v{72+r}")
    for r in range(4): rbf(a, 64 + r, 64 + r)
    a("v_add_f32 v66, 1.0, v66")
    a("v_add_f32 v67, 1.0, v67")
    rbf(a, 66, 66); rbf(a, 67, 67)
    a("v_cvt_pk_bf16_f32 v64, v64, v65")
    a("v_lshl_add_u32 v15, v1, 3, s27")
    a("v_lshl_add_u32 v16, v1, 2, s27")
    a("ds_write_b64 v15, v[66:67] offset:10240")
    a("ds_write_b32 v16, v64 offset:10752")
    a("v_and_b32 v17, 15, v1")
    a("v_cmp_eq_u32 s[50:51], 0, v17")
    a("v_cmp_eq_u32 s[52:53], 1, v17")
    a("v_mov_b32 v18, 0")
    a("v_mov_b32 v19, 0x3f803f80")
    a("v_cndmask_b32 v18, v18, v19, s[50:51]")
    a("v_mov_b32 v19, 0")
    a("v_cndmask_b32 v19, v19, -1, s[52:53]")
    a("v_lshl_add_u32 v24, v4, 4, s27")
    a("v_lshl_add_u32 v25, v4, 3, s27")
    for r in range(96, 112): a(f"v_mov_b32 v{r}, 0")
    a("s_lshl_b32 s30, s29, 11")
    a(f"s_mul_i32 s31, s28, {4*87*1024}")
    a("s_add_u32 s30, s30, s31")
    a(f"s_add_u32 s30, s30, {W1F}")
    a("v_lshl_add_u32 v26, v1, 4, s30")
    a("s_waitcnt lgkmcnt(0)")
    for ks in range(4):
        a(f"ds_read_b128 v[32:35], v24 offset:{10240 + 128*ks}")
        a(f"ds_read_b128 v[36:39], v24 offset:{10240 + 128*ks + 64}")
        a(f"ds_read_b64 v[40:41], v25 offset:{10752 + 64*ks}")
        a(f"ds_read_b64 v[42:43], v25 offset:{10752 + 64*ks + 32}")
        for nt in range(2):
            for hf in range(2):
                a(f"ds_read_b64_tr_b16 v[{44+4*nt+2*hf}:{45+4*nt+2*hf}], v12 offset:{(32*ks+16*hf)*80 + 32*nt}")
        a("s_waitcnt lgkmcnt(4)")
        for q in range(4): a(f"v_and_or_b32 v{40+q}, v{40+q}, v19, v18")
        a("s_waitcnt lgkmcnt(0)")
        for nt in range(2):
            R = 44 + 4 * nt
            for q in range(4):
                a(f"v_lshlrev_b32 v{52+2*q}, 16, v{R+q}")
                a(f"v_and_b32 v{53+2*q}, 0xffff0000, v{R+q}")
            a(f"v_mfma_f32_16x16x32_bf16 v[{96+4*nt}:{99+4*nt}], v[{R}:{R+3}], v[40:43], v[{96+4*nt}:{99+4*nt}]")
            for q in range(4):
                a(f"v_pk_mul_f32 v[{52+2*q}:{53+2*q}], v[{52+2*q}:{53+2*q}], v[{32+2*q}:{33+2*q}]")
            S = 60 + 4 * nt
            for q in range(4):
                a(f"v_cvt_pk_bf16_f32 v{S+q}, v{52+2*q}, v{53+2*q}")
            a(f"global_store_dwordx4 v26, v[{S}:{S+3}], s[14:15] offset:{1024*nt}" + SC1)
            if nt == 1: a(f"v_add_u32 v26, {87*1024}, v26")
            a("s_nop 0")
            a(f"v_mfma_f32_16x16x32_bf16 v[{104+4*nt}:{107+4*nt}], v[{S}:{S+3}], v[40:43], v[{104+4*nt}:{107+4*nt}]")
    a(f"s_mul_i32 s30, s28, {3*5504}")
    a("s_lshl_b32 s31, s29, 7")
    a("s_add_u32 s30, s30, s31")
    a(f"s_add_u32 s30, s30, {SVP}")
    a("v_lshl_add_u32 v28, v4, 4, s30")
    a("v_add_u32 v29, 5504, v28")
    a("v_add_u32 v30, 5504, v29")
    a("s_nop 7")
    a("s_mov_b64 s[42:43], exec")
    a("s_mov_b64 exec, s[50:51]")
    for nt in range(2):
        a(f"global_store_dwordx4 v28, v[{104+4*nt}:{107+4*nt}], s[14:15] offset:{64*nt}" + SC1)
        a(f"global_store_dwordx4 v30, v[{96+4*nt}:{99+4*nt}], s[14:15] offset:{64*nt}" + SC1)
    a("s_mov_b64 exec, s[52:53]")
    for nt in range(2):
        a(f"global_store_dwordx4 v29, v[{96+4*nt}:{99+4*nt}], s[14:15] offset:{64*nt}" + SC1)
    a("s_mov_b64 exec, s[42:43]")
    a("s_branch K12_UDONE")
    a("K2_W2:   ; LINT-RESET")
    a("s_waitcnt vmcnt(0)")
    for i in range(8): a(f"ds_write_b128 v11, v[{32+4*i}:{35+4*i}] offset:{16*80*i}")
    a("s_lshr_b32 s30, s29, 1")
    a("s_mul_i32 s30, s30, 43")
    a("s_lshl_b32 s31, s28, 2")
    a("s_add_u32 s30, s30, s31")
    a("s_lshl_b32 s30, s30, 12")
    a("s_and_b32 s31, s29, 1")
    a("s_lshl_b32 s31, s31, 11")
    a("s_add_u32 s30, s30, s31")
    a(f"s_add_u32 s30, s30, {W2F}")
    a("v_lshl_add_u32 v26, v1, 4, s30")
    a("s_waitcnt lgkmcnt(0)")
    for ks in range(4):
        if ks == 3:
            a("s_cmp_eq_u32 s28, 10")
            a("s_cbranch_scc1 K12_UDONE")
        for nt in range(2):
            for hf in range(2):
                a(f"ds_read_b64_tr_b16 v[{44+4*nt+2*hf}:{45+4*nt+2*hf}], v12 offset:{(32*ks+16*hf)*80 + 32*nt}")
        a("s_waitcnt lgkmcnt(2)")
        a(f"global_store_dwordx4 v26, v[44:47], s[14:15]" + SC1)
        a("s_waitcnt lgkmcnt(0)")
        a(f"global_store_dwordx4 v26, v[48:51], s[14:15] offset:1024" + SC1)
        a("v_add_u32 v26, 4096, v26")
    a("s_branch K12_UDONE")
    a("K2_TAB:   ; LINT-RESET")
    a("v_lshlrev_b32 v2, 5, v1")
    a(f"v_add_u32 v2, {MODP + 3*2048}, v2")
    a("v_add_u32 v3, 4096, v2")
    for q in range(4):
        for k in range(3):
            r = 112 + 24 * q + 8 * k
            a(f"global_load_dwordx4 v[{r}:{r+3}], v2, s[14:15] offset:{2048*k if k < 2 else 0} sc1" if k < 2 else f"global_load_dwordx4 v[{r}:{r+3}], v3, s[14:15] sc1")
            a(f"global_load_dwordx4 v[{r+4}:{r+7}], v2, s[14:15] offset:{2048*k+16} sc1" if k < 2 else f"global_load_dwordx4 v[{r+4}:{r+7}], v3, s[14:15] offset:16 sc1")
        if q < 3:
            a("v_add_u32 v2, 12288, v2")
            a("v_add_u32 v3, 12288, v3")
    a("s_waitcnt vmcnt(0)")
    for j in range(24):
        a(f"v_add_f32 v{112+j}, v{112+j}, v{136+j}")
        a(f"v_add_f32 v{160+j}, v{160+j}, v{184+j}")
        a(f"v_add_f32 v{112+j}, v{112+j}, v{160+j}")
    for j in range(24): rbf(a, 112 + j, 112 + j)
    for j in range(8):
        a(f"v_mov_b32 v{32+j}, v{112+j}")
        a(f"v_mov_b32 v{40+j}, v{120+j}")
    a("v_lshlrev_b32 v3, 5, v1")
    a(f"v_add_u32 v3, {GBF}, v3")
    a("global_store_dwordx4 v3, v[128:131], s[14:15] sc1")
    a("global_store_dwordx4 v3, v[132:135], s[14:15] offset:16 sc1")
    for j in range(8): a(f"v_add_f32 v{40+j}, 1.0, v{40+j}")
    for j in range(8): rbf(a, 40 + j, 40 + j)
    for j in range(8): a(f"v_mul_f32 v{48+j}, v{40+j}, v{40+j}")
    for j in range(8): a(f"v_mul_f32 v{56+j}, v{40+j}, v{32+j}")
    a("v_lshlrev_b32 v3, 5, v1")
    a(f"v_add_u32 v3, {G2F}, v3")
    a("global_store_dwordx4 v3, v[48:51], s[14:15] sc1")
    a("global_store_dwordx4 v3, v[52:55], s[14:15] offset:16 sc1")
    for k, base in enumerate((40, 48, 56, 32)):
        a(f"v_add_f32 v{100+k}, v{base}, v{base+1}")
        for j in range(2, 8): a(f"v_add_f32 v{100+k}, v{100+k}, v{base+j}")
    a("v_mul_f32 v104, v32, v32")
    for j in range(1, 8): a(f"v_fmac_f32 v104, v{32+j}, v{32+j}")
    a("v_lshl_add_u32 v4, v1, 4, s27")
    a("v_mov_b32 v64, 0x3f803f80\nv_mov_b32 v65, 0x3f803f80\nv_mov_b32 v66, 0x3f803f80\nv_mov_b32 v67, 0x3f803f80")
    a("ds_write_b128 v4, v[64:67]")
    for q in range(4): a(f"v_cvt_pk_bf16_f32 v{68+q}, v{40+2*q}, v{41+2*q}")
    a("ds_write_b128 v4, v[68:71] offset:1024")
    for (src, row) in ((48, 2), (56, 4)):
        for q in range(4): a(f"v_cvt_pk_bf16_f32 v{72+q}, v{src+2*q}, v{src+2*q+1}")
        a(f"ds_write_b128 v4, v[72:75] offset:{1024*row}")
        for q in range(4):
            a(f"v_lshlrev_b32 v{80+2*q}, 16, v{72+q}")
            a(f"v_and_b32 v{81+2*q}, 0xffff0000, v{72+q}")
        for j in range(8): a(f"v_sub_f32 v{80+j}, v{src+j}, v{80+j}")
        for q in range(4): a(f"v_cvt_pk_bf16_f32 v{76+q}, v{80+2*q}, v{81+2*q}")
        a(f"ds_write_b128 v4, v[76:79] offset:{1024*(row+1)}")
    a("s_nop 1")
    for ctl in ("row_shr:1", "row_shr:2", "row_shr:4", "row_shr:8", "row_bcast:15 row_mask:0xa", "row_bcast:31 row_mask:0xc"):
        for r in range(100, 105):
            a(f"v_add_f32_dpp v{r}, v{r}, v{r} {ctl}")
    a(f"v_mov_b32 v5, {SCAL}")
    a("s_mov_b64 s[42:43], exec")
    a("s_mov_b64 exec, 0x8000000000000000") if False else None
    a("v_cmp_eq_u32 vcc, 63, v1")
    a("s_and_saveexec_b64 s[42:43], vcc")
    a("global_store_dwordx4 v5, v[100:103], s[14:15]" + SC1)
    a("global_store_dword v5, v104, s[14:15] offset:16" + SC1)
    a("s_mov_b64 exec, s[42:43]")
    a("v_and_b32 v6, 15, v1")
    a("v_lshrrev_b32 v7, 4, v1")
    a("v_min_u32 v8, 5, v6")
    a("v_lshlrev_b32 v8, 10, v8")
    a("v_lshl_add_u32 v8, v7, 3, v8")
    a("v_add_u32 v8, s27, v8")
    a("v_cmp_gt_u32 vcc, 6, v6")
    a("v_mov_b32 v9, 0")
    a("s_nop 0")
    a("v_cndmask_b32 v9, v9, -1, vcc")
    a(f"s_mov_b32 s30, {W1F + 86*1024}")
    a("v_lshl_add_u32 v10, v1, 4, s30")
    a("s_waitcnt lgkmcnt(0)")
    for ks in range(16):
        R = 16 + 4 * (ks & 1)
        a(f"ds_read_b64 v[{R}:{R+1}], v8 offset:{64*ks}")
        a(f"ds_read_b64 v[{R+2}:{R+3}], v8 offset:{64*ks+32}")
        a("s_waitcnt lgkmcnt(0)")
        for q in range(4): a(f"v_and_b32 v{R+q}, v{R+q}, v9")
        a(f"global_store_dwordx4 v10, v[{R}:{R+3}], s[14:15]" + SC1)
        a(f"v_add_u32 v10, {87*1024}, v10")
    a("s_branch K12_UDONE")
    a("K12_UDONE:   ; LINT-RESET")
    if OPT.get("wpf", "0") == "1":
        a("s_waitcnt vmcnt(0)")
        a(f"v_mov_b32 v2, {WCNT}")
        a("v_mov_b32 v3, 1")
        a("s_mov_b64 exec, 1")
        a("global_atomic_add v2, v3, s[14:15] sc1")
    a("s_branch K2_END")
    a("K2_SIDE_IDLE:   ; LINT-RESET")
    if OPT.get("wpf", "0") == "1":
        a("s_cmp_eq_u32 s25, 2")
        a("s_cbranch_scc0 K2_END")
        a(f"v_mov_b32 v2, {WCNT}")
        a("s_mov_b32 s52, 0x40000")
        a("s_mov_b64 exec, 1")
        a("K12_wpoll:")
        a("s_sleep 8")
        a("global_load_dword v3, v2, s[14:15] sc1")
        a("s_waitcnt vmcnt(0)")
        a("v_readfirstlane_b32 s40, v3")
        a("s_sub_u32 s52, s52, 1")
        a("s_cmp_eq_u32 s52, 0")
        a("s_cbranch_scc1 K12_wpx")
        a("s_cmp_ge_u32 s40, 349")
        a("s_cbranch_scc0 K12_wpoll")
        a("K12_wpx:")
        a("s_mov_b64 exec, -1")
        a("s_lshr_b32 s30, s2, 3")
        a("v_lshlrev_b32 v4, 7, v1")
        for (base, size, reg) in ((W1F, 87 * 16384, 44), (W2F, 8 * 43 * 4096, 48)):
            a(f"s_add_u32 s{reg}, s14, {base}")
            a(f"s_addc_u32 s{reg+1}, s15, 0")
            a(f"s_mov_b32 s{reg+2}, {size}")
            a(f"s_mov_b32 s{reg+3}, 0x20000")
            per = -(-size // 32 // 128) * 128
            a(f"s_mul_i32 s31, s30, {per}")
            n = -(-per // 8192)
            for k in range(n):
                a(f"buffer_load_dword v{8 + k + (8 if reg == 48 else 0)}, v4, s[{reg}:{reg+3}], s31 offen")
                if k + 1 < n: a("s_add_u32 s31, s31, 8192")
    a("K2_END:   ; LINT-RESET")
    stamp_store(a, 0, 14, 24)
    a("K2_EXIT:")
    a.end_kernel(name, 208, 100)

G2T = 65536
SVT = G2T + 2048
STT = SVT + 3072
COF = STT + 2048
RED = COF + 4096
P_W = 64 * 272
K3_LDS = RED + 4 * P_W
FLAGS = 0x0638000

def k3(a):
    name = "k3_kernel"
    a.begin_kernel(name, 256, 256, K3_LDS)
    a("s_cmp_ge_u32 s2, 256")
    a("s_cbranch_scc1 K3_EXIT")
    stamp(a, 0)
    a("s_load_dwordx2 s[14:15], s[0:1], 128")
    a("s_load_dwordx2 s[12:13], s[0:1], 72")
    a("s_load_dwordx2 s[16:17], s[0:1], 88")
    a("s_load_dwordx2 s[18:19], s[0:1], 112")
    wave_id(a, 24, 1)
    a("v_and_b32 v1, 63, v0")
    a("s_and_b32 s25, s2, 7")
    a("s_lshr_b32 s26, s2, 3")
    a("s_lshr_b32 s27, s26, 3")
    a("s_lshl_b32 s25, s25, 2")
    a("s_add_u32 s25, s25, s27")
    a("s_and_b32 s26, s26, 7")
    a("s_and_b32 s22, s25, 3")
    a("s_lshl_b32 s23, s22, 1")
    a("s_add_u32 s23, s23, s26")
    a("s_lshl_b32 s23, s23, 1")
    a("s_and_b32 s23, s23, 15")
    a("s_mul_i32 s22, s22, 3")
    a("s_add_u32 s22, s22, s26")
    a("s_sub_u32 s21, s22, 11")
    a("s_cmp_ge_u32 s22, 11")
    a("s_cselect_b32 s22, s21, s22")
    if OPT.get('rot', '0') != '1':
        a("s_mov_b32 s23, 0")
        a("s_mov_b32 s22, 0")
    a("s_mul_i32 s27, s26, 11")
    a("s_min_u32 s27, s27, 76")
    a("s_cmp_lt_u32 s26, 6")
    a("s_cselect_b32 s28, 11, 10")
    a("s_mul_i32 s29, s24, 3")
    for i in range(3):
        a(f"s_add_u32 s30, s29, {i}")
        a("s_add_u32 s31, s30, s27")
        a("s_cmp_lt_u32 s30, s28")
        a(f"s_cselect_b32 s{32+i}, s31, 86")
    a("v_lshrrev_b32 v10, 3, v1")
    a("v_and_b32 v11, 6, v10")
    a("v_and_b32 v12, 7, v1")
    a("v_xor_b32 v11, v11, v12")
    a("v_lshlrev_b32 v11, 4, v11")
    a("v_lshl_add_u32 v11, v10, 7, v11")
    a("s_lshl_b32 s41, s24, 10")
    a("s_lshl_b32 s42, s25, 16")
    a("s_add_u32 s41, s41, s42")
    a(f"s_add_u32 s41, s41, {X2T}")
    a("s_lshl_b32 s42, s24, 10")
    a("v_lshlrev_b32 v13, 4, v1")
    for i in range(3):
        a(f"s_lshl_b32 s30, s{32+i}, 10")
        a(f"v_add_u32 v{126+i}, s30, v13")
    a("s_mov_b32 s47, s23")
    a("s_lshl_b32 s46, s23, 12")
    a("v_lshrrev_b32 v3, 4, v1")
    a("v_and_b32 v6, 15, v1")
    a("v_mov_b32 v7, s32")
    a("v_mov_b32 v8, s33")
    a("v_mov_b32 v9, s34")
    a("v_cmp_eq_u32 vcc, 1, v3")
    a("v_cmp_le_u32 s[52:53], 2, v3")
    a("s_nop 0")
    a("v_cndmask_b32 v7, v7, v8, vcc")
    a("v_cndmask_b32 v7, v7, v9, s[52:53]")
    a("v_min_u32 v7, 85, v7")
    a("v_lshl_add_u32 v7, v7, 4, v6")
    a("v_lshlrev_b32 v8, 2, v7")
    a(f"v_add_u32 v8, {SVP}, v8")
    a("v_lshlrev_b32 v9, 1, v7")
    a("s_waitcnt lgkmcnt(0)")
    wsfix(a, 14)
    a.srd(8, 14, WS_USED)
    for j in range(16):
        a("s_mov_b32 m0, s42")
        a("s_add_u32 s45, s41, s46")
        a("s_add_u32 s42, s42, 4096")
        a(f"buffer_load_dwordx4 v11, s[8:11], s45 offen" + XLD + " lds")
        a("s_add_u32 s46, s46, 4096")
        a("s_and_b32 s46, s46, 0xffff")
    a("s_lshl_b32 s30, s24, 2")
    a("s_lshl_b32 s42, s24, 12")
    a(f"s_add_u32 s42, s42, {RED}")
    for j in range(4):
        a(f"s_add_u32 s31, s30, {j}")
        a("s_add_u32 s31, s31, s23")
        a("s_and_b32 s31, s31, 15")
        a(f"s_mul_i32 s31, s31, {87*1024}")
        a(f"s_add_u32 s31, s31, {W1F + 86*1024}")
        a("s_mov_b32 m0, s42")
        a("s_add_u32 s42, s42, 1024")
        a(f"buffer_load_dwordx4 v13, s[8:11], s31 offen lds")
    def wload(ks):
        out = []
        for i in range(3):
            r = (ks * 3 + i) * 4
            pre = f"s_mul_i32 s44, s47, {87*1024}\ns_add_u32 s44, s44, {W1F}\n" if i == 0 else ""
            post = "\ns_add_u32 s47, s47, 1\ns_and_b32 s47, s47, 15" if i == 2 else ""
            out.append(pre + f"buffer_load_dwordx4 a[{r}:{r+3}], v{126+i}, s[8:11], s44 offen" + WLD + post)
        return out
    PRE = min(int(OPT.get('pre', '4')), int(OPT.get('deep', '5')))
    for ks in range(PRE):
        for x in wload(ks): a(x)
    a(f"s_mov_b32 s30, {SCAL}")
    a("s_load_dwordx4 s[36:39], s[14:15], s30")
    a(f"s_mov_b32 s31, {SCAL+16}")
    a("s_load_dword s40, s[14:15], s31")
    a("v_bfe_u32 v14, v1, 2, 2")
    a("v_lshl_add_u32 v14, v3, 2, v14")
    a("v_and_b32 v15, 6, v14")
    a("v_lshrrev_b32 v15, 1, v15")
    a("v_and_b32 v29, 3, v1")
    a("v_lshlrev_b32 v30, 7, v14")
    a("v_lshl_add_u32 v30, v29, 3, v30")
    for k in range(4):
        a(f"s_add_u32 s30, s24, {k}")
        a(f"s_and_b32 s{48+k}, s30, 3")
        a(f"v_xor_b32 v31, s{48+k}, v15")
        a(f"v_lshl_add_u32 v{20+k}, v31, 5, v30")
    a("v_xor_b32 v31, s24, v15")
    a("v_lshl_add_u32 v26, v31, 5, v30")
    a("s_lshl_b32 s30, s26, 1")
    a("s_sub_u32 s30, s30, s23")
    a("s_add_u32 s31, s30, 1")
    a("s_and_b32 s30, s30, 15")
    a("s_and_b32 s31, s31, 15")
    a("s_lshl_b32 s30, s30, 12")
    a("s_lshl_b32 s31, s31, 12")
    a("v_add_u32 v125, s31, v26")
    a("v_add_u32 v26, s30, v26")
    a(f"v_add_u32 v24, {RED}, v13")
    ACC = 160
    for r in range(ACC, ACC + 48): a(f"v_mov_b32 v{r}, 0")
    for r in range(96, 108): a(f"v_mov_b32 v{r}, 0")
    a(f"s_waitcnt vmcnt({3*PRE}) lgkmcnt(0)")
    stamp(a, 1)
    a("s_barrier")
    XF = [32, 48]
    def xreads(ks):
        b = XF[ks & 1]
        out = []
        for k in range(4):
            for hf in range(2):
                out.append(f"ds_read_b64_tr_b16 v[{b+4*k+2*hf}:{b+4*k+2*hf+1}], v{20+k} offset:{4096*ks + 2048*hf}")
        return out
    STATS = OPT.get('stats', 'in')
    GQ = [64, 72]
    if STATS == 'in':
        for ks in range(PRE, int(OPT.get('deep', '5'))):
            for x in wload(ks): a(x)
    def greads(ks):
        g = GQ[ks & 1]
        return [f"ds_read_b128 v[{g}:{g+3}], v24 offset:{1024*ks}"]
    for x in xreads(0) + greads(0): a(x)
    DEEP = int(OPT.get('deep', '5'))
    a("s_mul_i32 s58, s24, 11")
    a("s_cmp_eq_u32 s24, 3")
    a("s_cselect_b32 s58, 32, s58")
    a("s_mul_i32 s59, s26, 43")
    a("s_add_u32 s59, s59, s58")
    a("s_lshl_b32 s59, s59, 12")
    a(f"s_add_u32 s59, s59, {W2F}")
    a.srd(60, 14, WS_USED)
    a("s_cmp_eq_u32 s24, 3")
    a("s_cselect_b32 s65, 0, s10")
    a("s_mov_b32 s64, s22")
    drip = []
    for j in range(11):
        for t in range(4):
            r = (j * 4 + t) * 4
            pre = "s_lshl_b32 s66, s64, 12\ns_add_u32 s66, s66, s59\ns_cmp_eq_u32 s64, 0\ns_cselect_b32 s62, s65, s10\n" if t == 0 else ""
            post = "\ns_add_u32 s64, s64, 1\ns_cmp_eq_u32 s64, 11\ns_cselect_b32 s64, 0, s64" if t == 3 else ""
            drip.append(pre + f"buffer_load_dwordx4 a[{r}:{r+3}], v13, s[60:63], s66 offen offset:{1024*t}" + WLD + post)
    a("s_lshl_b32 s30, s26, 8")
    a(f"s_add_u32 s30, s30, {GBF if FUSED else MODF + 5*2048}")
    a("v_lshl_add_u32 v27, v3, 4, s30")
    a("s_lshl_b32 s30, s26, 7")
    a("v_lshl_add_u32 v28, v3, 3, s30")
    gbl = []
    for dt in range(4):
        gbl.append(f"global_load_dwordx4 v[{208+4*dt}:{211+4*dt}], v27, s[14:15] offset:{64*dt}")
    for dt in range(4):
        gbl.append(f"global_load_dwordx2 v[{224+2*dt}:{225+2*dt}], v28, s[16:17] offset:{32*dt}")
    issued = DEEP
    vm_after = []
    seq = [("W", ks) for ks in range(DEEP) for _ in range(3)]
    def vmwait(tag):
        last = max(i for i, t in enumerate(seq) if t == tag)
        return len(seq) - 1 - last
    sm_done = False
    smalls = []
    for kq in range(4):
        for v in range(3):
            smalls.append(f"global_load_dword v{112+kq*3+v}, v8, s[14:15]")
            if not (kq == 3 and v == 2): smalls.append("v_add_u32 v8, 5504, v8")
    smalls.append("global_load_ushort v124, v9, s[12:13]")
    for ks in range(16):
        b = XF[ks & 1]
        a(f"s_waitcnt vmcnt({vmwait(('W', ks))}) lgkmcnt(0)")
        mf = []
        for i in range(3):
            r = (ks * 3 + i) * 4
            for k in range(4):
                d = ACC + (i * 4 + k) * 4
                mf.append(f"v_mfma_f32_16x16x32_bf16 v[{d}:{d+3}], a[{r}:{r+3}], v[{b+4*k}:{b+4*k+3}], v[{d}:{d+3}]")
        va = []
        if ks + 1 < 16: va += xreads(ks + 1) + greads(ks + 1)
        if issued < 16:
            va += wload(issued); seq += [("W", issued)] * 3; issued += 1
        elif not sm_done:
            sm_done = True
            va += smalls + gbl; seq += [("S", 0)] * 13 + [("G", 0)] * 8
        else:
            for _ in range(3):
                va.append(drip.pop(0)); seq.append(("W2", 0))
        for q in range(4):
            va.append(f"v_lshlrev_b32 v{80+2*q}, 16, v{b+q}")
            va.append(f"v_and_b32 v{81+2*q}, 0xffff0000, v{b+q}")
        for q in range(8):
            va.append(f"v_mul_f32 v{80+q}, v{80+q}, v{80+q}")
        for q in range(4):
            va.append(f"v_cvt_pk_bf16_f32 v{88+q}, v{80+2*q}, v{81+2*q}")
        if ks > 0:
            gp = GQ[(ks - 1) & 1]
            a(f"v_mfma_f32_16x16x32_bf16 v[96:99], v[{gp}:{gp+3}], v[88:91], v[96:99]")
        per = -(-len(va) // 12)
        vi = 0
        for m in mf:
            a(m)
            for _ in range(per):
                if vi < len(va): a(va[vi]); vi += 1
    a("s_nop 1")
    a(f"v_mfma_f32_16x16x32_bf16 v[96:99], v[{GQ[1]}:{GQ[1]+3}], v[88:91], v[96:99]")
    stamp(a, 2)
    KEEP = int(OPT.get('keep', '0'))
    def dr(n=1, final=False):
        for _ in range(n):
            if drip and (final or len(drip) > KEEP): a(drip.pop(0))
    a(f"s_waitcnt vmcnt({vmwait(('S', 0))})")
    dr(1)
    for v in range(3):
        a(f"v_add_f32 v{112+v}, v{112+v}, v{115+v}")
        a(f"v_add_f32 v{118+v}, v{118+v}, v{121+v}")
        a(f"v_add_f32 v{112+v}, v{112+v}, v{118+v}")
    a("v_lshlrev_b32 v124, 16, v124")
    dr(2)
    a("s_mul_i32 s30, s24, 768")
    a(f"s_add_u32 s30, s30, {SVT}")
    a("v_lshlrev_b32 v2, 8, v3")
    a("v_lshl_add_u32 v2, v6, 2, v2")
    a("v_add_u32 v2, s30, v2")
    a("v_cmp_gt_u32 vcc, 48, v1")
    a("s_and_saveexec_b64 s[42:43], vcc")
    a("ds_write_b32 v2, v112")
    a("ds_write_b32 v2, v114 offset:64")
    a("ds_write_b32 v2, v113 offset:128")
    a("ds_write_b32 v2, v124 offset:192")
    a("s_mov_b64 exec, s[42:43]")
    dr(2)
    a("s_lshl_b32 s30, s24, 9")
    a(f"s_add_u32 s30, s30, {STT}")
    a("v_lshl_add_u32 v2, v6, 5, s30")
    a("v_add_f32 v97, v98, v99")
    a("v_cmp_eq_u32 vcc, 0, v3")
    a("s_and_saveexec_b64 s[42:43], vcc")
    a("ds_write_b64 v2, v[96:97] offset:24")
    a("s_mov_b64 exec, s[42:43]")
    a("s_cmp_eq_u32 s24, 3")
    a("s_cbranch_scc0 K3_nolin")
    a("v_cmp_eq_u32 s[52:53], 0, v3")
    a("v_cmp_eq_u32 s[54:55], 1, v3")
    for k in range(4):
        a(f"s_lshl_b32 s30, s{48+k}, 9")
        a(f"s_add_u32 s30, s30, {STT}")
        a(f"v_lshl_add_u32 v{60+k}, v6, 5, s30")
    a("s_mov_b64 s[42:43], exec")
    a("s_mov_b64 exec, s[52:53]")
    for k in range(4):
        d = ACC + (8 + k) * 4
        a(f"ds_write_b128 v{60+k}, v[{d}:{d+3}]")
    a("s_mov_b64 exec, s[54:55]")
    for k in range(4):
        d = ACC + (8 + k) * 4
        a(f"ds_write_b64 v{60+k}, v[{d}:{d+1}] offset:16")
    a("s_mov_b64 exec, s[42:43]")
    a("K3_nolin:")
    dr(2)
    a("s_waitcnt lgkmcnt(0)")
    a("s_barrier")
    dr(2)
    a("v_lshlrev_b32 v2, 5, v1")
    a(f"v_add_u32 v2, {STT}, v2")
    a("ds_read_b128 v[32:35], v2")
    a("ds_read_b128 v[36:39], v2 offset:16")
    a("s_mul_i32 s30, s24, 768")
    a(f"s_add_u32 s30, s30, {SVT}")
    a("v_lshl_add_u32 v25, v3, 4, s30")
    a("s_mov_b32 s56, 0xbdd2d3e2")
    a("s_mov_b32 s57, 0xc0135761")
    a("s_waitcnt lgkmcnt(0)")
    a("v_add_f32 v34, v34, v35")
    a("v_add_f32 v36, v36, v37")
    a("v_mul_f32 v32, 0x3b000000, v32")
    a("v_mul_f32 v38, 0x3b000000, v38")
    a("v_fma_f32 v38, -v32, v32, v38")
    a("v_max_f32 v38, 0, v38")
    a("v_cvt_pk_bf16_f32 v40, v32, v38")
    a("v_lshlrev_b32 v32, 16, v40")
    a("v_and_b32 v38, 0xffff0000, v40")
    a("v_add_f32 v38, 0x3727c5ac, v38")
    rbf(a, 38, 38)
    a("v_sqrt_f32 v38, v38")
    a("v_fma_f32 v33, -v32, s36, v33")
    dr(2)
    rbf(a, 38, 38)
    a("v_rcp_f32 v38, v38")
    a("v_mul_f32 v40, v32, v32")
    a("v_add_f32 v41, v32, v32")
    a("v_fma_f32 v39, -v41, v34, v39")
    a("v_fma_f32 v39, v40, s37, v39")
    a("v_fma_f32 v36, -v32, s38, v36")
    a("v_fma_f32 v33, v33, v38, s39")
    a("v_add_f32 v36, v36, v36")
    a("v_fma_f32 v39, v39, v38, v36")
    a("v_mul_f32 v33, 0x3b000000, v33")
    dr(2)
    a("v_fma_f32 v39, v39, v38, s40")
    a("v_mul_f32 v39, 0x3b000000, v39")
    a("v_fma_f32 v39, -v33, v33, v39")
    a("v_max_f32 v39, 0, v39")
    a("v_cvt_pk_bf16_f32 v40, v33, v39")
    a("v_lshlrev_b32 v33, 16, v40")
    a("v_and_b32 v39, 0xffff0000, v40")
    a("v_add_f32 v39, 0x3727c5ac, v39")
    rbf(a, 39, 39)
    a("v_sqrt_f32 v39, v39")
    a("s_nop 0")
    rbf(a, 39, 39)
    a("v_rcp_f32 v47, v39")
    a("s_lshl_b32 s30, s24, 10")
    a(f"s_add_u32 s30, s30, {COF}")
    a("v_mul_f32 v44, v47, v38")
    a("v_mul_f32 v46, -v47, v33")
    a("v_mul_f32 v45, -v44, v32")
    a("v_lshl_add_u32 v2, v1, 4, s30")
    a("ds_write_b128 v2, v[44:47]")
    a("s_waitcnt lgkmcnt(0)")
    for k in range(4):
        a(f"s_lshl_b32 s31, s{48+k}, 8")
        a("s_add_u32 s31, s31, s30")
        a(f"v_lshl_add_u32 v2, v6, 4, s31")
        a(f"ds_read_b128 v[{48+4*k}:{51+4*k}], v2")
    SVR = [64, 128, 144]
    for i in range(3):
        for st in range(4):
            a(f"ds_read_b128 v[{SVR[i]+4*st}:{SVR[i]+4*st+3}], v25 offset:{256*i + 64*st}")
    dr(2)
    stamp(a, 3)
    a("s_waitcnt lgkmcnt(0)")
    for i in range(3):
        if i > 0 and OPT.get('x_nodrip') != '1': dr(4)
        a(f"s_cmp_eq_u32 s{32+i}, 86")
        a(f"s_cbranch_scc1 K3_skip{i}")
        SV = SVR[i]
        a(f"s_add_u32 s30, s29, {i}")
        a("s_lshr_b32 s31, s30, 1")
        a("s_lshl_b32 s31, s31, 12")
        a("s_and_b32 s30, s30, 1")
        a("s_lshl_b32 s30, s30, 3")
        a("s_add_u32 s30, s30, s31")
        a(f"s_add_u32 s30, s30, {RED}")
        A_ = ACC + i * 16
        for k in range(4):
            c = 48 + 4 * k
            for p in range(2):
                t = 96 + 4 * k + 2 * p
                a(f"v_pk_fma_f32 v[{t}:{t+1}], v[{SV+2*p}:{SV+1+2*p}], v[{c}:{c+1}], v[{SV+12+2*p}:{SV+13+2*p}] op_sel:[0,1,0] op_sel_hi:[1,1,1]")
        if i == 0 and OPT.get('x_nodrip') != '1': dr(2)
        for k in range(4):
            c = 48 + 4 * k
            for p in range(2):
                t = 96 + 4 * k + 2 * p
                a(f"v_pk_fma_f32 v[{t}:{t+1}], v[{SV+4+2*p}:{SV+5+2*p}], v[{c+2}:{c+3}], v[{t}:{t+1}] op_sel_hi:[1,0,1]")
        if i == 0 and OPT.get('x_nodrip') != '1': dr(2)
        for k in range(4):
            c = 48 + 4 * k
            for p in range(2):
                t = 96 + 4 * k + 2 * p
                a(f"v_pk_fma_f32 v[{t}:{t+1}], v[{SV+8+2*p}:{SV+9+2*p}], v[{c+2}:{c+3}], v[{t}:{t+1}] op_sel:[0,1,0] op_sel_hi:[1,1,1]")
        if i == 0 and OPT.get('x_nodrip') != '1': dr(2)
        for k in range(4):
            c = 48 + 4 * k
            for p in range(2):
                x = A_ + 4 * k + 2 * p; t = 96 + 4 * k + 2 * p
                a(f"v_pk_fma_f32 v[{x}:{x+1}], v[{x}:{x+1}], v[{c}:{c+1}], v[{t}:{t+1}] op_sel_hi:[1,0,1]")
        if i == 0 and OPT.get('x_nodrip') != '1': dr(2)
        for j in range(8):
            x = A_ + 2 * j; t = 96 + 2 * j
            a(f"v_pk_mul_f32 v[{t}:{t+1}], v[{x}:{x+1}], v[{x}:{x+1}]")
        for j in range(8):
            t = 96 + 2 * j
            a(f"v_pk_fma_f32 v[{t}:{t+1}], v[{t}:{t+1}], s[56:57], s[56:57] op_sel:[0,0,1] op_sel_hi:[1,0,1]")
        if i == 0 and OPT.get('x_nodrip') != '1': dr(2)
        for j in range(8):
            x = A_ + 2 * j; t = 96 + 2 * j
            a(f"v_pk_mul_f32 v[{t}:{t+1}], v[{t}:{t+1}], v[{x}:{x+1}]")
        for j in range(16): a(f"v_exp_f32 v{96+j}, v{96+j}")
        if i == 0 and OPT.get('x_nodrip') != '1': dr(3)
        for j in range(8):
            t = 96 + 2 * j
            a(f"v_pk_add_f32 v[{t}:{t+1}], v[{t}:{t+1}], 1.0 op_sel_hi:[1,0]")
        for j in range(16): a(f"v_rcp_f32 v{96+j}, v{96+j}")
        if i == 0 and OPT.get('x_nodrip') != '1': dr(3)
        for j in range(8):
            x = A_ + 2 * j; t = 96 + 2 * j
            a(f"v_pk_mul_f32 v[{x}:{x+1}], v[{x}:{x+1}], v[{t}:{t+1}]")
        for k in range(4):
            a(f"v_cvt_pk_bf16_f32 v{112+2*k}, v{A_+4*k}, v{A_+4*k+1}")
            a(f"v_cvt_pk_bf16_f32 v{113+2*k}, v{A_+4*k+2}, v{A_+4*k+3}")
        if i == 1:
            a("s_cmp_eq_u32 s29, 9")
            a("s_cbranch_scc0 K3_paired1")
            a("s_lshr_b32 s31, s26, 1")
            a("s_add_u32 s31, s31, 40")
            a("s_mul_i32 s43, s25, 43")
            a("s_add_u32 s31, s31, s43")
            a("s_lshl_b32 s31, s31, 12")
            a("s_and_b32 s43, s26, 1")
            a("s_lshl_b32 s43, s43, 3")
            a("s_add_u32 s31, s31, s43")
            a(f"s_add_u32 s31, s31, {HF}")
            for k in range(4):
                a(f"s_lshl_b32 s43, s{48+k}, 10")
                a("s_add_u32 s43, s43, s31")
                a(f"buffer_store_dwordx2 v[{112+2*k}:{113+2*k}], v13, s[8:11], s43 offen sc1")
            a("s_branch K3_skip1")
            a("K3_paired1:")
        for k in range(4):
            a(f"s_lshl_b32 s31, s{48+k}, 10")
            a("s_add_u32 s31, s31, s30")
            a(f"v_add_u32 v2, s31, v13")
            a(f"ds_write_b64 v2, v[{112+2*k}:{113+2*k}]")
        a(f"K3_skip{i}:   ; LINT-RESET")
    stamp(a, 9)
    dr(99)
    a("s_waitcnt lgkmcnt(0)")
    a("s_barrier")
    stamp(a, 4)
    a("s_mul_i32 s30, s24, 5120")
    a("v_add_u32 v2, s30, v13")
    a(f"v_add_u32 v2, {RED}, v2")
    for q in range(5): a(f"ds_read_b128 v[{32+4*q}:{35+4*q}], v2 offset:{1024*q}")
    a("s_mul_i32 s31, s25, 43")
    a("s_mul_i32 s43, s26, 5")
    a("s_add_u32 s31, s31, s43")
    a("s_lshl_b32 s31, s31, 12")
    a("s_add_u32 s31, s31, s30")
    a(f"s_add_u32 s31, s31, {HF}")
    for q in range(5):
        a(f"s_waitcnt lgkmcnt({4-q})")
        if q == 4: a("s_add_u32 s31, s31, 4096")
        a(f"buffer_store_dwordx4 v[{32+4*q}:{35+4*q}], v13, s[8:11], s31 offen offset:{1024*(q&3)} sc1")
    for r in range(176, 240): a(f"v_accvgpr_write_b32 a{r}, 0")
    a(f"s_waitcnt vmcnt(0)")
    stamp(a, 5)
    a("s_barrier")
    a("s_cmp_lg_u32 s24, 0")
    a("s_cbranch_scc1 K3_wait")
    a("s_lshl_b32 s30, s25, 7")
    a(f"s_add_u32 s30, s30, {FLAGS}")
    a("v_mov_b32 v2, s30")
    a("v_mov_b32 v4, 1")
    a("s_mov_b64 s[42:43], exec")
    a("s_mov_b64 exec, 1")
    a("global_atomic_add v4, v2, v4, s[14:15] sc0 sc1")
    a("s_waitcnt vmcnt(0)")
    a("v_readfirstlane_b32 s30, v4")
    a("s_cmp_eq_u32 s30, 7")
    a("s_cbranch_scc1 K3_pollx")
    a("s_mov_b32 s31, 0x100000")
    a("K3_poll:")
    a("buffer_load_dword v5, v2, s[8:11], 0 offen sc1")
    a("s_waitcnt vmcnt(0)")
    a("v_readfirstlane_b32 s30, v5")
    a("s_sub_u32 s31, s31, 1")
    a("s_cmp_eq_u32 s31, 0")
    a("s_cbranch_scc1 K3_pollx")
    a("s_cmp_ge_u32 s30, 8")
    a("s_cbranch_scc0 K3_poll")
    a("K3_pollx:")
    a("s_mov_b64 exec, s[42:43]")
    a("K3_wait:   ; LINT-RESET")
    a("s_barrier")
    stamp(a, 6)
    a("s_mul_i32 s57, s25, 43")
    a("s_add_u32 s57, s57, s58")
    a("s_lshl_b32 s57, s57, 12")
    a(f"s_add_u32 s57, s57, {HF}")
    a("s_mov_b32 s64, s22")
    late = list(drip); drip.clear()
    hl = []
    for j in range(11):
        for t in range(4):
            r = 32 + (j * 4 + t) * 4
            pre = "s_lshl_b32 s56, s64, 12\ns_add_u32 s56, s56, s57\n" if t == 0 else ""
            post = "\ns_add_u32 s64, s64, 1\ns_cmp_eq_u32 s64, 11\ns_cselect_b32 s64, 0, s64" if t == 3 else ""
            hl.append((("H", j), pre + f"buffer_load_dwordx4 v[{r}:{r+3}], v13, s[8:11], s56 offen offset:{1024*t}" + HLD + post))
    pos = 20
    lt_ = [(("L", 0), x) for x in late]
    hl = hl[:pos] + lt_ + hl[pos:]
    HD = int(OPT.get('hd', '16'))
    qseq = []
    def hissue():
        tag, x = hl.pop(0); a(x); qseq.append(tag)
    for _ in range(HD): hissue()
    for dt in range(4):
        a(f"ds_read_b64_tr_b16 v[{16+2*dt}:{17+2*dt}], v{26 if dt < 2 else 125} offset:{2048*(dt&1)}")
    for j in range(11):
        need = [i for i, t in enumerate(qseq) if t == ("H", j)]
        assert len(need) == 4
        last = max(need)
        if late and j >= 9: last = max(last, max(i for i, t in enumerate(qseq) if t == ("L", 0)))
        a(f"s_waitcnt vmcnt({len(qseq) - 1 - last})")
        q = 0
        for dt in range(4):
            for lt in range(4):
                d = 176 + (dt * 4 + lt) * 4
                ar = (j * 4 + dt) * 4
                br = 32 + (j * 4 + lt) * 4
                a(f"v_mfma_f32_16x16x32_bf16 a[{d}:{d+3}], a[{ar}:{ar+3}], v[{br}:{br+3}], a[{d}:{d+3}]")
                if q % 4 == 0 and hl: hissue()
                q += 1
    stamp(a, 7)
    a("v_mul_u32_u24 v5, 272, v6")
    a("v_lshl_add_u32 v5, v3, 4, v5")
    a(f"s_mul_i32 s30, s24, {P_W}")
    a(f"s_add_u32 s30, s30, {RED}")
    a("v_add_u32 v7, s30, v5")
    a("s_nop 4")
    for dt in range(4):
        for lt in range(4):
            d = 176 + (dt * 4 + lt) * 4
            a(f"ds_write_b128 v7, a[{d}:{d+3}] offset:{lt*16*272 + dt*64}")
    a(f"s_mul_i32 s30, s24, {16*272}")
    a(f"s_add_u32 s30, s30, {RED}")
    a("v_add_u32 v7, s30, v5")
    a("s_waitcnt lgkmcnt(0)")
    a("s_barrier")
    stamp(a, 8)
    for dt in range(4):
        for w in range(4):
            r = 32 + (dt * 4 + w) * 4
            a(f"ds_read_b128 v[{r}:{r+3}], v7 offset:{w*P_W + dt*64}")
    a.srd(40, 18, 2048 * 512 * 2)
    a("s_lshl_b32 s30, s25, 16")
    a("s_lshl_b32 s31, s24, 14")
    a("s_add_u32 s30, s30, s31")
    a("s_lshl_b32 s31, s26, 7")
    a("s_add_u32 s30, s30, s31")
    a("v_lshlrev_b32 v9, 10, v6")
    a("v_lshl_add_u32 v9, v3, 3, v9")
    a("v_add_u32 v9, s30, v9")
    for dt in range(4):
        a(f"s_waitcnt lgkmcnt({4*(3-dt)})")
        r = 32 + dt * 16
        for p in range(2):
            a(f"v_pk_add_f32 v[{r+2*p}:{r+2*p+1}], v[{r+2*p}:{r+2*p+1}], v[{r+4+2*p}:{r+5+2*p}]")
            a(f"v_pk_add_f32 v[{r+8+2*p}:{r+9+2*p}], v[{r+8+2*p}:{r+9+2*p}], v[{r+12+2*p}:{r+13+2*p}]")
        for p in range(2):
            a(f"v_pk_add_f32 v[{r+2*p}:{r+2*p+1}], v[{r+2*p}:{r+2*p+1}], v[{r+8+2*p}:{r+9+2*p}]")
        for q in range(2):
            a(f"v_lshlrev_b32 v{120+2*q}, 16, v{224+2*dt+q}")
            a(f"v_and_b32 v{121+2*q}, 0xffff0000, v{224+2*dt+q}")
            a(f"v_lshlrev_b32 v{124+2*q}, 16, v{16+2*dt+q}")
            a(f"v_and_b32 v{125+2*q}, 0xffff0000, v{16+2*dt+q}")
        for p in range(2):
            a(f"v_pk_add_f32 v[{r+2*p}:{r+2*p+1}], v[{r+2*p}:{r+2*p+1}], v[{120+2*p}:{121+2*p}]")
        for p in range(2):
            a(f"v_pk_fma_f32 v[{r+2*p}:{r+2*p+1}], v[{r+2*p}:{r+2*p+1}], v[{208+4*dt+2*p}:{209+4*dt+2*p}], v[{124+2*p}:{125+2*p}]")
        a(f"v_cvt_pk_bf16_f32 v{24+2*dt}, v{r}, v{r+1}")
        a(f"v_cvt_pk_bf16_f32 v{25+2*dt}, v{r+2}, v{r+3}")
        a(f"buffer_store_dwordx2 v[{24+2*dt}:{25+2*dt}], v9, s[40:43], 0 offen offset:{32*dt}")
    a("K3_END:   ; LINT-RESET")
    stamp_store(a, KID3, 14, 24)
    a("K3_EXIT:")
    a.end_kernel(name, 256 + 240, 100, accum=256)


W8_G2T = 65536
W8_SVT = W8_G2T + 2048
W8_STT = W8_SVT + 3072
W8_COF = W8_STT + 4096
W8_RED = W8_COF + 8192
W8_STG = W8_RED + 49152
W8_LDS = W8_RED + 4 * P_W
assert W8_STG + 20480 <= W8_LDS
RING = 32768

def k3w(a):
    name = "k3_kernel"
    a.begin_kernel(name, 256, 512, W8_LDS)
    a("s_cmp_ge_u32 s2, 256")
    a("s_cbranch_scc1 K3_EXIT")
    stamp(a, 0)
    a("s_load_dwordx2 s[14:15], s[0:1], 128")
    a("s_load_dwordx2 s[12:13], s[0:1], 72")
    a("s_load_dwordx2 s[16:17], s[0:1], 88")
    a("s_load_dwordx2 s[18:19], s[0:1], 112")
    wave_id(a, 24, 1)
    a("v_and_b32 v1, 63, v0")
    a("s_and_b32 s20, s24, 3")
    a("s_lshr_b32 s21, s24, 2")
    a("s_and_b32 s25, s2, 7")
    a("s_lshr_b32 s26, s2, 3")
    a("s_lshr_b32 s27, s26, 3")
    a("s_lshl_b32 s25, s25, 2")
    a("s_add_u32 s25, s25, s27")
    a("s_and_b32 s26, s26, 7")
    a("s_mul_i32 s27, s26, 11")
    a("s_min_u32 s27, s27, 76")
    a("s_cmp_lt_u32 s26, 6")
    a("s_cselect_b32 s28, 11, 10")
    a("s_mul_i32 s29, s20, 3")
    for i in range(3):
        a(f"s_add_u32 s30, s29, {i}")
        a("s_add_u32 s31, s30, s27")
        a("s_cmp_lt_u32 s30, s28")
        a(f"s_cselect_b32 s{32+i}, s31, 86")
    a("v_lshrrev_b32 v10, 3, v1")
    a("v_and_b32 v11, 6, v10")
    a("v_and_b32 v12, 7, v1")
    a("v_xor_b32 v11, v11, v12")
    a("v_lshlrev_b32 v11, 4, v11")
    a("v_lshl_add_u32 v11, v10, 7, v11")
    a("s_lshl_b32 s42, s24, 10")
    a("s_lshl_b32 s41, s25, 16")
    a("s_add_u32 s41, s41, s42")
    a(f"s_add_u32 s41, s41, {X2T}")
    a("v_lshlrev_b32 v2, 2, v0")
    a(f"v_add_u32 v4, {G2F}, v2")
    a("v_lshlrev_b32 v13, 4, v1")
    for i in range(3):
        a(f"s_lshl_b32 s30, s{32+i}, 10")
        a(f"v_add_u32 v{14+i}, s30, v13")
    a(f"s_mul_i32 s44, s21, {8*87*1024}")
    a(f"s_add_u32 s44, s44, {W1F}")
    a("s_waitcnt lgkmcnt(0)")
    wsfix(a, 14)
    a.srd(8, 14, WS_USED)
    a("global_load_dword v5, v4, s[14:15]")
    for j in range(8):
        a("s_mov_b32 m0, s42")
        a("s_add_u32 s42, s42, 8192")
        a(f"buffer_load_dwordx4 v11, s[8:11], s41 offen lds")
        a(f"s_add_u32 s41, s41, 8192")
    WR = 208
    DEEP = 3
    def wload(j):
        out = []
        for i in range(3):
            r = WR + (j % DEEP) * 12 + 4 * i
            out.append(f"buffer_load_dwordx4 v[{r}:{r+3}], v{14+i}, s[8:11], s44 offen")
        out.append(f"s_add_u32 s44, s44, {87*1024}")
        return out
    for j in range(2):
        for x in wload(j): a(x)
    a(f"s_mov_b32 s30, {SCAL}")
    a("s_load_dwordx4 s[36:39], s[14:15], s30")
    a(f"s_mov_b32 s31, {SCAL+16}")
    a("s_load_dword s40, s[14:15], s31")
    a("v_lshrrev_b32 v3, 4, v1")
    a("v_and_b32 v6, 15, v1")
    a("v_bfe_u32 v18, v1, 2, 2")
    a("v_lshl_add_u32 v18, v3, 2, v18")
    a("v_and_b32 v19, 6, v18")
    a("v_lshrrev_b32 v19, 1, v19")
    a("v_and_b32 v29, 3, v1")
    a("v_lshlrev_b32 v30, 7, v18")
    a("v_lshl_add_u32 v30, v29, 3, v30")
    a("s_lshl_b32 s45, s21, 15")
    a("s_lshl_b32 s46, s21, 1")
    a("s_add_u32 s46, s46, s20")
    for k in range(4):
        a(f"s_add_u32 s30, s46, {k}")
        a(f"s_and_b32 s{48+k}, s30, 3")
        a(f"v_xor_b32 v31, s{48+k}, v19")
        a(f"v_lshl_add_u32 v{20+k}, v31, 5, v30")
        a(f"v_add_u32 v{20+k}, s45, v{20+k}")
    a("v_xor_b32 v31, s20, v19")
    a("v_lshl_add_u32 v26, v31, 5, v30")
    a("s_lshl_b32 s30, s26, 13")
    a("s_lshl_b32 s31, s21, 12")
    a("s_add_u32 s30, s30, s31")
    a("v_add_u32 v26, s30, v26")
    a("s_lshl_b32 s30, s21, 10")
    a(f"s_add_u32 s30, s30, {W8_G2T}")
    a("v_lshl_add_u32 v24, v3, 4, s30")
    ACC = 160
    for r in range(ACC, ACC + 48): a(f"v_mov_b32 v{r}, 0")
    for r in range(96, 108): a(f"v_mov_b32 v{r}, 0")
    a("s_waitcnt vmcnt(14)")
    a(f"v_add_u32 v2, {W8_G2T}, v2")
    a("ds_write_b32 v2, v5")
    a("v_mov_b32 v7, s32")
    a("v_mov_b32 v8, s33")
    a("v_mov_b32 v9, s34")
    a("v_cmp_eq_u32 vcc, 1, v3")
    a("v_cmp_le_u32 s[52:53], 2, v3")
    a("s_nop 0")
    a("v_cndmask_b32 v7, v7, v8, vcc")
    a("v_cndmask_b32 v7, v7, v9, s[52:53]")
    a("v_min_u32 v7, 85, v7")
    a("v_lshl_add_u32 v7, v7, 4, v6")
    a("v_lshlrev_b32 v8, 2, v7")
    a(f"v_add_u32 v8, {SVP}, v8")
    a("v_lshlrev_b32 v9, 1, v7")
    a("s_mul_i32 s58, s20, 11")
    a("s_cmp_eq_u32 s20, 3")
    a("s_cselect_b32 s58, 32, s58")
    a("s_mul_i32 s59, s26, 43")
    a("s_add_u32 s59, s59, s58")
    a("s_lshl_b32 s59, s59, 12")
    a("s_lshl_b32 s30, s21, 11")
    a("s_add_u32 s59, s59, s30")
    a(f"s_add_u32 s59, s59, {W2F}")
    a.srd(60, 14, WS_USED)
    a("s_cmp_eq_u32 s20, 3")
    a("s_cselect_b32 s62, 0, s10")
    W2R = 108
    def w2reg(j, t):
        idx = 2 * j + t
        return 208 + 4 * idx if idx < 9 else 108 + 4 * (idx - 9)
    drip = []
    items = [(j, t) for j in range(11) for t in range(2)]
    s59off = {}
    late = [it for it in items if 2 * it[0] + it[1] < 9]
    early = [it for it in items if 2 * it[0] + it[1] >= 9]
    for (j, t) in early + late:
        srd = "s[60:63]" if j == 0 else "s[8:11]"
        r = w2reg(j, t)
        drip.append(f"s_add_u32 s57, s59, {4096*j}\nbuffer_load_dwordx4 v[{r}:{r+3}], v13, {srd}, s57 offen offset:{1024*t}")
    a("s_lshl_b32 s30, s26, 8")
    a("s_lshl_b32 s31, s21, 7")
    a("s_add_u32 s30, s30, s31")
    a(f"s_add_u32 s30, s30, {GBF}")
    a("v_lshl_add_u32 v27, v3, 4, s30")
    a("s_lshl_b32 s30, s26, 7")
    a("s_lshl_b32 s31, s21, 6")
    a("s_add_u32 s30, s30, s31")
    a("v_lshl_add_u32 v28, v3, 3, s30")
    gbl = [f"global_load_dwordx4 v[{244+4*t}:{247+4*t}], v27, s[14:15] offset:{64*t}" for t in range(2)]
    gbl += [f"global_load_dwordx2 v[{252+2*t}:{253+2*t}], v28, s[16:17] offset:{32*t}" for t in range(2)]
    a(f"s_waitcnt vmcnt(6) lgkmcnt(0)")
    stamp(a, 1)
    a("s_barrier")
    XF = [32, 48]
    GQ = [64, 72]
    def xreads(j):
        b = XF[j & 1]; g = GQ[j & 1]
        out = []
        for k in range(4):
            for hf in range(2):
                out.append(f"ds_read_b64_tr_b16 v[{b+4*k+2*hf}:{b+4*k+2*hf+1}], v{20+k} offset:{4096*j + 2048*hf}")
        out.append(f"ds_read_b128 v[{g}:{g+3}], v24 offset:{128*j}")
        out.append(f"ds_read_b128 v[{g+4}:{g+7}], v24 offset:{128*j+64}")
        return out
    for x in xreads(0): a(x)
    for x in wload(2): a(x)
    seq = [("W", j) for j in range(3) for _ in range(3)]
    def vmwait(tag):
        last = max(i for i, t in enumerate(seq) if t == tag)
        return len(seq) - 1 - last
    smalls = []
    for kq in range(4):
        for v in range(3):
            smalls.append(f"global_load_dword v{112+kq*3+v}, v8, s[14:15]")
            if not (kq == 3 and v == 2): smalls.append("v_add_u32 v8, 5504, v8")
    smalls.append("global_load_ushort v124, v9, s[12:13]")
    issued = 3
    for j in range(8):
        b = XF[j & 1]; g = GQ[j & 1]
        a(f"s_waitcnt vmcnt({vmwait(('W', j))}) lgkmcnt(0)")
        mf = []
        for i in range(3):
            r = WR + (j % DEEP) * 12 + 4 * i
            for k in range(4):
                d = ACC + (i * 4 + k) * 4
                mf.append(f"v_mfma_f32_16x16x32_bf16 v[{d}:{d+3}], v[{r}:{r+3}], v[{b+4*k}:{b+4*k+3}], v[{d}:{d+3}]")
        va = []
        if j + 1 < 8: va += xreads(j + 1)
        post = []
        if issued < 8:
            post = wload(issued); seq += [("W", issued)] * 3; issued += 1
        elif j == 6:
            post = smalls + gbl; seq += [("S", 0)] * 13 + [("G", 0)] * 4
        for q_ in range(4):
            va.append(f"v_lshlrev_b32 v{80+2*q_}, 16, v{b+q_}")
            va.append(f"v_and_b32 v{81+2*q_}, 0xffff0000, v{b+q_}")
        for q_ in range(8): va.append(f"v_mul_f32 v{80+q_}, v{80+q_}, v{80+q_}")
        for q_ in range(8):
            va.append(f"v_add_f32 v{96+(q_&3)}, v{96+(q_&3)}, v{80+q_}")
            va.append(f"v_fmac_f32 v{100+q_}, v{80+q_}, v{g+q_}")
        per = -(-len(va) // 12)
        vi = 0
        for m in mf:
            a(m)
            for _ in range(per):
                if vi < len(va): a(va[vi]); vi += 1
        for x in post: a(x)
    stamp(a, 2)
    def dr(n=1):
        for _ in range(n):
            if drip: a(drip.pop(0))
    a(f"s_mul_i32 s30, s24, 6144")
    a(f"s_add_u32 s30, s30, {W8_RED}")
    a("v_add_u32 v2, s30, v13")
    a("s_xor_b32 s31, s24, 4")
    a(f"s_mul_i32 s31, s31, 6144")
    a(f"s_add_u32 s31, s31, {W8_RED}")
    a("v_add_u32 v25, s31, v13")
    a("v_pk_add_f32 v[96:97], v[96:97], v[98:99]")
    a("v_add_f32 v96, v96, v97")
    a("v_pk_add_f32 v[100:101], v[100:101], v[102:103]")
    a("v_pk_add_f32 v[104:105], v[104:105], v[106:107]")
    a("v_pk_add_f32 v[100:101], v[100:101], v[104:105]")
    a("v_add_f32 v97, v100, v101")
    for i in range(3):
        for k in (2, 3):
            d = ACC + (i * 4 + k) * 4
            a(f"ds_write_b128 v2, v[{d}:{d+3}] offset:{(i*2 + k - 2)*1024}")
    a("v_mov_b32 v98, v96")
    a("v_mov_b32 v99, v97")
    a("s_nop 0")
    a("v_permlane16_swap_b32 v96, v98")
    a("v_permlane16_swap_b32 v97, v99")
    dr(1)
    a("v_add_f32 v96, v96, v98")
    a("v_add_f32 v97, v97, v99")
    a("v_mov_b32 v98, v96")
    a("v_mov_b32 v99, v97")
    a("s_nop 0")
    a("v_permlane32_swap_b32 v96, v98")
    a("v_permlane32_swap_b32 v97, v99")
    a("s_lshl_b32 s30, s48, 10")
    a("s_lshl_b32 s31, s21, 5")
    a("s_add_u32 s30, s30, s31")
    a(f"s_add_u32 s30, s30, {W8_STT}")
    a("v_add_f32 v96, v96, v98")
    a("v_add_f32 v97, v97, v99")
    a("v_lshl_add_u32 v2, v6, 6, s30")
    a("ds_write_b64 v2, v[96:97] offset:24")
    a("s_cmp_eq_u32 s20, 3")
    a("s_cbranch_scc0 K3_nolin")
    a("v_cmp_eq_u32 s[52:53], 0, v3")
    a("v_cmp_eq_u32 s[54:55], 1, v3")
    for k in range(4):
        a(f"s_lshl_b32 s30, s{48+k}, 10")
        a("s_lshl_b32 s31, s21, 5")
        a("s_add_u32 s30, s30, s31")
        a(f"s_add_u32 s30, s30, {W8_STT}")
        a(f"v_lshl_add_u32 v{64+k}, v6, 6, s30")
    a("s_mov_b64 exec, s[52:53]")
    for k in range(4):
        d = ACC + (8 + k) * 4
        a(f"ds_write_b128 v{64+k}, v[{d}:{d+3}]")
    a("s_mov_b64 exec, s[54:55]")
    for k in range(4):
        d = ACC + (8 + k) * 4
        a(f"ds_write_b64 v{64+k}, v[{d}:{d+1}] offset:16")
    a("s_mov_b64 exec, -1")
    a("K3_nolin:")
    a("s_cmp_eq_u32 s21, 0")
    a("s_cbranch_scc0 K3_nosv")
    a(f"s_waitcnt vmcnt({vmwait(('S', 0)) + 1})")
    for v in range(3):
        a(f"v_add_f32 v{112+v}, v{112+v}, v{115+v}")
        a(f"v_add_f32 v{118+v}, v{118+v}, v{121+v}")
        a(f"v_add_f32 v{112+v}, v{112+v}, v{118+v}")
    a("v_lshlrev_b32 v124, 16, v124")
    a("s_mul_i32 s30, s20, 768")
    a(f"s_add_u32 s30, s30, {W8_SVT}")
    a("v_lshlrev_b32 v2, 8, v3")
    a("v_lshl_add_u32 v2, v6, 2, v2")
    a("v_add_u32 v2, s30, v2")
    a("v_cmp_gt_u32 vcc, 48, v1")
    a("s_and_saveexec_b64 s[42:43], vcc")
    a("ds_write_b32 v2, v112")
    a("ds_write_b32 v2, v114 offset:64")
    a("ds_write_b32 v2, v113 offset:128")
    a("ds_write_b32 v2, v124 offset:192")
    a("s_mov_b64 exec, s[42:43]")
    a("K3_nosv:   ; LINT-RESET")
    a("s_waitcnt vmcnt(1) lgkmcnt(0)")
    a("s_barrier")
    for i in range(3):
        for k in range(2):
            r = 64 + (i * 2 + k) * 4
            a(f"ds_read_b128 v[{r}:{r+3}], v25 offset:{(i*2 + k)*1024}")
    a("v_lshlrev_b32 v2, 6, v1")
    a(f"v_add_u32 v2, {W8_STT}, v2")
    a("ds_read_b128 v[32:35], v2")
    a("ds_read_b128 v[36:39], v2 offset:16")
    a("ds_read_b128 v[40:43], v2 offset:32")
    a("ds_read_b128 v[44:47], v2 offset:48")
    dr(2)
    a("s_waitcnt lgkmcnt(4)")
    for i in range(3):
        for k in range(2):
            d = ACC + (i * 4 + k) * 4; r = 64 + (i * 2 + k) * 4
            a(f"v_pk_add_f32 v[{d}:{d+1}], v[{d}:{d+1}], v[{r}:{r+1}]")
            a(f"v_pk_add_f32 v[{d+2}:{d+3}], v[{d+2}:{d+3}], v[{r+2}:{r+3}]")
    a("s_waitcnt lgkmcnt(0)")
    for r in range(0, 8, 2): a(f"v_pk_add_f32 v[{32+r}:{33+r}], v[{32+r}:{33+r}], v[{40+r}:{41+r}]")
    dr(1)
    a("v_add_f32 v34, v34, v35")
    a("v_add_f32 v36, v36, v37")
    a("v_mul_f32 v32, 0x3b000000, v32")
    a("v_mul_f32 v38, 0x3b000000, v38")
    a("v_fma_f32 v38, -v32, v32, v38")
    a("v_max_f32 v38, 0, v38")
    a("v_cvt_pk_bf16_f32 v40, v32, v38")
    a("v_lshlrev_b32 v32, 16, v40")
    a("v_and_b32 v38, 0xffff0000, v40")
    a("v_add_f32 v38, 0x3727c5ac, v38")
    rbf(a, 38, 38)
    a("v_sqrt_f32 v38, v38")
    a("v_fma_f32 v33, -v32, s36, v33")
    rbf(a, 38, 38)
    a("v_rcp_f32 v38, v38")
    a("v_mul_f32 v40, v32, v32")
    a("v_add_f32 v41, v32, v32")
    a("v_fma_f32 v39, -v41, v34, v39")
    a("v_fma_f32 v39, v40, s37, v39")
    a("v_fma_f32 v36, -v32, s38, v36")
    a("v_fma_f32 v33, v33, v38, s39")
    a("v_add_f32 v36, v36, v36")
    a("v_fma_f32 v39, v39, v38, v36")
    a("v_mul_f32 v33, 0x3b000000, v33")
    dr(1)
    a("v_fma_f32 v39, v39, v38, s40")
    a("v_mul_f32 v39, 0x3b000000, v39")
    a("v_fma_f32 v39, -v33, v33, v39")
    a("v_max_f32 v39, 0, v39")
    a("v_cvt_pk_bf16_f32 v40, v33, v39")
    a("v_lshlrev_b32 v33, 16, v40")
    a("v_and_b32 v39, 0xffff0000, v40")
    a("v_add_f32 v39, 0x3727c5ac, v39")
    rbf(a, 39, 39)
    a("v_sqrt_f32 v39, v39")
    a("s_nop 0")
    rbf(a, 39, 39)
    a("v_rcp_f32 v47, v39")
    a("s_lshl_b32 s30, s24, 10")
    a(f"s_add_u32 s30, s30, {W8_COF}")
    a("v_mul_f32 v44, v47, v38")
    a("v_mul_f32 v46, -v47, v33")
    a("v_mul_f32 v45, -v44, v32")
    a("v_lshl_add_u32 v2, v1, 4, s30")
    a("ds_write_b128 v2, v[44:47]")
    a("s_waitcnt lgkmcnt(0)")
    for k in range(2):
        a(f"s_lshl_b32 s31, s{48+k}, 8")
        a("s_add_u32 s31, s31, s30")
        a(f"v_lshl_add_u32 v2, v6, 4, s31")
        a(f"ds_read_b128 v[{48+4*k}:{51+4*k}], v2")
    a("s_mul_i32 s30, s20, 768")
    a(f"s_add_u32 s30, s30, {W8_SVT}")
    a("v_lshl_add_u32 v25, v3, 4, s30")
    a("s_mov_b32 s54, 0xbdd2d3e2")
    a("s_mov_b32 s55, 0xc0135761")
    dr(2)
    stamp(a, 3)
    for i in range(3):
        a(f"s_cmp_eq_u32 s{32+i}, 86")
        a(f"s_cbranch_scc1 K3_skip{i}")
        for st in range(4):
            a(f"ds_read_b128 v[{64+4*st}:{67+4*st}], v25 offset:{256*i + 64*st}")
        a(f"s_add_u32 s30, s29, {i}")
        a("s_lshr_b32 s31, s30, 1")
        a("s_lshl_b32 s31, s31, 12")
        a("s_and_b32 s30, s30, 1")
        a("s_lshl_b32 s30, s30, 3")
        a("s_add_u32 s30, s30, s31")
        a(f"s_add_u32 s30, s30, {W8_STG}")
        a("s_waitcnt lgkmcnt(0)")
        A_ = ACC + i * 16
        for (src, co, sel) in ((64, 0, "op_sel:[0,1,0] op_sel_hi:[1,1,1]"), (68, 2, "op_sel_hi:[1,0,1]"), (72, 2, "op_sel:[0,1,0] op_sel_hi:[1,1,1]")):
            for k in range(2):
                c = 48 + 4 * k
                for p in range(2):
                    t = 80 + 4 * k + 2 * p
                    s2 = f"v[{76+2*p}:{77+2*p}]" if src == 64 else f"v[{t}:{t+1}]"
                    a(f"v_pk_fma_f32 v[{t}:{t+1}], v[{src+2*p}:{src+2*p+1}], v[{c+co}:{c+co+1}], {s2} {sel}")
            if i == 0: dr(1)
        for k in range(2):
            c = 48 + 4 * k
            for p in range(2):
                x = A_ + 4 * k + 2 * p; t = 80 + 4 * k + 2 * p
                a(f"v_pk_fma_f32 v[{x}:{x+1}], v[{x}:{x+1}], v[{c}:{c+1}], v[{t}:{t+1}] op_sel_hi:[1,0,1]")
        for j in range(4):
            x = A_ + 2 * j; t = 80 + 2 * j
            a(f"v_pk_mul_f32 v[{t}:{t+1}], v[{x}:{x+1}], v[{x}:{x+1}]")
        for j in range(4):
            t = 80 + 2 * j
            a(f"v_pk_fma_f32 v[{t}:{t+1}], v[{t}:{t+1}], s[54:55], s[54:55] op_sel:[0,0,1] op_sel_hi:[1,0,1]")
        for j in range(4):
            x = A_ + 2 * j; t = 80 + 2 * j
            a(f"v_pk_mul_f32 v[{t}:{t+1}], v[{t}:{t+1}], v[{x}:{x+1}]")
        if i == 0: dr(1)
        for j in range(8): a(f"v_exp_f32 v{80+j}, v{80+j}")
        for j in range(4):
            t = 80 + 2 * j
            a(f"v_pk_add_f32 v[{t}:{t+1}], v[{t}:{t+1}], 1.0 op_sel_hi:[1,0]")
        for j in range(8): a(f"v_rcp_f32 v{80+j}, v{80+j}")
        if i == 0: dr(1)
        for j in range(4):
            x = A_ + 2 * j; t = 80 + 2 * j
            a(f"v_pk_mul_f32 v[{x}:{x+1}], v[{x}:{x+1}], v[{t}:{t+1}]")
        for k in range(2):
            a(f"v_cvt_pk_bf16_f32 v{88+2*k}, v{A_+4*k}, v{A_+4*k+1}")
            a(f"v_cvt_pk_bf16_f32 v{89+2*k}, v{A_+4*k+2}, v{A_+4*k+3}")
        if i == 1:
            a("s_cmp_eq_u32 s29, 9")
            a("s_cbranch_scc0 K3_paired1")
            a("s_lshr_b32 s31, s26, 1")
            a("s_add_u32 s31, s31, 40")
            a("s_mul_i32 s43, s25, 43")
            a("s_add_u32 s31, s31, s43")
            a("s_lshl_b32 s31, s31, 12")
            a("s_and_b32 s43, s26, 1")
            a("s_lshl_b32 s43, s43, 3")
            a("s_add_u32 s31, s31, s43")
            a(f"s_add_u32 s31, s31, {HF}")
            for k in range(2):
                a(f"s_lshl_b32 s43, s{48+k}, 10")
                a("s_add_u32 s43, s43, s31")
                a(f"buffer_store_dwordx2 v[{88+2*k}:{89+2*k}], v13, s[8:11], s43 offen sc1")
            a("s_branch K3_skip1")
            a("K3_paired1:")
        for k in range(2):
            a(f"s_lshl_b32 s31, s{48+k}, 10")
            a("s_add_u32 s31, s31, s30")
            a(f"v_add_u32 v2, s31, v13")
            a(f"ds_write_b64 v2, v[{88+2*k}:{89+2*k}]")
        a(f"K3_skip{i}:   ; LINT-RESET")
        dr(2)
    dr(99)
    for t in range(2):
        a(f"ds_read_b64_tr_b16 v[{16+2*t}:{17+2*t}], v26 offset:{2048*t}")
    a("s_waitcnt lgkmcnt(0)")
    a("s_barrier")
    stamp(a, 4)
    a("s_lshl_b32 s30, s24, 10")
    a("v_add_u32 v2, s30, v13")
    a(f"v_add_u32 v2, {W8_STG}, v2")
    a("ds_read_b128 v[32:35], v2")
    a("ds_read_b128 v[36:39], v2 offset:8192")
    a("s_mul_i32 s31, s25, 43")
    a("s_mul_i32 s43, s26, 5")
    a("s_add_u32 s31, s31, s43")
    a("s_lshl_b32 s31, s31, 12")
    a("s_add_u32 s31, s31, s30")
    a(f"s_add_u32 s31, s31, {HF}")
    a("s_waitcnt lgkmcnt(1)")
    a("buffer_store_dwordx4 v[32:35], v13, s[8:11], s31 offen sc1")
    a("s_add_u32 s31, s31, 8192")
    a("s_waitcnt lgkmcnt(0)")
    a("buffer_store_dwordx4 v[36:39], v13, s[8:11], s31 offen sc1")
    a("s_cmp_lt_u32 s24, 4")
    a("s_cbranch_scc0 K3_no3rd")
    a("ds_read_b128 v[40:43], v2 offset:16384")
    a("s_add_u32 s31, s31, 8192")
    a("s_waitcnt lgkmcnt(0)")
    a("buffer_store_dwordx4 v[40:43], v13, s[8:11], s31 offen sc1")
    a("K3_no3rd:   ; LINT-RESET")
    ACB = 176
    for r in range(ACB, ACB + 32): a(f"v_mov_b32 v{r}, 0")
    a("s_waitcnt vmcnt(0)")
    stamp(a, 5)
    a("s_barrier")
    a("s_cmp_lg_u32 s24, 0")
    a("s_cbranch_scc1 K3_wait")
    a("s_lshl_b32 s30, s25, 7")
    a(f"s_add_u32 s30, s30, {FLAGS}")
    a("v_mov_b32 v2, s30")
    a("v_mov_b32 v4, 1")
    a("s_mov_b64 exec, 1")
    a("global_atomic_add v4, v2, v4, s[14:15] sc0 sc1")
    a("s_waitcnt vmcnt(0)")
    a("v_readfirstlane_b32 s30, v4")
    a("s_cmp_eq_u32 s30, 7")
    a("s_cbranch_scc1 K3_pollx")
    a("s_mov_b32 s31, 0x100000")
    a("K3_poll:")
    a("global_load_dword v5, v2, s[14:15] sc1")
    a("s_waitcnt vmcnt(0)")
    a("v_readfirstlane_b32 s30, v5")
    a("s_sub_u32 s31, s31, 1")
    a("s_cmp_eq_u32 s31, 0")
    a("s_cbranch_scc1 K3_pollx")
    a("s_cmp_ge_u32 s30, 8")
    a("s_cbranch_scc0 K3_poll")
    a("K3_pollx:")
    a("s_mov_b64 exec, -1")
    a("K3_wait:   ; LINT-RESET")
    a("s_barrier")
    stamp(a, 6)
    SLOT = 16384; NS = 6
    a("s_mul_i32 s57, s25, 43")
    a("s_add_u32 s57, s57, s58")
    a("s_lshl_b32 s57, s57, 12")
    a("s_lshl_b32 s30, s21, 11")
    a("s_add_u32 s57, s57, s30")
    a(f"s_add_u32 s57, s57, {HF}")
    a("s_lshl_b32 s56, s20, 12")
    a("s_add_u32 s56, s56, s30")
    a("s_lshl_b32 s30, s20, 12")
    a("v_add_u32 v4, s30, v13")
    a(f"v_add_u32 v8, {4*SLOT}, v4")
    def hdma(j):
        return [f"s_add_u32 m0, s56, {(j % NS) * SLOT}\ns_add_u32 s43, s57, {4096 * j}\nbuffer_load_dwordx4 v13, s[8:11], s43 offen offset:{1024*t} lds" for t in range(2)]
    def hread(j):
        sl = j % NS
        base, off = ("v4", sl * SLOT) if sl < 4 else ("v8", (sl - 4) * SLOT)
        return [f"ds_read_b128 v[{HB[j & 1] + 4*lt}:{HB[j & 1] + 4*lt + 3}], {base} offset:{off + lt * 1024}" for lt in range(4)]
    HB = [32, 48]
    AHEAD = 5
    hq = []
    for j in range(AHEAD):
        for x in hdma(j): a(x); hq.append(j)
    a(f"s_waitcnt vmcnt({sum(1 for t in hq if t > 0)})")
    a("s_barrier")
    for x in hread(0): a(x)
    for j in range(11):
        if j + 1 <= 10:
            a(f"s_waitcnt vmcnt({sum(1 for t in hq if t > j + 1)}) lgkmcnt(0)")
            a("s_barrier")
            rd = hread(j + 1)
        else:
            a("s_waitcnt lgkmcnt(0)")
            rd = []
        nxt = hdma(j + AHEAD) if j + AHEAD <= 10 else []
        hq += [j + AHEAD] * len(nxt)
        extra = rd + nxt
        ei = 0
        for t in range(2):
            for lt in range(4):
                d = ACB + (t * 4 + lt) * 4
                ar = w2reg(j, t); br = HB[j & 1] + 4 * lt
                a(f"v_mfma_f32_16x16x32_bf16 v[{d}:{d+3}], v[{ar}:{ar+3}], v[{br}:{br+3}], v[{d}:{d+3}]")
                if ei < len(extra): a(extra[ei]); ei += 1
    stamp(a, 7)
    a("v_mul_u32_u24 v5, 272, v6")
    a("v_lshl_add_u32 v5, v3, 4, v5")
    a(f"s_mul_i32 s30, s20, {P_W}")
    a("s_lshl_b32 s31, s21, 7")
    a("s_add_u32 s30, s30, s31")
    a(f"s_add_u32 s30, s30, {W8_RED}")
    a("v_add_u32 v7, s30, v5")
    a("s_barrier")
    a("s_nop 4")
    for t in range(2):
        for lt in range(4):
            d = ACB + (t * 4 + lt) * 4
            a(f"ds_write_b128 v7, v[{d}:{d+3}] offset:{lt*16*272 + t*64}")
    a(f"s_mul_i32 s30, s20, {16*272}")
    a("s_lshl_b32 s31, s21, 7")
    a("s_add_u32 s30, s30, s31")
    a(f"s_add_u32 s30, s30, {W8_RED}")
    a("v_add_u32 v7, s30, v5")
    a("s_waitcnt lgkmcnt(0)")
    a("s_barrier")
    stamp(a, 8)
    for t in range(2):
        for w in range(4):
            r = 32 + (t * 4 + w) * 4
            a(f"ds_read_b128 v[{r}:{r+3}], v7 offset:{w*P_W + t*64}")
    a.srd(40, 18, 2048 * 512 * 2)
    a("s_lshl_b32 s30, s25, 16")
    a("s_lshl_b32 s31, s20, 14")
    a("s_add_u32 s30, s30, s31")
    a("s_lshl_b32 s31, s26, 7")
    a("s_add_u32 s30, s30, s31")
    a("s_lshl_b32 s31, s21, 6")
    a("s_add_u32 s30, s30, s31")
    a("v_lshlrev_b32 v9, 10, v6")
    a("v_lshl_add_u32 v9, v3, 3, v9")
    a("v_add_u32 v9, s30, v9")
    for t in range(2):
        a(f"s_waitcnt lgkmcnt({4*(1-t)})")
        r = 32 + t * 16
        for p in range(2):
            a(f"v_pk_add_f32 v[{r+2*p}:{r+2*p+1}], v[{r+2*p}:{r+2*p+1}], v[{r+4+2*p}:{r+5+2*p}]")
            a(f"v_pk_add_f32 v[{r+8+2*p}:{r+9+2*p}], v[{r+8+2*p}:{r+9+2*p}], v[{r+12+2*p}:{r+13+2*p}]")
        for p in range(2):
            a(f"v_pk_add_f32 v[{r+2*p}:{r+2*p+1}], v[{r+2*p}:{r+2*p+1}], v[{r+8+2*p}:{r+9+2*p}]")
        for q_ in range(2):
            a(f"v_lshlrev_b32 v{96+2*q_}, 16, v{252+2*t+q_}")
            a(f"v_and_b32 v{97+2*q_}, 0xffff0000, v{252+2*t+q_}")
            a(f"v_lshlrev_b32 v{100+2*q_}, 16, v{16+2*t+q_}")
            a(f"v_and_b32 v{101+2*q_}, 0xffff0000, v{16+2*t+q_}")
        for p in range(2):
            a(f"v_pk_add_f32 v[{r+2*p}:{r+2*p+1}], v[{r+2*p}:{r+2*p+1}], v[{96+2*p}:{97+2*p}]")
        for p in range(2):
            a(f"v_pk_fma_f32 v[{r+2*p}:{r+2*p+1}], v[{r+2*p}:{r+2*p+1}], v[{244+4*t+2*p}:{245+4*t+2*p}], v[{100+2*p}:{101+2*p}]")
        a(f"v_cvt_pk_bf16_f32 v{24+2*t}, v{r}, v{r+1}")
        a(f"v_cvt_pk_bf16_f32 v{25+2*t}, v{r+2}, v{r+3}")
        a(f"buffer_store_dwordx2 v[{24+2*t}:{25+2*t}], v9, s[40:43], 0 offen offset:{32*t}")
    a("K3_END:   ; LINT-RESET")
    stamp_store(a, KID3, 14, 24)
    a("K3_EXIT:")
    a.end_kernel(name, 256, 100, accum=256)

def triv(a, i):
    name = f"t{i}_kernel"
    a.begin_kernel(name, 256, 256, 0)
    a.end_kernel(name, 8, 16)
def build(kernels):
    global LASTLABEL, KID3, FUSED
    FUSED = kernels[0].__name__ == "k12"
    KID3 = len(kernels) - 1
    LASTLABEL = {"k1": "K1_EXIT", "k2": "K2_EXIT", "k12": "K2_EXIT", "k3": "K3_EXIT", "k3w": "K3_EXIT"}[kernels[-1].__name__]
    a = Asm()
    for i in range(int(OPT.get("pre_triv", "0"))): triv(a, 10 + i)
    for k in kernels: k(a)
    for i in range(int(OPT.get("extra", "0"))): triv(a, i)
    return a.text().replace("None\n", "")

ALL = {}
if __name__ == "__main__":
    out = sys.argv[1] if len(sys.argv) > 1 else "cur.s"
    names = sys.argv[2].split(",") if len(sys.argv) > 2 else ["k1"]
    if len(sys.argv) > 3 and sys.argv[3] == "prof": PROF = True
    open(out, "w").write(build([globals()[n] for n in names]))
```

```python
import sys
sys.path.insert(0, "dev")
from asmgen import *

import os
OPT = dict(kv.split("=") for kv in os.environ.get("GENOPT", "").split(",") if kv)
WSOFF = int(OPT.get("wsoff", "0"), 0)
SC1 = " sc1" if OPT.get("sc1", "1") == "1" else ""
HLD = " sc1" if OPT.get("hsc1", "1") == "1" else ""
WLD = " sc1" if OPT.get("wsc1", "0") == "1" else ""
XLD = " sc1" if OPT.get("xsc1", "0") == "1" else ""
NT1 = " nt" if OPT.get("nt1", "1") == "1" else ""
def wsfix(a, r):
    if WSOFF:
        a(f"s_add_u32 s{r}, s{r}, {WSOFF}")
        a(f"s_addc_u32 s{r+1}, s{r+1}, 0")
XT    = 0x0000000
X2T   = 0x0200000
KREV  = 0x0400000
KW    = 4160
STAT1 = 0x0620000
MODF  = 0x0630000
SCAL  = 0x0634000
SVP   = 0x0640000
MODP  = 0x0660000
G2F   = 0x0634400
GBF   = 0x0634C00
W1F   = 0x0700000
W2F   = 0x0900000
HF    = 0x0B00000
WS_USED = 0x1100000

STAMP = 0x1100000
PROF = False
def stamp(a, i):
    if PROF:
        if OPT.get("cyc", "0") == "1": a(f"s_memtime s[{70+2*i}:{71+2*i}]")
        else: a(f"s_memrealtime s[{70+2*i}:{71+2*i}]")
        a("s_waitcnt lgkmcnt(0)")
def stamp_store(a, kid, wsreg, swave):
    if not PROF: return
    a("s_mov_b64 exec, -1")
    tm = "s_memtime" if OPT.get("cyc", "0") == "1" else "s_memrealtime"
    a(f"{tm} s[90:91]")
    a("s_waitcnt lgkmcnt(0) vmcnt(0)")
    a(f"{tm} s[92:93]")
    a("s_waitcnt lgkmcnt(0)")
    a(f"s_lshl_b32 s94, s2, 3")
    a(f"s_add_u32 s94, s94, s{swave}")
    a(f"s_lshl_b32 s94, s94, 6")
    a(f"s_add_u32 s94, s94, {STAMP + kid * 0x80000}")
    a("v_mov_b32 v0, s94")
    for i in range(12):
        a(f"v_mov_b32 v{2+i}, s{70+2*i}")
    a("s_mov_b64 exec, 1")
    a(f"global_store_dwordx4 v0, v[2:5], s[{wsreg}:{wsreg+1}]")
    a(f"global_store_dwordx4 v0, v[6:9], s[{wsreg}:{wsreg+1}] offset:16")
    a(f"global_store_dwordx4 v0, v[10:13], s[{wsreg}:{wsreg+1}] offset:32")

LOG2E = "0x3fb8aa3b"
INV2PI = "0.15915494"

def wave_id(a, s, vt):
    a(f"v_lshrrev_b32 v{vt}, 6, v0")
    a("s_nop 0")
    a(f"v_readfirstlane_b32 s{s}, v{vt}")

def rbf(a, vd, vs):
    a(f"v_cvt_pk_bf16_f32 v{vd}, v{vs}, v{vs}")
    a(f"v_and_b32 v{vd}, 0xffff0000, v{vd}")

def csq(a, dst, src, tmp):
    return [
        f"v_pk_mul_f32 v[{tmp}:{tmp+1}], v[{src}:{src+1}], v[{src}:{src+1}] op_sel:[0,0] op_sel_hi:[1,0]",
        f"v_pk_fma_f32 v[{dst}:{dst+1}], v[{src}:{src+1}], v[{src}:{src+1}], v[{tmp}:{tmp+1}] op_sel:[1,1,0] op_sel_hi:[0,1,1] neg_lo:[1,0,0]",
    ]

def cmulconj(a, dst, p, c, tmp):
    return [
        f"v_pk_mul_f32 v[{tmp}:{tmp+1}], v[{p}:{p+1}], v[{c}:{c+1}] op_sel:[0,0] op_sel_hi:[1,0] neg_hi:[0,1]",
        f"v_pk_fma_f32 v[{dst}:{dst+1}], v[{p}:{p+1}], v[{c}:{c+1}], v[{tmp}:{tmp+1}] op_sel:[1,1,0] op_sel_hi:[0,1,1] neg_lo:[1,0,0] neg_hi:[1,0,0]",
    ]

def code_prefetch(a, start, end, n, tag, vtmp, dst0):
    a(f"s_getpc_b64 s[66:67]")
    a(f"CPF_{tag}:")
    a(f"s_sub_u32 s66, s66, CPF_{tag}-{start}")
    a(f"s_subb_u32 s67, s67, 0")
    a(f"v_lshlrev_b32 v{vtmp}, 7, v1")
    a("s_mov_b64 s[68:69], exec")
    for i in range(n):
        a(f"v_cmp_gt_u32 vcc, {end}-{start}, v{vtmp}")
        a("s_and_b64 exec, s[68:69], vcc")
        a(f"s_cbranch_execz CPF_{tag}_done")
        a(f"global_load_dword v{dst0+i}, v{vtmp}, s[66:67]")
        a(f"v_add_u32 v{vtmp}, 8192, v{vtmp}")
    a(f"CPF_{tag}_done:")
    a("s_mov_b64 exec, s[68:69]")

def k1(a):
    name = "k1_kernel"
    a.begin_kernel(name, 512, 256, 23552)
    a("s_cmp_ge_u32 s2, 512")
    a("s_cbranch_scc1 K1_EXIT")
    stamp(a, 0)
    a("s_load_dwordx8 s[4:11], s[0:1], 8")
    a("s_load_dwordx2 s[12:13], s[0:1], 40")
    a("s_load_dwordx2 s[14:15], s[0:1], 128")
    a("s_load_dwordx2 s[16:17], s[0:1], 0")
    a("s_load_dwordx4 s[20:23], s[0:1], 96")
    wave_id(a, 24, 1)
    a("v_and_b32 v1, 63, v0")
    a("s_cmp_ge_u32 s2, 256")
    a("s_cbranch_scc1 K1_TSM")
    a("s_setprio 3")
    a("s_lshr_b32 s25, s24, 1")
    a("s_and_b32 s26, s24, 1")
    a("s_lshl_b32 s27, s2, 1")
    a("s_add_u32 s27, s27, s25")
    a("s_lshl_b32 s28, s27, 8")
    a("s_lshl_b32 s29, s26, 7")
    a("s_add_u32 s28, s28, s29")
    a("v_lshl_add_u32 v2, v1, 1, s28")
    a("s_lshl_b32 s30, s2, 2")
    a("s_waitcnt lgkmcnt(0)")
    wsfix(a, 14)
    a("global_load_ushort v4, v2, s[4:5] nt")
    a("global_load_ushort v5, v2, s[6:7] nt")
    a("global_load_ushort v6, v2, s[8:9] nt")
    a("global_load_ushort v7, v2, s[10:11] nt")
    a("s_load_dword s29, s[12:13], s30")
    a("v_and_b32 v16, 15, v1")
    a("v_cmp_eq_u32 s[32:33], 15, v16")
    a("v_lshrrev_b32 v18, 4, v1")
    a("v_add_u32 v19, 1, v16")
    a("v_cvt_f32_u32 v19, v19")
    a("s_lshl_b32 s31, s24, 10")
    a("v_lshl_add_u32 v17, v18, 6, s31")
    a("v_lshl_add_u32 v20, v1, 4, s31")
    for r in range(112, 128):
        a(f"v_mov_b32 v{r}, 0")
    T16 = 4096 + 16384
    a("s_mul_i32 s39, s25, 1344")
    a(f"s_add_u32 s39, s39, {T16 + 8}")
    a("v_subrev_u32 v21, 7, v16")
    a("v_cmp_gt_u32 s[34:35], 8, v21")
    a("v_add_u32 v21, 1, v16")
    a("v_and_b32 v21, 15, v21")
    a("v_lshlrev_b32 v24, 5, v21")
    a("v_lshl_add_u32 v24, v18, 3, v24")
    a("s_lshl_b32 s40, s26, 9")
    a("s_add_u32 s40, s40, s39")
    a("v_add_u32 v24, s40, v24")
    a("s_cmp_eq_u32 s26, 0")
    a("s_cselect_b64 s[36:37], -1, s[34:35]")
    a("s_lshl_b32 s40, s24, 12")
    a("s_add_u32 s40, s40, 4096")
    a("v_lshl_add_u32 v22, v1, 4, s40")
    a("s_lshl_b32 s40, s25, 13")
    a("s_lshl_b32 s41, s26, 11")
    a("s_add_u32 s40, s40, s41")
    a("s_add_u32 s40, s40, 4096")
    a("v_lshl_add_u32 v23, v1, 4, s40")
    a("s_lshl_b32 s40, s26, 6")
    a("v_add_u32 v26, s40, v1")
    a("v_lshlrev_b32 v27, 3, v26")
    a("v_sub_u32 v27, 2047, v27")
    a("v_cvt_f32_u32 v28, v27")
    a("s_sub_u32 s41, s39, 34050")
    a("s_sub_u32 s42, s39, 2")
    GA = 140
    for rnd in range(2):
        if rnd == 1:
            a("v_add_f32 v28, 0xc4800000, v28")
            a("v_subrev_u32 v27, 1024, v27")
        for t in range(8):
            if t == 0: a(f"v_mov_b32 v48, v28")
            else: a(f"v_add_f32 v{48+t}, {-float(t)}, v28")
        for p in range(4):
            a(f"v_cvt_pk_bf16_f32 v{56+p}, v{48+2*p}, v{49+2*p}")
        for p in range(4):
            a(f"v_and_b32 v{48+2*p}, 0xffff, v{56+p}")
            a(f"v_lshrrev_b32 v{49+2*p}, 16, v{56+p}")
        o = GA + 8 * rnd
        for t in range(8):
            a(f"v_lshl_add_u32 v{o+t}, v{48+t}, 1, s41")
        if rnd == 1:
            a("v_cmp_le_u32 vcc, 112, v26")
            for t in range(8):
                a(f"v_subrev_u32 v{56+(t&3)}, {t}, v27")
                a(f"v_lshl_add_u32 v{56+(t&3)}, v{56+(t&3)}, 1, s42")
                a(f"v_cndmask_b32 v{o+t}, v{o+t}, v{56+(t&3)}, vcc")
    a(f"s_mul_i32 s40, s27, {KW}")
    a(f"s_add_u32 s40, s40, {KREV}")
    a("v_lshl_add_u32 v29, v26, 4, s40")
    a("v_add_u32 v30, 2048, v29")
    a("v_add_u32 v31, 4096, v29")
    a("s_waitcnt lgkmcnt(0)")
    a("s_lshl_b32 s43, s25, 4")
    a("s_lshr_b32 s29, s29, s43")
    a("s_lshl_b32 s29, s29, 16")
    a(f"v_mov_b32 v8, {LOG2E}")
    a("v_mul_f32 v9, s29, v8")
    a("v_exp_f32 v9, v9")
    a("s_nop 0")
    rbf(a, 9, 9)
    a("s_waitcnt vmcnt(0)")
    a("v_lshlrev_b32 v4, 16, v4")
    a("v_lshlrev_b32 v5, 16, v5")
    a("v_lshlrev_b32 v6, 16, v6")
    a("v_lshlrev_b32 v7, 16, v7")
    a("v_mul_f32 v4, v4, v8")
    a("v_exp_f32 v4, v4")
    a("v_mul_f32 v13, v5, v9")
    a("v_mul_f32 v14, v6, v9")
    rbf(a, 4, 4)
    a("v_mul_f32 v15, v7, v9")
    a("v_mul_f32 v12, v4, v9")
    a(f"v_mul_f32 v13, {INV2PI}, v13")
    a("v_add_f32 v14, v14, v14")
    a("v_add_f32 v15, v15, v15")
    a("v_mul_f32 v12, v12, v8")
    a("v_mov_b32 v10, v14")
    a("v_sub_f32 v12, 0, v12")
    a("ds_write_b128 v20, v[12:15]")
    for ctl in ("row_shr:1", "row_shr:2", "row_shr:4", "row_shr:8", "row_bcast:15 row_mask:0xa", "row_bcast:31 row_mask:0xc"):
        a("s_nop 1")
        a(f"v_add_f32_dpp v10, v10, v10 {ctl}")
    a("s_waitcnt lgkmcnt(0)")
    stamp(a, 1)
    R = [[32 + 4 * u for u in range(4)], [48 + 4 * u for u in range(4)]]
    PA = [64 + 2 * u for u in range(4)]
    PB = [72 + 2 * u for u in range(4)]
    TT = [80 + 2 * u for u in range(4)]
    QF = [88 + 4 * e for e in range(4)]
    GF = [104, 108]
    DD = [112 + 4 * e for e in range(4)]
    CPK = [128 + u for u in range(4)]
    MAG = [132 + 2 * u for u in range(4)]
    for u in range(4):
        a(f"ds_read_b128 v[{R[0][u]}:{R[0][u]+3}], v17 offset:{u*16}")
    for ks in range(4):
        Rc = R[ks & 1]
        if ks + 1 < 4:
            for u in range(4):
                a(f"ds_read_b128 v[{R[(ks+1)&1][u]}:{R[(ks+1)&1][u]+3}], v17 offset:{(ks+1)*256+u*16}")
            a("s_waitcnt lgkmcnt(4)")
        else:
            a("s_waitcnt lgkmcnt(0)")
        for u in range(4): a(f"v_mul_f32 v{TT[u]}, v{Rc[u]}, v19")
        for u in range(4): a(f"v_mul_f32 v{TT[u]+1}, v{Rc[u]+1}, v19")
        for u in range(4): a(f"v_exp_f32 v{MAG[u]}, v{TT[u]}")
        for u in range(4): a(f"v_fract_f32 v{TT[u]+1}, v{TT[u]+1}")
        for u in range(4): a(f"v_cvt_pk_bf16_f32 v{CPK[u]}, v{Rc[u]+2}, -v{Rc[u]+3}")
        for u in range(4): a(f"v_cos_f32 v{PB[u]}, v{TT[u]+1}")
        for u in range(4): a(f"v_sin_f32 v{PB[u]+1}, v{TT[u]+1}")
        a("s_nop 0")
        for u in range(4):
            a(f"v_pk_mul_f32 v[{PA[u]}:{PA[u]+1}], v[{PB[u]}:{PB[u]+1}], v[{MAG[u]}:{MAG[u]+1}] op_sel:[0,0] op_sel_hi:[1,0]")
        cur, oth = PA, PB
        for e in range(4):
            for u in range(4): a(f"v_cvt_pk_bf16_f32 v{QF[e]+u}, v{cur[u]}, v{cur[u]+1}")
            sq = [csq(a, oth[u], cur[u], TT[u]) for u in range(4)]
            for u in range(4): a(sq[u][0])
            for u in range(4): a(sq[u][1])
            cur, oth = oth, cur
        for e in range(4):
            g = GF[e & 1]
            cm = [cmulconj(a, oth[u], cur[u], Rc[u] + 2, TT[u]) for u in range(4)]
            for u in range(4): a(cm[u][0])
            for u in range(4): a(cm[u][1])
            for u in range(4): a(f"v_cvt_pk_bf16_f32 v{g+u}, v{oth[u]}, v{oth[u]+1}")
            if e == 0:
                for u in range(4): a(f"v_cndmask_b32 v{g+u}, v{g+u}, v{CPK[u]}, s[32:33]")
            if e < 3:
                sq = [csq(a, oth[u], cur[u], TT[u]) for u in range(4)]
                for u in range(4): a(sq[u][0])
                a(f"v_mfma_f32_16x16x32_bf16 v[{DD[e]}:{DD[e]+3}], v[{QF[e]}:{QF[e]+3}], v[{g}:{g+3}], v[{DD[e]}:{DD[e]+3}]")
                for u in range(4): a(sq[u][1])
                cur, oth = oth, cur
            else:
                a("s_nop 1")
                a(f"v_mfma_f32_16x16x32_bf16 v[{DD[e]}:{DD[e]+3}], v[{QF[e]}:{QF[e]+3}], v[{g}:{g+3}], v[{DD[e]}:{DD[e]+3}]")
    stamp(a, 2)
    a("v_readlane_b32 s44, v10, 63")
    a(f"s_lshl_b32 s45, s24, 2")
    a(f"s_add_u32 s45, s45, {T16 + 2*1344 + 16}")
    a("v_mov_b32 v11, s45")
    a("v_mov_b32 v10, s44")
    a("s_nop 1")
    for e in range(4):
        a(f"ds_write_b128 v22, v[{DD[e]}:{DD[e]+3}] offset:{e*1024}")
    a("ds_write_b32 v11, v10")
    a("s_waitcnt lgkmcnt(0)")
    a("s_barrier")
    a("ds_read_b128 v[32:35], v23")
    a("ds_read_b128 v[36:39], v23 offset:4096")
    a("ds_read_b128 v[40:43], v23 offset:1024")
    a("ds_read_b128 v[44:47], v23 offset:5120")
    a(f"s_lshl_b32 s45, s25, 3")
    a(f"s_add_u32 s45, s45, {T16 + 2*1344 + 16}")
    a("v_mov_b32 v11, s45")
    a("ds_read_b64 v[8:9], v11")
    a("s_waitcnt lgkmcnt(0)")
    for r in range(4): a(f"v_add_f32 v{32+r}, v{32+r}, v{36+r}")
    for r in range(4): a(f"v_add_f32 v{40+r}, v{40+r}, v{44+r}")
    a("v_add_f32 v8, v8, v9")
    a("v_cvt_pk_bf16_f32 v32, v32, v33")
    a("v_cvt_pk_bf16_f32 v33, v34, v35")
    a("v_cvt_pk_bf16_f32 v40, v40, v41")
    a("v_cvt_pk_bf16_f32 v41, v42, v43")
    a("v_cvt_pk_bf16_f32 v8, v8, v8")
    a("s_sub_u32 s45, s39, 2")
    a("v_mov_b32 v11, s45")
    a("s_mov_b64 s[42:43], exec")
    a("s_mov_b64 exec, s[36:37]")
    a("ds_write_b64 v24, v[32:33]")
    a("s_mov_b64 exec, s[34:35]")
    a("ds_write_b64 v24, v[40:41] offset:256")
    a("s_mov_b64 exec, s[42:43]")
    a("ds_write_b16 v11, v8")
    a("s_waitcnt lgkmcnt(0)")
    a("s_barrier")
    stamp(a, 3)
    for t in range(16):
        a(f"ds_read_u16 v{76+t}, v{GA+t}")
        if t == 7: a("v_mov_b32 v72, 0\nv_mov_b32 v73, 0\nv_mov_b32 v74, 0\nv_mov_b32 v75, 0")
    a("s_waitcnt lgkmcnt(8)")
    for p in range(4):
        a(f"v_lshl_or_b32 v{64+p}, v{77+2*p}, 16, v{76+2*p}")
    a("global_store_dwordx4 v29, v[64:67], s[14:15] sc1")
    a("s_waitcnt lgkmcnt(0)")
    for p in range(4):
        a(f"v_lshl_or_b32 v{68+p}, v{85+2*p}, 16, v{84+2*p}")
    a("global_store_dwordx4 v30, v[68:71], s[14:15] sc1")
    a("v_cmp_gt_u32 vcc, 4, v26")
    a("s_and_saveexec_b64 s[42:43], vcc")
    a("s_cbranch_execz K1_END")
    a("global_store_dwordx4 v31, v[72:75], s[14:15] sc1")
    a("s_branch K1_END")
    a("K1_TSM:   ; LINT-RESET")
    a("s_sub_u32 s25, s2, 256")
    a("s_and_b32 s28, s25, 7")
    a("s_lshr_b32 s29, s25, 3")
    a("s_lshr_b32 s26, s29, 3")
    a("s_lshl_b32 s27, s28, 2")
    a("s_add_u32 s26, s26, s27")
    a("s_and_b32 s27, s29, 7")
    a("s_lshl_b32 s30, s28, 8")
    a("s_lshl_b32 s31, s29, 3")
    a("s_add_u32 s30, s30, s31")
    a("s_lshl_b32 s28, s26, 16")
    a("s_lshl_b32 s29, s27, 7")
    a("s_add_u32 s28, s28, s29")
    a("v_lshrrev_b32 v2, 3, v0")
    a("v_and_b32 v3, 7, v0")
    a("v_lshlrev_b32 v4, 10, v2")
    a("v_lshl_add_u32 v4, v3, 4, v4")
    a("v_add_u32 v4, s28, v4")
    a("v_add_u32 v5, 0x8000, v4")
    a("s_lshl_b32 s31, s24, 1")
    a("s_add_u32 s30, s30, s31")
    a("s_lshl_b32 s31, s30, 10")
    a("v_lshl_add_u32 v6, v1, 4, s31")
    a("s_and_b32 s33, s25, 7")
    a("s_mul_i32 s33, s33, 24")
    a("s_lshr_b32 s34, s25, 3")
    a("s_add_u32 s33, s33, s34")
    a("v_lshrrev_b32 v7, 1, v0")
    a("v_and_b32 v24, 1, v0")
    a("v_mul_u32_u24 v25, 6144, v7")
    a("v_lshl_add_u32 v25, v24, 4, v25")
    a("s_lshl_b32 s35, s33, 5")
    a("v_add_u32 v25, s35, v25")
    a("v_add_u32 v26, 786432, v25")
    a("v_add_u32 v27, 786432, v26")
    a("v_add_u32 v28, 786432, v27")
    a("v_lshlrev_b32 v29, 1, v7")
    a("s_waitcnt lgkmcnt(0)")
    wsfix(a, 14)
    a("global_load_dwordx4 v[8:11], v4, s[16:17]" + NT1)
    a("global_load_dwordx4 v[12:15], v5, s[16:17]" + NT1)
    a("global_load_dwordx4 v[16:19], v6, s[16:17]" + NT1)
    a("global_load_dwordx4 v[20:23], v6, s[16:17] offset:1024" + NT1)
    a("s_cmp_ge_u32 s25, 192")
    a("s_cbranch_scc1 K1_nomodld")
    for k in range(4):
        a(f"global_load_ushort v{48+k}, v29, s[20:21] offset:{256*k}")
    for k, vo in enumerate((25, 26, 27, 28)):
        a(f"global_load_dwordx4 v[{32+4*k}:{35+4*k}], v{vo}, s[22:23]" + NT1)
    a("K1_nomodld:")
    if OPT.get("cpf", "1") == "1":
        a("s_sub_u32 s65, s25, 192")
        a("s_cmp_ge_u32 s65, 16")
        a("s_cbranch_scc1 K1_nocpf")
        a("s_cmp_lg_u32 s24, 3")
        a("s_cbranch_scc1 K1_nocpf")
        code_prefetch(a, "k1_kernel", LASTLABEL, 6, "k1", 70, 72)
        TS = int(OPT.get("tlb", "0"))
        if TS:
            a("s_load_dwordx2 s[50:51], s[0:1], 64")
            a("s_load_dwordx2 s[52:53], s[0:1], 80")
            a("s_load_dwordx2 s[54:55], s[0:1], 112")
            a("s_load_dwordx2 s[56:57], s[0:1], 72")
            a("s_load_dwordx2 s[58:59], s[0:1], 88")
            a("s_load_dwordx2 s[60:61], s[0:1], 48")
            a(f"v_mul_u32_u24 v71, {TS}, v1")
            a("s_waitcnt lgkmcnt(0)")
            k = 80
            for (sr, size) in ((14, WS_USED), (50, 512*1376*2), (52, 512*1376*2), (54, 2048*512*2)):
                n = -(-size // (64 * TS))
                for i in range(n):
                    a(f"v_add_u32 v70, {i * 64 * TS}, v71")
                    a(f"v_cmp_gt_u32 vcc, {size}, v70")
                    a("s_and_saveexec_b64 s[62:63], vcc")
                    a(f"global_load_dword v{k}, v70, s[{sr}:{sr+1}]")
                    a("s_mov_b64 exec, s[62:63]")
                    k = 80 + (k - 80 + 1) % 40
            a("v_mov_b32 v70, 0")
            for sr in (56, 58, 60):
                a(f"global_load_dword v{k}, v70, s[{sr}:{sr+1}]"); k += 1
        a("s_waitcnt vmcnt(0)")
        a("K1_nocpf:   ; LINT-RESET")
    a("v_mul_u32_u24 v30, 160, v2")
    a("v_lshl_add_u32 v30, v3, 4, v30")
    a("s_cmp_ge_u32 s25, 192")
    a("s_cbranch_scc1 K1_w0")
    a("s_waitcnt vmcnt(10)")
    a("s_branch K1_w1")
    a("K1_w0:")
    a("s_waitcnt vmcnt(2)")
    a("K1_w1:   ; LINT-RESET (T loads have landed; S/mod loads may be outstanding)")
    stamp(a, 1)
    a("ds_write_b128 v30, v[8:11]")
    a("ds_write_b128 v30, v[12:15] offset:5120")
    a("s_cmp_ge_u32 s25, 192")
    a("s_cbranch_scc1 K1_w2")
    a("s_waitcnt vmcnt(8)")
    a("s_branch K1_w3")
    a("K1_w2:")
    a("s_waitcnt vmcnt(0)")
    a("K1_w3:   ; LINT-RESET")
    a("v_mov_b32 v31, 0x3f803f80")
    a("v_mov_b32 v52, 0\nv_mov_b32 v53, 0\nv_mov_b32 v54, 0\nv_mov_b32 v55, 0")
    for k in range(4):
        a(f"v_dot2_f32_bf16 v52, v{16+k}, v31, v52")
        a(f"v_dot2_f32_bf16 v53, v{16+k}, v{16+k}, v53")
        a(f"v_dot2_f32_bf16 v54, v{20+k}, v31, v54")
        a(f"v_dot2_f32_bf16 v55, v{20+k}, v{20+k}, v55")
    a("s_nop 1")
    for ctl in ("row_shr:1", "row_shr:2", "row_shr:4", "row_shr:8", "row_bcast:15 row_mask:0xa", "row_bcast:31 row_mask:0xc"):
        for r in range(52, 56):
            a(f"v_add_f32_dpp v{r}, v{r}, v{r} {ctl}")
        a("s_nop 0") if False else None
    a("s_nop 1")
    for k, r in enumerate(range(52, 56)):
        a(f"v_readlane_b32 s{36+k}, v{r}, 63")
    a("s_nop 1")
    a("v_cmp_eq_u32 vcc, 0, v1")
    a("v_mov_b32 v56, s38")
    a("v_mov_b32 v57, s39")
    a("v_mov_b32 v58, s36")
    a("v_mov_b32 v59, s37")
    a("v_cndmask_b32 v56, v56, v58, vcc")
    a("v_cndmask_b32 v57, v57, v59, vcc")
    a("v_mul_f32 v56, 0x3b000000, v56")
    a("v_mul_f32 v57, 0x3b000000, v57")
    a("v_fma_f32 v57, -v56, v56, v57")
    a("v_max_f32 v57, 0, v57")
    rbf(a, 56, 56)
    rbf(a, 57, 57)
    a("v_add_f32 v57, 0x3727c5ac, v57")
    rbf(a, 57, 57)
    a("v_sqrt_f32 v57, v57")
    a("s_nop 0")
    rbf(a, 57, 57)
    a("v_rcp_f32 v58, v57")
    a("s_nop 0")
    a("v_mul_f32 v59, v56, v58")
    a("v_sub_f32 v59, 0, v59")
    a("s_lshl_b32 s31, s30, 2")
    a(f"s_add_u32 s31, s31, {STAT1}")
    a("v_lshl_add_u32 v60, v1, 2, s31")
    a("v_add_u32 v61, 8192, v60")
    a("v_cmp_gt_u32 vcc, 2, v1")
    a("s_and_saveexec_b64 s[42:43], vcc")
    a("global_store_dword v60, v58, s[14:15]" + SC1)
    a("global_store_dword v61, v59, s[14:15]" + SC1)
    a("s_mov_b64 exec, s[42:43]")
    a("s_cmp_ge_u32 s25, 192")
    a("s_cbranch_scc1 K1_nomodc")
    a("s_waitcnt vmcnt(2)")
    for k in range(4):
        a(f"v_lshlrev_b32 v{48+k}, 16, v{48+k}")
    for k in range(4):
        a(f"v_mul_f32 v{52+k}, 0xbfb8aa3b, v{48+k}")
    for k in range(4):
        a(f"v_exp_f32 v{52+k}, v{52+k}")
    a("s_nop 0")
    for k in range(4):
        a(f"v_add_f32 v{52+k}, 1.0, v{52+k}")
    for k in range(4):
        a(f"v_rcp_f32 v{56+k}, v{52+k}")
    a("s_nop 0")
    for k in range(4):
        a(f"v_mul_f32 v{60+k}, v{48+k}, v{56+k}")
    for k in range(4):
        a(f"v_fma_f32 v{48+k}, -v{60+k}, v{52+k}, v{48+k}")
    for k in range(4):
        a(f"v_fma_f32 v{48+k}, v{48+k}, v{56+k}, v{60+k}")
    for k in range(4):
        rbf(a, 48 + k, 48 + k)
    for k in range(4):
        for p in range(4):
            w = 32 + 4 * k + p
            a(f"v_lshlrev_b32 v62, 16, v{w}")
            a(f"v_and_b32 v63, 0xffff0000, v{w}")
            if k == 0:
                a(f"v_mul_f32 v{64+2*p}, v62, v48")
                a(f"v_mul_f32 v{65+2*p}, v63, v48")
            else:
                a(f"v_fmac_f32 v{64+2*p}, v62, v{48+k}")
                a(f"v_fmac_f32 v{65+2*p}, v63, v{48+k}")
    a("v_lshlrev_b32 v61, 5, v0")
    a("ds_write_b128 v61, v[64:67] offset:10240")
    a("ds_write_b128 v61, v[68:71] offset:10256")
    a("K1_nomodc:")
    stamp(a, 2)
    a("s_waitcnt lgkmcnt(0)")
    a("s_barrier")
    stamp(a, 3)
    a("v_lshrrev_b32 v2, 4, v1")
    a("v_bfe_u32 v3, v1, 2, 2")
    a("v_and_b32 v4, 3, v1")
    a("v_lshl_add_u32 v5, v2, 3, v3")
    a("v_mul_u32_u24 v5, 160, v5")
    a("v_lshl_add_u32 v5, v4, 3, v5")
    a("s_lshl_b32 s31, s24, 5")
    a("v_add_u32 v5, s31, v5")
    a("ds_read_b64_tr_b16 v[8:9], v5")
    a("ds_read_b64_tr_b16 v[10:11], v5 offset:640")
    a(f"ds_read_b64_tr_b16 v[12:13], v5 offset:{32*160}")
    a(f"ds_read_b64_tr_b16 v[14:15], v5 offset:{36*160}")
    a("v_and_b32 v6, 15, v1")
    a("v_lshlrev_b32 v6, 12, v6")
    a("v_lshl_add_u32 v6, v2, 4, v6")
    a("s_lshl_b32 s31, s27, 18")
    a("s_lshl_b32 s32, s24, 16")
    a("s_add_u32 s31, s31, s32")
    a("s_lshl_b32 s32, s26, 7")
    a("s_add_u32 s31, s31, s32")
    a(f"s_add_u32 s31, s31, {XT}") if XT else None
    a("v_add_u32 v6, s31, v6")
    a("s_waitcnt lgkmcnt(2)")
    a("global_store_dwordx4 v6, v[8:11], s[14:15]" + SC1)
    a("s_waitcnt lgkmcnt(0)")
    a("global_store_dwordx4 v6, v[12:15], s[14:15] offset:64" + SC1)
    a("s_cmp_ge_u32 s25, 192")
    a("s_cbranch_scc1 K1_END")
    a("s_cmp_lg_u32 s24, 0")
    a("s_cbranch_scc1 K1_END")
    a("v_and_b32 v2, 15, v1")
    a("v_lshrrev_b32 v3, 4, v1")
    a("v_lshlrev_b32 v4, 11, v3")
    a("v_lshl_add_u32 v4, v2, 2, v4")
    for i in range(32):
        a(f"ds_read_b32 v{16+i}, v4 offset:{10240+64*i}")
        if i == 14: a("s_waitcnt lgkmcnt(7)")
    a("s_waitcnt lgkmcnt(0)")
    for st in (16, 8, 4, 2, 1):
        for i in range(st):
            a(f"v_add_f32 v{16+i}, v{16+i}, v{16+st+i}")
    a("s_nop 0")
    a("v_mov_b32 v17, v16")
    a("s_nop 1")
    a("v_permlane16_swap_b32 v16, v17")
    a("s_nop 0")
    a("v_add_f32 v16, v16, v17")
    a("s_nop 0")
    a("v_mov_b32 v17, v16")
    a("s_nop 1")
    a("v_permlane32_swap_b32 v16, v17")
    a("s_nop 0")
    a("v_add_f32 v16, v16, v17")
    rbf(a, 16, 16)
    a("s_lshl_b32 s31, s33, 6")
    a(f"s_add_u32 s31, s31, {MODF}")
    a("v_lshl_add_u32 v5, v2, 2, s31")
    a("v_cmp_gt_u32 vcc, 16, v1")
    a("s_and_saveexec_b64 s[42:43], vcc")
    a("global_store_dword v5, v16, s[14:15]" + SC1)
    a("K1_END:   ; LINT-RESET")
    stamp_store(a, 0, 14, 24)
    a("K1_EXIT:")
    a.end_kernel(name, 160, 100)


KC_CH = 33280
CS    = 4160
UB    = 66560
U_CH  = 7600
SCR   = 81792
FLG   = SCR + 16384
SIDE  = FLG + 64
SIDE_SZ = 11520
K2_LDS = SIDE + 4 * SIDE_SZ
FLAGS_OFF = 0x0638000

def conv_path(a, hb, tag):
    if hb == 0: steps = [(d, True) for d in range(24)]
    else: steps = [(d, True) for d in range(24, 32)] + [(d, False) for d in range(32, 64)]
    ACC = [32, 48]
    SET = [64, 88, 112]
    def reads(k):
        d, both = steps[k]; b = SET[k % 3]
        out = []
        for hf in (0, 1):
            out.append(f"ds_read_b128 v[{b+4*hf}:{b+4*hf+3}], v2 offset:{64*d + 32*(1-hf)}")
        tiles = (0, 1) if both else (1,)
        for t in tiles:
            for hf in (0, 1):
                r = b + 8 + 8 * t + 4 * hf
                out.append(f"ds_read_b128 v[{r}:{r+3}], v3 offset:{(31 + 32*t - d)*80 + 32*hf}")
        return out
    n = len(steps)
    for k in range(2):
        for x in reads(k): a(x)
    for k in range(n):
        d, both = steps[k]; b = SET[k % 3]
        nxt = reads(k + 2) if k + 2 < n else []
        after = len(nxt) + (len(reads(k + 1)) if k + 1 < n else 0)
        mf = []
        tiles = (0, 1) if both else (1,)
        for hf in (0, 1):
            for t in tiles:
                r = b + 8 + 8 * t + 4 * hf
                mf.append(f"v_mfma_f32_32x32x16_bf16 v[{ACC[t]}:{ACC[t]+15}], v[{b+4*hf}:{b+4*hf+3}], v[{r}:{r+3}], v[{ACC[t]}:{ACC[t]+15}]")
        after = len(reads(k + 1)) if k + 1 < n else 0
        a(f"s_waitcnt lgkmcnt({after})")
        per = -(-len(nxt) // len(mf)) if nxt else 0
        ri = 0
        for m in mf:
            a(m)
            for _ in range(per):
                if ri < len(nxt): a(nxt[ri]); ri += 1
    stamp(a, 6)
    give, keep = (ACC[1], ACC[0]) if hb == 0 else (ACC[0], ACC[1])
    a("s_nop 7")
    a("s_nop 3")
    for i in range(4):
        a(f"ds_write_b128 v4, v[{give+4*i}:{give+4*i+3}] offset:{1024*i}")
    for i in range(4):
        a(f"ds_read_b64 v[{64+2*i}:{65+2*i}], v6 offset:{16*i}")
    a("s_waitcnt lgkmcnt(0)")
    a("v_mov_b32 v72, 1")
    a("ds_write_b32 v7, v72")
    a("s_mov_b32 s63, 0x400000")
    a(f"K2_poll{tag}:")
    a("ds_read_b32 v73, v8")
    a("s_waitcnt lgkmcnt(0)")
    a("v_readfirstlane_b32 s40, v73")
    a("s_sub_u32 s63, s63, 1")
    a("s_cmp_eq_u32 s63, 0")
    a(f"s_cbranch_scc1 K2_pollx{tag}")
    a("s_cmp_eq_u32 s40, 1")
    a(f"s_cbranch_scc0 K2_poll{tag}")
    a(f"K2_pollx{tag}:")
    for i in range(4):
        a(f"ds_read_b128 v[{80+4*i}:{83+4*i}], v5 offset:{1024*i}")
    for i in range(4):
        for q in range(2):
            a(f"v_lshlrev_b32 v{96+4*i+2*q}, 16, v{64+2*i+q}")
            a(f"v_and_b32 v{97+4*i+2*q}, 0xffff0000, v{64+2*i+q}")
    a("s_waitcnt vmcnt(0)")
    for i in range(4):
        for q in range(2):
            a(f"v_lshlrev_b32 v{112+4*i+2*q}, 16, v{144+2*i+q}")
            a(f"v_and_b32 v{113+4*i+2*q}, 0xffff0000, v{144+2*i+q}")
    a("s_waitcnt lgkmcnt(0)")
    for j in range(8):
        a(f"v_pk_add_f32 v[{keep+2*j}:{keep+2*j+1}], v[{keep+2*j}:{keep+2*j+1}], v[{80+2*j}:{81+2*j}]")
    for j in range(8):
        a(f"v_pk_fma_f32 v[{keep+2*j}:{keep+2*j+1}], v[{96+2*j}:{97+2*j}], s[36:37], v[{keep+2*j}:{keep+2*j+1}] op_sel_hi:[1,0,1]")
    for j in range(8):
        a(f"v_pk_fma_f32 v[{keep+2*j}:{keep+2*j+1}], v[{keep+2*j}:{keep+2*j+1}], s[36:37], v[{112+2*j}:{113+2*j}] op_sel:[0,1,0] op_sel_hi:[1,1,1]")
    for j in range(8):
        a(f"v_cvt_pk_bf16_f32 v{64+j}, v{keep+2*j}, v{keep+2*j+1}")
    for i in range(4):
        a(f"ds_write_b64 v10, v[{64+2*i}:{65+2*i}] offset:{16*i}")
    a("s_waitcnt lgkmcnt(0)")
    a("ds_read_b128 v[72:75], v11")
    a("ds_read_b128 v[76:79], v11 offset:1280")
    a("s_waitcnt lgkmcnt(1)")
    a("global_store_dwordx4 v9, v[72:75], s[14:15]" + SC1)
    a("s_waitcnt lgkmcnt(0)")
    a("global_store_dwordx4 v12, v[76:79], s[14:15]" + SC1)
    a("s_branch K2_END")

def side_load_and_stage(a):
    for i in range(8):
        a(f"buffer_load_dwordx4 v[{32+4*i}:{35+4*i}], v10, s[44:47], s49 offen nt")
        if i < 7: a("s_add_u32 s49, s49, s48")

def k2(a):
    name = "k2_kernel"
    a.begin_kernel(name, 256, 512, K2_LDS)
    a("s_cmp_ge_u32 s2, 256")
    a("s_cbranch_scc1 K2_EXIT")
    stamp(a, 0)
    a("s_load_dwordx2 s[14:15], s[0:1], 128")
    a("s_load_dwordx2 s[12:13], s[0:1], 48")
    a("s_load_dwordx2 s[16:17], s[0:1], 64")
    a("s_load_dwordx2 s[18:19], s[0:1], 80")
    wave_id(a, 24, 1)
    a("v_and_b32 v1, 63, v0")
    a("s_cmp_ge_u32 s24, 4")
    a("s_cbranch_scc1 K2_SIDE")
    a("s_lshl_b32 s27, s2, 1")
    a("s_lshr_b32 s25, s24, 1")
    a("s_and_b32 s26, s24, 1")
    a("s_lshl_b32 s28, s27, 12")
    a(f"s_add_u32 s28, s28, {XT}") if XT else None
    a("v_lshl_add_u32 v44, v0, 4, s28")
    a("v_add_u32 v45, 4096, v44")
    a("v_lshlrev_b32 v46, 5, v0")
    a(f"v_add_u32 v46, {STAT1}, v46")
    a(f"v_add_u32 v47, 8192, v46")
    a(f"s_mul_i32 s29, s27, {KW}")
    a(f"s_add_u32 s29, s29, {KREV + 4080}")
    a("v_lshlrev_b32 v48, 4, v0")
    a("v_sub_u32 v48, s29, v48")
    a(f"v_add_u32 v49, {KW}, v48")
    a("v_and_b32 v50, 31, v1")
    a("v_lshrrev_b32 v51, 5, v1")
    a("s_lshl_b32 s30, s25, 12")
    a("s_add_u32 s30, s30, s28")
    a("s_lshl_b32 s31, s26, 11")
    a("s_add_u32 s30, s30, s31")
    a("v_lshlrev_b32 v52, 6, v50")
    a("v_lshl_add_u32 v52, v51, 3, v52")
    a("v_add_u32 v52, s30, v52")
    a("s_lshl_b32 s32, s27, 2")
    a(f"s_add_u32 s33, s32, {MODF}")
    a(f"s_add_u32 s34, s32, {MODF + 2048}")
    a(f"s_add_u32 s35, s32, {MODF + 4096}")
    a("s_lshl_b32 s31, s2, 2")
    a("s_waitcnt lgkmcnt(0)")
    wsfix(a, 14)
    a("global_load_dwordx4 v[28:31], v48, s[14:15]")
    a("global_load_dwordx4 v[32:35], v48, s[14:15] offset:16")
    a("global_load_dwordx4 v[36:39], v49, s[14:15]")
    a("global_load_dwordx4 v[40:43], v49, s[14:15] offset:16")
    a("global_load_dwordx4 v[4:7], v44, s[14:15]")
    a("global_load_dwordx4 v[8:11], v45, s[14:15]")
    a("global_load_dwordx4 v[12:15], v46, s[14:15]")
    a("global_load_dwordx4 v[16:19], v46, s[14:15] offset:16")
    a("global_load_dwordx4 v[20:23], v47, s[14:15]")
    a("global_load_dwordx4 v[24:27], v47, s[14:15] offset:16")
    for i in range(4):
        a(f"global_load_dwordx2 v[{144+2*i}:{145+2*i}], v52, s[14:15] offset:{16*i}")
    a("s_load_dwordx2 s[50:51], s[14:15], s33")
    a("s_load_dwordx2 s[52:53], s[14:15], s34")
    a("s_load_dwordx2 s[54:55], s[14:15], s35")
    a("s_load_dword s56, s[12:13], s31")
    a("v_mov_b32 v56, 0\nv_mov_b32 v57, 0\nv_mov_b32 v58, 0\nv_mov_b32 v59, 0")
    a("v_mul_u32_u24 v53, 171, v0")
    a("v_lshrrev_b32 v53, 9, v53")
    a("v_mul_u32_u24 v54, 3, v53")
    a("v_sub_u32 v54, v0, v54")
    a(f"v_mul_u32_u24 v53, {CS}, v53")
    a("v_lshl_add_u32 v53, v54, 4, v53")
    a("v_cmp_gt_u32 vcc, 48, v0")
    a("s_and_saveexec_b64 s[42:43], vcc")
    a("ds_write_b128 v53, v[56:59]")
    a("s_mov_b64 exec, s[42:43]")
    a("v_lshlrev_b32 v53, 4, v0")
    a(f"v_add_u32 v53, {UB}, v53")
    a("v_cmp_gt_u32 vcc, 155, v0")
    a("s_and_saveexec_b64 s[42:43], vcc")
    a(f"ds_write_b128 v53, v[56:59]")
    a(f"ds_write_b128 v53, v[56:59] offset:{U_CH}")
    a("s_mov_b64 exec, s[42:43]")
    a("v_lshlrev_b32 v53, 2, v0")
    a("v_cmp_gt_u32 vcc, 4, v0")
    a("s_and_saveexec_b64 s[42:43], vcc")
    a(f"v_add_u32 v53, {FLG}, v53")
    a("ds_write_b32 v53, v56")
    a("s_mov_b64 exec, s[42:43]")
    a("v_and_b32 v53, 7, v50")
    a("v_lshrrev_b32 v54, 3, v50")
    a(f"v_mul_u32_u24 v2, {CS}, v53")
    a("v_sub_u32 v54, v54, v51")
    a("v_add_u32 v54, 1, v54")
    a("v_lshl_add_u32 v2, v54, 4, v2")
    a(f"s_mul_i32 s38, s25, {KC_CH}")
    a("v_add_u32 v2, s38, v2")
    a("v_mul_u32_u24 v3, 80, v50")
    a("v_lshl_add_u32 v3, v51, 4, v3")
    a(f"s_mul_i32 s38, s25, {U_CH}")
    a(f"s_add_u32 s38, s38, {UB}")
    a("v_add_u32 v3, s38, v3")
    a("v_lshlrev_b32 v55, 4, v0")
    a("v_add_u32 v55, 48, v55")
    for c in range(2):
        W = 28 + 8 * c
        a(f"s_waitcnt vmcnt({12 - 2*c})")
        V = 60
        for j in range(7): a(f"v_alignbit_b32 v{V+j}, v{W+j+1}, v{W+j}, 16")
        for j in range(1, 7): a(f"v_alignbit_b32 v{68+j-1}, v{W+j+1}, v{W+j}, 16")
        for j in range(1, 7): a(f"v_mov_b32 v{76+j-1}, v{W+j}")
        off = c * KC_CH
        a(f"ds_write_b128 v55, v[{W}:{W+3}] offset:{off + 7*CS}")
        a(f"ds_write_b128 v55, v[{W+2}:{W+5}] offset:{off + 3*CS}")
        a(f"ds_write_b128 v55, v[{V}:{V+3}] offset:{off + 6*CS}")
        a(f"ds_write_b128 v55, v[{V+2}:{V+5}] offset:{off + 2*CS}")
        a(f"ds_write_b128 v55, v[68:71] offset:{off + 4*CS}")
        a(f"ds_write_b128 v55, v[70:73] offset:{off + 0*CS}")
        a(f"ds_write_b128 v55, v[76:79] offset:{off + 5*CS}")
        a(f"ds_write_b128 v55, v[78:81] offset:{off + 1*CS}")
    a("s_waitcnt vmcnt(4) lgkmcnt(0)")
    a("v_add_f32 v60, 1.0, s52")
    a("v_add_f32 v61, 1.0, s53")
    rbf(a, 60, 60); rbf(a, 61, 61)
    a("s_nop 0")
    a("v_readfirstlane_b32 s58, v60")
    a("v_readfirstlane_b32 s60, v61")
    a("s_mov_b32 s59, s50")
    a("s_mov_b32 s61, s51")
    a("s_lshl_b32 s38, s25, 4")
    a("s_lshr_b32 s36, s56, s38")
    a("s_lshl_b32 s36, s36, 16")
    a("s_cmp_eq_u32 s25, 0")
    a("s_cselect_b32 s37, s54, s55")
    a("v_lshrrev_b32 v62, 2, v0")
    a("v_mul_u32_u24 v62, 80, v62")
    a("v_and_b32 v63, 3, v0")
    a("v_lshl_add_u32 v62, v63, 4, v62")
    a(f"v_add_u32 v62, {UB + 31*80}, v62")
    for c in range(2):
        X = 4 + 4 * c
        for q in range(4):
            a(f"v_lshlrev_b32 v{64+2*q}, 16, v{X+q}")
            a(f"v_and_b32 v{65+2*q}, 0xffff0000, v{X+q}")
        for q in range(4):
            a(f"v_pk_fma_f32 v[{64+2*q}:{65+2*q}], v[{64+2*q}:{65+2*q}], v[{12+2*q}:{13+2*q}], v[{20+2*q}:{21+2*q}]")
        for q in range(4):
            a(f"v_pk_fma_f32 v[{64+2*q}:{65+2*q}], v[{64+2*q}:{65+2*q}], s[{58+2*c}:{59+2*c}], s[{58+2*c}:{59+2*c}] op_sel:[0,0,1] op_sel_hi:[1,0,1]")
        for q in range(4):
            a(f"v_cvt_pk_bf16_f32 v{72+4*c+q}, v{64+2*q}, v{65+2*q}")
        a(f"ds_write_b128 v62, v[{72+4*c}:{75+4*c}] offset:{c*U_CH}")
    a("s_lshl_b32 s38, s24, 12")
    a(f"s_add_u32 s38, s38, {SCR}")
    a("v_lshl_add_u32 v4, v1, 4, s38")
    a("s_xor_b32 s39, s24, 1")
    a("s_lshl_b32 s38, s39, 12")
    a(f"s_add_u32 s38, s38, {SCR}")
    a("v_lshl_add_u32 v5, v1, 4, s38")
    a("s_lshl_b32 s38, s24, 2")
    a(f"s_add_u32 s38, s38, {FLG}")
    a("v_mov_b32 v7, s38")
    a("s_lshl_b32 s38, s39, 2")
    a(f"s_add_u32 s38, s38, {FLG}")
    a("v_mov_b32 v8, s38")
    a("v_mul_u32_u24 v6, 80, v50")
    a("v_lshl_add_u32 v6, v51, 3, v6")
    a(f"s_mul_i32 s38, s25, {U_CH}")
    a(f"s_mul_i32 s39, s26, {32*80}")
    a("s_add_u32 s38, s38, s39")
    a(f"s_add_u32 s38, s38, {UB + 31*80}")
    a("v_add_u32 v6, s38, v6")
    a("s_add_u32 s38, s27, s25")
    a("s_lshl_b32 s38, s38, 7")
    a("s_lshl_b32 s39, s26, 20")
    a("s_add_u32 s38, s38, s39")
    a(f"s_add_u32 s38, s38, {X2T}")
    a("v_lshrrev_b32 v9, 3, v1")
    a("v_lshlrev_b32 v9, 16, v9")
    a("v_and_b32 v63, 7, v1")
    a("v_lshl_add_u32 v9, v63, 4, v9")
    a("v_add_u32 v9, s38, v9")
    a("v_add_u32 v12, 0x80000, v9")
    a(f"s_mul_i32 s38, s25, {KC_CH}")
    a("s_mul_i32 s39, s26, 2560")
    a("s_add_u32 s38, s38, s39")
    a("v_mul_u32_u24 v10, 80, v50")
    a("v_lshl_add_u32 v10, v51, 3, v10")
    a("v_add_u32 v10, s38, v10")
    a("v_lshrrev_b32 v11, 2, v1")
    a("v_mul_u32_u24 v11, 80, v11")
    a("v_and_b32 v63, 3, v1")
    a("v_lshl_add_u32 v11, v63, 4, v11")
    a("v_add_u32 v11, s38, v11")
    for r in range(32, 64): a(f"v_mov_b32 v{r}, 0")
    stamp(a, 1)
    a("s_waitcnt lgkmcnt(0)")
    a("s_barrier")
    stamp(a, 2)
    a("s_cmp_eq_u32 s26, 0")
    a("s_cbranch_scc0 K2_B")
    conv_path(a, 0, "A")
    a("K2_B:   ; LINT-RESET")
    conv_path(a, 1, "B")
    a("K2_SIDE:   ; LINT-RESET")
    a("s_sub_u32 s25, s24, 4")
    a("s_lshl_b32 s26, s25, 8")
    a("s_add_u32 s26, s26, s2")
    a(f"s_mul_i32 s27, s25, {SIDE_SZ}")
    a(f"s_add_u32 s27, s27, {SIDE}")
    a("s_cmp_gt_u32 s26, 348")
    a("s_cbranch_scc1 K2_SIDE_IDLE")
    a("s_cmp_eq_u32 s26, 348")
    a("s_cbranch_scc1 K2_TAB")
    a("v_lshrrev_b32 v2, 2, v1")
    a("v_and_b32 v3, 3, v1")
    a("v_lshrrev_b32 v4, 4, v1")
    a("v_bfe_u32 v5, v1, 2, 2")
    a("v_mul_u32_u24 v11, 80, v2")
    a("v_lshl_add_u32 v11, v3, 4, v11")
    a("v_add_u32 v11, s27, v11")
    a("v_lshl_add_u32 v12, v4, 2, v5")
    a("v_mul_u32_u24 v12, 80, v12")
    a("v_lshl_add_u32 v12, v3, 3, v12")
    a("v_add_u32 v12, s27, v12")
    a("s_cmp_ge_u32 s26, 172")
    a("s_cbranch_scc1 K2_W2")
    a("s_mul_i32 s28, s26, 1525")
    a("s_lshr_b32 s28, s28, 16")
    a("s_mul_i32 s29, s28, 43")
    a("s_sub_u32 s29, s26, s29")
    a("v_mul_u32_u24 v10, 2752, v2")
    a("v_lshl_add_u32 v10, v3, 4, v10")
    a(f"s_mul_i32 s49, s28, {128*2752}")
    a("s_lshl_b32 s30, s29, 6")
    a("s_add_u32 s49, s49, s30")
    a(f"s_mov_b32 s48, {16*2752}")
    a("s_lshl_b32 s31, s28, 9")
    a("v_lshl_add_u32 v13, v1, 2, s31")
    a(f"v_add_u32 v13, {MODF + 3*2048}, v13")
    a("v_add_u32 v14, 2048, v13")
    a("s_waitcnt lgkmcnt(0)")
    wsfix(a, 14)
    a.srd(44, 16, 512 * 1376 * 2)
    a("global_load_dword v20, v13, s[14:15]")
    a("global_load_dword v21, v13, s[14:15] offset:256")
    a("global_load_dword v22, v14, s[14:15]")
    a("global_load_dword v23, v14, s[14:15] offset:256")
    side_load_and_stage(a)
    a("s_barrier")
    a("s_waitcnt vmcnt(8)")
    a("v_add_f32 v22, 1.0, v22")
    a("v_add_f32 v23, 1.0, v23")
    rbf(a, 22, 22); rbf(a, 23, 23)
    a("v_lshl_add_u32 v15, v1, 2, s27")
    a("v_lshl_add_u32 v16, v1, 1, s27")
    a("ds_write_b32 v15, v22 offset:10240")
    a("ds_write_b32 v15, v23 offset:10496")
    a("ds_write_b16_d16_hi v16, v20 offset:10752")
    a("ds_write_b16_d16_hi v16, v21 offset:10880")
    for i in range(8):
        a(f"s_waitcnt vmcnt({7-i})")
        a(f"ds_write_b128 v11, v[{32+4*i}:{35+4*i}] offset:{16*80*i}")
    a("v_and_b32 v17, 15, v1")
    a("v_cmp_eq_u32 s[50:51], 0, v17")
    a("v_cmp_eq_u32 s[52:53], 1, v17")
    a("v_mov_b32 v18, 0")
    a("v_mov_b32 v19, 0x3f803f80")
    a("v_cndmask_b32 v18, v18, v19, s[50:51]")
    a("v_mov_b32 v19, 0")
    a("v_cndmask_b32 v19, v19, -1, s[52:53]")
    a("v_lshl_add_u32 v24, v4, 4, s27")
    a("v_lshl_add_u32 v25, v4, 3, s27")
    for r in range(96, 112): a(f"v_mov_b32 v{r}, 0")
    a("s_lshl_b32 s30, s29, 11")
    a(f"s_mul_i32 s31, s28, {4*87*1024}")
    a("s_add_u32 s30, s30, s31")
    a(f"s_add_u32 s30, s30, {W1F}")
    a("v_lshl_add_u32 v26, v1, 4, s30")
    a("s_waitcnt lgkmcnt(0)")
    for ks in range(4):
        a(f"ds_read_b128 v[32:35], v24 offset:{10240 + 128*ks}")
        a(f"ds_read_b128 v[36:39], v24 offset:{10240 + 128*ks + 64}")
        a(f"ds_read_b64 v[40:41], v25 offset:{10752 + 64*ks}")
        a(f"ds_read_b64 v[42:43], v25 offset:{10752 + 64*ks + 32}")
        for nt in range(2):
            for hf in range(2):
                a(f"ds_read_b64_tr_b16 v[{44+4*nt+2*hf}:{45+4*nt+2*hf}], v12 offset:{(32*ks+16*hf)*80 + 32*nt}")
        a("s_waitcnt lgkmcnt(4)")
        for q in range(4): a(f"v_and_or_b32 v{40+q}, v{40+q}, v19, v18")
        a("s_waitcnt lgkmcnt(0)")
        for nt in range(2):
            R = 44 + 4 * nt
            for q in range(4):
                a(f"v_lshlrev_b32 v{52+2*q}, 16, v{R+q}")
                a(f"v_and_b32 v{53+2*q}, 0xffff0000, v{R+q}")
            a(f"v_mfma_f32_16x16x32_bf16 v[{96+4*nt}:{99+4*nt}], v[{R}:{R+3}], v[40:43], v[{96+4*nt}:{99+4*nt}]")
            for q in range(4):
                a(f"v_pk_mul_f32 v[{52+2*q}:{53+2*q}], v[{52+2*q}:{53+2*q}], v[{32+2*q}:{33+2*q}]")
            S = 60 + 4 * nt
            for q in range(4):
                a(f"v_cvt_pk_bf16_f32 v{S+q}, v{52+2*q}, v{53+2*q}")
            a(f"global_store_dwordx4 v26, v[{S}:{S+3}], s[14:15] offset:{1024*nt}" + SC1)
            if nt == 1: a(f"v_add_u32 v26, {87*1024}, v26")
            a("s_nop 0")
            a(f"v_mfma_f32_16x16x32_bf16 v[{104+4*nt}:{107+4*nt}], v[{S}:{S+3}], v[40:43], v[{104+4*nt}:{107+4*nt}]")
    a(f"s_mul_i32 s30, s28, {3*5504}")
    a("s_lshl_b32 s31, s29, 7")
    a("s_add_u32 s30, s30, s31")
    a(f"s_add_u32 s30, s30, {SVP}")
    a("v_lshl_add_u32 v28, v4, 4, s30")
    a("v_add_u32 v29, 5504, v28")
    a("v_add_u32 v30, 5504, v29")
    a("s_nop 7")
    a("s_mov_b64 s[42:43], exec")
    a("s_mov_b64 exec, s[50:51]")
    for nt in range(2):
        a(f"global_store_dwordx4 v28, v[{104+4*nt}:{107+4*nt}], s[14:15] offset:{64*nt}" + SC1)
        a(f"global_store_dwordx4 v30, v[{96+4*nt}:{99+4*nt}], s[14:15] offset:{64*nt}" + SC1)
    a("s_mov_b64 exec, s[52:53]")
    for nt in range(2):
        a(f"global_store_dwordx4 v29, v[{96+4*nt}:{99+4*nt}], s[14:15] offset:{64*nt}" + SC1)
    a("s_mov_b64 exec, s[42:43]")
    a("s_branch K2_END")
    a("K2_W2:   ; LINT-RESET")
    a("s_sub_u32 s26, s26, 172")
    a("s_and_b32 s29, s26, 15")
    a("s_lshr_b32 s28, s26, 4")
    a("v_lshlrev_b32 v10, 10, v2")
    a("v_lshl_add_u32 v10, v3, 4, v10")
    a("s_lshl_b32 s30, s29, 6")
    a("s_waitcnt lgkmcnt(0)")
    wsfix(a, 14)
    a.srd(44, 18, 1376 * 512 * 2)
    for ks in range(4):
        a("s_lshl_b32 s31, s28, 2")
        a(f"s_add_u32 s31, s31, {ks}")
        a("s_mul_i32 s32, s31, 13")
        a("s_lshr_b32 s32, s32, 6")
        a("s_mul_i32 s33, s32, 5")
        a("s_sub_u32 s33, s31, s33")
        a("s_mul_i32 s32, s32, 11")
        a("s_min_u32 s32, s32, 76")
        a("s_lshl_b32 s33, s33, 1")
        a("s_add_u32 s32, s32, s33")
        a("s_add_u32 s33, s32, 1")
        a("s_sub_u32 s34, s31, 40")
        a("s_mul_i32 s34, s34, 22")
        a("s_add_u32 s35, s34, 21")
        a("s_add_u32 s34, s34, 10")
        a("s_cmp_lt_u32 s31, 40")
        a("s_cselect_b32 s32, s32, s34")
        a("s_cselect_b32 s33, s33, s35")
        for hf, sr in ((0, 32), (1, 33)):
            a(f"s_lshl_b32 s49, s{sr}, 14")
            a("s_add_u32 s49, s49, s30")
            i = 2 * ks + hf
            a(f"buffer_load_dwordx4 v[{32+4*i}:{35+4*i}], v10, s[44:47], s49 offen nt")
    a("s_barrier")
    for i in range(8):
        a(f"s_waitcnt vmcnt({7-i})")
        a(f"ds_write_b128 v11, v[{32+4*i}:{35+4*i}] offset:{16*80*i}")
    a("s_lshr_b32 s30, s29, 1")
    a("s_mul_i32 s30, s30, 43")
    a("s_lshl_b32 s31, s28, 2")
    a("s_add_u32 s30, s30, s31")
    a("s_lshl_b32 s30, s30, 12")
    a("s_and_b32 s31, s29, 1")
    a("s_lshl_b32 s31, s31, 11")
    a("s_add_u32 s30, s30, s31")
    a(f"s_add_u32 s30, s30, {W2F}")
    a("v_lshl_add_u32 v26, v1, 4, s30")
    a("s_waitcnt lgkmcnt(0)")
    for ks in range(4):
        if ks == 3:
            a("s_cmp_eq_u32 s28, 10")
            a("s_cbranch_scc1 K2_END")
        for nt in range(2):
            for hf in range(2):
                a(f"ds_read_b64_tr_b16 v[{44+4*nt+2*hf}:{45+4*nt+2*hf}], v12 offset:{(32*ks+16*hf)*80 + 32*nt}")
        a("s_waitcnt lgkmcnt(2)")
        a(f"global_store_dwordx4 v26, v[44:47], s[14:15]" + SC1)
        a("s_waitcnt lgkmcnt(0)")
        a(f"global_store_dwordx4 v26, v[48:51], s[14:15] offset:1024" + SC1)
        a("v_add_u32 v26, 4096, v26")
    a("s_branch K2_END")
    a("K2_TAB:   ; LINT-RESET")
    a("v_lshlrev_b32 v2, 5, v1")
    a(f"v_add_u32 v2, {MODF + 3*2048}, v2")
    a("v_add_u32 v3, 2048, v2")
    a("s_waitcnt lgkmcnt(0)")
    wsfix(a, 14)
    a("global_load_dwordx4 v[32:35], v2, s[14:15]")
    a("global_load_dwordx4 v[36:39], v2, s[14:15] offset:16")
    a("global_load_dwordx4 v[40:43], v3, s[14:15]")
    a("global_load_dwordx4 v[44:47], v3, s[14:15] offset:16")
    a("s_barrier")
    a("s_waitcnt vmcnt(0)")
    for j in range(8): a(f"v_add_f32 v{40+j}, 1.0, v{40+j}")
    for j in range(8): rbf(a, 40 + j, 40 + j)
    for j in range(8): a(f"v_mul_f32 v{48+j}, v{40+j}, v{40+j}")
    for j in range(8): a(f"v_mul_f32 v{56+j}, v{40+j}, v{32+j}")
    for k, base in enumerate((40, 48, 56, 32)):
        a(f"v_add_f32 v{100+k}, v{base}, v{base+1}")
        for j in range(2, 8): a(f"v_add_f32 v{100+k}, v{100+k}, v{base+j}")
    a("v_mul_f32 v104, v32, v32")
    for j in range(1, 8): a(f"v_fmac_f32 v104, v{32+j}, v{32+j}")
    a("v_lshl_add_u32 v4, v1, 4, s27")
    a("v_mov_b32 v64, 0x3f803f80\nv_mov_b32 v65, 0x3f803f80\nv_mov_b32 v66, 0x3f803f80\nv_mov_b32 v67, 0x3f803f80")
    a("ds_write_b128 v4, v[64:67]")
    for q in range(4): a(f"v_cvt_pk_bf16_f32 v{68+q}, v{40+2*q}, v{41+2*q}")
    a("ds_write_b128 v4, v[68:71] offset:1024")
    for (src, row) in ((48, 2), (56, 4)):
        for q in range(4): a(f"v_cvt_pk_bf16_f32 v{72+q}, v{src+2*q}, v{src+2*q+1}")
        a(f"ds_write_b128 v4, v[72:75] offset:{1024*row}")
        for q in range(4):
            a(f"v_lshlrev_b32 v{80+2*q}, 16, v{72+q}")
            a(f"v_and_b32 v{81+2*q}, 0xffff0000, v{72+q}")
        for j in range(8): a(f"v_sub_f32 v{80+j}, v{src+j}, v{80+j}")
        for q in range(4): a(f"v_cvt_pk_bf16_f32 v{76+q}, v{80+2*q}, v{81+2*q}")
        a(f"ds_write_b128 v4, v[76:79] offset:{1024*(row+1)}")
    a("s_nop 1")
    for ctl in ("row_shr:1", "row_shr:2", "row_shr:4", "row_shr:8", "row_bcast:15 row_mask:0xa", "row_bcast:31 row_mask:0xc"):
        for r in range(100, 105):
            a(f"v_add_f32_dpp v{r}, v{r}, v{r} {ctl}")
    a(f"v_mov_b32 v5, {SCAL}")
    a("s_mov_b64 s[42:43], exec")
    a("s_mov_b64 exec, 0x8000000000000000") if False else None
    a("v_cmp_eq_u32 vcc, 63, v1")
    a("s_and_saveexec_b64 s[42:43], vcc")
    a("global_store_dwordx4 v5, v[100:103], s[14:15]" + SC1)
    a("global_store_dword v5, v104, s[14:15] offset:16" + SC1)
    a("s_mov_b64 exec, s[42:43]")
    a("v_and_b32 v6, 15, v1")
    a("v_lshrrev_b32 v7, 4, v1")
    a("v_min_u32 v8, 5, v6")
    a("v_lshlrev_b32 v8, 10, v8")
    a("v_lshl_add_u32 v8, v7, 3, v8")
    a("v_add_u32 v8, s27, v8")
    a("v_cmp_gt_u32 vcc, 6, v6")
    a("v_mov_b32 v9, 0")
    a("s_nop 0")
    a("v_cndmask_b32 v9, v9, -1, vcc")
    a(f"s_mov_b32 s30, {W1F + 86*1024}")
    a("v_lshl_add_u32 v10, v1, 4, s30")
    a("s_waitcnt lgkmcnt(0)")
    for ks in range(16):
        R = 16 + 4 * (ks & 1)
        a(f"ds_read_b64 v[{R}:{R+1}], v8 offset:{64*ks}")
        a(f"ds_read_b64 v[{R+2}:{R+3}], v8 offset:{64*ks+32}")
        a("s_waitcnt lgkmcnt(0)")
        for q in range(4): a(f"v_and_b32 v{R+q}, v{R+q}, v9")
        a(f"global_store_dwordx4 v10, v[{R}:{R+3}], s[14:15]" + SC1)
        a(f"v_add_u32 v10, {87*1024}, v10")
    a("s_branch K2_END")
    a("K2_SIDE_IDLE:   ; LINT-RESET")
    a("s_cmp_eq_u32 s26, 349")
    a("s_cbranch_scc0 K2_idle2")
    a("s_waitcnt lgkmcnt(0)")
    wsfix(a, 14)
    a("v_mov_b32 v4, 0\nv_mov_b32 v5, 0\nv_mov_b32 v6, 0\nv_mov_b32 v7, 0")
    a("v_lshlrev_b32 v2, 4, v1")
    a(f"v_add_u32 v2, {FLAGS_OFF}, v2")
    for q in range(4):
        a(f"global_store_dwordx4 v2, v[4:7], s[14:15] offset:{1024*q} sc1")
    a("K2_idle2:")
    a("s_barrier")
    a("K2_END:   ; LINT-RESET")
    stamp_store(a, 1, 14, 24)
    a("K2_EXIT:")
    a.end_kernel(name, 160, 100)


KG   = SIDE + 4 * SIDE_SZ
KG_PAR = KG
KG_T16 = KG + 4096
KG_REV = KG + 4096 + 2816
LF   = KG_REV + 2 * 4160
K12_LDS = LF + 64
KG_PART = SCR
GBAR = 0x0639000
WCNT = GBAR + 10752

_sync_id = [0]
def wsync(a, addr, n, vt, st, add=True):
    _sync_id[0] += 1
    L = f"WS_{_sync_id[0]}"
    a("s_waitcnt lgkmcnt(0)")
    if isinstance(addr, str): a(f"v_mov_b32 v{vt}, {addr}")
    else: a(f"v_mov_b32 v{vt}, {addr}")
    if add:
        a(f"v_mov_b32 v{vt+1}, 1")
        a("s_mov_b64 exec, 1")
        a(f"ds_add_u32 v{vt}, v{vt+1}")
        a("s_mov_b64 exec, -1")
    a("s_mov_b32 s63, 0x400000")
    a(f"{L}:")
    a(f"ds_read_b32 v{vt+1}, v{vt}")
    a("s_waitcnt lgkmcnt(0)")
    a(f"v_readfirstlane_b32 s{st}, v{vt+1}")
    a("s_sub_u32 s63, s63, 1")
    a("s_cmp_eq_u32 s63, 0")
    a(f"s_cbranch_scc1 {L}_x")
    a(f"s_cmp_ge_u32 s{st}, {n}")
    a(f"s_cbranch_scc0 {L}")
    a(f"{L}_x:")

def k12(a):
    name = "k12_kernel"
    a.begin_kernel(name, 256, 512, K12_LDS)
    a("s_cmp_ge_u32 s2, 256")
    a("s_cbranch_scc1 K2_EXIT")
    stamp(a, 0)
    a("s_load_dwordx8 s[4:11], s[0:1], 8")
    a("s_load_dwordx4 s[44:47], s[0:1], 40")
    a("s_load_dwordx2 s[14:15], s[0:1], 128")
    a("s_load_dwordx2 s[16:17], s[0:1], 0")
    a("s_load_dwordx2 s[18:19], s[0:1], 120")
    a("s_load_dwordx4 s[20:23], s[0:1], 96")
    a("s_load_dwordx2 s[48:49], s[0:1], 64")
    a("s_load_dwordx2 s[12:13], s[0:1], 80")
    wave_id(a, 24, 1)
    a("v_and_b32 v1, 63, v0")
    a("v_lshlrev_b32 v2, 2, v0")
    a(f"v_add_u32 v2, {LF}, v2")
    a("v_mov_b32 v3, 0")
    a("v_cmp_gt_u32 vcc, 16, v0")
    a("s_and_saveexec_b64 s[42:43], vcc")
    a("ds_write_b32 v2, v3")
    a("s_mov_b64 exec, s[42:43]")
    a("s_cmp_ge_u32 s24, 4")
    a("s_cbranch_scc1 K12_SIDE0")
    a("s_lshr_b32 s25, s24, 1")
    a("s_and_b32 s26, s24, 1")
    a("s_lshl_b32 s62, s2, 1")
    a("s_add_u32 s27, s62, s25")
    a("s_lshl_b32 s28, s27, 8")
    a("s_lshl_b32 s29, s26, 7")
    a("s_add_u32 s28, s28, s29")
    a("v_lshl_add_u32 v2, v1, 1, s28")
    a("s_lshl_b32 s30, s2, 2")
    a("s_waitcnt lgkmcnt(0)")
    wsfix(a, 14)
    a("global_load_ushort v4, v2, s[4:5] nt")
    a("global_load_ushort v5, v2, s[6:7] nt")
    a("global_load_ushort v6, v2, s[8:9] nt")
    a("global_load_ushort v7, v2, s[10:11] nt")
    a("s_load_dword s29, s[44:45], s30")
    a("s_load_dword s56, s[46:47], s30")
    a("s_branch K12_CONV0")
    a("K12_SIDE0:   ; LINT-RESET")
    a("s_setprio 3")
    a("s_sub_u32 s25, s24, 4")
    a("s_and_b32 s28, s2, 7")
    a("s_lshr_b32 s29, s2, 3")
    a("s_lshr_b32 s26, s29, 3")
    a("s_lshl_b32 s27, s28, 2")
    a("s_add_u32 s26, s26, s27")
    a("s_and_b32 s27, s29, 7")
    a("s_lshl_b32 s30, s28, 8")
    a("s_lshl_b32 s31, s29, 3")
    a("s_add_u32 s30, s30, s31")
    a("s_lshl_b32 s31, s25, 1")
    a("s_add_u32 s30, s30, s31")
    a(f"s_mul_i32 s57, s25, {SIDE_SZ}")
    a(f"s_add_u32 s57, s57, {SIDE}")
    a("v_subrev_u32 v30, 256, v0")
    a("s_lshl_b32 s28, s26, 16")
    a("s_lshl_b32 s29, s27, 7")
    a("s_add_u32 s28, s28, s29")
    a("v_lshrrev_b32 v2, 3, v30")
    a("v_and_b32 v3, 7, v30")
    a("v_lshlrev_b32 v4, 10, v2")
    a("v_lshl_add_u32 v4, v3, 4, v4")
    a("v_add_u32 v4, s28, v4")
    a("v_add_u32 v5, 0x8000, v4")
    a("s_lshl_b32 s31, s30, 10")
    a("v_lshl_add_u32 v6, v1, 4, s31")
    a("s_and_b32 s33, s2, 7")
    a("s_mul_i32 s33, s33, 6")
    a("s_lshr_b32 s34, s2, 5")
    a("s_add_u32 s33, s33, s34")
    a("s_bfe_u32 s34, s2, 0x20003")
    a("s_lshl_b32 s35, s34, 7")
    a("v_add_u32 v7, s35, v2")
    a("v_mul_u32_u24 v25, 6144, v7")
    a("v_lshl_add_u32 v25, v3, 4, v25")
    a("s_lshl_b32 s35, s33, 7")
    a("v_add_u32 v25, s35, v25")
    a(f"v_add_u32 v26, {32*6144}, v25")
    a(f"v_add_u32 v27, {32*6144}, v26")
    a(f"v_add_u32 v28, {32*6144}, v27")
    a("v_lshlrev_b32 v29, 1, v7")
    a("s_waitcnt lgkmcnt(0)")
    wsfix(a, 14)
    NTX = " nt" if OPT.get("ntx", "0") == "1" else ""
    NTS = " nt" if OPT.get("nts", "0") == "1" else ""
    NTW = " nt" if OPT.get("ntw", "1") == "1" else ""
    a("global_load_dwordx4 v[8:11], v4, s[16:17]" + NTX)
    a("global_load_dwordx4 v[12:15], v5, s[16:17]" + NTX)
    a("global_load_dwordx4 v[16:19], v6, s[16:17]" + NTS)
    a("global_load_dwordx4 v[20:23], v6, s[16:17] offset:1024" + NTS)
    a("s_cmp_ge_u32 s2, 192")
    a("s_cbranch_scc1 K1_nomodld")
    for k in range(4): a(f"global_load_ushort v{48+k}, v29, s[20:21] offset:{64*k}")
    for k, vo in enumerate((25, 26, 27, 28)):
        a(f"global_load_dwordx4 v[{32+4*k}:{35+4*k}], v{vo}, s[22:23]" + NTW)
    a("K1_nomodld:")
    if OPT.get("cpf", "1") == "1":
        a("s_sub_u32 s65, s2, 192")
        a("s_cmp_ge_u32 s65, 16")
        a("s_cbranch_scc1 K12_nocpf")
        a("s_cmp_lg_u32 s24, 7")
        a("s_cbranch_scc1 K12_nocpf")
        code_prefetch(a, "k12_kernel", LASTLABEL, 6, "k1", 199, 200)
        a("K12_nocpf:")
    a("s_branch K2_SIDE")
    a("K12_CONV0:   ; LINT-RESET")
    a("s_barrier")
    a("s_cmp_eq_u32 s2, 255")
    a("s_cselect_b32 s64, 1, 0")
    a("s_cmp_eq_u32 s24, 0")
    a("s_cselect_b32 s64, s64, 0")
    a("s_cmp_eq_u32 s64, 1")
    a("s_cbranch_scc0 K12_noinit")
    a("v_mov_b32 v64, 0\nv_mov_b32 v65, 0\nv_mov_b32 v66, 0\nv_mov_b32 v67, 0")
    a("v_lshlrev_b32 v68, 4, v1")
    a(f"v_add_u32 v68, {FLAGS_OFF}, v68")
    for q in range(16):
        a(f"global_store_dwordx4 v68, v[64:67], s[14:15] sc1")
        if q < 15: a("v_add_u32 v68, 1024, v68")
    a("K12_noinit:   ; LINT-RESET")
    a("v_mov_b32 v56, 0\nv_mov_b32 v57, 0\nv_mov_b32 v58, 0\nv_mov_b32 v59, 0")
    a("v_mul_u32_u24 v53, 171, v0")
    a("v_lshrrev_b32 v53, 9, v53")
    a("v_mul_u32_u24 v54, 3, v53")
    a("v_sub_u32 v54, v0, v54")
    a(f"v_mul_u32_u24 v53, {CS}, v53")
    a("v_lshl_add_u32 v53, v54, 4, v53")
    a("v_cmp_gt_u32 vcc, 48, v0")
    a("s_and_saveexec_b64 s[42:43], vcc")
    a("ds_write_b128 v53, v[56:59]")
    a("s_mov_b64 exec, s[42:43]")
    a("v_lshlrev_b32 v53, 4, v0")
    a(f"v_add_u32 v53, {UB}, v53")
    a("v_cmp_gt_u32 vcc, 155, v0")
    a("s_and_saveexec_b64 s[42:43], vcc")
    a(f"ds_write_b128 v53, v[56:59]")
    a(f"ds_write_b128 v53, v[56:59] offset:{U_CH}")
    a("s_mov_b64 exec, s[42:43]")
    a("v_and_b32 v16, 15, v1")
    a("v_cmp_eq_u32 s[32:33], 15, v16")
    a("v_lshrrev_b32 v18, 4, v1")
    a("v_add_u32 v19, 1, v16")
    a("v_cvt_f32_u32 v19, v19")
    a("s_lshl_b32 s31, s24, 10")
    a(f"s_add_u32 s31, s31, {KG_PAR}")
    a("v_lshl_add_u32 v17, v18, 6, s31")
    a("v_lshl_add_u32 v20, v1, 4, s31")
    for r in range(112, 128): a(f"v_mov_b32 v{r}, 0")
    a("s_mul_i32 s39, s25, 1344")
    a(f"s_add_u32 s39, s39, {KG_T16 + 8}")
    a("v_subrev_u32 v21, 7, v16")
    a("v_cmp_gt_u32 s[34:35], 8, v21")
    a("v_add_u32 v21, 1, v16")
    a("v_and_b32 v21, 15, v21")
    a("v_lshlrev_b32 v24, 5, v21")
    a("v_lshl_add_u32 v24, v18, 3, v24")
    a("s_lshl_b32 s40, s26, 9")
    a("s_add_u32 s40, s40, s39")
    a("v_add_u32 v24, s40, v24")
    a("s_cmp_eq_u32 s26, 0")
    a("s_cselect_b64 s[36:37], -1, s[34:35]")
    a("s_lshl_b32 s40, s24, 12")
    a(f"s_add_u32 s40, s40, {KG_PART}")
    a("v_lshl_add_u32 v22, v1, 4, s40")
    a("s_lshl_b32 s40, s25, 13")
    a("s_lshl_b32 s41, s26, 11")
    a("s_add_u32 s40, s40, s41")
    a(f"s_add_u32 s40, s40, {KG_PART}")
    a("v_lshl_add_u32 v23, v1, 4, s40")
    a("s_lshl_b32 s40, s26, 6")
    a("v_add_u32 v26, s40, v1")
    a("v_lshlrev_b32 v27, 3, v26")
    a("v_sub_u32 v27, 2047, v27")
    a("v_cvt_f32_u32 v28, v27")
    a("s_sub_u32 s41, s39, 34050")
    a("s_sub_u32 s42, s39, 2")
    GA = 140
    for rnd in range(2):
        if rnd == 1:
            a("v_add_f32 v28, 0xc4800000, v28")
            a("v_subrev_u32 v27, 1024, v27")
        for t in range(8):
            if t == 0: a(f"v_mov_b32 v48, v28")
            else: a(f"v_add_f32 v{48+t}, {-float(t)}, v28")
        for p in range(4): a(f"v_cvt_pk_bf16_f32 v{56+p}, v{48+2*p}, v{49+2*p}")
        for p in range(4):
            a(f"v_and_b32 v{48+2*p}, 0xffff, v{56+p}")
            a(f"v_lshrrev_b32 v{49+2*p}, 16, v{56+p}")
        o = GA + 8 * rnd
        for t in range(8): a(f"v_lshl_add_u32 v{o+t}, v{48+t}, 1, s41")
        if rnd == 1:
            a("v_cmp_le_u32 vcc, 112, v26")
            for t in range(8):
                a(f"v_subrev_u32 v{56+(t&3)}, {t}, v27")
                a(f"v_lshl_add_u32 v{56+(t&3)}, v{56+(t&3)}, 1, s42")
                a(f"v_cndmask_b32 v{o+t}, v{o+t}, v{56+(t&3)}, vcc")
    a(f"s_mul_i32 s40, s25, 4160")
    a(f"s_add_u32 s40, s40, {KG_REV}")
    a("v_lshl_add_u32 v29, v26, 4, s40")
    a("s_add_u32 s41, s40, 4080")
    a("v_lshlrev_b32 v30, 4, v26")
    a("v_sub_u32 v30, s41, v30")
    a(f"s_mul_i32 s41, s25, {KC_CH}")
    a("s_add_u32 s41, s41, 48")
    a("v_lshl_add_u32 v31, v26, 4, s41")
    a("s_waitcnt lgkmcnt(0)")
    a("s_lshl_b32 s40, s25, 4")
    a("s_lshr_b32 s29, s29, s40")
    a("s_lshl_b32 s29, s29, 16")
    a(f"v_mov_b32 v8, {LOG2E}")
    a("v_mul_f32 v9, s29, v8")
    a("v_exp_f32 v9, v9")
    a("s_nop 0")
    rbf(a, 9, 9)
    a("s_waitcnt vmcnt(0)")
    a("s_cmp_eq_u32 s64, 1")
    a("s_cbranch_scc0 K12_nopub")
    a("v_mov_b32 v68, 0")
    a("v_mov_b32 v69, 1")
    a("s_mov_b64 exec, 1")
    a("global_store_dword v68, v69, s[18:19] sc1")
    a("s_mov_b64 exec, -1")
    a("K12_nopub:")
    a("v_lshlrev_b32 v4, 16, v4")
    a("v_lshlrev_b32 v5, 16, v5")
    a("v_lshlrev_b32 v6, 16, v6")
    a("v_lshlrev_b32 v7, 16, v7")
    a("v_mul_f32 v4, v4, v8")
    a("v_exp_f32 v4, v4")
    a("v_mul_f32 v13, v5, v9")
    a("v_mul_f32 v14, v6, v9")
    rbf(a, 4, 4)
    a("v_mul_f32 v15, v7, v9")
    a("v_mul_f32 v12, v4, v9")
    a(f"v_mul_f32 v13, {INV2PI}, v13")
    a("v_add_f32 v14, v14, v14")
    a("v_add_f32 v15, v15, v15")
    a("v_mul_f32 v12, v12, v8")
    a("v_mov_b32 v10, v14")
    a("v_sub_f32 v12, 0, v12")
    a("ds_write_b128 v20, v[12:15]")
    for ctl in ("row_shr:1", "row_shr:2", "row_shr:4", "row_shr:8", "row_bcast:15 row_mask:0xa", "row_bcast:31 row_mask:0xc"):
        a("s_nop 1")
        a(f"v_add_f32_dpp v10, v10, v10 {ctl}")
    a("s_waitcnt lgkmcnt(0)")
    stamp(a, 1)
    R = [[32 + 4 * u for u in range(4)], [48 + 4 * u for u in range(4)]]
    PA = [64 + 2 * u for u in range(4)]
    PB = [72 + 2 * u for u in range(4)]
    TT = [80 + 2 * u for u in range(4)]
    QF = [88 + 4 * e for e in range(4)]
    GF = [104, 108]
    DD = [112 + 4 * e for e in range(4)]
    CPK = [128 + u for u in range(4)]
    MAG = [132 + 2 * u for u in range(4)]
    for u in range(4): a(f"ds_read_b128 v[{R[0][u]}:{R[0][u]+3}], v17 offset:{u*16}")
    for ks in range(4):
        Rc = R[ks & 1]
        if ks + 1 < 4:
            for u in range(4):
                a(f"ds_read_b128 v[{R[(ks+1)&1][u]}:{R[(ks+1)&1][u]+3}], v17 offset:{(ks+1)*256+u*16}")
            a("s_waitcnt lgkmcnt(4)")
        else:
            a("s_waitcnt lgkmcnt(0)")
        for u in range(4): a(f"v_mul_f32 v{TT[u]}, v{Rc[u]}, v19")
        for u in range(4): a(f"v_mul_f32 v{TT[u]+1}, v{Rc[u]+1}, v19")
        for u in range(4): a(f"v_exp_f32 v{MAG[u]}, v{TT[u]}")
        for u in range(4): a(f"v_fract_f32 v{TT[u]+1}, v{TT[u]+1}")
        for u in range(4): a(f"v_cvt_pk_bf16_f32 v{CPK[u]}, v{Rc[u]+2}, -v{Rc[u]+3}")
        for u in range(4): a(f"v_cos_f32 v{PB[u]}, v{TT[u]+1}")
        for u in range(4): a(f"v_sin_f32 v{PB[u]+1}, v{TT[u]+1}")
        a("s_nop 0")
        for u in range(4):
            a(f"v_pk_mul_f32 v[{PA[u]}:{PA[u]+1}], v[{PB[u]}:{PB[u]+1}], v[{MAG[u]}:{MAG[u]+1}] op_sel:[0,0] op_sel_hi:[1,0]")
        cur, oth = PA, PB
        for e in range(4):
            for u in range(4): a(f"v_cvt_pk_bf16_f32 v{QF[e]+u}, v{cur[u]}, v{cur[u]+1}")
            sq = [csq(a, oth[u], cur[u], TT[u]) for u in range(4)]
            for u in range(4): a(sq[u][0])
            for u in range(4): a(sq[u][1])
            cur, oth = oth, cur
        for e in range(4):
            g = GF[e & 1]
            cm = [cmulconj(a, oth[u], cur[u], Rc[u] + 2, TT[u]) for u in range(4)]
            for u in range(4): a(cm[u][0])
            for u in range(4): a(cm[u][1])
            for u in range(4): a(f"v_cvt_pk_bf16_f32 v{g+u}, v{oth[u]}, v{oth[u]+1}")
            if e == 0:
                for u in range(4): a(f"v_cndmask_b32 v{g+u}, v{g+u}, v{CPK[u]}, s[32:33]")
            if e < 3:
                sq = [csq(a, oth[u], cur[u], TT[u]) for u in range(4)]
                for u in range(4): a(sq[u][0])
                a(f"v_mfma_f32_16x16x32_bf16 v[{DD[e]}:{DD[e]+3}], v[{QF[e]}:{QF[e]+3}], v[{g}:{g+3}], v[{DD[e]}:{DD[e]+3}]")
                for u in range(4): a(sq[u][1])
                cur, oth = oth, cur
            else:
                a("s_nop 1")
                a(f"v_mfma_f32_16x16x32_bf16 v[{DD[e]}:{DD[e]+3}], v[{QF[e]}:{QF[e]+3}], v[{g}:{g+3}], v[{DD[e]}:{DD[e]+3}]")
    stamp(a, 2)
    K0P = KG_T16 + 2 * 1344 + 16
    a("v_readlane_b32 s40, v10, 63")
    a(f"s_lshl_b32 s41, s24, 2")
    a(f"s_add_u32 s41, s41, {K0P}")
    a("v_mov_b32 v11, s41")
    a("v_mov_b32 v10, s40")
    a("s_nop 1")
    for e in range(4): a(f"ds_write_b128 v22, v[{DD[e]}:{DD[e]+3}] offset:{e*1024}")
    a("ds_write_b32 v11, v10")
    a("s_lshl_b32 s57, s25, 2")
    a(f"s_add_u32 s41, s57, {LF}")
    wsync(a, "s41", 2, 2, 40)
    a("ds_read_b128 v[32:35], v23")
    a("ds_read_b128 v[36:39], v23 offset:4096")
    a("ds_read_b128 v[40:43], v23 offset:1024")
    a("ds_read_b128 v[44:47], v23 offset:5120")
    a(f"s_lshl_b32 s41, s25, 3")
    a(f"s_add_u32 s41, s41, {K0P}")
    a("v_mov_b32 v11, s41")
    a("ds_read_b64 v[8:9], v11")
    a("s_waitcnt lgkmcnt(0)")
    for r in range(4): a(f"v_add_f32 v{32+r}, v{32+r}, v{36+r}")
    for r in range(4): a(f"v_add_f32 v{40+r}, v{40+r}, v{44+r}")
    a("v_add_f32 v8, v8, v9")
    a("v_cvt_pk_bf16_f32 v32, v32, v33")
    a("v_cvt_pk_bf16_f32 v33, v34, v35")
    a("v_cvt_pk_bf16_f32 v40, v40, v41")
    a("v_cvt_pk_bf16_f32 v41, v42, v43")
    a("v_cvt_pk_bf16_f32 v8, v8, v8")
    a("s_sub_u32 s41, s39, 2")
    a("v_mov_b32 v11, s41")
    a("s_mov_b64 exec, s[36:37]")
    a("ds_write_b64 v24, v[32:33]")
    a("s_mov_b64 exec, s[34:35]")
    a("ds_write_b64 v24, v[40:41] offset:256")
    a("s_mov_b64 exec, -1")
    a("ds_write_b16 v11, v8")
    a(f"s_add_u32 s41, s57, {LF + 8}")
    wsync(a, "s41", 2, 2, 40)
    for t in range(16):
        a(f"ds_read_u16 v{76+t}, v{GA+t}")
        if t == 7: a("v_mov_b32 v72, 0\nv_mov_b32 v73, 0\nv_mov_b32 v74, 0\nv_mov_b32 v75, 0")
    a("s_waitcnt lgkmcnt(8)")
    for p in range(4): a(f"v_lshl_or_b32 v{64+p}, v{77+2*p}, 16, v{76+2*p}")
    a("ds_write_b128 v29, v[64:67]")
    a("s_waitcnt lgkmcnt(1)")
    for p in range(4): a(f"v_lshl_or_b32 v{68+p}, v{85+2*p}, 16, v{84+2*p}")
    a("ds_write_b128 v29, v[68:71] offset:2048")
    a("v_cmp_gt_u32 vcc, 4, v26")
    a("s_and_saveexec_b64 s[42:43], vcc")
    a("ds_write_b128 v29, v[72:75] offset:4096")
    a("s_mov_b64 exec, s[42:43]")
    a(f"s_add_u32 s41, s57, {LF + 16}")
    wsync(a, "s41", 2, 2, 40)
    a("v_subrev_u32 v33, 2048, v30")
    a("ds_read_b128 v[36:39], v30")
    a("ds_read_b128 v[40:43], v30 offset:16")
    a("ds_read_b128 v[44:47], v33")
    a("ds_read_b128 v[48:51], v33 offset:16")
    for c in range(2):
        W = 36 + 8 * c
        a(f"s_waitcnt lgkmcnt({2 if c == 0 else 8})")
        V = 60
        for j in range(7): a(f"v_alignbit_b32 v{V+j}, v{W+j+1}, v{W+j}, 16")
        for j in range(1, 7): a(f"v_alignbit_b32 v{68+j-1}, v{W+j+1}, v{W+j}, 16")
        for j in range(1, 7): a(f"v_mov_b32 v{76+j-1}, v{W+j}")
        off = c * 2048
        a(f"ds_write_b128 v31, v[{W}:{W+3}] offset:{off + 7*CS}")
        a(f"ds_write_b128 v31, v[{W+2}:{W+5}] offset:{off + 3*CS}")
        a(f"ds_write_b128 v31, v[{V}:{V+3}] offset:{off + 6*CS}")
        a(f"ds_write_b128 v31, v[{V+2}:{V+5}] offset:{off + 2*CS}")
        a(f"ds_write_b128 v31, v[68:71] offset:{off + 4*CS}")
        a(f"ds_write_b128 v31, v[70:73] offset:{off + 0*CS}")
        a(f"ds_write_b128 v31, v[76:79] offset:{off + 5*CS}")
        a(f"ds_write_b128 v31, v[78:81] offset:{off + 1*CS}")
    stamp(a, 3)
    a("s_lshl_b32 s28, s62, 12")
    a(f"s_add_u32 s28, s28, {XT}") if XT else None
    a("v_lshl_add_u32 v160, v0, 4, s28")
    a("v_add_u32 v161, 4096, v160")
    a("v_lshlrev_b32 v162, 5, v0")
    a(f"v_add_u32 v162, {STAT1}, v162")
    a(f"v_add_u32 v163, 8192, v162")
    a("v_and_b32 v50, 31, v1")
    a("v_lshrrev_b32 v51, 5, v1")
    a("s_lshl_b32 s30, s25, 12")
    a("s_add_u32 s30, s30, s28")
    a("s_lshl_b32 s31, s26, 11")
    a("s_add_u32 s30, s30, s31")
    a("v_lshlrev_b32 v164, 6, v50")
    a("v_lshl_add_u32 v164, v51, 3, v164")
    a("v_add_u32 v164, s30, v164")
    a("v_and_b32 v165, 3, v1")
    a("v_mul_u32_u24 v165, 12288, v165")
    a("v_bfe_u32 v54, v1, 2, 1")
    a("v_lshl_add_u32 v165, v54, 2, v165")
    a("v_lshrrev_b32 v54, 3, v1")
    a("v_min_u32 v54, 2, v54")
    a("v_lshl_add_u32 v165, v54, 11, v165")
    a("s_lshl_b32 s32, s62, 2")
    a(f"s_add_u32 s32, s32, {MODP}")
    a("v_add_u32 v165, s32, v165")
    a("v_and_b32 v54, 7, v50")
    a("v_lshrrev_b32 v55, 3, v50")
    a(f"v_mul_u32_u24 v2, {CS}, v54")
    a("v_sub_u32 v55, v55, v51")
    a("v_add_u32 v55, 1, v55")
    a("v_lshl_add_u32 v2, v55, 4, v2")
    a(f"s_mul_i32 s38, s25, {KC_CH}")
    a("v_add_u32 v2, s38, v2")
    a("v_mul_u32_u24 v3, 80, v50")
    a("v_lshl_add_u32 v3, v51, 4, v3")
    a(f"s_mul_i32 s38, s25, {U_CH}")
    a(f"s_add_u32 s38, s38, {UB}")
    a("v_add_u32 v3, s38, v3")
    a("v_lshrrev_b32 v166, 2, v0")
    a("v_mul_u32_u24 v166, 80, v166")
    a("v_and_b32 v63, 3, v0")
    a("v_lshl_add_u32 v166, v63, 4, v166")
    a(f"v_add_u32 v166, {UB + 31*80}, v166")
    a("s_lshl_b32 s38, s24, 12")
    a(f"s_add_u32 s38, s38, {SCR}")
    a("v_lshl_add_u32 v4, v1, 4, s38")
    a("s_xor_b32 s39, s24, 1")
    a("s_lshl_b32 s38, s39, 12")
    a(f"s_add_u32 s38, s38, {SCR}")
    a("v_lshl_add_u32 v5, v1, 4, s38")
    a("s_lshl_b32 s38, s24, 2")
    a(f"s_add_u32 s38, s38, {LF + 32}")
    a("v_mov_b32 v7, s38")
    a("s_lshl_b32 s38, s39, 2")
    a(f"s_add_u32 s38, s38, {LF + 32}")
    a("v_mov_b32 v8, s38")
    a("v_mul_u32_u24 v6, 80, v50")
    a("v_lshl_add_u32 v6, v51, 3, v6")
    a(f"s_mul_i32 s38, s25, {U_CH}")
    a(f"s_mul_i32 s39, s26, {32*80}")
    a("s_add_u32 s38, s38, s39")
    a(f"s_add_u32 s38, s38, {UB + 31*80}")
    a("v_add_u32 v6, s38, v6")
    a("s_lshl_b32 s38, s27, 7")
    a("s_lshl_b32 s39, s26, 20")
    a("s_add_u32 s38, s38, s39")
    a(f"s_add_u32 s38, s38, {X2T}")
    a("v_lshrrev_b32 v9, 3, v1")
    a("v_lshlrev_b32 v9, 16, v9")
    a("v_and_b32 v63, 7, v1")
    a("v_lshl_add_u32 v9, v63, 4, v9")
    a("v_add_u32 v9, s38, v9")
    a("v_add_u32 v12, 0x80000, v9")
    a(f"s_mul_i32 s38, s25, {KC_CH}")
    a("s_mul_i32 s39, s26, 2560")
    a("s_add_u32 s38, s38, s39")
    a("v_mul_u32_u24 v10, 80, v50")
    a("v_lshl_add_u32 v10, v51, 3, v10")
    a("v_add_u32 v10, s38, v10")
    a("v_lshrrev_b32 v11, 2, v1")
    a("v_mul_u32_u24 v11, 80, v11")
    a("v_and_b32 v63, 3, v1")
    a("v_lshl_add_u32 v11, v63, 4, v11")
    a("v_add_u32 v11, s38, v11")
    for r in range(32, 64): a(f"v_mov_b32 v{r}, 0")
    a("s_lshl_b32 s38, s25, 4")
    a("s_lshr_b32 s36, s56, s38")
    a("s_lshl_b32 s36, s36, 16")
    a("s_waitcnt lgkmcnt(0)")
    a("s_barrier")
    stamp(a, 4)
    XR, SR = 168, 176
    a("global_load_dword v13, v165, s[14:15] sc1")
    a(f"global_load_dwordx4 v[{XR}:{XR+3}], v160, s[14:15] sc1")
    a(f"global_load_dwordx4 v[{XR+4}:{XR+7}], v161, s[14:15] sc1")
    a(f"global_load_dwordx4 v[{SR}:{SR+3}], v162, s[14:15] sc1")
    a(f"global_load_dwordx4 v[{SR+4}:{SR+7}], v162, s[14:15] offset:16 sc1")
    a(f"global_load_dwordx4 v[{SR+8}:{SR+11}], v163, s[14:15] sc1")
    a(f"global_load_dwordx4 v[{SR+12}:{SR+15}], v163, s[14:15] offset:16 sc1")
    for i in range(4):
        a(f"global_load_dwordx2 v[{144+2*i}:{145+2*i}], v164, s[14:15] offset:{16*i} sc1")
    a("s_waitcnt vmcnt(10)")
    a("v_add_f32_dpp v13, v13, v13 quad_perm:[1,0,3,2] row_mask:0xf bank_mask:0xf")
    a("s_nop 1")
    a("v_add_f32_dpp v13, v13, v13 quad_perm:[2,3,0,1] row_mask:0xf bank_mask:0xf")
    rbf(a, 13, 13)
    a("v_add_f32 v14, 1.0, v13")
    rbf(a, 14, 14)
    a("v_readlane_b32 s59, v13, 0")
    a("v_readlane_b32 s61, v13, 4")
    a("v_readlane_b32 s54, v13, 16")
    a("v_readlane_b32 s55, v13, 20")
    a("v_readlane_b32 s58, v14, 8")
    a("v_readlane_b32 s60, v14, 12")
    a("s_cmp_eq_u32 s25, 0")
    a("s_cselect_b32 s37, s54, s55")
    a("s_waitcnt vmcnt(4)")
    for c in range(2):
        X = XR + 4 * c
        for q in range(4):
            a(f"v_lshlrev_b32 v{64+2*q}, 16, v{X+q}")
            a(f"v_and_b32 v{65+2*q}, 0xffff0000, v{X+q}")
        for q in range(4):
            a(f"v_pk_fma_f32 v[{64+2*q}:{65+2*q}], v[{64+2*q}:{65+2*q}], v[{SR+2*q}:{SR+1+2*q}], v[{SR+8+2*q}:{SR+9+2*q}]")
        for q in range(4):
            a(f"v_pk_fma_f32 v[{64+2*q}:{65+2*q}], v[{64+2*q}:{65+2*q}], s[{58+2*c}:{59+2*c}], s[{58+2*c}:{59+2*c}] op_sel:[0,0,1] op_sel_hi:[1,0,1]")
        for q in range(4):
            a(f"v_cvt_pk_bf16_f32 v{72+4*c+q}, v{64+2*q}, v{65+2*q}")
        a(f"ds_write_b128 v166, v[{72+4*c}:{75+4*c}] offset:{c*U_CH}")
    wsync(a, LF + 52, 4, 14, 40)
    stamp(a, 5)
    a("s_cmp_eq_u32 s26, 0")
    a("s_cbranch_scc0 K2_B")
    conv_path(a, 0, "A")
    a("K2_B:   ; LINT-RESET")
    conv_path(a, 1, "B")
    a("K2_SIDE:   ; LINT-RESET")
    a("s_barrier")
    TL = SIDE + SIDE_SZ
    a("v_mul_u32_u24 v30, 160, v2")
    a("v_lshl_add_u32 v30, v3, 4, v30")
    a(f"v_add_u32 v30, {TL}, v30")
    a("s_cmp_ge_u32 s2, 192")
    a("s_cbranch_scc1 K1_w0")
    a("s_waitcnt vmcnt(10)")
    a("s_branch K1_w1")
    a("K1_w0:")
    a("s_waitcnt vmcnt(2)")
    a("K1_w1:   ; LINT-RESET")
    stamp(a, 1)
    a("ds_write_b128 v30, v[8:11]")
    a("ds_write_b128 v30, v[12:15] offset:5120")
    wsync(a, LF + 48, 4, 2, 40)
    a("v_lshrrev_b32 v2, 4, v1")
    a("v_bfe_u32 v3, v1, 2, 2")
    a("v_and_b32 v4, 3, v1")
    a("v_lshl_add_u32 v5, v2, 3, v3")
    a("v_mul_u32_u24 v5, 160, v5")
    a("v_lshl_add_u32 v5, v4, 3, v5")
    a("s_lshl_b32 s31, s25, 5")
    a(f"s_add_u32 s31, s31, {TL}")
    a("v_add_u32 v5, s31, v5")
    a("ds_read_b64_tr_b16 v[8:9], v5")
    a("ds_read_b64_tr_b16 v[10:11], v5 offset:640")
    a(f"ds_read_b64_tr_b16 v[12:13], v5 offset:{32*160}")
    a(f"ds_read_b64_tr_b16 v[14:15], v5 offset:{36*160}")
    a("v_and_b32 v6, 15, v1")
    a("v_lshlrev_b32 v6, 12, v6")
    a("v_lshl_add_u32 v6, v2, 4, v6")
    a("s_lshl_b32 s31, s27, 18")
    a("s_lshl_b32 s32, s25, 16")
    a("s_add_u32 s31, s31, s32")
    a("s_lshl_b32 s32, s26, 7")
    a("s_add_u32 s31, s31, s32")
    a(f"s_add_u32 s31, s31, {XT}") if XT else None
    a("v_add_u32 v6, s31, v6")
    a("s_waitcnt lgkmcnt(2)")
    a("global_store_dwordx4 v6, v[8:11], s[14:15] sc1")
    a("s_waitcnt lgkmcnt(0)")
    a("global_store_dwordx4 v6, v[12:15], s[14:15] offset:64 sc1")
    a("s_cmp_ge_u32 s2, 192")
    a("s_cbranch_scc1 K1_w2")
    a("s_waitcnt vmcnt(10)")
    a("s_branch K1_w3")
    a("K1_w2:")
    a("s_waitcnt vmcnt(2)")
    a("K1_w3:   ; LINT-RESET")
    a("v_mov_b32 v31, 0x3f803f80")
    a("v_mov_b32 v52, 0\nv_mov_b32 v53, 0\nv_mov_b32 v54, 0\nv_mov_b32 v55, 0")
    for k in range(4):
        a(f"v_dot2_f32_bf16 v52, v{16+k}, v31, v52")
        a(f"v_dot2_f32_bf16 v53, v{16+k}, v{16+k}, v53")
        a(f"v_dot2_f32_bf16 v54, v{20+k}, v31, v54")
        a(f"v_dot2_f32_bf16 v55, v{20+k}, v{20+k}, v55")
    a("s_nop 1")
    for ctl in ("row_shr:1", "row_shr:2", "row_shr:4", "row_shr:8", "row_bcast:15 row_mask:0xa", "row_bcast:31 row_mask:0xc"):
        for r in range(52, 56): a(f"v_add_f32_dpp v{r}, v{r}, v{r} {ctl}")
    a("s_nop 1")
    for k, r in enumerate(range(52, 56)): a(f"v_readlane_b32 s{36+k}, v{r}, 63")
    a("s_nop 1")
    a("v_cmp_eq_u32 vcc, 0, v1")
    a("v_mov_b32 v56, s38")
    a("v_mov_b32 v57, s39")
    a("v_mov_b32 v58, s36")
    a("v_mov_b32 v59, s37")
    a("v_cndmask_b32 v56, v56, v58, vcc")
    a("v_cndmask_b32 v57, v57, v59, vcc")
    a("v_mul_f32 v56, 0x3b000000, v56")
    a("v_mul_f32 v57, 0x3b000000, v57")
    a("v_fma_f32 v57, -v56, v56, v57")
    a("v_max_f32 v57, 0, v57")
    rbf(a, 56, 56); rbf(a, 57, 57)
    a("v_add_f32 v57, 0x3727c5ac, v57")
    rbf(a, 57, 57)
    a("v_sqrt_f32 v57, v57")
    a("s_nop 0")
    rbf(a, 57, 57)
    a("v_rcp_f32 v58, v57")
    a("s_nop 0")
    a("v_mul_f32 v59, v56, v58")
    a("v_sub_f32 v59, 0, v59")
    a("s_lshl_b32 s31, s30, 2")
    a(f"s_add_u32 s31, s31, {STAT1}")
    a("v_lshl_add_u32 v60, v1, 2, s31")
    a("v_add_u32 v61, 8192, v60")
    a("v_cmp_gt_u32 vcc, 2, v1")
    a("s_and_saveexec_b64 s[42:43], vcc")
    a("global_store_dword v60, v58, s[14:15] sc1")
    a("global_store_dword v61, v59, s[14:15] sc1")
    a("s_mov_b64 exec, s[42:43]")
    a("s_cmp_ge_u32 s2, 192")
    a("s_cbranch_scc1 K1_nomodc")
    a("s_waitcnt vmcnt(4)")
    for k in range(4): a(f"v_lshlrev_b32 v{48+k}, 16, v{48+k}")
    for k in range(4): a(f"v_mul_f32 v{52+k}, 0xbfb8aa3b, v{48+k}")
    for k in range(4): a(f"v_exp_f32 v{52+k}, v{52+k}")
    a("s_nop 0")
    for k in range(4): a(f"v_add_f32 v{52+k}, 1.0, v{52+k}")
    for k in range(4): a(f"v_rcp_f32 v{56+k}, v{52+k}")
    a("s_nop 0")
    for k in range(4): a(f"v_mul_f32 v{60+k}, v{48+k}, v{56+k}")
    for k in range(4): a(f"v_fma_f32 v{48+k}, -v{60+k}, v{52+k}, v{48+k}")
    for k in range(4): a(f"v_fma_f32 v{48+k}, v{48+k}, v{56+k}, v{60+k}")
    for k in range(4): rbf(a, 48 + k, 48 + k)
    for k in range(4):
        for p in range(4):
            w = 32 + 4 * k + p
            a(f"v_lshlrev_b32 v62, 16, v{w}")
            a(f"v_and_b32 v63, 0xffff0000, v{w}")
            if k == 0:
                a(f"v_mul_f32 v{64+2*p}, v62, v48")
                a(f"v_mul_f32 v{65+2*p}, v63, v48")
            else:
                a(f"v_fmac_f32 v{64+2*p}, v62, v{48+k}")
                a(f"v_fmac_f32 v{65+2*p}, v63, v{48+k}")
    MODL = SIDE
    a("v_subrev_u32 v61, 256, v0")
    a("v_lshlrev_b32 v61, 5, v61")
    a(f"v_add_u32 v61, {MODL}, v61")
    a("ds_write_b128 v61, v[64:67]")
    a("ds_write_b128 v61, v[68:71] offset:16")
    wsync(a, LF + 24, 4, 2, 40)
    a("s_cmp_lg_u32 s25, 0")
    a("s_cbranch_scc1 K1_nomodc")
    a("v_lshlrev_b32 v4, 2, v1")
    a(f"v_add_u32 v4, {MODL}, v4")
    for i in range(32):
        a(f"ds_read_b32 v{16+i}, v4 offset:{256*i}")
        if i == 14: a("s_waitcnt lgkmcnt(7)")
    a("s_waitcnt lgkmcnt(0)")
    for st in (16, 8, 4, 2, 1):
        for i in range(st): a(f"v_add_f32 v{16+i}, v{16+i}, v{16+st+i}")
    a("s_mul_i32 s31, s34, 12288")
    a("s_lshl_b32 s32, s33, 8")
    a("s_add_u32 s31, s31, s32")
    a(f"s_add_u32 s31, s31, {MODP}")
    a("v_lshl_add_u32 v5, v1, 2, s31")
    a("global_store_dword v5, v16, s[14:15] sc1")
    a("K1_nomodc:   ; LINT-RESET")
    stamp(a, 2)
    a("v_mov_b32 v74, 0")
    a("global_load_dword v75, v74, s[18:19] sc1")
    a("s_waitcnt vmcnt(0)")
    a("v_readfirstlane_b32 s51, v75")
    a(f"v_mov_b32 v2, {LF + 28}")
    a("v_mov_b32 v3, 1")
    a("s_mov_b64 exec, 1")
    a("ds_add_u32 v2, v3")
    a("s_mov_b64 exec, -1")
    stamp(a, 3)
    a("s_lshl_b32 s26, s25, 8")
    a("s_add_u32 s26, s26, s2")
    a("s_mov_b32 s27, s57")
    a("v_lshrrev_b32 v2, 2, v1")
    a("v_and_b32 v3, 3, v1")
    a("v_lshrrev_b32 v4, 4, v1")
    a("v_bfe_u32 v5, v1, 2, 2")
    a("v_mul_u32_u24 v11, 80, v2")
    a("v_lshl_add_u32 v11, v3, 4, v11")
    a("v_add_u32 v11, s27, v11")
    a("v_lshl_add_u32 v12, v4, 2, v5")
    a("v_mul_u32_u24 v12, 80, v12")
    a("v_lshl_add_u32 v12, v3, 3, v12")
    a("v_add_u32 v12, s27, v12")
    a("s_cmp_ge_u32 s26, 348")
    a("s_cbranch_scc1 K12_noraw")
    a("s_cmp_ge_u32 s26, 172")
    a("s_cbranch_scc1 K12_rawW2")
    a("s_mul_i32 s28, s26, 1525")
    a("s_lshr_b32 s28, s28, 16")
    a("s_mul_i32 s29, s28, 43")
    a("s_sub_u32 s29, s26, s29")
    a("v_mul_u32_u24 v10, 2752, v2")
    a("v_lshl_add_u32 v10, v3, 4, v10")
    a(f"s_mul_i32 s53, s28, {128*2752}")
    a("s_lshl_b32 s30, s29, 6")
    a("s_add_u32 s53, s53, s30")
    a.srd(64, 48, 512 * 1376 * 2)
    for i in range(8):
        a(f"buffer_load_dwordx4 v[{32+4*i}:{35+4*i}], v10, s[64:67], s53 offen nt")
        if i < 7: a(f"s_add_u32 s53, s53, {16*2752}")
    a("s_branch K12_noraw")
    a("K12_rawW2:   ; LINT-RESET")
    a("s_sub_u32 s31, s26, 172")
    a("s_and_b32 s29, s31, 15")
    a("s_lshr_b32 s28, s31, 4")
    a("v_lshlrev_b32 v10, 10, v2")
    a("v_lshl_add_u32 v10, v3, 4, v10")
    a("s_lshl_b32 s30, s29, 6")
    a.srd(64, 12, 1376 * 512 * 2)
    for ks in range(4):
        a("s_lshl_b32 s31, s28, 2")
        a(f"s_add_u32 s31, s31, {ks}")
        a("s_mul_i32 s32, s31, 13")
        a("s_lshr_b32 s32, s32, 6")
        a("s_mul_i32 s33, s32, 5")
        a("s_sub_u32 s33, s31, s33")
        a("s_mul_i32 s32, s32, 11")
        a("s_min_u32 s32, s32, 76")
        a("s_lshl_b32 s33, s33, 1")
        a("s_add_u32 s32, s32, s33")
        a("s_add_u32 s33, s32, 1")
        a("s_sub_u32 s34, s31, 40")
        a("s_mul_i32 s34, s34, 22")
        a("s_add_u32 s35, s34, 21")
        a("s_add_u32 s34, s34, 10")
        a("s_cmp_lt_u32 s31, 40")
        a("s_cselect_b32 s32, s32, s34")
        a("s_cselect_b32 s33, s33, s35")
        for hf, sr in ((0, 32), (1, 33)):
            a(f"s_lshl_b32 s53, s{sr}, 14")
            a("s_add_u32 s53, s53, s30")
            i = 2 * ks + hf
            a(f"buffer_load_dwordx4 v[{32+4*i}:{35+4*i}], v10, s[64:67], s53 offen nt")
    a("K12_noraw:   ; LINT-RESET")
    a("s_cmp_lg_u32 s25, 0")
    a("s_cbranch_scc1 K12_gbx")
    wsync(a, LF + 28, 4, 70, 40, add=False)
    a("s_mov_b64 exec, 1")
    a("v_mov_b32 v70, 0")
    a("s_mov_b32 s52, 0x200000")
    a("s_cmp_eq_u32 s51, 1")
    a("s_cbranch_scc1 K12_rdyx")
    a("K12_rdy:")
    a("global_load_dword v71, v70, s[18:19] sc1")
    a("s_waitcnt vmcnt(0)")
    a("v_readfirstlane_b32 s40, v71")
    a("s_sub_u32 s52, s52, 1")
    a("s_cmp_eq_u32 s52, 0")
    a("s_cbranch_scc1 K12_gbdone")
    a("s_cmp_eq_u32 s40, 1")
    a("s_cbranch_scc0 K12_rdy")
    a("K12_rdyx:")
    a("s_and_b32 s40, s2, 15")
    a("s_lshl_b32 s40, s40, 8")
    a(f"s_add_u32 s40, s40, {GBAR}")
    a("v_mov_b32 v70, s40")
    a("v_mov_b32 v71, 1")
    a("global_atomic_add v71, v70, v71, s[14:15] sc0 sc1")
    a("s_waitcnt vmcnt(0)")
    a("v_readfirstlane_b32 s40, v71")
    a("s_cmp_eq_u32 s40, 15")
    a("s_cbranch_scc0 K12_poll")
    if OPT.get("bar2", "1") == "1":
        a("s_mov_b64 exec, 0xff")
        a("v_lshlrev_b32 v70, 8, v1")
        a(f"v_add_u32 v70, {GBAR + 8192}, v70")
        a("v_mov_b32 v71, 1")
        a("global_atomic_add v70, v71, s[14:15] sc1")
        a("s_mov_b64 exec, 1")
    else:
        a(f"v_mov_b32 v70, {GBAR + 4096}")
        a("v_mov_b32 v71, 1")
        a("global_atomic_add v71, v70, v71, s[14:15] sc0 sc1")
        a("s_waitcnt vmcnt(0)")
        a("v_readfirstlane_b32 s40, v71")
        a("s_cmp_eq_u32 s40, 15")
        a("s_cbranch_scc0 K12_poll")
        a("s_mov_b64 exec, 0xff")
        a("v_lshlrev_b32 v70, 8, v1")
        a(f"v_add_u32 v70, {GBAR + 8192}, v70")
        a("v_mov_b32 v71, 1")
        a("global_store_dword v70, v71, s[14:15] sc1")
        a("s_mov_b64 exec, 1")
    a("K12_poll:")
    a("s_and_b32 s40, s2, 7")
    a("s_lshl_b32 s40, s40, 8")
    a(f"s_add_u32 s40, s40, {GBAR + 8192}")
    a("v_mov_b32 v70, s40")
    a("K12_poll2:")
    a("global_load_dword v71, v70, s[14:15] sc1")
    a("s_waitcnt vmcnt(0)")
    a("v_readfirstlane_b32 s40, v71")
    a("s_sub_u32 s52, s52, 1")
    a("s_cmp_eq_u32 s52, 0")
    a("s_cbranch_scc1 K12_gbdone")
    a(f"s_cmp_ge_u32 s40, {16 if OPT.get('bar2', '1') == '1' else 1}")
    a("s_cbranch_scc0 K12_poll2")
    a("K12_gbdone:")
    a("s_mov_b64 exec, -1")
    a("K12_gbx:   ; LINT-RESET")
    a(f"s_setprio {OPT.get('sprio', '0')}")
    a("s_barrier")
    stamp(a, 4)
    a("s_cmp_gt_u32 s26, 348")
    a("s_cbranch_scc1 K2_SIDE_IDLE")
    a("s_cmp_eq_u32 s26, 348")
    a("s_cbranch_scc1 K2_TAB")
    a("s_cmp_ge_u32 s26, 172")
    a("s_cbranch_scc1 K2_W2")
    a("s_lshl_b32 s31, s28, 9")
    a("v_lshl_add_u32 v13, v1, 3, s31")
    a(f"v_add_u32 v13, {MODP + 3*2048}, v13")
    for q in range(4):
        a(f"global_load_dwordx2 v[{64+4*q}:{65+4*q}], v13, s[14:15] sc1")
        a(f"global_load_dwordx2 v[{66+4*q}:{67+4*q}], v13, s[14:15] offset:2048 sc1")
        if q < 3: a("v_add_u32 v13, 12288, v13")
    a("s_waitcnt vmcnt(8)")
    for i in range(8): a(f"ds_write_b128 v11, v[{32+4*i}:{35+4*i}] offset:{16*80*i}")
    a("s_waitcnt vmcnt(0)")
    stamp(a, 5)
    for r in range(4):
        a(f"v_add_f32 v{64+r}, v{64+r}, v{68+r}")
        a(f"v_add_f32 v{72+r}, v{72+r}, v{76+r}")
        a(f"v_add_f32 v{64+r}, v{64+r}, v{72+r}")
    for r in range(4): rbf(a, 64 + r, 64 + r)
    a("v_add_f32 v66, 1.0, v66")
    a("v_add_f32 v67, 1.0, v67")
    rbf(a, 66, 66); rbf(a, 67, 67)
    a("v_cvt_pk_bf16_f32 v64, v64, v65")
    a("v_lshl_add_u32 v15, v1, 3, s27")
    a("v_lshl_add_u32 v16, v1, 2, s27")
    a("ds_write_b64 v15, v[66:67] offset:10240")
    a("ds_write_b32 v16, v64 offset:10752")
    a("v_and_b32 v17, 15, v1")
    a("v_cmp_eq_u32 s[50:51], 0, v17")
    a("v_cmp_eq_u32 s[52:53], 1, v17")
    a("v_mov_b32 v18, 0")
    a("v_mov_b32 v19, 0x3f803f80")
    a("v_cndmask_b32 v18, v18, v19, s[50:51]")
    a("v_mov_b32 v19, 0")
    a("v_cndmask_b32 v19, v19, -1, s[52:53]")
    a("v_lshl_add_u32 v24, v4, 4, s27")
    a("v_lshl_add_u32 v25, v4, 3, s27")
    for r in range(96, 112): a(f"v_mov_b32 v{r}, 0")
    a("s_lshl_b32 s30, s29, 11")
    a(f"s_mul_i32 s31, s28, {4*87*1024}")
    a("s_add_u32 s30, s30, s31")
    a(f"s_add_u32 s30, s30, {W1F}")
    a("v_lshl_add_u32 v26, v1, 4, s30")
    a("s_waitcnt lgkmcnt(0)")
    def ureads(ks):
        B = 112 + 20 * ks
        out = [f"ds_read_b128 v[{B}:{B+3}], v24 offset:{10240 + 128*ks}",
               f"ds_read_b128 v[{B+4}:{B+7}], v24 offset:{10240 + 128*ks + 64}",
               f"ds_read_b64 v[{B+8}:{B+9}], v25 offset:{10752 + 64*ks}",
               f"ds_read_b64 v[{B+10}:{B+11}], v25 offset:{10752 + 64*ks + 32}"]
        for nt in range(2):
            for hf in range(2):
                out.append(f"ds_read_b64_tr_b16 v[{B+12+4*nt+2*hf}:{B+13+4*nt+2*hf}], v12 offset:{(32*ks+16*hf)*80 + 32*nt}")
        return out
    stamp(a, 6)
    for x in ureads(0) + ureads(1): a(x)
    for ks in range(4):
        B = 112 + 20 * ks
        a(f"s_waitcnt lgkmcnt({8 if ks < 3 else 0})")
        if ks + 2 < 4:
            for x in ureads(ks + 2): a(x)
        for q in range(4): a(f"v_and_or_b32 v{B+8+q}, v{B+8+q}, v19, v18")
        for nt in range(2):
            R = B + 12 + 4 * nt
            for q in range(4):
                a(f"v_lshlrev_b32 v{52+2*q}, 16, v{R+q}")
                a(f"v_and_b32 v{53+2*q}, 0xffff0000, v{R+q}")
            a(f"v_mfma_f32_16x16x32_bf16 v[{96+4*nt}:{99+4*nt}], v[{R}:{R+3}], v[{B+8}:{B+11}], v[{96+4*nt}:{99+4*nt}]")
            for q in range(8):
                a(f"v_mul_f32 v{52+q}, v{52+q}, v{B+q}")
            S = 60 + 4 * nt
            for q in range(4):
                a(f"v_cvt_pk_bf16_f32 v{S+q}, v{52+2*q}, v{53+2*q}")
            a(f"global_store_dwordx4 v26, v[{S}:{S+3}], s[14:15] offset:{1024*nt}" + SC1)
            if nt == 1: a(f"v_add_u32 v26, {87*1024}, v26")
            a("s_nop 0")
            a(f"v_mfma_f32_16x16x32_bf16 v[{104+4*nt}:{107+4*nt}], v[{S}:{S+3}], v[{B+8}:{B+11}], v[{104+4*nt}:{107+4*nt}]")
    stamp(a, 7)
    a(f"s_mul_i32 s30, s28, {3*5504}")
    a("s_lshl_b32 s31, s29, 7")
    a("s_add_u32 s30, s30, s31")
    a(f"s_add_u32 s30, s30, {SVP}")
    a("v_lshl_add_u32 v28, v4, 4, s30")
    a("v_add_u32 v29, 5504, v28")
    a("v_add_u32 v30, 5504, v29")
    a("s_nop 7")
    a("s_mov_b64 s[42:43], exec")
    a("s_mov_b64 exec, s[50:51]")
    for nt in range(2):
        a(f"global_store_dwordx4 v28, v[{104+4*nt}:{107+4*nt}], s[14:15] offset:{64*nt}" + SC1)
        a(f"global_store_dwordx4 v30, v[{96+4*nt}:{99+4*nt}], s[14:15] offset:{64*nt}" + SC1)
    a("s_mov_b64 exec, s[52:53]")
    for nt in range(2):
        a(f"global_store_dwordx4 v29, v[{96+4*nt}:{99+4*nt}], s[14:15] offset:{64*nt}" + SC1)
    a("s_mov_b64 exec, s[42:43]")
    a("s_branch K12_UDONE")
    a("K2_W2:   ; LINT-RESET")
    a("s_waitcnt vmcnt(0)")
    for i in range(8): a(f"ds_write_b128 v11, v[{32+4*i}:{35+4*i}] offset:{16*80*i}")
    a("s_lshr_b32 s30, s29, 1")
    a("s_mul_i32 s30, s30, 43")
    a("s_lshl_b32 s31, s28, 2")
    a("s_add_u32 s30, s30, s31")
    a("s_lshl_b32 s30, s30, 12")
    a("s_and_b32 s31, s29, 1")
    a("s_lshl_b32 s31, s31, 11")
    a("s_add_u32 s30, s30, s31")
    a(f"s_add_u32 s30, s30, {W2F}")
    a("v_lshl_add_u32 v26, v1, 4, s30")
    a("s_waitcnt lgkmcnt(0)")
    for ks in range(4):
        if ks == 3:
            a("s_cmp_eq_u32 s28, 10")
            a("s_cbranch_scc1 K12_UDONE")
        for nt in range(2):
            for hf in range(2):
                a(f"ds_read_b64_tr_b16 v[{44+4*nt+2*hf}:{45+4*nt+2*hf}], v12 offset:{(32*ks+16*hf)*80 + 32*nt}")
        a("s_waitcnt lgkmcnt(2)")
        a(f"global_store_dwordx4 v26, v[44:47], s[14:15]" + SC1)
        a("s_waitcnt lgkmcnt(0)")
        a(f"global_store_dwordx4 v26, v[48:51], s[14:15] offset:1024" + SC1)
        a("v_add_u32 v26, 4096, v26")
    a("s_branch K12_UDONE")
    a("K2_TAB:   ; LINT-RESET")
    a("v_lshlrev_b32 v2, 5, v1")
    a(f"v_add_u32 v2, {MODP + 3*2048}, v2")
    a("v_add_u32 v3, 4096, v2")
    for q in range(4):
        for k in range(3):
            r = 112 + 24 * q + 8 * k
            a(f"global_load_dwordx4 v[{r}:{r+3}], v2, s[14:15] offset:{2048*k if k < 2 else 0} sc1" if k < 2 else f"global_load_dwordx4 v[{r}:{r+3}], v3, s[14:15] sc1")
            a(f"global_load_dwordx4 v[{r+4}:{r+7}], v2, s[14:15] offset:{2048*k+16} sc1" if k < 2 else f"global_load_dwordx4 v[{r+4}:{r+7}], v3, s[14:15] offset:16 sc1")
        if q < 3:
            a("v_add_u32 v2, 12288, v2")
            a("v_add_u32 v3, 12288, v3")
    a("s_waitcnt vmcnt(0)")
    for j in range(24):
        a(f"v_add_f32 v{112+j}, v{112+j}, v{136+j}")
        a(f"v_add_f32 v{160+j}, v{160+j}, v{184+j}")
        a(f"v_add_f32 v{112+j}, v{112+j}, v{160+j}")
    for j in range(24): rbf(a, 112 + j, 112 + j)
    for j in range(8):
        a(f"v_mov_b32 v{32+j}, v{112+j}")
        a(f"v_mov_b32 v{40+j}, v{120+j}")
    a("v_lshlrev_b32 v3, 5, v1")
    a(f"v_add_u32 v3, {GBF}, v3")
    a("global_store_dwordx4 v3, v[128:131], s[14:15] sc1")
    a("global_store_dwordx4 v3, v[132:135], s[14:15] offset:16 sc1")
    for j in range(8): a(f"v_add_f32 v{40+j}, 1.0, v{40+j}")
    for j in range(8): rbf(a, 40 + j, 40 + j)
    for j in range(8): a(f"v_mul_f32 v{48+j}, v{40+j}, v{40+j}")
    for j in range(8): a(f"v_mul_f32 v{56+j}, v{40+j}, v{32+j}")
    a("v_lshlrev_b32 v3, 5, v1")
    a(f"v_add_u32 v3, {G2F}, v3")
    a("global_store_dwordx4 v3, v[48:51], s[14:15] sc1")
    a("global_store_dwordx4 v3, v[52:55], s[14:15] offset:16 sc1")
    for k, base in enumerate((40, 48, 56, 32)):
        a(f"v_add_f32 v{100+k}, v{base}, v{base+1}")
        for j in range(2, 8): a(f"v_add_f32 v{100+k}, v{100+k}, v{base+j}")
    a("v_mul_f32 v104, v32, v32")
    for j in range(1, 8): a(f"v_fmac_f32 v104, v{32+j}, v{32+j}")
    a("v_lshl_add_u32 v4, v1, 4, s27")
    a("v_mov_b32 v64, 0x3f803f80\nv_mov_b32 v65, 0x3f803f80\nv_mov_b32 v66, 0x3f803f80\nv_mov_b32 v67, 0x3f803f80")
    a("ds_write_b128 v4, v[64:67]")
    for q in range(4): a(f"v_cvt_pk_bf16_f32 v{68+q}, v{40+2*q}, v{41+2*q}")
    a("ds_write_b128 v4, v[68:71] offset:1024")
    for (src, row) in ((48, 2), (56, 4)):
        for q in range(4): a(f"v_cvt_pk_bf16_f32 v{72+q}, v{src+2*q}, v{src+2*q+1}")
        a(f"ds_write_b128 v4, v[72:75] offset:{1024*row}")
        for q in range(4):
            a(f"v_lshlrev_b32 v{80+2*q}, 16, v{72+q}")
            a(f"v_and_b32 v{81+2*q}, 0xffff0000, v{72+q}")
        for j in range(8): a(f"v_sub_f32 v{80+j}, v{src+j}, v{80+j}")
        for q in range(4): a(f"v_cvt_pk_bf16_f32 v{76+q}, v{80+2*q}, v{81+2*q}")
        a(f"ds_write_b128 v4, v[76:79] offset:{1024*(row+1)}")
    a("s_nop 1")
    for ctl in ("row_shr:1", "row_shr:2", "row_shr:4", "row_shr:8", "row_bcast:15 row_mask:0xa", "row_bcast:31 row_mask:0xc"):
        for r in range(100, 105):
            a(f"v_add_f32_dpp v{r}, v{r}, v{r} {ctl}")
    a(f"v_mov_b32 v5, {SCAL}")
    a("s_mov_b64 s[42:43], exec")
    a("s_mov_b64 exec, 0x8000000000000000") if False else None
    a("v_cmp_eq_u32 vcc, 63, v1")
    a("s_and_saveexec_b64 s[42:43], vcc")
    a("global_store_dwordx4 v5, v[100:103], s[14:15]" + SC1)
    a("global_store_dword v5, v104, s[14:15] offset:16" + SC1)
    a("s_mov_b64 exec, s[42:43]")
    a("v_and_b32 v6, 15, v1")
    a("v_lshrrev_b32 v7, 4, v1")
    a("v_min_u32 v8, 5, v6")
    a("v_lshlrev_b32 v8, 10, v8")
    a("v_lshl_add_u32 v8, v7, 3, v8")
    a("v_add_u32 v8, s27, v8")
    a("v_cmp_gt_u32 vcc, 6, v6")
    a("v_mov_b32 v9, 0")
    a("s_nop 0")
    a("v_cndmask_b32 v9, v9, -1, vcc")
    a(f"s_mov_b32 s30, {W1F + 86*1024}")
    a("v_lshl_add_u32 v10, v1, 4, s30")
    a("s_waitcnt lgkmcnt(0)")
    for ks in range(16):
        R = 16 + 4 * (ks & 1)
        a(f"ds_read_b64 v[{R}:{R+1}], v8 offset:{64*ks}")
        a(f"ds_read_b64 v[{R+2}:{R+3}], v8 offset:{64*ks+32}")
        a("s_waitcnt lgkmcnt(0)")
        for q in range(4): a(f"v_and_b32 v{R+q}, v{R+q}, v9")
        a(f"global_store_dwordx4 v10, v[{R}:{R+3}], s[14:15]" + SC1)
        a(f"v_add_u32 v10, {87*1024}, v10")
    a("s_branch K12_UDONE")
    a("K12_UDONE:   ; LINT-RESET")
    if OPT.get("wpf", "0") == "1":
        a("s_waitcnt vmcnt(0)")
        a(f"v_mov_b32 v2, {WCNT}")
        a("v_mov_b32 v3, 1")
        a("s_mov_b64 exec, 1")
        a("global_atomic_add v2, v3, s[14:15] sc1")
    a("s_branch K2_END")
    a("K2_SIDE_IDLE:   ; LINT-RESET")
    if OPT.get("wpf", "0") == "1":
        a("s_cmp_eq_u32 s25, 2")
        a("s_cbranch_scc0 K2_END")
        a(f"v_mov_b32 v2, {WCNT}")
        a("s_mov_b32 s52, 0x40000")
        a("s_mov_b64 exec, 1")
        a("K12_wpoll:")
        a("s_sleep 8")
        a("global_load_dword v3, v2, s[14:15] sc1")
        a("s_waitcnt vmcnt(0)")
        a("v_readfirstlane_b32 s40, v3")
        a("s_sub_u32 s52, s52, 1")
        a("s_cmp_eq_u32 s52, 0")
        a("s_cbranch_scc1 K12_wpx")
        a("s_cmp_ge_u32 s40, 349")
        a("s_cbranch_scc0 K12_wpoll")
        a("K12_wpx:")
        a("s_mov_b64 exec, -1")
        a("s_lshr_b32 s30, s2, 3")
        a("v_lshlrev_b32 v4, 7, v1")
        for (base, size, reg) in ((W1F, 87 * 16384, 44), (W2F, 8 * 43 * 4096, 48)):
            a(f"s_add_u32 s{reg}, s14, {base}")
            a(f"s_addc_u32 s{reg+1}, s15, 0")
            a(f"s_mov_b32 s{reg+2}, {size}")
            a(f"s_mov_b32 s{reg+3}, 0x20000")
            per = -(-size // 32 // 128) * 128
            a(f"s_mul_i32 s31, s30, {per}")
            n = -(-per // 8192)
            for k in range(n):
                a(f"buffer_load_dword v{8 + k + (8 if reg == 48 else 0)}, v4, s[{reg}:{reg+3}], s31 offen")
                if k + 1 < n: a("s_add_u32 s31, s31, 8192")
    a("K2_END:   ; LINT-RESET")
    stamp_store(a, 0, 14, 24)
    a("K2_EXIT:")
    a.end_kernel(name, 208, 100)

G2T = 65536
SVT = G2T + 2048
STT = SVT + 3072
COF = STT + 2048
RED = COF + 4096
P_W = 64 * 272
K3_LDS = RED + 4 * P_W
FLAGS = 0x0638000

def k3(a):
    name = "k3_kernel"
    a.begin_kernel(name, 256, 256, K3_LDS)
    a("s_cmp_ge_u32 s2, 256")
    a("s_cbranch_scc1 K3_EXIT")
    stamp(a, 0)
    a("s_load_dwordx2 s[14:15], s[0:1], 128")
    a("s_load_dwordx2 s[12:13], s[0:1], 72")
    a("s_load_dwordx2 s[16:17], s[0:1], 88")
    a("s_load_dwordx2 s[18:19], s[0:1], 112")
    wave_id(a, 24, 1)
    a("v_and_b32 v1, 63, v0")
    a("s_and_b32 s25, s2, 7")
    a("s_lshr_b32 s26, s2, 3")
    a("s_lshr_b32 s27, s26, 3")
    a("s_lshl_b32 s25, s25, 2")
    a("s_add_u32 s25, s25, s27")
    a("s_and_b32 s26, s26, 7")
    a("s_and_b32 s22, s25, 3")
    a("s_lshl_b32 s23, s22, 1")
    a("s_add_u32 s23, s23, s26")
    a("s_lshl_b32 s23, s23, 1")
    a("s_and_b32 s23, s23, 15")
    a("s_mul_i32 s22, s22, 3")
    a("s_add_u32 s22, s22, s26")
    a("s_sub_u32 s21, s22, 11")
    a("s_cmp_ge_u32 s22, 11")
    a("s_cselect_b32 s22, s21, s22")
    if OPT.get('rot', '0') != '1':
        a("s_mov_b32 s23, 0")
        a("s_mov_b32 s22, 0")
    a("s_mul_i32 s27, s26, 11")
    a("s_min_u32 s27, s27, 76")
    a("s_cmp_lt_u32 s26, 6")
    a("s_cselect_b32 s28, 11, 10")
    a("s_mul_i32 s29, s24, 3")
    for i in range(3):
        a(f"s_add_u32 s30, s29, {i}")
        a("s_add_u32 s31, s30, s27")
        a("s_cmp_lt_u32 s30, s28")
        a(f"s_cselect_b32 s{32+i}, s31, 86")
    a("v_lshrrev_b32 v10, 3, v1")
    a("v_and_b32 v11, 6, v10")
    a("v_and_b32 v12, 7, v1")
    a("v_xor_b32 v11, v11, v12")
    a("v_lshlrev_b32 v11, 4, v11")
    a("v_lshl_add_u32 v11, v10, 7, v11")
    a("s_lshl_b32 s41, s24, 10")
    a("s_lshl_b32 s42, s25, 16")
    a("s_add_u32 s41, s41, s42")
    a(f"s_add_u32 s41, s41, {X2T}")
    a("s_lshl_b32 s42, s24, 10")
    a("v_lshlrev_b32 v13, 4, v1")
    for i in range(3):
        a(f"s_lshl_b32 s30, s{32+i}, 10")
        a(f"v_add_u32 v{126+i}, s30, v13")
    a("s_mov_b32 s47, s23")
    a("s_lshl_b32 s46, s23, 12")
    a("v_lshrrev_b32 v3, 4, v1")
    a("v_and_b32 v6, 15, v1")
    a("v_mov_b32 v7, s32")
    a("v_mov_b32 v8, s33")
    a("v_mov_b32 v9, s34")
    a("v_cmp_eq_u32 vcc, 1, v3")
    a("v_cmp_le_u32 s[52:53], 2, v3")
    a("s_nop 0")
    a("v_cndmask_b32 v7, v7, v8, vcc")
    a("v_cndmask_b32 v7, v7, v9, s[52:53]")
    a("v_min_u32 v7, 85, v7")
    a("v_lshl_add_u32 v7, v7, 4, v6")
    a("v_lshlrev_b32 v8, 2, v7")
    a(f"v_add_u32 v8, {SVP}, v8")
    a("v_lshlrev_b32 v9, 1, v7")
    a("s_waitcnt lgkmcnt(0)")
    wsfix(a, 14)
    a.srd(8, 14, WS_USED)
    for j in range(16):
        a("s_mov_b32 m0, s42")
        a("s_add_u32 s45, s41, s46")
        a("s_add_u32 s42, s42, 4096")
        a(f"buffer_load_dwordx4 v11, s[8:11], s45 offen" + XLD + " lds")
        a("s_add_u32 s46, s46, 4096")
        a("s_and_b32 s46, s46, 0xffff")
    a("s_lshl_b32 s30, s24, 2")
    a("s_lshl_b32 s42, s24, 12")
    a(f"s_add_u32 s42, s42, {RED}")
    for j in range(4):
        a(f"s_add_u32 s31, s30, {j}")
        a("s_add_u32 s31, s31, s23")
        a("s_and_b32 s31, s31, 15")
        a(f"s_mul_i32 s31, s31, {87*1024}")
        a(f"s_add_u32 s31, s31, {W1F + 86*1024}")
        a("s_mov_b32 m0, s42")
        a("s_add_u32 s42, s42, 1024")
        a(f"buffer_load_dwordx4 v13, s[8:11], s31 offen lds")
    def wload(ks):
        out = []
        for i in range(3):
            r = (ks * 3 + i) * 4
            pre = f"s_mul_i32 s44, s47, {87*1024}\ns_add_u32 s44, s44, {W1F}\n" if i == 0 else ""
            post = "\ns_add_u32 s47, s47, 1\ns_and_b32 s47, s47, 15" if i == 2 else ""
            out.append(pre + f"buffer_load_dwordx4 a[{r}:{r+3}], v{126+i}, s[8:11], s44 offen" + WLD + post)
        return out
    PRE = min(int(OPT.get('pre', '4')), int(OPT.get('deep', '5')))
    for ks in range(PRE):
        for x in wload(ks): a(x)
    a(f"s_mov_b32 s30, {SCAL}")
    a("s_load_dwordx4 s[36:39], s[14:15], s30")
    a(f"s_mov_b32 s31, {SCAL+16}")
    a("s_load_dword s40, s[14:15], s31")
    a("v_bfe_u32 v14, v1, 2, 2")
    a("v_lshl_add_u32 v14, v3, 2, v14")
    a("v_and_b32 v15, 6, v14")
    a("v_lshrrev_b32 v15, 1, v15")
    a("v_and_b32 v29, 3, v1")
    a("v_lshlrev_b32 v30, 7, v14")
    a("v_lshl_add_u32 v30, v29, 3, v30")
    for k in range(4):
        a(f"s_add_u32 s30, s24, {k}")
        a(f"s_and_b32 s{48+k}, s30, 3")
        a(f"v_xor_b32 v31, s{48+k}, v15")
        a(f"v_lshl_add_u32 v{20+k}, v31, 5, v30")
    a("v_xor_b32 v31, s24, v15")
    a("v_lshl_add_u32 v26, v31, 5, v30")
    a("s_lshl_b32 s30, s26, 1")
    a("s_sub_u32 s30, s30, s23")
    a("s_add_u32 s31, s30, 1")
    a("s_and_b32 s30, s30, 15")
    a("s_and_b32 s31, s31, 15")
    a("s_lshl_b32 s30, s30, 12")
    a("s_lshl_b32 s31, s31, 12")
    a("v_add_u32 v125, s31, v26")
    a("v_add_u32 v26, s30, v26")
    a(f"v_add_u32 v24, {RED}, v13")
    ACC = 160
    for r in range(ACC, ACC + 48): a(f"v_mov_b32 v{r}, 0")
    for r in range(96, 108): a(f"v_mov_b32 v{r}, 0")
    a(f"s_waitcnt vmcnt({3*PRE}) lgkmcnt(0)")
    stamp(a, 1)
    a("s_barrier")
    XF = [32, 48]
    def xreads(ks):
        b = XF[ks & 1]
        out = []
        for k in range(4):
            for hf in range(2):
                out.append(f"ds_read_b64_tr_b16 v[{b+4*k+2*hf}:{b+4*k+2*hf+1}], v{20+k} offset:{4096*ks + 2048*hf}")
        return out
    STATS = OPT.get('stats', 'in')
    GQ = [64, 72]
    if STATS == 'in':
        for ks in range(PRE, int(OPT.get('deep', '5'))):
            for x in wload(ks): a(x)
    def greads(ks):
        g = GQ[ks & 1]
        return [f"ds_read_b128 v[{g}:{g+3}], v24 offset:{1024*ks}"]
    for x in xreads(0) + greads(0): a(x)
    DEEP = int(OPT.get('deep', '5'))
    a("s_mul_i32 s58, s24, 11")
    a("s_cmp_eq_u32 s24, 3")
    a("s_cselect_b32 s58, 32, s58")
    a("s_mul_i32 s59, s26, 43")
    a("s_add_u32 s59, s59, s58")
    a("s_lshl_b32 s59, s59, 12")
    a(f"s_add_u32 s59, s59, {W2F}")
    a.srd(60, 14, WS_USED)
    a("s_cmp_eq_u32 s24, 3")
    a("s_cselect_b32 s65, 0, s10")
    a("s_mov_b32 s64, s22")
    drip = []
    for j in range(11):
        for t in range(4):
            r = (j * 4 + t) * 4
            pre = "s_lshl_b32 s66, s64, 12\ns_add_u32 s66, s66, s59\ns_cmp_eq_u32 s64, 0\ns_cselect_b32 s62, s65, s10\n" if t == 0 else ""
            post = "\ns_add_u32 s64, s64, 1\ns_cmp_eq_u32 s64, 11\ns_cselect_b32 s64, 0, s64" if t == 3 else ""
            drip.append(pre + f"buffer_load_dwordx4 a[{r}:{r+3}], v13, s[60:63], s66 offen offset:{1024*t}" + WLD + post)
    a("s_lshl_b32 s30, s26, 8")
    a(f"s_add_u32 s30, s30, {GBF if FUSED else MODF + 5*2048}")
    a("v_lshl_add_u32 v27, v3, 4, s30")
    a("s_lshl_b32 s30, s26, 7")
    a("v_lshl_add_u32 v28, v3, 3, s30")
    gbl = []
    for dt in range(4):
        gbl.append(f"global_load_dwordx4 v[{208+4*dt}:{211+4*dt}], v27, s[14:15] offset:{64*dt}")
    for dt in range(4):
        gbl.append(f"global_load_dwordx2 v[{224+2*dt}:{225+2*dt}], v28, s[16:17] offset:{32*dt}")
    issued = DEEP
    vm_after = []
    seq = [("W", ks) for ks in range(DEEP) for _ in range(3)]
    def vmwait(tag):
        last = max(i for i, t in enumerate(seq) if t == tag)
        return len(seq) - 1 - last
    sm_done = False
    smalls = []
    for kq in range(4):
        for v in range(3):
            smalls.append(f"global_load_dword v{112+kq*3+v}, v8, s[14:15]")
            if not (kq == 3 and v == 2): smalls.append("v_add_u32 v8, 5504, v8")
    smalls.append("global_load_ushort v124, v9, s[12:13]")
    for ks in range(16):
        b = XF[ks & 1]
        a(f"s_waitcnt vmcnt({vmwait(('W', ks))}) lgkmcnt(0)")
        mf = []
        for i in range(3):
            r = (ks * 3 + i) * 4
            for k in range(4):
                d = ACC + (i * 4 + k) * 4
                mf.append(f"v_mfma_f32_16x16x32_bf16 v[{d}:{d+3}], a[{r}:{r+3}], v[{b+4*k}:{b+4*k+3}], v[{d}:{d+3}]")
        va = []
        if ks + 1 < 16: va += xreads(ks + 1) + greads(ks + 1)
        if issued < 16:
            va += wload(issued); seq += [("W", issued)] * 3; issued += 1
        elif not sm_done:
            sm_done = True
            va += smalls + gbl; seq += [("S", 0)] * 13 + [("G", 0)] * 8
        else:
            for _ in range(3):
                va.append(drip.pop(0)); seq.append(("W2", 0))
        for q in range(4):
            va.append(f"v_lshlrev_b32 v{80+2*q}, 16, v{b+q}")
            va.append(f"v_and_b32 v{81+2*q}, 0xffff0000, v{b+q}")
        for q in range(8):
            va.append(f"v_mul_f32 v{80+q}, v{80+q}, v{80+q}")
        for q in range(4):
            va.append(f"v_cvt_pk_bf16_f32 v{88+q}, v{80+2*q}, v{81+2*q}")
        if ks > 0:
            gp = GQ[(ks - 1) & 1]
            a(f"v_mfma_f32_16x16x32_bf16 v[96:99], v[{gp}:{gp+3}], v[88:91], v[96:99]")
        per = -(-len(va) // 12)
        vi = 0
        for m in mf:
            a(m)
            for _ in range(per):
                if vi < len(va): a(va[vi]); vi += 1
    a("s_nop 1")
    a(f"v_mfma_f32_16x16x32_bf16 v[96:99], v[{GQ[1]}:{GQ[1]+3}], v[88:91], v[96:99]")
    stamp(a, 2)
    KEEP = int(OPT.get('keep', '0'))
    def dr(n=1, final=False):
        for _ in range(n):
            if drip and (final or len(drip) > KEEP): a(drip.pop(0))
    a(f"s_waitcnt vmcnt({vmwait(('S', 0))})")
    dr(1)
    for v in range(3):
        a(f"v_add_f32 v{112+v}, v{112+v}, v{115+v}")
        a(f"v_add_f32 v{118+v}, v{118+v}, v{121+v}")
        a(f"v_add_f32 v{112+v}, v{112+v}, v{118+v}")
    a("v_lshlrev_b32 v124, 16, v124")
    dr(2)
    a("s_mul_i32 s30, s24, 768")
    a(f"s_add_u32 s30, s30, {SVT}")
    a("v_lshlrev_b32 v2, 8, v3")
    a("v_lshl_add_u32 v2, v6, 2, v2")
    a("v_add_u32 v2, s30, v2")
    a("v_cmp_gt_u32 vcc, 48, v1")
    a("s_and_saveexec_b64 s[42:43], vcc")
    a("ds_write_b32 v2, v112")
    a("ds_write_b32 v2, v114 offset:64")
    a("ds_write_b32 v2, v113 offset:128")
    a("ds_write_b32 v2, v124 offset:192")
    a("s_mov_b64 exec, s[42:43]")
    dr(2)
    a("s_lshl_b32 s30, s24, 9")
    a(f"s_add_u32 s30, s30, {STT}")
    a("v_lshl_add_u32 v2, v6, 5, s30")
    a("v_add_f32 v97, v98, v99")
    a("v_cmp_eq_u32 vcc, 0, v3")
    a("s_and_saveexec_b64 s[42:43], vcc")
    a("ds_write_b64 v2, v[96:97] offset:24")
    a("s_mov_b64 exec, s[42:43]")
    a("s_cmp_eq_u32 s24, 3")
    a("s_cbranch_scc0 K3_nolin")
    a("v_cmp_eq_u32 s[52:53], 0, v3")
    a("v_cmp_eq_u32 s[54:55], 1, v3")
    for k in range(4):
        a(f"s_lshl_b32 s30, s{48+k}, 9")
        a(f"s_add_u32 s30, s30, {STT}")
        a(f"v_lshl_add_u32 v{60+k}, v6, 5, s30")
    a("s_mov_b64 s[42:43], exec")
    a("s_mov_b64 exec, s[52:53]")
    for k in range(4):
        d = ACC + (8 + k) * 4
        a(f"ds_write_b128 v{60+k}, v[{d}:{d+3}]")
    a("s_mov_b64 exec, s[54:55]")
    for k in range(4):
        d = ACC + (8 + k) * 4
        a(f"ds_write_b64 v{60+k}, v[{d}:{d+1}] offset:16")
    a("s_mov_b64 exec, s[42:43]")
    a("K3_nolin:")
    dr(2)
    a("s_waitcnt lgkmcnt(0)")
    a("s_barrier")
    dr(2)
    a("v_lshlrev_b32 v2, 5, v1")
    a(f"v_add_u32 v2, {STT}, v2")
    a("ds_read_b128 v[32:35], v2")
    a("ds_read_b128 v[36:39], v2 offset:16")
    a("s_mul_i32 s30, s24, 768")
    a(f"s_add_u32 s30, s30, {SVT}")
    a("v_lshl_add_u32 v25, v3, 4, s30")
    a("s_mov_b32 s56, 0xbdd2d3e2")
    a("s_mov_b32 s57, 0xc0135761")
    a("s_waitcnt lgkmcnt(0)")
    a("v_add_f32 v34, v34, v35")
    a("v_add_f32 v36, v36, v37")
    a("v_mul_f32 v32, 0x3b000000, v32")
    a("v_mul_f32 v38, 0x3b000000, v38")
    a("v_fma_f32 v38, -v32, v32, v38")
    a("v_max_f32 v38, 0, v38")
    a("v_cvt_pk_bf16_f32 v40, v32, v38")
    a("v_lshlrev_b32 v32, 16, v40")
    a("v_and_b32 v38, 0xffff0000, v40")
    a("v_add_f32 v38, 0x3727c5ac, v38")
    rbf(a, 38, 38)
    a("v_sqrt_f32 v38, v38")
    a("v_fma_f32 v33, -v32, s36, v33")
    dr(2)
    rbf(a, 38, 38)
    a("v_rcp_f32 v38, v38")
    a("v_mul_f32 v40, v32, v32")
    a("v_add_f32 v41, v32, v32")
    a("v_fma_f32 v39, -v41, v34, v39")
    a("v_fma_f32 v39, v40, s37, v39")
    a("v_fma_f32 v36, -v32, s38, v36")
    a("v_fma_f32 v33, v33, v38, s39")
    a("v_add_f32 v36, v36, v36")
    a("v_fma_f32 v39, v39, v38, v36")
    a("v_mul_f32 v33, 0x3b000000, v33")
    dr(2)
    a("v_fma_f32 v39, v39, v38, s40")
    a("v_mul_f32 v39, 0x3b000000, v39")
    a("v_fma_f32 v39, -v33, v33, v39")
    a("v_max_f32 v39, 0, v39")
    a("v_cvt_pk_bf16_f32 v40, v33, v39")
    a("v_lshlrev_b32 v33, 16, v40")
    a("v_and_b32 v39, 0xffff0000, v40")
    a("v_add_f32 v39, 0x3727c5ac, v39")
    rbf(a, 39, 39)
    a("v_sqrt_f32 v39, v39")
    a("s_nop 0")
    rbf(a, 39, 39)
    a("v_rcp_f32 v47, v39")
    a("s_lshl_b32 s30, s24, 10")
    a(f"s_add_u32 s30, s30, {COF}")
    a("v_mul_f32 v44, v47, v38")
    a("v_mul_f32 v46, -v47, v33")
    a("v_mul_f32 v45, -v44, v32")
    a("v_lshl_add_u32 v2, v1, 4, s30")
    a("ds_write_b128 v2, v[44:47]")
    a("s_waitcnt lgkmcnt(0)")
    for k in range(4):
        a(f"s_lshl_b32 s31, s{48+k}, 8")
        a("s_add_u32 s31, s31, s30")
        a(f"v_lshl_add_u32 v2, v6, 4, s31")
        a(f"ds_read_b128 v[{48+4*k}:{51+4*k}], v2")
    SVR = [64, 128, 144]
    for i in range(3):
        for st in range(4):
            a(f"ds_read_b128 v[{SVR[i]+4*st}:{SVR[i]+4*st+3}], v25 offset:{256*i + 64*st}")
    dr(2)
    stamp(a, 3)
    a("s_waitcnt lgkmcnt(0)")
    for i in range(3):
        if i > 0 and OPT.get('x_nodrip') != '1': dr(4)
        a(f"s_cmp_eq_u32 s{32+i}, 86")
        a(f"s_cbranch_scc1 K3_skip{i}")
        SV = SVR[i]
        a(f"s_add_u32 s30, s29, {i}")
        a("s_lshr_b32 s31, s30, 1")
        a("s_lshl_b32 s31, s31, 12")
        a("s_and_b32 s30, s30, 1")
        a("s_lshl_b32 s30, s30, 3")
        a("s_add_u32 s30, s30, s31")
        a(f"s_add_u32 s30, s30, {RED}")
        A_ = ACC + i * 16
        for k in range(4):
            c = 48 + 4 * k
            for p in range(2):
                t = 96 + 4 * k + 2 * p
                a(f"v_pk_fma_f32 v[{t}:{t+1}], v[{SV+2*p}:{SV+1+2*p}], v[{c}:{c+1}], v[{SV+12+2*p}:{SV+13+2*p}] op_sel:[0,1,0] op_sel_hi:[1,1,1]")
        if i == 0 and OPT.get('x_nodrip') != '1': dr(2)
        for k in range(4):
            c = 48 + 4 * k
            for p in range(2):
                t = 96 + 4 * k + 2 * p
                a(f"v_pk_fma_f32 v[{t}:{t+1}], v[{SV+4+2*p}:{SV+5+2*p}], v[{c+2}:{c+3}], v[{t}:{t+1}] op_sel_hi:[1,0,1]")
        if i == 0 and OPT.get('x_nodrip') != '1': dr(2)
        for k in range(4):
            c = 48 + 4 * k
            for p in range(2):
                t = 96 + 4 * k + 2 * p
                a(f"v_pk_fma_f32 v[{t}:{t+1}], v[{SV+8+2*p}:{SV+9+2*p}], v[{c+2}:{c+3}], v[{t}:{t+1}] op_sel:[0,1,0] op_sel_hi:[1,1,1]")
        if i == 0 and OPT.get('x_nodrip') != '1': dr(2)
        for k in range(4):
            c = 48 + 4 * k
            for p in range(2):
                x = A_ + 4 * k + 2 * p; t = 96 + 4 * k + 2 * p
                a(f"v_pk_fma_f32 v[{x}:{x+1}], v[{x}:{x+1}], v[{c}:{c+1}], v[{t}:{t+1}] op_sel_hi:[1,0,1]")
        if i == 0 and OPT.get('x_nodrip') != '1': dr(2)
        for j in range(8):
            x = A_ + 2 * j; t = 96 + 2 * j
            a(f"v_pk_mul_f32 v[{t}:{t+1}], v[{x}:{x+1}], v[{x}:{x+1}]")
        for j in range(8):
            t = 96 + 2 * j
            a(f"v_pk_fma_f32 v[{t}:{t+1}], v[{t}:{t+1}], s[56:57], s[56:57] op_sel:[0,0,1] op_sel_hi:[1,0,1]")
        if i == 0 and OPT.get('x_nodrip') != '1': dr(2)
        for j in range(8):
            x = A_ + 2 * j; t = 96 + 2 * j
            a(f"v_pk_mul_f32 v[{t}:{t+1}], v[{t}:{t+1}], v[{x}:{x+1}]")
        for j in range(16): a(f"v_exp_f32 v{96+j}, v{96+j}")
        if i == 0 and OPT.get('x_nodrip') != '1': dr(3)
        for j in range(8):
            t = 96 + 2 * j
            a(f"v_pk_add_f32 v[{t}:{t+1}], v[{t}:{t+1}], 1.0 op_sel_hi:[1,0]")
        for j in range(16): a(f"v_rcp_f32 v{96+j}, v{96+j}")
        if i == 0 and OPT.get('x_nodrip') != '1': dr(3)
        for j in range(8):
            x = A_ + 2 * j; t = 96 + 2 * j
            a(f"v_pk_mul_f32 v[{x}:{x+1}], v[{x}:{x+1}], v[{t}:{t+1}]")
        for k in range(4):
            a(f"v_cvt_pk_bf16_f32 v{112+2*k}, v{A_+4*k}, v{A_+4*k+1}")
            a(f"v_cvt_pk_bf16_f32 v{113+2*k}, v{A_+4*k+2}, v{A_+4*k+3}")
        if i == 1:
            a("s_cmp_eq_u32 s29, 9")
            a("s_cbranch_scc0 K3_paired1")
            a("s_lshr_b32 s31, s26, 1")
            a("s_add_u32 s31, s31, 40")
            a("s_mul_i32 s43, s25, 43")
            a("s_add_u32 s31, s31, s43")
            a("s_lshl_b32 s31, s31, 12")
            a("s_and_b32 s43, s26, 1")
            a("s_lshl_b32 s43, s43, 3")
            a("s_add_u32 s31, s31, s43")
            a(f"s_add_u32 s31, s31, {HF}")
            for k in range(4):
                a(f"s_lshl_b32 s43, s{48+k}, 10")
                a("s_add_u32 s43, s43, s31")
                a(f"buffer_store_dwordx2 v[{112+2*k}:{113+2*k}], v13, s[8:11], s43 offen sc1")
            a("s_branch K3_skip1")
            a("K3_paired1:")
        for k in range(4):
            a(f"s_lshl_b32 s31, s{48+k}, 10")
            a("s_add_u32 s31, s31, s30")
            a(f"v_add_u32 v2, s31, v13")
            a(f"ds_write_b64 v2, v[{112+2*k}:{113+2*k}]")
        a(f"K3_skip{i}:   ; LINT-RESET")
    stamp(a, 9)
    dr(99)
    a("s_waitcnt lgkmcnt(0)")
    a("s_barrier")
    stamp(a, 4)
    a("s_mul_i32 s30, s24, 5120")
    a("v_add_u32 v2, s30, v13")
    a(f"v_add_u32 v2, {RED}, v2")
    for q in range(5): a(f"ds_read_b128 v[{32+4*q}:{35+4*q}], v2 offset:{1024*q}")
    a("s_mul_i32 s31, s25, 43")
    a("s_mul_i32 s43, s26, 5")
    a("s_add_u32 s31, s31, s43")
    a("s_lshl_b32 s31, s31, 12")
    a("s_add_u32 s31, s31, s30")
    a(f"s_add_u32 s31, s31, {HF}")
    for q in range(5):
        a(f"s_waitcnt lgkmcnt({4-q})")
        if q == 4: a("s_add_u32 s31, s31, 4096")
        a(f"buffer_store_dwordx4 v[{32+4*q}:{35+4*q}], v13, s[8:11], s31 offen offset:{1024*(q&3)} sc1")
    for r in range(176, 240): a(f"v_accvgpr_write_b32 a{r}, 0")
    a(f"s_waitcnt vmcnt(0)")
    stamp(a, 5)
    a("s_barrier")
    a("s_cmp_lg_u32 s24, 0")
    a("s_cbranch_scc1 K3_wait")
    a("s_lshl_b32 s30, s25, 7")
    a(f"s_add_u32 s30, s30, {FLAGS}")
    a("v_mov_b32 v2, s30")
    a("v_mov_b32 v4, 1")
    a("s_mov_b64 s[42:43], exec")
    a("s_mov_b64 exec, 1")
    a("global_atomic_add v4, v2, v4, s[14:15] sc0 sc1")
    a("s_waitcnt vmcnt(0)")
    a("v_readfirstlane_b32 s30, v4")
    a("s_cmp_eq_u32 s30, 7")
    a("s_cbranch_scc1 K3_pollx")
    a("s_mov_b32 s31, 0x100000")
    a("K3_poll:")
    a("buffer_load_dword v5, v2, s[8:11], 0 offen sc1")
    a("s_waitcnt vmcnt(0)")
    a("v_readfirstlane_b32 s30, v5")
    a("s_sub_u32 s31, s31, 1")
    a("s_cmp_eq_u32 s31, 0")
    a("s_cbranch_scc1 K3_pollx")
    a("s_cmp_ge_u32 s30, 8")
    a("s_cbranch_scc0 K3_poll")
    a("K3_pollx:")
    a("s_mov_b64 exec, s[42:43]")
    a("K3_wait:   ; LINT-RESET")
    a("s_barrier")
    stamp(a, 6)
    a("s_mul_i32 s57, s25, 43")
    a("s_add_u32 s57, s57, s58")
    a("s_lshl_b32 s57, s57, 12")
    a(f"s_add_u32 s57, s57, {HF}")
    a("s_mov_b32 s64, s22")
    late = list(drip); drip.clear()
    hl = []
    for j in range(11):
        for t in range(4):
            r = 32 + (j * 4 + t) * 4
            pre = "s_lshl_b32 s56, s64, 12\ns_add_u32 s56, s56, s57\n" if t == 0 else ""
            post = "\ns_add_u32 s64, s64, 1\ns_cmp_eq_u32 s64, 11\ns_cselect_b32 s64, 0, s64" if t == 3 else ""
            hl.append((("H", j), pre + f"buffer_load_dwordx4 v[{r}:{r+3}], v13, s[8:11], s56 offen offset:{1024*t}" + HLD + post))
    pos = 20
    lt_ = [(("L", 0), x) for x in late]
    hl = hl[:pos] + lt_ + hl[pos:]
    HD = int(OPT.get('hd', '16'))
    qseq = []
    def hissue():
        tag, x = hl.pop(0); a(x); qseq.append(tag)
    for _ in range(HD): hissue()
    for dt in range(4):
        a(f"ds_read_b64_tr_b16 v[{16+2*dt}:{17+2*dt}], v{26 if dt < 2 else 125} offset:{2048*(dt&1)}")
    for j in range(11):
        need = [i for i, t in enumerate(qseq) if t == ("H", j)]
        assert len(need) == 4
        last = max(need)
        if late and j >= 9: last = max(last, max(i for i, t in enumerate(qseq) if t == ("L", 0)))
        a(f"s_waitcnt vmcnt({len(qseq) - 1 - last})")
        q = 0
        for dt in range(4):
            for lt in range(4):
                d = 176 + (dt * 4 + lt) * 4
                ar = (j * 4 + dt) * 4
                br = 32 + (j * 4 + lt) * 4
                a(f"v_mfma_f32_16x16x32_bf16 a[{d}:{d+3}], a[{ar}:{ar+3}], v[{br}:{br+3}], a[{d}:{d+3}]")
                if q % 4 == 0 and hl: hissue()
                q += 1
    stamp(a, 7)
    a("v_mul_u32_u24 v5, 272, v6")
    a("v_lshl_add_u32 v5, v3, 4, v5")
    a(f"s_mul_i32 s30, s24, {P_W}")
    a(f"s_add_u32 s30, s30, {RED}")
    a("v_add_u32 v7, s30, v5")
    a("s_nop 4")
    for dt in range(4):
        for lt in range(4):
            d = 176 + (dt * 4 + lt) * 4
            a(f"ds_write_b128 v7, a[{d}:{d+3}] offset:{lt*16*272 + dt*64}")
    a(f"s_mul_i32 s30, s24, {16*272}")
    a(f"s_add_u32 s30, s30, {RED}")
    a("v_add_u32 v7, s30, v5")
    a("s_waitcnt lgkmcnt(0)")
    a("s_barrier")
    stamp(a, 8)
    for dt in range(4):
        for w in range(4):
            r = 32 + (dt * 4 + w) * 4
            a(f"ds_read_b128 v[{r}:{r+3}], v7 offset:{w*P_W + dt*64}")
    a.srd(40, 18, 2048 * 512 * 2)
    a("s_lshl_b32 s30, s25, 16")
    a("s_lshl_b32 s31, s24, 14")
    a("s_add_u32 s30, s30, s31")
    a("s_lshl_b32 s31, s26, 7")
    a("s_add_u32 s30, s30, s31")
    a("v_lshlrev_b32 v9, 10, v6")
    a("v_lshl_add_u32 v9, v3, 3, v9")
    a("v_add_u32 v9, s30, v9")
    for dt in range(4):
        a(f"s_waitcnt lgkmcnt({4*(3-dt)})")
        r = 32 + dt * 16
        for p in range(2):
            a(f"v_pk_add_f32 v[{r+2*p}:{r+2*p+1}], v[{r+2*p}:{r+2*p+1}], v[{r+4+2*p}:{r+5+2*p}]")
            a(f"v_pk_add_f32 v[{r+8+2*p}:{r+9+2*p}], v[{r+8+2*p}:{r+9+2*p}], v[{r+12+2*p}:{r+13+2*p}]")
        for p in range(2):
            a(f"v_pk_add_f32 v[{r+2*p}:{r+2*p+1}], v[{r+2*p}:{r+2*p+1}], v[{r+8+2*p}:{r+9+2*p}]")
        for q in range(2):
            a(f"v_lshlrev_b32 v{120+2*q}, 16, v{224+2*dt+q}")
            a(f"v_and_b32 v{121+2*q}, 0xffff0000, v{224+2*dt+q}")
            a(f"v_lshlrev_b32 v{124+2*q}, 16, v{16+2*dt+q}")
            a(f"v_and_b32 v{125+2*q}, 0xffff0000, v{16+2*dt+q}")
        for p in range(2):
            a(f"v_pk_add_f32 v[{r+2*p}:{r+2*p+1}], v[{r+2*p}:{r+2*p+1}], v[{120+2*p}:{121+2*p}]")
        for p in range(2):
            a(f"v_pk_fma_f32 v[{r+2*p}:{r+2*p+1}], v[{r+2*p}:{r+2*p+1}], v[{208+4*dt+2*p}:{209+4*dt+2*p}], v[{124+2*p}:{125+2*p}]")
        a(f"v_cvt_pk_bf16_f32 v{24+2*dt}, v{r}, v{r+1}")
        a(f"v_cvt_pk_bf16_f32 v{25+2*dt}, v{r+2}, v{r+3}")
        a(f"buffer_store_dwordx2 v[{24+2*dt}:{25+2*dt}], v9, s[40:43], 0 offen offset:{32*dt}")
    a("K3_END:   ; LINT-RESET")
    stamp_store(a, KID3, 14, 24)
    a("K3_EXIT:")
    a.end_kernel(name, 256 + 240, 100, accum=256)


W8_G2T = 65536
W8_SVT = W8_G2T + 2048
W8_STT = W8_SVT + 3072
W8_COF = W8_STT + 4096
W8_RED = W8_COF + 8192
W8_STG = W8_RED + 49152
W8_LDS = W8_RED + 4 * P_W
assert W8_STG + 20480 <= W8_LDS
RING = 32768

def k3w(a):
    name = "k3_kernel"
    a.begin_kernel(name, 256, 512, W8_LDS)
    a("s_cmp_ge_u32 s2, 256")
    a("s_cbranch_scc1 K3_EXIT")
    stamp(a, 0)
    a("s_load_dwordx2 s[14:15], s[0:1], 128")
    a("s_load_dwordx2 s[12:13], s[0:1], 72")
    a("s_load_dwordx2 s[16:17], s[0:1], 88")
    a("s_load_dwordx2 s[18:19], s[0:1], 112")
    wave_id(a, 24, 1)
    a("v_and_b32 v1, 63, v0")
    a("s_and_b32 s20, s24, 3")
    a("s_lshr_b32 s21, s24, 2")
    a("s_and_b32 s25, s2, 7")
    a("s_lshr_b32 s26, s2, 3")
    a("s_lshr_b32 s27, s26, 3")
    a("s_lshl_b32 s25, s25, 2")
    a("s_add_u32 s25, s25, s27")
    a("s_and_b32 s26, s26, 7")
    a("s_mul_i32 s27, s26, 11")
    a("s_min_u32 s27, s27, 76")
    a("s_cmp_lt_u32 s26, 6")
    a("s_cselect_b32 s28, 11, 10")
    a("s_mul_i32 s29, s20, 3")
    for i in range(3):
        a(f"s_add_u32 s30, s29, {i}")
        a("s_add_u32 s31, s30, s27")
        a("s_cmp_lt_u32 s30, s28")
        a(f"s_cselect_b32 s{32+i}, s31, 86")
    a("v_lshrrev_b32 v10, 3, v1")
    a("v_and_b32 v11, 6, v10")
    a("v_and_b32 v12, 7, v1")
    a("v_xor_b32 v11, v11, v12")
    a("v_lshlrev_b32 v11, 4, v11")
    a("v_lshl_add_u32 v11, v10, 7, v11")
    a("s_lshl_b32 s42, s24, 10")
    a("s_lshl_b32 s41, s25, 16")
    a("s_add_u32 s41, s41, s42")
    a(f"s_add_u32 s41, s41, {X2T}")
    a("v_lshlrev_b32 v2, 2, v0")
    a(f"v_add_u32 v4, {G2F}, v2")
    a("v_lshlrev_b32 v13, 4, v1")
    for i in range(3):
        a(f"s_lshl_b32 s30, s{32+i}, 10")
        a(f"v_add_u32 v{14+i}, s30, v13")
    a(f"s_mul_i32 s44, s21, {8*87*1024}")
    a(f"s_add_u32 s44, s44, {W1F}")
    a("s_waitcnt lgkmcnt(0)")
    wsfix(a, 14)
    a.srd(8, 14, WS_USED)
    a("global_load_dword v5, v4, s[14:15]")
    for j in range(8):
        a("s_mov_b32 m0, s42")
        a("s_add_u32 s42, s42, 8192")
        a(f"buffer_load_dwordx4 v11, s[8:11], s41 offen lds")
        a(f"s_add_u32 s41, s41, 8192")
    WR = 208
    DEEP = 3
    def wload(j):
        out = []
        for i in range(3):
            r = WR + (j % DEEP) * 12 + 4 * i
            out.append(f"buffer_load_dwordx4 v[{r}:{r+3}], v{14+i}, s[8:11], s44 offen")
        out.append(f"s_add_u32 s44, s44, {87*1024}")
        return out
    for j in range(2):
        for x in wload(j): a(x)
    a(f"s_mov_b32 s30, {SCAL}")
    a("s_load_dwordx4 s[36:39], s[14:15], s30")
    a(f"s_mov_b32 s31, {SCAL+16}")
    a("s_load_dword s40, s[14:15], s31")
    a("v_lshrrev_b32 v3, 4, v1")
    a("v_and_b32 v6, 15, v1")
    a("v_bfe_u32 v18, v1, 2, 2")
    a("v_lshl_add_u32 v18, v3, 2, v18")
    a("v_and_b32 v19, 6, v18")
    a("v_lshrrev_b32 v19, 1, v19")
    a("v_and_b32 v29, 3, v1")
    a("v_lshlrev_b32 v30, 7, v18")
    a("v_lshl_add_u32 v30, v29, 3, v30")
    a("s_lshl_b32 s45, s21, 15")
    a("s_lshl_b32 s46, s21, 1")
    a("s_add_u32 s46, s46, s20")
    for k in range(4):
        a(f"s_add_u32 s30, s46, {k}")
        a(f"s_and_b32 s{48+k}, s30, 3")
        a(f"v_xor_b32 v31, s{48+k}, v19")
        a(f"v_lshl_add_u32 v{20+k}, v31, 5, v30")
        a(f"v_add_u32 v{20+k}, s45, v{20+k}")
    a("v_xor_b32 v31, s20, v19")
    a("v_lshl_add_u32 v26, v31, 5, v30")
    a("s_lshl_b32 s30, s26, 13")
    a("s_lshl_b32 s31, s21, 12")
    a("s_add_u32 s30, s30, s31")
    a("v_add_u32 v26, s30, v26")
    a("s_lshl_b32 s30, s21, 10")
    a(f"s_add_u32 s30, s30, {W8_G2T}")
    a("v_lshl_add_u32 v24, v3, 4, s30")
    ACC = 160
    for r in range(ACC, ACC + 48): a(f"v_mov_b32 v{r}, 0")
    for r in range(96, 108): a(f"v_mov_b32 v{r}, 0")
    a("s_waitcnt vmcnt(14)")
    a(f"v_add_u32 v2, {W8_G2T}, v2")
    a("ds_write_b32 v2, v5")
    a("v_mov_b32 v7, s32")
    a("v_mov_b32 v8, s33")
    a("v_mov_b32 v9, s34")
    a("v_cmp_eq_u32 vcc, 1, v3")
    a("v_cmp_le_u32 s[52:53], 2, v3")
    a("s_nop 0")
    a("v_cndmask_b32 v7, v7, v8, vcc")
    a("v_cndmask_b32 v7, v7, v9, s[52:53]")
    a("v_min_u32 v7, 85, v7")
    a("v_lshl_add_u32 v7, v7, 4, v6")
    a("v_lshlrev_b32 v8, 2, v7")
    a(f"v_add_u32 v8, {SVP}, v8")
    a("v_lshlrev_b32 v9, 1, v7")
    a("s_mul_i32 s58, s20, 11")
    a("s_cmp_eq_u32 s20, 3")
    a("s_cselect_b32 s58, 32, s58")
    a("s_mul_i32 s59, s26, 43")
    a("s_add_u32 s59, s59, s58")
    a("s_lshl_b32 s59, s59, 12")
    a("s_lshl_b32 s30, s21, 11")
    a("s_add_u32 s59, s59, s30")
    a(f"s_add_u32 s59, s59, {W2F}")
    a.srd(60, 14, WS_USED)
    a("s_cmp_eq_u32 s20, 3")
    a("s_cselect_b32 s62, 0, s10")
    W2R = 108
    def w2reg(j, t):
        idx = 2 * j + t
        return 208 + 4 * idx if idx < 9 else 108 + 4 * (idx - 9)
    drip = []
    items = [(j, t) for j in range(11) for t in range(2)]
    s59off = {}
    late = [it for it in items if 2 * it[0] + it[1] < 9]
    early = [it for it in items if 2 * it[0] + it[1] >= 9]
    for (j, t) in early + late:
        srd = "s[60:63]" if j == 0 else "s[8:11]"
        r = w2reg(j, t)
        drip.append(f"s_add_u32 s57, s59, {4096*j}\nbuffer_load_dwordx4 v[{r}:{r+3}], v13, {srd}, s57 offen offset:{1024*t}")
    a("s_lshl_b32 s30, s26, 8")
    a("s_lshl_b32 s31, s21, 7")
    a("s_add_u32 s30, s30, s31")
    a(f"s_add_u32 s30, s30, {GBF}")
    a("v_lshl_add_u32 v27, v3, 4, s30")
    a("s_lshl_b32 s30, s26, 7")
    a("s_lshl_b32 s31, s21, 6")
    a("s_add_u32 s30, s30, s31")
    a("v_lshl_add_u32 v28, v3, 3, s30")
    gbl = [f"global_load_dwordx4 v[{244+4*t}:{247+4*t}], v27, s[14:15] offset:{64*t}" for t in range(2)]
    gbl += [f"global_load_dwordx2 v[{252+2*t}:{253+2*t}], v28, s[16:17] offset:{32*t}" for t in range(2)]
    a(f"s_waitcnt vmcnt(6) lgkmcnt(0)")
    stamp(a, 1)
    a("s_barrier")
    XF = [32, 48]
    GQ = [64, 72]
    def xreads(j):
        b = XF[j & 1]; g = GQ[j & 1]
        out = []
        for k in range(4):
            for hf in range(2):
                out.append(f"ds_read_b64_tr_b16 v[{b+4*k+2*hf}:{b+4*k+2*hf+1}], v{20+k} offset:{4096*j + 2048*hf}")
        out.append(f"ds_read_b128 v[{g}:{g+3}], v24 offset:{128*j}")
        out.append(f"ds_read_b128 v[{g+4}:{g+7}], v24 offset:{128*j+64}")
        return out
    for x in xreads(0): a(x)
    for x in wload(2): a(x)
    seq = [("W", j) for j in range(3) for _ in range(3)]
    def vmwait(tag):
        last = max(i for i, t in enumerate(seq) if t == tag)
        return len(seq) - 1 - last
    smalls = []
    for kq in range(4):
        for v in range(3):
            smalls.append(f"global_load_dword v{112+kq*3+v}, v8, s[14:15]")
            if not (kq == 3 and v == 2): smalls.append("v_add_u32 v8, 5504, v8")
    smalls.append("global_load_ushort v124, v9, s[12:13]")
    issued = 3
    for j in range(8):
        b = XF[j & 1]; g = GQ[j & 1]
        a(f"s_waitcnt vmcnt({vmwait(('W', j))}) lgkmcnt(0)")
        mf = []
        for i in range(3):
            r = WR + (j % DEEP) * 12 + 4 * i
            for k in range(4):
                d = ACC + (i * 4 + k) * 4
                mf.append(f"v_mfma_f32_16x16x32_bf16 v[{d}:{d+3}], v[{r}:{r+3}], v[{b+4*k}:{b+4*k+3}], v[{d}:{d+3}]")
        va = []
        if j + 1 < 8: va += xreads(j + 1)
        post = []
        if issued < 8:
            post = wload(issued); seq += [("W", issued)] * 3; issued += 1
        elif j == 6:
            post = smalls + gbl; seq += [("S", 0)] * 13 + [("G", 0)] * 4
        for q_ in range(4):
            va.append(f"v_lshlrev_b32 v{80+2*q_}, 16, v{b+q_}")
            va.append(f"v_and_b32 v{81+2*q_}, 0xffff0000, v{b+q_}")
        for q_ in range(8): va.append(f"v_mul_f32 v{80+q_}, v{80+q_}, v{80+q_}")
        for q_ in range(8):
            va.append(f"v_add_f32 v{96+(q_&3)}, v{96+(q_&3)}, v{80+q_}")
            va.append(f"v_fmac_f32 v{100+q_}, v{80+q_}, v{g+q_}")
        per = -(-len(va) // 12)
        vi = 0
        for m in mf:
            a(m)
            for _ in range(per):
                if vi < len(va): a(va[vi]); vi += 1
        for x in post: a(x)
    stamp(a, 2)
    def dr(n=1):
        for _ in range(n):
            if drip: a(drip.pop(0))
    a(f"s_mul_i32 s30, s24, 6144")
    a(f"s_add_u32 s30, s30, {W8_RED}")
    a("v_add_u32 v2, s30, v13")
    a("s_xor_b32 s31, s24, 4")
    a(f"s_mul_i32 s31, s31, 6144")
    a(f"s_add_u32 s31, s31, {W8_RED}")
    a("v_add_u32 v25, s31, v13")
    a("v_pk_add_f32 v[96:97], v[96:97], v[98:99]")
    a("v_add_f32 v96, v96, v97")
    a("v_pk_add_f32 v[100:101], v[100:101], v[102:103]")
    a("v_pk_add_f32 v[104:105], v[104:105], v[106:107]")
    a("v_pk_add_f32 v[100:101], v[100:101], v[104:105]")
    a("v_add_f32 v97, v100, v101")
    for i in range(3):
        for k in (2, 3):
            d = ACC + (i * 4 + k) * 4
            a(f"ds_write_b128 v2, v[{d}:{d+3}] offset:{(i*2 + k - 2)*1024}")
    a("v_mov_b32 v98, v96")
    a("v_mov_b32 v99, v97")
    a("s_nop 0")
    a("v_permlane16_swap_b32 v96, v98")
    a("v_permlane16_swap_b32 v97, v99")
    dr(1)
    a("v_add_f32 v96, v96, v98")
    a("v_add_f32 v97, v97, v99")
    a("v_mov_b32 v98, v96")
    a("v_mov_b32 v99, v97")
    a("s_nop 0")
    a("v_permlane32_swap_b32 v96, v98")
    a("v_permlane32_swap_b32 v97, v99")
    a("s_lshl_b32 s30, s48, 10")
    a("s_lshl_b32 s31, s21, 5")
    a("s_add_u32 s30, s30, s31")
    a(f"s_add_u32 s30, s30, {W8_STT}")
    a("v_add_f32 v96, v96, v98")
    a("v_add_f32 v97, v97, v99")
    a("v_lshl_add_u32 v2, v6, 6, s30")
    a("ds_write_b64 v2, v[96:97] offset:24")
    a("s_cmp_eq_u32 s20, 3")
    a("s_cbranch_scc0 K3_nolin")
    a("v_cmp_eq_u32 s[52:53], 0, v3")
    a("v_cmp_eq_u32 s[54:55], 1, v3")
    for k in range(4):
        a(f"s_lshl_b32 s30, s{48+k}, 10")
        a("s_lshl_b32 s31, s21, 5")
        a("s_add_u32 s30, s30, s31")
        a(f"s_add_u32 s30, s30, {W8_STT}")
        a(f"v_lshl_add_u32 v{64+k}, v6, 6, s30")
    a("s_mov_b64 exec, s[52:53]")
    for k in range(4):
        d = ACC + (8 + k) * 4
        a(f"ds_write_b128 v{64+k}, v[{d}:{d+3}]")
    a("s_mov_b64 exec, s[54:55]")
    for k in range(4):
        d = ACC + (8 + k) * 4
        a(f"ds_write_b64 v{64+k}, v[{d}:{d+1}] offset:16")
    a("s_mov_b64 exec, -1")
    a("K3_nolin:")
    a("s_cmp_eq_u32 s21, 0")
    a("s_cbranch_scc0 K3_nosv")
    a(f"s_waitcnt vmcnt({vmwait(('S', 0)) + 1})")
    for v in range(3):
        a(f"v_add_f32 v{112+v}, v{112+v}, v{115+v}")
        a(f"v_add_f32 v{118+v}, v{118+v}, v{121+v}")
        a(f"v_add_f32 v{112+v}, v{112+v}, v{118+v}")
    a("v_lshlrev_b32 v124, 16, v124")
    a("s_mul_i32 s30, s20, 768")
    a(f"s_add_u32 s30, s30, {W8_SVT}")
    a("v_lshlrev_b32 v2, 8, v3")
    a("v_lshl_add_u32 v2, v6, 2, v2")
    a("v_add_u32 v2, s30, v2")
    a("v_cmp_gt_u32 vcc, 48, v1")
    a("s_and_saveexec_b64 s[42:43], vcc")
    a("ds_write_b32 v2, v112")
    a("ds_write_b32 v2, v114 offset:64")
    a("ds_write_b32 v2, v113 offset:128")
    a("ds_write_b32 v2, v124 offset:192")
    a("s_mov_b64 exec, s[42:43]")
    a("K3_nosv:   ; LINT-RESET")
    a("s_waitcnt vmcnt(1) lgkmcnt(0)")
    a("s_barrier")
    for i in range(3):
        for k in range(2):
            r = 64 + (i * 2 + k) * 4
            a(f"ds_read_b128 v[{r}:{r+3}], v25 offset:{(i*2 + k)*1024}")
    a("v_lshlrev_b32 v2, 6, v1")
    a(f"v_add_u32 v2, {W8_STT}, v2")
    a("ds_read_b128 v[32:35], v2")
    a("ds_read_b128 v[36:39], v2 offset:16")
    a("ds_read_b128 v[40:43], v2 offset:32")
    a("ds_read_b128 v[44:47], v2 offset:48")
    dr(2)
    a("s_waitcnt lgkmcnt(4)")
    for i in range(3):
        for k in range(2):
            d = ACC + (i * 4 + k) * 4; r = 64 + (i * 2 + k) * 4
            a(f"v_pk_add_f32 v[{d}:{d+1}], v[{d}:{d+1}], v[{r}:{r+1}]")
            a(f"v_pk_add_f32 v[{d+2}:{d+3}], v[{d+2}:{d+3}], v[{r+2}:{r+3}]")
    a("s_waitcnt lgkmcnt(0)")
    for r in range(0, 8, 2): a(f"v_pk_add_f32 v[{32+r}:{33+r}], v[{32+r}:{33+r}], v[{40+r}:{41+r}]")
    dr(1)
    a("v_add_f32 v34, v34, v35")
    a("v_add_f32 v36, v36, v37")
    a("v_mul_f32 v32, 0x3b000000, v32")
    a("v_mul_f32 v38, 0x3b000000, v38")
    a("v_fma_f32 v38, -v32, v32, v38")
    a("v_max_f32 v38, 0, v38")
    a("v_cvt_pk_bf16_f32 v40, v32, v38")
    a("v_lshlrev_b32 v32, 16, v40")
    a("v_and_b32 v38, 0xffff0000, v40")
    a("v_add_f32 v38, 0x3727c5ac, v38")
    rbf(a, 38, 38)
    a("v_sqrt_f32 v38, v38")
    a("v_fma_f32 v33, -v32, s36, v33")
    rbf(a, 38, 38)
    a("v_rcp_f32 v38, v38")
    a("v_mul_f32 v40, v32, v32")
    a("v_add_f32 v41, v32, v32")
    a("v_fma_f32 v39, -v41, v34, v39")
    a("v_fma_f32 v39, v40, s37, v39")
    a("v_fma_f32 v36, -v32, s38, v36")
    a("v_fma_f32 v33, v33, v38, s39")
    a("v_add_f32 v36, v36, v36")
    a("v_fma_f32 v39, v39, v38, v36")
    a("v_mul_f32 v33, 0x3b000000, v33")
    dr(1)
    a("v_fma_f32 v39, v39, v38, s40")
    a("v_mul_f32 v39, 0x3b000000, v39")
    a("v_fma_f32 v39, -v33, v33, v39")
    a("v_max_f32 v39, 0, v39")
    a("v_cvt_pk_bf16_f32 v40, v33, v39")
    a("v_lshlrev_b32 v33, 16, v40")
    a("v_and_b32 v39, 0xffff0000, v40")
    a("v_add_f32 v39, 0x3727c5ac, v39")
    rbf(a, 39, 39)
    a("v_sqrt_f32 v39, v39")
    a("s_nop 0")
    rbf(a, 39, 39)
    a("v_rcp_f32 v47, v39")
    a("s_lshl_b32 s30, s24, 10")
    a(f"s_add_u32 s30, s30, {W8_COF}")
    a("v_mul_f32 v44, v47, v38")
    a("v_mul_f32 v46, -v47, v33")
    a("v_mul_f32 v45, -v44, v32")
    a("v_lshl_add_u32 v2, v1, 4, s30")
    a("ds_write_b128 v2, v[44:47]")
    a("s_waitcnt lgkmcnt(0)")
    for k in range(2):
        a(f"s_lshl_b32 s31, s{48+k}, 8")
        a("s_add_u32 s31, s31, s30")
        a(f"v_lshl_add_u32 v2, v6, 4, s31")
        a(f"ds_read_b128 v[{48+4*k}:{51+4*k}], v2")
    a("s_mul_i32 s30, s20, 768")
    a(f"s_add_u32 s30, s30, {W8_SVT}")
    a("v_lshl_add_u32 v25, v3, 4, s30")
    a("s_mov_b32 s54, 0xbdd2d3e2")
    a("s_mov_b32 s55, 0xc0135761")
    dr(2)
    stamp(a, 3)
    for i in range(3):
        a(f"s_cmp_eq_u32 s{32+i}, 86")
        a(f"s_cbranch_scc1 K3_skip{i}")
        for st in range(4):
            a(f"ds_read_b128 v[{64+4*st}:{67+4*st}], v25 offset:{256*i + 64*st}")
        a(f"s_add_u32 s30, s29, {i}")
        a("s_lshr_b32 s31, s30, 1")
        a("s_lshl_b32 s31, s31, 12")
        a("s_and_b32 s30, s30, 1")
        a("s_lshl_b32 s30, s30, 3")
        a("s_add_u32 s30, s30, s31")
        a(f"s_add_u32 s30, s30, {W8_STG}")
        a("s_waitcnt lgkmcnt(0)")
        A_ = ACC + i * 16
        for (src, co, sel) in ((64, 0, "op_sel:[0,1,0] op_sel_hi:[1,1,1]"), (68, 2, "op_sel_hi:[1,0,1]"), (72, 2, "op_sel:[0,1,0] op_sel_hi:[1,1,1]")):
            for k in range(2):
                c = 48 + 4 * k
                for p in range(2):
                    t = 80 + 4 * k + 2 * p
                    s2 = f"v[{76+2*p}:{77+2*p}]" if src == 64 else f"v[{t}:{t+1}]"
                    a(f"v_pk_fma_f32 v[{t}:{t+1}], v[{src+2*p}:{src+2*p+1}], v[{c+co}:{c+co+1}], {s2} {sel}")
            if i == 0: dr(1)
        for k in range(2):
            c = 48 + 4 * k
            for p in range(2):
                x = A_ + 4 * k + 2 * p; t = 80 + 4 * k + 2 * p
                a(f"v_pk_fma_f32 v[{x}:{x+1}], v[{x}:{x+1}], v[{c}:{c+1}], v[{t}:{t+1}] op_sel_hi:[1,0,1]")
        for j in range(4):
            x = A_ + 2 * j; t = 80 + 2 * j
            a(f"v_pk_mul_f32 v[{t}:{t+1}], v[{x}:{x+1}], v[{x}:{x+1}]")
        for j in range(4):
            t = 80 + 2 * j
            a(f"v_pk_fma_f32 v[{t}:{t+1}], v[{t}:{t+1}], s[54:55], s[54:55] op_sel:[0,0,1] op_sel_hi:[1,0,1]")
        for j in range(4):
            x = A_ + 2 * j; t = 80 + 2 * j
            a(f"v_pk_mul_f32 v[{t}:{t+1}], v[{t}:{t+1}], v[{x}:{x+1}]")
        if i == 0: dr(1)
        for j in range(8): a(f"v_exp_f32 v{80+j}, v{80+j}")
        for j in range(4):
            t = 80 + 2 * j
            a(f"v_pk_add_f32 v[{t}:{t+1}], v[{t}:{t+1}], 1.0 op_sel_hi:[1,0]")
        for j in range(8): a(f"v_rcp_f32 v{80+j}, v{80+j}")
        if i == 0: dr(1)
        for j in range(4):
            x = A_ + 2 * j; t = 80 + 2 * j
            a(f"v_pk_mul_f32 v[{x}:{x+1}], v[{x}:{x+1}], v[{t}:{t+1}]")
        for k in range(2):
            a(f"v_cvt_pk_bf16_f32 v{88+2*k}, v{A_+4*k}, v{A_+4*k+1}")
            a(f"v_cvt_pk_bf16_f32 v{89+2*k}, v{A_+4*k+2}, v{A_+4*k+3}")
        if i == 1:
            a("s_cmp_eq_u32 s29, 9")
            a("s_cbranch_scc0 K3_paired1")
            a("s_lshr_b32 s31, s26, 1")
            a("s_add_u32 s31, s31, 40")
            a("s_mul_i32 s43, s25, 43")
            a("s_add_u32 s31, s31, s43")
            a("s_lshl_b32 s31, s31, 12")
            a("s_and_b32 s43, s26, 1")
            a("s_lshl_b32 s43, s43, 3")
            a("s_add_u32 s31, s31, s43")
            a(f"s_add_u32 s31, s31, {HF}")
            for k in range(2):
                a(f"s_lshl_b32 s43, s{48+k}, 10")
                a("s_add_u32 s43, s43, s31")
                a(f"buffer_store_dwordx2 v[{88+2*k}:{89+2*k}], v13, s[8:11], s43 offen sc1")
            a("s_branch K3_skip1")
            a("K3_paired1:")
        for k in range(2):
            a(f"s_lshl_b32 s31, s{48+k}, 10")
            a("s_add_u32 s31, s31, s30")
            a(f"v_add_u32 v2, s31, v13")
            a(f"ds_write_b64 v2, v[{88+2*k}:{89+2*k}]")
        a(f"K3_skip{i}:   ; LINT-RESET")
        dr(2)
    dr(99)
    for t in range(2):
        a(f"ds_read_b64_tr_b16 v[{16+2*t}:{17+2*t}], v26 offset:{2048*t}")
    a("s_waitcnt lgkmcnt(0)")
    a("s_barrier")
    stamp(a, 4)
    a("s_lshl_b32 s30, s24, 10")
    a("v_add_u32 v2, s30, v13")
    a(f"v_add_u32 v2, {W8_STG}, v2")
    a("ds_read_b128 v[32:35], v2")
    a("ds_read_b128 v[36:39], v2 offset:8192")
    a("s_mul_i32 s31, s25, 43")
    a("s_mul_i32 s43, s26, 5")
    a("s_add_u32 s31, s31, s43")
    a("s_lshl_b32 s31, s31, 12")
    a("s_add_u32 s31, s31, s30")
    a(f"s_add_u32 s31, s31, {HF}")
    a("s_waitcnt lgkmcnt(1)")
    a("buffer_store_dwordx4 v[32:35], v13, s[8:11], s31 offen sc1")
    a("s_add_u32 s31, s31, 8192")
    a("s_waitcnt lgkmcnt(0)")
    a("buffer_store_dwordx4 v[36:39], v13, s[8:11], s31 offen sc1")
    a("s_cmp_lt_u32 s24, 4")
    a("s_cbranch_scc0 K3_no3rd")
    a("ds_read_b128 v[40:43], v2 offset:16384")
    a("s_add_u32 s31, s31, 8192")
    a("s_waitcnt lgkmcnt(0)")
    a("buffer_store_dwordx4 v[40:43], v13, s[8:11], s31 offen sc1")
    a("K3_no3rd:   ; LINT-RESET")
    ACB = 176
    for r in range(ACB, ACB + 32): a(f"v_mov_b32 v{r}, 0")
    a("s_waitcnt vmcnt(0)")
    stamp(a, 5)
    a("s_barrier")
    a("s_cmp_lg_u32 s24, 0")
    a("s_cbranch_scc1 K3_wait")
    a("s_lshl_b32 s30, s25, 7")
    a(f"s_add_u32 s30, s30, {FLAGS}")
    a("v_mov_b32 v2, s30")
    a("v_mov_b32 v4, 1")
    a("s_mov_b64 exec, 1")
    a("global_atomic_add v4, v2, v4, s[14:15] sc0 sc1")
    a("s_waitcnt vmcnt(0)")
    a("v_readfirstlane_b32 s30, v4")
    a("s_cmp_eq_u32 s30, 7")
    a("s_cbranch_scc1 K3_pollx")
    a("s_mov_b32 s31, 0x100000")
    a("K3_poll:")
    a("global_load_dword v5, v2, s[14:15] sc1")
    a("s_waitcnt vmcnt(0)")
    a("v_readfirstlane_b32 s30, v5")
    a("s_sub_u32 s31, s31, 1")
    a("s_cmp_eq_u32 s31, 0")
    a("s_cbranch_scc1 K3_pollx")
    a("s_cmp_ge_u32 s30, 8")
    a("s_cbranch_scc0 K3_poll")
    a("K3_pollx:")
    a("s_mov_b64 exec, -1")
    a("K3_wait:   ; LINT-RESET")
    a("s_barrier")
    stamp(a, 6)
    SLOT = 16384; NS = 6
    a("s_mul_i32 s57, s25, 43")
    a("s_add_u32 s57, s57, s58")
    a("s_lshl_b32 s57, s57, 12")
    a("s_lshl_b32 s30, s21, 11")
    a("s_add_u32 s57, s57, s30")
    a(f"s_add_u32 s57, s57, {HF}")
    a("s_lshl_b32 s56, s20, 12")
    a("s_add_u32 s56, s56, s30")
    a("s_lshl_b32 s30, s20, 12")
    a("v_add_u32 v4, s30, v13")
    a(f"v_add_u32 v8, {4*SLOT}, v4")
    def hdma(j):
        return [f"s_add_u32 m0, s56, {(j % NS) * SLOT}\ns_add_u32 s43, s57, {4096 * j}\nbuffer_load_dwordx4 v13, s[8:11], s43 offen offset:{1024*t} lds" for t in range(2)]
    def hread(j):
        sl = j % NS
        base, off = ("v4", sl * SLOT) if sl < 4 else ("v8", (sl - 4) * SLOT)
        return [f"ds_read_b128 v[{HB[j & 1] + 4*lt}:{HB[j & 1] + 4*lt + 3}], {base} offset:{off + lt * 1024}" for lt in range(4)]
    HB = [32, 48]
    AHEAD = 5
    hq = []
    for j in range(AHEAD):
        for x in hdma(j): a(x); hq.append(j)
    a(f"s_waitcnt vmcnt({sum(1 for t in hq if t > 0)})")
    a("s_barrier")
    for x in hread(0): a(x)
    for j in range(11):
        if j + 1 <= 10:
            a(f"s_waitcnt vmcnt({sum(1 for t in hq if t > j + 1)}) lgkmcnt(0)")
            a("s_barrier")
            rd = hread(j + 1)
        else:
            a("s_waitcnt lgkmcnt(0)")
            rd = []
        nxt = hdma(j + AHEAD) if j + AHEAD <= 10 else []
        hq += [j + AHEAD] * len(nxt)
        extra = rd + nxt
        ei = 0
        for t in range(2):
            for lt in range(4):
                d = ACB + (t * 4 + lt) * 4
                ar = w2reg(j, t); br = HB[j & 1] + 4 * lt
                a(f"v_mfma_f32_16x16x32_bf16 v[{d}:{d+3}], v[{ar}:{ar+3}], v[{br}:{br+3}], v[{d}:{d+3}]")
                if ei < len(extra): a(extra[ei]); ei += 1
    stamp(a, 7)
    a("v_mul_u32_u24 v5, 272, v6")
    a("v_lshl_add_u32 v5, v3, 4, v5")
    a(f"s_mul_i32 s30, s20, {P_W}")
    a("s_lshl_b32 s31, s21, 7")
    a("s_add_u32 s30, s30, s31")
    a(f"s_add_u32 s30, s30, {W8_RED}")
    a("v_add_u32 v7, s30, v5")
    a("s_barrier")
    a("s_nop 4")
    for t in range(2):
        for lt in range(4):
            d = ACB + (t * 4 + lt) * 4
            a(f"ds_write_b128 v7, v[{d}:{d+3}] offset:{lt*16*272 + t*64}")
    a(f"s_mul_i32 s30, s20, {16*272}")
    a("s_lshl_b32 s31, s21, 7")
    a("s_add_u32 s30, s30, s31")
    a(f"s_add_u32 s30, s30, {W8_RED}")
    a("v_add_u32 v7, s30, v5")
    a("s_waitcnt lgkmcnt(0)")
    a("s_barrier")
    stamp(a, 8)
    for t in range(2):
        for w in range(4):
            r = 32 + (t * 4 + w) * 4
            a(f"ds_read_b128 v[{r}:{r+3}], v7 offset:{w*P_W + t*64}")
    a.srd(40, 18, 2048 * 512 * 2)
    a("s_lshl_b32 s30, s25, 16")
    a("s_lshl_b32 s31, s20, 14")
    a("s_add_u32 s30, s30, s31")
    a("s_lshl_b32 s31, s26, 7")
    a("s_add_u32 s30, s30, s31")
    a("s_lshl_b32 s31, s21, 6")
    a("s_add_u32 s30, s30, s31")
    a("v_lshlrev_b32 v9, 10, v6")
    a("v_lshl_add_u32 v9, v3, 3, v9")
    a("v_add_u32 v9, s30, v9")
    for t in range(2):
        a(f"s_waitcnt lgkmcnt({4*(1-t)})")
        r = 32 + t * 16
        for p in range(2):
            a(f"v_pk_add_f32 v[{r+2*p}:{r+2*p+1}], v[{r+2*p}:{r+2*p+1}], v[{r+4+2*p}:{r+5+2*p}]")
            a(f"v_pk_add_f32 v[{r+8+2*p}:{r+9+2*p}], v[{r+8+2*p}:{r+9+2*p}], v[{r+12+2*p}:{r+13+2*p}]")
        for p in range(2):
            a(f"v_pk_add_f32 v[{r+2*p}:{r+2*p+1}], v[{r+2*p}:{r+2*p+1}], v[{r+8+2*p}:{r+9+2*p}]")
        for q_ in range(2):
            a(f"v_lshlrev_b32 v{96+2*q_}, 16, v{252+2*t+q_}")
            a(f"v_and_b32 v{97+2*q_}, 0xffff0000, v{252+2*t+q_}")
            a(f"v_lshlrev_b32 v{100+2*q_}, 16, v{16+2*t+q_}")
            a(f"v_and_b32 v{101+2*q_}, 0xffff0000, v{16+2*t+q_}")
        for p in range(2):
            a(f"v_pk_add_f32 v[{r+2*p}:{r+2*p+1}], v[{r+2*p}:{r+2*p+1}], v[{96+2*p}:{97+2*p}]")
        for p in range(2):
            a(f"v_pk_fma_f32 v[{r+2*p}:{r+2*p+1}], v[{r+2*p}:{r+2*p+1}], v[{244+4*t+2*p}:{245+4*t+2*p}], v[{100+2*p}:{101+2*p}]")
        a(f"v_cvt_pk_bf16_f32 v{24+2*t}, v{r}, v{r+1}")
        a(f"v_cvt_pk_bf16_f32 v{25+2*t}, v{r+2}, v{r+3}")
        a(f"buffer_store_dwordx2 v[{24+2*t}:{25+2*t}], v9, s[40:43], 0 offen offset:{32*t}")
    a("K3_END:   ; LINT-RESET")
    stamp_store(a, KID3, 14, 24)
    a("K3_EXIT:")
    a.end_kernel(name, 256, 100, accum=256)

def triv(a, i):
    name = f"t{i}_kernel"
    a.begin_kernel(name, 256, 256, 0)
    a.end_kernel(name, 8, 16)
def build(kernels):
    global LASTLABEL, KID3, FUSED
    FUSED = kernels[0].__name__ == "k12"
    KID3 = len(kernels) - 1
    LASTLABEL = {"k1": "K1_EXIT", "k2": "K2_EXIT", "k12": "K2_EXIT", "k3": "K3_EXIT", "k3w": "K3_EXIT"}[kernels[-1].__name__]
    a = Asm()
    for i in range(int(OPT.get("pre_triv", "0"))): triv(a, 10 + i)
    for k in kernels: k(a)
    for i in range(int(OPT.get("extra", "0"))): triv(a, i)
    return a.text().replace("None\n", "")

ALL = {}
if __name__ == "__main__":
    out = sys.argv[1] if len(sys.argv) > 1 else "cur.s"
    names = sys.argv[2].split(",") if len(sys.argv) > 2 else ["k1"]
    if len(sys.argv) > 3 and sys.argv[3] == "prof": PROF = True
    open(out, "w").write(build([globals()[n] for n in names]))
```

```python
import sys
sys.path.insert(0, "dev")
from asmgen import *

import os
OPT = dict(kv.split("=") for kv in os.environ.get("GENOPT", "").split(",") if kv)
WSOFF = int(OPT.get("wsoff", "0"), 0)
SC1 = " sc1" if OPT.get("sc1", "1") == "1" else ""
HLD = " sc1" if OPT.get("hsc1", "1") == "1" else ""
WLD = " sc1" if OPT.get("wsc1", "0") == "1" else ""
XLD = " sc1" if OPT.get("xsc1", "0") == "1" else ""
NT1 = " nt" if OPT.get("nt1", "1") == "1" else ""
def wsfix(a, r):
    if WSOFF:
        a(f"s_add_u32 s{r}, s{r}, {WSOFF}")
        a(f"s_addc_u32 s{r+1}, s{r+1}, 0")
XT    = 0x0000000
X2T   = 0x0200000
KREV  = 0x0400000
KW    = 4160
STAT1 = 0x0620000
MODF  = 0x0630000
SCAL  = 0x0634000
SVP   = 0x0640000
MODP  = 0x0660000
G2F   = 0x0634400
GBF   = 0x0634C00
W1F   = 0x0700000
W2F   = 0x0900000
HF    = 0x0B00000
WS_USED = 0x1100000

STAMP = 0x1100000
PROF = False
def stamp(a, i):
    if PROF:
        if OPT.get("cyc", "0") == "1": a(f"s_memtime s[{70+2*i}:{71+2*i}]")
        else: a(f"s_memrealtime s[{70+2*i}:{71+2*i}]")
        a("s_waitcnt lgkmcnt(0)")
def stamp_store(a, kid, wsreg, swave):
    if not PROF: return
    a("s_mov_b64 exec, -1")
    tm = "s_memtime" if OPT.get("cyc", "0") == "1" else "s_memrealtime"
    a(f"{tm} s[90:91]")
    a("s_waitcnt lgkmcnt(0) vmcnt(0)")
    a(f"{tm} s[92:93]")
    a("s_waitcnt lgkmcnt(0)")
    a(f"s_lshl_b32 s94, s2, 3")
    a(f"s_add_u32 s94, s94, s{swave}")
    a(f"s_lshl_b32 s94, s94, 6")
    a(f"s_add_u32 s94, s94, {STAMP + kid * 0x80000}")
    a("v_mov_b32 v0, s94")
    for i in range(12):
        a(f"v_mov_b32 v{2+i}, s{70+2*i}")
    a("s_mov_b64 exec, 1")
    a(f"global_store_dwordx4 v0, v[2:5], s[{wsreg}:{wsreg+1}]")
    a(f"global_store_dwordx4 v0, v[6:9], s[{wsreg}:{wsreg+1}] offset:16")
    a(f"global_store_dwordx4 v0, v[10:13], s[{wsreg}:{wsreg+1}] offset:32")

LOG2E = "0x3fb8aa3b"
INV2PI = "0.15915494"

def wave_id(a, s, vt):
    a(f"v_lshrrev_b32 v{vt}, 6, v0")
    a("s_nop 0")
    a(f"v_readfirstlane_b32 s{s}, v{vt}")

def rbf(a, vd, vs):
    a(f"v_cvt_pk_bf16_f32 v{vd}, v{vs}, v{vs}")
    a(f"v_and_b32 v{vd}, 0xffff0000, v{vd}")

def csq(a, dst, src, tmp):
    return [
        f"v_pk_mul_f32 v[{tmp}:{tmp+1}], v[{src}:{src+1}], v[{src}:{src+1}] op_sel:[0,0] op_sel_hi:[1,0]",
        f"v_pk_fma_f32 v[{dst}:{dst+1}], v[{src}:{src+1}], v[{src}:{src+1}], v[{tmp}:{tmp+1}] op_sel:[1,1,0] op_sel_hi:[0,1,1] neg_lo:[1,0,0]",
    ]

def cmulconj(a, dst, p, c, tmp):
    return [
        f"v_pk_mul_f32 v[{tmp}:{tmp+1}], v[{p}:{p+1}], v[{c}:{c+1}] op_sel:[0,0] op_sel_hi:[1,0] neg_hi:[0,1]",
        f"v_pk_fma_f32 v[{dst}:{dst+1}], v[{p}:{p+1}], v[{c}:{c+1}], v[{tmp}:{tmp+1}] op_sel:[1,1,0] op_sel_hi:[0,1,1] neg_lo:[1,0,0] neg_hi:[1,0,0]",
    ]

def code_prefetch(a, start, end, n, tag, vtmp, dst0):
    a(f"s_getpc_b64 s[66:67]")
    a(f"CPF_{tag}:")
    a(f"s_sub_u32 s66, s66, CPF_{tag}-{start}")
    a(f"s_subb_u32 s67, s67, 0")
    a(f"v_lshlrev_b32 v{vtmp}, 7, v1")
    a("s_mov_b64 s[68:69], exec")
    for i in range(n):
        a(f"v_cmp_gt_u32 vcc, {end}-{start}, v{vtmp}")
        a("s_and_b64 exec, s[68:69], vcc")
        a(f"s_cbranch_execz CPF_{tag}_done")
        a(f"global_load_dword v{dst0+i}, v{vtmp}, s[66:67]")
        a(f"v_add_u32 v{vtmp}, 8192, v{vtmp}")
    a(f"CPF_{tag}_done:")
    a("s_mov_b64 exec, s[68:69]")

def k1(a):
    name = "k1_kernel"
    a.begin_kernel(name, 512, 256, 23552)
    a("s_cmp_ge_u32 s2, 512")
    a("s_cbranch_scc1 K1_EXIT")
    stamp(a, 0)
    a("s_load_dwordx8 s[4:11], s[0:1], 8")
    a("s_load_dwordx2 s[12:13], s[0:1], 40")
    a("s_load_dwordx2 s[14:15], s[0:1], 128")
    a("s_load_dwordx2 s[16:17], s[0:1], 0")
    a("s_load_dwordx4 s[20:23], s[0:1], 96")
    wave_id(a, 24, 1)
    a("v_and_b32 v1, 63, v0")
    a("s_cmp_ge_u32 s2, 256")
    a("s_cbranch_scc1 K1_TSM")
    a("s_setprio 3")
    a("s_lshr_b32 s25, s24, 1")
    a("s_and_b32 s26, s24, 1")
    a("s_lshl_b32 s27, s2, 1")
    a("s_add_u32 s27, s27, s25")
    a("s_lshl_b32 s28, s27, 8")
    a("s_lshl_b32 s29, s26, 7")
    a("s_add_u32 s28, s28, s29")
    a("v_lshl_add_u32 v2, v1, 1, s28")
    a("s_lshl_b32 s30, s2, 2")
    a("s_waitcnt lgkmcnt(0)")
    wsfix(a, 14)
    a("global_load_ushort v4, v2, s[4:5] nt")
    a("global_load_ushort v5, v2, s[6:7] nt")
    a("global_load_ushort v6, v2, s[8:9] nt")
    a("global_load_ushort v7, v2, s[10:11] nt")
    a("s_load_dword s29, s[12:13], s30")
    a("v_and_b32 v16, 15, v1")
    a("v_cmp_eq_u32 s[32:33], 15, v16")
    a("v_lshrrev_b32 v18, 4, v1")
    a("v_add_u32 v19, 1, v16")
    a("v_cvt_f32_u32 v19, v19")
    a("s_lshl_b32 s31, s24, 10")
    a("v_lshl_add_u32 v17, v18, 6, s31")
    a("v_lshl_add_u32 v20, v1, 4, s31")
    for r in range(112, 128):
        a(f"v_mov_b32 v{r}, 0")
    T16 = 4096 + 16384
    a("s_mul_i32 s39, s25, 1344")
    a(f"s_add_u32 s39, s39, {T16 + 8}")
    a("v_subrev_u32 v21, 7, v16")
    a("v_cmp_gt_u32 s[34:35], 8, v21")
    a("v_add_u32 v21, 1, v16")
    a("v_and_b32 v21, 15, v21")
    a("v_lshlrev_b32 v24, 5, v21")
    a("v_lshl_add_u32 v24, v18, 3, v24")
    a("s_lshl_b32 s40, s26, 9")
    a("s_add_u32 s40, s40, s39")
    a("v_add_u32 v24, s40, v24")
    a("s_cmp_eq_u32 s26, 0")
    a("s_cselect_b64 s[36:37], -1, s[34:35]")
    a("s_lshl_b32 s40, s24, 12")
    a("s_add_u32 s40, s40, 4096")
    a("v_lshl_add_u32 v22, v1, 4, s40")
    a("s_lshl_b32 s40, s25, 13")
    a("s_lshl_b32 s41, s26, 11")
    a("s_add_u32 s40, s40, s41")
    a("s_add_u32 s40, s40, 4096")
    a("v_lshl_add_u32 v23, v1, 4, s40")
    a("s_lshl_b32 s40, s26, 6")
    a("v_add_u32 v26, s40, v1")
    a("v_lshlrev_b32 v27, 3, v26")
    a("v_sub_u32 v27, 2047, v27")
    a("v_cvt_f32_u32 v28, v27")
    a("s_sub_u32 s41, s39, 34050")
    a("s_sub_u32 s42, s39, 2")
    GA = 140
    for rnd in range(2):
        if rnd == 1:
            a("v_add_f32 v28, 0xc4800000, v28")
            a("v_subrev_u32 v27, 1024, v27")
        for t in range(8):
            if t == 0: a(f"v_mov_b32 v48, v28")
            else: a(f"v_add_f32 v{48+t}, {-float(t)}, v28")
        for p in range(4):
            a(f"v_cvt_pk_bf16_f32 v{56+p}, v{48+2*p}, v{49+2*p}")
        for p in range(4):
            a(f"v_and_b32 v{48+2*p}, 0xffff, v{56+p}")
            a(f"v_lshrrev_b32 v{49+2*p}, 16, v{56+p}")
        o = GA + 8 * rnd
        for t in range(8):
            a(f"v_lshl_add_u32 v{o+t}, v{48+t}, 1, s41")
        if rnd == 1:
            a("v_cmp_le_u32 vcc, 112, v26")
            for t in range(8):
                a(f"v_subrev_u32 v{56+(t&3)}, {t}, v27")
                a(f"v_lshl_add_u32 v{56+(t&3)}, v{56+(t&3)}, 1, s42")
                a(f"v_cndmask_b32 v{o+t}, v{o+t}, v{56+(t&3)}, vcc")
    a(f"s_mul_i32 s40, s27, {KW}")
    a(f"s_add_u32 s40, s40, {KREV}")
    a("v_lshl_add_u32 v29, v26, 4, s40")
    a("v_add_u32 v30, 2048, v29")
    a("v_add_u32 v31, 4096, v29")
    a("s_waitcnt lgkmcnt(0)")
    a("s_lshl_b32 s43, s25, 4")
    a("s_lshr_b32 s29, s29, s43")
    a("s_lshl_b32 s29, s29, 16")
    a(f"v_mov_b32 v8, {LOG2E}")
    a("v_mul_f32 v9, s29, v8")
    a("v_exp_f32 v9, v9")
    a("s_nop 0")
    rbf(a, 9, 9)
    a("s_waitcnt vmcnt(0)")
    a("v_lshlrev_b32 v4, 16, v4")
    a("v_lshlrev_b32 v5, 16, v5")
    a("v_lshlrev_b32 v6, 16, v6")
    a("v_lshlrev_b32 v7, 16, v7")
    a("v_mul_f32 v4, v4, v8")
    a("v_exp_f32 v4, v4")
    a("v_mul_f32 v13, v5, v9")
    a("v_mul_f32 v14, v6, v9")
    rbf(a, 4, 4)
    a("v_mul_f32 v15, v7, v9")
    a("v_mul_f32 v12, v4, v9")
    a(f"v_mul_f32 v13, {INV2PI}, v13")
    a("v_add_f32 v14, v14, v14")
    a("v_add_f32 v15, v15, v15")
    a("v_mul_f32 v12, v12, v8")
    a("v_mov_b32 v10, v14")
    a("v_sub_f32 v12, 0, v12")
    a("ds_write_b128 v20, v[12:15]")
    for ctl in ("row_shr:1", "row_shr:2", "row_shr:4", "row_shr:8", "row_bcast:15 row_mask:0xa", "row_bcast:31 row_mask:0xc"):
        a("s_nop 1")
        a(f"v_add_f32_dpp v10, v10, v10 {ctl}")
    a("s_waitcnt lgkmcnt(0)")
    stamp(a, 1)
    R = [[32 + 4 * u for u in range(4)], [48 + 4 * u for u in range(4)]]
    PA = [64 + 2 * u for u in range(4)]
    PB = [72 + 2 * u for u in range(4)]
    TT = [80 + 2 * u for u in range(4)]
    QF = [88 + 4 * e for e in range(4)]
    GF = [104, 108]
    DD = [112 + 4 * e for e in range(4)]
    CPK = [128 + u for u in range(4)]
    MAG = [132 + 2 * u for u in range(4)]
    for u in range(4):
        a(f"ds_read_b128 v[{R[0][u]}:{R[0][u]+3}], v17 offset:{u*16}")
    for ks in range(4):
        Rc = R[ks & 1]
        if ks + 1 < 4:
            for u in range(4):
                a(f"ds_read_b128 v[{R[(ks+1)&1][u]}:{R[(ks+1)&1][u]+3}], v17 offset:{(ks+1)*256+u*16}")
            a("s_waitcnt lgkmcnt(4)")
        else:
            a("s_waitcnt lgkmcnt(0)")
        for u in range(4): a(f"v_mul_f32 v{TT[u]}, v{Rc[u]}, v19")
        for u in range(4): a(f"v_mul_f32 v{TT[u]+1}, v{Rc[u]+1}, v19")
        for u in range(4): a(f"v_exp_f32 v{MAG[u]}, v{TT[u]}")
        for u in range(4): a(f"v_fract_f32 v{TT[u]+1}, v{TT[u]+1}")
        for u in range(4): a(f"v_cvt_pk_bf16_f32 v{CPK[u]}, v{Rc[u]+2}, -v{Rc[u]+3}")
        for u in range(4): a(f"v_cos_f32 v{PB[u]}, v{TT[u]+1}")
        for u in range(4): a(f"v_sin_f32 v{PB[u]+1}, v{TT[u]+1}")
        a("s_nop 0")
        for u in range(4):
            a(f"v_pk_mul_f32 v[{PA[u]}:{PA[u]+1}], v[{PB[u]}:{PB[u]+1}], v[{MAG[u]}:{MAG[u]+1}] op_sel:[0,0] op_sel_hi:[1,0]")
        cur, oth = PA, PB
        for e in range(4):
            for u in range(4): a(f"v_cvt_pk_bf16_f32 v{QF[e]+u}, v{cur[u]}, v{cur[u]+1}")
            sq = [csq(a, oth[u], cur[u], TT[u]) for u in range(4)]
            for u in range(4): a(sq[u][0])
            for u in range(4): a(sq[u][1])
            cur, oth = oth, cur
        for e in range(4):
            g = GF[e & 1]
            cm = [cmulconj(a, oth[u], cur[u], Rc[u] + 2, TT[u]) for u in range(4)]
            for u in range(4): a(cm[u][0])
            for u in range(4): a(cm[u][1])
            for u in range(4): a(f"v_cvt_pk_bf16_f32 v{g+u}, v{oth[u]}, v{oth[u]+1}")
            if e == 0:
                for u in range(4): a(f"v_cndmask_b32 v{g+u}, v{g+u}, v{CPK[u]}, s[32:33]")
            if e < 3:
                sq = [csq(a, oth[u], cur[u], TT[u]) for u in range(4)]
                for u in range(4): a(sq[u][0])
                a(f"v_mfma_f32_16x16x32_bf16 v[{DD[e]}:{DD[e]+3}], v[{QF[e]}:{QF[e]+3}], v[{g}:{g+3}], v[{DD[e]}:{DD[e]+3}]")
                for u in range(4): a(sq[u][1])
                cur, oth = oth, cur
            else:
                a("s_nop 1")
                a(f"v_mfma_f32_16x16x32_bf16 v[{DD[e]}:{DD[e]+3}], v[{QF[e]}:{QF[e]+3}], v[{g}:{g+3}], v[{DD[e]}:{DD[e]+3}]")
    stamp(a, 2)
    a("v_readlane_b32 s44, v10, 63")
    a(f"s_lshl_b32 s45, s24, 2")
    a(f"s_add_u32 s45, s45, {T16 + 2*1344 + 16}")
    a("v_mov_b32 v11, s45")
    a("v_mov_b32 v10, s44")
    a("s_nop 1")
    for e in range(4):
        a(f"ds_write_b128 v22, v[{DD[e]}:{DD[e]+3}] offset:{e*1024}")
    a("ds_write_b32 v11, v10")
    a("s_waitcnt lgkmcnt(0)")
    a("s_barrier")
    a("ds_read_b128 v[32:35], v23")
    a("ds_read_b128 v[36:39], v23 offset:4096")
    a("ds_read_b128 v[40:43], v23 offset:1024")
    a("ds_read_b128 v[44:47], v23 offset:5120")
    a(f"s_lshl_b32 s45, s25, 3")
    a(f"s_add_u32 s45, s45, {T16 + 2*1344 + 16}")
    a("v_mov_b32 v11, s45")
    a("ds_read_b64 v[8:9], v11")
    a("s_waitcnt lgkmcnt(0)")
    for r in range(4): a(f"v_add_f32 v{32+r}, v{32+r}, v{36+r}")
    for r in range(4): a(f"v_add_f32 v{40+r}, v{40+r}, v{44+r}")
    a("v_add_f32 v8, v8, v9")
    a("v_cvt_pk_bf16_f32 v32, v32, v33")
    a("v_cvt_pk_bf16_f32 v33, v34, v35")
    a("v_cvt_pk_bf16_f32 v40, v40, v41")
    a("v_cvt_pk_bf16_f32 v41, v42, v43")
    a("v_cvt_pk_bf16_f32 v8, v8, v8")
    a("s_sub_u32 s45, s39, 2")
    a("v_mov_b32 v11, s45")
    a("s_mov_b64 s[42:43], exec")
    a("s_mov_b64 exec, s[36:37]")
    a("ds_write_b64 v24, v[32:33]")
    a("s_mov_b64 exec, s[34:35]")
    a("ds_write_b64 v24, v[40:41] offset:256")
    a("s_mov_b64 exec, s[42:43]")
    a("ds_write_b16 v11, v8")
    a("s_waitcnt lgkmcnt(0)")
    a("s_barrier")
    stamp(a, 3)
    for t in range(16):
        a(f"ds_read_u16 v{76+t}, v{GA+t}")
        if t == 7: a("v_mov_b32 v72, 0\nv_mov_b32 v73, 0\nv_mov_b32 v74, 0\nv_mov_b32 v75, 0")
    a("s_waitcnt lgkmcnt(8)")
    for p in range(4):
        a(f"v_lshl_or_b32 v{64+p}, v{77+2*p}, 16, v{76+2*p}")
    a("global_store_dwordx4 v29, v[64:67], s[14:15] sc1")
    a("s_waitcnt lgkmcnt(0)")
    for p in range(4):
        a(f"v_lshl_or_b32 v{68+p}, v{85+2*p}, 16, v{84+2*p}")
    a("global_store_dwordx4 v30, v[68:71], s[14:15] sc1")
    a("v_cmp_gt_u32 vcc, 4, v26")
    a("s_and_saveexec_b64 s[42:43], vcc")
    a("s_cbranch_execz K1_END")
    a("global_store_dwordx4 v31, v[72:75], s[14:15] sc1")
    a("s_branch K1_END")
    a("K1_TSM:   ; LINT-RESET")
    a("s_sub_u32 s25, s2, 256")
    a("s_and_b32 s28, s25, 7")
    a("s_lshr_b32 s29, s25, 3")
    a("s_lshr_b32 s26, s29, 3")
    a("s_lshl_b32 s27, s28, 2")
    a("s_add_u32 s26, s26, s27")
    a("s_and_b32 s27, s29, 7")
    a("s_lshl_b32 s30, s28, 8")
    a("s_lshl_b32 s31, s29, 3")
    a("s_add_u32 s30, s30, s31")
    a("s_lshl_b32 s28, s26, 16")
    a("s_lshl_b32 s29, s27, 7")
    a("s_add_u32 s28, s28, s29")
    a("v_lshrrev_b32 v2, 3, v0")
    a("v_and_b32 v3, 7, v0")
    a("v_lshlrev_b32 v4, 10, v2")
    a("v_lshl_add_u32 v4, v3, 4, v4")
    a("v_add_u32 v4, s28, v4")
    a("v_add_u32 v5, 0x8000, v4")
    a("s_lshl_b32 s31, s24, 1")
    a("s_add_u32 s30, s30, s31")
    a("s_lshl_b32 s31, s30, 10")
    a("v_lshl_add_u32 v6, v1, 4, s31")
    a("s_and_b32 s33, s25, 7")
    a("s_mul_i32 s33, s33, 24")
    a("s_lshr_b32 s34, s25, 3")
    a("s_add_u32 s33, s33, s34")
    a("v_lshrrev_b32 v7, 1, v0")
    a("v_and_b32 v24, 1, v0")
    a("v_mul_u32_u24 v25, 6144, v7")
    a("v_lshl_add_u32 v25, v24, 4, v25")
    a("s_lshl_b32 s35, s33, 5")
    a("v_add_u32 v25, s35, v25")
    a("v_add_u32 v26, 786432, v25")
    a("v_add_u32 v27, 786432, v26")
    a("v_add_u32 v28, 786432, v27")
    a("v_lshlrev_b32 v29, 1, v7")
    a("s_waitcnt lgkmcnt(0)")
    wsfix(a, 14)
    a("global_load_dwordx4 v[8:11], v4, s[16:17]" + NT1)
    a("global_load_dwordx4 v[12:15], v5, s[16:17]" + NT1)
    a("global_load_dwordx4 v[16:19], v6, s[16:17]" + NT1)
    a("global_load_dwordx4 v[20:23], v6, s[16:17] offset:1024" + NT1)
    a("s_cmp_ge_u32 s25, 192")
    a("s_cbranch_scc1 K1_nomodld")
    for k in range(4):
        a(f"global_load_ushort v{48+k}, v29, s[20:21] offset:{256*k}")
    for k, vo in enumerate((25, 26, 27, 28)):
        a(f"global_load_dwordx4 v[{32+4*k}:{35+4*k}], v{vo}, s[22:23]" + NT1)
    a("K1_nomodld:")
    if OPT.get("cpf", "1") == "1":
        a("s_sub_u32 s65, s25, 192")
        a("s_cmp_ge_u32 s65, 16")
        a("s_cbranch_scc1 K1_nocpf")
        a("s_cmp_lg_u32 s24, 3")
        a("s_cbranch_scc1 K1_nocpf")
        code_prefetch(a, "k1_kernel", LASTLABEL, 6, "k1", 70, 72)
        TS = int(OPT.get("tlb", "0"))
        if TS:
            a("s_load_dwordx2 s[50:51], s[0:1], 64")
            a("s_load_dwordx2 s[52:53], s[0:1], 80")
            a("s_load_dwordx2 s[54:55], s[0:1], 112")
            a("s_load_dwordx2 s[56:57], s[0:1], 72")
            a("s_load_dwordx2 s[58:59], s[0:1], 88")
            a("s_load_dwordx2 s[60:61], s[0:1], 48")
            a(f"v_mul_u32_u24 v71, {TS}, v1")
            a("s_waitcnt lgkmcnt(0)")
            k = 80
            for (sr, size) in ((14, WS_USED), (50, 512*1376*2), (52, 512*1376*2), (54, 2048*512*2)):
                n = -(-size // (64 * TS))
                for i in range(n):
                    a(f"v_add_u32 v70, {i * 64 * TS}, v71")
                    a(f"v_cmp_gt_u32 vcc, {size}, v70")
                    a("s_and_saveexec_b64 s[62:63], vcc")
                    a(f"global_load_dword v{k}, v70, s[{sr}:{sr+1}]")
                    a("s_mov_b64 exec, s[62:63]")
                    k = 80 + (k - 80 + 1) % 40
            a("v_mov_b32 v70, 0")
            for sr in (56, 58, 60):
                a(f"global_load_dword v{k}, v70, s[{sr}:{sr+1}]"); k += 1
        a("s_waitcnt vmcnt(0)")
        a("K1_nocpf:   ; LINT-RESET")
    a("v_mul_u32_u24 v30, 160, v2")
    a("v_lshl_add_u32 v30, v3, 4, v30")
    a("s_cmp_ge_u32 s25, 192")
    a("s_cbranch_scc1 K1_w0")
    a("s_waitcnt vmcnt(10)")
    a("s_branch K1_w1")
    a("K1_w0:")
    a("s_waitcnt vmcnt(2)")
    a("K1_w1:   ; LINT-RESET (T loads have landed; S/mod loads may be outstanding)")
    stamp(a, 1)
    a("ds_write_b128 v30, v[8:11]")
    a("ds_write_b128 v30, v[12:15] offset:5120")
    a("s_cmp_ge_u32 s25, 192")
    a("s_cbranch_scc1 K1_w2")
    a("s_waitcnt vmcnt(8)")
    a("s_branch K1_w3")
    a("K1_w2:")
    a("s_waitcnt vmcnt(0)")
    a("K1_w3:   ; LINT-RESET")
    a("v_mov_b32 v31, 0x3f803f80")
    a("v_mov_b32 v52, 0\nv_mov_b32 v53, 0\nv_mov_b32 v54, 0\nv_mov_b32 v55, 0")
    for k in range(4):
        a(f"v_dot2_f32_bf16 v52, v{16+k}, v31, v52")
        a(f"v_dot2_f32_bf16 v53, v{16+k}, v{16+k}, v53")
        a(f"v_dot2_f32_bf16 v54, v{20+k}, v31, v54")
        a(f"v_dot2_f32_bf16 v55, v{20+k}, v{20+k}, v55")
    a("s_nop 1")
    for ctl in ("row_shr:1", "row_shr:2", "row_shr:4", "row_shr:8", "row_bcast:15 row_mask:0xa", "row_bcast:31 row_mask:0xc"):
        for r in range(52, 56):
            a(f"v_add_f32_dpp v{r}, v{r}, v{r} {ctl}")
        a("s_nop 0") if False else None
    a("s_nop 1")
    for k, r in enumerate(range(52, 56)):
        a(f"v_readlane_b32 s{36+k}, v{r}, 63")
    a("s_nop 1")
    a("v_cmp_eq_u32 vcc, 0, v1")
    a("v_mov_b32 v56, s38")
    a("v_mov_b32 v57, s39")
    a("v_mov_b32 v58, s36")
    a("v_mov_b32 v59, s37")
    a("v_cndmask_b32 v56, v56, v58, vcc")
    a("v_cndmask_b32 v57, v57, v59, vcc")
    a("v_mul_f32 v56, 0x3b000000, v56")
    a("v_mul_f32 v57, 0x3b000000, v57")
    a("v_fma_f32 v57, -v56, v56, v57")
    a("v_max_f32 v57, 0, v57")
    rbf(a, 56, 56)
    rbf(a, 57, 57)
    a("v_add_f32 v57, 0x3727c5ac, v57")
    rbf(a, 57, 57)
    a("v_sqrt_f32 v57, v57")
    a("s_nop 0")
    rbf(a, 57, 57)
    a("v_rcp_f32 v58, v57")
    a("s_nop 0")
    a("v_mul_f32 v59, v56, v58")
    a("v_sub_f32 v59, 0, v59")
    a("s_lshl_b32 s31, s30, 2")
    a(f"s_add_u32 s31, s31, {STAT1}")
    a("v_lshl_add_u32 v60, v1, 2, s31")
    a("v_add_u32 v61, 8192, v60")
    a("v_cmp_gt_u32 vcc, 2, v1")
    a("s_and_saveexec_b64 s[42:43], vcc")
    a("global_store_dword v60, v58, s[14:15]" + SC1)
    a("global_store_dword v61, v59, s[14:15]" + SC1)
    a("s_mov_b64 exec, s[42:43]")
    a("s_cmp_ge_u32 s25, 192")
    a("s_cbranch_scc1 K1_nomodc")
    a("s_waitcnt vmcnt(2)")
    for k in range(4):
        a(f"v_lshlrev_b32 v{48+k}, 16, v{48+k}")
    for k in range(4):
        a(f"v_mul_f32 v{52+k}, 0xbfb8aa3b, v{48+k}")
    for k in range(4):
        a(f"v_exp_f32 v{52+k}, v{52+k}")
    a("s_nop 0")
    for k in range(4):
        a(f"v_add_f32 v{52+k}, 1.0, v{52+k}")
    for k in range(4):
        a(f"v_rcp_f32 v{56+k}, v{52+k}")
    a("s_nop 0")
    for k in range(4):
        a(f"v_mul_f32 v{60+k}, v{48+k}, v{56+k}")
    for k in range(4):
        a(f"v_fma_f32 v{48+k}, -v{60+k}, v{52+k}, v{48+k}")
    for k in range(4):
        a(f"v_fma_f32 v{48+k}, v{48+k}, v{56+k}, v{60+k}")
    for k in range(4):
        rbf(a, 48 + k, 48 + k)
    for k in range(4):
        for p in range(4):
            w = 32 + 4 * k + p
            a(f"v_lshlrev_b32 v62, 16, v{w}")
            a(f"v_and_b32 v63, 0xffff0000, v{w}")
            if k == 0:
                a(f"v_mul_f32 v{64+2*p}, v62, v48")
                a(f"v_mul_f32 v{65+2*p}, v63, v48")
            else:
                a(f"v_fmac_f32 v{64+2*p}, v62, v{48+k}")
                a(f"v_fmac_f32 v{65+2*p}, v63, v{48+k}")
    a("v_lshlrev_b32 v61, 5, v0")
    a("ds_write_b128 v61, v[64:67] offset:10240")
    a("ds_write_b128 v61, v[68:71] offset:10256")
    a("K1_nomodc:")
    stamp(a, 2)
    a("s_waitcnt lgkmcnt(0)")
    a("s_barrier")
    stamp(a, 3)
    a("v_lshrrev_b32 v2, 4, v1")
    a("v_bfe_u32 v3, v1, 2, 2")
    a("v_and_b32 v4, 3, v1")
    a("v_lshl_add_u32 v5, v2, 3, v3")
    a("v_mul_u32_u24 v5, 160, v5")
    a("v_lshl_add_u32 v5, v4, 3, v5")
    a("s_lshl_b32 s31, s24, 5")
    a("v_add_u32 v5, s31, v5")
    a("ds_read_b64_tr_b16 v[8:9], v5")
    a("ds_read_b64_tr_b16 v[10:11], v5 offset:640")
    a(f"ds_read_b64_tr_b16 v[12:13], v5 offset:{32*160}")
    a(f"ds_read_b64_tr_b16 v[14:15], v5 offset:{36*160}")
    a("v_and_b32 v6, 15, v1")
    a("v_lshlrev_b32 v6, 12, v6")
    a("v_lshl_add_u32 v6, v2, 4, v6")
    a("s_lshl_b32 s31, s27, 18")
    a("s_lshl_b32 s32, s24, 16")
    a("s_add_u32 s31, s31, s32")
    a("s_lshl_b32 s32, s26, 7")
    a("s_add_u32 s31, s31, s32")
    a(f"s_add_u32 s31, s31, {XT}") if XT else None
    a("v_add_u32 v6, s31, v6")
    a("s_waitcnt lgkmcnt(2)")
    a("global_store_dwordx4 v6, v[8:11], s[14:15]" + SC1)
    a("s_waitcnt lgkmcnt(0)")
    a("global_store_dwordx4 v6, v[12:15], s[14:15] offset:64" + SC1)
    a("s_cmp_ge_u32 s25, 192")
    a("s_cbranch_scc1 K1_END")
    a("s_cmp_lg_u32 s24, 0")
    a("s_cbranch_scc1 K1_END")
    a("v_and_b32 v2, 15, v1")
    a("v_lshrrev_b32 v3, 4, v1")
    a("v_lshlrev_b32 v4, 11, v3")
    a("v_lshl_add_u32 v4, v2, 2, v4")
    for i in range(32):
        a(f"ds_read_b32 v{16+i}, v4 offset:{10240+64*i}")
        if i == 14: a("s_waitcnt lgkmcnt(7)")
    a("s_waitcnt lgkmcnt(0)")
    for st in (16, 8, 4, 2, 1):
        for i in range(st):
            a(f"v_add_f32 v{16+i}, v{16+i}, v{16+st+i}")
    a("s_nop 0")
    a("v_mov_b32 v17, v16")
    a("s_nop 1")
    a("v_permlane16_swap_b32 v16, v17")
    a("s_nop 0")
    a("v_add_f32 v16, v16, v17")
    a("s_nop 0")
    a("v_mov_b32 v17, v16")
    a("s_nop 1")
    a("v_permlane32_swap_b32 v16, v17")
    a("s_nop 0")
    a("v_add_f32 v16, v16, v17")
    rbf(a, 16, 16)
    a("s_lshl_b32 s31, s33, 6")
    a(f"s_add_u32 s31, s31, {MODF}")
    a("v_lshl_add_u32 v5, v2, 2, s31")
    a("v_cmp_gt_u32 vcc, 16, v1")
    a("s_and_saveexec_b64 s[42:43], vcc")
    a("global_store_dword v5, v16, s[14:15]" + SC1)
    a("K1_END:   ; LINT-RESET")
    stamp_store(a, 0, 14, 24)
    a("K1_EXIT:")
    a.end_kernel(name, 160, 100)


KC_CH = 33280
CS    = 4160
UB    = 66560
CONV16 = OPT.get("conv16", "1") == "1"
USTR  = 96 if CONV16 else 80
U_CH  = 95 * USTR
SCR   = (UB + 2 * U_CH + 63) // 64 * 64
FLG   = SCR + 16384
SIDE  = FLG + 64
SIDE_SZ = 11520
K2_LDS = SIDE + 4 * SIDE_SZ
FLAGS_OFF = 0x0638000

def conv_main16(a, hb):
    steps = list(range(0, 21)) if hb == 0 else list(range(21, 64))
    SET = [64, 88, 112]
    tiles = lambda d: [cc for cc in range(4) if d <= 16 * cc + 15]
    def reads(k):
        d = steps[k]; b = SET[k % 3]
        out = [f"ds_read_b128 v[{b+4*mt}:{b+4*mt+3}], v2 offset:{64*d + 32*mt}" for mt in range(2)]
        for cc in tiles(d):
            r = b + 8 + 4 * cc
            out.append(f"ds_read_b128 v[{r}:{r+3}], v3 offset:{(31 + 16*cc - d)*USTR}")
        return out
    n = len(steps)
    for k in range(2):
        for x in reads(k): a(x)
    for k in range(n):
        d = steps[k]; b = SET[k % 3]
        nxt = reads(k + 2) if k + 2 < n else []
        a(f"s_waitcnt lgkmcnt({len(reads(k + 1)) if k + 1 < n else 0})")
        mf = []
        for cc in tiles(d):
            for mt in range(2):
                acc = 32 + (cc * 2 + mt) * 4
                mf.append(f"v_mfma_f32_16x16x32_bf16 v[{acc}:{acc+3}], v[{b+4*mt}:{b+4*mt+3}], v[{b+8+4*cc}:{b+8+4*cc+3}], v[{acc}:{acc+3}]")
        ri = 0
        for i, m in enumerate(mf):
            a(m)
            take = -(-(len(nxt) - ri) // (len(mf) - i))
            for _ in range(take):
                a(nxt[ri]); ri += 1

def conv_path(a, hb, tag):
    if hb == 0: steps = [(d, True) for d in range(24)]
    else: steps = [(d, True) for d in range(24, 32)] + [(d, False) for d in range(32, 64)]
    ACC = [32, 48]
    SET = [64, 88, 112]
    def reads(k):
        d, both = steps[k]; b = SET[k % 3]
        out = []
        for hf in (0, 1):
            out.append(f"ds_read_b128 v[{b+4*hf}:{b+4*hf+3}], v2 offset:{64*d + 32*(1-hf)}")
        tiles = (0, 1) if both else (1,)
        for t in tiles:
            for hf in (0, 1):
                r = b + 8 + 8 * t + 4 * hf
                out.append(f"ds_read_b128 v[{r}:{r+3}], v3 offset:{(31 + 32*t - d)*80 + 32*hf}")
        return out
    n = len(steps) if not CONV16 else 0
    if CONV16: conv_main16(a, hb)
    for k in range(2 if not CONV16 else 0):
        for x in reads(k): a(x)
    for k in range(n):
        d, both = steps[k]; b = SET[k % 3]
        nxt = reads(k + 2) if k + 2 < n else []
        after = len(nxt) + (len(reads(k + 1)) if k + 1 < n else 0)
        mf = []
        tiles = (0, 1) if both else (1,)
        for hf in (0, 1):
            for t in tiles:
                r = b + 8 + 8 * t + 4 * hf
                mf.append(f"v_mfma_f32_32x32x16_bf16 v[{ACC[t]}:{ACC[t]+15}], v[{b+4*hf}:{b+4*hf+3}], v[{r}:{r+3}], v[{ACC[t]}:{ACC[t]+15}]")
        after = len(reads(k + 1)) if k + 1 < n else 0
        a(f"s_waitcnt lgkmcnt({after})")
        per = -(-len(nxt) // len(mf)) if nxt else 0
        ri = 0
        for m in mf:
            a(m)
            for _ in range(per):
                if ri < len(nxt): a(nxt[ri]); ri += 1
    stamp(a, 6)
    give, keep = (ACC[1], ACC[0]) if hb == 0 else (ACC[0], ACC[1])
    a("s_nop 7")
    a("s_nop 3")
    for i in range(4):
        a(f"ds_write_b128 v4, v[{give+4*i}:{give+4*i+3}] offset:{1024*i}")
    for i in range(4):
        a(f"ds_read_b64 v[{64+2*i}:{65+2*i}], v6 offset:{(16*USTR*(i >> 1) + 32*(i & 1)) if CONV16 else 16*i}")
    a("s_waitcnt lgkmcnt(0)")
    a("v_mov_b32 v72, 1")
    a("ds_write_b32 v7, v72")
    a("s_mov_b32 s63, 0x400000")
    a(f"K2_poll{tag}:")
    a("ds_read_b32 v73, v8")
    a("s_waitcnt lgkmcnt(0)")
    a("v_readfirstlane_b32 s40, v73")
    a("s_sub_u32 s63, s63, 1")
    a("s_cmp_eq_u32 s63, 0")
    a(f"s_cbranch_scc1 K2_pollx{tag}")
    a("s_cmp_eq_u32 s40, 1")
    a(f"s_cbranch_scc0 K2_poll{tag}")
    a(f"K2_pollx{tag}:")
    for i in range(4):
        a(f"ds_read_b128 v[{80+4*i}:{83+4*i}], v5 offset:{1024*i}")
    for i in range(4):
        for q in range(2):
            a(f"v_lshlrev_b32 v{96+4*i+2*q}, 16, v{64+2*i+q}")
            a(f"v_and_b32 v{97+4*i+2*q}, 0xffff0000, v{64+2*i+q}")
    a("s_waitcnt vmcnt(0)")
    for i in range(4):
        for q in range(2):
            a(f"v_lshlrev_b32 v{112+4*i+2*q}, 16, v{144+2*i+q}")
            a(f"v_and_b32 v{113+4*i+2*q}, 0xffff0000, v{144+2*i+q}")
    a("s_waitcnt lgkmcnt(0)")
    for j in range(8):
        a(f"v_pk_add_f32 v[{keep+2*j}:{keep+2*j+1}], v[{keep+2*j}:{keep+2*j+1}], v[{80+2*j}:{81+2*j}]")
    for j in range(8):
        a(f"v_pk_fma_f32 v[{keep+2*j}:{keep+2*j+1}], v[{96+2*j}:{97+2*j}], s[36:37], v[{keep+2*j}:{keep+2*j+1}] op_sel_hi:[1,0,1]")
    for j in range(8):
        a(f"v_pk_fma_f32 v[{keep+2*j}:{keep+2*j+1}], v[{keep+2*j}:{keep+2*j+1}], s[36:37], v[{112+2*j}:{113+2*j}] op_sel:[0,1,0] op_sel_hi:[1,1,1]")
    for j in range(8):
        a(f"v_cvt_pk_bf16_f32 v{64+j}, v{keep+2*j}, v{keep+2*j+1}")
    for i in range(4):
        a(f"ds_write_b64 v10, v[{64+2*i}:{65+2*i}] offset:{(1280*(i >> 1) + 32*(i & 1)) if CONV16 else 16*i}")
    a("s_waitcnt lgkmcnt(0)")
    a("ds_read_b128 v[72:75], v11")
    a("ds_read_b128 v[76:79], v11 offset:1280")
    a("s_waitcnt lgkmcnt(1)")
    a("global_store_dwordx4 v9, v[72:75], s[14:15]" + SC1)
    a("s_waitcnt lgkmcnt(0)")
    a("global_store_dwordx4 v12, v[76:79], s[14:15]" + SC1)
    a("s_branch K2_END")

def side_load_and_stage(a):
    for i in range(8):
        a(f"buffer_load_dwordx4 v[{32+4*i}:{35+4*i}], v10, s[44:47], s49 offen nt")
        if i < 7: a("s_add_u32 s49, s49, s48")

def k2(a):
    name = "k2_kernel"
    a.begin_kernel(name, 256, 512, K2_LDS)
    a("s_cmp_ge_u32 s2, 256")
    a("s_cbranch_scc1 K2_EXIT")
    stamp(a, 0)
    a("s_load_dwordx2 s[14:15], s[0:1], 128")
    a("s_load_dwordx2 s[12:13], s[0:1], 48")
    a("s_load_dwordx2 s[16:17], s[0:1], 64")
    a("s_load_dwordx2 s[18:19], s[0:1], 80")
    wave_id(a, 24, 1)
    a("v_and_b32 v1, 63, v0")
    a("s_cmp_ge_u32 s24, 4")
    a("s_cbranch_scc1 K2_SIDE")
    a("s_lshl_b32 s27, s2, 1")
    a("s_lshr_b32 s25, s24, 1")
    a("s_and_b32 s26, s24, 1")
    a("s_lshl_b32 s28, s27, 12")
    a(f"s_add_u32 s28, s28, {XT}") if XT else None
    a("v_lshl_add_u32 v44, v0, 4, s28")
    a("v_add_u32 v45, 4096, v44")
    a("v_lshlrev_b32 v46, 5, v0")
    a(f"v_add_u32 v46, {STAT1}, v46")
    a(f"v_add_u32 v47, 8192, v46")
    a(f"s_mul_i32 s29, s27, {KW}")
    a(f"s_add_u32 s29, s29, {KREV + 4080}")
    a("v_lshlrev_b32 v48, 4, v0")
    a("v_sub_u32 v48, s29, v48")
    a(f"v_add_u32 v49, {KW}, v48")
    a("v_and_b32 v50, 31, v1")
    a("v_lshrrev_b32 v51, 5, v1")
    a("s_lshl_b32 s30, s25, 12")
    a("s_add_u32 s30, s30, s28")
    a("s_lshl_b32 s31, s26, 11")
    a("s_add_u32 s30, s30, s31")
    a("v_lshlrev_b32 v52, 6, v50")
    a("v_lshl_add_u32 v52, v51, 3, v52")
    a("v_add_u32 v52, s30, v52")
    a("s_lshl_b32 s32, s27, 2")
    a(f"s_add_u32 s33, s32, {MODF}")
    a(f"s_add_u32 s34, s32, {MODF + 2048}")
    a(f"s_add_u32 s35, s32, {MODF + 4096}")
    a("s_lshl_b32 s31, s2, 2")
    a("s_waitcnt lgkmcnt(0)")
    wsfix(a, 14)
    a("global_load_dwordx4 v[28:31], v48, s[14:15]")
    a("global_load_dwordx4 v[32:35], v48, s[14:15] offset:16")
    a("global_load_dwordx4 v[36:39], v49, s[14:15]")
    a("global_load_dwordx4 v[40:43], v49, s[14:15] offset:16")
    a("global_load_dwordx4 v[4:7], v44, s[14:15]")
    a("global_load_dwordx4 v[8:11], v45, s[14:15]")
    a("global_load_dwordx4 v[12:15], v46, s[14:15]")
    a("global_load_dwordx4 v[16:19], v46, s[14:15] offset:16")
    a("global_load_dwordx4 v[20:23], v47, s[14:15]")
    a("global_load_dwordx4 v[24:27], v47, s[14:15] offset:16")
    for i in range(4):
        a(f"global_load_dwordx2 v[{144+2*i}:{145+2*i}], v52, s[14:15] offset:{16*i}")
    a("s_load_dwordx2 s[50:51], s[14:15], s33")
    a("s_load_dwordx2 s[52:53], s[14:15], s34")
    a("s_load_dwordx2 s[54:55], s[14:15], s35")
    a("s_load_dword s56, s[12:13], s31")
    a("v_mov_b32 v56, 0\nv_mov_b32 v57, 0\nv_mov_b32 v58, 0\nv_mov_b32 v59, 0")
    a("v_mul_u32_u24 v53, 171, v0")
    a("v_lshrrev_b32 v53, 9, v53")
    a("v_mul_u32_u24 v54, 3, v53")
    a("v_sub_u32 v54, v0, v54")
    a(f"v_mul_u32_u24 v53, {CS}, v53")
    a("v_lshl_add_u32 v53, v54, 4, v53")
    a("v_cmp_gt_u32 vcc, 48, v0")
    a("s_and_saveexec_b64 s[42:43], vcc")
    a("ds_write_b128 v53, v[56:59]")
    a("s_mov_b64 exec, s[42:43]")
    a("v_lshlrev_b32 v53, 4, v0")
    a(f"v_add_u32 v53, {UB}, v53")
    a("v_cmp_gt_u32 vcc, 155, v0")
    a("s_and_saveexec_b64 s[42:43], vcc")
    a(f"ds_write_b128 v53, v[56:59]")
    a(f"ds_write_b128 v53, v[56:59] offset:{U_CH}")
    a("s_mov_b64 exec, s[42:43]")
    a("v_lshlrev_b32 v53, 2, v0")
    a("v_cmp_gt_u32 vcc, 4, v0")
    a("s_and_saveexec_b64 s[42:43], vcc")
    a(f"v_add_u32 v53, {FLG}, v53")
    a("ds_write_b32 v53, v56")
    a("s_mov_b64 exec, s[42:43]")
    a("v_and_b32 v53, 7, v50")
    a("v_lshrrev_b32 v54, 3, v50")
    a(f"v_mul_u32_u24 v2, {CS}, v53")
    a("v_sub_u32 v54, v54, v51")
    a("v_add_u32 v54, 1, v54")
    a("v_lshl_add_u32 v2, v54, 4, v2")
    a(f"s_mul_i32 s38, s25, {KC_CH}")
    a("v_add_u32 v2, s38, v2")
    a("v_mul_u32_u24 v3, 80, v50")
    a("v_lshl_add_u32 v3, v51, 4, v3")
    a(f"s_mul_i32 s38, s25, {U_CH}")
    a(f"s_add_u32 s38, s38, {UB}")
    a("v_add_u32 v3, s38, v3")
    a("v_lshlrev_b32 v55, 4, v0")
    a("v_add_u32 v55, 48, v55")
    for c in range(2):
        W = 28 + 8 * c
        a(f"s_waitcnt vmcnt({12 - 2*c})")
        V = 60
        for j in range(7): a(f"v_alignbit_b32 v{V+j}, v{W+j+1}, v{W+j}, 16")
        for j in range(1, 7): a(f"v_alignbit_b32 v{68+j-1}, v{W+j+1}, v{W+j}, 16")
        for j in range(1, 7): a(f"v_mov_b32 v{76+j-1}, v{W+j}")
        off = c * KC_CH
        a(f"ds_write_b128 v55, v[{W}:{W+3}] offset:{off + 7*CS}")
        a(f"ds_write_b128 v55, v[{W+2}:{W+5}] offset:{off + 3*CS}")
        a(f"ds_write_b128 v55, v[{V}:{V+3}] offset:{off + 6*CS}")
        a(f"ds_write_b128 v55, v[{V+2}:{V+5}] offset:{off + 2*CS}")
        a(f"ds_write_b128 v55, v[68:71] offset:{off + 4*CS}")
        a(f"ds_write_b128 v55, v[70:73] offset:{off + 0*CS}")
        a(f"ds_write_b128 v55, v[76:79] offset:{off + 5*CS}")
        a(f"ds_write_b128 v55, v[78:81] offset:{off + 1*CS}")
    a("s_waitcnt vmcnt(4) lgkmcnt(0)")
    a("v_add_f32 v60, 1.0, s52")
    a("v_add_f32 v61, 1.0, s53")
    rbf(a, 60, 60); rbf(a, 61, 61)
    a("s_nop 0")
    a("v_readfirstlane_b32 s58, v60")
    a("v_readfirstlane_b32 s60, v61")
    a("s_mov_b32 s59, s50")
    a("s_mov_b32 s61, s51")
    a("s_lshl_b32 s38, s25, 4")
    a("s_lshr_b32 s36, s56, s38")
    a("s_lshl_b32 s36, s36, 16")
    a("s_cmp_eq_u32 s25, 0")
    a("s_cselect_b32 s37, s54, s55")
    a("v_lshrrev_b32 v62, 2, v0")
    a("v_mul_u32_u24 v62, 80, v62")
    a("v_and_b32 v63, 3, v0")
    a("v_lshl_add_u32 v62, v63, 4, v62")
    a(f"v_add_u32 v62, {UB + 31*80}, v62")
    for c in range(2):
        X = 4 + 4 * c
        for q in range(4):
            a(f"v_lshlrev_b32 v{64+2*q}, 16, v{X+q}")
            a(f"v_and_b32 v{65+2*q}, 0xffff0000, v{X+q}")
        for q in range(4):
            a(f"v_pk_fma_f32 v[{64+2*q}:{65+2*q}], v[{64+2*q}:{65+2*q}], v[{12+2*q}:{13+2*q}], v[{20+2*q}:{21+2*q}]")
        for q in range(4):
            a(f"v_pk_fma_f32 v[{64+2*q}:{65+2*q}], v[{64+2*q}:{65+2*q}], s[{58+2*c}:{59+2*c}], s[{58+2*c}:{59+2*c}] op_sel:[0,0,1] op_sel_hi:[1,0,1]")
        for q in range(4):
            a(f"v_cvt_pk_bf16_f32 v{72+4*c+q}, v{64+2*q}, v{65+2*q}")
        a(f"ds_write_b128 v62, v[{72+4*c}:{75+4*c}] offset:{c*U_CH}")
    a("s_lshl_b32 s38, s24, 12")
    a(f"s_add_u32 s38, s38, {SCR}")
    a("v_lshl_add_u32 v4, v1, 4, s38")
    a("s_xor_b32 s39, s24, 1")
    a("s_lshl_b32 s38, s39, 12")
    a(f"s_add_u32 s38, s38, {SCR}")
    a("v_lshl_add_u32 v5, v1, 4, s38")
    a("s_lshl_b32 s38, s24, 2")
    a(f"s_add_u32 s38, s38, {FLG}")
    a("v_mov_b32 v7, s38")
    a("s_lshl_b32 s38, s39, 2")
    a(f"s_add_u32 s38, s38, {FLG}")
    a("v_mov_b32 v8, s38")
    a("v_mul_u32_u24 v6, 80, v50")
    a("v_lshl_add_u32 v6, v51, 3, v6")
    a(f"s_mul_i32 s38, s25, {U_CH}")
    a(f"s_mul_i32 s39, s26, {32*80}")
    a("s_add_u32 s38, s38, s39")
    a(f"s_add_u32 s38, s38, {UB + 31*80}")
    a("v_add_u32 v6, s38, v6")
    a("s_add_u32 s38, s27, s25")
    a("s_lshl_b32 s38, s38, 7")
    a("s_lshl_b32 s39, s26, 20")
    a("s_add_u32 s38, s38, s39")
    a(f"s_add_u32 s38, s38, {X2T}")
    a("v_lshrrev_b32 v9, 3, v1")
    a("v_lshlrev_b32 v9, 16, v9")
    a("v_and_b32 v63, 7, v1")
    a("v_lshl_add_u32 v9, v63, 4, v9")
    a("v_add_u32 v9, s38, v9")
    a("v_add_u32 v12, 0x80000, v9")
    a(f"s_mul_i32 s38, s25, {KC_CH}")
    a("s_mul_i32 s39, s26, 2560")
    a("s_add_u32 s38, s38, s39")
    a("v_mul_u32_u24 v10, 80, v50")
    a("v_lshl_add_u32 v10, v51, 3, v10")
    a("v_add_u32 v10, s38, v10")
    a("v_lshrrev_b32 v11, 2, v1")
    a("v_mul_u32_u24 v11, 80, v11")
    a("v_and_b32 v63, 3, v1")
    a("v_lshl_add_u32 v11, v63, 4, v11")
    a("v_add_u32 v11, s38, v11")
    for r in range(32, 64): a(f"v_mov_b32 v{r}, 0")
    stamp(a, 1)
    a("s_waitcnt lgkmcnt(0)")
    a("s_barrier")
    stamp(a, 2)
    a("s_cmp_eq_u32 s26, 0")
    a("s_cbranch_scc0 K2_B")
    conv_path(a, 0, "A")
    a("K2_B:   ; LINT-RESET")
    conv_path(a, 1, "B")
    a("K2_SIDE:   ; LINT-RESET")
    a("s_sub_u32 s25, s24, 4")
    a("s_lshl_b32 s26, s25, 8")
    a("s_add_u32 s26, s26, s2")
    a(f"s_mul_i32 s27, s25, {SIDE_SZ}")
    a(f"s_add_u32 s27, s27, {SIDE}")
    a("s_cmp_gt_u32 s26, 348")
    a("s_cbranch_scc1 K2_SIDE_IDLE")
    a("s_cmp_eq_u32 s26, 348")
    a("s_cbranch_scc1 K2_TAB")
    a("v_lshrrev_b32 v2, 2, v1")
    a("v_and_b32 v3, 3, v1")
    a("v_lshrrev_b32 v4, 4, v1")
    a("v_bfe_u32 v5, v1, 2, 2")
    a("v_mul_u32_u24 v11, 80, v2")
    a("v_lshl_add_u32 v11, v3, 4, v11")
    a("v_add_u32 v11, s27, v11")
    a("v_lshl_add_u32 v12, v4, 2, v5")
    a("v_mul_u32_u24 v12, 80, v12")
    a("v_lshl_add_u32 v12, v3, 3, v12")
    a("v_add_u32 v12, s27, v12")
    a("s_cmp_ge_u32 s26, 172")
    a("s_cbranch_scc1 K2_W2")
    a("s_mul_i32 s28, s26, 1525")
    a("s_lshr_b32 s28, s28, 16")
    a("s_mul_i32 s29, s28, 43")
    a("s_sub_u32 s29, s26, s29")
    a("v_mul_u32_u24 v10, 2752, v2")
    a("v_lshl_add_u32 v10, v3, 4, v10")
    a(f"s_mul_i32 s49, s28, {128*2752}")
    a("s_lshl_b32 s30, s29, 6")
    a("s_add_u32 s49, s49, s30")
    a(f"s_mov_b32 s48, {16*2752}")
    a("s_lshl_b32 s31, s28, 9")
    a("v_lshl_add_u32 v13, v1, 2, s31")
    a(f"v_add_u32 v13, {MODF + 3*2048}, v13")
    a("v_add_u32 v14, 2048, v13")
    a("s_waitcnt lgkmcnt(0)")
    wsfix(a, 14)
    a.srd(44, 16, 512 * 1376 * 2)
    a("global_load_dword v20, v13, s[14:15]")
    a("global_load_dword v21, v13, s[14:15] offset:256")
    a("global_load_dword v22, v14, s[14:15]")
    a("global_load_dword v23, v14, s[14:15] offset:256")
    side_load_and_stage(a)
    a("s_barrier")
    a("s_waitcnt vmcnt(8)")
    a("v_add_f32 v22, 1.0, v22")
    a("v_add_f32 v23, 1.0, v23")
    rbf(a, 22, 22); rbf(a, 23, 23)
    a("v_lshl_add_u32 v15, v1, 2, s27")
    a("v_lshl_add_u32 v16, v1, 1, s27")
    a("ds_write_b32 v15, v22 offset:10240")
    a("ds_write_b32 v15, v23 offset:10496")
    a("ds_write_b16_d16_hi v16, v20 offset:10752")
    a("ds_write_b16_d16_hi v16, v21 offset:10880")
    for i in range(8):
        a(f"s_waitcnt vmcnt({7-i})")
        a(f"ds_write_b128 v11, v[{32+4*i}:{35+4*i}] offset:{16*80*i}")
    a("v_and_b32 v17, 15, v1")
    a("v_cmp_eq_u32 s[50:51], 0, v17")
    a("v_cmp_eq_u32 s[52:53], 1, v17")
    a("v_mov_b32 v18, 0")
    a("v_mov_b32 v19, 0x3f803f80")
    a("v_cndmask_b32 v18, v18, v19, s[50:51]")
    a("v_mov_b32 v19, 0")
    a("v_cndmask_b32 v19, v19, -1, s[52:53]")
    a("v_lshl_add_u32 v24, v4, 4, s27")
    a("v_lshl_add_u32 v25, v4, 3, s27")
    for r in range(96, 112): a(f"v_mov_b32 v{r}, 0")
    a("s_lshl_b32 s30, s29, 11")
    a(f"s_mul_i32 s31, s28, {4*87*1024}")
    a("s_add_u32 s30, s30, s31")
    a(f"s_add_u32 s30, s30, {W1F}")
    a("v_lshl_add_u32 v26, v1, 4, s30")
    a("s_waitcnt lgkmcnt(0)")
    for ks in range(4):
        a(f"ds_read_b128 v[32:35], v24 offset:{10240 + 128*ks}")
        a(f"ds_read_b128 v[36:39], v24 offset:{10240 + 128*ks + 64}")
        a(f"ds_read_b64 v[40:41], v25 offset:{10752 + 64*ks}")
        a(f"ds_read_b64 v[42:43], v25 offset:{10752 + 64*ks + 32}")
        for nt in range(2):
            for hf in range(2):
                a(f"ds_read_b64_tr_b16 v[{44+4*nt+2*hf}:{45+4*nt+2*hf}], v12 offset:{(32*ks+16*hf)*80 + 32*nt}")
        a("s_waitcnt lgkmcnt(4)")
        for q in range(4): a(f"v_and_or_b32 v{40+q}, v{40+q}, v19, v18")
        a("s_waitcnt lgkmcnt(0)")
        for nt in range(2):
            R = 44 + 4 * nt
            for q in range(4):
                a(f"v_lshlrev_b32 v{52+2*q}, 16, v{R+q}")
                a(f"v_and_b32 v{53+2*q}, 0xffff0000, v{R+q}")
            a(f"v_mfma_f32_16x16x32_bf16 v[{96+4*nt}:{99+4*nt}], v[{R}:{R+3}], v[40:43], v[{96+4*nt}:{99+4*nt}]")
            for q in range(4):
                a(f"v_pk_mul_f32 v[{52+2*q}:{53+2*q}], v[{52+2*q}:{53+2*q}], v[{32+2*q}:{33+2*q}]")
            S = 60 + 4 * nt
            for q in range(4):
                a(f"v_cvt_pk_bf16_f32 v{S+q}, v{52+2*q}, v{53+2*q}")
            a(f"global_store_dwordx4 v26, v[{S}:{S+3}], s[14:15] offset:{1024*nt}" + SC1)
            if nt == 1: a(f"v_add_u32 v26, {87*1024}, v26")
            a("s_nop 0")
            a(f"v_mfma_f32_16x16x32_bf16 v[{104+4*nt}:{107+4*nt}], v[{S}:{S+3}], v[40:43], v[{104+4*nt}:{107+4*nt}]")
    a(f"s_mul_i32 s30, s28, {3*5504}")
    a("s_lshl_b32 s31, s29, 7")
    a("s_add_u32 s30, s30, s31")
    a(f"s_add_u32 s30, s30, {SVP}")
    a("v_lshl_add_u32 v28, v4, 4, s30")
    a("v_add_u32 v29, 5504, v28")
    a("v_add_u32 v30, 5504, v29")
    a("s_nop 7")
    a("s_mov_b64 s[42:43], exec")
    a("s_mov_b64 exec, s[50:51]")
    for nt in range(2):
        a(f"global_store_dwordx4 v28, v[{104+4*nt}:{107+4*nt}], s[14:15] offset:{64*nt}" + SC1)
        a(f"global_store_dwordx4 v30, v[{96+4*nt}:{99+4*nt}], s[14:15] offset:{64*nt}" + SC1)
    a("s_mov_b64 exec, s[52:53]")
    for nt in range(2):
        a(f"global_store_dwordx4 v29, v[{96+4*nt}:{99+4*nt}], s[14:15] offset:{64*nt}" + SC1)
    a("s_mov_b64 exec, s[42:43]")
    a("s_branch K2_END")
    a("K2_W2:   ; LINT-RESET")
    a("s_sub_u32 s26, s26, 172")
    a("s_and_b32 s29, s26, 15")
    a("s_lshr_b32 s28, s26, 4")
    a("v_lshlrev_b32 v10, 10, v2")
    a("v_lshl_add_u32 v10, v3, 4, v10")
    a("s_lshl_b32 s30, s29, 6")
    a("s_waitcnt lgkmcnt(0)")
    wsfix(a, 14)
    a.srd(44, 18, 1376 * 512 * 2)
    for ks in range(4):
        a("s_lshl_b32 s31, s28, 2")
        a(f"s_add_u32 s31, s31, {ks}")
        a("s_mul_i32 s32, s31, 13")
        a("s_lshr_b32 s32, s32, 6")
        a("s_mul_i32 s33, s32, 5")
        a("s_sub_u32 s33, s31, s33")
        a("s_mul_i32 s32, s32, 11")
        a("s_min_u32 s32, s32, 76")
        a("s_lshl_b32 s33, s33, 1")
        a("s_add_u32 s32, s32, s33")
        a("s_add_u32 s33, s32, 1")
        a("s_sub_u32 s34, s31, 40")
        a("s_mul_i32 s34, s34, 22")
        a("s_add_u32 s35, s34, 21")
        a("s_add_u32 s34, s34, 10")
        a("s_cmp_lt_u32 s31, 40")
        a("s_cselect_b32 s32, s32, s34")
        a("s_cselect_b32 s33, s33, s35")
        for hf, sr in ((0, 32), (1, 33)):
            a(f"s_lshl_b32 s49, s{sr}, 14")
            a("s_add_u32 s49, s49, s30")
            i = 2 * ks + hf
            a(f"buffer_load_dwordx4 v[{32+4*i}:{35+4*i}], v10, s[44:47], s49 offen nt")
    a("s_barrier")
    for i in range(8):
        a(f"s_waitcnt vmcnt({7-i})")
        a(f"ds_write_b128 v11, v[{32+4*i}:{35+4*i}] offset:{16*80*i}")
    a("s_lshr_b32 s30, s29, 1")
    a("s_mul_i32 s30, s30, 43")
    a("s_lshl_b32 s31, s28, 2")
    a("s_add_u32 s30, s30, s31")
    a("s_lshl_b32 s30, s30, 12")
    a("s_and_b32 s31, s29, 1")
    a("s_lshl_b32 s31, s31, 11")
    a("s_add_u32 s30, s30, s31")
    a(f"s_add_u32 s30, s30, {W2F}")
    a("v_lshl_add_u32 v26, v1, 4, s30")
    a("s_waitcnt lgkmcnt(0)")
    for ks in range(4):
        if ks == 3:
            a("s_cmp_eq_u32 s28, 10")
            a("s_cbranch_scc1 K2_END")
        for nt in range(2):
            for hf in range(2):
                a(f"ds_read_b64_tr_b16 v[{44+4*nt+2*hf}:{45+4*nt+2*hf}], v12 offset:{(32*ks+16*hf)*80 + 32*nt}")
        a("s_waitcnt lgkmcnt(2)")
        a(f"global_store_dwordx4 v26, v[44:47], s[14:15]" + SC1)
        a("s_waitcnt lgkmcnt(0)")
        a(f"global_store_dwordx4 v26, v[48:51], s[14:15] offset:1024" + SC1)
        a("v_add_u32 v26, 4096, v26")
    a("s_branch K2_END")
    a("K2_TAB:   ; LINT-RESET")
    a("v_lshlrev_b32 v2, 5, v1")
    a(f"v_add_u32 v2, {MODF + 3*2048}, v2")
    a("v_add_u32 v3, 2048, v2")
    a("s_waitcnt lgkmcnt(0)")
    wsfix(a, 14)
    a("global_load_dwordx4 v[32:35], v2, s[14:15]")
    a("global_load_dwordx4 v[36:39], v2, s[14:15] offset:16")
    a("global_load_dwordx4 v[40:43], v3, s[14:15]")
    a("global_load_dwordx4 v[44:47], v3, s[14:15] offset:16")
    a("s_barrier")
    a("s_waitcnt vmcnt(0)")
    for j in range(8): a(f"v_add_f32 v{40+j}, 1.0, v{40+j}")
    for j in range(8): rbf(a, 40 + j, 40 + j)
    for j in range(8): a(f"v_mul_f32 v{48+j}, v{40+j}, v{40+j}")
    for j in range(8): a(f"v_mul_f32 v{56+j}, v{40+j}, v{32+j}")
    for k, base in enumerate((40, 48, 56, 32)):
        a(f"v_add_f32 v{100+k}, v{base}, v{base+1}")
        for j in range(2, 8): a(f"v_add_f32 v{100+k}, v{100+k}, v{base+j}")
    a("v_mul_f32 v104, v32, v32")
    for j in range(1, 8): a(f"v_fmac_f32 v104, v{32+j}, v{32+j}")
    a("v_lshl_add_u32 v4, v1, 4, s27")
    a("v_mov_b32 v64, 0x3f803f80\nv_mov_b32 v65, 0x3f803f80\nv_mov_b32 v66, 0x3f803f80\nv_mov_b32 v67, 0x3f803f80")
    a("ds_write_b128 v4, v[64:67]")
    for q in range(4): a(f"v_cvt_pk_bf16_f32 v{68+q}, v{40+2*q}, v{41+2*q}")
    a("ds_write_b128 v4, v[68:71] offset:1024")
    for (src, row) in ((48, 2), (56, 4)):
        for q in range(4): a(f"v_cvt_pk_bf16_f32 v{72+q}, v{src+2*q}, v{src+2*q+1}")
        a(f"ds_write_b128 v4, v[72:75] offset:{1024*row}")
        for q in range(4):
            a(f"v_lshlrev_b32 v{80+2*q}, 16, v{72+q}")
            a(f"v_and_b32 v{81+2*q}, 0xffff0000, v{72+q}")
        for j in range(8): a(f"v_sub_f32 v{80+j}, v{src+j}, v{80+j}")
        for q in range(4): a(f"v_cvt_pk_bf16_f32 v{76+q}, v{80+2*q}, v{81+2*q}")
        a(f"ds_write_b128 v4, v[76:79] offset:{1024*(row+1)}")
    a("s_nop 1")
    for ctl in ("row_shr:1", "row_shr:2", "row_shr:4", "row_shr:8", "row_bcast:15 row_mask:0xa", "row_bcast:31 row_mask:0xc"):
        for r in range(100, 105):
            a(f"v_add_f32_dpp v{r}, v{r}, v{r} {ctl}")
    a(f"v_mov_b32 v5, {SCAL}")
    a("s_mov_b64 s[42:43], exec")
    a("s_mov_b64 exec, 0x8000000000000000") if False else None
    a("v_cmp_eq_u32 vcc, 63, v1")
    a("s_and_saveexec_b64 s[42:43], vcc")
    a("global_store_dwordx4 v5, v[100:103], s[14:15]" + SC1)
    a("global_store_dword v5, v104, s[14:15] offset:16" + SC1)
    a("s_mov_b64 exec, s[42:43]")
    a("v_and_b32 v6, 15, v1")
    a("v_lshrrev_b32 v7, 4, v1")
    a("v_min_u32 v8, 5, v6")
    a("v_lshlrev_b32 v8, 10, v8")
    a("v_lshl_add_u32 v8, v7, 3, v8")
    a("v_add_u32 v8, s27, v8")
    a("v_cmp_gt_u32 vcc, 6, v6")
    a("v_mov_b32 v9, 0")
    a("s_nop 0")
    a("v_cndmask_b32 v9, v9, -1, vcc")
    a(f"s_mov_b32 s30, {W1F + 86*1024}")
    a("v_lshl_add_u32 v10, v1, 4, s30")
    a("s_waitcnt lgkmcnt(0)")
    for ks in range(16):
        R = 16 + 4 * (ks & 1)
        a(f"ds_read_b64 v[{R}:{R+1}], v8 offset:{64*ks}")
        a(f"ds_read_b64 v[{R+2}:{R+3}], v8 offset:{64*ks+32}")
        a("s_waitcnt lgkmcnt(0)")
        for q in range(4): a(f"v_and_b32 v{R+q}, v{R+q}, v9")
        a(f"global_store_dwordx4 v10, v[{R}:{R+3}], s[14:15]" + SC1)
        a(f"v_add_u32 v10, {87*1024}, v10")
    a("s_branch K2_END")
    a("K2_SIDE_IDLE:   ; LINT-RESET")
    a("s_cmp_eq_u32 s26, 349")
    a("s_cbranch_scc0 K2_idle2")
    a("s_waitcnt lgkmcnt(0)")
    wsfix(a, 14)
    a("v_mov_b32 v4, 0\nv_mov_b32 v5, 0\nv_mov_b32 v6, 0\nv_mov_b32 v7, 0")
    a("v_lshlrev_b32 v2, 4, v1")
    a(f"v_add_u32 v2, {FLAGS_OFF}, v2")
    for q in range(4):
        a(f"global_store_dwordx4 v2, v[4:7], s[14:15] offset:{1024*q} sc1")
    a("K2_idle2:")
    a("s_barrier")
    a("K2_END:   ; LINT-RESET")
    stamp_store(a, 1, 14, 24)
    a("K2_EXIT:")
    a.end_kernel(name, 160, 100)


KG   = SIDE + 4 * SIDE_SZ
KG_PAR = KG
KG_T16 = KG + 4096
KG_REV = KG + 4096 + 2816
LF   = KG_REV + 2 * 4160
K12_LDS = LF + 64
KG_PART = SCR
GBAR = 0x0639000
WCNT = GBAR + 10752

_sync_id = [0]
def wsync(a, addr, n, vt, st, add=True):
    _sync_id[0] += 1
    L = f"WS_{_sync_id[0]}"
    a("s_waitcnt lgkmcnt(0)")
    if isinstance(addr, str): a(f"v_mov_b32 v{vt}, {addr}")
    else: a(f"v_mov_b32 v{vt}, {addr}")
    if add:
        a(f"v_mov_b32 v{vt+1}, 1")
        a("s_mov_b64 exec, 1")
        a(f"ds_add_u32 v{vt}, v{vt+1}")
        a("s_mov_b64 exec, -1")
    a("s_mov_b32 s63, 0x400000")
    a(f"{L}:")
    a(f"ds_read_b32 v{vt+1}, v{vt}")
    a("s_waitcnt lgkmcnt(0)")
    a(f"v_readfirstlane_b32 s{st}, v{vt+1}")
    a("s_sub_u32 s63, s63, 1")
    a("s_cmp_eq_u32 s63, 0")
    a(f"s_cbranch_scc1 {L}_x")
    a(f"s_cmp_ge_u32 s{st}, {n}")
    a(f"s_cbranch_scc0 {L}")
    a(f"{L}_x:")

def k12(a):
    name = "k12_kernel"
    a.begin_kernel(name, 256, 512, K12_LDS)
    a("s_cmp_ge_u32 s2, 256")
    a("s_cbranch_scc1 K2_EXIT")
    stamp(a, 0)
    a("s_load_dwordx8 s[4:11], s[0:1], 8")
    a("s_load_dwordx4 s[44:47], s[0:1], 40")
    a("s_load_dwordx2 s[14:15], s[0:1], 128")
    a("s_load_dwordx2 s[16:17], s[0:1], 0")
    a("s_load_dwordx2 s[18:19], s[0:1], 120")
    a("s_load_dwordx4 s[20:23], s[0:1], 96")
    a("s_load_dwordx2 s[48:49], s[0:1], 64")
    a("s_load_dwordx2 s[12:13], s[0:1], 80")
    wave_id(a, 24, 1)
    a("v_and_b32 v1, 63, v0")
    a("v_lshlrev_b32 v2, 2, v0")
    a(f"v_add_u32 v2, {LF}, v2")
    a("v_mov_b32 v3, 0")
    a("v_cmp_gt_u32 vcc, 16, v0")
    a("s_and_saveexec_b64 s[42:43], vcc")
    a("ds_write_b32 v2, v3")
    a("s_mov_b64 exec, s[42:43]")
    a("s_cmp_ge_u32 s24, 4")
    a("s_cbranch_scc1 K12_SIDE0")
    a("s_lshr_b32 s25, s24, 1")
    a("s_and_b32 s26, s24, 1")
    a("s_lshl_b32 s62, s2, 1")
    a("s_add_u32 s27, s62, s25")
    a("s_lshl_b32 s28, s27, 8")
    a("s_lshl_b32 s29, s26, 7")
    a("s_add_u32 s28, s28, s29")
    a("v_lshl_add_u32 v2, v1, 1, s28")
    a("s_lshl_b32 s30, s2, 2")
    a("s_waitcnt lgkmcnt(0)")
    wsfix(a, 14)
    a("global_load_ushort v4, v2, s[4:5] nt")
    a("global_load_ushort v5, v2, s[6:7] nt")
    a("global_load_ushort v6, v2, s[8:9] nt")
    a("global_load_ushort v7, v2, s[10:11] nt")
    a("s_load_dword s29, s[44:45], s30")
    a("s_load_dword s56, s[46:47], s30")
    a("s_branch K12_CONV0")
    a("K12_SIDE0:   ; LINT-RESET")
    a("s_setprio 3")
    a("s_sub_u32 s25, s24, 4")
    a("s_and_b32 s28, s2, 7")
    a("s_lshr_b32 s29, s2, 3")
    a("s_lshr_b32 s26, s29, 3")
    a("s_lshl_b32 s27, s28, 2")
    a("s_add_u32 s26, s26, s27")
    a("s_and_b32 s27, s29, 7")
    a("s_lshl_b32 s30, s28, 8")
    a("s_lshl_b32 s31, s29, 3")
    a("s_add_u32 s30, s30, s31")
    a("s_lshl_b32 s31, s25, 1")
    a("s_add_u32 s30, s30, s31")
    a(f"s_mul_i32 s57, s25, {SIDE_SZ}")
    a(f"s_add_u32 s57, s57, {SIDE}")
    a("v_subrev_u32 v30, 256, v0")
    a("s_lshl_b32 s28, s26, 16")
    a("s_lshl_b32 s29, s27, 7")
    a("s_add_u32 s28, s28, s29")
    a("v_lshrrev_b32 v2, 3, v30")
    a("v_and_b32 v3, 7, v30")
    a("v_lshlrev_b32 v4, 10, v2")
    a("v_lshl_add_u32 v4, v3, 4, v4")
    a("v_add_u32 v4, s28, v4")
    a("v_add_u32 v5, 0x8000, v4")
    a("s_lshl_b32 s31, s30, 10")
    a("v_lshl_add_u32 v6, v1, 4, s31")
    a("s_and_b32 s33, s2, 7")
    a("s_mul_i32 s33, s33, 6")
    a("s_lshr_b32 s34, s2, 5")
    a("s_add_u32 s33, s33, s34")
    a("s_bfe_u32 s34, s2, 0x20003")
    a("s_lshl_b32 s35, s34, 7")
    a("v_add_u32 v7, s35, v2")
    a("v_mul_u32_u24 v25, 6144, v7")
    a("v_lshl_add_u32 v25, v3, 4, v25")
    a("s_lshl_b32 s35, s33, 7")
    a("v_add_u32 v25, s35, v25")
    a(f"v_add_u32 v26, {32*6144}, v25")
    a(f"v_add_u32 v27, {32*6144}, v26")
    a(f"v_add_u32 v28, {32*6144}, v27")
    a("v_lshlrev_b32 v29, 1, v7")
    a("s_waitcnt lgkmcnt(0)")
    wsfix(a, 14)
    NTX = " nt" if OPT.get("ntx", "0") == "1" else ""
    NTS = " nt" if OPT.get("nts", "0") == "1" else ""
    NTW = " nt" if OPT.get("ntw", "1") == "1" else ""
    a("global_load_dwordx4 v[8:11], v4, s[16:17]" + NTX)
    a("global_load_dwordx4 v[12:15], v5, s[16:17]" + NTX)
    a("global_load_dwordx4 v[16:19], v6, s[16:17]" + NTS)
    a("global_load_dwordx4 v[20:23], v6, s[16:17] offset:1024" + NTS)
    a("s_cmp_ge_u32 s2, 192")
    a("s_cbranch_scc1 K1_nomodld")
    for k in range(4): a(f"global_load_ushort v{48+k}, v29, s[20:21] offset:{64*k}")
    for k, vo in enumerate((25, 26, 27, 28)):
        a(f"global_load_dwordx4 v[{32+4*k}:{35+4*k}], v{vo}, s[22:23]" + NTW)
    a("K1_nomodld:")
    if OPT.get("cpf", "1") == "1":
        a("s_sub_u32 s65, s2, 192")
        a("s_cmp_ge_u32 s65, 16")
        a("s_cbranch_scc1 K12_nocpf")
        a("s_cmp_lg_u32 s24, 7")
        a("s_cbranch_scc1 K12_nocpf")
        code_prefetch(a, "k12_kernel", LASTLABEL, 6, "k1", 199, 200)
        a("K12_nocpf:")
    a("s_branch K2_SIDE")
    a("K12_CONV0:   ; LINT-RESET")
    a("s_barrier")
    a("s_cmp_eq_u32 s2, 255")
    a("s_cselect_b32 s64, 1, 0")
    a("s_cmp_eq_u32 s24, 0")
    a("s_cselect_b32 s64, s64, 0")
    a("s_cmp_eq_u32 s64, 1")
    a("s_cbranch_scc0 K12_noinit")
    a("v_mov_b32 v64, 0\nv_mov_b32 v65, 0\nv_mov_b32 v66, 0\nv_mov_b32 v67, 0")
    a("v_lshlrev_b32 v68, 4, v1")
    a(f"v_add_u32 v68, {FLAGS_OFF}, v68")
    for q in range(16):
        a(f"global_store_dwordx4 v68, v[64:67], s[14:15] sc1")
        if q < 15: a("v_add_u32 v68, 1024, v68")
    a("K12_noinit:   ; LINT-RESET")
    a("v_mov_b32 v56, 0\nv_mov_b32 v57, 0\nv_mov_b32 v58, 0\nv_mov_b32 v59, 0")
    a("v_mul_u32_u24 v53, 171, v0")
    a("v_lshrrev_b32 v53, 9, v53")
    a("v_mul_u32_u24 v54, 3, v53")
    a("v_sub_u32 v54, v0, v54")
    a(f"v_mul_u32_u24 v53, {CS}, v53")
    a("v_lshl_add_u32 v53, v54, 4, v53")
    a("v_cmp_gt_u32 vcc, 48, v0")
    a("s_and_saveexec_b64 s[42:43], vcc")
    a("ds_write_b128 v53, v[56:59]")
    a("s_mov_b64 exec, s[42:43]")
    a("v_lshlrev_b32 v53, 4, v0")
    a(f"v_add_u32 v53, {UB}, v53")
    a(f"v_cmp_gt_u32 vcc, {31 * USTR // 16}, v0")
    a("s_and_saveexec_b64 s[42:43], vcc")
    a(f"ds_write_b128 v53, v[56:59]")
    a(f"ds_write_b128 v53, v[56:59] offset:{U_CH}")
    a("s_mov_b64 exec, s[42:43]")
    a("v_and_b32 v16, 15, v1")
    a("v_cmp_eq_u32 s[32:33], 15, v16")
    a("v_lshrrev_b32 v18, 4, v1")
    a("v_add_u32 v19, 1, v16")
    a("v_cvt_f32_u32 v19, v19")
    a("s_lshl_b32 s31, s24, 10")
    a(f"s_add_u32 s31, s31, {KG_PAR}")
    a("v_lshl_add_u32 v17, v18, 6, s31")
    a("v_lshl_add_u32 v20, v1, 4, s31")
    for r in range(112, 128): a(f"v_mov_b32 v{r}, 0")
    a("s_mul_i32 s39, s25, 1344")
    a(f"s_add_u32 s39, s39, {KG_T16 + 8}")
    a("v_subrev_u32 v21, 7, v16")
    a("v_cmp_gt_u32 s[34:35], 8, v21")
    a("v_add_u32 v21, 1, v16")
    a("v_and_b32 v21, 15, v21")
    a("v_lshlrev_b32 v24, 5, v21")
    a("v_lshl_add_u32 v24, v18, 3, v24")
    a("s_lshl_b32 s40, s26, 9")
    a("s_add_u32 s40, s40, s39")
    a("v_add_u32 v24, s40, v24")
    a("s_cmp_eq_u32 s26, 0")
    a("s_cselect_b64 s[36:37], -1, s[34:35]")
    a("s_lshl_b32 s40, s24, 12")
    a(f"s_add_u32 s40, s40, {KG_PART}")
    a("v_lshl_add_u32 v22, v1, 4, s40")
    a("s_lshl_b32 s40, s25, 13")
    a("s_lshl_b32 s41, s26, 11")
    a("s_add_u32 s40, s40, s41")
    a(f"s_add_u32 s40, s40, {KG_PART}")
    a("v_lshl_add_u32 v23, v1, 4, s40")
    a("s_lshl_b32 s40, s26, 6")
    a("v_add_u32 v26, s40, v1")
    a("v_lshlrev_b32 v27, 3, v26")
    a("v_sub_u32 v27, 2047, v27")
    a("v_cvt_f32_u32 v28, v27")
    a("s_sub_u32 s41, s39, 34050")
    a("s_sub_u32 s42, s39, 2")
    GA = 140
    for rnd in range(2):
        if rnd == 1:
            a("v_add_f32 v28, 0xc4800000, v28")
            a("v_subrev_u32 v27, 1024, v27")
        for t in range(8):
            if t == 0: a(f"v_mov_b32 v48, v28")
            else: a(f"v_add_f32 v{48+t}, {-float(t)}, v28")
        for p in range(4): a(f"v_cvt_pk_bf16_f32 v{56+p}, v{48+2*p}, v{49+2*p}")
        for p in range(4):
            a(f"v_and_b32 v{48+2*p}, 0xffff, v{56+p}")
            a(f"v_lshrrev_b32 v{49+2*p}, 16, v{56+p}")
        o = GA + 8 * rnd
        for t in range(8): a(f"v_lshl_add_u32 v{o+t}, v{48+t}, 1, s41")
        if rnd == 1:
            a("v_cmp_le_u32 vcc, 112, v26")
            for t in range(8):
                a(f"v_subrev_u32 v{56+(t&3)}, {t}, v27")
                a(f"v_lshl_add_u32 v{56+(t&3)}, v{56+(t&3)}, 1, s42")
                a(f"v_cndmask_b32 v{o+t}, v{o+t}, v{56+(t&3)}, vcc")
    a(f"s_mul_i32 s40, s25, 4160")
    a(f"s_add_u32 s40, s40, {KG_REV}")
    a("v_lshl_add_u32 v29, v26, 4, s40")
    a("s_add_u32 s41, s40, 4080")
    a("v_lshlrev_b32 v30, 4, v26")
    a("v_sub_u32 v30, s41, v30")
    a(f"s_mul_i32 s41, s25, {KC_CH}")
    a("s_add_u32 s41, s41, 48")
    a("v_lshl_add_u32 v31, v26, 4, s41")
    a("s_waitcnt lgkmcnt(0)")
    a("s_lshl_b32 s40, s25, 4")
    a("s_lshr_b32 s29, s29, s40")
    a("s_lshl_b32 s29, s29, 16")
    a(f"v_mov_b32 v8, {LOG2E}")
    a("v_mul_f32 v9, s29, v8")
    a("v_exp_f32 v9, v9")
    a("s_nop 0")
    rbf(a, 9, 9)
    a("s_waitcnt vmcnt(0)")
    a("s_cmp_eq_u32 s64, 1")
    a("s_cbranch_scc0 K12_nopub")
    a("v_mov_b32 v68, 0")
    a("v_mov_b32 v69, 1")
    a("s_mov_b64 exec, 1")
    a("global_store_dword v68, v69, s[18:19] sc1")
    a("s_mov_b64 exec, -1")
    a("K12_nopub:")
    a("v_lshlrev_b32 v4, 16, v4")
    a("v_lshlrev_b32 v5, 16, v5")
    a("v_lshlrev_b32 v6, 16, v6")
    a("v_lshlrev_b32 v7, 16, v7")
    a("v_mul_f32 v4, v4, v8")
    a("v_exp_f32 v4, v4")
    a("v_mul_f32 v13, v5, v9")
    a("v_mul_f32 v14, v6, v9")
    rbf(a, 4, 4)
    a("v_mul_f32 v15, v7, v9")
    a("v_mul_f32 v12, v4, v9")
    a(f"v_mul_f32 v13, {INV2PI}, v13")
    a("v_add_f32 v14, v14, v14")
    a("v_add_f32 v15, v15, v15")
    a("v_mul_f32 v12, v12, v8")
    a("v_mov_b32 v10, v14")
    a("v_sub_f32 v12, 0, v12")
    a("ds_write_b128 v20, v[12:15]")
    for ctl in ("row_shr:1", "row_shr:2", "row_shr:4", "row_shr:8", "row_bcast:15 row_mask:0xa", "row_bcast:31 row_mask:0xc"):
        a("s_nop 1")
        a(f"v_add_f32_dpp v10, v10, v10 {ctl}")
    a("s_waitcnt lgkmcnt(0)")
    stamp(a, 1)
    R = [[32 + 4 * u for u in range(4)], [48 + 4 * u for u in range(4)]]
    PA = [64 + 2 * u for u in range(4)]
    PB = [72 + 2 * u for u in range(4)]
    TT = [80 + 2 * u for u in range(4)]
    QF = [88 + 4 * e for e in range(4)]
    GF = [104, 108]
    DD = [112 + 4 * e for e in range(4)]
    CPK = [128 + u for u in range(4)]
    MAG = [132 + 2 * u for u in range(4)]
    for u in range(4): a(f"ds_read_b128 v[{R[0][u]}:{R[0][u]+3}], v17 offset:{u*16}")
    for ks in range(4):
        Rc = R[ks & 1]
        if ks + 1 < 4:
            for u in range(4):
                a(f"ds_read_b128 v[{R[(ks+1)&1][u]}:{R[(ks+1)&1][u]+3}], v17 offset:{(ks+1)*256+u*16}")
            a("s_waitcnt lgkmcnt(4)")
        else:
            a("s_waitcnt lgkmcnt(0)")
        for u in range(4): a(f"v_mul_f32 v{TT[u]}, v{Rc[u]}, v19")
        for u in range(4): a(f"v_mul_f32 v{TT[u]+1}, v{Rc[u]+1}, v19")
        for u in range(4): a(f"v_exp_f32 v{MAG[u]}, v{TT[u]}")
        for u in range(4): a(f"v_fract_f32 v{TT[u]+1}, v{TT[u]+1}")
        for u in range(4): a(f"v_cvt_pk_bf16_f32 v{CPK[u]}, v{Rc[u]+2}, -v{Rc[u]+3}")
        for u in range(4): a(f"v_cos_f32 v{PB[u]}, v{TT[u]+1}")
        for u in range(4): a(f"v_sin_f32 v{PB[u]+1}, v{TT[u]+1}")
        a("s_nop 0")
        for u in range(4):
            a(f"v_pk_mul_f32 v[{PA[u]}:{PA[u]+1}], v[{PB[u]}:{PB[u]+1}], v[{MAG[u]}:{MAG[u]+1}] op_sel:[0,0] op_sel_hi:[1,0]")
        cur, oth = PA, PB
        for e in range(4):
            for u in range(4): a(f"v_cvt_pk_bf16_f32 v{QF[e]+u}, v{cur[u]}, v{cur[u]+1}")
            sq = [csq(a, oth[u], cur[u], TT[u]) for u in range(4)]
            for u in range(4): a(sq[u][0])
            for u in range(4): a(sq[u][1])
            cur, oth = oth, cur
        for e in range(4):
            g = GF[e & 1]
            cm = [cmulconj(a, oth[u], cur[u], Rc[u] + 2, TT[u]) for u in range(4)]
            for u in range(4): a(cm[u][0])
            for u in range(4): a(cm[u][1])
            for u in range(4): a(f"v_cvt_pk_bf16_f32 v{g+u}, v{oth[u]}, v{oth[u]+1}")
            if e == 0:
                for u in range(4): a(f"v_cndmask_b32 v{g+u}, v{g+u}, v{CPK[u]}, s[32:33]")
            if e < 3:
                sq = [csq(a, oth[u], cur[u], TT[u]) for u in range(4)]
                for u in range(4): a(sq[u][0])
                a(f"v_mfma_f32_16x16x32_bf16 v[{DD[e]}:{DD[e]+3}], v[{QF[e]}:{QF[e]+3}], v[{g}:{g+3}], v[{DD[e]}:{DD[e]+3}]")
                for u in range(4): a(sq[u][1])
                cur, oth = oth, cur
            else:
                a("s_nop 1")
                a(f"v_mfma_f32_16x16x32_bf16 v[{DD[e]}:{DD[e]+3}], v[{QF[e]}:{QF[e]+3}], v[{g}:{g+3}], v[{DD[e]}:{DD[e]+3}]")
    stamp(a, 2)
    K0P = KG_T16 + 2 * 1344 + 16
    a("v_readlane_b32 s40, v10, 63")
    a(f"s_lshl_b32 s41, s24, 2")
    a(f"s_add_u32 s41, s41, {K0P}")
    a("v_mov_b32 v11, s41")
    a("v_mov_b32 v10, s40")
    a("s_nop 1")
    for e in range(4): a(f"ds_write_b128 v22, v[{DD[e]}:{DD[e]+3}] offset:{e*1024}")
    a("ds_write_b32 v11, v10")
    a("s_lshl_b32 s57, s25, 2")
    a(f"s_add_u32 s41, s57, {LF}")
    wsync(a, "s41", 2, 2, 40)
    a("ds_read_b128 v[32:35], v23")
    a("ds_read_b128 v[36:39], v23 offset:4096")
    a("ds_read_b128 v[40:43], v23 offset:1024")
    a("ds_read_b128 v[44:47], v23 offset:5120")
    a(f"s_lshl_b32 s41, s25, 3")
    a(f"s_add_u32 s41, s41, {K0P}")
    a("v_mov_b32 v11, s41")
    a("ds_read_b64 v[8:9], v11")
    a("s_waitcnt lgkmcnt(0)")
    for r in range(4): a(f"v_add_f32 v{32+r}, v{32+r}, v{36+r}")
    for r in range(4): a(f"v_add_f32 v{40+r}, v{40+r}, v{44+r}")
    a("v_add_f32 v8, v8, v9")
    a("v_cvt_pk_bf16_f32 v32, v32, v33")
    a("v_cvt_pk_bf16_f32 v33, v34, v35")
    a("v_cvt_pk_bf16_f32 v40, v40, v41")
    a("v_cvt_pk_bf16_f32 v41, v42, v43")
    a("v_cvt_pk_bf16_f32 v8, v8, v8")
    a("s_sub_u32 s41, s39, 2")
    a("v_mov_b32 v11, s41")
    a("s_mov_b64 exec, s[36:37]")
    a("ds_write_b64 v24, v[32:33]")
    a("s_mov_b64 exec, s[34:35]")
    a("ds_write_b64 v24, v[40:41] offset:256")
    a("s_mov_b64 exec, -1")
    a("ds_write_b16 v11, v8")
    a(f"s_add_u32 s41, s57, {LF + 8}")
    wsync(a, "s41", 2, 2, 40)
    for t in range(16):
        a(f"ds_read_u16 v{76+t}, v{GA+t}")
        if t == 7: a("v_mov_b32 v72, 0\nv_mov_b32 v73, 0\nv_mov_b32 v74, 0\nv_mov_b32 v75, 0")
    a("s_waitcnt lgkmcnt(8)")
    for p in range(4): a(f"v_lshl_or_b32 v{64+p}, v{77+2*p}, 16, v{76+2*p}")
    a("ds_write_b128 v29, v[64:67]")
    a("s_waitcnt lgkmcnt(1)")
    for p in range(4): a(f"v_lshl_or_b32 v{68+p}, v{85+2*p}, 16, v{84+2*p}")
    a("ds_write_b128 v29, v[68:71] offset:2048")
    a("v_cmp_gt_u32 vcc, 4, v26")
    a("s_and_saveexec_b64 s[42:43], vcc")
    a("ds_write_b128 v29, v[72:75] offset:4096")
    a("s_mov_b64 exec, s[42:43]")
    a(f"s_add_u32 s41, s57, {LF + 16}")
    wsync(a, "s41", 2, 2, 40)
    a("v_subrev_u32 v33, 2048, v30")
    a("ds_read_b128 v[36:39], v30")
    a("ds_read_b128 v[40:43], v30 offset:16")
    a("ds_read_b128 v[44:47], v33")
    a("ds_read_b128 v[48:51], v33 offset:16")
    for c in range(2):
        W = 36 + 8 * c
        a(f"s_waitcnt lgkmcnt({2 if c == 0 else 8})")
        V = 60
        for j in range(7): a(f"v_alignbit_b32 v{V+j}, v{W+j+1}, v{W+j}, 16")
        for j in range(1, 7): a(f"v_alignbit_b32 v{68+j-1}, v{W+j+1}, v{W+j}, 16")
        for j in range(1, 7): a(f"v_mov_b32 v{76+j-1}, v{W+j}")
        off = c * 2048
        a(f"ds_write_b128 v31, v[{W}:{W+3}] offset:{off + 7*CS}")
        a(f"ds_write_b128 v31, v[{W+2}:{W+5}] offset:{off + 3*CS}")
        a(f"ds_write_b128 v31, v[{V}:{V+3}] offset:{off + 6*CS}")
        a(f"ds_write_b128 v31, v[{V+2}:{V+5}] offset:{off + 2*CS}")
        a(f"ds_write_b128 v31, v[68:71] offset:{off + 4*CS}")
        a(f"ds_write_b128 v31, v[70:73] offset:{off + 0*CS}")
        a(f"ds_write_b128 v31, v[76:79] offset:{off + 5*CS}")
        a(f"ds_write_b128 v31, v[78:81] offset:{off + 1*CS}")
    stamp(a, 3)
    a("s_lshl_b32 s28, s62, 12")
    a(f"s_add_u32 s28, s28, {XT}") if XT else None
    a("v_lshl_add_u32 v160, v0, 4, s28")
    a("v_add_u32 v161, 4096, v160")
    a("v_lshlrev_b32 v162, 5, v0")
    a(f"v_add_u32 v162, {STAT1}, v162")
    a(f"v_add_u32 v163, 8192, v162")
    a(f"v_and_b32 v50, {15 if CONV16 else 31}, v1")
    a(f"v_lshrrev_b32 v51, {4 if CONV16 else 5}, v1")
    a("s_lshl_b32 s30, s25, 12")
    a("s_add_u32 s30, s30, s28")
    a("s_lshl_b32 s31, s26, 11")
    a("s_add_u32 s30, s30, s31")
    a("v_lshlrev_b32 v164, 6, v50")
    a("v_lshl_add_u32 v164, v51, 3, v164")
    a("v_add_u32 v164, s30, v164")
    a("v_and_b32 v165, 3, v1")
    a("v_mul_u32_u24 v165, 12288, v165")
    a("v_bfe_u32 v54, v1, 2, 1")
    a("v_lshl_add_u32 v165, v54, 2, v165")
    a("v_lshrrev_b32 v54, 3, v1")
    a("v_min_u32 v54, 2, v54")
    a("v_lshl_add_u32 v165, v54, 11, v165")
    a("s_lshl_b32 s32, s62, 2")
    a(f"s_add_u32 s32, s32, {MODP}")
    a("v_add_u32 v165, s32, v165")
    a("v_and_b32 v54, 7, v50")
    a("v_lshrrev_b32 v55, 3, v50")
    a(f"v_mul_u32_u24 v2, {CS}, v54")
    a("v_sub_u32 v55, v55, v51")
    a(f"v_add_u32 v55, {3 if CONV16 else 1}, v55")
    a("v_lshl_add_u32 v2, v55, 4, v2")
    a(f"s_mul_i32 s38, s25, {KC_CH}")
    a("v_add_u32 v2, s38, v2")
    a(f"v_mul_u32_u24 v3, {USTR}, v50")
    a("v_lshl_add_u32 v3, v51, 4, v3")
    a(f"s_mul_i32 s38, s25, {U_CH}")
    a(f"s_add_u32 s38, s38, {UB}")
    a("v_add_u32 v3, s38, v3")
    a("v_lshrrev_b32 v166, 2, v0")
    a(f"v_mul_u32_u24 v166, {USTR}, v166")
    a("v_and_b32 v63, 3, v0")
    a("v_lshl_add_u32 v166, v63, 4, v166")
    a(f"v_add_u32 v166, {UB + 31*USTR}, v166")
    a("s_lshl_b32 s38, s24, 12")
    a(f"s_add_u32 s38, s38, {SCR}")
    a("v_lshl_add_u32 v4, v1, 4, s38")
    a("s_xor_b32 s39, s24, 1")
    a("s_lshl_b32 s38, s39, 12")
    a(f"s_add_u32 s38, s38, {SCR}")
    a("v_lshl_add_u32 v5, v1, 4, s38")
    a("s_lshl_b32 s38, s24, 2")
    a(f"s_add_u32 s38, s38, {LF + 32}")
    a("v_mov_b32 v7, s38")
    a("s_lshl_b32 s38, s39, 2")
    a(f"s_add_u32 s38, s38, {LF + 32}")
    a("v_mov_b32 v8, s38")
    a(f"v_mul_u32_u24 v6, {USTR}, v50")
    a("v_lshl_add_u32 v6, v51, 3, v6")
    a(f"s_mul_i32 s38, s25, {U_CH}")
    a(f"s_mul_i32 s39, s26, {32*USTR}")
    a("s_add_u32 s38, s38, s39")
    a(f"s_add_u32 s38, s38, {UB + 31*USTR}")
    a("v_add_u32 v6, s38, v6")
    a("s_lshl_b32 s38, s27, 7")
    a("s_lshl_b32 s39, s26, 20")
    a("s_add_u32 s38, s38, s39")
    a(f"s_add_u32 s38, s38, {X2T}")
    a("v_lshrrev_b32 v9, 3, v1")
    a("v_lshlrev_b32 v9, 16, v9")
    a("v_and_b32 v63, 7, v1")
    a("v_lshl_add_u32 v9, v63, 4, v9")
    a("v_add_u32 v9, s38, v9")
    a("v_add_u32 v12, 0x80000, v9")
    a(f"s_mul_i32 s38, s25, {KC_CH}")
    a("s_mul_i32 s39, s26, 2560")
    a("s_add_u32 s38, s38, s39")
    a("v_mul_u32_u24 v10, 80, v50")
    a("v_lshl_add_u32 v10, v51, 3, v10")
    a("v_add_u32 v10, s38, v10")
    a("v_lshrrev_b32 v11, 2, v1")
    a("v_mul_u32_u24 v11, 80, v11")
    a("v_and_b32 v63, 3, v1")
    a("v_lshl_add_u32 v11, v63, 4, v11")
    a("v_add_u32 v11, s38, v11")
    for r in range(32, 64): a(f"v_mov_b32 v{r}, 0")
    a("s_lshl_b32 s38, s25, 4")
    a("s_lshr_b32 s36, s56, s38")
    a("s_lshl_b32 s36, s36, 16")
    a("s_waitcnt lgkmcnt(0)")
    a("s_barrier")
    stamp(a, 4)
    XR, SR = 168, 176
    a("global_load_dword v13, v165, s[14:15] sc1")
    a(f"global_load_dwordx4 v[{XR}:{XR+3}], v160, s[14:15] sc1")
    a(f"global_load_dwordx4 v[{XR+4}:{XR+7}], v161, s[14:15] sc1")
    a(f"global_load_dwordx4 v[{SR}:{SR+3}], v162, s[14:15] sc1")
    a(f"global_load_dwordx4 v[{SR+4}:{SR+7}], v162, s[14:15] offset:16 sc1")
    a(f"global_load_dwordx4 v[{SR+8}:{SR+11}], v163, s[14:15] sc1")
    a(f"global_load_dwordx4 v[{SR+12}:{SR+15}], v163, s[14:15] offset:16 sc1")
    for i in range(4):
        a(f"global_load_dwordx2 v[{144+2*i}:{145+2*i}], v164, s[14:15] offset:{(1024*(i >> 1) + 32*(i & 1)) if CONV16 else 16*i} sc1")
    a("s_waitcnt vmcnt(10)")
    a("v_add_f32_dpp v13, v13, v13 quad_perm:[1,0,3,2] row_mask:0xf bank_mask:0xf")
    a("s_nop 1")
    a("v_add_f32_dpp v13, v13, v13 quad_perm:[2,3,0,1] row_mask:0xf bank_mask:0xf")
    rbf(a, 13, 13)
    a("v_add_f32 v14, 1.0, v13")
    rbf(a, 14, 14)
    a("v_readlane_b32 s59, v13, 0")
    a("v_readlane_b32 s61, v13, 4")
    a("v_readlane_b32 s54, v13, 16")
    a("v_readlane_b32 s55, v13, 20")
    a("v_readlane_b32 s58, v14, 8")
    a("v_readlane_b32 s60, v14, 12")
    a("s_cmp_eq_u32 s25, 0")
    a("s_cselect_b32 s37, s54, s55")
    a("s_waitcnt vmcnt(4)")
    for c in range(2):
        X = XR + 4 * c
        for q in range(4):
            a(f"v_lshlrev_b32 v{64+2*q}, 16, v{X+q}")
            a(f"v_and_b32 v{65+2*q}, 0xffff0000, v{X+q}")
        for q in range(4):
            a(f"v_pk_fma_f32 v[{64+2*q}:{65+2*q}], v[{64+2*q}:{65+2*q}], v[{SR+2*q}:{SR+1+2*q}], v[{SR+8+2*q}:{SR+9+2*q}]")
        for q in range(4):
            a(f"v_pk_fma_f32 v[{64+2*q}:{65+2*q}], v[{64+2*q}:{65+2*q}], s[{58+2*c}:{59+2*c}], s[{58+2*c}:{59+2*c}] op_sel:[0,0,1] op_sel_hi:[1,0,1]")
        for q in range(4):
            a(f"v_cvt_pk_bf16_f32 v{72+4*c+q}, v{64+2*q}, v{65+2*q}")
        a(f"ds_write_b128 v166, v[{72+4*c}:{75+4*c}] offset:{c*U_CH}")
    wsync(a, LF + 52, 4, 14, 40)
    stamp(a, 5)
    a("s_cmp_eq_u32 s26, 0")
    a("s_cbranch_scc0 K2_B")
    conv_path(a, 0, "A")
    a("K2_B:   ; LINT-RESET")
    conv_path(a, 1, "B")
    a("K2_SIDE:   ; LINT-RESET")
    a("s_barrier")
    TL = SIDE + SIDE_SZ
    a("v_mul_u32_u24 v30, 160, v2")
    a("v_lshl_add_u32 v30, v3, 4, v30")
    a(f"v_add_u32 v30, {TL}, v30")
    a("s_cmp_ge_u32 s2, 192")
    a("s_cbranch_scc1 K1_w0")
    a("s_waitcnt vmcnt(10)")
    a("s_branch K1_w1")
    a("K1_w0:")
    a("s_waitcnt vmcnt(2)")
    a("K1_w1:   ; LINT-RESET")
    stamp(a, 1)
    a("ds_write_b128 v30, v[8:11]")
    a("ds_write_b128 v30, v[12:15] offset:5120")
    wsync(a, LF + 48, 4, 2, 40)
    a("v_lshrrev_b32 v2, 4, v1")
    a("v_bfe_u32 v3, v1, 2, 2")
    a("v_and_b32 v4, 3, v1")
    a("v_lshl_add_u32 v5, v2, 3, v3")
    a("v_mul_u32_u24 v5, 160, v5")
    a("v_lshl_add_u32 v5, v4, 3, v5")
    a("s_lshl_b32 s31, s25, 5")
    a(f"s_add_u32 s31, s31, {TL}")
    a("v_add_u32 v5, s31, v5")
    a("ds_read_b64_tr_b16 v[8:9], v5")
    a("ds_read_b64_tr_b16 v[10:11], v5 offset:640")
    a(f"ds_read_b64_tr_b16 v[12:13], v5 offset:{32*160}")
    a(f"ds_read_b64_tr_b16 v[14:15], v5 offset:{36*160}")
    a("v_and_b32 v6, 15, v1")
    a("v_lshlrev_b32 v6, 12, v6")
    a("v_lshl_add_u32 v6, v2, 4, v6")
    a("s_lshl_b32 s31, s27, 18")
    a("s_lshl_b32 s32, s25, 16")
    a("s_add_u32 s31, s31, s32")
    a("s_lshl_b32 s32, s26, 7")
    a("s_add_u32 s31, s31, s32")
    a(f"s_add_u32 s31, s31, {XT}") if XT else None
    a("v_add_u32 v6, s31, v6")
    a("s_waitcnt lgkmcnt(2)")
    a("global_store_dwordx4 v6, v[8:11], s[14:15] sc1")
    a("s_waitcnt lgkmcnt(0)")
    a("global_store_dwordx4 v6, v[12:15], s[14:15] offset:64 sc1")
    a("s_cmp_ge_u32 s2, 192")
    a("s_cbranch_scc1 K1_w2")
    a("s_waitcnt vmcnt(10)")
    a("s_branch K1_w3")
    a("K1_w2:")
    a("s_waitcnt vmcnt(2)")
    a("K1_w3:   ; LINT-RESET")
    a("v_mov_b32 v31, 0x3f803f80")
    a("v_mov_b32 v52, 0\nv_mov_b32 v53, 0\nv_mov_b32 v54, 0\nv_mov_b32 v55, 0")
    for k in range(4):
        a(f"v_dot2_f32_bf16 v52, v{16+k}, v31, v52")
        a(f"v_dot2_f32_bf16 v53, v{16+k}, v{16+k}, v53")
        a(f"v_dot2_f32_bf16 v54, v{20+k}, v31, v54")
        a(f"v_dot2_f32_bf16 v55, v{20+k}, v{20+k}, v55")
    a("s_nop 1")
    for ctl in ("row_shr:1", "row_shr:2", "row_shr:4", "row_shr:8", "row_bcast:15 row_mask:0xa", "row_bcast:31 row_mask:0xc"):
        for r in range(52, 56): a(f"v_add_f32_dpp v{r}, v{r}, v{r} {ctl}")
    a("s_nop 1")
    for k, r in enumerate(range(52, 56)): a(f"v_readlane_b32 s{36+k}, v{r}, 63")
    a("s_nop 1")
    a("v_cmp_eq_u32 vcc, 0, v1")
    a("v_mov_b32 v56, s38")
    a("v_mov_b32 v57, s39")
    a("v_mov_b32 v58, s36")
    a("v_mov_b32 v59, s37")
    a("v_cndmask_b32 v56, v56, v58, vcc")
    a("v_cndmask_b32 v57, v57, v59, vcc")
    a("v_mul_f32 v56, 0x3b000000, v56")
    a("v_mul_f32 v57, 0x3b000000, v57")
    a("v_fma_f32 v57, -v56, v56, v57")
    a("v_max_f32 v57, 0, v57")
    rbf(a, 56, 56); rbf(a, 57, 57)
    a("v_add_f32 v57, 0x3727c5ac, v57")
    rbf(a, 57, 57)
    a("v_sqrt_f32 v57, v57")
    a("s_nop 0")
    rbf(a, 57, 57)
    a("v_rcp_f32 v58, v57")
    a("s_nop 0")
    a("v_mul_f32 v59, v56, v58")
    a("v_sub_f32 v59, 0, v59")
    a("s_lshl_b32 s31, s30, 2")
    a(f"s_add_u32 s31, s31, {STAT1}")
    a("v_lshl_add_u32 v60, v1, 2, s31")
    a("v_add_u32 v61, 8192, v60")
    a("v_cmp_gt_u32 vcc, 2, v1")
    a("s_and_saveexec_b64 s[42:43], vcc")
    a("global_store_dword v60, v58, s[14:15] sc1")
    a("global_store_dword v61, v59, s[14:15] sc1")
    a("s_mov_b64 exec, s[42:43]")
    a("s_cmp_ge_u32 s2, 192")
    a("s_cbranch_scc1 K1_nomodc")
    a("s_waitcnt vmcnt(4)")
    for k in range(4): a(f"v_lshlrev_b32 v{48+k}, 16, v{48+k}")
    for k in range(4): a(f"v_mul_f32 v{52+k}, 0xbfb8aa3b, v{48+k}")
    for k in range(4): a(f"v_exp_f32 v{52+k}, v{52+k}")
    a("s_nop 0")
    for k in range(4): a(f"v_add_f32 v{52+k}, 1.0, v{52+k}")
    for k in range(4): a(f"v_rcp_f32 v{56+k}, v{52+k}")
    a("s_nop 0")
    for k in range(4): a(f"v_mul_f32 v{60+k}, v{48+k}, v{56+k}")
    for k in range(4): a(f"v_fma_f32 v{48+k}, -v{60+k}, v{52+k}, v{48+k}")
    for k in range(4): a(f"v_fma_f32 v{48+k}, v{48+k}, v{56+k}, v{60+k}")
    for k in range(4): rbf(a, 48 + k, 48 + k)
    for k in range(4):
        for p in range(4):
            w = 32 + 4 * k + p
            a(f"v_lshlrev_b32 v62, 16, v{w}")
            a(f"v_and_b32 v63, 0xffff0000, v{w}")
            if k == 0:
                a(f"v_mul_f32 v{64+2*p}, v62, v48")
                a(f"v_mul_f32 v{65+2*p}, v63, v48")
            else:
                a(f"v_fmac_f32 v{64+2*p}, v62, v{48+k}")
                a(f"v_fmac_f32 v{65+2*p}, v63, v{48+k}")
    MODL = SIDE
    a("v_subrev_u32 v61, 256, v0")
    a("v_lshlrev_b32 v61, 5, v61")
    a(f"v_add_u32 v61, {MODL}, v61")
    a("ds_write_b128 v61, v[64:67]")
    a("ds_write_b128 v61, v[68:71] offset:16")
    wsync(a, LF + 24, 4, 2, 40)
    a("s_cmp_lg_u32 s25, 0")
    a("s_cbranch_scc1 K1_nomodc")
    a("v_lshlrev_b32 v4, 2, v1")
    a(f"v_add_u32 v4, {MODL}, v4")
    for i in range(32):
        a(f"ds_read_b32 v{16+i}, v4 offset:{256*i}")
        if i == 14: a("s_waitcnt lgkmcnt(7)")
    a("s_waitcnt lgkmcnt(0)")
    for st in (16, 8, 4, 2, 1):
        for i in range(st): a(f"v_add_f32 v{16+i}, v{16+i}, v{16+st+i}")
    a("s_mul_i32 s31, s34, 12288")
    a("s_lshl_b32 s32, s33, 8")
    a("s_add_u32 s31, s31, s32")
    a(f"s_add_u32 s31, s31, {MODP}")
    a("v_lshl_add_u32 v5, v1, 2, s31")
    a("global_store_dword v5, v16, s[14:15] sc1")
    a("K1_nomodc:   ; LINT-RESET")
    stamp(a, 2)
    a("v_mov_b32 v74, 0")
    a("global_load_dword v75, v74, s[18:19] sc1")
    a("s_waitcnt vmcnt(0)")
    a("v_readfirstlane_b32 s51, v75")
    a(f"v_mov_b32 v2, {LF + 28}")
    a("v_mov_b32 v3, 1")
    a("s_mov_b64 exec, 1")
    a("ds_add_u32 v2, v3")
    a("s_mov_b64 exec, -1")
    stamp(a, 3)
    a("s_sub_u32 s26, s25, 1")
    a("s_lshl_b32 s26, s26, 8")
    a("s_add_u32 s26, s26, s2")
    a("s_cmp_eq_u32 s25, 0")
    a("s_cselect_b32 s26, 1000, s26")
    a("s_mov_b32 s27, s57")
    a("v_lshrrev_b32 v2, 2, v1")
    a("v_and_b32 v3, 3, v1")
    a("v_lshrrev_b32 v4, 4, v1")
    a("v_bfe_u32 v5, v1, 2, 2")
    a("v_mul_u32_u24 v11, 80, v2")
    a("v_lshl_add_u32 v11, v3, 4, v11")
    a("v_add_u32 v11, s27, v11")
    a("v_lshl_add_u32 v12, v4, 2, v5")
    a("v_mul_u32_u24 v12, 80, v12")
    a("v_lshl_add_u32 v12, v3, 3, v12")
    a("v_add_u32 v12, s27, v12")
    a("s_cmp_ge_u32 s26, 520")
    a("s_cbranch_scc1 K12_noraw")
    a("s_cmp_ge_u32 s26, 344")
    a("s_cbranch_scc1 K12_rawW2")
    a("s_mul_i32 s28, s26, 763")
    a("s_lshr_b32 s28, s28, 16")
    a("s_mul_i32 s29, s28, 86")
    a("s_sub_u32 s29, s26, s29")
    a("v_lshrrev_b32 v10, 1, v1")
    a("v_and_b32 v13, 1, v1")
    a("v_lshlrev_b32 v11, 5, v10")
    a("v_lshl_add_u32 v11, v13, 4, v11")
    a("v_add_u32 v11, s27, v11")
    a("v_mul_u32_u24 v10, 2752, v10")
    a("v_lshl_add_u32 v10, v13, 4, v10")
    a("v_lshl_add_u32 v12, v4, 2, v5")
    a("v_lshlrev_b32 v12, 5, v12")
    a("v_lshl_add_u32 v12, v3, 3, v12")
    a("v_add_u32 v12, s27, v12")
    a(f"s_mul_i32 s53, s28, {128*2752}")
    a("s_lshl_b32 s30, s29, 5")
    a("s_add_u32 s53, s53, s30")
    if OPT.get("w1pre", "1") == "1":
        a.srd(64, 48, 512 * 1376 * 2)
        for i in range(4):
            a(f"buffer_load_dwordx4 v[{32+4*i}:{35+4*i}], v10, s[64:67], s53 offen")
            if i < 3: a(f"s_add_u32 s53, s53, {32*2752}")
    a("s_branch K12_noraw")
    a("K12_rawW2:   ; LINT-RESET")
    a("s_sub_u32 s31, s26, 344")
    a("s_and_b32 s29, s31, 15")
    a("s_lshr_b32 s28, s31, 4")
    a("v_lshlrev_b32 v10, 10, v2")
    a("v_lshl_add_u32 v10, v3, 4, v10")
    a("s_lshl_b32 s30, s29, 6")
    a.srd(64, 12, 1376 * 512 * 2)
    for ks in range(4):
        a("s_lshl_b32 s31, s28, 2")
        a(f"s_add_u32 s31, s31, {ks}")
        a("s_mul_i32 s32, s31, 13")
        a("s_lshr_b32 s32, s32, 6")
        a("s_mul_i32 s33, s32, 5")
        a("s_sub_u32 s33, s31, s33")
        a("s_mul_i32 s32, s32, 11")
        a("s_min_u32 s32, s32, 76")
        a("s_lshl_b32 s33, s33, 1")
        a("s_add_u32 s32, s32, s33")
        a("s_add_u32 s33, s32, 1")
        a("s_sub_u32 s34, s31, 40")
        a("s_mul_i32 s34, s34, 22")
        a("s_add_u32 s35, s34, 21")
        a("s_add_u32 s34, s34, 10")
        a("s_cmp_lt_u32 s31, 40")
        a("s_cselect_b32 s32, s32, s34")
        a("s_cselect_b32 s33, s33, s35")
        for hf, sr in ((0, 32), (1, 33)):
            a(f"s_lshl_b32 s53, s{sr}, 14")
            a("s_add_u32 s53, s53, s30")
            i = 2 * ks + hf
            a(f"buffer_load_dwordx4 v[{32+4*i}:{35+4*i}], v10, s[64:67], s53 offen nt")
    a("K12_noraw:   ; LINT-RESET")
    a("s_cmp_lg_u32 s25, 0")
    a("s_cbranch_scc1 K12_gbx")
    wsync(a, LF + 28, 4, 70, 40, add=False)
    a("s_mov_b64 exec, 1")
    a("v_mov_b32 v70, 0")
    a("s_mov_b32 s52, 0x200000")
    a("s_cmp_eq_u32 s51, 1")
    a("s_cbranch_scc1 K12_rdyx")
    a("K12_rdy:")
    a("global_load_dword v71, v70, s[18:19] sc1")
    a("s_waitcnt vmcnt(0)")
    a("v_readfirstlane_b32 s40, v71")
    a("s_sub_u32 s52, s52, 1")
    a("s_cmp_eq_u32 s52, 0")
    a("s_cbranch_scc1 K12_gbdone")
    a("s_cmp_eq_u32 s40, 1")
    a("s_cbranch_scc0 K12_rdy")
    a("K12_rdyx:")
    a("s_and_b32 s40, s2, 15")
    a("s_lshl_b32 s40, s40, 8")
    a(f"s_add_u32 s40, s40, {GBAR}")
    a("v_mov_b32 v70, s40")
    a("v_mov_b32 v71, 1")
    a("global_atomic_add v71, v70, v71, s[14:15] sc0 sc1")
    a("s_waitcnt vmcnt(0)")
    a("v_readfirstlane_b32 s40, v71")
    a("s_cmp_eq_u32 s40, 15")
    a("s_cbranch_scc0 K12_poll")
    if OPT.get("bar2", "1") == "1":
        a("s_mov_b64 exec, 0xff")
        a("v_lshlrev_b32 v70, 8, v1")
        a(f"v_add_u32 v70, {GBAR + 8192}, v70")
        a("v_mov_b32 v71, 1")
        a("global_atomic_add v70, v71, s[14:15] sc1")
        a("s_mov_b64 exec, 1")
    else:
        a(f"v_mov_b32 v70, {GBAR + 4096}")
        a("v_mov_b32 v71, 1")
        a("global_atomic_add v71, v70, v71, s[14:15] sc0 sc1")
        a("s_waitcnt vmcnt(0)")
        a("v_readfirstlane_b32 s40, v71")
        a("s_cmp_eq_u32 s40, 15")
        a("s_cbranch_scc0 K12_poll")
        a("s_mov_b64 exec, 0xff")
        a("v_lshlrev_b32 v70, 8, v1")
        a(f"v_add_u32 v70, {GBAR + 8192}, v70")
        a("v_mov_b32 v71, 1")
        a("global_store_dword v70, v71, s[14:15] sc1")
        a("s_mov_b64 exec, 1")
    a("K12_poll:")
    a("s_and_b32 s40, s2, 7")
    a("s_lshl_b32 s40, s40, 8")
    a(f"s_add_u32 s40, s40, {GBAR + 8192}")
    a("v_mov_b32 v70, s40")
    a("K12_poll2:")
    a("global_load_dword v71, v70, s[14:15] sc1")
    a("s_waitcnt vmcnt(0)")
    a("v_readfirstlane_b32 s40, v71")
    a("s_sub_u32 s52, s52, 1")
    a("s_cmp_eq_u32 s52, 0")
    a("s_cbranch_scc1 K12_gbdone")
    a(f"s_cmp_ge_u32 s40, {16 if OPT.get('bar2', '1') == '1' else 1}")
    a("s_cbranch_scc0 K12_poll2")
    a("K12_gbdone:")
    a("s_mov_b64 exec, -1")
    a("K12_gbx:   ; LINT-RESET")
    a(f"s_setprio {OPT.get('sprio', '0')}")
    a("s_barrier")
    stamp(a, 4)
    a("s_cmp_gt_u32 s26, 520")
    a("s_cbranch_scc1 K2_SIDE_IDLE")
    a("s_cmp_eq_u32 s26, 520")
    a("s_cbranch_scc1 K2_TAB")
    a("s_cmp_ge_u32 s26, 344")
    a("s_cbranch_scc1 K2_W2")
    if OPT.get("w1pre", "1") != "1":
        a.srd(64, 48, 512 * 1376 * 2)
        for i in range(4):
            a(f"buffer_load_dwordx4 v[{32+4*i}:{35+4*i}], v10, s[64:67], s53 offen")
            if i < 3: a(f"s_add_u32 s53, s53, {32*2752}")
    a("s_lshl_b32 s31, s28, 9")
    a("v_lshl_add_u32 v13, v1, 3, s31")
    a(f"v_add_u32 v13, {MODP + 3*2048}, v13")
    for q in range(4):
        a(f"global_load_dwordx2 v[{64+4*q}:{65+4*q}], v13, s[14:15] sc1")
        a(f"global_load_dwordx2 v[{66+4*q}:{67+4*q}], v13, s[14:15] offset:2048 sc1")
        if q < 3: a("v_add_u32 v13, 12288, v13")
    a("s_waitcnt vmcnt(8)")
    for i in range(4): a(f"ds_write_b128 v11, v[{32+4*i}:{35+4*i}] offset:{1024*i}")
    a("s_waitcnt vmcnt(0)")
    stamp(a, 5)
    for r in range(4):
        a(f"v_add_f32 v{64+r}, v{64+r}, v{68+r}")
        a(f"v_add_f32 v{72+r}, v{72+r}, v{76+r}")
        a(f"v_add_f32 v{64+r}, v{64+r}, v{72+r}")
    for r in range(4): rbf(a, 64 + r, 64 + r)
    a("v_add_f32 v66, 1.0, v66")
    a("v_add_f32 v67, 1.0, v67")
    rbf(a, 66, 66); rbf(a, 67, 67)
    a("v_cvt_pk_bf16_f32 v64, v64, v65")
    a("v_lshl_add_u32 v15, v1, 3, s27")
    a("v_lshl_add_u32 v16, v1, 2, s27")
    a("ds_write_b64 v15, v[66:67] offset:10240")
    a("ds_write_b32 v16, v64 offset:10752")
    a("v_and_b32 v17, 15, v1")
    a("v_cmp_eq_u32 s[50:51], 0, v17")
    a("v_cmp_eq_u32 s[52:53], 1, v17")
    a("v_mov_b32 v18, 0")
    a("v_mov_b32 v19, 0x3f803f80")
    a("v_cndmask_b32 v18, v18, v19, s[50:51]")
    a("v_mov_b32 v19, 0")
    a("v_cndmask_b32 v19, v19, -1, s[52:53]")
    a("v_lshl_add_u32 v24, v4, 4, s27")
    a("v_lshl_add_u32 v25, v4, 3, s27")
    for r in range(96, 112): a(f"v_mov_b32 v{r}, 0")
    a("s_lshl_b32 s30, s29, 10")
    a(f"s_mul_i32 s31, s28, {4*87*1024}")
    a("s_add_u32 s30, s30, s31")
    a(f"s_add_u32 s30, s30, {W1F}")
    a("v_lshl_add_u32 v26, v1, 4, s30")
    a("s_waitcnt lgkmcnt(0)")
    stamp(a, 6)
    def ureads(ks):
        B = 112 + 16 * ks
        out = [f"ds_read_b128 v[{B}:{B+3}], v24 offset:{10240 + 128*ks}",
               f"ds_read_b128 v[{B+4}:{B+7}], v24 offset:{10240 + 128*ks + 64}",
               f"ds_read_b64 v[{B+8}:{B+9}], v25 offset:{10752 + 64*ks}",
               f"ds_read_b64 v[{B+10}:{B+11}], v25 offset:{10752 + 64*ks + 32}"]
        for hf in range(2):
            out.append(f"ds_read_b64_tr_b16 v[{B+12+2*hf}:{B+13+2*hf}], v12 offset:{(32*ks+16*hf)*32}")
        return out
    for x in ureads(0) + ureads(1): a(x)
    for ks in range(4):
        B = 112 + 16 * ks
        a(f"s_waitcnt lgkmcnt({6 if ks < 3 else 0})")
        if ks + 2 < 4:
            for x in ureads(ks + 2): a(x)
        for q in range(4): a(f"v_and_or_b32 v{B+8+q}, v{B+8+q}, v19, v18")
        R = B + 12
        for q in range(4):
            a(f"v_lshlrev_b32 v{52+2*q}, 16, v{R+q}")
            a(f"v_and_b32 v{53+2*q}, 0xffff0000, v{R+q}")
        a(f"v_mfma_f32_16x16x32_bf16 v[96:99], v[{R}:{R+3}], v[{B+8}:{B+11}], v[96:99]")
        for q in range(8): a(f"v_mul_f32 v{52+q}, v{52+q}, v{B+q}")
        S = 60 + 4 * (ks & 1)
        for q in range(4): a(f"v_cvt_pk_bf16_f32 v{S+q}, v{52+2*q}, v{53+2*q}")
        a(f"global_store_dwordx4 v26, v[{S}:{S+3}], s[14:15]" + SC1)
        a(f"v_add_u32 v26, {87*1024}, v26")
        a("s_nop 0")
        a(f"v_mfma_f32_16x16x32_bf16 v[104:107], v[{S}:{S+3}], v[{B+8}:{B+11}], v[104:107]")
    stamp(a, 7)
    a(f"s_mul_i32 s30, s28, {3*5504}")
    a("s_lshl_b32 s31, s29, 6")
    a("s_add_u32 s30, s30, s31")
    a(f"s_add_u32 s30, s30, {SVP}")
    a("v_lshl_add_u32 v28, v4, 4, s30")
    a("v_add_u32 v29, 5504, v28")
    a("v_add_u32 v30, 5504, v29")
    a("s_nop 7")
    a("s_mov_b64 exec, s[50:51]")
    a("global_store_dwordx4 v28, v[104:107], s[14:15]" + SC1)
    a("global_store_dwordx4 v30, v[96:99], s[14:15]" + SC1)
    a("s_mov_b64 exec, s[52:53]")
    a("global_store_dwordx4 v29, v[96:99], s[14:15]" + SC1)
    a("s_mov_b64 exec, -1")
    a("s_branch K12_UDONE")
    a("K2_W2:   ; LINT-RESET")
    a("s_waitcnt vmcnt(0)")
    for i in range(8): a(f"ds_write_b128 v11, v[{32+4*i}:{35+4*i}] offset:{16*80*i}")
    a("s_lshr_b32 s30, s29, 1")
    a("s_mul_i32 s30, s30, 43")
    a("s_lshl_b32 s31, s28, 2")
    a("s_add_u32 s30, s30, s31")
    a("s_lshl_b32 s30, s30, 12")
    a("s_and_b32 s31, s29, 1")
    a("s_lshl_b32 s31, s31, 11")
    a("s_add_u32 s30, s30, s31")
    a(f"s_add_u32 s30, s30, {W2F}")
    a("v_lshl_add_u32 v26, v1, 4, s30")
    a("s_waitcnt lgkmcnt(0)")
    for ks in range(4):
        if ks == 3:
            a("s_cmp_eq_u32 s28, 10")
            a("s_cbranch_scc1 K12_UDONE")
        for nt in range(2):
            for hf in range(2):
                a(f"ds_read_b64_tr_b16 v[{44+4*nt+2*hf}:{45+4*nt+2*hf}], v12 offset:{(32*ks+16*hf)*80 + 32*nt}")
        a("s_waitcnt lgkmcnt(2)")
        a(f"global_store_dwordx4 v26, v[44:47], s[14:15]" + SC1)
        a("s_waitcnt lgkmcnt(0)")
        a(f"global_store_dwordx4 v26, v[48:51], s[14:15] offset:1024" + SC1)
        a("v_add_u32 v26, 4096, v26")
    a("s_branch K12_UDONE")
    a("K2_TAB:   ; LINT-RESET")
    a("v_lshlrev_b32 v2, 5, v1")
    a(f"v_add_u32 v2, {MODP + 3*2048}, v2")
    a("v_add_u32 v3, 4096, v2")
    for q in range(4):
        for k in range(3):
            r = 112 + 24 * q + 8 * k
            a(f"global_load_dwordx4 v[{r}:{r+3}], v2, s[14:15] offset:{2048*k if k < 2 else 0} sc1" if k < 2 else f"global_load_dwordx4 v[{r}:{r+3}], v3, s[14:15] sc1")
            a(f"global_load_dwordx4 v[{r+4}:{r+7}], v2, s[14:15] offset:{2048*k+16} sc1" if k < 2 else f"global_load_dwordx4 v[{r+4}:{r+7}], v3, s[14:15] offset:16 sc1")
        if q < 3:
            a("v_add_u32 v2, 12288, v2")
            a("v_add_u32 v3, 12288, v3")
    a("s_waitcnt vmcnt(0)")
    for j in range(24):
        a(f"v_add_f32 v{112+j}, v{112+j}, v{136+j}")
        a(f"v_add_f32 v{160+j}, v{160+j}, v{184+j}")
        a(f"v_add_f32 v{112+j}, v{112+j}, v{160+j}")
    for j in range(24): rbf(a, 112 + j, 112 + j)
    for j in range(8):
        a(f"v_mov_b32 v{32+j}, v{112+j}")
        a(f"v_mov_b32 v{40+j}, v{120+j}")
    a("v_lshlrev_b32 v3, 5, v1")
    a(f"v_add_u32 v3, {GBF}, v3")
    a("global_store_dwordx4 v3, v[128:131], s[14:15] sc1")
    a("global_store_dwordx4 v3, v[132:135], s[14:15] offset:16 sc1")
    for j in range(8): a(f"v_add_f32 v{40+j}, 1.0, v{40+j}")
    for j in range(8): rbf(a, 40 + j, 40 + j)
    for j in range(8): a(f"v_mul_f32 v{48+j}, v{40+j}, v{40+j}")
    for j in range(8): a(f"v_mul_f32 v{56+j}, v{40+j}, v{32+j}")
    a("v_lshlrev_b32 v3, 5, v1")
    a(f"v_add_u32 v3, {G2F}, v3")
    a("global_store_dwordx4 v3, v[48:51], s[14:15] sc1")
    a("global_store_dwordx4 v3, v[52:55], s[14:15] offset:16 sc1")
    for k, base in enumerate((40, 48, 56, 32)):
        a(f"v_add_f32 v{100+k}, v{base}, v{base+1}")
        for j in range(2, 8): a(f"v_add_f32 v{100+k}, v{100+k}, v{base+j}")
    a("v_mul_f32 v104, v32, v32")
    for j in range(1, 8): a(f"v_fmac_f32 v104, v{32+j}, v{32+j}")
    a("v_lshl_add_u32 v4, v1, 4, s27")
    a("v_mov_b32 v64, 0x3f803f80\nv_mov_b32 v65, 0x3f803f80\nv_mov_b32 v66, 0x3f803f80\nv_mov_b32 v67, 0x3f803f80")
    a("ds_write_b128 v4, v[64:67]")
    for q in range(4): a(f"v_cvt_pk_bf16_f32 v{68+q}, v{40+2*q}, v{41+2*q}")
    a("ds_write_b128 v4, v[68:71] offset:1024")
    for (src, row) in ((48, 2), (56, 4)):
        for q in range(4): a(f"v_cvt_pk_bf16_f32 v{72+q}, v{src+2*q}, v{src+2*q+1}")
        a(f"ds_write_b128 v4, v[72:75] offset:{1024*row}")
        for q in range(4):
            a(f"v_lshlrev_b32 v{80+2*q}, 16, v{72+q}")
            a(f"v_and_b32 v{81+2*q}, 0xffff0000, v{72+q}")
        for j in range(8): a(f"v_sub_f32 v{80+j}, v{src+j}, v{80+j}")
        for q in range(4): a(f"v_cvt_pk_bf16_f32 v{76+q}, v{80+2*q}, v{81+2*q}")
        a(f"ds_write_b128 v4, v[76:79] offset:{1024*(row+1)}")
    a("s_nop 1")
    for ctl in ("row_shr:1", "row_shr:2", "row_shr:4", "row_shr:8", "row_bcast:15 row_mask:0xa", "row_bcast:31 row_mask:0xc"):
        for r in range(100, 105):
            a(f"v_add_f32_dpp v{r}, v{r}, v{r} {ctl}")
    a(f"v_mov_b32 v5, {SCAL}")
    a("s_mov_b64 s[42:43], exec")
    a("s_mov_b64 exec, 0x8000000000000000") if False else None
    a("v_cmp_eq_u32 vcc, 63, v1")
    a("s_and_saveexec_b64 s[42:43], vcc")
    a("global_store_dwordx4 v5, v[100:103], s[14:15]" + SC1)
    a("global_store_dword v5, v104, s[14:15] offset:16" + SC1)
    a("s_mov_b64 exec, s[42:43]")
    a("v_and_b32 v6, 15, v1")
    a("v_lshrrev_b32 v7, 4, v1")
    a("v_min_u32 v8, 5, v6")
    a("v_lshlrev_b32 v8, 10, v8")
    a("v_lshl_add_u32 v8, v7, 3, v8")
    a("v_add_u32 v8, s27, v8")
    a("v_cmp_gt_u32 vcc, 6, v6")
    a("v_mov_b32 v9, 0")
    a("s_nop 0")
    a("v_cndmask_b32 v9, v9, -1, vcc")
    a(f"s_mov_b32 s30, {W1F + 86*1024}")
    a("v_lshl_add_u32 v10, v1, 4, s30")
    a("s_waitcnt lgkmcnt(0)")
    def tread(ks):
        R = 112 + 4 * ks
        return [f"ds_read_b64 v[{R}:{R+1}], v8 offset:{64*ks}", f"ds_read_b64 v[{R+2}:{R+3}], v8 offset:{64*ks+32}"]
    for ks in range(4):
        for x in tread(ks): a(x)
    for bt in range(4):
        if bt < 3:
            for ks in range(4 * bt + 4, 4 * bt + 7):
                for x in tread(ks): a(x)
            a("s_waitcnt lgkmcnt(6)")
            for x in tread(4 * bt + 7): a(x)
        else:
            a("s_waitcnt lgkmcnt(0)")
        for ks in range(4 * bt, 4 * bt + 4):
            R = 112 + 4 * ks
            for q in range(4): a(f"v_and_b32 v{R+q}, v{R+q}, v9")
            a(f"global_store_dwordx4 v10, v[{R}:{R+3}], s[14:15]" + SC1)
            a(f"v_add_u32 v10, {87*1024}, v10")
    a("s_branch K12_UDONE")
    a("K12_UDONE:   ; LINT-RESET")
    if OPT.get("wpf", "0") == "1":
        a("s_waitcnt vmcnt(0)")
        a(f"v_mov_b32 v2, {WCNT}")
        a("v_mov_b32 v3, 1")
        a("s_mov_b64 exec, 1")
        a("global_atomic_add v2, v3, s[14:15] sc1")
    a("s_branch K2_END")
    a("K2_SIDE_IDLE:   ; LINT-RESET")
    if OPT.get("wpf", "0") == "1":
        a("s_cmp_eq_u32 s25, 2")
        a("s_cbranch_scc0 K2_END")
        a(f"v_mov_b32 v2, {WCNT}")
        a("s_mov_b32 s52, 0x40000")
        a("s_mov_b64 exec, 1")
        a("K12_wpoll:")
        a("s_sleep 8")
        a("global_load_dword v3, v2, s[14:15] sc1")
        a("s_waitcnt vmcnt(0)")
        a("v_readfirstlane_b32 s40, v3")
        a("s_sub_u32 s52, s52, 1")
        a("s_cmp_eq_u32 s52, 0")
        a("s_cbranch_scc1 K12_wpx")
        a("s_cmp_ge_u32 s40, 521")
        a("s_cbranch_scc0 K12_wpoll")
        a("K12_wpx:")
        a("s_mov_b64 exec, -1")
        a("s_lshr_b32 s30, s2, 3")
        a("v_lshlrev_b32 v4, 7, v1")
        for (base, size, reg) in ((W1F, 87 * 16384, 44), (W2F, 8 * 43 * 4096, 48)):
            a(f"s_add_u32 s{reg}, s14, {base}")
            a(f"s_addc_u32 s{reg+1}, s15, 0")
            a(f"s_mov_b32 s{reg+2}, {size}")
            a(f"s_mov_b32 s{reg+3}, 0x20000")
            per = -(-size // 32 // 128) * 128
            a(f"s_mul_i32 s31, s30, {per}")
            n = -(-per // 8192)
            for k in range(n):
                a(f"buffer_load_dword v{8 + k + (8 if reg == 48 else 0)}, v4, s[{reg}:{reg+3}], s31 offen")
                if k + 1 < n: a("s_add_u32 s31, s31, 8192")
    a("K2_END:   ; LINT-RESET")
    stamp_store(a, 0, 14, 24)
    a("K2_EXIT:")
    a.end_kernel(name, 208, 100)

G2T = 65536
SVT = G2T + 2048
STT = SVT + 3072
COF = STT + 2048
RED = COF + 4096
P_W = 64 * 272
K3_LDS = RED + 4 * P_W
FLAGS = 0x0638000

def k3(a):
    name = "k3_kernel"
    a.begin_kernel(name, 256, 256, K3_LDS)
    a("s_cmp_ge_u32 s2, 256")
    a("s_cbranch_scc1 K3_EXIT")
    stamp(a, 0)
    a("s_load_dwordx2 s[14:15], s[0:1], 128")
    a("s_load_dwordx2 s[12:13], s[0:1], 72")
    a("s_load_dwordx2 s[16:17], s[0:1], 88")
    a("s_load_dwordx2 s[18:19], s[0:1], 112")
    wave_id(a, 24, 1)
    a("v_and_b32 v1, 63, v0")
    a("s_and_b32 s25, s2, 7")
    a("s_lshr_b32 s26, s2, 3")
    a("s_lshr_b32 s27, s26, 3")
    a("s_lshl_b32 s25, s25, 2")
    a("s_add_u32 s25, s25, s27")
    a("s_and_b32 s26, s26, 7")
    a("s_and_b32 s22, s25, 3")
    a("s_lshl_b32 s23, s22, 1")
    a("s_add_u32 s23, s23, s26")
    a("s_lshl_b32 s23, s23, 1")
    a("s_and_b32 s23, s23, 15")
    a("s_mul_i32 s22, s22, 3")
    a("s_add_u32 s22, s22, s26")
    a("s_sub_u32 s21, s22, 11")
    a("s_cmp_ge_u32 s22, 11")
    a("s_cselect_b32 s22, s21, s22")
    if OPT.get('rot', '0') != '1':
        a("s_mov_b32 s23, 0")
        a("s_mov_b32 s22, 0")
    a("s_mul_i32 s27, s26, 11")
    a("s_min_u32 s27, s27, 76")
    a("s_cmp_lt_u32 s26, 6")
    a("s_cselect_b32 s28, 11, 10")
    a("s_mul_i32 s29, s24, 3")
    for i in range(3):
        a(f"s_add_u32 s30, s29, {i}")
        a("s_add_u32 s31, s30, s27")
        a("s_cmp_lt_u32 s30, s28")
        a(f"s_cselect_b32 s{32+i}, s31, 86")
    a("v_lshrrev_b32 v10, 3, v1")
    a("v_and_b32 v11, 6, v10")
    a("v_and_b32 v12, 7, v1")
    a("v_xor_b32 v11, v11, v12")
    a("v_lshlrev_b32 v11, 4, v11")
    a("v_lshl_add_u32 v11, v10, 7, v11")
    a("s_lshl_b32 s41, s24, 10")
    a("s_lshl_b32 s42, s25, 16")
    a("s_add_u32 s41, s41, s42")
    a(f"s_add_u32 s41, s41, {X2T}")
    a("s_lshl_b32 s42, s24, 10")
    a("v_lshlrev_b32 v13, 4, v1")
    for i in range(3):
        a(f"s_lshl_b32 s30, s{32+i}, 10")
        a(f"v_add_u32 v{126+i}, s30, v13")
    a("s_mov_b32 s47, s23")
    a("s_lshl_b32 s46, s23, 12")
    a("v_lshrrev_b32 v3, 4, v1")
    a("v_and_b32 v6, 15, v1")
    a("v_mov_b32 v7, s32")
    a("v_mov_b32 v8, s33")
    a("v_mov_b32 v9, s34")
    a("v_cmp_eq_u32 vcc, 1, v3")
    a("v_cmp_le_u32 s[52:53], 2, v3")
    a("s_nop 0")
    a("v_cndmask_b32 v7, v7, v8, vcc")
    a("v_cndmask_b32 v7, v7, v9, s[52:53]")
    a("v_min_u32 v7, 85, v7")
    a("v_lshl_add_u32 v7, v7, 4, v6")
    a("v_lshlrev_b32 v8, 2, v7")
    a(f"v_add_u32 v8, {SVP}, v8")
    a("v_lshlrev_b32 v9, 1, v7")
    a("s_waitcnt lgkmcnt(0)")
    wsfix(a, 14)
    a.srd(8, 14, WS_USED)
    for j in range(16):
        a("s_mov_b32 m0, s42")
        a("s_add_u32 s45, s41, s46")
        a("s_add_u32 s42, s42, 4096")
        a(f"buffer_load_dwordx4 v11, s[8:11], s45 offen" + XLD + " lds")
        a("s_add_u32 s46, s46, 4096")
        a("s_and_b32 s46, s46, 0xffff")
    a("s_lshl_b32 s30, s24, 2")
    a("s_lshl_b32 s42, s24, 12")
    a(f"s_add_u32 s42, s42, {RED}")
    for j in range(4):
        a(f"s_add_u32 s31, s30, {j}")
        a("s_add_u32 s31, s31, s23")
        a("s_and_b32 s31, s31, 15")
        a(f"s_mul_i32 s31, s31, {87*1024}")
        a(f"s_add_u32 s31, s31, {W1F + 86*1024}")
        a("s_mov_b32 m0, s42")
        a("s_add_u32 s42, s42, 1024")
        a(f"buffer_load_dwordx4 v13, s[8:11], s31 offen lds")
    def wload(ks):
        out = []
        for i in range(3):
            r = (ks * 3 + i) * 4
            pre = f"s_mul_i32 s44, s47, {87*1024}\ns_add_u32 s44, s44, {W1F}\n" if i == 0 else ""
            post = "\ns_add_u32 s47, s47, 1\ns_and_b32 s47, s47, 15" if i == 2 else ""
            out.append(pre + f"buffer_load_dwordx4 a[{r}:{r+3}], v{126+i}, s[8:11], s44 offen" + WLD + post)
        return out
    PRE = min(int(OPT.get('pre', '6')), int(OPT.get('deep', '6')))
    for ks in range(PRE):
        for x in wload(ks): a(x)
    a(f"s_mov_b32 s30, {SCAL}")
    a("s_load_dwordx4 s[36:39], s[14:15], s30")
    a(f"s_mov_b32 s31, {SCAL+16}")
    a("s_load_dword s40, s[14:15], s31")
    a("v_bfe_u32 v14, v1, 2, 2")
    a("v_lshl_add_u32 v14, v3, 2, v14")
    a("v_and_b32 v15, 6, v14")
    a("v_lshrrev_b32 v15, 1, v15")
    a("v_and_b32 v29, 3, v1")
    a("v_lshlrev_b32 v30, 7, v14")
    a("v_lshl_add_u32 v30, v29, 3, v30")
    for k in range(4):
        a(f"s_add_u32 s30, s24, {k}")
        a(f"s_and_b32 s{48+k}, s30, 3")
        a(f"v_xor_b32 v31, s{48+k}, v15")
        a(f"v_lshl_add_u32 v{20+k}, v31, 5, v30")
    a("v_xor_b32 v31, s24, v15")
    a("v_lshl_add_u32 v26, v31, 5, v30")
    a("s_lshl_b32 s30, s26, 1")
    a("s_sub_u32 s30, s30, s23")
    a("s_add_u32 s31, s30, 1")
    a("s_and_b32 s30, s30, 15")
    a("s_and_b32 s31, s31, 15")
    a("s_lshl_b32 s30, s30, 12")
    a("s_lshl_b32 s31, s31, 12")
    a("v_add_u32 v125, s31, v26")
    a("v_add_u32 v26, s30, v26")
    a(f"v_add_u32 v24, {RED}, v13")
    ACC = 160
    for r in range(ACC, ACC + 48): a(f"v_mov_b32 v{r}, 0")
    for r in range(96, 108): a(f"v_mov_b32 v{r}, 0")
    a(f"s_waitcnt vmcnt({3*PRE}) lgkmcnt(0)")
    stamp(a, 1)
    a("s_barrier")
    XF = [32, 48]
    def xreads(ks):
        b = XF[ks & 1]
        out = []
        for k in range(4):
            for hf in range(2):
                out.append(f"ds_read_b64_tr_b16 v[{b+4*k+2*hf}:{b+4*k+2*hf+1}], v{20+k} offset:{4096*ks + 2048*hf}")
        return out
    STATS = OPT.get('stats', 'in')
    GQ = [64, 72]
    if STATS == 'in':
        for ks in range(PRE, int(OPT.get('deep', '6'))):
            for x in wload(ks): a(x)
    def greads(ks):
        g = GQ[ks & 1]
        return [f"ds_read_b128 v[{g}:{g+3}], v24 offset:{1024*ks}"]
    for x in xreads(0) + greads(0): a(x)
    DEEP = int(OPT.get('deep', '6'))
    a("s_mul_i32 s58, s24, 11")
    a("s_cmp_eq_u32 s24, 3")
    a("s_cselect_b32 s58, 32, s58")
    a("s_mul_i32 s59, s26, 43")
    a("s_add_u32 s59, s59, s58")
    a("s_lshl_b32 s59, s59, 12")
    a(f"s_add_u32 s59, s59, {W2F}")
    a.srd(60, 14, WS_USED)
    a("s_cmp_eq_u32 s24, 3")
    a("s_cselect_b32 s65, 0, s10")
    a("s_mov_b32 s64, s22")
    drip = []
    for j in range(11):
        for t in range(4):
            r = (j * 4 + t) * 4
            pre = "s_lshl_b32 s66, s64, 12\ns_add_u32 s66, s66, s59\ns_cmp_eq_u32 s64, 0\ns_cselect_b32 s62, s65, s10\n" if t == 0 else ""
            post = "\ns_add_u32 s64, s64, 1\ns_cmp_eq_u32 s64, 11\ns_cselect_b32 s64, 0, s64" if t == 3 else ""
            drip.append(pre + f"buffer_load_dwordx4 a[{r}:{r+3}], v13, s[60:63], s66 offen offset:{1024*t}" + WLD + post)
    a("s_lshl_b32 s30, s26, 8")
    a(f"s_add_u32 s30, s30, {GBF if FUSED else MODF + 5*2048}")
    a("v_lshl_add_u32 v27, v3, 4, s30")
    a("s_lshl_b32 s30, s26, 7")
    a("v_lshl_add_u32 v28, v3, 3, s30")
    gbl = []
    for dt in range(4):
        gbl.append(f"global_load_dwordx4 v[{208+4*dt}:{211+4*dt}], v27, s[14:15] offset:{64*dt}")
    for dt in range(4):
        gbl.append(f"global_load_dwordx2 v[{224+2*dt}:{225+2*dt}], v28, s[16:17] offset:{32*dt}")
    issued = DEEP
    vm_after = []
    seq = [("W", ks) for ks in range(DEEP) for _ in range(3)]
    def vmwait(tag):
        last = max(i for i, t in enumerate(seq) if t == tag)
        return len(seq) - 1 - last
    sm_done = False
    smalls = []
    for kq in range(4):
        for v in range(3):
            smalls.append(f"global_load_dword v{112+kq*3+v}, v8, s[14:15]")
            if not (kq == 3 and v == 2): smalls.append("v_add_u32 v8, 5504, v8")
    smalls.append("global_load_ushort v124, v9, s[12:13]")
    for ks in range(16):
        b = XF[ks & 1]
        a(f"s_waitcnt vmcnt({vmwait(('W', ks))}) lgkmcnt(0)")
        mf = []
        for i in range(3):
            r = (ks * 3 + i) * 4
            for k in range(4):
                d = ACC + (i * 4 + k) * 4
                mf.append(f"v_mfma_f32_16x16x32_bf16 v[{d}:{d+3}], a[{r}:{r+3}], v[{b+4*k}:{b+4*k+3}], v[{d}:{d+3}]")
        va = []
        if ks + 1 < 16: va += xreads(ks + 1) + greads(ks + 1)
        if issued < 16:
            va += wload(issued); seq += [("W", issued)] * 3; issued += 1
        elif not sm_done:
            sm_done = True
            va += smalls + gbl; seq += [("S", 0)] * 13 + [("G", 0)] * 8
        else:
            for _ in range(3):
                va.append(drip.pop(0)); seq.append(("W2", 0))
        for q in range(4):
            va.append(f"v_lshlrev_b32 v{80+2*q}, 16, v{b+q}")
            va.append(f"v_and_b32 v{81+2*q}, 0xffff0000, v{b+q}")
        for q in range(8):
            va.append(f"v_mul_f32 v{80+q}, v{80+q}, v{80+q}")
        for q in range(4):
            va.append(f"v_cvt_pk_bf16_f32 v{88+q}, v{80+2*q}, v{81+2*q}")
        if ks > 0:
            gp = GQ[(ks - 1) & 1]
            a(f"v_mfma_f32_16x16x32_bf16 v[96:99], v[{gp}:{gp+3}], v[88:91], v[96:99]")
        per = -(-len(va) // 12)
        vi = 0
        for m in mf:
            a(m)
            for _ in range(per):
                if vi < len(va): a(va[vi]); vi += 1
    a("s_nop 1")
    a(f"v_mfma_f32_16x16x32_bf16 v[96:99], v[{GQ[1]}:{GQ[1]+3}], v[88:91], v[96:99]")
    stamp(a, 2)
    KEEP = int(OPT.get('keep', '0'))
    def dr(n=1, final=False):
        for _ in range(n):
            if drip and (final or len(drip) > KEEP): a(drip.pop(0))
    a(f"s_waitcnt vmcnt({vmwait(('S', 0))})")
    dr(1)
    for v in range(3):
        a(f"v_add_f32 v{112+v}, v{112+v}, v{115+v}")
        a(f"v_add_f32 v{118+v}, v{118+v}, v{121+v}")
        a(f"v_add_f32 v{112+v}, v{112+v}, v{118+v}")
    a("v_lshlrev_b32 v124, 16, v124")
    dr(2)
    a("s_mul_i32 s30, s24, 768")
    a(f"s_add_u32 s30, s30, {SVT}")
    a("v_lshlrev_b32 v2, 8, v3")
    a("v_lshl_add_u32 v2, v6, 2, v2")
    a("v_add_u32 v2, s30, v2")
    a("v_cmp_gt_u32 vcc, 48, v1")
    a("s_and_saveexec_b64 s[42:43], vcc")
    a("ds_write_b32 v2, v112")
    a("ds_write_b32 v2, v114 offset:64")
    a("ds_write_b32 v2, v113 offset:128")
    a("ds_write_b32 v2, v124 offset:192")
    a("s_mov_b64 exec, s[42:43]")
    dr(2)
    a("s_lshl_b32 s30, s24, 9")
    a(f"s_add_u32 s30, s30, {STT}")
    a("v_lshl_add_u32 v2, v6, 5, s30")
    a("v_add_f32 v97, v98, v99")
    a("v_cmp_eq_u32 vcc, 0, v3")
    a("s_and_saveexec_b64 s[42:43], vcc")
    a("ds_write_b64 v2, v[96:97] offset:24")
    a("s_mov_b64 exec, s[42:43]")
    a("s_cmp_eq_u32 s24, 3")
    a("s_cbranch_scc0 K3_nolin")
    a("v_cmp_eq_u32 s[52:53], 0, v3")
    a("v_cmp_eq_u32 s[54:55], 1, v3")
    for k in range(4):
        a(f"s_lshl_b32 s30, s{48+k}, 9")
        a(f"s_add_u32 s30, s30, {STT}")
        a(f"v_lshl_add_u32 v{60+k}, v6, 5, s30")
    a("s_mov_b64 s[42:43], exec")
    a("s_mov_b64 exec, s[52:53]")
    for k in range(4):
        d = ACC + (8 + k) * 4
        a(f"ds_write_b128 v{60+k}, v[{d}:{d+3}]")
    a("s_mov_b64 exec, s[54:55]")
    for k in range(4):
        d = ACC + (8 + k) * 4
        a(f"ds_write_b64 v{60+k}, v[{d}:{d+1}] offset:16")
    a("s_mov_b64 exec, s[42:43]")
    a("K3_nolin:")
    dr(2)
    a("s_waitcnt lgkmcnt(0)")
    a("s_barrier")
    dr(2)
    a("v_lshlrev_b32 v2, 5, v1")
    a(f"v_add_u32 v2, {STT}, v2")
    a("ds_read_b128 v[32:35], v2")
    a("ds_read_b128 v[36:39], v2 offset:16")
    a("s_mul_i32 s30, s24, 768")
    a(f"s_add_u32 s30, s30, {SVT}")
    a("v_lshl_add_u32 v25, v3, 4, s30")
    a("s_mov_b32 s56, 0xbdd2d3e2")
    a("s_mov_b32 s57, 0xc0135761")
    a("s_waitcnt lgkmcnt(0)")
    a("v_add_f32 v34, v34, v35")
    a("v_add_f32 v36, v36, v37")
    a("v_mul_f32 v32, 0x3b000000, v32")
    a("v_mul_f32 v38, 0x3b000000, v38")
    a("v_fma_f32 v38, -v32, v32, v38")
    a("v_max_f32 v38, 0, v38")
    a("v_cvt_pk_bf16_f32 v40, v32, v38")
    a("v_lshlrev_b32 v32, 16, v40")
    a("v_and_b32 v38, 0xffff0000, v40")
    a("v_add_f32 v38, 0x3727c5ac, v38")
    rbf(a, 38, 38)
    a("v_sqrt_f32 v38, v38")
    a("v_fma_f32 v33, -v32, s36, v33")
    dr(2)
    rbf(a, 38, 38)
    a("v_rcp_f32 v38, v38")
    a("v_mul_f32 v40, v32, v32")
    a("v_add_f32 v41, v32, v32")
    a("v_fma_f32 v39, -v41, v34, v39")
    a("v_fma_f32 v39, v40, s37, v39")
    a("v_fma_f32 v36, -v32, s38, v36")
    a("v_fma_f32 v33, v33, v38, s39")
    a("v_add_f32 v36, v36, v36")
    a("v_fma_f32 v39, v39, v38, v36")
    a("v_mul_f32 v33, 0x3b000000, v33")
    dr(2)
    a("v_fma_f32 v39, v39, v38, s40")
    a("v_mul_f32 v39, 0x3b000000, v39")
    a("v_fma_f32 v39, -v33, v33, v39")
    a("v_max_f32 v39, 0, v39")
    a("v_cvt_pk_bf16_f32 v40, v33, v39")
    a("v_lshlrev_b32 v33, 16, v40")
    a("v_and_b32 v39, 0xffff0000, v40")
    a("v_add_f32 v39, 0x3727c5ac, v39")
    rbf(a, 39, 39)
    a("v_sqrt_f32 v39, v39")
    a("s_nop 0")
    rbf(a, 39, 39)
    a("v_rcp_f32 v47, v39")
    a("s_lshl_b32 s30, s24, 10")
    a(f"s_add_u32 s30, s30, {COF}")
    a("v_mul_f32 v44, v47, v38")
    a("v_mul_f32 v46, -v47, v33")
    a("v_mul_f32 v45, -v44, v32")
    a("v_lshl_add_u32 v2, v1, 4, s30")
    a("ds_write_b128 v2, v[44:47]")
    a("s_waitcnt lgkmcnt(0)")
    for k in range(4):
        a(f"s_lshl_b32 s31, s{48+k}, 8")
        a("s_add_u32 s31, s31, s30")
        a(f"v_lshl_add_u32 v2, v6, 4, s31")
        a(f"ds_read_b128 v[{48+4*k}:{51+4*k}], v2")
    SVR = [64, 128, 144]
    for i in range(3):
        for st in range(4):
            a(f"ds_read_b128 v[{SVR[i]+4*st}:{SVR[i]+4*st+3}], v25 offset:{256*i + 64*st}")
    dr(2)
    stamp(a, 3)
    a("s_waitcnt lgkmcnt(0)")
    for i in range(3):
        if i > 0 and OPT.get('x_nodrip') != '1': dr(4)
        a(f"s_cmp_eq_u32 s{32+i}, 86")
        a(f"s_cbranch_scc1 K3_skip{i}")
        SV = SVR[i]
        a(f"s_add_u32 s30, s29, {i}")
        a("s_lshr_b32 s31, s30, 1")
        a("s_lshl_b32 s31, s31, 12")
        a("s_and_b32 s30, s30, 1")
        a("s_lshl_b32 s30, s30, 3")
        a("s_add_u32 s30, s30, s31")
        a(f"s_add_u32 s30, s30, {RED}")
        A_ = ACC + i * 16
        for k in range(4):
            c = 48 + 4 * k
            for p in range(2):
                t = 96 + 4 * k + 2 * p
                a(f"v_pk_fma_f32 v[{t}:{t+1}], v[{SV+2*p}:{SV+1+2*p}], v[{c}:{c+1}], v[{SV+12+2*p}:{SV+13+2*p}] op_sel:[0,1,0] op_sel_hi:[1,1,1]")
        if i == 0 and OPT.get('x_nodrip') != '1': dr(2)
        for k in range(4):
            c = 48 + 4 * k
            for p in range(2):
                t = 96 + 4 * k + 2 * p
                a(f"v_pk_fma_f32 v[{t}:{t+1}], v[{SV+4+2*p}:{SV+5+2*p}], v[{c+2}:{c+3}], v[{t}:{t+1}] op_sel_hi:[1,0,1]")
        if i == 0 and OPT.get('x_nodrip') != '1': dr(2)
        for k in range(4):
            c = 48 + 4 * k
            for p in range(2):
                t = 96 + 4 * k + 2 * p
                a(f"v_pk_fma_f32 v[{t}:{t+1}], v[{SV+8+2*p}:{SV+9+2*p}], v[{c+2}:{c+3}], v[{t}:{t+1}] op_sel:[0,1,0] op_sel_hi:[1,1,1]")
        if i == 0 and OPT.get('x_nodrip') != '1': dr(2)
        for k in range(4):
            c = 48 + 4 * k
            for p in range(2):
                x = A_ + 4 * k + 2 * p; t = 96 + 4 * k + 2 * p
                a(f"v_pk_fma_f32 v[{x}:{x+1}], v[{x}:{x+1}], v[{c}:{c+1}], v[{t}:{t+1}] op_sel_hi:[1,0,1]")
        if i == 0 and OPT.get('x_nodrip') != '1': dr(2)
        for j in range(8):
            x = A_ + 2 * j; t = 96 + 2 * j
            a(f"v_pk_mul_f32 v[{t}:{t+1}], v[{x}:{x+1}], v[{x}:{x+1}]")
        for j in range(8):
            t = 96 + 2 * j
            a(f"v_pk_fma_f32 v[{t}:{t+1}], v[{t}:{t+1}], s[56:57], s[56:57] op_sel:[0,0,1] op_sel_hi:[1,0,1]")
        if i == 0 and OPT.get('x_nodrip') != '1': dr(2)
        for j in range(8):
            x = A_ + 2 * j; t = 96 + 2 * j
            a(f"v_pk_mul_f32 v[{t}:{t+1}], v[{t}:{t+1}], v[{x}:{x+1}]")
        for j in range(16): a(f"v_exp_f32 v{96+j}, v{96+j}")
        if i == 0 and OPT.get('x_nodrip') != '1': dr(3)
        for j in range(8):
            t = 96 + 2 * j
            a(f"v_pk_add_f32 v[{t}:{t+1}], v[{t}:{t+1}], 1.0 op_sel_hi:[1,0]")
        for j in range(16): a(f"v_rcp_f32 v{96+j}, v{96+j}")
        if i == 0 and OPT.get('x_nodrip') != '1': dr(3)
        for j in range(8):
            x = A_ + 2 * j; t = 96 + 2 * j
            a(f"v_pk_mul_f32 v[{x}:{x+1}], v[{x}:{x+1}], v[{t}:{t+1}]")
        for k in range(4):
            a(f"v_cvt_pk_bf16_f32 v{112+2*k}, v{A_+4*k}, v{A_+4*k+1}")
            a(f"v_cvt_pk_bf16_f32 v{113+2*k}, v{A_+4*k+2}, v{A_+4*k+3}")
        if i == 1:
            a("s_cmp_eq_u32 s29, 9")
            a("s_cbranch_scc0 K3_paired1")
            a("s_lshr_b32 s31, s26, 1")
            a("s_add_u32 s31, s31, 40")
            a("s_mul_i32 s43, s25, 43")
            a("s_add_u32 s31, s31, s43")
            a("s_lshl_b32 s31, s31, 12")
            a("s_and_b32 s43, s26, 1")
            a("s_lshl_b32 s43, s43, 3")
            a("s_add_u32 s31, s31, s43")
            a(f"s_add_u32 s31, s31, {HF}")
            for k in range(4):
                a(f"s_lshl_b32 s43, s{48+k}, 10")
                a("s_add_u32 s43, s43, s31")
                a(f"buffer_store_dwordx2 v[{112+2*k}:{113+2*k}], v13, s[8:11], s43 offen sc1")
            a("s_branch K3_skip1")
            a("K3_paired1:")
        for k in range(4):
            a(f"s_lshl_b32 s31, s{48+k}, 10")
            a("s_add_u32 s31, s31, s30")
            a(f"v_add_u32 v2, s31, v13")
            a(f"ds_write_b64 v2, v[{112+2*k}:{113+2*k}]")
        a(f"K3_skip{i}:   ; LINT-RESET")
    stamp(a, 9)
    dr(99)
    a("s_waitcnt lgkmcnt(0)")
    a("s_barrier")
    stamp(a, 4)
    a("s_mul_i32 s30, s24, 5120")
    a("v_add_u32 v2, s30, v13")
    a(f"v_add_u32 v2, {RED}, v2")
    for q in range(5): a(f"ds_read_b128 v[{32+4*q}:{35+4*q}], v2 offset:{1024*q}")
    a("s_mul_i32 s31, s25, 43")
    a("s_mul_i32 s43, s26, 5")
    a("s_add_u32 s31, s31, s43")
    a("s_lshl_b32 s31, s31, 12")
    a("s_add_u32 s31, s31, s30")
    a(f"s_add_u32 s31, s31, {HF}")
    for q in range(5):
        a(f"s_waitcnt lgkmcnt({4-q})")
        if q == 4: a("s_add_u32 s31, s31, 4096")
        a(f"buffer_store_dwordx4 v[{32+4*q}:{35+4*q}], v13, s[8:11], s31 offen offset:{1024*(q&3)} sc1")
    for r in range(176, 240): a(f"v_accvgpr_write_b32 a{r}, 0")
    a(f"s_waitcnt vmcnt(0)")
    stamp(a, 5)
    a("s_barrier")
    a("s_cmp_lg_u32 s24, 0")
    a("s_cbranch_scc1 K3_wait")
    a("s_lshl_b32 s30, s25, 7")
    a(f"s_add_u32 s30, s30, {FLAGS}")
    a("v_mov_b32 v2, s30")
    a("v_mov_b32 v4, 1")
    a("s_mov_b64 s[42:43], exec")
    a("s_mov_b64 exec, 1")
    a("global_atomic_add v4, v2, v4, s[14:15] sc0 sc1")
    a("s_waitcnt vmcnt(0)")
    a("v_readfirstlane_b32 s30, v4")
    a("s_cmp_eq_u32 s30, 7")
    a("s_cbranch_scc1 K3_pollx")
    a("s_mov_b32 s31, 0x100000")
    a("K3_poll:")
    a("buffer_load_dword v5, v2, s[8:11], 0 offen sc1")
    a("s_waitcnt vmcnt(0)")
    a("v_readfirstlane_b32 s30, v5")
    a("s_sub_u32 s31, s31, 1")
    a("s_cmp_eq_u32 s31, 0")
    a("s_cbranch_scc1 K3_pollx")
    a("s_cmp_ge_u32 s30, 8")
    a("s_cbranch_scc0 K3_poll")
    a("K3_pollx:")
    a("s_mov_b64 exec, s[42:43]")
    a("K3_wait:   ; LINT-RESET")
    a("s_barrier")
    stamp(a, 6)
    a("s_mul_i32 s57, s25, 43")
    a("s_add_u32 s57, s57, s58")
    a("s_lshl_b32 s57, s57, 12")
    a(f"s_add_u32 s57, s57, {HF}")
    a("s_mov_b32 s64, s22")
    late = list(drip); drip.clear()
    hl = []
    for j in range(11):
        for t in range(4):
            r = 32 + (j * 4 + t) * 4
            pre = "s_lshl_b32 s56, s64, 12\ns_add_u32 s56, s56, s57\n" if t == 0 else ""
            post = "\ns_add_u32 s64, s64, 1\ns_cmp_eq_u32 s64, 11\ns_cselect_b32 s64, 0, s64" if t == 3 else ""
            hl.append((("H", j), pre + f"buffer_load_dwordx4 v[{r}:{r+3}], v13, s[8:11], s56 offen offset:{1024*t}" + HLD + post))
    pos = 20
    lt_ = [(("L", 0), x) for x in late]
    hl = hl[:pos] + lt_ + hl[pos:]
    HD = int(OPT.get('hd', '16'))
    qseq = []
    def hissue():
        tag, x = hl.pop(0); a(x); qseq.append(tag)
    for _ in range(HD): hissue()
    for dt in range(4):
        a(f"ds_read_b64_tr_b16 v[{16+2*dt}:{17+2*dt}], v{26 if dt < 2 else 125} offset:{2048*(dt&1)}")
    for j in range(11):
        need = [i for i, t in enumerate(qseq) if t == ("H", j)]
        assert len(need) == 4
        last = max(need)
        if late and j >= 9: last = max(last, max(i for i, t in enumerate(qseq) if t == ("L", 0)))
        a(f"s_waitcnt vmcnt({len(qseq) - 1 - last})")
        q = 0
        for dt in range(4):
            for lt in range(4):
                d = 176 + (dt * 4 + lt) * 4
                ar = (j * 4 + dt) * 4
                br = 32 + (j * 4 + lt) * 4
                a(f"v_mfma_f32_16x16x32_bf16 a[{d}:{d+3}], a[{ar}:{ar+3}], v[{br}:{br+3}], a[{d}:{d+3}]")
                if q % 4 == 0 and hl: hissue()
                q += 1
    stamp(a, 7)
    a("v_mul_u32_u24 v5, 272, v6")
    a("v_lshl_add_u32 v5, v3, 4, v5")
    a(f"s_mul_i32 s30, s24, {P_W}")
    a(f"s_add_u32 s30, s30, {RED}")
    a("v_add_u32 v7, s30, v5")
    a("s_nop 4")
    for dt in range(4):
        for lt in range(4):
            d = 176 + (dt * 4 + lt) * 4
            a(f"ds_write_b128 v7, a[{d}:{d+3}] offset:{lt*16*272 + dt*64}")
    a(f"s_mul_i32 s30, s24, {16*272}")
    a(f"s_add_u32 s30, s30, {RED}")
    a("v_add_u32 v7, s30, v5")
    a("s_waitcnt lgkmcnt(0)")
    a("s_barrier")
    stamp(a, 8)
    for dt in range(4):
        for w in range(4):
            r = 32 + (dt * 4 + w) * 4
            a(f"ds_read_b128 v[{r}:{r+3}], v7 offset:{w*P_W + dt*64}")
    a.srd(40, 18, 2048 * 512 * 2)
    a("s_lshl_b32 s30, s25, 16")
    a("s_lshl_b32 s31, s24, 14")
    a("s_add_u32 s30, s30, s31")
    a("s_lshl_b32 s31, s26, 7")
    a("s_add_u32 s30, s30, s31")
    a("v_lshlrev_b32 v9, 10, v6")
    a("v_lshl_add_u32 v9, v3, 3, v9")
    a("v_add_u32 v9, s30, v9")
    for dt in range(4):
        a(f"s_waitcnt lgkmcnt({4*(3-dt)})")
        r = 32 + dt * 16
        for p in range(2):
            a(f"v_pk_add_f32 v[{r+2*p}:{r+2*p+1}], v[{r+2*p}:{r+2*p+1}], v[{r+4+2*p}:{r+5+2*p}]")
            a(f"v_pk_add_f32 v[{r+8+2*p}:{r+9+2*p}], v[{r+8+2*p}:{r+9+2*p}], v[{r+12+2*p}:{r+13+2*p}]")
        for p in range(2):
            a(f"v_pk_add_f32 v[{r+2*p}:{r+2*p+1}], v[{r+2*p}:{r+2*p+1}], v[{r+8+2*p}:{r+9+2*p}]")
        for q in range(2):
            a(f"v_lshlrev_b32 v{120+2*q}, 16, v{224+2*dt+q}")
            a(f"v_and_b32 v{121+2*q}, 0xffff0000, v{224+2*dt+q}")
            a(f"v_lshlrev_b32 v{124+2*q}, 16, v{16+2*dt+q}")
            a(f"v_and_b32 v{125+2*q}, 0xffff0000, v{16+2*dt+q}")
        for p in range(2):
            a(f"v_pk_add_f32 v[{r+2*p}:{r+2*p+1}], v[{r+2*p}:{r+2*p+1}], v[{120+2*p}:{121+2*p}]")
        for p in range(2):
            a(f"v_pk_fma_f32 v[{r+2*p}:{r+2*p+1}], v[{r+2*p}:{r+2*p+1}], v[{208+4*dt+2*p}:{209+4*dt+2*p}], v[{124+2*p}:{125+2*p}]")
        a(f"v_cvt_pk_bf16_f32 v{24+2*dt}, v{r}, v{r+1}")
        a(f"v_cvt_pk_bf16_f32 v{25+2*dt}, v{r+2}, v{r+3}")
        a(f"buffer_store_dwordx2 v[{24+2*dt}:{25+2*dt}], v9, s[40:43], 0 offen offset:{32*dt}")
    a("K3_END:   ; LINT-RESET")
    stamp_store(a, KID3, 14, 24)
    a("K3_EXIT:")
    a.end_kernel(name, 256 + 240, 100, accum=256)


W8_G2T = 65536
W8_SVT = W8_G2T + 2048
W8_STT = W8_SVT + 3072
W8_COF = W8_STT + 4096
W8_RED = W8_COF + 8192
W8_STG = W8_RED + 49152
W8_LDS = W8_RED + 4 * P_W
assert W8_STG + 20480 <= W8_LDS
RING = 32768

def k3w(a):
    name = "k3_kernel"
    a.begin_kernel(name, 256, 512, W8_LDS)
    a("s_cmp_ge_u32 s2, 256")
    a("s_cbranch_scc1 K3_EXIT")
    stamp(a, 0)
    a("s_load_dwordx2 s[14:15], s[0:1], 128")
    a("s_load_dwordx2 s[12:13], s[0:1], 72")
    a("s_load_dwordx2 s[16:17], s[0:1], 88")
    a("s_load_dwordx2 s[18:19], s[0:1], 112")
    wave_id(a, 24, 1)
    a("v_and_b32 v1, 63, v0")
    a("s_and_b32 s20, s24, 3")
    a("s_lshr_b32 s21, s24, 2")
    a("s_and_b32 s25, s2, 7")
    a("s_lshr_b32 s26, s2, 3")
    a("s_lshr_b32 s27, s26, 3")
    a("s_lshl_b32 s25, s25, 2")
    a("s_add_u32 s25, s25, s27")
    a("s_and_b32 s26, s26, 7")
    a("s_mul_i32 s27, s26, 11")
    a("s_min_u32 s27, s27, 76")
    a("s_cmp_lt_u32 s26, 6")
    a("s_cselect_b32 s28, 11, 10")
    a("s_mul_i32 s29, s20, 3")
    for i in range(3):
        a(f"s_add_u32 s30, s29, {i}")
        a("s_add_u32 s31, s30, s27")
        a("s_cmp_lt_u32 s30, s28")
        a(f"s_cselect_b32 s{32+i}, s31, 86")
    a("v_lshrrev_b32 v10, 3, v1")
    a("v_and_b32 v11, 6, v10")
    a("v_and_b32 v12, 7, v1")
    a("v_xor_b32 v11, v11, v12")
    a("v_lshlrev_b32 v11, 4, v11")
    a("v_lshl_add_u32 v11, v10, 7, v11")
    a("s_lshl_b32 s42, s24, 10")
    a("s_lshl_b32 s41, s25, 16")
    a("s_add_u32 s41, s41, s42")
    a(f"s_add_u32 s41, s41, {X2T}")
    a("v_lshlrev_b32 v2, 2, v0")
    a(f"v_add_u32 v4, {G2F}, v2")
    a("v_lshlrev_b32 v13, 4, v1")
    for i in range(3):
        a(f"s_lshl_b32 s30, s{32+i}, 10")
        a(f"v_add_u32 v{14+i}, s30, v13")
    a(f"s_mul_i32 s44, s21, {8*87*1024}")
    a(f"s_add_u32 s44, s44, {W1F}")
    a("s_waitcnt lgkmcnt(0)")
    wsfix(a, 14)
    a.srd(8, 14, WS_USED)
    a("global_load_dword v5, v4, s[14:15]")
    for j in range(8):
        a("s_mov_b32 m0, s42")
        a("s_add_u32 s42, s42, 8192")
        a(f"buffer_load_dwordx4 v11, s[8:11], s41 offen lds")
        a(f"s_add_u32 s41, s41, 8192")
    WR = 208
    DEEP = 3
    def wload(j):
        out = []
        for i in range(3):
            r = WR + (j % DEEP) * 12 + 4 * i
            out.append(f"buffer_load_dwordx4 v[{r}:{r+3}], v{14+i}, s[8:11], s44 offen")
        out.append(f"s_add_u32 s44, s44, {87*1024}")
        return out
    for j in range(2):
        for x in wload(j): a(x)
    a(f"s_mov_b32 s30, {SCAL}")
    a("s_load_dwordx4 s[36:39], s[14:15], s30")
    a(f"s_mov_b32 s31, {SCAL+16}")
    a("s_load_dword s40, s[14:15], s31")
    a("v_lshrrev_b32 v3, 4, v1")
    a("v_and_b32 v6, 15, v1")
    a("v_bfe_u32 v18, v1, 2, 2")
    a("v_lshl_add_u32 v18, v3, 2, v18")
    a("v_and_b32 v19, 6, v18")
    a("v_lshrrev_b32 v19, 1, v19")
    a("v_and_b32 v29, 3, v1")
    a("v_lshlrev_b32 v30, 7, v18")
    a("v_lshl_add_u32 v30, v29, 3, v30")
    a("s_lshl_b32 s45, s21, 15")
    a("s_lshl_b32 s46, s21, 1")
    a("s_add_u32 s46, s46, s20")
    for k in range(4):
        a(f"s_add_u32 s30, s46, {k}")
        a(f"s_and_b32 s{48+k}, s30, 3")
        a(f"v_xor_b32 v31, s{48+k}, v19")
        a(f"v_lshl_add_u32 v{20+k}, v31, 5, v30")
        a(f"v_add_u32 v{20+k}, s45, v{20+k}")
    a("v_xor_b32 v31, s20, v19")
    a("v_lshl_add_u32 v26, v31, 5, v30")
    a("s_lshl_b32 s30, s26, 13")
    a("s_lshl_b32 s31, s21, 12")
    a("s_add_u32 s30, s30, s31")
    a("v_add_u32 v26, s30, v26")
    a("s_lshl_b32 s30, s21, 10")
    a(f"s_add_u32 s30, s30, {W8_G2T}")
    a("v_lshl_add_u32 v24, v3, 4, s30")
    ACC = 160
    for r in range(ACC, ACC + 48): a(f"v_mov_b32 v{r}, 0")
    for r in range(96, 108): a(f"v_mov_b32 v{r}, 0")
    a("s_waitcnt vmcnt(14)")
    a(f"v_add_u32 v2, {W8_G2T}, v2")
    a("ds_write_b32 v2, v5")
    a("v_mov_b32 v7, s32")
    a("v_mov_b32 v8, s33")
    a("v_mov_b32 v9, s34")
    a("v_cmp_eq_u32 vcc, 1, v3")
    a("v_cmp_le_u32 s[52:53], 2, v3")
    a("s_nop 0")
    a("v_cndmask_b32 v7, v7, v8, vcc")
    a("v_cndmask_b32 v7, v7, v9, s[52:53]")
    a("v_min_u32 v7, 85, v7")
    a("v_lshl_add_u32 v7, v7, 4, v6")
    a("v_lshlrev_b32 v8, 2, v7")
    a(f"v_add_u32 v8, {SVP}, v8")
    a("v_lshlrev_b32 v9, 1, v7")
    a("s_mul_i32 s58, s20, 11")
    a("s_cmp_eq_u32 s20, 3")
    a("s_cselect_b32 s58, 32, s58")
    a("s_mul_i32 s59, s26, 43")
    a("s_add_u32 s59, s59, s58")
    a("s_lshl_b32 s59, s59, 12")
    a("s_lshl_b32 s30, s21, 11")
    a("s_add_u32 s59, s59, s30")
    a(f"s_add_u32 s59, s59, {W2F}")
    a.srd(60, 14, WS_USED)
    a("s_cmp_eq_u32 s20, 3")
    a("s_cselect_b32 s62, 0, s10")
    W2R = 108
    def w2reg(j, t):
        idx = 2 * j + t
        return 208 + 4 * idx if idx < 9 else 108 + 4 * (idx - 9)
    drip = []
    items = [(j, t) for j in range(11) for t in range(2)]
    s59off = {}
    late = [it for it in items if 2 * it[0] + it[1] < 9]
    early = [it for it in items if 2 * it[0] + it[1] >= 9]
    for (j, t) in early + late:
        srd = "s[60:63]" if j == 0 else "s[8:11]"
        r = w2reg(j, t)
        drip.append(f"s_add_u32 s57, s59, {4096*j}\nbuffer_load_dwordx4 v[{r}:{r+3}], v13, {srd}, s57 offen offset:{1024*t}")
    a("s_lshl_b32 s30, s26, 8")
    a("s_lshl_b32 s31, s21, 7")
    a("s_add_u32 s30, s30, s31")
    a(f"s_add_u32 s30, s30, {GBF}")
    a("v_lshl_add_u32 v27, v3, 4, s30")
    a("s_lshl_b32 s30, s26, 7")
    a("s_lshl_b32 s31, s21, 6")
    a("s_add_u32 s30, s30, s31")
    a("v_lshl_add_u32 v28, v3, 3, s30")
    gbl = [f"global_load_dwordx4 v[{244+4*t}:{247+4*t}], v27, s[14:15] offset:{64*t}" for t in range(2)]
    gbl += [f"global_load_dwordx2 v[{252+2*t}:{253+2*t}], v28, s[16:17] offset:{32*t}" for t in range(2)]
    a(f"s_waitcnt vmcnt(6) lgkmcnt(0)")
    stamp(a, 1)
    a("s_barrier")
    XF = [32, 48]
    GQ = [64, 72]
    def xreads(j):
        b = XF[j & 1]; g = GQ[j & 1]
        out = []
        for k in range(4):
            for hf in range(2):
                out.append(f"ds_read_b64_tr_b16 v[{b+4*k+2*hf}:{b+4*k+2*hf+1}], v{20+k} offset:{4096*j + 2048*hf}")
        out.append(f"ds_read_b128 v[{g}:{g+3}], v24 offset:{128*j}")
        out.append(f"ds_read_b128 v[{g+4}:{g+7}], v24 offset:{128*j+64}")
        return out
    for x in xreads(0): a(x)
    for x in wload(2): a(x)
    seq = [("W", j) for j in range(3) for _ in range(3)]
    def vmwait(tag):
        last = max(i for i, t in enumerate(seq) if t == tag)
        return len(seq) - 1 - last
    smalls = []
    for kq in range(4):
        for v in range(3):
            smalls.append(f"global_load_dword v{112+kq*3+v}, v8, s[14:15]")
            if not (kq == 3 and v == 2): smalls.append("v_add_u32 v8, 5504, v8")
    smalls.append("global_load_ushort v124, v9, s[12:13]")
    issued = 3
    for j in range(8):
        b = XF[j & 1]; g = GQ[j & 1]
        a(f"s_waitcnt vmcnt({vmwait(('W', j))}) lgkmcnt(0)")
        mf = []
        for i in range(3):
            r = WR + (j % DEEP) * 12 + 4 * i
            for k in range(4):
                d = ACC + (i * 4 + k) * 4
                mf.append(f"v_mfma_f32_16x16x32_bf16 v[{d}:{d+3}], v[{r}:{r+3}], v[{b+4*k}:{b+4*k+3}], v[{d}:{d+3}]")
        va = []
        if j + 1 < 8: va += xreads(j + 1)
        post = []
        if issued < 8:
            post = wload(issued); seq += [("W", issued)] * 3; issued += 1
        elif j == 6:
            post = smalls + gbl; seq += [("S", 0)] * 13 + [("G", 0)] * 4
        for q_ in range(4):
            va.append(f"v_lshlrev_b32 v{80+2*q_}, 16, v{b+q_}")
            va.append(f"v_and_b32 v{81+2*q_}, 0xffff0000, v{b+q_}")
        for q_ in range(8): va.append(f"v_mul_f32 v{80+q_}, v{80+q_}, v{80+q_}")
        for q_ in range(8):
            va.append(f"v_add_f32 v{96+(q_&3)}, v{96+(q_&3)}, v{80+q_}")
            va.append(f"v_fmac_f32 v{100+q_}, v{80+q_}, v{g+q_}")
        per = -(-len(va) // 12)
        vi = 0
        for m in mf:
            a(m)
            for _ in range(per):
                if vi < len(va): a(va[vi]); vi += 1
        for x in post: a(x)
    stamp(a, 2)
    def dr(n=1):
        for _ in range(n):
            if drip: a(drip.pop(0))
    a(f"s_mul_i32 s30, s24, 6144")
    a(f"s_add_u32 s30, s30, {W8_RED}")
    a("v_add_u32 v2, s30, v13")
    a("s_xor_b32 s31, s24, 4")
    a(f"s_mul_i32 s31, s31, 6144")
    a(f"s_add_u32 s31, s31, {W8_RED}")
    a("v_add_u32 v25, s31, v13")
    a("v_pk_add_f32 v[96:97], v[96:97], v[98:99]")
    a("v_add_f32 v96, v96, v97")
    a("v_pk_add_f32 v[100:101], v[100:101], v[102:103]")
    a("v_pk_add_f32 v[104:105], v[104:105], v[106:107]")
    a("v_pk_add_f32 v[100:101], v[100:101], v[104:105]")
    a("v_add_f32 v97, v100, v101")
    for i in range(3):
        for k in (2, 3):
            d = ACC + (i * 4 + k) * 4
            a(f"ds_write_b128 v2, v[{d}:{d+3}] offset:{(i*2 + k - 2)*1024}")
    a("v_mov_b32 v98, v96")
    a("v_mov_b32 v99, v97")
    a("s_nop 0")
    a("v_permlane16_swap_b32 v96, v98")
    a("v_permlane16_swap_b32 v97, v99")
    dr(1)
    a("v_add_f32 v96, v96, v98")
    a("v_add_f32 v97, v97, v99")
    a("v_mov_b32 v98, v96")
    a("v_mov_b32 v99, v97")
    a("s_nop 0")
    a("v_permlane32_swap_b32 v96, v98")
    a("v_permlane32_swap_b32 v97, v99")
    a("s_lshl_b32 s30, s48, 10")
    a("s_lshl_b32 s31, s21, 5")
    a("s_add_u32 s30, s30, s31")
    a(f"s_add_u32 s30, s30, {W8_STT}")
    a("v_add_f32 v96, v96, v98")
    a("v_add_f32 v97, v97, v99")
    a("v_lshl_add_u32 v2, v6, 6, s30")
    a("ds_write_b64 v2, v[96:97] offset:24")
    a("s_cmp_eq_u32 s20, 3")
    a("s_cbranch_scc0 K3_nolin")
    a("v_cmp_eq_u32 s[52:53], 0, v3")
    a("v_cmp_eq_u32 s[54:55], 1, v3")
    for k in range(4):
        a(f"s_lshl_b32 s30, s{48+k}, 10")
        a("s_lshl_b32 s31, s21, 5")
        a("s_add_u32 s30, s30, s31")
        a(f"s_add_u32 s30, s30, {W8_STT}")
        a(f"v_lshl_add_u32 v{64+k}, v6, 6, s30")
    a("s_mov_b64 exec, s[52:53]")
    for k in range(4):
        d = ACC + (8 + k) * 4
        a(f"ds_write_b128 v{64+k}, v[{d}:{d+3}]")
    a("s_mov_b64 exec, s[54:55]")
    for k in range(4):
        d = ACC + (8 + k) * 4
        a(f"ds_write_b64 v{64+k}, v[{d}:{d+1}] offset:16")
    a("s_mov_b64 exec, -1")
    a("K3_nolin:")
    a("s_cmp_eq_u32 s21, 0")
    a("s_cbranch_scc0 K3_nosv")
    a(f"s_waitcnt vmcnt({vmwait(('S', 0)) + 1})")
    for v in range(3):
        a(f"v_add_f32 v{112+v}, v{112+v}, v{115+v}")
        a(f"v_add_f32 v{118+v}, v{118+v}, v{121+v}")
        a(f"v_add_f32 v{112+v}, v{112+v}, v{118+v}")
    a("v_lshlrev_b32 v124, 16, v124")
    a("s_mul_i32 s30, s20, 768")
    a(f"s_add_u32 s30, s30, {W8_SVT}")
    a("v_lshlrev_b32 v2, 8, v3")
    a("v_lshl_add_u32 v2, v6, 2, v2")
    a("v_add_u32 v2, s30, v2")
    a("v_cmp_gt_u32 vcc, 48, v1")
    a("s_and_saveexec_b64 s[42:43], vcc")
    a("ds_write_b32 v2, v112")
    a("ds_write_b32 v2, v114 offset:64")
    a("ds_write_b32 v2, v113 offset:128")
    a("ds_write_b32 v2, v124 offset:192")
    a("s_mov_b64 exec, s[42:43]")
    a("K3_nosv:   ; LINT-RESET")
    a("s_waitcnt vmcnt(1) lgkmcnt(0)")
    a("s_barrier")
    for i in range(3):
        for k in range(2):
            r = 64 + (i * 2 + k) * 4
            a(f"ds_read_b128 v[{r}:{r+3}], v25 offset:{(i*2 + k)*1024}")
    a("v_lshlrev_b32 v2, 6, v1")
    a(f"v_add_u32 v2, {W8_STT}, v2")
    a("ds_read_b128 v[32:35], v2")
    a("ds_read_b128 v[36:39], v2 offset:16")
    a("ds_read_b128 v[40:43], v2 offset:32")
    a("ds_read_b128 v[44:47], v2 offset:48")
    dr(2)
    a("s_waitcnt lgkmcnt(4)")
    for i in range(3):
        for k in range(2):
            d = ACC + (i * 4 + k) * 4; r = 64 + (i * 2 + k) * 4
            a(f"v_pk_add_f32 v[{d}:{d+1}], v[{d}:{d+1}], v[{r}:{r+1}]")
            a(f"v_pk_add_f32 v[{d+2}:{d+3}], v[{d+2}:{d+3}], v[{r+2}:{r+3}]")
    a("s_waitcnt lgkmcnt(0)")
    for r in range(0, 8, 2): a(f"v_pk_add_f32 v[{32+r}:{33+r}], v[{32+r}:{33+r}], v[{40+r}:{41+r}]")
    dr(1)
    a("v_add_f32 v34, v34, v35")
    a("v_add_f32 v36, v36, v37")
    a("v_mul_f32 v32, 0x3b000000, v32")
    a("v_mul_f32 v38, 0x3b000000, v38")
    a("v_fma_f32 v38, -v32, v32, v38")
    a("v_max_f32 v38, 0, v38")
    a("v_cvt_pk_bf16_f32 v40, v32, v38")
    a("v_lshlrev_b32 v32, 16, v40")
    a("v_and_b32 v38, 0xffff0000, v40")
    a("v_add_f32 v38, 0x3727c5ac, v38")
    rbf(a, 38, 38)
    a("v_sqrt_f32 v38, v38")
    a("v_fma_f32 v33, -v32, s36, v33")
    rbf(a, 38, 38)
    a("v_rcp_f32 v38, v38")
    a("v_mul_f32 v40, v32, v32")
    a("v_add_f32 v41, v32, v32")
    a("v_fma_f32 v39, -v41, v34, v39")
    a("v_fma_f32 v39, v40, s37, v39")
    a("v_fma_f32 v36, -v32, s38, v36")
    a("v_fma_f32 v33, v33, v38, s39")
    a("v_add_f32 v36, v36, v36")
    a("v_fma_f32 v39, v39, v38, v36")
    a("v_mul_f32 v33, 0x3b000000, v33")
    dr(1)
    a("v_fma_f32 v39, v39, v38, s40")
    a("v_mul_f32 v39, 0x3b000000, v39")
    a("v_fma_f32 v39, -v33, v33, v39")
    a("v_max_f32 v39, 0, v39")
    a("v_cvt_pk_bf16_f32 v40, v33, v39")
    a("v_lshlrev_b32 v33, 16, v40")
    a("v_and_b32 v39, 0xffff0000, v40")
    a("v_add_f32 v39, 0x3727c5ac, v39")
    rbf(a, 39, 39)
    a("v_sqrt_f32 v39, v39")
    a("s_nop 0")
    rbf(a, 39, 39)
    a("v_rcp_f32 v47, v39")
    a("s_lshl_b32 s30, s24, 10")
    a(f"s_add_u32 s30, s30, {W8_COF}")
    a("v_mul_f32 v44, v47, v38")
    a("v_mul_f32 v46, -v47, v33")
    a("v_mul_f32 v45, -v44, v32")
    a("v_lshl_add_u32 v2, v1, 4, s30")
    a("ds_write_b128 v2, v[44:47]")
    a("s_waitcnt lgkmcnt(0)")
    for k in range(2):
        a(f"s_lshl_b32 s31, s{48+k}, 8")
        a("s_add_u32 s31, s31, s30")
        a(f"v_lshl_add_u32 v2, v6, 4, s31")
        a(f"ds_read_b128 v[{48+4*k}:{51+4*k}], v2")
    a("s_mul_i32 s30, s20, 768")
    a(f"s_add_u32 s30, s30, {W8_SVT}")
    a("v_lshl_add_u32 v25, v3, 4, s30")
    a("s_mov_b32 s54, 0xbdd2d3e2")
    a("s_mov_b32 s55, 0xc0135761")
    dr(2)
    stamp(a, 3)
    for i in range(3):
        a(f"s_cmp_eq_u32 s{32+i}, 86")
        a(f"s_cbranch_scc1 K3_skip{i}")
        for st in range(4):
            a(f"ds_read_b128 v[{64+4*st}:{67+4*st}], v25 offset:{256*i + 64*st}")
        a(f"s_add_u32 s30, s29, {i}")
        a("s_lshr_b32 s31, s30, 1")
        a("s_lshl_b32 s31, s31, 12")
        a("s_and_b32 s30, s30, 1")
        a("s_lshl_b32 s30, s30, 3")
        a("s_add_u32 s30, s30, s31")
        a(f"s_add_u32 s30, s30, {W8_STG}")
        a("s_waitcnt lgkmcnt(0)")
        A_ = ACC + i * 16
        for (src, co, sel) in ((64, 0, "op_sel:[0,1,0] op_sel_hi:[1,1,1]"), (68, 2, "op_sel_hi:[1,0,1]"), (72, 2, "op_sel:[0,1,0] op_sel_hi:[1,1,1]")):
            for k in range(2):
                c = 48 + 4 * k
                for p in range(2):
                    t = 80 + 4 * k + 2 * p
                    s2 = f"v[{76+2*p}:{77+2*p}]" if src == 64 else f"v[{t}:{t+1}]"
                    a(f"v_pk_fma_f32 v[{t}:{t+1}], v[{src+2*p}:{src+2*p+1}], v[{c+co}:{c+co+1}], {s2} {sel}")
            if i == 0: dr(1)
        for k in range(2):
            c = 48 + 4 * k
            for p in range(2):
                x = A_ + 4 * k + 2 * p; t = 80 + 4 * k + 2 * p
                a(f"v_pk_fma_f32 v[{x}:{x+1}], v[{x}:{x+1}], v[{c}:{c+1}], v[{t}:{t+1}] op_sel_hi:[1,0,1]")
        for j in range(4):
            x = A_ + 2 * j; t = 80 + 2 * j
            a(f"v_pk_mul_f32 v[{t}:{t+1}], v[{x}:{x+1}], v[{x}:{x+1}]")
        for j in range(4):
            t = 80 + 2 * j
            a(f"v_pk_fma_f32 v[{t}:{t+1}], v[{t}:{t+1}], s[54:55], s[54:55] op_sel:[0,0,1] op_sel_hi:[1,0,1]")
        for j in range(4):
            x = A_ + 2 * j; t = 80 + 2 * j
            a(f"v_pk_mul_f32 v[{t}:{t+1}], v[{t}:{t+1}], v[{x}:{x+1}]")
        if i == 0: dr(1)
        for j in range(8): a(f"v_exp_f32 v{80+j}, v{80+j}")
        for j in range(4):
            t = 80 + 2 * j
            a(f"v_pk_add_f32 v[{t}:{t+1}], v[{t}:{t+1}], 1.0 op_sel_hi:[1,0]")
        for j in range(8): a(f"v_rcp_f32 v{80+j}, v{80+j}")
        if i == 0: dr(1)
        for j in range(4):
            x = A_ + 2 * j; t = 80 + 2 * j
            a(f"v_pk_mul_f32 v[{x}:{x+1}], v[{x}:{x+1}], v[{t}:{t+1}]")
        for k in range(2):
            a(f"v_cvt_pk_bf16_f32 v{88+2*k}, v{A_+4*k}, v{A_+4*k+1}")
            a(f"v_cvt_pk_bf16_f32 v{89+2*k}, v{A_+4*k+2}, v{A_+4*k+3}")
        if i == 1:
            a("s_cmp_eq_u32 s29, 9")
            a("s_cbranch_scc0 K3_paired1")
            a("s_lshr_b32 s31, s26, 1")
            a("s_add_u32 s31, s31, 40")
            a("s_mul_i32 s43, s25, 43")
            a("s_add_u32 s31, s31, s43")
            a("s_lshl_b32 s31, s31, 12")
            a("s_and_b32 s43, s26, 1")
            a("s_lshl_b32 s43, s43, 3")
            a("s_add_u32 s31, s31, s43")
            a(f"s_add_u32 s31, s31, {HF}")
            for k in range(2):
                a(f"s_lshl_b32 s43, s{48+k}, 10")
                a("s_add_u32 s43, s43, s31")
                a(f"buffer_store_dwordx2 v[{88+2*k}:{89+2*k}], v13, s[8:11], s43 offen sc1")
            a("s_branch K3_skip1")
            a("K3_paired1:")
        for k in range(2):
            a(f"s_lshl_b32 s31, s{48+k}, 10")
            a("s_add_u32 s31, s31, s30")
            a(f"v_add_u32 v2, s31, v13")
            a(f"ds_write_b64 v2, v[{88+2*k}:{89+2*k}]")
        a(f"K3_skip{i}:   ; LINT-RESET")
        dr(2)
    dr(99)
    for t in range(2):
        a(f"ds_read_b64_tr_b16 v[{16+2*t}:{17+2*t}], v26 offset:{2048*t}")
    a("s_waitcnt lgkmcnt(0)")
    a("s_barrier")
    stamp(a, 4)
    a("s_lshl_b32 s30, s24, 10")
    a("v_add_u32 v2, s30, v13")
    a(f"v_add_u32 v2, {W8_STG}, v2")
    a("ds_read_b128 v[32:35], v2")
    a("ds_read_b128 v[36:39], v2 offset:8192")
    a("s_mul_i32 s31, s25, 43")
    a("s_mul_i32 s43, s26, 5")
    a("s_add_u32 s31, s31, s43")
    a("s_lshl_b32 s31, s31, 12")
    a("s_add_u32 s31, s31, s30")
    a(f"s_add_u32 s31, s31, {HF}")
    a("s_waitcnt lgkmcnt(1)")
    a("buffer_store_dwordx4 v[32:35], v13, s[8:11], s31 offen sc1")
    a("s_add_u32 s31, s31, 8192")
    a("s_waitcnt lgkmcnt(0)")
    a("buffer_store_dwordx4 v[36:39], v13, s[8:11], s31 offen sc1")
    a("s_cmp_lt_u32 s24, 4")
    a("s_cbranch_scc0 K3_no3rd")
    a("ds_read_b128 v[40:43], v2 offset:16384")
    a("s_add_u32 s31, s31, 8192")
    a("s_waitcnt lgkmcnt(0)")
    a("buffer_store_dwordx4 v[40:43], v13, s[8:11], s31 offen sc1")
    a("K3_no3rd:   ; LINT-RESET")
    ACB = 176
    for r in range(ACB, ACB + 32): a(f"v_mov_b32 v{r}, 0")
    a("s_waitcnt vmcnt(0)")
    stamp(a, 5)
    a("s_barrier")
    a("s_cmp_lg_u32 s24, 0")
    a("s_cbranch_scc1 K3_wait")
    a("s_lshl_b32 s30, s25, 7")
    a(f"s_add_u32 s30, s30, {FLAGS}")
    a("v_mov_b32 v2, s30")
    a("v_mov_b32 v4, 1")
    a("s_mov_b64 exec, 1")
    a("global_atomic_add v4, v2, v4, s[14:15] sc0 sc1")
    a("s_waitcnt vmcnt(0)")
    a("v_readfirstlane_b32 s30, v4")
    a("s_cmp_eq_u32 s30, 7")
    a("s_cbranch_scc1 K3_pollx")
    a("s_mov_b32 s31, 0x100000")
    a("K3_poll:")
    a("global_load_dword v5, v2, s[14:15] sc1")
    a("s_waitcnt vmcnt(0)")
    a("v_readfirstlane_b32 s30, v5")
    a("s_sub_u32 s31, s31, 1")
    a("s_cmp_eq_u32 s31, 0")
    a("s_cbranch_scc1 K3_pollx")
    a("s_cmp_ge_u32 s30, 8")
    a("s_cbranch_scc0 K3_poll")
    a("K3_pollx:")
    a("s_mov_b64 exec, -1")
    a("K3_wait:   ; LINT-RESET")
    a("s_barrier")
    stamp(a, 6)
    SLOT = 16384; NS = 6
    a("s_mul_i32 s57, s25, 43")
    a("s_add_u32 s57, s57, s58")
    a("s_lshl_b32 s57, s57, 12")
    a("s_lshl_b32 s30, s21, 11")
    a("s_add_u32 s57, s57, s30")
    a(f"s_add_u32 s57, s57, {HF}")
    a("s_lshl_b32 s56, s20, 12")
    a("s_add_u32 s56, s56, s30")
    a("s_lshl_b32 s30, s20, 12")
    a("v_add_u32 v4, s30, v13")
    a(f"v_add_u32 v8, {4*SLOT}, v4")
    def hdma(j):
        return [f"s_add_u32 m0, s56, {(j % NS) * SLOT}\ns_add_u32 s43, s57, {4096 * j}\nbuffer_load_dwordx4 v13, s[8:11], s43 offen offset:{1024*t} lds" for t in range(2)]
    def hread(j):
        sl = j % NS
        base, off = ("v4", sl * SLOT) if sl < 4 else ("v8", (sl - 4) * SLOT)
        return [f"ds_read_b128 v[{HB[j & 1] + 4*lt}:{HB[j & 1] + 4*lt + 3}], {base} offset:{off + lt * 1024}" for lt in range(4)]
    HB = [32, 48]
    AHEAD = 5
    hq = []
    for j in range(AHEAD):
        for x in hdma(j): a(x); hq.append(j)
    a(f"s_waitcnt vmcnt({sum(1 for t in hq if t > 0)})")
    a("s_barrier")
    for x in hread(0): a(x)
    for j in range(11):
        if j + 1 <= 10:
            a(f"s_waitcnt vmcnt({sum(1 for t in hq if t > j + 1)}) lgkmcnt(0)")
            a("s_barrier")
            rd = hread(j + 1)
        else:
            a("s_waitcnt lgkmcnt(0)")
            rd = []
        nxt = hdma(j + AHEAD) if j + AHEAD <= 10 else []
        hq += [j + AHEAD] * len(nxt)
        extra = rd + nxt
        ei = 0
        for t in range(2):
            for lt in range(4):
                d = ACB + (t * 4 + lt) * 4
                ar = w2reg(j, t); br = HB[j & 1] + 4 * lt
                a(f"v_mfma_f32_16x16x32_bf16 v[{d}:{d+3}], v[{ar}:{ar+3}], v[{br}:{br+3}], v[{d}:{d+3}]")
                if ei < len(extra): a(extra[ei]); ei += 1
    stamp(a, 7)
    a("v_mul_u32_u24 v5, 272, v6")
    a("v_lshl_add_u32 v5, v3, 4, v5")
    a(f"s_mul_i32 s30, s20, {P_W}")
    a("s_lshl_b32 s31, s21, 7")
    a("s_add_u32 s30, s30, s31")
    a(f"s_add_u32 s30, s30, {W8_RED}")
    a("v_add_u32 v7, s30, v5")
    a("s_barrier")
    a("s_nop 4")
    for t in range(2):
        for lt in range(4):
            d = ACB + (t * 4 + lt) * 4
            a(f"ds_write_b128 v7, v[{d}:{d+3}] offset:{lt*16*272 + t*64}")
    a(f"s_mul_i32 s30, s20, {16*272}")
    a("s_lshl_b32 s31, s21, 7")
    a("s_add_u32 s30, s30, s31")
    a(f"s_add_u32 s30, s30, {W8_RED}")
    a("v_add_u32 v7, s30, v5")
    a("s_waitcnt lgkmcnt(0)")
    a("s_barrier")
    stamp(a, 8)
    for t in range(2):
        for w in range(4):
            r = 32 + (t * 4 + w) * 4
            a(f"ds_read_b128 v[{r}:{r+3}], v7 offset:{w*P_W + t*64}")
    a.srd(40, 18, 2048 * 512 * 2)
    a("s_lshl_b32 s30, s25, 16")
    a("s_lshl_b32 s31, s20, 14")
    a("s_add_u32 s30, s30, s31")
    a("s_lshl_b32 s31, s26, 7")
    a("s_add_u32 s30, s30, s31")
    a("s_lshl_b32 s31, s21, 6")
    a("s_add_u32 s30, s30, s31")
    a("v_lshlrev_b32 v9, 10, v6")
    a("v_lshl_add_u32 v9, v3, 3, v9")
    a("v_add_u32 v9, s30, v9")
    for t in range(2):
        a(f"s_waitcnt lgkmcnt({4*(1-t)})")
        r = 32 + t * 16
        for p in range(2):
            a(f"v_pk_add_f32 v[{r+2*p}:{r+2*p+1}], v[{r+2*p}:{r+2*p+1}], v[{r+4+2*p}:{r+5+2*p}]")
            a(f"v_pk_add_f32 v[{r+8+2*p}:{r+9+2*p}], v[{r+8+2*p}:{r+9+2*p}], v[{r+12+2*p}:{r+13+2*p}]")
        for p in range(2):
            a(f"v_pk_add_f32 v[{r+2*p}:{r+2*p+1}], v[{r+2*p}:{r+2*p+1}], v[{r+8+2*p}:{r+9+2*p}]")
        for q_ in range(2):
            a(f"v_lshlrev_b32 v{96+2*q_}, 16, v{252+2*t+q_}")
            a(f"v_and_b32 v{97+2*q_}, 0xffff0000, v{252+2*t+q_}")
            a(f"v_lshlrev_b32 v{100+2*q_}, 16, v{16+2*t+q_}")
            a(f"v_and_b32 v{101+2*q_}, 0xffff0000, v{16+2*t+q_}")
        for p in range(2):
            a(f"v_pk_add_f32 v[{r+2*p}:{r+2*p+1}], v[{r+2*p}:{r+2*p+1}], v[{96+2*p}:{97+2*p}]")
        for p in range(2):
            a(f"v_pk_fma_f32 v[{r+2*p}:{r+2*p+1}], v[{r+2*p}:{r+2*p+1}], v[{244+4*t+2*p}:{245+4*t+2*p}], v[{100+2*p}:{101+2*p}]")
        a(f"v_cvt_pk_bf16_f32 v{24+2*t}, v{r}, v{r+1}")
        a(f"v_cvt_pk_bf16_f32 v{25+2*t}, v{r+2}, v{r+3}")
        a(f"buffer_store_dwordx2 v[{24+2*t}:{25+2*t}], v9, s[40:43], 0 offen offset:{32*t}")
    a("K3_END:   ; LINT-RESET")
    stamp_store(a, KID3, 14, 24)
    a("K3_EXIT:")
    a.end_kernel(name, 256, 100, accum=256)

def triv(a, i):
    name = f"t{i}_kernel"
    a.begin_kernel(name, 256, 256, 0)
    a.end_kernel(name, 8, 16)
def build(kernels):
    global LASTLABEL, KID3, FUSED
    FUSED = kernels[0].__name__ == "k12"
    KID3 = len(kernels) - 1
    LASTLABEL = {"k1": "K1_EXIT", "k2": "K2_EXIT", "k12": "K2_EXIT", "k3": "K3_EXIT", "k3w": "K3_EXIT"}[kernels[-1].__name__]
    a = Asm()
    for i in range(int(OPT.get("pre_triv", "0"))): triv(a, 10 + i)
    for k in kernels: k(a)
    for i in range(int(OPT.get("extra", "0"))): triv(a, i)
    return a.text().replace("None\n", "")

ALL = {}
if __name__ == "__main__":
    out = sys.argv[1] if len(sys.argv) > 1 else "cur.s"
    names = sys.argv[2].split(",") if len(sys.argv) > 2 else ["k1"]
    if len(sys.argv) > 3 and sys.argv[3] == "prof": PROF = True
    open(out, "w").write(build([globals()[n] for n in names]))
```

```python
import sys
sys.path.insert(0, "dev")
from asmgen import *

import os
OPT = dict(kv.split("=") for kv in os.environ.get("GENOPT", "").split(",") if kv)
WSOFF = int(OPT.get("wsoff", "0"), 0)
SC1 = " sc1" if OPT.get("sc1", "1") == "1" else ""
HLD = " sc1" if OPT.get("hsc1", "1") == "1" else ""
WLD = " sc1" if OPT.get("wsc1", "0") == "1" else ""
XLD = " sc1" if OPT.get("xsc1", "0") == "1" else ""
NT1 = " nt" if OPT.get("nt1", "1") == "1" else ""
def wsfix(a, r):
    if WSOFF:
        a(f"s_add_u32 s{r}, s{r}, {WSOFF}")
        a(f"s_addc_u32 s{r+1}, s{r+1}, 0")
XT    = 0x0000000
X2T   = 0x0200000
KREV  = 0x0400000
KW    = 4160
STAT1 = 0x0620000
MODF  = 0x0630000
SCAL  = 0x0634000
SVP   = 0x0640000
MODP  = 0x0660000
G2F   = 0x0634400
GBF   = 0x0634C00
W1F   = 0x0700000
W2F   = 0x0900000
HF    = 0x0B00000
WS_USED = 0x1100000

STAMP = 0x1100000
PROF = False
def stamp(a, i):
    if PROF:
        if OPT.get("cyc", "0") == "1": a(f"s_memtime s[{70+2*i}:{71+2*i}]")
        else: a(f"s_memrealtime s[{70+2*i}:{71+2*i}]")
        a("s_waitcnt lgkmcnt(0)")
def stamp_store(a, kid, wsreg, swave):
    if not PROF: return
    a("s_mov_b64 exec, -1")
    tm = "s_memtime" if OPT.get("cyc", "0") == "1" else "s_memrealtime"
    a(f"{tm} s[90:91]")
    a("s_waitcnt lgkmcnt(0) vmcnt(0)")
    a(f"{tm} s[92:93]")
    a("s_waitcnt lgkmcnt(0)")
    a(f"s_lshl_b32 s94, s2, 3")
    a(f"s_add_u32 s94, s94, s{swave}")
    a(f"s_lshl_b32 s94, s94, 6")
    a(f"s_add_u32 s94, s94, {STAMP + kid * 0x80000}")
    a("v_mov_b32 v0, s94")
    for i in range(12):
        a(f"v_mov_b32 v{2+i}, s{70+2*i}")
    a("s_mov_b64 exec, 1")
    a(f"global_store_dwordx4 v0, v[2:5], s[{wsreg}:{wsreg+1}]")
    a(f"global_store_dwordx4 v0, v[6:9], s[{wsreg}:{wsreg+1}] offset:16")
    a(f"global_store_dwordx4 v0, v[10:13], s[{wsreg}:{wsreg+1}] offset:32")

LOG2E = "0x3fb8aa3b"
INV2PI = "0.15915494"

def wave_id(a, s, vt):
    a(f"v_lshrrev_b32 v{vt}, 6, v0")
    a("s_nop 0")
    a(f"v_readfirstlane_b32 s{s}, v{vt}")

def rbf(a, vd, vs):
    a(f"v_cvt_pk_bf16_f32 v{vd}, v{vs}, v{vs}")
    a(f"v_and_b32 v{vd}, 0xffff0000, v{vd}")

def csq(a, dst, src, tmp):
    return [
        f"v_pk_mul_f32 v[{tmp}:{tmp+1}], v[{src}:{src+1}], v[{src}:{src+1}] op_sel:[0,0] op_sel_hi:[1,0]",
        f"v_pk_fma_f32 v[{dst}:{dst+1}], v[{src}:{src+1}], v[{src}:{src+1}], v[{tmp}:{tmp+1}] op_sel:[1,1,0] op_sel_hi:[0,1,1] neg_lo:[1,0,0]",
    ]

def cmulconj(a, dst, p, c, tmp):
    return [
        f"v_pk_mul_f32 v[{tmp}:{tmp+1}], v[{p}:{p+1}], v[{c}:{c+1}] op_sel:[0,0] op_sel_hi:[1,0] neg_hi:[0,1]",
        f"v_pk_fma_f32 v[{dst}:{dst+1}], v[{p}:{p+1}], v[{c}:{c+1}], v[{tmp}:{tmp+1}] op_sel:[1,1,0] op_sel_hi:[0,1,1] neg_lo:[1,0,0] neg_hi:[1,0,0]",
    ]

def code_prefetch(a, start, end, n, tag, vtmp, dst0):
    a(f"s_getpc_b64 s[66:67]")
    a(f"CPF_{tag}:")
    a(f"s_sub_u32 s66, s66, CPF_{tag}-{start}")
    a(f"s_subb_u32 s67, s67, 0")
    a(f"v_lshlrev_b32 v{vtmp}, 7, v1")
    a("s_mov_b64 s[68:69], exec")
    for i in range(n):
        a(f"v_cmp_gt_u32 vcc, {end}-{start}, v{vtmp}")
        a("s_and_b64 exec, s[68:69], vcc")
        a(f"s_cbranch_execz CPF_{tag}_done")
        a(f"global_load_dword v{dst0+i}, v{vtmp}, s[66:67]")
        a(f"v_add_u32 v{vtmp}, 8192, v{vtmp}")
    a(f"CPF_{tag}_done:")
    a("s_mov_b64 exec, s[68:69]")

def k1(a):
    name = "k1_kernel"
    a.begin_kernel(name, 512, 256, 23552)
    a("s_cmp_ge_u32 s2, 512")
    a("s_cbranch_scc1 K1_EXIT")
    stamp(a, 0)
    a("s_load_dwordx8 s[4:11], s[0:1], 8")
    a("s_load_dwordx2 s[12:13], s[0:1], 40")
    a("s_load_dwordx2 s[14:15], s[0:1], 128")
    a("s_load_dwordx2 s[16:17], s[0:1], 0")
    a("s_load_dwordx4 s[20:23], s[0:1], 96")
    wave_id(a, 24, 1)
    a("v_and_b32 v1, 63, v0")
    a("s_cmp_ge_u32 s2, 256")
    a("s_cbranch_scc1 K1_TSM")
    a("s_setprio 3")
    a("s_lshr_b32 s25, s24, 1")
    a("s_and_b32 s26, s24, 1")
    a("s_lshl_b32 s27, s2, 1")
    a("s_add_u32 s27, s27, s25")
    a("s_lshl_b32 s28, s27, 8")
    a("s_lshl_b32 s29, s26, 7")
    a("s_add_u32 s28, s28, s29")
    a("v_lshl_add_u32 v2, v1, 1, s28")
    a("s_lshl_b32 s30, s2, 2")
    a("s_waitcnt lgkmcnt(0)")
    wsfix(a, 14)
    a("global_load_ushort v4, v2, s[4:5] nt")
    a("global_load_ushort v5, v2, s[6:7] nt")
    a("global_load_ushort v6, v2, s[8:9] nt")
    a("global_load_ushort v7, v2, s[10:11] nt")
    a("s_load_dword s29, s[12:13], s30")
    a("v_and_b32 v16, 15, v1")
    a("v_cmp_eq_u32 s[32:33], 15, v16")
    a("v_lshrrev_b32 v18, 4, v1")
    a("v_add_u32 v19, 1, v16")
    a("v_cvt_f32_u32 v19, v19")
    a("s_lshl_b32 s31, s24, 10")
    a("v_lshl_add_u32 v17, v18, 6, s31")
    a("v_lshl_add_u32 v20, v1, 4, s31")
    for r in range(112, 128):
        a(f"v_mov_b32 v{r}, 0")
    T16 = 4096 + 16384
    a("s_mul_i32 s39, s25, 1344")
    a(f"s_add_u32 s39, s39, {T16 + 8}")
    a("v_subrev_u32 v21, 7, v16")
    a("v_cmp_gt_u32 s[34:35], 8, v21")
    a("v_add_u32 v21, 1, v16")
    a("v_and_b32 v21, 15, v21")
    a("v_lshlrev_b32 v24, 5, v21")
    a("v_lshl_add_u32 v24, v18, 3, v24")
    a("s_lshl_b32 s40, s26, 9")
    a("s_add_u32 s40, s40, s39")
    a("v_add_u32 v24, s40, v24")
    a("s_cmp_eq_u32 s26, 0")
    a("s_cselect_b64 s[36:37], -1, s[34:35]")
    a("s_lshl_b32 s40, s24, 12")
    a("s_add_u32 s40, s40, 4096")
    a("v_lshl_add_u32 v22, v1, 4, s40")
    a("s_lshl_b32 s40, s25, 13")
    a("s_lshl_b32 s41, s26, 11")
    a("s_add_u32 s40, s40, s41")
    a("s_add_u32 s40, s40, 4096")
    a("v_lshl_add_u32 v23, v1, 4, s40")
    a("s_lshl_b32 s40, s26, 6")
    a("v_add_u32 v26, s40, v1")
    a("v_lshlrev_b32 v27, 3, v26")
    a("v_sub_u32 v27, 2047, v27")
    a("v_cvt_f32_u32 v28, v27")
    a("s_sub_u32 s41, s39, 34050")
    a("s_sub_u32 s42, s39, 2")
    GA = 140
    for rnd in range(2):
        if rnd == 1:
            a("v_add_f32 v28, 0xc4800000, v28")
            a("v_subrev_u32 v27, 1024, v27")
        for t in range(8):
            if t == 0: a(f"v_mov_b32 v48, v28")
            else: a(f"v_add_f32 v{48+t}, {-float(t)}, v28")
        for p in range(4):
            a(f"v_cvt_pk_bf16_f32 v{56+p}, v{48+2*p}, v{49+2*p}")
        for p in range(4):
            a(f"v_and_b32 v{48+2*p}, 0xffff, v{56+p}")
            a(f"v_lshrrev_b32 v{49+2*p}, 16, v{56+p}")
        o = GA + 8 * rnd
        for t in range(8):
            a(f"v_lshl_add_u32 v{o+t}, v{48+t}, 1, s41")
        if rnd == 1:
            a("v_cmp_le_u32 vcc, 112, v26")
            for t in range(8):
                a(f"v_subrev_u32 v{56+(t&3)}, {t}, v27")
                a(f"v_lshl_add_u32 v{56+(t&3)}, v{56+(t&3)}, 1, s42")
                a(f"v_cndmask_b32 v{o+t}, v{o+t}, v{56+(t&3)}, vcc")
    a(f"s_mul_i32 s40, s27, {KW}")
    a(f"s_add_u32 s40, s40, {KREV}")
    a("v_lshl_add_u32 v29, v26, 4, s40")
    a("v_add_u32 v30, 2048, v29")
    a("v_add_u32 v31, 4096, v29")
    a("s_waitcnt lgkmcnt(0)")
    a("s_lshl_b32 s43, s25, 4")
    a("s_lshr_b32 s29, s29, s43")
    a("s_lshl_b32 s29, s29, 16")
    a(f"v_mov_b32 v8, {LOG2E}")
    a("v_mul_f32 v9, s29, v8")
    a("v_exp_f32 v9, v9")
    a("s_nop 0")
    rbf(a, 9, 9)
    a("s_waitcnt vmcnt(0)")
    a("v_lshlrev_b32 v4, 16, v4")
    a("v_lshlrev_b32 v5, 16, v5")
    a("v_lshlrev_b32 v6, 16, v6")
    a("v_lshlrev_b32 v7, 16, v7")
    a("v_mul_f32 v4, v4, v8")
    a("v_exp_f32 v4, v4")
    a("v_mul_f32 v13, v5, v9")
    a("v_mul_f32 v14, v6, v9")
    rbf(a, 4, 4)
    a("v_mul_f32 v15, v7, v9")
    a("v_mul_f32 v12, v4, v9")
    a(f"v_mul_f32 v13, {INV2PI}, v13")
    a("v_add_f32 v14, v14, v14")
    a("v_add_f32 v15, v15, v15")
    a("v_mul_f32 v12, v12, v8")
    a("v_mov_b32 v10, v14")
    a("v_sub_f32 v12, 0, v12")
    a("ds_write_b128 v20, v[12:15]")
    for ctl in ("row_shr:1", "row_shr:2", "row_shr:4", "row_shr:8", "row_bcast:15 row_mask:0xa", "row_bcast:31 row_mask:0xc"):
        a("s_nop 1")
        a(f"v_add_f32_dpp v10, v10, v10 {ctl}")
    a("s_waitcnt lgkmcnt(0)")
    stamp(a, 1)
    R = [[32 + 4 * u for u in range(4)], [48 + 4 * u for u in range(4)]]
    PA = [64 + 2 * u for u in range(4)]
    PB = [72 + 2 * u for u in range(4)]
    TT = [80 + 2 * u for u in range(4)]
    QF = [88 + 4 * e for e in range(4)]
    GF = [104, 108]
    DD = [112 + 4 * e for e in range(4)]
    CPK = [128 + u for u in range(4)]
    MAG = [132 + 2 * u for u in range(4)]
    for u in range(4):
        a(f"ds_read_b128 v[{R[0][u]}:{R[0][u]+3}], v17 offset:{u*16}")
    for ks in range(4):
        Rc = R[ks & 1]
        if ks + 1 < 4:
            for u in range(4):
                a(f"ds_read_b128 v[{R[(ks+1)&1][u]}:{R[(ks+1)&1][u]+3}], v17 offset:{(ks+1)*256+u*16}")
            a("s_waitcnt lgkmcnt(4)")
        else:
            a("s_waitcnt lgkmcnt(0)")
        for u in range(4): a(f"v_mul_f32 v{TT[u]}, v{Rc[u]}, v19")
        for u in range(4): a(f"v_mul_f32 v{TT[u]+1}, v{Rc[u]+1}, v19")
        for u in range(4): a(f"v_exp_f32 v{MAG[u]}, v{TT[u]}")
        for u in range(4): a(f"v_fract_f32 v{TT[u]+1}, v{TT[u]+1}")
        for u in range(4): a(f"v_cvt_pk_bf16_f32 v{CPK[u]}, v{Rc[u]+2}, -v{Rc[u]+3}")
        for u in range(4): a(f"v_cos_f32 v{PB[u]}, v{TT[u]+1}")
        for u in range(4): a(f"v_sin_f32 v{PB[u]+1}, v{TT[u]+1}")
        a("s_nop 0")
        for u in range(4):
            a(f"v_pk_mul_f32 v[{PA[u]}:{PA[u]+1}], v[{PB[u]}:{PB[u]+1}], v[{MAG[u]}:{MAG[u]+1}] op_sel:[0,0] op_sel_hi:[1,0]")
        cur, oth = PA, PB
        for e in range(4):
            for u in range(4): a(f"v_cvt_pk_bf16_f32 v{QF[e]+u}, v{cur[u]}, v{cur[u]+1}")
            sq = [csq(a, oth[u], cur[u], TT[u]) for u in range(4)]
            for u in range(4): a(sq[u][0])
            for u in range(4): a(sq[u][1])
            cur, oth = oth, cur
        for e in range(4):
            g = GF[e & 1]
            cm = [cmulconj(a, oth[u], cur[u], Rc[u] + 2, TT[u]) for u in range(4)]
            for u in range(4): a(cm[u][0])
            for u in range(4): a(cm[u][1])
            for u in range(4): a(f"v_cvt_pk_bf16_f32 v{g+u}, v{oth[u]}, v{oth[u]+1}")
            if e == 0:
                for u in range(4): a(f"v_cndmask_b32 v{g+u}, v{g+u}, v{CPK[u]}, s[32:33]")
            if e < 3:
                sq = [csq(a, oth[u], cur[u], TT[u]) for u in range(4)]
                for u in range(4): a(sq[u][0])
                a(f"v_mfma_f32_16x16x32_bf16 v[{DD[e]}:{DD[e]+3}], v[{QF[e]}:{QF[e]+3}], v[{g}:{g+3}], v[{DD[e]}:{DD[e]+3}]")
                for u in range(4): a(sq[u][1])
                cur, oth = oth, cur
            else:
                a("s_nop 1")
                a(f"v_mfma_f32_16x16x32_bf16 v[{DD[e]}:{DD[e]+3}], v[{QF[e]}:{QF[e]+3}], v[{g}:{g+3}], v[{DD[e]}:{DD[e]+3}]")
    stamp(a, 2)
    a("v_readlane_b32 s44, v10, 63")
    a(f"s_lshl_b32 s45, s24, 2")
    a(f"s_add_u32 s45, s45, {T16 + 2*1344 + 16}")
    a("v_mov_b32 v11, s45")
    a("v_mov_b32 v10, s44")
    a("s_nop 1")
    for e in range(4):
        a(f"ds_write_b128 v22, v[{DD[e]}:{DD[e]+3}] offset:{e*1024}")
    a("ds_write_b32 v11, v10")
    a("s_waitcnt lgkmcnt(0)")
    a("s_barrier")
    a("ds_read_b128 v[32:35], v23")
    a("ds_read_b128 v[36:39], v23 offset:4096")
    a("ds_read_b128 v[40:43], v23 offset:1024")
    a("ds_read_b128 v[44:47], v23 offset:5120")
    a(f"s_lshl_b32 s45, s25, 3")
    a(f"s_add_u32 s45, s45, {T16 + 2*1344 + 16}")
    a("v_mov_b32 v11, s45")
    a("ds_read_b64 v[8:9], v11")
    a("s_waitcnt lgkmcnt(0)")
    for r in range(4): a(f"v_add_f32 v{32+r}, v{32+r}, v{36+r}")
    for r in range(4): a(f"v_add_f32 v{40+r}, v{40+r}, v{44+r}")
    a("v_add_f32 v8, v8, v9")
    a("v_cvt_pk_bf16_f32 v32, v32, v33")
    a("v_cvt_pk_bf16_f32 v33, v34, v35")
    a("v_cvt_pk_bf16_f32 v40, v40, v41")
    a("v_cvt_pk_bf16_f32 v41, v42, v43")
    a("v_cvt_pk_bf16_f32 v8, v8, v8")
    a("s_sub_u32 s45, s39, 2")
    a("v_mov_b32 v11, s45")
    a("s_mov_b64 s[42:43], exec")
    a("s_mov_b64 exec, s[36:37]")
    a("ds_write_b64 v24, v[32:33]")
    a("s_mov_b64 exec, s[34:35]")
    a("ds_write_b64 v24, v[40:41] offset:256")
    a("s_mov_b64 exec, s[42:43]")
    a("ds_write_b16 v11, v8")
    a("s_waitcnt lgkmcnt(0)")
    a("s_barrier")
    stamp(a, 3)
    for t in range(16):
        a(f"ds_read_u16 v{76+t}, v{GA+t}")
        if t == 7: a("v_mov_b32 v72, 0\nv_mov_b32 v73, 0\nv_mov_b32 v74, 0\nv_mov_b32 v75, 0")
    a("s_waitcnt lgkmcnt(8)")
    for p in range(4):
        a(f"v_lshl_or_b32 v{64+p}, v{77+2*p}, 16, v{76+2*p}")
    a("global_store_dwordx4 v29, v[64:67], s[14:15] sc1")
    a("s_waitcnt lgkmcnt(0)")
    for p in range(4):
        a(f"v_lshl_or_b32 v{68+p}, v{85+2*p}, 16, v{84+2*p}")
    a("global_store_dwordx4 v30, v[68:71], s[14:15] sc1")
    a("v_cmp_gt_u32 vcc, 4, v26")
    a("s_and_saveexec_b64 s[42:43], vcc")
    a("s_cbranch_execz K1_END")
    a("global_store_dwordx4 v31, v[72:75], s[14:15] sc1")
    a("s_branch K1_END")
    a("K1_TSM:   ; LINT-RESET")
    a("s_sub_u32 s25, s2, 256")
    a("s_and_b32 s28, s25, 7")
    a("s_lshr_b32 s29, s25, 3")
    a("s_lshr_b32 s26, s29, 3")
    a("s_lshl_b32 s27, s28, 2")
    a("s_add_u32 s26, s26, s27")
    a("s_and_b32 s27, s29, 7")
    a("s_lshl_b32 s30, s28, 8")
    a("s_lshl_b32 s31, s29, 3")
    a("s_add_u32 s30, s30, s31")
    a("s_lshl_b32 s28, s26, 16")
    a("s_lshl_b32 s29, s27, 7")
    a("s_add_u32 s28, s28, s29")
    a("v_lshrrev_b32 v2, 3, v0")
    a("v_and_b32 v3, 7, v0")
    a("v_lshlrev_b32 v4, 10, v2")
    a("v_lshl_add_u32 v4, v3, 4, v4")
    a("v_add_u32 v4, s28, v4")
    a("v_add_u32 v5, 0x8000, v4")
    a("s_lshl_b32 s31, s24, 1")
    a("s_add_u32 s30, s30, s31")
    a("s_lshl_b32 s31, s30, 10")
    a("v_lshl_add_u32 v6, v1, 4, s31")
    a("s_and_b32 s33, s25, 7")
    a("s_mul_i32 s33, s33, 24")
    a("s_lshr_b32 s34, s25, 3")
    a("s_add_u32 s33, s33, s34")
    a("v_lshrrev_b32 v7, 1, v0")
    a("v_and_b32 v24, 1, v0")
    a("v_mul_u32_u24 v25, 6144, v7")
    a("v_lshl_add_u32 v25, v24, 4, v25")
    a("s_lshl_b32 s35, s33, 5")
    a("v_add_u32 v25, s35, v25")
    a("v_add_u32 v26, 786432, v25")
    a("v_add_u32 v27, 786432, v26")
    a("v_add_u32 v28, 786432, v27")
    a("v_lshlrev_b32 v29, 1, v7")
    a("s_waitcnt lgkmcnt(0)")
    wsfix(a, 14)
    a("global_load_dwordx4 v[8:11], v4, s[16:17]" + NT1)
    a("global_load_dwordx4 v[12:15], v5, s[16:17]" + NT1)
    a("global_load_dwordx4 v[16:19], v6, s[16:17]" + NT1)
    a("global_load_dwordx4 v[20:23], v6, s[16:17] offset:1024" + NT1)
    a("s_cmp_ge_u32 s25, 192")
    a("s_cbranch_scc1 K1_nomodld")
    for k in range(4):
        a(f"global_load_ushort v{48+k}, v29, s[20:21] offset:{256*k}")
    for k, vo in enumerate((25, 26, 27, 28)):
        a(f"global_load_dwordx4 v[{32+4*k}:{35+4*k}], v{vo}, s[22:23]" + NT1)
    a("K1_nomodld:")
    if OPT.get("cpf", "1") == "1":
        a("s_sub_u32 s65, s25, 192")
        a("s_cmp_ge_u32 s65, 16")
        a("s_cbranch_scc1 K1_nocpf")
        a("s_cmp_lg_u32 s24, 3")
        a("s_cbranch_scc1 K1_nocpf")
        code_prefetch(a, "k1_kernel", LASTLABEL, 6, "k1", 70, 72)
        TS = int(OPT.get("tlb", "0"))
        if TS:
            a("s_load_dwordx2 s[50:51], s[0:1], 64")
            a("s_load_dwordx2 s[52:53], s[0:1], 80")
            a("s_load_dwordx2 s[54:55], s[0:1], 112")
            a("s_load_dwordx2 s[56:57], s[0:1], 72")
            a("s_load_dwordx2 s[58:59], s[0:1], 88")
            a("s_load_dwordx2 s[60:61], s[0:1], 48")
            a(f"v_mul_u32_u24 v71, {TS}, v1")
            a("s_waitcnt lgkmcnt(0)")
            k = 80
            for (sr, size) in ((14, WS_USED), (50, 512*1376*2), (52, 512*1376*2), (54, 2048*512*2)):
                n = -(-size // (64 * TS))
                for i in range(n):
                    a(f"v_add_u32 v70, {i * 64 * TS}, v71")
                    a(f"v_cmp_gt_u32 vcc, {size}, v70")
                    a("s_and_saveexec_b64 s[62:63], vcc")
                    a(f"global_load_dword v{k}, v70, s[{sr}:{sr+1}]")
                    a("s_mov_b64 exec, s[62:63]")
                    k = 80 + (k - 80 + 1) % 40
            a("v_mov_b32 v70, 0")
            for sr in (56, 58, 60):
                a(f"global_load_dword v{k}, v70, s[{sr}:{sr+1}]"); k += 1
        a("s_waitcnt vmcnt(0)")
        a("K1_nocpf:   ; LINT-RESET")
    a("v_mul_u32_u24 v30, 160, v2")
    a("v_lshl_add_u32 v30, v3, 4, v30")
    a("s_cmp_ge_u32 s25, 192")
    a("s_cbranch_scc1 K1_w0")
    a("s_waitcnt vmcnt(10)")
    a("s_branch K1_w1")
    a("K1_w0:")
    a("s_waitcnt vmcnt(2)")
    a("K1_w1:   ; LINT-RESET (T loads have landed; S/mod loads may be outstanding)")
    stamp(a, 1)
    a("ds_write_b128 v30, v[8:11]")
    a("ds_write_b128 v30, v[12:15] offset:5120")
    a("s_cmp_ge_u32 s25, 192")
    a("s_cbranch_scc1 K1_w2")
    a("s_waitcnt vmcnt(8)")
    a("s_branch K1_w3")
    a("K1_w2:")
    a("s_waitcnt vmcnt(0)")
    a("K1_w3:   ; LINT-RESET")
    a("v_mov_b32 v31, 0x3f803f80")
    a("v_mov_b32 v52, 0\nv_mov_b32 v53, 0\nv_mov_b32 v54, 0\nv_mov_b32 v55, 0")
    for k in range(4):
        a(f"v_dot2_f32_bf16 v52, v{16+k}, v31, v52")
        a(f"v_dot2_f32_bf16 v53, v{16+k}, v{16+k}, v53")
        a(f"v_dot2_f32_bf16 v54, v{20+k}, v31, v54")
        a(f"v_dot2_f32_bf16 v55, v{20+k}, v{20+k}, v55")
    a("s_nop 1")
    for ctl in ("row_shr:1", "row_shr:2", "row_shr:4", "row_shr:8", "row_bcast:15 row_mask:0xa", "row_bcast:31 row_mask:0xc"):
        for r in range(52, 56):
            a(f"v_add_f32_dpp v{r}, v{r}, v{r} {ctl}")
        a("s_nop 0") if False else None
    a("s_nop 1")
    for k, r in enumerate(range(52, 56)):
        a(f"v_readlane_b32 s{36+k}, v{r}, 63")
    a("s_nop 1")
    a("v_cmp_eq_u32 vcc, 0, v1")
    a("v_mov_b32 v56, s38")
    a("v_mov_b32 v57, s39")
    a("v_mov_b32 v58, s36")
    a("v_mov_b32 v59, s37")
    a("v_cndmask_b32 v56, v56, v58, vcc")
    a("v_cndmask_b32 v57, v57, v59, vcc")
    a("v_mul_f32 v56, 0x3b000000, v56")
    a("v_mul_f32 v57, 0x3b000000, v57")
    a("v_fma_f32 v57, -v56, v56, v57")
    a("v_max_f32 v57, 0, v57")
    rbf(a, 56, 56)
    rbf(a, 57, 57)
    a("v_add_f32 v57, 0x3727c5ac, v57")
    rbf(a, 57, 57)
    a("v_sqrt_f32 v57, v57")
    a("s_nop 0")
    rbf(a, 57, 57)
    a("v_rcp_f32 v58, v57")
    a("s_nop 0")
    a("v_mul_f32 v59, v56, v58")
    a("v_sub_f32 v59, 0, v59")
    a("s_lshl_b32 s31, s30, 2")
    a(f"s_add_u32 s31, s31, {STAT1}")
    a("v_lshl_add_u32 v60, v1, 2, s31")
    a("v_add_u32 v61, 8192, v60")
    a("v_cmp_gt_u32 vcc, 2, v1")
    a("s_and_saveexec_b64 s[42:43], vcc")
    a("global_store_dword v60, v58, s[14:15]" + SC1)
    a("global_store_dword v61, v59, s[14:15]" + SC1)
    a("s_mov_b64 exec, s[42:43]")
    a("s_cmp_ge_u32 s25, 192")
    a("s_cbranch_scc1 K1_nomodc")
    a("s_waitcnt vmcnt(2)")
    for k in range(4):
        a(f"v_lshlrev_b32 v{48+k}, 16, v{48+k}")
    for k in range(4):
        a(f"v_mul_f32 v{52+k}, 0xbfb8aa3b, v{48+k}")
    for k in range(4):
        a(f"v_exp_f32 v{52+k}, v{52+k}")
    a("s_nop 0")
    for k in range(4):
        a(f"v_add_f32 v{52+k}, 1.0, v{52+k}")
    for k in range(4):
        a(f"v_rcp_f32 v{56+k}, v{52+k}")
    a("s_nop 0")
    for k in range(4):
        a(f"v_mul_f32 v{60+k}, v{48+k}, v{56+k}")
    for k in range(4):
        a(f"v_fma_f32 v{48+k}, -v{60+k}, v{52+k}, v{48+k}")
    for k in range(4):
        a(f"v_fma_f32 v{48+k}, v{48+k}, v{56+k}, v{60+k}")
    for k in range(4):
        rbf(a, 48 + k, 48 + k)
    for k in range(4):
        for p in range(4):
            w = 32 + 4 * k + p
            a(f"v_lshlrev_b32 v62, 16, v{w}")
            a(f"v_and_b32 v63, 0xffff0000, v{w}")
            if k == 0:
                a(f"v_mul_f32 v{64+2*p}, v62, v48")
                a(f"v_mul_f32 v{65+2*p}, v63, v48")
            else:
                a(f"v_fmac_f32 v{64+2*p}, v62, v{48+k}")
                a(f"v_fmac_f32 v{65+2*p}, v63, v{48+k}")
    a("v_lshlrev_b32 v61, 5, v0")
    a("ds_write_b128 v61, v[64:67] offset:10240")
    a("ds_write_b128 v61, v[68:71] offset:10256")
    a("K1_nomodc:")
    stamp(a, 2)
    a("s_waitcnt lgkmcnt(0)")
    a("s_barrier")
    stamp(a, 3)
    a("v_lshrrev_b32 v2, 4, v1")
    a("v_bfe_u32 v3, v1, 2, 2")
    a("v_and_b32 v4, 3, v1")
    a("v_lshl_add_u32 v5, v2, 3, v3")
    a("v_mul_u32_u24 v5, 160, v5")
    a("v_lshl_add_u32 v5, v4, 3, v5")
    a("s_lshl_b32 s31, s24, 5")
    a("v_add_u32 v5, s31, v5")
    a("ds_read_b64_tr_b16 v[8:9], v5")
    a("ds_read_b64_tr_b16 v[10:11], v5 offset:640")
    a(f"ds_read_b64_tr_b16 v[12:13], v5 offset:{32*160}")
    a(f"ds_read_b64_tr_b16 v[14:15], v5 offset:{36*160}")
    a("v_and_b32 v6, 15, v1")
    a("v_lshlrev_b32 v6, 12, v6")
    a("v_lshl_add_u32 v6, v2, 4, v6")
    a("s_lshl_b32 s31, s27, 18")
    a("s_lshl_b32 s32, s24, 16")
    a("s_add_u32 s31, s31, s32")
    a("s_lshl_b32 s32, s26, 7")
    a("s_add_u32 s31, s31, s32")
    a(f"s_add_u32 s31, s31, {XT}") if XT else None
    a("v_add_u32 v6, s31, v6")
    a("s_waitcnt lgkmcnt(2)")
    a("global_store_dwordx4 v6, v[8:11], s[14:15]" + SC1)
    a("s_waitcnt lgkmcnt(0)")
    a("global_store_dwordx4 v6, v[12:15], s[14:15] offset:64" + SC1)
    a("s_cmp_ge_u32 s25, 192")
    a("s_cbranch_scc1 K1_END")
    a("s_cmp_lg_u32 s24, 0")
    a("s_cbranch_scc1 K1_END")
    a("v_and_b32 v2, 15, v1")
    a("v_lshrrev_b32 v3, 4, v1")
    a("v_lshlrev_b32 v4, 11, v3")
    a("v_lshl_add_u32 v4, v2, 2, v4")
    for i in range(32):
        a(f"ds_read_b32 v{16+i}, v4 offset:{10240+64*i}")
        if i == 14: a("s_waitcnt lgkmcnt(7)")
    a("s_waitcnt lgkmcnt(0)")
    for st in (16, 8, 4, 2, 1):
        for i in range(st):
            a(f"v_add_f32 v{16+i}, v{16+i}, v{16+st+i}")
    a("s_nop 0")
    a("v_mov_b32 v17, v16")
    a("s_nop 1")
    a("v_permlane16_swap_b32 v16, v17")
    a("s_nop 0")
    a("v_add_f32 v16, v16, v17")
    a("s_nop 0")
    a("v_mov_b32 v17, v16")
    a("s_nop 1")
    a("v_permlane32_swap_b32 v16, v17")
    a("s_nop 0")
    a("v_add_f32 v16, v16, v17")
    rbf(a, 16, 16)
    a("s_lshl_b32 s31, s33, 6")
    a(f"s_add_u32 s31, s31, {MODF}")
    a("v_lshl_add_u32 v5, v2, 2, s31")
    a("v_cmp_gt_u32 vcc, 16, v1")
    a("s_and_saveexec_b64 s[42:43], vcc")
    a("global_store_dword v5, v16, s[14:15]" + SC1)
    a("K1_END:   ; LINT-RESET")
    stamp_store(a, 0, 14, 24)
    a("K1_EXIT:")
    a.end_kernel(name, 160, 100)


KC_CH = 33280
CS    = 4160
UB    = 66560
CONV16 = OPT.get("conv16", "1") == "1"
USTR  = 96 if CONV16 else 80
U_CH  = 95 * USTR
SCR   = (UB + 2 * U_CH + 63) // 64 * 64
FLG   = SCR + 16384
SIDE  = FLG + 64
SIDE_SZ = 11520
K2_LDS = SIDE + 4 * SIDE_SZ
FLAGS_OFF = 0x0638000

def conv_main16(a, hb):
    steps = list(range(0, 21)) if hb == 0 else list(range(21, 64))
    SET = [64, 88, 112]
    tiles = lambda d: [cc for cc in range(4) if d <= 16 * cc + 15]
    def reads(k):
        d = steps[k]; b = SET[k % 3]
        out = [f"ds_read_b128 v[{b+4*mt}:{b+4*mt+3}], v2 offset:{64*d + 32*mt}" for mt in range(2)]
        for cc in tiles(d):
            r = b + 8 + 4 * cc
            out.append(f"ds_read_b128 v[{r}:{r+3}], v3 offset:{(31 + 16*cc - d)*USTR}")
        return out
    n = len(steps)
    for k in range(2):
        for x in reads(k): a(x)
    for k in range(n):
        d = steps[k]; b = SET[k % 3]
        nxt = reads(k + 2) if k + 2 < n else []
        a(f"s_waitcnt lgkmcnt({len(reads(k + 1)) if k + 1 < n else 0})")
        mf = []
        for cc in tiles(d):
            for mt in range(2):
                acc = 32 + (cc * 2 + mt) * 4
                mf.append(f"v_mfma_f32_16x16x32_bf16 v[{acc}:{acc+3}], v[{b+4*mt}:{b+4*mt+3}], v[{b+8+4*cc}:{b+8+4*cc+3}], v[{acc}:{acc+3}]")
        ri = 0
        for i, m in enumerate(mf):
            a(m)
            take = -(-(len(nxt) - ri) // (len(mf) - i))
            for _ in range(take):
                a(nxt[ri]); ri += 1

def conv_path(a, hb, tag):
    if hb == 0: steps = [(d, True) for d in range(24)]
    else: steps = [(d, True) for d in range(24, 32)] + [(d, False) for d in range(32, 64)]
    ACC = [32, 48]
    SET = [64, 88, 112]
    def reads(k):
        d, both = steps[k]; b = SET[k % 3]
        out = []
        for hf in (0, 1):
            out.append(f"ds_read_b128 v[{b+4*hf}:{b+4*hf+3}], v2 offset:{64*d + 32*(1-hf)}")
        tiles = (0, 1) if both else (1,)
        for t in tiles:
            for hf in (0, 1):
                r = b + 8 + 8 * t + 4 * hf
                out.append(f"ds_read_b128 v[{r}:{r+3}], v3 offset:{(31 + 32*t - d)*80 + 32*hf}")
        return out
    n = len(steps) if not CONV16 else 0
    if CONV16: conv_main16(a, hb)
    for k in range(2 if not CONV16 else 0):
        for x in reads(k): a(x)
    for k in range(n):
        d, both = steps[k]; b = SET[k % 3]
        nxt = reads(k + 2) if k + 2 < n else []
        after = len(nxt) + (len(reads(k + 1)) if k + 1 < n else 0)
        mf = []
        tiles = (0, 1) if both else (1,)
        for hf in (0, 1):
            for t in tiles:
                r = b + 8 + 8 * t + 4 * hf
                mf.append(f"v_mfma_f32_32x32x16_bf16 v[{ACC[t]}:{ACC[t]+15}], v[{b+4*hf}:{b+4*hf+3}], v[{r}:{r+3}], v[{ACC[t]}:{ACC[t]+15}]")
        after = len(reads(k + 1)) if k + 1 < n else 0
        a(f"s_waitcnt lgkmcnt({after})")
        per = -(-len(nxt) // len(mf)) if nxt else 0
        ri = 0
        for m in mf:
            a(m)
            for _ in range(per):
                if ri < len(nxt): a(nxt[ri]); ri += 1
    stamp(a, 6)
    give, keep = (ACC[1], ACC[0]) if hb == 0 else (ACC[0], ACC[1])
    a("s_nop 7")
    a("s_nop 3")
    for i in range(4):
        a(f"ds_write_b128 v4, v[{give+4*i}:{give+4*i+3}] offset:{1024*i}")
    for i in range(4):
        a(f"ds_read_b64 v[{64+2*i}:{65+2*i}], v6 offset:{(16*USTR*(i >> 1) + 32*(i & 1)) if CONV16 else 16*i}")
    a("s_waitcnt lgkmcnt(0)")
    a("v_mov_b32 v72, 1")
    a("ds_write_b32 v7, v72")
    a("s_mov_b32 s63, 0x400000")
    a(f"K2_poll{tag}:")
    a("ds_read_b32 v73, v8")
    a("s_waitcnt lgkmcnt(0)")
    a("v_readfirstlane_b32 s40, v73")
    a("s_sub_u32 s63, s63, 1")
    a("s_cmp_eq_u32 s63, 0")
    a(f"s_cbranch_scc1 K2_pollx{tag}")
    a("s_cmp_eq_u32 s40, 1")
    a(f"s_cbranch_scc0 K2_poll{tag}")
    a(f"K2_pollx{tag}:")
    for i in range(4):
        a(f"ds_read_b128 v[{80+4*i}:{83+4*i}], v5 offset:{1024*i}")
    for i in range(4):
        for q in range(2):
            a(f"v_lshlrev_b32 v{96+4*i+2*q}, 16, v{64+2*i+q}")
            a(f"v_and_b32 v{97+4*i+2*q}, 0xffff0000, v{64+2*i+q}")
    a("s_waitcnt vmcnt(0)")
    for i in range(4):
        for q in range(2):
            a(f"v_lshlrev_b32 v{112+4*i+2*q}, 16, v{144+2*i+q}")
            a(f"v_and_b32 v{113+4*i+2*q}, 0xffff0000, v{144+2*i+q}")
    a("s_waitcnt lgkmcnt(0)")
    for j in range(8):
        a(f"v_pk_add_f32 v[{keep+2*j}:{keep+2*j+1}], v[{keep+2*j}:{keep+2*j+1}], v[{80+2*j}:{81+2*j}]")
    for j in range(8):
        a(f"v_pk_fma_f32 v[{keep+2*j}:{keep+2*j+1}], v[{96+2*j}:{97+2*j}], s[36:37], v[{keep+2*j}:{keep+2*j+1}] op_sel_hi:[1,0,1]")
    for j in range(8):
        a(f"v_pk_fma_f32 v[{keep+2*j}:{keep+2*j+1}], v[{keep+2*j}:{keep+2*j+1}], s[36:37], v[{112+2*j}:{113+2*j}] op_sel:[0,1,0] op_sel_hi:[1,1,1]")
    for j in range(8):
        a(f"v_cvt_pk_bf16_f32 v{64+j}, v{keep+2*j}, v{keep+2*j+1}")
    for i in range(4):
        a(f"ds_write_b64 v10, v[{64+2*i}:{65+2*i}] offset:{(1280*(i >> 1) + 32*(i & 1)) if CONV16 else 16*i}")
    a("s_waitcnt lgkmcnt(0)")
    a("ds_read_b128 v[72:75], v11")
    a("ds_read_b128 v[76:79], v11 offset:1280")
    a("s_waitcnt lgkmcnt(1)")
    a("global_store_dwordx4 v9, v[72:75], s[14:15]" + SC1)
    a("s_waitcnt lgkmcnt(0)")
    a("global_store_dwordx4 v12, v[76:79], s[14:15]" + SC1)
    a("s_branch K2_END")

def side_load_and_stage(a):
    for i in range(8):
        a(f"buffer_load_dwordx4 v[{32+4*i}:{35+4*i}], v10, s[44:47], s49 offen nt")
        if i < 7: a("s_add_u32 s49, s49, s48")

def k2(a):
    name = "k2_kernel"
    a.begin_kernel(name, 256, 512, K2_LDS)
    a("s_cmp_ge_u32 s2, 256")
    a("s_cbranch_scc1 K2_EXIT")
    stamp(a, 0)
    a("s_load_dwordx2 s[14:15], s[0:1], 128")
    a("s_load_dwordx2 s[12:13], s[0:1], 48")
    a("s_load_dwordx2 s[16:17], s[0:1], 64")
    a("s_load_dwordx2 s[18:19], s[0:1], 80")
    wave_id(a, 24, 1)
    a("v_and_b32 v1, 63, v0")
    a("s_cmp_ge_u32 s24, 4")
    a("s_cbranch_scc1 K2_SIDE")
    a("s_lshl_b32 s27, s2, 1")
    a("s_lshr_b32 s25, s24, 1")
    a("s_and_b32 s26, s24, 1")
    a("s_lshl_b32 s28, s27, 12")
    a(f"s_add_u32 s28, s28, {XT}") if XT else None
    a("v_lshl_add_u32 v44, v0, 4, s28")
    a("v_add_u32 v45, 4096, v44")
    a("v_lshlrev_b32 v46, 5, v0")
    a(f"v_add_u32 v46, {STAT1}, v46")
    a(f"v_add_u32 v47, 8192, v46")
    a(f"s_mul_i32 s29, s27, {KW}")
    a(f"s_add_u32 s29, s29, {KREV + 4080}")
    a("v_lshlrev_b32 v48, 4, v0")
    a("v_sub_u32 v48, s29, v48")
    a(f"v_add_u32 v49, {KW}, v48")
    a("v_and_b32 v50, 31, v1")
    a("v_lshrrev_b32 v51, 5, v1")
    a("s_lshl_b32 s30, s25, 12")
    a("s_add_u32 s30, s30, s28")
    a("s_lshl_b32 s31, s26, 11")
    a("s_add_u32 s30, s30, s31")
    a("v_lshlrev_b32 v52, 6, v50")
    a("v_lshl_add_u32 v52, v51, 3, v52")
    a("v_add_u32 v52, s30, v52")
    a("s_lshl_b32 s32, s27, 2")
    a(f"s_add_u32 s33, s32, {MODF}")
    a(f"s_add_u32 s34, s32, {MODF + 2048}")
    a(f"s_add_u32 s35, s32, {MODF + 4096}")
    a("s_lshl_b32 s31, s2, 2")
    a("s_waitcnt lgkmcnt(0)")
    wsfix(a, 14)
    a("global_load_dwordx4 v[28:31], v48, s[14:15]")
    a("global_load_dwordx4 v[32:35], v48, s[14:15] offset:16")
    a("global_load_dwordx4 v[36:39], v49, s[14:15]")
    a("global_load_dwordx4 v[40:43], v49, s[14:15] offset:16")
    a("global_load_dwordx4 v[4:7], v44, s[14:15]")
    a("global_load_dwordx4 v[8:11], v45, s[14:15]")
    a("global_load_dwordx4 v[12:15], v46, s[14:15]")
    a("global_load_dwordx4 v[16:19], v46, s[14:15] offset:16")
    a("global_load_dwordx4 v[20:23], v47, s[14:15]")
    a("global_load_dwordx4 v[24:27], v47, s[14:15] offset:16")
    for i in range(4):
        a(f"global_load_dwordx2 v[{144+2*i}:{145+2*i}], v52, s[14:15] offset:{16*i}")
    a("s_load_dwordx2 s[50:51], s[14:15], s33")
    a("s_load_dwordx2 s[52:53], s[14:15], s34")
    a("s_load_dwordx2 s[54:55], s[14:15], s35")
    a("s_load_dword s56, s[12:13], s31")
    a("v_mov_b32 v56, 0\nv_mov_b32 v57, 0\nv_mov_b32 v58, 0\nv_mov_b32 v59, 0")
    a("v_mul_u32_u24 v53, 171, v0")
    a("v_lshrrev_b32 v53, 9, v53")
    a("v_mul_u32_u24 v54, 3, v53")
    a("v_sub_u32 v54, v0, v54")
    a(f"v_mul_u32_u24 v53, {CS}, v53")
    a("v_lshl_add_u32 v53, v54, 4, v53")
    a("v_cmp_gt_u32 vcc, 48, v0")
    a("s_and_saveexec_b64 s[42:43], vcc")
    a("ds_write_b128 v53, v[56:59]")
    a("s_mov_b64 exec, s[42:43]")
    a("v_lshlrev_b32 v53, 4, v0")
    a(f"v_add_u32 v53, {UB}, v53")
    a("v_cmp_gt_u32 vcc, 155, v0")
    a("s_and_saveexec_b64 s[42:43], vcc")
    a(f"ds_write_b128 v53, v[56:59]")
    a(f"ds_write_b128 v53, v[56:59] offset:{U_CH}")
    a("s_mov_b64 exec, s[42:43]")
    a("v_lshlrev_b32 v53, 2, v0")
    a("v_cmp_gt_u32 vcc, 4, v0")
    a("s_and_saveexec_b64 s[42:43], vcc")
    a(f"v_add_u32 v53, {FLG}, v53")
    a("ds_write_b32 v53, v56")
    a("s_mov_b64 exec, s[42:43]")
    a("v_and_b32 v53, 7, v50")
    a("v_lshrrev_b32 v54, 3, v50")
    a(f"v_mul_u32_u24 v2, {CS}, v53")
    a("v_sub_u32 v54, v54, v51")
    a("v_add_u32 v54, 1, v54")
    a("v_lshl_add_u32 v2, v54, 4, v2")
    a(f"s_mul_i32 s38, s25, {KC_CH}")
    a("v_add_u32 v2, s38, v2")
    a("v_mul_u32_u24 v3, 80, v50")
    a("v_lshl_add_u32 v3, v51, 4, v3")
    a(f"s_mul_i32 s38, s25, {U_CH}")
    a(f"s_add_u32 s38, s38, {UB}")
    a("v_add_u32 v3, s38, v3")
    a("v_lshlrev_b32 v55, 4, v0")
    a("v_add_u32 v55, 48, v55")
    for c in range(2):
        W = 28 + 8 * c
        a(f"s_waitcnt vmcnt({12 - 2*c})")
        V = 60
        for j in range(7): a(f"v_alignbit_b32 v{V+j}, v{W+j+1}, v{W+j}, 16")
        for j in range(1, 7): a(f"v_alignbit_b32 v{68+j-1}, v{W+j+1}, v{W+j}, 16")
        for j in range(1, 7): a(f"v_mov_b32 v{76+j-1}, v{W+j}")
        off = c * KC_CH
        a(f"ds_write_b128 v55, v[{W}:{W+3}] offset:{off + 7*CS}")
        a(f"ds_write_b128 v55, v[{W+2}:{W+5}] offset:{off + 3*CS}")
        a(f"ds_write_b128 v55, v[{V}:{V+3}] offset:{off + 6*CS}")
        a(f"ds_write_b128 v55, v[{V+2}:{V+5}] offset:{off + 2*CS}")
        a(f"ds_write_b128 v55, v[68:71] offset:{off + 4*CS}")
        a(f"ds_write_b128 v55, v[70:73] offset:{off + 0*CS}")
        a(f"ds_write_b128 v55, v[76:79] offset:{off + 5*CS}")
        a(f"ds_write_b128 v55, v[78:81] offset:{off + 1*CS}")
    a("s_waitcnt vmcnt(4) lgkmcnt(0)")
    a("v_add_f32 v60, 1.0, s52")
    a("v_add_f32 v61, 1.0, s53")
    rbf(a, 60, 60); rbf(a, 61, 61)
    a("s_nop 0")
    a("v_readfirstlane_b32 s58, v60")
    a("v_readfirstlane_b32 s60, v61")
    a("s_mov_b32 s59, s50")
    a("s_mov_b32 s61, s51")
    a("s_lshl_b32 s38, s25, 4")
    a("s_lshr_b32 s36, s56, s38")
    a("s_lshl_b32 s36, s36, 16")
    a("s_cmp_eq_u32 s25, 0")
    a("s_cselect_b32 s37, s54, s55")
    a("v_lshrrev_b32 v62, 2, v0")
    a("v_mul_u32_u24 v62, 80, v62")
    a("v_and_b32 v63, 3, v0")
    a("v_lshl_add_u32 v62, v63, 4, v62")
    a(f"v_add_u32 v62, {UB + 31*80}, v62")
    for c in range(2):
        X = 4 + 4 * c
        for q in range(4):
            a(f"v_lshlrev_b32 v{64+2*q}, 16, v{X+q}")
            a(f"v_and_b32 v{65+2*q}, 0xffff0000, v{X+q}")
        for q in range(4):
            a(f"v_pk_fma_f32 v[{64+2*q}:{65+2*q}], v[{64+2*q}:{65+2*q}], v[{12+2*q}:{13+2*q}], v[{20+2*q}:{21+2*q}]")
        for q in range(4):
            a(f"v_pk_fma_f32 v[{64+2*q}:{65+2*q}], v[{64+2*q}:{65+2*q}], s[{58+2*c}:{59+2*c}], s[{58+2*c}:{59+2*c}] op_sel:[0,0,1] op_sel_hi:[1,0,1]")
        for q in range(4):
            a(f"v_cvt_pk_bf16_f32 v{72+4*c+q}, v{64+2*q}, v{65+2*q}")
        a(f"ds_write_b128 v62, v[{72+4*c}:{75+4*c}] offset:{c*U_CH}")
    a("s_lshl_b32 s38, s24, 12")
    a(f"s_add_u32 s38, s38, {SCR}")
    a("v_lshl_add_u32 v4, v1, 4, s38")
    a("s_xor_b32 s39, s24, 1")
    a("s_lshl_b32 s38, s39, 12")
    a(f"s_add_u32 s38, s38, {SCR}")
    a("v_lshl_add_u32 v5, v1, 4, s38")
    a("s_lshl_b32 s38, s24, 2")
    a(f"s_add_u32 s38, s38, {FLG}")
    a("v_mov_b32 v7, s38")
    a("s_lshl_b32 s38, s39, 2")
    a(f"s_add_u32 s38, s38, {FLG}")
    a("v_mov_b32 v8, s38")
    a("v_mul_u32_u24 v6, 80, v50")
    a("v_lshl_add_u32 v6, v51, 3, v6")
    a(f"s_mul_i32 s38, s25, {U_CH}")
    a(f"s_mul_i32 s39, s26, {32*80}")
    a("s_add_u32 s38, s38, s39")
    a(f"s_add_u32 s38, s38, {UB + 31*80}")
    a("v_add_u32 v6, s38, v6")
    a("s_add_u32 s38, s27, s25")
    a("s_lshl_b32 s38, s38, 7")
    a("s_lshl_b32 s39, s26, 20")
    a("s_add_u32 s38, s38, s39")
    a(f"s_add_u32 s38, s38, {X2T}")
    a("v_lshrrev_b32 v9, 3, v1")
    a("v_lshlrev_b32 v9, 16, v9")
    a("v_and_b32 v63, 7, v1")
    a("v_lshl_add_u32 v9, v63, 4, v9")
    a("v_add_u32 v9, s38, v9")
    a("v_add_u32 v12, 0x80000, v9")
    a(f"s_mul_i32 s38, s25, {KC_CH}")
    a("s_mul_i32 s39, s26, 2560")
    a("s_add_u32 s38, s38, s39")
    a("v_mul_u32_u24 v10, 80, v50")
    a("v_lshl_add_u32 v10, v51, 3, v10")
    a("v_add_u32 v10, s38, v10")
    a("v_lshrrev_b32 v11, 2, v1")
    a("v_mul_u32_u24 v11, 80, v11")
    a("v_and_b32 v63, 3, v1")
    a("v_lshl_add_u32 v11, v63, 4, v11")
    a("v_add_u32 v11, s38, v11")
    for r in range(32, 64): a(f"v_mov_b32 v{r}, 0")
    stamp(a, 1)
    a("s_waitcnt lgkmcnt(0)")
    a("s_barrier")
    stamp(a, 2)
    a("s_cmp_eq_u32 s26, 0")
    a("s_cbranch_scc0 K2_B")
    conv_path(a, 0, "A")
    a("K2_B:   ; LINT-RESET")
    conv_path(a, 1, "B")
    a("K2_SIDE:   ; LINT-RESET")
    a("s_sub_u32 s25, s24, 4")
    a("s_lshl_b32 s26, s25, 8")
    a("s_add_u32 s26, s26, s2")
    a(f"s_mul_i32 s27, s25, {SIDE_SZ}")
    a(f"s_add_u32 s27, s27, {SIDE}")
    a("s_cmp_gt_u32 s26, 348")
    a("s_cbranch_scc1 K2_SIDE_IDLE")
    a("s_cmp_eq_u32 s26, 348")
    a("s_cbranch_scc1 K2_TAB")
    a("v_lshrrev_b32 v2, 2, v1")
    a("v_and_b32 v3, 3, v1")
    a("v_lshrrev_b32 v4, 4, v1")
    a("v_bfe_u32 v5, v1, 2, 2")
    a("v_mul_u32_u24 v11, 80, v2")
    a("v_lshl_add_u32 v11, v3, 4, v11")
    a("v_add_u32 v11, s27, v11")
    a("v_lshl_add_u32 v12, v4, 2, v5")
    a("v_mul_u32_u24 v12, 80, v12")
    a("v_lshl_add_u32 v12, v3, 3, v12")
    a("v_add_u32 v12, s27, v12")
    a("s_cmp_ge_u32 s26, 172")
    a("s_cbranch_scc1 K2_W2")
    a("s_mul_i32 s28, s26, 1525")
    a("s_lshr_b32 s28, s28, 16")
    a("s_mul_i32 s29, s28, 43")
    a("s_sub_u32 s29, s26, s29")
    a("v_mul_u32_u24 v10, 2752, v2")
    a("v_lshl_add_u32 v10, v3, 4, v10")
    a(f"s_mul_i32 s49, s28, {128*2752}")
    a("s_lshl_b32 s30, s29, 6")
    a("s_add_u32 s49, s49, s30")
    a(f"s_mov_b32 s48, {16*2752}")
    a("s_lshl_b32 s31, s28, 9")
    a("v_lshl_add_u32 v13, v1, 2, s31")
    a(f"v_add_u32 v13, {MODF + 3*2048}, v13")
    a("v_add_u32 v14, 2048, v13")
    a("s_waitcnt lgkmcnt(0)")
    wsfix(a, 14)
    a.srd(44, 16, 512 * 1376 * 2)
    a("global_load_dword v20, v13, s[14:15]")
    a("global_load_dword v21, v13, s[14:15] offset:256")
    a("global_load_dword v22, v14, s[14:15]")
    a("global_load_dword v23, v14, s[14:15] offset:256")
    side_load_and_stage(a)
    a("s_barrier")
    a("s_waitcnt vmcnt(8)")
    a("v_add_f32 v22, 1.0, v22")
    a("v_add_f32 v23, 1.0, v23")
    rbf(a, 22, 22); rbf(a, 23, 23)
    a("v_lshl_add_u32 v15, v1, 2, s27")
    a("v_lshl_add_u32 v16, v1, 1, s27")
    a("ds_write_b32 v15, v22 offset:10240")
    a("ds_write_b32 v15, v23 offset:10496")
    a("ds_write_b16_d16_hi v16, v20 offset:10752")
    a("ds_write_b16_d16_hi v16, v21 offset:10880")
    for i in range(8):
        a(f"s_waitcnt vmcnt({7-i})")
        a(f"ds_write_b128 v11, v[{32+4*i}:{35+4*i}] offset:{16*80*i}")
    a("v_and_b32 v17, 15, v1")
    a("v_cmp_eq_u32 s[50:51], 0, v17")
    a("v_cmp_eq_u32 s[52:53], 1, v17")
    a("v_mov_b32 v18, 0")
    a("v_mov_b32 v19, 0x3f803f80")
    a("v_cndmask_b32 v18, v18, v19, s[50:51]")
    a("v_mov_b32 v19, 0")
    a("v_cndmask_b32 v19, v19, -1, s[52:53]")
    a("v_lshl_add_u32 v24, v4, 4, s27")
    a("v_lshl_add_u32 v25, v4, 3, s27")
    for r in range(96, 112): a(f"v_mov_b32 v{r}, 0")
    a("s_lshl_b32 s30, s29, 11")
    a(f"s_mul_i32 s31, s28, {4*87*1024}")
    a("s_add_u32 s30, s30, s31")
    a(f"s_add_u32 s30, s30, {W1F}")
    a("v_lshl_add_u32 v26, v1, 4, s30")
    a("s_waitcnt lgkmcnt(0)")
    for ks in range(4):
        a(f"ds_read_b128 v[32:35], v24 offset:{10240 + 128*ks}")
        a(f"ds_read_b128 v[36:39], v24 offset:{10240 + 128*ks + 64}")
        a(f"ds_read_b64 v[40:41], v25 offset:{10752 + 64*ks}")
        a(f"ds_read_b64 v[42:43], v25 offset:{10752 + 64*ks + 32}")
        for nt in range(2):
            for hf in range(2):
                a(f"ds_read_b64_tr_b16 v[{44+4*nt+2*hf}:{45+4*nt+2*hf}], v12 offset:{(32*ks+16*hf)*80 + 32*nt}")
        a("s_waitcnt lgkmcnt(4)")
        for q in range(4): a(f"v_and_or_b32 v{40+q}, v{40+q}, v19, v18")
        a("s_waitcnt lgkmcnt(0)")
        for nt in range(2):
            R = 44 + 4 * nt
            for q in range(4):
                a(f"v_lshlrev_b32 v{52+2*q}, 16, v{R+q}")
                a(f"v_and_b32 v{53+2*q}, 0xffff0000, v{R+q}")
            a(f"v_mfma_f32_16x16x32_bf16 v[{96+4*nt}:{99+4*nt}], v[{R}:{R+3}], v[40:43], v[{96+4*nt}:{99+4*nt}]")
            for q in range(4):
                a(f"v_pk_mul_f32 v[{52+2*q}:{53+2*q}], v[{52+2*q}:{53+2*q}], v[{32+2*q}:{33+2*q}]")
            S = 60 + 4 * nt
            for q in range(4):
                a(f"v_cvt_pk_bf16_f32 v{S+q}, v{52+2*q}, v{53+2*q}")
            a(f"global_store_dwordx4 v26, v[{S}:{S+3}], s[14:15] offset:{1024*nt}" + SC1)
            if nt == 1: a(f"v_add_u32 v26, {87*1024}, v26")
            a("s_nop 0")
            a(f"v_mfma_f32_16x16x32_bf16 v[{104+4*nt}:{107+4*nt}], v[{S}:{S+3}], v[40:43], v[{104+4*nt}:{107+4*nt}]")
    a(f"s_mul_i32 s30, s28, {3*5504}")
    a("s_lshl_b32 s31, s29, 7")
    a("s_add_u32 s30, s30, s31")
    a(f"s_add_u32 s30, s30, {SVP}")
    a("v_lshl_add_u32 v28, v4, 4, s30")
    a("v_add_u32 v29, 5504, v28")
    a("v_add_u32 v30, 5504, v29")
    a("s_nop 7")
    a("s_mov_b64 s[42:43], exec")
    a("s_mov_b64 exec, s[50:51]")
    for nt in range(2):
        a(f"global_store_dwordx4 v28, v[{104+4*nt}:{107+4*nt}], s[14:15] offset:{64*nt}" + SC1)
        a(f"global_store_dwordx4 v30, v[{96+4*nt}:{99+4*nt}], s[14:15] offset:{64*nt}" + SC1)
    a("s_mov_b64 exec, s[52:53]")
    for nt in range(2):
        a(f"global_store_dwordx4 v29, v[{96+4*nt}:{99+4*nt}], s[14:15] offset:{64*nt}" + SC1)
    a("s_mov_b64 exec, s[42:43]")
    a("s_branch K2_END")
    a("K2_W2:   ; LINT-RESET")
    a("s_sub_u32 s26, s26, 172")
    a("s_and_b32 s29, s26, 15")
    a("s_lshr_b32 s28, s26, 4")
    a("v_lshlrev_b32 v10, 10, v2")
    a("v_lshl_add_u32 v10, v3, 4, v10")
    a("s_lshl_b32 s30, s29, 6")
    a("s_waitcnt lgkmcnt(0)")
    wsfix(a, 14)
    a.srd(44, 18, 1376 * 512 * 2)
    for ks in range(4):
        a("s_lshl_b32 s31, s28, 2")
        a(f"s_add_u32 s31, s31, {ks}")
        a("s_mul_i32 s32, s31, 13")
        a("s_lshr_b32 s32, s32, 6")
        a("s_mul_i32 s33, s32, 5")
        a("s_sub_u32 s33, s31, s33")
        a("s_mul_i32 s32, s32, 11")
        a("s_min_u32 s32, s32, 76")
        a("s_lshl_b32 s33, s33, 1")
        a("s_add_u32 s32, s32, s33")
        a("s_add_u32 s33, s32, 1")
        a("s_sub_u32 s34, s31, 40")
        a("s_mul_i32 s34, s34, 22")
        a("s_add_u32 s35, s34, 21")
        a("s_add_u32 s34, s34, 10")
        a("s_cmp_lt_u32 s31, 40")
        a("s_cselect_b32 s32, s32, s34")
        a("s_cselect_b32 s33, s33, s35")
        for hf, sr in ((0, 32), (1, 33)):
            a(f"s_lshl_b32 s49, s{sr}, 14")
            a("s_add_u32 s49, s49, s30")
            i = 2 * ks + hf
            a(f"buffer_load_dwordx4 v[{32+4*i}:{35+4*i}], v10, s[44:47], s49 offen nt")
    a("s_barrier")
    for i in range(8):
        a(f"s_waitcnt vmcnt({7-i})")
        a(f"ds_write_b128 v11, v[{32+4*i}:{35+4*i}] offset:{16*80*i}")
    a("s_lshr_b32 s30, s29, 1")
    a("s_mul_i32 s30, s30, 43")
    a("s_lshl_b32 s31, s28, 2")
    a("s_add_u32 s30, s30, s31")
    a("s_lshl_b32 s30, s30, 12")
    a("s_and_b32 s31, s29, 1")
    a("s_lshl_b32 s31, s31, 11")
    a("s_add_u32 s30, s30, s31")
    a(f"s_add_u32 s30, s30, {W2F}")
    a("v_lshl_add_u32 v26, v1, 4, s30")
    a("s_waitcnt lgkmcnt(0)")
    for ks in range(4):
        if ks == 3:
            a("s_cmp_eq_u32 s28, 10")
            a("s_cbranch_scc1 K2_END")
        for nt in range(2):
            for hf in range(2):
                a(f"ds_read_b64_tr_b16 v[{44+4*nt+2*hf}:{45+4*nt+2*hf}], v12 offset:{(32*ks+16*hf)*80 + 32*nt}")
        a("s_waitcnt lgkmcnt(2)")
        a(f"global_store_dwordx4 v26, v[44:47], s[14:15]" + SC1)
        a("s_waitcnt lgkmcnt(0)")
        a(f"global_store_dwordx4 v26, v[48:51], s[14:15] offset:1024" + SC1)
        a("v_add_u32 v26, 4096, v26")
    a("s_branch K2_END")
    a("K2_TAB:   ; LINT-RESET")
    a("v_lshlrev_b32 v2, 5, v1")
    a(f"v_add_u32 v2, {MODF + 3*2048}, v2")
    a("v_add_u32 v3, 2048, v2")
    a("s_waitcnt lgkmcnt(0)")
    wsfix(a, 14)
    a("global_load_dwordx4 v[32:35], v2, s[14:15]")
    a("global_load_dwordx4 v[36:39], v2, s[14:15] offset:16")
    a("global_load_dwordx4 v[40:43], v3, s[14:15]")
    a("global_load_dwordx4 v[44:47], v3, s[14:15] offset:16")
    a("s_barrier")
    a("s_waitcnt vmcnt(0)")
    for j in range(8): a(f"v_add_f32 v{40+j}, 1.0, v{40+j}")
    for j in range(8): rbf(a, 40 + j, 40 + j)
    for j in range(8): a(f"v_mul_f32 v{48+j}, v{40+j}, v{40+j}")
    for j in range(8): a(f"v_mul_f32 v{56+j}, v{40+j}, v{32+j}")
    for k, base in enumerate((40, 48, 56, 32)):
        a(f"v_add_f32 v{100+k}, v{base}, v{base+1}")
        for j in range(2, 8): a(f"v_add_f32 v{100+k}, v{100+k}, v{base+j}")
    a("v_mul_f32 v104, v32, v32")
    for j in range(1, 8): a(f"v_fmac_f32 v104, v{32+j}, v{32+j}")
    a("v_lshl_add_u32 v4, v1, 4, s27")
    a("v_mov_b32 v64, 0x3f803f80\nv_mov_b32 v65, 0x3f803f80\nv_mov_b32 v66, 0x3f803f80\nv_mov_b32 v67, 0x3f803f80")
    a("ds_write_b128 v4, v[64:67]")
    for q in range(4): a(f"v_cvt_pk_bf16_f32 v{68+q}, v{40+2*q}, v{41+2*q}")
    a("ds_write_b128 v4, v[68:71] offset:1024")
    for (src, row) in ((48, 2), (56, 4)):
        for q in range(4): a(f"v_cvt_pk_bf16_f32 v{72+q}, v{src+2*q}, v{src+2*q+1}")
        a(f"ds_write_b128 v4, v[72:75] offset:{1024*row}")
        for q in range(4):
            a(f"v_lshlrev_b32 v{80+2*q}, 16, v{72+q}")
            a(f"v_and_b32 v{81+2*q}, 0xffff0000, v{72+q}")
        for j in range(8): a(f"v_sub_f32 v{80+j}, v{src+j}, v{80+j}")
        for q in range(4): a(f"v_cvt_pk_bf16_f32 v{76+q}, v{80+2*q}, v{81+2*q}")
        a(f"ds_write_b128 v4, v[76:79] offset:{1024*(row+1)}")
    a("s_nop 1")
    for ctl in ("row_shr:1", "row_shr:2", "row_shr:4", "row_shr:8", "row_bcast:15 row_mask:0xa", "row_bcast:31 row_mask:0xc"):
        for r in range(100, 105):
            a(f"v_add_f32_dpp v{r}, v{r}, v{r} {ctl}")
    a(f"v_mov_b32 v5, {SCAL}")
    a("s_mov_b64 s[42:43], exec")
    a("s_mov_b64 exec, 0x8000000000000000") if False else None
    a("v_cmp_eq_u32 vcc, 63, v1")
    a("s_and_saveexec_b64 s[42:43], vcc")
    a("global_store_dwordx4 v5, v[100:103], s[14:15]" + SC1)
    a("global_store_dword v5, v104, s[14:15] offset:16" + SC1)
    a("s_mov_b64 exec, s[42:43]")
    a("v_and_b32 v6, 15, v1")
    a("v_lshrrev_b32 v7, 4, v1")
    a("v_min_u32 v8, 5, v6")
    a("v_lshlrev_b32 v8, 10, v8")
    a("v_lshl_add_u32 v8, v7, 3, v8")
    a("v_add_u32 v8, s27, v8")
    a("v_cmp_gt_u32 vcc, 6, v6")
    a("v_mov_b32 v9, 0")
    a("s_nop 0")
    a("v_cndmask_b32 v9, v9, -1, vcc")
    a(f"s_mov_b32 s30, {W1F + 86*1024}")
    a("v_lshl_add_u32 v10, v1, 4, s30")
    a("s_waitcnt lgkmcnt(0)")
    for ks in range(16):
        R = 16 + 4 * (ks & 1)
        a(f"ds_read_b64 v[{R}:{R+1}], v8 offset:{64*ks}")
        a(f"ds_read_b64 v[{R+2}:{R+3}], v8 offset:{64*ks+32}")
        a("s_waitcnt lgkmcnt(0)")
        for q in range(4): a(f"v_and_b32 v{R+q}, v{R+q}, v9")
        a(f"global_store_dwordx4 v10, v[{R}:{R+3}], s[14:15]" + SC1)
        a(f"v_add_u32 v10, {87*1024}, v10")
    a("s_branch K2_END")
    a("K2_SIDE_IDLE:   ; LINT-RESET")
    a("s_cmp_eq_u32 s26, 349")
    a("s_cbranch_scc0 K2_idle2")
    a("s_waitcnt lgkmcnt(0)")
    wsfix(a, 14)
    a("v_mov_b32 v4, 0\nv_mov_b32 v5, 0\nv_mov_b32 v6, 0\nv_mov_b32 v7, 0")
    a("v_lshlrev_b32 v2, 4, v1")
    a(f"v_add_u32 v2, {FLAGS_OFF}, v2")
    for q in range(4):
        a(f"global_store_dwordx4 v2, v[4:7], s[14:15] offset:{1024*q} sc1")
    a("K2_idle2:")
    a("s_barrier")
    a("K2_END:   ; LINT-RESET")
    stamp_store(a, 1, 14, 24)
    a("K2_EXIT:")
    a.end_kernel(name, 160, 100)


KG   = SIDE + 4 * SIDE_SZ
KG_PAR = KG
KG_T16 = KG + 4096
KG_REV = KG + 4096 + 2816
LF   = KG_REV + 2 * 4160
K12_LDS = LF + 64
KG_PART = SCR
GBAR = 0x0639000
WCNT = GBAR + 10752

_sync_id = [0]
def wsync(a, addr, n, vt, st, add=True):
    _sync_id[0] += 1
    L = f"WS_{_sync_id[0]}"
    a("s_waitcnt lgkmcnt(0)")
    if isinstance(addr, str): a(f"v_mov_b32 v{vt}, {addr}")
    else: a(f"v_mov_b32 v{vt}, {addr}")
    if add:
        a(f"v_mov_b32 v{vt+1}, 1")
        a("s_mov_b64 exec, 1")
        a(f"ds_add_u32 v{vt}, v{vt+1}")
        a("s_mov_b64 exec, -1")
    a("s_mov_b32 s63, 0x400000")
    a(f"{L}:")
    a(f"ds_read_b32 v{vt+1}, v{vt}")
    a("s_waitcnt lgkmcnt(0)")
    a(f"v_readfirstlane_b32 s{st}, v{vt+1}")
    a("s_sub_u32 s63, s63, 1")
    a("s_cmp_eq_u32 s63, 0")
    a(f"s_cbranch_scc1 {L}_x")
    a(f"s_cmp_ge_u32 s{st}, {n}")
    a(f"s_cbranch_scc0 {L}")
    a(f"{L}_x:")

def k12(a):
    name = "k12_kernel"
    a.begin_kernel(name, 256, 512, K12_LDS)
    a("s_cmp_ge_u32 s2, 256")
    a("s_cbranch_scc1 K2_EXIT")
    stamp(a, 0)
    a("s_load_dwordx8 s[4:11], s[0:1], 8")
    a("s_load_dwordx4 s[44:47], s[0:1], 40")
    a("s_load_dwordx2 s[14:15], s[0:1], 128")
    a("s_load_dwordx2 s[16:17], s[0:1], 0")
    a("s_load_dwordx2 s[18:19], s[0:1], 120")
    a("s_load_dwordx4 s[20:23], s[0:1], 96")
    a("s_load_dwordx2 s[48:49], s[0:1], 64")
    a("s_load_dwordx2 s[12:13], s[0:1], 80")
    wave_id(a, 24, 1)
    a("v_and_b32 v1, 63, v0")
    a("v_lshlrev_b32 v2, 2, v0")
    a(f"v_add_u32 v2, {LF}, v2")
    a("v_mov_b32 v3, 0")
    a("v_cmp_gt_u32 vcc, 16, v0")
    a("s_and_saveexec_b64 s[42:43], vcc")
    a("ds_write_b32 v2, v3")
    a("s_mov_b64 exec, s[42:43]")
    a("s_cmp_ge_u32 s24, 4")
    a("s_cbranch_scc1 K12_SIDE0")
    a("s_lshr_b32 s25, s24, 1")
    a("s_and_b32 s26, s24, 1")
    a("s_lshl_b32 s62, s2, 1")
    a("s_add_u32 s27, s62, s25")
    a("s_lshl_b32 s28, s27, 8")
    a("s_lshl_b32 s29, s26, 7")
    a("s_add_u32 s28, s28, s29")
    a("v_lshl_add_u32 v2, v1, 1, s28")
    a("s_lshl_b32 s30, s2, 2")
    a("s_waitcnt lgkmcnt(0)")
    wsfix(a, 14)
    a("global_load_ushort v4, v2, s[4:5] nt")
    a("global_load_ushort v5, v2, s[6:7] nt")
    a("global_load_ushort v6, v2, s[8:9] nt")
    a("global_load_ushort v7, v2, s[10:11] nt")
    a("s_load_dword s29, s[44:45], s30")
    a("s_load_dword s56, s[46:47], s30")
    a("s_branch K12_CONV0")
    a("K12_SIDE0:   ; LINT-RESET")
    a("s_setprio 3")
    a("s_sub_u32 s25, s24, 4")
    a("s_and_b32 s28, s2, 7")
    a("s_lshr_b32 s29, s2, 3")
    a("s_lshr_b32 s26, s29, 3")
    a("s_lshl_b32 s27, s28, 2")
    a("s_add_u32 s26, s26, s27")
    a("s_and_b32 s27, s29, 7")
    a("s_lshl_b32 s30, s28, 8")
    a("s_lshl_b32 s31, s29, 3")
    a("s_add_u32 s30, s30, s31")
    a("s_lshl_b32 s31, s25, 1")
    a("s_add_u32 s30, s30, s31")
    a(f"s_mul_i32 s57, s25, {SIDE_SZ}")
    a(f"s_add_u32 s57, s57, {SIDE}")
    a("v_subrev_u32 v30, 256, v0")
    a("s_lshl_b32 s28, s26, 16")
    a("s_lshl_b32 s29, s27, 7")
    a("s_add_u32 s28, s28, s29")
    a("v_lshrrev_b32 v2, 3, v30")
    a("v_and_b32 v3, 7, v30")
    a("v_lshlrev_b32 v4, 10, v2")
    a("v_lshl_add_u32 v4, v3, 4, v4")
    a("v_add_u32 v4, s28, v4")
    a("v_add_u32 v5, 0x8000, v4")
    a("s_lshl_b32 s31, s30, 10")
    a("v_lshl_add_u32 v6, v1, 4, s31")
    a("s_and_b32 s33, s2, 7")
    a("s_mul_i32 s33, s33, 6")
    a("s_lshr_b32 s34, s2, 5")
    a("s_add_u32 s33, s33, s34")
    a("s_bfe_u32 s34, s2, 0x20003")
    a("s_lshl_b32 s35, s34, 7")
    a("v_add_u32 v7, s35, v2")
    a("v_mul_u32_u24 v25, 6144, v7")
    a("v_lshl_add_u32 v25, v3, 4, v25")
    a("s_lshl_b32 s35, s33, 7")
    a("v_add_u32 v25, s35, v25")
    a(f"v_add_u32 v26, {32*6144}, v25")
    a(f"v_add_u32 v27, {32*6144}, v26")
    a(f"v_add_u32 v28, {32*6144}, v27")
    a("v_lshlrev_b32 v29, 1, v7")
    a("s_waitcnt lgkmcnt(0)")
    wsfix(a, 14)
    NTX = " nt" if OPT.get("ntx", "0") == "1" else ""
    NTS = " nt" if OPT.get("nts", "0") == "1" else ""
    NTW = " nt" if OPT.get("ntw", "1") == "1" else ""
    a("global_load_dwordx4 v[8:11], v4, s[16:17]" + NTX)
    a("global_load_dwordx4 v[12:15], v5, s[16:17]" + NTX)
    a("global_load_dwordx4 v[16:19], v6, s[16:17]" + NTS)
    a("global_load_dwordx4 v[20:23], v6, s[16:17] offset:1024" + NTS)
    a("s_cmp_ge_u32 s2, 192")
    a("s_cbranch_scc1 K1_nomodld")
    for k in range(4): a(f"global_load_ushort v{48+k}, v29, s[20:21] offset:{64*k}")
    for k, vo in enumerate((25, 26, 27, 28)):
        a(f"global_load_dwordx4 v[{32+4*k}:{35+4*k}], v{vo}, s[22:23]" + NTW)
    a("K1_nomodld:")
    if OPT.get("cpf", "1") == "1":
        a("s_sub_u32 s65, s2, 192")
        a("s_cmp_ge_u32 s65, 16")
        a("s_cbranch_scc1 K12_nocpf")
        a("s_cmp_lg_u32 s24, 7")
        a("s_cbranch_scc1 K12_nocpf")
        code_prefetch(a, "k12_kernel", LASTLABEL, 6, "k1", 199, 200)
        a("K12_nocpf:")
    a("s_branch K2_SIDE")
    a("K12_CONV0:   ; LINT-RESET")
    a("s_barrier")
    a("s_cmp_eq_u32 s2, 255")
    a("s_cselect_b32 s64, 1, 0")
    a("s_cmp_eq_u32 s24, 0")
    a("s_cselect_b32 s64, s64, 0")
    a("s_cmp_eq_u32 s64, 1")
    a("s_cbranch_scc0 K12_noinit")
    a("v_mov_b32 v64, 0\nv_mov_b32 v65, 0\nv_mov_b32 v66, 0\nv_mov_b32 v67, 0")
    a("v_lshlrev_b32 v68, 4, v1")
    a(f"v_add_u32 v68, {FLAGS_OFF}, v68")
    for q in range(16):
        a(f"global_store_dwordx4 v68, v[64:67], s[14:15] sc1")
        if q < 15: a("v_add_u32 v68, 1024, v68")
    a("K12_noinit:   ; LINT-RESET")
    a("v_mov_b32 v56, 0\nv_mov_b32 v57, 0\nv_mov_b32 v58, 0\nv_mov_b32 v59, 0")
    a("v_mul_u32_u24 v53, 171, v0")
    a("v_lshrrev_b32 v53, 9, v53")
    a("v_mul_u32_u24 v54, 3, v53")
    a("v_sub_u32 v54, v0, v54")
    a(f"v_mul_u32_u24 v53, {CS}, v53")
    a("v_lshl_add_u32 v53, v54, 4, v53")
    a("v_cmp_gt_u32 vcc, 48, v0")
    a("s_and_saveexec_b64 s[42:43], vcc")
    a("ds_write_b128 v53, v[56:59]")
    a("s_mov_b64 exec, s[42:43]")
    a("v_lshlrev_b32 v53, 4, v0")
    a(f"v_add_u32 v53, {UB}, v53")
    a(f"v_cmp_gt_u32 vcc, {31 * USTR // 16}, v0")
    a("s_and_saveexec_b64 s[42:43], vcc")
    a(f"ds_write_b128 v53, v[56:59]")
    a(f"ds_write_b128 v53, v[56:59] offset:{U_CH}")
    a("s_mov_b64 exec, s[42:43]")
    a("v_and_b32 v16, 15, v1")
    a("v_cmp_eq_u32 s[32:33], 15, v16")
    a("v_lshrrev_b32 v18, 4, v1")
    a("v_add_u32 v19, 1, v16")
    a("v_cvt_f32_u32 v19, v19")
    a("s_lshl_b32 s31, s24, 10")
    a(f"s_add_u32 s31, s31, {KG_PAR}")
    a("v_lshl_add_u32 v17, v18, 6, s31")
    a("v_lshl_add_u32 v20, v1, 4, s31")
    for r in range(112, 128): a(f"v_mov_b32 v{r}, 0")
    a("s_mul_i32 s39, s25, 1344")
    a(f"s_add_u32 s39, s39, {KG_T16 + 8}")
    a("v_subrev_u32 v21, 7, v16")
    a("v_cmp_gt_u32 s[34:35], 8, v21")
    a("v_add_u32 v21, 1, v16")
    a("v_and_b32 v21, 15, v21")
    a("v_lshlrev_b32 v24, 5, v21")
    a("v_lshl_add_u32 v24, v18, 3, v24")
    a("s_lshl_b32 s40, s26, 9")
    a("s_add_u32 s40, s40, s39")
    a("v_add_u32 v24, s40, v24")
    a("s_cmp_eq_u32 s26, 0")
    a("s_cselect_b64 s[36:37], -1, s[34:35]")
    a("s_lshl_b32 s40, s24, 12")
    a(f"s_add_u32 s40, s40, {KG_PART}")
    a("v_lshl_add_u32 v22, v1, 4, s40")
    a("s_lshl_b32 s40, s25, 13")
    a("s_lshl_b32 s41, s26, 11")
    a("s_add_u32 s40, s40, s41")
    a(f"s_add_u32 s40, s40, {KG_PART}")
    a("v_lshl_add_u32 v23, v1, 4, s40")
    a("s_lshl_b32 s40, s26, 6")
    a("v_add_u32 v26, s40, v1")
    a("v_lshlrev_b32 v27, 3, v26")
    a("v_sub_u32 v27, 2047, v27")
    a("v_cvt_f32_u32 v28, v27")
    a("s_sub_u32 s41, s39, 34050")
    a("s_sub_u32 s42, s39, 2")
    GA = 140
    for rnd in range(2):
        if rnd == 1:
            a("v_add_f32 v28, 0xc4800000, v28")
            a("v_subrev_u32 v27, 1024, v27")
        for t in range(8):
            if t == 0: a(f"v_mov_b32 v48, v28")
            else: a(f"v_add_f32 v{48+t}, {-float(t)}, v28")
        for p in range(4): a(f"v_cvt_pk_bf16_f32 v{56+p}, v{48+2*p}, v{49+2*p}")
        for p in range(4):
            a(f"v_and_b32 v{48+2*p}, 0xffff, v{56+p}")
            a(f"v_lshrrev_b32 v{49+2*p}, 16, v{56+p}")
        o = GA + 8 * rnd
        for t in range(8): a(f"v_lshl_add_u32 v{o+t}, v{48+t}, 1, s41")
        if rnd == 1:
            a("v_cmp_le_u32 vcc, 112, v26")
            for t in range(8):
                a(f"v_subrev_u32 v{56+(t&3)}, {t}, v27")
                a(f"v_lshl_add_u32 v{56+(t&3)}, v{56+(t&3)}, 1, s42")
                a(f"v_cndmask_b32 v{o+t}, v{o+t}, v{56+(t&3)}, vcc")
    a(f"s_mul_i32 s40, s25, 4160")
    a(f"s_add_u32 s40, s40, {KG_REV}")
    a("v_lshl_add_u32 v29, v26, 4, s40")
    a("s_add_u32 s41, s40, 4080")
    a("v_lshlrev_b32 v30, 4, v26")
    a("v_sub_u32 v30, s41, v30")
    a(f"s_mul_i32 s41, s25, {KC_CH}")
    a("s_add_u32 s41, s41, 48")
    a("v_lshl_add_u32 v31, v26, 4, s41")
    a("s_waitcnt lgkmcnt(0)")
    a("s_lshl_b32 s40, s25, 4")
    a("s_lshr_b32 s29, s29, s40")
    a("s_lshl_b32 s29, s29, 16")
    a(f"v_mov_b32 v8, {LOG2E}")
    a("v_mul_f32 v9, s29, v8")
    a("v_exp_f32 v9, v9")
    a("s_nop 0")
    rbf(a, 9, 9)
    a("s_waitcnt vmcnt(0)")
    a("s_cmp_eq_u32 s64, 1")
    a("s_cbranch_scc0 K12_nopub")
    a("v_mov_b32 v68, 0")
    a("v_mov_b32 v69, 1")
    a("s_mov_b64 exec, 1")
    a("global_store_dword v68, v69, s[18:19] sc1")
    a("s_mov_b64 exec, -1")
    a("K12_nopub:")
    a("v_lshlrev_b32 v4, 16, v4")
    a("v_lshlrev_b32 v5, 16, v5")
    a("v_lshlrev_b32 v6, 16, v6")
    a("v_lshlrev_b32 v7, 16, v7")
    a("v_mul_f32 v4, v4, v8")
    a("v_exp_f32 v4, v4")
    a("v_mul_f32 v13, v5, v9")
    a("v_mul_f32 v14, v6, v9")
    rbf(a, 4, 4)
    a("v_mul_f32 v15, v7, v9")
    a("v_mul_f32 v12, v4, v9")
    a(f"v_mul_f32 v13, {INV2PI}, v13")
    a("v_add_f32 v14, v14, v14")
    a("v_add_f32 v15, v15, v15")
    a("v_mul_f32 v12, v12, v8")
    a("v_mov_b32 v10, v14")
    a("v_sub_f32 v12, 0, v12")
    a("ds_write_b128 v20, v[12:15]")
    for ctl in ("row_shr:1", "row_shr:2", "row_shr:4", "row_shr:8", "row_bcast:15 row_mask:0xa", "row_bcast:31 row_mask:0xc"):
        a("s_nop 1")
        a(f"v_add_f32_dpp v10, v10, v10 {ctl}")
    a("s_waitcnt lgkmcnt(0)")
    stamp(a, 1)
    R = [[32 + 4 * u for u in range(4)], [48 + 4 * u for u in range(4)]]
    PA = [64 + 2 * u for u in range(4)]
    PB = [72 + 2 * u for u in range(4)]
    TT = [80 + 2 * u for u in range(4)]
    QF = [88 + 4 * e for e in range(4)]
    GF = [104, 108]
    DD = [112 + 4 * e for e in range(4)]
    CPK = [128 + u for u in range(4)]
    MAG = [132 + 2 * u for u in range(4)]
    for u in range(4): a(f"ds_read_b128 v[{R[0][u]}:{R[0][u]+3}], v17 offset:{u*16}")
    for ks in range(4):
        Rc = R[ks & 1]
        if ks + 1 < 4:
            for u in range(4):
                a(f"ds_read_b128 v[{R[(ks+1)&1][u]}:{R[(ks+1)&1][u]+3}], v17 offset:{(ks+1)*256+u*16}")
            a("s_waitcnt lgkmcnt(4)")
        else:
            a("s_waitcnt lgkmcnt(0)")
        for u in range(4): a(f"v_mul_f32 v{TT[u]}, v{Rc[u]}, v19")
        for u in range(4): a(f"v_mul_f32 v{TT[u]+1}, v{Rc[u]+1}, v19")
        for u in range(4): a(f"v_exp_f32 v{MAG[u]}, v{TT[u]}")
        for u in range(4): a(f"v_fract_f32 v{TT[u]+1}, v{TT[u]+1}")
        for u in range(4): a(f"v_cvt_pk_bf16_f32 v{CPK[u]}, v{Rc[u]+2}, -v{Rc[u]+3}")
        for u in range(4): a(f"v_cos_f32 v{PB[u]}, v{TT[u]+1}")
        for u in range(4): a(f"v_sin_f32 v{PB[u]+1}, v{TT[u]+1}")
        a("s_nop 0")
        for u in range(4):
            a(f"v_pk_mul_f32 v[{PA[u]}:{PA[u]+1}], v[{PB[u]}:{PB[u]+1}], v[{MAG[u]}:{MAG[u]+1}] op_sel:[0,0] op_sel_hi:[1,0]")
        cur, oth = PA, PB
        for e in range(4):
            for u in range(4): a(f"v_cvt_pk_bf16_f32 v{QF[e]+u}, v{cur[u]}, v{cur[u]+1}")
            sq = [csq(a, oth[u], cur[u], TT[u]) for u in range(4)]
            for u in range(4): a(sq[u][0])
            for u in range(4): a(sq[u][1])
            cur, oth = oth, cur
        for e in range(4):
            g = GF[e & 1]
            cm = [cmulconj(a, oth[u], cur[u], Rc[u] + 2, TT[u]) for u in range(4)]
            for u in range(4): a(cm[u][0])
            for u in range(4): a(cm[u][1])
            for u in range(4): a(f"v_cvt_pk_bf16_f32 v{g+u}, v{oth[u]}, v{oth[u]+1}")
            if e == 0:
                for u in range(4): a(f"v_cndmask_b32 v{g+u}, v{g+u}, v{CPK[u]}, s[32:33]")
            if e < 3:
                sq = [csq(a, oth[u], cur[u], TT[u]) for u in range(4)]
                for u in range(4): a(sq[u][0])
                a(f"v_mfma_f32_16x16x32_bf16 v[{DD[e]}:{DD[e]+3}], v[{QF[e]}:{QF[e]+3}], v[{g}:{g+3}], v[{DD[e]}:{DD[e]+3}]")
                for u in range(4): a(sq[u][1])
                cur, oth = oth, cur
            else:
                a("s_nop 1")
                a(f"v_mfma_f32_16x16x32_bf16 v[{DD[e]}:{DD[e]+3}], v[{QF[e]}:{QF[e]+3}], v[{g}:{g+3}], v[{DD[e]}:{DD[e]+3}]")
    stamp(a, 2)
    K0P = KG_T16 + 2 * 1344 + 16
    a("v_readlane_b32 s40, v10, 63")
    a(f"s_lshl_b32 s41, s24, 2")
    a(f"s_add_u32 s41, s41, {K0P}")
    a("v_mov_b32 v11, s41")
    a("v_mov_b32 v10, s40")
    a("s_nop 1")
    for e in range(4): a(f"ds_write_b128 v22, v[{DD[e]}:{DD[e]+3}] offset:{e*1024}")
    a("ds_write_b32 v11, v10")
    a("s_lshl_b32 s57, s25, 2")
    a(f"s_add_u32 s41, s57, {LF}")
    wsync(a, "s41", 2, 2, 40)
    a("ds_read_b128 v[32:35], v23")
    a("ds_read_b128 v[36:39], v23 offset:4096")
    a("ds_read_b128 v[40:43], v23 offset:1024")
    a("ds_read_b128 v[44:47], v23 offset:5120")
    a(f"s_lshl_b32 s41, s25, 3")
    a(f"s_add_u32 s41, s41, {K0P}")
    a("v_mov_b32 v11, s41")
    a("ds_read_b64 v[8:9], v11")
    a("s_waitcnt lgkmcnt(0)")
    for r in range(4): a(f"v_add_f32 v{32+r}, v{32+r}, v{36+r}")
    for r in range(4): a(f"v_add_f32 v{40+r}, v{40+r}, v{44+r}")
    a("v_add_f32 v8, v8, v9")
    a("v_cvt_pk_bf16_f32 v32, v32, v33")
    a("v_cvt_pk_bf16_f32 v33, v34, v35")
    a("v_cvt_pk_bf16_f32 v40, v40, v41")
    a("v_cvt_pk_bf16_f32 v41, v42, v43")
    a("v_cvt_pk_bf16_f32 v8, v8, v8")
    a("s_sub_u32 s41, s39, 2")
    a("v_mov_b32 v11, s41")
    a("s_mov_b64 exec, s[36:37]")
    a("ds_write_b64 v24, v[32:33]")
    a("s_mov_b64 exec, s[34:35]")
    a("ds_write_b64 v24, v[40:41] offset:256")
    a("s_mov_b64 exec, -1")
    a("ds_write_b16 v11, v8")
    a(f"s_add_u32 s41, s57, {LF + 8}")
    wsync(a, "s41", 2, 2, 40)
    for t in range(16):
        a(f"ds_read_u16 v{76+t}, v{GA+t}")
        if t == 7: a("v_mov_b32 v72, 0\nv_mov_b32 v73, 0\nv_mov_b32 v74, 0\nv_mov_b32 v75, 0")
    a("s_waitcnt lgkmcnt(8)")
    for p in range(4): a(f"v_lshl_or_b32 v{64+p}, v{77+2*p}, 16, v{76+2*p}")
    a("ds_write_b128 v29, v[64:67]")
    a("s_waitcnt lgkmcnt(1)")
    for p in range(4): a(f"v_lshl_or_b32 v{68+p}, v{85+2*p}, 16, v{84+2*p}")
    a("ds_write_b128 v29, v[68:71] offset:2048")
    a("v_cmp_gt_u32 vcc, 4, v26")
    a("s_and_saveexec_b64 s[42:43], vcc")
    a("ds_write_b128 v29, v[72:75] offset:4096")
    a("s_mov_b64 exec, s[42:43]")
    a(f"s_add_u32 s41, s57, {LF + 16}")
    wsync(a, "s41", 2, 2, 40)
    a("v_subrev_u32 v33, 2048, v30")
    a("ds_read_b128 v[36:39], v30")
    a("ds_read_b128 v[40:43], v30 offset:16")
    a("ds_read_b128 v[44:47], v33")
    a("ds_read_b128 v[48:51], v33 offset:16")
    for c in range(2):
        W = 36 + 8 * c
        a(f"s_waitcnt lgkmcnt({2 if c == 0 else 8})")
        V = 60
        for j in range(7): a(f"v_alignbit_b32 v{V+j}, v{W+j+1}, v{W+j}, 16")
        for j in range(1, 7): a(f"v_alignbit_b32 v{68+j-1}, v{W+j+1}, v{W+j}, 16")
        for j in range(1, 7): a(f"v_mov_b32 v{76+j-1}, v{W+j}")
        off = c * 2048
        a(f"ds_write_b128 v31, v[{W}:{W+3}] offset:{off + 7*CS}")
        a(f"ds_write_b128 v31, v[{W+2}:{W+5}] offset:{off + 3*CS}")
        a(f"ds_write_b128 v31, v[{V}:{V+3}] offset:{off + 6*CS}")
        a(f"ds_write_b128 v31, v[{V+2}:{V+5}] offset:{off + 2*CS}")
        a(f"ds_write_b128 v31, v[68:71] offset:{off + 4*CS}")
        a(f"ds_write_b128 v31, v[70:73] offset:{off + 0*CS}")
        a(f"ds_write_b128 v31, v[76:79] offset:{off + 5*CS}")
        a(f"ds_write_b128 v31, v[78:81] offset:{off + 1*CS}")
    stamp(a, 3)
    a("s_lshl_b32 s28, s62, 12")
    a(f"s_add_u32 s28, s28, {XT}") if XT else None
    a("v_lshl_add_u32 v160, v0, 4, s28")
    a("v_add_u32 v161, 4096, v160")
    a("v_lshlrev_b32 v162, 5, v0")
    a(f"v_add_u32 v162, {STAT1}, v162")
    a(f"v_add_u32 v163, 8192, v162")
    a(f"v_and_b32 v50, {15 if CONV16 else 31}, v1")
    a(f"v_lshrrev_b32 v51, {4 if CONV16 else 5}, v1")
    a("s_lshl_b32 s30, s25, 12")
    a("s_add_u32 s30, s30, s28")
    a("s_lshl_b32 s31, s26, 11")
    a("s_add_u32 s30, s30, s31")
    a("v_lshlrev_b32 v164, 6, v50")
    a("v_lshl_add_u32 v164, v51, 3, v164")
    a("v_add_u32 v164, s30, v164")
    a("v_and_b32 v165, 3, v1")
    a("v_mul_u32_u24 v165, 12288, v165")
    a("v_bfe_u32 v54, v1, 2, 1")
    a("v_lshl_add_u32 v165, v54, 2, v165")
    a("v_lshrrev_b32 v54, 3, v1")
    a("v_min_u32 v54, 2, v54")
    a("v_lshl_add_u32 v165, v54, 11, v165")
    a("s_lshl_b32 s32, s62, 2")
    a(f"s_add_u32 s32, s32, {MODP}")
    a("v_add_u32 v165, s32, v165")
    a("v_and_b32 v54, 7, v50")
    a("v_lshrrev_b32 v55, 3, v50")
    a(f"v_mul_u32_u24 v2, {CS}, v54")
    a("v_sub_u32 v55, v55, v51")
    a(f"v_add_u32 v55, {3 if CONV16 else 1}, v55")
    a("v_lshl_add_u32 v2, v55, 4, v2")
    a(f"s_mul_i32 s38, s25, {KC_CH}")
    a("v_add_u32 v2, s38, v2")
    a(f"v_mul_u32_u24 v3, {USTR}, v50")
    a("v_lshl_add_u32 v3, v51, 4, v3")
    a(f"s_mul_i32 s38, s25, {U_CH}")
    a(f"s_add_u32 s38, s38, {UB}")
    a("v_add_u32 v3, s38, v3")
    a("v_lshrrev_b32 v166, 2, v0")
    a(f"v_mul_u32_u24 v166, {USTR}, v166")
    a("v_and_b32 v63, 3, v0")
    a("v_lshl_add_u32 v166, v63, 4, v166")
    a(f"v_add_u32 v166, {UB + 31*USTR}, v166")
    a("s_lshl_b32 s38, s24, 12")
    a(f"s_add_u32 s38, s38, {SCR}")
    a("v_lshl_add_u32 v4, v1, 4, s38")
    a("s_xor_b32 s39, s24, 1")
    a("s_lshl_b32 s38, s39, 12")
    a(f"s_add_u32 s38, s38, {SCR}")
    a("v_lshl_add_u32 v5, v1, 4, s38")
    a("s_lshl_b32 s38, s24, 2")
    a(f"s_add_u32 s38, s38, {LF + 32}")
    a("v_mov_b32 v7, s38")
    a("s_lshl_b32 s38, s39, 2")
    a(f"s_add_u32 s38, s38, {LF + 32}")
    a("v_mov_b32 v8, s38")
    a(f"v_mul_u32_u24 v6, {USTR}, v50")
    a("v_lshl_add_u32 v6, v51, 3, v6")
    a(f"s_mul_i32 s38, s25, {U_CH}")
    a(f"s_mul_i32 s39, s26, {32*USTR}")
    a("s_add_u32 s38, s38, s39")
    a(f"s_add_u32 s38, s38, {UB + 31*USTR}")
    a("v_add_u32 v6, s38, v6")
    a("s_lshl_b32 s38, s27, 7")
    a("s_lshl_b32 s39, s26, 20")
    a("s_add_u32 s38, s38, s39")
    a(f"s_add_u32 s38, s38, {X2T}")
    a("v_lshrrev_b32 v9, 3, v1")
    a("v_lshlrev_b32 v9, 16, v9")
    a("v_and_b32 v63, 7, v1")
    a("v_lshl_add_u32 v9, v63, 4, v9")
    a("v_add_u32 v9, s38, v9")
    a("v_add_u32 v12, 0x80000, v9")
    a(f"s_mul_i32 s38, s25, {KC_CH}")
    a("s_mul_i32 s39, s26, 2560")
    a("s_add_u32 s38, s38, s39")
    a("v_mul_u32_u24 v10, 80, v50")
    a("v_lshl_add_u32 v10, v51, 3, v10")
    a("v_add_u32 v10, s38, v10")
    a("v_lshrrev_b32 v11, 2, v1")
    a("v_mul_u32_u24 v11, 80, v11")
    a("v_and_b32 v63, 3, v1")
    a("v_lshl_add_u32 v11, v63, 4, v11")
    a("v_add_u32 v11, s38, v11")
    for r in range(32, 64): a(f"v_mov_b32 v{r}, 0")
    a("s_lshl_b32 s38, s25, 4")
    a("s_lshr_b32 s36, s56, s38")
    a("s_lshl_b32 s36, s36, 16")
    a("s_waitcnt lgkmcnt(0)")
    a("s_barrier")
    stamp(a, 4)
    XR, SR = 168, 176
    a("global_load_dword v13, v165, s[14:15] sc1")
    a(f"global_load_dwordx4 v[{XR}:{XR+3}], v160, s[14:15] sc1")
    a(f"global_load_dwordx4 v[{XR+4}:{XR+7}], v161, s[14:15] sc1")
    a(f"global_load_dwordx4 v[{SR}:{SR+3}], v162, s[14:15] sc1")
    a(f"global_load_dwordx4 v[{SR+4}:{SR+7}], v162, s[14:15] offset:16 sc1")
    a(f"global_load_dwordx4 v[{SR+8}:{SR+11}], v163, s[14:15] sc1")
    a(f"global_load_dwordx4 v[{SR+12}:{SR+15}], v163, s[14:15] offset:16 sc1")
    for i in range(4):
        a(f"global_load_dwordx2 v[{144+2*i}:{145+2*i}], v164, s[14:15] offset:{(1024*(i >> 1) + 32*(i & 1)) if CONV16 else 16*i} sc1")
    a("s_waitcnt vmcnt(10)")
    a("v_add_f32_dpp v13, v13, v13 quad_perm:[1,0,3,2] row_mask:0xf bank_mask:0xf")
    a("s_nop 1")
    a("v_add_f32_dpp v13, v13, v13 quad_perm:[2,3,0,1] row_mask:0xf bank_mask:0xf")
    rbf(a, 13, 13)
    a("v_add_f32 v14, 1.0, v13")
    rbf(a, 14, 14)
    a("v_readlane_b32 s59, v13, 0")
    a("v_readlane_b32 s61, v13, 4")
    a("v_readlane_b32 s54, v13, 16")
    a("v_readlane_b32 s55, v13, 20")
    a("v_readlane_b32 s58, v14, 8")
    a("v_readlane_b32 s60, v14, 12")
    a("s_cmp_eq_u32 s25, 0")
    a("s_cselect_b32 s37, s54, s55")
    a("s_waitcnt vmcnt(4)")
    for c in range(2):
        X = XR + 4 * c
        for q in range(4):
            a(f"v_lshlrev_b32 v{64+2*q}, 16, v{X+q}")
            a(f"v_and_b32 v{65+2*q}, 0xffff0000, v{X+q}")
        for q in range(4):
            a(f"v_pk_fma_f32 v[{64+2*q}:{65+2*q}], v[{64+2*q}:{65+2*q}], v[{SR+2*q}:{SR+1+2*q}], v[{SR+8+2*q}:{SR+9+2*q}]")
        for q in range(4):
            a(f"v_pk_fma_f32 v[{64+2*q}:{65+2*q}], v[{64+2*q}:{65+2*q}], s[{58+2*c}:{59+2*c}], s[{58+2*c}:{59+2*c}] op_sel:[0,0,1] op_sel_hi:[1,0,1]")
        for q in range(4):
            a(f"v_cvt_pk_bf16_f32 v{72+4*c+q}, v{64+2*q}, v{65+2*q}")
        a(f"ds_write_b128 v166, v[{72+4*c}:{75+4*c}] offset:{c*U_CH}")
    wsync(a, LF + 52, 4, 14, 40)
    stamp(a, 5)
    a("s_cmp_eq_u32 s26, 0")
    a("s_cbranch_scc0 K2_B")
    conv_path(a, 0, "A")
    a("K2_B:   ; LINT-RESET")
    conv_path(a, 1, "B")
    a("K2_SIDE:   ; LINT-RESET")
    a("s_barrier")
    TL = SIDE + SIDE_SZ
    a("v_mul_u32_u24 v30, 160, v2")
    a("v_lshl_add_u32 v30, v3, 4, v30")
    a(f"v_add_u32 v30, {TL}, v30")
    a("s_cmp_ge_u32 s2, 192")
    a("s_cbranch_scc1 K1_w0")
    a("s_waitcnt vmcnt(10)")
    a("s_branch K1_w1")
    a("K1_w0:")
    a("s_waitcnt vmcnt(2)")
    a("K1_w1:   ; LINT-RESET")
    stamp(a, 1)
    a("ds_write_b128 v30, v[8:11]")
    a("ds_write_b128 v30, v[12:15] offset:5120")
    wsync(a, LF + 48, 4, 2, 40)
    a("v_lshrrev_b32 v2, 4, v1")
    a("v_bfe_u32 v3, v1, 2, 2")
    a("v_and_b32 v4, 3, v1")
    a("v_lshl_add_u32 v5, v2, 3, v3")
    a("v_mul_u32_u24 v5, 160, v5")
    a("v_lshl_add_u32 v5, v4, 3, v5")
    a("s_lshl_b32 s31, s25, 5")
    a(f"s_add_u32 s31, s31, {TL}")
    a("v_add_u32 v5, s31, v5")
    a("ds_read_b64_tr_b16 v[8:9], v5")
    a("ds_read_b64_tr_b16 v[10:11], v5 offset:640")
    a(f"ds_read_b64_tr_b16 v[12:13], v5 offset:{32*160}")
    a(f"ds_read_b64_tr_b16 v[14:15], v5 offset:{36*160}")
    a("v_and_b32 v6, 15, v1")
    a("v_lshlrev_b32 v6, 12, v6")
    a("v_lshl_add_u32 v6, v2, 4, v6")
    a("s_lshl_b32 s31, s27, 18")
    a("s_lshl_b32 s32, s25, 16")
    a("s_add_u32 s31, s31, s32")
    a("s_lshl_b32 s32, s26, 7")
    a("s_add_u32 s31, s31, s32")
    a(f"s_add_u32 s31, s31, {XT}") if XT else None
    a("v_add_u32 v6, s31, v6")
    a("s_waitcnt lgkmcnt(2)")
    a("global_store_dwordx4 v6, v[8:11], s[14:15] sc1")
    a("s_waitcnt lgkmcnt(0)")
    a("global_store_dwordx4 v6, v[12:15], s[14:15] offset:64 sc1")
    a("s_cmp_ge_u32 s2, 192")
    a("s_cbranch_scc1 K1_w2")
    a("s_waitcnt vmcnt(10)")
    a("s_branch K1_w3")
    a("K1_w2:")
    a("s_waitcnt vmcnt(2)")
    a("K1_w3:   ; LINT-RESET")
    a("v_mov_b32 v31, 0x3f803f80")
    a("v_mov_b32 v52, 0\nv_mov_b32 v53, 0\nv_mov_b32 v54, 0\nv_mov_b32 v55, 0")
    for k in range(4):
        a(f"v_dot2_f32_bf16 v52, v{16+k}, v31, v52")
        a(f"v_dot2_f32_bf16 v53, v{16+k}, v{16+k}, v53")
        a(f"v_dot2_f32_bf16 v54, v{20+k}, v31, v54")
        a(f"v_dot2_f32_bf16 v55, v{20+k}, v{20+k}, v55")
    a("s_nop 1")
    for ctl in ("row_shr:1", "row_shr:2", "row_shr:4", "row_shr:8", "row_bcast:15 row_mask:0xa", "row_bcast:31 row_mask:0xc"):
        for r in range(52, 56): a(f"v_add_f32_dpp v{r}, v{r}, v{r} {ctl}")
    a("s_nop 1")
    for k, r in enumerate(range(52, 56)): a(f"v_readlane_b32 s{36+k}, v{r}, 63")
    a("s_nop 1")
    a("v_cmp_eq_u32 vcc, 0, v1")
    a("v_mov_b32 v56, s38")
    a("v_mov_b32 v57, s39")
    a("v_mov_b32 v58, s36")
    a("v_mov_b32 v59, s37")
    a("v_cndmask_b32 v56, v56, v58, vcc")
    a("v_cndmask_b32 v57, v57, v59, vcc")
    a("v_mul_f32 v56, 0x3b000000, v56")
    a("v_mul_f32 v57, 0x3b000000, v57")
    a("v_fma_f32 v57, -v56, v56, v57")
    a("v_max_f32 v57, 0, v57")
    rbf(a, 56, 56); rbf(a, 57, 57)
    a("v_add_f32 v57, 0x3727c5ac, v57")
    rbf(a, 57, 57)
    a("v_sqrt_f32 v57, v57")
    a("s_nop 0")
    rbf(a, 57, 57)
    a("v_rcp_f32 v58, v57")
    a("s_nop 0")
    a("v_mul_f32 v59, v56, v58")
    a("v_sub_f32 v59, 0, v59")
    a("s_lshl_b32 s31, s30, 2")
    a(f"s_add_u32 s31, s31, {STAT1}")
    a("v_lshl_add_u32 v60, v1, 2, s31")
    a("v_add_u32 v61, 8192, v60")
    a("v_cmp_gt_u32 vcc, 2, v1")
    a("s_and_saveexec_b64 s[42:43], vcc")
    a("global_store_dword v60, v58, s[14:15] sc1")
    a("global_store_dword v61, v59, s[14:15] sc1")
    a("s_mov_b64 exec, s[42:43]")
    a("s_cmp_ge_u32 s2, 192")
    a("s_cbranch_scc1 K1_nomodc")
    a("s_waitcnt vmcnt(4)")
    for k in range(4): a(f"v_lshlrev_b32 v{48+k}, 16, v{48+k}")
    for k in range(4): a(f"v_mul_f32 v{52+k}, 0xbfb8aa3b, v{48+k}")
    for k in range(4): a(f"v_exp_f32 v{52+k}, v{52+k}")
    a("s_nop 0")
    for k in range(4): a(f"v_add_f32 v{52+k}, 1.0, v{52+k}")
    for k in range(4): a(f"v_rcp_f32 v{56+k}, v{52+k}")
    a("s_nop 0")
    for k in range(4): a(f"v_mul_f32 v{60+k}, v{48+k}, v{56+k}")
    for k in range(4): a(f"v_fma_f32 v{48+k}, -v{60+k}, v{52+k}, v{48+k}")
    for k in range(4): a(f"v_fma_f32 v{48+k}, v{48+k}, v{56+k}, v{60+k}")
    for k in range(4): rbf(a, 48 + k, 48 + k)
    for k in range(4):
        for p in range(4):
            w = 32 + 4 * k + p
            a(f"v_lshlrev_b32 v62, 16, v{w}")
            a(f"v_and_b32 v63, 0xffff0000, v{w}")
            if k == 0:
                a(f"v_mul_f32 v{64+2*p}, v62, v48")
                a(f"v_mul_f32 v{65+2*p}, v63, v48")
            else:
                a(f"v_fmac_f32 v{64+2*p}, v62, v{48+k}")
                a(f"v_fmac_f32 v{65+2*p}, v63, v{48+k}")
    MODL = SIDE
    a("v_subrev_u32 v61, 256, v0")
    a("v_lshlrev_b32 v61, 5, v61")
    a(f"v_add_u32 v61, {MODL}, v61")
    a("ds_write_b128 v61, v[64:67]")
    a("ds_write_b128 v61, v[68:71] offset:16")
    wsync(a, LF + 24, 4, 2, 40)
    a("s_cmp_lg_u32 s25, 0")
    a("s_cbranch_scc1 K1_nomodc")
    a("v_lshlrev_b32 v4, 2, v1")
    a(f"v_add_u32 v4, {MODL}, v4")
    for i in range(32):
        a(f"ds_read_b32 v{16+i}, v4 offset:{256*i}")
        if i == 14: a("s_waitcnt lgkmcnt(7)")
    a("s_waitcnt lgkmcnt(0)")
    for st in (16, 8, 4, 2, 1):
        for i in range(st): a(f"v_add_f32 v{16+i}, v{16+i}, v{16+st+i}")
    a("s_mul_i32 s31, s34, 12288")
    a("s_lshl_b32 s32, s33, 8")
    a("s_add_u32 s31, s31, s32")
    a(f"s_add_u32 s31, s31, {MODP}")
    a("v_lshl_add_u32 v5, v1, 2, s31")
    a("global_store_dword v5, v16, s[14:15] sc1")
    a("K1_nomodc:   ; LINT-RESET")
    stamp(a, 2)
    a("v_mov_b32 v74, 0")
    a("global_load_dword v75, v74, s[18:19] sc1")
    a("s_waitcnt vmcnt(0)")
    a("v_readfirstlane_b32 s51, v75")
    a(f"v_mov_b32 v2, {LF + 28}")
    a("v_mov_b32 v3, 1")
    a("s_mov_b64 exec, 1")
    a("ds_add_u32 v2, v3")
    a("s_mov_b64 exec, -1")
    stamp(a, 3)
    a("s_sub_u32 s26, s25, 1")
    a("s_lshl_b32 s26, s26, 8")
    a("s_add_u32 s26, s26, s2")
    a("s_cmp_eq_u32 s25, 0")
    a("s_cselect_b32 s26, 1000, s26")
    a("s_mov_b32 s27, s57")
    a("v_lshrrev_b32 v2, 2, v1")
    a("v_and_b32 v3, 3, v1")
    a("v_lshrrev_b32 v4, 4, v1")
    a("v_bfe_u32 v5, v1, 2, 2")
    a("v_mul_u32_u24 v11, 80, v2")
    a("v_lshl_add_u32 v11, v3, 4, v11")
    a("v_add_u32 v11, s27, v11")
    a("v_lshl_add_u32 v12, v4, 2, v5")
    a("v_mul_u32_u24 v12, 80, v12")
    a("v_lshl_add_u32 v12, v3, 3, v12")
    a("v_add_u32 v12, s27, v12")
    a("s_cmp_ge_u32 s26, 520")
    a("s_cbranch_scc1 K12_noraw")
    a("s_cmp_ge_u32 s26, 344")
    a("s_cbranch_scc1 K12_rawW2")
    a("s_mul_i32 s28, s26, 763")
    a("s_lshr_b32 s28, s28, 16")
    a("s_mul_i32 s29, s28, 86")
    a("s_sub_u32 s29, s26, s29")
    a("v_lshrrev_b32 v10, 1, v1")
    a("v_and_b32 v13, 1, v1")
    a("v_lshlrev_b32 v11, 5, v10")
    a("v_lshl_add_u32 v11, v13, 4, v11")
    a("v_add_u32 v11, s27, v11")
    a("v_mul_u32_u24 v10, 2752, v10")
    a("v_lshl_add_u32 v10, v13, 4, v10")
    a("v_lshl_add_u32 v12, v4, 2, v5")
    a("v_lshlrev_b32 v12, 5, v12")
    a("v_lshl_add_u32 v12, v3, 3, v12")
    a("v_add_u32 v12, s27, v12")
    a(f"s_mul_i32 s53, s28, {128*2752}")
    a("s_lshl_b32 s30, s29, 5")
    a("s_add_u32 s53, s53, s30")
    if OPT.get("w1pre", "1") == "1":
        a.srd(64, 48, 512 * 1376 * 2)
        for i in range(4):
            a(f"buffer_load_dwordx4 v[{32+4*i}:{35+4*i}], v10, s[64:67], s53 offen")
            if i < 3: a(f"s_add_u32 s53, s53, {32*2752}")
    a("s_branch K12_noraw")
    a("K12_rawW2:   ; LINT-RESET")
    a("s_sub_u32 s31, s26, 344")
    a("s_and_b32 s29, s31, 15")
    a("s_lshr_b32 s28, s31, 4")
    a("v_lshlrev_b32 v10, 10, v2")
    a("v_lshl_add_u32 v10, v3, 4, v10")
    a("s_lshl_b32 s30, s29, 6")
    a.srd(64, 12, 1376 * 512 * 2)
    for ks in range(4):
        a("s_lshl_b32 s31, s28, 2")
        a(f"s_add_u32 s31, s31, {ks}")
        a("s_mul_i32 s32, s31, 13")
        a("s_lshr_b32 s32, s32, 6")
        a("s_mul_i32 s33, s32, 5")
        a("s_sub_u32 s33, s31, s33")
        a("s_mul_i32 s32, s32, 11")
        a("s_min_u32 s32, s32, 76")
        a("s_lshl_b32 s33, s33, 1")
        a("s_add_u32 s32, s32, s33")
        a("s_add_u32 s33, s32, 1")
        a("s_sub_u32 s34, s31, 40")
        a("s_mul_i32 s34, s34, 22")
        a("s_add_u32 s35, s34, 21")
        a("s_add_u32 s34, s34, 10")
        a("s_cmp_lt_u32 s31, 40")
        a("s_cselect_b32 s32, s32, s34")
        a("s_cselect_b32 s33, s33, s35")
        for hf, sr in ((0, 32), (1, 33)):
            a(f"s_lshl_b32 s53, s{sr}, 14")
            a("s_add_u32 s53, s53, s30")
            i = 2 * ks + hf
            a(f"buffer_load_dwordx4 v[{32+4*i}:{35+4*i}], v10, s[64:67], s53 offen nt")
    a("K12_noraw:   ; LINT-RESET")
    a("s_cmp_lg_u32 s25, 0")
    a("s_cbranch_scc1 K12_gbx")
    wsync(a, LF + 28, 4, 70, 40, add=False)
    a("s_mov_b64 exec, 1")
    a("v_mov_b32 v70, 0")
    a("s_mov_b32 s52, 0x200000")
    a("s_cmp_eq_u32 s51, 1")
    a("s_cbranch_scc1 K12_rdyx")
    a("K12_rdy:")
    a("global_load_dword v71, v70, s[18:19] sc1")
    a("s_waitcnt vmcnt(0)")
    a("v_readfirstlane_b32 s40, v71")
    a("s_sub_u32 s52, s52, 1")
    a("s_cmp_eq_u32 s52, 0")
    a("s_cbranch_scc1 K12_gbdone")
    a("s_cmp_eq_u32 s40, 1")
    a("s_cbranch_scc0 K12_rdy")
    a("K12_rdyx:")
    a("s_and_b32 s40, s2, 15")
    a("s_lshl_b32 s40, s40, 8")
    a(f"s_add_u32 s40, s40, {GBAR}")
    a("v_mov_b32 v70, s40")
    a("v_mov_b32 v71, 1")
    a("global_atomic_add v71, v70, v71, s[14:15] sc0 sc1")
    a("s_waitcnt vmcnt(0)")
    a("v_readfirstlane_b32 s40, v71")
    a("s_cmp_eq_u32 s40, 15")
    a("s_cbranch_scc0 K12_poll")
    if OPT.get("bar2", "1") == "1":
        a("s_mov_b64 exec, 0xff")
        a("v_lshlrev_b32 v70, 8, v1")
        a(f"v_add_u32 v70, {GBAR + 8192}, v70")
        a("v_mov_b32 v71, 1")
        a("global_atomic_add v70, v71, s[14:15] sc1")
        a("s_mov_b64 exec, 1")
    else:
        a(f"v_mov_b32 v70, {GBAR + 4096}")
        a("v_mov_b32 v71, 1")
        a("global_atomic_add v71, v70, v71, s[14:15] sc0 sc1")
        a("s_waitcnt vmcnt(0)")
        a("v_readfirstlane_b32 s40, v71")
        a("s_cmp_eq_u32 s40, 15")
        a("s_cbranch_scc0 K12_poll")
        a("s_mov_b64 exec, 0xff")
        a("v_lshlrev_b32 v70, 8, v1")
        a(f"v_add_u32 v70, {GBAR + 8192}, v70")
        a("v_mov_b32 v71, 1")
        a("global_store_dword v70, v71, s[14:15] sc1")
        a("s_mov_b64 exec, 1")
    a("K12_poll:")
    a("s_and_b32 s40, s2, 7")
    a("s_lshl_b32 s40, s40, 8")
    a(f"s_add_u32 s40, s40, {GBAR + 8192}")
    a("v_mov_b32 v70, s40")
    a("K12_poll2:")
    a("global_load_dword v71, v70, s[14:15] sc1")
    a("s_waitcnt vmcnt(0)")
    a("v_readfirstlane_b32 s40, v71")
    a("s_sub_u32 s52, s52, 1")
    a("s_cmp_eq_u32 s52, 0")
    a("s_cbranch_scc1 K12_gbdone")
    a(f"s_cmp_ge_u32 s40, {16 if OPT.get('bar2', '1') == '1' else 1}")
    a("s_cbranch_scc0 K12_poll2")
    a("K12_gbdone:")
    a("s_mov_b64 exec, -1")
    a("K12_gbx:   ; LINT-RESET")
    a(f"s_setprio {OPT.get('sprio', '0')}")
    a("s_barrier")
    stamp(a, 4)
    a("s_cmp_gt_u32 s26, 521")
    a("s_cbranch_scc1 K2_SIDE_IDLE")
    a("s_cmp_ge_u32 s26, 520")
    a("s_cbranch_scc1 K2_TAB")
    a("s_cmp_ge_u32 s26, 344")
    a("s_cbranch_scc1 K2_W2")
    if OPT.get("w1pre", "1") != "1":
        a.srd(64, 48, 512 * 1376 * 2)
        for i in range(4):
            a(f"buffer_load_dwordx4 v[{32+4*i}:{35+4*i}], v10, s[64:67], s53 offen")
            if i < 3: a(f"s_add_u32 s53, s53, {32*2752}")
    a("s_lshl_b32 s31, s28, 9")
    a("v_lshl_add_u32 v13, v1, 3, s31")
    a(f"v_add_u32 v13, {MODP + 3*2048}, v13")
    for q in range(4):
        a(f"global_load_dwordx2 v[{64+4*q}:{65+4*q}], v13, s[14:15] sc1")
        a(f"global_load_dwordx2 v[{66+4*q}:{67+4*q}], v13, s[14:15] offset:2048 sc1")
        if q < 3: a("v_add_u32 v13, 12288, v13")
    a("s_waitcnt vmcnt(8)")
    for i in range(4): a(f"ds_write_b128 v11, v[{32+4*i}:{35+4*i}] offset:{1024*i}")
    a("s_waitcnt vmcnt(0)")
    stamp(a, 5)
    for r in range(4):
        a(f"v_add_f32 v{64+r}, v{64+r}, v{68+r}")
        a(f"v_add_f32 v{72+r}, v{72+r}, v{76+r}")
        a(f"v_add_f32 v{64+r}, v{64+r}, v{72+r}")
    for r in range(4): rbf(a, 64 + r, 64 + r)
    a("v_add_f32 v66, 1.0, v66")
    a("v_add_f32 v67, 1.0, v67")
    rbf(a, 66, 66); rbf(a, 67, 67)
    a("v_cvt_pk_bf16_f32 v64, v64, v65")
    a("v_lshl_add_u32 v15, v1, 3, s27")
    a("v_lshl_add_u32 v16, v1, 2, s27")
    a("ds_write_b64 v15, v[66:67] offset:10240")
    a("ds_write_b32 v16, v64 offset:10752")
    a("v_and_b32 v17, 15, v1")
    a("v_cmp_eq_u32 s[50:51], 0, v17")
    a("v_cmp_eq_u32 s[52:53], 1, v17")
    a("v_mov_b32 v18, 0")
    a("v_mov_b32 v19, 0x3f803f80")
    a("v_cndmask_b32 v18, v18, v19, s[50:51]")
    a("v_mov_b32 v19, 0")
    a("v_cndmask_b32 v19, v19, -1, s[52:53]")
    a("v_lshl_add_u32 v24, v4, 4, s27")
    a("v_lshl_add_u32 v25, v4, 3, s27")
    for r in range(96, 112): a(f"v_mov_b32 v{r}, 0")
    a("s_lshl_b32 s30, s29, 10")
    a(f"s_mul_i32 s31, s28, {4*87*1024}")
    a("s_add_u32 s30, s30, s31")
    a(f"s_add_u32 s30, s30, {W1F}")
    a("v_lshl_add_u32 v26, v1, 4, s30")
    a("s_waitcnt lgkmcnt(0)")
    stamp(a, 6)
    def ureads(ks):
        B = 112 + 16 * ks
        out = [f"ds_read_b128 v[{B}:{B+3}], v24 offset:{10240 + 128*ks}",
               f"ds_read_b128 v[{B+4}:{B+7}], v24 offset:{10240 + 128*ks + 64}",
               f"ds_read_b64 v[{B+8}:{B+9}], v25 offset:{10752 + 64*ks}",
               f"ds_read_b64 v[{B+10}:{B+11}], v25 offset:{10752 + 64*ks + 32}"]
        for hf in range(2):
            out.append(f"ds_read_b64_tr_b16 v[{B+12+2*hf}:{B+13+2*hf}], v12 offset:{(32*ks+16*hf)*32}")
        return out
    for x in ureads(0) + ureads(1): a(x)
    for ks in range(4):
        B = 112 + 16 * ks
        a(f"s_waitcnt lgkmcnt({6 if ks < 3 else 0})")
        if ks + 2 < 4:
            for x in ureads(ks + 2): a(x)
        for q in range(4): a(f"v_and_or_b32 v{B+8+q}, v{B+8+q}, v19, v18")
        R = B + 12
        for q in range(4):
            a(f"v_lshlrev_b32 v{52+2*q}, 16, v{R+q}")
            a(f"v_and_b32 v{53+2*q}, 0xffff0000, v{R+q}")
        a(f"v_mfma_f32_16x16x32_bf16 v[96:99], v[{R}:{R+3}], v[{B+8}:{B+11}], v[96:99]")
        for q in range(8): a(f"v_mul_f32 v{52+q}, v{52+q}, v{B+q}")
        S = 60 + 4 * (ks & 1)
        for q in range(4): a(f"v_cvt_pk_bf16_f32 v{S+q}, v{52+2*q}, v{53+2*q}")
        a(f"global_store_dwordx4 v26, v[{S}:{S+3}], s[14:15]" + SC1)
        a(f"v_add_u32 v26, {87*1024}, v26")
        a("s_nop 0")
        a(f"v_mfma_f32_16x16x32_bf16 v[104:107], v[{S}:{S+3}], v[{B+8}:{B+11}], v[104:107]")
    stamp(a, 7)
    a(f"s_mul_i32 s30, s28, {3*5504}")
    a("s_lshl_b32 s31, s29, 6")
    a("s_add_u32 s30, s30, s31")
    a(f"s_add_u32 s30, s30, {SVP}")
    a("v_lshl_add_u32 v28, v4, 4, s30")
    a("v_add_u32 v29, 5504, v28")
    a("v_add_u32 v30, 5504, v29")
    a("s_nop 7")
    a("s_mov_b64 exec, s[50:51]")
    a("global_store_dwordx4 v28, v[104:107], s[14:15]" + SC1)
    a("global_store_dwordx4 v30, v[96:99], s[14:15]" + SC1)
    a("s_mov_b64 exec, s[52:53]")
    a("global_store_dwordx4 v29, v[96:99], s[14:15]" + SC1)
    a("s_mov_b64 exec, -1")
    a("s_branch K12_UDONE")
    a("K2_W2:   ; LINT-RESET")
    a("s_waitcnt vmcnt(0)")
    for i in range(8): a(f"ds_write_b128 v11, v[{32+4*i}:{35+4*i}] offset:{16*80*i}")
    a("s_lshr_b32 s30, s29, 1")
    a("s_mul_i32 s30, s30, 43")
    a("s_lshl_b32 s31, s28, 2")
    a("s_add_u32 s30, s30, s31")
    a("s_lshl_b32 s30, s30, 12")
    a("s_and_b32 s31, s29, 1")
    a("s_lshl_b32 s31, s31, 11")
    a("s_add_u32 s30, s30, s31")
    a(f"s_add_u32 s30, s30, {W2F}")
    a("v_lshl_add_u32 v26, v1, 4, s30")
    a("s_waitcnt lgkmcnt(0)")
    for ks in range(4):
        if ks == 3:
            a("s_cmp_eq_u32 s28, 10")
            a("s_cbranch_scc1 K12_UDONE")
        for nt in range(2):
            for hf in range(2):
                a(f"ds_read_b64_tr_b16 v[{44+4*nt+2*hf}:{45+4*nt+2*hf}], v12 offset:{(32*ks+16*hf)*80 + 32*nt}")
        a("s_waitcnt lgkmcnt(2)")
        a(f"global_store_dwordx4 v26, v[44:47], s[14:15]" + SC1)
        a("s_waitcnt lgkmcnt(0)")
        a(f"global_store_dwordx4 v26, v[48:51], s[14:15] offset:1024" + SC1)
        a("v_add_u32 v26, 4096, v26")
    a("s_branch K12_UDONE")
    a("K2_TAB:   ; LINT-RESET")
    a("v_lshlrev_b32 v2, 5, v1")
    a(f"v_add_u32 v2, {MODP + 3*2048}, v2")
    a("v_add_u32 v3, 4096, v2")
    for q in range(4):
        for k in range(3):
            r = 112 + 24 * q + 8 * k
            a(f"global_load_dwordx4 v[{r}:{r+3}], v2, s[14:15] offset:{2048*k if k < 2 else 0} sc1" if k < 2 else f"global_load_dwordx4 v[{r}:{r+3}], v3, s[14:15] sc1")
            a(f"global_load_dwordx4 v[{r+4}:{r+7}], v2, s[14:15] offset:{2048*k+16} sc1" if k < 2 else f"global_load_dwordx4 v[{r+4}:{r+7}], v3, s[14:15] offset:16 sc1")
        if q < 3:
            a("v_add_u32 v2, 12288, v2")
            a("v_add_u32 v3, 12288, v3")
    a("s_waitcnt vmcnt(0)")
    for j in range(24):
        a(f"v_add_f32 v{112+j}, v{112+j}, v{136+j}")
        a(f"v_add_f32 v{160+j}, v{160+j}, v{184+j}")
        a(f"v_add_f32 v{112+j}, v{112+j}, v{160+j}")
    for j in range(24): rbf(a, 112 + j, 112 + j)
    for j in range(8):
        a(f"v_mov_b32 v{32+j}, v{112+j}")
        a(f"v_mov_b32 v{40+j}, v{120+j}")
    a("v_lshlrev_b32 v3, 5, v1")
    a(f"v_add_u32 v3, {GBF}, v3")
    a("global_store_dwordx4 v3, v[128:131], s[14:15] sc1")
    a("global_store_dwordx4 v3, v[132:135], s[14:15] offset:16 sc1")
    for j in range(8): a(f"v_add_f32 v{40+j}, 1.0, v{40+j}")
    for j in range(8): rbf(a, 40 + j, 40 + j)
    for j in range(8): a(f"v_mul_f32 v{48+j}, v{40+j}, v{40+j}")
    for j in range(8): a(f"v_mul_f32 v{56+j}, v{40+j}, v{32+j}")
    a("v_lshlrev_b32 v3, 5, v1")
    a(f"v_add_u32 v3, {G2F}, v3")
    a("global_store_dwordx4 v3, v[48:51], s[14:15] sc1")
    a("global_store_dwordx4 v3, v[52:55], s[14:15] offset:16 sc1")
    for k, base in enumerate((40, 48, 56, 32)):
        a(f"v_add_f32 v{100+k}, v{base}, v{base+1}")
        for j in range(2, 8): a(f"v_add_f32 v{100+k}, v{100+k}, v{base+j}")
    a("v_mul_f32 v104, v32, v32")
    for j in range(1, 8): a(f"v_fmac_f32 v104, v{32+j}, v{32+j}")
    a("v_lshl_add_u32 v4, v1, 4, s27")
    a("v_mov_b32 v64, 0x3f803f80\nv_mov_b32 v65, 0x3f803f80\nv_mov_b32 v66, 0x3f803f80\nv_mov_b32 v67, 0x3f803f80")
    a("ds_write_b128 v4, v[64:67]")
    for q in range(4): a(f"v_cvt_pk_bf16_f32 v{68+q}, v{40+2*q}, v{41+2*q}")
    a("ds_write_b128 v4, v[68:71] offset:1024")
    for (src, row) in ((48, 2), (56, 4)):
        for q in range(4): a(f"v_cvt_pk_bf16_f32 v{72+q}, v{src+2*q}, v{src+2*q+1}")
        a(f"ds_write_b128 v4, v[72:75] offset:{1024*row}")
        for q in range(4):
            a(f"v_lshlrev_b32 v{80+2*q}, 16, v{72+q}")
            a(f"v_and_b32 v{81+2*q}, 0xffff0000, v{72+q}")
        for j in range(8): a(f"v_sub_f32 v{80+j}, v{src+j}, v{80+j}")
        for q in range(4): a(f"v_cvt_pk_bf16_f32 v{76+q}, v{80+2*q}, v{81+2*q}")
        a(f"ds_write_b128 v4, v[76:79] offset:{1024*(row+1)}")
    a("s_nop 1")
    for ctl in ("row_shr:1", "row_shr:2", "row_shr:4", "row_shr:8", "row_bcast:15 row_mask:0xa", "row_bcast:31 row_mask:0xc"):
        for r in range(100, 105):
            a(f"v_add_f32_dpp v{r}, v{r}, v{r} {ctl}")
    a(f"v_mov_b32 v5, {SCAL}")
    a("s_mov_b64 s[42:43], exec")
    a("s_mov_b64 exec, 0x8000000000000000") if False else None
    a("v_cmp_eq_u32 vcc, 63, v1")
    a("s_and_saveexec_b64 s[42:43], vcc")
    a("global_store_dwordx4 v5, v[100:103], s[14:15]" + SC1)
    a("global_store_dword v5, v104, s[14:15] offset:16" + SC1)
    a("s_mov_b64 exec, s[42:43]")
    a("v_and_b32 v6, 15, v1")
    a("v_lshrrev_b32 v7, 4, v1")
    a("v_min_u32 v8, 5, v6")
    a("v_lshlrev_b32 v8, 10, v8")
    a("v_lshl_add_u32 v8, v7, 3, v8")
    a("v_add_u32 v8, s27, v8")
    a("v_cmp_gt_u32 vcc, 6, v6")
    a("v_mov_b32 v9, 0")
    a("s_nop 0")
    a("v_cndmask_b32 v9, v9, -1, vcc")
    a("s_sub_u32 s31, s26, 520")
    a(f"s_mul_i32 s30, s31, {8*87*1024}")
    a(f"s_add_u32 s30, s30, {W1F + 86*1024}")
    a("v_lshl_add_u32 v10, v1, 4, s30")
    a("s_lshl_b32 s31, s31, 9")
    a("v_add_u32 v8, s31, v8")
    a("s_waitcnt lgkmcnt(0)")
    def tread(ks):
        R = 112 + 4 * ks
        return [f"ds_read_b64 v[{R}:{R+1}], v8 offset:{64*ks}", f"ds_read_b64 v[{R+2}:{R+3}], v8 offset:{64*ks+32}"]
    for ks in range(4):
        for x in tread(ks): a(x)
    for bt in range(2):
        if bt < 1:
            for ks in range(4, 7):
                for x in tread(ks): a(x)
            a("s_waitcnt lgkmcnt(6)")
            for x in tread(7): a(x)
        else:
            a("s_waitcnt lgkmcnt(0)")
        for ks in range(4 * bt, 4 * bt + 4):
            R = 112 + 4 * ks
            for q in range(4): a(f"v_and_b32 v{R+q}, v{R+q}, v9")
            a(f"global_store_dwordx4 v10, v[{R}:{R+3}], s[14:15]" + SC1)
            a(f"v_add_u32 v10, {87*1024}, v10")
    a("s_branch K12_UDONE")
    a("K12_UDONE:   ; LINT-RESET")
    if OPT.get("wpf", "0") == "1":
        a("s_waitcnt vmcnt(0)")
        a(f"v_mov_b32 v2, {WCNT}")
        a("v_mov_b32 v3, 1")
        a("s_mov_b64 exec, 1")
        a("global_atomic_add v2, v3, s[14:15] sc1")
    a("s_branch K2_END")
    a("K2_SIDE_IDLE:   ; LINT-RESET")
    if OPT.get("wpf", "0") == "1":
        a("s_cmp_eq_u32 s25, 2")
        a("s_cbranch_scc0 K2_END")
        a(f"v_mov_b32 v2, {WCNT}")
        a("s_mov_b32 s52, 0x40000")
        a("s_mov_b64 exec, 1")
        a("K12_wpoll:")
        a("s_sleep 8")
        a("global_load_dword v3, v2, s[14:15] sc1")
        a("s_waitcnt vmcnt(0)")
        a("v_readfirstlane_b32 s40, v3")
        a("s_sub_u32 s52, s52, 1")
        a("s_cmp_eq_u32 s52, 0")
        a("s_cbranch_scc1 K12_wpx")
        a("s_cmp_ge_u32 s40, 522")
        a("s_cbranch_scc0 K12_wpoll")
        a("K12_wpx:")
        a("s_mov_b64 exec, -1")
        a("s_lshr_b32 s30, s2, 3")
        a("v_lshlrev_b32 v4, 7, v1")
        for (base, size, reg) in ((W1F, 87 * 16384, 44), (W2F, 8 * 43 * 4096, 48)):
            a(f"s_add_u32 s{reg}, s14, {base}")
            a(f"s_addc_u32 s{reg+1}, s15, 0")
            a(f"s_mov_b32 s{reg+2}, {size}")
            a(f"s_mov_b32 s{reg+3}, 0x20000")
            per = -(-size // 32 // 128) * 128
            a(f"s_mul_i32 s31, s30, {per}")
            n = -(-per // 8192)
            for k in range(n):
                a(f"buffer_load_dword v{8 + k + (8 if reg == 48 else 0)}, v4, s[{reg}:{reg+3}], s31 offen")
                if k + 1 < n: a("s_add_u32 s31, s31, 8192")
    a("K2_END:   ; LINT-RESET")
    stamp_store(a, 0, 14, 24)
    a("K2_EXIT:")
    a.end_kernel(name, 208, 100)

G2T = 65536
SVT = G2T + 2048
STT = SVT + 3072
COF = STT + 2048
RED = COF + 4096
P_W = 64 * 272
K3_LDS = RED + 4 * P_W
FLAGS = 0x0638000

def k3(a):
    name = "k3_kernel"
    a.begin_kernel(name, 256, 256, K3_LDS)
    a("s_cmp_ge_u32 s2, 256")
    a("s_cbranch_scc1 K3_EXIT")
    stamp(a, 0)
    a("s_load_dwordx2 s[14:15], s[0:1], 128")
    a("s_load_dwordx2 s[12:13], s[0:1], 72")
    a("s_load_dwordx2 s[16:17], s[0:1], 88")
    a("s_load_dwordx2 s[18:19], s[0:1], 112")
    wave_id(a, 24, 1)
    a("v_and_b32 v1, 63, v0")
    a("s_and_b32 s25, s2, 7")
    a("s_lshr_b32 s26, s2, 3")
    a("s_lshr_b32 s27, s26, 3")
    a("s_lshl_b32 s25, s25, 2")
    a("s_add_u32 s25, s25, s27")
    a("s_and_b32 s26, s26, 7")
    a("s_and_b32 s22, s25, 3")
    a("s_lshl_b32 s23, s22, 1")
    a("s_add_u32 s23, s23, s26")
    a("s_lshl_b32 s23, s23, 1")
    a("s_and_b32 s23, s23, 15")
    a("s_mul_i32 s22, s22, 3")
    a("s_add_u32 s22, s22, s26")
    a("s_sub_u32 s21, s22, 11")
    a("s_cmp_ge_u32 s22, 11")
    a("s_cselect_b32 s22, s21, s22")
    if OPT.get('rot', '0') != '1':
        a("s_mov_b32 s23, 0")
        a("s_mov_b32 s22, 0")
    a("s_mul_i32 s27, s26, 11")
    a("s_min_u32 s27, s27, 76")
    a("s_cmp_lt_u32 s26, 6")
    a("s_cselect_b32 s28, 11, 10")
    a("s_mul_i32 s29, s24, 3")
    for i in range(3):
        a(f"s_add_u32 s30, s29, {i}")
        a("s_add_u32 s31, s30, s27")
        a("s_cmp_lt_u32 s30, s28")
        a(f"s_cselect_b32 s{32+i}, s31, 86")
    a("v_lshrrev_b32 v10, 3, v1")
    a("v_and_b32 v11, 6, v10")
    a("v_and_b32 v12, 7, v1")
    a("v_xor_b32 v11, v11, v12")
    a("v_lshlrev_b32 v11, 4, v11")
    a("v_lshl_add_u32 v11, v10, 7, v11")
    a("s_lshl_b32 s41, s24, 10")
    a("s_lshl_b32 s42, s25, 16")
    a("s_add_u32 s41, s41, s42")
    a(f"s_add_u32 s41, s41, {X2T}")
    a("s_lshl_b32 s42, s24, 10")
    a("v_lshlrev_b32 v13, 4, v1")
    for i in range(3):
        a(f"s_lshl_b32 s30, s{32+i}, 10")
        a(f"v_add_u32 v{126+i}, s30, v13")
    a("s_mov_b32 s47, s23")
    a("s_lshl_b32 s46, s23, 12")
    a("v_lshrrev_b32 v3, 4, v1")
    a("v_and_b32 v6, 15, v1")
    a("v_mov_b32 v7, s32")
    a("v_mov_b32 v8, s33")
    a("v_mov_b32 v9, s34")
    a("v_cmp_eq_u32 vcc, 1, v3")
    a("v_cmp_le_u32 s[52:53], 2, v3")
    a("s_nop 0")
    a("v_cndmask_b32 v7, v7, v8, vcc")
    a("v_cndmask_b32 v7, v7, v9, s[52:53]")
    a("v_min_u32 v7, 85, v7")
    a("v_lshl_add_u32 v7, v7, 4, v6")
    a("v_lshlrev_b32 v8, 2, v7")
    a(f"v_add_u32 v8, {SVP}, v8")
    a("v_lshlrev_b32 v9, 1, v7")
    a("s_waitcnt lgkmcnt(0)")
    wsfix(a, 14)
    a.srd(8, 14, WS_USED)
    for j in range(16):
        a("s_mov_b32 m0, s42")
        a("s_add_u32 s45, s41, s46")
        a("s_add_u32 s42, s42, 4096")
        a(f"buffer_load_dwordx4 v11, s[8:11], s45 offen" + XLD + " lds")
        a("s_add_u32 s46, s46, 4096")
        a("s_and_b32 s46, s46, 0xffff")
    a("s_lshl_b32 s30, s24, 2")
    a("s_lshl_b32 s42, s24, 12")
    a(f"s_add_u32 s42, s42, {RED}")
    for j in range(4):
        a(f"s_add_u32 s31, s30, {j}")
        a("s_add_u32 s31, s31, s23")
        a("s_and_b32 s31, s31, 15")
        a(f"s_mul_i32 s31, s31, {87*1024}")
        a(f"s_add_u32 s31, s31, {W1F + 86*1024}")
        a("s_mov_b32 m0, s42")
        a("s_add_u32 s42, s42, 1024")
        a(f"buffer_load_dwordx4 v13, s[8:11], s31 offen lds")
    def wload(ks):
        out = []
        for i in range(3):
            r = (ks * 3 + i) * 4
            pre = f"s_mul_i32 s44, s47, {87*1024}\ns_add_u32 s44, s44, {W1F}\n" if i == 0 else ""
            post = "\ns_add_u32 s47, s47, 1\ns_and_b32 s47, s47, 15" if i == 2 else ""
            out.append(pre + f"buffer_load_dwordx4 a[{r}:{r+3}], v{126+i}, s[8:11], s44 offen" + WLD + post)
        return out
    PRE = min(int(OPT.get('pre', '6')), int(OPT.get('deep', '6')))
    for ks in range(PRE):
        for x in wload(ks): a(x)
    a(f"s_mov_b32 s30, {SCAL}")
    a("s_load_dwordx4 s[36:39], s[14:15], s30")
    a(f"s_mov_b32 s31, {SCAL+16}")
    a("s_load_dword s40, s[14:15], s31")
    a("v_bfe_u32 v14, v1, 2, 2")
    a("v_lshl_add_u32 v14, v3, 2, v14")
    a("v_and_b32 v15, 6, v14")
    a("v_lshrrev_b32 v15, 1, v15")
    a("v_and_b32 v29, 3, v1")
    a("v_lshlrev_b32 v30, 7, v14")
    a("v_lshl_add_u32 v30, v29, 3, v30")
    for k in range(4):
        a(f"s_add_u32 s30, s24, {k}")
        a(f"s_and_b32 s{48+k}, s30, 3")
        a(f"v_xor_b32 v31, s{48+k}, v15")
        a(f"v_lshl_add_u32 v{20+k}, v31, 5, v30")
    a("v_xor_b32 v31, s24, v15")
    a("v_lshl_add_u32 v26, v31, 5, v30")
    a("s_lshl_b32 s30, s26, 1")
    a("s_sub_u32 s30, s30, s23")
    a("s_add_u32 s31, s30, 1")
    a("s_and_b32 s30, s30, 15")
    a("s_and_b32 s31, s31, 15")
    a("s_lshl_b32 s30, s30, 12")
    a("s_lshl_b32 s31, s31, 12")
    a("v_add_u32 v125, s31, v26")
    a("v_add_u32 v26, s30, v26")
    a(f"v_add_u32 v24, {RED}, v13")
    ACC = 160
    for r in range(ACC, ACC + 48): a(f"v_mov_b32 v{r}, 0")
    for r in range(96, 108): a(f"v_mov_b32 v{r}, 0")
    a(f"s_waitcnt vmcnt({3*PRE}) lgkmcnt(0)")
    stamp(a, 1)
    a("s_barrier")
    XF = [32, 48]
    def xreads(ks):
        b = XF[ks & 1]
        out = []
        for k in range(4):
            for hf in range(2):
                out.append(f"ds_read_b64_tr_b16 v[{b+4*k+2*hf}:{b+4*k+2*hf+1}], v{20+k} offset:{4096*ks + 2048*hf}")
        return out
    STATS = OPT.get('stats', 'in')
    GQ = [64, 72]
    if STATS == 'in':
        for ks in range(PRE, int(OPT.get('deep', '6'))):
            for x in wload(ks): a(x)
    def greads(ks):
        g = GQ[ks & 1]
        return [f"ds_read_b128 v[{g}:{g+3}], v24 offset:{1024*ks}"]
    for x in xreads(0) + greads(0): a(x)
    DEEP = int(OPT.get('deep', '6'))
    a("s_mul_i32 s58, s24, 11")
    a("s_cmp_eq_u32 s24, 3")
    a("s_cselect_b32 s58, 32, s58")
    a("s_mul_i32 s59, s26, 43")
    a("s_add_u32 s59, s59, s58")
    a("s_lshl_b32 s59, s59, 12")
    a(f"s_add_u32 s59, s59, {W2F}")
    a.srd(60, 14, WS_USED)
    a("s_cmp_eq_u32 s24, 3")
    a("s_cselect_b32 s65, 0, s10")
    a("s_mov_b32 s64, s22")
    drip = []
    for j in range(11):
        for t in range(4):
            r = (j * 4 + t) * 4
            pre = "s_lshl_b32 s66, s64, 12\ns_add_u32 s66, s66, s59\ns_cmp_eq_u32 s64, 0\ns_cselect_b32 s62, s65, s10\n" if t == 0 else ""
            post = "\ns_add_u32 s64, s64, 1\ns_cmp_eq_u32 s64, 11\ns_cselect_b32 s64, 0, s64" if t == 3 else ""
            drip.append(pre + f"buffer_load_dwordx4 a[{r}:{r+3}], v13, s[60:63], s66 offen offset:{1024*t}" + WLD + post)
    a("s_lshl_b32 s30, s26, 8")
    a(f"s_add_u32 s30, s30, {GBF if FUSED else MODF + 5*2048}")
    a("v_lshl_add_u32 v27, v3, 4, s30")
    a("s_lshl_b32 s30, s26, 7")
    a("v_lshl_add_u32 v28, v3, 3, s30")
    gbl = []
    for dt in range(4):
        gbl.append(f"global_load_dwordx4 v[{208+4*dt}:{211+4*dt}], v27, s[14:15] offset:{64*dt}")
    for dt in range(4):
        gbl.append(f"global_load_dwordx2 v[{224+2*dt}:{225+2*dt}], v28, s[16:17] offset:{32*dt}")
    issued = DEEP
    vm_after = []
    seq = [("W", ks) for ks in range(DEEP) for _ in range(3)]
    def vmwait(tag):
        last = max(i for i, t in enumerate(seq) if t == tag)
        return len(seq) - 1 - last
    sm_done = False
    smalls = []
    for kq in range(4):
        for v in range(3):
            smalls.append(f"global_load_dword v{112+kq*3+v}, v8, s[14:15]")
            if not (kq == 3 and v == 2): smalls.append("v_add_u32 v8, 5504, v8")
    smalls.append("global_load_ushort v124, v9, s[12:13]")
    for ks in range(16):
        b = XF[ks & 1]
        a(f"s_waitcnt vmcnt({vmwait(('W', ks))}) lgkmcnt(0)")
        mf = []
        for i in range(3):
            r = (ks * 3 + i) * 4
            for k in range(4):
                d = ACC + (i * 4 + k) * 4
                mf.append(f"v_mfma_f32_16x16x32_bf16 v[{d}:{d+3}], a[{r}:{r+3}], v[{b+4*k}:{b+4*k+3}], v[{d}:{d+3}]")
        va = []
        if ks + 1 < 16: va += xreads(ks + 1) + greads(ks + 1)
        if issued < 16:
            va += wload(issued); seq += [("W", issued)] * 3; issued += 1
        elif not sm_done:
            sm_done = True
            va += smalls + gbl; seq += [("S", 0)] * 13 + [("G", 0)] * 8
        else:
            for _ in range(3):
                va.append(drip.pop(0)); seq.append(("W2", 0))
        for q in range(4):
            va.append(f"v_lshlrev_b32 v{80+2*q}, 16, v{b+q}")
            va.append(f"v_and_b32 v{81+2*q}, 0xffff0000, v{b+q}")
        for q in range(8):
            va.append(f"v_mul_f32 v{80+q}, v{80+q}, v{80+q}")
        for q in range(4):
            va.append(f"v_cvt_pk_bf16_f32 v{88+q}, v{80+2*q}, v{81+2*q}")
        if ks > 0:
            gp = GQ[(ks - 1) & 1]
            a(f"v_mfma_f32_16x16x32_bf16 v[96:99], v[{gp}:{gp+3}], v[88:91], v[96:99]")
        per = -(-len(va) // 12)
        vi = 0
        for m in mf:
            a(m)
            for _ in range(per):
                if vi < len(va): a(va[vi]); vi += 1
    a("s_nop 1")
    a(f"v_mfma_f32_16x16x32_bf16 v[96:99], v[{GQ[1]}:{GQ[1]+3}], v[88:91], v[96:99]")
    stamp(a, 2)
    KEEP = int(OPT.get('keep', '0'))
    def dr(n=1, final=False):
        for _ in range(n):
            if drip and (final or len(drip) > KEEP): a(drip.pop(0))
    a(f"s_waitcnt vmcnt({vmwait(('S', 0))})")
    dr(1)
    for v in range(3):
        a(f"v_add_f32 v{112+v}, v{112+v}, v{115+v}")
        a(f"v_add_f32 v{118+v}, v{118+v}, v{121+v}")
        a(f"v_add_f32 v{112+v}, v{112+v}, v{118+v}")
    a("v_lshlrev_b32 v124, 16, v124")
    dr(2)
    a("s_mul_i32 s30, s24, 768")
    a(f"s_add_u32 s30, s30, {SVT}")
    a("v_lshlrev_b32 v2, 8, v3")
    a("v_lshl_add_u32 v2, v6, 2, v2")
    a("v_add_u32 v2, s30, v2")
    a("v_cmp_gt_u32 vcc, 48, v1")
    a("s_and_saveexec_b64 s[42:43], vcc")
    a("ds_write_b32 v2, v112")
    a("ds_write_b32 v2, v114 offset:64")
    a("ds_write_b32 v2, v113 offset:128")
    a("ds_write_b32 v2, v124 offset:192")
    a("s_mov_b64 exec, s[42:43]")
    dr(2)
    a("s_lshl_b32 s30, s24, 9")
    a(f"s_add_u32 s30, s30, {STT}")
    a("v_lshl_add_u32 v2, v6, 5, s30")
    a("v_add_f32 v97, v98, v99")
    a("v_cmp_eq_u32 vcc, 0, v3")
    a("s_and_saveexec_b64 s[42:43], vcc")
    a("ds_write_b64 v2, v[96:97] offset:24")
    a("s_mov_b64 exec, s[42:43]")
    a("s_cmp_eq_u32 s24, 3")
    a("s_cbranch_scc0 K3_nolin")
    a("v_cmp_eq_u32 s[52:53], 0, v3")
    a("v_cmp_eq_u32 s[54:55], 1, v3")
    for k in range(4):
        a(f"s_lshl_b32 s30, s{48+k}, 9")
        a(f"s_add_u32 s30, s30, {STT}")
        a(f"v_lshl_add_u32 v{60+k}, v6, 5, s30")
    a("s_mov_b64 s[42:43], exec")
    a("s_mov_b64 exec, s[52:53]")
    for k in range(4):
        d = ACC + (8 + k) * 4
        a(f"ds_write_b128 v{60+k}, v[{d}:{d+3}]")
    a("s_mov_b64 exec, s[54:55]")
    for k in range(4):
        d = ACC + (8 + k) * 4
        a(f"ds_write_b64 v{60+k}, v[{d}:{d+1}] offset:16")
    a("s_mov_b64 exec, s[42:43]")
    a("K3_nolin:")
    dr(2)
    a("s_waitcnt lgkmcnt(0)")
    a("s_barrier")
    dr(2)
    a("v_lshlrev_b32 v2, 5, v1")
    a(f"v_add_u32 v2, {STT}, v2")
    a("ds_read_b128 v[32:35], v2")
    a("ds_read_b128 v[36:39], v2 offset:16")
    a("s_mul_i32 s30, s24, 768")
    a(f"s_add_u32 s30, s30, {SVT}")
    a("v_lshl_add_u32 v25, v3, 4, s30")
    a("s_mov_b32 s56, 0xbdd2d3e2")
    a("s_mov_b32 s57, 0xc0135761")
    a("s_waitcnt lgkmcnt(0)")
    a("v_add_f32 v34, v34, v35")
    a("v_add_f32 v36, v36, v37")
    a("v_mul_f32 v32, 0x3b000000, v32")
    a("v_mul_f32 v38, 0x3b000000, v38")
    a("v_fma_f32 v38, -v32, v32, v38")
    a("v_max_f32 v38, 0, v38")
    a("v_cvt_pk_bf16_f32 v40, v32, v38")
    a("v_lshlrev_b32 v32, 16, v40")
    a("v_and_b32 v38, 0xffff0000, v40")
    a("v_add_f32 v38, 0x3727c5ac, v38")
    rbf(a, 38, 38)
    a("v_sqrt_f32 v38, v38")
    a("v_fma_f32 v33, -v32, s36, v33")
    dr(2)
    rbf(a, 38, 38)
    a("v_rcp_f32 v38, v38")
    a("v_mul_f32 v40, v32, v32")
    a("v_add_f32 v41, v32, v32")
    a("v_fma_f32 v39, -v41, v34, v39")
    a("v_fma_f32 v39, v40, s37, v39")
    a("v_fma_f32 v36, -v32, s38, v36")
    a("v_fma_f32 v33, v33, v38, s39")
    a("v_add_f32 v36, v36, v36")
    a("v_fma_f32 v39, v39, v38, v36")
    a("v_mul_f32 v33, 0x3b000000, v33")
    dr(2)
    a("v_fma_f32 v39, v39, v38, s40")
    a("v_mul_f32 v39, 0x3b000000, v39")
    a("v_fma_f32 v39, -v33, v33, v39")
    a("v_max_f32 v39, 0, v39")
    a("v_cvt_pk_bf16_f32 v40, v33, v39")
    a("v_lshlrev_b32 v33, 16, v40")
    a("v_and_b32 v39, 0xffff0000, v40")
    a("v_add_f32 v39, 0x3727c5ac, v39")
    rbf(a, 39, 39)
    a("v_sqrt_f32 v39, v39")
    a("s_nop 0")
    rbf(a, 39, 39)
    a("v_rcp_f32 v47, v39")
    a("s_lshl_b32 s30, s24, 10")
    a(f"s_add_u32 s30, s30, {COF}")
    a("v_mul_f32 v44, v47, v38")
    a("v_mul_f32 v46, -v47, v33")
    a("v_mul_f32 v45, -v44, v32")
    a("v_lshl_add_u32 v2, v1, 4, s30")
    a("ds_write_b128 v2, v[44:47]")
    a("s_waitcnt lgkmcnt(0)")
    for k in range(4):
        a(f"s_lshl_b32 s31, s{48+k}, 8")
        a("s_add_u32 s31, s31, s30")
        a(f"v_lshl_add_u32 v2, v6, 4, s31")
        a(f"ds_read_b128 v[{48+4*k}:{51+4*k}], v2")
    SVR = [64, 128, 144]
    for i in range(3):
        for st in range(4):
            a(f"ds_read_b128 v[{SVR[i]+4*st}:{SVR[i]+4*st+3}], v25 offset:{256*i + 64*st}")
    dr(2)
    stamp(a, 3)
    a("s_waitcnt lgkmcnt(0)")
    for i in range(3):
        if i > 0 and OPT.get('x_nodrip') != '1': dr(4)
        a(f"s_cmp_eq_u32 s{32+i}, 86")
        a(f"s_cbranch_scc1 K3_skip{i}")
        SV = SVR[i]
        a(f"s_add_u32 s30, s29, {i}")
        a("s_lshr_b32 s31, s30, 1")
        a("s_lshl_b32 s31, s31, 12")
        a("s_and_b32 s30, s30, 1")
        a("s_lshl_b32 s30, s30, 3")
        a("s_add_u32 s30, s30, s31")
        a(f"s_add_u32 s30, s30, {RED}")
        A_ = ACC + i * 16
        for k in range(4):
            c = 48 + 4 * k
            for p in range(2):
                t = 96 + 4 * k + 2 * p
                a(f"v_pk_fma_f32 v[{t}:{t+1}], v[{SV+2*p}:{SV+1+2*p}], v[{c}:{c+1}], v[{SV+12+2*p}:{SV+13+2*p}] op_sel:[0,1,0] op_sel_hi:[1,1,1]")
        if i == 0 and OPT.get('x_nodrip') != '1': dr(2)
        for k in range(4):
            c = 48 + 4 * k
            for p in range(2):
                t = 96 + 4 * k + 2 * p
                a(f"v_pk_fma_f32 v[{t}:{t+1}], v[{SV+4+2*p}:{SV+5+2*p}], v[{c+2}:{c+3}], v[{t}:{t+1}] op_sel_hi:[1,0,1]")
        if i == 0 and OPT.get('x_nodrip') != '1': dr(2)
        for k in range(4):
            c = 48 + 4 * k
            for p in range(2):
                t = 96 + 4 * k + 2 * p
                a(f"v_pk_fma_f32 v[{t}:{t+1}], v[{SV+8+2*p}:{SV+9+2*p}], v[{c+2}:{c+3}], v[{t}:{t+1}] op_sel:[0,1,0] op_sel_hi:[1,1,1]")
        if i == 0 and OPT.get('x_nodrip') != '1': dr(2)
        for k in range(4):
            c = 48 + 4 * k
            for p in range(2):
                x = A_ + 4 * k + 2 * p; t = 96 + 4 * k + 2 * p
                a(f"v_pk_fma_f32 v[{x}:{x+1}], v[{x}:{x+1}], v[{c}:{c+1}], v[{t}:{t+1}] op_sel_hi:[1,0,1]")
        if i == 0 and OPT.get('x_nodrip') != '1': dr(2)
        for j in range(8):
            x = A_ + 2 * j; t = 96 + 2 * j
            a(f"v_pk_mul_f32 v[{t}:{t+1}], v[{x}:{x+1}], v[{x}:{x+1}]")
        for j in range(8):
            t = 96 + 2 * j
            a(f"v_pk_fma_f32 v[{t}:{t+1}], v[{t}:{t+1}], s[56:57], s[56:57] op_sel:[0,0,1] op_sel_hi:[1,0,1]")
        if i == 0 and OPT.get('x_nodrip') != '1': dr(2)
        for j in range(8):
            x = A_ + 2 * j; t = 96 + 2 * j
            a(f"v_pk_mul_f32 v[{t}:{t+1}], v[{t}:{t+1}], v[{x}:{x+1}]")
        for j in range(16): a(f"v_exp_f32 v{96+j}, v{96+j}")
        if i == 0 and OPT.get('x_nodrip') != '1': dr(3)
        for j in range(8):
            t = 96 + 2 * j
            a(f"v_pk_add_f32 v[{t}:{t+1}], v[{t}:{t+1}], 1.0 op_sel_hi:[1,0]")
        for j in range(16): a(f"v_rcp_f32 v{96+j}, v{96+j}")
        if i == 0 and OPT.get('x_nodrip') != '1': dr(3)
        for j in range(8):
            x = A_ + 2 * j; t = 96 + 2 * j
            a(f"v_pk_mul_f32 v[{x}:{x+1}], v[{x}:{x+1}], v[{t}:{t+1}]")
        for k in range(4):
            a(f"v_cvt_pk_bf16_f32 v{112+2*k}, v{A_+4*k}, v{A_+4*k+1}")
            a(f"v_cvt_pk_bf16_f32 v{113+2*k}, v{A_+4*k+2}, v{A_+4*k+3}")
        if i == 1:
            a("s_cmp_eq_u32 s29, 9")
            a("s_cbranch_scc0 K3_paired1")
            a("s_lshr_b32 s31, s26, 1")
            a("s_add_u32 s31, s31, 40")
            a("s_mul_i32 s43, s25, 43")
            a("s_add_u32 s31, s31, s43")
            a("s_lshl_b32 s31, s31, 12")
            a("s_and_b32 s43, s26, 1")
            a("s_lshl_b32 s43, s43, 3")
            a("s_add_u32 s31, s31, s43")
            a(f"s_add_u32 s31, s31, {HF}")
            for k in range(4):
                a(f"s_lshl_b32 s43, s{48+k}, 10")
                a("s_add_u32 s43, s43, s31")
                a(f"buffer_store_dwordx2 v[{112+2*k}:{113+2*k}], v13, s[8:11], s43 offen sc1")
            a("s_branch K3_skip1")
            a("K3_paired1:")
        for k in range(4):
            a(f"s_lshl_b32 s31, s{48+k}, 10")
            a("s_add_u32 s31, s31, s30")
            a(f"v_add_u32 v2, s31, v13")
            a(f"ds_write_b64 v2, v[{112+2*k}:{113+2*k}]")
        a(f"K3_skip{i}:   ; LINT-RESET")
    stamp(a, 9)
    dr(99)
    a("s_waitcnt lgkmcnt(0)")
    a("s_barrier")
    stamp(a, 4)
    a("s_mul_i32 s30, s24, 5120")
    a("v_add_u32 v2, s30, v13")
    a(f"v_add_u32 v2, {RED}, v2")
    for q in range(5): a(f"ds_read_b128 v[{32+4*q}:{35+4*q}], v2 offset:{1024*q}")
    a("s_mul_i32 s31, s25, 43")
    a("s_mul_i32 s43, s26, 5")
    a("s_add_u32 s31, s31, s43")
    a("s_lshl_b32 s31, s31, 12")
    a("s_add_u32 s31, s31, s30")
    a(f"s_add_u32 s31, s31, {HF}")
    for q in range(5):
        a(f"s_waitcnt lgkmcnt({4-q})")
        if q == 4: a("s_add_u32 s31, s31, 4096")
        a(f"buffer_store_dwordx4 v[{32+4*q}:{35+4*q}], v13, s[8:11], s31 offen offset:{1024*(q&3)} sc1")
    for r in range(176, 240): a(f"v_accvgpr_write_b32 a{r}, 0")
    a(f"s_waitcnt vmcnt(0)")
    stamp(a, 5)
    a("s_barrier")
    a("s_cmp_lg_u32 s24, 0")
    a("s_cbranch_scc1 K3_wait")
    a("s_lshl_b32 s30, s25, 7")
    a(f"s_add_u32 s30, s30, {FLAGS}")
    a("v_mov_b32 v2, s30")
    a("v_mov_b32 v4, 1")
    a("s_mov_b64 s[42:43], exec")
    a("s_mov_b64 exec, 1")
    a("global_atomic_add v4, v2, v4, s[14:15] sc0 sc1")
    a("s_waitcnt vmcnt(0)")
    a("v_readfirstlane_b32 s30, v4")
    a("s_cmp_eq_u32 s30, 7")
    a("s_cbranch_scc1 K3_pollx")
    a("s_mov_b32 s31, 0x100000")
    a("K3_poll:")
    a("buffer_load_dword v5, v2, s[8:11], 0 offen sc1")
    a("s_waitcnt vmcnt(0)")
    a("v_readfirstlane_b32 s30, v5")
    a("s_sub_u32 s31, s31, 1")
    a("s_cmp_eq_u32 s31, 0")
    a("s_cbranch_scc1 K3_pollx")
    a("s_cmp_ge_u32 s30, 8")
    a("s_cbranch_scc0 K3_poll")
    a("K3_pollx:")
    a("s_mov_b64 exec, s[42:43]")
    a("K3_wait:   ; LINT-RESET")
    a("s_barrier")
    stamp(a, 6)
    a("s_mul_i32 s57, s25, 43")
    a("s_add_u32 s57, s57, s58")
    a("s_lshl_b32 s57, s57, 12")
    a(f"s_add_u32 s57, s57, {HF}")
    a("s_mov_b32 s64, s22")
    late = list(drip); drip.clear()
    hl = []
    for j in range(11):
        for t in range(4):
            r = 32 + (j * 4 + t) * 4
            pre = "s_lshl_b32 s56, s64, 12\ns_add_u32 s56, s56, s57\n" if t == 0 else ""
            post = "\ns_add_u32 s64, s64, 1\ns_cmp_eq_u32 s64, 11\ns_cselect_b32 s64, 0, s64" if t == 3 else ""
            hl.append((("H", j), pre + f"buffer_load_dwordx4 v[{r}:{r+3}], v13, s[8:11], s56 offen offset:{1024*t}" + HLD + post))
    pos = 20
    lt_ = [(("L", 0), x) for x in late]
    hl = hl[:pos] + lt_ + hl[pos:]
    HD = int(OPT.get('hd', '16'))
    qseq = []
    def hissue():
        tag, x = hl.pop(0); a(x); qseq.append(tag)
    for _ in range(HD): hissue()
    for dt in range(4):
        a(f"ds_read_b64_tr_b16 v[{16+2*dt}:{17+2*dt}], v{26 if dt < 2 else 125} offset:{2048*(dt&1)}")
    for j in range(11):
        need = [i for i, t in enumerate(qseq) if t == ("H", j)]
        assert len(need) == 4
        last = max(need)
        if late and j >= 9: last = max(last, max(i for i, t in enumerate(qseq) if t == ("L", 0)))
        a(f"s_waitcnt vmcnt({len(qseq) - 1 - last})")
        q = 0
        for dt in range(4):
            for lt in range(4):
                d = 176 + (dt * 4 + lt) * 4
                ar = (j * 4 + dt) * 4
                br = 32 + (j * 4 + lt) * 4
                a(f"v_mfma_f32_16x16x32_bf16 a[{d}:{d+3}], a[{ar}:{ar+3}], v[{br}:{br+3}], a[{d}:{d+3}]")
                if q % 4 == 0 and hl: hissue()
                q += 1
    stamp(a, 7)
    a("v_mul_u32_u24 v5, 272, v6")
    a("v_lshl_add_u32 v5, v3, 4, v5")
    a(f"s_mul_i32 s30, s24, {P_W}")
    a(f"s_add_u32 s30, s30, {RED}")
    a("v_add_u32 v7, s30, v5")
    a("s_nop 4")
    for dt in range(4):
        for lt in range(4):
            d = 176 + (dt * 4 + lt) * 4
            a(f"ds_write_b128 v7, a[{d}:{d+3}] offset:{lt*16*272 + dt*64}")
    a(f"s_mul_i32 s30, s24, {16*272}")
    a(f"s_add_u32 s30, s30, {RED}")
    a("v_add_u32 v7, s30, v5")
    a("s_waitcnt lgkmcnt(0)")
    a("s_barrier")
    stamp(a, 8)
    for dt in range(4):
        for w in range(4):
            r = 32 + (dt * 4 + w) * 4
            a(f"ds_read_b128 v[{r}:{r+3}], v7 offset:{w*P_W + dt*64}")
    a.srd(40, 18, 2048 * 512 * 2)
    a("s_lshl_b32 s30, s25, 16")
    a("s_lshl_b32 s31, s24, 14")
    a("s_add_u32 s30, s30, s31")
    a("s_lshl_b32 s31, s26, 7")
    a("s_add_u32 s30, s30, s31")
    a("v_lshlrev_b32 v9, 10, v6")
    a("v_lshl_add_u32 v9, v3, 3, v9")
    a("v_add_u32 v9, s30, v9")
    for dt in range(4):
        a(f"s_waitcnt lgkmcnt({4*(3-dt)})")
        r = 32 + dt * 16
        for p in range(2):
            a(f"v_pk_add_f32 v[{r+2*p}:{r+2*p+1}], v[{r+2*p}:{r+2*p+1}], v[{r+4+2*p}:{r+5+2*p}]")
            a(f"v_pk_add_f32 v[{r+8+2*p}:{r+9+2*p}], v[{r+8+2*p}:{r+9+2*p}], v[{r+12+2*p}:{r+13+2*p}]")
        for p in range(2):
            a(f"v_pk_add_f32 v[{r+2*p}:{r+2*p+1}], v[{r+2*p}:{r+2*p+1}], v[{r+8+2*p}:{r+9+2*p}]")
        for q in range(2):
            a(f"v_lshlrev_b32 v{120+2*q}, 16, v{224+2*dt+q}")
            a(f"v_and_b32 v{121+2*q}, 0xffff0000, v{224+2*dt+q}")
            a(f"v_lshlrev_b32 v{124+2*q}, 16, v{16+2*dt+q}")
            a(f"v_and_b32 v{125+2*q}, 0xffff0000, v{16+2*dt+q}")
        for p in range(2):
            a(f"v_pk_add_f32 v[{r+2*p}:{r+2*p+1}], v[{r+2*p}:{r+2*p+1}], v[{120+2*p}:{121+2*p}]")
        for p in range(2):
            a(f"v_pk_fma_f32 v[{r+2*p}:{r+2*p+1}], v[{r+2*p}:{r+2*p+1}], v[{208+4*dt+2*p}:{209+4*dt+2*p}], v[{124+2*p}:{125+2*p}]")
        a(f"v_cvt_pk_bf16_f32 v{24+2*dt}, v{r}, v{r+1}")
        a(f"v_cvt_pk_bf16_f32 v{25+2*dt}, v{r+2}, v{r+3}")
        a(f"buffer_store_dwordx2 v[{24+2*dt}:{25+2*dt}], v9, s[40:43], 0 offen offset:{32*dt}")
    a("K3_END:   ; LINT-RESET")
    stamp_store(a, KID3, 14, 24)
    a("K3_EXIT:")
    a.end_kernel(name, 256 + 240, 100, accum=256)


W8_G2T = 65536
W8_SVT = W8_G2T + 2048
W8_STT = W8_SVT + 3072
W8_COF = W8_STT + 4096
W8_RED = W8_COF + 8192
W8_STG = W8_RED + 49152
W8_LDS = W8_RED + 4 * P_W
assert W8_STG + 20480 <= W8_LDS
RING = 32768

def k3w(a):
    name = "k3_kernel"
    a.begin_kernel(name, 256, 512, W8_LDS)
    a("s_cmp_ge_u32 s2, 256")
    a("s_cbranch_scc1 K3_EXIT")
    stamp(a, 0)
    a("s_load_dwordx2 s[14:15], s[0:1], 128")
    a("s_load_dwordx2 s[12:13], s[0:1], 72")
    a("s_load_dwordx2 s[16:17], s[0:1], 88")
    a("s_load_dwordx2 s[18:19], s[0:1], 112")
    wave_id(a, 24, 1)
    a("v_and_b32 v1, 63, v0")
    a("s_and_b32 s20, s24, 3")
    a("s_lshr_b32 s21, s24, 2")
    a("s_and_b32 s25, s2, 7")
    a("s_lshr_b32 s26, s2, 3")
    a("s_lshr_b32 s27, s26, 3")
    a("s_lshl_b32 s25, s25, 2")
    a("s_add_u32 s25, s25, s27")
    a("s_and_b32 s26, s26, 7")
    a("s_mul_i32 s27, s26, 11")
    a("s_min_u32 s27, s27, 76")
    a("s_cmp_lt_u32 s26, 6")
    a("s_cselect_b32 s28, 11, 10")
    a("s_mul_i32 s29, s20, 3")
    for i in range(3):
        a(f"s_add_u32 s30, s29, {i}")
        a("s_add_u32 s31, s30, s27")
        a("s_cmp_lt_u32 s30, s28")
        a(f"s_cselect_b32 s{32+i}, s31, 86")
    a("v_lshrrev_b32 v10, 3, v1")
    a("v_and_b32 v11, 6, v10")
    a("v_and_b32 v12, 7, v1")
    a("v_xor_b32 v11, v11, v12")
    a("v_lshlrev_b32 v11, 4, v11")
    a("v_lshl_add_u32 v11, v10, 7, v11")
    a("s_lshl_b32 s42, s24, 10")
    a("s_lshl_b32 s41, s25, 16")
    a("s_add_u32 s41, s41, s42")
    a(f"s_add_u32 s41, s41, {X2T}")
    a("v_lshlrev_b32 v2, 2, v0")
    a(f"v_add_u32 v4, {G2F}, v2")
    a("v_lshlrev_b32 v13, 4, v1")
    for i in range(3):
        a(f"s_lshl_b32 s30, s{32+i}, 10")
        a(f"v_add_u32 v{14+i}, s30, v13")
    a(f"s_mul_i32 s44, s21, {8*87*1024}")
    a(f"s_add_u32 s44, s44, {W1F}")
    a("s_waitcnt lgkmcnt(0)")
    wsfix(a, 14)
    a.srd(8, 14, WS_USED)
    a("global_load_dword v5, v4, s[14:15]")
    for j in range(8):
        a("s_mov_b32 m0, s42")
        a("s_add_u32 s42, s42, 8192")
        a(f"buffer_load_dwordx4 v11, s[8:11], s41 offen lds")
        a(f"s_add_u32 s41, s41, 8192")
    WR = 208
    DEEP = 3
    def wload(j):
        out = []
        for i in range(3):
            r = WR + (j % DEEP) * 12 + 4 * i
            out.append(f"buffer_load_dwordx4 v[{r}:{r+3}], v{14+i}, s[8:11], s44 offen")
        out.append(f"s_add_u32 s44, s44, {87*1024}")
        return out
    for j in range(2):
        for x in wload(j): a(x)
    a(f"s_mov_b32 s30, {SCAL}")
    a("s_load_dwordx4 s[36:39], s[14:15], s30")
    a(f"s_mov_b32 s31, {SCAL+16}")
    a("s_load_dword s40, s[14:15], s31")
    a("v_lshrrev_b32 v3, 4, v1")
    a("v_and_b32 v6, 15, v1")
    a("v_bfe_u32 v18, v1, 2, 2")
    a("v_lshl_add_u32 v18, v3, 2, v18")
    a("v_and_b32 v19, 6, v18")
    a("v_lshrrev_b32 v19, 1, v19")
    a("v_and_b32 v29, 3, v1")
    a("v_lshlrev_b32 v30, 7, v18")
    a("v_lshl_add_u32 v30, v29, 3, v30")
    a("s_lshl_b32 s45, s21, 15")
    a("s_lshl_b32 s46, s21, 1")
    a("s_add_u32 s46, s46, s20")
    for k in range(4):
        a(f"s_add_u32 s30, s46, {k}")
        a(f"s_and_b32 s{48+k}, s30, 3")
        a(f"v_xor_b32 v31, s{48+k}, v19")
        a(f"v_lshl_add_u32 v{20+k}, v31, 5, v30")
        a(f"v_add_u32 v{20+k}, s45, v{20+k}")
    a("v_xor_b32 v31, s20, v19")
    a("v_lshl_add_u32 v26, v31, 5, v30")
    a("s_lshl_b32 s30, s26, 13")
    a("s_lshl_b32 s31, s21, 12")
    a("s_add_u32 s30, s30, s31")
    a("v_add_u32 v26, s30, v26")
    a("s_lshl_b32 s30, s21, 10")
    a(f"s_add_u32 s30, s30, {W8_G2T}")
    a("v_lshl_add_u32 v24, v3, 4, s30")
    ACC = 160
    for r in range(ACC, ACC + 48): a(f"v_mov_b32 v{r}, 0")
    for r in range(96, 108): a(f"v_mov_b32 v{r}, 0")
    a("s_waitcnt vmcnt(14)")
    a(f"v_add_u32 v2, {W8_G2T}, v2")
    a("ds_write_b32 v2, v5")
    a("v_mov_b32 v7, s32")
    a("v_mov_b32 v8, s33")
    a("v_mov_b32 v9, s34")
    a("v_cmp_eq_u32 vcc, 1, v3")
    a("v_cmp_le_u32 s[52:53], 2, v3")
    a("s_nop 0")
    a("v_cndmask_b32 v7, v7, v8, vcc")
    a("v_cndmask_b32 v7, v7, v9, s[52:53]")
    a("v_min_u32 v7, 85, v7")
    a("v_lshl_add_u32 v7, v7, 4, v6")
    a("v_lshlrev_b32 v8, 2, v7")
    a(f"v_add_u32 v8, {SVP}, v8")
    a("v_lshlrev_b32 v9, 1, v7")
    a("s_mul_i32 s58, s20, 11")
    a("s_cmp_eq_u32 s20, 3")
    a("s_cselect_b32 s58, 32, s58")
    a("s_mul_i32 s59, s26, 43")
    a("s_add_u32 s59, s59, s58")
    a("s_lshl_b32 s59, s59, 12")
    a("s_lshl_b32 s30, s21, 11")
    a("s_add_u32 s59, s59, s30")
    a(f"s_add_u32 s59, s59, {W2F}")
    a.srd(60, 14, WS_USED)
    a("s_cmp_eq_u32 s20, 3")
    a("s_cselect_b32 s62, 0, s10")
    W2R = 108
    def w2reg(j, t):
        idx = 2 * j + t
        return 208 + 4 * idx if idx < 9 else 108 + 4 * (idx - 9)
    drip = []
    items = [(j, t) for j in range(11) for t in range(2)]
    s59off = {}
    late = [it for it in items if 2 * it[0] + it[1] < 9]
    early = [it for it in items if 2 * it[0] + it[1] >= 9]
    for (j, t) in early + late:
        srd = "s[60:63]" if j == 0 else "s[8:11]"
        r = w2reg(j, t)
        drip.append(f"s_add_u32 s57, s59, {4096*j}\nbuffer_load_dwordx4 v[{r}:{r+3}], v13, {srd}, s57 offen offset:{1024*t}")
    a("s_lshl_b32 s30, s26, 8")
    a("s_lshl_b32 s31, s21, 7")
    a("s_add_u32 s30, s30, s31")
    a(f"s_add_u32 s30, s30, {GBF}")
    a("v_lshl_add_u32 v27, v3, 4, s30")
    a("s_lshl_b32 s30, s26, 7")
    a("s_lshl_b32 s31, s21, 6")
    a("s_add_u32 s30, s30, s31")
    a("v_lshl_add_u32 v28, v3, 3, s30")
    gbl = [f"global_load_dwordx4 v[{244+4*t}:{247+4*t}], v27, s[14:15] offset:{64*t}" for t in range(2)]
    gbl += [f"global_load_dwordx2 v[{252+2*t}:{253+2*t}], v28, s[16:17] offset:{32*t}" for t in range(2)]
    a(f"s_waitcnt vmcnt(6) lgkmcnt(0)")
    stamp(a, 1)
    a("s_barrier")
    XF = [32, 48]
    GQ = [64, 72]
    def xreads(j):
        b = XF[j & 1]; g = GQ[j & 1]
        out = []
        for k in range(4):
            for hf in range(2):
                out.append(f"ds_read_b64_tr_b16 v[{b+4*k+2*hf}:{b+4*k+2*hf+1}], v{20+k} offset:{4096*j + 2048*hf}")
        out.append(f"ds_read_b128 v[{g}:{g+3}], v24 offset:{128*j}")
        out.append(f"ds_read_b128 v[{g+4}:{g+7}], v24 offset:{128*j+64}")
        return out
    for x in xreads(0): a(x)
    for x in wload(2): a(x)
    seq = [("W", j) for j in range(3) for _ in range(3)]
    def vmwait(tag):
        last = max(i for i, t in enumerate(seq) if t == tag)
        return len(seq) - 1 - last
    smalls = []
    for kq in range(4):
        for v in range(3):
            smalls.append(f"global_load_dword v{112+kq*3+v}, v8, s[14:15]")
            if not (kq == 3 and v == 2): smalls.append("v_add_u32 v8, 5504, v8")
    smalls.append("global_load_ushort v124, v9, s[12:13]")
    issued = 3
    for j in range(8):
        b = XF[j & 1]; g = GQ[j & 1]
        a(f"s_waitcnt vmcnt({vmwait(('W', j))}) lgkmcnt(0)")
        mf = []
        for i in range(3):
            r = WR + (j % DEEP) * 12 + 4 * i
            for k in range(4):
                d = ACC + (i * 4 + k) * 4
                mf.append(f"v_mfma_f32_16x16x32_bf16 v[{d}:{d+3}], v[{r}:{r+3}], v[{b+4*k}:{b+4*k+3}], v[{d}:{d+3}]")
        va = []
        if j + 1 < 8: va += xreads(j + 1)
        post = []
        if issued < 8:
            post = wload(issued); seq += [("W", issued)] * 3; issued += 1
        elif j == 6:
            post = smalls + gbl; seq += [("S", 0)] * 13 + [("G", 0)] * 4
        for q_ in range(4):
            va.append(f"v_lshlrev_b32 v{80+2*q_}, 16, v{b+q_}")
            va.append(f"v_and_b32 v{81+2*q_}, 0xffff0000, v{b+q_}")
        for q_ in range(8): va.append(f"v_mul_f32 v{80+q_}, v{80+q_}, v{80+q_}")
        for q_ in range(8):
            va.append(f"v_add_f32 v{96+(q_&3)}, v{96+(q_&3)}, v{80+q_}")
            va.append(f"v_fmac_f32 v{100+q_}, v{80+q_}, v{g+q_}")
        per = -(-len(va) // 12)
        vi = 0
        for m in mf:
            a(m)
            for _ in range(per):
                if vi < len(va): a(va[vi]); vi += 1
        for x in post: a(x)
    stamp(a, 2)
    def dr(n=1):
        for _ in range(n):
            if drip: a(drip.pop(0))
    a(f"s_mul_i32 s30, s24, 6144")
    a(f"s_add_u32 s30, s30, {W8_RED}")
    a("v_add_u32 v2, s30, v13")
    a("s_xor_b32 s31, s24, 4")
    a(f"s_mul_i32 s31, s31, 6144")
    a(f"s_add_u32 s31, s31, {W8_RED}")
    a("v_add_u32 v25, s31, v13")
    a("v_pk_add_f32 v[96:97], v[96:97], v[98:99]")
    a("v_add_f32 v96, v96, v97")
    a("v_pk_add_f32 v[100:101], v[100:101], v[102:103]")
    a("v_pk_add_f32 v[104:105], v[104:105], v[106:107]")
    a("v_pk_add_f32 v[100:101], v[100:101], v[104:105]")
    a("v_add_f32 v97, v100, v101")
    for i in range(3):
        for k in (2, 3):
            d = ACC + (i * 4 + k) * 4
            a(f"ds_write_b128 v2, v[{d}:{d+3}] offset:{(i*2 + k - 2)*1024}")
    a("v_mov_b32 v98, v96")
    a("v_mov_b32 v99, v97")
    a("s_nop 0")
    a("v_permlane16_swap_b32 v96, v98")
    a("v_permlane16_swap_b32 v97, v99")
    dr(1)
    a("v_add_f32 v96, v96, v98")
    a("v_add_f32 v97, v97, v99")
    a("v_mov_b32 v98, v96")
    a("v_mov_b32 v99, v97")
    a("s_nop 0")
    a("v_permlane32_swap_b32 v96, v98")
    a("v_permlane32_swap_b32 v97, v99")
    a("s_lshl_b32 s30, s48, 10")
    a("s_lshl_b32 s31, s21, 5")
    a("s_add_u32 s30, s30, s31")
    a(f"s_add_u32 s30, s30, {W8_STT}")
    a("v_add_f32 v96, v96, v98")
    a("v_add_f32 v97, v97, v99")
    a("v_lshl_add_u32 v2, v6, 6, s30")
    a("ds_write_b64 v2, v[96:97] offset:24")
    a("s_cmp_eq_u32 s20, 3")
    a("s_cbranch_scc0 K3_nolin")
    a("v_cmp_eq_u32 s[52:53], 0, v3")
    a("v_cmp_eq_u32 s[54:55], 1, v3")
    for k in range(4):
        a(f"s_lshl_b32 s30, s{48+k}, 10")
        a("s_lshl_b32 s31, s21, 5")
        a("s_add_u32 s30, s30, s31")
        a(f"s_add_u32 s30, s30, {W8_STT}")
        a(f"v_lshl_add_u32 v{64+k}, v6, 6, s30")
    a("s_mov_b64 exec, s[52:53]")
    for k in range(4):
        d = ACC + (8 + k) * 4
        a(f"ds_write_b128 v{64+k}, v[{d}:{d+3}]")
    a("s_mov_b64 exec, s[54:55]")
    for k in range(4):
        d = ACC + (8 + k) * 4
        a(f"ds_write_b64 v{64+k}, v[{d}:{d+1}] offset:16")
    a("s_mov_b64 exec, -1")
    a("K3_nolin:")
    a("s_cmp_eq_u32 s21, 0")
    a("s_cbranch_scc0 K3_nosv")
    a(f"s_waitcnt vmcnt({vmwait(('S', 0)) + 1})")
    for v in range(3):
        a(f"v_add_f32 v{112+v}, v{112+v}, v{115+v}")
        a(f"v_add_f32 v{118+v}, v{118+v}, v{121+v}")
        a(f"v_add_f32 v{112+v}, v{112+v}, v{118+v}")
    a("v_lshlrev_b32 v124, 16, v124")
    a("s_mul_i32 s30, s20, 768")
    a(f"s_add_u32 s30, s30, {W8_SVT}")
    a("v_lshlrev_b32 v2, 8, v3")
    a("v_lshl_add_u32 v2, v6, 2, v2")
    a("v_add_u32 v2, s30, v2")
    a("v_cmp_gt_u32 vcc, 48, v1")
    a("s_and_saveexec_b64 s[42:43], vcc")
    a("ds_write_b32 v2, v112")
    a("ds_write_b32 v2, v114 offset:64")
    a("ds_write_b32 v2, v113 offset:128")
    a("ds_write_b32 v2, v124 offset:192")
    a("s_mov_b64 exec, s[42:43]")
    a("K3_nosv:   ; LINT-RESET")
    a("s_waitcnt vmcnt(1) lgkmcnt(0)")
    a("s_barrier")
    for i in range(3):
        for k in range(2):
            r = 64 + (i * 2 + k) * 4
            a(f"ds_read_b128 v[{r}:{r+3}], v25 offset:{(i*2 + k)*1024}")
    a("v_lshlrev_b32 v2, 6, v1")
    a(f"v_add_u32 v2, {W8_STT}, v2")
    a("ds_read_b128 v[32:35], v2")
    a("ds_read_b128 v[36:39], v2 offset:16")
    a("ds_read_b128 v[40:43], v2 offset:32")
    a("ds_read_b128 v[44:47], v2 offset:48")
    dr(2)
    a("s_waitcnt lgkmcnt(4)")
    for i in range(3):
        for k in range(2):
            d = ACC + (i * 4 + k) * 4; r = 64 + (i * 2 + k) * 4
            a(f"v_pk_add_f32 v[{d}:{d+1}], v[{d}:{d+1}], v[{r}:{r+1}]")
            a(f"v_pk_add_f32 v[{d+2}:{d+3}], v[{d+2}:{d+3}], v[{r+2}:{r+3}]")
    a("s_waitcnt lgkmcnt(0)")
    for r in range(0, 8, 2): a(f"v_pk_add_f32 v[{32+r}:{33+r}], v[{32+r}:{33+r}], v[{40+r}:{41+r}]")
    dr(1)
    a("v_add_f32 v34, v34, v35")
    a("v_add_f32 v36, v36, v37")
    a("v_mul_f32 v32, 0x3b000000, v32")
    a("v_mul_f32 v38, 0x3b000000, v38")
    a("v_fma_f32 v38, -v32, v32, v38")
    a("v_max_f32 v38, 0, v38")
    a("v_cvt_pk_bf16_f32 v40, v32, v38")
    a("v_lshlrev_b32 v32, 16, v40")
    a("v_and_b32 v38, 0xffff0000, v40")
    a("v_add_f32 v38, 0x3727c5ac, v38")
    rbf(a, 38, 38)
    a("v_sqrt_f32 v38, v38")
    a("v_fma_f32 v33, -v32, s36, v33")
    rbf(a, 38, 38)
    a("v_rcp_f32 v38, v38")
    a("v_mul_f32 v40, v32, v32")
    a("v_add_f32 v41, v32, v32")
    a("v_fma_f32 v39, -v41, v34, v39")
    a("v_fma_f32 v39, v40, s37, v39")
    a("v_fma_f32 v36, -v32, s38, v36")
    a("v_fma_f32 v33, v33, v38, s39")
    a("v_add_f32 v36, v36, v36")
    a("v_fma_f32 v39, v39, v38, v36")
    a("v_mul_f32 v33, 0x3b000000, v33")
    dr(1)
    a("v_fma_f32 v39, v39, v38, s40")
    a("v_mul_f32 v39, 0x3b000000, v39")
    a("v_fma_f32 v39, -v33, v33, v39")
    a("v_max_f32 v39, 0, v39")
    a("v_cvt_pk_bf16_f32 v40, v33, v39")
    a("v_lshlrev_b32 v33, 16, v40")
    a("v_and_b32 v39, 0xffff0000, v40")
    a("v_add_f32 v39, 0x3727c5ac, v39")
    rbf(a, 39, 39)
    a("v_sqrt_f32 v39, v39")
    a("s_nop 0")
    rbf(a, 39, 39)
    a("v_rcp_f32 v47, v39")
    a("s_lshl_b32 s30, s24, 10")
    a(f"s_add_u32 s30, s30, {W8_COF}")
    a("v_mul_f32 v44, v47, v38")
    a("v_mul_f32 v46, -v47, v33")
    a("v_mul_f32 v45, -v44, v32")
    a("v_lshl_add_u32 v2, v1, 4, s30")
    a("ds_write_b128 v2, v[44:47]")
    a("s_waitcnt lgkmcnt(0)")
    for k in range(2):
        a(f"s_lshl_b32 s31, s{48+k}, 8")
        a("s_add_u32 s31, s31, s30")
        a(f"v_lshl_add_u32 v2, v6, 4, s31")
        a(f"ds_read_b128 v[{48+4*k}:{51+4*k}], v2")
    a("s_mul_i32 s30, s20, 768")
    a(f"s_add_u32 s30, s30, {W8_SVT}")
    a("v_lshl_add_u32 v25, v3, 4, s30")
    a("s_mov_b32 s54, 0xbdd2d3e2")
    a("s_mov_b32 s55, 0xc0135761")
    dr(2)
    stamp(a, 3)
    for i in range(3):
        a(f"s_cmp_eq_u32 s{32+i}, 86")
        a(f"s_cbranch_scc1 K3_skip{i}")
        for st in range(4):
            a(f"ds_read_b128 v[{64+4*st}:{67+4*st}], v25 offset:{256*i + 64*st}")
        a(f"s_add_u32 s30, s29, {i}")
        a("s_lshr_b32 s31, s30, 1")
        a("s_lshl_b32 s31, s31, 12")
        a("s_and_b32 s30, s30, 1")
        a("s_lshl_b32 s30, s30, 3")
        a("s_add_u32 s30, s30, s31")
        a(f"s_add_u32 s30, s30, {W8_STG}")
        a("s_waitcnt lgkmcnt(0)")
        A_ = ACC + i * 16
        for (src, co, sel) in ((64, 0, "op_sel:[0,1,0] op_sel_hi:[1,1,1]"), (68, 2, "op_sel_hi:[1,0,1]"), (72, 2, "op_sel:[0,1,0] op_sel_hi:[1,1,1]")):
            for k in range(2):
                c = 48 + 4 * k
                for p in range(2):
                    t = 80 + 4 * k + 2 * p
                    s2 = f"v[{76+2*p}:{77+2*p}]" if src == 64 else f"v[{t}:{t+1}]"
                    a(f"v_pk_fma_f32 v[{t}:{t+1}], v[{src+2*p}:{src+2*p+1}], v[{c+co}:{c+co+1}], {s2} {sel}")
            if i == 0: dr(1)
        for k in range(2):
            c = 48 + 4 * k
            for p in range(2):
                x = A_ + 4 * k + 2 * p; t = 80 + 4 * k + 2 * p
                a(f"v_pk_fma_f32 v[{x}:{x+1}], v[{x}:{x+1}], v[{c}:{c+1}], v[{t}:{t+1}] op_sel_hi:[1,0,1]")
        for j in range(4):
            x = A_ + 2 * j; t = 80 + 2 * j
            a(f"v_pk_mul_f32 v[{t}:{t+1}], v[{x}:{x+1}], v[{x}:{x+1}]")
        for j in range(4):
            t = 80 + 2 * j
            a(f"v_pk_fma_f32 v[{t}:{t+1}], v[{t}:{t+1}], s[54:55], s[54:55] op_sel:[0,0,1] op_sel_hi:[1,0,1]")
        for j in range(4):
            x = A_ + 2 * j; t = 80 + 2 * j
            a(f"v_pk_mul_f32 v[{t}:{t+1}], v[{t}:{t+1}], v[{x}:{x+1}]")
        if i == 0: dr(1)
        for j in range(8): a(f"v_exp_f32 v{80+j}, v{80+j}")
        for j in range(4):
            t = 80 + 2 * j
            a(f"v_pk_add_f32 v[{t}:{t+1}], v[{t}:{t+1}], 1.0 op_sel_hi:[1,0]")
        for j in range(8): a(f"v_rcp_f32 v{80+j}, v{80+j}")
        if i == 0: dr(1)
        for j in range(4):
            x = A_ + 2 * j; t = 80 + 2 * j
            a(f"v_pk_mul_f32 v[{x}:{x+1}], v[{x}:{x+1}], v[{t}:{t+1}]")
        for k in range(2):
            a(f"v_cvt_pk_bf16_f32 v{88+2*k}, v{A_+4*k}, v{A_+4*k+1}")
            a(f"v_cvt_pk_bf16_f32 v{89+2*k}, v{A_+4*k+2}, v{A_+4*k+3}")
        if i == 1:
            a("s_cmp_eq_u32 s29, 9")
            a("s_cbranch_scc0 K3_paired1")
            a("s_lshr_b32 s31, s26, 1")
            a("s_add_u32 s31, s31, 40")
            a("s_mul_i32 s43, s25, 43")
            a("s_add_u32 s31, s31, s43")
            a("s_lshl_b32 s31, s31, 12")
            a("s_and_b32 s43, s26, 1")
            a("s_lshl_b32 s43, s43, 3")
            a("s_add_u32 s31, s31, s43")
            a(f"s_add_u32 s31, s31, {HF}")
            for k in range(2):
                a(f"s_lshl_b32 s43, s{48+k}, 10")
                a("s_add_u32 s43, s43, s31")
                a(f"buffer_store_dwordx2 v[{88+2*k}:{89+2*k}], v13, s[8:11], s43 offen sc1")
            a("s_branch K3_skip1")
            a("K3_paired1:")
        for k in range(2):
            a(f"s_lshl_b32 s31, s{48+k}, 10")
            a("s_add_u32 s31, s31, s30")
            a(f"v_add_u32 v2, s31, v13")
            a(f"ds_write_b64 v2, v[{88+2*k}:{89+2*k}]")
        a(f"K3_skip{i}:   ; LINT-RESET")
        dr(2)
    dr(99)
    for t in range(2):
        a(f"ds_read_b64_tr_b16 v[{16+2*t}:{17+2*t}], v26 offset:{2048*t}")
    a("s_waitcnt lgkmcnt(0)")
    a("s_barrier")
    stamp(a, 4)
    a("s_lshl_b32 s30, s24, 10")
    a("v_add_u32 v2, s30, v13")
    a(f"v_add_u32 v2, {W8_STG}, v2")
    a("ds_read_b128 v[32:35], v2")
    a("ds_read_b128 v[36:39], v2 offset:8192")
    a("s_mul_i32 s31, s25, 43")
    a("s_mul_i32 s43, s26, 5")
    a("s_add_u32 s31, s31, s43")
    a("s_lshl_b32 s31, s31, 12")
    a("s_add_u32 s31, s31, s30")
    a(f"s_add_u32 s31, s31, {HF}")
    a("s_waitcnt lgkmcnt(1)")
    a("buffer_store_dwordx4 v[32:35], v13, s[8:11], s31 offen sc1")
    a("s_add_u32 s31, s31, 8192")
    a("s_waitcnt lgkmcnt(0)")
    a("buffer_store_dwordx4 v[36:39], v13, s[8:11], s31 offen sc1")
    a("s_cmp_lt_u32 s24, 4")
    a("s_cbranch_scc0 K3_no3rd")
    a("ds_read_b128 v[40:43], v2 offset:16384")
    a("s_add_u32 s31, s31, 8192")
    a("s_waitcnt lgkmcnt(0)")
    a("buffer_store_dwordx4 v[40:43], v13, s[8:11], s31 offen sc1")
    a("K3_no3rd:   ; LINT-RESET")
    ACB = 176
    for r in range(ACB, ACB + 32): a(f"v_mov_b32 v{r}, 0")
    a("s_waitcnt vmcnt(0)")
    stamp(a, 5)
    a("s_barrier")
    a("s_cmp_lg_u32 s24, 0")
    a("s_cbranch_scc1 K3_wait")
    a("s_lshl_b32 s30, s25, 7")
    a(f"s_add_u32 s30, s30, {FLAGS}")
    a("v_mov_b32 v2, s30")
    a("v_mov_b32 v4, 1")
    a("s_mov_b64 exec, 1")
    a("global_atomic_add v4, v2, v4, s[14:15] sc0 sc1")
    a("s_waitcnt vmcnt(0)")
    a("v_readfirstlane_b32 s30, v4")
    a("s_cmp_eq_u32 s30, 7")
    a("s_cbranch_scc1 K3_pollx")
    a("s_mov_b32 s31, 0x100000")
    a("K3_poll:")
    a("global_load_dword v5, v2, s[14:15] sc1")
    a("s_waitcnt vmcnt(0)")
    a("v_readfirstlane_b32 s30, v5")
    a("s_sub_u32 s31, s31, 1")
    a("s_cmp_eq_u32 s31, 0")
    a("s_cbranch_scc1 K3_pollx")
    a("s_cmp_ge_u32 s30, 8")
    a("s_cbranch_scc0 K3_poll")
    a("K3_pollx:")
    a("s_mov_b64 exec, -1")
    a("K3_wait:   ; LINT-RESET")
    a("s_barrier")
    stamp(a, 6)
    SLOT = 16384; NS = 6
    a("s_mul_i32 s57, s25, 43")
    a("s_add_u32 s57, s57, s58")
    a("s_lshl_b32 s57, s57, 12")
    a("s_lshl_b32 s30, s21, 11")
    a("s_add_u32 s57, s57, s30")
    a(f"s_add_u32 s57, s57, {HF}")
    a("s_lshl_b32 s56, s20, 12")
    a("s_add_u32 s56, s56, s30")
    a("s_lshl_b32 s30, s20, 12")
    a("v_add_u32 v4, s30, v13")
    a(f"v_add_u32 v8, {4*SLOT}, v4")
    def hdma(j):
        return [f"s_add_u32 m0, s56, {(j % NS) * SLOT}\ns_add_u32 s43, s57, {4096 * j}\nbuffer_load_dwordx4 v13, s[8:11], s43 offen offset:{1024*t} lds" for t in range(2)]
    def hread(j):
        sl = j % NS
        base, off = ("v4", sl * SLOT) if sl < 4 else ("v8", (sl - 4) * SLOT)
        return [f"ds_read_b128 v[{HB[j & 1] + 4*lt}:{HB[j & 1] + 4*lt + 3}], {base} offset:{off + lt * 1024}" for lt in range(4)]
    HB = [32, 48]
    AHEAD = 5
    hq = []
    for j in range(AHEAD):
        for x in hdma(j): a(x); hq.append(j)
    a(f"s_waitcnt vmcnt({sum(1 for t in hq if t > 0)})")
    a("s_barrier")
    for x in hread(0): a(x)
    for j in range(11):
        if j + 1 <= 10:
            a(f"s_waitcnt vmcnt({sum(1 for t in hq if t > j + 1)}) lgkmcnt(0)")
            a("s_barrier")
            rd = hread(j + 1)
        else:
            a("s_waitcnt lgkmcnt(0)")
            rd = []
        nxt = hdma(j + AHEAD) if j + AHEAD <= 10 else []
        hq += [j + AHEAD] * len(nxt)
        extra = rd + nxt
        ei = 0
        for t in range(2):
            for lt in range(4):
                d = ACB + (t * 4 + lt) * 4
                ar = w2reg(j, t); br = HB[j & 1] + 4 * lt
                a(f"v_mfma_f32_16x16x32_bf16 v[{d}:{d+3}], v[{ar}:{ar+3}], v[{br}:{br+3}], v[{d}:{d+3}]")
                if ei < len(extra): a(extra[ei]); ei += 1
    stamp(a, 7)
    a("v_mul_u32_u24 v5, 272, v6")
    a("v_lshl_add_u32 v5, v3, 4, v5")
    a(f"s_mul_i32 s30, s20, {P_W}")
    a("s_lshl_b32 s31, s21, 7")
    a("s_add_u32 s30, s30, s31")
    a(f"s_add_u32 s30, s30, {W8_RED}")
    a("v_add_u32 v7, s30, v5")
    a("s_barrier")
    a("s_nop 4")
    for t in range(2):
        for lt in range(4):
            d = ACB + (t * 4 + lt) * 4
            a(f"ds_write_b128 v7, v[{d}:{d+3}] offset:{lt*16*272 + t*64}")
    a(f"s_mul_i32 s30, s20, {16*272}")
    a("s_lshl_b32 s31, s21, 7")
    a("s_add_u32 s30, s30, s31")
    a(f"s_add_u32 s30, s30, {W8_RED}")
    a("v_add_u32 v7, s30, v5")
    a("s_waitcnt lgkmcnt(0)")
    a("s_barrier")
    stamp(a, 8)
    for t in range(2):
        for w in range(4):
            r = 32 + (t * 4 + w) * 4
            a(f"ds_read_b128 v[{r}:{r+3}], v7 offset:{w*P_W + t*64}")
    a.srd(40, 18, 2048 * 512 * 2)
    a("s_lshl_b32 s30, s25, 16")
    a("s_lshl_b32 s31, s20, 14")
    a("s_add_u32 s30, s30, s31")
    a("s_lshl_b32 s31, s26, 7")
    a("s_add_u32 s30, s30, s31")
    a("s_lshl_b32 s31, s21, 6")
    a("s_add_u32 s30, s30, s31")
    a("v_lshlrev_b32 v9, 10, v6")
    a("v_lshl_add_u32 v9, v3, 3, v9")
    a("v_add_u32 v9, s30, v9")
    for t in range(2):
        a(f"s_waitcnt lgkmcnt({4*(1-t)})")
        r = 32 + t * 16
        for p in range(2):
            a(f"v_pk_add_f32 v[{r+2*p}:{r+2*p+1}], v[{r+2*p}:{r+2*p+1}], v[{r+4+2*p}:{r+5+2*p}]")
            a(f"v_pk_add_f32 v[{r+8+2*p}:{r+9+2*p}], v[{r+8+2*p}:{r+9+2*p}], v[{r+12+2*p}:{r+13+2*p}]")
        for p in range(2):
            a(f"v_pk_add_f32 v[{r+2*p}:{r+2*p+1}], v[{r+2*p}:{r+2*p+1}], v[{r+8+2*p}:{r+9+2*p}]")
        for q_ in range(2):
            a(f"v_lshlrev_b32 v{96+2*q_}, 16, v{252+2*t+q_}")
            a(f"v_and_b32 v{97+2*q_}, 0xffff0000, v{252+2*t+q_}")
            a(f"v_lshlrev_b32 v{100+2*q_}, 16, v{16+2*t+q_}")
            a(f"v_and_b32 v{101+2*q_}, 0xffff0000, v{16+2*t+q_}")
        for p in range(2):
            a(f"v_pk_add_f32 v[{r+2*p}:{r+2*p+1}], v[{r+2*p}:{r+2*p+1}], v[{96+2*p}:{97+2*p}]")
        for p in range(2):
            a(f"v_pk_fma_f32 v[{r+2*p}:{r+2*p+1}], v[{r+2*p}:{r+2*p+1}], v[{244+4*t+2*p}:{245+4*t+2*p}], v[{100+2*p}:{101+2*p}]")
        a(f"v_cvt_pk_bf16_f32 v{24+2*t}, v{r}, v{r+1}")
        a(f"v_cvt_pk_bf16_f32 v{25+2*t}, v{r+2}, v{r+3}")
        a(f"buffer_store_dwordx2 v[{24+2*t}:{25+2*t}], v9, s[40:43], 0 offen offset:{32*t}")
    a("K3_END:   ; LINT-RESET")
    stamp_store(a, KID3, 14, 24)
    a("K3_EXIT:")
    a.end_kernel(name, 256, 100, accum=256)

def triv(a, i):
    name = f"t{i}_kernel"
    a.begin_kernel(name, 256, 256, 0)
    a.end_kernel(name, 8, 16)
def build(kernels):
    global LASTLABEL, KID3, FUSED
    FUSED = kernels[0].__name__ == "k12"
    KID3 = len(kernels) - 1
    LASTLABEL = {"k1": "K1_EXIT", "k2": "K2_EXIT", "k12": "K2_EXIT", "k3": "K3_EXIT", "k3w": "K3_EXIT"}[kernels[-1].__name__]
    a = Asm()
    for i in range(int(OPT.get("pre_triv", "0"))): triv(a, 10 + i)
    for k in kernels: k(a)
    for i in range(int(OPT.get("extra", "0"))): triv(a, i)
    return a.text().replace("None\n", "")

ALL = {}
if __name__ == "__main__":
    out = sys.argv[1] if len(sys.argv) > 1 else "cur.s"
    names = sys.argv[2].split(",") if len(sys.argv) > 2 else ["k1"]
    if len(sys.argv) > 3 and sys.argv[3] == "prof": PROF = True
    open(out, "w").write(build([globals()[n] for n in names]))
```

```python
import sys
sys.path.insert(0, "dev")
from asmgen import *

import os
OPT = dict(kv.split("=") for kv in os.environ.get("GENOPT", "").split(",") if kv)
WSOFF = int(OPT.get("wsoff", "0"), 0)
SC1 = " sc1" if OPT.get("sc1", "1") == "1" else ""
HLD = " sc1" if OPT.get("hsc1", "1") == "1" else ""
WLD = " sc1" if OPT.get("wsc1", "0") == "1" else ""
XLD = " sc1" if OPT.get("xsc1", "0") == "1" else ""
STL = " sc1" if OPT.get("stsc1", "1") == "1" else ""
NT1 = " nt" if OPT.get("nt1", "1") == "1" else ""
def wsfix(a, r):
    if WSOFF:
        a(f"s_add_u32 s{r}, s{r}, {WSOFF}")
        a(f"s_addc_u32 s{r+1}, s{r+1}, 0")
XT    = 0x0000000
X2T   = 0x0200000
KREV  = 0x0400000
KW    = 4160
STAT1 = 0x0620000
MODF  = 0x0630000
SCAL  = 0x0634000
SVP   = 0x0640000
MODP  = 0x0660000
G2F   = 0x0634400
GBF   = 0x0634C00
W1F   = 0x0700000
W2F   = 0x0900000
HF    = 0x0B00000
WS_USED = 0x1100000

STAMP = 0x1100000
PROF = False
def stamp(a, i):
    if PROF:
        if OPT.get("cyc", "0") == "1": a(f"s_memtime s[{70+2*i}:{71+2*i}]")
        else: a(f"s_memrealtime s[{70+2*i}:{71+2*i}]")
        a("s_waitcnt lgkmcnt(0)")
def stamp_store(a, kid, wsreg, swave):
    if not PROF: return
    a("s_mov_b64 exec, -1")
    tm = "s_memtime" if OPT.get("cyc", "0") == "1" else "s_memrealtime"
    a(f"{tm} s[90:91]")
    a("s_waitcnt lgkmcnt(0) vmcnt(0)")
    a(f"{tm} s[92:93]")
    a("s_waitcnt lgkmcnt(0)")
    a(f"s_lshl_b32 s94, s2, 3")
    a(f"s_add_u32 s94, s94, s{swave}")
    a(f"s_lshl_b32 s94, s94, 6")
    a(f"s_add_u32 s94, s94, {STAMP + kid * 0x80000}")
    a("v_mov_b32 v0, s94")
    for i in range(12):
        a(f"v_mov_b32 v{2+i}, s{70+2*i}")
    a("s_mov_b64 exec, 1")
    a(f"global_store_dwordx4 v0, v[2:5], s[{wsreg}:{wsreg+1}]")
    a(f"global_store_dwordx4 v0, v[6:9], s[{wsreg}:{wsreg+1}] offset:16")
    a(f"global_store_dwordx4 v0, v[10:13], s[{wsreg}:{wsreg+1}] offset:32")

LOG2E = "0x3fb8aa3b"
INV2PI = "0.15915494"

def wave_id(a, s, vt):
    a(f"v_lshrrev_b32 v{vt}, 6, v0")
    a("s_nop 0")
    a(f"v_readfirstlane_b32 s{s}, v{vt}")

def rbf(a, vd, vs):
    a(f"v_cvt_pk_bf16_f32 v{vd}, v{vs}, v{vs}")
    a(f"v_and_b32 v{vd}, 0xffff0000, v{vd}")

def csq(a, dst, src, tmp):
    return [
        f"v_pk_mul_f32 v[{tmp}:{tmp+1}], v[{src}:{src+1}], v[{src}:{src+1}] op_sel:[0,0] op_sel_hi:[1,0]",
        f"v_pk_fma_f32 v[{dst}:{dst+1}], v[{src}:{src+1}], v[{src}:{src+1}], v[{tmp}:{tmp+1}] op_sel:[1,1,0] op_sel_hi:[0,1,1] neg_lo:[1,0,0]",
    ]

def cmulconj(a, dst, p, c, tmp):
    return [
        f"v_pk_mul_f32 v[{tmp}:{tmp+1}], v[{p}:{p+1}], v[{c}:{c+1}] op_sel:[0,0] op_sel_hi:[1,0] neg_hi:[0,1]",
        f"v_pk_fma_f32 v[{dst}:{dst+1}], v[{p}:{p+1}], v[{c}:{c+1}], v[{tmp}:{tmp+1}] op_sel:[1,1,0] op_sel_hi:[0,1,1] neg_lo:[1,0,0] neg_hi:[1,0,0]",
    ]

def code_prefetch(a, start, end, n, tag, vtmp, dst0):
    a(f"s_getpc_b64 s[66:67]")
    a(f"CPF_{tag}:")
    a(f"s_sub_u32 s66, s66, CPF_{tag}-{start}")
    a(f"s_subb_u32 s67, s67, 0")
    a(f"v_lshlrev_b32 v{vtmp}, 7, v1")
    a("s_mov_b64 s[68:69], exec")
    for i in range(n):
        a(f"v_cmp_gt_u32 vcc, {end}-{start}, v{vtmp}")
        a("s_and_b64 exec, s[68:69], vcc")
        a(f"s_cbranch_execz CPF_{tag}_done")
        a(f"global_load_dword v{dst0+i}, v{vtmp}, s[66:67]")
        a(f"v_add_u32 v{vtmp}, 8192, v{vtmp}")
    a(f"CPF_{tag}_done:")
    a("s_mov_b64 exec, s[68:69]")

def k1(a):
    name = "k1_kernel"
    a.begin_kernel(name, 512, 256, 23552)
    a("s_cmp_ge_u32 s2, 512")
    a("s_cbranch_scc1 K1_EXIT")
    stamp(a, 0)
    a("s_load_dwordx8 s[4:11], s[0:1], 8")
    a("s_load_dwordx2 s[12:13], s[0:1], 40")
    a("s_load_dwordx2 s[14:15], s[0:1], 128")
    a("s_load_dwordx2 s[16:17], s[0:1], 0")
    a("s_load_dwordx4 s[20:23], s[0:1], 96")
    wave_id(a, 24, 1)
    a("v_and_b32 v1, 63, v0")
    a("s_cmp_ge_u32 s2, 256")
    a("s_cbranch_scc1 K1_TSM")
    a("s_setprio 3")
    a("s_lshr_b32 s25, s24, 1")
    a("s_and_b32 s26, s24, 1")
    a("s_lshl_b32 s27, s2, 1")
    a("s_add_u32 s27, s27, s25")
    a("s_lshl_b32 s28, s27, 8")
    a("s_lshl_b32 s29, s26, 7")
    a("s_add_u32 s28, s28, s29")
    a("v_lshl_add_u32 v2, v1, 1, s28")
    a("s_lshl_b32 s30, s2, 2")
    a("s_waitcnt lgkmcnt(0)")
    wsfix(a, 14)
    a("global_load_ushort v4, v2, s[4:5] nt")
    a("global_load_ushort v5, v2, s[6:7] nt")
    a("global_load_ushort v6, v2, s[8:9] nt")
    a("global_load_ushort v7, v2, s[10:11] nt")
    a("s_load_dword s29, s[12:13], s30")
    a("v_and_b32 v16, 15, v1")
    a("v_cmp_eq_u32 s[32:33], 15, v16")
    a("v_lshrrev_b32 v18, 4, v1")
    a("v_add_u32 v19, 1, v16")
    a("v_cvt_f32_u32 v19, v19")
    a("s_lshl_b32 s31, s24, 10")
    a("v_lshl_add_u32 v17, v18, 6, s31")
    a("v_lshl_add_u32 v20, v1, 4, s31")
    for r in range(112, 128):
        a(f"v_mov_b32 v{r}, 0")
    T16 = 4096 + 16384
    a("s_mul_i32 s39, s25, 1344")
    a(f"s_add_u32 s39, s39, {T16 + 8}")
    a("v_subrev_u32 v21, 7, v16")
    a("v_cmp_gt_u32 s[34:35], 8, v21")
    a("v_add_u32 v21, 1, v16")
    a("v_and_b32 v21, 15, v21")
    a("v_lshlrev_b32 v24, 5, v21")
    a("v_lshl_add_u32 v24, v18, 3, v24")
    a("s_lshl_b32 s40, s26, 9")
    a("s_add_u32 s40, s40, s39")
    a("v_add_u32 v24, s40, v24")
    a("s_cmp_eq_u32 s26, 0")
    a("s_cselect_b64 s[36:37], -1, s[34:35]")
    a("s_lshl_b32 s40, s24, 12")
    a("s_add_u32 s40, s40, 4096")
    a("v_lshl_add_u32 v22, v1, 4, s40")
    a("s_lshl_b32 s40, s25, 13")
    a("s_lshl_b32 s41, s26, 11")
    a("s_add_u32 s40, s40, s41")
    a("s_add_u32 s40, s40, 4096")
    a("v_lshl_add_u32 v23, v1, 4, s40")
    a("s_lshl_b32 s40, s26, 6")
    a("v_add_u32 v26, s40, v1")
    a("v_lshlrev_b32 v27, 3, v26")
    a("v_sub_u32 v27, 2047, v27")
    a("v_cvt_f32_u32 v28, v27")
    a("s_sub_u32 s41, s39, 34050")
    a("s_sub_u32 s42, s39, 2")
    GA = 140
    for rnd in range(2):
        if rnd == 1:
            a("v_add_f32 v28, 0xc4800000, v28")
            a("v_subrev_u32 v27, 1024, v27")
        for t in range(8):
            if t == 0: a(f"v_mov_b32 v48, v28")
            else: a(f"v_add_f32 v{48+t}, {-float(t)}, v28")
        for p in range(4):
            a(f"v_cvt_pk_bf16_f32 v{56+p}, v{48+2*p}, v{49+2*p}")
        for p in range(4):
            a(f"v_and_b32 v{48+2*p}, 0xffff, v{56+p}")
            a(f"v_lshrrev_b32 v{49+2*p}, 16, v{56+p}")
        o = GA + 8 * rnd
        for t in range(8):
            a(f"v_lshl_add_u32 v{o+t}, v{48+t}, 1, s41")
        if rnd == 1:
            a("v_cmp_le_u32 vcc, 112, v26")
            for t in range(8):
                a(f"v_subrev_u32 v{56+(t&3)}, {t}, v27")
                a(f"v_lshl_add_u32 v{56+(t&3)}, v{56+(t&3)}, 1, s42")
                a(f"v_cndmask_b32 v{o+t}, v{o+t}, v{56+(t&3)}, vcc")
    a(f"s_mul_i32 s40, s27, {KW}")
    a(f"s_add_u32 s40, s40, {KREV}")
    a("v_lshl_add_u32 v29, v26, 4, s40")
    a("v_add_u32 v30, 2048, v29")
    a("v_add_u32 v31, 4096, v29")
    a("s_waitcnt lgkmcnt(0)")
    a("s_lshl_b32 s43, s25, 4")
    a("s_lshr_b32 s29, s29, s43")
    a("s_lshl_b32 s29, s29, 16")
    a(f"v_mov_b32 v8, {LOG2E}")
    a("v_mul_f32 v9, s29, v8")
    a("v_exp_f32 v9, v9")
    a("s_nop 0")
    rbf(a, 9, 9)
    a("s_waitcnt vmcnt(0)")
    a("v_lshlrev_b32 v4, 16, v4")
    a("v_lshlrev_b32 v5, 16, v5")
    a("v_lshlrev_b32 v6, 16, v6")
    a("v_lshlrev_b32 v7, 16, v7")
    a("v_mul_f32 v4, v4, v8")
    a("v_exp_f32 v4, v4")
    a("v_mul_f32 v13, v5, v9")
    a("v_mul_f32 v14, v6, v9")
    rbf(a, 4, 4)
    a("v_mul_f32 v15, v7, v9")
    a("v_mul_f32 v12, v4, v9")
    a(f"v_mul_f32 v13, {INV2PI}, v13")
    a("v_add_f32 v14, v14, v14")
    a("v_add_f32 v15, v15, v15")
    a("v_mul_f32 v12, v12, v8")
    a("v_mov_b32 v10, v14")
    a("v_sub_f32 v12, 0, v12")
    a("ds_write_b128 v20, v[12:15]")
    for ctl in ("row_shr:1", "row_shr:2", "row_shr:4", "row_shr:8", "row_bcast:15 row_mask:0xa", "row_bcast:31 row_mask:0xc"):
        a("s_nop 1")
        a(f"v_add_f32_dpp v10, v10, v10 {ctl}")
    a("s_waitcnt lgkmcnt(0)")
    stamp(a, 1)
    R = [[32 + 4 * u for u in range(4)], [48 + 4 * u for u in range(4)]]
    PA = [64 + 2 * u for u in range(4)]
    PB = [72 + 2 * u for u in range(4)]
    TT = [80 + 2 * u for u in range(4)]
    QF = [88 + 4 * e for e in range(4)]
    GF = [104, 108]
    DD = [112 + 4 * e for e in range(4)]
    CPK = [128 + u for u in range(4)]
    MAG = [132 + 2 * u for u in range(4)]
    for u in range(4):
        a(f"ds_read_b128 v[{R[0][u]}:{R[0][u]+3}], v17 offset:{u*16}")
    for ks in range(4):
        Rc = R[ks & 1]
        if ks + 1 < 4:
            for u in range(4):
                a(f"ds_read_b128 v[{R[(ks+1)&1][u]}:{R[(ks+1)&1][u]+3}], v17 offset:{(ks+1)*256+u*16}")
            a("s_waitcnt lgkmcnt(4)")
        else:
            a("s_waitcnt lgkmcnt(0)")
        for u in range(4): a(f"v_mul_f32 v{TT[u]}, v{Rc[u]}, v19")
        for u in range(4): a(f"v_mul_f32 v{TT[u]+1}, v{Rc[u]+1}, v19")
        for u in range(4): a(f"v_exp_f32 v{MAG[u]}, v{TT[u]}")
        for u in range(4): a(f"v_fract_f32 v{TT[u]+1}, v{TT[u]+1}")
        for u in range(4): a(f"v_cvt_pk_bf16_f32 v{CPK[u]}, v{Rc[u]+2}, -v{Rc[u]+3}")
        for u in range(4): a(f"v_cos_f32 v{PB[u]}, v{TT[u]+1}")
        for u in range(4): a(f"v_sin_f32 v{PB[u]+1}, v{TT[u]+1}")
        a("s_nop 0")
        for u in range(4):
            a(f"v_pk_mul_f32 v[{PA[u]}:{PA[u]+1}], v[{PB[u]}:{PB[u]+1}], v[{MAG[u]}:{MAG[u]+1}] op_sel:[0,0] op_sel_hi:[1,0]")
        cur, oth = PA, PB
        for e in range(4):
            for u in range(4): a(f"v_cvt_pk_bf16_f32 v{QF[e]+u}, v{cur[u]}, v{cur[u]+1}")
            sq = [csq(a, oth[u], cur[u], TT[u]) for u in range(4)]
            for u in range(4): a(sq[u][0])
            for u in range(4): a(sq[u][1])
            cur, oth = oth, cur
        for e in range(4):
            g = GF[e & 1]
            cm = [cmulconj(a, oth[u], cur[u], Rc[u] + 2, TT[u]) for u in range(4)]
            for u in range(4): a(cm[u][0])
            for u in range(4): a(cm[u][1])
            for u in range(4): a(f"v_cvt_pk_bf16_f32 v{g+u}, v{oth[u]}, v{oth[u]+1}")
            if e == 0:
                for u in range(4): a(f"v_cndmask_b32 v{g+u}, v{g+u}, v{CPK[u]}, s[32:33]")
            if e < 3:
                sq = [csq(a, oth[u], cur[u], TT[u]) for u in range(4)]
                for u in range(4): a(sq[u][0])
                a(f"v_mfma_f32_16x16x32_bf16 v[{DD[e]}:{DD[e]+3}], v[{QF[e]}:{QF[e]+3}], v[{g}:{g+3}], v[{DD[e]}:{DD[e]+3}]")
                for u in range(4): a(sq[u][1])
                cur, oth = oth, cur
            else:
                a("s_nop 1")
                a(f"v_mfma_f32_16x16x32_bf16 v[{DD[e]}:{DD[e]+3}], v[{QF[e]}:{QF[e]+3}], v[{g}:{g+3}], v[{DD[e]}:{DD[e]+3}]")
    stamp(a, 2)
    a("v_readlane_b32 s44, v10, 63")
    a(f"s_lshl_b32 s45, s24, 2")
    a(f"s_add_u32 s45, s45, {T16 + 2*1344 + 16}")
    a("v_mov_b32 v11, s45")
    a("v_mov_b32 v10, s44")
    a("s_nop 1")
    for e in range(4):
        a(f"ds_write_b128 v22, v[{DD[e]}:{DD[e]+3}] offset:{e*1024}")
    a("ds_write_b32 v11, v10")
    a("s_waitcnt lgkmcnt(0)")
    a("s_barrier")
    a("ds_read_b128 v[32:35], v23")
    a("ds_read_b128 v[36:39], v23 offset:4096")
    a("ds_read_b128 v[40:43], v23 offset:1024")
    a("ds_read_b128 v[44:47], v23 offset:5120")
    a(f"s_lshl_b32 s45, s25, 3")
    a(f"s_add_u32 s45, s45, {T16 + 2*1344 + 16}")
    a("v_mov_b32 v11, s45")
    a("ds_read_b64 v[8:9], v11")
    a("s_waitcnt lgkmcnt(0)")
    for r in range(4): a(f"v_add_f32 v{32+r}, v{32+r}, v{36+r}")
    for r in range(4): a(f"v_add_f32 v{40+r}, v{40+r}, v{44+r}")
    a("v_add_f32 v8, v8, v9")
    a("v_cvt_pk_bf16_f32 v32, v32, v33")
    a("v_cvt_pk_bf16_f32 v33, v34, v35")
    a("v_cvt_pk_bf16_f32 v40, v40, v41")
    a("v_cvt_pk_bf16_f32 v41, v42, v43")
    a("v_cvt_pk_bf16_f32 v8, v8, v8")
    a("s_sub_u32 s45, s39, 2")
    a("v_mov_b32 v11, s45")
    a("s_mov_b64 s[42:43], exec")
    a("s_mov_b64 exec, s[36:37]")
    a("ds_write_b64 v24, v[32:33]")
    a("s_mov_b64 exec, s[34:35]")
    a("ds_write_b64 v24, v[40:41] offset:256")
    a("s_mov_b64 exec, s[42:43]")
    a("ds_write_b16 v11, v8")
    a("s_waitcnt lgkmcnt(0)")
    a("s_barrier")
    stamp(a, 3)
    for t in range(16):
        a(f"ds_read_u16 v{76+t}, v{GA+t}")
        if t == 7: a("v_mov_b32 v72, 0\nv_mov_b32 v73, 0\nv_mov_b32 v74, 0\nv_mov_b32 v75, 0")
    a("s_waitcnt lgkmcnt(8)")
    for p in range(4):
        a(f"v_lshl_or_b32 v{64+p}, v{77+2*p}, 16, v{76+2*p}")
    a("global_store_dwordx4 v29, v[64:67], s[14:15] sc1")
    a("s_waitcnt lgkmcnt(0)")
    for p in range(4):
        a(f"v_lshl_or_b32 v{68+p}, v{85+2*p}, 16, v{84+2*p}")
    a("global_store_dwordx4 v30, v[68:71], s[14:15] sc1")
    a("v_cmp_gt_u32 vcc, 4, v26")
    a("s_and_saveexec_b64 s[42:43], vcc")
    a("s_cbranch_execz K1_END")
    a("global_store_dwordx4 v31, v[72:75], s[14:15] sc1")
    a("s_branch K1_END")
    a("K1_TSM:   ; LINT-RESET")
    a("s_sub_u32 s25, s2, 256")
    a("s_and_b32 s28, s25, 7")
    a("s_lshr_b32 s29, s25, 3")
    a("s_lshr_b32 s26, s29, 3")
    a("s_lshl_b32 s27, s28, 2")
    a("s_add_u32 s26, s26, s27")
    a("s_and_b32 s27, s29, 7")
    a("s_lshl_b32 s30, s28, 8")
    a("s_lshl_b32 s31, s29, 3")
    a("s_add_u32 s30, s30, s31")
    a("s_lshl_b32 s28, s26, 16")
    a("s_lshl_b32 s29, s27, 7")
    a("s_add_u32 s28, s28, s29")
    a("v_lshrrev_b32 v2, 3, v0")
    a("v_and_b32 v3, 7, v0")
    a("v_lshlrev_b32 v4, 10, v2")
    a("v_lshl_add_u32 v4, v3, 4, v4")
    a("v_add_u32 v4, s28, v4")
    a("v_add_u32 v5, 0x8000, v4")
    a("s_lshl_b32 s31, s24, 1")
    a("s_add_u32 s30, s30, s31")
    a("s_lshl_b32 s31, s30, 10")
    a("v_lshl_add_u32 v6, v1, 4, s31")
    a("s_and_b32 s33, s25, 7")
    a("s_mul_i32 s33, s33, 24")
    a("s_lshr_b32 s34, s25, 3")
    a("s_add_u32 s33, s33, s34")
    a("v_lshrrev_b32 v7, 1, v0")
    a("v_and_b32 v24, 1, v0")
    a("v_mul_u32_u24 v25, 6144, v7")
    a("v_lshl_add_u32 v25, v24, 4, v25")
    a("s_lshl_b32 s35, s33, 5")
    a("v_add_u32 v25, s35, v25")
    a("v_add_u32 v26, 786432, v25")
    a("v_add_u32 v27, 786432, v26")
    a("v_add_u32 v28, 786432, v27")
    a("v_lshlrev_b32 v29, 1, v7")
    a("s_waitcnt lgkmcnt(0)")
    wsfix(a, 14)
    a("global_load_dwordx4 v[8:11], v4, s[16:17]" + NT1)
    a("global_load_dwordx4 v[12:15], v5, s[16:17]" + NT1)
    a("global_load_dwordx4 v[16:19], v6, s[16:17]" + NT1)
    a("global_load_dwordx4 v[20:23], v6, s[16:17] offset:1024" + NT1)
    a("s_cmp_ge_u32 s25, 192")
    a("s_cbranch_scc1 K1_nomodld")
    for k in range(4):
        a(f"global_load_ushort v{48+k}, v29, s[20:21] offset:{256*k}")
    for k, vo in enumerate((25, 26, 27, 28)):
        a(f"global_load_dwordx4 v[{32+4*k}:{35+4*k}], v{vo}, s[22:23]" + NT1)
    a("K1_nomodld:")
    if OPT.get("cpf", "1") == "1":
        a("s_sub_u32 s65, s25, 192")
        a("s_cmp_ge_u32 s65, 16")
        a("s_cbranch_scc1 K1_nocpf")
        a("s_cmp_lg_u32 s24, 3")
        a("s_cbranch_scc1 K1_nocpf")
        code_prefetch(a, "k1_kernel", LASTLABEL, 6, "k1", 70, 72)
        TS = int(OPT.get("tlb", "0"))
        if TS:
            a("s_load_dwordx2 s[50:51], s[0:1], 64")
            a("s_load_dwordx2 s[52:53], s[0:1], 80")
            a("s_load_dwordx2 s[54:55], s[0:1], 112")
            a("s_load_dwordx2 s[56:57], s[0:1], 72")
            a("s_load_dwordx2 s[58:59], s[0:1], 88")
            a("s_load_dwordx2 s[60:61], s[0:1], 48")
            a(f"v_mul_u32_u24 v71, {TS}, v1")
            a("s_waitcnt lgkmcnt(0)")
            k = 80
            for (sr, size) in ((14, WS_USED), (50, 512*1376*2), (52, 512*1376*2), (54, 2048*512*2)):
                n = -(-size // (64 * TS))
                for i in range(n):
                    a(f"v_add_u32 v70, {i * 64 * TS}, v71")
                    a(f"v_cmp_gt_u32 vcc, {size}, v70")
                    a("s_and_saveexec_b64 s[62:63], vcc")
                    a(f"global_load_dword v{k}, v70, s[{sr}:{sr+1}]")
                    a("s_mov_b64 exec, s[62:63]")
                    k = 80 + (k - 80 + 1) % 40
            a("v_mov_b32 v70, 0")
            for sr in (56, 58, 60):
                a(f"global_load_dword v{k}, v70, s[{sr}:{sr+1}]"); k += 1
        a("s_waitcnt vmcnt(0)")
        a("K1_nocpf:   ; LINT-RESET")
    a("v_mul_u32_u24 v30, 160, v2")
    a("v_lshl_add_u32 v30, v3, 4, v30")
    a("s_cmp_ge_u32 s25, 192")
    a("s_cbranch_scc1 K1_w0")
    a("s_waitcnt vmcnt(10)")
    a("s_branch K1_w1")
    a("K1_w0:")
    a("s_waitcnt vmcnt(2)")
    a("K1_w1:   ; LINT-RESET (T loads have landed; S/mod loads may be outstanding)")
    stamp(a, 1)
    a("ds_write_b128 v30, v[8:11]")
    a("ds_write_b128 v30, v[12:15] offset:5120")
    a("s_cmp_ge_u32 s25, 192")
    a("s_cbranch_scc1 K1_w2")
    a("s_waitcnt vmcnt(8)")
    a("s_branch K1_w3")
    a("K1_w2:")
    a("s_waitcnt vmcnt(0)")
    a("K1_w3:   ; LINT-RESET")
    a("v_mov_b32 v31, 0x3f803f80")
    a("v_mov_b32 v52, 0\nv_mov_b32 v53, 0\nv_mov_b32 v54, 0\nv_mov_b32 v55, 0")
    for k in range(4):
        a(f"v_dot2_f32_bf16 v52, v{16+k}, v31, v52")
        a(f"v_dot2_f32_bf16 v53, v{16+k}, v{16+k}, v53")
        a(f"v_dot2_f32_bf16 v54, v{20+k}, v31, v54")
        a(f"v_dot2_f32_bf16 v55, v{20+k}, v{20+k}, v55")
    a("s_nop 1")
    for ctl in ("row_shr:1", "row_shr:2", "row_shr:4", "row_shr:8", "row_bcast:15 row_mask:0xa", "row_bcast:31 row_mask:0xc"):
        for r in range(52, 56):
            a(f"v_add_f32_dpp v{r}, v{r}, v{r} {ctl}")
        a("s_nop 0") if False else None
    a("s_nop 1")
    for k, r in enumerate(range(52, 56)):
        a(f"v_readlane_b32 s{36+k}, v{r}, 63")
    a("s_nop 1")
    a("v_cmp_eq_u32 vcc, 0, v1")
    a("v_mov_b32 v56, s38")
    a("v_mov_b32 v57, s39")
    a("v_mov_b32 v58, s36")
    a("v_mov_b32 v59, s37")
    a("v_cndmask_b32 v56, v56, v58, vcc")
    a("v_cndmask_b32 v57, v57, v59, vcc")
    a("v_mul_f32 v56, 0x3b000000, v56")
    a("v_mul_f32 v57, 0x3b000000, v57")
    a("v_fma_f32 v57, -v56, v56, v57")
    a("v_max_f32 v57, 0, v57")
    rbf(a, 56, 56)
    rbf(a, 57, 57)
    a("v_add_f32 v57, 0x3727c5ac, v57")
    rbf(a, 57, 57)
    a("v_sqrt_f32 v57, v57")
    a("s_nop 0")
    rbf(a, 57, 57)
    a("v_rcp_f32 v58, v57")
    a("s_nop 0")
    a("v_mul_f32 v59, v56, v58")
    a("v_sub_f32 v59, 0, v59")
    a("s_lshl_b32 s31, s30, 2")
    a(f"s_add_u32 s31, s31, {STAT1}")
    a("v_lshl_add_u32 v60, v1, 2, s31")
    a("v_add_u32 v61, 8192, v60")
    a("v_cmp_gt_u32 vcc, 2, v1")
    a("s_and_saveexec_b64 s[42:43], vcc")
    a("global_store_dword v60, v58, s[14:15]" + SC1)
    a("global_store_dword v61, v59, s[14:15]" + SC1)
    a("s_mov_b64 exec, s[42:43]")
    a("s_cmp_ge_u32 s25, 192")
    a("s_cbranch_scc1 K1_nomodc")
    a("s_waitcnt vmcnt(2)")
    for k in range(4):
        a(f"v_lshlrev_b32 v{48+k}, 16, v{48+k}")
    for k in range(4):
        a(f"v_mul_f32 v{52+k}, 0xbfb8aa3b, v{48+k}")
    for k in range(4):
        a(f"v_exp_f32 v{52+k}, v{52+k}")
    a("s_nop 0")
    for k in range(4):
        a(f"v_add_f32 v{52+k}, 1.0, v{52+k}")
    for k in range(4):
        a(f"v_rcp_f32 v{56+k}, v{52+k}")
    a("s_nop 0")
    for k in range(4):
        a(f"v_mul_f32 v{60+k}, v{48+k}, v{56+k}")
    for k in range(4):
        a(f"v_fma_f32 v{48+k}, -v{60+k}, v{52+k}, v{48+k}")
    for k in range(4):
        a(f"v_fma_f32 v{48+k}, v{48+k}, v{56+k}, v{60+k}")
    for k in range(4):
        rbf(a, 48 + k, 48 + k)
    for k in range(4):
        for p in range(4):
            w = 32 + 4 * k + p
            a(f"v_lshlrev_b32 v62, 16, v{w}")
            a(f"v_and_b32 v63, 0xffff0000, v{w}")
            if k == 0:
                a(f"v_mul_f32 v{64+2*p}, v62, v48")
                a(f"v_mul_f32 v{65+2*p}, v63, v48")
            else:
                a(f"v_fmac_f32 v{64+2*p}, v62, v{48+k}")
                a(f"v_fmac_f32 v{65+2*p}, v63, v{48+k}")
    a("v_lshlrev_b32 v61, 5, v0")
    a("ds_write_b128 v61, v[64:67] offset:10240")
    a("ds_write_b128 v61, v[68:71] offset:10256")
    a("K1_nomodc:")
    stamp(a, 2)
    a("s_waitcnt lgkmcnt(0)")
    a("s_barrier")
    stamp(a, 3)
    a("v_lshrrev_b32 v2, 4, v1")
    a("v_bfe_u32 v3, v1, 2, 2")
    a("v_and_b32 v4, 3, v1")
    a("v_lshl_add_u32 v5, v2, 3, v3")
    a("v_mul_u32_u24 v5, 160, v5")
    a("v_lshl_add_u32 v5, v4, 3, v5")
    a("s_lshl_b32 s31, s24, 5")
    a("v_add_u32 v5, s31, v5")
    a("ds_read_b64_tr_b16 v[8:9], v5")
    a("ds_read_b64_tr_b16 v[10:11], v5 offset:640")
    a(f"ds_read_b64_tr_b16 v[12:13], v5 offset:{32*160}")
    a(f"ds_read_b64_tr_b16 v[14:15], v5 offset:{36*160}")
    a("v_and_b32 v6, 15, v1")
    a("v_lshlrev_b32 v6, 12, v6")
    a("v_lshl_add_u32 v6, v2, 4, v6")
    a("s_lshl_b32 s31, s27, 18")
    a("s_lshl_b32 s32, s24, 16")
    a("s_add_u32 s31, s31, s32")
    a("s_lshl_b32 s32, s26, 7")
    a("s_add_u32 s31, s31, s32")
    a(f"s_add_u32 s31, s31, {XT}") if XT else None
    a("v_add_u32 v6, s31, v6")
    a("s_waitcnt lgkmcnt(2)")
    a("global_store_dwordx4 v6, v[8:11], s[14:15]" + SC1)
    a("s_waitcnt lgkmcnt(0)")
    a("global_store_dwordx4 v6, v[12:15], s[14:15] offset:64" + SC1)
    a("s_cmp_ge_u32 s25, 192")
    a("s_cbranch_scc1 K1_END")
    a("s_cmp_lg_u32 s24, 0")
    a("s_cbranch_scc1 K1_END")
    a("v_and_b32 v2, 15, v1")
    a("v_lshrrev_b32 v3, 4, v1")
    a("v_lshlrev_b32 v4, 11, v3")
    a("v_lshl_add_u32 v4, v2, 2, v4")
    for i in range(32):
        a(f"ds_read_b32 v{16+i}, v4 offset:{10240+64*i}")
        if i == 14: a("s_waitcnt lgkmcnt(7)")
    a("s_waitcnt lgkmcnt(0)")
    for st in (16, 8, 4, 2, 1):
        for i in range(st):
            a(f"v_add_f32 v{16+i}, v{16+i}, v{16+st+i}")
    a("s_nop 0")
    a("v_mov_b32 v17, v16")
    a("s_nop 1")
    a("v_permlane16_swap_b32 v16, v17")
    a("s_nop 0")
    a("v_add_f32 v16, v16, v17")
    a("s_nop 0")
    a("v_mov_b32 v17, v16")
    a("s_nop 1")
    a("v_permlane32_swap_b32 v16, v17")
    a("s_nop 0")
    a("v_add_f32 v16, v16, v17")
    rbf(a, 16, 16)
    a("s_lshl_b32 s31, s33, 6")
    a(f"s_add_u32 s31, s31, {MODF}")
    a("v_lshl_add_u32 v5, v2, 2, s31")
    a("v_cmp_gt_u32 vcc, 16, v1")
    a("s_and_saveexec_b64 s[42:43], vcc")
    a("global_store_dword v5, v16, s[14:15]" + SC1)
    a("K1_END:   ; LINT-RESET")
    stamp_store(a, 0, 14, 24)
    a("K1_EXIT:")
    a.end_kernel(name, 160, 100)


KC_CH = 33280
CS    = 4160
UB    = 66560
CONV16 = OPT.get("conv16", "1") == "1"
USTR  = 96 if CONV16 else 80
U_CH  = 95 * USTR
SCR   = (UB + 2 * U_CH + 63) // 64 * 64
FLG   = SCR + 16384
SIDE  = FLG + 64
SIDE_SZ = 11520
K2_LDS = SIDE + 4 * SIDE_SZ
FLAGS_OFF = 0x0638000

def conv_main16(a, hb):
    SP = int(OPT.get('convsp', '23'))
    steps = list(range(0, SP)) if hb == 0 else list(range(SP, 64))
    tiles = lambda d: [cc for cc in range(4) if d <= 16 * cc + 15]
    D = 2 if hb == 0 else int(OPT.get("convd", "3"))
    SZ = 8 + 4 * max(len(tiles(d)) for d in steps)
    SET = [64 + SZ * i for i in range(D + 1)]
    assert SET[-1] + SZ <= 144
    def regs(k):
        d = steps[k]; b = SET[k % (D + 1)]
        return b, {cc: b + 8 + 4 * i for i, cc in enumerate(tiles(d))}
    def reads(k):
        d = steps[k]; b, B = regs(k)
        out = [f"ds_read_b128 v[{b+4*mt}:{b+4*mt+3}], v2 offset:{64*d + 32*mt}" for mt in range(2)]
        for cc in tiles(d):
            out.append(f"ds_read_b128 v[{B[cc]}:{B[cc]+3}], v3 offset:{(31 + 16*cc - d)*USTR}")
        return out
    n = len(steps)
    for k in range(D):
        for x in reads(k): a(x)
    for k in range(n):
        d = steps[k]; b, B = regs(k)
        nxt = reads(k + D) if k + D < n else []
        after = sum(len(reads(j)) for j in range(k + 1, min(k + D, n)))
        assert after <= 15
        a(f"s_waitcnt lgkmcnt({after})")
        mf = []
        for cc in tiles(d):
            for mt in range(2):
                acc = 32 + (cc * 2 + mt) * 4
                mf.append(f"v_mfma_f32_16x16x32_bf16 v[{acc}:{acc+3}], v[{b+4*mt}:{b+4*mt+3}], v[{B[cc]}:{B[cc]+3}], v[{acc}:{acc+3}]")
        ri = 0
        for i, m in enumerate(mf):
            a(m)
            take = -(-(len(nxt) - ri) // (len(mf) - i))
            for _ in range(take):
                a(nxt[ri]); ri += 1

def conv_path(a, hb, tag):
    if hb == 0: steps = [(d, True) for d in range(24)]
    else: steps = [(d, True) for d in range(24, 32)] + [(d, False) for d in range(32, 64)]
    ACC = [32, 48]
    SET = [64, 88, 112]
    def reads(k):
        d, both = steps[k]; b = SET[k % 3]
        out = []
        for hf in (0, 1):
            out.append(f"ds_read_b128 v[{b+4*hf}:{b+4*hf+3}], v2 offset:{64*d + 32*(1-hf)}")
        tiles = (0, 1) if both else (1,)
        for t in tiles:
            for hf in (0, 1):
                r = b + 8 + 8 * t + 4 * hf
                out.append(f"ds_read_b128 v[{r}:{r+3}], v3 offset:{(31 + 32*t - d)*80 + 32*hf}")
        return out
    n = len(steps) if not CONV16 else 0
    if CONV16: conv_main16(a, hb)
    for k in range(2 if not CONV16 else 0):
        for x in reads(k): a(x)
    for k in range(n):
        d, both = steps[k]; b = SET[k % 3]
        nxt = reads(k + 2) if k + 2 < n else []
        after = len(nxt) + (len(reads(k + 1)) if k + 1 < n else 0)
        mf = []
        tiles = (0, 1) if both else (1,)
        for hf in (0, 1):
            for t in tiles:
                r = b + 8 + 8 * t + 4 * hf
                mf.append(f"v_mfma_f32_32x32x16_bf16 v[{ACC[t]}:{ACC[t]+15}], v[{b+4*hf}:{b+4*hf+3}], v[{r}:{r+3}], v[{ACC[t]}:{ACC[t]+15}]")
        after = len(reads(k + 1)) if k + 1 < n else 0
        a(f"s_waitcnt lgkmcnt({after})")
        per = -(-len(nxt) // len(mf)) if nxt else 0
        ri = 0
        for m in mf:
            a(m)
            for _ in range(per):
                if ri < len(nxt): a(nxt[ri]); ri += 1
    stamp(a, 6)
    give, keep = (ACC[1], ACC[0]) if hb == 0 else (ACC[0], ACC[1])
    a("s_nop 7")
    a("s_nop 3")
    for i in range(4):
        a(f"ds_write_b128 v4, v[{give+4*i}:{give+4*i+3}] offset:{1024*i}")
    for i in range(4):
        a(f"ds_read_b64 v[{64+2*i}:{65+2*i}], v6 offset:{(16*USTR*(i >> 1) + 32*(i & 1)) if CONV16 else 16*i}")
    a("s_waitcnt lgkmcnt(0)")
    a("v_mov_b32 v72, 1")
    a("ds_write_b32 v7, v72")
    a("s_mov_b32 s63, 0x400000")
    a(f"K2_poll{tag}:")
    a("ds_read_b32 v73, v8")
    a("s_waitcnt lgkmcnt(0)")
    a("v_readfirstlane_b32 s40, v73")
    a("s_sub_u32 s63, s63, 1")
    a("s_cmp_eq_u32 s63, 0")
    a(f"s_cbranch_scc1 K2_pollx{tag}")
    a("s_cmp_eq_u32 s40, 1")
    a(f"s_cbranch_scc0 K2_poll{tag}")
    a(f"K2_pollx{tag}:")
    for i in range(4):
        a(f"ds_read_b128 v[{80+4*i}:{83+4*i}], v5 offset:{1024*i}")
    for i in range(4):
        for q in range(2):
            a(f"v_lshlrev_b32 v{96+4*i+2*q}, 16, v{64+2*i+q}")
            a(f"v_and_b32 v{97+4*i+2*q}, 0xffff0000, v{64+2*i+q}")
    a("s_waitcnt vmcnt(0)")
    for i in range(4):
        for q in range(2):
            a(f"v_lshlrev_b32 v{112+4*i+2*q}, 16, v{144+2*i+q}")
            a(f"v_and_b32 v{113+4*i+2*q}, 0xffff0000, v{144+2*i+q}")
    a("s_waitcnt lgkmcnt(0)")
    for j in range(8):
        a(f"v_pk_add_f32 v[{keep+2*j}:{keep+2*j+1}], v[{keep+2*j}:{keep+2*j+1}], v[{80+2*j}:{81+2*j}]")
    for j in range(8):
        a(f"v_pk_fma_f32 v[{keep+2*j}:{keep+2*j+1}], v[{96+2*j}:{97+2*j}], s[36:37], v[{keep+2*j}:{keep+2*j+1}] op_sel_hi:[1,0,1]")
    for j in range(8):
        a(f"v_pk_fma_f32 v[{keep+2*j}:{keep+2*j+1}], v[{keep+2*j}:{keep+2*j+1}], s[36:37], v[{112+2*j}:{113+2*j}] op_sel:[0,1,0] op_sel_hi:[1,1,1]")
    for j in range(8):
        a(f"v_cvt_pk_bf16_f32 v{64+j}, v{keep+2*j}, v{keep+2*j+1}")
    for i in range(4):
        a(f"ds_write_b64 v10, v[{64+2*i}:{65+2*i}] offset:{(1280*(i >> 1) + 32*(i & 1)) if CONV16 else 16*i}")
    a("s_waitcnt lgkmcnt(0)")
    a("ds_read_b128 v[72:75], v11")
    a("ds_read_b128 v[76:79], v11 offset:1280")
    a("s_waitcnt lgkmcnt(1)")
    a("global_store_dwordx4 v9, v[72:75], s[14:15]" + SC1)
    a("s_waitcnt lgkmcnt(0)")
    a("global_store_dwordx4 v12, v[76:79], s[14:15]" + SC1)
    a("s_branch K2_END")

def side_load_and_stage(a):
    for i in range(8):
        a(f"buffer_load_dwordx4 v[{32+4*i}:{35+4*i}], v10, s[44:47], s49 offen nt")
        if i < 7: a("s_add_u32 s49, s49, s48")

def k2(a):
    name = "k2_kernel"
    a.begin_kernel(name, 256, 512, K2_LDS)
    a("s_cmp_ge_u32 s2, 256")
    a("s_cbranch_scc1 K2_EXIT")
    stamp(a, 0)
    a("s_load_dwordx2 s[14:15], s[0:1], 128")
    a("s_load_dwordx2 s[12:13], s[0:1], 48")
    a("s_load_dwordx2 s[16:17], s[0:1], 64")
    a("s_load_dwordx2 s[18:19], s[0:1], 80")
    wave_id(a, 24, 1)
    a("v_and_b32 v1, 63, v0")
    a("s_cmp_ge_u32 s24, 4")
    a("s_cbranch_scc1 K2_SIDE")
    a("s_lshl_b32 s27, s2, 1")
    a("s_lshr_b32 s25, s24, 1")
    a("s_and_b32 s26, s24, 1")
    a("s_lshl_b32 s28, s27, 12")
    a(f"s_add_u32 s28, s28, {XT}") if XT else None
    a("v_lshl_add_u32 v44, v0, 4, s28")
    a("v_add_u32 v45, 4096, v44")
    a("v_lshlrev_b32 v46, 5, v0")
    a(f"v_add_u32 v46, {STAT1}, v46")
    a(f"v_add_u32 v47, 8192, v46")
    a(f"s_mul_i32 s29, s27, {KW}")
    a(f"s_add_u32 s29, s29, {KREV + 4080}")
    a("v_lshlrev_b32 v48, 4, v0")
    a("v_sub_u32 v48, s29, v48")
    a(f"v_add_u32 v49, {KW}, v48")
    a("v_and_b32 v50, 31, v1")
    a("v_lshrrev_b32 v51, 5, v1")
    a("s_lshl_b32 s30, s25, 12")
    a("s_add_u32 s30, s30, s28")
    a("s_lshl_b32 s31, s26, 11")
    a("s_add_u32 s30, s30, s31")
    a("v_lshlrev_b32 v52, 6, v50")
    a("v_lshl_add_u32 v52, v51, 3, v52")
    a("v_add_u32 v52, s30, v52")
    a("s_lshl_b32 s32, s27, 2")
    a(f"s_add_u32 s33, s32, {MODF}")
    a(f"s_add_u32 s34, s32, {MODF + 2048}")
    a(f"s_add_u32 s35, s32, {MODF + 4096}")
    a("s_lshl_b32 s31, s2, 2")
    a("s_waitcnt lgkmcnt(0)")
    wsfix(a, 14)
    a("global_load_dwordx4 v[28:31], v48, s[14:15]")
    a("global_load_dwordx4 v[32:35], v48, s[14:15] offset:16")
    a("global_load_dwordx4 v[36:39], v49, s[14:15]")
    a("global_load_dwordx4 v[40:43], v49, s[14:15] offset:16")
    a("global_load_dwordx4 v[4:7], v44, s[14:15]")
    a("global_load_dwordx4 v[8:11], v45, s[14:15]")
    a("global_load_dwordx4 v[12:15], v46, s[14:15]")
    a("global_load_dwordx4 v[16:19], v46, s[14:15] offset:16")
    a("global_load_dwordx4 v[20:23], v47, s[14:15]")
    a("global_load_dwordx4 v[24:27], v47, s[14:15] offset:16")
    for i in range(4):
        a(f"global_load_dwordx2 v[{144+2*i}:{145+2*i}], v52, s[14:15] offset:{16*i}")
    a("s_load_dwordx2 s[50:51], s[14:15], s33")
    a("s_load_dwordx2 s[52:53], s[14:15], s34")
    a("s_load_dwordx2 s[54:55], s[14:15], s35")
    a("s_load_dword s56, s[12:13], s31")
    a("v_mov_b32 v56, 0\nv_mov_b32 v57, 0\nv_mov_b32 v58, 0\nv_mov_b32 v59, 0")
    a("v_mul_u32_u24 v53, 171, v0")
    a("v_lshrrev_b32 v53, 9, v53")
    a("v_mul_u32_u24 v54, 3, v53")
    a("v_sub_u32 v54, v0, v54")
    a(f"v_mul_u32_u24 v53, {CS}, v53")
    a("v_lshl_add_u32 v53, v54, 4, v53")
    a("v_cmp_gt_u32 vcc, 48, v0")
    a("s_and_saveexec_b64 s[42:43], vcc")
    a("ds_write_b128 v53, v[56:59]")
    a("s_mov_b64 exec, s[42:43]")
    a("v_lshlrev_b32 v53, 4, v0")
    a(f"v_add_u32 v53, {UB}, v53")
    a("v_cmp_gt_u32 vcc, 155, v0")
    a("s_and_saveexec_b64 s[42:43], vcc")
    a(f"ds_write_b128 v53, v[56:59]")
    a(f"ds_write_b128 v53, v[56:59] offset:{U_CH}")
    a("s_mov_b64 exec, s[42:43]")
    a("v_lshlrev_b32 v53, 2, v0")
    a("v_cmp_gt_u32 vcc, 4, v0")
    a("s_and_saveexec_b64 s[42:43], vcc")
    a(f"v_add_u32 v53, {FLG}, v53")
    a("ds_write_b32 v53, v56")
    a("s_mov_b64 exec, s[42:43]")
    a("v_and_b32 v53, 7, v50")
    a("v_lshrrev_b32 v54, 3, v50")
    a(f"v_mul_u32_u24 v2, {CS}, v53")
    a("v_sub_u32 v54, v54, v51")
    a("v_add_u32 v54, 1, v54")
    a("v_lshl_add_u32 v2, v54, 4, v2")
    a(f"s_mul_i32 s38, s25, {KC_CH}")
    a("v_add_u32 v2, s38, v2")
    a("v_mul_u32_u24 v3, 80, v50")
    a("v_lshl_add_u32 v3, v51, 4, v3")
    a(f"s_mul_i32 s38, s25, {U_CH}")
    a(f"s_add_u32 s38, s38, {UB}")
    a("v_add_u32 v3, s38, v3")
    a("v_lshlrev_b32 v55, 4, v0")
    a("v_add_u32 v55, 48, v55")
    for c in range(2):
        W = 28 + 8 * c
        a(f"s_waitcnt vmcnt({12 - 2*c})")
        V = 60
        for j in range(7): a(f"v_alignbit_b32 v{V+j}, v{W+j+1}, v{W+j}, 16")
        for j in range(1, 7): a(f"v_alignbit_b32 v{68+j-1}, v{W+j+1}, v{W+j}, 16")
        for j in range(1, 7): a(f"v_mov_b32 v{76+j-1}, v{W+j}")
        off = c * KC_CH
        a(f"ds_write_b128 v55, v[{W}:{W+3}] offset:{off + 7*CS}")
        a(f"ds_write_b128 v55, v[{W+2}:{W+5}] offset:{off + 3*CS}")
        a(f"ds_write_b128 v55, v[{V}:{V+3}] offset:{off + 6*CS}")
        a(f"ds_write_b128 v55, v[{V+2}:{V+5}] offset:{off + 2*CS}")
        a(f"ds_write_b128 v55, v[68:71] offset:{off + 4*CS}")
        a(f"ds_write_b128 v55, v[70:73] offset:{off + 0*CS}")
        a(f"ds_write_b128 v55, v[76:79] offset:{off + 5*CS}")
        a(f"ds_write_b128 v55, v[78:81] offset:{off + 1*CS}")
    a("s_waitcnt vmcnt(4) lgkmcnt(0)")
    a("v_add_f32 v60, 1.0, s52")
    a("v_add_f32 v61, 1.0, s53")
    rbf(a, 60, 60); rbf(a, 61, 61)
    a("s_nop 0")
    a("v_readfirstlane_b32 s58, v60")
    a("v_readfirstlane_b32 s60, v61")
    a("s_mov_b32 s59, s50")
    a("s_mov_b32 s61, s51")
    a("s_lshl_b32 s38, s25, 4")
    a("s_lshr_b32 s36, s56, s38")
    a("s_lshl_b32 s36, s36, 16")
    a("s_cmp_eq_u32 s25, 0")
    a("s_cselect_b32 s37, s54, s55")
    a("v_lshrrev_b32 v62, 2, v0")
    a("v_mul_u32_u24 v62, 80, v62")
    a("v_and_b32 v63, 3, v0")
    a("v_lshl_add_u32 v62, v63, 4, v62")
    a(f"v_add_u32 v62, {UB + 31*80}, v62")
    for c in range(2):
        X = 4 + 4 * c
        for q in range(4):
            a(f"v_lshlrev_b32 v{64+2*q}, 16, v{X+q}")
            a(f"v_and_b32 v{65+2*q}, 0xffff0000, v{X+q}")
        for q in range(4):
            a(f"v_pk_fma_f32 v[{64+2*q}:{65+2*q}], v[{64+2*q}:{65+2*q}], v[{12+2*q}:{13+2*q}], v[{20+2*q}:{21+2*q}]")
        for q in range(4):
            a(f"v_pk_fma_f32 v[{64+2*q}:{65+2*q}], v[{64+2*q}:{65+2*q}], s[{58+2*c}:{59+2*c}], s[{58+2*c}:{59+2*c}] op_sel:[0,0,1] op_sel_hi:[1,0,1]")
        for q in range(4):
            a(f"v_cvt_pk_bf16_f32 v{72+4*c+q}, v{64+2*q}, v{65+2*q}")
        a(f"ds_write_b128 v62, v[{72+4*c}:{75+4*c}] offset:{c*U_CH}")
    a("s_lshl_b32 s38, s24, 12")
    a(f"s_add_u32 s38, s38, {SCR}")
    a("v_lshl_add_u32 v4, v1, 4, s38")
    a("s_xor_b32 s39, s24, 1")
    a("s_lshl_b32 s38, s39, 12")
    a(f"s_add_u32 s38, s38, {SCR}")
    a("v_lshl_add_u32 v5, v1, 4, s38")
    a("s_lshl_b32 s38, s24, 2")
    a(f"s_add_u32 s38, s38, {FLG}")
    a("v_mov_b32 v7, s38")
    a("s_lshl_b32 s38, s39, 2")
    a(f"s_add_u32 s38, s38, {FLG}")
    a("v_mov_b32 v8, s38")
    a("v_mul_u32_u24 v6, 80, v50")
    a("v_lshl_add_u32 v6, v51, 3, v6")
    a(f"s_mul_i32 s38, s25, {U_CH}")
    a(f"s_mul_i32 s39, s26, {32*80}")
    a("s_add_u32 s38, s38, s39")
    a(f"s_add_u32 s38, s38, {UB + 31*80}")
    a("v_add_u32 v6, s38, v6")
    a("s_add_u32 s38, s27, s25")
    a("s_lshl_b32 s38, s38, 7")
    a("s_lshl_b32 s39, s26, 20")
    a("s_add_u32 s38, s38, s39")
    a(f"s_add_u32 s38, s38, {X2T}")
    a("v_lshrrev_b32 v9, 3, v1")
    a("v_lshlrev_b32 v9, 16, v9")
    a("v_and_b32 v63, 7, v1")
    a("v_lshl_add_u32 v9, v63, 4, v9")
    a("v_add_u32 v9, s38, v9")
    a("v_add_u32 v12, 0x80000, v9")
    a(f"s_mul_i32 s38, s25, {KC_CH}")
    a("s_mul_i32 s39, s26, 2560")
    a("s_add_u32 s38, s38, s39")
    a("v_mul_u32_u24 v10, 80, v50")
    a("v_lshl_add_u32 v10, v51, 3, v10")
    a("v_add_u32 v10, s38, v10")
    a("v_lshrrev_b32 v11, 2, v1")
    a("v_mul_u32_u24 v11, 80, v11")
    a("v_and_b32 v63, 3, v1")
    a("v_lshl_add_u32 v11, v63, 4, v11")
    a("v_add_u32 v11, s38, v11")
    for r in range(32, 64): a(f"v_mov_b32 v{r}, 0")
    stamp(a, 1)
    a("s_waitcnt lgkmcnt(0)")
    a("s_barrier")
    stamp(a, 2)
    a("s_cmp_eq_u32 s26, 0")
    a("s_cbranch_scc0 K2_B")
    conv_path(a, 0, "A")
    a("K2_B:   ; LINT-RESET")
    conv_path(a, 1, "B")
    a("K2_SIDE:   ; LINT-RESET")
    a("s_sub_u32 s25, s24, 4")
    a("s_lshl_b32 s26, s25, 8")
    a("s_add_u32 s26, s26, s2")
    a(f"s_mul_i32 s27, s25, {SIDE_SZ}")
    a(f"s_add_u32 s27, s27, {SIDE}")
    a("s_cmp_gt_u32 s26, 348")
    a("s_cbranch_scc1 K2_SIDE_IDLE")
    a("s_cmp_eq_u32 s26, 348")
    a("s_cbranch_scc1 K2_TAB")
    a("v_lshrrev_b32 v2, 2, v1")
    a("v_and_b32 v3, 3, v1")
    a("v_lshrrev_b32 v4, 4, v1")
    a("v_bfe_u32 v5, v1, 2, 2")
    a("v_mul_u32_u24 v11, 80, v2")
    a("v_lshl_add_u32 v11, v3, 4, v11")
    a("v_add_u32 v11, s27, v11")
    a("v_lshl_add_u32 v12, v4, 2, v5")
    a("v_mul_u32_u24 v12, 80, v12")
    a("v_lshl_add_u32 v12, v3, 3, v12")
    a("v_add_u32 v12, s27, v12")
    a("s_cmp_ge_u32 s26, 172")
    a("s_cbranch_scc1 K2_W2")
    a("s_mul_i32 s28, s26, 1525")
    a("s_lshr_b32 s28, s28, 16")
    a("s_mul_i32 s29, s28, 43")
    a("s_sub_u32 s29, s26, s29")
    a("v_mul_u32_u24 v10, 2752, v2")
    a("v_lshl_add_u32 v10, v3, 4, v10")
    a(f"s_mul_i32 s49, s28, {128*2752}")
    a("s_lshl_b32 s30, s29, 6")
    a("s_add_u32 s49, s49, s30")
    a(f"s_mov_b32 s48, {16*2752}")
    a("s_lshl_b32 s31, s28, 9")
    a("v_lshl_add_u32 v13, v1, 2, s31")
    a(f"v_add_u32 v13, {MODF + 3*2048}, v13")
    a("v_add_u32 v14, 2048, v13")
    a("s_waitcnt lgkmcnt(0)")
    wsfix(a, 14)
    a.srd(44, 16, 512 * 1376 * 2)
    a("global_load_dword v20, v13, s[14:15]")
    a("global_load_dword v21, v13, s[14:15] offset:256")
    a("global_load_dword v22, v14, s[14:15]")
    a("global_load_dword v23, v14, s[14:15] offset:256")
    side_load_and_stage(a)
    a("s_barrier")
    a("s_waitcnt vmcnt(8)")
    a("v_add_f32 v22, 1.0, v22")
    a("v_add_f32 v23, 1.0, v23")
    rbf(a, 22, 22); rbf(a, 23, 23)
    a("v_lshl_add_u32 v15, v1, 2, s27")
    a("v_lshl_add_u32 v16, v1, 1, s27")
    a("ds_write_b32 v15, v22 offset:10240")
    a("ds_write_b32 v15, v23 offset:10496")
    a("ds_write_b16_d16_hi v16, v20 offset:10752")
    a("ds_write_b16_d16_hi v16, v21 offset:10880")
    for i in range(8):
        a(f"s_waitcnt vmcnt({7-i})")
        a(f"ds_write_b128 v11, v[{32+4*i}:{35+4*i}] offset:{16*80*i}")
    a("v_and_b32 v17, 15, v1")
    a("v_cmp_eq_u32 s[50:51], 0, v17")
    a("v_cmp_eq_u32 s[52:53], 1, v17")
    a("v_mov_b32 v18, 0")
    a("v_mov_b32 v19, 0x3f803f80")
    a("v_cndmask_b32 v18, v18, v19, s[50:51]")
    a("v_mov_b32 v19, 0")
    a("v_cndmask_b32 v19, v19, -1, s[52:53]")
    a("v_lshl_add_u32 v24, v4, 4, s27")
    a("v_lshl_add_u32 v25, v4, 3, s27")
    for r in range(96, 112): a(f"v_mov_b32 v{r}, 0")
    a("s_lshl_b32 s30, s29, 11")
    a(f"s_mul_i32 s31, s28, {4*87*1024}")
    a("s_add_u32 s30, s30, s31")
    a(f"s_add_u32 s30, s30, {W1F}")
    a("v_lshl_add_u32 v26, v1, 4, s30")
    a("s_waitcnt lgkmcnt(0)")
    for ks in range(4):
        a(f"ds_read_b128 v[32:35], v24 offset:{10240 + 128*ks}")
        a(f"ds_read_b128 v[36:39], v24 offset:{10240 + 128*ks + 64}")
        a(f"ds_read_b64 v[40:41], v25 offset:{10752 + 64*ks}")
        a(f"ds_read_b64 v[42:43], v25 offset:{10752 + 64*ks + 32}")
        for nt in range(2):
            for hf in range(2):
                a(f"ds_read_b64_tr_b16 v[{44+4*nt+2*hf}:{45+4*nt+2*hf}], v12 offset:{(32*ks+16*hf)*80 + 32*nt}")
        a("s_waitcnt lgkmcnt(4)")
        for q in range(4): a(f"v_and_or_b32 v{40+q}, v{40+q}, v19, v18")
        a("s_waitcnt lgkmcnt(0)")
        for nt in range(2):
            R = 44 + 4 * nt
            for q in range(4):
                a(f"v_lshlrev_b32 v{52+2*q}, 16, v{R+q}")
                a(f"v_and_b32 v{53+2*q}, 0xffff0000, v{R+q}")
            a(f"v_mfma_f32_16x16x32_bf16 v[{96+4*nt}:{99+4*nt}], v[{R}:{R+3}], v[40:43], v[{96+4*nt}:{99+4*nt}]")
            for q in range(4):
                a(f"v_pk_mul_f32 v[{52+2*q}:{53+2*q}], v[{52+2*q}:{53+2*q}], v[{32+2*q}:{33+2*q}]")
            S = 60 + 4 * nt
            for q in range(4):
                a(f"v_cvt_pk_bf16_f32 v{S+q}, v{52+2*q}, v{53+2*q}")
            a(f"global_store_dwordx4 v26, v[{S}:{S+3}], s[14:15] offset:{1024*nt}" + SC1)
            if nt == 1: a(f"v_add_u32 v26, {87*1024}, v26")
            a("s_nop 0")
            a(f"v_mfma_f32_16x16x32_bf16 v[{104+4*nt}:{107+4*nt}], v[{S}:{S+3}], v[40:43], v[{104+4*nt}:{107+4*nt}]")
    a(f"s_mul_i32 s30, s28, {3*5504}")
    a("s_lshl_b32 s31, s29, 7")
    a("s_add_u32 s30, s30, s31")
    a(f"s_add_u32 s30, s30, {SVP}")
    a("v_lshl_add_u32 v28, v4, 4, s30")
    a("v_add_u32 v29, 5504, v28")
    a("v_add_u32 v30, 5504, v29")
    a("s_nop 7")
    a("s_mov_b64 s[42:43], exec")
    a("s_mov_b64 exec, s[50:51]")
    for nt in range(2):
        a(f"global_store_dwordx4 v28, v[{104+4*nt}:{107+4*nt}], s[14:15] offset:{64*nt}" + SC1)
        a(f"global_store_dwordx4 v30, v[{96+4*nt}:{99+4*nt}], s[14:15] offset:{64*nt}" + SC1)
    a("s_mov_b64 exec, s[52:53]")
    for nt in range(2):
        a(f"global_store_dwordx4 v29, v[{96+4*nt}:{99+4*nt}], s[14:15] offset:{64*nt}" + SC1)
    a("s_mov_b64 exec, s[42:43]")
    a("s_branch K2_END")
    a("K2_W2:   ; LINT-RESET")
    a("s_sub_u32 s26, s26, 172")
    a("s_and_b32 s29, s26, 15")
    a("s_lshr_b32 s28, s26, 4")
    a("v_lshlrev_b32 v10, 10, v2")
    a("v_lshl_add_u32 v10, v3, 4, v10")
    a("s_lshl_b32 s30, s29, 6")
    a("s_waitcnt lgkmcnt(0)")
    wsfix(a, 14)
    a.srd(44, 18, 1376 * 512 * 2)
    for ks in range(4):
        a("s_lshl_b32 s31, s28, 2")
        a(f"s_add_u32 s31, s31, {ks}")
        a("s_mul_i32 s32, s31, 13")
        a("s_lshr_b32 s32, s32, 6")
        a("s_mul_i32 s33, s32, 5")
        a("s_sub_u32 s33, s31, s33")
        a("s_mul_i32 s32, s32, 11")
        a("s_min_u32 s32, s32, 76")
        a("s_lshl_b32 s33, s33, 1")
        a("s_add_u32 s32, s32, s33")
        a("s_add_u32 s33, s32, 1")
        a("s_sub_u32 s34, s31, 40")
        a("s_mul_i32 s34, s34, 22")
        a("s_add_u32 s35, s34, 21")
        a("s_add_u32 s34, s34, 10")
        a("s_cmp_lt_u32 s31, 40")
        a("s_cselect_b32 s32, s32, s34")
        a("s_cselect_b32 s33, s33, s35")
        for hf, sr in ((0, 32), (1, 33)):
            a(f"s_lshl_b32 s49, s{sr}, 14")
            a("s_add_u32 s49, s49, s30")
            i = 2 * ks + hf
            a(f"buffer_load_dwordx4 v[{32+4*i}:{35+4*i}], v10, s[44:47], s49 offen nt")
    a("s_barrier")
    for i in range(8):
        a(f"s_waitcnt vmcnt({7-i})")
        a(f"ds_write_b128 v11, v[{32+4*i}:{35+4*i}] offset:{16*80*i}")
    a("s_lshr_b32 s30, s29, 1")
    a("s_mul_i32 s30, s30, 43")
    a("s_lshl_b32 s31, s28, 2")
    a("s_add_u32 s30, s30, s31")
    a("s_lshl_b32 s30, s30, 12")
    a("s_and_b32 s31, s29, 1")
    a("s_lshl_b32 s31, s31, 11")
    a("s_add_u32 s30, s30, s31")
    a(f"s_add_u32 s30, s30, {W2F}")
    a("v_lshl_add_u32 v26, v1, 4, s30")
    a("s_waitcnt lgkmcnt(0)")
    for ks in range(4):
        if ks == 3:
            a("s_cmp_eq_u32 s28, 10")
            a("s_cbranch_scc1 K2_END")
        for nt in range(2):
            for hf in range(2):
                a(f"ds_read_b64_tr_b16 v[{44+4*nt+2*hf}:{45+4*nt+2*hf}], v12 offset:{(32*ks+16*hf)*80 + 32*nt}")
        a("s_waitcnt lgkmcnt(2)")
        a(f"global_store_dwordx4 v26, v[44:47], s[14:15]" + SC1)
        a("s_waitcnt lgkmcnt(0)")
        a(f"global_store_dwordx4 v26, v[48:51], s[14:15] offset:1024" + SC1)
        a("v_add_u32 v26, 4096, v26")
    a("s_branch K2_END")
    a("K2_TAB:   ; LINT-RESET")
    a("v_lshlrev_b32 v2, 5, v1")
    a(f"v_add_u32 v2, {MODF + 3*2048}, v2")
    a("v_add_u32 v3, 2048, v2")
    a("s_waitcnt lgkmcnt(0)")
    wsfix(a, 14)
    a("global_load_dwordx4 v[32:35], v2, s[14:15]")
    a("global_load_dwordx4 v[36:39], v2, s[14:15] offset:16")
    a("global_load_dwordx4 v[40:43], v3, s[14:15]")
    a("global_load_dwordx4 v[44:47], v3, s[14:15] offset:16")
    a("s_barrier")
    a("s_waitcnt vmcnt(0)")
    for j in range(8): a(f"v_add_f32 v{40+j}, 1.0, v{40+j}")
    for j in range(8): rbf(a, 40 + j, 40 + j)
    for j in range(8): a(f"v_mul_f32 v{48+j}, v{40+j}, v{40+j}")
    for j in range(8): a(f"v_mul_f32 v{56+j}, v{40+j}, v{32+j}")
    for k, base in enumerate((40, 48, 56, 32)):
        a(f"v_add_f32 v{100+k}, v{base}, v{base+1}")
        for j in range(2, 8): a(f"v_add_f32 v{100+k}, v{100+k}, v{base+j}")
    a("v_mul_f32 v104, v32, v32")
    for j in range(1, 8): a(f"v_fmac_f32 v104, v{32+j}, v{32+j}")
    a("v_lshl_add_u32 v4, v1, 4, s27")
    a("v_mov_b32 v64, 0x3f803f80\nv_mov_b32 v65, 0x3f803f80\nv_mov_b32 v66, 0x3f803f80\nv_mov_b32 v67, 0x3f803f80")
    a("ds_write_b128 v4, v[64:67]")
    for q in range(4): a(f"v_cvt_pk_bf16_f32 v{68+q}, v{40+2*q}, v{41+2*q}")
    a("ds_write_b128 v4, v[68:71] offset:1024")
    for (src, row) in ((48, 2), (56, 4)):
        for q in range(4): a(f"v_cvt_pk_bf16_f32 v{72+q}, v{src+2*q}, v{src+2*q+1}")
        a(f"ds_write_b128 v4, v[72:75] offset:{1024*row}")
        for q in range(4):
            a(f"v_lshlrev_b32 v{80+2*q}, 16, v{72+q}")
            a(f"v_and_b32 v{81+2*q}, 0xffff0000, v{72+q}")
        for j in range(8): a(f"v_sub_f32 v{80+j}, v{src+j}, v{80+j}")
        for q in range(4): a(f"v_cvt_pk_bf16_f32 v{76+q}, v{80+2*q}, v{81+2*q}")
        a(f"ds_write_b128 v4, v[76:79] offset:{1024*(row+1)}")
    a("s_nop 1")
    for ctl in ("row_shr:1", "row_shr:2", "row_shr:4", "row_shr:8", "row_bcast:15 row_mask:0xa", "row_bcast:31 row_mask:0xc"):
        for r in range(100, 105):
            a(f"v_add_f32_dpp v{r}, v{r}, v{r} {ctl}")
    a(f"v_mov_b32 v5, {SCAL}")
    a("s_mov_b64 s[42:43], exec")
    a("s_mov_b64 exec, 0x8000000000000000") if False else None
    a("v_cmp_eq_u32 vcc, 63, v1")
    a("s_and_saveexec_b64 s[42:43], vcc")
    a("global_store_dwordx4 v5, v[100:103], s[14:15]" + SC1)
    a("global_store_dword v5, v104, s[14:15] offset:16" + SC1)
    a("s_mov_b64 exec, s[42:43]")
    a("v_and_b32 v6, 15, v1")
    a("v_lshrrev_b32 v7, 4, v1")
    a("v_min_u32 v8, 5, v6")
    a("v_lshlrev_b32 v8, 10, v8")
    a("v_lshl_add_u32 v8, v7, 3, v8")
    a("v_add_u32 v8, s27, v8")
    a("v_cmp_gt_u32 vcc, 6, v6")
    a("v_mov_b32 v9, 0")
    a("s_nop 0")
    a("v_cndmask_b32 v9, v9, -1, vcc")
    a(f"s_mov_b32 s30, {W1F + 86*1024}")
    a("v_lshl_add_u32 v10, v1, 4, s30")
    a("s_waitcnt lgkmcnt(0)")
    for ks in range(16):
        R = 16 + 4 * (ks & 1)
        a(f"ds_read_b64 v[{R}:{R+1}], v8 offset:{64*ks}")
        a(f"ds_read_b64 v[{R+2}:{R+3}], v8 offset:{64*ks+32}")
        a("s_waitcnt lgkmcnt(0)")
        for q in range(4): a(f"v_and_b32 v{R+q}, v{R+q}, v9")
        a(f"global_store_dwordx4 v10, v[{R}:{R+3}], s[14:15]" + SC1)
        a(f"v_add_u32 v10, {87*1024}, v10")
    a("s_branch K2_END")
    a("K2_SIDE_IDLE:   ; LINT-RESET")
    a("s_cmp_eq_u32 s26, 349")
    a("s_cbranch_scc0 K2_idle2")
    a("s_waitcnt lgkmcnt(0)")
    wsfix(a, 14)
    a("v_mov_b32 v4, 0\nv_mov_b32 v5, 0\nv_mov_b32 v6, 0\nv_mov_b32 v7, 0")
    a("v_lshlrev_b32 v2, 4, v1")
    a(f"v_add_u32 v2, {FLAGS_OFF}, v2")
    for q in range(4):
        a(f"global_store_dwordx4 v2, v[4:7], s[14:15] offset:{1024*q} sc1")
    a("K2_idle2:")
    a("s_barrier")
    a("K2_END:   ; LINT-RESET")
    stamp_store(a, 1, 14, 24)
    a("K2_EXIT:")
    a.end_kernel(name, 160, 100)


KG   = SIDE + 4 * SIDE_SZ
KG_PAR = KG
KG_T16 = KG + 4096
KG_REV = KG + 4096 + 2816
LF   = KG_REV + 2 * 4160
K12_LDS = LF + 64
KG_PART = SCR
GBAR = 0x0639000
WCNT = GBAR + 10752

_sync_id = [0]
def wsync(a, addr, n, vt, st, add=True):
    _sync_id[0] += 1
    L = f"WS_{_sync_id[0]}"
    a("s_waitcnt lgkmcnt(0)")
    if isinstance(addr, str): a(f"v_mov_b32 v{vt}, {addr}")
    else: a(f"v_mov_b32 v{vt}, {addr}")
    if add:
        a(f"v_mov_b32 v{vt+1}, 1")
        a("s_mov_b64 exec, 1")
        a(f"ds_add_u32 v{vt}, v{vt+1}")
        a("s_mov_b64 exec, -1")
    a("s_mov_b32 s63, 0x400000")
    a(f"{L}:")
    a(f"ds_read_b32 v{vt+1}, v{vt}")
    a("s_waitcnt lgkmcnt(0)")
    a(f"v_readfirstlane_b32 s{st}, v{vt+1}")
    a("s_sub_u32 s63, s63, 1")
    a("s_cmp_eq_u32 s63, 0")
    a(f"s_cbranch_scc1 {L}_x")
    a(f"s_cmp_ge_u32 s{st}, {n}")
    a(f"s_cbranch_scc0 {L}")
    a(f"{L}_x:")

def k12(a):
    name = "k12_kernel"
    a.begin_kernel(name, 256, 512, K12_LDS)
    a("s_cmp_ge_u32 s2, 256")
    a("s_cbranch_scc1 K2_EXIT")
    stamp(a, 0)
    a("s_load_dwordx8 s[4:11], s[0:1], 8")
    a("s_load_dwordx4 s[44:47], s[0:1], 40")
    a("s_load_dwordx2 s[14:15], s[0:1], 128")
    a("s_load_dwordx2 s[16:17], s[0:1], 0")
    a("s_load_dwordx2 s[18:19], s[0:1], 120")
    a("s_load_dwordx4 s[20:23], s[0:1], 96")
    a("s_load_dwordx2 s[48:49], s[0:1], 64")
    a("s_load_dwordx2 s[12:13], s[0:1], 80")
    wave_id(a, 24, 1)
    a("v_and_b32 v1, 63, v0")
    a("v_lshlrev_b32 v2, 2, v0")
    a(f"v_add_u32 v2, {LF}, v2")
    a("v_mov_b32 v3, 0")
    a("v_cmp_gt_u32 vcc, 16, v0")
    a("s_and_saveexec_b64 s[42:43], vcc")
    a("ds_write_b32 v2, v3")
    a("s_mov_b64 exec, s[42:43]")
    a("s_cmp_ge_u32 s24, 4")
    a("s_cbranch_scc1 K12_SIDE0")
    a("s_lshr_b32 s25, s24, 1")
    a("s_and_b32 s26, s24, 1")
    a("s_lshl_b32 s62, s2, 1")
    a("s_add_u32 s27, s62, s25")
    a("s_lshl_b32 s28, s27, 8")
    a("s_lshl_b32 s29, s26, 7")
    a("s_add_u32 s28, s28, s29")
    a("v_lshl_add_u32 v2, v1, 1, s28")
    a("s_lshl_b32 s30, s2, 2")
    a("s_waitcnt lgkmcnt(0)")
    wsfix(a, 14)
    a("global_load_ushort v4, v2, s[4:5] nt")
    a("global_load_ushort v5, v2, s[6:7] nt")
    a("global_load_ushort v6, v2, s[8:9] nt")
    a("global_load_ushort v7, v2, s[10:11] nt")
    a("s_load_dword s29, s[44:45], s30")
    a("s_load_dword s56, s[46:47], s30")
    a("s_branch K12_CONV0")
    a("K12_SIDE0:   ; LINT-RESET")
    a("s_setprio 3")
    a("s_sub_u32 s25, s24, 4")
    a("s_and_b32 s28, s2, 7")
    a("s_lshr_b32 s29, s2, 3")
    a("s_lshr_b32 s26, s29, 3")
    a("s_lshl_b32 s27, s28, 2")
    a("s_add_u32 s26, s26, s27")
    a("s_and_b32 s27, s29, 7")
    a("s_lshl_b32 s30, s28, 8")
    a("s_lshl_b32 s31, s29, 3")
    a("s_add_u32 s30, s30, s31")
    a("s_lshl_b32 s31, s25, 1")
    a("s_add_u32 s30, s30, s31")
    a(f"s_mul_i32 s57, s25, {SIDE_SZ}")
    a(f"s_add_u32 s57, s57, {SIDE}")
    a("v_subrev_u32 v30, 256, v0")
    a("s_lshl_b32 s28, s26, 16")
    a("s_lshl_b32 s29, s27, 7")
    a("s_add_u32 s28, s28, s29")
    a("v_lshrrev_b32 v2, 3, v30")
    a("v_and_b32 v3, 7, v30")
    a("v_lshlrev_b32 v4, 10, v2")
    a("v_lshl_add_u32 v4, v3, 4, v4")
    a("v_add_u32 v4, s28, v4")
    a("v_add_u32 v5, 0x8000, v4")
    a("s_lshl_b32 s31, s30, 10")
    a("v_lshl_add_u32 v6, v1, 4, s31")
    a("s_and_b32 s33, s2, 7")
    a("s_mul_i32 s33, s33, 6")
    a("s_lshr_b32 s34, s2, 5")
    a("s_add_u32 s33, s33, s34")
    a("s_bfe_u32 s34, s2, 0x20003")
    a("s_lshl_b32 s35, s34, 7")
    a("v_add_u32 v7, s35, v2")
    a("v_mul_u32_u24 v25, 6144, v7")
    a("v_lshl_add_u32 v25, v3, 4, v25")
    a("s_lshl_b32 s35, s33, 7")
    a("v_add_u32 v25, s35, v25")
    a(f"v_add_u32 v26, {32*6144}, v25")
    a(f"v_add_u32 v27, {32*6144}, v26")
    a(f"v_add_u32 v28, {32*6144}, v27")
    a("v_lshlrev_b32 v29, 1, v7")
    a("s_waitcnt lgkmcnt(0)")
    wsfix(a, 14)
    NTX = " nt" if OPT.get("ntx", "0") == "1" else ""
    NTS = " nt" if OPT.get("nts", "0") == "1" else ""
    NTW = " nt" if OPT.get("ntw", "1") == "1" else ""
    a("global_load_dwordx4 v[8:11], v4, s[16:17]" + NTX)
    a("global_load_dwordx4 v[12:15], v5, s[16:17]" + NTX)
    a("global_load_dwordx4 v[16:19], v6, s[16:17]" + NTS)
    a("global_load_dwordx4 v[20:23], v6, s[16:17] offset:1024" + NTS)
    a("s_cmp_ge_u32 s2, 192")
    a("s_cbranch_scc1 K1_nomodld")
    for k in range(4): a(f"global_load_ushort v{48+k}, v29, s[20:21] offset:{64*k}")
    for k, vo in enumerate((25, 26, 27, 28)):
        a(f"global_load_dwordx4 v[{32+4*k}:{35+4*k}], v{vo}, s[22:23]" + NTW)
    a("K1_nomodld:")
    if OPT.get("cpf", "1") == "1":
        a("s_sub_u32 s65, s2, 192")
        a("s_cmp_ge_u32 s65, 16")
        a("s_cbranch_scc1 K12_nocpf")
        a("s_cmp_lg_u32 s24, 7")
        a("s_cbranch_scc1 K12_nocpf")
        code_prefetch(a, "k12_kernel", LASTLABEL, 6, "k1", 199, 200)
        a("K12_nocpf:")
    a("s_branch K2_SIDE")
    a("K12_CONV0:   ; LINT-RESET")
    a("s_barrier")
    a("s_cmp_eq_u32 s2, 255")
    a("s_cselect_b32 s64, 1, 0")
    a("s_cmp_eq_u32 s24, 0")
    a("s_cselect_b32 s64, s64, 0")
    a("s_cmp_eq_u32 s64, 1")
    a("s_cbranch_scc0 K12_noinit")
    a("v_mov_b32 v64, 0\nv_mov_b32 v65, 0\nv_mov_b32 v66, 0\nv_mov_b32 v67, 0")
    a("v_lshlrev_b32 v68, 4, v1")
    a(f"v_add_u32 v68, {FLAGS_OFF}, v68")
    for q in range(16):
        a(f"global_store_dwordx4 v68, v[64:67], s[14:15] sc1")
        if q < 15: a("v_add_u32 v68, 1024, v68")
    a("K12_noinit:   ; LINT-RESET")
    a("v_mov_b32 v56, 0\nv_mov_b32 v57, 0\nv_mov_b32 v58, 0\nv_mov_b32 v59, 0")
    a("v_mul_u32_u24 v53, 171, v0")
    a("v_lshrrev_b32 v53, 9, v53")
    a("v_mul_u32_u24 v54, 3, v53")
    a("v_sub_u32 v54, v0, v54")
    a(f"v_mul_u32_u24 v53, {CS}, v53")
    a("v_lshl_add_u32 v53, v54, 4, v53")
    a("v_cmp_gt_u32 vcc, 48, v0")
    a("s_and_saveexec_b64 s[42:43], vcc")
    a("ds_write_b128 v53, v[56:59]")
    a("s_mov_b64 exec, s[42:43]")
    a("v_lshlrev_b32 v53, 4, v0")
    a(f"v_add_u32 v53, {UB}, v53")
    a(f"v_cmp_gt_u32 vcc, {31 * USTR // 16}, v0")
    a("s_and_saveexec_b64 s[42:43], vcc")
    a(f"ds_write_b128 v53, v[56:59]")
    a(f"ds_write_b128 v53, v[56:59] offset:{U_CH}")
    a("s_mov_b64 exec, s[42:43]")
    a("v_and_b32 v16, 15, v1")
    a("v_cmp_eq_u32 s[32:33], 15, v16")
    a("v_lshrrev_b32 v18, 4, v1")
    a("v_add_u32 v19, 1, v16")
    a("v_cvt_f32_u32 v19, v19")
    a("s_lshl_b32 s31, s24, 10")
    a(f"s_add_u32 s31, s31, {KG_PAR}")
    a("v_lshl_add_u32 v17, v18, 6, s31")
    a("v_lshl_add_u32 v20, v1, 4, s31")
    for r in range(112, 128): a(f"v_mov_b32 v{r}, 0")
    a("s_mul_i32 s39, s25, 1344")
    a(f"s_add_u32 s39, s39, {KG_T16 + 8}")
    a("v_subrev_u32 v21, 7, v16")
    a("v_cmp_gt_u32 s[34:35], 8, v21")
    a("v_add_u32 v21, 1, v16")
    a("v_and_b32 v21, 15, v21")
    a("v_lshlrev_b32 v24, 5, v21")
    a("v_lshl_add_u32 v24, v18, 3, v24")
    a("s_lshl_b32 s40, s26, 9")
    a("s_add_u32 s40, s40, s39")
    a("v_add_u32 v24, s40, v24")
    a("s_cmp_eq_u32 s26, 0")
    a("s_cselect_b64 s[36:37], -1, s[34:35]")
    a("s_lshl_b32 s40, s24, 12")
    a(f"s_add_u32 s40, s40, {KG_PART}")
    a("v_lshl_add_u32 v22, v1, 4, s40")
    a("s_lshl_b32 s40, s25, 13")
    a("s_lshl_b32 s41, s26, 11")
    a("s_add_u32 s40, s40, s41")
    a(f"s_add_u32 s40, s40, {KG_PART}")
    a("v_lshl_add_u32 v23, v1, 4, s40")
    a("s_lshl_b32 s40, s26, 6")
    a("v_add_u32 v26, s40, v1")
    a("v_lshlrev_b32 v27, 3, v26")
    a("v_sub_u32 v27, 2047, v27")
    a("v_cvt_f32_u32 v28, v27")
    a("s_sub_u32 s41, s39, 34050")
    a("s_sub_u32 s42, s39, 2")
    GA = 140
    for rnd in range(2):
        if rnd == 1:
            a("v_add_f32 v28, 0xc4800000, v28")
            a("v_subrev_u32 v27, 1024, v27")
        for t in range(8):
            if t == 0: a(f"v_mov_b32 v48, v28")
            else: a(f"v_add_f32 v{48+t}, {-float(t)}, v28")
        for p in range(4): a(f"v_cvt_pk_bf16_f32 v{56+p}, v{48+2*p}, v{49+2*p}")
        for p in range(4):
            a(f"v_and_b32 v{48+2*p}, 0xffff, v{56+p}")
            a(f"v_lshrrev_b32 v{49+2*p}, 16, v{56+p}")
        o = GA + 8 * rnd
        for t in range(8): a(f"v_lshl_add_u32 v{o+t}, v{48+t}, 1, s41")
        if rnd == 1:
            a("v_cmp_le_u32 vcc, 112, v26")
            for t in range(8):
                a(f"v_subrev_u32 v{56+(t&3)}, {t}, v27")
                a(f"v_lshl_add_u32 v{56+(t&3)}, v{56+(t&3)}, 1, s42")
                a(f"v_cndmask_b32 v{o+t}, v{o+t}, v{56+(t&3)}, vcc")
    a(f"s_mul_i32 s40, s25, 4160")
    a(f"s_add_u32 s40, s40, {KG_REV}")
    a("v_lshl_add_u32 v29, v26, 4, s40")
    a("s_add_u32 s41, s40, 4080")
    a("v_lshlrev_b32 v30, 4, v26")
    a("v_sub_u32 v30, s41, v30")
    a(f"s_mul_i32 s41, s25, {KC_CH}")
    a("s_add_u32 s41, s41, 48")
    a("v_lshl_add_u32 v31, v26, 4, s41")
    a("s_waitcnt lgkmcnt(0)")
    a("s_lshl_b32 s40, s25, 4")
    a("s_lshr_b32 s29, s29, s40")
    a("s_lshl_b32 s29, s29, 16")
    a(f"v_mov_b32 v8, {LOG2E}")
    a("v_mul_f32 v9, s29, v8")
    a("v_exp_f32 v9, v9")
    a("s_nop 0")
    rbf(a, 9, 9)
    a("s_waitcnt vmcnt(0)")
    a("s_cmp_eq_u32 s64, 1")
    a("s_cbranch_scc0 K12_nopub")
    a("v_mov_b32 v68, 0")
    a("v_mov_b32 v69, 1")
    a("s_mov_b64 exec, 1")
    a("global_store_dword v68, v69, s[18:19] sc1")
    a("s_mov_b64 exec, -1")
    a("K12_nopub:")
    a("v_lshlrev_b32 v4, 16, v4")
    a("v_lshlrev_b32 v5, 16, v5")
    a("v_lshlrev_b32 v6, 16, v6")
    a("v_lshlrev_b32 v7, 16, v7")
    a("v_mul_f32 v4, v4, v8")
    a("v_exp_f32 v4, v4")
    a("v_mul_f32 v13, v5, v9")
    a("v_mul_f32 v14, v6, v9")
    rbf(a, 4, 4)
    a("v_mul_f32 v15, v7, v9")
    a("v_mul_f32 v12, v4, v9")
    a(f"v_mul_f32 v13, {INV2PI}, v13")
    a("v_add_f32 v14, v14, v14")
    a("v_add_f32 v15, v15, v15")
    a("v_mul_f32 v12, v12, v8")
    a("v_mov_b32 v10, v14")
    a("v_sub_f32 v12, 0, v12")
    a("ds_write_b128 v20, v[12:15]")
    for ctl in ("row_shr:1", "row_shr:2", "row_shr:4", "row_shr:8", "row_bcast:15 row_mask:0xa", "row_bcast:31 row_mask:0xc"):
        a("s_nop 1")
        a(f"v_add_f32_dpp v10, v10, v10 {ctl}")
    a("s_waitcnt lgkmcnt(0)")
    stamp(a, 1)
    R = [[32 + 4 * u for u in range(4)], [48 + 4 * u for u in range(4)]]
    PA = [64 + 2 * u for u in range(4)]
    PB = [72 + 2 * u for u in range(4)]
    TT = [80 + 2 * u for u in range(4)]
    QF = [88 + 4 * e for e in range(4)]
    GF = [104, 108]
    DD = [112 + 4 * e for e in range(4)]
    CPK = [128 + u for u in range(4)]
    MAG = [132 + 2 * u for u in range(4)]
    for u in range(4): a(f"ds_read_b128 v[{R[0][u]}:{R[0][u]+3}], v17 offset:{u*16}")
    for ks in range(4):
        Rc = R[ks & 1]
        if ks + 1 < 4:
            for u in range(4):
                a(f"ds_read_b128 v[{R[(ks+1)&1][u]}:{R[(ks+1)&1][u]+3}], v17 offset:{(ks+1)*256+u*16}")
            a("s_waitcnt lgkmcnt(4)")
        else:
            a("s_waitcnt lgkmcnt(0)")
        for u in range(4): a(f"v_mul_f32 v{TT[u]}, v{Rc[u]}, v19")
        for u in range(4): a(f"v_mul_f32 v{TT[u]+1}, v{Rc[u]+1}, v19")
        for u in range(4): a(f"v_exp_f32 v{MAG[u]}, v{TT[u]}")
        for u in range(4): a(f"v_fract_f32 v{TT[u]+1}, v{TT[u]+1}")
        for u in range(4): a(f"v_cvt_pk_bf16_f32 v{CPK[u]}, v{Rc[u]+2}, -v{Rc[u]+3}")
        for u in range(4): a(f"v_cos_f32 v{PB[u]}, v{TT[u]+1}")
        for u in range(4): a(f"v_sin_f32 v{PB[u]+1}, v{TT[u]+1}")
        a("s_nop 0")
        for u in range(4):
            a(f"v_pk_mul_f32 v[{PA[u]}:{PA[u]+1}], v[{PB[u]}:{PB[u]+1}], v[{MAG[u]}:{MAG[u]+1}] op_sel:[0,0] op_sel_hi:[1,0]")
        cur, oth = PA, PB
        for e in range(4):
            for u in range(4): a(f"v_cvt_pk_bf16_f32 v{QF[e]+u}, v{cur[u]}, v{cur[u]+1}")
            sq = [csq(a, oth[u], cur[u], TT[u]) for u in range(4)]
            for u in range(4): a(sq[u][0])
            for u in range(4): a(sq[u][1])
            cur, oth = oth, cur
        for e in range(4):
            g = GF[e & 1]
            cm = [cmulconj(a, oth[u], cur[u], Rc[u] + 2, TT[u]) for u in range(4)]
            for u in range(4): a(cm[u][0])
            for u in range(4): a(cm[u][1])
            for u in range(4): a(f"v_cvt_pk_bf16_f32 v{g+u}, v{oth[u]}, v{oth[u]+1}")
            if e == 0:
                for u in range(4): a(f"v_cndmask_b32 v{g+u}, v{g+u}, v{CPK[u]}, s[32:33]")
            if e < 3:
                sq = [csq(a, oth[u], cur[u], TT[u]) for u in range(4)]
                for u in range(4): a(sq[u][0])
                a(f"v_mfma_f32_16x16x32_bf16 v[{DD[e]}:{DD[e]+3}], v[{QF[e]}:{QF[e]+3}], v[{g}:{g+3}], v[{DD[e]}:{DD[e]+3}]")
                for u in range(4): a(sq[u][1])
                cur, oth = oth, cur
            else:
                a("s_nop 1")
                a(f"v_mfma_f32_16x16x32_bf16 v[{DD[e]}:{DD[e]+3}], v[{QF[e]}:{QF[e]+3}], v[{g}:{g+3}], v[{DD[e]}:{DD[e]+3}]")
    stamp(a, 2)
    K0P = KG_T16 + 2 * 1344 + 16
    a("v_readlane_b32 s40, v10, 63")
    a(f"s_lshl_b32 s41, s24, 2")
    a(f"s_add_u32 s41, s41, {K0P}")
    a("v_mov_b32 v11, s41")
    a("v_mov_b32 v10, s40")
    a("s_nop 1")
    for e in range(4): a(f"ds_write_b128 v22, v[{DD[e]}:{DD[e]+3}] offset:{e*1024}")
    a("ds_write_b32 v11, v10")
    a("s_lshl_b32 s57, s25, 2")
    a(f"s_add_u32 s41, s57, {LF}")
    wsync(a, "s41", 2, 2, 40)
    a("ds_read_b128 v[32:35], v23")
    a("ds_read_b128 v[36:39], v23 offset:4096")
    a("ds_read_b128 v[40:43], v23 offset:1024")
    a("ds_read_b128 v[44:47], v23 offset:5120")
    a(f"s_lshl_b32 s41, s25, 3")
    a(f"s_add_u32 s41, s41, {K0P}")
    a("v_mov_b32 v11, s41")
    a("ds_read_b64 v[8:9], v11")
    a("s_waitcnt lgkmcnt(0)")
    for r in range(4): a(f"v_add_f32 v{32+r}, v{32+r}, v{36+r}")
    for r in range(4): a(f"v_add_f32 v{40+r}, v{40+r}, v{44+r}")
    a("v_add_f32 v8, v8, v9")
    a("v_cvt_pk_bf16_f32 v32, v32, v33")
    a("v_cvt_pk_bf16_f32 v33, v34, v35")
    a("v_cvt_pk_bf16_f32 v40, v40, v41")
    a("v_cvt_pk_bf16_f32 v41, v42, v43")
    a("v_cvt_pk_bf16_f32 v8, v8, v8")
    a("s_sub_u32 s41, s39, 2")
    a("v_mov_b32 v11, s41")
    a("s_mov_b64 exec, s[36:37]")
    a("ds_write_b64 v24, v[32:33]")
    a("s_mov_b64 exec, s[34:35]")
    a("ds_write_b64 v24, v[40:41] offset:256")
    a("s_mov_b64 exec, -1")
    a("ds_write_b16 v11, v8")
    a(f"s_add_u32 s41, s57, {LF + 8}")
    wsync(a, "s41", 2, 2, 40)
    for t in range(16):
        a(f"ds_read_u16 v{76+t}, v{GA+t}")
        if t == 7: a("v_mov_b32 v72, 0\nv_mov_b32 v73, 0\nv_mov_b32 v74, 0\nv_mov_b32 v75, 0")
    a("s_waitcnt lgkmcnt(8)")
    for p in range(4): a(f"v_lshl_or_b32 v{64+p}, v{77+2*p}, 16, v{76+2*p}")
    a("ds_write_b128 v29, v[64:67]")
    a("s_waitcnt lgkmcnt(1)")
    for p in range(4): a(f"v_lshl_or_b32 v{68+p}, v{85+2*p}, 16, v{84+2*p}")
    a("ds_write_b128 v29, v[68:71] offset:2048")
    a("v_cmp_gt_u32 vcc, 4, v26")
    a("s_and_saveexec_b64 s[42:43], vcc")
    a("ds_write_b128 v29, v[72:75] offset:4096")
    a("s_mov_b64 exec, s[42:43]")
    a(f"s_add_u32 s41, s57, {LF + 16}")
    wsync(a, "s41", 2, 2, 40)
    a("v_subrev_u32 v33, 2048, v30")
    a("ds_read_b128 v[36:39], v30")
    a("ds_read_b128 v[40:43], v30 offset:16")
    a("ds_read_b128 v[44:47], v33")
    a("ds_read_b128 v[48:51], v33 offset:16")
    for c in range(2):
        W = 36 + 8 * c
        a(f"s_waitcnt lgkmcnt({2 if c == 0 else 8})")
        V = 60
        for j in range(7): a(f"v_alignbit_b32 v{V+j}, v{W+j+1}, v{W+j}, 16")
        for j in range(1, 7): a(f"v_alignbit_b32 v{68+j-1}, v{W+j+1}, v{W+j}, 16")
        for j in range(1, 7): a(f"v_mov_b32 v{76+j-1}, v{W+j}")
        off = c * 2048
        a(f"ds_write_b128 v31, v[{W}:{W+3}] offset:{off + 7*CS}")
        a(f"ds_write_b128 v31, v[{W+2}:{W+5}] offset:{off + 3*CS}")
        a(f"ds_write_b128 v31, v[{V}:{V+3}] offset:{off + 6*CS}")
        a(f"ds_write_b128 v31, v[{V+2}:{V+5}] offset:{off + 2*CS}")
        a(f"ds_write_b128 v31, v[68:71] offset:{off + 4*CS}")
        a(f"ds_write_b128 v31, v[70:73] offset:{off + 0*CS}")
        a(f"ds_write_b128 v31, v[76:79] offset:{off + 5*CS}")
        a(f"ds_write_b128 v31, v[78:81] offset:{off + 1*CS}")
    stamp(a, 3)
    a("s_lshl_b32 s28, s62, 12")
    a(f"s_add_u32 s28, s28, {XT}") if XT else None
    a("v_lshl_add_u32 v160, v0, 4, s28")
    a("v_add_u32 v161, 4096, v160")
    a("v_lshlrev_b32 v162, 5, v0")
    a(f"v_add_u32 v162, {STAT1}, v162")
    a(f"v_add_u32 v163, 8192, v162")
    a(f"v_and_b32 v50, {15 if CONV16 else 31}, v1")
    a(f"v_lshrrev_b32 v51, {4 if CONV16 else 5}, v1")
    a("s_lshl_b32 s30, s25, 12")
    a("s_add_u32 s30, s30, s28")
    a("s_lshl_b32 s31, s26, 11")
    a("s_add_u32 s30, s30, s31")
    a("v_lshlrev_b32 v164, 6, v50")
    a("v_lshl_add_u32 v164, v51, 3, v164")
    a("v_add_u32 v164, s30, v164")
    a("v_and_b32 v165, 3, v1")
    a("v_mul_u32_u24 v165, 12288, v165")
    a("v_bfe_u32 v54, v1, 2, 1")
    a("v_lshl_add_u32 v165, v54, 2, v165")
    a("v_lshrrev_b32 v54, 3, v1")
    a("v_min_u32 v54, 2, v54")
    a("v_lshl_add_u32 v165, v54, 11, v165")
    a("s_lshl_b32 s32, s62, 2")
    a(f"s_add_u32 s32, s32, {MODP}")
    a("v_add_u32 v165, s32, v165")
    a("v_and_b32 v54, 7, v50")
    a("v_lshrrev_b32 v55, 3, v50")
    a(f"v_mul_u32_u24 v2, {CS}, v54")
    a("v_sub_u32 v55, v55, v51")
    a(f"v_add_u32 v55, {3 if CONV16 else 1}, v55")
    a("v_lshl_add_u32 v2, v55, 4, v2")
    a(f"s_mul_i32 s38, s25, {KC_CH}")
    a("v_add_u32 v2, s38, v2")
    a(f"v_mul_u32_u24 v3, {USTR}, v50")
    a("v_lshl_add_u32 v3, v51, 4, v3")
    a(f"s_mul_i32 s38, s25, {U_CH}")
    a(f"s_add_u32 s38, s38, {UB}")
    a("v_add_u32 v3, s38, v3")
    a("v_lshrrev_b32 v166, 2, v0")
    a(f"v_mul_u32_u24 v166, {USTR}, v166")
    a("v_and_b32 v63, 3, v0")
    a("v_lshl_add_u32 v166, v63, 4, v166")
    a(f"v_add_u32 v166, {UB + 31*USTR}, v166")
    a("s_lshl_b32 s38, s24, 12")
    a(f"s_add_u32 s38, s38, {SCR}")
    a("v_lshl_add_u32 v4, v1, 4, s38")
    a("s_xor_b32 s39, s24, 1")
    a("s_lshl_b32 s38, s39, 12")
    a(f"s_add_u32 s38, s38, {SCR}")
    a("v_lshl_add_u32 v5, v1, 4, s38")
    a("s_lshl_b32 s38, s24, 2")
    a(f"s_add_u32 s38, s38, {LF + 32}")
    a("v_mov_b32 v7, s38")
    a("s_lshl_b32 s38, s39, 2")
    a(f"s_add_u32 s38, s38, {LF + 32}")
    a("v_mov_b32 v8, s38")
    a(f"v_mul_u32_u24 v6, {USTR}, v50")
    a("v_lshl_add_u32 v6, v51, 3, v6")
    a(f"s_mul_i32 s38, s25, {U_CH}")
    a(f"s_mul_i32 s39, s26, {32*USTR}")
    a("s_add_u32 s38, s38, s39")
    a(f"s_add_u32 s38, s38, {UB + 31*USTR}")
    a("v_add_u32 v6, s38, v6")
    a("s_lshl_b32 s38, s27, 7")
    a("s_lshl_b32 s39, s26, 20")
    a("s_add_u32 s38, s38, s39")
    a(f"s_add_u32 s38, s38, {X2T}")
    a("v_lshrrev_b32 v9, 3, v1")
    a("v_lshlrev_b32 v9, 16, v9")
    a("v_and_b32 v63, 7, v1")
    a("v_lshl_add_u32 v9, v63, 4, v9")
    a("v_add_u32 v9, s38, v9")
    a("v_add_u32 v12, 0x80000, v9")
    a(f"s_mul_i32 s38, s25, {KC_CH}")
    a("s_mul_i32 s39, s26, 2560")
    a("s_add_u32 s38, s38, s39")
    a("v_mul_u32_u24 v10, 80, v50")
    a("v_lshl_add_u32 v10, v51, 3, v10")
    a("v_add_u32 v10, s38, v10")
    a("v_lshrrev_b32 v11, 2, v1")
    a("v_mul_u32_u24 v11, 80, v11")
    a("v_and_b32 v63, 3, v1")
    a("v_lshl_add_u32 v11, v63, 4, v11")
    a("v_add_u32 v11, s38, v11")
    for r in range(32, 64): a(f"v_mov_b32 v{r}, 0")
    a("s_lshl_b32 s38, s25, 4")
    a("s_lshr_b32 s36, s56, s38")
    a("s_lshl_b32 s36, s36, 16")
    a("s_waitcnt lgkmcnt(0)")
    a("s_barrier")
    stamp(a, 4)
    XR, SR = 168, 176
    a("global_load_dword v13, v165, s[14:15] sc1")
    a(f"global_load_dwordx4 v[{XR}:{XR+3}], v160, s[14:15] sc1")
    a(f"global_load_dwordx4 v[{XR+4}:{XR+7}], v161, s[14:15] sc1")
    a(f"global_load_dwordx4 v[{SR}:{SR+3}], v162, s[14:15]" + STL)
    a(f"global_load_dwordx4 v[{SR+4}:{SR+7}], v162, s[14:15] offset:16" + STL)
    a(f"global_load_dwordx4 v[{SR+8}:{SR+11}], v163, s[14:15]" + STL)
    a(f"global_load_dwordx4 v[{SR+12}:{SR+15}], v163, s[14:15] offset:16" + STL)
    for i in range(4):
        a(f"global_load_dwordx2 v[{144+2*i}:{145+2*i}], v164, s[14:15] offset:{(1024*(i >> 1) + 32*(i & 1)) if CONV16 else 16*i} sc1")
    a("s_waitcnt vmcnt(10)")
    a("v_add_f32_dpp v13, v13, v13 quad_perm:[1,0,3,2] row_mask:0xf bank_mask:0xf")
    a("s_nop 1")
    a("v_add_f32_dpp v13, v13, v13 quad_perm:[2,3,0,1] row_mask:0xf bank_mask:0xf")
    rbf(a, 13, 13)
    a("v_add_f32 v14, 1.0, v13")
    rbf(a, 14, 14)
    a("v_readlane_b32 s59, v13, 0")
    a("v_readlane_b32 s61, v13, 4")
    a("v_readlane_b32 s54, v13, 16")
    a("v_readlane_b32 s55, v13, 20")
    a("v_readlane_b32 s58, v14, 8")
    a("v_readlane_b32 s60, v14, 12")
    a("s_cmp_eq_u32 s25, 0")
    a("s_cselect_b32 s37, s54, s55")
    a("s_waitcnt vmcnt(4)")
    for c in range(2):
        X = XR + 4 * c
        for q in range(4):
            a(f"v_lshlrev_b32 v{64+2*q}, 16, v{X+q}")
            a(f"v_and_b32 v{65+2*q}, 0xffff0000, v{X+q}")
        for q in range(4):
            a(f"v_pk_fma_f32 v[{64+2*q}:{65+2*q}], v[{64+2*q}:{65+2*q}], v[{SR+2*q}:{SR+1+2*q}], v[{SR+8+2*q}:{SR+9+2*q}]")
        for q in range(4):
            a(f"v_pk_fma_f32 v[{64+2*q}:{65+2*q}], v[{64+2*q}:{65+2*q}], s[{58+2*c}:{59+2*c}], s[{58+2*c}:{59+2*c}] op_sel:[0,0,1] op_sel_hi:[1,0,1]")
        for q in range(4):
            a(f"v_cvt_pk_bf16_f32 v{72+4*c+q}, v{64+2*q}, v{65+2*q}")
        a(f"ds_write_b128 v166, v[{72+4*c}:{75+4*c}] offset:{c*U_CH}")
    wsync(a, LF + 52, 4, 14, 40)
    stamp(a, 5)
    a("s_cmp_eq_u32 s26, 0")
    a("s_cbranch_scc0 K2_B")
    conv_path(a, 0, "A")
    a("K2_B:   ; LINT-RESET")
    conv_path(a, 1, "B")
    a("K2_SIDE:   ; LINT-RESET")
    a("s_barrier")
    TL = SIDE + SIDE_SZ
    a("v_mul_u32_u24 v30, 160, v2")
    a("v_lshl_add_u32 v30, v3, 4, v30")
    a(f"v_add_u32 v30, {TL}, v30")
    a("s_cmp_ge_u32 s2, 192")
    a("s_cbranch_scc1 K1_w0")
    a("s_waitcnt vmcnt(10)")
    a("s_branch K1_w1")
    a("K1_w0:")
    a("s_waitcnt vmcnt(2)")
    a("K1_w1:   ; LINT-RESET")
    stamp(a, 1)
    a("ds_write_b128 v30, v[8:11]")
    a("ds_write_b128 v30, v[12:15] offset:5120")
    wsync(a, LF + 48, 4, 2, 40)
    a("v_lshrrev_b32 v2, 4, v1")
    a("v_bfe_u32 v3, v1, 2, 2")
    a("v_and_b32 v4, 3, v1")
    a("v_lshl_add_u32 v5, v2, 3, v3")
    a("v_mul_u32_u24 v5, 160, v5")
    a("v_lshl_add_u32 v5, v4, 3, v5")
    a("s_lshl_b32 s31, s25, 5")
    a(f"s_add_u32 s31, s31, {TL}")
    a("v_add_u32 v5, s31, v5")
    a("ds_read_b64_tr_b16 v[8:9], v5")
    a("ds_read_b64_tr_b16 v[10:11], v5 offset:640")
    a(f"ds_read_b64_tr_b16 v[12:13], v5 offset:{32*160}")
    a(f"ds_read_b64_tr_b16 v[14:15], v5 offset:{36*160}")
    a("v_and_b32 v6, 15, v1")
    a("v_lshlrev_b32 v6, 12, v6")
    a("v_lshl_add_u32 v6, v2, 4, v6")
    a("s_lshl_b32 s31, s27, 18")
    a("s_lshl_b32 s32, s25, 16")
    a("s_add_u32 s31, s31, s32")
    a("s_lshl_b32 s32, s26, 7")
    a("s_add_u32 s31, s31, s32")
    a(f"s_add_u32 s31, s31, {XT}") if XT else None
    a("v_add_u32 v6, s31, v6")
    a("s_waitcnt lgkmcnt(2)")
    a("global_store_dwordx4 v6, v[8:11], s[14:15] sc1")
    a("s_waitcnt lgkmcnt(0)")
    a("global_store_dwordx4 v6, v[12:15], s[14:15] offset:64 sc1")
    a("s_cmp_ge_u32 s2, 192")
    a("s_cbranch_scc1 K1_w2")
    a("s_waitcnt vmcnt(10)")
    a("s_branch K1_w3")
    a("K1_w2:")
    a("s_waitcnt vmcnt(2)")
    a("K1_w3:   ; LINT-RESET")
    a("v_mov_b32 v31, 0x3f803f80")
    a("v_mov_b32 v52, 0\nv_mov_b32 v53, 0\nv_mov_b32 v54, 0\nv_mov_b32 v55, 0")
    for k in range(4):
        a(f"v_dot2_f32_bf16 v52, v{16+k}, v31, v52")
        a(f"v_dot2_f32_bf16 v53, v{16+k}, v{16+k}, v53")
        a(f"v_dot2_f32_bf16 v54, v{20+k}, v31, v54")
        a(f"v_dot2_f32_bf16 v55, v{20+k}, v{20+k}, v55")
    a("s_nop 1")
    for ctl in ("row_shr:1", "row_shr:2", "row_shr:4", "row_shr:8", "row_bcast:15 row_mask:0xa", "row_bcast:31 row_mask:0xc"):
        for r in range(52, 56): a(f"v_add_f32_dpp v{r}, v{r}, v{r} {ctl}")
    a("s_nop 1")
    for k, r in enumerate(range(52, 56)): a(f"v_readlane_b32 s{36+k}, v{r}, 63")
    a("s_nop 1")
    a("v_cmp_eq_u32 vcc, 0, v1")
    a("v_mov_b32 v56, s38")
    a("v_mov_b32 v57, s39")
    a("v_mov_b32 v58, s36")
    a("v_mov_b32 v59, s37")
    a("v_cndmask_b32 v56, v56, v58, vcc")
    a("v_cndmask_b32 v57, v57, v59, vcc")
    a("v_mul_f32 v56, 0x3b000000, v56")
    a("v_mul_f32 v57, 0x3b000000, v57")
    a("v_fma_f32 v57, -v56, v56, v57")
    a("v_max_f32 v57, 0, v57")
    rbf(a, 56, 56); rbf(a, 57, 57)
    a("v_add_f32 v57, 0x3727c5ac, v57")
    rbf(a, 57, 57)
    a("v_sqrt_f32 v57, v57")
    a("s_nop 0")
    rbf(a, 57, 57)
    a("v_rcp_f32 v58, v57")
    a("s_nop 0")
    a("v_mul_f32 v59, v56, v58")
    a("v_sub_f32 v59, 0, v59")
    a("s_lshl_b32 s31, s30, 2")
    a(f"s_add_u32 s31, s31, {STAT1}")
    a("v_lshl_add_u32 v60, v1, 2, s31")
    a("v_add_u32 v61, 8192, v60")
    a("v_cmp_gt_u32 vcc, 2, v1")
    a("s_and_saveexec_b64 s[42:43], vcc")
    a("global_store_dword v60, v58, s[14:15] sc1")
    a("global_store_dword v61, v59, s[14:15] sc1")
    a("s_mov_b64 exec, s[42:43]")
    a("s_cmp_ge_u32 s2, 192")
    a("s_cbranch_scc1 K1_nomodc")
    a("s_waitcnt vmcnt(4)")
    for k in range(4): a(f"v_lshlrev_b32 v{48+k}, 16, v{48+k}")
    for k in range(4): a(f"v_mul_f32 v{52+k}, 0xbfb8aa3b, v{48+k}")
    for k in range(4): a(f"v_exp_f32 v{52+k}, v{52+k}")
    a("s_nop 0")
    for k in range(4): a(f"v_add_f32 v{52+k}, 1.0, v{52+k}")
    for k in range(4): a(f"v_rcp_f32 v{56+k}, v{52+k}")
    a("s_nop 0")
    for k in range(4): a(f"v_mul_f32 v{60+k}, v{48+k}, v{56+k}")
    for k in range(4): a(f"v_fma_f32 v{48+k}, -v{60+k}, v{52+k}, v{48+k}")
    for k in range(4): a(f"v_fma_f32 v{48+k}, v{48+k}, v{56+k}, v{60+k}")
    for k in range(4): rbf(a, 48 + k, 48 + k)
    for k in range(4):
        for p in range(4):
            w = 32 + 4 * k + p
            a(f"v_lshlrev_b32 v62, 16, v{w}")
            a(f"v_and_b32 v63, 0xffff0000, v{w}")
            if k == 0:
                a(f"v_mul_f32 v{64+2*p}, v62, v48")
                a(f"v_mul_f32 v{65+2*p}, v63, v48")
            else:
                a(f"v_fmac_f32 v{64+2*p}, v62, v{48+k}")
                a(f"v_fmac_f32 v{65+2*p}, v63, v{48+k}")
    MODL = SIDE
    a("v_subrev_u32 v61, 256, v0")
    a("v_lshlrev_b32 v61, 5, v61")
    a(f"v_add_u32 v61, {MODL}, v61")
    a("ds_write_b128 v61, v[64:67]")
    a("ds_write_b128 v61, v[68:71] offset:16")
    wsync(a, LF + 24, 4, 2, 40)
    a("s_cmp_lg_u32 s25, 0")
    a("s_cbranch_scc1 K1_nomodc")
    a("v_lshlrev_b32 v4, 2, v1")
    a(f"v_add_u32 v4, {MODL}, v4")
    for i in range(32):
        a(f"ds_read_b32 v{16+i}, v4 offset:{256*i}")
        if i == 14: a("s_waitcnt lgkmcnt(7)")
    a("s_waitcnt lgkmcnt(0)")
    for st in (16, 8, 4, 2, 1):
        for i in range(st): a(f"v_add_f32 v{16+i}, v{16+i}, v{16+st+i}")
    a("s_mul_i32 s31, s34, 12288")
    a("s_lshl_b32 s32, s33, 8")
    a("s_add_u32 s31, s31, s32")
    a(f"s_add_u32 s31, s31, {MODP}")
    a("v_lshl_add_u32 v5, v1, 2, s31")
    a("global_store_dword v5, v16, s[14:15] sc1")
    a("K1_nomodc:   ; LINT-RESET")
    stamp(a, 2)
    a("v_mov_b32 v74, 0")
    a("global_load_dword v75, v74, s[18:19] sc1")
    a("s_waitcnt vmcnt(0)")
    a("v_readfirstlane_b32 s51, v75")
    a(f"v_mov_b32 v2, {LF + 28}")
    a("v_mov_b32 v3, 1")
    a("s_mov_b64 exec, 1")
    a("ds_add_u32 v2, v3")
    a("s_mov_b64 exec, -1")
    stamp(a, 3)
    a("s_sub_u32 s26, s25, 1")
    a("s_lshl_b32 s26, s26, 8")
    a("s_add_u32 s26, s26, s2")
    a("s_cmp_eq_u32 s25, 0")
    a("s_cselect_b32 s26, 1000, s26")
    a("s_mov_b32 s27, s57")
    a("v_lshrrev_b32 v2, 2, v1")
    a("v_and_b32 v3, 3, v1")
    a("v_lshrrev_b32 v4, 4, v1")
    a("v_bfe_u32 v5, v1, 2, 2")
    a("v_mul_u32_u24 v11, 80, v2")
    a("v_lshl_add_u32 v11, v3, 4, v11")
    a("v_add_u32 v11, s27, v11")
    a("v_lshl_add_u32 v12, v4, 2, v5")
    a("v_mul_u32_u24 v12, 80, v12")
    a("v_lshl_add_u32 v12, v3, 3, v12")
    a("v_add_u32 v12, s27, v12")
    a("s_cmp_ge_u32 s26, 520")
    a("s_cbranch_scc1 K12_noraw")
    a("s_cmp_ge_u32 s26, 344")
    a("s_cbranch_scc1 K12_rawW2")
    a("s_mul_i32 s28, s26, 763")
    a("s_lshr_b32 s28, s28, 16")
    a("s_mul_i32 s29, s28, 86")
    a("s_sub_u32 s29, s26, s29")
    a("v_lshrrev_b32 v10, 1, v1")
    a("v_and_b32 v13, 1, v1")
    a("v_lshlrev_b32 v11, 5, v10")
    a("v_lshl_add_u32 v11, v13, 4, v11")
    a("v_add_u32 v11, s27, v11")
    a("v_mul_u32_u24 v10, 2752, v10")
    a("v_lshl_add_u32 v10, v13, 4, v10")
    a("v_lshl_add_u32 v12, v4, 2, v5")
    a("v_lshlrev_b32 v12, 5, v12")
    a("v_lshl_add_u32 v12, v3, 3, v12")
    a("v_add_u32 v12, s27, v12")
    a(f"s_mul_i32 s53, s28, {128*2752}")
    a("s_lshl_b32 s30, s29, 5")
    a("s_add_u32 s53, s53, s30")
    if OPT.get("w1pre", "1") == "1":
        a.srd(64, 48, 512 * 1376 * 2)
        for i in range(4):
            a(f"buffer_load_dwordx4 v[{32+4*i}:{35+4*i}], v10, s[64:67], s53 offen")
            if i < 3: a(f"s_add_u32 s53, s53, {32*2752}")
    a("s_branch K12_noraw")
    a("K12_rawW2:   ; LINT-RESET")
    a("s_sub_u32 s31, s26, 344")
    a("s_and_b32 s29, s31, 15")
    a("s_lshr_b32 s28, s31, 4")
    a("v_lshlrev_b32 v10, 10, v2")
    a("v_lshl_add_u32 v10, v3, 4, v10")
    a("s_lshl_b32 s30, s29, 6")
    a.srd(64, 12, 1376 * 512 * 2)
    for ks in range(4):
        a("s_lshl_b32 s31, s28, 2")
        a(f"s_add_u32 s31, s31, {ks}")
        a("s_mul_i32 s32, s31, 13")
        a("s_lshr_b32 s32, s32, 6")
        a("s_mul_i32 s33, s32, 5")
        a("s_sub_u32 s33, s31, s33")
        a("s_mul_i32 s32, s32, 11")
        a("s_min_u32 s32, s32, 76")
        a("s_lshl_b32 s33, s33, 1")
        a("s_add_u32 s32, s32, s33")
        a("s_add_u32 s33, s32, 1")
        a("s_sub_u32 s34, s31, 40")
        a("s_mul_i32 s34, s34, 22")
        a("s_add_u32 s35, s34, 21")
        a("s_add_u32 s34, s34, 10")
        a("s_cmp_lt_u32 s31, 40")
        a("s_cselect_b32 s32, s32, s34")
        a("s_cselect_b32 s33, s33, s35")
        for hf, sr in ((0, 32), (1, 33)):
            a(f"s_lshl_b32 s53, s{sr}, 14")
            a("s_add_u32 s53, s53, s30")
            i = 2 * ks + hf
            a(f"buffer_load_dwordx4 v[{32+4*i}:{35+4*i}], v10, s[64:67], s53 offen nt")
    a("K12_noraw:   ; LINT-RESET")
    a("s_cmp_lg_u32 s25, 0")
    a("s_cbranch_scc1 K12_gbx")
    wsync(a, LF + 28, 4, 70, 40, add=False)
    a("s_mov_b64 exec, 1")
    a("v_mov_b32 v70, 0")
    a("s_mov_b32 s52, 0x200000")
    a("s_cmp_eq_u32 s51, 1")
    a("s_cbranch_scc1 K12_rdyx")
    a("K12_rdy:")
    a("global_load_dword v71, v70, s[18:19] sc1")
    a("s_waitcnt vmcnt(0)")
    a("v_readfirstlane_b32 s40, v71")
    a("s_sub_u32 s52, s52, 1")
    a("s_cmp_eq_u32 s52, 0")
    a("s_cbranch_scc1 K12_gbdone")
    a("s_cmp_eq_u32 s40, 1")
    a("s_cbranch_scc0 K12_rdy")
    a("K12_rdyx:")
    a("s_and_b32 s40, s2, 15")
    a("s_lshl_b32 s40, s40, 8")
    a(f"s_add_u32 s40, s40, {GBAR}")
    a("v_mov_b32 v70, s40")
    a("v_mov_b32 v71, 1")
    a("global_atomic_add v71, v70, v71, s[14:15] sc0 sc1")
    a("s_waitcnt vmcnt(0)")
    a("v_readfirstlane_b32 s40, v71")
    a("s_cmp_eq_u32 s40, 15")
    a("s_cbranch_scc0 K12_poll")
    if OPT.get("bar2", "1") == "1":
        a("s_mov_b64 exec, 0xff")
        a("v_lshlrev_b32 v70, 8, v1")
        a(f"v_add_u32 v70, {GBAR + 8192}, v70")
        a("v_mov_b32 v71, 1")
        a("global_atomic_add v70, v71, s[14:15] sc1")
        a("s_mov_b64 exec, 1")
    else:
        a(f"v_mov_b32 v70, {GBAR + 4096}")
        a("v_mov_b32 v71, 1")
        a("global_atomic_add v71, v70, v71, s[14:15] sc0 sc1")
        a("s_waitcnt vmcnt(0)")
        a("v_readfirstlane_b32 s40, v71")
        a("s_cmp_eq_u32 s40, 15")
        a("s_cbranch_scc0 K12_poll")
        a("s_mov_b64 exec, 0xff")
        a("v_lshlrev_b32 v70, 8, v1")
        a(f"v_add_u32 v70, {GBAR + 8192}, v70")
        a("v_mov_b32 v71, 1")
        a("global_store_dword v70, v71, s[14:15] sc1")
        a("s_mov_b64 exec, 1")
    a("K12_poll:")
    a("s_and_b32 s40, s2, 7")
    a("s_lshl_b32 s40, s40, 8")
    a(f"s_add_u32 s40, s40, {GBAR + 8192}")
    a("v_mov_b32 v70, s40")
    a("K12_poll2:")
    a("global_load_dword v71, v70, s[14:15] sc1")
    a("s_waitcnt vmcnt(0)")
    a("v_readfirstlane_b32 s40, v71")
    a("s_sub_u32 s52, s52, 1")
    a("s_cmp_eq_u32 s52, 0")
    a("s_cbranch_scc1 K12_gbdone")
    a(f"s_cmp_ge_u32 s40, {16 if OPT.get('bar2', '1') == '1' else 1}")
    a("s_cbranch_scc0 K12_poll2")
    a("K12_gbdone:")
    a("s_mov_b64 exec, -1")
    a("K12_gbx:   ; LINT-RESET")
    a(f"s_setprio {OPT.get('sprio', '0')}")
    a("s_barrier")
    stamp(a, 4)
    a("s_cmp_gt_u32 s26, 521")
    a("s_cbranch_scc1 K2_SIDE_IDLE")
    a("s_cmp_ge_u32 s26, 520")
    a("s_cbranch_scc1 K2_TAB")
    a("s_cmp_ge_u32 s26, 344")
    a("s_cbranch_scc1 K2_W2")
    if OPT.get("w1pre", "1") != "1":
        a.srd(64, 48, 512 * 1376 * 2)
        for i in range(4):
            a(f"buffer_load_dwordx4 v[{32+4*i}:{35+4*i}], v10, s[64:67], s53 offen")
            if i < 3: a(f"s_add_u32 s53, s53, {32*2752}")
    a("s_lshl_b32 s31, s28, 9")
    a("v_lshl_add_u32 v13, v1, 3, s31")
    a(f"v_add_u32 v13, {MODP + 3*2048}, v13")
    for q in range(4):
        a(f"global_load_dwordx2 v[{64+4*q}:{65+4*q}], v13, s[14:15] sc1")
        a(f"global_load_dwordx2 v[{66+4*q}:{67+4*q}], v13, s[14:15] offset:2048 sc1")
        if q < 3: a("v_add_u32 v13, 12288, v13")
    a("s_waitcnt vmcnt(8)")
    for i in range(4): a(f"ds_write_b128 v11, v[{32+4*i}:{35+4*i}] offset:{1024*i}")
    a("s_waitcnt vmcnt(0)")
    stamp(a, 5)
    for r in range(4):
        a(f"v_add_f32 v{64+r}, v{64+r}, v{68+r}")
        a(f"v_add_f32 v{72+r}, v{72+r}, v{76+r}")
        a(f"v_add_f32 v{64+r}, v{64+r}, v{72+r}")
    for r in range(4): rbf(a, 64 + r, 64 + r)
    a("v_add_f32 v66, 1.0, v66")
    a("v_add_f32 v67, 1.0, v67")
    rbf(a, 66, 66); rbf(a, 67, 67)
    a("v_cvt_pk_bf16_f32 v64, v64, v65")
    a("v_lshl_add_u32 v15, v1, 3, s27")
    a("v_lshl_add_u32 v16, v1, 2, s27")
    a("ds_write_b64 v15, v[66:67] offset:10240")
    a("ds_write_b32 v16, v64 offset:10752")
    a("v_and_b32 v17, 15, v1")
    a("v_cmp_eq_u32 s[50:51], 0, v17")
    a("v_cmp_eq_u32 s[52:53], 1, v17")
    a("v_mov_b32 v18, 0")
    a("v_mov_b32 v19, 0x3f803f80")
    a("v_cndmask_b32 v18, v18, v19, s[50:51]")
    a("v_mov_b32 v19, 0")
    a("v_cndmask_b32 v19, v19, -1, s[52:53]")
    a("v_lshl_add_u32 v24, v4, 4, s27")
    a("v_lshl_add_u32 v25, v4, 3, s27")
    for r in range(96, 112): a(f"v_mov_b32 v{r}, 0")
    a("s_lshl_b32 s30, s29, 10")
    a(f"s_mul_i32 s31, s28, {4*87*1024}")
    a("s_add_u32 s30, s30, s31")
    a(f"s_add_u32 s30, s30, {W1F}")
    a("v_lshl_add_u32 v26, v1, 4, s30")
    a("s_waitcnt lgkmcnt(0)")
    stamp(a, 6)
    def ureads(ks):
        B = 112 + 16 * ks
        out = [f"ds_read_b128 v[{B}:{B+3}], v24 offset:{10240 + 128*ks}",
               f"ds_read_b128 v[{B+4}:{B+7}], v24 offset:{10240 + 128*ks + 64}",
               f"ds_read_b64 v[{B+8}:{B+9}], v25 offset:{10752 + 64*ks}",
               f"ds_read_b64 v[{B+10}:{B+11}], v25 offset:{10752 + 64*ks + 32}"]
        for hf in range(2):
            out.append(f"ds_read_b64_tr_b16 v[{B+12+2*hf}:{B+13+2*hf}], v12 offset:{(32*ks+16*hf)*32}")
        return out
    for x in ureads(0) + ureads(1): a(x)
    for ks in range(4):
        B = 112 + 16 * ks
        a(f"s_waitcnt lgkmcnt({6 if ks < 3 else 0})")
        if ks + 2 < 4:
            for x in ureads(ks + 2): a(x)
        for q in range(4): a(f"v_and_or_b32 v{B+8+q}, v{B+8+q}, v19, v18")
        R = B + 12
        for q in range(4):
            a(f"v_lshlrev_b32 v{52+2*q}, 16, v{R+q}")
            a(f"v_and_b32 v{53+2*q}, 0xffff0000, v{R+q}")
        a(f"v_mfma_f32_16x16x32_bf16 v[96:99], v[{R}:{R+3}], v[{B+8}:{B+11}], v[96:99]")
        for q in range(8): a(f"v_mul_f32 v{52+q}, v{52+q}, v{B+q}")
        S = 60 + 4 * (ks & 1)
        for q in range(4): a(f"v_cvt_pk_bf16_f32 v{S+q}, v{52+2*q}, v{53+2*q}")
        a(f"global_store_dwordx4 v26, v[{S}:{S+3}], s[14:15]" + SC1)
        a(f"v_add_u32 v26, {87*1024}, v26")
        a("s_nop 0")
        a(f"v_mfma_f32_16x16x32_bf16 v[104:107], v[{S}:{S+3}], v[{B+8}:{B+11}], v[104:107]")
    stamp(a, 7)
    a(f"s_mul_i32 s30, s28, {3*5504}")
    a("s_lshl_b32 s31, s29, 6")
    a("s_add_u32 s30, s30, s31")
    a(f"s_add_u32 s30, s30, {SVP}")
    a("v_lshl_add_u32 v28, v4, 4, s30")
    a("v_add_u32 v29, 5504, v28")
    a("v_add_u32 v30, 5504, v29")
    a("s_nop 7")
    a("s_mov_b64 exec, s[50:51]")
    a("global_store_dwordx4 v28, v[104:107], s[14:15]" + SC1)
    a("global_store_dwordx4 v30, v[96:99], s[14:15]" + SC1)
    a("s_mov_b64 exec, s[52:53]")
    a("global_store_dwordx4 v29, v[96:99], s[14:15]" + SC1)
    a("s_mov_b64 exec, -1")
    a("s_branch K12_UDONE")
    a("K2_W2:   ; LINT-RESET")
    a("s_waitcnt vmcnt(0)")
    for i in range(8): a(f"ds_write_b128 v11, v[{32+4*i}:{35+4*i}] offset:{16*80*i}")
    a("s_lshr_b32 s30, s29, 1")
    a("s_mul_i32 s30, s30, 43")
    a("s_lshl_b32 s31, s28, 2")
    a("s_add_u32 s30, s30, s31")
    a("s_lshl_b32 s30, s30, 12")
    a("s_and_b32 s31, s29, 1")
    a("s_lshl_b32 s31, s31, 11")
    a("s_add_u32 s30, s30, s31")
    a(f"s_add_u32 s30, s30, {W2F}")
    a("v_lshl_add_u32 v26, v1, 4, s30")
    a("s_waitcnt lgkmcnt(0)")
    for ks in range(4):
        if ks == 3:
            a("s_cmp_eq_u32 s28, 10")
            a("s_cbranch_scc1 K12_UDONE")
        for nt in range(2):
            for hf in range(2):
                a(f"ds_read_b64_tr_b16 v[{44+4*nt+2*hf}:{45+4*nt+2*hf}], v12 offset:{(32*ks+16*hf)*80 + 32*nt}")
        a("s_waitcnt lgkmcnt(2)")
        a(f"global_store_dwordx4 v26, v[44:47], s[14:15]" + SC1)
        a("s_waitcnt lgkmcnt(0)")
        a(f"global_store_dwordx4 v26, v[48:51], s[14:15] offset:1024" + SC1)
        a("v_add_u32 v26, 4096, v26")
    a("s_branch K12_UDONE")
    a("K2_TAB:   ; LINT-RESET")
    a("v_lshlrev_b32 v2, 5, v1")
    a(f"v_add_u32 v2, {MODP + 3*2048}, v2")
    a("v_add_u32 v3, 4096, v2")
    for q in range(4):
        for k in range(3):
            r = 112 + 24 * q + 8 * k
            a(f"global_load_dwordx4 v[{r}:{r+3}], v2, s[14:15] offset:{2048*k if k < 2 else 0} sc1" if k < 2 else f"global_load_dwordx4 v[{r}:{r+3}], v3, s[14:15] sc1")
            a(f"global_load_dwordx4 v[{r+4}:{r+7}], v2, s[14:15] offset:{2048*k+16} sc1" if k < 2 else f"global_load_dwordx4 v[{r+4}:{r+7}], v3, s[14:15] offset:16 sc1")
        if q < 3:
            a("v_add_u32 v2, 12288, v2")
            a("v_add_u32 v3, 12288, v3")
    a("s_waitcnt vmcnt(0)")
    for j in range(24):
        a(f"v_add_f32 v{112+j}, v{112+j}, v{136+j}")
        a(f"v_add_f32 v{160+j}, v{160+j}, v{184+j}")
        a(f"v_add_f32 v{112+j}, v{112+j}, v{160+j}")
    for j in range(24): rbf(a, 112 + j, 112 + j)
    for j in range(8):
        a(f"v_mov_b32 v{32+j}, v{112+j}")
        a(f"v_mov_b32 v{40+j}, v{120+j}")
    a("v_lshlrev_b32 v3, 5, v1")
    a(f"v_add_u32 v3, {GBF}, v3")
    a("global_store_dwordx4 v3, v[128:131], s[14:15] sc1")
    a("global_store_dwordx4 v3, v[132:135], s[14:15] offset:16 sc1")
    for j in range(8): a(f"v_add_f32 v{40+j}, 1.0, v{40+j}")
    for j in range(8): rbf(a, 40 + j, 40 + j)
    for j in range(8): a(f"v_mul_f32 v{48+j}, v{40+j}, v{40+j}")
    for j in range(8): a(f"v_mul_f32 v{56+j}, v{40+j}, v{32+j}")
    a("v_lshlrev_b32 v3, 5, v1")
    a(f"v_add_u32 v3, {G2F}, v3")
    a("global_store_dwordx4 v3, v[48:51], s[14:15] sc1")
    a("global_store_dwordx4 v3, v[52:55], s[14:15] offset:16 sc1")
    for k, base in enumerate((40, 48, 56, 32)):
        a(f"v_add_f32 v{100+k}, v{base}, v{base+1}")
        for j in range(2, 8): a(f"v_add_f32 v{100+k}, v{100+k}, v{base+j}")
    a("v_mul_f32 v104, v32, v32")
    for j in range(1, 8): a(f"v_fmac_f32 v104, v{32+j}, v{32+j}")
    a("v_lshl_add_u32 v4, v1, 4, s27")
    a("v_mov_b32 v64, 0x3f803f80\nv_mov_b32 v65, 0x3f803f80\nv_mov_b32 v66, 0x3f803f80\nv_mov_b32 v67, 0x3f803f80")
    a("ds_write_b128 v4, v[64:67]")
    for q in range(4): a(f"v_cvt_pk_bf16_f32 v{68+q}, v{40+2*q}, v{41+2*q}")
    a("ds_write_b128 v4, v[68:71] offset:1024")
    for (src, row) in ((48, 2), (56, 4)):
        for q in range(4): a(f"v_cvt_pk_bf16_f32 v{72+q}, v{src+2*q}, v{src+2*q+1}")
        a(f"ds_write_b128 v4, v[72:75] offset:{1024*row}")
        for q in range(4):
            a(f"v_lshlrev_b32 v{80+2*q}, 16, v{72+q}")
            a(f"v_and_b32 v{81+2*q}, 0xffff0000, v{72+q}")
        for j in range(8): a(f"v_sub_f32 v{80+j}, v{src+j}, v{80+j}")
        for q in range(4): a(f"v_cvt_pk_bf16_f32 v{76+q}, v{80+2*q}, v{81+2*q}")
        a(f"ds_write_b128 v4, v[76:79] offset:{1024*(row+1)}")
    a("s_nop 1")
    for ctl in ("row_shr:1", "row_shr:2", "row_shr:4", "row_shr:8", "row_bcast:15 row_mask:0xa", "row_bcast:31 row_mask:0xc"):
        for r in range(100, 105):
            a(f"v_add_f32_dpp v{r}, v{r}, v{r} {ctl}")
    a(f"v_mov_b32 v5, {SCAL}")
    a("s_mov_b64 s[42:43], exec")
    a("s_mov_b64 exec, 0x8000000000000000") if False else None
    a("v_cmp_eq_u32 vcc, 63, v1")
    a("s_and_saveexec_b64 s[42:43], vcc")
    a("global_store_dwordx4 v5, v[100:103], s[14:15]" + SC1)
    a("global_store_dword v5, v104, s[14:15] offset:16" + SC1)
    a("s_mov_b64 exec, s[42:43]")
    a("v_and_b32 v6, 15, v1")
    a("v_lshrrev_b32 v7, 4, v1")
    a("v_min_u32 v8, 5, v6")
    a("v_lshlrev_b32 v8, 10, v8")
    a("v_lshl_add_u32 v8, v7, 3, v8")
    a("v_add_u32 v8, s27, v8")
    a("v_cmp_gt_u32 vcc, 6, v6")
    a("v_mov_b32 v9, 0")
    a("s_nop 0")
    a("v_cndmask_b32 v9, v9, -1, vcc")
    a("s_sub_u32 s31, s26, 520")
    a(f"s_mul_i32 s30, s31, {8*87*1024}")
    a(f"s_add_u32 s30, s30, {W1F + 86*1024}")
    a("v_lshl_add_u32 v10, v1, 4, s30")
    a("s_lshl_b32 s31, s31, 9")
    a("v_add_u32 v8, s31, v8")
    a("s_waitcnt lgkmcnt(0)")
    def tread(ks):
        R = 112 + 4 * ks
        return [f"ds_read_b64 v[{R}:{R+1}], v8 offset:{64*ks}", f"ds_read_b64 v[{R+2}:{R+3}], v8 offset:{64*ks+32}"]
    for ks in range(4):
        for x in tread(ks): a(x)
    for bt in range(2):
        if bt < 1:
            for ks in range(4, 7):
                for x in tread(ks): a(x)
            a("s_waitcnt lgkmcnt(6)")
            for x in tread(7): a(x)
        else:
            a("s_waitcnt lgkmcnt(0)")
        for ks in range(4 * bt, 4 * bt + 4):
            R = 112 + 4 * ks
            for q in range(4): a(f"v_and_b32 v{R+q}, v{R+q}, v9")
            a(f"global_store_dwordx4 v10, v[{R}:{R+3}], s[14:15]" + SC1)
            a(f"v_add_u32 v10, {87*1024}, v10")
    a("s_branch K12_UDONE")
    a("K12_UDONE:   ; LINT-RESET")
    if OPT.get("wpf", "0") == "1":
        a("s_waitcnt vmcnt(0)")
        a(f"v_mov_b32 v2, {WCNT}")
        a("v_mov_b32 v3, 1")
        a("s_mov_b64 exec, 1")
        a("global_atomic_add v2, v3, s[14:15] sc1")
    a("s_branch K2_END")
    a("K2_SIDE_IDLE:   ; LINT-RESET")
    if OPT.get("wpf", "0") == "1":
        a("s_cmp_eq_u32 s25, 2")
        a("s_cbranch_scc0 K2_END")
        a(f"v_mov_b32 v2, {WCNT}")
        a("s_mov_b32 s52, 0x40000")
        a("s_mov_b64 exec, 1")
        a("K12_wpoll:")
        a("s_sleep 8")
        a("global_load_dword v3, v2, s[14:15] sc1")
        a("s_waitcnt vmcnt(0)")
        a("v_readfirstlane_b32 s40, v3")
        a("s_sub_u32 s52, s52, 1")
        a("s_cmp_eq_u32 s52, 0")
        a("s_cbranch_scc1 K12_wpx")
        a("s_cmp_ge_u32 s40, 522")
        a("s_cbranch_scc0 K12_wpoll")
        a("K12_wpx:")
        a("s_mov_b64 exec, -1")
        a("s_lshr_b32 s30, s2, 3")
        a("v_lshlrev_b32 v4, 7, v1")
        for (base, size, reg) in ((W1F, 87 * 16384, 44), (W2F, 8 * 43 * 4096, 48)):
            a(f"s_add_u32 s{reg}, s14, {base}")
            a(f"s_addc_u32 s{reg+1}, s15, 0")
            a(f"s_mov_b32 s{reg+2}, {size}")
            a(f"s_mov_b32 s{reg+3}, 0x20000")
            per = -(-size // 32 // 128) * 128
            a(f"s_mul_i32 s31, s30, {per}")
            n = -(-per // 8192)
            for k in range(n):
                a(f"buffer_load_dword v{8 + k + (8 if reg == 48 else 0)}, v4, s[{reg}:{reg+3}], s31 offen")
                if k + 1 < n: a("s_add_u32 s31, s31, 8192")
    a("K2_END:   ; LINT-RESET")
    stamp_store(a, 0, 14, 24)
    a("K2_EXIT:")
    a.end_kernel(name, 208, 100)

G2T = 65536
SVT = G2T + 2048
STT = SVT + 3072
COF = STT + 2048
RED = COF + 4096
P_W = 64 * 272
K3_LDS = RED + 4 * P_W
FLAGS = 0x0638000

def k3(a):
    name = "k3_kernel"
    a.begin_kernel(name, 256, 256, K3_LDS)
    a("s_cmp_ge_u32 s2, 256")
    a("s_cbranch_scc1 K3_EXIT")
    stamp(a, 0)
    a("s_load_dwordx2 s[14:15], s[0:1], 128")
    a("s_load_dwordx2 s[12:13], s[0:1], 72")
    a("s_load_dwordx2 s[16:17], s[0:1], 88")
    a("s_load_dwordx2 s[18:19], s[0:1], 112")
    wave_id(a, 24, 1)
    a("v_and_b32 v1, 63, v0")
    a("s_and_b32 s25, s2, 7")
    a("s_lshr_b32 s26, s2, 3")
    a("s_lshr_b32 s27, s26, 3")
    a("s_lshl_b32 s25, s25, 2")
    a("s_add_u32 s25, s25, s27")
    a("s_and_b32 s26, s26, 7")
    a("s_and_b32 s22, s25, 3")
    a("s_lshl_b32 s23, s22, 1")
    a("s_add_u32 s23, s23, s26")
    a("s_lshl_b32 s23, s23, 1")
    a("s_and_b32 s23, s23, 15")
    a("s_mul_i32 s22, s22, 3")
    a("s_add_u32 s22, s22, s26")
    a("s_sub_u32 s21, s22, 11")
    a("s_cmp_ge_u32 s22, 11")
    a("s_cselect_b32 s22, s21, s22")
    if OPT.get('rot', '0') != '1':
        a("s_mov_b32 s23, 0")
        a("s_mov_b32 s22, 0")
    a("s_mul_i32 s27, s26, 11")
    a("s_min_u32 s27, s27, 76")
    a("s_cmp_lt_u32 s26, 6")
    a("s_cselect_b32 s28, 11, 10")
    a("s_mul_i32 s29, s24, 3")
    for i in range(3):
        a(f"s_add_u32 s30, s29, {i}")
        a("s_add_u32 s31, s30, s27")
        a("s_cmp_lt_u32 s30, s28")
        a(f"s_cselect_b32 s{32+i}, s31, 86")
    a("v_lshrrev_b32 v10, 3, v1")
    a("v_and_b32 v11, 6, v10")
    a("v_and_b32 v12, 7, v1")
    a("v_xor_b32 v11, v11, v12")
    a("v_lshlrev_b32 v11, 4, v11")
    a("v_lshl_add_u32 v11, v10, 7, v11")
    a("s_lshl_b32 s41, s24, 10")
    a("s_lshl_b32 s42, s25, 16")
    a("s_add_u32 s41, s41, s42")
    a(f"s_add_u32 s41, s41, {X2T}")
    a("s_lshl_b32 s42, s24, 10")
    a("v_lshlrev_b32 v13, 4, v1")
    for i in range(3):
        a(f"s_lshl_b32 s30, s{32+i}, 10")
        a(f"v_add_u32 v{126+i}, s30, v13")
    a("s_mov_b32 s47, s23")
    a("s_lshl_b32 s46, s23, 12")
    a("v_lshrrev_b32 v3, 4, v1")
    a("v_and_b32 v6, 15, v1")
    a("v_mov_b32 v7, s32")
    a("v_mov_b32 v8, s33")
    a("v_mov_b32 v9, s34")
    a("v_cmp_eq_u32 vcc, 1, v3")
    a("v_cmp_le_u32 s[52:53], 2, v3")
    a("s_nop 0")
    a("v_cndmask_b32 v7, v7, v8, vcc")
    a("v_cndmask_b32 v7, v7, v9, s[52:53]")
    a("v_min_u32 v7, 85, v7")
    a("v_lshl_add_u32 v7, v7, 4, v6")
    a("v_lshlrev_b32 v8, 2, v7")
    a(f"v_add_u32 v8, {SVP}, v8")
    a("v_lshlrev_b32 v9, 1, v7")
    a("s_waitcnt lgkmcnt(0)")
    wsfix(a, 14)
    a.srd(8, 14, WS_USED)
    for j in range(16):
        a("s_mov_b32 m0, s42")
        a("s_add_u32 s45, s41, s46")
        a("s_add_u32 s42, s42, 4096")
        a(f"buffer_load_dwordx4 v11, s[8:11], s45 offen" + XLD + " lds")
        a("s_add_u32 s46, s46, 4096")
        a("s_and_b32 s46, s46, 0xffff")
    a("s_lshl_b32 s30, s24, 2")
    a("s_lshl_b32 s42, s24, 12")
    a(f"s_add_u32 s42, s42, {RED}")
    for j in range(4):
        a(f"s_add_u32 s31, s30, {j}")
        a("s_add_u32 s31, s31, s23")
        a("s_and_b32 s31, s31, 15")
        a(f"s_mul_i32 s31, s31, {87*1024}")
        a(f"s_add_u32 s31, s31, {W1F + 86*1024}")
        a("s_mov_b32 m0, s42")
        a("s_add_u32 s42, s42, 1024")
        a(f"buffer_load_dwordx4 v13, s[8:11], s31 offen lds")
    def wload(ks):
        out = []
        for i in range(3):
            r = (ks * 3 + i) * 4
            pre = f"s_mul_i32 s44, s47, {87*1024}\ns_add_u32 s44, s44, {W1F}\n" if i == 0 else ""
            post = "\ns_add_u32 s47, s47, 1\ns_and_b32 s47, s47, 15" if i == 2 else ""
            out.append(pre + f"buffer_load_dwordx4 a[{r}:{r+3}], v{126+i}, s[8:11], s44 offen" + WLD + post)
        return out
    PRE = min(int(OPT.get('pre', '6')), int(OPT.get('deep', '6')))
    for ks in range(PRE):
        for x in wload(ks): a(x)
    a(f"s_mov_b32 s30, {SCAL}")
    a("s_load_dwordx4 s[36:39], s[14:15], s30")
    a(f"s_mov_b32 s31, {SCAL+16}")
    a("s_load_dword s40, s[14:15], s31")
    a("v_bfe_u32 v14, v1, 2, 2")
    a("v_lshl_add_u32 v14, v3, 2, v14")
    a("v_and_b32 v15, 6, v14")
    a("v_lshrrev_b32 v15, 1, v15")
    a("v_and_b32 v29, 3, v1")
    a("v_lshlrev_b32 v30, 7, v14")
    a("v_lshl_add_u32 v30, v29, 3, v30")
    for k in range(4):
        a(f"s_add_u32 s30, s24, {k}")
        a(f"s_and_b32 s{48+k}, s30, 3")
        a(f"v_xor_b32 v31, s{48+k}, v15")
        a(f"v_lshl_add_u32 v{20+k}, v31, 5, v30")
    a("v_xor_b32 v31, s24, v15")
    a("v_lshl_add_u32 v26, v31, 5, v30")
    a("s_lshl_b32 s30, s26, 1")
    a("s_sub_u32 s30, s30, s23")
    a("s_add_u32 s31, s30, 1")
    a("s_and_b32 s30, s30, 15")
    a("s_and_b32 s31, s31, 15")
    a("s_lshl_b32 s30, s30, 12")
    a("s_lshl_b32 s31, s31, 12")
    a("v_add_u32 v125, s31, v26")
    a("v_add_u32 v26, s30, v26")
    a(f"v_add_u32 v24, {RED}, v13")
    ACC = 160
    for r in range(ACC, ACC + 48): a(f"v_mov_b32 v{r}, 0")
    for r in range(96, 108): a(f"v_mov_b32 v{r}, 0")
    a(f"s_waitcnt vmcnt({3*PRE}) lgkmcnt(0)")
    stamp(a, 1)
    a("s_barrier")
    XF = [32, 48]
    def xreads(ks):
        b = XF[ks & 1]
        out = []
        for k in range(4):
            for hf in range(2):
                out.append(f"ds_read_b64_tr_b16 v[{b+4*k+2*hf}:{b+4*k+2*hf+1}], v{20+k} offset:{4096*ks + 2048*hf}")
        return out
    STATS = OPT.get('stats', 'in')
    GQ = [64, 72]
    if STATS == 'in':
        for ks in range(PRE, int(OPT.get('deep', '6'))):
            for x in wload(ks): a(x)
    def greads(ks):
        g = GQ[ks & 1]
        return [f"ds_read_b128 v[{g}:{g+3}], v24 offset:{1024*ks}"]
    for x in xreads(0) + greads(0): a(x)
    DEEP = int(OPT.get('deep', '6'))
    a("s_mul_i32 s58, s24, 11")
    a("s_cmp_eq_u32 s24, 3")
    a("s_cselect_b32 s58, 32, s58")
    a("s_mul_i32 s59, s26, 43")
    a("s_add_u32 s59, s59, s58")
    a("s_lshl_b32 s59, s59, 12")
    a(f"s_add_u32 s59, s59, {W2F}")
    a.srd(60, 14, WS_USED)
    a("s_cmp_eq_u32 s24, 3")
    a("s_cselect_b32 s65, 0, s10")
    a("s_mov_b32 s64, s22")
    drip = []
    for j in range(11):
        for t in range(4):
            r = (j * 4 + t) * 4
            pre = "s_lshl_b32 s66, s64, 12\ns_add_u32 s66, s66, s59\ns_cmp_eq_u32 s64, 0\ns_cselect_b32 s62, s65, s10\n" if t == 0 else ""
            post = "\ns_add_u32 s64, s64, 1\ns_cmp_eq_u32 s64, 11\ns_cselect_b32 s64, 0, s64" if t == 3 else ""
            drip.append(pre + f"buffer_load_dwordx4 a[{r}:{r+3}], v13, s[60:63], s66 offen offset:{1024*t}" + WLD + post)
    a("s_lshl_b32 s30, s26, 8")
    a(f"s_add_u32 s30, s30, {GBF if FUSED else MODF + 5*2048}")
    a("v_lshl_add_u32 v27, v3, 4, s30")
    a("s_lshl_b32 s30, s26, 7")
    a("v_lshl_add_u32 v28, v3, 3, s30")
    gbl = []
    for dt in range(4):
        gbl.append(f"global_load_dwordx4 v[{208+4*dt}:{211+4*dt}], v27, s[14:15] offset:{64*dt}")
    for dt in range(4):
        gbl.append(f"global_load_dwordx2 v[{224+2*dt}:{225+2*dt}], v28, s[16:17] offset:{32*dt}")
    issued = DEEP
    vm_after = []
    seq = [("W", ks) for ks in range(DEEP) for _ in range(3)]
    def vmwait(tag):
        last = max(i for i, t in enumerate(seq) if t == tag)
        return len(seq) - 1 - last
    sm_done = False
    smalls = []
    for kq in range(4):
        for v in range(3):
            smalls.append(f"global_load_dword v{112+kq*3+v}, v8, s[14:15]")
            if not (kq == 3 and v == 2): smalls.append("v_add_u32 v8, 5504, v8")
    smalls.append("global_load_ushort v124, v9, s[12:13]")
    for ks in range(16):
        b = XF[ks & 1]
        a(f"s_waitcnt vmcnt({vmwait(('W', ks))}) lgkmcnt(0)")
        mf = []
        for i in range(3):
            r = (ks * 3 + i) * 4
            for k in range(4):
                d = ACC + (i * 4 + k) * 4
                mf.append(f"v_mfma_f32_16x16x32_bf16 v[{d}:{d+3}], a[{r}:{r+3}], v[{b+4*k}:{b+4*k+3}], v[{d}:{d+3}]")
        va = []
        if ks + 1 < 16: va += xreads(ks + 1) + greads(ks + 1)
        if issued < 16:
            va += wload(issued); seq += [("W", issued)] * 3; issued += 1
        elif not sm_done:
            sm_done = True
            va += smalls + gbl; seq += [("S", 0)] * 13 + [("G", 0)] * 8
        else:
            for _ in range(3):
                va.append(drip.pop(0)); seq.append(("W2", 0))
        for q in range(4):
            va.append(f"v_lshlrev_b32 v{80+2*q}, 16, v{b+q}")
            va.append(f"v_and_b32 v{81+2*q}, 0xffff0000, v{b+q}")
        for q in range(8):
            va.append(f"v_mul_f32 v{80+q}, v{80+q}, v{80+q}")
        for q in range(4):
            va.append(f"v_cvt_pk_bf16_f32 v{88+q}, v{80+2*q}, v{81+2*q}")
        if ks > 0:
            gp = GQ[(ks - 1) & 1]
            a(f"v_mfma_f32_16x16x32_bf16 v[96:99], v[{gp}:{gp+3}], v[88:91], v[96:99]")
        per = -(-len(va) // 12)
        vi = 0
        for m in mf:
            a(m)
            for _ in range(per):
                if vi < len(va): a(va[vi]); vi += 1
    a("s_nop 1")
    a(f"v_mfma_f32_16x16x32_bf16 v[96:99], v[{GQ[1]}:{GQ[1]+3}], v[88:91], v[96:99]")
    stamp(a, 2)
    KEEP = int(OPT.get('keep', '0'))
    def dr(n=1, final=False):
        for _ in range(n):
            if drip and (final or len(drip) > KEEP): a(drip.pop(0))
    a(f"s_waitcnt vmcnt({vmwait(('S', 0))})")
    dr(1)
    for v in range(3):
        a(f"v_add_f32 v{112+v}, v{112+v}, v{115+v}")
        a(f"v_add_f32 v{118+v}, v{118+v}, v{121+v}")
        a(f"v_add_f32 v{112+v}, v{112+v}, v{118+v}")
    a("v_lshlrev_b32 v124, 16, v124")
    dr(2)
    a("s_mul_i32 s30, s24, 768")
    a(f"s_add_u32 s30, s30, {SVT}")
    a("v_lshlrev_b32 v2, 8, v3")
    a("v_lshl_add_u32 v2, v6, 2, v2")
    a("v_add_u32 v2, s30, v2")
    a("v_cmp_gt_u32 vcc, 48, v1")
    a("s_and_saveexec_b64 s[42:43], vcc")
    a("ds_write_b32 v2, v112")
    a("ds_write_b32 v2, v114 offset:64")
    a("ds_write_b32 v2, v113 offset:128")
    a("ds_write_b32 v2, v124 offset:192")
    a("s_mov_b64 exec, s[42:43]")
    dr(2)
    a("s_lshl_b32 s30, s24, 9")
    a(f"s_add_u32 s30, s30, {STT}")
    a("v_lshl_add_u32 v2, v6, 5, s30")
    a("v_add_f32 v97, v98, v99")
    a("v_cmp_eq_u32 vcc, 0, v3")
    a("s_and_saveexec_b64 s[42:43], vcc")
    a("ds_write_b64 v2, v[96:97] offset:24")
    a("s_mov_b64 exec, s[42:43]")
    a("s_cmp_eq_u32 s24, 3")
    a("s_cbranch_scc0 K3_nolin")
    a("v_cmp_eq_u32 s[52:53], 0, v3")
    a("v_cmp_eq_u32 s[54:55], 1, v3")
    for k in range(4):
        a(f"s_lshl_b32 s30, s{48+k}, 9")
        a(f"s_add_u32 s30, s30, {STT}")
        a(f"v_lshl_add_u32 v{60+k}, v6, 5, s30")
    a("s_mov_b64 s[42:43], exec")
    a("s_mov_b64 exec, s[52:53]")
    for k in range(4):
        d = ACC + (8 + k) * 4
        a(f"ds_write_b128 v{60+k}, v[{d}:{d+3}]")
    a("s_mov_b64 exec, s[54:55]")
    for k in range(4):
        d = ACC + (8 + k) * 4
        a(f"ds_write_b64 v{60+k}, v[{d}:{d+1}] offset:16")
    a("s_mov_b64 exec, s[42:43]")
    a("K3_nolin:")
    dr(2)
    a("s_waitcnt lgkmcnt(0)")
    a("s_barrier")
    dr(2)
    a("v_lshlrev_b32 v2, 5, v1")
    a(f"v_add_u32 v2, {STT}, v2")
    a("ds_read_b128 v[32:35], v2")
    a("ds_read_b128 v[36:39], v2 offset:16")
    a("s_mul_i32 s30, s24, 768")
    a(f"s_add_u32 s30, s30, {SVT}")
    a("v_lshl_add_u32 v25, v3, 4, s30")
    a("s_mov_b32 s56, 0xbdd2d3e2")
    a("s_mov_b32 s57, 0xc0135761")
    a("s_waitcnt lgkmcnt(0)")
    a("v_add_f32 v34, v34, v35")
    a("v_add_f32 v36, v36, v37")
    a("v_mul_f32 v32, 0x3b000000, v32")
    a("v_mul_f32 v38, 0x3b000000, v38")
    a("v_fma_f32 v38, -v32, v32, v38")
    a("v_max_f32 v38, 0, v38")
    a("v_cvt_pk_bf16_f32 v40, v32, v38")
    a("v_lshlrev_b32 v32, 16, v40")
    a("v_and_b32 v38, 0xffff0000, v40")
    a("v_add_f32 v38, 0x3727c5ac, v38")
    rbf(a, 38, 38)
    a("v_sqrt_f32 v38, v38")
    a("v_fma_f32 v33, -v32, s36, v33")
    dr(2)
    rbf(a, 38, 38)
    a("v_rcp_f32 v38, v38")
    a("v_mul_f32 v40, v32, v32")
    a("v_add_f32 v41, v32, v32")
    a("v_fma_f32 v39, -v41, v34, v39")
    a("v_fma_f32 v39, v40, s37, v39")
    a("v_fma_f32 v36, -v32, s38, v36")
    a("v_fma_f32 v33, v33, v38, s39")
    a("v_add_f32 v36, v36, v36")
    a("v_fma_f32 v39, v39, v38, v36")
    a("v_mul_f32 v33, 0x3b000000, v33")
    dr(2)
    a("v_fma_f32 v39, v39, v38, s40")
    a("v_mul_f32 v39, 0x3b000000, v39")
    a("v_fma_f32 v39, -v33, v33, v39")
    a("v_max_f32 v39, 0, v39")
    a("v_cvt_pk_bf16_f32 v40, v33, v39")
    a("v_lshlrev_b32 v33, 16, v40")
    a("v_and_b32 v39, 0xffff0000, v40")
    a("v_add_f32 v39, 0x3727c5ac, v39")
    rbf(a, 39, 39)
    a("v_sqrt_f32 v39, v39")
    a("s_nop 0")
    rbf(a, 39, 39)
    a("v_rcp_f32 v47, v39")
    a("s_lshl_b32 s30, s24, 10")
    a(f"s_add_u32 s30, s30, {COF}")
    a("v_mul_f32 v44, v47, v38")
    a("v_mul_f32 v46, -v47, v33")
    a("v_mul_f32 v45, -v44, v32")
    a("v_lshl_add_u32 v2, v1, 4, s30")
    a("ds_write_b128 v2, v[44:47]")
    a("s_waitcnt lgkmcnt(0)")
    for k in range(4):
        a(f"s_lshl_b32 s31, s{48+k}, 8")
        a("s_add_u32 s31, s31, s30")
        a(f"v_lshl_add_u32 v2, v6, 4, s31")
        a(f"ds_read_b128 v[{48+4*k}:{51+4*k}], v2")
    SVR = [64, 128, 144]
    for i in range(3):
        for st in range(4):
            a(f"ds_read_b128 v[{SVR[i]+4*st}:{SVR[i]+4*st+3}], v25 offset:{256*i + 64*st}")
    dr(2)
    stamp(a, 3)
    a("s_waitcnt lgkmcnt(0)")
    for i in range(3):
        if i > 0 and OPT.get('x_nodrip') != '1': dr(4)
        a(f"s_cmp_eq_u32 s{32+i}, 86")
        a(f"s_cbranch_scc1 K3_skip{i}")
        SV = SVR[i]
        a(f"s_add_u32 s30, s29, {i}")
        a("s_lshr_b32 s31, s30, 1")
        a("s_lshl_b32 s31, s31, 12")
        a("s_and_b32 s30, s30, 1")
        a("s_lshl_b32 s30, s30, 3")
        a("s_add_u32 s30, s30, s31")
        a(f"s_add_u32 s30, s30, {RED}")
        A_ = ACC + i * 16
        for k in range(4):
            c = 48 + 4 * k
            for p in range(2):
                t = 96 + 4 * k + 2 * p
                a(f"v_pk_fma_f32 v[{t}:{t+1}], v[{SV+2*p}:{SV+1+2*p}], v[{c}:{c+1}], v[{SV+12+2*p}:{SV+13+2*p}] op_sel:[0,1,0] op_sel_hi:[1,1,1]")
        if i == 0 and OPT.get('x_nodrip') != '1': dr(2)
        for k in range(4):
            c = 48 + 4 * k
            for p in range(2):
                t = 96 + 4 * k + 2 * p
                a(f"v_pk_fma_f32 v[{t}:{t+1}], v[{SV+4+2*p}:{SV+5+2*p}], v[{c+2}:{c+3}], v[{t}:{t+1}] op_sel_hi:[1,0,1]")
        if i == 0 and OPT.get('x_nodrip') != '1': dr(2)
        for k in range(4):
            c = 48 + 4 * k
            for p in range(2):
                t = 96 + 4 * k + 2 * p
                a(f"v_pk_fma_f32 v[{t}:{t+1}], v[{SV+8+2*p}:{SV+9+2*p}], v[{c+2}:{c+3}], v[{t}:{t+1}] op_sel:[0,1,0] op_sel_hi:[1,1,1]")
        if i == 0 and OPT.get('x_nodrip') != '1': dr(2)
        for k in range(4):
            c = 48 + 4 * k
            for p in range(2):
                x = A_ + 4 * k + 2 * p; t = 96 + 4 * k + 2 * p
                a(f"v_pk_fma_f32 v[{x}:{x+1}], v[{x}:{x+1}], v[{c}:{c+1}], v[{t}:{t+1}] op_sel_hi:[1,0,1]")
        if i == 0 and OPT.get('x_nodrip') != '1': dr(2)
        for j in range(8):
            x = A_ + 2 * j; t = 96 + 2 * j
            a(f"v_pk_mul_f32 v[{t}:{t+1}], v[{x}:{x+1}], v[{x}:{x+1}]")
        for j in range(8):
            t = 96 + 2 * j
            a(f"v_pk_fma_f32 v[{t}:{t+1}], v[{t}:{t+1}], s[56:57], s[56:57] op_sel:[0,0,1] op_sel_hi:[1,0,1]")
        if i == 0 and OPT.get('x_nodrip') != '1': dr(2)
        for j in range(8):
            x = A_ + 2 * j; t = 96 + 2 * j
            a(f"v_pk_mul_f32 v[{t}:{t+1}], v[{t}:{t+1}], v[{x}:{x+1}]")
        for j in range(16): a(f"v_exp_f32 v{96+j}, v{96+j}")
        if i == 0 and OPT.get('x_nodrip') != '1': dr(3)
        for j in range(8):
            t = 96 + 2 * j
            a(f"v_pk_add_f32 v[{t}:{t+1}], v[{t}:{t+1}], 1.0 op_sel_hi:[1,0]")
        for j in range(16): a(f"v_rcp_f32 v{96+j}, v{96+j}")
        if i == 0 and OPT.get('x_nodrip') != '1': dr(3)
        for j in range(8):
            x = A_ + 2 * j; t = 96 + 2 * j
            a(f"v_pk_mul_f32 v[{x}:{x+1}], v[{x}:{x+1}], v[{t}:{t+1}]")
        for k in range(4):
            a(f"v_cvt_pk_bf16_f32 v{112+2*k}, v{A_+4*k}, v{A_+4*k+1}")
            a(f"v_cvt_pk_bf16_f32 v{113+2*k}, v{A_+4*k+2}, v{A_+4*k+3}")
        if i == 1:
            a("s_cmp_eq_u32 s29, 9")
            a("s_cbranch_scc0 K3_paired1")
            a("s_lshr_b32 s31, s26, 1")
            a("s_add_u32 s31, s31, 40")
            a("s_mul_i32 s43, s25, 43")
            a("s_add_u32 s31, s31, s43")
            a("s_lshl_b32 s31, s31, 12")
            a("s_and_b32 s43, s26, 1")
            a("s_lshl_b32 s43, s43, 3")
            a("s_add_u32 s31, s31, s43")
            a(f"s_add_u32 s31, s31, {HF}")
            for k in range(4):
                a(f"s_lshl_b32 s43, s{48+k}, 10")
                a("s_add_u32 s43, s43, s31")
                a(f"buffer_store_dwordx2 v[{112+2*k}:{113+2*k}], v13, s[8:11], s43 offen sc1")
            a("s_branch K3_skip1")
            a("K3_paired1:")
        for k in range(4):
            a(f"s_lshl_b32 s31, s{48+k}, 10")
            a("s_add_u32 s31, s31, s30")
            a(f"v_add_u32 v2, s31, v13")
            a(f"ds_write_b64 v2, v[{112+2*k}:{113+2*k}]")
        a(f"K3_skip{i}:   ; LINT-RESET")
    stamp(a, 9)
    dr(99)
    a("s_waitcnt lgkmcnt(0)")
    a("s_barrier")
    stamp(a, 4)
    a("s_mul_i32 s30, s24, 5120")
    a("v_add_u32 v2, s30, v13")
    a(f"v_add_u32 v2, {RED}, v2")
    for q in range(5): a(f"ds_read_b128 v[{32+4*q}:{35+4*q}], v2 offset:{1024*q}")
    a("s_mul_i32 s31, s25, 43")
    a("s_mul_i32 s43, s26, 5")
    a("s_add_u32 s31, s31, s43")
    a("s_lshl_b32 s31, s31, 12")
    a("s_add_u32 s31, s31, s30")
    a(f"s_add_u32 s31, s31, {HF}")
    for q in range(5):
        a(f"s_waitcnt lgkmcnt({4-q})")
        if q == 4: a("s_add_u32 s31, s31, 4096")
        a(f"buffer_store_dwordx4 v[{32+4*q}:{35+4*q}], v13, s[8:11], s31 offen offset:{1024*(q&3)} sc1")
    for r in range(176, 240): a(f"v_accvgpr_write_b32 a{r}, 0")
    a(f"s_waitcnt vmcnt(0)")
    stamp(a, 5)
    a("s_barrier")
    a("s_cmp_lg_u32 s24, 0")
    a("s_cbranch_scc1 K3_wait")
    a("s_lshl_b32 s30, s25, 7")
    a(f"s_add_u32 s30, s30, {FLAGS}")
    a("v_mov_b32 v2, s30")
    a("v_mov_b32 v4, 1")
    a("s_mov_b64 s[42:43], exec")
    a("s_mov_b64 exec, 1")
    a("global_atomic_add v4, v2, v4, s[14:15] sc0 sc1")
    a("s_waitcnt vmcnt(0)")
    a("v_readfirstlane_b32 s30, v4")
    a("s_cmp_eq_u32 s30, 7")
    a("s_cbranch_scc1 K3_pollx")
    a("s_mov_b32 s31, 0x100000")
    a("K3_poll:")
    a("buffer_load_dword v5, v2, s[8:11], 0 offen sc1")
    a("s_waitcnt vmcnt(0)")
    a("v_readfirstlane_b32 s30, v5")
    a("s_sub_u32 s31, s31, 1")
    a("s_cmp_eq_u32 s31, 0")
    a("s_cbranch_scc1 K3_pollx")
    a("s_cmp_ge_u32 s30, 8")
    a("s_cbranch_scc0 K3_poll")
    a("K3_pollx:")
    a("s_mov_b64 exec, s[42:43]")
    a("K3_wait:   ; LINT-RESET")
    a("s_barrier")
    stamp(a, 6)
    a("s_mul_i32 s57, s25, 43")
    a("s_add_u32 s57, s57, s58")
    a("s_lshl_b32 s57, s57, 12")
    a(f"s_add_u32 s57, s57, {HF}")
    a("s_mov_b32 s64, s22")
    late = list(drip); drip.clear()
    hl = []
    for j in range(11):
        for t in range(4):
            r = 32 + (j * 4 + t) * 4
            pre = "s_lshl_b32 s56, s64, 12\ns_add_u32 s56, s56, s57\n" if t == 0 else ""
            post = "\ns_add_u32 s64, s64, 1\ns_cmp_eq_u32 s64, 11\ns_cselect_b32 s64, 0, s64" if t == 3 else ""
            hl.append((("H", j), pre + f"buffer_load_dwordx4 v[{r}:{r+3}], v13, s[8:11], s56 offen offset:{1024*t}" + HLD + post))
    pos = 20
    lt_ = [(("L", 0), x) for x in late]
    hl = hl[:pos] + lt_ + hl[pos:]
    HD = int(OPT.get('hd', '16'))
    qseq = []
    def hissue():
        tag, x = hl.pop(0); a(x); qseq.append(tag)
    for _ in range(HD): hissue()
    for dt in range(4):
        a(f"ds_read_b64_tr_b16 v[{16+2*dt}:{17+2*dt}], v{26 if dt < 2 else 125} offset:{2048*(dt&1)}")
    for j in range(11):
        need = [i for i, t in enumerate(qseq) if t == ("H", j)]
        assert len(need) == 4
        last = max(need)
        if late and j >= 9: last = max(last, max(i for i, t in enumerate(qseq) if t == ("L", 0)))
        a(f"s_waitcnt vmcnt({len(qseq) - 1 - last})")
        q = 0
        for dt in range(4):
            for lt in range(4):
                d = 176 + (dt * 4 + lt) * 4
                ar = (j * 4 + dt) * 4
                br = 32 + (j * 4 + lt) * 4
                a(f"v_mfma_f32_16x16x32_bf16 a[{d}:{d+3}], a[{ar}:{ar+3}], v[{br}:{br+3}], a[{d}:{d+3}]")
                if q % 4 == 0 and hl: hissue()
                q += 1
    stamp(a, 7)
    a("v_mul_u32_u24 v5, 272, v6")
    a("v_lshl_add_u32 v5, v3, 4, v5")
    a(f"s_mul_i32 s30, s24, {P_W}")
    a(f"s_add_u32 s30, s30, {RED}")
    a("v_add_u32 v7, s30, v5")
    a("s_nop 4")
    for dt in range(4):
        for lt in range(4):
            d = 176 + (dt * 4 + lt) * 4
            a(f"ds_write_b128 v7, a[{d}:{d+3}] offset:{lt*16*272 + dt*64}")
    a(f"s_mul_i32 s30, s24, {16*272}")
    a(f"s_add_u32 s30, s30, {RED}")
    a("v_add_u32 v7, s30, v5")
    a("s_waitcnt lgkmcnt(0)")
    a("s_barrier")
    stamp(a, 8)
    for dt in range(4):
        for w in range(4):
            r = 32 + (dt * 4 + w) * 4
            a(f"ds_read_b128 v[{r}:{r+3}], v7 offset:{w*P_W + dt*64}")
    a.srd(40, 18, 2048 * 512 * 2)
    a("s_lshl_b32 s30, s25, 16")
    a("s_lshl_b32 s31, s24, 14")
    a("s_add_u32 s30, s30, s31")
    a("s_lshl_b32 s31, s26, 7")
    a("s_add_u32 s30, s30, s31")
    a("v_lshlrev_b32 v9, 10, v6")
    a("v_lshl_add_u32 v9, v3, 3, v9")
    a("v_add_u32 v9, s30, v9")
    for dt in range(4):
        a(f"s_waitcnt lgkmcnt({4*(3-dt)})")
        r = 32 + dt * 16
        for p in range(2):
            a(f"v_pk_add_f32 v[{r+2*p}:{r+2*p+1}], v[{r+2*p}:{r+2*p+1}], v[{r+4+2*p}:{r+5+2*p}]")
            a(f"v_pk_add_f32 v[{r+8+2*p}:{r+9+2*p}], v[{r+8+2*p}:{r+9+2*p}], v[{r+12+2*p}:{r+13+2*p}]")
        for p in range(2):
            a(f"v_pk_add_f32 v[{r+2*p}:{r+2*p+1}], v[{r+2*p}:{r+2*p+1}], v[{r+8+2*p}:{r+9+2*p}]")
        for q in range(2):
            a(f"v_lshlrev_b32 v{120+2*q}, 16, v{224+2*dt+q}")
            a(f"v_and_b32 v{121+2*q}, 0xffff0000, v{224+2*dt+q}")
            a(f"v_lshlrev_b32 v{124+2*q}, 16, v{16+2*dt+q}")
            a(f"v_and_b32 v{125+2*q}, 0xffff0000, v{16+2*dt+q}")
        for p in range(2):
            a(f"v_pk_add_f32 v[{r+2*p}:{r+2*p+1}], v[{r+2*p}:{r+2*p+1}], v[{120+2*p}:{121+2*p}]")
        for p in range(2):
            a(f"v_pk_fma_f32 v[{r+2*p}:{r+2*p+1}], v[{r+2*p}:{r+2*p+1}], v[{208+4*dt+2*p}:{209+4*dt+2*p}], v[{124+2*p}:{125+2*p}]")
        a(f"v_cvt_pk_bf16_f32 v{24+2*dt}, v{r}, v{r+1}")
        a(f"v_cvt_pk_bf16_f32 v{25+2*dt}, v{r+2}, v{r+3}")
        a(f"buffer_store_dwordx2 v[{24+2*dt}:{25+2*dt}], v9, s[40:43], 0 offen offset:{32*dt}")
    a("K3_END:   ; LINT-RESET")
    stamp_store(a, KID3, 14, 24)
    a("K3_EXIT:")
    a.end_kernel(name, 256 + 240, 100, accum=256)


W8_G2T = 65536
W8_SVT = W8_G2T + 2048
W8_STT = W8_SVT + 3072
W8_COF = W8_STT + 4096
W8_RED = W8_COF + 8192
W8_STG = W8_RED + 49152
W8_LDS = W8_RED + 4 * P_W
assert W8_STG + 20480 <= W8_LDS
RING = 32768

def k3w(a):
    name = "k3_kernel"
    a.begin_kernel(name, 256, 512, W8_LDS)
    a("s_cmp_ge_u32 s2, 256")
    a("s_cbranch_scc1 K3_EXIT")
    stamp(a, 0)
    a("s_load_dwordx2 s[14:15], s[0:1], 128")
    a("s_load_dwordx2 s[12:13], s[0:1], 72")
    a("s_load_dwordx2 s[16:17], s[0:1], 88")
    a("s_load_dwordx2 s[18:19], s[0:1], 112")
    wave_id(a, 24, 1)
    a("v_and_b32 v1, 63, v0")
    a("s_and_b32 s20, s24, 3")
    a("s_lshr_b32 s21, s24, 2")
    a("s_and_b32 s25, s2, 7")
    a("s_lshr_b32 s26, s2, 3")
    a("s_lshr_b32 s27, s26, 3")
    a("s_lshl_b32 s25, s25, 2")
    a("s_add_u32 s25, s25, s27")
    a("s_and_b32 s26, s26, 7")
    a("s_mul_i32 s27, s26, 11")
    a("s_min_u32 s27, s27, 76")
    a("s_cmp_lt_u32 s26, 6")
    a("s_cselect_b32 s28, 11, 10")
    a("s_mul_i32 s29, s20, 3")
    for i in range(3):
        a(f"s_add_u32 s30, s29, {i}")
        a("s_add_u32 s31, s30, s27")
        a("s_cmp_lt_u32 s30, s28")
        a(f"s_cselect_b32 s{32+i}, s31, 86")
    a("v_lshrrev_b32 v10, 3, v1")
    a("v_and_b32 v11, 6, v10")
    a("v_and_b32 v12, 7, v1")
    a("v_xor_b32 v11, v11, v12")
    a("v_lshlrev_b32 v11, 4, v11")
    a("v_lshl_add_u32 v11, v10, 7, v11")
    a("s_lshl_b32 s42, s24, 10")
    a("s_lshl_b32 s41, s25, 16")
    a("s_add_u32 s41, s41, s42")
    a(f"s_add_u32 s41, s41, {X2T}")
    a("v_lshlrev_b32 v2, 2, v0")
    a(f"v_add_u32 v4, {G2F}, v2")
    a("v_lshlrev_b32 v13, 4, v1")
    for i in range(3):
        a(f"s_lshl_b32 s30, s{32+i}, 10")
        a(f"v_add_u32 v{14+i}, s30, v13")
    a(f"s_mul_i32 s44, s21, {8*87*1024}")
    a(f"s_add_u32 s44, s44, {W1F}")
    a("s_waitcnt lgkmcnt(0)")
    wsfix(a, 14)
    a.srd(8, 14, WS_USED)
    a("global_load_dword v5, v4, s[14:15]")
    for j in range(8):
        a("s_mov_b32 m0, s42")
        a("s_add_u32 s42, s42, 8192")
        a(f"buffer_load_dwordx4 v11, s[8:11], s41 offen lds")
        a(f"s_add_u32 s41, s41, 8192")
    WR = 208
    DEEP = 3
    def wload(j):
        out = []
        for i in range(3):
            r = WR + (j % DEEP) * 12 + 4 * i
            out.append(f"buffer_load_dwordx4 v[{r}:{r+3}], v{14+i}, s[8:11], s44 offen")
        out.append(f"s_add_u32 s44, s44, {87*1024}")
        return out
    for j in range(2):
        for x in wload(j): a(x)
    a(f"s_mov_b32 s30, {SCAL}")
    a("s_load_dwordx4 s[36:39], s[14:15], s30")
    a(f"s_mov_b32 s31, {SCAL+16}")
    a("s_load_dword s40, s[14:15], s31")
    a("v_lshrrev_b32 v3, 4, v1")
    a("v_and_b32 v6, 15, v1")
    a("v_bfe_u32 v18, v1, 2, 2")
    a("v_lshl_add_u32 v18, v3, 2, v18")
    a("v_and_b32 v19, 6, v18")
    a("v_lshrrev_b32 v19, 1, v19")
    a("v_and_b32 v29, 3, v1")
    a("v_lshlrev_b32 v30, 7, v18")
    a("v_lshl_add_u32 v30, v29, 3, v30")
    a("s_lshl_b32 s45, s21, 15")
    a("s_lshl_b32 s46, s21, 1")
    a("s_add_u32 s46, s46, s20")
    for k in range(4):
        a(f"s_add_u32 s30, s46, {k}")
        a(f"s_and_b32 s{48+k}, s30, 3")
        a(f"v_xor_b32 v31, s{48+k}, v19")
        a(f"v_lshl_add_u32 v{20+k}, v31, 5, v30")
        a(f"v_add_u32 v{20+k}, s45, v{20+k}")
    a("v_xor_b32 v31, s20, v19")
    a("v_lshl_add_u32 v26, v31, 5, v30")
    a("s_lshl_b32 s30, s26, 13")
    a("s_lshl_b32 s31, s21, 12")
    a("s_add_u32 s30, s30, s31")
    a("v_add_u32 v26, s30, v26")
    a("s_lshl_b32 s30, s21, 10")
    a(f"s_add_u32 s30, s30, {W8_G2T}")
    a("v_lshl_add_u32 v24, v3, 4, s30")
    ACC = 160
    for r in range(ACC, ACC + 48): a(f"v_mov_b32 v{r}, 0")
    for r in range(96, 108): a(f"v_mov_b32 v{r}, 0")
    a("s_waitcnt vmcnt(14)")
    a(f"v_add_u32 v2, {W8_G2T}, v2")
    a("ds_write_b32 v2, v5")
    a("v_mov_b32 v7, s32")
    a("v_mov_b32 v8, s33")
    a("v_mov_b32 v9, s34")
    a("v_cmp_eq_u32 vcc, 1, v3")
    a("v_cmp_le_u32 s[52:53], 2, v3")
    a("s_nop 0")
    a("v_cndmask_b32 v7, v7, v8, vcc")
    a("v_cndmask_b32 v7, v7, v9, s[52:53]")
    a("v_min_u32 v7, 85, v7")
    a("v_lshl_add_u32 v7, v7, 4, v6")
    a("v_lshlrev_b32 v8, 2, v7")
    a(f"v_add_u32 v8, {SVP}, v8")
    a("v_lshlrev_b32 v9, 1, v7")
    a("s_mul_i32 s58, s20, 11")
    a("s_cmp_eq_u32 s20, 3")
    a("s_cselect_b32 s58, 32, s58")
    a("s_mul_i32 s59, s26, 43")
    a("s_add_u32 s59, s59, s58")
    a("s_lshl_b32 s59, s59, 12")
    a("s_lshl_b32 s30, s21, 11")
    a("s_add_u32 s59, s59, s30")
    a(f"s_add_u32 s59, s59, {W2F}")
    a.srd(60, 14, WS_USED)
    a("s_cmp_eq_u32 s20, 3")
    a("s_cselect_b32 s62, 0, s10")
    W2R = 108
    def w2reg(j, t):
        idx = 2 * j + t
        return 208 + 4 * idx if idx < 9 else 108 + 4 * (idx - 9)
    drip = []
    items = [(j, t) for j in range(11) for t in range(2)]
    s59off = {}
    late = [it for it in items if 2 * it[0] + it[1] < 9]
    early = [it for it in items if 2 * it[0] + it[1] >= 9]
    for (j, t) in early + late:
        srd = "s[60:63]" if j == 0 else "s[8:11]"
        r = w2reg(j, t)
        drip.append(f"s_add_u32 s57, s59, {4096*j}\nbuffer_load_dwordx4 v[{r}:{r+3}], v13, {srd}, s57 offen offset:{1024*t}")
    a("s_lshl_b32 s30, s26, 8")
    a("s_lshl_b32 s31, s21, 7")
    a("s_add_u32 s30, s30, s31")
    a(f"s_add_u32 s30, s30, {GBF}")
    a("v_lshl_add_u32 v27, v3, 4, s30")
    a("s_lshl_b32 s30, s26, 7")
    a("s_lshl_b32 s31, s21, 6")
    a("s_add_u32 s30, s30, s31")
    a("v_lshl_add_u32 v28, v3, 3, s30")
    gbl = [f"global_load_dwordx4 v[{244+4*t}:{247+4*t}], v27, s[14:15] offset:{64*t}" for t in range(2)]
    gbl += [f"global_load_dwordx2 v[{252+2*t}:{253+2*t}], v28, s[16:17] offset:{32*t}" for t in range(2)]
    a(f"s_waitcnt vmcnt(6) lgkmcnt(0)")
    stamp(a, 1)
    a("s_barrier")
    XF = [32, 48]
    GQ = [64, 72]
    def xreads(j):
        b = XF[j & 1]; g = GQ[j & 1]
        out = []
        for k in range(4):
            for hf in range(2):
                out.append(f"ds_read_b64_tr_b16 v[{b+4*k+2*hf}:{b+4*k+2*hf+1}], v{20+k} offset:{4096*j + 2048*hf}")
        out.append(f"ds_read_b128 v[{g}:{g+3}], v24 offset:{128*j}")
        out.append(f"ds_read_b128 v[{g+4}:{g+7}], v24 offset:{128*j+64}")
        return out
    for x in xreads(0): a(x)
    for x in wload(2): a(x)
    seq = [("W", j) for j in range(3) for _ in range(3)]
    def vmwait(tag):
        last = max(i for i, t in enumerate(seq) if t == tag)
        return len(seq) - 1 - last
    smalls = []
    for kq in range(4):
        for v in range(3):
            smalls.append(f"global_load_dword v{112+kq*3+v}, v8, s[14:15]")
            if not (kq == 3 and v == 2): smalls.append("v_add_u32 v8, 5504, v8")
    smalls.append("global_load_ushort v124, v9, s[12:13]")
    issued = 3
    for j in range(8):
        b = XF[j & 1]; g = GQ[j & 1]
        a(f"s_waitcnt vmcnt({vmwait(('W', j))}) lgkmcnt(0)")
        mf = []
        for i in range(3):
            r = WR + (j % DEEP) * 12 + 4 * i
            for k in range(4):
                d = ACC + (i * 4 + k) * 4
                mf.append(f"v_mfma_f32_16x16x32_bf16 v[{d}:{d+3}], v[{r}:{r+3}], v[{b+4*k}:{b+4*k+3}], v[{d}:{d+3}]")
        va = []
        if j + 1 < 8: va += xreads(j + 1)
        post = []
        if issued < 8:
            post = wload(issued); seq += [("W", issued)] * 3; issued += 1
        elif j == 6:
            post = smalls + gbl; seq += [("S", 0)] * 13 + [("G", 0)] * 4
        for q_ in range(4):
            va.append(f"v_lshlrev_b32 v{80+2*q_}, 16, v{b+q_}")
            va.append(f"v_and_b32 v{81+2*q_}, 0xffff0000, v{b+q_}")
        for q_ in range(8): va.append(f"v_mul_f32 v{80+q_}, v{80+q_}, v{80+q_}")
        for q_ in range(8):
            va.append(f"v_add_f32 v{96+(q_&3)}, v{96+(q_&3)}, v{80+q_}")
            va.append(f"v_fmac_f32 v{100+q_}, v{80+q_}, v{g+q_}")
        per = -(-len(va) // 12)
        vi = 0
        for m in mf:
            a(m)
            for _ in range(per):
                if vi < len(va): a(va[vi]); vi += 1
        for x in post: a(x)
    stamp(a, 2)
    def dr(n=1):
        for _ in range(n):
            if drip: a(drip.pop(0))
    a(f"s_mul_i32 s30, s24, 6144")
    a(f"s_add_u32 s30, s30, {W8_RED}")
    a("v_add_u32 v2, s30, v13")
    a("s_xor_b32 s31, s24, 4")
    a(f"s_mul_i32 s31, s31, 6144")
    a(f"s_add_u32 s31, s31, {W8_RED}")
    a("v_add_u32 v25, s31, v13")
    a("v_pk_add_f32 v[96:97], v[96:97], v[98:99]")
    a("v_add_f32 v96, v96, v97")
    a("v_pk_add_f32 v[100:101], v[100:101], v[102:103]")
    a("v_pk_add_f32 v[104:105], v[104:105], v[106:107]")
    a("v_pk_add_f32 v[100:101], v[100:101], v[104:105]")
    a("v_add_f32 v97, v100, v101")
    for i in range(3):
        for k in (2, 3):
            d = ACC + (i * 4 + k) * 4
            a(f"ds_write_b128 v2, v[{d}:{d+3}] offset:{(i*2 + k - 2)*1024}")
    a("v_mov_b32 v98, v96")
    a("v_mov_b32 v99, v97")
    a("s_nop 0")
    a("v_permlane16_swap_b32 v96, v98")
    a("v_permlane16_swap_b32 v97, v99")
    dr(1)
    a("v_add_f32 v96, v96, v98")
    a("v_add_f32 v97, v97, v99")
    a("v_mov_b32 v98, v96")
    a("v_mov_b32 v99, v97")
    a("s_nop 0")
    a("v_permlane32_swap_b32 v96, v98")
    a("v_permlane32_swap_b32 v97, v99")
    a("s_lshl_b32 s30, s48, 10")
    a("s_lshl_b32 s31, s21, 5")
    a("s_add_u32 s30, s30, s31")
    a(f"s_add_u32 s30, s30, {W8_STT}")
    a("v_add_f32 v96, v96, v98")
    a("v_add_f32 v97, v97, v99")
    a("v_lshl_add_u32 v2, v6, 6, s30")
    a("ds_write_b64 v2, v[96:97] offset:24")
    a("s_cmp_eq_u32 s20, 3")
    a("s_cbranch_scc0 K3_nolin")
    a("v_cmp_eq_u32 s[52:53], 0, v3")
    a("v_cmp_eq_u32 s[54:55], 1, v3")
    for k in range(4):
        a(f"s_lshl_b32 s30, s{48+k}, 10")
        a("s_lshl_b32 s31, s21, 5")
        a("s_add_u32 s30, s30, s31")
        a(f"s_add_u32 s30, s30, {W8_STT}")
        a(f"v_lshl_add_u32 v{64+k}, v6, 6, s30")
    a("s_mov_b64 exec, s[52:53]")
    for k in range(4):
        d = ACC + (8 + k) * 4
        a(f"ds_write_b128 v{64+k}, v[{d}:{d+3}]")
    a("s_mov_b64 exec, s[54:55]")
    for k in range(4):
        d = ACC + (8 + k) * 4
        a(f"ds_write_b64 v{64+k}, v[{d}:{d+1}] offset:16")
    a("s_mov_b64 exec, -1")
    a("K3_nolin:")
    a("s_cmp_eq_u32 s21, 0")
    a("s_cbranch_scc0 K3_nosv")
    a(f"s_waitcnt vmcnt({vmwait(('S', 0)) + 1})")
    for v in range(3):
        a(f"v_add_f32 v{112+v}, v{112+v}, v{115+v}")
        a(f"v_add_f32 v{118+v}, v{118+v}, v{121+v}")
        a(f"v_add_f32 v{112+v}, v{112+v}, v{118+v}")
    a("v_lshlrev_b32 v124, 16, v124")
    a("s_mul_i32 s30, s20, 768")
    a(f"s_add_u32 s30, s30, {W8_SVT}")
    a("v_lshlrev_b32 v2, 8, v3")
    a("v_lshl_add_u32 v2, v6, 2, v2")
    a("v_add_u32 v2, s30, v2")
    a("v_cmp_gt_u32 vcc, 48, v1")
    a("s_and_saveexec_b64 s[42:43], vcc")
    a("ds_write_b32 v2, v112")
    a("ds_write_b32 v2, v114 offset:64")
    a("ds_write_b32 v2, v113 offset:128")
    a("ds_write_b32 v2, v124 offset:192")
    a("s_mov_b64 exec, s[42:43]")
    a("K3_nosv:   ; LINT-RESET")
    a("s_waitcnt vmcnt(1) lgkmcnt(0)")
    a("s_barrier")
    for i in range(3):
        for k in range(2):
            r = 64 + (i * 2 + k) * 4
            a(f"ds_read_b128 v[{r}:{r+3}], v25 offset:{(i*2 + k)*1024}")
    a("v_lshlrev_b32 v2, 6, v1")
    a(f"v_add_u32 v2, {W8_STT}, v2")
    a("ds_read_b128 v[32:35], v2")
    a("ds_read_b128 v[36:39], v2 offset:16")
    a("ds_read_b128 v[40:43], v2 offset:32")
    a("ds_read_b128 v[44:47], v2 offset:48")
    dr(2)
    a("s_waitcnt lgkmcnt(4)")
    for i in range(3):
        for k in range(2):
            d = ACC + (i * 4 + k) * 4; r = 64 + (i * 2 + k) * 4
            a(f"v_pk_add_f32 v[{d}:{d+1}], v[{d}:{d+1}], v[{r}:{r+1}]")
            a(f"v_pk_add_f32 v[{d+2}:{d+3}], v[{d+2}:{d+3}], v[{r+2}:{r+3}]")
    a("s_waitcnt lgkmcnt(0)")
    for r in range(0, 8, 2): a(f"v_pk_add_f32 v[{32+r}:{33+r}], v[{32+r}:{33+r}], v[{40+r}:{41+r}]")
    dr(1)
    a("v_add_f32 v34, v34, v35")
    a("v_add_f32 v36, v36, v37")
    a("v_mul_f32 v32, 0x3b000000, v32")
    a("v_mul_f32 v38, 0x3b000000, v38")
    a("v_fma_f32 v38, -v32, v32, v38")
    a("v_max_f32 v38, 0, v38")
    a("v_cvt_pk_bf16_f32 v40, v32, v38")
    a("v_lshlrev_b32 v32, 16, v40")
    a("v_and_b32 v38, 0xffff0000, v40")
    a("v_add_f32 v38, 0x3727c5ac, v38")
    rbf(a, 38, 38)
    a("v_sqrt_f32 v38, v38")
    a("v_fma_f32 v33, -v32, s36, v33")
    rbf(a, 38, 38)
    a("v_rcp_f32 v38, v38")
    a("v_mul_f32 v40, v32, v32")
    a("v_add_f32 v41, v32, v32")
    a("v_fma_f32 v39, -v41, v34, v39")
    a("v_fma_f32 v39, v40, s37, v39")
    a("v_fma_f32 v36, -v32, s38, v36")
    a("v_fma_f32 v33, v33, v38, s39")
    a("v_add_f32 v36, v36, v36")
    a("v_fma_f32 v39, v39, v38, v36")
    a("v_mul_f32 v33, 0x3b000000, v33")
    dr(1)
    a("v_fma_f32 v39, v39, v38, s40")
    a("v_mul_f32 v39, 0x3b000000, v39")
    a("v_fma_f32 v39, -v33, v33, v39")
    a("v_max_f32 v39, 0, v39")
    a("v_cvt_pk_bf16_f32 v40, v33, v39")
    a("v_lshlrev_b32 v33, 16, v40")
    a("v_and_b32 v39, 0xffff0000, v40")
    a("v_add_f32 v39, 0x3727c5ac, v39")
    rbf(a, 39, 39)
    a("v_sqrt_f32 v39, v39")
    a("s_nop 0")
    rbf(a, 39, 39)
    a("v_rcp_f32 v47, v39")
    a("s_lshl_b32 s30, s24, 10")
    a(f"s_add_u32 s30, s30, {W8_COF}")
    a("v_mul_f32 v44, v47, v38")
    a("v_mul_f32 v46, -v47, v33")
    a("v_mul_f32 v45, -v44, v32")
    a("v_lshl_add_u32 v2, v1, 4, s30")
    a("ds_write_b128 v2, v[44:47]")
    a("s_waitcnt lgkmcnt(0)")
    for k in range(2):
        a(f"s_lshl_b32 s31, s{48+k}, 8")
        a("s_add_u32 s31, s31, s30")
        a(f"v_lshl_add_u32 v2, v6, 4, s31")
        a(f"ds_read_b128 v[{48+4*k}:{51+4*k}], v2")
    a("s_mul_i32 s30, s20, 768")
    a(f"s_add_u32 s30, s30, {W8_SVT}")
    a("v_lshl_add_u32 v25, v3, 4, s30")
    a("s_mov_b32 s54, 0xbdd2d3e2")
    a("s_mov_b32 s55, 0xc0135761")
    dr(2)
    stamp(a, 3)
    for i in range(3):
        a(f"s_cmp_eq_u32 s{32+i}, 86")
        a(f"s_cbranch_scc1 K3_skip{i}")
        for st in range(4):
            a(f"ds_read_b128 v[{64+4*st}:{67+4*st}], v25 offset:{256*i + 64*st}")
        a(f"s_add_u32 s30, s29, {i}")
        a("s_lshr_b32 s31, s30, 1")
        a("s_lshl_b32 s31, s31, 12")
        a("s_and_b32 s30, s30, 1")
        a("s_lshl_b32 s30, s30, 3")
        a("s_add_u32 s30, s30, s31")
        a(f"s_add_u32 s30, s30, {W8_STG}")
        a("s_waitcnt lgkmcnt(0)")
        A_ = ACC + i * 16
        for (src, co, sel) in ((64, 0, "op_sel:[0,1,0] op_sel_hi:[1,1,1]"), (68, 2, "op_sel_hi:[1,0,1]"), (72, 2, "op_sel:[0,1,0] op_sel_hi:[1,1,1]")):
            for k in range(2):
                c = 48 + 4 * k
                for p in range(2):
                    t = 80 + 4 * k + 2 * p
                    s2 = f"v[{76+2*p}:{77+2*p}]" if src == 64 else f"v[{t}:{t+1}]"
                    a(f"v_pk_fma_f32 v[{t}:{t+1}], v[{src+2*p}:{src+2*p+1}], v[{c+co}:{c+co+1}], {s2} {sel}")
            if i == 0: dr(1)
        for k in range(2):
            c = 48 + 4 * k
            for p in range(2):
                x = A_ + 4 * k + 2 * p; t = 80 + 4 * k + 2 * p
                a(f"v_pk_fma_f32 v[{x}:{x+1}], v[{x}:{x+1}], v[{c}:{c+1}], v[{t}:{t+1}] op_sel_hi:[1,0,1]")
        for j in range(4):
            x = A_ + 2 * j; t = 80 + 2 * j
            a(f"v_pk_mul_f32 v[{t}:{t+1}], v[{x}:{x+1}], v[{x}:{x+1}]")
        for j in range(4):
            t = 80 + 2 * j
            a(f"v_pk_fma_f32 v[{t}:{t+1}], v[{t}:{t+1}], s[54:55], s[54:55] op_sel:[0,0,1] op_sel_hi:[1,0,1]")
        for j in range(4):
            x = A_ + 2 * j; t = 80 + 2 * j
            a(f"v_pk_mul_f32 v[{t}:{t+1}], v[{t}:{t+1}], v[{x}:{x+1}]")
        if i == 0: dr(1)
        for j in range(8): a(f"v_exp_f32 v{80+j}, v{80+j}")
        for j in range(4):
            t = 80 + 2 * j
            a(f"v_pk_add_f32 v[{t}:{t+1}], v[{t}:{t+1}], 1.0 op_sel_hi:[1,0]")
        for j in range(8): a(f"v_rcp_f32 v{80+j}, v{80+j}")
        if i == 0: dr(1)
        for j in range(4):
            x = A_ + 2 * j; t = 80 + 2 * j
            a(f"v_pk_mul_f32 v[{x}:{x+1}], v[{x}:{x+1}], v[{t}:{t+1}]")
        for k in range(2):
            a(f"v_cvt_pk_bf16_f32 v{88+2*k}, v{A_+4*k}, v{A_+4*k+1}")
            a(f"v_cvt_pk_bf16_f32 v{89+2*k}, v{A_+4*k+2}, v{A_+4*k+3}")
        if i == 1:
            a("s_cmp_eq_u32 s29, 9")
            a("s_cbranch_scc0 K3_paired1")
            a("s_lshr_b32 s31, s26, 1")
            a("s_add_u32 s31, s31, 40")
            a("s_mul_i32 s43, s25, 43")
            a("s_add_u32 s31, s31, s43")
            a("s_lshl_b32 s31, s31, 12")
            a("s_and_b32 s43, s26, 1")
            a("s_lshl_b32 s43, s43, 3")
            a("s_add_u32 s31, s31, s43")
            a(f"s_add_u32 s31, s31, {HF}")
            for k in range(2):
                a(f"s_lshl_b32 s43, s{48+k}, 10")
                a("s_add_u32 s43, s43, s31")
                a(f"buffer_store_dwordx2 v[{88+2*k}:{89+2*k}], v13, s[8:11], s43 offen sc1")
            a("s_branch K3_skip1")
            a("K3_paired1:")
        for k in range(2):
            a(f"s_lshl_b32 s31, s{48+k}, 10")
            a("s_add_u32 s31, s31, s30")
            a(f"v_add_u32 v2, s31, v13")
            a(f"ds_write_b64 v2, v[{88+2*k}:{89+2*k}]")
        a(f"K3_skip{i}:   ; LINT-RESET")
        dr(2)
    dr(99)
    for t in range(2):
        a(f"ds_read_b64_tr_b16 v[{16+2*t}:{17+2*t}], v26 offset:{2048*t}")
    a("s_waitcnt lgkmcnt(0)")
    a("s_barrier")
    stamp(a, 4)
    a("s_lshl_b32 s30, s24, 10")
    a("v_add_u32 v2, s30, v13")
    a(f"v_add_u32 v2, {W8_STG}, v2")
    a("ds_read_b128 v[32:35], v2")
    a("ds_read_b128 v[36:39], v2 offset:8192")
    a("s_mul_i32 s31, s25, 43")
    a("s_mul_i32 s43, s26, 5")
    a("s_add_u32 s31, s31, s43")
    a("s_lshl_b32 s31, s31, 12")
    a("s_add_u32 s31, s31, s30")
    a(f"s_add_u32 s31, s31, {HF}")
    a("s_waitcnt lgkmcnt(1)")
    a("buffer_store_dwordx4 v[32:35], v13, s[8:11], s31 offen sc1")
    a("s_add_u32 s31, s31, 8192")
    a("s_waitcnt lgkmcnt(0)")
    a("buffer_store_dwordx4 v[36:39], v13, s[8:11], s31 offen sc1")
    a("s_cmp_lt_u32 s24, 4")
    a("s_cbranch_scc0 K3_no3rd")
    a("ds_read_b128 v[40:43], v2 offset:16384")
    a("s_add_u32 s31, s31, 8192")
    a("s_waitcnt lgkmcnt(0)")
    a("buffer_store_dwordx4 v[40:43], v13, s[8:11], s31 offen sc1")
    a("K3_no3rd:   ; LINT-RESET")
    ACB = 176
    for r in range(ACB, ACB + 32): a(f"v_mov_b32 v{r}, 0")
    a("s_waitcnt vmcnt(0)")
    stamp(a, 5)
    a("s_barrier")
    a("s_cmp_lg_u32 s24, 0")
    a("s_cbranch_scc1 K3_wait")
    a("s_lshl_b32 s30, s25, 7")
    a(f"s_add_u32 s30, s30, {FLAGS}")
    a("v_mov_b32 v2, s30")
    a("v_mov_b32 v4, 1")
    a("s_mov_b64 exec, 1")
    a("global_atomic_add v4, v2, v4, s[14:15] sc0 sc1")
    a("s_waitcnt vmcnt(0)")
    a("v_readfirstlane_b32 s30, v4")
    a("s_cmp_eq_u32 s30, 7")
    a("s_cbranch_scc1 K3_pollx")
    a("s_mov_b32 s31, 0x100000")
    a("K3_poll:")
    a("global_load_dword v5, v2, s[14:15] sc1")
    a("s_waitcnt vmcnt(0)")
    a("v_readfirstlane_b32 s30, v5")
    a("s_sub_u32 s31, s31, 1")
    a("s_cmp_eq_u32 s31, 0")
    a("s_cbranch_scc1 K3_pollx")
    a("s_cmp_ge_u32 s30, 8")
    a("s_cbranch_scc0 K3_poll")
    a("K3_pollx:")
    a("s_mov_b64 exec, -1")
    a("K3_wait:   ; LINT-RESET")
    a("s_barrier")
    stamp(a, 6)
    SLOT = 16384; NS = 6
    a("s_mul_i32 s57, s25, 43")
    a("s_add_u32 s57, s57, s58")
    a("s_lshl_b32 s57, s57, 12")
    a("s_lshl_b32 s30, s21, 11")
    a("s_add_u32 s57, s57, s30")
    a(f"s_add_u32 s57, s57, {HF}")
    a("s_lshl_b32 s56, s20, 12")
    a("s_add_u32 s56, s56, s30")
    a("s_lshl_b32 s30, s20, 12")
    a("v_add_u32 v4, s30, v13")
    a(f"v_add_u32 v8, {4*SLOT}, v4")
    def hdma(j):
        return [f"s_add_u32 m0, s56, {(j % NS) * SLOT}\ns_add_u32 s43, s57, {4096 * j}\nbuffer_load_dwordx4 v13, s[8:11], s43 offen offset:{1024*t} lds" for t in range(2)]
    def hread(j):
        sl = j % NS
        base, off = ("v4", sl * SLOT) if sl < 4 else ("v8", (sl - 4) * SLOT)
        return [f"ds_read_b128 v[{HB[j & 1] + 4*lt}:{HB[j & 1] + 4*lt + 3}], {base} offset:{off + lt * 1024}" for lt in range(4)]
    HB = [32, 48]
    AHEAD = 5
    hq = []
    for j in range(AHEAD):
        for x in hdma(j): a(x); hq.append(j)
    a(f"s_waitcnt vmcnt({sum(1 for t in hq if t > 0)})")
    a("s_barrier")
    for x in hread(0): a(x)
    for j in range(11):
        if j + 1 <= 10:
            a(f"s_waitcnt vmcnt({sum(1 for t in hq if t > j + 1)}) lgkmcnt(0)")
            a("s_barrier")
            rd = hread(j + 1)
        else:
            a("s_waitcnt lgkmcnt(0)")
            rd = []
        nxt = hdma(j + AHEAD) if j + AHEAD <= 10 else []
        hq += [j + AHEAD] * len(nxt)
        extra = rd + nxt
        ei = 0
        for t in range(2):
            for lt in range(4):
                d = ACB + (t * 4 + lt) * 4
                ar = w2reg(j, t); br = HB[j & 1] + 4 * lt
                a(f"v_mfma_f32_16x16x32_bf16 v[{d}:{d+3}], v[{ar}:{ar+3}], v[{br}:{br+3}], v[{d}:{d+3}]")
                if ei < len(extra): a(extra[ei]); ei += 1
    stamp(a, 7)
    a("v_mul_u32_u24 v5, 272, v6")
    a("v_lshl_add_u32 v5, v3, 4, v5")
    a(f"s_mul_i32 s30, s20, {P_W}")
    a("s_lshl_b32 s31, s21, 7")
    a("s_add_u32 s30, s30, s31")
    a(f"s_add_u32 s30, s30, {W8_RED}")
    a("v_add_u32 v7, s30, v5")
    a("s_barrier")
    a("s_nop 4")
    for t in range(2):
        for lt in range(4):
            d = ACB + (t * 4 + lt) * 4
            a(f"ds_write_b128 v7, v[{d}:{d+3}] offset:{lt*16*272 + t*64}")
    a(f"s_mul_i32 s30, s20, {16*272}")
    a("s_lshl_b32 s31, s21, 7")
    a("s_add_u32 s30, s30, s31")
    a(f"s_add_u32 s30, s30, {W8_RED}")
    a("v_add_u32 v7, s30, v5")
    a("s_waitcnt lgkmcnt(0)")
    a("s_barrier")
    stamp(a, 8)
    for t in range(2):
        for w in range(4):
            r = 32 + (t * 4 + w) * 4
            a(f"ds_read_b128 v[{r}:{r+3}], v7 offset:{w*P_W + t*64}")
    a.srd(40, 18, 2048 * 512 * 2)
    a("s_lshl_b32 s30, s25, 16")
    a("s_lshl_b32 s31, s20, 14")
    a("s_add_u32 s30, s30, s31")
    a("s_lshl_b32 s31, s26, 7")
    a("s_add_u32 s30, s30, s31")
    a("s_lshl_b32 s31, s21, 6")
    a("s_add_u32 s30, s30, s31")
    a("v_lshlrev_b32 v9, 10, v6")
    a("v_lshl_add_u32 v9, v3, 3, v9")
    a("v_add_u32 v9, s30, v9")
    for t in range(2):
        a(f"s_waitcnt lgkmcnt({4*(1-t)})")
        r = 32 + t * 16
        for p in range(2):
            a(f"v_pk_add_f32 v[{r+2*p}:{r+2*p+1}], v[{r+2*p}:{r+2*p+1}], v[{r+4+2*p}:{r+5+2*p}]")
            a(f"v_pk_add_f32 v[{r+8+2*p}:{r+9+2*p}], v[{r+8+2*p}:{r+9+2*p}], v[{r+12+2*p}:{r+13+2*p}]")
        for p in range(2):
            a(f"v_pk_add_f32 v[{r+2*p}:{r+2*p+1}], v[{r+2*p}:{r+2*p+1}], v[{r+8+2*p}:{r+9+2*p}]")
        for q_ in range(2):
            a(f"v_lshlrev_b32 v{96+2*q_}, 16, v{252+2*t+q_}")
            a(f"v_and_b32 v{97+2*q_}, 0xffff0000, v{252+2*t+q_}")
            a(f"v_lshlrev_b32 v{100+2*q_}, 16, v{16+2*t+q_}")
            a(f"v_and_b32 v{101+2*q_}, 0xffff0000, v{16+2*t+q_}")
        for p in range(2):
            a(f"v_pk_add_f32 v[{r+2*p}:{r+2*p+1}], v[{r+2*p}:{r+2*p+1}], v[{96+2*p}:{97+2*p}]")
        for p in range(2):
            a(f"v_pk_fma_f32 v[{r+2*p}:{r+2*p+1}], v[{r+2*p}:{r+2*p+1}], v[{244+4*t+2*p}:{245+4*t+2*p}], v[{100+2*p}:{101+2*p}]")
        a(f"v_cvt_pk_bf16_f32 v{24+2*t}, v{r}, v{r+1}")
        a(f"v_cvt_pk_bf16_f32 v{25+2*t}, v{r+2}, v{r+3}")
        a(f"buffer_store_dwordx2 v[{24+2*t}:{25+2*t}], v9, s[40:43], 0 offen offset:{32*t}")
    a("K3_END:   ; LINT-RESET")
    stamp_store(a, KID3, 14, 24)
    a("K3_EXIT:")
    a.end_kernel(name, 256, 100, accum=256)

def triv(a, i):
    name = f"t{i}_kernel"
    a.begin_kernel(name, 256, 256, 0)
    a.end_kernel(name, 8, 16)
def build(kernels):
    global LASTLABEL, KID3, FUSED
    FUSED = kernels[0].__name__ == "k12"
    KID3 = len(kernels) - 1
    LASTLABEL = {"k1": "K1_EXIT", "k2": "K2_EXIT", "k12": "K2_EXIT", "k3": "K3_EXIT", "k3w": "K3_EXIT"}[kernels[-1].__name__]
    a = Asm()
    for i in range(int(OPT.get("pre_triv", "0"))): triv(a, 10 + i)
    for k in kernels: k(a)
    for i in range(int(OPT.get("extra", "0"))): triv(a, i)
    return a.text().replace("None\n", "")

ALL = {}
if __name__ == "__main__":
    out = sys.argv[1] if len(sys.argv) > 1 else "cur.s"
    names = sys.argv[2].split(",") if len(sys.argv) > 2 else ["k1"]
    if len(sys.argv) > 3 and sys.argv[3] == "prof": PROF = True
    open(out, "w").write(build([globals()[n] for n in names]))
```

```python
import sys
sys.path.insert(0, "dev")
from asmgen import *

import os
OPT = dict(kv.split("=") for kv in os.environ.get("GENOPT", "").split(",") if kv)
WSOFF = int(OPT.get("wsoff", "0"), 0)
SC1 = " sc1" if OPT.get("sc1", "1") == "1" else ""
HLD = " sc1" if OPT.get("hsc1", "1") == "1" else ""
WLD = " sc1" if OPT.get("wsc1", "0") == "1" else ""
XLD = " sc1" if OPT.get("xsc1", "0") == "1" else ""
STL = " sc1" if OPT.get("stsc1", "1") == "1" else ""
NT1 = " nt" if OPT.get("nt1", "1") == "1" else ""
def wsfix(a, r):
    if WSOFF:
        a(f"s_add_u32 s{r}, s{r}, {WSOFF}")
        a(f"s_addc_u32 s{r+1}, s{r+1}, 0")
XT    = 0x0000000
X2T   = 0x0200000
KREV  = 0x0400000
KW    = 4160
STAT1 = 0x0620000
MODF  = 0x0630000
SCAL  = 0x0634000
SVP   = 0x0640000
MODP  = 0x0660000
G2F   = 0x0634400
GBF   = 0x0634C00
W1F   = 0x0700000
W2F   = 0x0900000
HF    = 0x0B00000
WS_USED = 0x1100000

STAMP = 0x1100000
PROF = False
def stamp(a, i):
    if PROF:
        if OPT.get("cyc", "0") == "1": a(f"s_memtime s[{70+2*i}:{71+2*i}]")
        else: a(f"s_memrealtime s[{70+2*i}:{71+2*i}]")
        a("s_waitcnt lgkmcnt(0)")
def stamp_store(a, kid, wsreg, swave):
    if not PROF: return
    a("s_mov_b64 exec, -1")
    tm = "s_memtime" if OPT.get("cyc", "0") == "1" else "s_memrealtime"
    a(f"{tm} s[90:91]")
    a("s_waitcnt lgkmcnt(0) vmcnt(0)")
    a(f"{tm} s[92:93]")
    a("s_waitcnt lgkmcnt(0)")
    a(f"s_lshl_b32 s94, s2, 3")
    a(f"s_add_u32 s94, s94, s{swave}")
    a(f"s_lshl_b32 s94, s94, 6")
    a(f"s_add_u32 s94, s94, {STAMP + kid * 0x80000}")
    a("v_mov_b32 v0, s94")
    for i in range(12):
        a(f"v_mov_b32 v{2+i}, s{70+2*i}")
    a("s_mov_b64 exec, 1")
    a(f"global_store_dwordx4 v0, v[2:5], s[{wsreg}:{wsreg+1}]")
    a(f"global_store_dwordx4 v0, v[6:9], s[{wsreg}:{wsreg+1}] offset:16")
    a(f"global_store_dwordx4 v0, v[10:13], s[{wsreg}:{wsreg+1}] offset:32")

LOG2E = "0x3fb8aa3b"
INV2PI = "0.15915494"

def wave_id(a, s, vt):
    a(f"v_lshrrev_b32 v{vt}, 6, v0")
    a("s_nop 0")
    a(f"v_readfirstlane_b32 s{s}, v{vt}")

def rbf(a, vd, vs):
    a(f"v_cvt_pk_bf16_f32 v{vd}, v{vs}, v{vs}")
    a(f"v_and_b32 v{vd}, 0xffff0000, v{vd}")

def csq(a, dst, src, tmp):
    return [
        f"v_pk_mul_f32 v[{tmp}:{tmp+1}], v[{src}:{src+1}], v[{src}:{src+1}] op_sel:[0,0] op_sel_hi:[1,0]",
        f"v_pk_fma_f32 v[{dst}:{dst+1}], v[{src}:{src+1}], v[{src}:{src+1}], v[{tmp}:{tmp+1}] op_sel:[1,1,0] op_sel_hi:[0,1,1] neg_lo:[1,0,0]",
    ]

def cmulconj(a, dst, p, c, tmp):
    return [
        f"v_pk_mul_f32 v[{tmp}:{tmp+1}], v[{p}:{p+1}], v[{c}:{c+1}] op_sel:[0,0] op_sel_hi:[1,0] neg_hi:[0,1]",
        f"v_pk_fma_f32 v[{dst}:{dst+1}], v[{p}:{p+1}], v[{c}:{c+1}], v[{tmp}:{tmp+1}] op_sel:[1,1,0] op_sel_hi:[0,1,1] neg_lo:[1,0,0] neg_hi:[1,0,0]",
    ]

def code_prefetch(a, start, end, n, tag, vtmp, dst0):
    a(f"s_getpc_b64 s[66:67]")
    a(f"CPF_{tag}:")
    a(f"s_sub_u32 s66, s66, CPF_{tag}-{start}")
    a(f"s_subb_u32 s67, s67, 0")
    a(f"v_lshlrev_b32 v{vtmp}, 7, v1")
    a("s_mov_b64 s[68:69], exec")
    for i in range(n):
        a(f"v_cmp_gt_u32 vcc, {end}-{start}, v{vtmp}")
        a("s_and_b64 exec, s[68:69], vcc")
        a(f"s_cbranch_execz CPF_{tag}_done")
        a(f"global_load_dword v{dst0+i}, v{vtmp}, s[66:67]")
        a(f"v_add_u32 v{vtmp}, 8192, v{vtmp}")
    a(f"CPF_{tag}_done:")
    a("s_mov_b64 exec, s[68:69]")

def k1(a):
    name = "k1_kernel"
    a.begin_kernel(name, 512, 256, 23552)
    a("s_cmp_ge_u32 s2, 512")
    a("s_cbranch_scc1 K1_EXIT")
    stamp(a, 0)
    a("s_load_dwordx8 s[4:11], s[0:1], 8")
    a("s_load_dwordx2 s[12:13], s[0:1], 40")
    a("s_load_dwordx2 s[14:15], s[0:1], 128")
    a("s_load_dwordx2 s[16:17], s[0:1], 0")
    a("s_load_dwordx4 s[20:23], s[0:1], 96")
    wave_id(a, 24, 1)
    a("v_and_b32 v1, 63, v0")
    a("s_cmp_ge_u32 s2, 256")
    a("s_cbranch_scc1 K1_TSM")
    a("s_setprio 3")
    a("s_lshr_b32 s25, s24, 1")
    a("s_and_b32 s26, s24, 1")
    a("s_lshl_b32 s27, s2, 1")
    a("s_add_u32 s27, s27, s25")
    a("s_lshl_b32 s28, s27, 8")
    a("s_lshl_b32 s29, s26, 7")
    a("s_add_u32 s28, s28, s29")
    a("v_lshl_add_u32 v2, v1, 1, s28")
    a("s_lshl_b32 s30, s2, 2")
    a("s_waitcnt lgkmcnt(0)")
    wsfix(a, 14)
    a("global_load_ushort v4, v2, s[4:5] nt")
    a("global_load_ushort v5, v2, s[6:7] nt")
    a("global_load_ushort v6, v2, s[8:9] nt")
    a("global_load_ushort v7, v2, s[10:11] nt")
    a("s_load_dword s29, s[12:13], s30")
    a("v_and_b32 v16, 15, v1")
    a("v_cmp_eq_u32 s[32:33], 15, v16")
    a("v_lshrrev_b32 v18, 4, v1")
    a("v_add_u32 v19, 1, v16")
    a("v_cvt_f32_u32 v19, v19")
    a("s_lshl_b32 s31, s24, 10")
    a("v_lshl_add_u32 v17, v18, 6, s31")
    a("v_lshl_add_u32 v20, v1, 4, s31")
    for r in range(112, 128):
        a(f"v_mov_b32 v{r}, 0")
    T16 = 4096 + 16384
    a("s_mul_i32 s39, s25, 1344")
    a(f"s_add_u32 s39, s39, {T16 + 8}")
    a("v_subrev_u32 v21, 7, v16")
    a("v_cmp_gt_u32 s[34:35], 8, v21")
    a("v_add_u32 v21, 1, v16")
    a("v_and_b32 v21, 15, v21")
    a("v_lshlrev_b32 v24, 5, v21")
    a("v_lshl_add_u32 v24, v18, 3, v24")
    a("s_lshl_b32 s40, s26, 9")
    a("s_add_u32 s40, s40, s39")
    a("v_add_u32 v24, s40, v24")
    a("s_cmp_eq_u32 s26, 0")
    a("s_cselect_b64 s[36:37], -1, s[34:35]")
    a("s_lshl_b32 s40, s24, 12")
    a("s_add_u32 s40, s40, 4096")
    a("v_lshl_add_u32 v22, v1, 4, s40")
    a("s_lshl_b32 s40, s25, 13")
    a("s_lshl_b32 s41, s26, 11")
    a("s_add_u32 s40, s40, s41")
    a("s_add_u32 s40, s40, 4096")
    a("v_lshl_add_u32 v23, v1, 4, s40")
    a("s_lshl_b32 s40, s26, 6")
    a("v_add_u32 v26, s40, v1")
    a("v_lshlrev_b32 v27, 3, v26")
    a("v_sub_u32 v27, 2047, v27")
    a("v_cvt_f32_u32 v28, v27")
    a("s_sub_u32 s41, s39, 34050")
    a("s_sub_u32 s42, s39, 2")
    GA = 140
    for rnd in range(2):
        if rnd == 1:
            a("v_add_f32 v28, 0xc4800000, v28")
            a("v_subrev_u32 v27, 1024, v27")
        for t in range(8):
            if t == 0: a(f"v_mov_b32 v48, v28")
            else: a(f"v_add_f32 v{48+t}, {-float(t)}, v28")
        for p in range(4):
            a(f"v_cvt_pk_bf16_f32 v{56+p}, v{48+2*p}, v{49+2*p}")
        for p in range(4):
            a(f"v_and_b32 v{48+2*p}, 0xffff, v{56+p}")
            a(f"v_lshrrev_b32 v{49+2*p}, 16, v{56+p}")
        o = GA + 8 * rnd
        for t in range(8):
            a(f"v_lshl_add_u32 v{o+t}, v{48+t}, 1, s41")
        if rnd == 1:
            a("v_cmp_le_u32 vcc, 112, v26")
            for t in range(8):
                a(f"v_subrev_u32 v{56+(t&3)}, {t}, v27")
                a(f"v_lshl_add_u32 v{56+(t&3)}, v{56+(t&3)}, 1, s42")
                a(f"v_cndmask_b32 v{o+t}, v{o+t}, v{56+(t&3)}, vcc")
    a(f"s_mul_i32 s40, s27, {KW}")
    a(f"s_add_u32 s40, s40, {KREV}")
    a("v_lshl_add_u32 v29, v26, 4, s40")
    a("v_add_u32 v30, 2048, v29")
    a("v_add_u32 v31, 4096, v29")
    a("s_waitcnt lgkmcnt(0)")
    a("s_lshl_b32 s43, s25, 4")
    a("s_lshr_b32 s29, s29, s43")
    a("s_lshl_b32 s29, s29, 16")
    a(f"v_mov_b32 v8, {LOG2E}")
    a("v_mul_f32 v9, s29, v8")
    a("v_exp_f32 v9, v9")
    a("s_nop 0")
    rbf(a, 9, 9)
    a("s_waitcnt vmcnt(0)")
    a("v_lshlrev_b32 v4, 16, v4")
    a("v_lshlrev_b32 v5, 16, v5")
    a("v_lshlrev_b32 v6, 16, v6")
    a("v_lshlrev_b32 v7, 16, v7")
    a("v_mul_f32 v4, v4, v8")
    a("v_exp_f32 v4, v4")
    a("v_mul_f32 v13, v5, v9")
    a("v_mul_f32 v14, v6, v9")
    rbf(a, 4, 4)
    a("v_mul_f32 v15, v7, v9")
    a("v_mul_f32 v12, v4, v9")
    a(f"v_mul_f32 v13, {INV2PI}, v13")
    a("v_add_f32 v14, v14, v14")
    a("v_add_f32 v15, v15, v15")
    a("v_mul_f32 v12, v12, v8")
    a("v_mov_b32 v10, v14")
    a("v_sub_f32 v12, 0, v12")
    a("ds_write_b128 v20, v[12:15]")
    for ctl in ("row_shr:1", "row_shr:2", "row_shr:4", "row_shr:8", "row_bcast:15 row_mask:0xa", "row_bcast:31 row_mask:0xc"):
        a("s_nop 1")
        a(f"v_add_f32_dpp v10, v10, v10 {ctl}")
    a("s_waitcnt lgkmcnt(0)")
    stamp(a, 1)
    R = [[32 + 4 * u for u in range(4)], [48 + 4 * u for u in range(4)]]
    PA = [64 + 2 * u for u in range(4)]
    PB = [72 + 2 * u for u in range(4)]
    TT = [80 + 2 * u for u in range(4)]
    QF = [88 + 4 * e for e in range(4)]
    GF = [104, 108]
    DD = [112 + 4 * e for e in range(4)]
    CPK = [128 + u for u in range(4)]
    MAG = [132 + 2 * u for u in range(4)]
    for u in range(4):
        a(f"ds_read_b128 v[{R[0][u]}:{R[0][u]+3}], v17 offset:{u*16}")
    for ks in range(4):
        Rc = R[ks & 1]
        if ks + 1 < 4:
            for u in range(4):
                a(f"ds_read_b128 v[{R[(ks+1)&1][u]}:{R[(ks+1)&1][u]+3}], v17 offset:{(ks+1)*256+u*16}")
            a("s_waitcnt lgkmcnt(4)")
        else:
            a("s_waitcnt lgkmcnt(0)")
        for u in range(4): a(f"v_mul_f32 v{TT[u]}, v{Rc[u]}, v19")
        for u in range(4): a(f"v_mul_f32 v{TT[u]+1}, v{Rc[u]+1}, v19")
        for u in range(4): a(f"v_exp_f32 v{MAG[u]}, v{TT[u]}")
        for u in range(4): a(f"v_fract_f32 v{TT[u]+1}, v{TT[u]+1}")
        for u in range(4): a(f"v_cvt_pk_bf16_f32 v{CPK[u]}, v{Rc[u]+2}, -v{Rc[u]+3}")
        for u in range(4): a(f"v_cos_f32 v{PB[u]}, v{TT[u]+1}")
        for u in range(4): a(f"v_sin_f32 v{PB[u]+1}, v{TT[u]+1}")
        a("s_nop 0")
        for u in range(4):
            a(f"v_pk_mul_f32 v[{PA[u]}:{PA[u]+1}], v[{PB[u]}:{PB[u]+1}], v[{MAG[u]}:{MAG[u]+1}] op_sel:[0,0] op_sel_hi:[1,0]")
        cur, oth = PA, PB
        for e in range(4):
            for u in range(4): a(f"v_cvt_pk_bf16_f32 v{QF[e]+u}, v{cur[u]}, v{cur[u]+1}")
            sq = [csq(a, oth[u], cur[u], TT[u]) for u in range(4)]
            for u in range(4): a(sq[u][0])
            for u in range(4): a(sq[u][1])
            cur, oth = oth, cur
        for e in range(4):
            g = GF[e & 1]
            cm = [cmulconj(a, oth[u], cur[u], Rc[u] + 2, TT[u]) for u in range(4)]
            for u in range(4): a(cm[u][0])
            for u in range(4): a(cm[u][1])
            for u in range(4): a(f"v_cvt_pk_bf16_f32 v{g+u}, v{oth[u]}, v{oth[u]+1}")
            if e == 0:
                for u in range(4): a(f"v_cndmask_b32 v{g+u}, v{g+u}, v{CPK[u]}, s[32:33]")
            if e < 3:
                sq = [csq(a, oth[u], cur[u], TT[u]) for u in range(4)]
                for u in range(4): a(sq[u][0])
                a(f"v_mfma_f32_16x16x32_bf16 v[{DD[e]}:{DD[e]+3}], v[{QF[e]}:{QF[e]+3}], v[{g}:{g+3}], v[{DD[e]}:{DD[e]+3}]")
                for u in range(4): a(sq[u][1])
                cur, oth = oth, cur
            else:
                a("s_nop 1")
                a(f"v_mfma_f32_16x16x32_bf16 v[{DD[e]}:{DD[e]+3}], v[{QF[e]}:{QF[e]+3}], v[{g}:{g+3}], v[{DD[e]}:{DD[e]+3}]")
    stamp(a, 2)
    a("v_readlane_b32 s44, v10, 63")
    a(f"s_lshl_b32 s45, s24, 2")
    a(f"s_add_u32 s45, s45, {T16 + 2*1344 + 16}")
    a("v_mov_b32 v11, s45")
    a("v_mov_b32 v10, s44")
    a("s_nop 1")
    for e in range(4):
        a(f"ds_write_b128 v22, v[{DD[e]}:{DD[e]+3}] offset:{e*1024}")
    a("ds_write_b32 v11, v10")
    a("s_waitcnt lgkmcnt(0)")
    a("s_barrier")
    a("ds_read_b128 v[32:35], v23")
    a("ds_read_b128 v[36:39], v23 offset:4096")
    a("ds_read_b128 v[40:43], v23 offset:1024")
    a("ds_read_b128 v[44:47], v23 offset:5120")
    a(f"s_lshl_b32 s45, s25, 3")
    a(f"s_add_u32 s45, s45, {T16 + 2*1344 + 16}")
    a("v_mov_b32 v11, s45")
    a("ds_read_b64 v[8:9], v11")
    a("s_waitcnt lgkmcnt(0)")
    for r in range(4): a(f"v_add_f32 v{32+r}, v{32+r}, v{36+r}")
    for r in range(4): a(f"v_add_f32 v{40+r}, v{40+r}, v{44+r}")
    a("v_add_f32 v8, v8, v9")
    a("v_cvt_pk_bf16_f32 v32, v32, v33")
    a("v_cvt_pk_bf16_f32 v33, v34, v35")
    a("v_cvt_pk_bf16_f32 v40, v40, v41")
    a("v_cvt_pk_bf16_f32 v41, v42, v43")
    a("v_cvt_pk_bf16_f32 v8, v8, v8")
    a("s_sub_u32 s45, s39, 2")
    a("v_mov_b32 v11, s45")
    a("s_mov_b64 s[42:43], exec")
    a("s_mov_b64 exec, s[36:37]")
    a("ds_write_b64 v24, v[32:33]")
    a("s_mov_b64 exec, s[34:35]")
    a("ds_write_b64 v24, v[40:41] offset:256")
    a("s_mov_b64 exec, s[42:43]")
    a("ds_write_b16 v11, v8")
    a("s_waitcnt lgkmcnt(0)")
    a("s_barrier")
    stamp(a, 3)
    for t in range(16):
        a(f"ds_read_u16 v{76+t}, v{GA+t}")
        if t == 7: a("v_mov_b32 v72, 0\nv_mov_b32 v73, 0\nv_mov_b32 v74, 0\nv_mov_b32 v75, 0")
    a("s_waitcnt lgkmcnt(8)")
    for p in range(4):
        a(f"v_lshl_or_b32 v{64+p}, v{77+2*p}, 16, v{76+2*p}")
    a("global_store_dwordx4 v29, v[64:67], s[14:15] sc1")
    a("s_waitcnt lgkmcnt(0)")
    for p in range(4):
        a(f"v_lshl_or_b32 v{68+p}, v{85+2*p}, 16, v{84+2*p}")
    a("global_store_dwordx4 v30, v[68:71], s[14:15] sc1")
    a("v_cmp_gt_u32 vcc, 4, v26")
    a("s_and_saveexec_b64 s[42:43], vcc")
    a("s_cbranch_execz K1_END")
    a("global_store_dwordx4 v31, v[72:75], s[14:15] sc1")
    a("s_branch K1_END")
    a("K1_TSM:   ; LINT-RESET")
    a("s_sub_u32 s25, s2, 256")
    a("s_and_b32 s28, s25, 7")
    a("s_lshr_b32 s29, s25, 3")
    a("s_lshr_b32 s26, s29, 3")
    a("s_lshl_b32 s27, s28, 2")
    a("s_add_u32 s26, s26, s27")
    a("s_and_b32 s27, s29, 7")
    a("s_lshl_b32 s30, s28, 8")
    a("s_lshl_b32 s31, s29, 3")
    a("s_add_u32 s30, s30, s31")
    a("s_lshl_b32 s28, s26, 16")
    a("s_lshl_b32 s29, s27, 7")
    a("s_add_u32 s28, s28, s29")
    a("v_lshrrev_b32 v2, 3, v0")
    a("v_and_b32 v3, 7, v0")
    a("v_lshlrev_b32 v4, 10, v2")
    a("v_lshl_add_u32 v4, v3, 4, v4")
    a("v_add_u32 v4, s28, v4")
    a("v_add_u32 v5, 0x8000, v4")
    a("s_lshl_b32 s31, s24, 1")
    a("s_add_u32 s30, s30, s31")
    a("s_lshl_b32 s31, s30, 10")
    a("v_lshl_add_u32 v6, v1, 4, s31")
    a("s_and_b32 s33, s25, 7")
    a("s_mul_i32 s33, s33, 24")
    a("s_lshr_b32 s34, s25, 3")
    a("s_add_u32 s33, s33, s34")
    a("v_lshrrev_b32 v7, 1, v0")
    a("v_and_b32 v24, 1, v0")
    a("v_mul_u32_u24 v25, 6144, v7")
    a("v_lshl_add_u32 v25, v24, 4, v25")
    a("s_lshl_b32 s35, s33, 5")
    a("v_add_u32 v25, s35, v25")
    a("v_add_u32 v26, 786432, v25")
    a("v_add_u32 v27, 786432, v26")
    a("v_add_u32 v28, 786432, v27")
    a("v_lshlrev_b32 v29, 1, v7")
    a("s_waitcnt lgkmcnt(0)")
    wsfix(a, 14)
    a("global_load_dwordx4 v[8:11], v4, s[16:17]" + NT1)
    a("global_load_dwordx4 v[12:15], v5, s[16:17]" + NT1)
    a("global_load_dwordx4 v[16:19], v6, s[16:17]" + NT1)
    a("global_load_dwordx4 v[20:23], v6, s[16:17] offset:1024" + NT1)
    a("s_cmp_ge_u32 s25, 192")
    a("s_cbranch_scc1 K1_nomodld")
    for k in range(4):
        a(f"global_load_ushort v{48+k}, v29, s[20:21] offset:{256*k}")
    for k, vo in enumerate((25, 26, 27, 28)):
        a(f"global_load_dwordx4 v[{32+4*k}:{35+4*k}], v{vo}, s[22:23]" + NT1)
    a("K1_nomodld:")
    if OPT.get("cpf", "1") == "1":
        a("s_sub_u32 s65, s25, 192")
        a("s_cmp_ge_u32 s65, 16")
        a("s_cbranch_scc1 K1_nocpf")
        a("s_cmp_lg_u32 s24, 3")
        a("s_cbranch_scc1 K1_nocpf")
        code_prefetch(a, "k1_kernel", LASTLABEL, 6, "k1", 70, 72)
        TS = int(OPT.get("tlb", "0"))
        if TS:
            a("s_load_dwordx2 s[50:51], s[0:1], 64")
            a("s_load_dwordx2 s[52:53], s[0:1], 80")
            a("s_load_dwordx2 s[54:55], s[0:1], 112")
            a("s_load_dwordx2 s[56:57], s[0:1], 72")
            a("s_load_dwordx2 s[58:59], s[0:1], 88")
            a("s_load_dwordx2 s[60:61], s[0:1], 48")
            a(f"v_mul_u32_u24 v71, {TS}, v1")
            a("s_waitcnt lgkmcnt(0)")
            k = 80
            for (sr, size) in ((14, WS_USED), (50, 512*1376*2), (52, 512*1376*2), (54, 2048*512*2)):
                n = -(-size // (64 * TS))
                for i in range(n):
                    a(f"v_add_u32 v70, {i * 64 * TS}, v71")
                    a(f"v_cmp_gt_u32 vcc, {size}, v70")
                    a("s_and_saveexec_b64 s[62:63], vcc")
                    a(f"global_load_dword v{k}, v70, s[{sr}:{sr+1}]")
                    a("s_mov_b64 exec, s[62:63]")
                    k = 80 + (k - 80 + 1) % 40
            a("v_mov_b32 v70, 0")
            for sr in (56, 58, 60):
                a(f"global_load_dword v{k}, v70, s[{sr}:{sr+1}]"); k += 1
        a("s_waitcnt vmcnt(0)")
        a("K1_nocpf:   ; LINT-RESET")
    a("v_mul_u32_u24 v30, 160, v2")
    a("v_lshl_add_u32 v30, v3, 4, v30")
    a("s_cmp_ge_u32 s25, 192")
    a("s_cbranch_scc1 K1_w0")
    a("s_waitcnt vmcnt(10)")
    a("s_branch K1_w1")
    a("K1_w0:")
    a("s_waitcnt vmcnt(2)")
    a("K1_w1:   ; LINT-RESET (T loads have landed; S/mod loads may be outstanding)")
    stamp(a, 1)
    a("ds_write_b128 v30, v[8:11]")
    a("ds_write_b128 v30, v[12:15] offset:5120")
    a("s_cmp_ge_u32 s25, 192")
    a("s_cbranch_scc1 K1_w2")
    a("s_waitcnt vmcnt(8)")
    a("s_branch K1_w3")
    a("K1_w2:")
    a("s_waitcnt vmcnt(0)")
    a("K1_w3:   ; LINT-RESET")
    a("v_mov_b32 v31, 0x3f803f80")
    a("v_mov_b32 v52, 0\nv_mov_b32 v53, 0\nv_mov_b32 v54, 0\nv_mov_b32 v55, 0")
    for k in range(4):
        a(f"v_dot2_f32_bf16 v52, v{16+k}, v31, v52")
        a(f"v_dot2_f32_bf16 v53, v{16+k}, v{16+k}, v53")
        a(f"v_dot2_f32_bf16 v54, v{20+k}, v31, v54")
        a(f"v_dot2_f32_bf16 v55, v{20+k}, v{20+k}, v55")
    a("s_nop 1")
    for ctl in ("row_shr:1", "row_shr:2", "row_shr:4", "row_shr:8", "row_bcast:15 row_mask:0xa", "row_bcast:31 row_mask:0xc"):
        for r in range(52, 56):
            a(f"v_add_f32_dpp v{r}, v{r}, v{r} {ctl}")
        a("s_nop 0") if False else None
    a("s_nop 1")
    for k, r in enumerate(range(52, 56)):
        a(f"v_readlane_b32 s{36+k}, v{r}, 63")
    a("s_nop 1")
    a("v_cmp_eq_u32 vcc, 0, v1")
    a("v_mov_b32 v56, s38")
    a("v_mov_b32 v57, s39")
    a("v_mov_b32 v58, s36")
    a("v_mov_b32 v59, s37")
    a("v_cndmask_b32 v56, v56, v58, vcc")
    a("v_cndmask_b32 v57, v57, v59, vcc")
    a("v_mul_f32 v56, 0x3b000000, v56")
    a("v_mul_f32 v57, 0x3b000000, v57")
    a("v_fma_f32 v57, -v56, v56, v57")
    a("v_max_f32 v57, 0, v57")
    rbf(a, 56, 56)
    rbf(a, 57, 57)
    a("v_add_f32 v57, 0x3727c5ac, v57")
    rbf(a, 57, 57)
    a("v_sqrt_f32 v57, v57")
    a("s_nop 0")
    rbf(a, 57, 57)
    a("v_rcp_f32 v58, v57")
    a("s_nop 0")
    a("v_mul_f32 v59, v56, v58")
    a("v_sub_f32 v59, 0, v59")
    a("s_lshl_b32 s31, s30, 2")
    a(f"s_add_u32 s31, s31, {STAT1}")
    a("v_lshl_add_u32 v60, v1, 2, s31")
    a("v_add_u32 v61, 8192, v60")
    a("v_cmp_gt_u32 vcc, 2, v1")
    a("s_and_saveexec_b64 s[42:43], vcc")
    a("global_store_dword v60, v58, s[14:15]" + SC1)
    a("global_store_dword v61, v59, s[14:15]" + SC1)
    a("s_mov_b64 exec, s[42:43]")
    a("s_cmp_ge_u32 s25, 192")
    a("s_cbranch_scc1 K1_nomodc")
    a("s_waitcnt vmcnt(2)")
    for k in range(4):
        a(f"v_lshlrev_b32 v{48+k}, 16, v{48+k}")
    for k in range(4):
        a(f"v_mul_f32 v{52+k}, 0xbfb8aa3b, v{48+k}")
    for k in range(4):
        a(f"v_exp_f32 v{52+k}, v{52+k}")
    a("s_nop 0")
    for k in range(4):
        a(f"v_add_f32 v{52+k}, 1.0, v{52+k}")
    for k in range(4):
        a(f"v_rcp_f32 v{56+k}, v{52+k}")
    a("s_nop 0")
    for k in range(4):
        a(f"v_mul_f32 v{60+k}, v{48+k}, v{56+k}")
    for k in range(4):
        a(f"v_fma_f32 v{48+k}, -v{60+k}, v{52+k}, v{48+k}")
    for k in range(4):
        a(f"v_fma_f32 v{48+k}, v{48+k}, v{56+k}, v{60+k}")
    for k in range(4):
        rbf(a, 48 + k, 48 + k)
    for k in range(4):
        for p in range(4):
            w = 32 + 4 * k + p
            a(f"v_lshlrev_b32 v62, 16, v{w}")
            a(f"v_and_b32 v63, 0xffff0000, v{w}")
            if k == 0:
                a(f"v_mul_f32 v{64+2*p}, v62, v48")
                a(f"v_mul_f32 v{65+2*p}, v63, v48")
            else:
                a(f"v_fmac_f32 v{64+2*p}, v62, v{48+k}")
                a(f"v_fmac_f32 v{65+2*p}, v63, v{48+k}")
    a("v_lshlrev_b32 v61, 5, v0")
    a("ds_write_b128 v61, v[64:67] offset:10240")
    a("ds_write_b128 v61, v[68:71] offset:10256")
    a("K1_nomodc:")
    stamp(a, 2)
    a("s_waitcnt lgkmcnt(0)")
    a("s_barrier")
    stamp(a, 3)
    a("v_lshrrev_b32 v2, 4, v1")
    a("v_bfe_u32 v3, v1, 2, 2")
    a("v_and_b32 v4, 3, v1")
    a("v_lshl_add_u32 v5, v2, 3, v3")
    a("v_mul_u32_u24 v5, 160, v5")
    a("v_lshl_add_u32 v5, v4, 3, v5")
    a("s_lshl_b32 s31, s24, 5")
    a("v_add_u32 v5, s31, v5")
    a("ds_read_b64_tr_b16 v[8:9], v5")
    a("ds_read_b64_tr_b16 v[10:11], v5 offset:640")
    a(f"ds_read_b64_tr_b16 v[12:13], v5 offset:{32*160}")
    a(f"ds_read_b64_tr_b16 v[14:15], v5 offset:{36*160}")
    a("v_and_b32 v6, 15, v1")
    a("v_lshlrev_b32 v6, 12, v6")
    a("v_lshl_add_u32 v6, v2, 4, v6")
    a("s_lshl_b32 s31, s27, 18")
    a("s_lshl_b32 s32, s24, 16")
    a("s_add_u32 s31, s31, s32")
    a("s_lshl_b32 s32, s26, 7")
    a("s_add_u32 s31, s31, s32")
    a(f"s_add_u32 s31, s31, {XT}") if XT else None
    a("v_add_u32 v6, s31, v6")
    a("s_waitcnt lgkmcnt(2)")
    a("global_store_dwordx4 v6, v[8:11], s[14:15]" + SC1)
    a("s_waitcnt lgkmcnt(0)")
    a("global_store_dwordx4 v6, v[12:15], s[14:15] offset:64" + SC1)
    a("s_cmp_ge_u32 s25, 192")
    a("s_cbranch_scc1 K1_END")
    a("s_cmp_lg_u32 s24, 0")
    a("s_cbranch_scc1 K1_END")
    a("v_and_b32 v2, 15, v1")
    a("v_lshrrev_b32 v3, 4, v1")
    a("v_lshlrev_b32 v4, 11, v3")
    a("v_lshl_add_u32 v4, v2, 2, v4")
    for i in range(32):
        a(f"ds_read_b32 v{16+i}, v4 offset:{10240+64*i}")
        if i == 14: a("s_waitcnt lgkmcnt(7)")
    a("s_waitcnt lgkmcnt(0)")
    for st in (16, 8, 4, 2, 1):
        for i in range(st):
            a(f"v_add_f32 v{16+i}, v{16+i}, v{16+st+i}")
    a("s_nop 0")
    a("v_mov_b32 v17, v16")
    a("s_nop 1")
    a("v_permlane16_swap_b32 v16, v17")
    a("s_nop 0")
    a("v_add_f32 v16, v16, v17")
    a("s_nop 0")
    a("v_mov_b32 v17, v16")
    a("s_nop 1")
    a("v_permlane32_swap_b32 v16, v17")
    a("s_nop 0")
    a("v_add_f32 v16, v16, v17")
    rbf(a, 16, 16)
    a("s_lshl_b32 s31, s33, 6")
    a(f"s_add_u32 s31, s31, {MODF}")
    a("v_lshl_add_u32 v5, v2, 2, s31")
    a("v_cmp_gt_u32 vcc, 16, v1")
    a("s_and_saveexec_b64 s[42:43], vcc")
    a("global_store_dword v5, v16, s[14:15]" + SC1)
    a("K1_END:   ; LINT-RESET")
    stamp_store(a, 0, 14, 24)
    a("K1_EXIT:")
    a.end_kernel(name, 160, 100)


KC_CH = 33280
CS    = 4160
UB    = 66560
CONV16 = OPT.get("conv16", "1") == "1"
USTR  = 96 if CONV16 else 80
U_CH  = 95 * USTR
SCR   = (UB + 2 * U_CH + 63) // 64 * 64
FLG   = SCR + 16384
SIDE  = FLG + 64
SIDE_SZ = 11520
K2_LDS = SIDE + 4 * SIDE_SZ
FLAGS_OFF = 0x0638000

def conv_main16(a, hb):
    SP = int(OPT.get('convsp', '23'))
    steps = list(range(0, SP)) if hb == 0 else list(range(SP, 64))
    tiles = lambda d: [cc for cc in range(4) if d <= 16 * cc + 15]
    D = 2 if hb == 0 else int(OPT.get("convd", "3"))
    SZ = 8 + 4 * max(len(tiles(d)) for d in steps)
    SET = [64 + SZ * i for i in range(D + 1)]
    assert SET[-1] + SZ <= 144
    def regs(k):
        d = steps[k]; b = SET[k % (D + 1)]
        return b, {cc: b + 8 + 4 * i for i, cc in enumerate(tiles(d))}
    def reads(k):
        d = steps[k]; b, B = regs(k)
        out = [f"ds_read_b128 v[{b+4*mt}:{b+4*mt+3}], v2 offset:{64*d + 32*mt}" for mt in range(2)]
        for cc in tiles(d):
            out.append(f"ds_read_b128 v[{B[cc]}:{B[cc]+3}], v3 offset:{(31 + 16*cc - d)*USTR}")
        return out
    n = len(steps)
    for k in range(D):
        for x in reads(k): a(x)
    for k in range(n):
        d = steps[k]; b, B = regs(k)
        nxt = reads(k + D) if k + D < n else []
        after = sum(len(reads(j)) for j in range(k + 1, min(k + D, n)))
        assert after <= 15
        a(f"s_waitcnt lgkmcnt({after})")
        mf = []
        for cc in tiles(d):
            for mt in range(2):
                acc = 32 + (cc * 2 + mt) * 4
                mf.append(f"v_mfma_f32_16x16x32_bf16 v[{acc}:{acc+3}], v[{b+4*mt}:{b+4*mt+3}], v[{B[cc]}:{B[cc]+3}], v[{acc}:{acc+3}]")
        ri = 0
        for i, m in enumerate(mf):
            a(m)
            take = -(-(len(nxt) - ri) // (len(mf) - i))
            for _ in range(take):
                a(nxt[ri]); ri += 1

def conv_path(a, hb, tag):
    if hb == 0: steps = [(d, True) for d in range(24)]
    else: steps = [(d, True) for d in range(24, 32)] + [(d, False) for d in range(32, 64)]
    ACC = [32, 48]
    SET = [64, 88, 112]
    def reads(k):
        d, both = steps[k]; b = SET[k % 3]
        out = []
        for hf in (0, 1):
            out.append(f"ds_read_b128 v[{b+4*hf}:{b+4*hf+3}], v2 offset:{64*d + 32*(1-hf)}")
        tiles = (0, 1) if both else (1,)
        for t in tiles:
            for hf in (0, 1):
                r = b + 8 + 8 * t + 4 * hf
                out.append(f"ds_read_b128 v[{r}:{r+3}], v3 offset:{(31 + 32*t - d)*80 + 32*hf}")
        return out
    n = len(steps) if not CONV16 else 0
    if CONV16: conv_main16(a, hb)
    for k in range(2 if not CONV16 else 0):
        for x in reads(k): a(x)
    for k in range(n):
        d, both = steps[k]; b = SET[k % 3]
        nxt = reads(k + 2) if k + 2 < n else []
        after = len(nxt) + (len(reads(k + 1)) if k + 1 < n else 0)
        mf = []
        tiles = (0, 1) if both else (1,)
        for hf in (0, 1):
            for t in tiles:
                r = b + 8 + 8 * t + 4 * hf
                mf.append(f"v_mfma_f32_32x32x16_bf16 v[{ACC[t]}:{ACC[t]+15}], v[{b+4*hf}:{b+4*hf+3}], v[{r}:{r+3}], v[{ACC[t]}:{ACC[t]+15}]")
        after = len(reads(k + 1)) if k + 1 < n else 0
        a(f"s_waitcnt lgkmcnt({after})")
        per = -(-len(nxt) // len(mf)) if nxt else 0
        ri = 0
        for m in mf:
            a(m)
            for _ in range(per):
                if ri < len(nxt): a(nxt[ri]); ri += 1
    stamp(a, 6)
    give, keep = (ACC[1], ACC[0]) if hb == 0 else (ACC[0], ACC[1])
    a("s_nop 7")
    a("s_nop 3")
    for i in range(4):
        a(f"ds_write_b128 v4, v[{give+4*i}:{give+4*i+3}] offset:{1024*i}")
    for i in range(4):
        a(f"ds_read_b64 v[{64+2*i}:{65+2*i}], v6 offset:{(16*USTR*(i >> 1) + 32*(i & 1)) if CONV16 else 16*i}")
    a("s_waitcnt lgkmcnt(0)")
    a("v_mov_b32 v72, 1")
    a("ds_write_b32 v7, v72")
    a("s_mov_b32 s63, 0x400000")
    a(f"K2_poll{tag}:")
    a("ds_read_b32 v73, v8")
    a("s_waitcnt lgkmcnt(0)")
    a("v_readfirstlane_b32 s40, v73")
    a("s_sub_u32 s63, s63, 1")
    a("s_cmp_eq_u32 s63, 0")
    a(f"s_cbranch_scc1 K2_pollx{tag}")
    a("s_cmp_eq_u32 s40, 1")
    a(f"s_cbranch_scc0 K2_poll{tag}")
    a(f"K2_pollx{tag}:")
    for i in range(4):
        a(f"ds_read_b128 v[{80+4*i}:{83+4*i}], v5 offset:{1024*i}")
    for i in range(4):
        for q in range(2):
            a(f"v_lshlrev_b32 v{96+4*i+2*q}, 16, v{64+2*i+q}")
            a(f"v_and_b32 v{97+4*i+2*q}, 0xffff0000, v{64+2*i+q}")
    a("s_waitcnt vmcnt(0)")
    for i in range(4):
        for q in range(2):
            a(f"v_lshlrev_b32 v{112+4*i+2*q}, 16, v{144+2*i+q}")
            a(f"v_and_b32 v{113+4*i+2*q}, 0xffff0000, v{144+2*i+q}")
    a("s_waitcnt lgkmcnt(0)")
    for j in range(8):
        a(f"v_pk_add_f32 v[{keep+2*j}:{keep+2*j+1}], v[{keep+2*j}:{keep+2*j+1}], v[{80+2*j}:{81+2*j}]")
    for j in range(8):
        a(f"v_pk_fma_f32 v[{keep+2*j}:{keep+2*j+1}], v[{96+2*j}:{97+2*j}], s[36:37], v[{keep+2*j}:{keep+2*j+1}] op_sel_hi:[1,0,1]")
    for j in range(8):
        a(f"v_pk_fma_f32 v[{keep+2*j}:{keep+2*j+1}], v[{keep+2*j}:{keep+2*j+1}], s[36:37], v[{112+2*j}:{113+2*j}] op_sel:[0,1,0] op_sel_hi:[1,1,1]")
    for j in range(8):
        a(f"v_cvt_pk_bf16_f32 v{64+j}, v{keep+2*j}, v{keep+2*j+1}")
    for i in range(4):
        a(f"ds_write_b64 v10, v[{64+2*i}:{65+2*i}] offset:{(1280*(i >> 1) + 32*(i & 1)) if CONV16 else 16*i}")
    a("s_waitcnt lgkmcnt(0)")
    a("ds_read_b128 v[72:75], v11")
    a("ds_read_b128 v[76:79], v11 offset:1280")
    a("s_waitcnt lgkmcnt(1)")
    a("global_store_dwordx4 v9, v[72:75], s[14:15]" + SC1)
    a("s_waitcnt lgkmcnt(0)")
    a("global_store_dwordx4 v12, v[76:79], s[14:15]" + SC1)
    a("s_branch K2_END")

def side_load_and_stage(a):
    for i in range(8):
        a(f"buffer_load_dwordx4 v[{32+4*i}:{35+4*i}], v10, s[44:47], s49 offen nt")
        if i < 7: a("s_add_u32 s49, s49, s48")

def k2(a):
    name = "k2_kernel"
    a.begin_kernel(name, 256, 512, K2_LDS)
    a("s_cmp_ge_u32 s2, 256")
    a("s_cbranch_scc1 K2_EXIT")
    stamp(a, 0)
    a("s_load_dwordx2 s[14:15], s[0:1], 128")
    a("s_load_dwordx2 s[12:13], s[0:1], 48")
    a("s_load_dwordx2 s[16:17], s[0:1], 64")
    a("s_load_dwordx2 s[18:19], s[0:1], 80")
    wave_id(a, 24, 1)
    a("v_and_b32 v1, 63, v0")
    a("s_cmp_ge_u32 s24, 4")
    a("s_cbranch_scc1 K2_SIDE")
    a("s_lshl_b32 s27, s2, 1")
    a("s_lshr_b32 s25, s24, 1")
    a("s_and_b32 s26, s24, 1")
    a("s_lshl_b32 s28, s27, 12")
    a(f"s_add_u32 s28, s28, {XT}") if XT else None
    a("v_lshl_add_u32 v44, v0, 4, s28")
    a("v_add_u32 v45, 4096, v44")
    a("v_lshlrev_b32 v46, 5, v0")
    a(f"v_add_u32 v46, {STAT1}, v46")
    a(f"v_add_u32 v47, 8192, v46")
    a(f"s_mul_i32 s29, s27, {KW}")
    a(f"s_add_u32 s29, s29, {KREV + 4080}")
    a("v_lshlrev_b32 v48, 4, v0")
    a("v_sub_u32 v48, s29, v48")
    a(f"v_add_u32 v49, {KW}, v48")
    a("v_and_b32 v50, 31, v1")
    a("v_lshrrev_b32 v51, 5, v1")
    a("s_lshl_b32 s30, s25, 12")
    a("s_add_u32 s30, s30, s28")
    a("s_lshl_b32 s31, s26, 11")
    a("s_add_u32 s30, s30, s31")
    a("v_lshlrev_b32 v52, 6, v50")
    a("v_lshl_add_u32 v52, v51, 3, v52")
    a("v_add_u32 v52, s30, v52")
    a("s_lshl_b32 s32, s27, 2")
    a(f"s_add_u32 s33, s32, {MODF}")
    a(f"s_add_u32 s34, s32, {MODF + 2048}")
    a(f"s_add_u32 s35, s32, {MODF + 4096}")
    a("s_lshl_b32 s31, s2, 2")
    a("s_waitcnt lgkmcnt(0)")
    wsfix(a, 14)
    a("global_load_dwordx4 v[28:31], v48, s[14:15]")
    a("global_load_dwordx4 v[32:35], v48, s[14:15] offset:16")
    a("global_load_dwordx4 v[36:39], v49, s[14:15]")
    a("global_load_dwordx4 v[40:43], v49, s[14:15] offset:16")
    a("global_load_dwordx4 v[4:7], v44, s[14:15]")
    a("global_load_dwordx4 v[8:11], v45, s[14:15]")
    a("global_load_dwordx4 v[12:15], v46, s[14:15]")
    a("global_load_dwordx4 v[16:19], v46, s[14:15] offset:16")
    a("global_load_dwordx4 v[20:23], v47, s[14:15]")
    a("global_load_dwordx4 v[24:27], v47, s[14:15] offset:16")
    for i in range(4):
        a(f"global_load_dwordx2 v[{144+2*i}:{145+2*i}], v52, s[14:15] offset:{16*i}")
    a("s_load_dwordx2 s[50:51], s[14:15], s33")
    a("s_load_dwordx2 s[52:53], s[14:15], s34")
    a("s_load_dwordx2 s[54:55], s[14:15], s35")
    a("s_load_dword s56, s[12:13], s31")
    a("v_mov_b32 v56, 0\nv_mov_b32 v57, 0\nv_mov_b32 v58, 0\nv_mov_b32 v59, 0")
    a("v_mul_u32_u24 v53, 171, v0")
    a("v_lshrrev_b32 v53, 9, v53")
    a("v_mul_u32_u24 v54, 3, v53")
    a("v_sub_u32 v54, v0, v54")
    a(f"v_mul_u32_u24 v53, {CS}, v53")
    a("v_lshl_add_u32 v53, v54, 4, v53")
    a("v_cmp_gt_u32 vcc, 48, v0")
    a("s_and_saveexec_b64 s[42:43], vcc")
    a("ds_write_b128 v53, v[56:59]")
    a("s_mov_b64 exec, s[42:43]")
    a("v_lshlrev_b32 v53, 4, v0")
    a(f"v_add_u32 v53, {UB}, v53")
    a("v_cmp_gt_u32 vcc, 155, v0")
    a("s_and_saveexec_b64 s[42:43], vcc")
    a(f"ds_write_b128 v53, v[56:59]")
    a(f"ds_write_b128 v53, v[56:59] offset:{U_CH}")
    a("s_mov_b64 exec, s[42:43]")
    a("v_lshlrev_b32 v53, 2, v0")
    a("v_cmp_gt_u32 vcc, 4, v0")
    a("s_and_saveexec_b64 s[42:43], vcc")
    a(f"v_add_u32 v53, {FLG}, v53")
    a("ds_write_b32 v53, v56")
    a("s_mov_b64 exec, s[42:43]")
    a("v_and_b32 v53, 7, v50")
    a("v_lshrrev_b32 v54, 3, v50")
    a(f"v_mul_u32_u24 v2, {CS}, v53")
    a("v_sub_u32 v54, v54, v51")
    a("v_add_u32 v54, 1, v54")
    a("v_lshl_add_u32 v2, v54, 4, v2")
    a(f"s_mul_i32 s38, s25, {KC_CH}")
    a("v_add_u32 v2, s38, v2")
    a("v_mul_u32_u24 v3, 80, v50")
    a("v_lshl_add_u32 v3, v51, 4, v3")
    a(f"s_mul_i32 s38, s25, {U_CH}")
    a(f"s_add_u32 s38, s38, {UB}")
    a("v_add_u32 v3, s38, v3")
    a("v_lshlrev_b32 v55, 4, v0")
    a("v_add_u32 v55, 48, v55")
    for c in range(2):
        W = 28 + 8 * c
        a(f"s_waitcnt vmcnt({12 - 2*c})")
        V = 60
        for j in range(7): a(f"v_alignbit_b32 v{V+j}, v{W+j+1}, v{W+j}, 16")
        for j in range(1, 7): a(f"v_alignbit_b32 v{68+j-1}, v{W+j+1}, v{W+j}, 16")
        for j in range(1, 7): a(f"v_mov_b32 v{76+j-1}, v{W+j}")
        off = c * KC_CH
        a(f"ds_write_b128 v55, v[{W}:{W+3}] offset:{off + 7*CS}")
        a(f"ds_write_b128 v55, v[{W+2}:{W+5}] offset:{off + 3*CS}")
        a(f"ds_write_b128 v55, v[{V}:{V+3}] offset:{off + 6*CS}")
        a(f"ds_write_b128 v55, v[{V+2}:{V+5}] offset:{off + 2*CS}")
        a(f"ds_write_b128 v55, v[68:71] offset:{off + 4*CS}")
        a(f"ds_write_b128 v55, v[70:73] offset:{off + 0*CS}")
        a(f"ds_write_b128 v55, v[76:79] offset:{off + 5*CS}")
        a(f"ds_write_b128 v55, v[78:81] offset:{off + 1*CS}")
    a("s_waitcnt vmcnt(4) lgkmcnt(0)")
    a("v_add_f32 v60, 1.0, s52")
    a("v_add_f32 v61, 1.0, s53")
    rbf(a, 60, 60); rbf(a, 61, 61)
    a("s_nop 0")
    a("v_readfirstlane_b32 s58, v60")
    a("v_readfirstlane_b32 s60, v61")
    a("s_mov_b32 s59, s50")
    a("s_mov_b32 s61, s51")
    a("s_lshl_b32 s38, s25, 4")
    a("s_lshr_b32 s36, s56, s38")
    a("s_lshl_b32 s36, s36, 16")
    a("s_cmp_eq_u32 s25, 0")
    a("s_cselect_b32 s37, s54, s55")
    a("v_lshrrev_b32 v62, 2, v0")
    a("v_mul_u32_u24 v62, 80, v62")
    a("v_and_b32 v63, 3, v0")
    a("v_lshl_add_u32 v62, v63, 4, v62")
    a(f"v_add_u32 v62, {UB + 31*80}, v62")
    for c in range(2):
        X = 4 + 4 * c
        for q in range(4):
            a(f"v_lshlrev_b32 v{64+2*q}, 16, v{X+q}")
            a(f"v_and_b32 v{65+2*q}, 0xffff0000, v{X+q}")
        for q in range(4):
            a(f"v_pk_fma_f32 v[{64+2*q}:{65+2*q}], v[{64+2*q}:{65+2*q}], v[{12+2*q}:{13+2*q}], v[{20+2*q}:{21+2*q}]")
        for q in range(4):
            a(f"v_pk_fma_f32 v[{64+2*q}:{65+2*q}], v[{64+2*q}:{65+2*q}], s[{58+2*c}:{59+2*c}], s[{58+2*c}:{59+2*c}] op_sel:[0,0,1] op_sel_hi:[1,0,1]")
        for q in range(4):
            a(f"v_cvt_pk_bf16_f32 v{72+4*c+q}, v{64+2*q}, v{65+2*q}")
        a(f"ds_write_b128 v62, v[{72+4*c}:{75+4*c}] offset:{c*U_CH}")
    a("s_lshl_b32 s38, s24, 12")
    a(f"s_add_u32 s38, s38, {SCR}")
    a("v_lshl_add_u32 v4, v1, 4, s38")
    a("s_xor_b32 s39, s24, 1")
    a("s_lshl_b32 s38, s39, 12")
    a(f"s_add_u32 s38, s38, {SCR}")
    a("v_lshl_add_u32 v5, v1, 4, s38")
    a("s_lshl_b32 s38, s24, 2")
    a(f"s_add_u32 s38, s38, {FLG}")
    a("v_mov_b32 v7, s38")
    a("s_lshl_b32 s38, s39, 2")
    a(f"s_add_u32 s38, s38, {FLG}")
    a("v_mov_b32 v8, s38")
    a("v_mul_u32_u24 v6, 80, v50")
    a("v_lshl_add_u32 v6, v51, 3, v6")
    a(f"s_mul_i32 s38, s25, {U_CH}")
    a(f"s_mul_i32 s39, s26, {32*80}")
    a("s_add_u32 s38, s38, s39")
    a(f"s_add_u32 s38, s38, {UB + 31*80}")
    a("v_add_u32 v6, s38, v6")
    a("s_add_u32 s38, s27, s25")
    a("s_lshl_b32 s38, s38, 7")
    a("s_lshl_b32 s39, s26, 20")
    a("s_add_u32 s38, s38, s39")
    a(f"s_add_u32 s38, s38, {X2T}")
    a("v_lshrrev_b32 v9, 3, v1")
    a("v_lshlrev_b32 v9, 16, v9")
    a("v_and_b32 v63, 7, v1")
    a("v_lshl_add_u32 v9, v63, 4, v9")
    a("v_add_u32 v9, s38, v9")
    a("v_add_u32 v12, 0x80000, v9")
    a(f"s_mul_i32 s38, s25, {KC_CH}")
    a("s_mul_i32 s39, s26, 2560")
    a("s_add_u32 s38, s38, s39")
    a("v_mul_u32_u24 v10, 80, v50")
    a("v_lshl_add_u32 v10, v51, 3, v10")
    a("v_add_u32 v10, s38, v10")
    a("v_lshrrev_b32 v11, 2, v1")
    a("v_mul_u32_u24 v11, 80, v11")
    a("v_and_b32 v63, 3, v1")
    a("v_lshl_add_u32 v11, v63, 4, v11")
    a("v_add_u32 v11, s38, v11")
    for r in range(32, 64): a(f"v_mov_b32 v{r}, 0")
    stamp(a, 1)
    a("s_waitcnt lgkmcnt(0)")
    a("s_barrier")
    stamp(a, 2)
    a("s_cmp_eq_u32 s26, 0")
    a("s_cbranch_scc0 K2_B")
    conv_path(a, 0, "A")
    a("K2_B:   ; LINT-RESET")
    conv_path(a, 1, "B")
    a("K2_SIDE:   ; LINT-RESET")
    a("s_sub_u32 s25, s24, 4")
    a("s_lshl_b32 s26, s25, 8")
    a("s_add_u32 s26, s26, s2")
    a(f"s_mul_i32 s27, s25, {SIDE_SZ}")
    a(f"s_add_u32 s27, s27, {SIDE}")
    a("s_cmp_gt_u32 s26, 348")
    a("s_cbranch_scc1 K2_SIDE_IDLE")
    a("s_cmp_eq_u32 s26, 348")
    a("s_cbranch_scc1 K2_TAB")
    a("v_lshrrev_b32 v2, 2, v1")
    a("v_and_b32 v3, 3, v1")
    a("v_lshrrev_b32 v4, 4, v1")
    a("v_bfe_u32 v5, v1, 2, 2")
    a("v_mul_u32_u24 v11, 80, v2")
    a("v_lshl_add_u32 v11, v3, 4, v11")
    a("v_add_u32 v11, s27, v11")
    a("v_lshl_add_u32 v12, v4, 2, v5")
    a("v_mul_u32_u24 v12, 80, v12")
    a("v_lshl_add_u32 v12, v3, 3, v12")
    a("v_add_u32 v12, s27, v12")
    a("s_cmp_ge_u32 s26, 172")
    a("s_cbranch_scc1 K2_W2")
    a("s_mul_i32 s28, s26, 1525")
    a("s_lshr_b32 s28, s28, 16")
    a("s_mul_i32 s29, s28, 43")
    a("s_sub_u32 s29, s26, s29")
    a("v_mul_u32_u24 v10, 2752, v2")
    a("v_lshl_add_u32 v10, v3, 4, v10")
    a(f"s_mul_i32 s49, s28, {128*2752}")
    a("s_lshl_b32 s30, s29, 6")
    a("s_add_u32 s49, s49, s30")
    a(f"s_mov_b32 s48, {16*2752}")
    a("s_lshl_b32 s31, s28, 9")
    a("v_lshl_add_u32 v13, v1, 2, s31")
    a(f"v_add_u32 v13, {MODF + 3*2048}, v13")
    a("v_add_u32 v14, 2048, v13")
    a("s_waitcnt lgkmcnt(0)")
    wsfix(a, 14)
    a.srd(44, 16, 512 * 1376 * 2)
    a("global_load_dword v20, v13, s[14:15]")
    a("global_load_dword v21, v13, s[14:15] offset:256")
    a("global_load_dword v22, v14, s[14:15]")
    a("global_load_dword v23, v14, s[14:15] offset:256")
    side_load_and_stage(a)
    a("s_barrier")
    a("s_waitcnt vmcnt(8)")
    a("v_add_f32 v22, 1.0, v22")
    a("v_add_f32 v23, 1.0, v23")
    rbf(a, 22, 22); rbf(a, 23, 23)
    a("v_lshl_add_u32 v15, v1, 2, s27")
    a("v_lshl_add_u32 v16, v1, 1, s27")
    a("ds_write_b32 v15, v22 offset:10240")
    a("ds_write_b32 v15, v23 offset:10496")
    a("ds_write_b16_d16_hi v16, v20 offset:10752")
    a("ds_write_b16_d16_hi v16, v21 offset:10880")
    for i in range(8):
        a(f"s_waitcnt vmcnt({7-i})")
        a(f"ds_write_b128 v11, v[{32+4*i}:{35+4*i}] offset:{16*80*i}")
    a("v_and_b32 v17, 15, v1")
    a("v_cmp_eq_u32 s[50:51], 0, v17")
    a("v_cmp_eq_u32 s[52:53], 1, v17")
    a("v_mov_b32 v18, 0")
    a("v_mov_b32 v19, 0x3f803f80")
    a("v_cndmask_b32 v18, v18, v19, s[50:51]")
    a("v_mov_b32 v19, 0")
    a("v_cndmask_b32 v19, v19, -1, s[52:53]")
    a("v_lshl_add_u32 v24, v4, 4, s27")
    a("v_lshl_add_u32 v25, v4, 3, s27")
    for r in range(96, 112): a(f"v_mov_b32 v{r}, 0")
    a("s_lshl_b32 s30, s29, 11")
    a(f"s_mul_i32 s31, s28, {4*87*1024}")
    a("s_add_u32 s30, s30, s31")
    a(f"s_add_u32 s30, s30, {W1F}")
    a("v_lshl_add_u32 v26, v1, 4, s30")
    a("s_waitcnt lgkmcnt(0)")
    for ks in range(4):
        a(f"ds_read_b128 v[32:35], v24 offset:{10240 + 128*ks}")
        a(f"ds_read_b128 v[36:39], v24 offset:{10240 + 128*ks + 64}")
        a(f"ds_read_b64 v[40:41], v25 offset:{10752 + 64*ks}")
        a(f"ds_read_b64 v[42:43], v25 offset:{10752 + 64*ks + 32}")
        for nt in range(2):
            for hf in range(2):
                a(f"ds_read_b64_tr_b16 v[{44+4*nt+2*hf}:{45+4*nt+2*hf}], v12 offset:{(32*ks+16*hf)*80 + 32*nt}")
        a("s_waitcnt lgkmcnt(4)")
        for q in range(4): a(f"v_and_or_b32 v{40+q}, v{40+q}, v19, v18")
        a("s_waitcnt lgkmcnt(0)")
        for nt in range(2):
            R = 44 + 4 * nt
            for q in range(4):
                a(f"v_lshlrev_b32 v{52+2*q}, 16, v{R+q}")
                a(f"v_and_b32 v{53+2*q}, 0xffff0000, v{R+q}")
            a(f"v_mfma_f32_16x16x32_bf16 v[{96+4*nt}:{99+4*nt}], v[{R}:{R+3}], v[40:43], v[{96+4*nt}:{99+4*nt}]")
            for q in range(4):
                a(f"v_pk_mul_f32 v[{52+2*q}:{53+2*q}], v[{52+2*q}:{53+2*q}], v[{32+2*q}:{33+2*q}]")
            S = 60 + 4 * nt
            for q in range(4):
                a(f"v_cvt_pk_bf16_f32 v{S+q}, v{52+2*q}, v{53+2*q}")
            a(f"global_store_dwordx4 v26, v[{S}:{S+3}], s[14:15] offset:{1024*nt}" + SC1)
            if nt == 1: a(f"v_add_u32 v26, {87*1024}, v26")
            a("s_nop 0")
            a(f"v_mfma_f32_16x16x32_bf16 v[{104+4*nt}:{107+4*nt}], v[{S}:{S+3}], v[40:43], v[{104+4*nt}:{107+4*nt}]")
    a(f"s_mul_i32 s30, s28, {3*5504}")
    a("s_lshl_b32 s31, s29, 7")
    a("s_add_u32 s30, s30, s31")
    a(f"s_add_u32 s30, s30, {SVP}")
    a("v_lshl_add_u32 v28, v4, 4, s30")
    a("v_add_u32 v29, 5504, v28")
    a("v_add_u32 v30, 5504, v29")
    a("s_nop 7")
    a("s_mov_b64 s[42:43], exec")
    a("s_mov_b64 exec, s[50:51]")
    for nt in range(2):
        a(f"global_store_dwordx4 v28, v[{104+4*nt}:{107+4*nt}], s[14:15] offset:{64*nt}" + SC1)
        a(f"global_store_dwordx4 v30, v[{96+4*nt}:{99+4*nt}], s[14:15] offset:{64*nt}" + SC1)
    a("s_mov_b64 exec, s[52:53]")
    for nt in range(2):
        a(f"global_store_dwordx4 v29, v[{96+4*nt}:{99+4*nt}], s[14:15] offset:{64*nt}" + SC1)
    a("s_mov_b64 exec, s[42:43]")
    a("s_branch K2_END")
    a("K2_W2:   ; LINT-RESET")
    a("s_sub_u32 s26, s26, 172")
    a("s_and_b32 s29, s26, 15")
    a("s_lshr_b32 s28, s26, 4")
    a("v_lshlrev_b32 v10, 10, v2")
    a("v_lshl_add_u32 v10, v3, 4, v10")
    a("s_lshl_b32 s30, s29, 6")
    a("s_waitcnt lgkmcnt(0)")
    wsfix(a, 14)
    a.srd(44, 18, 1376 * 512 * 2)
    for ks in range(4):
        a("s_lshl_b32 s31, s28, 2")
        a(f"s_add_u32 s31, s31, {ks}")
        a("s_mul_i32 s32, s31, 13")
        a("s_lshr_b32 s32, s32, 6")
        a("s_mul_i32 s33, s32, 5")
        a("s_sub_u32 s33, s31, s33")
        a("s_mul_i32 s32, s32, 11")
        a("s_min_u32 s32, s32, 76")
        a("s_lshl_b32 s33, s33, 1")
        a("s_add_u32 s32, s32, s33")
        a("s_add_u32 s33, s32, 1")
        a("s_sub_u32 s34, s31, 40")
        a("s_mul_i32 s34, s34, 22")
        a("s_add_u32 s35, s34, 21")
        a("s_add_u32 s34, s34, 10")
        a("s_cmp_lt_u32 s31, 40")
        a("s_cselect_b32 s32, s32, s34")
        a("s_cselect_b32 s33, s33, s35")
        for hf, sr in ((0, 32), (1, 33)):
            a(f"s_lshl_b32 s49, s{sr}, 14")
            a("s_add_u32 s49, s49, s30")
            i = 2 * ks + hf
            a(f"buffer_load_dwordx4 v[{32+4*i}:{35+4*i}], v10, s[44:47], s49 offen nt")
    a("s_barrier")
    for i in range(8):
        a(f"s_waitcnt vmcnt({7-i})")
        a(f"ds_write_b128 v11, v[{32+4*i}:{35+4*i}] offset:{16*80*i}")
    a("s_lshr_b32 s30, s29, 1")
    a("s_mul_i32 s30, s30, 43")
    a("s_lshl_b32 s31, s28, 2")
    a("s_add_u32 s30, s30, s31")
    a("s_lshl_b32 s30, s30, 12")
    a("s_and_b32 s31, s29, 1")
    a("s_lshl_b32 s31, s31, 11")
    a("s_add_u32 s30, s30, s31")
    a(f"s_add_u32 s30, s30, {W2F}")
    a("v_lshl_add_u32 v26, v1, 4, s30")
    a("s_waitcnt lgkmcnt(0)")
    for ks in range(4):
        if ks == 3:
            a("s_cmp_eq_u32 s28, 10")
            a("s_cbranch_scc1 K2_END")
        for nt in range(2):
            for hf in range(2):
                a(f"ds_read_b64_tr_b16 v[{44+4*nt+2*hf}:{45+4*nt+2*hf}], v12 offset:{(32*ks+16*hf)*80 + 32*nt}")
        a("s_waitcnt lgkmcnt(2)")
        a(f"global_store_dwordx4 v26, v[44:47], s[14:15]" + SC1)
        a("s_waitcnt lgkmcnt(0)")
        a(f"global_store_dwordx4 v26, v[48:51], s[14:15] offset:1024" + SC1)
        a("v_add_u32 v26, 4096, v26")
    a("s_branch K2_END")
    a("K2_TAB:   ; LINT-RESET")
    a("v_lshlrev_b32 v2, 5, v1")
    a(f"v_add_u32 v2, {MODF + 3*2048}, v2")
    a("v_add_u32 v3, 2048, v2")
    a("s_waitcnt lgkmcnt(0)")
    wsfix(a, 14)
    a("global_load_dwordx4 v[32:35], v2, s[14:15]")
    a("global_load_dwordx4 v[36:39], v2, s[14:15] offset:16")
    a("global_load_dwordx4 v[40:43], v3, s[14:15]")
    a("global_load_dwordx4 v[44:47], v3, s[14:15] offset:16")
    a("s_barrier")
    a("s_waitcnt vmcnt(0)")
    for j in range(8): a(f"v_add_f32 v{40+j}, 1.0, v{40+j}")
    for j in range(8): rbf(a, 40 + j, 40 + j)
    for j in range(8): a(f"v_mul_f32 v{48+j}, v{40+j}, v{40+j}")
    for j in range(8): a(f"v_mul_f32 v{56+j}, v{40+j}, v{32+j}")
    for k, base in enumerate((40, 48, 56, 32)):
        a(f"v_add_f32 v{100+k}, v{base}, v{base+1}")
        for j in range(2, 8): a(f"v_add_f32 v{100+k}, v{100+k}, v{base+j}")
    a("v_mul_f32 v104, v32, v32")
    for j in range(1, 8): a(f"v_fmac_f32 v104, v{32+j}, v{32+j}")
    a("v_lshl_add_u32 v4, v1, 4, s27")
    a("v_mov_b32 v64, 0x3f803f80\nv_mov_b32 v65, 0x3f803f80\nv_mov_b32 v66, 0x3f803f80\nv_mov_b32 v67, 0x3f803f80")
    a("ds_write_b128 v4, v[64:67]")
    for q in range(4): a(f"v_cvt_pk_bf16_f32 v{68+q}, v{40+2*q}, v{41+2*q}")
    a("ds_write_b128 v4, v[68:71] offset:1024")
    for (src, row) in ((48, 2), (56, 4)):
        for q in range(4): a(f"v_cvt_pk_bf16_f32 v{72+q}, v{src+2*q}, v{src+2*q+1}")
        a(f"ds_write_b128 v4, v[72:75] offset:{1024*row}")
        for q in range(4):
            a(f"v_lshlrev_b32 v{80+2*q}, 16, v{72+q}")
            a(f"v_and_b32 v{81+2*q}, 0xffff0000, v{72+q}")
        for j in range(8): a(f"v_sub_f32 v{80+j}, v{src+j}, v{80+j}")
        for q in range(4): a(f"v_cvt_pk_bf16_f32 v{76+q}, v{80+2*q}, v{81+2*q}")
        a(f"ds_write_b128 v4, v[76:79] offset:{1024*(row+1)}")
    a("s_nop 1")
    for ctl in ("row_shr:1", "row_shr:2", "row_shr:4", "row_shr:8", "row_bcast:15 row_mask:0xa", "row_bcast:31 row_mask:0xc"):
        for r in range(100, 105):
            a(f"v_add_f32_dpp v{r}, v{r}, v{r} {ctl}")
    a(f"v_mov_b32 v5, {SCAL}")
    a("s_mov_b64 s[42:43], exec")
    a("s_mov_b64 exec, 0x8000000000000000") if False else None
    a("v_cmp_eq_u32 vcc, 63, v1")
    a("s_and_saveexec_b64 s[42:43], vcc")
    a("global_store_dwordx4 v5, v[100:103], s[14:15]" + SC1)
    a("global_store_dword v5, v104, s[14:15] offset:16" + SC1)
    a("s_mov_b64 exec, s[42:43]")
    a("v_and_b32 v6, 15, v1")
    a("v_lshrrev_b32 v7, 4, v1")
    a("v_min_u32 v8, 5, v6")
    a("v_lshlrev_b32 v8, 10, v8")
    a("v_lshl_add_u32 v8, v7, 3, v8")
    a("v_add_u32 v8, s27, v8")
    a("v_cmp_gt_u32 vcc, 6, v6")
    a("v_mov_b32 v9, 0")
    a("s_nop 0")
    a("v_cndmask_b32 v9, v9, -1, vcc")
    a(f"s_mov_b32 s30, {W1F + 86*1024}")
    a("v_lshl_add_u32 v10, v1, 4, s30")
    a("s_waitcnt lgkmcnt(0)")
    for ks in range(16):
        R = 16 + 4 * (ks & 1)
        a(f"ds_read_b64 v[{R}:{R+1}], v8 offset:{64*ks}")
        a(f"ds_read_b64 v[{R+2}:{R+3}], v8 offset:{64*ks+32}")
        a("s_waitcnt lgkmcnt(0)")
        for q in range(4): a(f"v_and_b32 v{R+q}, v{R+q}, v9")
        a(f"global_store_dwordx4 v10, v[{R}:{R+3}], s[14:15]" + SC1)
        a(f"v_add_u32 v10, {87*1024}, v10")
    a("s_branch K2_END")
    a("K2_SIDE_IDLE:   ; LINT-RESET")
    a("s_cmp_eq_u32 s26, 349")
    a("s_cbranch_scc0 K2_idle2")
    a("s_waitcnt lgkmcnt(0)")
    wsfix(a, 14)
    a("v_mov_b32 v4, 0\nv_mov_b32 v5, 0\nv_mov_b32 v6, 0\nv_mov_b32 v7, 0")
    a("v_lshlrev_b32 v2, 4, v1")
    a(f"v_add_u32 v2, {FLAGS_OFF}, v2")
    for q in range(4):
        a(f"global_store_dwordx4 v2, v[4:7], s[14:15] offset:{1024*q} sc1")
    a("K2_idle2:")
    a("s_barrier")
    a("K2_END:   ; LINT-RESET")
    stamp_store(a, 1, 14, 24)
    a("K2_EXIT:")
    a.end_kernel(name, 160, 100)


KG   = SIDE + 4 * SIDE_SZ
KG_PAR = KG
KG_T16 = KG + 4096
KG_REV = KG + 4096 + 2816
LF   = KG_REV + 2 * 4160
K12_LDS = LF + 64
KG_PART = SCR
GBAR = 0x0639000
WCNT = GBAR + 10752

_sync_id = [0]
def wsync(a, addr, n, vt, st, add=True):
    _sync_id[0] += 1
    L = f"WS_{_sync_id[0]}"
    a("s_waitcnt lgkmcnt(0)")
    if isinstance(addr, str): a(f"v_mov_b32 v{vt}, {addr}")
    else: a(f"v_mov_b32 v{vt}, {addr}")
    if add:
        a(f"v_mov_b32 v{vt+1}, 1")
        a("s_mov_b64 exec, 1")
        a(f"ds_add_u32 v{vt}, v{vt+1}")
        a("s_mov_b64 exec, -1")
    a("s_mov_b32 s63, 0x400000")
    a(f"{L}:")
    a(f"ds_read_b32 v{vt+1}, v{vt}")
    a("s_waitcnt lgkmcnt(0)")
    a(f"v_readfirstlane_b32 s{st}, v{vt+1}")
    a("s_sub_u32 s63, s63, 1")
    a("s_cmp_eq_u32 s63, 0")
    a(f"s_cbranch_scc1 {L}_x")
    a(f"s_cmp_ge_u32 s{st}, {n}")
    a(f"s_cbranch_scc0 {L}")
    a(f"{L}_x:")

def k12(a):
    name = "k12_kernel"
    a.begin_kernel(name, 256, 512, K12_LDS)
    a("s_cmp_ge_u32 s2, 256")
    a("s_cbranch_scc1 K2_EXIT")
    stamp(a, 0)
    a("s_load_dwordx8 s[4:11], s[0:1], 8")
    a("s_load_dwordx4 s[44:47], s[0:1], 40")
    a("s_load_dwordx2 s[14:15], s[0:1], 128")
    a("s_load_dwordx2 s[16:17], s[0:1], 0")
    a("s_load_dwordx2 s[18:19], s[0:1], 120")
    a("s_load_dwordx4 s[20:23], s[0:1], 96")
    a("s_load_dwordx2 s[48:49], s[0:1], 64")
    a("s_load_dwordx2 s[12:13], s[0:1], 80")
    wave_id(a, 24, 1)
    a("v_and_b32 v1, 63, v0")
    a("v_lshlrev_b32 v2, 2, v0")
    a(f"v_add_u32 v2, {LF}, v2")
    a("v_mov_b32 v3, 0")
    a("v_cmp_gt_u32 vcc, 16, v0")
    a("s_and_saveexec_b64 s[42:43], vcc")
    a("ds_write_b32 v2, v3")
    a("s_mov_b64 exec, s[42:43]")
    a("s_cmp_ge_u32 s24, 4")
    a("s_cbranch_scc1 K12_SIDE0")
    a("s_lshr_b32 s25, s24, 1")
    a("s_and_b32 s26, s24, 1")
    a("s_lshl_b32 s62, s2, 1")
    a("s_add_u32 s27, s62, s25")
    a("s_lshl_b32 s28, s27, 8")
    a("s_lshl_b32 s29, s26, 7")
    a("s_add_u32 s28, s28, s29")
    a("v_lshl_add_u32 v2, v1, 1, s28")
    a("s_lshl_b32 s30, s2, 2")
    a("s_waitcnt lgkmcnt(0)")
    wsfix(a, 14)
    a("global_load_ushort v4, v2, s[4:5] nt")
    a("global_load_ushort v5, v2, s[6:7] nt")
    a("global_load_ushort v6, v2, s[8:9] nt")
    a("global_load_ushort v7, v2, s[10:11] nt")
    a("s_load_dword s29, s[44:45], s30")
    a("s_load_dword s56, s[46:47], s30")
    a("s_branch K12_CONV0")
    a("K12_SIDE0:   ; LINT-RESET")
    a("s_setprio 3")
    a("s_sub_u32 s25, s24, 4")
    a("s_and_b32 s28, s2, 7")
    a("s_lshr_b32 s29, s2, 3")
    a("s_lshr_b32 s26, s29, 3")
    a("s_lshl_b32 s27, s28, 2")
    a("s_add_u32 s26, s26, s27")
    a("s_and_b32 s27, s29, 7")
    a("s_lshl_b32 s30, s28, 8")
    a("s_lshl_b32 s31, s29, 3")
    a("s_add_u32 s30, s30, s31")
    a("s_lshl_b32 s31, s25, 1")
    a("s_add_u32 s30, s30, s31")
    a(f"s_mul_i32 s57, s25, {SIDE_SZ}")
    a(f"s_add_u32 s57, s57, {SIDE}")
    a("v_subrev_u32 v30, 256, v0")
    a("s_lshl_b32 s28, s26, 16")
    a("s_lshl_b32 s29, s27, 7")
    a("s_add_u32 s28, s28, s29")
    a("v_lshrrev_b32 v2, 3, v30")
    a("v_and_b32 v3, 7, v30")
    a("v_lshlrev_b32 v4, 10, v2")
    a("v_lshl_add_u32 v4, v3, 4, v4")
    a("v_add_u32 v4, s28, v4")
    a("v_add_u32 v5, 0x8000, v4")
    a("s_lshl_b32 s31, s30, 10")
    a("v_lshl_add_u32 v6, v1, 4, s31")
    a("s_and_b32 s33, s2, 7")
    a("s_mul_i32 s33, s33, 6")
    a("s_lshr_b32 s34, s2, 5")
    a("s_add_u32 s33, s33, s34")
    a("s_bfe_u32 s34, s2, 0x20003")
    a("s_lshl_b32 s35, s34, 7")
    a("v_add_u32 v7, s35, v2")
    a("v_mul_u32_u24 v25, 6144, v7")
    a("v_lshl_add_u32 v25, v3, 4, v25")
    a("s_lshl_b32 s35, s33, 7")
    a("v_add_u32 v25, s35, v25")
    a(f"v_add_u32 v26, {32*6144}, v25")
    a(f"v_add_u32 v27, {32*6144}, v26")
    a(f"v_add_u32 v28, {32*6144}, v27")
    a("v_lshlrev_b32 v29, 1, v7")
    a("s_waitcnt lgkmcnt(0)")
    wsfix(a, 14)
    NTX = " nt" if OPT.get("ntx", "0") == "1" else ""
    NTS = " nt" if OPT.get("nts", "0") == "1" else ""
    NTW = " nt" if OPT.get("ntw", "1") == "1" else ""
    a("global_load_dwordx4 v[8:11], v4, s[16:17]" + NTX)
    a("global_load_dwordx4 v[12:15], v5, s[16:17]" + NTX)
    a("global_load_dwordx4 v[16:19], v6, s[16:17]" + NTS)
    a("global_load_dwordx4 v[20:23], v6, s[16:17] offset:1024" + NTS)
    a("s_cmp_ge_u32 s2, 192")
    a("s_cbranch_scc1 K1_nomodld")
    for k in range(4): a(f"global_load_ushort v{48+k}, v29, s[20:21] offset:{64*k}")
    for k, vo in enumerate((25, 26, 27, 28)):
        a(f"global_load_dwordx4 v[{32+4*k}:{35+4*k}], v{vo}, s[22:23]" + NTW)
    a("K1_nomodld:")
    if OPT.get("cpf", "1") == "1":
        a("s_sub_u32 s65, s2, 192")
        a("s_cmp_ge_u32 s65, 16")
        a("s_cbranch_scc1 K12_nocpf")
        a("s_cmp_lg_u32 s24, 7")
        a("s_cbranch_scc1 K12_nocpf")
        code_prefetch(a, "k12_kernel", LASTLABEL, 6, "k1", 199, 200)
        a("K12_nocpf:")
    a("s_branch K2_SIDE")
    a("K12_CONV0:   ; LINT-RESET")
    a("s_barrier")
    a("s_cmp_eq_u32 s2, 255")
    a("s_cselect_b32 s64, 1, 0")
    a("s_cmp_eq_u32 s24, 0")
    a("s_cselect_b32 s64, s64, 0")
    a("s_cmp_eq_u32 s64, 1")
    a("s_cbranch_scc0 K12_noinit")
    a("v_mov_b32 v64, 0\nv_mov_b32 v65, 0\nv_mov_b32 v66, 0\nv_mov_b32 v67, 0")
    a("v_lshlrev_b32 v68, 4, v1")
    a(f"v_add_u32 v68, {FLAGS_OFF}, v68")
    for q in range(16):
        a(f"global_store_dwordx4 v68, v[64:67], s[14:15] sc1")
        if q < 15: a("v_add_u32 v68, 1024, v68")
    a("K12_noinit:   ; LINT-RESET")
    a("v_mov_b32 v56, 0\nv_mov_b32 v57, 0\nv_mov_b32 v58, 0\nv_mov_b32 v59, 0")
    a("v_mul_u32_u24 v53, 171, v0")
    a("v_lshrrev_b32 v53, 9, v53")
    a("v_mul_u32_u24 v54, 3, v53")
    a("v_sub_u32 v54, v0, v54")
    a(f"v_mul_u32_u24 v53, {CS}, v53")
    a("v_lshl_add_u32 v53, v54, 4, v53")
    a("v_cmp_gt_u32 vcc, 48, v0")
    a("s_and_saveexec_b64 s[42:43], vcc")
    a("ds_write_b128 v53, v[56:59]")
    a("s_mov_b64 exec, s[42:43]")
    a("v_lshlrev_b32 v53, 4, v0")
    a(f"v_add_u32 v53, {UB}, v53")
    a(f"v_cmp_gt_u32 vcc, {31 * USTR // 16}, v0")
    a("s_and_saveexec_b64 s[42:43], vcc")
    a(f"ds_write_b128 v53, v[56:59]")
    a(f"ds_write_b128 v53, v[56:59] offset:{U_CH}")
    a("s_mov_b64 exec, s[42:43]")
    a("v_and_b32 v16, 15, v1")
    a("v_cmp_eq_u32 s[32:33], 15, v16")
    a("v_lshrrev_b32 v18, 4, v1")
    a("v_add_u32 v19, 1, v16")
    a("v_cvt_f32_u32 v19, v19")
    a("s_lshl_b32 s31, s24, 10")
    a(f"s_add_u32 s31, s31, {KG_PAR}")
    a("v_lshl_add_u32 v17, v18, 6, s31")
    a("v_lshl_add_u32 v20, v1, 4, s31")
    for r in range(112, 128): a(f"v_mov_b32 v{r}, 0")
    a("s_mul_i32 s39, s25, 1344")
    a(f"s_add_u32 s39, s39, {KG_T16 + 8}")
    a("v_subrev_u32 v21, 7, v16")
    a("v_cmp_gt_u32 s[34:35], 8, v21")
    a("v_add_u32 v21, 1, v16")
    a("v_and_b32 v21, 15, v21")
    a("v_lshlrev_b32 v24, 5, v21")
    a("v_lshl_add_u32 v24, v18, 3, v24")
    a("s_lshl_b32 s40, s26, 9")
    a("s_add_u32 s40, s40, s39")
    a("v_add_u32 v24, s40, v24")
    a("s_cmp_eq_u32 s26, 0")
    a("s_cselect_b64 s[36:37], -1, s[34:35]")
    a("s_lshl_b32 s40, s24, 12")
    a(f"s_add_u32 s40, s40, {KG_PART}")
    a("v_lshl_add_u32 v22, v1, 4, s40")
    a("s_lshl_b32 s40, s25, 13")
    a("s_lshl_b32 s41, s26, 11")
    a("s_add_u32 s40, s40, s41")
    a(f"s_add_u32 s40, s40, {KG_PART}")
    a("v_lshl_add_u32 v23, v1, 4, s40")
    a("s_lshl_b32 s40, s26, 6")
    a("v_add_u32 v26, s40, v1")
    a("v_lshlrev_b32 v27, 3, v26")
    a("v_sub_u32 v27, 2047, v27")
    a("v_cvt_f32_u32 v28, v27")
    a("s_sub_u32 s41, s39, 34050")
    a("s_sub_u32 s42, s39, 2")
    GA = 140
    for rnd in range(2):
        if rnd == 1:
            a("v_add_f32 v28, 0xc4800000, v28")
            a("v_subrev_u32 v27, 1024, v27")
        for t in range(8):
            if t == 0: a(f"v_mov_b32 v48, v28")
            else: a(f"v_add_f32 v{48+t}, {-float(t)}, v28")
        for p in range(4): a(f"v_cvt_pk_bf16_f32 v{56+p}, v{48+2*p}, v{49+2*p}")
        for p in range(4):
            a(f"v_and_b32 v{48+2*p}, 0xffff, v{56+p}")
            a(f"v_lshrrev_b32 v{49+2*p}, 16, v{56+p}")
        o = GA + 8 * rnd
        for t in range(8): a(f"v_lshl_add_u32 v{o+t}, v{48+t}, 1, s41")
        if rnd == 1:
            a("v_cmp_le_u32 vcc, 112, v26")
            for t in range(8):
                a(f"v_subrev_u32 v{56+(t&3)}, {t}, v27")
                a(f"v_lshl_add_u32 v{56+(t&3)}, v{56+(t&3)}, 1, s42")
                a(f"v_cndmask_b32 v{o+t}, v{o+t}, v{56+(t&3)}, vcc")
    a(f"s_mul_i32 s40, s25, 4160")
    a(f"s_add_u32 s40, s40, {KG_REV}")
    a("v_lshl_add_u32 v29, v26, 4, s40")
    a("s_add_u32 s41, s40, 4080")
    a("v_lshlrev_b32 v30, 4, v26")
    a("v_sub_u32 v30, s41, v30")
    a(f"s_mul_i32 s41, s25, {KC_CH}")
    a("s_add_u32 s41, s41, 48")
    a("v_lshl_add_u32 v31, v26, 4, s41")
    a("s_waitcnt lgkmcnt(0)")
    a("s_lshl_b32 s40, s25, 4")
    a("s_lshr_b32 s29, s29, s40")
    a("s_lshl_b32 s29, s29, 16")
    a(f"v_mov_b32 v8, {LOG2E}")
    a("v_mul_f32 v9, s29, v8")
    a("v_exp_f32 v9, v9")
    a("s_nop 0")
    rbf(a, 9, 9)
    a("s_waitcnt vmcnt(0)")
    a("s_cmp_eq_u32 s64, 1")
    a("s_cbranch_scc0 K12_nopub")
    a("v_mov_b32 v68, 0")
    a("v_mov_b32 v69, 1")
    a("s_mov_b64 exec, 1")
    a("global_store_dword v68, v69, s[18:19] sc1")
    a("s_mov_b64 exec, -1")
    a("K12_nopub:")
    a("v_lshlrev_b32 v4, 16, v4")
    a("v_lshlrev_b32 v5, 16, v5")
    a("v_lshlrev_b32 v6, 16, v6")
    a("v_lshlrev_b32 v7, 16, v7")
    a("v_mul_f32 v4, v4, v8")
    a("v_exp_f32 v4, v4")
    a("v_mul_f32 v13, v5, v9")
    a("v_mul_f32 v14, v6, v9")
    rbf(a, 4, 4)
    a("v_mul_f32 v15, v7, v9")
    a("v_mul_f32 v12, v4, v9")
    a(f"v_mul_f32 v13, {INV2PI}, v13")
    a("v_add_f32 v14, v14, v14")
    a("v_add_f32 v15, v15, v15")
    a("v_mul_f32 v12, v12, v8")
    a("v_mov_b32 v10, v14")
    a("v_sub_f32 v12, 0, v12")
    a("ds_write_b128 v20, v[12:15]")
    for ctl in ("row_shr:1", "row_shr:2", "row_shr:4", "row_shr:8", "row_bcast:15 row_mask:0xa", "row_bcast:31 row_mask:0xc"):
        a("s_nop 1")
        a(f"v_add_f32_dpp v10, v10, v10 {ctl}")
    a("s_waitcnt lgkmcnt(0)")
    stamp(a, 1)
    R = [[32 + 4 * u for u in range(4)], [48 + 4 * u for u in range(4)]]
    PA = [64 + 2 * u for u in range(4)]
    PB = [72 + 2 * u for u in range(4)]
    TT = [80 + 2 * u for u in range(4)]
    QF = [88 + 4 * e for e in range(4)]
    GF = [104, 108]
    DD = [112 + 4 * e for e in range(4)]
    CPK = [128 + u for u in range(4)]
    MAG = [132 + 2 * u for u in range(4)]
    for u in range(4): a(f"ds_read_b128 v[{R[0][u]}:{R[0][u]+3}], v17 offset:{u*16}")
    for ks in range(4):
        Rc = R[ks & 1]
        if ks + 1 < 4:
            for u in range(4):
                a(f"ds_read_b128 v[{R[(ks+1)&1][u]}:{R[(ks+1)&1][u]+3}], v17 offset:{(ks+1)*256+u*16}")
            a("s_waitcnt lgkmcnt(4)")
        else:
            a("s_waitcnt lgkmcnt(0)")
        for u in range(4): a(f"v_mul_f32 v{TT[u]}, v{Rc[u]}, v19")
        for u in range(4): a(f"v_mul_f32 v{TT[u]+1}, v{Rc[u]+1}, v19")
        for u in range(4): a(f"v_exp_f32 v{MAG[u]}, v{TT[u]}")
        for u in range(4): a(f"v_fract_f32 v{TT[u]+1}, v{TT[u]+1}")
        for u in range(4): a(f"v_cvt_pk_bf16_f32 v{CPK[u]}, v{Rc[u]+2}, -v{Rc[u]+3}")
        for u in range(4): a(f"v_cos_f32 v{PB[u]}, v{TT[u]+1}")
        for u in range(4): a(f"v_sin_f32 v{PB[u]+1}, v{TT[u]+1}")
        a("s_nop 0")
        for u in range(4):
            a(f"v_pk_mul_f32 v[{PA[u]}:{PA[u]+1}], v[{PB[u]}:{PB[u]+1}], v[{MAG[u]}:{MAG[u]+1}] op_sel:[0,0] op_sel_hi:[1,0]")
        cur, oth = PA, PB
        for e in range(4):
            for u in range(4): a(f"v_cvt_pk_bf16_f32 v{QF[e]+u}, v{cur[u]}, v{cur[u]+1}")
            sq = [csq(a, oth[u], cur[u], TT[u]) for u in range(4)]
            for u in range(4): a(sq[u][0])
            for u in range(4): a(sq[u][1])
            cur, oth = oth, cur
        for e in range(4):
            g = GF[e & 1]
            cm = [cmulconj(a, oth[u], cur[u], Rc[u] + 2, TT[u]) for u in range(4)]
            for u in range(4): a(cm[u][0])
            for u in range(4): a(cm[u][1])
            for u in range(4): a(f"v_cvt_pk_bf16_f32 v{g+u}, v{oth[u]}, v{oth[u]+1}")
            if e == 0:
                for u in range(4): a(f"v_cndmask_b32 v{g+u}, v{g+u}, v{CPK[u]}, s[32:33]")
            if e < 3:
                sq = [csq(a, oth[u], cur[u], TT[u]) for u in range(4)]
                for u in range(4): a(sq[u][0])
                a(f"v_mfma_f32_16x16x32_bf16 v[{DD[e]}:{DD[e]+3}], v[{QF[e]}:{QF[e]+3}], v[{g}:{g+3}], v[{DD[e]}:{DD[e]+3}]")
                for u in range(4): a(sq[u][1])
                cur, oth = oth, cur
            else:
                a("s_nop 1")
                a(f"v_mfma_f32_16x16x32_bf16 v[{DD[e]}:{DD[e]+3}], v[{QF[e]}:{QF[e]+3}], v[{g}:{g+3}], v[{DD[e]}:{DD[e]+3}]")
    stamp(a, 2)
    K0P = KG_T16 + 2 * 1344 + 16
    a("v_readlane_b32 s40, v10, 63")
    a(f"s_lshl_b32 s41, s24, 2")
    a(f"s_add_u32 s41, s41, {K0P}")
    a("v_mov_b32 v11, s41")
    a("v_mov_b32 v10, s40")
    a("s_nop 1")
    for e in range(4): a(f"ds_write_b128 v22, v[{DD[e]}:{DD[e]+3}] offset:{e*1024}")
    a("ds_write_b32 v11, v10")
    a("s_lshl_b32 s57, s25, 2")
    a(f"s_add_u32 s41, s57, {LF}")
    wsync(a, "s41", 2, 2, 40)
    a("ds_read_b128 v[32:35], v23")
    a("ds_read_b128 v[36:39], v23 offset:4096")
    a("ds_read_b128 v[40:43], v23 offset:1024")
    a("ds_read_b128 v[44:47], v23 offset:5120")
    a(f"s_lshl_b32 s41, s25, 3")
    a(f"s_add_u32 s41, s41, {K0P}")
    a("v_mov_b32 v11, s41")
    a("ds_read_b64 v[8:9], v11")
    a("s_waitcnt lgkmcnt(0)")
    for r in range(4): a(f"v_add_f32 v{32+r}, v{32+r}, v{36+r}")
    for r in range(4): a(f"v_add_f32 v{40+r}, v{40+r}, v{44+r}")
    a("v_add_f32 v8, v8, v9")
    a("v_cvt_pk_bf16_f32 v32, v32, v33")
    a("v_cvt_pk_bf16_f32 v33, v34, v35")
    a("v_cvt_pk_bf16_f32 v40, v40, v41")
    a("v_cvt_pk_bf16_f32 v41, v42, v43")
    a("v_cvt_pk_bf16_f32 v8, v8, v8")
    a("s_sub_u32 s41, s39, 2")
    a("v_mov_b32 v11, s41")
    a("s_mov_b64 exec, s[36:37]")
    a("ds_write_b64 v24, v[32:33]")
    a("s_mov_b64 exec, s[34:35]")
    a("ds_write_b64 v24, v[40:41] offset:256")
    a("s_mov_b64 exec, -1")
    a("ds_write_b16 v11, v8")
    a(f"s_add_u32 s41, s57, {LF + 8}")
    wsync(a, "s41", 2, 2, 40)
    for t in range(16):
        a(f"ds_read_u16 v{76+t}, v{GA+t}")
        if t == 7: a("v_mov_b32 v72, 0\nv_mov_b32 v73, 0\nv_mov_b32 v74, 0\nv_mov_b32 v75, 0")
    a("s_waitcnt lgkmcnt(8)")
    for p in range(4): a(f"v_lshl_or_b32 v{64+p}, v{77+2*p}, 16, v{76+2*p}")
    a("ds_write_b128 v29, v[64:67]")
    a("s_waitcnt lgkmcnt(1)")
    for p in range(4): a(f"v_lshl_or_b32 v{68+p}, v{85+2*p}, 16, v{84+2*p}")
    a("ds_write_b128 v29, v[68:71] offset:2048")
    a("v_cmp_gt_u32 vcc, 4, v26")
    a("s_and_saveexec_b64 s[42:43], vcc")
    a("ds_write_b128 v29, v[72:75] offset:4096")
    a("s_mov_b64 exec, s[42:43]")
    a(f"s_add_u32 s41, s57, {LF + 16}")
    wsync(a, "s41", 2, 2, 40)
    a("v_subrev_u32 v33, 2048, v30")
    a("ds_read_b128 v[36:39], v30")
    a("ds_read_b128 v[40:43], v30 offset:16")
    a("ds_read_b128 v[44:47], v33")
    a("ds_read_b128 v[48:51], v33 offset:16")
    for c in range(2):
        W = 36 + 8 * c
        a(f"s_waitcnt lgkmcnt({2 if c == 0 else 8})")
        V = 60
        for j in range(7): a(f"v_alignbit_b32 v{V+j}, v{W+j+1}, v{W+j}, 16")
        for j in range(1, 7): a(f"v_alignbit_b32 v{68+j-1}, v{W+j+1}, v{W+j}, 16")
        for j in range(1, 7): a(f"v_mov_b32 v{76+j-1}, v{W+j}")
        off = c * 2048
        a(f"ds_write_b128 v31, v[{W}:{W+3}] offset:{off + 7*CS}")
        a(f"ds_write_b128 v31, v[{W+2}:{W+5}] offset:{off + 3*CS}")
        a(f"ds_write_b128 v31, v[{V}:{V+3}] offset:{off + 6*CS}")
        a(f"ds_write_b128 v31, v[{V+2}:{V+5}] offset:{off + 2*CS}")
        a(f"ds_write_b128 v31, v[68:71] offset:{off + 4*CS}")
        a(f"ds_write_b128 v31, v[70:73] offset:{off + 0*CS}")
        a(f"ds_write_b128 v31, v[76:79] offset:{off + 5*CS}")
        a(f"ds_write_b128 v31, v[78:81] offset:{off + 1*CS}")
    stamp(a, 3)
    a("s_lshl_b32 s28, s62, 12")
    a(f"s_add_u32 s28, s28, {XT}") if XT else None
    a("v_lshl_add_u32 v160, v0, 4, s28")
    a("v_add_u32 v161, 4096, v160")
    a("v_lshlrev_b32 v162, 5, v0")
    a(f"v_add_u32 v162, {STAT1}, v162")
    a(f"v_add_u32 v163, 8192, v162")
    a(f"v_and_b32 v50, {15 if CONV16 else 31}, v1")
    a(f"v_lshrrev_b32 v51, {4 if CONV16 else 5}, v1")
    a("s_lshl_b32 s30, s25, 12")
    a("s_add_u32 s30, s30, s28")
    a("s_lshl_b32 s31, s26, 11")
    a("s_add_u32 s30, s30, s31")
    a("v_lshlrev_b32 v164, 6, v50")
    a("v_lshl_add_u32 v164, v51, 3, v164")
    a("v_add_u32 v164, s30, v164")
    a("v_and_b32 v165, 3, v1")
    a("v_mul_u32_u24 v165, 12288, v165")
    a("v_bfe_u32 v54, v1, 2, 1")
    a("v_lshl_add_u32 v165, v54, 2, v165")
    a("v_lshrrev_b32 v54, 3, v1")
    a("v_min_u32 v54, 2, v54")
    a("v_lshl_add_u32 v165, v54, 11, v165")
    a("s_lshl_b32 s32, s62, 2")
    a(f"s_add_u32 s32, s32, {MODP}")
    a("v_add_u32 v165, s32, v165")
    a("v_and_b32 v54, 7, v50")
    a("v_lshrrev_b32 v55, 3, v50")
    a(f"v_mul_u32_u24 v2, {CS}, v54")
    a("v_sub_u32 v55, v55, v51")
    a(f"v_add_u32 v55, {3 if CONV16 else 1}, v55")
    a("v_lshl_add_u32 v2, v55, 4, v2")
    a(f"s_mul_i32 s38, s25, {KC_CH}")
    a("v_add_u32 v2, s38, v2")
    a(f"v_mul_u32_u24 v3, {USTR}, v50")
    a("v_lshl_add_u32 v3, v51, 4, v3")
    a(f"s_mul_i32 s38, s25, {U_CH}")
    a(f"s_add_u32 s38, s38, {UB}")
    a("v_add_u32 v3, s38, v3")
    a("v_lshrrev_b32 v166, 2, v0")
    a(f"v_mul_u32_u24 v166, {USTR}, v166")
    a("v_and_b32 v63, 3, v0")
    a("v_lshl_add_u32 v166, v63, 4, v166")
    a(f"v_add_u32 v166, {UB + 31*USTR}, v166")
    a("s_lshl_b32 s38, s24, 12")
    a(f"s_add_u32 s38, s38, {SCR}")
    a("v_lshl_add_u32 v4, v1, 4, s38")
    a("s_xor_b32 s39, s24, 1")
    a("s_lshl_b32 s38, s39, 12")
    a(f"s_add_u32 s38, s38, {SCR}")
    a("v_lshl_add_u32 v5, v1, 4, s38")
    a("s_lshl_b32 s38, s24, 2")
    a(f"s_add_u32 s38, s38, {LF + 32}")
    a("v_mov_b32 v7, s38")
    a("s_lshl_b32 s38, s39, 2")
    a(f"s_add_u32 s38, s38, {LF + 32}")
    a("v_mov_b32 v8, s38")
    a(f"v_mul_u32_u24 v6, {USTR}, v50")
    a("v_lshl_add_u32 v6, v51, 3, v6")
    a(f"s_mul_i32 s38, s25, {U_CH}")
    a(f"s_mul_i32 s39, s26, {32*USTR}")
    a("s_add_u32 s38, s38, s39")
    a(f"s_add_u32 s38, s38, {UB + 31*USTR}")
    a("v_add_u32 v6, s38, v6")
    a("s_lshl_b32 s38, s27, 7")
    a("s_lshl_b32 s39, s26, 20")
    a("s_add_u32 s38, s38, s39")
    a(f"s_add_u32 s38, s38, {X2T}")
    a("v_lshrrev_b32 v9, 3, v1")
    a("v_lshlrev_b32 v9, 16, v9")
    a("v_and_b32 v63, 7, v1")
    a("v_lshl_add_u32 v9, v63, 4, v9")
    a("v_add_u32 v9, s38, v9")
    a("v_add_u32 v12, 0x80000, v9")
    a(f"s_mul_i32 s38, s25, {KC_CH}")
    a("s_mul_i32 s39, s26, 2560")
    a("s_add_u32 s38, s38, s39")
    a("v_mul_u32_u24 v10, 80, v50")
    a("v_lshl_add_u32 v10, v51, 3, v10")
    a("v_add_u32 v10, s38, v10")
    a("v_lshrrev_b32 v11, 2, v1")
    a("v_mul_u32_u24 v11, 80, v11")
    a("v_and_b32 v63, 3, v1")
    a("v_lshl_add_u32 v11, v63, 4, v11")
    a("v_add_u32 v11, s38, v11")
    for r in range(32, 64): a(f"v_mov_b32 v{r}, 0")
    a("s_lshl_b32 s38, s25, 4")
    a("s_lshr_b32 s36, s56, s38")
    a("s_lshl_b32 s36, s36, 16")
    a("s_waitcnt lgkmcnt(0)")
    a("s_barrier")
    stamp(a, 4)
    XR, SR = 168, 176
    a("global_load_dword v13, v165, s[14:15] sc1")
    a(f"global_load_dwordx4 v[{XR}:{XR+3}], v160, s[14:15] sc1")
    a(f"global_load_dwordx4 v[{XR+4}:{XR+7}], v161, s[14:15] sc1")
    a(f"global_load_dwordx4 v[{SR}:{SR+3}], v162, s[14:15]" + STL)
    a(f"global_load_dwordx4 v[{SR+4}:{SR+7}], v162, s[14:15] offset:16" + STL)
    a(f"global_load_dwordx4 v[{SR+8}:{SR+11}], v163, s[14:15]" + STL)
    a(f"global_load_dwordx4 v[{SR+12}:{SR+15}], v163, s[14:15] offset:16" + STL)
    for i in range(4):
        a(f"global_load_dwordx2 v[{144+2*i}:{145+2*i}], v164, s[14:15] offset:{(1024*(i >> 1) + 32*(i & 1)) if CONV16 else 16*i} sc1")
    a("s_waitcnt vmcnt(10)")
    a("v_add_f32_dpp v13, v13, v13 quad_perm:[1,0,3,2] row_mask:0xf bank_mask:0xf")
    a("s_nop 1")
    a("v_add_f32_dpp v13, v13, v13 quad_perm:[2,3,0,1] row_mask:0xf bank_mask:0xf")
    rbf(a, 13, 13)
    a("v_add_f32 v14, 1.0, v13")
    rbf(a, 14, 14)
    a("v_readlane_b32 s59, v13, 0")
    a("v_readlane_b32 s61, v13, 4")
    a("v_readlane_b32 s54, v13, 16")
    a("v_readlane_b32 s55, v13, 20")
    a("v_readlane_b32 s58, v14, 8")
    a("v_readlane_b32 s60, v14, 12")
    a("s_cmp_eq_u32 s25, 0")
    a("s_cselect_b32 s37, s54, s55")
    a("s_waitcnt vmcnt(4)")
    for c in range(2):
        X = XR + 4 * c
        for q in range(4):
            a(f"v_lshlrev_b32 v{64+2*q}, 16, v{X+q}")
            a(f"v_and_b32 v{65+2*q}, 0xffff0000, v{X+q}")
        for q in range(4):
            a(f"v_pk_fma_f32 v[{64+2*q}:{65+2*q}], v[{64+2*q}:{65+2*q}], v[{SR+2*q}:{SR+1+2*q}], v[{SR+8+2*q}:{SR+9+2*q}]")
        for q in range(4):
            a(f"v_pk_fma_f32 v[{64+2*q}:{65+2*q}], v[{64+2*q}:{65+2*q}], s[{58+2*c}:{59+2*c}], s[{58+2*c}:{59+2*c}] op_sel:[0,0,1] op_sel_hi:[1,0,1]")
        for q in range(4):
            a(f"v_cvt_pk_bf16_f32 v{72+4*c+q}, v{64+2*q}, v{65+2*q}")
        a(f"ds_write_b128 v166, v[{72+4*c}:{75+4*c}] offset:{c*U_CH}")
    wsync(a, LF + 52, 4, 14, 40)
    stamp(a, 5)
    a("s_cmp_eq_u32 s26, 0")
    a("s_cbranch_scc0 K2_B")
    conv_path(a, 0, "A")
    a("K2_B:   ; LINT-RESET")
    conv_path(a, 1, "B")
    a("K2_SIDE:   ; LINT-RESET")
    a("s_barrier")
    TL = SIDE + SIDE_SZ
    a("v_mul_u32_u24 v30, 160, v2")
    a("v_lshl_add_u32 v30, v3, 4, v30")
    a(f"v_add_u32 v30, {TL}, v30")
    a("s_cmp_ge_u32 s2, 192")
    a("s_cbranch_scc1 K1_w0")
    a("s_waitcnt vmcnt(10)")
    a("s_branch K1_w1")
    a("K1_w0:")
    a("s_waitcnt vmcnt(2)")
    a("K1_w1:   ; LINT-RESET")
    stamp(a, 1)
    a("ds_write_b128 v30, v[8:11]")
    a("ds_write_b128 v30, v[12:15] offset:5120")
    wsync(a, LF + 48, 4, 2, 40)
    a("v_lshrrev_b32 v2, 4, v1")
    a("v_bfe_u32 v3, v1, 2, 2")
    a("v_and_b32 v4, 3, v1")
    a("v_lshl_add_u32 v5, v2, 3, v3")
    a("v_mul_u32_u24 v5, 160, v5")
    a("v_lshl_add_u32 v5, v4, 3, v5")
    a("s_lshl_b32 s31, s25, 5")
    a(f"s_add_u32 s31, s31, {TL}")
    a("v_add_u32 v5, s31, v5")
    a("ds_read_b64_tr_b16 v[8:9], v5")
    a("ds_read_b64_tr_b16 v[10:11], v5 offset:640")
    a(f"ds_read_b64_tr_b16 v[12:13], v5 offset:{32*160}")
    a(f"ds_read_b64_tr_b16 v[14:15], v5 offset:{36*160}")
    a("v_and_b32 v6, 15, v1")
    a("v_lshlrev_b32 v6, 12, v6")
    a("v_lshl_add_u32 v6, v2, 4, v6")
    a("s_lshl_b32 s31, s27, 18")
    a("s_lshl_b32 s32, s25, 16")
    a("s_add_u32 s31, s31, s32")
    a("s_lshl_b32 s32, s26, 7")
    a("s_add_u32 s31, s31, s32")
    a(f"s_add_u32 s31, s31, {XT}") if XT else None
    a("v_add_u32 v6, s31, v6")
    a("s_waitcnt lgkmcnt(2)")
    a("global_store_dwordx4 v6, v[8:11], s[14:15] sc1")
    a("s_waitcnt lgkmcnt(0)")
    a("global_store_dwordx4 v6, v[12:15], s[14:15] offset:64 sc1")
    a("s_cmp_ge_u32 s2, 192")
    a("s_cbranch_scc1 K1_w2")
    a("s_waitcnt vmcnt(10)")
    a("s_branch K1_w3")
    a("K1_w2:")
    a("s_waitcnt vmcnt(2)")
    a("K1_w3:   ; LINT-RESET")
    a("v_mov_b32 v31, 0x3f803f80")
    a("v_mov_b32 v52, 0\nv_mov_b32 v53, 0\nv_mov_b32 v54, 0\nv_mov_b32 v55, 0")
    for k in range(4):
        a(f"v_dot2_f32_bf16 v52, v{16+k}, v31, v52")
        a(f"v_dot2_f32_bf16 v53, v{16+k}, v{16+k}, v53")
        a(f"v_dot2_f32_bf16 v54, v{20+k}, v31, v54")
        a(f"v_dot2_f32_bf16 v55, v{20+k}, v{20+k}, v55")
    a("s_nop 1")
    for ctl in ("row_shr:1", "row_shr:2", "row_shr:4", "row_shr:8", "row_bcast:15 row_mask:0xa", "row_bcast:31 row_mask:0xc"):
        for r in range(52, 56): a(f"v_add_f32_dpp v{r}, v{r}, v{r} {ctl}")
    a("s_nop 1")
    for k, r in enumerate(range(52, 56)): a(f"v_readlane_b32 s{36+k}, v{r}, 63")
    a("s_nop 1")
    a("v_cmp_eq_u32 vcc, 0, v1")
    a("v_mov_b32 v56, s38")
    a("v_mov_b32 v57, s39")
    a("v_mov_b32 v58, s36")
    a("v_mov_b32 v59, s37")
    a("v_cndmask_b32 v56, v56, v58, vcc")
    a("v_cndmask_b32 v57, v57, v59, vcc")
    a("v_mul_f32 v56, 0x3b000000, v56")
    a("v_mul_f32 v57, 0x3b000000, v57")
    a("v_fma_f32 v57, -v56, v56, v57")
    a("v_max_f32 v57, 0, v57")
    rbf(a, 56, 56); rbf(a, 57, 57)
    a("v_add_f32 v57, 0x3727c5ac, v57")
    rbf(a, 57, 57)
    a("v_sqrt_f32 v57, v57")
    a("s_nop 0")
    rbf(a, 57, 57)
    a("v_rcp_f32 v58, v57")
    a("s_nop 0")
    a("v_mul_f32 v59, v56, v58")
    a("v_sub_f32 v59, 0, v59")
    a("s_lshl_b32 s31, s30, 2")
    a(f"s_add_u32 s31, s31, {STAT1}")
    a("v_lshl_add_u32 v60, v1, 2, s31")
    a("v_add_u32 v61, 8192, v60")
    a("v_cmp_gt_u32 vcc, 2, v1")
    a("s_and_saveexec_b64 s[42:43], vcc")
    a("global_store_dword v60, v58, s[14:15] sc1")
    a("global_store_dword v61, v59, s[14:15] sc1")
    a("s_mov_b64 exec, s[42:43]")
    a("s_cmp_ge_u32 s2, 192")
    a("s_cbranch_scc1 K1_nomodc")
    a("s_waitcnt vmcnt(4)")
    for k in range(4): a(f"v_lshlrev_b32 v{48+k}, 16, v{48+k}")
    for k in range(4): a(f"v_mul_f32 v{52+k}, 0xbfb8aa3b, v{48+k}")
    for k in range(4): a(f"v_exp_f32 v{52+k}, v{52+k}")
    a("s_nop 0")
    for k in range(4): a(f"v_add_f32 v{52+k}, 1.0, v{52+k}")
    for k in range(4): a(f"v_rcp_f32 v{56+k}, v{52+k}")
    a("s_nop 0")
    for k in range(4): a(f"v_mul_f32 v{60+k}, v{48+k}, v{56+k}")
    for k in range(4): a(f"v_fma_f32 v{48+k}, -v{60+k}, v{52+k}, v{48+k}")
    for k in range(4): a(f"v_fma_f32 v{48+k}, v{48+k}, v{56+k}, v{60+k}")
    for k in range(4): rbf(a, 48 + k, 48 + k)
    for k in range(4):
        for p in range(4):
            w = 32 + 4 * k + p
            a(f"v_lshlrev_b32 v62, 16, v{w}")
            a(f"v_and_b32 v63, 0xffff0000, v{w}")
            if k == 0:
                a(f"v_mul_f32 v{64+2*p}, v62, v48")
                a(f"v_mul_f32 v{65+2*p}, v63, v48")
            else:
                a(f"v_fmac_f32 v{64+2*p}, v62, v{48+k}")
                a(f"v_fmac_f32 v{65+2*p}, v63, v{48+k}")
    MODL = SIDE
    a("v_subrev_u32 v61, 256, v0")
    a("v_lshlrev_b32 v61, 5, v61")
    a(f"v_add_u32 v61, {MODL}, v61")
    a("ds_write_b128 v61, v[64:67]")
    a("ds_write_b128 v61, v[68:71] offset:16")
    wsync(a, LF + 24, 4, 2, 40)
    a("s_cmp_lg_u32 s25, 0")
    a("s_cbranch_scc1 K1_nomodc")
    a("v_lshlrev_b32 v4, 2, v1")
    a(f"v_add_u32 v4, {MODL}, v4")
    for i in range(32):
        a(f"ds_read_b32 v{16+i}, v4 offset:{256*i}")
        if i == 14: a("s_waitcnt lgkmcnt(7)")
    a("s_waitcnt lgkmcnt(0)")
    for st in (16, 8, 4, 2, 1):
        for i in range(st): a(f"v_add_f32 v{16+i}, v{16+i}, v{16+st+i}")
    a("s_mul_i32 s31, s34, 12288")
    a("s_lshl_b32 s32, s33, 8")
    a("s_add_u32 s31, s31, s32")
    a(f"s_add_u32 s31, s31, {MODP}")
    a("v_lshl_add_u32 v5, v1, 2, s31")
    a("global_store_dword v5, v16, s[14:15] sc1")
    a("K1_nomodc:   ; LINT-RESET")
    stamp(a, 2)
    a("v_mov_b32 v74, 0")
    a("global_load_dword v75, v74, s[18:19] sc1")
    a("s_waitcnt vmcnt(0)")
    a("v_readfirstlane_b32 s51, v75")
    a(f"v_mov_b32 v2, {LF + 28}")
    a("v_mov_b32 v3, 1")
    a("s_mov_b64 exec, 1")
    a("ds_add_u32 v2, v3")
    a("s_mov_b64 exec, -1")
    stamp(a, 3)
    a("s_sub_u32 s26, s25, 1")
    a("s_lshl_b32 s26, s26, 8")
    a("s_add_u32 s26, s26, s2")
    a("s_cmp_eq_u32 s25, 0")
    a("s_cselect_b32 s26, 1000, s26")
    a("s_mov_b32 s27, s57")
    a("v_lshrrev_b32 v2, 2, v1")
    a("v_and_b32 v3, 3, v1")
    a("v_lshrrev_b32 v4, 4, v1")
    a("v_bfe_u32 v5, v1, 2, 2")
    a("v_mul_u32_u24 v11, 80, v2")
    a("v_lshl_add_u32 v11, v3, 4, v11")
    a("v_add_u32 v11, s27, v11")
    a("v_lshl_add_u32 v12, v4, 2, v5")
    a("v_mul_u32_u24 v12, 80, v12")
    a("v_lshl_add_u32 v12, v3, 3, v12")
    a("v_add_u32 v12, s27, v12")
    a("s_cmp_ge_u32 s26, 520")
    a("s_cbranch_scc1 K12_noraw")
    a("s_cmp_ge_u32 s26, 344")
    a("s_cbranch_scc1 K12_rawW2")
    a("s_mul_i32 s28, s26, 763")
    a("s_lshr_b32 s28, s28, 16")
    a("s_mul_i32 s29, s28, 86")
    a("s_sub_u32 s29, s26, s29")
    a("v_lshrrev_b32 v10, 1, v1")
    a("v_and_b32 v13, 1, v1")
    a("v_lshlrev_b32 v11, 5, v10")
    a("v_lshl_add_u32 v11, v13, 4, v11")
    a("v_add_u32 v11, s27, v11")
    a("v_mul_u32_u24 v10, 2752, v10")
    a("v_lshl_add_u32 v10, v13, 4, v10")
    a("v_lshl_add_u32 v12, v4, 2, v5")
    a("v_lshlrev_b32 v12, 5, v12")
    a("v_lshl_add_u32 v12, v3, 3, v12")
    a("v_add_u32 v12, s27, v12")
    a(f"s_mul_i32 s53, s28, {128*2752}")
    a("s_lshl_b32 s30, s29, 5")
    a("s_add_u32 s53, s53, s30")
    if OPT.get("w1pre", "1") == "1":
        a.srd(64, 48, 512 * 1376 * 2)
        for i in range(4):
            a(f"buffer_load_dwordx4 v[{32+4*i}:{35+4*i}], v10, s[64:67], s53 offen")
            if i < 3: a(f"s_add_u32 s53, s53, {32*2752}")
    a("s_branch K12_noraw")
    a("K12_rawW2:   ; LINT-RESET")
    a("s_sub_u32 s31, s26, 344")
    a("s_and_b32 s29, s31, 15")
    a("s_lshr_b32 s28, s31, 4")
    a("v_lshlrev_b32 v10, 10, v2")
    a("v_lshl_add_u32 v10, v3, 4, v10")
    a("s_lshl_b32 s30, s29, 6")
    a.srd(64, 12, 1376 * 512 * 2)
    for ks in range(4):
        a("s_lshl_b32 s31, s28, 2")
        a(f"s_add_u32 s31, s31, {ks}")
        a("s_mul_i32 s32, s31, 13")
        a("s_lshr_b32 s32, s32, 6")
        a("s_mul_i32 s33, s32, 5")
        a("s_sub_u32 s33, s31, s33")
        a("s_mul_i32 s32, s32, 11")
        a("s_min_u32 s32, s32, 76")
        a("s_lshl_b32 s33, s33, 1")
        a("s_add_u32 s32, s32, s33")
        a("s_add_u32 s33, s32, 1")
        a("s_sub_u32 s34, s31, 40")
        a("s_mul_i32 s34, s34, 22")
        a("s_add_u32 s35, s34, 21")
        a("s_add_u32 s34, s34, 10")
        a("s_cmp_lt_u32 s31, 40")
        a("s_cselect_b32 s32, s32, s34")
        a("s_cselect_b32 s33, s33, s35")
        for hf, sr in ((0, 32), (1, 33)):
            a(f"s_lshl_b32 s53, s{sr}, 14")
            a("s_add_u32 s53, s53, s30")
            i = 2 * ks + hf
            a(f"buffer_load_dwordx4 v[{32+4*i}:{35+4*i}], v10, s[64:67], s53 offen nt")
    a("K12_noraw:   ; LINT-RESET")
    a("s_cmp_lg_u32 s25, 0")
    a("s_cbranch_scc1 K12_gbx")
    wsync(a, LF + 28, 4, 70, 40, add=False)
    a("s_mov_b64 exec, 1")
    a("v_mov_b32 v70, 0")
    a("s_mov_b32 s52, 0x200000")
    a("s_cmp_eq_u32 s51, 1")
    a("s_cbranch_scc1 K12_rdyx")
    a("K12_rdy:")
    a("global_load_dword v71, v70, s[18:19] sc1")
    a("s_waitcnt vmcnt(0)")
    a("v_readfirstlane_b32 s40, v71")
    a("s_sub_u32 s52, s52, 1")
    a("s_cmp_eq_u32 s52, 0")
    a("s_cbranch_scc1 K12_gbdone")
    a("s_cmp_eq_u32 s40, 1")
    a("s_cbranch_scc0 K12_rdy")
    a("K12_rdyx:")
    a("s_and_b32 s40, s2, 15")
    a("s_lshl_b32 s40, s40, 8")
    a(f"s_add_u32 s40, s40, {GBAR}")
    a("v_mov_b32 v70, s40")
    a("v_mov_b32 v71, 1")
    a("global_atomic_add v71, v70, v71, s[14:15] sc0 sc1")
    a("s_waitcnt vmcnt(0)")
    a("v_readfirstlane_b32 s40, v71")
    a("s_cmp_eq_u32 s40, 15")
    a("s_cbranch_scc0 K12_poll")
    if OPT.get("bar2", "1") == "1":
        a("s_mov_b64 exec, 0xff")
        a("v_lshlrev_b32 v70, 8, v1")
        a(f"v_add_u32 v70, {GBAR + 8192}, v70")
        a("v_mov_b32 v71, 1")
        a("global_atomic_add v70, v71, s[14:15] sc1")
        a("s_mov_b64 exec, 1")
    else:
        a(f"v_mov_b32 v70, {GBAR + 4096}")
        a("v_mov_b32 v71, 1")
        a("global_atomic_add v71, v70, v71, s[14:15] sc0 sc1")
        a("s_waitcnt vmcnt(0)")
        a("v_readfirstlane_b32 s40, v71")
        a("s_cmp_eq_u32 s40, 15")
        a("s_cbranch_scc0 K12_poll")
        a("s_mov_b64 exec, 0xff")
        a("v_lshlrev_b32 v70, 8, v1")
        a(f"v_add_u32 v70, {GBAR + 8192}, v70")
        a("v_mov_b32 v71, 1")
        a("global_store_dword v70, v71, s[14:15] sc1")
        a("s_mov_b64 exec, 1")
    a("K12_poll:")
    a("s_and_b32 s40, s2, 7")
    a("s_lshl_b32 s40, s40, 8")
    a(f"s_add_u32 s40, s40, {GBAR + 8192}")
    a("v_mov_b32 v70, s40")
    a("K12_poll2:")
    a("global_load_dword v71, v70, s[14:15] sc1")
    a("s_waitcnt vmcnt(0)")
    a("v_readfirstlane_b32 s40, v71")
    a("s_sub_u32 s52, s52, 1")
    a("s_cmp_eq_u32 s52, 0")
    a("s_cbranch_scc1 K12_gbdone")
    a(f"s_cmp_ge_u32 s40, {16 if OPT.get('bar2', '1') == '1' else 1}")
    a("s_cbranch_scc0 K12_poll2")
    a("K12_gbdone:")
    a("s_mov_b64 exec, -1")
    a("K12_gbx:   ; LINT-RESET")
    a(f"s_setprio {OPT.get('sprio', '0')}")
    a("s_barrier")
    stamp(a, 4)
    a("s_cmp_gt_u32 s26, 521")
    a("s_cbranch_scc1 K2_SIDE_IDLE")
    a("s_cmp_ge_u32 s26, 520")
    a("s_cbranch_scc1 K2_TAB")
    a("s_cmp_ge_u32 s26, 344")
    a("s_cbranch_scc1 K2_W2")
    if OPT.get("w1pre", "1") != "1":
        a.srd(64, 48, 512 * 1376 * 2)
        for i in range(4):
            a(f"buffer_load_dwordx4 v[{32+4*i}:{35+4*i}], v10, s[64:67], s53 offen")
            if i < 3: a(f"s_add_u32 s53, s53, {32*2752}")
    a("s_lshl_b32 s31, s28, 9")
    a("v_lshl_add_u32 v13, v1, 3, s31")
    a(f"v_add_u32 v13, {MODP + 3*2048}, v13")
    for q in range(4):
        a(f"global_load_dwordx2 v[{64+4*q}:{65+4*q}], v13, s[14:15] sc1")
        a(f"global_load_dwordx2 v[{66+4*q}:{67+4*q}], v13, s[14:15] offset:2048 sc1")
        if q < 3: a("v_add_u32 v13, 12288, v13")
    a("s_waitcnt vmcnt(8)")
    for i in range(4): a(f"ds_write_b128 v11, v[{32+4*i}:{35+4*i}] offset:{1024*i}")
    a("s_waitcnt vmcnt(0)")
    stamp(a, 5)
    for r in range(4):
        a(f"v_add_f32 v{64+r}, v{64+r}, v{68+r}")
        a(f"v_add_f32 v{72+r}, v{72+r}, v{76+r}")
        a(f"v_add_f32 v{64+r}, v{64+r}, v{72+r}")
    for r in range(4): rbf(a, 64 + r, 64 + r)
    a("v_add_f32 v66, 1.0, v66")
    a("v_add_f32 v67, 1.0, v67")
    rbf(a, 66, 66); rbf(a, 67, 67)
    a("v_cvt_pk_bf16_f32 v64, v64, v65")
    a("v_lshl_add_u32 v15, v1, 3, s27")
    a("v_lshl_add_u32 v16, v1, 2, s27")
    a("ds_write_b64 v15, v[66:67] offset:10240")
    a("ds_write_b32 v16, v64 offset:10752")
    a("v_and_b32 v17, 15, v1")
    a("v_cmp_eq_u32 s[50:51], 0, v17")
    a("v_cmp_eq_u32 s[52:53], 1, v17")
    a("v_mov_b32 v18, 0")
    a("v_mov_b32 v19, 0x3f803f80")
    a("v_cndmask_b32 v18, v18, v19, s[50:51]")
    a("v_mov_b32 v19, 0")
    a("v_cndmask_b32 v19, v19, -1, s[52:53]")
    a("v_lshl_add_u32 v24, v4, 4, s27")
    a("v_lshl_add_u32 v25, v4, 3, s27")
    for r in range(96, 112): a(f"v_mov_b32 v{r}, 0")
    a("s_lshl_b32 s30, s29, 10")
    a(f"s_mul_i32 s31, s28, {4*87*1024}")
    a("s_add_u32 s30, s30, s31")
    a(f"s_add_u32 s30, s30, {W1F}")
    a("v_lshl_add_u32 v26, v1, 4, s30")
    a("s_waitcnt lgkmcnt(0)")
    stamp(a, 6)
    def ureads(ks):
        B = 112 + 16 * ks
        out = [f"ds_read_b128 v[{B}:{B+3}], v24 offset:{10240 + 128*ks}",
               f"ds_read_b128 v[{B+4}:{B+7}], v24 offset:{10240 + 128*ks + 64}",
               f"ds_read_b64 v[{B+8}:{B+9}], v25 offset:{10752 + 64*ks}",
               f"ds_read_b64 v[{B+10}:{B+11}], v25 offset:{10752 + 64*ks + 32}"]
        for hf in range(2):
            out.append(f"ds_read_b64_tr_b16 v[{B+12+2*hf}:{B+13+2*hf}], v12 offset:{(32*ks+16*hf)*32}")
        return out
    for x in ureads(0) + ureads(1): a(x)
    for ks in range(4):
        B = 112 + 16 * ks
        a(f"s_waitcnt lgkmcnt({6 if ks < 3 else 0})")
        if ks + 2 < 4:
            for x in ureads(ks + 2): a(x)
        for q in range(4): a(f"v_and_or_b32 v{B+8+q}, v{B+8+q}, v19, v18")
        R = B + 12
        for q in range(4):
            a(f"v_lshlrev_b32 v{52+2*q}, 16, v{R+q}")
            a(f"v_and_b32 v{53+2*q}, 0xffff0000, v{R+q}")
        a(f"v_mfma_f32_16x16x32_bf16 v[96:99], v[{R}:{R+3}], v[{B+8}:{B+11}], v[96:99]")
        for q in range(8): a(f"v_mul_f32 v{52+q}, v{52+q}, v{B+q}")
        S = 60 + 4 * (ks & 1)
        for q in range(4): a(f"v_cvt_pk_bf16_f32 v{S+q}, v{52+2*q}, v{53+2*q}")
        a(f"global_store_dwordx4 v26, v[{S}:{S+3}], s[14:15]" + SC1)
        a(f"v_add_u32 v26, {87*1024}, v26")
        a("s_nop 0")
        a(f"v_mfma_f32_16x16x32_bf16 v[104:107], v[{S}:{S+3}], v[{B+8}:{B+11}], v[104:107]")
    stamp(a, 7)
    a(f"s_mul_i32 s30, s28, {3*5504}")
    a("s_lshl_b32 s31, s29, 6")
    a("s_add_u32 s30, s30, s31")
    a(f"s_add_u32 s30, s30, {SVP}")
    a("v_lshl_add_u32 v28, v4, 4, s30")
    a("v_add_u32 v29, 5504, v28")
    a("v_add_u32 v30, 5504, v29")
    a("s_nop 7")
    a("s_mov_b64 exec, s[50:51]")
    a("global_store_dwordx4 v28, v[104:107], s[14:15]" + SC1)
    a("global_store_dwordx4 v30, v[96:99], s[14:15]" + SC1)
    a("s_mov_b64 exec, s[52:53]")
    a("global_store_dwordx4 v29, v[96:99], s[14:15]" + SC1)
    a("s_mov_b64 exec, -1")
    a("s_branch K12_UDONE")
    a("K2_W2:   ; LINT-RESET")
    a("s_waitcnt vmcnt(0)")
    for i in range(8): a(f"ds_write_b128 v11, v[{32+4*i}:{35+4*i}] offset:{16*80*i}")
    a("s_lshr_b32 s30, s29, 1")
    a("s_mul_i32 s30, s30, 43")
    a("s_lshl_b32 s31, s28, 2")
    a("s_add_u32 s30, s30, s31")
    a("s_lshl_b32 s30, s30, 12")
    a("s_and_b32 s31, s29, 1")
    a("s_lshl_b32 s31, s31, 11")
    a("s_add_u32 s30, s30, s31")
    a(f"s_add_u32 s30, s30, {W2F}")
    a("v_lshl_add_u32 v26, v1, 4, s30")
    a("s_waitcnt lgkmcnt(0)")
    for ks in range(4):
        if ks == 3:
            a("s_cmp_eq_u32 s28, 10")
            a("s_cbranch_scc1 K12_UDONE")
        for nt in range(2):
            for hf in range(2):
                a(f"ds_read_b64_tr_b16 v[{44+4*nt+2*hf}:{45+4*nt+2*hf}], v12 offset:{(32*ks+16*hf)*80 + 32*nt}")
        a("s_waitcnt lgkmcnt(2)")
        a(f"global_store_dwordx4 v26, v[44:47], s[14:15]" + SC1)
        a("s_waitcnt lgkmcnt(0)")
        a(f"global_store_dwordx4 v26, v[48:51], s[14:15] offset:1024" + SC1)
        a("v_add_u32 v26, 4096, v26")
    a("s_branch K12_UDONE")
    a("K2_TAB:   ; LINT-RESET")
    a("v_lshlrev_b32 v2, 5, v1")
    a(f"v_add_u32 v2, {MODP + 3*2048}, v2")
    a("v_add_u32 v3, 4096, v2")
    for q in range(4):
        for k in range(3):
            r = 112 + 24 * q + 8 * k
            a(f"global_load_dwordx4 v[{r}:{r+3}], v2, s[14:15] offset:{2048*k if k < 2 else 0} sc1" if k < 2 else f"global_load_dwordx4 v[{r}:{r+3}], v3, s[14:15] sc1")
            a(f"global_load_dwordx4 v[{r+4}:{r+7}], v2, s[14:15] offset:{2048*k+16} sc1" if k < 2 else f"global_load_dwordx4 v[{r+4}:{r+7}], v3, s[14:15] offset:16 sc1")
        if q < 3:
            a("v_add_u32 v2, 12288, v2")
            a("v_add_u32 v3, 12288, v3")
    a("s_waitcnt vmcnt(0)")
    for j in range(24):
        a(f"v_add_f32 v{112+j}, v{112+j}, v{136+j}")
        a(f"v_add_f32 v{160+j}, v{160+j}, v{184+j}")
        a(f"v_add_f32 v{112+j}, v{112+j}, v{160+j}")
    for j in range(24): rbf(a, 112 + j, 112 + j)
    for j in range(8):
        a(f"v_mov_b32 v{32+j}, v{112+j}")
        a(f"v_mov_b32 v{40+j}, v{120+j}")
    a("v_lshlrev_b32 v3, 5, v1")
    a(f"v_add_u32 v3, {GBF}, v3")
    a("global_store_dwordx4 v3, v[128:131], s[14:15] sc1")
    a("global_store_dwordx4 v3, v[132:135], s[14:15] offset:16 sc1")
    for j in range(8): a(f"v_add_f32 v{40+j}, 1.0, v{40+j}")
    for j in range(8): rbf(a, 40 + j, 40 + j)
    for j in range(8): a(f"v_mul_f32 v{48+j}, v{40+j}, v{40+j}")
    for j in range(8): a(f"v_mul_f32 v{56+j}, v{40+j}, v{32+j}")
    a("v_lshlrev_b32 v3, 5, v1")
    a(f"v_add_u32 v3, {G2F}, v3")
    a("global_store_dwordx4 v3, v[48:51], s[14:15] sc1")
    a("global_store_dwordx4 v3, v[52:55], s[14:15] offset:16 sc1")
    for k, base in enumerate((40, 48, 56, 32)):
        a(f"v_add_f32 v{100+k}, v{base}, v{base+1}")
        for j in range(2, 8): a(f"v_add_f32 v{100+k}, v{100+k}, v{base+j}")
    a("v_mul_f32 v104, v32, v32")
    for j in range(1, 8): a(f"v_fmac_f32 v104, v{32+j}, v{32+j}")
    a("v_lshl_add_u32 v4, v1, 4, s27")
    a("v_mov_b32 v64, 0x3f803f80\nv_mov_b32 v65, 0x3f803f80\nv_mov_b32 v66, 0x3f803f80\nv_mov_b32 v67, 0x3f803f80")
    a("ds_write_b128 v4, v[64:67]")
    for q in range(4): a(f"v_cvt_pk_bf16_f32 v{68+q}, v{40+2*q}, v{41+2*q}")
    a("ds_write_b128 v4, v[68:71] offset:1024")
    for (src, row) in ((48, 2), (56, 4)):
        for q in range(4): a(f"v_cvt_pk_bf16_f32 v{72+q}, v{src+2*q}, v{src+2*q+1}")
        a(f"ds_write_b128 v4, v[72:75] offset:{1024*row}")
        for q in range(4):
            a(f"v_lshlrev_b32 v{80+2*q}, 16, v{72+q}")
            a(f"v_and_b32 v{81+2*q}, 0xffff0000, v{72+q}")
        for j in range(8): a(f"v_sub_f32 v{80+j}, v{src+j}, v{80+j}")
        for q in range(4): a(f"v_cvt_pk_bf16_f32 v{76+q}, v{80+2*q}, v{81+2*q}")
        a(f"ds_write_b128 v4, v[76:79] offset:{1024*(row+1)}")
    a("s_nop 1")
    for ctl in ("row_shr:1", "row_shr:2", "row_shr:4", "row_shr:8", "row_bcast:15 row_mask:0xa", "row_bcast:31 row_mask:0xc"):
        for r in range(100, 105):
            a(f"v_add_f32_dpp v{r}, v{r}, v{r} {ctl}")
    a(f"v_mov_b32 v5, {SCAL}")
    a("s_mov_b64 s[42:43], exec")
    a("s_mov_b64 exec, 0x8000000000000000") if False else None
    a("v_cmp_eq_u32 vcc, 63, v1")
    a("s_and_saveexec_b64 s[42:43], vcc")
    a("global_store_dwordx4 v5, v[100:103], s[14:15]" + SC1)
    a("global_store_dword v5, v104, s[14:15] offset:16" + SC1)
    a("s_mov_b64 exec, s[42:43]")
    a("v_and_b32 v6, 15, v1")
    a("v_lshrrev_b32 v7, 4, v1")
    a("v_min_u32 v8, 5, v6")
    a("v_lshlrev_b32 v8, 10, v8")
    a("v_lshl_add_u32 v8, v7, 3, v8")
    a("v_add_u32 v8, s27, v8")
    a("v_cmp_gt_u32 vcc, 6, v6")
    a("v_mov_b32 v9, 0")
    a("s_nop 0")
    a("v_cndmask_b32 v9, v9, -1, vcc")
    a("s_sub_u32 s31, s26, 520")
    a(f"s_mul_i32 s30, s31, {8*87*1024}")
    a(f"s_add_u32 s30, s30, {W1F + 86*1024}")
    a("v_lshl_add_u32 v10, v1, 4, s30")
    a("s_lshl_b32 s31, s31, 9")
    a("v_add_u32 v8, s31, v8")
    a("s_waitcnt lgkmcnt(0)")
    def tread(ks):
        R = 112 + 4 * ks
        return [f"ds_read_b64 v[{R}:{R+1}], v8 offset:{64*ks}", f"ds_read_b64 v[{R+2}:{R+3}], v8 offset:{64*ks+32}"]
    for ks in range(4):
        for x in tread(ks): a(x)
    for bt in range(2):
        if bt < 1:
            for ks in range(4, 7):
                for x in tread(ks): a(x)
            a("s_waitcnt lgkmcnt(6)")
            for x in tread(7): a(x)
        else:
            a("s_waitcnt lgkmcnt(0)")
        for ks in range(4 * bt, 4 * bt + 4):
            R = 112 + 4 * ks
            for q in range(4): a(f"v_and_b32 v{R+q}, v{R+q}, v9")
            a(f"global_store_dwordx4 v10, v[{R}:{R+3}], s[14:15]" + SC1)
            a(f"v_add_u32 v10, {87*1024}, v10")
    a("s_branch K12_UDONE")
    a("K12_UDONE:   ; LINT-RESET")
    if OPT.get("wpf", "0") == "1":
        a("s_waitcnt vmcnt(0)")
        a(f"v_mov_b32 v2, {WCNT}")
        a("v_mov_b32 v3, 1")
        a("s_mov_b64 exec, 1")
        a("global_atomic_add v2, v3, s[14:15] sc1")
    a("s_branch K2_END")
    a("K2_SIDE_IDLE:   ; LINT-RESET")
    if OPT.get("wpf", "0") == "1":
        a("s_cmp_eq_u32 s25, 2")
        a("s_cbranch_scc0 K2_END")
        a(f"v_mov_b32 v2, {WCNT}")
        a("s_mov_b32 s52, 0x40000")
        a("s_mov_b64 exec, 1")
        a("K12_wpoll:")
        a("s_sleep 8")
        a("global_load_dword v3, v2, s[14:15] sc1")
        a("s_waitcnt vmcnt(0)")
        a("v_readfirstlane_b32 s40, v3")
        a("s_sub_u32 s52, s52, 1")
        a("s_cmp_eq_u32 s52, 0")
        a("s_cbranch_scc1 K12_wpx")
        a("s_cmp_ge_u32 s40, 522")
        a("s_cbranch_scc0 K12_wpoll")
        a("K12_wpx:")
        a("s_mov_b64 exec, -1")
        a("s_lshr_b32 s30, s2, 3")
        a("v_lshlrev_b32 v4, 7, v1")
        for (base, size, reg) in ((W1F, 87 * 16384, 44), (W2F, 8 * 43 * 4096, 48)):
            a(f"s_add_u32 s{reg}, s14, {base}")
            a(f"s_addc_u32 s{reg+1}, s15, 0")
            a(f"s_mov_b32 s{reg+2}, {size}")
            a(f"s_mov_b32 s{reg+3}, 0x20000")
            per = -(-size // 32 // 128) * 128
            a(f"s_mul_i32 s31, s30, {per}")
            n = -(-per // 8192)
            for k in range(n):
                a(f"buffer_load_dword v{8 + k + (8 if reg == 48 else 0)}, v4, s[{reg}:{reg+3}], s31 offen")
                if k + 1 < n: a("s_add_u32 s31, s31, 8192")
    a("K2_END:   ; LINT-RESET")
    stamp_store(a, 0, 14, 24)
    a("K2_EXIT:")
    a.end_kernel(name, 208, 100)

G2T = 65536
SVT = G2T + 2048
STT = SVT + 3072
COF = STT + 2048
RED = COF + 4096
P_W = 64 * 272
K3_LDS = RED + 4 * P_W
FLAGS = 0x0638000

def k3(a):
    name = "k3_kernel"
    a.begin_kernel(name, 256, 256, K3_LDS)
    a("s_cmp_ge_u32 s2, 256")
    a("s_cbranch_scc1 K3_EXIT")
    stamp(a, 0)
    a("s_load_dwordx2 s[14:15], s[0:1], 128")
    a("s_load_dwordx2 s[12:13], s[0:1], 72")
    a("s_load_dwordx2 s[16:17], s[0:1], 88")
    a("s_load_dwordx2 s[18:19], s[0:1], 112")
    wave_id(a, 24, 1)
    a("v_and_b32 v1, 63, v0")
    a("s_and_b32 s25, s2, 7")
    a("s_lshr_b32 s26, s2, 3")
    a("s_lshr_b32 s27, s26, 3")
    a("s_lshl_b32 s25, s25, 2")
    a("s_add_u32 s25, s25, s27")
    a("s_and_b32 s26, s26, 7")
    a("s_and_b32 s22, s25, 3")
    a("s_lshl_b32 s23, s22, 1")
    a("s_add_u32 s23, s23, s26")
    a("s_lshl_b32 s23, s23, 1")
    a("s_and_b32 s23, s23, 15")
    a("s_mul_i32 s22, s22, 3")
    a("s_add_u32 s22, s22, s26")
    a("s_sub_u32 s21, s22, 11")
    a("s_cmp_ge_u32 s22, 11")
    a("s_cselect_b32 s22, s21, s22")
    if OPT.get('rot', '0') != '1':
        a("s_mov_b32 s23, 0")
        a("s_mov_b32 s22, 0")
    a("s_mul_i32 s27, s26, 11")
    a("s_min_u32 s27, s27, 76")
    a("s_cmp_lt_u32 s26, 6")
    a("s_cselect_b32 s28, 11, 10")
    a("s_mul_i32 s29, s24, 3")
    for i in range(3):
        a(f"s_add_u32 s30, s29, {i}")
        a("s_add_u32 s31, s30, s27")
        a("s_cmp_lt_u32 s30, s28")
        a(f"s_cselect_b32 s{32+i}, s31, 86")
    a("v_lshrrev_b32 v10, 3, v1")
    a("v_and_b32 v11, 6, v10")
    a("v_and_b32 v12, 7, v1")
    a("v_xor_b32 v11, v11, v12")
    a("v_lshlrev_b32 v11, 4, v11")
    a("v_lshl_add_u32 v11, v10, 7, v11")
    a("s_lshl_b32 s41, s24, 10")
    a("s_lshl_b32 s42, s25, 16")
    a("s_add_u32 s41, s41, s42")
    a(f"s_add_u32 s41, s41, {X2T}")
    a("s_lshl_b32 s42, s24, 10")
    a("v_lshlrev_b32 v13, 4, v1")
    for i in range(3):
        a(f"s_lshl_b32 s30, s{32+i}, 10")
        a(f"v_add_u32 v{126+i}, s30, v13")
    a("s_mov_b32 s47, s23")
    a("s_lshl_b32 s46, s23, 12")
    a("v_lshrrev_b32 v3, 4, v1")
    a("v_and_b32 v6, 15, v1")
    a("v_mov_b32 v7, s32")
    a("v_mov_b32 v8, s33")
    a("v_mov_b32 v9, s34")
    a("v_cmp_eq_u32 vcc, 1, v3")
    a("v_cmp_le_u32 s[52:53], 2, v3")
    a("s_nop 0")
    a("v_cndmask_b32 v7, v7, v8, vcc")
    a("v_cndmask_b32 v7, v7, v9, s[52:53]")
    a("v_min_u32 v7, 85, v7")
    a("v_lshl_add_u32 v7, v7, 4, v6")
    a("v_lshlrev_b32 v8, 2, v7")
    a(f"v_add_u32 v8, {SVP}, v8")
    a("v_lshlrev_b32 v9, 1, v7")
    a("s_waitcnt lgkmcnt(0)")
    wsfix(a, 14)
    a.srd(8, 14, WS_USED)
    for j in range(16):
        a("s_mov_b32 m0, s42")
        a("s_add_u32 s45, s41, s46")
        a("s_add_u32 s42, s42, 4096")
        a(f"buffer_load_dwordx4 v11, s[8:11], s45 offen" + XLD + " lds")
        a("s_add_u32 s46, s46, 4096")
        a("s_and_b32 s46, s46, 0xffff")
    a("s_lshl_b32 s30, s24, 2")
    a("s_lshl_b32 s42, s24, 12")
    a(f"s_add_u32 s42, s42, {RED}")
    for j in range(4):
        a(f"s_add_u32 s31, s30, {j}")
        a("s_add_u32 s31, s31, s23")
        a("s_and_b32 s31, s31, 15")
        a(f"s_mul_i32 s31, s31, {87*1024}")
        a(f"s_add_u32 s31, s31, {W1F + 86*1024}")
        a("s_mov_b32 m0, s42")
        a("s_add_u32 s42, s42, 1024")
        a(f"buffer_load_dwordx4 v13, s[8:11], s31 offen lds")
    def wload(ks):
        out = []
        for i in range(3):
            r = (ks * 3 + i) * 4
            pre = f"s_mul_i32 s44, s47, {87*1024}\ns_add_u32 s44, s44, {W1F}\n" if i == 0 else ""
            post = "\ns_add_u32 s47, s47, 1\ns_and_b32 s47, s47, 15" if i == 2 else ""
            out.append(pre + f"buffer_load_dwordx4 a[{r}:{r+3}], v{126+i}, s[8:11], s44 offen" + WLD + post)
        return out
    PRE = min(int(OPT.get('pre', '6')), int(OPT.get('deep', '6')))
    for ks in range(PRE):
        for x in wload(ks): a(x)
    a(f"s_mov_b32 s30, {SCAL}")
    a("s_load_dwordx4 s[36:39], s[14:15], s30")
    a(f"s_mov_b32 s31, {SCAL+16}")
    a("s_load_dword s40, s[14:15], s31")
    a("v_bfe_u32 v14, v1, 2, 2")
    a("v_lshl_add_u32 v14, v3, 2, v14")
    a("v_and_b32 v15, 6, v14")
    a("v_lshrrev_b32 v15, 1, v15")
    a("v_and_b32 v29, 3, v1")
    a("v_lshlrev_b32 v30, 7, v14")
    a("v_lshl_add_u32 v30, v29, 3, v30")
    for k in range(4):
        a(f"s_add_u32 s30, s24, {k}")
        a(f"s_and_b32 s{48+k}, s30, 3")
        a(f"v_xor_b32 v31, s{48+k}, v15")
        a(f"v_lshl_add_u32 v{20+k}, v31, 5, v30")
    a("v_xor_b32 v31, s24, v15")
    a("v_lshl_add_u32 v26, v31, 5, v30")
    a("s_lshl_b32 s30, s26, 1")
    a("s_sub_u32 s30, s30, s23")
    a("s_add_u32 s31, s30, 1")
    a("s_and_b32 s30, s30, 15")
    a("s_and_b32 s31, s31, 15")
    a("s_lshl_b32 s30, s30, 12")
    a("s_lshl_b32 s31, s31, 12")
    a("v_add_u32 v125, s31, v26")
    a("v_add_u32 v26, s30, v26")
    a(f"v_add_u32 v24, {RED}, v13")
    ACC = 160
    for r in range(ACC, ACC + 48): a(f"v_mov_b32 v{r}, 0")
    for r in range(96, 108): a(f"v_mov_b32 v{r}, 0")
    a(f"s_waitcnt vmcnt({3*PRE}) lgkmcnt(0)")
    stamp(a, 1)
    a("s_barrier")
    XF = [32, 48]
    def xreads(ks):
        b = XF[ks & 1]
        out = []
        for k in range(4):
            for hf in range(2):
                out.append(f"ds_read_b64_tr_b16 v[{b+4*k+2*hf}:{b+4*k+2*hf+1}], v{20+k} offset:{4096*ks + 2048*hf}")
        return out
    STATS = OPT.get('stats', 'in')
    GQ = [64, 72]
    if STATS == 'in':
        for ks in range(PRE, int(OPT.get('deep', '6'))):
            for x in wload(ks): a(x)
    def greads(ks):
        g = GQ[ks & 1]
        return [f"ds_read_b128 v[{g}:{g+3}], v24 offset:{1024*ks}"]
    for x in xreads(0) + greads(0): a(x)
    DEEP = int(OPT.get('deep', '6'))
    a("s_mul_i32 s58, s24, 10")
    a("s_mul_i32 s67, s26, 5")
    a("s_mul_i32 s59, s26, 43")
    a("s_lshl_b32 s59, s59, 12")
    a(f"s_add_u32 s59, s59, {W2F}")
    a.srd(60, 14, WS_USED)
    a("s_mov_b32 s64, s58")
    def stepcalc(dst, base):
        return (f"s_cmp_ge_u32 s64, s67\ns_cselect_b32 {dst}, 4, 0\ns_add_u32 {dst}, {dst}, s64\ns_min_u32 {dst}, {dst}, 42\n"
                f"s_lshl_b32 {dst}, {dst}, 12\ns_add_u32 {dst}, {dst}, {base}\n")
    drip = []
    for j in range(11):
        for t in range(4):
            r = (j * 4 + t) * 4
            if j == 0:
                pre = "s_add_u32 s66, s67, s24\ns_lshl_b32 s66, s66, 12\ns_add_u32 s66, s66, s59\ns_mov_b32 s62, s10\n" if t == 0 else ""
                post = ""
            else:
                pre = (stepcalc("s66", "s59") + "s_cmp_eq_u32 s64, 39\ns_cselect_b32 s62, 0, s10\n") if t == 0 else ""
                post = "\ns_add_u32 s64, s64, 1" if t == 3 else ""
            drip.append(pre + f"buffer_load_dwordx4 a[{r}:{r+3}], v13, s[60:63], s66 offen offset:{1024*t}" + WLD + post)
    a("s_lshl_b32 s30, s26, 8")
    a(f"s_add_u32 s30, s30, {GBF if FUSED else MODF + 5*2048}")
    a("v_lshl_add_u32 v27, v3, 4, s30")
    a("s_lshl_b32 s30, s26, 7")
    a("v_lshl_add_u32 v28, v3, 3, s30")
    gbl = []
    for dt in range(4):
        gbl.append(f"global_load_dwordx4 v[{208+4*dt}:{211+4*dt}], v27, s[14:15] offset:{64*dt}")
    for dt in range(4):
        gbl.append(f"global_load_dwordx2 v[{224+2*dt}:{225+2*dt}], v28, s[16:17] offset:{32*dt}")
    issued = DEEP
    vm_after = []
    seq = [("W", ks) for ks in range(DEEP) for _ in range(3)]
    def vmwait(tag):
        last = max(i for i, t in enumerate(seq) if t == tag)
        return len(seq) - 1 - last
    sm_done = False
    smalls = []
    for kq in range(4):
        for v in range(3):
            smalls.append(f"global_load_dword v{112+kq*3+v}, v8, s[14:15]")
            if not (kq == 3 and v == 2): smalls.append("v_add_u32 v8, 5504, v8")
    smalls.append("global_load_ushort v124, v9, s[12:13]")
    for ks in range(16):
        b = XF[ks & 1]
        a(f"s_waitcnt vmcnt({vmwait(('W', ks))}) lgkmcnt(0)")
        mf = []
        for i in range(3):
            r = (ks * 3 + i) * 4
            for k in range(4):
                d = ACC + (i * 4 + k) * 4
                mf.append(f"v_mfma_f32_16x16x32_bf16 v[{d}:{d+3}], a[{r}:{r+3}], v[{b+4*k}:{b+4*k+3}], v[{d}:{d+3}]")
        va = []
        if ks + 1 < 16: va += xreads(ks + 1) + greads(ks + 1)
        if issued < 16:
            va += wload(issued); seq += [("W", issued)] * 3; issued += 1
        elif not sm_done:
            sm_done = True
            va += smalls + gbl; seq += [("S", 0)] * 13 + [("G", 0)] * 8
        else:
            for _ in range(3):
                va.append(drip.pop(0)); seq.append(("W2", 0))
        for q in range(4):
            va.append(f"v_lshlrev_b32 v{80+2*q}, 16, v{b+q}")
            va.append(f"v_and_b32 v{81+2*q}, 0xffff0000, v{b+q}")
        for q in range(8):
            va.append(f"v_mul_f32 v{80+q}, v{80+q}, v{80+q}")
        for q in range(4):
            va.append(f"v_cvt_pk_bf16_f32 v{88+q}, v{80+2*q}, v{81+2*q}")
        if ks > 0:
            gp = GQ[(ks - 1) & 1]
            a(f"v_mfma_f32_16x16x32_bf16 v[96:99], v[{gp}:{gp+3}], v[88:91], v[96:99]")
        per = -(-len(va) // 12)
        vi = 0
        for m in mf:
            a(m)
            for _ in range(per):
                if vi < len(va): a(va[vi]); vi += 1
    a("s_nop 1")
    a(f"v_mfma_f32_16x16x32_bf16 v[96:99], v[{GQ[1]}:{GQ[1]+3}], v[88:91], v[96:99]")
    stamp(a, 2)
    KEEP = int(OPT.get('keep', '0'))
    def dr(n=1, final=False):
        for _ in range(n):
            if drip and (final or len(drip) > KEEP): a(drip.pop(0))
    a(f"s_waitcnt vmcnt({vmwait(('S', 0))})")
    dr(1)
    for v in range(3):
        a(f"v_add_f32 v{112+v}, v{112+v}, v{115+v}")
        a(f"v_add_f32 v{118+v}, v{118+v}, v{121+v}")
        a(f"v_add_f32 v{112+v}, v{112+v}, v{118+v}")
    a("v_lshlrev_b32 v124, 16, v124")
    dr(2)
    a("s_mul_i32 s30, s24, 768")
    a(f"s_add_u32 s30, s30, {SVT}")
    a("v_lshlrev_b32 v2, 8, v3")
    a("v_lshl_add_u32 v2, v6, 2, v2")
    a("v_add_u32 v2, s30, v2")
    a("v_cmp_gt_u32 vcc, 48, v1")
    a("s_and_saveexec_b64 s[42:43], vcc")
    a("ds_write_b32 v2, v112")
    a("ds_write_b32 v2, v114 offset:64")
    a("ds_write_b32 v2, v113 offset:128")
    a("ds_write_b32 v2, v124 offset:192")
    a("s_mov_b64 exec, s[42:43]")
    dr(2)
    a("s_lshl_b32 s30, s24, 9")
    a(f"s_add_u32 s30, s30, {STT}")
    a("v_lshl_add_u32 v2, v6, 5, s30")
    a("v_add_f32 v97, v98, v99")
    a("v_cmp_eq_u32 vcc, 0, v3")
    a("s_and_saveexec_b64 s[42:43], vcc")
    a("ds_write_b64 v2, v[96:97] offset:24")
    a("s_mov_b64 exec, s[42:43]")
    a("s_cmp_eq_u32 s24, 3")
    a("s_cbranch_scc0 K3_nolin")
    a("v_cmp_eq_u32 s[52:53], 0, v3")
    a("v_cmp_eq_u32 s[54:55], 1, v3")
    for k in range(4):
        a(f"s_lshl_b32 s30, s{48+k}, 9")
        a(f"s_add_u32 s30, s30, {STT}")
        a(f"v_lshl_add_u32 v{60+k}, v6, 5, s30")
    a("s_mov_b64 s[42:43], exec")
    a("s_mov_b64 exec, s[52:53]")
    for k in range(4):
        d = ACC + (8 + k) * 4
        a(f"ds_write_b128 v{60+k}, v[{d}:{d+3}]")
    a("s_mov_b64 exec, s[54:55]")
    for k in range(4):
        d = ACC + (8 + k) * 4
        a(f"ds_write_b64 v{60+k}, v[{d}:{d+1}] offset:16")
    a("s_mov_b64 exec, s[42:43]")
    a("K3_nolin:")
    dr(2)
    a("s_waitcnt lgkmcnt(0)")
    a("s_barrier")
    dr(2)
    a("v_lshlrev_b32 v2, 5, v1")
    a(f"v_add_u32 v2, {STT}, v2")
    a("ds_read_b128 v[32:35], v2")
    a("ds_read_b128 v[36:39], v2 offset:16")
    a("s_mul_i32 s30, s24, 768")
    a(f"s_add_u32 s30, s30, {SVT}")
    a("v_lshl_add_u32 v25, v3, 4, s30")
    a("s_mov_b32 s56, 0xbdd2d3e2")
    a("s_mov_b32 s57, 0xc0135761")
    a("s_waitcnt lgkmcnt(0)")
    a("v_add_f32 v34, v34, v35")
    a("v_add_f32 v36, v36, v37")
    a("v_mul_f32 v32, 0x3b000000, v32")
    a("v_mul_f32 v38, 0x3b000000, v38")
    a("v_fma_f32 v38, -v32, v32, v38")
    a("v_max_f32 v38, 0, v38")
    a("v_cvt_pk_bf16_f32 v40, v32, v38")
    a("v_lshlrev_b32 v32, 16, v40")
    a("v_and_b32 v38, 0xffff0000, v40")
    a("v_add_f32 v38, 0x3727c5ac, v38")
    rbf(a, 38, 38)
    a("v_sqrt_f32 v38, v38")
    a("v_fma_f32 v33, -v32, s36, v33")
    dr(2)
    rbf(a, 38, 38)
    a("v_rcp_f32 v38, v38")
    a("v_mul_f32 v40, v32, v32")
    a("v_add_f32 v41, v32, v32")
    a("v_fma_f32 v39, -v41, v34, v39")
    a("v_fma_f32 v39, v40, s37, v39")
    a("v_fma_f32 v36, -v32, s38, v36")
    a("v_fma_f32 v33, v33, v38, s39")
    a("v_add_f32 v36, v36, v36")
    a("v_fma_f32 v39, v39, v38, v36")
    a("v_mul_f32 v33, 0x3b000000, v33")
    dr(2)
    a("v_fma_f32 v39, v39, v38, s40")
    a("v_mul_f32 v39, 0x3b000000, v39")
    a("v_fma_f32 v39, -v33, v33, v39")
    a("v_max_f32 v39, 0, v39")
    a("v_cvt_pk_bf16_f32 v40, v33, v39")
    a("v_lshlrev_b32 v33, 16, v40")
    a("v_and_b32 v39, 0xffff0000, v40")
    a("v_add_f32 v39, 0x3727c5ac, v39")
    rbf(a, 39, 39)
    a("v_sqrt_f32 v39, v39")
    a("s_nop 0")
    rbf(a, 39, 39)
    a("v_rcp_f32 v47, v39")
    a("s_lshl_b32 s30, s24, 10")
    a(f"s_add_u32 s30, s30, {COF}")
    a("v_mul_f32 v44, v47, v38")
    a("v_mul_f32 v46, -v47, v33")
    a("v_mul_f32 v45, -v44, v32")
    a("v_lshl_add_u32 v2, v1, 4, s30")
    a("ds_write_b128 v2, v[44:47]")
    a("s_waitcnt lgkmcnt(0)")
    for k in range(4):
        a(f"s_lshl_b32 s31, s{48+k}, 8")
        a("s_add_u32 s31, s31, s30")
        a(f"v_lshl_add_u32 v2, v6, 4, s31")
        a(f"ds_read_b128 v[{48+4*k}:{51+4*k}], v2")
    SVR = [64, 128, 144]
    for i in range(3):
        for st in range(4):
            a(f"ds_read_b128 v[{SVR[i]+4*st}:{SVR[i]+4*st+3}], v25 offset:{256*i + 64*st}")
    dr(2)
    stamp(a, 3)
    a("s_waitcnt lgkmcnt(0)")
    for i in range(3):
        if i > 0 and OPT.get('x_nodrip') != '1': dr(4)
        a(f"s_cmp_eq_u32 s{32+i}, 86")
        a(f"s_cbranch_scc1 K3_skip{i}")
        SV = SVR[i]
        a(f"s_add_u32 s30, s29, {i}")
        a("s_lshr_b32 s31, s30, 1")
        a("s_lshl_b32 s31, s31, 12")
        a("s_and_b32 s30, s30, 1")
        a("s_lshl_b32 s30, s30, 3")
        a("s_add_u32 s30, s30, s31")
        a(f"s_add_u32 s30, s30, {RED}")
        A_ = ACC + i * 16
        for k in range(4):
            c = 48 + 4 * k
            for p in range(2):
                t = 96 + 4 * k + 2 * p
                a(f"v_pk_fma_f32 v[{t}:{t+1}], v[{SV+2*p}:{SV+1+2*p}], v[{c}:{c+1}], v[{SV+12+2*p}:{SV+13+2*p}] op_sel:[0,1,0] op_sel_hi:[1,1,1]")
        if i == 0 and OPT.get('x_nodrip') != '1': dr(2)
        for k in range(4):
            c = 48 + 4 * k
            for p in range(2):
                t = 96 + 4 * k + 2 * p
                a(f"v_pk_fma_f32 v[{t}:{t+1}], v[{SV+4+2*p}:{SV+5+2*p}], v[{c+2}:{c+3}], v[{t}:{t+1}] op_sel_hi:[1,0,1]")
        if i == 0 and OPT.get('x_nodrip') != '1': dr(2)
        for k in range(4):
            c = 48 + 4 * k
            for p in range(2):
                t = 96 + 4 * k + 2 * p
                a(f"v_pk_fma_f32 v[{t}:{t+1}], v[{SV+8+2*p}:{SV+9+2*p}], v[{c+2}:{c+3}], v[{t}:{t+1}] op_sel:[0,1,0] op_sel_hi:[1,1,1]")
        if i == 0 and OPT.get('x_nodrip') != '1': dr(2)
        for k in range(4):
            c = 48 + 4 * k
            for p in range(2):
                x = A_ + 4 * k + 2 * p; t = 96 + 4 * k + 2 * p
                a(f"v_pk_fma_f32 v[{x}:{x+1}], v[{x}:{x+1}], v[{c}:{c+1}], v[{t}:{t+1}] op_sel_hi:[1,0,1]")
        if i == 0 and OPT.get('x_nodrip') != '1': dr(2)
        for j in range(8):
            x = A_ + 2 * j; t = 96 + 2 * j
            a(f"v_pk_mul_f32 v[{t}:{t+1}], v[{x}:{x+1}], v[{x}:{x+1}]")
        for j in range(8):
            t = 96 + 2 * j
            a(f"v_pk_fma_f32 v[{t}:{t+1}], v[{t}:{t+1}], s[56:57], s[56:57] op_sel:[0,0,1] op_sel_hi:[1,0,1]")
        if i == 0 and OPT.get('x_nodrip') != '1': dr(2)
        for j in range(8):
            x = A_ + 2 * j; t = 96 + 2 * j
            a(f"v_pk_mul_f32 v[{t}:{t+1}], v[{t}:{t+1}], v[{x}:{x+1}]")
        for j in range(16): a(f"v_exp_f32 v{96+j}, v{96+j}")
        if i == 0 and OPT.get('x_nodrip') != '1': dr(3)
        for j in range(8):
            t = 96 + 2 * j
            a(f"v_pk_add_f32 v[{t}:{t+1}], v[{t}:{t+1}], 1.0 op_sel_hi:[1,0]")
        for j in range(16): a(f"v_rcp_f32 v{96+j}, v{96+j}")
        if i == 0 and OPT.get('x_nodrip') != '1': dr(3)
        for j in range(8):
            x = A_ + 2 * j; t = 96 + 2 * j
            a(f"v_pk_mul_f32 v[{x}:{x+1}], v[{x}:{x+1}], v[{t}:{t+1}]")
        for k in range(4):
            a(f"v_cvt_pk_bf16_f32 v{112+2*k}, v{A_+4*k}, v{A_+4*k+1}")
            a(f"v_cvt_pk_bf16_f32 v{113+2*k}, v{A_+4*k+2}, v{A_+4*k+3}")
        if i == 1:
            a("s_cmp_eq_u32 s29, 9")
            a("s_cbranch_scc0 K3_paired1")
            a("s_lshr_b32 s31, s26, 1")
            a("s_add_u32 s31, s31, 40")
            a("s_mul_i32 s43, s25, 43")
            a("s_add_u32 s31, s31, s43")
            a("s_lshl_b32 s31, s31, 12")
            a("s_and_b32 s43, s26, 1")
            a("s_lshl_b32 s43, s43, 3")
            a("s_add_u32 s31, s31, s43")
            a(f"s_add_u32 s31, s31, {HF}")
            for k in range(4):
                a(f"s_lshl_b32 s43, s{48+k}, 10")
                a("s_add_u32 s43, s43, s31")
                a(f"buffer_store_dwordx2 v[{112+2*k}:{113+2*k}], v13, s[8:11], s43 offen sc1")
            a("s_branch K3_skip1")
            a("K3_paired1:")
        for k in range(4):
            a(f"s_lshl_b32 s31, s{48+k}, 10")
            a("s_add_u32 s31, s31, s30")
            a(f"v_add_u32 v2, s31, v13")
            a(f"ds_write_b64 v2, v[{112+2*k}:{113+2*k}]")
        a(f"K3_skip{i}:   ; LINT-RESET")
    stamp(a, 9)
    dr(99)
    a("s_waitcnt lgkmcnt(0)")
    a("s_barrier")
    stamp(a, 4)
    a("s_mul_i32 s30, s24, 5120")
    a("v_add_u32 v2, s30, v13")
    a(f"v_add_u32 v2, {RED}, v2")
    for q in range(5): a(f"ds_read_b128 v[{32+4*q}:{35+4*q}], v2 offset:{1024*q}")
    a("s_mul_i32 s31, s25, 43")
    a("s_mul_i32 s43, s26, 5")
    a("s_add_u32 s31, s31, s43")
    a("s_lshl_b32 s31, s31, 12")
    a("s_add_u32 s31, s31, s30")
    a(f"s_add_u32 s31, s31, {HF}")
    for q in range(5):
        a(f"s_waitcnt lgkmcnt({4-q})")
        if q == 4: a("s_add_u32 s31, s31, 4096")
        a(f"buffer_store_dwordx4 v[{32+4*q}:{35+4*q}], v13, s[8:11], s31 offen offset:{1024*(q&3)} sc1")
    for r in range(176, 240): a(f"v_accvgpr_write_b32 a{r}, 0")
    a("s_lshl_b32 s30, s24, 12")
    a(f"s_add_u32 s30, s30, {RED}")
    a("v_add_u32 v2, s30, v13")
    for lt in range(4): a(f"ds_read_b128 v[{192+4*lt}:{195+4*lt}], v2 offset:{1024*lt}")
    a("s_waitcnt vmcnt(5) lgkmcnt(0)")
    for dt in range(4):
        for lt in range(4):
            d = 176 + (dt * 4 + lt) * 4
            a(f"v_mfma_f32_16x16x32_bf16 a[{d}:{d+3}], a[{dt*4}:{dt*4+3}], v[{192+4*lt}:{195+4*lt}], a[{d}:{d+3}]")
    a(f"s_waitcnt vmcnt(0)")
    stamp(a, 5)
    a("s_barrier")
    a("s_cmp_lg_u32 s24, 0")
    a("s_cbranch_scc1 K3_wait")
    a("s_lshl_b32 s30, s25, 7")
    a(f"s_add_u32 s30, s30, {FLAGS}")
    a("v_mov_b32 v2, s30")
    a("v_mov_b32 v4, 1")
    a("s_mov_b64 s[42:43], exec")
    a("s_mov_b64 exec, 1")
    a("global_atomic_add v4, v2, v4, s[14:15] sc0 sc1")
    a("s_waitcnt vmcnt(0)")
    a("v_readfirstlane_b32 s30, v4")
    a("s_cmp_eq_u32 s30, 7")
    a("s_cbranch_scc1 K3_pollx")
    a("s_mov_b32 s31, 0x100000")
    a("K3_poll:")
    a("buffer_load_dword v5, v2, s[8:11], 0 offen sc1")
    a("s_waitcnt vmcnt(0)")
    a("v_readfirstlane_b32 s30, v5")
    a("s_sub_u32 s31, s31, 1")
    a("s_cmp_eq_u32 s31, 0")
    a("s_cbranch_scc1 K3_pollx")
    a("s_cmp_ge_u32 s30, 8")
    a("s_cbranch_scc0 K3_poll")
    a("K3_pollx:")
    a("s_mov_b64 exec, s[42:43]")
    a("K3_wait:   ; LINT-RESET")
    a("s_barrier")
    stamp(a, 6)
    a("s_mul_i32 s57, s25, 43")
    a("s_lshl_b32 s57, s57, 12")
    a(f"s_add_u32 s57, s57, {HF}")
    a("s_mov_b32 s64, s58")
    late = list(drip); drip.clear()
    assert not late
    hl = []
    for j in range(1, 11):
        for t in range(4):
            r = 32 + ((j - 1) * 4 + t) * 4
            pre = stepcalc("s56", "s57") if t == 0 else ""
            post = "\ns_add_u32 s64, s64, 1" if t == 3 else ""
            hl.append((("H", j), pre + f"buffer_load_dwordx4 v[{r}:{r+3}], v13, s[8:11], s56 offen offset:{1024*t}" + HLD + post))
    pos = 20
    lt_ = [(("L", 0), x) for x in late]
    hl = hl[:pos] + lt_ + hl[pos:]
    HD = int(OPT.get('hd', '16'))
    qseq = []
    def hissue():
        tag, x = hl.pop(0); a(x); qseq.append(tag)
    for _ in range(HD): hissue()
    for dt in range(4):
        a(f"ds_read_b64_tr_b16 v[{16+2*dt}:{17+2*dt}], v{26 if dt < 2 else 125} offset:{2048*(dt&1)}")
    for j in range(1, 11):
        need = [i for i, t in enumerate(qseq) if t == ("H", j)]
        assert len(need) == 4
        last = max(need)
        if late and j >= 9: last = max(last, max(i for i, t in enumerate(qseq) if t == ("L", 0)))
        a(f"s_waitcnt vmcnt({len(qseq) - 1 - last})")
        q = 0
        for dt in range(4):
            for lt in range(4):
                d = 176 + (dt * 4 + lt) * 4
                ar = (j * 4 + dt) * 4
                br = 32 + ((j - 1) * 4 + lt) * 4
                a(f"v_mfma_f32_16x16x32_bf16 a[{d}:{d+3}], a[{ar}:{ar+3}], v[{br}:{br+3}], a[{d}:{d+3}]")
                if q % 4 == 0 and hl: hissue()
                q += 1
    stamp(a, 7)
    a("v_mul_u32_u24 v5, 272, v6")
    a("v_lshl_add_u32 v5, v3, 4, v5")
    a(f"s_mul_i32 s30, s24, {P_W}")
    a(f"s_add_u32 s30, s30, {RED}")
    a("v_add_u32 v7, s30, v5")
    a("s_nop 4")
    for dt in range(4):
        for lt in range(4):
            d = 176 + (dt * 4 + lt) * 4
            a(f"ds_write_b128 v7, a[{d}:{d+3}] offset:{lt*16*272 + dt*64}")
    a(f"s_mul_i32 s30, s24, {16*272}")
    a(f"s_add_u32 s30, s30, {RED}")
    a("v_add_u32 v7, s30, v5")
    a("s_waitcnt lgkmcnt(0)")
    a("s_barrier")
    stamp(a, 8)
    for dt in range(4):
        for w in range(4):
            r = 32 + (dt * 4 + w) * 4
            a(f"ds_read_b128 v[{r}:{r+3}], v7 offset:{w*P_W + dt*64}")
    a.srd(40, 18, 2048 * 512 * 2)
    a("s_lshl_b32 s30, s25, 16")
    a("s_lshl_b32 s31, s24, 14")
    a("s_add_u32 s30, s30, s31")
    a("s_lshl_b32 s31, s26, 7")
    a("s_add_u32 s30, s30, s31")
    a("v_lshlrev_b32 v9, 10, v6")
    a("v_lshl_add_u32 v9, v3, 3, v9")
    a("v_add_u32 v9, s30, v9")
    for dt in range(4):
        a(f"s_waitcnt lgkmcnt({4*(3-dt)})")
        r = 32 + dt * 16
        for p in range(2):
            a(f"v_pk_add_f32 v[{r+2*p}:{r+2*p+1}], v[{r+2*p}:{r+2*p+1}], v[{r+4+2*p}:{r+5+2*p}]")
            a(f"v_pk_add_f32 v[{r+8+2*p}:{r+9+2*p}], v[{r+8+2*p}:{r+9+2*p}], v[{r+12+2*p}:{r+13+2*p}]")
        for p in range(2):
            a(f"v_pk_add_f32 v[{r+2*p}:{r+2*p+1}], v[{r+2*p}:{r+2*p+1}], v[{r+8+2*p}:{r+9+2*p}]")
        for q in range(2):
            a(f"v_lshlrev_b32 v{120+2*q}, 16, v{224+2*dt+q}")
            a(f"v_and_b32 v{121+2*q}, 0xffff0000, v{224+2*dt+q}")
            a(f"v_lshlrev_b32 v{124+2*q}, 16, v{16+2*dt+q}")
            a(f"v_and_b32 v{125+2*q}, 0xffff0000, v{16+2*dt+q}")
        for p in range(2):
            a(f"v_pk_add_f32 v[{r+2*p}:{r+2*p+1}], v[{r+2*p}:{r+2*p+1}], v[{120+2*p}:{121+2*p}]")
        for p in range(2):
            a(f"v_pk_fma_f32 v[{r+2*p}:{r+2*p+1}], v[{r+2*p}:{r+2*p+1}], v[{208+4*dt+2*p}:{209+4*dt+2*p}], v[{124+2*p}:{125+2*p}]")
        a(f"v_cvt_pk_bf16_f32 v{24+2*dt}, v{r}, v{r+1}")
        a(f"v_cvt_pk_bf16_f32 v{25+2*dt}, v{r+2}, v{r+3}")
        a(f"buffer_store_dwordx2 v[{24+2*dt}:{25+2*dt}], v9, s[40:43], 0 offen offset:{32*dt}")
    a("K3_END:   ; LINT-RESET")
    stamp_store(a, KID3, 14, 24)
    a("K3_EXIT:")
    a.end_kernel(name, 256 + 240, 100, accum=256)


W8_G2T = 65536
W8_SVT = W8_G2T + 2048
W8_STT = W8_SVT + 3072
W8_COF = W8_STT + 4096
W8_RED = W8_COF + 8192
W8_STG = W8_RED + 49152
W8_LDS = W8_RED + 4 * P_W
assert W8_STG + 20480 <= W8_LDS
RING = 32768

def k3w(a):
    name = "k3_kernel"
    a.begin_kernel(name, 256, 512, W8_LDS)
    a("s_cmp_ge_u32 s2, 256")
    a("s_cbranch_scc1 K3_EXIT")
    stamp(a, 0)
    a("s_load_dwordx2 s[14:15], s[0:1], 128")
    a("s_load_dwordx2 s[12:13], s[0:1], 72")
    a("s_load_dwordx2 s[16:17], s[0:1], 88")
    a("s_load_dwordx2 s[18:19], s[0:1], 112")
    wave_id(a, 24, 1)
    a("v_and_b32 v1, 63, v0")
    a("s_and_b32 s20, s24, 3")
    a("s_lshr_b32 s21, s24, 2")
    a("s_and_b32 s25, s2, 7")
    a("s_lshr_b32 s26, s2, 3")
    a("s_lshr_b32 s27, s26, 3")
    a("s_lshl_b32 s25, s25, 2")
    a("s_add_u32 s25, s25, s27")
    a("s_and_b32 s26, s26, 7")
    a("s_mul_i32 s27, s26, 11")
    a("s_min_u32 s27, s27, 76")
    a("s_cmp_lt_u32 s26, 6")
    a("s_cselect_b32 s28, 11, 10")
    a("s_mul_i32 s29, s20, 3")
    for i in range(3):
        a(f"s_add_u32 s30, s29, {i}")
        a("s_add_u32 s31, s30, s27")
        a("s_cmp_lt_u32 s30, s28")
        a(f"s_cselect_b32 s{32+i}, s31, 86")
    a("v_lshrrev_b32 v10, 3, v1")
    a("v_and_b32 v11, 6, v10")
    a("v_and_b32 v12, 7, v1")
    a("v_xor_b32 v11, v11, v12")
    a("v_lshlrev_b32 v11, 4, v11")
    a("v_lshl_add_u32 v11, v10, 7, v11")
    a("s_lshl_b32 s42, s24, 10")
    a("s_lshl_b32 s41, s25, 16")
    a("s_add_u32 s41, s41, s42")
    a(f"s_add_u32 s41, s41, {X2T}")
    a("v_lshlrev_b32 v2, 2, v0")
    a(f"v_add_u32 v4, {G2F}, v2")
    a("v_lshlrev_b32 v13, 4, v1")
    for i in range(3):
        a(f"s_lshl_b32 s30, s{32+i}, 10")
        a(f"v_add_u32 v{14+i}, s30, v13")
    a(f"s_mul_i32 s44, s21, {8*87*1024}")
    a(f"s_add_u32 s44, s44, {W1F}")
    a("s_waitcnt lgkmcnt(0)")
    wsfix(a, 14)
    a.srd(8, 14, WS_USED)
    a("global_load_dword v5, v4, s[14:15]")
    for j in range(8):
        a("s_mov_b32 m0, s42")
        a("s_add_u32 s42, s42, 8192")
        a(f"buffer_load_dwordx4 v11, s[8:11], s41 offen lds")
        a(f"s_add_u32 s41, s41, 8192")
    WR = 208
    DEEP = 3
    def wload(j):
        out = []
        for i in range(3):
            r = WR + (j % DEEP) * 12 + 4 * i
            out.append(f"buffer_load_dwordx4 v[{r}:{r+3}], v{14+i}, s[8:11], s44 offen")
        out.append(f"s_add_u32 s44, s44, {87*1024}")
        return out
    for j in range(2):
        for x in wload(j): a(x)
    a(f"s_mov_b32 s30, {SCAL}")
    a("s_load_dwordx4 s[36:39], s[14:15], s30")
    a(f"s_mov_b32 s31, {SCAL+16}")
    a("s_load_dword s40, s[14:15], s31")
    a("v_lshrrev_b32 v3, 4, v1")
    a("v_and_b32 v6, 15, v1")
    a("v_bfe_u32 v18, v1, 2, 2")
    a("v_lshl_add_u32 v18, v3, 2, v18")
    a("v_and_b32 v19, 6, v18")
    a("v_lshrrev_b32 v19, 1, v19")
    a("v_and_b32 v29, 3, v1")
    a("v_lshlrev_b32 v30, 7, v18")
    a("v_lshl_add_u32 v30, v29, 3, v30")
    a("s_lshl_b32 s45, s21, 15")
    a("s_lshl_b32 s46, s21, 1")
    a("s_add_u32 s46, s46, s20")
    for k in range(4):
        a(f"s_add_u32 s30, s46, {k}")
        a(f"s_and_b32 s{48+k}, s30, 3")
        a(f"v_xor_b32 v31, s{48+k}, v19")
        a(f"v_lshl_add_u32 v{20+k}, v31, 5, v30")
        a(f"v_add_u32 v{20+k}, s45, v{20+k}")
    a("v_xor_b32 v31, s20, v19")
    a("v_lshl_add_u32 v26, v31, 5, v30")
    a("s_lshl_b32 s30, s26, 13")
    a("s_lshl_b32 s31, s21, 12")
    a("s_add_u32 s30, s30, s31")
    a("v_add_u32 v26, s30, v26")
    a("s_lshl_b32 s30, s21, 10")
    a(f"s_add_u32 s30, s30, {W8_G2T}")
    a("v_lshl_add_u32 v24, v3, 4, s30")
    ACC = 160
    for r in range(ACC, ACC + 48): a(f"v_mov_b32 v{r}, 0")
    for r in range(96, 108): a(f"v_mov_b32 v{r}, 0")
    a("s_waitcnt vmcnt(14)")
    a(f"v_add_u32 v2, {W8_G2T}, v2")
    a("ds_write_b32 v2, v5")
    a("v_mov_b32 v7, s32")
    a("v_mov_b32 v8, s33")
    a("v_mov_b32 v9, s34")
    a("v_cmp_eq_u32 vcc, 1, v3")
    a("v_cmp_le_u32 s[52:53], 2, v3")
    a("s_nop 0")
    a("v_cndmask_b32 v7, v7, v8, vcc")
    a("v_cndmask_b32 v7, v7, v9, s[52:53]")
    a("v_min_u32 v7, 85, v7")
    a("v_lshl_add_u32 v7, v7, 4, v6")
    a("v_lshlrev_b32 v8, 2, v7")
    a(f"v_add_u32 v8, {SVP}, v8")
    a("v_lshlrev_b32 v9, 1, v7")
    a("s_mul_i32 s58, s20, 11")
    a("s_cmp_eq_u32 s20, 3")
    a("s_cselect_b32 s58, 32, s58")
    a("s_mul_i32 s59, s26, 43")
    a("s_add_u32 s59, s59, s58")
    a("s_lshl_b32 s59, s59, 12")
    a("s_lshl_b32 s30, s21, 11")
    a("s_add_u32 s59, s59, s30")
    a(f"s_add_u32 s59, s59, {W2F}")
    a.srd(60, 14, WS_USED)
    a("s_cmp_eq_u32 s20, 3")
    a("s_cselect_b32 s62, 0, s10")
    W2R = 108
    def w2reg(j, t):
        idx = 2 * j + t
        return 208 + 4 * idx if idx < 9 else 108 + 4 * (idx - 9)
    drip = []
    items = [(j, t) for j in range(11) for t in range(2)]
    s59off = {}
    late = [it for it in items if 2 * it[0] + it[1] < 9]
    early = [it for it in items if 2 * it[0] + it[1] >= 9]
    for (j, t) in early + late:
        srd = "s[60:63]" if j == 0 else "s[8:11]"
        r = w2reg(j, t)
        drip.append(f"s_add_u32 s57, s59, {4096*j}\nbuffer_load_dwordx4 v[{r}:{r+3}], v13, {srd}, s57 offen offset:{1024*t}")
    a("s_lshl_b32 s30, s26, 8")
    a("s_lshl_b32 s31, s21, 7")
    a("s_add_u32 s30, s30, s31")
    a(f"s_add_u32 s30, s30, {GBF}")
    a("v_lshl_add_u32 v27, v3, 4, s30")
    a("s_lshl_b32 s30, s26, 7")
    a("s_lshl_b32 s31, s21, 6")
    a("s_add_u32 s30, s30, s31")
    a("v_lshl_add_u32 v28, v3, 3, s30")
    gbl = [f"global_load_dwordx4 v[{244+4*t}:{247+4*t}], v27, s[14:15] offset:{64*t}" for t in range(2)]
    gbl += [f"global_load_dwordx2 v[{252+2*t}:{253+2*t}], v28, s[16:17] offset:{32*t}" for t in range(2)]
    a(f"s_waitcnt vmcnt(6) lgkmcnt(0)")
    stamp(a, 1)
    a("s_barrier")
    XF = [32, 48]
    GQ = [64, 72]
    def xreads(j):
        b = XF[j & 1]; g = GQ[j & 1]
        out = []
        for k in range(4):
            for hf in range(2):
                out.append(f"ds_read_b64_tr_b16 v[{b+4*k+2*hf}:{b+4*k+2*hf+1}], v{20+k} offset:{4096*j + 2048*hf}")
        out.append(f"ds_read_b128 v[{g}:{g+3}], v24 offset:{128*j}")
        out.append(f"ds_read_b128 v[{g+4}:{g+7}], v24 offset:{128*j+64}")
        return out
    for x in xreads(0): a(x)
    for x in wload(2): a(x)
    seq = [("W", j) for j in range(3) for _ in range(3)]
    def vmwait(tag):
        last = max(i for i, t in enumerate(seq) if t == tag)
        return len(seq) - 1 - last
    smalls = []
    for kq in range(4):
        for v in range(3):
            smalls.append(f"global_load_dword v{112+kq*3+v}, v8, s[14:15]")
            if not (kq == 3 and v == 2): smalls.append("v_add_u32 v8, 5504, v8")
    smalls.append("global_load_ushort v124, v9, s[12:13]")
    issued = 3
    for j in range(8):
        b = XF[j & 1]; g = GQ[j & 1]
        a(f"s_waitcnt vmcnt({vmwait(('W', j))}) lgkmcnt(0)")
        mf = []
        for i in range(3):
            r = WR + (j % DEEP) * 12 + 4 * i
            for k in range(4):
                d = ACC + (i * 4 + k) * 4
                mf.append(f"v_mfma_f32_16x16x32_bf16 v[{d}:{d+3}], v[{r}:{r+3}], v[{b+4*k}:{b+4*k+3}], v[{d}:{d+3}]")
        va = []
        if j + 1 < 8: va += xreads(j + 1)
        post = []
        if issued < 8:
            post = wload(issued); seq += [("W", issued)] * 3; issued += 1
        elif j == 6:
            post = smalls + gbl; seq += [("S", 0)] * 13 + [("G", 0)] * 4
        for q_ in range(4):
            va.append(f"v_lshlrev_b32 v{80+2*q_}, 16, v{b+q_}")
            va.append(f"v_and_b32 v{81+2*q_}, 0xffff0000, v{b+q_}")
        for q_ in range(8): va.append(f"v_mul_f32 v{80+q_}, v{80+q_}, v{80+q_}")
        for q_ in range(8):
            va.append(f"v_add_f32 v{96+(q_&3)}, v{96+(q_&3)}, v{80+q_}")
            va.append(f"v_fmac_f32 v{100+q_}, v{80+q_}, v{g+q_}")
        per = -(-len(va) // 12)
        vi = 0
        for m in mf:
            a(m)
            for _ in range(per):
                if vi < len(va): a(va[vi]); vi += 1
        for x in post: a(x)
    stamp(a, 2)
    def dr(n=1):
        for _ in range(n):
            if drip: a(drip.pop(0))
    a(f"s_mul_i32 s30, s24, 6144")
    a(f"s_add_u32 s30, s30, {W8_RED}")
    a("v_add_u32 v2, s30, v13")
    a("s_xor_b32 s31, s24, 4")
    a(f"s_mul_i32 s31, s31, 6144")
    a(f"s_add_u32 s31, s31, {W8_RED}")
    a("v_add_u32 v25, s31, v13")
    a("v_pk_add_f32 v[96:97], v[96:97], v[98:99]")
    a("v_add_f32 v96, v96, v97")
    a("v_pk_add_f32 v[100:101], v[100:101], v[102:103]")
    a("v_pk_add_f32 v[104:105], v[104:105], v[106:107]")
    a("v_pk_add_f32 v[100:101], v[100:101], v[104:105]")
    a("v_add_f32 v97, v100, v101")
    for i in range(3):
        for k in (2, 3):
            d = ACC + (i * 4 + k) * 4
            a(f"ds_write_b128 v2, v[{d}:{d+3}] offset:{(i*2 + k - 2)*1024}")
    a("v_mov_b32 v98, v96")
    a("v_mov_b32 v99, v97")
    a("s_nop 0")
    a("v_permlane16_swap_b32 v96, v98")
    a("v_permlane16_swap_b32 v97, v99")
    dr(1)
    a("v_add_f32 v96, v96, v98")
    a("v_add_f32 v97, v97, v99")
    a("v_mov_b32 v98, v96")
    a("v_mov_b32 v99, v97")
    a("s_nop 0")
    a("v_permlane32_swap_b32 v96, v98")
    a("v_permlane32_swap_b32 v97, v99")
    a("s_lshl_b32 s30, s48, 10")
    a("s_lshl_b32 s31, s21, 5")
    a("s_add_u32 s30, s30, s31")
    a(f"s_add_u32 s30, s30, {W8_STT}")
    a("v_add_f32 v96, v96, v98")
    a("v_add_f32 v97, v97, v99")
    a("v_lshl_add_u32 v2, v6, 6, s30")
    a("ds_write_b64 v2, v[96:97] offset:24")
    a("s_cmp_eq_u32 s20, 3")
    a("s_cbranch_scc0 K3_nolin")
    a("v_cmp_eq_u32 s[52:53], 0, v3")
    a("v_cmp_eq_u32 s[54:55], 1, v3")
    for k in range(4):
        a(f"s_lshl_b32 s30, s{48+k}, 10")
        a("s_lshl_b32 s31, s21, 5")
        a("s_add_u32 s30, s30, s31")
        a(f"s_add_u32 s30, s30, {W8_STT}")
        a(f"v_lshl_add_u32 v{64+k}, v6, 6, s30")
    a("s_mov_b64 exec, s[52:53]")
    for k in range(4):
        d = ACC + (8 + k) * 4
        a(f"ds_write_b128 v{64+k}, v[{d}:{d+3}]")
    a("s_mov_b64 exec, s[54:55]")
    for k in range(4):
        d = ACC + (8 + k) * 4
        a(f"ds_write_b64 v{64+k}, v[{d}:{d+1}] offset:16")
    a("s_mov_b64 exec, -1")
    a("K3_nolin:")
    a("s_cmp_eq_u32 s21, 0")
    a("s_cbranch_scc0 K3_nosv")
    a(f"s_waitcnt vmcnt({vmwait(('S', 0)) + 1})")
    for v in range(3):
        a(f"v_add_f32 v{112+v}, v{112+v}, v{115+v}")
        a(f"v_add_f32 v{118+v}, v{118+v}, v{121+v}")
        a(f"v_add_f32 v{112+v}, v{112+v}, v{118+v}")
    a("v_lshlrev_b32 v124, 16, v124")
    a("s_mul_i32 s30, s20, 768")
    a(f"s_add_u32 s30, s30, {W8_SVT}")
    a("v_lshlrev_b32 v2, 8, v3")
    a("v_lshl_add_u32 v2, v6, 2, v2")
    a("v_add_u32 v2, s30, v2")
    a("v_cmp_gt_u32 vcc, 48, v1")
    a("s_and_saveexec_b64 s[42:43], vcc")
    a("ds_write_b32 v2, v112")
    a("ds_write_b32 v2, v114 offset:64")
    a("ds_write_b32 v2, v113 offset:128")
    a("ds_write_b32 v2, v124 offset:192")
    a("s_mov_b64 exec, s[42:43]")
    a("K3_nosv:   ; LINT-RESET")
    a("s_waitcnt vmcnt(1) lgkmcnt(0)")
    a("s_barrier")
    for i in range(3):
        for k in range(2):
            r = 64 + (i * 2 + k) * 4
            a(f"ds_read_b128 v[{r}:{r+3}], v25 offset:{(i*2 + k)*1024}")
    a("v_lshlrev_b32 v2, 6, v1")
    a(f"v_add_u32 v2, {W8_STT}, v2")
    a("ds_read_b128 v[32:35], v2")
    a("ds_read_b128 v[36:39], v2 offset:16")
    a("ds_read_b128 v[40:43], v2 offset:32")
    a("ds_read_b128 v[44:47], v2 offset:48")
    dr(2)
    a("s_waitcnt lgkmcnt(4)")
    for i in range(3):
        for k in range(2):
            d = ACC + (i * 4 + k) * 4; r = 64 + (i * 2 + k) * 4
            a(f"v_pk_add_f32 v[{d}:{d+1}], v[{d}:{d+1}], v[{r}:{r+1}]")
            a(f"v_pk_add_f32 v[{d+2}:{d+3}], v[{d+2}:{d+3}], v[{r+2}:{r+3}]")
    a("s_waitcnt lgkmcnt(0)")
    for r in range(0, 8, 2): a(f"v_pk_add_f32 v[{32+r}:{33+r}], v[{32+r}:{33+r}], v[{40+r}:{41+r}]")
    dr(1)
    a("v_add_f32 v34, v34, v35")
    a("v_add_f32 v36, v36, v37")
    a("v_mul_f32 v32, 0x3b000000, v32")
    a("v_mul_f32 v38, 0x3b000000, v38")
    a("v_fma_f32 v38, -v32, v32, v38")
    a("v_max_f32 v38, 0, v38")
    a("v_cvt_pk_bf16_f32 v40, v32, v38")
    a("v_lshlrev_b32 v32, 16, v40")
    a("v_and_b32 v38, 0xffff0000, v40")
    a("v_add_f32 v38, 0x3727c5ac, v38")
    rbf(a, 38, 38)
    a("v_sqrt_f32 v38, v38")
    a("v_fma_f32 v33, -v32, s36, v33")
    rbf(a, 38, 38)
    a("v_rcp_f32 v38, v38")
    a("v_mul_f32 v40, v32, v32")
    a("v_add_f32 v41, v32, v32")
    a("v_fma_f32 v39, -v41, v34, v39")
    a("v_fma_f32 v39, v40, s37, v39")
    a("v_fma_f32 v36, -v32, s38, v36")
    a("v_fma_f32 v33, v33, v38, s39")
    a("v_add_f32 v36, v36, v36")
    a("v_fma_f32 v39, v39, v38, v36")
    a("v_mul_f32 v33, 0x3b000000, v33")
    dr(1)
    a("v_fma_f32 v39, v39, v38, s40")
    a("v_mul_f32 v39, 0x3b000000, v39")
    a("v_fma_f32 v39, -v33, v33, v39")
    a("v_max_f32 v39, 0, v39")
    a("v_cvt_pk_bf16_f32 v40, v33, v39")
    a("v_lshlrev_b32 v33, 16, v40")
    a("v_and_b32 v39, 0xffff0000, v40")
    a("v_add_f32 v39, 0x3727c5ac, v39")
    rbf(a, 39, 39)
    a("v_sqrt_f32 v39, v39")
    a("s_nop 0")
    rbf(a, 39, 39)
    a("v_rcp_f32 v47, v39")
    a("s_lshl_b32 s30, s24, 10")
    a(f"s_add_u32 s30, s30, {W8_COF}")
    a("v_mul_f32 v44, v47, v38")
    a("v_mul_f32 v46, -v47, v33")
    a("v_mul_f32 v45, -v44, v32")
    a("v_lshl_add_u32 v2, v1, 4, s30")
    a("ds_write_b128 v2, v[44:47]")
    a("s_waitcnt lgkmcnt(0)")
    for k in range(2):
        a(f"s_lshl_b32 s31, s{48+k}, 8")
        a("s_add_u32 s31, s31, s30")
        a(f"v_lshl_add_u32 v2, v6, 4, s31")
        a(f"ds_read_b128 v[{48+4*k}:{51+4*k}], v2")
    a("s_mul_i32 s30, s20, 768")
    a(f"s_add_u32 s30, s30, {W8_SVT}")
    a("v_lshl_add_u32 v25, v3, 4, s30")
    a("s_mov_b32 s54, 0xbdd2d3e2")
    a("s_mov_b32 s55, 0xc0135761")
    dr(2)
    stamp(a, 3)
    for i in range(3):
        a(f"s_cmp_eq_u32 s{32+i}, 86")
        a(f"s_cbranch_scc1 K3_skip{i}")
        for st in range(4):
            a(f"ds_read_b128 v[{64+4*st}:{67+4*st}], v25 offset:{256*i + 64*st}")
        a(f"s_add_u32 s30, s29, {i}")
        a("s_lshr_b32 s31, s30, 1")
        a("s_lshl_b32 s31, s31, 12")
        a("s_and_b32 s30, s30, 1")
        a("s_lshl_b32 s30, s30, 3")
        a("s_add_u32 s30, s30, s31")
        a(f"s_add_u32 s30, s30, {W8_STG}")
        a("s_waitcnt lgkmcnt(0)")
        A_ = ACC + i * 16
        for (src, co, sel) in ((64, 0, "op_sel:[0,1,0] op_sel_hi:[1,1,1]"), (68, 2, "op_sel_hi:[1,0,1]"), (72, 2, "op_sel:[0,1,0] op_sel_hi:[1,1,1]")):
            for k in range(2):
                c = 48 + 4 * k
                for p in range(2):
                    t = 80 + 4 * k + 2 * p
                    s2 = f"v[{76+2*p}:{77+2*p}]" if src == 64 else f"v[{t}:{t+1}]"
                    a(f"v_pk_fma_f32 v[{t}:{t+1}], v[{src+2*p}:{src+2*p+1}], v[{c+co}:{c+co+1}], {s2} {sel}")
            if i == 0: dr(1)
        for k in range(2):
            c = 48 + 4 * k
            for p in range(2):
                x = A_ + 4 * k + 2 * p; t = 80 + 4 * k + 2 * p
                a(f"v_pk_fma_f32 v[{x}:{x+1}], v[{x}:{x+1}], v[{c}:{c+1}], v[{t}:{t+1}] op_sel_hi:[1,0,1]")
        for j in range(4):
            x = A_ + 2 * j; t = 80 + 2 * j
            a(f"v_pk_mul_f32 v[{t}:{t+1}], v[{x}:{x+1}], v[{x}:{x+1}]")
        for j in range(4):
            t = 80 + 2 * j
            a(f"v_pk_fma_f32 v[{t}:{t+1}], v[{t}:{t+1}], s[54:55], s[54:55] op_sel:[0,0,1] op_sel_hi:[1,0,1]")
        for j in range(4):
            x = A_ + 2 * j; t = 80 + 2 * j
            a(f"v_pk_mul_f32 v[{t}:{t+1}], v[{t}:{t+1}], v[{x}:{x+1}]")
        if i == 0: dr(1)
        for j in range(8): a(f"v_exp_f32 v{80+j}, v{80+j}")
        for j in range(4):
            t = 80 + 2 * j
            a(f"v_pk_add_f32 v[{t}:{t+1}], v[{t}:{t+1}], 1.0 op_sel_hi:[1,0]")
        for j in range(8): a(f"v_rcp_f32 v{80+j}, v{80+j}")
        if i == 0: dr(1)
        for j in range(4):
            x = A_ + 2 * j; t = 80 + 2 * j
            a(f"v_pk_mul_f32 v[{x}:{x+1}], v[{x}:{x+1}], v[{t}:{t+1}]")
        for k in range(2):
            a(f"v_cvt_pk_bf16_f32 v{88+2*k}, v{A_+4*k}, v{A_+4*k+1}")
            a(f"v_cvt_pk_bf16_f32 v{89+2*k}, v{A_+4*k+2}, v{A_+4*k+3}")
        if i == 1:
            a("s_cmp_eq_u32 s29, 9")
            a("s_cbranch_scc0 K3_paired1")
            a("s_lshr_b32 s31, s26, 1")
            a("s_add_u32 s31, s31, 40")
            a("s_mul_i32 s43, s25, 43")
            a("s_add_u32 s31, s31, s43")
            a("s_lshl_b32 s31, s31, 12")
            a("s_and_b32 s43, s26, 1")
            a("s_lshl_b32 s43, s43, 3")
            a("s_add_u32 s31, s31, s43")
            a(f"s_add_u32 s31, s31, {HF}")
            for k in range(2):
                a(f"s_lshl_b32 s43, s{48+k}, 10")
                a("s_add_u32 s43, s43, s31")
                a(f"buffer_store_dwordx2 v[{88+2*k}:{89+2*k}], v13, s[8:11], s43 offen sc1")
            a("s_branch K3_skip1")
            a("K3_paired1:")
        for k in range(2):
            a(f"s_lshl_b32 s31, s{48+k}, 10")
            a("s_add_u32 s31, s31, s30")
            a(f"v_add_u32 v2, s31, v13")
            a(f"ds_write_b64 v2, v[{88+2*k}:{89+2*k}]")
        a(f"K3_skip{i}:   ; LINT-RESET")
        dr(2)
    dr(99)
    for t in range(2):
        a(f"ds_read_b64_tr_b16 v[{16+2*t}:{17+2*t}], v26 offset:{2048*t}")
    a("s_waitcnt lgkmcnt(0)")
    a("s_barrier")
    stamp(a, 4)
    a("s_lshl_b32 s30, s24, 10")
    a("v_add_u32 v2, s30, v13")
    a(f"v_add_u32 v2, {W8_STG}, v2")
    a("ds_read_b128 v[32:35], v2")
    a("ds_read_b128 v[36:39], v2 offset:8192")
    a("s_mul_i32 s31, s25, 43")
    a("s_mul_i32 s43, s26, 5")
    a("s_add_u32 s31, s31, s43")
    a("s_lshl_b32 s31, s31, 12")
    a("s_add_u32 s31, s31, s30")
    a(f"s_add_u32 s31, s31, {HF}")
    a("s_waitcnt lgkmcnt(1)")
    a("buffer_store_dwordx4 v[32:35], v13, s[8:11], s31 offen sc1")
    a("s_add_u32 s31, s31, 8192")
    a("s_waitcnt lgkmcnt(0)")
    a("buffer_store_dwordx4 v[36:39], v13, s[8:11], s31 offen sc1")
    a("s_cmp_lt_u32 s24, 4")
    a("s_cbranch_scc0 K3_no3rd")
    a("ds_read_b128 v[40:43], v2 offset:16384")
    a("s_add_u32 s31, s31, 8192")
    a("s_waitcnt lgkmcnt(0)")
    a("buffer_store_dwordx4 v[40:43], v13, s[8:11], s31 offen sc1")
    a("K3_no3rd:   ; LINT-RESET")
    ACB = 176
    for r in range(ACB, ACB + 32): a(f"v_mov_b32 v{r}, 0")
    a("s_waitcnt vmcnt(0)")
    stamp(a, 5)
    a("s_barrier")
    a("s_cmp_lg_u32 s24, 0")
    a("s_cbranch_scc1 K3_wait")
    a("s_lshl_b32 s30, s25, 7")
    a(f"s_add_u32 s30, s30, {FLAGS}")
    a("v_mov_b32 v2, s30")
    a("v_mov_b32 v4, 1")
    a("s_mov_b64 exec, 1")
    a("global_atomic_add v4, v2, v4, s[14:15] sc0 sc1")
    a("s_waitcnt vmcnt(0)")
    a("v_readfirstlane_b32 s30, v4")
    a("s_cmp_eq_u32 s30, 7")
    a("s_cbranch_scc1 K3_pollx")
    a("s_mov_b32 s31, 0x100000")
    a("K3_poll:")
    a("global_load_dword v5, v2, s[14:15] sc1")
    a("s_waitcnt vmcnt(0)")
    a("v_readfirstlane_b32 s30, v5")
    a("s_sub_u32 s31, s31, 1")
    a("s_cmp_eq_u32 s31, 0")
    a("s_cbranch_scc1 K3_pollx")
    a("s_cmp_ge_u32 s30, 8")
    a("s_cbranch_scc0 K3_poll")
    a("K3_pollx:")
    a("s_mov_b64 exec, -1")
    a("K3_wait:   ; LINT-RESET")
    a("s_barrier")
    stamp(a, 6)
    SLOT = 16384; NS = 6
    a("s_mul_i32 s57, s25, 43")
    a("s_add_u32 s57, s57, s58")
    a("s_lshl_b32 s57, s57, 12")
    a("s_lshl_b32 s30, s21, 11")
    a("s_add_u32 s57, s57, s30")
    a(f"s_add_u32 s57, s57, {HF}")
    a("s_lshl_b32 s56, s20, 12")
    a("s_add_u32 s56, s56, s30")
    a("s_lshl_b32 s30, s20, 12")
    a("v_add_u32 v4, s30, v13")
    a(f"v_add_u32 v8, {4*SLOT}, v4")
    def hdma(j):
        return [f"s_add_u32 m0, s56, {(j % NS) * SLOT}\ns_add_u32 s43, s57, {4096 * j}\nbuffer_load_dwordx4 v13, s[8:11], s43 offen offset:{1024*t} lds" for t in range(2)]
    def hread(j):
        sl = j % NS
        base, off = ("v4", sl * SLOT) if sl < 4 else ("v8", (sl - 4) * SLOT)
        return [f"ds_read_b128 v[{HB[j & 1] + 4*lt}:{HB[j & 1] + 4*lt + 3}], {base} offset:{off + lt * 1024}" for lt in range(4)]
    HB = [32, 48]
    AHEAD = 5
    hq = []
    for j in range(AHEAD):
        for x in hdma(j): a(x); hq.append(j)
    a(f"s_waitcnt vmcnt({sum(1 for t in hq if t > 0)})")
    a("s_barrier")
    for x in hread(0): a(x)
    for j in range(11):
        if j + 1 <= 10:
            a(f"s_waitcnt vmcnt({sum(1 for t in hq if t > j + 1)}) lgkmcnt(0)")
            a("s_barrier")
            rd = hread(j + 1)
        else:
            a("s_waitcnt lgkmcnt(0)")
            rd = []
        nxt = hdma(j + AHEAD) if j + AHEAD <= 10 else []
        hq += [j + AHEAD] * len(nxt)
        extra = rd + nxt
        ei = 0
        for t in range(2):
            for lt in range(4):
                d = ACB + (t * 4 + lt) * 4
                ar = w2reg(j, t); br = HB[j & 1] + 4 * lt
                a(f"v_mfma_f32_16x16x32_bf16 v[{d}:{d+3}], v[{ar}:{ar+3}], v[{br}:{br+3}], v[{d}:{d+3}]")
                if ei < len(extra): a(extra[ei]); ei += 1
    stamp(a, 7)
    a("v_mul_u32_u24 v5, 272, v6")
    a("v_lshl_add_u32 v5, v3, 4, v5")
    a(f"s_mul_i32 s30, s20, {P_W}")
    a("s_lshl_b32 s31, s21, 7")
    a("s_add_u32 s30, s30, s31")
    a(f"s_add_u32 s30, s30, {W8_RED}")
    a("v_add_u32 v7, s30, v5")
    a("s_barrier")
    a("s_nop 4")
    for t in range(2):
        for lt in range(4):
            d = ACB + (t * 4 + lt) * 4
            a(f"ds_write_b128 v7, v[{d}:{d+3}] offset:{lt*16*272 + t*64}")
    a(f"s_mul_i32 s30, s20, {16*272}")
    a("s_lshl_b32 s31, s21, 7")
    a("s_add_u32 s30, s30, s31")
    a(f"s_add_u32 s30, s30, {W8_RED}")
    a("v_add_u32 v7, s30, v5")
    a("s_waitcnt lgkmcnt(0)")
    a("s_barrier")
    stamp(a, 8)
    for t in range(2):
        for w in range(4):
            r = 32 + (t * 4 + w) * 4
            a(f"ds_read_b128 v[{r}:{r+3}], v7 offset:{w*P_W + t*64}")
    a.srd(40, 18, 2048 * 512 * 2)
    a("s_lshl_b32 s30, s25, 16")
    a("s_lshl_b32 s31, s20, 14")
    a("s_add_u32 s30, s30, s31")
    a("s_lshl_b32 s31, s26, 7")
    a("s_add_u32 s30, s30, s31")
    a("s_lshl_b32 s31, s21, 6")
    a("s_add_u32 s30, s30, s31")
    a("v_lshlrev_b32 v9, 10, v6")
    a("v_lshl_add_u32 v9, v3, 3, v9")
    a("v_add_u32 v9, s30, v9")
    for t in range(2):
        a(f"s_waitcnt lgkmcnt({4*(1-t)})")
        r = 32 + t * 16
        for p in range(2):
            a(f"v_pk_add_f32 v[{r+2*p}:{r+2*p+1}], v[{r+2*p}:{r+2*p+1}], v[{r+4+2*p}:{r+5+2*p}]")
            a(f"v_pk_add_f32 v[{r+8+2*p}:{r+9+2*p}], v[{r+8+2*p}:{r+9+2*p}], v[{r+12+2*p}:{r+13+2*p}]")
        for p in range(2):
            a(f"v_pk_add_f32 v[{r+2*p}:{r+2*p+1}], v[{r+2*p}:{r+2*p+1}], v[{r+8+2*p}:{r+9+2*p}]")
        for q_ in range(2):
            a(f"v_lshlrev_b32 v{96+2*q_}, 16, v{252+2*t+q_}")
            a(f"v_and_b32 v{97+2*q_}, 0xffff0000, v{252+2*t+q_}")
            a(f"v_lshlrev_b32 v{100+2*q_}, 16, v{16+2*t+q_}")
            a(f"v_and_b32 v{101+2*q_}, 0xffff0000, v{16+2*t+q_}")
        for p in range(2):
            a(f"v_pk_add_f32 v[{r+2*p}:{r+2*p+1}], v[{r+2*p}:{r+2*p+1}], v[{96+2*p}:{97+2*p}]")
        for p in range(2):
            a(f"v_pk_fma_f32 v[{r+2*p}:{r+2*p+1}], v[{r+2*p}:{r+2*p+1}], v[{244+4*t+2*p}:{245+4*t+2*p}], v[{100+2*p}:{101+2*p}]")
        a(f"v_cvt_pk_bf16_f32 v{24+2*t}, v{r}, v{r+1}")
        a(f"v_cvt_pk_bf16_f32 v{25+2*t}, v{r+2}, v{r+3}")
        a(f"buffer_store_dwordx2 v[{24+2*t}:{25+2*t}], v9, s[40:43], 0 offen offset:{32*t}")
    a("K3_END:   ; LINT-RESET")
    stamp_store(a, KID3, 14, 24)
    a("K3_EXIT:")
    a.end_kernel(name, 256, 100, accum=256)

def triv(a, i):
    name = f"t{i}_kernel"
    a.begin_kernel(name, 256, 256, 0)
    a.end_kernel(name, 8, 16)
def build(kernels):
    global LASTLABEL, KID3, FUSED
    FUSED = kernels[0].__name__ == "k12"
    KID3 = len(kernels) - 1
    LASTLABEL = {"k1": "K1_EXIT", "k2": "K2_EXIT", "k12": "K2_EXIT", "k3": "K3_EXIT", "k3w": "K3_EXIT"}[kernels[-1].__name__]
    a = Asm()
    for i in range(int(OPT.get("pre_triv", "0"))): triv(a, 10 + i)
    for k in kernels: k(a)
    for i in range(int(OPT.get("extra", "0"))): triv(a, i)
    return a.text().replace("None\n", "")

ALL = {}
if __name__ == "__main__":
    out = sys.argv[1] if len(sys.argv) > 1 else "cur.s"
    names = sys.argv[2].split(",") if len(sys.argv) > 2 else ["k1"]
    if len(sys.argv) > 3 and sys.argv[3] == "prof": PROF = True
    open(out, "w").write(build([globals()[n] for n in names]))
```
